```python
import torch

def _softmax(x, axis=-1):
    return torch.softmax(x, dim=axis)
def _gelu(x):
    return torch.nn.functional.gelu(x, approximate="tanh")
def _silu(x):
    return torch.nn.functional.silu(x)
def _sigmoid(x):
    return torch.sigmoid(x)
def _layernorm(x, axis=-1, eps=1e-5):
    m = x.mean(dim=axis, keepdim=True)
    v = x.var(dim=axis, keepdim=True, unbiased=False)
    return (x - m) / torch.sqrt(v + eps)
def _scatter_add(tgt, idx, src, axis=0):
    return tgt.clone().index_add_(axis, idx, src)
def _segment_sum(src, seg, n):
    out = torch.zeros((n,) + src.shape[1:], dtype=src.dtype)
    return out.index_add_(0, seg, src)
def _pad(x, pw):
    flat = tuple(v for pair in reversed(pw) for v in pair)
    return torch.nn.functional.pad(x, flat)

kernel_name = 'interleave_layers__linear_attn_block__mixer_channel_mlp__prompt'

def setup_inputs():

    _w = (lambda a: (lambda t: t.to(torch.bfloat16) if t.is_floating_point() else t)(torch.as_tensor(a)))
    def _A_setup():
        B, S, D = 1, 2048, 576
        return {
            "x": _w((lambda *s: torch.randn(*s, dtype=torch.bfloat16) * 0.05)(B, S, D)),
            "wqkv": _w((lambda *s: torch.randn(*s, dtype=torch.bfloat16) * 0.1)(D, 3 * D)),
            "wo": _w((lambda *s: torch.randn(*s, dtype=torch.bfloat16) * 0.05)(D, D)),
        }
    _A_in = _A_setup()

    def _B_setup():
        B, S, D, F = 1, 2048, 576, 4608
        return {
            "x": _w((lambda *s: torch.randn(*s, dtype=torch.bfloat16) * 0.05)(B, S, D)),
            "w1": _w((lambda *s: torch.randn(*s, dtype=torch.bfloat16) * 3.2)(D, F) * (D ** -0.5)),
            "b1": _w((lambda *s: torch.randn(*s, dtype=torch.bfloat16) * 1.6)(F)),
            "w2": _w((lambda *s: torch.randn(*s, dtype=torch.bfloat16) * 1.6)(F, D) * (F ** -0.5)),
            "b2": _w((lambda *s: torch.randn(*s, dtype=torch.bfloat16) * 1.6)(D)),
        }
    _B_in = _B_setup()

    return {
        "A_x": _A_in["x"],
        "A_wqkv": _A_in["wqkv"],
        "A_wo": _A_in["wo"],
        "B_x": _B_in["x"],
        "B_w1": _B_in["w1"],
        "B_b1": _B_in["b1"],
        "B_w2": _B_in["w2"],
        "B_b2": _B_in["b2"],
    }

def reference(A_x, A_wqkv, A_wo, B_x, B_w1, B_b1, B_w2, B_b2):
    def _A_ref(x, wqkv, wo):
        B, S, D = x.shape
        H = 32; Dh = D // H
        qkv = (lambda x, *d: x.permute(*d))((x @ wqkv).reshape(B, S, 3, H, Dh), 2, 0, 3, 1, 4)
        q, k, v = qkv[0], qkv[1], qkv[2]
        phi = lambda t: torch.where(t > 0, t + 1, torch.exp(t)) + 1e-6
        pq, pk = phi(q), phi(k)
        kv = torch.einsum("bhsd,bhse->bhde", pk, v)
        z = torch.einsum("bhsd->bhd", pk)
        num = torch.einsum("bhqd,bhde->bhqe", pq, kv)
        den = torch.einsum("bhqd,bhd->bhq", pq, z)[..., None] + 1e-6
        o = num / den
        return (lambda x, *d: x.permute(*d))(o, 0, 2, 1, 3).reshape(B, S, D) @ wo

    def _B_ref(x, w1, b1, w2, b2):
        y = _layernorm(x, axis=-1)
        h = _gelu(torch.einsum("bsd,df->bsf", y, w1) + b1)
        return torch.einsum("bsf,fd->bsd", h, w2) + b2

    x = A_x
    x = x + _A_ref(_layernorm(x, axis=-1), A_wqkv, A_wo)
    x = x + _B_ref(_layernorm(x, axis=-1), B_w1, B_b1, B_w2, B_b2)
    x = x + _A_ref(_layernorm(x, axis=-1), A_wqkv, A_wo)
    x = x + _B_ref(_layernorm(x, axis=-1), B_w1, B_b1, B_w2, B_b2)
    return x
```

```python
import re

def _expand(tok):
    tok = tok.strip()
    tok = re.sub(r'^-', '', tok)
    m = re.match(r'^(?:abs\(|\|)(.*?)(?:\)|\|)$', tok)
    if m: tok = m.group(1)
    m = re.match(r'^([vsa])\[(\d+):(\d+)\]$', tok)
    if m: return [f"{m.group(1)}{i}" for i in range(int(m.group(2)), int(m.group(3)) + 1)]
    m = re.match(r'^([vsa])(\d+)$', tok)
    if m: return [tok]
    if tok in ('vcc', 'exec'): return [tok]
    if tok in ('vcc_lo', 'vcc_hi'): return ['vcc']
    if tok in ('exec_lo', 'exec_hi'): return ['exec']
    if tok == 'm0': return ['m0']
    return []

TRANS = ('v_exp_f32', 'v_log_f32', 'v_rcp_f32', 'v_rsq_f32', 'v_sqrt_f32', 'v_sin_f32', 'v_cos_f32', 'v_rcp_iflag_f32')

class I:
    __slots__ = ('text', 'op', 'kind', 'w', 'r', 'tag', 'needs', 'srcC', 'passes', 'isdma', 'wide', 'sdata')
    def __init__(self, text, tag=None, needs=()):
        self.text = text.strip(); self.tag = tag; self.needs = list(needs)
        self.srcC = []; self.passes = 0; self.isdma = False; self.wide = False; self.sdata = []
        t = self.text.split(';')[0].strip()
        if t.endswith(':') or t == '' or t.startswith('.'):
            self.op = 'label' if t.endswith(':') else 'dir'; self.kind = self.op; self.w = []; self.r = []; return
        parts = t.split(None, 1)
        self.op = op = re.sub(r'_(e32|e64|dpp|sdwa)$', '', parts[0])
        rest = parts[1] if len(parts) > 1 else ''
        ops = [x.strip() for x in re.split(r',(?![^\[]*\])', rest)]
        mods = ''
        if ops:
            lp = ops[-1].split(None, 1)
            if lp:
                ops[-1] = lp[0]
                mods = lp[1] if len(lp) > 1 else ''
        E = lambda i: _expand(ops[i]) if i < len(ops) else []
        allr = lambda a: [x for i in range(a, len(ops)) for x in E(i)]
        w, r = [], []
        if op.startswith('v_mfma'):
            self.kind = 'mfma'; w = E(0); r = E(1) + E(2) + E(3); self.srcC = E(3)
            self.passes = 8 if '32x32' in op else 4
        elif op.startswith('ds_read') or op.startswith('ds_bpermute') or op.startswith('ds_swizzle') or op.startswith('ds_permute'):
            self.kind = 'dsr'; w = E(0); r = allr(1)
        elif op.startswith('ds_write') or op.startswith('ds_add'):
            self.kind = 'dsw'; r = allr(0)
        elif op.startswith('buffer_load') or op.startswith('global_load'):
            self.kind = 'vm'
            if ' lds' in (' ' + mods) or op.startswith('global_load_lds'):
                self.isdma = True; r = allr(0) + ['m0']
            else:
                w = E(0); r = allr(1)
                if 'd16' in op: r += E(0)
        elif op.startswith('buffer_store') or op.startswith('global_store') or op.startswith('buffer_atomic') or op.startswith('global_atomic'):
            self.kind = 'vm'; r = allr(0)
            if op.startswith('buffer_'): self.sdata = E(0)
            else: self.sdata = E(1)
            if 'x4' in op or 'x3' in op: self.wide = True
            if 'atomic' in op and 'sc0' in mods: w = E(0)
        elif op.startswith('buffer_wbl2') or op.startswith('buffer_inv'):
            self.kind = 'vm'
        elif op.startswith('s_load') or op.startswith('s_memtime') or op.startswith('s_memrealtime') or op.startswith('s_buffer_load'):
            self.kind = 'smem'; w = E(0); r = allr(1)
        elif op in ('s_waitcnt', 's_barrier', 's_nop', 's_setprio', 's_endpgm', 's_sleep', 's_branch') or op.startswith('s_cbranch'):
            self.kind = 'ctl'
            if 'scc' in op: r = ['scc']
            if 'vcc' in op: r = ['vcc']
            if 'exec' in op: r = ['exec']
        elif op.startswith('s_cmp') or op.startswith('s_bitcmp'):
            self.kind = 'salu'; w = ['scc']; r = allr(0)
        elif op.startswith('s_'):
            self.kind = 'salu'; w = E(0); r = allr(1)
            if 'saveexec' in op: w += ['exec']; r += ['exec']
            if op in ('s_addc_u32', 's_subb_u32', 's_cselect_b32', 's_cselect_b64'): r += ['scc']
            if op in ('s_addk_i32', 's_mulk_i32'): r += E(0)
            if not op.startswith('s_mov') and not op.startswith('s_mul') and not op.startswith('s_cselect') and not op.startswith('s_getreg'): w += ['scc']
        elif op.startswith('v_'):
            self.kind = 'trans' if op in TRANS else 'valu'
            if op.startswith('v_cmp'):
                w = E(0); r = allr(1)
                if op.startswith('v_cmpx'): w += ['exec']
            elif op in ('v_add_co_u32', 'v_sub_co_u32', 'v_addc_co_u32', 'v_subb_co_u32'):
                w = E(0) + E(1); r = allr(2)
            elif op.startswith('v_permlane') and 'swap' in op:
                w = E(0) + E(1); r = E(0) + E(1)
            else:
                w = E(0); r = allr(1)
                if op.startswith('v_fmac') or op.startswith('v_pk_fmac') or op in ('v_writelane_b32',) or op.startswith('v_dot2c'): r += E(0)
                if ('row_' in mods or 'quad_perm' in mods or 'wave_' in mods or 'bank_mask' in mods): self.kind = 'dpp'; r += E(0)
                if 'dst_sel' in mods or 'op_sel' in mods: r += E(0)
        else:
            raise ValueError("unknown op " + text)
        self.w = w; self.r = r
    def states(self):
        if self.op == 's_nop':
            return int(self.text.split()[1], 0) + 1
        if self.kind in ('label', 'dir'): return 0
        return 1
    def isvalu(self): return self.kind in ('valu', 'trans', 'dpp')

class Prog:
    def __init__(self):
        self.ins = []
    def add(self, text, tag=None, needs=()):
        for line in text.split('\n'):
            if line.strip(): self.ins.append(I(line, tag, needs))
        return self
    def __call__(self, text, tag=None, needs=()): return self.add(text, tag, needs)
    def ext(self, lst):
        for x in lst:
            if isinstance(x, I): self.ins.append(x)
            else: self.add(x)
    def resolve_waits(self, check_only=False):
        out = []
        vm = []
        lg = []
        def need_vm(pred):
            idx = -1
            for k, o in enumerate(vm):
                if pred(o): idx = k
            return idx
        for ins in self.ins:
            if ins.op == 's_waitcnt':
                m = re.search(r'vmcnt\((\d+)\)', ins.text)
                if m:
                    n = int(m.group(1));
                    if len(vm) > n: vm = vm[len(vm) - n:] if n else []
                m = re.search(r'lgkmcnt\((\d+)\)', ins.text)
                if m:
                    n = int(m.group(1))
                    if any(o.kind == 'smem' for o in lg):
                        if n == 0: lg = []
                    elif len(lg) > n: lg = lg[len(lg) - n:] if n else []
                out.append(ins); continue
            touched = set(ins.r) | set(ins.w)
            iv = -1; il = -1
            for k, o in enumerate(vm):
                if (set(o.w) & touched) or (o.tag is not None and o.tag in ins.needs): iv = k
            for k, o in enumerate(lg):
                if (set(o.w) & touched) or (o.tag is not None and o.tag in ins.needs): il = k
            parts = []
            if iv >= 0:
                n = len(vm) - 1 - iv
                assert n <= 63
                parts.append(f"vmcnt({n})"); vm = vm[iv + 1:]
            if il >= 0:
                if any(o.kind == 'smem' for o in lg):
                    parts.append("lgkmcnt(0)"); lg = []
                else:
                    n = len(lg) - 1 - il
                    n = min(n, 15)
                    parts.append(f"lgkmcnt({n})"); lg = lg[len(lg) - n:] if n else []
            if parts: out.append(I("s_waitcnt " + " ".join(parts)))
            out.append(ins)
            if ins.kind == 'vm':
                vm.append(ins)
                assert len(vm) <= 63, "too many outstanding vmem"
            elif ins.kind in ('dsr', 'dsw', 'smem'): lg.append(ins)
        self.ins = out
        return self
    def pad_hazards(self):
        out = []
        def dist_back(pred, maxd):
            d = 0
            for o in reversed(out):
                if pred(o): return d
                d += o.states()
                if d >= maxd: return None
            return None
        for ins in self.ins:
            need = 0
            R = set(ins.r); W = set(ins.w)
            def req(pred, n):
                nonlocal need
                d = dist_back(pred, n)
                if d is not None and n - d > need: need = n - d
            vr = {x for x in R if x[0] in 'va' and x not in ('vcc',)}
            vw = {x for x in W if x[0] in 'va' and x not in ('vcc',)}
            sr = {x for x in R if x[0] == 's' and x != 'scc'} | ({'vcc'} & R)
            if ins.kind == 'mfma':
                req(lambda o: o.isvalu() and set(o.w) & vr, 2)
                ab = set(ins.r) - set(ins.srcC) if set(ins.srcC) != set(ins.r) else set(ins.r)
                abr = set(_ab(ins))
                for p, n in ((4, 8), (8, 12)):
                    req(lambda o, p=p: o.kind == 'mfma' and o.passes == p and set(o.w) & abr, n)
                for p, n in ((4, 6), (8, 10)):
                    req(lambda o, p=p: o.kind == 'mfma' and o.passes == p and set(o.w) & set(ins.srcC) and not (o.w == ins.srcC and o.passes == ins.passes), n)
                    req(lambda o, p=p: o.kind == 'mfma' and o.passes == p and set(o.w) & set(ins.w) and not (o.w == ins.srcC and o.passes == ins.passes), n)
                req(lambda o: o.isvalu() and 'exec' in o.w, 4)
            elif ins.isvalu() or ins.kind in ('vm', 'dsr', 'dsw'):
                for p, n in ((4, 8), (8, 12)):
                    req(lambda o, p=p: o.kind == 'mfma' and o.passes == p and set(o.w) & (vr | vw), n)
                if ins.isvalu() or ins.kind in ('vm', 'dsr'):
                    for p, n in ((4, 3), (8, 7)):
                        req(lambda o, p=p: o.kind == 'mfma' and o.passes == p and set(o.srcC) & vw, n)
            if ins.isvalu():
                if ins.kind != 'trans': req(lambda o: o.kind == 'trans' and set(o.w) & vr, 1)
                req(lambda o: o.isvalu() and set(o.w) & sr, 2)
                req(lambda o: o.kind == 'vm' and o.wide and set(o.sdata) & vw, 2)
                if ins.kind == 'dpp':
                    req(lambda o: (o.isvalu() or o.kind=='mfma') and set(o.w) & vr, 2)
                    req(lambda o: o.isvalu() and 'exec' in o.w, 5)
                if ins.op.startswith('v_permlane'):
                    req(lambda o: o.isvalu() and set(o.w) & vr, 2)
                    req(lambda o: o.isvalu() and 'exec' in o.w, 4)
                if ins.op in ('v_readlane_b32', 'v_readfirstlane_b32'):
                    req(lambda o: o.isvalu() and set(o.w) & vr, 1)
                    req(lambda o: o.isvalu() and 'exec' in o.w, 4)
                    req(lambda o: o.isvalu() and set(o.w) & sr, 4)
                if ins.op == 'v_div_fmas_f32': req(lambda o: o.isvalu() and 'vcc' in o.w, 4)
                req(lambda o: o.isvalu() and ('op_sel' in o.text or 'dst_sel' in o.text) and set(o.w) & (vr | vw), 1)
            if ins.kind in ('dsr',) or (ins.kind == 'vm' and vw):
                req(lambda o: o.kind == 'vm' and o.wide and set(o.sdata) & vw, 1)
            if ins.kind == 'vm':
                req(lambda o: o.isvalu() and set(o.w) & sr, 5)
                if ins.isdma: req(lambda o: o.kind == 'salu' and 'm0' in o.w, 1)
            if ins.kind == 'salu' or ins.kind == 'smem' or ins.kind == 'ctl':
                if ins.op in ('s_cbranch_vccz', 's_cbranch_vccnz'): req(lambda o: o.isvalu() and 'vcc' in o.w, 5)
                if ins.op in ('s_cbranch_execz', 's_cbranch_execnz'): req(lambda o: o.isvalu() and 'exec' in o.w, 5)
                req(lambda o: o.isvalu() and set(o.w) & sr, 1)
            while need > 0:
                k = min(need, 16)
                out.append(I(f"s_nop {k-1}")); need -= k
            out.append(ins)
        self.ins = out
        return self
    def text(self):
        return "".join(("" if i.kind == 'label' else "  ") + i.text + "\n" for i in self.ins)
    def finish(self):
        self.resolve_waits(); self.pad_hazards(); return self.text()

def _ab(ins):
    t = ins.text.split(';')[0].split(None, 1)[1]
    ops = [x.strip() for x in re.split(r',(?![^\[]*\])', t)]
    return _expand(ops[1]) + _expand(ops[2])

def interleave(main, fill, start=0, end=None, cost=None):
    n = len(main); end = n if end is None else end
    gaps = end - start
    w = [(2 if I(x).kind == 'trans' else 1) if isinstance(x, str) else (2 if x.kind == 'trans' else 1) for x in fill]
    tot = sum(w); out = []; k = 0; acc = 0
    for g in range(n):
        out += main[g]
        if start <= g < end:
            target = tot * (g - start + 1) / gaps
            while k < len(fill) and acc + w[k] / 2 <= target:
                out.append(fill[k]); acc += w[k]; k += 1
    out += fill[k:]
    return out

HDR = '.amdgcn_target "amdgcn-amd-amdhsa--gfx950"\n.text\n'
def kernel(name, body, vgpr=256, sgpr=102, agpr=0):
    acc = (vgpr + 3) // 4 * 4
    return f""".text
.globl {name}
.p2align 8
.type {name},@function
{name}:
{body}.section .rodata,"a"
.p2align 6
.amdhsa_kernel {name}
  .amdhsa_next_free_vgpr {acc + agpr if agpr else vgpr}
  .amdhsa_next_free_sgpr {sgpr}
  .amdhsa_accum_offset {acc}
  .amdhsa_group_segment_fixed_size 0
  .amdhsa_kernarg_size 88
  .amdhsa_user_sgpr_count 2
  .amdhsa_user_sgpr_kernarg_segment_ptr 1
  .amdhsa_system_sgpr_workgroup_id_x 1
.end_amdhsa_kernel
"""
```

```python
from asmlib import *
from layout import *

def srd(p, s, lo, size):
    p(f"s_mov_b32 s{s}, s{lo}\ns_mov_b32 s{s+1}, s{lo+1}\ns_mov_b32 s{s+2}, {size}\ns_mov_b32 s{s+3}, 0x20000")

def unpack8(p, src, dst):
    for i in range(4):
        p(f"v_lshlrev_b32 v{dst+2*i}, 16, v{src+i}")
        p(f"v_and_b32 v{dst+2*i+1}, 0xffff0000, v{src+i}")

def row_body(mode, layer=0, ldsbase=0):
    p = Prog()
    p("s_load_dwordx2 s[4:5], s[0:1], 80")
    if mode == 'k0': p("s_load_dwordx2 s[6:7], s[0:1], 0")
    else: p("s_load_dwordx2 s[6:7], s[0:1], 56")
    if mode == 'd2': p("s_load_dwordx2 s[20:21], s[0:1], 64")
    p("""v_lshrrev_b32 v1, 3, v0
v_and_b32 v2, 7, v0
v_lshlrev_b32 v3, 9, v1
v_lshl_add_u32 v3, v2, 4, v3
v_lshlrev_b32 v4, 4, v1
v_mul_u32_u24 v5, 1152, v2
v_add_u32 v5, v5, v4
s_and_b32 s16, s2, 7
s_lshl_b32 s16, s16, 5
s_lshr_b32 s17, s2, 3
s_add_u32 s16, s16, s17
s_lshr_b32 s17, s16, 2
s_mul_i32 s18, s17, 36864
s_and_b32 s19, s16, 3
s_lshl_b32 s22, s19, 7
s_add_u32 s18, s18, s22
s_mul_i32 s23, s16, 9216
s_waitcnt lgkmcnt(0)""")
    srd(p, 8, 4, WSSZ)
    srd(p, 12, 6, ACT if mode == 'k0' else 1152)
    X = 16
    if mode == 'k0':
        p("buffer_load_dwordx4 v[8:11], v5, s[12:15], s23 offen")
        p(f"""s_mul_i32 s24, s2, 768
s_add_u32 s24, s24, {KV}
v_mov_b32 v12, 0
v_mov_b32 v13, 0
v_mov_b32 v14, 0
v_mov_b32 v15, 0
v_lshlrev_b32 v6, 4, v0
v_cmp_gt_u32 vcc, 48, v0
s_and_saveexec_b64 s[26:27], vcc
s_cbranch_execz L_k0_nz
buffer_store_dwordx4 v[12:15], v6, s[8:11], s24 offen
L_k0_nz:
s_mov_b64 exec, s[26:27]
s_add_u32 s24, s18, {XF}
s_waitcnt vmcnt(0)
buffer_store_dwordx4 v[8:11], v3, s[8:11], s24 offen""")
        unpack8(p, 8, X)
    else:
        p(f"""s_lshl_b32 s24, s17, 8
s_lshl_b32 s25, s19, 5
s_add_u32 s24, s24, s25
s_add_u32 s24, s24, {ST + layer*STL}
v_lshlrev_b32 v6, 2, v2
buffer_load_dword v24, v6, s[8:11], s24 offen
buffer_load_dword v25, v6, s[8:11], s24 offen offset:128""")
        for j in range(8):
            p(f"s_add_u32 s24, s18, {PART + j*ACT}")
            p(f"buffer_load_dwordx4 v[{32+4*j}:{35+4*j}], v3, s[8:11], s24 offen")
        p(f"s_add_u32 s24, s18, {X1F}")
        p("buffer_load_dwordx4 v[8:11], v3, s[8:11], s24 offen")
        p("buffer_load_dwordx4 v[12:15], v4, s[12:15], 0 offen")
        p("""v_mul_f32 v24, 0x3ae38e39, v24
v_mul_f32 v25, 0x3ae38e39, v25
v_fma_f32 v25, -v24, v24, v25
v_max_f32 v25, 0, v25
v_mov_b32 v26, 0x3f800054
v_mov_b32 v27, 0x2edbe6ff
v_fma_f32 v25, v25, v26, v27
v_rsq_f32 v25, v25""")
        unpack8(p, 32, X)
        for j in range(1, 8):
            for i in range(4):
                p(f"v_lshlrev_b32 v28, 16, v{32+4*j+i}")
                p(f"v_and_b32 v29, 0xffff0000, v{32+4*j+i}")
                p(f"v_add_f32 v{X+2*i}, v{X+2*i}, v28")
                p(f"v_add_f32 v{X+2*i+1}, v{X+2*i+1}, v29")
        unpack8(p, 8, 32)
        unpack8(p, 12, 40)
        for i in range(8):
            p(f"v_fma_f32 v{X+i}, v{X+i}, v25, v{40+i}")
            p(f"v_add_f32 v{X+i}, v{X+i}, v{32+i}")
        for i in range(4): p(f"v_cvt_pk_bf16_f32 v{8+i}, v{X+2*i}, v{X+2*i+1}")
        if mode == 'd2':
            srd(p, 12, 20, ACT)
            p("buffer_store_dwordx4 v[8:11], v5, s[12:15], s23 offen")
            p("s_endpgm")
            return p.finish()
        p(f"s_add_u32 s24, s18, {XF}")
        p("buffer_store_dwordx4 v[8:11], v3, s[8:11], s24 offen")
        unpack8(p, 8, X)
    p(f"v_add_f32 v24, v{X}, v{X+1}")
    p(f"v_mul_f32 v25, v{X}, v{X}")
    for i in range(2, 8): p(f"v_add_f32 v24, v24, v{X+i}")
    for i in range(1, 8): p(f"v_fmac_f32 v25, v{X+i}, v{X+i}")
    p(f"""v_permlane32_swap_b32 v24, v25
v_add_f32 v24, v24, v25
v_mov_b32 v25, v24
v_permlane16_swap_b32 v24, v25
v_add_f32 v24, v24, v25
v_add_f32 v24, v24, v24 row_ror:8
v_lshrrev_b32 v26, 6, v0
v_bfe_u32 v27, v0, 5, 1
v_lshl_add_u32 v27, v2, 1, v27
v_mul_u32_u24 v27, 48, v27
v_lshl_add_u32 v27, v26, 2, v27
v_and_b32 v28, 24, v0
v_cmp_eq_u32 vcc, 0, v28
s_and_saveexec_b64 s[26:27], vcc
ds_write_b32 v27, v24 offset:{ldsbase}
s_mov_b64 exec, s[26:27]
v_mul_u32_u24 v27, 96, v2
s_waitcnt lgkmcnt(0)
s_barrier
ds_read_b128 v[32:35], v27 offset:{ldsbase}
ds_read_b128 v[36:39], v27 offset:{ldsbase+16}
ds_read_b32 v40, v27 offset:{ldsbase+32}
ds_read_b128 v[44:47], v27 offset:{ldsbase+48}
ds_read_b128 v[48:51], v27 offset:{ldsbase+64}
ds_read_b32 v52, v27 offset:{ldsbase+80}""")
    for i in range(1, 9): p(f"v_add_f32 v32, v32, v{32+i}")
    for i in range(1, 9): p(f"v_add_f32 v44, v44, v{44+i}")
    p("""v_mul_f32 v32, 0x3ae38e39, v32
v_mul_f32 v44, 0x3ae38e39, v44
v_fma_f32 v44, -v32, v32, v44
v_max_f32 v44, 0, v44
v_add_f32 v44, 0x3727c5ac, v44
v_rsq_f32 v44, v44""")
    for i in range(8): p(f"v_sub_f32 v{X+i}, v{X+i}, v32")
    for i in range(8): p(f"v_mul_f32 v{X+i}, v{X+i}, v44")
    for i in range(4): p(f"v_cvt_pk_bf16_f32 v{12+i}, v{X+2*i}, v{X+2*i+1}")
    p(f"s_add_u32 s24, s18, {YF}")
    p("buffer_store_dwordx4 v[12:15], v3, s[8:11], s24 offen")
    p("s_endpgm")
    return p.finish()

def rearr_body(role):
    p = Prog()
    ka, RS, size, halfoff = {'w1': (32, 9216, 576*4608*2, 64), 'w2': (48, 1152, 576*4608*2, 64),
                             'wq': (8, 3456, 576*1728*2, 36), 'wo': (16, 1152, 576*576*2, 64)}[role]
    p(f"s_load_dwordx2 s[4:5], s[0:1], 80\ns_load_dwordx2 s[6:7], s[0:1], {ka}")
    if role == 'w1': p("s_load_dwordx2 s[20:21], s[0:1], 40")
    p(f"""v_lshrrev_b32 v1, 6, v0
v_and_b32 v2, 63, v0
v_readfirstlane_b32 s16, v1
v_bfe_u32 v3, v2, 2, 3
v_mul_u32_u24 v3, {RS}, v3
v_and_b32 v4, 3, v2
v_lshl_add_u32 v3, v4, 4, v3
v_lshrrev_b32 v5, 5, v2
v_mul_u32_u24 v6, {halfoff}, v5
v_add_u32 v3, v3, v6
v_lshlrev_b32 v7, 4, v2""")
    if role in ('w1', 'w2'):
        p("""s_and_b32 s22, s3, 7
s_lshr_b32 s23, s3, 3
s_and_b32 s19, s23, 1
s_lshr_b32 s24, s23, 1""")
        if role == 'w1':
            p(f"""s_mul_i32 s17, s19, {288*9216}
s_mul_i32 s25, s22, 1152
s_add_u32 s17, s17, s25
s_lshl_b32 s25, s24, 7
s_add_u32 s17, s17, s25
s_mul_i32 s25, s22, 18
s_lshl_b32 s26, s24, 1
s_add_u32 s25, s25, s26
s_mul_i32 s18, s25, {37*1024}
s_add_u32 s28, s18, {W1F + 36*1024}
s_mul_i32 s26, s19, {18*1024}
s_add_u32 s18, s18, s26
s_add_u32 s18, s18, {W1F}""")
            TS, KS = 37*1024, 1024
        else:
            p(f"""s_mul_i32 s17, s22, {576*1152}
s_mul_i32 s25, s19, {288*1152}
s_add_u32 s17, s17, s25
s_lshl_b32 s25, s24, 7
s_add_u32 s17, s17, s25
s_mul_i32 s25, s22, 18
s_lshl_b32 s26, s24, 1
s_add_u32 s25, s25, s26
s_mul_i32 s18, s25, {36*1024}
s_mul_i32 s26, s19, {18*1024}
s_add_u32 s18, s18, s26
s_add_u32 s18, s18, {W2F}""")
            TS, KS = 36*1024, 1024
    elif role == 'wq':
        p(f"""s_and_b32 s22, s3, 15
s_lshr_b32 s23, s3, 4
s_and_b32 s19, s23, 1
s_lshr_b32 s24, s23, 1
s_mul_i32 s17, s19, {288*3456}
s_mul_i32 s25, s24, 1152
s_add_u32 s17, s17, s25
s_mul_i32 s25, s22, 72
s_add_u32 s17, s17, s25
s_mul_i32 s18, s22, {2*110592}
s_mul_i32 s26, s19, {18*3072}
s_add_u32 s18, s18, s26
s_lshl_b32 s26, s24, 10
s_add_u32 s18, s18, s26
s_add_u32 s18, s18, {WQF}""")
        TS, KS = 110592, 3072
    else:
        p(f"""s_and_b32 s19, s3, 1
s_lshr_b32 s24, s3, 1
s_mul_i32 s17, s19, {288*1152}
s_lshl_b32 s25, s24, 7
s_add_u32 s17, s17, s25
s_mul_i32 s18, s24, {2*40*1024}
s_mul_i32 s26, s19, {20*1024}
s_add_u32 s18, s18, s26
s_add_u32 s18, s18, {WOF}""")
        TS, KS = 40*1024, 1024
    p(f"""s_mul_i32 s25, s16, {32*RS}
s_add_u32 s17, s17, s25
s_lshl_b32 s27, s16, 12
s_waitcnt lgkmcnt(0)""")
    srd(p, 8, 4, WSSZ)
    srd(p, 12, 6, size)
    for u in range(4):
        p(f"s_add_u32 m0, s27, {u*1024}")
        p("buffer_load_dwordx4 v3, s[12:15], s17 offen lds", tag='dma')
        if u < 3: p(f"s_add_u32 s17, s17, {8*RS}")
    if role == 'w1':
        srd(p, 32, 20, 4608*2)
        p("v_lshlrev_b32 v40, 1, v2")
    if role != 'wo':
        hhmul, second = (1024, 256) if role != 'w2' else (256, 1024)
        p(f"""v_lshlrev_b32 v8, 3, v4
v_bfe_u32 v9, v2, 2, 2
v_lshl_add_u32 v8, v9, 6, v8
v_bfe_u32 v9, v2, 4, 1
v_lshl_add_u32 v8, v9, 5, v8
v_mul_u32_u24 v9, {hhmul}, v5
v_add_u32 v8, v8, v9
v_add_u32 v8, s27, v8
s_mul_i32 s26, s16, {2*KS}
s_add_u32 s18, s18, s26""")
        for ks in range(2):
            for tt in range(2):
                b = 16 + 8*ks + 4*tt
                p(f"ds_read_b64_tr_b16 v[{b}:{b+1}], v8 offset:{ks*2048 + tt*512}", needs=['dma'])
                p(f"ds_read_b64_tr_b16 v[{b+2}:{b+3}], v8 offset:{ks*2048 + tt*512 + second}")
        for ks in range(2):
            for tt in range(2):
                b = 16 + 8*ks + 4*tt
                p(f"s_add_u32 s26, s18, {ks*KS + tt*TS}")
                p(f"buffer_store_dwordx4 v[{b}:{b+3}], v7, s[8:11], s26 offen")
        if role == 'w1':
            for i in range(4): p(f"v_mov_b32 v{12+i}, 0x3f803f80")
            for tt in range(2):
                a = 48 + 16*tt
                p(f"v_mfma_f32_32x32x16_bf16 v[{a}:{a+15}], v[12:15], v[{16+4*tt}:{19+4*tt}], 0")
                p(f"v_mfma_f32_32x32x16_bf16 v[{a}:{a+15}], v[12:15], v[{24+4*tt}:{27+4*tt}], v[{a}:{a+15}]")
            p(f"""v_cmp_gt_u32 vcc, 32, v2
v_cndmask_b32 v41, v64, v48, vcc
v_lshlrev_b32 v42, 2, v0
ds_write_b32 v42, v41 offset:36864
s_waitcnt lgkmcnt(0)
s_barrier
s_cmp_eq_u32 s16, 0
s_cbranch_scc1 L_w1_aug
s_endpgm
L_w1_aug:
s_and_b32 s22, s3, 7
s_lshr_b32 s23, s3, 4
s_mul_i32 s30, s22, 18
s_lshl_b32 s23, s23, 1
s_add_u32 s30, s30, s23
s_lshl_b32 s30, s30, 6
buffer_load_ushort v43, v40, s[32:35], s30 offen""")
            for w in range(9): p(f"ds_read_b32 v{48+w}, v42 offset:{36864 + w*256}")
            for w in range(1, 9): p(f"v_add_f32 v48, v48, v{48+w}")
            p(f"""v_cvt_pk_bf16_f32 v60, v48, v48
v_and_b32 v49, 0xffff0000, v60
v_sub_f32 v49, v48, v49
v_cvt_pk_bf16_f32 v61, v49, v49
v_and_b32 v61, 0xffff, v61
s_cmp_eq_u32 s19, 0
s_cselect_b32 s31, 0xffff, 0
v_and_b32 v62, s31, v43
v_lshl_or_b32 v61, v62, 16, v61
v_mov_b32 v63, 0
v_and_b32 v44, 31, v2
v_lshlrev_b32 v44, 4, v44
v_mul_u32_u24 v45, {37*1024}, v5
v_add_u32 v44, v44, v45
s_lshl_b32 s26, s19, 9
s_add_u32 s28, s28, s26
buffer_store_dwordx4 v[60:63], v44, s[8:11], s28 offen""")
        p("s_endpgm")
        return p.finish()
    p("""v_mov_b32 v12, 0
v_lshlrev_b32 v13, 2, v0
v_cmp_gt_u32 vcc, 256, v0
s_and_saveexec_b64 s[30:31], vcc
ds_write_b32 v13, v12 offset:36864
s_mov_b64 exec, s[30:31]""")
    p("s_waitcnt lgkmcnt(0)")
    p("s_barrier", needs=['dma'])
    p("""s_cmp_lt_u32 s16, 4
s_cbranch_scc1 L_wo_go
s_endpgm
L_wo_go:""")
    p("""s_lshl_b32 s22, s19, 1
s_lshr_b32 s23, s16, 1
s_add_u32 s22, s22, s23
v_bfe_u32 v9, v2, 4, 1
v_lshlrev_b32 v9, 1, v9
v_bfe_u32 v10, v2, 1, 1
v_add3_u32 v9, v9, v10, s22
v_and_b32 v9, 3, v9
v_lshlrev_b32 v9, 4, v9
v_and_b32 v10, 1, v2
v_lshl_add_u32 v9, v10, 3, v9
v_bfe_u32 v10, v2, 2, 1
v_lshl_add_u32 v10, v5, 2, v10
s_mul_i32 s23, s16, 72
v_add_u32 v10, s23, v10
v_bfe_u32 v11, v2, 3, 1
v_cmp_eq_u32 s[36:37], 1, v11
v_cmp_eq_u32 s[38:39], 1, v5
s_and_b64 s[40:41], s[36:37], s[38:39]
s_andn2_b64 s[42:43], s[38:39], s[36:37]
v_mov_b32 v14, 36864
v_add_u32 v14, v14, v9
s_mul_i32 s26, s16, 5120
s_add_u32 s18, s18, s26""")
    for i in range(5):
        for rho in range(2):
            bs = []
            for rh in range(2):
                prg = 4*i + 2*rho + rh
                hl, pr = divmod(prg, 5)
                bs.append((hl*18 + (8*(pr >> 1) + 2*(pr & 1) if pr < 4 else 16), pr == 4))
            a = 80 + 2*i + rho
            p(f"v_mov_b32 v12, {bs[0][0]}\nv_mov_b32 v13, {bs[1][0]}")
            p(f"v_cndmask_b32 v12, v12, v13, s[36:37]")
            p(f"v_add_u32 v12, v12, v10")
            p(f"v_lshrrev_b32 v13, 3, v12\nv_and_b32 v12, 7, v12\nv_lshlrev_b32 v13, 10, v13\nv_lshl_add_u32 v12, v12, 6, v13")
            p(f"v_add_u32 v{a}, v12, v9")
            if bs[0][1]: p(f"v_cndmask_b32 v{a}, v{a}, v14, s[42:43]")
            if bs[1][1]: p(f"v_cndmask_b32 v{a}, v{a}, v14, s[40:41]")
    for i in range(5):
        for tt in range(2):
            b = 16 + 8*i + 4*tt
            p(f"ds_read_b64_tr_b16 v[{b}:{b+1}], v{80+2*i} offset:{tt*512}")
            p(f"ds_read_b64_tr_b16 v[{b+2}:{b+3}], v{81+2*i} offset:{tt*512}")
    for i in range(5):
        for tt in range(2):
            b = 16 + 8*i + 4*tt
            p(f"s_add_u32 s26, s18, {i*KS + tt*TS}")
            p(f"buffer_store_dwordx4 v[{b}:{b+3}], v7, s[8:11], s26 offen")
    p("s_endpgm")
    return p.finish()

def k0_kernel():
    body = ""
    roles = [('ln', 0, 256), ('w1', 256, 400), ('w2', 400, 544), ('wq', 544, 640), ('wo', 640, 658)]
    for r, lo, hi in roles:
        body += f"  s_sub_u32 s3, s2, {lo}\n  s_cmp_lt_u32 s2, {hi}\n  s_cbranch_scc1 L_k0_{r}\n"
    body += "  s_endpgm\n"
    for r, lo, hi in roles:
        body += f"L_k0_{r}:\n" + (row_body('k0') if r == 'ln' else rearr_body(r))
    return kernel("k0_kernel", body, vgpr=96), "; @launch kernel=k0_kernel grid=(658,1,1) block=(576,1,1) lds=40960\n"

def d_kernel(layer):
    name = f"d{layer}_kernel"
    body = f"  s_cmp_lt_u32 s2, 256\n  s_cbranch_scc1 L_{name}_go\n  s_endpgm\nL_{name}_go:\n" + row_body('d1' if layer == 0 else 'd2', layer)
    return kernel(name, body, vgpr=64), f"; @launch kernel={name} grid=(256,1,1) block=(576,1,1) lds=1024\n"
```

```python
from asmlib import *
from layout import *
from k0 import srd

def phi(regs, tmp):
    L = []
    for b in range(0, len(regs), 4):
        g = regs[b:b+4]
        for i, r in enumerate(g): L.append(f"v_mul_f32 v{tmp+i}, 0x3fb8aa3b, v{r}")
        for i, r in enumerate(g): L.append(f"v_exp_f32 v{tmp+i}, v{tmp+i} clamp")
        for i, r in enumerate(g): L.append(f"v_max_f32 v{r}, 0x358637bd, v{r}")
        for i, r in enumerate(g): L.append(f"v_add_f32 v{r}, v{r}, v{tmp+i}")
    return L

def a_kernel(layer):
    name = f"a{layer}_kernel"
    p = Prog()
    p(f"""s_cmp_lt_u32 s2, 256
s_cbranch_scc1 L_{name}_go
s_endpgm
L_{name}_go:
s_load_dwordx2 s[4:5], s[0:1], 80
v_lshrrev_b32 v1, 6, v0
v_and_b32 v2, 63, v0
v_readfirstlane_b32 s16, v1
v_lshlrev_b32 v3, 4, v2
s_and_b32 s17, s2, 7
s_lshr_b32 s18, s2, 3
s_lshr_b32 s19, s17, 2
s_lshl_b32 s19, s19, 2
s_and_b32 s20, s18, 3
s_add_u32 s19, s19, s20
s_and_b32 s20, s17, 3
s_lshl_b32 s20, s20, 3
s_lshr_b32 s21, s18, 2
s_add_u32 s20, s20, s21
s_lshl_b32 s21, s19, 3
s_lshl_b32 s22, s16, 1
s_add_u32 s21, s21, s22
s_mul_i32 s22, s21, 36864
s_add_u32 s22, s22, {YF}
s_add_u32 s23, s22, 36864
s_mul_i32 s24, s20, 110592
s_add_u32 s24, s24, {WQF}
s_mul_i32 s25, s16, 9216
s_add_u32 s24, s24, s25
s_waitcnt lgkmcnt(0)""")
    srd(p, 8, 4, WSSZ)
    for u in range(9): p(f"v_add_u32 v{4+u}, {u*4096}, v3")
    def wdma(c):
        L = []
        for i in range(9):
            if i % 4 == 0:
                L.append(f"s_add_u32 m0, s25, {c*36864 + i*1024}")
                L.append(f"s_add_u32 s26, s24, {c*36864 + i*1024}")
            L.append(I(f"buffer_load_dwordx4 v3, s[8:11], s26 offen offset:{(i%4)*1024} lds", tag=f"w{c}"))
        return L
    YR = 48
    def yld(kk, rt):
        s = 4*((kk*2 + rt) % YR)
        return f"buffer_load_dwordx4 a[{s}:{s+3}], v{4 + kk//4}, s[8:11], s{22+rt} offen offset:{(kk%4)*1024}"
    p.ext(wdma(0))
    for kk in range(12): p(yld(kk, 0)); p(yld(kk, 1))
    p.ext(wdma(1))
    for kk in range(12, 22): p(yld(kk, 0)); p(yld(kk, 1))
    Q, K, V, WR, T, KVA = 16, 48, 80, 112, 136, 168
    NW = 6
    def wrd(g):
        s = WR + 4*(g % NW)
        if g < 64: return f"ds_read_b128 v[{s}:{s+3}], v3 offset:{g*1024}"
        return f"ds_read_b128 v[{s}:{s+3}], v13 offset:{(g-64)*1024}"
    p("v_add_u32 v13, 65536, v3")
    p("s_barrier", needs=['w0'])
    p.ext(wdma(2))
    for g in range(NW - 1): p(wrd(g))
    for kk in range(36):
        for part in range(3):
            g = kk*3 + part
            w = WR + 4*(g % NW)
            for rt in range(2):
                y = 4*((kk*2 + rt) % YR)
                acc = (Q, K, V)[part] + 16*rt
                c = "0" if kk == 0 else f"v[{acc}:{acc+15}]"
                if part == 0: p(f"v_mfma_f32_32x32x16_bf16 v[{acc}:{acc+15}], v[{w}:{w+3}], a[{y}:{y+3}], {c}")
                else: p(f"v_mfma_f32_32x32x16_bf16 v[{acc}:{acc+15}], a[{y}:{y+3}], v[{w}:{w+3}], {c}")
                if rt == 0:
                    gn = g + NW - 1
                    if gn < 108:
                        if gn % 36 == 0: p("s_barrier", needs=[f"w{gn//36}"])
                        p(wrd(gn))
            if part >= 1 and kk + 22 < 36: p(yld(kk + 22, part - 1))
    p("""v_and_b32 v14, 27, v2
v_cmp_eq_u32 vcc, 18, v14
v_mov_b32 v15, 0x3f803f80""")
    for rt in range(2):
        p.ext(phi(list(range(K + 16*rt, K + 16*rt + 16)), WR))
        for i in range(8): p(f"v_cvt_pk_bf16_f32 v{T + 8*rt + i}, v{K+16*rt+2*i}, v{K+16*rt+2*i+1}")
        for i in range(8): p(f"v_cvt_pk_bf16_f32 v{T + 16 + 8*rt + i}, v{V+16*rt+2*i}, v{V+16*rt+2*i+1}")
        for i in range(8): p(f"v_cndmask_b32 v{T + 16 + 8*rt + i}, v{T + 16 + 8*rt + i}, v15, vcc")
        for q in range(2):
            a = T + 8*rt + 4*q; b = a + 16
            c = "0" if (rt == 0 and q == 0) else f"v[{KVA}:{KVA+15}]"
            p(f"v_mfma_f32_32x32x16_bf16 v[{KVA}:{KVA+15}], v[{a}:{a+3}], v[{b}:{b+3}], {c}")
    p(f"""s_lshl_b32 s26, s21, 5
s_add_u32 s26, s26, s20
s_lshl_b32 s27, s26, 8
s_lshl_b32 s26, s26, 10
s_add_u32 s26, s26, {PQ16}
s_add_u32 s27, s27, {PQ4}
v_lshlrev_b32 v14, 2, v2""")
    for rt in range(2):
        p.ext(phi(list(range(Q + 16*rt, Q + 16*rt + 10)), WR))
        o = WR + 8 + 6*rt
        for i in range(5): p(f"v_cvt_pk_bf16_f32 v{o + i}, v{Q+16*rt+2*i}, v{Q+16*rt+2*i+1}")
        if rt == 1: p("s_add_u32 s26, s26, 32768\ns_add_u32 s27, s27, 8192")
        p(f"buffer_store_dwordx4 v[{o}:{o+3}], v3, s[8:11], s26 offen")
        p(f"buffer_store_dword v{o+4}, v14, s[8:11], s27 offen")
    RB = 110592
    p(f"""s_mul_i32 s28, s16, 2560
s_add_u32 s28, s28, {RB}
v_add_u32 v15, s28, v3
v_lshlrev_b32 v16, 3, v2
v_add_u32 v16, s28, v16
ds_write_b128 v15, v[{KVA}:{KVA+3}]
ds_write_b128 v15, v[{KVA+4}:{KVA+7}] offset:1024
ds_write_b64 v16, v[{KVA+8}:{KVA+9}] offset:2048
v_lshlrev_b32 v17, 2, v0
v_add_u32 v18, {RB}, v17
s_waitcnt lgkmcnt(0)
s_barrier""")
    for it in range(3):
        for w in range(4): p(f"ds_read_b32 v{20 + 4*it + w}, v18 offset:{w*2560 + it*1024}")
    p(f"""v_bfe_u32 v19, v0, 2, 5
v_cmp_gt_u32 s[30:31], 19, v19
v_cmp_eq_u32 s[32:33], 22, v19
s_or_b64 s[30:31], s[30:31], s[32:33]
v_lshrrev_b32 v19, 1, v0
v_cmp_gt_u32 s[34:35], 19, v19
v_cmp_eq_u32 s[32:33], 22, v19
s_or_b64 s[34:35], s[34:35], s[32:33]
s_mul_i32 s28, s20, 2560
s_add_u32 s28, s28, {KV + layer*KVL}""")
    for it in range(3):
        b = 20 + 4*it
        p(f"v_add_f32 v{b}, v{b}, v{b+1}\nv_add_f32 v{b+2}, v{b+2}, v{b+3}\nv_add_f32 v{b}, v{b}, v{b+2}")
    p(f"""s_mov_b64 exec, s[30:31]
buffer_atomic_add_f32 v20, v17, s[8:11], s28 offen
buffer_atomic_add_f32 v24, v17, s[8:11], s28 offen offset:1024
s_cmp_eq_u32 s16, 0
s_cbranch_scc0 L_{name}_end
s_mov_b64 exec, s[34:35]
buffer_atomic_add_f32 v28, v17, s[8:11], s28 offen offset:2048
L_{name}_end:
s_endpgm""")
    return kernel(name, p.finish(), vgpr=192, agpr=192), f"; @launch kernel={name} grid=(256,1,1) block=(256,1,1) lds={RB + 10240 + 1024}\n"
```

```python
from asmlib import *
from layout import *
from k0 import srd

def b_body(layer, NT, name):
    p = Prog()
    KVR, PQR, NUM, O, XR = 16, 112, 160, 192, 232
    ACC = KVR
    p(f"""s_lshl_b32 s19, s16, 3
s_mul_i32 s20, s19, 2560
s_add_u32 s20, s20, {KV + layer*KVL}
s_lshl_b32 s21, s17, 5
s_add_u32 s21, s21, s19
s_lshl_b32 s22, s21, 8
s_lshl_b32 s21, s21, 10
s_add_u32 s21, s21, {PQ16}
s_add_u32 s22, s22, {PQ4}
s_mul_i32 s23, s18, 40960
s_mul_i32 s24, s16, 10240
s_add_u32 s23, s23, s24
s_add_u32 s23, s23, {WOF}
v_lshlrev_b32 v4, 3, v2
v_lshlrev_b32 v5, 2, v2
v_add_u32 v6, 4096, v3
v_add_u32 v7, 8192, v3""")
    for h in range(8):
        k = KVR + 12*h; q = PQR + 6*h
        p(f"buffer_load_dwordx4 v[{k}:{k+3}], v3, s[8:11], s20 offen")
        p(f"buffer_load_dwordx4 v[{k+4}:{k+7}], v3, s[8:11], s20 offen offset:1024")
        p(f"buffer_load_dwordx2 v[{k+8}:{k+9}], v4, s[8:11], s20 offen offset:2048")
        p(f"buffer_load_dwordx4 v[{q}:{q+3}], v{(3,6)[h//4]}, s[8:11], s21 offen offset:{(h%4)*1024}")
        p(f"buffer_load_dword v{q+4}, v5, s[8:11], s22 offen offset:{h*256}")
        if h < 7: p("s_add_u32 s20, s20, 2560")
    wl = []
    for ks in range(10):
        for t in range(NT):
            r = 4*(ks*NT + t)
            wl.append(f"buffer_load_dwordx4 a[{r}:{r+3}], v{(3,6,7)[ks//4]}, s[8:11], s{30+t} offen offset:{(ks%4)*1024}")
    for t in range(NT): p(f"s_add_u32 s{30+t}, s23, {t*40960}")
    p(f"""s_mul_i32 s25, s17, 36864
s_lshl_b32 s26, s18, 11
s_add_u32 s25, s25, s26
s_lshl_b32 s26, s16, 9
s_add_u32 s25, s25, s26
s_add_u32 s26, s25, {XF}
s_add_u32 s27, s25, {X1F}
v_and_b32 v8, 31, v2
v_lshlrev_b32 v8, 4, v8
v_lshrrev_b32 v9, 5, v2
v_lshl_add_u32 v8, v9, 3, v8
v_add_u32 v9, 4096, v8
v_add_u32 v10, 8192, v8""")
    xl = [f"buffer_load_dwordx2 v[{XR+2*t}:{XR+2*t+1}], v{8 + t//2}, s[8:11], s26 offen offset:{(t%2)*2048}" for t in range(NT)]
    rest = wl + xl
    p.ext(rest[:22]); rest = rest[22:]
    for h in range(8): p(f"v_mov_b32 v{PQR+6*h+5}, 0")
    def post(h):
        n = NUM + 16*(h % 2)
        p(f"v_add_f32 v11, 0x358637bd, v{n+10}\nv_rcp_f32 v11, v11")
        for i in range(10): p(f"v_mul_f32 v{n+i}, v{n+i}, v11")
        for i in range(5): p(f"v_cvt_pk_bf16_f32 v{O+5*h+i}, v{n+2*i}, v{n+2*i+1}")
    for h in range(8):
        k = KVR + 12*h; q = PQR + 6*h; n = NUM + 16*(h % 2)
        for i in range(5): p(f"v_cvt_pk_bf16_f32 v{k+i}, v{k+2*i}, v{k+2*i+1}")
        p(f"v_mov_b32 v{k+5}, 0")
        p(f"v_mfma_f32_32x32x16_bf16 v[{n}:{n+15}], v[{k}:{k+3}], v[{q}:{q+3}], 0")
        p(f"v_mfma_f32_32x32x8_bf16 v[{n}:{n+15}], v[{k+4}:{k+5}], v[{q+4}:{q+5}], v[{n}:{n+15}]")
        p.ext(rest[:5]); rest = rest[5:]
        if h > 0: post(h - 1)
    post(7)
    assert not rest
    for ks in range(10):
        for t in range(NT):
            r = 4*(ks*NT + t); a = ACC + 16*t
            c = "0" if ks == 0 else f"v[{a}:{a+15}]"
            p(f"v_mfma_f32_32x32x16_bf16 v[{a}:{a+15}], a[{r}:{r+3}], v[{O+4*ks}:{O+4*ks+3}], {c}")
    for g in range(1, 4):
        p(f"""s_add_u32 s28, s16, {g}
s_and_b32 s28, s28, 3
s_mul_i32 s28, s28, {3*NT*1024}
s_add_u32 s28, s28, {(g-1)*NT*1024}
v_add_u32 v{10+g}, s28, v3""")
    p(f"s_mul_i32 s28, s16, {3*NT*1024}\nv_add_u32 v14, s28, v3")
    for t in range(NT):
        for g in range(1, 4):
            a = ACC + 16*t + 4*g
            p(f"ds_write_b128 v{10+g}, v[{a}:{a+3}] offset:{t*1024}")
    p("s_waitcnt lgkmcnt(0)\ns_barrier")
    RD = PQR
    for t in range(NT):
        for g in range(3):
            r = RD + 12*t + 4*g
            p(f"ds_read_b128 v[{r}:{r+3}], v14 offset:{(g*NT + t)*1024}")
    p("v_mov_b32 v15, 0\nv_mov_b32 v11, 0")
    for t in range(NT):
        a = ACC + 16*t; r = RD + 12*t; x = XR + 2*t; u = a + 4
        p(f"v_lshlrev_b32 v{u}, 16, v{x}\nv_and_b32 v{u+1}, 0xffff0000, v{x}\nv_lshlrev_b32 v{u+2}, 16, v{x+1}\nv_and_b32 v{u+3}, 0xffff0000, v{x+1}")
        for i in range(4): p(f"v_add_f32 v{a+i}, v{a+i}, v{r+i}")
        for i in range(4): p(f"v_add_f32 v{r+4+i}, v{r+4+i}, v{r+8+i}")
        for i in range(4): p(f"v_add_f32 v{a+i}, v{a+i}, v{r+4+i}")
        for i in range(4): p(f"v_add_f32 v{a+i}, v{a+i}, v{u+i}")
        p(f"v_cvt_pk_bf16_f32 v{x}, v{a}, v{a+1}\nv_cvt_pk_bf16_f32 v{x+1}, v{a+2}, v{a+3}")
        p(f"buffer_store_dwordx2 v[{x}:{x+1}], v{8 + t//2}, s[8:11], s27 offen offset:{(t%2)*2048}")
        p(f"v_lshlrev_b32 v{u}, 16, v{x}\nv_and_b32 v{u+1}, 0xffff0000, v{x}\nv_lshlrev_b32 v{u+2}, 16, v{x+1}\nv_and_b32 v{u+3}, 0xffff0000, v{x+1}")
        for i in range(4): p(f"v_add_f32 v15, v15, v{u+i}\nv_fmac_f32 v11, v{u+i}, v{u+i}")
    p(f"""v_permlane32_swap_b32 v15, v11
v_add_f32 v15, v15, v11
s_lshl_b32 s28, s17, 8
s_add_u32 s28, s28, {ST + layer*STL}
buffer_atomic_add_f32 v15, v5, s[8:11], s28 offen
s_endpgm""")
    return p.finish()

def b_kernel(layer):
    name = f"b{layer}_kernel"
    p = Prog()
    p(f"""s_cmp_lt_u32 s2, 256
s_cbranch_scc1 L_{name}_go
s_endpgm
L_{name}_go:
s_load_dwordx2 s[4:5], s[0:1], 80
v_lshrrev_b32 v1, 6, v0
v_and_b32 v2, 63, v0
v_readfirstlane_b32 s16, v1
v_lshlrev_b32 v3, 4, v2
s_and_b32 s17, s2, 7
s_lshl_b32 s17, s17, 3
s_bfe_u32 s19, s2, 0x30003
s_add_u32 s17, s17, s19
s_lshr_b32 s19, s2, 6
s_waitcnt lgkmcnt(0)""")
    srd(p, 8, 4, WSSZ)
    p(f"""s_cmp_lt_u32 s19, 2
s_cbranch_scc0 L_{name}_4
s_mul_i32 s18, s19, 5""")
    body = p.finish() + b_body(layer, 5, name)
    body += f"L_{name}_4:\n  s_lshl_b32 s18, s19, 2\n  s_add_u32 s18, s18, 2\n" + b_body(layer, 4, name)
    return kernel(name, body, vgpr=256, agpr=200), f"; @launch kernel={name} grid=(256,1,1) block=(256,1,1) lds=61440\n"
```

```python
from asmlib import *
from layout import *
from k0 import srd

def gelu8(x, k1, k3, tmp, out, grp=4):
    L = []
    for b in range(0, 8, grp):
        idx = range(b, b + grp)
        T = lambda i: tmp + i
        for i in idx: L.append(f"v_mul_f32 v{T(i)}, v{x+i}, v{x+i}")
        for i in idx: L.append(f"v_fma_f32 v{T(i)}, v{T(i)}, v{k3}, v{k1}")
        for i in idx: L.append(f"v_mul_f32 v{T(i)}, v{T(i)}, v{x+i}")
        for i in idx: L.append(f"v_exp_f32 v{T(i)}, v{T(i)}")
        for i in idx: L.append(f"v_add_f32 v{T(i)}, 1.0, v{T(i)}")
        for i in idx: L.append(f"v_rcp_f32 v{T(i)}, v{T(i)}")
        for i in idx: L.append(f"v_mul_f32 v{T(i)}, v{T(i)}, v{x+i}")
        for i in list(idx)[::2]: L.append(f"v_cvt_pk_bf16_f32 v{out+i//2}, v{T(i)}, v{T(i+1)}")
    return L

def c_kernel(layer, DW=24, D0=10, YCH=4, stfl="", dbg=False):
    name = f"c{layer}_kernel"
    p = Prog()
    YB, HB, XB = 0, 73728, 147456
    vL, vE, vO = 3, 4, 5
    vRD = 6
    vHW = 10
    vXW, vXR = 13, 14
    vK1, vK3 = 16, 18
    vST = 20
    TMP, PK = 24, 32
    A_, B_, C_, D_, OS, N2, N3 = 40, 72, 104, 136, 168, 184, 216
    aODD, aAUG, aLR, aW = 0, 32, 40, 64
    NL = 3
    assert aW + 4*DW <= 256
    p(f"""s_cmp_lt_u32 s2, 256
s_cbranch_scc1 L_{name}_go
s_endpgm
L_{name}_go:
s_load_dwordx2 s[4:5], s[0:1], 80""")
    if dbg: p("s_load_dwordx2 s[60:61], s[0:1], 72\ns_memtime s[62:63]")
    p(f"""v_lshrrev_b32 v1, 6, v0
v_and_b32 v2, 63, v0
v_readfirstlane_b32 s16, v1
v_lshlrev_b32 v{vL}, 4, v2
s_and_b32 s17, s2, 7
s_lshr_b32 s18, s2, 3
s_and_b32 s19, s16, 1
s_lshr_b32 s20, s16, 1
s_lshl_b32 s21, s19, 10
v_add_u32 v{vE}, s21, v{vL}
v_subrev_u32 v{vO}, s21, v{vL}
v_add_u32 v{vO}, 1024, v{vO}
s_mul_i32 s22, s17, 18
s_add_u32 s23, s22, s16
s_mul_i32 s30, s23, {37*1024}
s_add_u32 s30, s30, {W1F}
s_add_u32 s31, s30, {4*37*1024}
s_add_u32 s33, s30, {8*37*1024}
s_add_u32 s34, s30, {12*37*1024}
s_add_u32 s24, s22, s20
s_add_u32 s24, s24, 16
s_mul_i32 s32, s24, {37*1024}
s_add_u32 s32, s32, {W1F}
s_mul_i32 s40, s23, {36*1024}
s_add_u32 s40, s40, {W2F}
s_add_u32 s41, s40, {4*36*1024}
s_add_u32 s42, s40, {8*36*1024}
s_add_u32 s43, s40, {12*36*1024}
s_mul_i32 s44, s24, {36*1024}
s_add_u32 s44, s44, {W2F}
s_mul_i32 s25, s18, 73728
s_lshl_b32 s26, s16, 10
s_add_u32 s27, s25, s26
s_add_u32 s27, s27, {X1F}
s_lshl_b32 s28, s18, 1
s_xor_b32 s29, s19, 1
s_add_u32 s45, s28, s19
s_add_u32 s46, s28, s29
s_lshl_b32 s47, s45, 8
s_lshl_b32 s48, s46, 8
s_add_u32 s47, s47, {ST + layer*STL}
s_add_u32 s48, s48, {ST + layer*STL}
v_lshlrev_b32 v15, 2, v2
s_waitcnt lgkmcnt(0)""")
    srd(p, 8, 4, WSSZ)
    p("buffer_load_dword v22, v15, s[8:11], s47 offen\nbuffer_load_dword v23, v15, s[8:11], s48 offen")
    wf = []
    cur = {}
    def wload(sreg, kk, plain=False):
        blk = (kk // 4) * 4096
        pre = []
        if cur.get(sreg, 0) != blk:
            d = blk - cur.get(sreg, 0)
            pre.append(f"s_add_u32 s{sreg}, s{sreg}, {d}" if d > 0 else f"s_sub_u32 s{sreg}, s{sreg}, {-d}")
            cur[sreg] = blk
        r = kk % 4
        if plain: v, imm = vL, r*1024
        elif kk % 2 == 0: v, imm = vE, r*1024
        else: v, imm = vO, (r-1)*1024
        return pre, f"buffer_load_dwordx4 a[{{d}}:{{e}}], v{v}, s[8:11], s{sreg} offen offset:{imm}"
    steps = []
    def fr(sreg, kk, acc, rts=(0, 1), first=False, ag=False, plain=False):
        return (wload(sreg, kk, plain), [(acc + 16*rt, ag, rt, first) for rt in rts])
    for kk in range(36):
        f = [fr(30, kk, A_, first=kk == 0), fr(31, kk, B_, first=kk == 0)]
        if kk % 2 == 0: f.append(fr(32, kk, aODD, first=kk == 0, ag=True))
        steps.append(dict(l=('Y', kk), f=f, ph='p1'))
    steps.append(dict(l=None, f=[fr(30, 36, A_, plain=True), fr(31, 36, B_, plain=True), fr(32, 36, aODD, rts=(0,), ag=True, plain=True)], ph='p1'))
    for kk in range(36):
        steps.append(dict(l=('Y', kk), f=[fr(33, kk, C_, first=kk == 0), fr(34, kk, D_, first=kk == 0)], ph='p2'))
    steps.append(dict(l=None, f=[fr(33, 36, C_, plain=True), fr(34, 36, D_, plain=True)], ph='p2'))
    korder = list(range(16)) + [32, 33, 34, 35] + list(range(16, 32))
    for i, kk in enumerate(korder):
        f = [fr(40 + n, kk, (A_, B_, N2, N3)[n], first=i == 0) for n in range(4)]
        if kk % 2 == 0: f.append(fr(44, kk, aODD, first=i == 0, ag=True))
        steps.append(dict(l=('H', kk), f=f, ph='q1' if i < 20 else 'q2'))
    frags = [(si, fi) for si, st in enumerate(steps) for fi in range(len(st['f']))]
    NF = len(frags)
    issue = []
    nych = 36 // YCH
    for g, (si, fi) in enumerate(frags):
        if fi == 0 and si < 36 and si % YCH == 0:
            c = si // YCH
            L = []
            for kk0 in range(c*YCH, (c+1)*YCH, 4):
                for rt in range(2):
                    off = rt*36864 + kk0*1024
                    L.append(f"s_add_u32 m0, s26, {YB + off}")
                    L.append(f"s_add_u32 s49, s27, {off}")
                    L.append(I(f"buffer_load_dwordx4 v{vL}, s[8:11], s49 offen lds", tag=f"y{c}"))
            issue.append(('y', L))
        pre, ld = steps[si]['f'][fi][0]
        d = aW + 4*(g % DW)
        issue.append(('w', pre + [ld.format(d=d, e=d+3)], g))
    ip = 0
    def issue_upto(gmax):
        nonlocal ip
        L = []
        while ip < len(issue):
            e = issue[ip]
            if e[0] == 'w' and e[2] > gmax: break
            if e[0] == 'y' and ip + 1 < len(issue) and issue[ip+1][2] > gmax: break
            L += e[1]; ip += 1
        return L
    p.ext(issue_upto(D0 - 1))
    p(f"""s_mul_i32 s50, s19, {37*1024}
s_mul_i32 s51, s19, {35*1024}
v_add_u32 v{vRD}, s50, v{vL}
v_add_u32 v{vRD+1}, s51, v{vL}
v_subrev_u32 v{vRD+2}, s51, v{vL}
v_subrev_u32 v{vRD+3}, s50, v{vL}
v_add_u32 v{vRD+2}, 36864, v{vRD+2}
v_add_u32 v{vRD+3}, 36864, v{vRD+3}
s_mul_i32 s50, s19, 36864
s_mul_i32 s51, s29, 36864
s_lshl_b32 s52, s16, 11
s_add_u32 s53, s50, s52
s_add_u32 s53, s53, {HB}
v_add_u32 v{vHW}, s53, v{vL}
s_add_u32 s53, s51, s52
s_add_u32 s53, s53, {HB}
v_add_u32 v{vHW+1}, s53, v{vL}
s_lshl_b32 s52, s20, 11
s_add_u32 s53, s50, s52
s_add_u32 s53, s53, {HB + 32*1024}
v_add_u32 v{vHW+2}, s53, v{vL}
s_lshl_b32 s52, s16, 12
s_add_u32 s53, s52, {XB}
v_add_u32 v{vXW}, s53, v{vL}
s_xor_b32 s52, s52, 4096
s_add_u32 s53, s52, {XB}
v_add_u32 v{vXR}, s53, v{vL}
s_mul_i32 s54, s17, {ACT}
s_add_u32 s54, s54, {PART}
s_mul_i32 s55, s45, 36864
s_mul_i32 s56, s46, 36864
s_add_u32 s55, s55, s54
s_add_u32 s56, s56, s54""")
    statf = []
    for rt in range(2):
        s = 22 + rt; t = TMP
        statf += f"""v_mov_b32 v{t}, v{s}
v_permlane32_swap_b32 v{s}, v{t}
v_mul_f32 v{s}, 0x3ae38e39, v{s}
v_mul_f32 v{t}, 0x3ae38e39, v{t}
v_fma_f32 v{t}, -v{s}, v{s}, v{t}
v_max_f32 v{t}, 0, v{t}
v_mov_b32 v{t+1}, 0x3f800054
v_mov_b32 v{t+2}, 0x2edbe6ff
v_fma_f32 v{t}, v{t}, v{t+1}, v{t+2}
v_rsq_f32 v{t+1}, v{t}
v_mul_f32 v{t}, v{t}, v{t+1}
v_mul_f32 v{vK1+rt}, 0xc0135761, v{t+1}
v_mul_f32 v{t+2}, v{t+1}, v{t+1}
v_mul_f32 v{t+2}, v{t+2}, v{t+1}
v_mul_f32 v{vK3+rt}, 0xbdd2d3e8, v{t+2}
v_sub_f32 v{s}, 0, v{s}
v_cvt_pk_bf16_f32 v{t+3}, v{s}, v{t}
v_lshlrev_b32 v{t+4}, 16, v{t+3}
v_and_b32 v{t+5}, 0xffff0000, v{t+3}
v_sub_f32 v{t+4}, v{s}, v{t+4}
v_sub_f32 v{t+5}, v{t}, v{t+5}
v_cvt_pk_bf16_f32 v{t+6}, v{s}, v{t+4}
v_cvt_pk_bf16_f32 v{t+7}, v{t+5}, 0
v_accvgpr_write_b32 a{aAUG+4*rt}, v{t+6}
v_accvgpr_write_b32 a{aAUG+4*rt+1}, v{t+3}
v_accvgpr_write_b32 a{aAUG+4*rt+2}, v{t+7}
v_accvgpr_write_b32 a{aAUG+4*rt+3}, 0""".split("\n")
    pkc = [0]
    def gl(acc, rt, waddr, woff, tag):
        L = []
        for q in range(2):
            o = PK + 4*(pkc[0] % 2); pkc[0] += 1
            L += gelu8(acc + 8*q, vK1 + rt, vK3 + rt, TMP, o)
            L.append(I(f"ds_write_b128 v{waddr}, v[{o}:{o+3}] offset:{woff + q*1024}", tag=tag))
        return L
    f_p2a = []
    for role, acc in ((0, A_), (1, B_)):
        for rt in range(2): f_p2a += gl(acc + 16*rt, rt, vHW + rt, role*8192, 'h1')
    xw = [I(f"ds_write_b128 v{vXW}, a[{aODD+16+4*i}:{aODD+19+4*i}] offset:{i*1024}", tag='xw') for i in range(4)]
    xr = [f"ds_read_b128 v[{OS+4*i}:{OS+4*i+3}], v{vXR} offset:{i*1024}" for i in range(4)]
    def xadd():
        L = []
        for b in range(0, 16, 4):
            for i in range(4): L.append(f"v_accvgpr_read_b32 v{TMP+i}, a{aODD+b+i}")
            for i in range(4): L.append(f"v_add_f32 v{OS+b+i}, v{OS+b+i}, v{TMP+i}")
        return L
    h = len(f_p2a) // 4
    f_p2 = xw + f_p2a[:h] + [I("s_barrier", needs=['xw'])] + xr + f_p2a[h:] + xadd() + gl(OS, 0, vHW + 2, 0, 'h1')
    f_q1 = []
    for role, acc in ((2, C_), (3, D_)):
        for rt in range(2): f_q1 += gl(acc + 16*rt, rt, vHW + rt, role*8192, 'h2')
    def lread(si):
        st = steps[si]
        if st['l'] is None: return []
        kind, kk = st['l']
        L = []
        if kind == 'Y' and st['ph'] == 'p1' and kk % YCH == 0: L.append(I("s_barrier", needs=[f"y{kk//YCH}"]))
        if kind == 'H' and st['ph'] == 'q1' and steps[si-1]['ph'] == 'p2':
            L.append(I("s_barrier", needs=['h1']))
            for i in range(4): L.append(f"v_add_u32 v{vRD+i}, {HB}, v{vRD+i}")
        if kind == 'H' and st['ph'] == 'q2' and steps[si-1]['ph'] == 'q1': L.append(I("s_barrier", needs=['h2']))
        for rt in range(2):
            d = aLR + 8*(si % NL) + 4*rt
            L.append(f"ds_read_b128 a[{d}:{d+3}], v{vRD + 2*rt + kk % 2} offset:{kk*1024}")
        return L
    p.ext(lread(0)); p.ext(lread(1))
    g = 0
    groups = {'p1': [], 'p2': [], 'q1': [], 'q2': []}
    stepstart = {}
    for si, st in enumerate(steps):
        first_in_step = True
        for fi, (ld, ms) in enumerate(st['f']):
            w = aW + 4*(g % DW)
            for mi, (acc, ag, rt, first) in enumerate(ms):
                b = (aLR + 8*(si % NL) + 4*rt) if st['l'] is not None else aAUG + 4*rt
                R = 'a' if ag else 'v'
                c = "0" if first else f"{R}[{acc}:{acc+15}]"
                grp = [f"v_mfma_f32_32x32x16_bf16 {R}[{acc}:{acc+15}], a[{w}:{w+3}], a[{b}:{b+3}], {c}"]
                if first_in_step:
                    stepstart[si] = len(groups[st['ph']])
                    if si + 2 < len(steps): grp += lread(si + 2)
                    first_in_step = False
                if mi == len(ms) - 1:
                    depth = min(DW - 1, D0 + g)
                    grp += issue_upto(g + depth)
                groups[st['ph']].append(grp)
            g += 1
    assert ip == len(issue)
    n_p1 = 37; n_p2 = 74
    p.ext(interleave(groups['p1'], statf, start=60, end=120))
    p.ext(interleave(groups['p2'], f_p2, start=2, end=stepstart[n_p2 - 2]))
    p.ext(interleave(groups['q1'], f_q1, start=2, end=stepstart[n_p2 + 18]))
    for grp in groups['q2']: p.ext(grp)
    p.ext(xw)
    p(f"""s_lshl_b32 s57, s16, 11
s_add_u32 s58, s55, s57
s_add_u32 s59, s56, s57
s_lshl_b32 s57, s20, 11
s_add_u32 s57, s57, {16*2048}
s_add_u32 s57, s57, s55""")
    def outp(acc, sreg):
        for hf in range(2):
            o = PK + 4*(pkc[0] % 2); pkc[0] += 1
            for i in range(4): p(f"v_cvt_pk_bf16_f32 v{o+i}, v{acc+8*hf+2*i}, v{acc+8*hf+2*i+1}")
            p(f"v_permlane32_swap_b32 v{o}, v{o+2}\nv_permlane32_swap_b32 v{o+1}, v{o+3}")
            p(f"buffer_store_dwordx4 v[{o}:{o+3}], v{vL}, s[8:11], s{sreg} offen offset:{hf*1024} {stfl}")
    for n, acc in enumerate((A_, B_, N2, N3)):
        for rt in range(2): outp(acc + 16*rt, 58 + rt)
        p("s_add_u32 s58, s58, 8192\ns_add_u32 s59, s59, 8192")
        if n == 0:
            p("s_barrier", needs=['xw'])
            p.ext(xr)
    p.ext(xadd())
    outp(OS, 57)
    if dbg:
        p(f"""s_waitcnt vmcnt(0)
s_memtime s[64:65]
s_waitcnt lgkmcnt(0)
s_sub_u32 s64, s64, s62
s_cmp_ge_u32 s2, 64
s_cbranch_scc1 L_{name}_end""")
        srd(p, 12, 60, 256)
        p(f"""v_mov_b32 v5, s64
s_lshl_b32 s66, s2, 2
v_mov_b32 v6, s66
v_cmp_eq_u32 vcc, 0, v0
s_and_saveexec_b64 s[26:27], vcc
s_cbranch_execz L_{name}_end
buffer_store_dword v5, v6, s[12:15], 0 offen
L_{name}_end:""")
    p("s_endpgm")
    return kernel(name, p.finish(), vgpr=256, agpr=256), f"; @launch kernel={name} grid=(256,1,1) block=(256,1,1) lds=163840\n"
```

```python
YF   = 0x0000000
XF   = 0x0240000
X1F  = 0x0480000
PQ16 = 0x06C0000
PQ4  = 0x08C0000
KV   = 0x0940000
KVL  = 32*2560
ST   = 0x0968000
STL  = 16384
WQF  = 0x0A00000
WOF  = 0x0E00000
PART = 0x2000000
ACT  = 2359296
WSSZ = 0x10000000
WSTR = 0x1000000
WSN = 329
```

```python
import sys
sys.path.insert(0, "gen")
from asmlib import *
import k0, ka, kb, kc
HEAD = open("interleave_layers__linear_attn_block__mixer_channel_mlp__prompt.s.ref").read().split("; Override")[0]
def build(**kw):
    ks = [k0.k0_kernel()]
    for l in range(2):
        ks += [ka.a_kernel(l), kb.b_kernel(l), kc.c_kernel(l, **kw.get('c', {})), k0.d_kernel(l)]
    return HEAD + "".join(k[1] for k in ks) + HDR + "".join(k[0] for k in ks)
if __name__ == "__main__":
    out = sys.argv[1] if len(sys.argv) > 1 else "interleave_layers__linear_attn_block__mixer_channel_mlp__prompt.s"
    s = build()
    open(out, "w").write(s)
    print(out, len(s))
```

```python
import re

def _expand(tok):
    tok = tok.strip()
    tok = re.sub(r'^-', '', tok)
    m = re.match(r'^(?:abs\(|\|)(.*?)(?:\)|\|)$', tok)
    if m: tok = m.group(1)
    m = re.match(r'^([vsa])\[(\d+):(\d+)\]$', tok)
    if m: return [f"{m.group(1)}{i}" for i in range(int(m.group(2)), int(m.group(3)) + 1)]
    m = re.match(r'^([vsa])(\d+)$', tok)
    if m: return [tok]
    if tok in ('vcc', 'exec'): return [tok]
    if tok in ('vcc_lo', 'vcc_hi'): return ['vcc']
    if tok in ('exec_lo', 'exec_hi'): return ['exec']
    if tok == 'm0': return ['m0']
    return []

TRANS = ('v_exp_f32', 'v_log_f32', 'v_rcp_f32', 'v_rsq_f32', 'v_sqrt_f32', 'v_sin_f32', 'v_cos_f32', 'v_rcp_iflag_f32')

class I:
    __slots__ = ('text', 'op', 'kind', 'w', 'r', 'tag', 'needs', 'srcC', 'passes', 'isdma', 'wide', 'sdata')
    def __init__(self, text, tag=None, needs=()):
        self.text = text.strip(); self.tag = tag; self.needs = list(needs)
        self.srcC = []; self.passes = 0; self.isdma = False; self.wide = False; self.sdata = []
        t = self.text.split(';')[0].strip()
        if t.endswith(':') or t == '' or t.startswith('.'):
            self.op = 'label' if t.endswith(':') else 'dir'; self.kind = self.op; self.w = []; self.r = []; return
        parts = t.split(None, 1)
        self.op = op = re.sub(r'_(e32|e64|dpp|sdwa)$', '', parts[0])
        rest = parts[1] if len(parts) > 1 else ''
        ops = [x.strip() for x in re.split(r',(?![^\[]*\])', rest)]
        mods = ''
        if ops:
            lp = ops[-1].split(None, 1)
            if lp:
                ops[-1] = lp[0]
                mods = lp[1] if len(lp) > 1 else ''
        E = lambda i: _expand(ops[i]) if i < len(ops) else []
        allr = lambda a: [x for i in range(a, len(ops)) for x in E(i)]
        w, r = [], []
        if op.startswith('v_mfma'):
            self.kind = 'mfma'; w = E(0); r = E(1) + E(2) + E(3); self.srcC = E(3)
            self.passes = 8 if '32x32' in op else 4
        elif op.startswith('ds_read') or op.startswith('ds_bpermute') or op.startswith('ds_swizzle') or op.startswith('ds_permute'):
            self.kind = 'dsr'; w = E(0); r = allr(1)
        elif op.startswith('ds_write') or op.startswith('ds_add'):
            self.kind = 'dsw'; r = allr(0)
        elif op.startswith('buffer_load') or op.startswith('global_load'):
            self.kind = 'vm'
            if ' lds' in (' ' + mods) or op.startswith('global_load_lds'):
                self.isdma = True; r = allr(0) + ['m0']
            else:
                w = E(0); r = allr(1)
                if 'd16' in op: r += E(0)
        elif op.startswith('buffer_store') or op.startswith('global_store') or op.startswith('buffer_atomic') or op.startswith('global_atomic'):
            self.kind = 'vm'; r = allr(0)
            if op.startswith('buffer_'): self.sdata = E(0)
            else: self.sdata = E(1)
            if 'x4' in op or 'x3' in op: self.wide = True
            if 'atomic' in op and 'sc0' in mods: w = E(0)
        elif op.startswith('buffer_wbl2') or op.startswith('buffer_inv'):
            self.kind = 'vm'
        elif op.startswith('s_load') or op.startswith('s_memtime') or op.startswith('s_memrealtime') or op.startswith('s_buffer_load'):
            self.kind = 'smem'; w = E(0); r = allr(1)
        elif op in ('s_waitcnt', 's_barrier', 's_nop', 's_setprio', 's_endpgm', 's_sleep', 's_branch') or op.startswith('s_cbranch'):
            self.kind = 'ctl'
            if 'scc' in op: r = ['scc']
            if 'vcc' in op: r = ['vcc']
            if 'exec' in op: r = ['exec']
        elif op.startswith('s_cmp') or op.startswith('s_bitcmp'):
            self.kind = 'salu'; w = ['scc']; r = allr(0)
        elif op.startswith('s_'):
            self.kind = 'salu'; w = E(0); r = allr(1)
            if 'saveexec' in op: w += ['exec']; r += ['exec']
            if op in ('s_addc_u32', 's_subb_u32', 's_cselect_b32', 's_cselect_b64'): r += ['scc']
            if op in ('s_addk_i32', 's_mulk_i32'): r += E(0)
            if not op.startswith('s_mov') and not op.startswith('s_mul') and not op.startswith('s_cselect') and not op.startswith('s_getreg'): w += ['scc']
        elif op.startswith('v_'):
            self.kind = 'trans' if op in TRANS else 'valu'
            if op.startswith('v_cmp'):
                w = E(0); r = allr(1)
                if op.startswith('v_cmpx'): w += ['exec']
            elif op in ('v_add_co_u32', 'v_sub_co_u32', 'v_addc_co_u32', 'v_subb_co_u32'):
                w = E(0) + E(1); r = allr(2)
            elif op.startswith('v_permlane') and 'swap' in op:
                w = E(0) + E(1); r = E(0) + E(1)
            else:
                w = E(0); r = allr(1)
                if op.startswith('v_fmac') or op.startswith('v_pk_fmac') or op in ('v_writelane_b32',) or op.startswith('v_dot2c'): r += E(0)
                if ('row_' in mods or 'quad_perm' in mods or 'wave_' in mods or 'bank_mask' in mods): self.kind = 'dpp'; r += E(0)
                if 'dst_sel' in mods or 'op_sel' in mods: r += E(0)
        else:
            raise ValueError("unknown op " + text)
        self.w = w; self.r = r
    def states(self):
        if self.op == 's_nop':
            return int(self.text.split()[1], 0) + 1
        if self.kind in ('label', 'dir'): return 0
        return 1
    def isvalu(self): return self.kind in ('valu', 'trans', 'dpp')

class Prog:
    def __init__(self):
        self.ins = []
    def add(self, text, tag=None, needs=()):
        for line in text.split('\n'):
            if line.strip(): self.ins.append(I(line, tag, needs))
        return self
    def __call__(self, text, tag=None, needs=()): return self.add(text, tag, needs)
    def ext(self, lst):
        for x in lst:
            if isinstance(x, I): self.ins.append(x)
            else: self.add(x)
    def resolve_waits(self, check_only=False):
        out = []
        vm = []
        lg = []
        def need_vm(pred):
            idx = -1
            for k, o in enumerate(vm):
                if pred(o): idx = k
            return idx
        for ins in self.ins:
            if ins.op == 's_waitcnt':
                m = re.search(r'vmcnt\((\d+)\)', ins.text)
                if m:
                    n = int(m.group(1));
                    if len(vm) > n: vm = vm[len(vm) - n:] if n else []
                m = re.search(r'lgkmcnt\((\d+)\)', ins.text)
                if m:
                    n = int(m.group(1))
                    if any(o.kind == 'smem' for o in lg):
                        if n == 0: lg = []
                    elif len(lg) > n: lg = lg[len(lg) - n:] if n else []
                out.append(ins); continue
            touched = set(ins.r) | set(ins.w)
            iv = -1; il = -1
            for k, o in enumerate(vm):
                if (set(o.w) & touched) or (o.tag is not None and o.tag in ins.needs): iv = k
            for k, o in enumerate(lg):
                if (set(o.w) & touched) or (o.tag is not None and o.tag in ins.needs): il = k
            parts = []
            if iv >= 0:
                n = len(vm) - 1 - iv
                assert n <= 63
                parts.append(f"vmcnt({n})"); vm = vm[iv + 1:]
            if il >= 0:
                if any(o.kind == 'smem' for o in lg):
                    parts.append("lgkmcnt(0)"); lg = []
                else:
                    n = len(lg) - 1 - il
                    n = min(n, 15)
                    parts.append(f"lgkmcnt({n})"); lg = lg[len(lg) - n:] if n else []
            if parts: out.append(I("s_waitcnt " + " ".join(parts)))
            out.append(ins)
            if ins.kind == 'vm':
                vm.append(ins)
                assert len(vm) <= 63, "too many outstanding vmem"
            elif ins.kind in ('dsr', 'dsw', 'smem'): lg.append(ins)
        self.ins = out
        return self
    def pad_hazards(self):
        out = []
        def dist_back(pred, maxd):
            d = 0
            for o in reversed(out):
                if pred(o): return d
                d += o.states()
                if d >= maxd: return None
            return None
        for ins in self.ins:
            need = 0
            R = set(ins.r); W = set(ins.w)
            def req(pred, n):
                nonlocal need
                d = dist_back(pred, n)
                if d is not None and n - d > need: need = n - d
            vr = {x for x in R if x[0] in 'va' and x not in ('vcc',)}
            vw = {x for x in W if x[0] in 'va' and x not in ('vcc',)}
            sr = {x for x in R if x[0] == 's' and x != 'scc'} | ({'vcc'} & R)
            if ins.kind == 'mfma':
                req(lambda o: o.isvalu() and set(o.w) & vr, 2)
                ab = set(ins.r) - set(ins.srcC) if set(ins.srcC) != set(ins.r) else set(ins.r)
                abr = set(_ab(ins))
                for p, n in ((4, 8), (8, 12)):
                    req(lambda o, p=p: o.kind == 'mfma' and o.passes == p and set(o.w) & abr, n)
                for p, n in ((4, 6), (8, 10)):
                    req(lambda o, p=p: o.kind == 'mfma' and o.passes == p and set(o.w) & set(ins.srcC) and not (o.w == ins.srcC and o.passes == ins.passes), n)
                    req(lambda o, p=p: o.kind == 'mfma' and o.passes == p and set(o.w) & set(ins.w) and not (o.w == ins.srcC and o.passes == ins.passes), n)
                req(lambda o: o.isvalu() and 'exec' in o.w, 4)
            elif ins.isvalu() or ins.kind in ('vm', 'dsr', 'dsw'):
                for p, n in ((4, 8), (8, 12)):
                    req(lambda o, p=p: o.kind == 'mfma' and o.passes == p and set(o.w) & (vr | vw), n)
                if ins.isvalu() or ins.kind in ('vm', 'dsr'):
                    for p, n in ((4, 3), (8, 7)):
                        req(lambda o, p=p: o.kind == 'mfma' and o.passes == p and set(o.srcC) & vw, n)
            if ins.isvalu():
                if ins.kind != 'trans': req(lambda o: o.kind == 'trans' and set(o.w) & vr, 1)
                req(lambda o: o.isvalu() and set(o.w) & sr, 2)
                req(lambda o: o.kind == 'vm' and o.wide and set(o.sdata) & vw, 2)
                if ins.kind == 'dpp':
                    req(lambda o: (o.isvalu() or o.kind=='mfma') and set(o.w) & vr, 2)
                    req(lambda o: o.isvalu() and 'exec' in o.w, 5)
                if ins.op.startswith('v_permlane'):
                    req(lambda o: o.isvalu() and set(o.w) & vr, 2)
                    req(lambda o: o.isvalu() and 'exec' in o.w, 4)
                if ins.op in ('v_readlane_b32', 'v_readfirstlane_b32'):
                    req(lambda o: o.isvalu() and set(o.w) & vr, 1)
                    req(lambda o: o.isvalu() and 'exec' in o.w, 4)
                    req(lambda o: o.isvalu() and set(o.w) & sr, 4)
                if ins.op == 'v_div_fmas_f32': req(lambda o: o.isvalu() and 'vcc' in o.w, 4)
                req(lambda o: o.isvalu() and ('op_sel' in o.text or 'dst_sel' in o.text) and set(o.w) & (vr | vw), 1)
            if ins.kind in ('dsr',) or (ins.kind == 'vm' and vw):
                req(lambda o: o.kind == 'vm' and o.wide and set(o.sdata) & vw, 1)
            if ins.kind == 'vm':
                req(lambda o: o.isvalu() and set(o.w) & sr, 5)
                if ins.isdma: req(lambda o: o.kind == 'salu' and 'm0' in o.w, 1)
            if ins.kind == 'salu' or ins.kind == 'smem' or ins.kind == 'ctl':
                if ins.op in ('s_cbranch_vccz', 's_cbranch_vccnz'): req(lambda o: o.isvalu() and 'vcc' in o.w, 5)
                if ins.op in ('s_cbranch_execz', 's_cbranch_execnz'): req(lambda o: o.isvalu() and 'exec' in o.w, 5)
                req(lambda o: o.isvalu() and set(o.w) & sr, 1)
            while need > 0:
                k = min(need, 16)
                out.append(I(f"s_nop {k-1}")); need -= k
            out.append(ins)
        self.ins = out
        return self
    def text(self):
        return "".join(("" if i.kind == 'label' else "  ") + i.text + "\n" for i in self.ins)
    def finish(self):
        self.resolve_waits(); self.pad_hazards(); return self.text()

def _ab(ins):
    t = ins.text.split(';')[0].split(None, 1)[1]
    ops = [x.strip() for x in re.split(r',(?![^\[]*\])', t)]
    return _expand(ops[1]) + _expand(ops[2])

def interleave(main, fill, start=0, end=None, cost=None):
    n = len(main); end = n if end is None else end
    gaps = end - start
    w = [(2 if I(x).kind == 'trans' else 1) if isinstance(x, str) else (2 if x.kind == 'trans' else 1) for x in fill]
    tot = sum(w); out = []; k = 0; acc = 0
    for g in range(n):
        out += main[g]
        if start <= g < end:
            target = tot * (g - start + 1) / gaps
            while k < len(fill) and acc + w[k] / 2 <= target:
                out.append(fill[k]); acc += w[k]; k += 1
    out += fill[k:]
    return out

HDR = '.amdgcn_target "amdgcn-amd-amdhsa--gfx950"\n.text\n'
def kernel(name, body, vgpr=256, sgpr=102, agpr=0):
    acc = (vgpr + 3) // 4 * 4
    return f""".text
.globl {name}
.p2align 8
.type {name},@function
{name}:
{body}.section .rodata,"a"
.p2align 6
.amdhsa_kernel {name}
  .amdhsa_next_free_vgpr {acc + agpr if agpr else vgpr}
  .amdhsa_next_free_sgpr {sgpr}
  .amdhsa_accum_offset {acc}
  .amdhsa_group_segment_fixed_size 0
  .amdhsa_kernarg_size 88
  .amdhsa_user_sgpr_count 2
  .amdhsa_user_sgpr_kernarg_segment_ptr 1
  .amdhsa_system_sgpr_workgroup_id_x 1
.end_amdhsa_kernel
"""


def stamp_init(p):
    p("s_load_dwordx2 s[68:69], s[0:1], 72\ns_memtime s[70:71]\ns_memrealtime s[90:91]")
def stamp(i):
    return f"s_memtime s[{70+2*i}:{71+2*i}]"
def stamp_end(p, n, name, stride=32, wave=0):
    p(f"s_waitcnt vmcnt(0)\ns_memtime s[{70+2*n}:{71+2*n}]\ns_memrealtime s[92:93]\ns_waitcnt lgkmcnt(0)")
    p("s_sub_u32 s92, s92, s90\ns_lshl_b32 s92, s92, 20\ns_and_b32 s90, s90, 0xfffff\ns_or_b32 s90, s90, s92")
    for i in range(1, n+1): p(f"s_sub_u32 s{70+2*i}, s{70+2*i}, s70")
    p(f"""s_and_b32 s92, s2, {stride-1}
s_cmp_eq_u32 s92, 0
s_cbranch_scc0 L_{name}_dend
s_mov_b32 s96, s68
s_mov_b32 s97, s69
s_mov_b32 s98, 256
s_mov_b32 s99, 0x20000
s_lshr_b32 s92, s2, {stride.bit_length()-1}
s_lshl_b32 s92, s92, 5
s_mov_b64 exec, -1
v_mov_b32 v6, s92
v_cmp_eq_u32 vcc, {wave*64}, v0
s_and_saveexec_b64 s[94:95], vcc
s_cbranch_execz L_{name}_dend
v_mov_b32 v5, s90
buffer_store_dword v5, v6, s[96:99], 0 offen""")
    for i in range(1, n+1):
        p(f"v_mov_b32 v5, s{70+2*i}\nbuffer_store_dword v5, v6, s[96:99], 0 offen offset:{4*i}")
    p(f"L_{name}_dend:")


def prefetch(regions, q, vlane, va, vd, st=60):
    L = [f"v_lshlrev_b32 v{va}, 7, v{vlane}"]
    for base, n in regions:
        L.append(f"s_mul_i32 s{st}, s{q}, {n*128}")
        L.append(f"s_add_u32 s{st}, s{st}, {base}")
        if n < 64:
            L.append(f"s_mov_b32 exec_lo, {hex((1 << min(n, 32)) - 1)}")
            L.append(f"s_mov_b32 exec_hi, {hex((1 << max(n - 32, 0)) - 1)}")
        L.append(f"buffer_load_dword v{vd}, v{va}, s[8:11], s{st} offen")
    L.append("s_mov_b64 exec, -1")
    return L
```

```python
from asmlib import *
from layout import *

def srd(p, s, lo, size):
    p(f"s_mov_b32 s{s}, s{lo}\ns_mov_b32 s{s+1}, s{lo+1}\ns_mov_b32 s{s+2}, {size}\ns_mov_b32 s{s+3}, 0x20000")

def unpack8(p, src, dst):
    for i in range(4):
        p(f"v_lshlrev_b32 v{dst+2*i}, 16, v{src+i}")
        p(f"v_and_b32 v{dst+2*i+1}, 0xffff0000, v{src+i}")

def row_body(mode, layer=0, ldsbase=0, pf=True):
    p = Prog()
    p("s_load_dwordx2 s[4:5], s[0:1], 80")
    if mode == 'k0': p("s_load_dwordx2 s[6:7], s[0:1], 0")
    else: p("s_load_dwordx2 s[6:7], s[0:1], 56")
    if mode == 'd2': p("s_load_dwordx2 s[20:21], s[0:1], 64")
    p("""v_lshrrev_b32 v1, 3, v0
v_and_b32 v2, 7, v0
v_lshlrev_b32 v3, 9, v1
v_lshl_add_u32 v3, v2, 4, v3
v_lshlrev_b32 v4, 4, v1
v_mul_u32_u24 v5, 1152, v2
v_add_u32 v5, v5, v4
s_and_b32 s16, s2, 7
s_lshl_b32 s16, s16, 5
s_lshr_b32 s17, s2, 3
s_add_u32 s16, s16, s17
s_lshr_b32 s17, s16, 2
s_mul_i32 s18, s17, 36864
s_and_b32 s19, s16, 3
s_lshl_b32 s22, s19, 7
s_add_u32 s18, s18, s22
s_mul_i32 s23, s16, 9216
s_waitcnt lgkmcnt(0)""")
    srd(p, 8, 4, WSSZ)
    srd(p, 12, 6, ACT if mode == 'k0' else 1152)
    X = 16
    if mode == 'k0':
        p("buffer_load_dwordx4 v[8:11], v5, s[12:15], s23 offen")
        p(f"""s_mul_i32 s24, s2, 768
s_add_u32 s24, s24, {KV}
v_mov_b32 v12, 0
v_mov_b32 v13, 0
v_mov_b32 v14, 0
v_mov_b32 v15, 0
v_lshlrev_b32 v6, 4, v0
v_cmp_gt_u32 vcc, 48, v0
s_and_saveexec_b64 s[26:27], vcc
s_cbranch_execz L_k0_nz
buffer_store_dwordx4 v[12:15], v6, s[8:11], s24 offen
L_k0_nz:
s_mov_b64 exec, s[26:27]
s_add_u32 s24, s18, {XF}
s_waitcnt vmcnt(0)
buffer_store_dwordx4 v[8:11], v3, s[8:11], s24 offen""")
        unpack8(p, 8, X)
    else:
        p(f"""s_lshl_b32 s24, s17, 8
s_lshl_b32 s25, s19, 5
s_add_u32 s24, s24, s25
s_add_u32 s24, s24, {ST + layer*STL}
v_lshlrev_b32 v6, 2, v2
buffer_load_dword v24, v6, s[8:11], s24 offen
buffer_load_dword v25, v6, s[8:11], s24 offen offset:128""")
        for j in range(8):
            p(f"s_add_u32 s24, s18, {PART + j*ACT}")
            p(f"buffer_load_dwordx4 v[{32+4*j}:{35+4*j}], v3, s[8:11], s24 offen")
        p(f"s_add_u32 s24, s18, {X1F}")
        p("buffer_load_dwordx4 v[8:11], v3, s[8:11], s24 offen")
        p("buffer_load_dwordx4 v[12:15], v4, s[12:15], 0 offen")
        if pf and mode == 'd1':
            p(f"""v_lshrrev_b32 v30, 6, v0
v_and_b32 v31, 63, v0
v_readfirstlane_b32 s61, v30
s_lshr_b32 s62, s2, 3
s_mul_i32 s62, s62, 9
s_add_u32 s61, s61, s62
s_and_b32 s62, s2, 3
s_mul_i32 s62, s62, {8*110592}
s_add_u32 s62, s62, {WQF}""")
            p.ext(prefetch([('s62', 24)], 61, 31, 30, 31))
        p("""v_mul_f32 v24, 0x3ae38e39, v24
v_mul_f32 v25, 0x3ae38e39, v25
v_fma_f32 v25, -v24, v24, v25
v_max_f32 v25, 0, v25
v_mov_b32 v26, 0x3f800054
v_mov_b32 v27, 0x2edbe6ff
v_fma_f32 v25, v25, v26, v27
v_rsq_f32 v25, v25""")
        unpack8(p, 32, X)
        for j in range(1, 8):
            for i in range(4):
                p(f"v_lshlrev_b32 v28, 16, v{32+4*j+i}")
                p(f"v_and_b32 v29, 0xffff0000, v{32+4*j+i}")
                p(f"v_add_f32 v{X+2*i}, v{X+2*i}, v28")
                p(f"v_add_f32 v{X+2*i+1}, v{X+2*i+1}, v29")
        unpack8(p, 8, 32)
        unpack8(p, 12, 40)
        for i in range(8):
            p(f"v_fma_f32 v{X+i}, v{X+i}, v25, v{40+i}")
            p(f"v_add_f32 v{X+i}, v{X+i}, v{32+i}")
        for i in range(4): p(f"v_cvt_pk_bf16_f32 v{8+i}, v{X+2*i}, v{X+2*i+1}")
        if mode == 'd2':
            srd(p, 12, 20, ACT)
            p("buffer_store_dwordx4 v[8:11], v5, s[12:15], s23 offen")
            p("s_endpgm")
            return p.finish()
        p(f"s_add_u32 s24, s18, {XF}")
        p("buffer_store_dwordx4 v[8:11], v3, s[8:11], s24 offen")
        unpack8(p, 8, X)
    p(f"v_add_f32 v24, v{X}, v{X+1}")
    p(f"v_mul_f32 v25, v{X}, v{X}")
    for i in range(2, 8): p(f"v_add_f32 v24, v24, v{X+i}")
    for i in range(1, 8): p(f"v_fmac_f32 v25, v{X+i}, v{X+i}")
    p(f"""v_permlane32_swap_b32 v24, v25
v_add_f32 v24, v24, v25
v_mov_b32 v25, v24
v_permlane16_swap_b32 v24, v25
v_add_f32 v24, v24, v25
v_add_f32 v24, v24, v24 row_ror:8
v_lshrrev_b32 v26, 6, v0
v_bfe_u32 v27, v0, 5, 1
v_lshl_add_u32 v27, v2, 1, v27
v_mul_u32_u24 v27, 48, v27
v_lshl_add_u32 v27, v26, 2, v27
v_and_b32 v28, 24, v0
v_cmp_eq_u32 vcc, 0, v28
s_and_saveexec_b64 s[26:27], vcc
ds_write_b32 v27, v24 offset:{ldsbase}
s_mov_b64 exec, s[26:27]
v_mul_u32_u24 v27, 96, v2
s_waitcnt lgkmcnt(0)
s_barrier
ds_read_b128 v[32:35], v27 offset:{ldsbase}
ds_read_b128 v[36:39], v27 offset:{ldsbase+16}
ds_read_b32 v40, v27 offset:{ldsbase+32}
ds_read_b128 v[44:47], v27 offset:{ldsbase+48}
ds_read_b128 v[48:51], v27 offset:{ldsbase+64}
ds_read_b32 v52, v27 offset:{ldsbase+80}""")
    for i in range(1, 9): p(f"v_add_f32 v32, v32, v{32+i}")
    for i in range(1, 9): p(f"v_add_f32 v44, v44, v{44+i}")
    p("""v_mul_f32 v32, 0x3ae38e39, v32
v_mul_f32 v44, 0x3ae38e39, v44
v_fma_f32 v44, -v32, v32, v44
v_max_f32 v44, 0, v44
v_add_f32 v44, 0x3727c5ac, v44
v_rsq_f32 v44, v44""")
    for i in range(8): p(f"v_sub_f32 v{X+i}, v{X+i}, v32")
    for i in range(8): p(f"v_mul_f32 v{X+i}, v{X+i}, v44")
    for i in range(4): p(f"v_cvt_pk_bf16_f32 v{12+i}, v{X+2*i}, v{X+2*i+1}")
    p(f"s_add_u32 s24, s18, {YF}")
    p("buffer_store_dwordx4 v[12:15], v3, s[8:11], s24 offen")
    p("s_endpgm")
    return p.finish()

def rearr_body(role):
    p = Prog()
    ka, RS, size, halfoff = {'w1': (32, 9216, 576*4608*2, 64), 'w2': (48, 1152, 576*4608*2, 64),
                             'wq': (8, 3456, 576*1728*2, 36), 'wo': (16, 1152, 576*576*2, 64)}[role]
    p(f"s_load_dwordx2 s[4:5], s[0:1], 80\ns_load_dwordx2 s[6:7], s[0:1], {ka}")
    if role == 'w1': p("s_load_dwordx2 s[20:21], s[0:1], 40")
    p(f"""v_lshrrev_b32 v1, 6, v0
v_and_b32 v2, 63, v0
v_readfirstlane_b32 s16, v1
v_bfe_u32 v3, v2, 2, 3
v_mul_u32_u24 v3, {RS}, v3
v_and_b32 v4, 3, v2
v_lshl_add_u32 v3, v4, 4, v3
v_lshrrev_b32 v5, 5, v2
v_mul_u32_u24 v6, {halfoff}, v5
v_add_u32 v3, v3, v6
v_lshlrev_b32 v7, 4, v2""")
    if role in ('w1', 'w2'):
        p("""s_and_b32 s22, s3, 7
s_lshr_b32 s23, s3, 3
s_and_b32 s19, s23, 1
s_lshr_b32 s24, s23, 1""")
        p(f"""s_mul_i32 s36, s19, 9
s_add_u32 s36, s36, s16
s_lshl_b32 s37, s22, 2
s_and_b32 s38, s24, 1
s_lshl_b32 s38, s38, 1
s_add_u32 s37, s37, s38
s_mul_i32 s37, s37, {WSN}
s_lshr_b32 s38, s24, 1""")
        if role == 'w1':
            p(f"""s_mul_i32 s17, s19, {288*9216}
s_mul_i32 s25, s22, 1152
s_add_u32 s17, s17, s25
s_lshl_b32 s25, s24, 7
s_add_u32 s17, s17, s25
s_mul_i32 s39, s36, 5
s_add_u32 s40, s39, s38
s_add_u32 s41, s38, 90
s_lshl_b32 s42, s36, 2
s_add_u32 s42, s42, s38
s_add_u32 s42, s42, 91
s_add_u32 s43, s38, 163
s_cmp_lt_u32 s24, 4
s_cselect_b32 s18, s40, s42
s_cselect_b32 s28, s41, s43
s_cselect_b32 s45, 3, 2
s_add_u32 s39, s39, 2
s_cmp_eq_u32 s24, 8
s_cselect_b32 s18, s39, s18
s_cselect_b32 s28, 92, s28
s_cselect_b32 s45, 0, s45""")
        else:
            p(f"""s_mul_i32 s17, s22, {576*1152}
s_mul_i32 s25, s19, {288*1152}
s_add_u32 s17, s17, s25
s_lshl_b32 s25, s24, 7
s_add_u32 s17, s17, s25
s_sub_u32 s39, s36, 8
s_cmp_lt_u32 s36, 8
s_cselect_b32 s40, s36, s39
s_mul_i32 s40, s40, 9
s_add_u32 s40, s40, 167
s_add_u32 s40, s40, s38
s_add_u32 s41, s38, 1
s_and_b32 s41, s41, 3
s_lshl_b32 s41, s41, 4
s_lshl_b32 s42, s39, 1
s_add_u32 s41, s41, s42
s_add_u32 s41, s41, 265
s_add_u32 s42, s39, 257
s_cmp_eq_u32 s24, 8
s_cselect_b32 s41, s42, s41
s_cmp_lt_u32 s39, 8
s_cselect_b32 s18, s41, s40
s_cselect_b32 s45, 1, 5
s_mov_b32 s28, 0
s_cmp_eq_u32 s24, 8
s_cselect_b32 s45, 0, s45""")
        p(f"""s_cselect_b32 s46, {WSN*1024}, 0
s_add_u32 s44, s46, {WSN*1024}
s_lshl_b32 s45, s45, 10
s_add_u32 s18, s18, s37
s_lshl_b32 s18, s18, 10
s_add_u32 s18, s18, {WSTR}
s_add_u32 s28, s28, s37
s_lshl_b32 s28, s28, 10
s_add_u32 s28, s28, {WSTR}
s_add_u32 s47, s18, s45
s_add_u32 s47, s47, s46
s_add_u32 s48, s18, s44
s_add_u32 s49, s48, s46
s_add_u32 s48, s48, s45""")
        TS, KS = None, None
    elif role == 'wq':
        p(f"""s_and_b32 s22, s3, 15
s_lshr_b32 s23, s3, 4
s_and_b32 s19, s23, 1
s_lshr_b32 s24, s23, 1
s_mul_i32 s17, s19, {288*3456}
s_mul_i32 s25, s24, 1152
s_add_u32 s17, s17, s25
s_mul_i32 s25, s22, 72
s_add_u32 s17, s17, s25
s_mul_i32 s18, s22, {2*110592}
s_mul_i32 s26, s19, {18*3072}
s_add_u32 s18, s18, s26
s_lshl_b32 s26, s24, 10
s_add_u32 s18, s18, s26
s_add_u32 s18, s18, {WQF}""")
        TS, KS = 110592, 3072
    else:
        p(f"""s_and_b32 s19, s3, 1
s_lshr_b32 s24, s3, 1
s_mul_i32 s17, s19, {288*1152}
s_lshl_b32 s25, s24, 7
s_add_u32 s17, s17, s25
s_mul_i32 s18, s24, {2*40*1024}
s_mul_i32 s26, s19, {20*1024}
s_add_u32 s18, s18, s26
s_add_u32 s18, s18, {WOF}""")
        TS, KS = 40*1024, 1024
    p(f"""s_mul_i32 s25, s16, {32*RS}
s_add_u32 s17, s17, s25
s_lshl_b32 s27, s16, 12
s_waitcnt lgkmcnt(0)""")
    srd(p, 8, 4, WSSZ)
    srd(p, 12, 6, size)
    for u in range(4):
        p(f"s_add_u32 m0, s27, {u*1024}")
        p("buffer_load_dwordx4 v3, s[12:15], s17 offen lds", tag='dma')
        if u < 3: p(f"s_add_u32 s17, s17, {8*RS}")
    if role == 'w1':
        srd(p, 32, 20, 4608*2)
        p("v_lshlrev_b32 v40, 1, v2")
    if role != 'wo':
        hhmul, second = (1024, 256) if role != 'w2' else (256, 1024)
        p(f"""v_lshlrev_b32 v8, 3, v4
v_bfe_u32 v9, v2, 2, 2
v_lshl_add_u32 v8, v9, 6, v8
v_bfe_u32 v9, v2, 4, 1
v_lshl_add_u32 v8, v9, 5, v8
v_mul_u32_u24 v9, {hhmul}, v5
v_add_u32 v8, v8, v9
v_add_u32 v8, s27, v8""")
        if KS: p(f"s_mul_i32 s26, s16, {2*KS}\ns_add_u32 s18, s18, s26")
        for ks in range(2):
            for tt in range(2):
                b = 16 + 8*ks + 4*tt
                p(f"ds_read_b64_tr_b16 v[{b}:{b+1}], v8 offset:{ks*2048 + tt*512}", needs=['dma'])
                p(f"ds_read_b64_tr_b16 v[{b+2}:{b+3}], v8 offset:{ks*2048 + tt*512 + second}")
        for ks in range(2):
            for tt in range(2):
                b = 16 + 8*ks + 4*tt
                if KS:
                    p(f"s_add_u32 s26, s18, {ks*KS + tt*TS}")
                    p(f"buffer_store_dwordx4 v[{b}:{b+3}], v7, s[8:11], s26 offen")
                else:
                    p(f"buffer_store_dwordx4 v[{b}:{b+3}], v7, s[8:11], s{((18, 48), (47, 49))[ks][tt]} offen")
        if role == 'w1':
            for i in range(4): p(f"v_mov_b32 v{12+i}, 0x3f803f80")
            for tt in range(2):
                a = 48 + 16*tt
                p(f"v_mfma_f32_32x32x16_bf16 v[{a}:{a+15}], v[12:15], v[{16+4*tt}:{19+4*tt}], 0")
                p(f"v_mfma_f32_32x32x16_bf16 v[{a}:{a+15}], v[12:15], v[{24+4*tt}:{27+4*tt}], v[{a}:{a+15}]")
            p(f"""v_cmp_gt_u32 vcc, 32, v2
v_cndmask_b32 v41, v64, v48, vcc
v_lshlrev_b32 v42, 2, v0
ds_write_b32 v42, v41 offset:36864
s_waitcnt lgkmcnt(0)
s_barrier
s_cmp_eq_u32 s16, 0
s_cbranch_scc1 L_w1_aug
s_endpgm
L_w1_aug:
s_and_b32 s22, s3, 7
s_lshr_b32 s23, s3, 4
s_mul_i32 s30, s22, 18
s_lshl_b32 s23, s23, 1
s_add_u32 s30, s30, s23
s_lshl_b32 s30, s30, 6
buffer_load_ushort v43, v40, s[32:35], s30 offen""")
            for w in range(9): p(f"ds_read_b32 v{48+w}, v42 offset:{36864 + w*256}")
            for w in range(1, 9): p(f"v_add_f32 v48, v48, v{48+w}")
            p(f"""v_cvt_pk_bf16_f32 v60, v48, v48
v_and_b32 v49, 0xffff0000, v60
v_sub_f32 v49, v48, v49
v_cvt_pk_bf16_f32 v61, v49, v49
v_and_b32 v61, 0xffff, v61
s_cmp_eq_u32 s19, 0
s_cselect_b32 s31, 0xffff, 0
v_and_b32 v62, s31, v43
v_lshl_or_b32 v61, v62, 16, v61
v_mov_b32 v63, 0
v_and_b32 v44, 31, v2
v_lshlrev_b32 v44, 4, v44
v_mul_u32_u24 v45, s44, v5
v_add_u32 v44, v44, v45
s_lshl_b32 s26, s19, 9
s_add_u32 s28, s28, s26
buffer_store_dwordx4 v[60:63], v44, s[8:11], s28 offen
s_add_u32 s28, s28, s46
buffer_store_dwordx4 v[60:63], v44, s[8:11], s28 offen""")
        p("s_endpgm")
        return p.finish()
    p("""v_mov_b32 v12, 0
v_lshlrev_b32 v13, 2, v0
v_cmp_gt_u32 vcc, 256, v0
s_and_saveexec_b64 s[30:31], vcc
ds_write_b32 v13, v12 offset:36864
s_mov_b64 exec, s[30:31]""")
    p("s_waitcnt lgkmcnt(0)")
    p("s_barrier", needs=['dma'])
    p("""s_cmp_lt_u32 s16, 4
s_cbranch_scc1 L_wo_go
s_endpgm
L_wo_go:""")
    p("""s_lshl_b32 s22, s19, 1
s_lshr_b32 s23, s16, 1
s_add_u32 s22, s22, s23
v_bfe_u32 v9, v2, 4, 1
v_lshlrev_b32 v9, 1, v9
v_bfe_u32 v10, v2, 1, 1
v_add3_u32 v9, v9, v10, s22
v_and_b32 v9, 3, v9
v_lshlrev_b32 v9, 4, v9
v_and_b32 v10, 1, v2
v_lshl_add_u32 v9, v10, 3, v9
v_bfe_u32 v10, v2, 2, 1
v_lshl_add_u32 v10, v5, 2, v10
s_mul_i32 s23, s16, 72
v_add_u32 v10, s23, v10
v_bfe_u32 v11, v2, 3, 1
v_cmp_eq_u32 s[36:37], 1, v11
v_cmp_eq_u32 s[38:39], 1, v5
s_and_b64 s[40:41], s[36:37], s[38:39]
s_andn2_b64 s[42:43], s[38:39], s[36:37]
v_mov_b32 v14, 36864
v_add_u32 v14, v14, v9
s_mul_i32 s26, s16, 5120
s_add_u32 s18, s18, s26""")
    for i in range(5):
        for rho in range(2):
            bs = []
            for rh in range(2):
                prg = 4*i + 2*rho + rh
                hl, pr = divmod(prg, 5)
                bs.append((hl*18 + (8*(pr >> 1) + 2*(pr & 1) if pr < 4 else 16), pr == 4))
            a = 80 + 2*i + rho
            p(f"v_mov_b32 v12, {bs[0][0]}\nv_mov_b32 v13, {bs[1][0]}")
            p(f"v_cndmask_b32 v12, v12, v13, s[36:37]")
            p(f"v_add_u32 v12, v12, v10")
            p(f"v_lshrrev_b32 v13, 3, v12\nv_and_b32 v12, 7, v12\nv_lshlrev_b32 v13, 10, v13\nv_lshl_add_u32 v12, v12, 6, v13")
            p(f"v_add_u32 v{a}, v12, v9")
            if bs[0][1]: p(f"v_cndmask_b32 v{a}, v{a}, v14, s[42:43]")
            if bs[1][1]: p(f"v_cndmask_b32 v{a}, v{a}, v14, s[40:41]")
    for i in range(5):
        for tt in range(2):
            b = 16 + 8*i + 4*tt
            p(f"ds_read_b64_tr_b16 v[{b}:{b+1}], v{80+2*i} offset:{tt*512}")
            p(f"ds_read_b64_tr_b16 v[{b+2}:{b+3}], v{81+2*i} offset:{tt*512}")
    for i in range(5):
        for tt in range(2):
            b = 16 + 8*i + 4*tt
            p(f"s_add_u32 s26, s18, {i*KS + tt*TS}")
            p(f"buffer_store_dwordx4 v[{b}:{b+3}], v7, s[8:11], s26 offen")
    p("s_endpgm")
    return p.finish()

def k0_kernel():
    body = ""
    roles = [('ln', 0, 256), ('w1', 256, 400), ('w2', 400, 544), ('wq', 544, 640), ('wo', 640, 658)]
    for r, lo, hi in roles:
        body += f"  s_sub_u32 s3, s2, {lo}\n  s_cmp_lt_u32 s2, {hi}\n  s_cbranch_scc1 L_k0_{r}\n"
    body += "  s_endpgm\n"
    for r, lo, hi in roles:
        body += f"L_k0_{r}:\n" + (row_body('k0') if r == 'ln' else rearr_body(r))
    return kernel("k0_kernel", body, vgpr=96), "; @launch kernel=k0_kernel grid=(658,1,1) block=(576,1,1) lds=40960\n"

def d_kernel(layer, pf=True):
    name = f"d{layer}_kernel"
    body = f"  s_cmp_lt_u32 s2, 256\n  s_cbranch_scc1 L_{name}_go\n  s_endpgm\nL_{name}_go:\n" + row_body('d1' if layer == 0 else 'd2', layer, pf=pf)
    return kernel(name, body, vgpr=64), f"; @launch kernel={name} grid=(256,1,1) block=(576,1,1) lds=1024\n"
```

```python
from asmlib import *
from layout import *
from k0 import srd

def phi(regs, tmp):
    L = []
    for b in range(0, len(regs), 4):
        g = regs[b:b+4]
        for i, r in enumerate(g): L.append(f"v_mul_f32 v{tmp+i}, 0x3fb8aa3b, v{r}")
        for i, r in enumerate(g): L.append(f"v_exp_f32 v{tmp+i}, v{tmp+i} clamp")
        for i, r in enumerate(g): L.append(f"v_max_f32 v{r}, 0x358637bd, v{r}")
        for i, r in enumerate(g): L.append(f"v_add_f32 v{r}, v{r}, v{tmp+i}")
    return L

def a_kernel(layer, dbg=False, pf=True):
    name = f"a{layer}_kernel"
    p = Prog()
    p(f"""s_cmp_lt_u32 s2, 256
s_cbranch_scc1 L_{name}_go
s_endpgm
L_{name}_go:
s_load_dwordx2 s[4:5], s[0:1], 80""")
    if dbg: stamp_init(p)
    p(f"""v_lshrrev_b32 v1, 6, v0
v_and_b32 v2, 63, v0
v_readfirstlane_b32 s16, v1
v_lshlrev_b32 v3, 4, v2
s_and_b32 s17, s2, 7
s_lshr_b32 s18, s2, 3
s_lshr_b32 s19, s17, 2
s_lshl_b32 s19, s19, 2
s_and_b32 s20, s18, 3
s_add_u32 s19, s19, s20
s_and_b32 s20, s17, 3
s_lshl_b32 s20, s20, 3
s_lshr_b32 s21, s18, 2
s_add_u32 s20, s20, s21
s_lshl_b32 s21, s19, 3
s_lshl_b32 s22, s16, 1
s_add_u32 s21, s21, s22
s_mul_i32 s22, s21, 36864
s_add_u32 s22, s22, {YF}
s_add_u32 s23, s22, 36864
s_mul_i32 s24, s20, 110592
s_add_u32 s24, s24, {WQF}
s_mul_i32 s25, s16, 9216
s_add_u32 s24, s24, s25
s_waitcnt lgkmcnt(0)""")
    srd(p, 8, 4, WSSZ)
    for u in range(9): p(f"v_add_u32 v{4+u}, {u*4096}, v3")
    def wdma(c):
        L = []
        for i in range(9):
            if i % 4 == 0:
                L.append(f"s_add_u32 m0, s25, {c*36864 + i*1024}")
                L.append(f"s_add_u32 s26, s24, {c*36864 + i*1024}")
            L.append(I(f"buffer_load_dwordx4 v3, s[8:11], s26 offen offset:{(i%4)*1024} lds", tag=f"w{c}"))
        return L
    YR = 48
    def yld(kk, rt):
        s = 4*((kk*2 + rt) % YR)
        return f"buffer_load_dwordx4 a[{s}:{s+3}], v{4 + kk//4}, s[8:11], s{22+rt} offen offset:{(kk%4)*1024}"
    p.ext(wdma(0))
    for kk in range(12): p(yld(kk, 0)); p(yld(kk, 1))
    p.ext(wdma(1))
    for kk in range(12, 22): p(yld(kk, 0)); p(yld(kk, 1))
    Q, K, V, WR, T, KVA = 16, 48, 80, 112, 136, 168
    NW = 6
    def wrd(g):
        s = WR + 4*(g % NW)
        if g < 64: return f"ds_read_b128 v[{s}:{s+3}], v3 offset:{g*1024}"
        return f"ds_read_b128 v[{s}:{s+3}], v13 offset:{(g-64)*1024}"
    p("v_add_u32 v13, 65536, v3")
    if dbg: p(stamp(1))
    p("s_barrier", needs=['w0'])
    if dbg: p(stamp(2))
    p.ext(wdma(2))
    for g in range(NW - 1): p(wrd(g))
    for kk in range(36):
        for part in range(3):
            g = kk*3 + part
            w = WR + 4*(g % NW)
            for rt in range(2):
                y = 4*((kk*2 + rt) % YR)
                acc = (Q, K, V)[part] + 16*rt
                c = "0" if kk == 0 else f"v[{acc}:{acc+15}]"
                if part == 0: p(f"v_mfma_f32_32x32x16_bf16 v[{acc}:{acc+15}], v[{w}:{w+3}], a[{y}:{y+3}], {c}")
                else: p(f"v_mfma_f32_32x32x16_bf16 v[{acc}:{acc+15}], a[{y}:{y+3}], v[{w}:{w+3}], {c}")
                if rt == 0:
                    gn = g + NW - 1
                    if gn < 108:
                        if gn % 36 == 0: p("s_barrier", needs=[f"w{gn//36}"])
                        p(wrd(gn))
            if part >= 1 and kk + 22 < 36: p(yld(kk + 22, part - 1))
        if dbg and kk in (11, 23, 35): p(stamp(3 + kk//12))
    if pf:
        p("s_lshl_b32 s61, s18, 2\ns_add_u32 s61, s61, s16")
        p.ext(prefetch([(WOF, 45)], 61, 2, 190, 191))
    p("""v_and_b32 v14, 27, v2
v_cmp_eq_u32 vcc, 18, v14
v_mov_b32 v15, 0x3f803f80""")
    for rt in range(2):
        p.ext(phi(list(range(K + 16*rt, K + 16*rt + 16)), WR))
        for i in range(8): p(f"v_cvt_pk_bf16_f32 v{T + 8*rt + i}, v{K+16*rt+2*i}, v{K+16*rt+2*i+1}")
        for i in range(8): p(f"v_cvt_pk_bf16_f32 v{T + 16 + 8*rt + i}, v{V+16*rt+2*i}, v{V+16*rt+2*i+1}")
        for i in range(8): p(f"v_cndmask_b32 v{T + 16 + 8*rt + i}, v{T + 16 + 8*rt + i}, v15, vcc")
        for q in range(2):
            a = T + 8*rt + 4*q; b = a + 16
            c = "0" if (rt == 0 and q == 0) else f"v[{KVA}:{KVA+15}]"
            p(f"v_mfma_f32_32x32x16_bf16 v[{KVA}:{KVA+15}], v[{a}:{a+3}], v[{b}:{b+3}], {c}")
    p(f"""s_lshl_b32 s26, s21, 5
s_add_u32 s26, s26, s20
s_lshl_b32 s27, s26, 8
s_lshl_b32 s26, s26, 10
s_add_u32 s26, s26, {PQ16}
s_add_u32 s27, s27, {PQ4}
v_lshlrev_b32 v14, 2, v2""")
    for rt in range(2):
        p.ext(phi(list(range(Q + 16*rt, Q + 16*rt + 10)), WR))
        o = WR + 8 + 6*rt
        for i in range(5): p(f"v_cvt_pk_bf16_f32 v{o + i}, v{Q+16*rt+2*i}, v{Q+16*rt+2*i+1}")
        if rt == 1: p("s_add_u32 s26, s26, 32768\ns_add_u32 s27, s27, 8192")
        p(f"buffer_store_dwordx4 v[{o}:{o+3}], v3, s[8:11], s26 offen")
        p(f"buffer_store_dword v{o+4}, v14, s[8:11], s27 offen")
    RB = 110592
    p(f"""s_mul_i32 s28, s16, 2560
s_add_u32 s28, s28, {RB}
v_add_u32 v15, s28, v3
v_lshlrev_b32 v16, 3, v2
v_add_u32 v16, s28, v16
ds_write_b128 v15, v[{KVA}:{KVA+3}]
ds_write_b128 v15, v[{KVA+4}:{KVA+7}] offset:1024
ds_write_b64 v16, v[{KVA+8}:{KVA+9}] offset:2048
v_lshlrev_b32 v17, 2, v0
v_add_u32 v18, {RB}, v17
s_waitcnt lgkmcnt(0)
s_barrier""")
    if dbg: p(stamp(6))
    for it in range(3):
        for w in range(4): p(f"ds_read_b32 v{20 + 4*it + w}, v18 offset:{w*2560 + it*1024}")
    p(f"""v_bfe_u32 v19, v0, 2, 5
v_cmp_gt_u32 s[30:31], 19, v19
v_cmp_eq_u32 s[32:33], 22, v19
s_or_b64 s[30:31], s[30:31], s[32:33]
v_lshrrev_b32 v19, 1, v0
v_cmp_gt_u32 s[34:35], 19, v19
v_cmp_eq_u32 s[32:33], 22, v19
s_or_b64 s[34:35], s[34:35], s[32:33]
s_mul_i32 s28, s20, 2560
s_add_u32 s28, s28, {KV + layer*KVL}""")
    for it in range(3):
        b = 20 + 4*it
        p(f"v_add_f32 v{b}, v{b}, v{b+1}\nv_add_f32 v{b+2}, v{b+2}, v{b+3}\nv_add_f32 v{b}, v{b}, v{b+2}")
    p(f"""s_mov_b64 exec, s[30:31]
buffer_atomic_add_f32 v20, v17, s[8:11], s28 offen
buffer_atomic_add_f32 v24, v17, s[8:11], s28 offen offset:1024
s_cmp_eq_u32 s16, 0
s_cbranch_scc0 L_{name}_end
s_mov_b64 exec, s[34:35]
buffer_atomic_add_f32 v28, v17, s[8:11], s28 offen offset:2048
L_{name}_end:""")
    if dbg: stamp_end(p, 7, name)
    p("s_endpgm")
    return kernel(name, p.finish(), vgpr=192, agpr=192), f"; @launch kernel={name} grid=(256,1,1) block=(256,1,1) lds={RB + 10240 + 1024}\n"
```

```python
from asmlib import *
from layout import *
from k0 import srd

def b_body(layer, NT, name, dbg=False, pf=True):
    p = Prog()
    KVR, PQR, NUM, O, XR = 16, 112, 160, 192, 232
    ACC = KVR
    p(f"""s_lshl_b32 s19, s16, 3
s_mul_i32 s20, s19, 2560
s_add_u32 s20, s20, {KV + layer*KVL}
s_lshl_b32 s21, s17, 5
s_add_u32 s21, s21, s19
s_lshl_b32 s22, s21, 8
s_lshl_b32 s21, s21, 10
s_add_u32 s21, s21, {PQ16}
s_add_u32 s22, s22, {PQ4}
s_mul_i32 s23, s18, 40960
s_mul_i32 s24, s16, 10240
s_add_u32 s23, s23, s24
s_add_u32 s23, s23, {WOF}
v_lshlrev_b32 v4, 3, v2
v_lshlrev_b32 v5, 2, v2
v_add_u32 v6, 4096, v3
v_add_u32 v7, 8192, v3""")
    for h in range(8):
        k = KVR + 12*h; q = PQR + 6*h
        p(f"buffer_load_dwordx4 v[{k}:{k+3}], v3, s[8:11], s20 offen")
        p(f"buffer_load_dwordx4 v[{k+4}:{k+7}], v3, s[8:11], s20 offen offset:1024")
        p(f"buffer_load_dwordx2 v[{k+8}:{k+9}], v4, s[8:11], s20 offen offset:2048")
        p(f"buffer_load_dwordx4 v[{q}:{q+3}], v{(3,6)[h//4]}, s[8:11], s21 offen offset:{(h%4)*1024}")
        p(f"buffer_load_dword v{q+4}, v5, s[8:11], s22 offen offset:{h*256}")
        if h < 7: p("s_add_u32 s20, s20, 2560")
    wl = []
    for ks in range(10):
        for t in range(NT):
            r = 4*(ks*NT + t)
            wl.append(f"buffer_load_dwordx4 a[{r}:{r+3}], v{(3,6,7)[ks//4]}, s[8:11], s{30+t} offen offset:{(ks%4)*1024}")
    for t in range(NT): p(f"s_add_u32 s{30+t}, s23, {t*40960}")
    p(f"""s_mul_i32 s25, s17, 36864
s_lshl_b32 s26, s18, 11
s_add_u32 s25, s25, s26
s_lshl_b32 s26, s16, 9
s_add_u32 s25, s25, s26
s_add_u32 s26, s25, {XF}
s_add_u32 s27, s25, {X1F}
v_and_b32 v8, 31, v2
v_lshlrev_b32 v8, 4, v8
v_lshrrev_b32 v9, 5, v2
v_lshl_add_u32 v8, v9, 3, v8
v_add_u32 v9, 4096, v8
v_add_u32 v10, 8192, v8""")
    xl = [f"buffer_load_dwordx2 v[{XR+2*t}:{XR+2*t+1}], v{8 + t//2}, s[8:11], s26 offen offset:{(t%2)*2048}" for t in range(NT)]
    rest = wl + xl
    p.ext(rest[:22]); rest = rest[22:]
    for h in range(8): p(f"v_mov_b32 v{PQR+6*h+5}, 0")
    if dbg: p(stamp(1))
    def post(h):
        n = NUM + 16*(h % 2)
        p(f"v_add_f32 v11, 0x358637bd, v{n+10}\nv_rcp_f32 v11, v11")
        for i in range(10): p(f"v_mul_f32 v{n+i}, v{n+i}, v11")
        for i in range(5): p(f"v_cvt_pk_bf16_f32 v{O+5*h+i}, v{n+2*i}, v{n+2*i+1}")
    for h in range(8):
        k = KVR + 12*h; q = PQR + 6*h; n = NUM + 16*(h % 2)
        for i in range(5): p(f"v_cvt_pk_bf16_f32 v{k+i}, v{k+2*i}, v{k+2*i+1}")
        p(f"v_mov_b32 v{k+5}, 0")
        p(f"v_mfma_f32_32x32x16_bf16 v[{n}:{n+15}], v[{k}:{k+3}], v[{q}:{q+3}], 0")
        p(f"v_mfma_f32_32x32x8_bf16 v[{n}:{n+15}], v[{k+4}:{k+5}], v[{q+4}:{q+5}], v[{n}:{n+15}]")
        p.ext(rest[:5]); rest = rest[5:]
        if h > 0: post(h - 1)
        if dbg and h == 0: p(stamp(2))
    post(7)
    assert not rest
    if pf:
        p(f"""s_and_b32 s62, s2, 7
s_mul_i32 s62, s62, {4*WSN*1024}
s_add_u32 s62, s62, {WSTR}
s_add_u32 s63, s62, {2*WSN*1024}
s_lshr_b32 s61, s2, 3
s_lshl_b32 s61, s61, 2
s_add_u32 s61, s61, s16""")
        p.ext(prefetch([('s62', 42), ('s63', 42)], 61, 2, 250, 251))
    if dbg: p(stamp(3))
    for ks in range(10):
        for t in range(NT):
            r = 4*(ks*NT + t); a = ACC + 16*t
            c = "0" if ks == 0 else f"v[{a}:{a+15}]"
            p(f"v_mfma_f32_32x32x16_bf16 v[{a}:{a+15}], a[{r}:{r+3}], v[{O+4*ks}:{O+4*ks+3}], {c}")
    if dbg: p(stamp(4))
    for g in range(1, 4):
        p(f"""s_add_u32 s28, s16, {g}
s_and_b32 s28, s28, 3
s_mul_i32 s28, s28, {3*NT*1024}
s_add_u32 s28, s28, {(g-1)*NT*1024}
v_add_u32 v{10+g}, s28, v3""")
    p(f"s_mul_i32 s28, s16, {3*NT*1024}\nv_add_u32 v14, s28, v3")
    for t in range(NT):
        for g in range(1, 4):
            a = ACC + 16*t + 4*g
            p(f"ds_write_b128 v{10+g}, v[{a}:{a+3}] offset:{t*1024}")
    p("s_waitcnt lgkmcnt(0)\ns_barrier")
    if dbg: p(stamp(5))
    RD = PQR
    for t in range(NT):
        for g in range(3):
            r = RD + 12*t + 4*g
            p(f"ds_read_b128 v[{r}:{r+3}], v14 offset:{(g*NT + t)*1024}")
    p("v_mov_b32 v15, 0\nv_mov_b32 v11, 0")
    for t in range(NT):
        a = ACC + 16*t; r = RD + 12*t; x = XR + 2*t; u = a + 4
        p(f"v_lshlrev_b32 v{u}, 16, v{x}\nv_and_b32 v{u+1}, 0xffff0000, v{x}\nv_lshlrev_b32 v{u+2}, 16, v{x+1}\nv_and_b32 v{u+3}, 0xffff0000, v{x+1}")
        for i in range(4): p(f"v_add_f32 v{a+i}, v{a+i}, v{r+i}")
        for i in range(4): p(f"v_add_f32 v{r+4+i}, v{r+4+i}, v{r+8+i}")
        for i in range(4): p(f"v_add_f32 v{a+i}, v{a+i}, v{r+4+i}")
        for i in range(4): p(f"v_add_f32 v{a+i}, v{a+i}, v{u+i}")
        p(f"v_cvt_pk_bf16_f32 v{x}, v{a}, v{a+1}\nv_cvt_pk_bf16_f32 v{x+1}, v{a+2}, v{a+3}")
        p(f"buffer_store_dwordx2 v[{x}:{x+1}], v{8 + t//2}, s[8:11], s27 offen offset:{(t%2)*2048}")
        p(f"v_lshlrev_b32 v{u}, 16, v{x}\nv_and_b32 v{u+1}, 0xffff0000, v{x}\nv_lshlrev_b32 v{u+2}, 16, v{x+1}\nv_and_b32 v{u+3}, 0xffff0000, v{x+1}")
        for i in range(4): p(f"v_add_f32 v15, v15, v{u+i}\nv_fmac_f32 v11, v{u+i}, v{u+i}")
    p(f"""v_permlane32_swap_b32 v15, v11
v_add_f32 v15, v15, v11
s_lshl_b32 s28, s17, 8
s_add_u32 s28, s28, {ST + layer*STL}
buffer_atomic_add_f32 v15, v5, s[8:11], s28 offen""")
    if dbg: p(stamp(6)); stamp_end(p, 7, name + str(NT))
    p("s_endpgm")
    return p.finish()

def b_kernel(layer, dbg=False, pf=True):
    name = f"b{layer}_kernel"
    p = Prog()
    p(f"""s_cmp_lt_u32 s2, 256
s_cbranch_scc1 L_{name}_go
s_endpgm
L_{name}_go:
s_load_dwordx2 s[4:5], s[0:1], 80""")
    if dbg: stamp_init(p)
    p(f"""v_lshrrev_b32 v1, 6, v0
v_and_b32 v2, 63, v0
v_readfirstlane_b32 s16, v1
v_lshlrev_b32 v3, 4, v2
s_and_b32 s17, s2, 7
s_lshl_b32 s17, s17, 3
s_bfe_u32 s19, s2, 0x30003
s_add_u32 s17, s17, s19
s_lshr_b32 s19, s2, 6
s_waitcnt lgkmcnt(0)""")
    srd(p, 8, 4, WSSZ)
    p(f"""s_cmp_lt_u32 s19, 2
s_cbranch_scc0 L_{name}_4
s_mul_i32 s18, s19, 5""")
    body = p.finish() + b_body(layer, 5, name, dbg, pf)
    body += f"L_{name}_4:\n  s_lshl_b32 s18, s19, 2\n  s_add_u32 s18, s18, 2\n" + b_body(layer, 4, name, dbg, pf)
    return kernel(name, body, vgpr=256, agpr=200), f"; @launch kernel={name} grid=(256,1,1) block=(256,1,1) lds=61440\n"
```

```python
from asmlib import *
from layout import *
from k0 import srd

def gelu8(x, k1, k3, tmp, out, grp=4):
    L = []
    for b in range(0, 8, grp):
        idx = range(b, b + grp)
        T = lambda i: tmp + i
        for i in idx: L.append(f"v_mul_f32 v{T(i)}, v{x+i}, v{x+i}")
        for i in idx: L.append(f"v_fma_f32 v{T(i)}, v{T(i)}, v{k3}, v{k1}")
        for i in idx: L.append(f"v_mul_f32 v{T(i)}, v{T(i)}, v{x+i}")
        for i in idx: L.append(f"v_exp_f32 v{T(i)}, v{T(i)}")
        for i in idx: L.append(f"v_add_f32 v{T(i)}, 1.0, v{T(i)}")
        for i in idx: L.append(f"v_rcp_f32 v{T(i)}, v{T(i)}")
        for i in idx: L.append(f"v_mul_f32 v{T(i)}, v{T(i)}, v{x+i}")
        for i in list(idx)[::2]: L.append(f"v_cvt_pk_bf16_f32 v{out+i//2}, v{T(i)}, v{T(i+1)}")
    return L

def c_kernel(layer, DW=32, D0=12, YCH=4, stfl="sc1", dbg=False, RAMP=1, X=(), merge=True, YLA=0):
    name = f"c{layer}_kernel"
    p = Prog()
    YB, HB, XB = 0, 73728, 147456
    vL = 3
    vRD = 6
    vHW = 10
    vXW, vXR = 13, 14
    vK1, vK3 = 16, 18
    TMP, PK = 24, 32
    A_, B_, C_, D_, OS, N2, N3 = 40, 72, 104, 136, 168, 184, 216
    aODD, aAUG, aLR, aT, aW = 0, 32, 40, 64, 128
    NL = 3
    assert aW + 4*DW <= 256
    p(f"""s_cmp_lt_u32 s2, 256
s_cbranch_scc1 L_{name}_go
s_endpgm
L_{name}_go:
s_load_dwordx2 s[4:5], s[0:1], 80""")
    if dbg: stamp_init(p)
    p(f"""v_lshrrev_b32 v1, 6, v0
v_and_b32 v2, 63, v0
v_readfirstlane_b32 s16, v1
v_lshlrev_b32 v{vL}, 4, v2
s_and_b32 s17, s2, 7
s_lshr_b32 s18, s2, 3
s_and_b32 s19, s16, 1
s_lshr_b32 s20, s16, 1
s_lshl_b32 s30, s17, 2
s_add_u32 s30, s30, s16
s_mul_i32 s30, s30, {WSN*1024}
s_add_u32 s30, s30, {WSTR}
s_mul_i32 s25, s18, 73728
s_lshl_b32 s26, s16, 10
s_add_u32 s27, s25, s26
s_add_u32 s27, s27, {X1F}
s_add_u32 s28, s27, 36864
s_add_u32 s31, s26, 36864
s_lshl_b32 s21, s18, 1
s_xor_b32 s29, s19, 1
s_add_u32 s45, s21, s19
s_add_u32 s46, s21, s29
s_lshl_b32 s47, s45, 8
s_lshl_b32 s48, s46, 8
s_add_u32 s47, s47, {ST + layer*STL}
s_add_u32 s48, s48, {ST + layer*STL}
v_lshlrev_b32 v15, 2, v2
s_mov_b32 s10, {WSSZ}
s_mov_b32 s11, 0x20000
s_waitcnt lgkmcnt(0)
s_mov_b32 s8, s4
s_mov_b32 s9, s5""")
    steps = []
    def fr(acc, rts=(0, 1), first=False, ag=False, kk=None):
        return dict(m=[(acc + 16*rt, ag, rt, first) for rt in rts], kk=kk)
    for kk in range(36):
        f = [fr(A_, first=kk == 0), fr(B_, first=kk == 0)]
        if kk % 2 == 0: f.append(fr(aODD, first=kk == 0, ag=True))
        steps.append(dict(l=('Y', kk), f=f, ph='p1'))
    steps.append(dict(l=None, f=[fr(A_), fr(B_), fr(aODD, rts=(0,), ag=True)], ph='p1'))
    for kk in range(36):
        steps.append(dict(l=('Y', kk), f=[fr(C_, first=kk == 0), fr(D_, first=kk == 0)], ph='p2'))
    steps.append(dict(l=None, f=[fr(C_), fr(D_)], ph='p2'))
    korder = list(range(16)) + [32, 33, 34, 35]
    NACC = [A_, B_, N2, N3]
    for i, kk in enumerate(korder):
        f = [fr(NACC[n], first=i == 0) for n in range(4)]
        if kk % 2 == 0: f.append(fr(aODD, first=i == 0, ag=True))
        steps.append(dict(l=('H', kk), f=f, ph='q'))
    n_p1 = 37; n_p2 = 74; n_t = 94
    tstart = {}
    for n in (4, 3, 0, 1, 2):
        f = [fr(aODD, ag=True, kk=kk) for kk in range(16, 32, 2)] if n == 4 else [fr(NACC[n], kk=kk) for kk in range(16, 32)]
        tstart[n] = len(steps)
        for b in range(0, len(f), 4): steps.append(dict(l=None, f=f[b:b+4], ph='t'))
    def treg(kk, rt):
        i = (kk - 16) // 2
        if kk % 2 == 0: return 'a', aT + 8*i + 4*rt
        return 'v', C_ + 8*i + 4*rt
    frags = [(si, fi) for si, st in enumerate(steps) for fi in range(len(st['f']))]
    assert len(frags) == WSN
    issue = []
    ych_at = {}
    for c in range(36 // YCH):
        gi = next(g for g, (si, fi) in enumerate(frags) if si == c*YCH)
        ych_at.setdefault(max(0, gi - YLA), []).append(c)
    for g, (si, fi) in enumerate(frags):
        for c in ych_at.get(g, []):
            L = []
            for kk0 in range(c*YCH, (c+1)*YCH, 4):
                for rt in range(2):
                    L.append(f"s_add_u32 m0, s{(26, 31)[rt]}, {YB + kk0*1024}" if kk0 else f"s_mov_b32 m0, s{(26, 31)[rt]}")
                    L.append(I(f"buffer_load_dwordx4 v{vL}, s[8:11], s{27+rt} offen lds", tag=f"y{c}"))
                    L.append(f"s_addk_i32 s{27+rt}, 4096")
            issue.append(('y', L, g))
        d = aW + 4*(g % DW)
        pre = ["s_addk_i32 s30, 4096"] if (g % 4 == 0 and g > 0) else []
        issue.append(('w', pre + [I(f"buffer_load_dwordx4 a[{d}:{d+3}], v{vL}, s[8:11], s30 offen offset:{(g%4)*1024}", tag=f"w{g}")], g))
    ip = 0
    def issue_upto(gmax):
        nonlocal ip
        L = []
        while ip < len(issue) and issue[ip][2] <= gmax:
            L += issue[ip][1]; ip += 1
        return L
    p.ext(issue_upto(D0 - 1))
    p("buffer_load_dword v22, v15, s[8:11], s47 offen\nbuffer_load_dword v23, v15, s[8:11], s48 offen")
    p(f"""s_mul_i32 s50, s19, {37*1024}
s_mul_i32 s51, s19, {35*1024}
v_add_u32 v{vRD}, s50, v{vL}
v_add_u32 v{vRD+1}, s51, v{vL}
v_subrev_u32 v{vRD+2}, s51, v{vL}
v_subrev_u32 v{vRD+3}, s50, v{vL}
v_add_u32 v{vRD+2}, 36864, v{vRD+2}
v_add_u32 v{vRD+3}, 36864, v{vRD+3}""")
    setup = f"""s_mul_i32 s50, s19, 36864
s_mul_i32 s51, s29, 36864
s_lshl_b32 s52, s16, 11
s_add_u32 s53, s50, s52
s_add_u32 s53, s53, {HB}
v_add_u32 v{vHW}, s53, v{vL}
s_add_u32 s53, s51, s52
s_add_u32 s53, s53, {HB}
v_add_u32 v{vHW+1}, s53, v{vL}
s_lshl_b32 s52, s20, 11
s_add_u32 s53, s50, s52
s_add_u32 s53, s53, {HB + 32*1024}
v_add_u32 v{vHW+2}, s53, v{vL}
s_lshl_b32 s52, s16, 12
s_add_u32 s53, s52, {XB}
v_add_u32 v{vXW}, s53, v{vL}
s_xor_b32 s52, s52, 4096
s_add_u32 s53, s52, {XB}
v_add_u32 v{vXR}, s53, v{vL}
s_mul_i32 s54, s17, {ACT}
s_add_u32 s54, s54, {PART}
s_mul_i32 s55, s45, 36864
s_mul_i32 s56, s46, 36864
s_add_u32 s55, s55, s54
s_add_u32 s56, s56, s54
s_lshl_b32 s57, s20, 11
s_add_u32 s57, s57, {16*2048}
s_add_u32 s57, s57, s55
s_lshl_b32 s58, s16, 11
s_add_u32 s55, s55, s58
s_add_u32 s56, s56, s58""".split("\n")
    statf = []
    for rt in range(2):
        s = 22 + rt; t = TMP
        statf += f"""v_mov_b32 v{t}, v{s}
v_permlane32_swap_b32 v{s}, v{t}
v_mul_f32 v{s}, 0x3ae38e39, v{s}
v_mul_f32 v{t}, 0x3ae38e39, v{t}
v_fma_f32 v{t}, -v{s}, v{s}, v{t}
v_max_f32 v{t}, 0, v{t}
v_mov_b32 v{t+1}, 0x3f800054
v_mov_b32 v{t+2}, 0x2edbe6ff
v_fma_f32 v{t}, v{t}, v{t+1}, v{t+2}
v_rsq_f32 v{t+1}, v{t}
v_mul_f32 v{t}, v{t}, v{t+1}
v_mul_f32 v{vK1+rt}, 0xc0135761, v{t+1}
v_mul_f32 v{t+2}, v{t+1}, v{t+1}
v_mul_f32 v{t+2}, v{t+2}, v{t+1}
v_mul_f32 v{vK3+rt}, 0xbdd2d3e8, v{t+2}
v_sub_f32 v{s}, 0, v{s}
v_cvt_pk_bf16_f32 v{t+3}, v{s}, v{t}
v_lshlrev_b32 v{t+4}, 16, v{t+3}
v_and_b32 v{t+5}, 0xffff0000, v{t+3}
v_sub_f32 v{t+4}, v{s}, v{t+4}
v_sub_f32 v{t+5}, v{t}, v{t+5}
v_cvt_pk_bf16_f32 v{t+6}, v{s}, v{t+4}
v_cvt_pk_bf16_f32 v{t+7}, v{t+5}, 0
v_accvgpr_write_b32 a{aAUG+4*rt}, v{t+6}
v_accvgpr_write_b32 a{aAUG+4*rt+1}, v{t+3}
v_accvgpr_write_b32 a{aAUG+4*rt+2}, v{t+7}
v_accvgpr_write_b32 a{aAUG+4*rt+3}, 0""".split("\n")
    pkc = [0]
    def gl(acc, rt, waddr, woff, tag):
        L = []
        for q in range(2):
            o = PK + 4*(pkc[0] % 2); pkc[0] += 1
            L += gelu8(acc + 8*q, vK1 + rt, vK3 + rt, TMP, o)
            L.append(I(f"ds_write_b128 v{waddr}, v[{o}:{o+3}] offset:{woff + q*1024}", tag=tag))
        return L
    xw = lambda tag: [I(f"ds_write_b128 v{vXW}, a[{aODD+16+4*i}:{aODD+19+4*i}] offset:{i*1024}", tag=tag) for i in range(4)]
    xr = [f"ds_read_b128 v[{OS+4*i}:{OS+4*i+3}], v{vXR} offset:{i*1024}" for i in range(4)]
    def xadd():
        L = []
        for b in range(0, 16, 4):
            for i in range(4): L.append(f"v_accvgpr_read_b32 v{TMP+i}, a{aODD+b+i}")
            for i in range(4): L.append(f"v_add_f32 v{OS+b+i}, v{OS+b+i}, v{TMP+i}")
        return L
    def gtile(role, acc, tag): return gl(acc, 0, vHW, role*8192, tag) + gl(acc + 16, 1, vHW + 1, role*8192, tag)
    fa = gtile(0, A_, 'hab'); h = len(fa) // 2
    seg = [xw('xw') + fa[:h] + [I("s_barrier", needs=['xw'])] + xr + fa[h:] + xadd() + gtile(1, B_, 'hab'),
           gl(OS, 0, vHW + 2, 0, 'ho') + gtile(2, C_, 'hcd') + gtile(3, D_, 'hcd')]
    hbar = {n_p2: 'hab', n_p2 + 16: 'ho', n_t: 'hcd'}
    def lread(si):
        st = steps[si]
        L = []
        if si in hbar:
            L.append(I("s_barrier", needs=[hbar[si]]))
            if si == n_p2:
                for i in range(4): L.append(f"v_add_u32 v{vRD+i}, {HB}, v{vRD+i}")
        if n_t <= si < n_t + 4:
            ks = [list(range(16, 24, 2)), list(range(24, 32, 2)), list(range(17, 24, 2)), list(range(25, 32, 2))][si - n_t]
            for kk in ks:
                for rt in range(2):
                    R, d = treg(kk, rt)
                    L.append(f"ds_read_b128 {R}[{d}:{d+3}], v{vRD + 2*rt + kk % 2} offset:{kk*1024}")
        if st['l'] is None: return L
        kind, kk = st['l']
        if kind == 'Y' and st['ph'] == 'p1' and kk % YCH == 0: L.append(I("s_barrier", needs=[f"y{kk//YCH}"]))
        for rt in range(2):
            d = aLR + 8*(si % NL) + 4*rt
            L.append(I(f"ds_read_b128 a[{d}:{d+3}], v{vRD + 2*rt + kk % 2} offset:{kk*1024}", tag=f"l{si}"))
        return L
    p.ext(lread(0)); p.ext(lread(1))
    if dbg: p(stamp(1))
    g = 0
    G = []
    stepstart = {}
    for si, st in enumerate(steps):
        first_in_step = True
        for fi, fx in enumerate(st['f']):
            ms = fx['m']
            w = aW + 4*(g % DW)
            for mi, (acc, ag, rt, first) in enumerate(ms):
                if st['ph'] == 't':
                    Rb, bb = treg(fx['kk'], rt)
                else:
                    Rb = 'a'; bb = (aLR + 8*(si % NL) + 4*rt) if st['l'] is not None else aAUG + 4*rt
                R = 'a' if ag else 'v'
                c = "0" if first else f"{R}[{acc}:{acc+15}]"
                needs = [f"w{g + len(st['f']) - 1}", f"l{si}"] if (merge and first_in_step and si > 0) else []
                grp = [I(f"v_mfma_f32_32x32x16_bf16 {R}[{acc}:{acc+15}], a[{w}:{w+3}], {Rb}[{bb}:{bb+3}], {c}", needs=needs)]
                if first_in_step:
                    stepstart[si] = len(G)
                    if si + 2 < len(steps): grp += lread(si + 2)
                    first_in_step = False
                if mi == len(ms) - 1:
                    depth = min(DW - 1, D0 + g // RAMP)
                    grp += issue_upto(g + depth)
                G.append(grp)
            g += 1
    assert ip == len(issue)
    stepstart[len(steps)] = len(G)
    def outp(acc, sreg, off=0):
        L = []
        for hf in range(2):
            o = PK + 4*(pkc[0] % 2); pkc[0] += 1
            src = acc + 8*hf
            for i in range(4): L.append(f"v_cvt_pk_bf16_f32 v{o+i}, v{src+2*i}, v{src+2*i+1}")
            L += [f"v_permlane32_swap_b32 v{o}, v{o+2}", f"v_permlane32_swap_b32 v{o+1}, v{o+3}"]
            L.append(f"buffer_store_dwordx4 v[{o}:{o+3}], v{vL}, s[8:11], s{sreg} offen offset:{hf*1024} {stfl}")
        return L
    def otile(n):
        acc = NACC[n]
        return [f"s_add_u32 s58, s55, {n*8192}", f"s_add_u32 s59, s56, {n*8192}"] + outp(acc, 58) + outp(acc + 16, 59)
    ts = {n: stepstart[tstart[n]] for n in tstart}
    plan = [(setup, 4, 40), (statf, 60, 120),
            (seg[0], stepstart[n_p1] + 2, stepstart[n_p2 - 2]),
            (seg[1], stepstart[n_p2 - 2], stepstart[n_t - 2]),
            (xw('xw2'), ts[3] + 2, ts[3] + 6),
            ([I("s_barrier", needs=['xw2'])] + xr + xadd() + outp(OS, 57), ts[3] + 12, ts[0]),
            (otile(3), ts[0] + 2, ts[1]), (otile(0), ts[1] + 2, ts[2]), (otile(1), ts[2] + 2, len(G))]
    marks = {stepstart[n_p1]: 2, stepstart[n_p2]: 3, stepstart[n_t]: 4, ts[1]: 5}
    for k, v in marks.items():
        if dbg: G[k] = [stamp(v)] + G[k]
    pos = 0
    for fill, a, b in plan:
        if 'nofill' in X: fill = [f for f in fill if not ((f if isinstance(f, I) else I(f)).kind in ('valu', 'trans'))]
        assert a >= pos
        for grp in G[pos:a]: p.ext(grp)
        p.ext(interleave(G[a:b], fill))
        pos = b
    for grp in G[pos:]: p.ext(grp)
    p.ext(otile(2))
    if dbg: p(stamp(6))
    if dbg: stamp_end(p, 7, name)
    p("s_endpgm")
    idx = {id(i): k for k, i in enumerate(p.ins)}
    for k, i in enumerate(p.ins):
        if i.op == 's_barrier':
            for t in i.needs:
                assert all(kk < k for kk, j in enumerate(p.ins) if j.tag == t), t
    if 'nolds' in X: p.ins = [i for i in p.ins if not i.op.startswith('ds_read')]
    if 'nobar' in X: p.ins = [i for i in p.ins if i.op != 's_barrier']
    if 'now' in X: p.ins = [i for i in p.ins if not (i.op == 'buffer_load_dwordx4' and not i.isdma)]
    if 'noy' in X: p.ins = [i for i in p.ins if not i.isdma]
    if 'nost' in X: p.ins = [i for i in p.ins if not i.op.startswith('buffer_store_dwordx4')]
    return kernel(name, p.finish(), vgpr=256, agpr=256), f"; @launch kernel={name} grid=(256,1,1) block=(256,1,1) lds=163840\n"
```

```python
import sys
sys.path.insert(0, "gen")
from asmlib import *
import k0, ka, kb, kc
HEAD = open("interleave_layers__linear_attn_block__mixer_channel_mlp__prompt.s.ref").read().split("; Override")[0]
def build(**kw):
    D = kw.get('dbg', False)
    ks = [k0.k0_kernel()]
    for l in range(2):
        ks += [ka.a_kernel(l, dbg=D, **kw.get('a', {})), kb.b_kernel(l, dbg=D, **kw.get('b', {})), kc.c_kernel(l, dbg=D, **kw.get('c', {})), k0.d_kernel(l, **kw.get('d', {}))]
    order = kw.get('order', range(len(ks)))
    return HEAD + "".join(ks[i][1] for i in order) + HDR + "".join(k[0] for k in ks)
if __name__ == "__main__":
    out = sys.argv[1] if len(sys.argv) > 1 else "interleave_layers__linear_attn_block__mixer_channel_mlp__prompt.s"
    s = build(dbg=len(sys.argv) > 2)
    open(out, "w").write(s)
    print(out, len(s))
```

```python
import re

def _expand(tok):
    tok = tok.strip()
    tok = re.sub(r'^-', '', tok)
    m = re.match(r'^(?:abs\(|\|)(.*?)(?:\)|\|)$', tok)
    if m: tok = m.group(1)
    m = re.match(r'^([vsa])\[(\d+):(\d+)\]$', tok)
    if m: return [f"{m.group(1)}{i}" for i in range(int(m.group(2)), int(m.group(3)) + 1)]
    m = re.match(r'^([vsa])(\d+)$', tok)
    if m: return [tok]
    if tok in ('vcc', 'exec'): return [tok]
    if tok in ('vcc_lo', 'vcc_hi'): return ['vcc']
    if tok in ('exec_lo', 'exec_hi'): return ['exec']
    if tok == 'm0': return ['m0']
    return []

TRANS = ('v_exp_f32', 'v_log_f32', 'v_rcp_f32', 'v_rsq_f32', 'v_sqrt_f32', 'v_sin_f32', 'v_cos_f32', 'v_rcp_iflag_f32')

class I:
    __slots__ = ('text', 'op', 'kind', 'w', 'r', 'tag', 'needs', 'srcC', 'passes', 'isdma', 'wide', 'sdata')
    def __init__(self, text, tag=None, needs=()):
        self.text = text.strip(); self.tag = tag; self.needs = list(needs)
        self.srcC = []; self.passes = 0; self.isdma = False; self.wide = False; self.sdata = []
        t = self.text.split(';')[0].strip()
        if t.endswith(':') or t == '' or t.startswith('.'):
            self.op = 'label' if t.endswith(':') else 'dir'; self.kind = self.op; self.w = []; self.r = []; return
        parts = t.split(None, 1)
        self.op = op = re.sub(r'_(e32|e64|dpp|sdwa)$', '', parts[0])
        rest = parts[1] if len(parts) > 1 else ''
        ops = [x.strip() for x in re.split(r',(?![^\[]*\])', rest)]
        mods = ''
        if ops:
            lp = ops[-1].split(None, 1)
            if lp:
                ops[-1] = lp[0]
                mods = lp[1] if len(lp) > 1 else ''
        E = lambda i: _expand(ops[i]) if i < len(ops) else []
        allr = lambda a: [x for i in range(a, len(ops)) for x in E(i)]
        w, r = [], []
        if op.startswith('v_mfma'):
            self.kind = 'mfma'; w = E(0); r = E(1) + E(2) + E(3); self.srcC = E(3)
            self.passes = 8 if '32x32' in op else 4
        elif op.startswith('ds_read') or op.startswith('ds_bpermute') or op.startswith('ds_swizzle') or op.startswith('ds_permute'):
            self.kind = 'dsr'; w = E(0); r = allr(1)
        elif op.startswith('ds_write') or op.startswith('ds_add'):
            self.kind = 'dsw'; r = allr(0)
        elif op.startswith('buffer_load') or op.startswith('global_load'):
            self.kind = 'vm'
            if ' lds' in (' ' + mods) or op.startswith('global_load_lds'):
                self.isdma = True; r = allr(0) + ['m0']
            else:
                w = E(0); r = allr(1)
                if 'd16' in op: r += E(0)
        elif op.startswith('buffer_store') or op.startswith('global_store') or op.startswith('buffer_atomic') or op.startswith('global_atomic'):
            self.kind = 'vm'; r = allr(0)
            if op.startswith('buffer_'): self.sdata = E(0)
            else: self.sdata = E(1)
            if 'x4' in op or 'x3' in op: self.wide = True
            if 'atomic' in op and 'sc0' in mods: w = E(0)
        elif op.startswith('buffer_wbl2') or op.startswith('buffer_inv'):
            self.kind = 'vm'
        elif op.startswith('s_load') or op.startswith('s_memtime') or op.startswith('s_memrealtime') or op.startswith('s_buffer_load'):
            self.kind = 'smem'; w = E(0); r = allr(1)
        elif op in ('s_waitcnt', 's_barrier', 's_nop', 's_setprio', 's_endpgm', 's_sleep', 's_branch') or op.startswith('s_cbranch'):
            self.kind = 'ctl'
            if 'scc' in op: r = ['scc']
            if 'vcc' in op: r = ['vcc']
            if 'exec' in op: r = ['exec']
        elif op.startswith('s_cmp') or op.startswith('s_bitcmp'):
            self.kind = 'salu'; w = ['scc']; r = allr(0)
        elif op.startswith('s_'):
            self.kind = 'salu'; w = E(0); r = allr(1)
            if 'saveexec' in op: w += ['exec']; r += ['exec']
            if op in ('s_addc_u32', 's_subb_u32', 's_cselect_b32', 's_cselect_b64'): r += ['scc']
            if op in ('s_addk_i32', 's_mulk_i32'): r += E(0)
            if not op.startswith('s_mov') and not op.startswith('s_mul') and not op.startswith('s_cselect') and not op.startswith('s_getreg'): w += ['scc']
        elif op.startswith('v_'):
            self.kind = 'trans' if op in TRANS else 'valu'
            if op.startswith('v_cmp'):
                w = E(0); r = allr(1)
                if op.startswith('v_cmpx'): w += ['exec']
            elif op in ('v_add_co_u32', 'v_sub_co_u32', 'v_addc_co_u32', 'v_subb_co_u32'):
                w = E(0) + E(1); r = allr(2)
            elif op.startswith('v_permlane') and 'swap' in op:
                w = E(0) + E(1); r = E(0) + E(1)
            else:
                w = E(0); r = allr(1)
                if op.startswith('v_fmac') or op.startswith('v_pk_fmac') or op in ('v_writelane_b32',) or op.startswith('v_dot2c'): r += E(0)
                if ('row_' in mods or 'quad_perm' in mods or 'wave_' in mods or 'bank_mask' in mods): self.kind = 'dpp'; r += E(0)
                if 'dst_sel' in mods or 'op_sel' in mods: r += E(0)
        else:
            raise ValueError("unknown op " + text)
        self.w = w; self.r = r
    def states(self):
        if self.op == 's_nop':
            return int(self.text.split()[1], 0) + 1
        if self.kind in ('label', 'dir'): return 0
        return 1
    def isvalu(self): return self.kind in ('valu', 'trans', 'dpp')

class Prog:
    def __init__(self):
        self.ins = []
    def add(self, text, tag=None, needs=()):
        for line in text.split('\n'):
            if line.strip(): self.ins.append(I(line, tag, needs))
        return self
    def __call__(self, text, tag=None, needs=()): return self.add(text, tag, needs)
    def ext(self, lst):
        for x in lst:
            if isinstance(x, I): self.ins.append(x)
            else: self.add(x)
    def resolve_waits(self, check_only=False):
        out = []
        vm = []
        lg = []
        def need_vm(pred):
            idx = -1
            for k, o in enumerate(vm):
                if pred(o): idx = k
            return idx
        for ins in self.ins:
            if ins.op == 's_waitcnt':
                m = re.search(r'vmcnt\((\d+)\)', ins.text)
                if m:
                    n = int(m.group(1));
                    if len(vm) > n: vm = vm[len(vm) - n:] if n else []
                m = re.search(r'lgkmcnt\((\d+)\)', ins.text)
                if m:
                    n = int(m.group(1))
                    if any(o.kind == 'smem' for o in lg):
                        if n == 0: lg = []
                    elif len(lg) > n: lg = lg[len(lg) - n:] if n else []
                out.append(ins); continue
            touched = set(ins.r) | set(ins.w)
            iv = -1; il = -1
            for k, o in enumerate(vm):
                if (set(o.w) & touched) or (o.tag is not None and o.tag in ins.needs): iv = k
            for k, o in enumerate(lg):
                if (set(o.w) & touched) or (o.tag is not None and o.tag in ins.needs): il = k
            parts = []
            if iv >= 0:
                n = len(vm) - 1 - iv
                assert n <= 63
                parts.append(f"vmcnt({n})"); vm = vm[iv + 1:]
            if il >= 0:
                if any(o.kind == 'smem' for o in lg):
                    parts.append("lgkmcnt(0)"); lg = []
                else:
                    n = len(lg) - 1 - il
                    n = min(n, 15)
                    parts.append(f"lgkmcnt({n})"); lg = lg[len(lg) - n:] if n else []
            if parts: out.append(I("s_waitcnt " + " ".join(parts)))
            out.append(ins)
            if ins.kind == 'vm':
                vm.append(ins)
                assert len(vm) <= 63, "too many outstanding vmem"
            elif ins.kind in ('dsr', 'dsw', 'smem'): lg.append(ins)
        self.ins = out
        return self
    def pad_hazards(self):
        out = []
        def dist_back(pred, maxd):
            d = 0
            for o in reversed(out):
                if pred(o): return d
                d += o.states()
                if d >= maxd: return None
            return None
        for ins in self.ins:
            need = 0
            R = set(ins.r); W = set(ins.w)
            def req(pred, n):
                nonlocal need
                d = dist_back(pred, n)
                if d is not None and n - d > need: need = n - d
            vr = {x for x in R if x[0] in 'va' and x not in ('vcc',)}
            vw = {x for x in W if x[0] in 'va' and x not in ('vcc',)}
            sr = {x for x in R if x[0] == 's' and x != 'scc'} | ({'vcc'} & R)
            if ins.kind == 'mfma':
                req(lambda o: o.isvalu() and set(o.w) & vr, 2)
                ab = set(ins.r) - set(ins.srcC) if set(ins.srcC) != set(ins.r) else set(ins.r)
                abr = set(_ab(ins))
                for p, n in ((4, 8), (8, 12)):
                    req(lambda o, p=p: o.kind == 'mfma' and o.passes == p and set(o.w) & abr, n)
                for p, n in ((4, 6), (8, 10)):
                    req(lambda o, p=p: o.kind == 'mfma' and o.passes == p and set(o.w) & set(ins.srcC) and not (o.w == ins.srcC and o.passes == ins.passes), n)
                    req(lambda o, p=p: o.kind == 'mfma' and o.passes == p and set(o.w) & set(ins.w) and not (o.w == ins.srcC and o.passes == ins.passes), n)
                req(lambda o: o.isvalu() and 'exec' in o.w, 4)
            elif ins.isvalu() or ins.kind in ('vm', 'dsr', 'dsw'):
                for p, n in ((4, 8), (8, 12)):
                    req(lambda o, p=p: o.kind == 'mfma' and o.passes == p and set(o.w) & (vr | vw), n)
                if ins.isvalu() or ins.kind in ('vm', 'dsr'):
                    for p, n in ((4, 3), (8, 7)):
                        req(lambda o, p=p: o.kind == 'mfma' and o.passes == p and set(o.srcC) & vw, n)
            if ins.isvalu() or ins.kind in ('vm', 'dsw', 'mfma'):
                req(lambda o: o.op.startswith('v_dot') and o.op != ins.op and set(o.w) & (vr | vw), 3)
            if ins.isvalu():
                if ins.kind != 'trans': req(lambda o: o.kind == 'trans' and set(o.w) & vr, 1)
                req(lambda o: o.isvalu() and set(o.w) & sr, 2)
                req(lambda o: o.kind == 'vm' and o.wide and set(o.sdata) & vw, 2)
                if ins.kind == 'dpp':
                    req(lambda o: (o.isvalu() or o.kind=='mfma') and set(o.w) & vr, 2)
                    req(lambda o: o.isvalu() and 'exec' in o.w, 5)
                if ins.op.startswith('v_permlane'):
                    req(lambda o: o.isvalu() and set(o.w) & vr, 2)
                    req(lambda o: o.isvalu() and 'exec' in o.w, 4)
                if ins.op in ('v_readlane_b32', 'v_readfirstlane_b32'):
                    req(lambda o: o.isvalu() and set(o.w) & vr, 1)
                    req(lambda o: o.isvalu() and 'exec' in o.w, 4)
                    req(lambda o: o.isvalu() and set(o.w) & sr, 4)
                if ins.op == 'v_div_fmas_f32': req(lambda o: o.isvalu() and 'vcc' in o.w, 4)
                req(lambda o: o.isvalu() and ('op_sel' in o.text or 'dst_sel' in o.text) and set(o.w) & (vr | vw), 1)
            if ins.kind in ('dsr',) or (ins.kind == 'vm' and vw):
                req(lambda o: o.kind == 'vm' and o.wide and set(o.sdata) & vw, 1)
            if ins.kind == 'vm':
                req(lambda o: o.isvalu() and set(o.w) & sr, 5)
                if ins.isdma: req(lambda o: o.kind == 'salu' and 'm0' in o.w, 1)
            if ins.kind == 'salu' or ins.kind == 'smem' or ins.kind == 'ctl':
                if ins.op in ('s_cbranch_vccz', 's_cbranch_vccnz'): req(lambda o: o.isvalu() and 'vcc' in o.w, 5)
                if ins.op in ('s_cbranch_execz', 's_cbranch_execnz'): req(lambda o: o.isvalu() and 'exec' in o.w, 5)
                req(lambda o: o.isvalu() and set(o.w) & sr, 1)
            while need > 0:
                k = min(need, 16)
                out.append(I(f"s_nop {k-1}")); need -= k
            out.append(ins)
        self.ins = out
        return self
    def text(self):
        return "".join(("" if i.kind == 'label' else "  ") + i.text + "\n" for i in self.ins)
    def sizes(self):
        import subprocess
        lines = [i.text for i in self.ins]
        isbr = lambda i: i.op == 's_branch' or i.op.startswith('s_cbranch')
        src = "\n".join("s_nop 0" if (i.kind in ('label', 'dir') or isbr(i)) else i.text for i in self.ins) + "\n"
        r = subprocess.run(["llvm-mc", "-triple=amdgcn-amd-amdhsa", "-mcpu=gfx950", "-show-encoding"], input=src, capture_output=True, text=True)
        assert r.returncode == 0, r.stderr
        enc = [l.split("encoding:")[1].count("0x") for l in r.stdout.split("\n") if "encoding:" in l]
        assert len(enc) == len(self.ins)
        return [0 if i.kind in ('label', 'dir') else e for i, e in zip(self.ins, enc)]
    def align8(self, start=0, nop=False):
        sz = self.sizes()
        out = []; run = []; pos = start; nfix = nmiss = 0
        def widen(i):
            t = i.text
            if i.kind in ('valu', 'trans') and not re.search(r'_(e64|dpp|sdwa)\b', t) and not i.op.startswith(('v_readfirstlane', 'v_accvgpr', 'v_permlane', 'v_dot2c', 'v_fmaak', 'v_fmamk')):
                return I(re.sub(r'^(\S+?)(_e32)?(\s)', r'\1_e64\3', t, count=1), i.tag, i.needs)
            m = re.match(r's_addk_i32 (s\d+), (\d+)$', t)
            if m and int(m.group(2)) > 64: return I(f"s_add_u32 {m.group(1)}, {m.group(1)}, {m.group(2)}", i.tag, i.needs)
            return None
        for i, n in zip(self.ins, sz):
            if n == 8 and pos % 8 == 4:
                for k in reversed(run):
                    w = widen(out[k])
                    if w is not None:
                        out[k] = w; pos += 4; nfix += 1; break
                else:
                    if nop: out.append(I("s_nop 0")); pos += 4
                    nmiss += 1
            if n == 4: run.append(len(out))
            elif n == 8: run = []
            out.append(i); pos += n
        self.ins = out
        Prog.stats = (nfix, nmiss, pos)
        return self
    def finish(self, align=None):
        self.resolve_waits(); self.pad_hazards()
        if align is not None: self.align8(*align)
        return self.text()

def _ab(ins):
    t = ins.text.split(';')[0].split(None, 1)[1]
    ops = [x.strip() for x in re.split(r',(?![^\[]*\])', t)]
    return _expand(ops[1]) + _expand(ops[2])

def _wt(x):
    if isinstance(x, list): return sum(_wt(y) for y in x)
    i = I(x) if isinstance(x, str) else x
    return 2 if i.kind == 'trans' else 1

def interleave(main, fill, start=0, end=None, cost=None):
    n = len(main); end = n if end is None else end
    gaps = end - start
    w = [_wt(x) for x in fill]
    tot = sum(w); out = []; k = 0; acc = 0
    def emit(x):
        if isinstance(x, list): out.extend(x)
        else: out.append(x)
    for g in range(n):
        out += main[g]
        if start <= g < end:
            target = tot * (g - start + 1) / gaps
            while k < len(fill) and acc + w[k] / 2 <= target:
                emit(fill[k]); acc += w[k]; k += 1
    for x in fill[k:]: emit(x)
    return out

HDR = '.amdgcn_target "amdgcn-amd-amdhsa--gfx950"\n.text\n'
def kernel(name, body, vgpr=256, sgpr=102, agpr=0):
    acc = (vgpr + 3) // 4 * 4
    return f""".text
.globl {name}
.p2align 8
.type {name},@function
{name}:
{body}.section .rodata,"a"
.p2align 6
.amdhsa_kernel {name}
  .amdhsa_next_free_vgpr {acc + agpr if agpr else vgpr}
  .amdhsa_next_free_sgpr {sgpr}
  .amdhsa_accum_offset {acc}
  .amdhsa_group_segment_fixed_size 0
  .amdhsa_kernarg_size 88
  .amdhsa_user_sgpr_count 2
  .amdhsa_user_sgpr_kernarg_segment_ptr 1
  .amdhsa_system_sgpr_workgroup_id_x 1
.end_amdhsa_kernel
"""


class SC:
    m = dict(ptr=68, t=70, r0=90, r1=92, srd=96, ex=94)
BIG = dict(ptr=68, t=70, r0=90, r1=92, srd=96, ex=94)
SMALL = dict(ptr=64, t=66, r0=76, r1=78, srd=12, ex=26)
def stamp_init(p):
    m = SC.m
    p(f"s_load_dwordx2 s[{m['ptr']}:{m['ptr']+1}], s[0:1], 72\ns_memtime s[{m['t']}:{m['t']+1}]\ns_memrealtime s[{m['r0']}:{m['r0']+1}]")
def stamp(i):
    t = SC.m['t']
    return f"s_memtime s[{t+2*i}:{t+1+2*i}]"
def stamp_end(p, n, name, stride=32, wave=0, idr='s2'):
    m = SC.m; t = m['t']; r0 = m['r0']; r1 = m['r1']; d = m['srd']; ex = m['ex']
    p(f"s_waitcnt vmcnt(0)\ns_memtime s[{t+2*n}:{t+1+2*n}]\ns_memrealtime s[{r1}:{r1+1}]\ns_waitcnt lgkmcnt(0)")
    p(f"s_sub_u32 s{r1}, s{r1}, s{r0}\ns_lshl_b32 s{r1}, s{r1}, 20\ns_and_b32 s{r0}, s{r0}, 0xfffff\ns_or_b32 s{r0}, s{r0}, s{r1}")
    for i in range(1, n+1): p(f"s_sub_u32 s{t+2*i}, s{t+2*i}, s{t}")
    p(f"""s_and_b32 s{r1}, {idr}, {stride-1}
s_cmp_eq_u32 s{r1}, 0
s_cbranch_scc0 L_{name}_dend
s_mov_b32 s{d}, s{m['ptr']}
s_mov_b32 s{d+1}, s{m['ptr']+1}
s_mov_b32 s{d+2}, 256
s_mov_b32 s{d+3}, 0x20000
s_lshr_b32 s{r1}, {idr}, {stride.bit_length()-1}
s_lshl_b32 s{r1}, s{r1}, 5
s_mov_b64 exec, -1
v_mov_b32 v6, s{r1}
v_cmp_eq_u32 vcc, {wave*64}, v0
s_and_saveexec_b64 s[{ex}:{ex+1}], vcc
s_cbranch_execz L_{name}_dend
v_mov_b32 v5, s{r0}
buffer_store_dword v5, v6, s[{d}:{d+3}], 0 offen""")
    for i in range(1, n+1):
        p(f"v_mov_b32 v5, s{t+2*i}\nbuffer_store_dword v5, v6, s[{d}:{d+3}], 0 offen offset:{4*i}")
    p(f"L_{name}_dend:")


def prefetch(regions, q, vlane, va, vd, st=60):
    L = [f"v_lshlrev_b32 v{va}, 7, v{vlane}"]
    for ri, (base, n) in enumerate(regions):
        L.append(f"s_mul_i32 s{st}, s{q}, {n*128}")
        L.append(f"s_add_u32 s{st}, s{st}, {base}")
        if n < 64:
            L.append(f"s_mov_b32 exec_lo, {hex((1 << min(n, 32)) - 1)}")
            L.append(f"s_mov_b32 exec_hi, {hex((1 << max(n - 32, 0)) - 1)}")
        L.append(f"buffer_load_dword v{vd+ri}, v{va}, s[8:11], s{st} offen")
    L.append("s_mov_b64 exec, -1")
    return L
```

```python
from asmlib import *
from layout import *

def srd(p, s, lo, size):
    p(f"s_mov_b32 s{s}, s{lo}\ns_mov_b32 s{s+1}, s{lo+1}\ns_mov_b32 s{s+2}, {size}\ns_mov_b32 s{s+3}, 0x20000")

def unpack8(p, src, dst):
    for i in range(4):
        p(f"v_lshlrev_b32 v{dst+2*i}, 16, v{src+i}")
        p(f"v_and_b32 v{dst+2*i+1}, 0xffff0000, v{src+i}")

def row_body(mode, side=None, pf=True, dbg=False, sf="", ssf="", lf=""):
    ldsbase = 27648 if mode == 'k0' else 0
    p = Prog()
    p("s_load_dwordx2 s[4:5], s[0:1], 80")
    if dbg: stamp_init(p)
    if mode == 'k0': p("s_load_dwordx2 s[6:7], s[0:1], 0")
    else: p("s_load_dwordx2 s[6:7], s[0:1], 56")
    if mode == 'd2': p("s_load_dwordx2 s[20:21], s[0:1], 64")
    if side: p(f"s_load_dwordx2 s[20:21], s[0:1], {8 if side == 'wq' else 16}")
    p("""v_lshrrev_b32 v1, 3, v0
v_and_b32 v2, 7, v0
v_lshlrev_b32 v3, 9, v1
v_lshl_add_u32 v3, v2, 4, v3
v_lshlrev_b32 v4, 4, v1
v_mul_u32_u24 v5, 1152, v2
v_add_u32 v5, v5, v4
s_and_b32 s16, s2, 7
s_lshl_b32 s16, s16, 5
s_lshr_b32 s17, s2, 3
s_add_u32 s16, s16, s17
s_lshr_b32 s17, s16, 2
s_mul_i32 s18, s17, 36864
s_and_b32 s19, s16, 3
s_lshl_b32 s22, s19, 7
s_add_u32 s18, s18, s22
s_mul_i32 s23, s16, 9216""")
    if mode == 'k0':
        p("v_lshrrev_b32 v56, 6, v0\nv_and_b32 v57, 63, v0\nv_readfirstlane_b32 s36, v56")
    if side:
        RS = 3456 if side == 'wq' else 1152
        p(f"""v_lshrrev_b32 v58, 2, v57
v_mul_u32_u24 v58, {RS}, v58
v_and_b32 v59, 3, v57
v_lshl_add_u32 v58, v59, 4, v58
s_mul_i32 s39, s36, 3072""")
        if side == 'wq':
            p(f"""s_and_b32 s42, s2, 3
s_mul_i32 s42, s42, 9
s_add_u32 s42, s42, s36
s_lshr_b32 s43, s2, 2
s_mul_i32 s37, s42, {16*3456}
s_mul_i32 s44, s43, 36
s_add_u32 s37, s37, s44
s_add_u32 s40, s44, s42
s_lshl_b32 s40, s40, 11
s_add_u32 s40, s40, {WQF}
s_add_u32 s41, s40, 1024""")
        else:
            p(f"""s_sub_u32 s42, s2, 128
s_mul_i32 s43, s42, 7282
s_lshr_b32 s43, s43, 16
s_mul_i32 s44, s43, 9
s_sub_u32 s42, s42, s44
s_add_u32 s44, s44, s36
s_mul_i32 s37, s44, {16*1152}
s_lshl_b32 s45, s42, 7
s_add_u32 s37, s37, s45
s_mul_i32 s40, s42, 72
s_add_u32 s40, s40, s44
s_lshl_b32 s40, s40, 10
s_add_u32 s40, s40, {WOF}
s_add_u32 s41, s40, {36*1024}""")
    p("s_waitcnt lgkmcnt(0)")
    srd(p, 8, 4, WSSZ)
    srd(p, 12, 6, ACT if mode == 'k0' else 1152)
    X = 16
    if mode == 'k0':
        p(f"buffer_load_dwordx4 v[8:11], v5, s[12:15], s23 offen {lf}")
        if side:
            srd(p, 32, 20, 576*1728*2 if side == 'wq' else 576*576*2)
            for u in range(3 if side == 'wq' else 2):
                p(f"s_add_u32 m0, s39, {u*1024}")
                p("buffer_load_dwordx4 v58, s[32:35], s37 offen lds", tag='dma')
                p(f"s_add_u32 s37, s37, {1152 if side == 'wq' else 64}")
            p("""v_bfe_u32 v56, v57, 4, 1
v_lshl_add_u32 v56, v56, 2, v59
v_bfe_u32 v58, v57, 2, 2
v_lshrrev_b32 v59, 5, v57""")
            if side == 'wq':
                p("""v_lshl_add_u32 v58, v59, 3, v58
v_lshlrev_b32 v58, 6, v58
v_add_u32 v58, s39, v58
v_lshlrev_b32 v59, 3, v56
v_add_u32 v60, 1024, v59
v_subrev_u32 v61, 40, v59
v_cmp_gt_u32 vcc, 5, v56
v_cndmask_b32 v60, v61, v60, vcc
v_mov_b32 v61, 32
v_cmp_eq_u32 vcc, 7, v56
v_cndmask_b32 v60, v60, v61, vcc
v_add_u32 v62, 2048, v59
v_subrev_u32 v61, 32, v59
v_cmp_gt_u32 vcc, 6, v56
v_cndmask_b32 v62, v61, v62, vcc
v_add_u32 v60, v60, v58
v_add_u32 v62, v62, v58""")
                trs = [(60, 0), (60, 256), (62, 0), (62, 256)]
            else:
                p("""v_lshrrev_b32 v60, 1, v56
v_add_u32 v60, s43, v60
v_and_b32 v60, 3, v60
v_lshlrev_b32 v60, 4, v60
v_and_b32 v56, 1, v56
v_lshl_add_u32 v56, v56, 3, v60
s_mul_i32 s44, s36, 18
s_cmp_lt_u32 s36, 8
s_cselect_b32 s44, s44, 16
s_cselect_b32 s45, 8, 72
s_cselect_b32 s46, 4, 18
s_cselect_b32 s47, 2, 36
v_mul_u32_u24 v59, s46, v59
v_lshrrev_b32 v60, 1, v58
v_mul_u32_u24 v60, s47, v60
v_and_b32 v58, 1, v58
v_add3_u32 v58, v58, v59, v60
v_add_u32 v58, s44, v58
v_add_u32 v59, s45, v58""")
                for r, a in ((58, 60), (59, 62)):
                    p(f"""v_lshrrev_b32 v{a}, 4, v{r}
v_mul_u32_u24 v{a}, 3072, v{a}
v_and_b32 v{r}, 15, v{r}
v_lshl_add_u32 v{a}, v{r}, 6, v{a}
v_add_u32 v{a}, v{a}, v56""")
                trs = [(60, 0), (62, 0), (60, 1024), (62, 1024)]
        p(f"""s_add_u32 s24, s18, {XF}
buffer_store_dwordx4 v[8:11], v3, s[8:11], s24 offen {sf}""")
        unpack8(p, 8, X)
    else:
        p(f"""s_lshl_b32 s24, s17, 8
s_lshl_b32 s25, s19, 5
s_add_u32 s24, s24, s25
s_add_u32 s24, s24, {ST}
v_lshlrev_b32 v6, 2, v2
buffer_load_dword v24, v6, s[8:11], s24 offen
buffer_load_dword v25, v6, s[8:11], s24 offen offset:128""")
        for j in range(8):
            p(f"s_add_u32 s24, s18, {PART + j*ACT}")
            p(f"buffer_load_dwordx4 v[{32+4*j}:{35+4*j}], v3, s[8:11], s24 offen")
        p(f"s_add_u32 s24, s18, {X1F}")
        p("buffer_load_dwordx4 v[8:11], v3, s[8:11], s24 offen")
        p("buffer_load_dwordx4 v[12:15], v4, s[12:15], 0 offen")
        if pf and mode == 'd1':
            p(f"""v_lshrrev_b32 v30, 6, v0
v_and_b32 v31, 63, v0
v_readfirstlane_b32 s61, v30
s_lshr_b32 s62, s2, 3
s_mul_i32 s62, s62, 9
s_add_u32 s61, s61, s62
s_and_b32 s62, s2, 3
s_mul_i32 s62, s62, {8*73728}
s_add_u32 s62, s62, {WQF}""")
            p.ext(prefetch([('s62', 16)], 61, 31, 30, 31))
        if dbg: p(stamp(1))
        p("""v_mul_f32 v24, 0x3ae38e39, v24
v_mul_f32 v25, 0x3ae38e39, v25
v_fma_f32 v25, -v24, v24, v25
v_max_f32 v25, 0, v25
v_mov_b32 v26, 0x3f800054
v_mov_b32 v27, 0x2edbe6ff
v_fma_f32 v25, v25, v26, v27
v_rsq_f32 v25, v25""")
        unpack8(p, 32, X)
        for j in range(1, 8):
            for i in range(4):
                p(f"v_lshlrev_b32 v28, 16, v{32+4*j+i}")
                p(f"v_and_b32 v29, 0xffff0000, v{32+4*j+i}")
                p(f"v_add_f32 v{X+2*i}, v{X+2*i}, v28")
                p(f"v_add_f32 v{X+2*i+1}, v{X+2*i+1}, v29")
        if dbg: p(stamp(2))
        unpack8(p, 8, 32)
        unpack8(p, 12, 40)
        for i in range(8):
            p(f"v_fma_f32 v{X+i}, v{X+i}, v25, v{40+i}")
            p(f"v_add_f32 v{X+i}, v{X+i}, v{32+i}")
        for i in range(4): p(f"v_cvt_pk_bf16_f32 v{8+i}, v{X+2*i}, v{X+2*i+1}")
        if mode == 'd2':
            srd(p, 12, 20, ACT)
            p(f"buffer_store_dwordx4 v[8:11], v5, s[12:15], s23 offen {sf}")
            if dbg: p(stamp(3)); stamp_end(p, 4, mode)
            p("s_endpgm")
            return p.finish()
        p(f"s_add_u32 s24, s18, {XF}")
        p(f"buffer_store_dwordx4 v[8:11], v3, s[8:11], s24 offen {sf}")
        unpack8(p, 8, X)
    p(f"v_add_f32 v24, v{X}, v{X+1}")
    p(f"v_mul_f32 v25, v{X}, v{X}")
    for i in range(2, 8): p(f"v_add_f32 v24, v24, v{X+i}")
    for i in range(1, 8): p(f"v_fmac_f32 v25, v{X+i}, v{X+i}")
    p(f"""v_permlane32_swap_b32 v24, v25
v_add_f32 v24, v24, v25
v_mov_b32 v25, v24
v_permlane16_swap_b32 v24, v25
v_add_f32 v24, v24, v25
v_add_f32 v24, v24, v24 row_ror:8
v_lshrrev_b32 v26, 6, v0
v_bfe_u32 v27, v0, 5, 1
v_lshl_add_u32 v27, v2, 1, v27
v_mul_u32_u24 v27, 48, v27
v_lshl_add_u32 v27, v26, 2, v27
v_and_b32 v28, 24, v0
v_cmp_eq_u32 vcc, 0, v28
s_and_saveexec_b64 s[26:27], vcc
ds_write_b32 v27, v24 offset:{ldsbase}
s_mov_b64 exec, s[26:27]
v_mul_u32_u24 v27, 96, v2
s_waitcnt lgkmcnt(0)""")
    p("s_barrier", needs=['dma'] if side == 'wo' else [])
    p(f"""ds_read_b128 v[32:35], v27 offset:{ldsbase}
ds_read_b128 v[36:39], v27 offset:{ldsbase+16}
ds_read_b32 v40, v27 offset:{ldsbase+32}
ds_read_b128 v[44:47], v27 offset:{ldsbase+48}
ds_read_b128 v[48:51], v27 offset:{ldsbase+64}
ds_read_b32 v52, v27 offset:{ldsbase+80}""")
    for i in range(1, 9): p(f"v_add_f32 v32, v32, v{32+i}")
    for i in range(1, 9): p(f"v_add_f32 v44, v44, v{44+i}")
    p("""v_mul_f32 v32, 0x3ae38e39, v32
v_mul_f32 v44, 0x3ae38e39, v44
v_fma_f32 v44, -v32, v32, v44
v_max_f32 v44, 0, v44
v_add_f32 v44, 0x3727c5ac, v44
v_rsq_f32 v44, v44""")
    for i in range(8): p(f"v_sub_f32 v{X+i}, v{X+i}, v32")
    for i in range(8): p(f"v_mul_f32 v{X+i}, v{X+i}, v44")
    for i in range(4): p(f"v_cvt_pk_bf16_f32 v{12+i}, v{X+2*i}, v{X+2*i+1}")
    p(f"s_add_u32 s24, s18, {YF}")
    p(f"buffer_store_dwordx4 v[12:15], v3, s[8:11], s24 offen {sf}")
    if side:
        for k, (a, o) in enumerate(trs):
            p(f"ds_read_b64_tr_b16 v[{32+2*k}:{33+2*k}], v{a} offset:{o}", needs=['dma'])
        p("v_lshlrev_b32 v56, 4, v57")
        p(f"buffer_store_dwordx4 v[32:35], v56, s[8:11], s40 offen {ssf}")
        p(f"buffer_store_dwordx4 v[36:39], v56, s[8:11], s41 offen {ssf}")
    if mode == 'k0':
        p(f"""s_mul_i32 s24, s2, 320
s_mul_i32 s25, s36, 36
s_add_u32 s24, s24, s25
s_add_u32 s24, s24, {KV}
v_mov_b32 v40, 0
v_lshlrev_b32 v41, 2, v57
s_mov_b64 exec, 0x1ff
buffer_store_dword v40, v41, s[8:11], s24 offen
s_mov_b64 exec, -1""")
    if dbg: p(stamp(3)); stamp_end(p, 4, mode + str(side))
    p("s_endpgm")
    return p.finish()

def side_body(ssf="sc1", dbg=False, X=(), lf=""):
    p = Prog()
    WB = WSN*1024
    p("""s_load_dwordx2 s[4:5], s[0:1], 80
s_load_dwordx2 s[6:7], s[0:1], 32
s_load_dwordx2 s[20:21], s[0:1], 48
s_load_dwordx2 s[22:23], s[0:1], 40""")
    if dbg: stamp_init(p)
    p(f"""v_lshrrev_b32 v1, 6, v0
v_and_b32 v2, 63, v0
v_readfirstlane_b32 s16, v1
v_bfe_u32 v5, v2, 2, 3
v_and_b32 v4, 3, v2
v_lshrrev_b32 v6, 5, v2
v_lshlrev_b32 v7, 6, v6
v_lshl_add_u32 v7, v4, 4, v7
v_mul_u32_u24 v3, 9216, v5
v_add_u32 v3, v3, v7
v_mul_u32_u24 v5, 1152, v5
v_add_u32 v5, v5, v7
v_lshlrev_b32 v7, 4, v2
s_and_b32 s17, s3, 7
s_bfe_u32 s18, s3, 0x20003
s_lshr_b32 s19, s3, 5
s_mul_i32 s24, s18, 9
s_add_u32 s24, s24, s16
s_mul_i32 s25, s24, {16*9216}
s_mul_i32 s26, s17, 1152
s_add_u32 s25, s25, s26
s_lshl_b32 s27, s19, 7
s_add_u32 s25, s25, s27
s_mul_i32 s26, s17, 36
s_add_u32 s26, s26, s24
s_mul_i32 s26, s26, {16*1152}
s_add_u32 s26, s26, s27
s_lshl_b32 s27, s16, 12
s_waitcnt lgkmcnt(0)""")
    srd(p, 12, 6, 576*4608*2); srd(p, 28, 20, 576*4608*2)
    for u in range(2):
        p(f"s_add_u32 m0, s27, {u*1024}")
        p("buffer_load_dwordx4 v3, s[12:15], s25 offen " + lf + " lds", tag='a')
        if u < 1: p(f"s_add_u32 s25, s25, {8*9216}")
    for u in range(2):
        p(f"s_add_u32 m0, s27, {2048 + u*1024}")
        p("buffer_load_dwordx4 v5, s[28:31], s26 offen " + lf + " lds", tag='b')
        if u < 1: p(f"s_add_u32 s26, s26, {8*1152}")
    srd(p, 8, 4, WSSZ); srd(p, 32, 22, 4608*2)
    p(f"""s_mul_i32 s36, s17, 18
s_lshl_b32 s37, s19, 1
s_add_u32 s36, s36, s37
s_lshl_b32 s36, s36, 6
v_lshlrev_b32 v40, 1, v2
buffer_load_ushort v43, v40, s[32:35], s36 offen
v_lshlrev_b32 v8, 3, v4
v_bfe_u32 v9, v2, 2, 2
v_lshl_add_u32 v8, v9, 6, v8
v_bfe_u32 v9, v2, 4, 1
v_lshl_add_u32 v8, v9, 5, v8
v_add_u32 v8, s27, v8
v_lshl_add_u32 v9, v6, 8, v8
v_lshl_add_u32 v8, v6, 10, v8
v_mov_b32 v10, 0x3f803f80
v_mov_b32 v11, 0
v_mov_b32 v12, 0
s_lshl_b32 s37, s17, 2
s_and_b32 s38, s19, 1
s_lshl_b32 s38, s38, 1
s_add_u32 s37, s37, s38
s_mul_i32 s37, s37, {WB}
s_add_u32 s37, s37, {WSTR}
s_lshr_b32 s38, s19, 1
s_add_u32 s41, s38, 91
s_add_u32 s42, s38, 90
s_add_u32 s43, s38, 163
s_cmp_lt_u32 s19, 4
s_cselect_b32 s39, 5, 4
s_cselect_b32 s40, s38, s41
s_cselect_b32 s42, s42, s43
s_cselect_b32 s44, 3, 2
s_lshl_b32 s44, s44, 10
s_cmp_eq_u32 s19, 8
s_cselect_b32 s39, 5, s39
s_cselect_b32 s40, 2, s40
s_cselect_b32 s42, 92, s42
s_cselect_b32 s61, {WB}, 0
s_add_u32 s62, s61, {WB}
s_add_u32 s63, s38, 1
s_and_b32 s63, s63, 3
s_lshl_b32 s63, s63, 4
s_add_u32 s63, s63, 265""")
    def dests(d0, beta):
        p(f"""s_lshl_b32 s50, s50, 10
s_add_u32 s50, s50, s37
s_cmp_eq_u32 s19, 8
s_cselect_b32 s52, s61, s{beta}
s_cselect_b32 s53, 0, s{beta}
s_mul_i32 s52, s52, s51
s_add_u32 s{d0}, s50, s52
s_add_u32 s50, s50, s62
s_add_u32 s50, s50, s53
s_sub_u32 s53, s50, s52
s_add_u32 s50, s50, s52
s_cmp_eq_u32 s19, 8
s_cselect_b32 s{d0+1}, s50, s53""")
    p(f"""s_lshr_b32 s56, s24, 1
s_and_b32 s51, s24, 1
s_mul_i32 s50, s56, s39
s_add_u32 s50, s50, s40""")
    dests(54, 44)
    p(f"""s_sub_u32 s57, s56, 8
s_cmp_lt_u32 s56, 8
s_cselect_b32 s50, s56, s57
s_mul_i32 s50, s50, 9
s_add_u32 s50, s50, 167
s_add_u32 s50, s50, s38
s_lshl_b32 s58, s57, 1
s_add_u32 s58, s58, s63
s_add_u32 s59, s57, 257
s_cmp_eq_u32 s19, 8
s_cselect_b32 s58, s59, s58
s_cmp_lt_u32 s57, 8
s_cselect_b32 s50, s58, s50
s_cselect_b32 s45, 1, 5
s_lshl_b32 s45, s45, 10""")
    dests(46, 45)
    p(f"""v_lshlrev_b32 v42, 2, v0
v_and_b32 v44, 31, v2
v_lshlrev_b32 v44, 4, v44
v_mul_u32_u24 v45, s62, v6
v_add_u32 v44, v44, v45
s_lshl_b32 s42, s42, 10
s_add_u32 s42, s42, s37
s_lshr_b32 s43, s18, 1
s_lshl_b32 s43, s43, 9
s_add_u32 s42, s42, s43
s_and_b32 s43, s18, 1
s_lshl_b32 s43, s43, 3
s_add_u32 s42, s42, s43
s_add_u32 s43, s42, s61
s_cmp_lt_u32 s18, 2
s_cselect_b32 s48, 0xffff, 0""")
    if dbg: p(stamp(1))
    for tt in range(2):
        b = 16 + 4*tt
        p(f"ds_read_b64_tr_b16 v[{b}:{b+1}], v8 offset:{tt*512}", needs=['a'])
        p(f"ds_read_b64_tr_b16 v[{b+2}:{b+3}], v8 offset:{tt*512 + 256}")
    if dbg: p(stamp(2))
    for tt in range(2):
        b = 16 + 4*tt
        p(f"buffer_store_dwordx4 v[{b}:{b+3}], v7, s[8:11], s{54+tt} offen {ssf}")
        for q in range(4): p(f"v_dot2c_f32_bf16 v{11+tt}, v{b+q}, v10")
    p(f"""v_permlane32_swap_b32 v11, v12
v_add_f32 v11, v11, v12
ds_write_b32 v42, v11 offset:36864""", tag='cs')
    for tt in range(2):
        b = 24 + 4*tt
        p(f"ds_read_b64_tr_b16 v[{b}:{b+1}], v9 offset:{2048 + tt*512}", needs=['b'])
        p(f"ds_read_b64_tr_b16 v[{b+2}:{b+3}], v9 offset:{2048 + tt*512 + 1024}")
    for tt in range(2):
        b = 24 + 4*tt
        p(f"buffer_store_dwordx4 v[{b}:{b+3}], v7, s[8:11], s{46+tt} offen {ssf}")
    p("s_waitcnt lgkmcnt(0)\ns_barrier")
    p("""s_cmp_eq_u32 s16, 0
s_cbranch_scc0 L_side_end""")
    for w in range(9): p(f"ds_read_b32 v{48+w}, v42 offset:{36864 + w*256}")
    for w in range(1, 9): p(f"v_add_f32 v48, v48, v{48+w}")
    p(f"""v_cvt_pk_bf16_f32 v60, v48, v48
v_and_b32 v49, 0xffff0000, v60
v_sub_f32 v49, v48, v49
v_cvt_pk_bf16_f32 v61, v49, 0
v_and_b32 v43, s48, v43
v_lshl_or_b32 v61, v43, 16, v61
buffer_store_dwordx2 v[60:61], v44, s[8:11], s42 offen
buffer_store_dwordx2 v[60:61], v44, s[8:11], s43 offen
L_side_end:""")
    if dbg: p(stamp(3)); stamp_end(p, 4, 'side', stride=64, idr='s3')
    p("s_endpgm")
    if 'nost' in X: p.ins = [i for i in p.ins if not i.op.startswith('buffer_store_dwordx4')]
    if 'nold' in X: p.ins = [i for i in p.ins if not i.isdma]
    if 'now1' in X: p.ins = [i for i in p.ins if not (i.isdma and i.tag == 'a')]
    return p.finish()

def k0_kernel(dbg=False, sf="", ssf="", wsf="", dside=False, sfirst=True, side=True, X=(), lf='nt', lf2='nt'):
    SC.m = SMALL
    if sfirst:
        body = """  s_mov_b32 s3, s2
  s_cmp_lt_u32 s2, 288
  s_cbranch_scc1 L_side
  s_sub_u32 s2, s2, 288
"""
    else:
        body = """  s_sub_u32 s3, s2, 256
  s_cmp_lt_u32 s3, 288
  s_cbranch_scc1 L_side
"""
    body += """  s_cmp_lt_u32 s2, 128
  s_cbranch_scc1 L_k0_wq
  s_cmp_lt_u32 s2, 164
  s_cbranch_scc1 L_k0_wo
  s_cmp_lt_u32 s2, 256
  s_cbranch_scc1 L_k0_ln
  s_endpgm
"""
    for r in ('wq', 'wo', None):
        body += f"L_k0_{r or 'ln'}:\n" + row_body('k0', side=r, dbg=dbg and not dside, sf=sf, ssf=ssf, lf=lf2)
    body += "L_side:\n" + ("" if side else "  s_endpgm\n") + side_body(wsf, dbg and dside, X, lf)
    SC.m = BIG
    return kernel("k0_kernel", body, vgpr=64, sgpr=80), "; @launch kernel=k0_kernel grid=(544,1,1) block=(576,1,1) lds=39168\n"

def d_kernel(layer, pf=False, dbg=False, sf="sc1"):
    name = f"d{layer}_kernel"
    body = f"  s_cmp_lt_u32 s2, 256\n  s_cbranch_scc1 L_{name}_go\n  s_endpgm\nL_{name}_go:\n" + row_body('d1' if layer == 0 else 'd2', pf=pf, dbg=dbg, sf=sf)
    return kernel(name, body, vgpr=64), f"; @launch kernel={name} grid=(256,1,1) block=(576,1,1) lds=1024\n"
```

```python
from asmlib import *
from layout import *
from k0 import srd

def phi(regs, tmp):
    L = []
    for b in range(0, len(regs), 4):
        g = regs[b:b+4]
        for i, r in enumerate(g): L.append(f"v_mul_f32 v{tmp+i}, 0x3fb8aa3b, v{r}")
        for i, r in enumerate(g): L.append(f"v_exp_f32 v{tmp+i}, v{tmp+i} clamp")
        for i, r in enumerate(g): L.append(f"v_max_f32 v{r}, 0x358637bd, v{r}")
        for i, r in enumerate(g): L.append(f"v_add_f32 v{r}, v{r}, v{tmp+i}")
    return L

QB = 73728

def a_body(dbg=False, pf=True, YR=16, D0=12, RAMP=1, NW=8, prio=0, qsf="", align=None):
    p = Prog()
    p("s_load_dwordx2 s[4:5], s[0:1], 80")
    if dbg: stamp_init(p)
    if prio: p(f"s_setprio {prio}")
    p(f"""v_lshrrev_b32 v1, 6, v0
v_and_b32 v2, 63, v0
v_readfirstlane_b32 s16, v1
v_lshlrev_b32 v3, 4, v2
s_and_b32 s17, s2, 7
s_lshr_b32 s18, s2, 3
s_lshr_b32 s19, s17, 2
s_lshl_b32 s19, s19, 2
s_and_b32 s20, s18, 3
s_add_u32 s19, s19, s20
s_and_b32 s20, s17, 3
s_lshl_b32 s20, s20, 3
s_lshr_b32 s21, s18, 2
s_add_u32 s20, s20, s21
s_lshl_b32 s21, s19, 3
s_lshl_b32 s22, s16, 1
s_add_u32 s21, s21, s22
s_mul_i32 s22, s21, 36864
s_add_u32 s22, s22, {YF}
s_mul_i32 s24, s20, 73728
s_add_u32 s24, s24, {WQF}
s_lshl_b32 s25, s16, 11
s_add_u32 s24, s24, s25
s_mov_b32 s10, {WSSZ}
s_mov_b32 s11, 0x20000
s_waitcnt lgkmcnt(0)
s_mov_b32 s8, s4
s_mov_b32 s9, s5""")
    ACC, WR, P0, V1, TMP, KVA, QO = 16, 80, 112, 120, 128, 136, 152
    assert WR + 4*NW <= P0
    items = []
    for g in range(72):
        if g < 36 and g % 4 == 0:
            c = g // 4
            L = [f"s_add_u32 m0, s25, {c*8192}" if c else "s_mov_b32 m0, s25"]
            for i in range(2): L.append(I(f"buffer_load_dwordx4 v3, s[8:11], s24 offen offset:{i*1024} lds", tag=f"w{c}"))
            if c < 8: L.append("s_addk_i32 s24, 8192")
            items.append((g, L, False))
        s = 4*(g % YR)
        pre = ["s_addk_i32 s22, 4096"] if (g % 4 == 0 and g) else []
        items.append((g, pre + [f"buffer_load_dwordx4 a[{s}:{s+3}], v3, s[8:11], s22 offen offset:{(g%4)*1024}"], True))
    ip = 0
    def issue_upto(gmax):
        nonlocal ip
        L = []
        while ip < len(items) and items[ip][0] <= gmax:
            L += items[ip][1]; ip += 1
        return L
    p.ext(issue_upto(D0 - 1))
    p("v_mov_b32 v10, 0")
    p("v_lshlrev_b32 v13, 2, v0")
    p(f"""v_add_u32 v4, 65536, v3
s_mul_i32 s28, s16, 1280
s_add_u32 s28, s28, {QB - 20*64}
v_and_b32 v5, 31, v2
v_lshlrev_b32 v5, 6, v5
v_lshrrev_b32 v9, 5, v2
v_lshl_add_u32 v5, v9, 5, v5
v_add_u32 v5, s28, v5
v_bfe_u32 v6, v2, 2, 2
v_lshl_add_u32 v6, v9, 2, v6
v_lshlrev_b32 v6, 6, v6
v_and_b32 v7, 1, v2
v_lshl_add_u32 v6, v7, 5, v6
v_bfe_u32 v7, v2, 4, 1
v_lshl_add_u32 v6, v7, 4, v6
v_bfe_u32 v7, v2, 1, 1
v_lshl_add_u32 v6, v7, 3, v6
s_add_u32 s28, s28, {20*64}
v_add_u32 v6, s28, v6
v_lshlrev_b32 v7, 2, v2
s_mul_i32 s28, s16, 2560
v_add_u32 v15, s28, v3
v_lshlrev_b32 v14, 3, v2
v_add_u32 v14, s28, v14
v_and_b32 v8, 27, v2
v_cmp_eq_u32 s[30:31], 18, v8
v_mov_b32 v8, 0x3f803f80
s_mov_b32 s32, 0xfff00000
s_mov_b32 s33, 0xfff00000
s_lshl_b32 s26, s21, 5
s_add_u32 s26, s26, s20
s_lshl_b32 s27, s26, 8
s_lshl_b32 s26, s26, 10
s_add_u32 s26, s26, {PQ16}
s_add_u32 s27, s27, {PQ4}
s_lshl_b32 s28, s2, 6
s_lshl_b32 s29, s16, 4
s_add_u32 s28, s28, s29
s_add_u32 s28, s28, {ST}
s_mov_b64 exec, 15
buffer_store_dword v10, v7, s[8:11], s28 offen
s_mov_b64 exec, -1""")
    def wrd(f):
        g = f % 72
        s = WR + 4*(f % NW)
        L = []
        if f < 72 and f % 8 == 0: L.append(I("s_barrier", needs=[f"w{f//8}"]))
        L.append(f"ds_read_b128 v[{s}:{s+3}], v3 offset:{g*1024}" if g < 64 else f"ds_read_b128 v[{s}:{s+3}], v4 offset:{(g-64)*1024}")
        return L
    if dbg: p(stamp(1))
    for f in range(NW - 1): p.ext(wrd(f))
    if dbg: p(stamp(2))
    G = []
    for g in range(72):
        y = 4*(g % YR)
        for t in range(2):
            f = 2*g + t
            w = WR + 4*(f % NW)
            acc = ACC + 32*(g // 36) + 16*t
            c = "0" if g % 36 == 0 else f"v[{acc}:{acc+15}]"
            grp = [f"v_mfma_f32_32x32x16_bf16 v[{acc}:{acc+15}], a[{y}:{y+3}], v[{w}:{w+3}], {c}"]
            if f + NW - 1 < 144: grp += wrd(f + NW - 1)
            if t == 1:
                depth = min(YR, D0 + 1 + g*RAMP)
                grp += issue_upto(g + depth)
            G.append(grp)
    assert ip == len(items)
    def epi1(rt):
        T0 = ACC + 32*rt; T1 = T0 + 16
        L = []
        for i in range(8): L.append(f"v_cvt_pk_bf16_f32 v{V1+i}, v{T1+2*i}, v{T1+2*i+1}")
        for i in range(8): L.append(f"v_cndmask_b32 v{V1+i}, v{V1+i}, v8, s[30:31]")
        ph = phi(list(range(T0, T0 + 16)), TMP)
        pk = [f"v_cvt_pk_bf16_f32 v{P0+i}, v{T0+2*i}, v{T0+2*i+1}" for i in range(8)]
        mm = [f"v_mfma_f32_32x32x16_bf16 v[{KVA}:{KVA+15}], v[{P0+4*q}:{P0+4*q+3}], v[{V1+4*q}:{V1+4*q+3}], " + ("0" if (rt == 0 and q == 0) else f"v[{KVA}:{KVA+15}]") for q in range(2)]
        L = ph[:32] + pk[:4] + L + [mm[0]] + ph[32:] + pk[4:] + [mm[1]]
        L.append(["s_mov_b64 exec, s[32:33]",
                  f"ds_write_b128 v5, v[{V1}:{V1+3}] offset:512", f"ds_write_b128 v5, v[{V1+4}:{V1+7}] offset:528",
                  f"ds_write_b128 v5, v[{P0}:{P0+3}]", f"ds_write_b128 v5, v[{P0+4}:{P0+7}] offset:16",
                  "s_mov_b64 exec, -1"])
        L += [f"ds_read_b64_tr_b16 v[{QO}:{QO+1}], v6", f"ds_read_b64_tr_b16 v[{QO+2}:{QO+3}], v6 offset:768", f"ds_read_b64_tr_b16 v[{QO+4}:{QO+5}], v6 offset:512"]
        return L
    def epi2(rt):
        u = TMP + 4
        L = [f"v_lshlrev_b32 v{u}, 16, v{QO+2}", f"v_and_b32 v{u+1}, 0xffff0000, v{QO+2}", f"v_lshlrev_b32 v{u+2}, 16, v{QO+3}", f"v_and_b32 v{u+3}, 0xffff0000, v{QO+3}"]
        L += phi([u, u+1, u+2, u+3], TMP)
        L += [f"v_cvt_pk_bf16_f32 v{QO+2}, v{u}, v{u+1}", f"v_cvt_pk_bf16_f32 v{QO+3}, v{u+2}, v{u+3}"]
        return L
    def qst(rt):
        L = ["s_add_u32 s26, s26, 32768", "s_add_u32 s27, s27, 8192"] if rt else []
        return L + [f"buffer_store_dwordx4 v[{QO}:{QO+3}], v3, s[8:11], s26 offen {qsf}", f"buffer_store_dword v{QO+4}, v7, s[8:11], s27 offen {qsf}"]
    late = f"""v_bfe_u32 v10, v0, 2, 5
v_lshrrev_b32 v12, 1, v0
v_cmp_gt_u32 s[34:35], 19, v10
v_cmp_eq_u32 s[36:37], 22, v10
s_or_b64 s[34:35], s[34:35], s[36:37]
v_cmp_gt_u32 s[38:39], 19, v12
v_cmp_eq_u32 s[36:37], 22, v12
s_or_b64 s[38:39], s[38:39], s[36:37]
s_mul_i32 s28, s20, 2560
s_add_u32 s28, s28, {KV}""".split("\n")
    pfl = []
    if pf:
        pfl = ["s_lshl_b32 s61, s18, 2", "s_add_u32 s61, s61, s16", prefetch([(WOF, 41)], 61, 2, 158, 159)]
    G[116] = G[116] + ["s_barrier"]
    if dbg:
        G[72] = [stamp(3)] + G[72]
    for grp in G[:20]: p.ext(grp)
    p.ext(interleave(G[20:60], late))
    for grp in G[60:74]: p.ext(grp)
    p.ext(interleave(G[74:124], epi1(0) + epi2(0) + qst(0)))
    p.ext(interleave(G[124:], pfl))
    if dbg: p(stamp(4))
    p.ext([x for y in epi1(1) for x in (y if isinstance(y, list) else [y])])
    p(f"ds_write_b128 v15, v[{KVA}:{KVA+3}]\nds_write_b128 v15, v[{KVA+4}:{KVA+7}] offset:1024\nds_write_b64 v14, v[{KVA+8}:{KVA+9}] offset:2048")
    p("s_waitcnt lgkmcnt(0)")
    if dbg: p(stamp(5))
    p("s_barrier")
    for it in range(3):
        for w in range(4): p(f"ds_read_b32 v{16 + 4*it + w}, v13 offset:{w*2560 + it*1024}")
    p.ext(epi2(1))
    for it in range(3):
        b = 16 + 4*it
        p(f"v_add_f32 v{b}, v{b}, v{b+1}\nv_add_f32 v{b+2}, v{b+2}, v{b+3}\nv_add_f32 v{b}, v{b}, v{b+2}")
    p(f"""s_mov_b64 exec, s[34:35]
buffer_atomic_add_f32 v16, v13, s[8:11], s28 offen
buffer_atomic_add_f32 v20, v13, s[8:11], s28 offen offset:1024
s_mov_b64 exec, -1""")
    p.ext(qst(1))
    p(f"""s_cmp_eq_u32 s16, 0
s_cbranch_scc0 L_a_end
s_mov_b64 exec, s[38:39]
buffer_atomic_add_f32 v24, v13, s[8:11], s28 offen offset:2048
L_a_end:""")
    if dbg: p(stamp(6)); stamp_end(p, 7, 'a')
    p("s_endpgm")
    return p.finish(align)

def a_kernel(dbg=False, **kw):
    YR = kw.get('YR', 16)
    b = """  s_cmp_lt_u32 s2, 256
  s_cbranch_scc1 L_abody
  s_endpgm
L_abody:
""" + a_body(dbg, **kw)
    return kernel("a_kernel", b, vgpr=160, agpr=4*YR), "; @launch kernel=a_kernel grid=(256,1,1) block=(256,1,1) lds=98304\n"
```

```python
from asmlib import *
from layout import *
from k0 import srd

def b_body(NT, dbg=False, pf=False, N0=18, LA=3, mask=True, xsf="sc1"):
    p = Prog()
    KVR, NUM, TL, ACC, XR = 16, 112, 144, 152, 232
    aPQ, aWO = 0, 48
    p(f"""s_lshl_b32 s19, s16, 3
s_mul_i32 s20, s19, 2560
s_add_u32 s20, s20, {KV}
s_lshl_b32 s21, s17, 5
s_add_u32 s21, s21, s19
s_lshl_b32 s22, s21, 8
s_lshl_b32 s21, s21, 10
s_add_u32 s21, s21, {PQ16}
s_add_u32 s22, s22, {PQ4}
v_lshlrev_b32 v4, 3, v2
v_lshlrev_b32 v5, 2, v2
v_mov_b32 v12, v3""")
    if mask:
        p("""v_and_b32 v6, 24, v2
v_cmp_eq_u32 vcc, 24, v6
v_mov_b32 v6, 0x40000000
v_cndmask_b32 v12, v3, v6, vcc
v_cndmask_b32 v4, v4, v6, vcc""")
    p(f"""v_add_u32 v6, 4096, v3
v_add_u32 v7, 8192, v3
s_mul_i32 s23, s18, 36864
s_mul_i32 s24, s16, 9216
s_add_u32 s23, s23, s24
s_add_u32 s30, s23, {WOF}""")
    def kvl(h):
        k = KVR + 12*h; q = aPQ + 6*h
        L = [f"buffer_load_dwordx4 v[{k}:{k+3}], v12, s[8:11], s20 offen",
             f"buffer_load_dwordx4 v[{k+4}:{k+7}], v12, s[8:11], s20 offen offset:1024",
             f"buffer_load_dwordx2 v[{k+8}:{k+9}], v4, s[8:11], s20 offen offset:2048",
             f"buffer_load_dwordx4 a[{q}:{q+3}], v{(3,6)[h//4]}, s[8:11], s21 offen offset:{(h%4)*1024}",
             f"buffer_load_dword a{q+4}, v5, s[8:11], s22 offen offset:{h*256}"]
        if h < 7: L[2] = [L[2], "s_addk_i32 s20, 2560"]
        return L
    def wol(ks):
        return [f"buffer_load_dwordx4 a[{aWO+4*(ks*NT+t)}:{aWO+4*(ks*NT+t)+3}], v{(3,6,7)[ks//4]}, s[8:11], s{30+t} offen offset:{(ks%4)*1024}" for t in range(NT)]
    xl = [f"buffer_load_dwordx2 v[{XR+2*t}:{XR+2*t+1}], v{8 + t//2}, s[8:11], s26 offen offset:{(t%2)*2048}" for t in range(NT)]
    loads = []
    for st in range(11):
        if st < 8: loads += [(st, x) for x in kvl(st)]
        if 0 <= st - 2 <= 8: loads += [(st, x) for x in wol(st - 2)]
    loads += [(11, x) for x in xl]
    flat = lambda L: [y for x in L for y in (x if isinstance(x, list) else [x])]
    p.ext(flat([x for _, x in loads[:10]]))
    for t in range(1, NT): p(f"s_add_u32 s{30+t}, s30, {t*36864}")
    p.ext(flat([x for _, x in loads[10:N0]]))
    lp = N0
    p(f"""s_mul_i32 s25, s17, 36864
s_lshl_b32 s26, s18, 11
s_add_u32 s25, s25, s26
s_lshl_b32 s26, s16, 9
s_add_u32 s25, s25, s26
s_add_u32 s26, s25, {XF}
s_add_u32 s27, s25, {X1F}
v_and_b32 v8, 31, v2
v_lshlrev_b32 v8, 4, v8
v_lshrrev_b32 v9, 5, v2
v_lshl_add_u32 v8, v9, 3, v8
v_add_u32 v9, 4096, v8
v_add_u32 v10, 8192, v8""")
    for h in range(8): p(f"v_accvgpr_write_b32 a{aPQ+6*h+5}, 0")
    for g in range(1, 4):
        p(f"""s_add_u32 s28, s16, {g}
s_and_b32 s28, s28, 3
s_mul_i32 s28, s28, {3*NT*1024}
s_add_u32 s28, s28, {(g-1)*NT*1024}
v_add_u32 v{242+g}, s28, v3""")
    p(f"s_mul_i32 s28, s16, {3*NT*1024}\nv_add_u32 v14, s28, v3")
    p(f"""s_lshl_b32 s28, s17, 8
s_add_u32 s28, s28, {ST}""")
    if dbg: p(stamp(1))
    def prep(h):
        k = KVR + 12*h; q = aPQ + 6*h; n = NUM + 16*(h % 2)
        L = [f"v_cvt_pk_bf16_f32 v{k+i}, v{k+2*i}, v{k+2*i+1}" for i in range(5)]
        L.append(f"v_mov_b32 v{k+5}, 0")
        L.append(f"v_mfma_f32_32x32x16_bf16 v[{n}:{n+15}], v[{k}:{k+3}], a[{q}:{q+3}], 0")
        L.append(f"v_mfma_f32_32x32x8_bf16 v[{n}:{n+15}], v[{k+4}:{k+5}], a[{q+4}:{q+5}], v[{n}:{n+15}]")
        return L
    def post(h):
        n = NUM + 16*(h % 2); o = KVR + 12*h + 8
        L = [f"v_add_f32 v11, 0x358637bd, v{n+10}", "v_rcp_f32 v11, v11"]
        for i in range(10): L.append(f"v_mul_f32 v{n+i}, v{n+i}, v11")
        for i in range(4): L.append(f"v_cvt_pk_bf16_f32 v{o+i}, v{n+2*i}, v{n+2*i+1}")
        L.append(f"v_cvt_pk_bf16_f32 v{TL + h//2 + 4*(h%2)}, v{n+8}, v{n+9}")
        return L
    def gemm(ks):
        o = KVR + 12*ks + 8 if ks < 8 else TL
        G = []
        for t in range(NT):
            r = aWO + 4*(ks*NT + t); a = ACC + 16*t
            c = "0" if ks == 0 else f"v[{a}:{a+15}]"
            G.append([f"v_mfma_f32_32x32x16_bf16 v[{a}:{a+15}], a[{r}:{r+3}], v[{o}:{o+3}], {c}"])
        return G
    pfl = []
    if pf:
        pfl = f"""s_and_b32 s62, s2, 7
s_mul_i32 s62, s62, {4*WSN*1024}
s_add_u32 s62, s62, {WSTR}
s_add_u32 s63, s62, {2*WSN*1024}
s_lshr_b32 s61, s2, 3
s_lshl_b32 s61, s61, 2
s_add_u32 s61, s61, s16""".split("\n") + [prefetch([('s62', 42), ('s63', 42)], 61, 2, 250, 251)]
    for st in range(11):
        nl = []
        while lp < len(loads) and loads[lp][0] <= st + LA: nl.append(loads[lp][1]); lp += 1
        if st < 8: p.ext(prep(st))
        fill = post(st - 1) if 0 <= st - 1 < 8 else []
        if st == 9: fill = [f"v_permlane32_swap_b32 v{TL+i}, v{TL+4+i}" for i in range(4)] + pfl
        if nl:
            m = []
            step = max(1, len(fill) // len(nl)) if fill else 1
            fi = 0
            for x in nl:
                m.append(x); m += fill[fi:fi+step]; fi += step
            m += fill[fi:]
            fill = m
        if st == 10:
            G = gemm(8)
            for t in range(NT):
                p.ext(G[t])
                if t: p.ext([f"ds_write_b128 v{242+g}, v[{ACC+16*(t-1)+4*g}:{ACC+16*(t-1)+4*g+3}] offset:{(t-1)*1024}" for g in range(1, 4)] if False else [])
        elif st >= 2: p.ext(interleave(gemm(st - 2), fill))
        else: p.ext(flat(fill))
        if dbg and st in (0, 4): p(stamp(2 + st//4))
    assert lp == len(loads)
    if dbg: p(stamp(4))
    for t in range(NT):
        for g in range(1, 4):
            a = ACC + 16*t + 4*g
            p(f"ds_write_b128 v{242+g}, v[{a}:{a+3}] offset:{t*1024}")
    p("s_waitcnt lgkmcnt(0)\ns_barrier")
    if dbg: p(stamp(5))
    RD = KVR
    for t in range(NT):
        for g in range(3):
            r = RD + 12*t + 4*g
            p(f"ds_read_b128 v[{r}:{r+3}], v14 offset:{(g*NT + t)*1024}")
    p("v_mov_b32 v15, 0\nv_mov_b32 v11, 0")
    for t in range(NT):
        a = ACC + 16*t; x = XR + 2*t; u = a + 4
        p(f"v_lshlrev_b32 v{u}, 16, v{x}\nv_and_b32 v{u+1}, 0xffff0000, v{x}\nv_lshlrev_b32 v{u+2}, 16, v{x+1}\nv_and_b32 v{u+3}, 0xffff0000, v{x+1}")
        for i in range(4): p(f"v_add_f32 v{a+i}, v{a+i}, v{u+i}")
    for t in range(NT):
        a = ACC + 16*t; r = RD + 12*t; x = XR + 2*t; u = a + 4
        for i in range(4): p(f"v_add_f32 v{a+i}, v{a+i}, v{r+i}")
        for i in range(4): p(f"v_add_f32 v{r+4+i}, v{r+4+i}, v{r+8+i}")
        for i in range(4): p(f"v_add_f32 v{a+i}, v{a+i}, v{r+4+i}")
        p(f"v_cvt_pk_bf16_f32 v{x}, v{a}, v{a+1}\nv_cvt_pk_bf16_f32 v{x+1}, v{a+2}, v{a+3}")
        p(f"buffer_store_dwordx2 v[{x}:{x+1}], v{8 + t//2}, s[8:11], s27 offen offset:{(t%2)*2048} {xsf}")
    for t in range(NT):
        a = ACC + 16*t; x = XR + 2*t; u = a + 4
        p(f"v_lshlrev_b32 v{u}, 16, v{x}\nv_and_b32 v{u+1}, 0xffff0000, v{x}\nv_lshlrev_b32 v{u+2}, 16, v{x+1}\nv_and_b32 v{u+3}, 0xffff0000, v{x+1}")
        for i in range(4): p(f"v_add_f32 v15, v15, v{u+i}\nv_fmac_f32 v11, v{u+i}, v{u+i}")
    p(f"""v_permlane32_swap_b32 v15, v11
v_add_f32 v15, v15, v11
buffer_atomic_add_f32 v15, v5, s[8:11], s28 offen""")
    if dbg: p(stamp(6)); stamp_end(p, 7, "b" + str(NT))
    p("s_endpgm")
    return p.finish()

def b_kernel(dbg=False, **kw):
    name = "b_kernel"
    p = Prog()
    p(f"""s_cmp_lt_u32 s2, 256
s_cbranch_scc1 L_{name}_go
s_endpgm
L_{name}_go:
s_load_dwordx2 s[4:5], s[0:1], 80""")
    if dbg: stamp_init(p)
    p(f"""v_lshrrev_b32 v1, 6, v0
v_and_b32 v2, 63, v0
v_readfirstlane_b32 s16, v1
v_lshlrev_b32 v3, 4, v2
s_and_b32 s17, s2, 7
s_lshl_b32 s17, s17, 3
s_bfe_u32 s19, s2, 0x30003
s_add_u32 s17, s17, s19
s_lshr_b32 s19, s2, 6
s_waitcnt lgkmcnt(0)""")
    srd(p, 8, 4, WSSZ)
    p(f"""s_cmp_lt_u32 s19, 2
s_cbranch_scc0 L_{name}_4
s_mul_i32 s18, s19, 5""")
    body = p.finish() + b_body(5, dbg, **kw)
    body += f"L_{name}_4:\n  s_lshl_b32 s18, s19, 2\n  s_add_u32 s18, s18, 2\n" + b_body(4, dbg, **kw)
    return kernel(name, body, vgpr=256, agpr=232), f"; @launch kernel={name} grid=(256,1,1) block=(256,1,1) lds=61440\n"
```

```python
from asmlib import *
from layout import *
from k0 import srd

def gelu8(x, k1, k3, tmp, out, grp=4):
    L = []
    for b in range(0, 8, grp):
        idx = range(b, b + grp)
        T = lambda i: tmp + i
        for i in idx: L.append(f"v_mul_f32 v{T(i)}, v{x+i}, v{x+i}")
        for i in idx: L.append(f"v_fma_f32 v{T(i)}, v{T(i)}, v{k3}, v{k1}")
        for i in idx: L.append(f"v_mul_f32 v{T(i)}, v{T(i)}, v{x+i}")
        for i in idx: L.append(f"v_exp_f32 v{T(i)}, v{T(i)}")
        for i in idx: L.append(f"v_add_f32 v{T(i)}, 1.0, v{T(i)}")
        for i in idx: L.append(f"v_rcp_f32 v{T(i)}, v{T(i)}")
        for i in idx: L.append(f"v_mul_f32 v{T(i)}, v{T(i)}, v{x+i}")
        for i in list(idx)[::2]: L.append(f"v_cvt_pk_bf16_f32 v{out+i//2}, v{T(i)}, v{T(i+1)}")
    return L

def c_kernel(DW=32, D0=12, YCH=4, stfl="sc1", dbg=False, RAMP=3, X=(), merge=True, YLA=0, amap=False, align=None):
    name = "c_kernel"
    p = Prog()
    YB, HB, XB = 0, 73728, 147456
    vL = 3
    vRD = 6
    vHW = 10
    vXW, vXR = 13, 14
    vK1, vK3 = 16, 18
    TMP, PK = 24, 32
    A_, B_, C_, D_, OS, N2, N3 = 40, 72, 104, 136, 168, 184, 216
    aODD, aAUG, aLR, aT, aW = 0, 32, 40, 64, 128
    NL = 3
    assert aW + 4*DW <= 256
    p(f"""s_cmp_lt_u32 s2, 256
s_cbranch_scc1 L_{name}_go
s_endpgm
L_{name}_go:
s_load_dwordx2 s[4:5], s[0:1], 80""")
    if dbg: stamp_init(p)
    AM = "s_and_b32 s17, s2, 7\ns_lshr_b32 s18, s2, 3" if not amap else "s_bfe_u32 s17, s2, 0x30003\ns_and_b32 s18, s2, 7\ns_lshl_b32 s18, s18, 2\ns_lshr_b32 s19, s2, 6\ns_add_u32 s18, s18, s19"
    p(f"""v_lshrrev_b32 v1, 6, v0
v_and_b32 v2, 63, v0
v_readfirstlane_b32 s16, v1
v_lshlrev_b32 v{vL}, 4, v2
{AM}
s_and_b32 s19, s16, 1
s_lshr_b32 s20, s16, 1
s_lshl_b32 s30, s17, 2
s_add_u32 s30, s30, s16
s_mul_i32 s30, s30, {WSN*1024}
s_add_u32 s30, s30, {WSTR}
s_mul_i32 s25, s18, 73728
s_lshl_b32 s26, s16, 10
s_add_u32 s27, s25, s26
s_add_u32 s27, s27, {X1F}
s_add_u32 s28, s27, 36864
s_add_u32 s31, s26, 36864
s_lshl_b32 s21, s18, 1
s_xor_b32 s29, s19, 1
s_add_u32 s45, s21, s19
s_add_u32 s46, s21, s29
s_lshl_b32 s47, s45, 8
s_lshl_b32 s48, s46, 8
s_add_u32 s47, s47, {ST}
s_add_u32 s48, s48, {ST}
v_lshlrev_b32 v15, 2, v2
s_mov_b32 s10, {WSSZ}
s_mov_b32 s11, 0x20000
s_waitcnt lgkmcnt(0)
s_mov_b32 s8, s4
s_mov_b32 s9, s5""")
    steps = []
    def fr(acc, rts=(0, 1), first=False, ag=False, kk=None):
        return dict(m=[(acc + 16*rt, ag, rt, first) for rt in rts], kk=kk)
    for kk in range(36):
        f = [fr(A_, first=kk == 0), fr(B_, first=kk == 0)]
        if kk % 2 == 0: f.append(fr(aODD, first=kk == 0, ag=True))
        steps.append(dict(l=('Y', kk), f=f, ph='p1'))
    steps.append(dict(l=None, f=[fr(A_), fr(B_), fr(aODD, rts=(0,), ag=True)], ph='p1'))
    for kk in range(36):
        steps.append(dict(l=('Y', kk), f=[fr(C_, first=kk == 0), fr(D_, first=kk == 0)], ph='p2'))
    steps.append(dict(l=None, f=[fr(C_), fr(D_)], ph='p2'))
    korder = list(range(16)) + [32, 33, 34, 35]
    NACC = [A_, B_, N2, N3]
    for i, kk in enumerate(korder):
        f = [fr(NACC[n], first=i == 0) for n in range(4)]
        if kk % 2 == 0: f.append(fr(aODD, first=i == 0, ag=True))
        steps.append(dict(l=('H', kk), f=f, ph='q'))
    n_p1 = 37; n_p2 = 74; n_t = 94
    tstart = {}
    for n in (4, 3, 0, 1, 2):
        f = [fr(aODD, ag=True, kk=kk) for kk in range(16, 32, 2)] if n == 4 else [fr(NACC[n], kk=kk) for kk in range(16, 32)]
        tstart[n] = len(steps)
        for b in range(0, len(f), 4): steps.append(dict(l=None, f=f[b:b+4], ph='t'))
    def treg(kk, rt):
        i = (kk - 16) // 2
        if kk % 2 == 0: return 'a', aT + 8*i + 4*rt
        return 'v', C_ + 8*i + 4*rt
    frags = [(si, fi) for si, st in enumerate(steps) for fi in range(len(st['f']))]
    assert len(frags) == WSN
    issue = []
    ych_at = {}
    for c in range(36 // YCH):
        gi = next(g for g, (si, fi) in enumerate(frags) if si == c*YCH)
        ych_at.setdefault(max(0, gi - YLA), []).append(c)
    for g, (si, fi) in enumerate(frags):
        for c in ych_at.get(g, []):
            L = []
            for kk0 in range(c*YCH, (c+1)*YCH, 4):
                for rt in range(2):
                    L.append(f"s_add_u32 m0, s{(26, 31)[rt]}, {YB + kk0*1024}" if kk0 else f"s_mov_b32 m0, s{(26, 31)[rt]}")
                    L.append(I(f"buffer_load_dwordx4 v{vL}, s[8:11], s{27+rt} offen lds", tag=f"y{c}"))
                    L.append(f"s_addk_i32 s{27+rt}, 4096")
            issue.append(('y', L, g))
        d = aW + 4*(g % DW)
        pre = ["s_addk_i32 s30, 4096"] if (g % 4 == 0 and g > 0) else []
        issue.append(('w', pre + [I(f"buffer_load_dwordx4 a[{d}:{d+3}], v{vL}, s[8:11], s30 offen offset:{(g%4)*1024}", tag=f"w{g}")], g))
    ip = 0
    def issue_upto(gmax):
        nonlocal ip
        L = []
        while ip < len(issue) and issue[ip][2] <= gmax:
            L += issue[ip][1]; ip += 1
        return L
    p.ext(issue_upto(D0 - 1))
    p("buffer_load_dword v22, v15, s[8:11], s47 offen\nbuffer_load_dword v23, v15, s[8:11], s48 offen")
    p(f"""s_mul_i32 s50, s19, {37*1024}
s_mul_i32 s51, s19, {35*1024}
v_add_u32 v{vRD}, s50, v{vL}
v_add_u32 v{vRD+1}, s51, v{vL}
v_subrev_u32 v{vRD+2}, s51, v{vL}
v_subrev_u32 v{vRD+3}, s50, v{vL}
v_add_u32 v{vRD+2}, 36864, v{vRD+2}
v_add_u32 v{vRD+3}, 36864, v{vRD+3}""")
    setup = f"""s_mul_i32 s50, s19, 36864
s_mul_i32 s51, s29, 36864
s_lshl_b32 s52, s16, 11
s_add_u32 s53, s50, s52
s_add_u32 s53, s53, {HB}
v_add_u32 v{vHW}, s53, v{vL}
s_add_u32 s53, s51, s52
s_add_u32 s53, s53, {HB}
v_add_u32 v{vHW+1}, s53, v{vL}
s_lshl_b32 s52, s20, 11
s_add_u32 s53, s50, s52
s_add_u32 s53, s53, {HB + 32*1024}
v_add_u32 v{vHW+2}, s53, v{vL}
s_lshl_b32 s52, s16, 12
s_add_u32 s53, s52, {XB}
v_add_u32 v{vXW}, s53, v{vL}
s_xor_b32 s52, s52, 4096
s_add_u32 s53, s52, {XB}
v_add_u32 v{vXR}, s53, v{vL}
s_mul_i32 s54, s17, {ACT}
s_add_u32 s54, s54, {PART}
s_mul_i32 s55, s45, 36864
s_mul_i32 s56, s46, 36864
s_add_u32 s55, s55, s54
s_add_u32 s56, s56, s54
s_lshl_b32 s57, s20, 11
s_add_u32 s57, s57, {16*2048}
s_add_u32 s57, s57, s55
s_lshl_b32 s58, s16, 11
s_add_u32 s55, s55, s58
s_add_u32 s56, s56, s58
s_mul_i32 s50, s2, 320
s_mul_i32 s51, s16, 80
s_add_u32 s50, s50, s51
s_add_u32 s50, s50, {KV}
v_mov_b32 v{TMP}, 0""".split("\n") + [["s_mov_b64 exec, 0xfffff", f"buffer_store_dword v{TMP}, v15, s[8:11], s50 offen", "s_mov_b64 exec, -1"]]
    statf = []
    for rt in range(2):
        s = 22 + rt; t = TMP
        statf += f"""v_mov_b32 v{t}, v{s}
v_permlane32_swap_b32 v{s}, v{t}
v_mul_f32 v{s}, 0x3ae38e39, v{s}
v_mul_f32 v{t}, 0x3ae38e39, v{t}
v_fma_f32 v{t}, -v{s}, v{s}, v{t}
v_max_f32 v{t}, 0, v{t}
v_mov_b32 v{t+1}, 0x3f800054
v_mov_b32 v{t+2}, 0x2edbe6ff
v_fma_f32 v{t}, v{t}, v{t+1}, v{t+2}
v_rsq_f32 v{t+1}, v{t}
v_mul_f32 v{t}, v{t}, v{t+1}
v_mul_f32 v{vK1+rt}, 0xc0135761, v{t+1}
v_mul_f32 v{t+2}, v{t+1}, v{t+1}
v_mul_f32 v{t+2}, v{t+2}, v{t+1}
v_mul_f32 v{vK3+rt}, 0xbdd2d3e8, v{t+2}
v_sub_f32 v{s}, 0, v{s}
v_cvt_pk_bf16_f32 v{t+3}, v{s}, v{t}
v_lshlrev_b32 v{t+4}, 16, v{t+3}
v_and_b32 v{t+5}, 0xffff0000, v{t+3}
v_sub_f32 v{t+4}, v{s}, v{t+4}
v_sub_f32 v{t+5}, v{t}, v{t+5}
v_cvt_pk_bf16_f32 v{t+6}, v{s}, v{t+4}
v_cvt_pk_bf16_f32 v{t+7}, v{s}, v{t+5}
v_accvgpr_write_b32 a{aAUG+4*rt}, v{t+6}
v_accvgpr_write_b32 a{aAUG+4*rt+1}, v{t+3}
v_accvgpr_write_b32 a{aAUG+4*rt+2}, v{t+6}
v_accvgpr_write_b32 a{aAUG+4*rt+3}, v{t+7}""".split("\n")
    pkc = [0]
    def gl(acc, rt, waddr, woff, tag):
        L = []
        for q in range(2):
            o = PK + 4*(pkc[0] % 2); pkc[0] += 1
            L += gelu8(acc + 8*q, vK1 + rt, vK3 + rt, TMP, o)
            L.append(I(f"ds_write_b128 v{waddr}, v[{o}:{o+3}] offset:{woff + q*1024}", tag=tag))
        return L
    xw = lambda tag: [I(f"ds_write_b128 v{vXW}, a[{aODD+16+4*i}:{aODD+19+4*i}] offset:{i*1024}", tag=tag) for i in range(4)]
    xr = [f"ds_read_b128 v[{OS+4*i}:{OS+4*i+3}], v{vXR} offset:{i*1024}" for i in range(4)]
    def xadd():
        L = []
        for b in range(0, 16, 4):
            for i in range(4): L.append(f"v_accvgpr_read_b32 v{TMP+i}, a{aODD+b+i}")
            for i in range(4): L.append(f"v_add_f32 v{OS+b+i}, v{OS+b+i}, v{TMP+i}")
        return L
    def gtile(role, acc, tag): return gl(acc, 0, vHW, role*8192, tag) + gl(acc + 16, 1, vHW + 1, role*8192, tag)
    fa = gtile(0, A_, 'hab'); h = len(fa) // 2
    seg = [xw('xw') + fa[:h] + [I("s_barrier", needs=['xw'])] + xr + fa[h:] + xadd() + gtile(1, B_, 'hab'),
           gl(OS, 0, vHW + 2, 0, 'ho') + gtile(2, C_, 'hcd') + gtile(3, D_, 'hcd')]
    hbar = {n_p2: 'hab', n_p2 + 16: 'ho', n_t: 'hcd'}
    def lread(si):
        st = steps[si]
        L = []
        if si in hbar:
            L.append(I("s_barrier", needs=[hbar[si]]))
            if si == n_p2:
                for i in range(4): L.append(f"v_add_u32 v{vRD+i}, {HB}, v{vRD+i}")
        if n_t <= si < n_t + 4:
            ks = [list(range(16, 24, 2)), list(range(24, 32, 2)), list(range(17, 24, 2)), list(range(25, 32, 2))][si - n_t]
            for kk in ks:
                for rt in range(2):
                    R, d = treg(kk, rt)
                    L.append(f"ds_read_b128 {R}[{d}:{d+3}], v{vRD + 2*rt + kk % 2} offset:{kk*1024}")
        if st['l'] is None: return L
        kind, kk = st['l']
        if kind == 'Y' and st['ph'] == 'p1' and kk % YCH == 0: L.append(I("s_barrier", needs=[f"y{kk//YCH}"]))
        for rt in range(2):
            d = aLR + 8*(si % NL) + 4*rt
            L.append(I(f"ds_read_b128 a[{d}:{d+3}], v{vRD + 2*rt + kk % 2} offset:{kk*1024}", tag=f"l{si}"))
        return L
    p.ext(lread(0)); p.ext(lread(1))
    if dbg: p(stamp(1))
    g = 0
    G = []
    stepstart = {}
    for si, st in enumerate(steps):
        first_in_step = True
        for fi, fx in enumerate(st['f']):
            ms = fx['m']
            w = aW + 4*(g % DW)
            for mi, (acc, ag, rt, first) in enumerate(ms):
                if st['ph'] == 't':
                    Rb, bb = treg(fx['kk'], rt)
                else:
                    Rb = 'a'; bb = (aLR + 8*(si % NL) + 4*rt) if st['l'] is not None else aAUG + 4*rt
                R = 'a' if ag else 'v'
                c = "0" if first else f"{R}[{acc}:{acc+15}]"
                needs = [f"w{g + len(st['f']) - 1}", f"l{si}"] if (merge and first_in_step and si > 0) else []
                grp = [I(f"v_mfma_f32_32x32x16_bf16 {R}[{acc}:{acc+15}], a[{w}:{w+3}], {Rb}[{bb}:{bb+3}], {c}", needs=needs)]
                if first_in_step:
                    stepstart[si] = len(G)
                    if si + 2 < len(steps): grp += lread(si + 2)
                    first_in_step = False
                if mi == len(ms) - 1:
                    depth = min(DW - 1, D0 + g // RAMP)
                    grp += issue_upto(g + depth)
                G.append(grp)
            g += 1
    assert ip == len(issue)
    stepstart[len(steps)] = len(G)
    def outp(acc, sreg, off=0):
        L = []
        for hf in range(2):
            o = PK + 4*(pkc[0] % 2); pkc[0] += 1
            src = acc + 8*hf
            for i in range(4): L.append(f"v_cvt_pk_bf16_f32 v{o+i}, v{src+2*i}, v{src+2*i+1}")
            L += [f"v_permlane32_swap_b32 v{o}, v{o+2}", f"v_permlane32_swap_b32 v{o+1}, v{o+3}"]
            L.append(f"buffer_store_dwordx4 v[{o}:{o+3}], v{vL}, s[8:11], s{sreg} offen offset:{hf*1024} {stfl}")
        return L
    def otile(n):
        acc = NACC[n]
        return [f"s_add_u32 s58, s55, {n*8192}", f"s_add_u32 s59, s56, {n*8192}"] + outp(acc, 58) + outp(acc + 16, 59)
    ts = {n: stepstart[tstart[n]] for n in tstart}
    plan = [(setup, 4, 40), (statf, 60, 120),
            (seg[0], stepstart[n_p1] + 2, stepstart[n_p2 - 2]),
            (seg[1], stepstart[n_p2 - 2], stepstart[n_t - 2]),
            (xw('xw2'), ts[3] + 2, ts[3] + 6),
            ([I("s_barrier", needs=['xw2'])] + xr + xadd() + outp(OS, 57), ts[3] + 12, ts[0]),
            (otile(3), ts[0] + 2, ts[1]), (otile(0), ts[1] + 2, ts[2]), (otile(1), ts[2] + 2, len(G))]
    marks = {stepstart[n_p1]: 2, stepstart[n_p2]: 3, stepstart[n_t]: 4, ts[1]: 5}
    for k, v in marks.items():
        if dbg: G[k] = [stamp(v)] + G[k]
    pos = 0
    for fill, a, b in plan:
        if 'nofill' in X: fill = [f for f in fill if isinstance(f, list) or not ((f if isinstance(f, I) else I(f)).kind in ('valu', 'trans'))]
        assert a >= pos
        for grp in G[pos:a]: p.ext(grp)
        p.ext(interleave(G[a:b], fill))
        pos = b
    for grp in G[pos:]: p.ext(grp)
    p.ext(otile(2))
    if dbg: p(stamp(6))
    if dbg: stamp_end(p, 7, name)
    p("s_endpgm")
    idx = {id(i): k for k, i in enumerate(p.ins)}
    for k, i in enumerate(p.ins):
        if i.op == 's_barrier':
            for t in i.needs:
                assert all(kk < k for kk, j in enumerate(p.ins) if j.tag == t), t
    if 'nolds' in X: p.ins = [i for i in p.ins if not i.op.startswith('ds_read')]
    if 'nobar' in X: p.ins = [i for i in p.ins if i.op != 's_barrier']
    if 'now' in X: p.ins = [i for i in p.ins if not (i.op == 'buffer_load_dwordx4' and not i.isdma)]
    if 'noy' in X: p.ins = [i for i in p.ins if not i.isdma]
    if 'nost' in X: p.ins = [i for i in p.ins if not i.op.startswith('buffer_store_dwordx4')]
    t = p.finish(align)
    if align: print('c align', Prog.stats)
    return kernel(name, t, vgpr=256, agpr=256), f"; @launch kernel={name} grid=(256,1,1) block=(256,1,1) lds=163840\n"
```

```python
import sys
sys.path.insert(0, "gen")
from asmlib import *
import k0, ka, kb, kc
HEAD = open("interleave_layers__linear_attn_block__mixer_channel_mlp__prompt.s.ref").read().split("; Override")[0]
def build(**kw):
    D = kw.get('dbg', False)
    SC.ws = kw.get('tl', False)
    a0 = a1 = ka.a_kernel(dbg=D, **kw.get('a', {}))
    b = kb.b_kernel(dbg=D, **kw.get('b', {})); c = kc.c_kernel(dbg=D, **kw.get('c', {}))
    d0 = k0.d_kernel(0, dbg=D, **kw.get('d', {})); d1 = k0.d_kernel(1, dbg=D, **kw.get('d', {}))
    k = k0.k0_kernel(dbg=D, **kw.get('k', {}))
    ks = [k, a0, b, c, d0, a1, b, c, d1]
    order = kw.get('order', range(len(ks)))
    return HEAD + "".join(ks[i][1] for i in order) + HDR + "".join(x[0] for x in (k, a0, b, c, d0, d1))
if __name__ == "__main__":
    out = sys.argv[1] if len(sys.argv) > 1 else "interleave_layers__linear_attn_block__mixer_channel_mlp__prompt.s"
    s = build(dbg=len(sys.argv) > 2)
    open(out, "w").write(s)
    print(out, len(s))
```

```python
from asmlib import *
from layout import *
from k0 import srd

def phi(regs, tmp):
    L = []
    for b in range(0, len(regs), 4):
        g = regs[b:b+4]
        for i, r in enumerate(g): L.append(f"v_mul_f32 v{tmp+i}, 0x3fb8aa3b, v{r}")
        for i, r in enumerate(g): L.append(f"v_exp_f32 v{tmp+i}, v{tmp+i} clamp")
        for i, r in enumerate(g): L.append(f"v_max_f32 v{r}, 0x358637bd, v{r}")
        for i, r in enumerate(g): L.append(f"v_add_f32 v{r}, v{r}, v{tmp+i}")
    return L

QB = 73728

def a_body(dbg=False, pf=True, YR=16, D0=12, RAMP=1, NW=8, prio=0, qsf="sc1", align=None):
    p = Prog()
    p("s_load_dwordx2 s[4:5], s[0:1], 80")
    if dbg: stamp_init(p)
    if prio: p(f"s_setprio {prio}")
    p(f"""v_lshrrev_b32 v1, 6, v0
v_and_b32 v2, 63, v0
v_readfirstlane_b32 s16, v1
v_lshlrev_b32 v3, 4, v2
s_and_b32 s17, s2, 7
s_lshr_b32 s18, s2, 3
s_lshr_b32 s19, s17, 2
s_lshl_b32 s19, s19, 2
s_and_b32 s20, s18, 3
s_add_u32 s19, s19, s20
s_and_b32 s20, s17, 3
s_lshl_b32 s20, s20, 3
s_lshr_b32 s21, s18, 2
s_add_u32 s20, s20, s21
s_lshl_b32 s21, s19, 3
s_lshl_b32 s22, s16, 1
s_add_u32 s21, s21, s22
s_mul_i32 s22, s21, 36864
s_add_u32 s22, s22, {YF}
s_mul_i32 s24, s20, 73728
s_add_u32 s24, s24, {WQF}
s_lshl_b32 s25, s16, 11
s_add_u32 s24, s24, s25
s_mov_b32 s10, {WSSZ}
s_mov_b32 s11, 0x20000
s_waitcnt lgkmcnt(0)
s_mov_b32 s8, s4
s_mov_b32 s9, s5""")
    ACC, WR, P0, V1, TMP, KVA, QO = 16, 80, 112, 120, 128, 136, 152
    assert WR + 4*NW <= P0
    items = []
    for g in range(72):
        if g < 36 and g % 4 == 0:
            c = g // 4
            L = [f"s_add_u32 m0, s25, {c*8192}" if c else "s_mov_b32 m0, s25"]
            for i in range(2): L.append(I(f"buffer_load_dwordx4 v3, s[8:11], s24 offen offset:{i*1024} lds", tag=f"w{c}"))
            if c < 8: L.append("s_addk_i32 s24, 8192")
            items.append((g, L, False))
        s = 4*(g % YR)
        pre = ["s_addk_i32 s22, 4096"] if (g % 4 == 0 and g) else []
        items.append((g, pre + [f"buffer_load_dwordx4 a[{s}:{s+3}], v3, s[8:11], s22 offen offset:{(g%4)*1024}"], True))
    ip = 0
    def issue_upto(gmax):
        nonlocal ip
        L = []
        while ip < len(items) and items[ip][0] <= gmax:
            L += items[ip][1]; ip += 1
        return L
    p.ext(issue_upto(D0 - 1))
    p("v_mov_b32 v10, 0")
    p("v_lshlrev_b32 v13, 2, v0")
    p(f"""v_add_u32 v4, 65536, v3
s_mul_i32 s28, s16, 1280
s_add_u32 s28, s28, {QB - 20*64}
v_and_b32 v5, 31, v2
v_lshlrev_b32 v5, 6, v5
v_lshrrev_b32 v9, 5, v2
v_lshl_add_u32 v5, v9, 5, v5
v_add_u32 v5, s28, v5
v_bfe_u32 v6, v2, 2, 2
v_lshl_add_u32 v6, v9, 2, v6
v_lshlrev_b32 v6, 6, v6
v_and_b32 v7, 1, v2
v_lshl_add_u32 v6, v7, 5, v6
v_bfe_u32 v7, v2, 4, 1
v_lshl_add_u32 v6, v7, 4, v6
v_bfe_u32 v7, v2, 1, 1
v_lshl_add_u32 v6, v7, 3, v6
s_add_u32 s28, s28, {20*64}
v_add_u32 v6, s28, v6
v_lshlrev_b32 v7, 2, v2
s_mul_i32 s28, s16, 2560
v_add_u32 v15, s28, v3
v_lshlrev_b32 v14, 3, v2
v_add_u32 v14, s28, v14
v_and_b32 v8, 27, v2
v_cmp_eq_u32 s[30:31], 18, v8
v_mov_b32 v8, 0x3f803f80
s_mov_b32 s32, 0xfff00000
s_mov_b32 s33, 0xfff00000
s_lshl_b32 s26, s21, 5
s_add_u32 s26, s26, s20
s_lshl_b32 s27, s26, 8
s_lshl_b32 s26, s26, 10
s_add_u32 s26, s26, {PQ16}
s_add_u32 s27, s27, {PQ4}
s_lshl_b32 s28, s2, 6
s_lshl_b32 s29, s16, 4
s_add_u32 s28, s28, s29
s_add_u32 s28, s28, {ST}
s_mov_b64 exec, 15
buffer_store_dword v10, v7, s[8:11], s28 offen
s_mov_b64 exec, -1""")
    def wrd(f):
        g = f % 72
        s = WR + 4*(f % NW)
        L = []
        if f < 72 and f % 8 == 0: L.append(I("s_barrier", needs=[f"w{f//8}"]))
        L.append(f"ds_read_b128 v[{s}:{s+3}], v3 offset:{g*1024}" if g < 64 else f"ds_read_b128 v[{s}:{s+3}], v4 offset:{(g-64)*1024}")
        return L
    if dbg: p(stamp(1))
    for f in range(NW - 1): p.ext(wrd(f))
    if dbg: p(stamp(2))
    G = []
    for g in range(72):
        y = 4*(g % YR)
        for t in range(2):
            f = 2*g + t
            w = WR + 4*(f % NW)
            acc = ACC + 32*(g // 36) + 16*t
            c = "0" if g % 36 == 0 else f"v[{acc}:{acc+15}]"
            grp = [f"v_mfma_f32_32x32x16_bf16 v[{acc}:{acc+15}], a[{y}:{y+3}], v[{w}:{w+3}], {c}"]
            if f + NW - 1 < 144: grp += wrd(f + NW - 1)
            if t == 1:
                depth = min(YR, D0 + 1 + g*RAMP)
                grp += issue_upto(g + depth)
            G.append(grp)
    assert ip == len(items)
    def epi1(rt):
        T0 = ACC + 32*rt; T1 = T0 + 16
        L = []
        for i in range(8): L.append(f"v_cvt_pk_bf16_f32 v{V1+i}, v{T1+2*i}, v{T1+2*i+1}")
        for i in range(8): L.append(f"v_cndmask_b32 v{V1+i}, v{V1+i}, v8, s[30:31]")
        ph = phi(list(range(T0, T0 + 16)), TMP)
        pk = [f"v_cvt_pk_bf16_f32 v{P0+i}, v{T0+2*i}, v{T0+2*i+1}" for i in range(8)]
        mm = [f"v_mfma_f32_32x32x16_bf16 v[{KVA}:{KVA+15}], v[{P0+4*q}:{P0+4*q+3}], v[{V1+4*q}:{V1+4*q+3}], " + ("0" if (rt == 0 and q == 0) else f"v[{KVA}:{KVA+15}]") for q in range(2)]
        L = ph[:32] + pk[:4] + L + [mm[0]] + ph[32:] + pk[4:] + [mm[1]]
        L.append(["s_mov_b64 exec, s[32:33]",
                  f"ds_write_b128 v5, v[{V1}:{V1+3}] offset:512", f"ds_write_b128 v5, v[{V1+4}:{V1+7}] offset:528",
                  f"ds_write_b128 v5, v[{P0}:{P0+3}]", f"ds_write_b128 v5, v[{P0+4}:{P0+7}] offset:16",
                  "s_mov_b64 exec, -1"])
        L += [f"ds_read_b64_tr_b16 v[{QO}:{QO+1}], v6", f"ds_read_b64_tr_b16 v[{QO+2}:{QO+3}], v6 offset:768", f"ds_read_b64_tr_b16 v[{QO+4}:{QO+5}], v6 offset:512"]
        return L
    def epi2(rt):
        u = TMP + 4
        L = [f"v_lshlrev_b32 v{u}, 16, v{QO+2}", f"v_and_b32 v{u+1}, 0xffff0000, v{QO+2}", f"v_lshlrev_b32 v{u+2}, 16, v{QO+3}", f"v_and_b32 v{u+3}, 0xffff0000, v{QO+3}"]
        L += phi([u, u+1, u+2, u+3], TMP)
        L += [f"v_cvt_pk_bf16_f32 v{QO+2}, v{u}, v{u+1}", f"v_cvt_pk_bf16_f32 v{QO+3}, v{u+2}, v{u+3}"]
        return L
    def qst(rt):
        L = ["s_add_u32 s26, s26, 32768", "s_add_u32 s27, s27, 8192"] if rt else []
        return L + [f"buffer_store_dwordx4 v[{QO}:{QO+3}], v3, s[8:11], s26 offen {qsf}", f"buffer_store_dword v{QO+4}, v7, s[8:11], s27 offen {qsf}"]
    late = f"""v_bfe_u32 v10, v0, 2, 5
v_lshrrev_b32 v12, 1, v0
v_cmp_gt_u32 s[34:35], 19, v10
v_cmp_eq_u32 s[36:37], 22, v10
s_or_b64 s[34:35], s[34:35], s[36:37]
v_cmp_gt_u32 s[38:39], 19, v12
v_cmp_eq_u32 s[36:37], 22, v12
s_or_b64 s[38:39], s[38:39], s[36:37]
s_mul_i32 s28, s20, 2560
s_add_u32 s28, s28, {KV}""".split("\n")
    pfl = []
    if pf:
        pfl = ["s_lshl_b32 s61, s18, 2", "s_add_u32 s61, s61, s16", prefetch([(WOF, 41)], 61, 2, 158, 159)]
    G[116] = G[116] + ["s_barrier"]
    if dbg:
        G[72] = [stamp(3)] + G[72]
    for grp in G[:20]: p.ext(grp)
    p.ext(interleave(G[20:60], late))
    for grp in G[60:74]: p.ext(grp)
    p.ext(interleave(G[74:124], epi1(0) + epi2(0) + qst(0)))
    p.ext(interleave(G[124:], pfl))
    if dbg: p(stamp(4))
    p.ext([x for y in epi1(1) for x in (y if isinstance(y, list) else [y])])
    p(f"ds_write_b128 v15, v[{KVA}:{KVA+3}]\nds_write_b128 v15, v[{KVA+4}:{KVA+7}] offset:1024\nds_write_b64 v14, v[{KVA+8}:{KVA+9}] offset:2048")
    p("s_waitcnt lgkmcnt(0)")
    if dbg: p(stamp(5))
    p("s_barrier")
    for it in range(3):
        for w in range(4): p(f"ds_read_b32 v{16 + 4*it + w}, v13 offset:{w*2560 + it*1024}")
    p.ext(epi2(1))
    for it in range(3):
        b = 16 + 4*it
        p(f"v_add_f32 v{b}, v{b}, v{b+1}\nv_add_f32 v{b+2}, v{b+2}, v{b+3}\nv_add_f32 v{b}, v{b}, v{b+2}")
    p(f"""s_mov_b64 exec, s[34:35]
buffer_atomic_add_f32 v16, v13, s[8:11], s28 offen
buffer_atomic_add_f32 v20, v13, s[8:11], s28 offen offset:1024
s_mov_b64 exec, -1""")
    p.ext(qst(1))
    p(f"""s_cmp_eq_u32 s16, 0
s_cbranch_scc0 L_a_end
s_mov_b64 exec, s[38:39]
buffer_atomic_add_f32 v24, v13, s[8:11], s28 offen offset:2048
L_a_end:""")
    if dbg: p(stamp(6)); stamp_end(p, 7, 'a')
    p("s_endpgm")
    return p.finish(align)

def noise_body(N, K, st):
    p = Prog()
    p("""s_load_dwordx2 s[6:7], s[0:1], 32
s_load_dwordx2 s[4:5], s[0:1], 80
v_lshlrev_b32 v3, 4, v0
s_sub_u32 s3, s2, 256
s_mul_i32 s20, s3, 20480
s_add_u32 s21, s20, 0x4000000
s_waitcnt lgkmcnt(0)""")
    srd(p, 12, 6, 576*4608*2); srd(p, 8, 4, WSSZ)
    for r in range(N):
        for k in range(K):
            p(f"buffer_load_dwordx4 v[{8+4*k}:{11+4*k}], v3, s[12:15], s20 offen nt")
            p("s_add_u32 s20, s20, 4096")
        p("s_waitcnt vmcnt(0)")
        if st:
            for k in range(K):
                p(f"buffer_store_dwordx4 v[{8+4*k}:{11+4*k}], v3, s[8:11], s21 offen sc1")
                p("s_add_u32 s21, s21, 4096")
    p("s_endpgm")
    return p.finish()

def a_kernel(dbg=False, noise=None, **kw):
    YR = kw.get('YR', 16)
    if noise:
        b = """  s_cmp_lt_u32 s2, 256
  s_cbranch_scc1 L_abody
  s_cmp_lt_u32 s2, 512
  s_cbranch_scc1 L_noise
  s_endpgm
L_abody:
""" + a_body(dbg, **kw) + "L_noise:\n" + noise_body(*noise)
        return kernel("a_kernel", b, vgpr=160, agpr=4*YR), "; @launch kernel=a_kernel grid=(512,1,1) block=(256,1,1) lds=81920\n"
    b = """  s_cmp_lt_u32 s2, 256
  s_cbranch_scc1 L_abody
  s_endpgm
L_abody:
""" + a_body(dbg, **kw)
    return kernel("a_kernel", b, vgpr=160, agpr=4*YR), "; @launch kernel=a_kernel grid=(256,1,1) block=(256,1,1) lds=98304\n"
```

```python
import re

def _expand(tok):
    tok = tok.strip()
    tok = re.sub(r'^-', '', tok)
    m = re.match(r'^(?:abs\(|\|)(.*?)(?:\)|\|)$', tok)
    if m: tok = m.group(1)
    m = re.match(r'^([vsa])\[(\d+):(\d+)\]$', tok)
    if m: return [f"{m.group(1)}{i}" for i in range(int(m.group(2)), int(m.group(3)) + 1)]
    m = re.match(r'^([vsa])(\d+)$', tok)
    if m: return [tok]
    if tok in ('vcc', 'exec'): return [tok]
    if tok in ('vcc_lo', 'vcc_hi'): return ['vcc']
    if tok in ('exec_lo', 'exec_hi'): return ['exec']
    if tok == 'm0': return ['m0']
    return []

TRANS = ('v_exp_f32', 'v_log_f32', 'v_rcp_f32', 'v_rsq_f32', 'v_sqrt_f32', 'v_sin_f32', 'v_cos_f32', 'v_rcp_iflag_f32')

class I:
    __slots__ = ('text', 'op', 'kind', 'w', 'r', 'tag', 'needs', 'srcC', 'passes', 'isdma', 'wide', 'sdata')
    def __init__(self, text, tag=None, needs=()):
        self.text = text.strip(); self.tag = tag; self.needs = list(needs)
        self.srcC = []; self.passes = 0; self.isdma = False; self.wide = False; self.sdata = []
        t = self.text.split(';')[0].strip()
        if t.endswith(':') or t == '' or t.startswith('.'):
            self.op = 'label' if t.endswith(':') else 'dir'; self.kind = self.op; self.w = []; self.r = []; return
        parts = t.split(None, 1)
        self.op = op = re.sub(r'_(e32|e64|dpp|sdwa)$', '', parts[0])
        rest = parts[1] if len(parts) > 1 else ''
        ops = [x.strip() for x in re.split(r',(?![^\[]*\])', rest)]
        mods = ''
        if ops:
            lp = ops[-1].split(None, 1)
            if lp:
                ops[-1] = lp[0]
                mods = lp[1] if len(lp) > 1 else ''
        E = lambda i: _expand(ops[i]) if i < len(ops) else []
        allr = lambda a: [x for i in range(a, len(ops)) for x in E(i)]
        w, r = [], []
        if op.startswith('v_mfma'):
            self.kind = 'mfma'; w = E(0); r = E(1) + E(2) + E(3); self.srcC = E(3)
            self.passes = 8 if '32x32' in op else 4
        elif op.startswith('ds_read') or op.startswith('ds_bpermute') or op.startswith('ds_swizzle') or op.startswith('ds_permute'):
            self.kind = 'dsr'; w = E(0); r = allr(1)
        elif op.startswith('ds_write') or op.startswith('ds_add'):
            self.kind = 'dsw'; r = allr(0)
        elif op.startswith('buffer_load') or op.startswith('global_load'):
            self.kind = 'vm'
            if ' lds' in (' ' + mods) or op.startswith('global_load_lds'):
                self.isdma = True; r = allr(0) + ['m0']
            else:
                w = E(0); r = allr(1)
                if 'd16' in op: r += E(0)
        elif op.startswith('buffer_store') or op.startswith('global_store') or op.startswith('buffer_atomic') or op.startswith('global_atomic'):
            self.kind = 'vm'; r = allr(0)
            if op.startswith('buffer_'): self.sdata = E(0)
            else: self.sdata = E(1)
            if 'x4' in op or 'x3' in op: self.wide = True
            if 'atomic' in op and 'sc0' in mods: w = E(0)
        elif op.startswith('buffer_wbl2') or op.startswith('buffer_inv'):
            self.kind = 'vm'
        elif op.startswith('s_load') or op.startswith('s_memtime') or op.startswith('s_memrealtime') or op.startswith('s_buffer_load'):
            self.kind = 'smem'; w = E(0); r = allr(1)
        elif op in ('s_waitcnt', 's_barrier', 's_nop', 's_setprio', 's_endpgm', 's_sleep', 's_branch') or op.startswith('s_cbranch'):
            self.kind = 'ctl'
            if 'scc' in op: r = ['scc']
            if 'vcc' in op: r = ['vcc']
            if 'exec' in op: r = ['exec']
        elif op.startswith('s_cmp') or op.startswith('s_bitcmp'):
            self.kind = 'salu'; w = ['scc']; r = allr(0)
        elif op.startswith('s_'):
            self.kind = 'salu'; w = E(0); r = allr(1)
            if 'saveexec' in op: w += ['exec']; r += ['exec']
            if op in ('s_addc_u32', 's_subb_u32', 's_cselect_b32', 's_cselect_b64'): r += ['scc']
            if op in ('s_addk_i32', 's_mulk_i32'): r += E(0)
            if not op.startswith('s_mov') and not op.startswith('s_mul') and not op.startswith('s_cselect') and not op.startswith('s_getreg'): w += ['scc']
        elif op.startswith('v_'):
            self.kind = 'trans' if op in TRANS else 'valu'
            if op.startswith('v_cmp'):
                w = E(0); r = allr(1)
                if op.startswith('v_cmpx'): w += ['exec']
            elif op in ('v_add_co_u32', 'v_sub_co_u32', 'v_addc_co_u32', 'v_subb_co_u32'):
                w = E(0) + E(1); r = allr(2)
            elif op.startswith('v_permlane') and 'swap' in op:
                w = E(0) + E(1); r = E(0) + E(1)
            else:
                w = E(0); r = allr(1)
                if op.startswith('v_fmac') or op.startswith('v_pk_fmac') or op in ('v_writelane_b32',) or op.startswith('v_dot2c'): r += E(0)
                if ('row_' in mods or 'quad_perm' in mods or 'wave_' in mods or 'bank_mask' in mods): self.kind = 'dpp'; r += E(0)
                if 'dst_sel' in mods or 'op_sel' in mods: r += E(0)
        else:
            raise ValueError("unknown op " + text)
        self.w = w; self.r = r
    def states(self):
        if self.op == 's_nop':
            return int(self.text.split()[1], 0) + 1
        if self.kind in ('label', 'dir'): return 0
        return 1
    def isvalu(self): return self.kind in ('valu', 'trans', 'dpp')

class Prog:
    def __init__(self):
        self.ins = []
    def add(self, text, tag=None, needs=()):
        for line in text.split('\n'):
            if line.strip(): self.ins.append(I(line, tag, needs))
        return self
    def __call__(self, text, tag=None, needs=()): return self.add(text, tag, needs)
    def ext(self, lst):
        for x in lst:
            if isinstance(x, I): self.ins.append(x)
            else: self.add(x)
    def resolve_waits(self, check_only=False):
        out = []
        vm = []
        lg = []
        def need_vm(pred):
            idx = -1
            for k, o in enumerate(vm):
                if pred(o): idx = k
            return idx
        for ins in self.ins:
            if ins.op == 's_waitcnt':
                m = re.search(r'vmcnt\((\d+)\)', ins.text)
                if m:
                    n = int(m.group(1));
                    if len(vm) > n: vm = vm[len(vm) - n:] if n else []
                m = re.search(r'lgkmcnt\((\d+)\)', ins.text)
                if m:
                    n = int(m.group(1))
                    if any(o.kind == 'smem' for o in lg):
                        if n == 0: lg = []
                    elif len(lg) > n: lg = lg[len(lg) - n:] if n else []
                out.append(ins); continue
            touched = set(ins.r) | set(ins.w)
            iv = -1; il = -1
            for k, o in enumerate(vm):
                if (set(o.w) & touched) or (o.tag is not None and o.tag in ins.needs): iv = k
            for k, o in enumerate(lg):
                if (set(o.w) & touched) or (o.tag is not None and o.tag in ins.needs): il = k
            parts = []
            if iv >= 0:
                n = len(vm) - 1 - iv
                assert n <= 63
                parts.append(f"vmcnt({n})"); vm = vm[iv + 1:]
            if il >= 0:
                if any(o.kind == 'smem' for o in lg):
                    parts.append("lgkmcnt(0)"); lg = []
                else:
                    n = len(lg) - 1 - il
                    n = min(n, 15)
                    parts.append(f"lgkmcnt({n})"); lg = lg[len(lg) - n:] if n else []
            if parts: out.append(I("s_waitcnt " + " ".join(parts)))
            out.append(ins)
            if ins.kind == 'vm':
                vm.append(ins)
                assert len(vm) <= 63, "too many outstanding vmem"
            elif ins.kind in ('dsr', 'dsw', 'smem'): lg.append(ins)
        self.ins = out
        return self
    def pad_hazards(self):
        out = []
        def dist_back(pred, maxd):
            d = 0
            for o in reversed(out):
                if pred(o): return d
                d += o.states()
                if d >= maxd: return None
            return None
        for ins in self.ins:
            need = 0
            R = set(ins.r); W = set(ins.w)
            def req(pred, n):
                nonlocal need
                d = dist_back(pred, n)
                if d is not None and n - d > need: need = n - d
            vr = {x for x in R if x[0] in 'va' and x not in ('vcc',)}
            vw = {x for x in W if x[0] in 'va' and x not in ('vcc',)}
            sr = {x for x in R if x[0] == 's' and x != 'scc'} | ({'vcc'} & R)
            if ins.kind == 'mfma':
                req(lambda o: o.isvalu() and set(o.w) & vr, 2)
                ab = set(ins.r) - set(ins.srcC) if set(ins.srcC) != set(ins.r) else set(ins.r)
                abr = set(_ab(ins))
                for p, n in ((4, 8), (8, 12)):
                    req(lambda o, p=p: o.kind == 'mfma' and o.passes == p and set(o.w) & abr, n)
                for p, n in ((4, 6), (8, 10)):
                    req(lambda o, p=p: o.kind == 'mfma' and o.passes == p and set(o.w) & set(ins.srcC) and not (o.w == ins.srcC and o.passes == ins.passes), n)
                    req(lambda o, p=p: o.kind == 'mfma' and o.passes == p and set(o.w) & set(ins.w) and not (o.w == ins.srcC and o.passes == ins.passes), n)
                req(lambda o: o.isvalu() and 'exec' in o.w, 4)
            elif ins.isvalu() or ins.kind in ('vm', 'dsr', 'dsw'):
                for p, n in ((4, 8), (8, 12)):
                    req(lambda o, p=p: o.kind == 'mfma' and o.passes == p and set(o.w) & (vr | vw), n)
                if ins.isvalu() or ins.kind in ('vm', 'dsr'):
                    for p, n in ((4, 3), (8, 7)):
                        req(lambda o, p=p: o.kind == 'mfma' and o.passes == p and set(o.srcC) & vw, n)
            if ins.isvalu() or ins.kind in ('vm', 'dsw', 'mfma'):
                req(lambda o: o.op.startswith('v_dot') and o.op != ins.op and set(o.w) & (vr | vw), 3)
            if ins.isvalu():
                if ins.kind != 'trans': req(lambda o: o.kind == 'trans' and set(o.w) & vr, 1)
                req(lambda o: o.isvalu() and set(o.w) & sr, 2)
                req(lambda o: o.kind == 'vm' and o.wide and set(o.sdata) & vw, 2)
                if ins.kind == 'dpp':
                    req(lambda o: (o.isvalu() or o.kind=='mfma') and set(o.w) & vr, 2)
                    req(lambda o: o.isvalu() and 'exec' in o.w, 5)
                if ins.op.startswith('v_permlane'):
                    req(lambda o: o.isvalu() and set(o.w) & vr, 2)
                    req(lambda o: o.isvalu() and 'exec' in o.w, 4)
                if ins.op in ('v_readlane_b32', 'v_readfirstlane_b32'):
                    req(lambda o: o.isvalu() and set(o.w) & vr, 1)
                    req(lambda o: o.isvalu() and 'exec' in o.w, 4)
                    req(lambda o: o.isvalu() and set(o.w) & sr, 4)
                if ins.op == 'v_div_fmas_f32': req(lambda o: o.isvalu() and 'vcc' in o.w, 4)
                req(lambda o: o.isvalu() and ('op_sel' in o.text or 'dst_sel' in o.text) and set(o.w) & (vr | vw), 1)
            if ins.kind in ('dsr',) or (ins.kind == 'vm' and vw):
                req(lambda o: o.kind == 'vm' and o.wide and set(o.sdata) & vw, 1)
            if ins.kind == 'vm':
                req(lambda o: o.isvalu() and set(o.w) & sr, 5)
                if ins.isdma: req(lambda o: o.kind == 'salu' and 'm0' in o.w, 1)
            if ins.kind == 'salu' or ins.kind == 'smem' or ins.kind == 'ctl':
                if ins.op in ('s_cbranch_vccz', 's_cbranch_vccnz'): req(lambda o: o.isvalu() and 'vcc' in o.w, 5)
                if ins.op in ('s_cbranch_execz', 's_cbranch_execnz'): req(lambda o: o.isvalu() and 'exec' in o.w, 5)
                req(lambda o: o.isvalu() and set(o.w) & sr, 1)
            while need > 0:
                k = min(need, 16)
                out.append(I(f"s_nop {k-1}")); need -= k
            out.append(ins)
        self.ins = out
        return self
    def text(self):
        return "".join(("" if i.kind == 'label' else "  ") + i.text + "\n" for i in self.ins)
    def sizes(self):
        import subprocess
        lines = [i.text for i in self.ins]
        isbr = lambda i: i.op == 's_branch' or i.op.startswith('s_cbranch')
        src = "\n".join("s_nop 0" if (i.kind in ('label', 'dir') or isbr(i)) else i.text for i in self.ins) + "\n"
        r = subprocess.run(["llvm-mc", "-triple=amdgcn-amd-amdhsa", "-mcpu=gfx950", "-show-encoding"], input=src, capture_output=True, text=True)
        assert r.returncode == 0, r.stderr
        enc = [l.split("encoding:")[1].count("0x") for l in r.stdout.split("\n") if "encoding:" in l]
        assert len(enc) == len(self.ins)
        return [0 if i.kind in ('label', 'dir') else e for i, e in zip(self.ins, enc)]
    def align8(self, start=0, nop=False):
        sz = self.sizes()
        out = []; run = []; pos = start; nfix = nmiss = 0
        def widen(i):
            t = i.text
            if i.kind in ('valu', 'trans') and not re.search(r'_(e64|dpp|sdwa)\b', t) and not i.op.startswith(('v_readfirstlane', 'v_accvgpr', 'v_permlane', 'v_dot2c', 'v_fmaak', 'v_fmamk')):
                return I(re.sub(r'^(\S+?)(_e32)?(\s)', r'\1_e64\3', t, count=1), i.tag, i.needs)
            m = re.match(r's_addk_i32 (s\d+), (\d+)$', t)
            if m and int(m.group(2)) > 64: return I(f"s_add_u32 {m.group(1)}, {m.group(1)}, {m.group(2)}", i.tag, i.needs)
            return None
        for i, n in zip(self.ins, sz):
            if n == 8 and pos % 8 == 4:
                for k in reversed(run):
                    w = widen(out[k])
                    if w is not None:
                        out[k] = w; pos += 4; nfix += 1; break
                else:
                    if nop: out.append(I("s_nop 0")); pos += 4
                    nmiss += 1
            if n == 4: run.append(len(out))
            elif n == 8: run = []
            out.append(i); pos += n
        self.ins = out
        Prog.stats = (nfix, nmiss, pos)
        return self
    def finish(self, align=None):
        self.resolve_waits(); self.pad_hazards()
        if align is not None: self.align8(*align)
        return self.text()

def _ab(ins):
    t = ins.text.split(';')[0].split(None, 1)[1]
    ops = [x.strip() for x in re.split(r',(?![^\[]*\])', t)]
    return _expand(ops[1]) + _expand(ops[2])

def _wt(x):
    if isinstance(x, list): return sum(_wt(y) for y in x)
    i = I(x) if isinstance(x, str) else x
    return 2 if i.kind == 'trans' else 1

def interleave(main, fill, start=0, end=None, cost=None):
    n = len(main); end = n if end is None else end
    gaps = end - start
    w = [_wt(x) for x in fill]
    tot = sum(w); out = []; k = 0; acc = 0
    def emit(x):
        if isinstance(x, list): out.extend(x)
        else: out.append(x)
    for g in range(n):
        out += main[g]
        if start <= g < end:
            target = tot * (g - start + 1) / gaps
            while k < len(fill) and acc + w[k] / 2 <= target:
                emit(fill[k]); acc += w[k]; k += 1
    for x in fill[k:]: emit(x)
    return out

HDR = '.amdgcn_target "amdgcn-amd-amdhsa--gfx950"\n.text\n'
def kernel(name, body, vgpr=256, sgpr=102, agpr=0):
    acc = (vgpr + 3) // 4 * 4
    return f""".text
.globl {name}
.p2align 8
.type {name},@function
{name}:
{body}.section .rodata,"a"
.p2align 6
.amdhsa_kernel {name}
  .amdhsa_next_free_vgpr {acc + agpr if agpr else vgpr}
  .amdhsa_next_free_sgpr {sgpr}
  .amdhsa_accum_offset {acc}
  .amdhsa_group_segment_fixed_size 0
  .amdhsa_kernarg_size 88
  .amdhsa_user_sgpr_count 2
  .amdhsa_user_sgpr_kernarg_segment_ptr 1
  .amdhsa_system_sgpr_workgroup_id_x 1
.end_amdhsa_kernel
"""


class SC:
    m = dict(ptr=68, t=70, r0=90, r1=92, srd=96, ex=94)
    ws = False
BIG = dict(ptr=68, t=70, r0=90, r1=92, srd=96, ex=94)
SMALL = dict(ptr=64, t=66, r0=76, r1=78, srd=12, ex=26)
def stamp_init(p):
    m = SC.m
    p(f"s_load_dwordx2 s[{m['ptr']}:{m['ptr']+1}], s[0:1], 72\ns_memtime s[{m['t']}:{m['t']+1}]\ns_memrealtime s[{m['r0']}:{m['r0']+1}]")
def stamp(i):
    t = SC.m['t']
    return f"s_memtime s[{t+2*i}:{t+1+2*i}]"
def stamp_end(p, n, name, stride=32, wave=0, idr='s2'):
    m = SC.m; t = m['t']; r0 = m['r0']; r1 = m['r1']; d = m['srd']; ex = m['ex']
    if SC.ws:
        TS = 0x4000000
        p(f"s_waitcnt vmcnt(0)\ns_memrealtime s[{r1}:{r1+1}]\ns_waitcnt lgkmcnt(0)")
        p(f"s_sub_u32 s{r1}, s{r1}, s{r0}\ns_lshl_b32 s{r1}, s{r1}, 20\ns_and_b32 s{r0}, s{r0}, 0xfffff\ns_or_b32 s{r0}, s{r0}, s{r1}")
        p(f"""s_cmp_eq_u32 {idr}, 0
s_cbranch_scc0 L_{name}_dend
s_mov_b64 exec, -1
v_cmp_eq_u32 vcc, 0, v0
s_and_saveexec_b64 s[{ex}:{ex+1}], vcc
s_cbranch_execz L_{name}_dend
s_bfe_u32 s{r1}, s{m['ptr']}, 0x40009
s_lshl_b32 s{r1}, s{r1}, 2
s_add_u32 s{r1}, s{r1}, {TS}
v_mov_b32 v5, s{r0}
v_mov_b32 v6, 0
buffer_store_dword v5, v6, s[8:11], s{r1} offen""")
        if name == 'd2':
            p(f"""s_waitcnt vmcnt(0)
s_mov_b64 exec, 0xffff
v_lshlrev_b32 v6, 2, v0
s_bfe_u32 s{r1}, s{m['ptr']}, 0x40009
s_add_u32 s{r1}, s{r1}, 8
v_add_u32 v7, s{r1}, v0
v_and_b32 v7, 15, v7
v_lshlrev_b32 v7, 2, v7
s_mov_b32 s{r1}, {TS}
buffer_load_dword v5, v7, s[8:11], s{r1} offen sc1
s_sub_u32 s{d}, s{m['ptr']}, 4096
s_subb_u32 s{d+1}, s{m['ptr']+1}, 0
s_mov_b32 s{d+2}, 256
s_mov_b32 s{d+3}, 0x20000
s_waitcnt vmcnt(0)
buffer_store_dword v5, v6, s[{d}:{d+3}], 0 offen""")
        p(f"L_{name}_dend:")
        return
    p(f"s_waitcnt vmcnt(0)\ns_memtime s[{t+2*n}:{t+1+2*n}]\ns_memrealtime s[{r1}:{r1+1}]\ns_waitcnt lgkmcnt(0)")
    p(f"s_sub_u32 s{r1}, s{r1}, s{r0}\ns_lshl_b32 s{r1}, s{r1}, 20\ns_and_b32 s{r0}, s{r0}, 0xfffff\ns_or_b32 s{r0}, s{r0}, s{r1}")
    for i in range(1, n+1): p(f"s_sub_u32 s{t+2*i}, s{t+2*i}, s{t}")
    p(f"""s_and_b32 s{r1}, {idr}, {stride-1}
s_cmp_eq_u32 s{r1}, 0
s_cbranch_scc0 L_{name}_dend
s_mov_b32 s{d}, s{m['ptr']}
s_mov_b32 s{d+1}, s{m['ptr']+1}
s_mov_b32 s{d+2}, 256
s_mov_b32 s{d+3}, 0x20000
s_lshr_b32 s{r1}, {idr}, {stride.bit_length()-1}
s_lshl_b32 s{r1}, s{r1}, 5
s_mov_b64 exec, -1
v_mov_b32 v6, s{r1}
v_cmp_eq_u32 vcc, {wave*64}, v0
s_and_saveexec_b64 s[{ex}:{ex+1}], vcc
s_cbranch_execz L_{name}_dend
v_mov_b32 v5, s{r0}
buffer_store_dword v5, v6, s[{d}:{d+3}], 0 offen""")
    for i in range(1, n+1):
        p(f"v_mov_b32 v5, s{t+2*i}\nbuffer_store_dword v5, v6, s[{d}:{d+3}], 0 offen offset:{4*i}")
    p(f"L_{name}_dend:")


def prefetch(regions, q, vlane, va, vd, st=60):
    L = [f"v_lshlrev_b32 v{va}, 7, v{vlane}"]
    for ri, (base, n) in enumerate(regions):
        L.append(f"s_mul_i32 s{st}, s{q}, {n*128}")
        L.append(f"s_add_u32 s{st}, s{st}, {base}")
        if n < 64:
            L.append(f"s_mov_b32 exec_lo, {hex((1 << min(n, 32)) - 1)}")
            L.append(f"s_mov_b32 exec_hi, {hex((1 << max(n - 32, 0)) - 1)}")
        L.append(f"buffer_load_dword v{vd+ri}, v{va}, s[8:11], s{st} offen")
    L.append("s_mov_b64 exec, -1")
    return L
```

```python
import re

def _expand(tok):
    tok = tok.strip()
    tok = re.sub(r'^-', '', tok)
    m = re.match(r'^(?:abs\(|\|)(.*?)(?:\)|\|)$', tok)
    if m: tok = m.group(1)
    m = re.match(r'^([vsa])\[(\d+):(\d+)\]$', tok)
    if m: return [f"{m.group(1)}{i}" for i in range(int(m.group(2)), int(m.group(3)) + 1)]
    m = re.match(r'^([vsa])(\d+)$', tok)
    if m: return [tok]
    if tok in ('vcc', 'exec'): return [tok]
    if tok in ('vcc_lo', 'vcc_hi'): return ['vcc']
    if tok in ('exec_lo', 'exec_hi'): return ['exec']
    if tok == 'm0': return ['m0']
    return []

TRANS = ('v_exp_f32', 'v_log_f32', 'v_rcp_f32', 'v_rsq_f32', 'v_sqrt_f32', 'v_sin_f32', 'v_cos_f32', 'v_rcp_iflag_f32')

class I:
    __slots__ = ('text', 'op', 'kind', 'w', 'r', 'tag', 'needs', 'srcC', 'passes', 'isdma', 'wide', 'sdata')
    def __init__(self, text, tag=None, needs=()):
        self.text = text.strip(); self.tag = tag; self.needs = list(needs)
        self.srcC = []; self.passes = 0; self.isdma = False; self.wide = False; self.sdata = []
        t = self.text.split(';')[0].strip()
        if t.endswith(':') or t == '' or t.startswith('.'):
            self.op = 'label' if t.endswith(':') else 'dir'; self.kind = self.op; self.w = []; self.r = []; return
        parts = t.split(None, 1)
        self.op = op = re.sub(r'_(e32|e64|dpp|sdwa)$', '', parts[0])
        rest = parts[1] if len(parts) > 1 else ''
        ops = [x.strip() for x in re.split(r',(?![^\[]*\])', rest)]
        mods = ''
        if ops:
            lp = ops[-1].split(None, 1)
            if lp:
                ops[-1] = lp[0]
                mods = lp[1] if len(lp) > 1 else ''
        E = lambda i: _expand(ops[i]) if i < len(ops) else []
        allr = lambda a: [x for i in range(a, len(ops)) for x in E(i)]
        w, r = [], []
        if op.startswith('v_mfma'):
            self.kind = 'mfma'; w = E(0); r = E(1) + E(2) + E(3); self.srcC = E(3)
            self.passes = 8 if '32x32' in op else 4
        elif op.startswith('ds_read') or op.startswith('ds_bpermute') or op.startswith('ds_swizzle') or op.startswith('ds_permute'):
            self.kind = 'dsr'; w = E(0); r = allr(1)
        elif op.startswith('ds_write') or op.startswith('ds_add'):
            self.kind = 'dsw'; r = allr(0)
        elif op.startswith('buffer_load') or op.startswith('global_load'):
            self.kind = 'vm'
            if ' lds' in (' ' + mods) or op.startswith('global_load_lds'):
                self.isdma = True; r = allr(0) + ['m0']
            else:
                w = E(0); r = allr(1)
                if 'd16' in op: r += E(0)
        elif op.startswith('buffer_store') or op.startswith('global_store') or op.startswith('buffer_atomic') or op.startswith('global_atomic'):
            self.kind = 'vm'; r = allr(0)
            if op.startswith('buffer_'): self.sdata = E(0)
            else: self.sdata = E(1)
            if 'x4' in op or 'x3' in op: self.wide = True
            if 'atomic' in op and 'sc0' in mods: w = E(0)
        elif op.startswith('buffer_wbl2') or op.startswith('buffer_inv'):
            self.kind = 'vm'
        elif op.startswith('s_load') or op.startswith('s_memtime') or op.startswith('s_memrealtime') or op.startswith('s_buffer_load'):
            self.kind = 'smem'; w = E(0); r = allr(1)
        elif op in ('s_waitcnt', 's_barrier', 's_nop', 's_setprio', 's_endpgm', 's_sleep', 's_branch') or op.startswith('s_cbranch'):
            self.kind = 'ctl'
            if 'scc' in op: r = ['scc']
            if 'vcc' in op: r = ['vcc']
            if 'exec' in op: r = ['exec']
        elif op.startswith('s_cmp') or op.startswith('s_bitcmp'):
            self.kind = 'salu'; w = ['scc']; r = allr(0)
        elif op.startswith('s_'):
            self.kind = 'salu'; w = E(0); r = allr(1)
            if 'saveexec' in op: w += ['exec']; r += ['exec']
            if op in ('s_addc_u32', 's_subb_u32', 's_cselect_b32', 's_cselect_b64'): r += ['scc']
            if op in ('s_addk_i32', 's_mulk_i32'): r += E(0)
            if not op.startswith('s_mov') and not op.startswith('s_mul') and not op.startswith('s_cselect') and not op.startswith('s_getreg'): w += ['scc']
        elif op.startswith('v_'):
            self.kind = 'trans' if op in TRANS else 'valu'
            if op.startswith('v_cmp'):
                w = E(0); r = allr(1)
                if op.startswith('v_cmpx'): w += ['exec']
            elif op in ('v_add_co_u32', 'v_sub_co_u32', 'v_addc_co_u32', 'v_subb_co_u32'):
                w = E(0) + E(1); r = allr(2)
            elif op.startswith('v_permlane') and 'swap' in op:
                w = E(0) + E(1); r = E(0) + E(1)
            else:
                w = E(0); r = allr(1)
                if op.startswith('v_fmac') or op.startswith('v_pk_fmac') or op in ('v_writelane_b32',) or op.startswith('v_dot2c'): r += E(0)
                if ('row_' in mods or 'quad_perm' in mods or 'wave_' in mods or 'bank_mask' in mods): self.kind = 'dpp'; r += E(0)
                if 'dst_sel' in mods or 'op_sel' in mods: r += E(0)
        else:
            raise ValueError("unknown op " + text)
        self.w = w; self.r = r
    def states(self):
        if self.op == 's_nop':
            return int(self.text.split()[1], 0) + 1
        if self.kind in ('label', 'dir'): return 0
        return 1
    def isvalu(self): return self.kind in ('valu', 'trans', 'dpp')

class Prog:
    def __init__(self):
        self.ins = []
    def add(self, text, tag=None, needs=()):
        for line in text.split('\n'):
            if line.strip(): self.ins.append(I(line, tag, needs))
        return self
    def __call__(self, text, tag=None, needs=()): return self.add(text, tag, needs)
    def ext(self, lst):
        for x in lst:
            if isinstance(x, I): self.ins.append(x)
            else: self.add(x)
    def resolve_waits(self, check_only=False):
        out = []
        vm = []
        lg = []
        def need_vm(pred):
            idx = -1
            for k, o in enumerate(vm):
                if pred(o): idx = k
            return idx
        for ins in self.ins:
            if ins.text.endswith('; @'):
                ins.text = ins.text[:-3].rstrip(); out.append(ins); continue
            if ins.op == 's_waitcnt':
                m = re.search(r'vmcnt\((\d+)\)', ins.text)
                if m:
                    n = int(m.group(1));
                    if len(vm) > n: vm = vm[len(vm) - n:] if n else []
                m = re.search(r'lgkmcnt\((\d+)\)', ins.text)
                if m:
                    n = int(m.group(1))
                    if any(o.kind == 'smem' for o in lg):
                        if n == 0: lg = []
                    elif len(lg) > n: lg = lg[len(lg) - n:] if n else []
                out.append(ins); continue
            touched = set(ins.r) | set(ins.w)
            iv = -1; il = -1
            for k, o in enumerate(vm):
                if (set(o.w) & touched) or (o.tag is not None and o.tag in ins.needs): iv = k
            for k, o in enumerate(lg):
                if (set(o.w) & touched) or (o.tag is not None and o.tag in ins.needs): il = k
            parts = []
            if iv >= 0:
                n = len(vm) - 1 - iv
                assert n <= 63
                parts.append(f"vmcnt({n})"); vm = vm[iv + 1:]
            if il >= 0:
                if any(o.kind == 'smem' for o in lg):
                    parts.append("lgkmcnt(0)"); lg = []
                else:
                    n = len(lg) - 1 - il
                    n = min(n, 15)
                    parts.append(f"lgkmcnt({n})"); lg = lg[len(lg) - n:] if n else []
            if parts: out.append(I("s_waitcnt " + " ".join(parts)))
            out.append(ins)
            if ins.kind == 'vm':
                vm.append(ins)
                assert len(vm) <= 63, "too many outstanding vmem"
            elif ins.kind in ('dsr', 'dsw', 'smem'): lg.append(ins)
        self.ins = out
        return self
    def pad_hazards(self):
        out = []
        def dist_back(pred, maxd):
            d = 0
            for o in reversed(out):
                if pred(o): return d
                d += o.states()
                if d >= maxd: return None
            return None
        for ins in self.ins:
            need = 0
            R = set(ins.r); W = set(ins.w)
            def req(pred, n):
                nonlocal need
                d = dist_back(pred, n)
                if d is not None and n - d > need: need = n - d
            vr = {x for x in R if x[0] in 'va' and x not in ('vcc',)}
            vw = {x for x in W if x[0] in 'va' and x not in ('vcc',)}
            sr = {x for x in R if x[0] == 's' and x != 'scc'} | ({'vcc'} & R)
            if ins.kind == 'mfma':
                req(lambda o: o.isvalu() and set(o.w) & vr, 2)
                ab = set(ins.r) - set(ins.srcC) if set(ins.srcC) != set(ins.r) else set(ins.r)
                abr = set(_ab(ins))
                for p, n in ((4, 8), (8, 12)):
                    req(lambda o, p=p: o.kind == 'mfma' and o.passes == p and set(o.w) & abr, n)
                for p, n in ((4, 6), (8, 10)):
                    req(lambda o, p=p: o.kind == 'mfma' and o.passes == p and set(o.w) & set(ins.srcC) and not (o.w == ins.srcC and o.passes == ins.passes), n)
                    req(lambda o, p=p: o.kind == 'mfma' and o.passes == p and set(o.w) & set(ins.w) and not (o.w == ins.srcC and o.passes == ins.passes), n)
                req(lambda o: o.isvalu() and 'exec' in o.w, 4)
            elif ins.isvalu() or ins.kind in ('vm', 'dsr', 'dsw'):
                for p, n in ((4, 8), (8, 12)):
                    req(lambda o, p=p: o.kind == 'mfma' and o.passes == p and set(o.w) & (vr | vw), n)
                if ins.isvalu() or ins.kind in ('vm', 'dsr'):
                    for p, n in ((4, 3), (8, 7)):
                        req(lambda o, p=p: o.kind == 'mfma' and o.passes == p and set(o.srcC) & vw, n)
            if ins.isvalu() or ins.kind in ('vm', 'dsw', 'mfma'):
                req(lambda o: o.op.startswith('v_dot') and o.op != ins.op and set(o.w) & (vr | vw), 3)
            if ins.isvalu():
                if ins.kind != 'trans': req(lambda o: o.kind == 'trans' and set(o.w) & vr, 1)
                req(lambda o: o.isvalu() and set(o.w) & sr, 2)
                req(lambda o: o.kind == 'vm' and o.wide and set(o.sdata) & vw, 2)
                if ins.kind == 'dpp':
                    req(lambda o: (o.isvalu() or o.kind=='mfma') and set(o.w) & vr, 2)
                    req(lambda o: o.isvalu() and 'exec' in o.w, 5)
                if ins.op.startswith('v_permlane'):
                    req(lambda o: o.isvalu() and set(o.w) & vr, 2)
                    req(lambda o: o.isvalu() and 'exec' in o.w, 4)
                if ins.op in ('v_readlane_b32', 'v_readfirstlane_b32'):
                    req(lambda o: o.isvalu() and set(o.w) & vr, 1)
                    req(lambda o: o.isvalu() and 'exec' in o.w, 4)
                    req(lambda o: o.isvalu() and set(o.w) & sr, 4)
                if ins.op == 'v_div_fmas_f32': req(lambda o: o.isvalu() and 'vcc' in o.w, 4)
                req(lambda o: o.isvalu() and ('op_sel' in o.text or 'dst_sel' in o.text) and set(o.w) & (vr | vw), 1)
            if ins.kind in ('dsr',) or (ins.kind == 'vm' and vw):
                req(lambda o: o.kind == 'vm' and o.wide and set(o.sdata) & vw, 1)
            if ins.kind == 'vm':
                req(lambda o: o.isvalu() and set(o.w) & sr, 5)
                if ins.isdma: req(lambda o: o.kind == 'salu' and 'm0' in o.w, 1)
            if ins.kind == 'salu' or ins.kind == 'smem' or ins.kind == 'ctl':
                if ins.op in ('s_cbranch_vccz', 's_cbranch_vccnz'): req(lambda o: o.isvalu() and 'vcc' in o.w, 5)
                if ins.op in ('s_cbranch_execz', 's_cbranch_execnz'): req(lambda o: o.isvalu() and 'exec' in o.w, 5)
                req(lambda o: o.isvalu() and set(o.w) & sr, 1)
            while need > 0:
                k = min(need, 16)
                out.append(I(f"s_nop {k-1}")); need -= k
            out.append(ins)
        self.ins = out
        return self
    def text(self):
        return "".join(("" if i.kind == 'label' else "  ") + i.text + "\n" for i in self.ins)
    def sizes(self):
        import subprocess
        lines = [i.text for i in self.ins]
        isbr = lambda i: i.op == 's_branch' or i.op.startswith('s_cbranch')
        src = "\n".join("s_nop 0" if (i.kind in ('label', 'dir') or isbr(i)) else i.text for i in self.ins) + "\n"
        r = subprocess.run(["llvm-mc", "-triple=amdgcn-amd-amdhsa", "-mcpu=gfx950", "-show-encoding"], input=src, capture_output=True, text=True)
        assert r.returncode == 0, r.stderr
        enc = [l.split("encoding:")[1].count("0x") for l in r.stdout.split("\n") if "encoding:" in l]
        assert len(enc) == len(self.ins)
        return [0 if i.kind in ('label', 'dir') else e for i, e in zip(self.ins, enc)]
    def align8(self, start=0, nop=False):
        sz = self.sizes()
        out = []; run = []; pos = start; nfix = nmiss = 0
        def widen(i):
            t = i.text
            if i.kind in ('valu', 'trans') and not re.search(r'_(e64|dpp|sdwa)\b', t) and not i.op.startswith(('v_readfirstlane', 'v_accvgpr', 'v_permlane', 'v_dot2c', 'v_fmaak', 'v_fmamk')):
                return I(re.sub(r'^(\S+?)(_e32)?(\s)', r'\1_e64\3', t, count=1), i.tag, i.needs)
            m = re.match(r's_addk_i32 (s\d+), (\d+)$', t)
            if m and int(m.group(2)) > 64: return I(f"s_add_u32 {m.group(1)}, {m.group(1)}, {m.group(2)}", i.tag, i.needs)
            return None
        for i, n in zip(self.ins, sz):
            if n == 8 and pos % 8 == 4:
                for k in reversed(run):
                    w = widen(out[k])
                    if w is not None:
                        out[k] = w; pos += 4; nfix += 1; break
                else:
                    if nop: out.append(I("s_nop 0")); pos += 4
                    nmiss += 1
            if n == 4: run.append(len(out))
            elif n == 8: run = []
            out.append(i); pos += n
        self.ins = out
        Prog.stats = (nfix, nmiss, pos)
        return self
    def finish(self, align=None):
        self.resolve_waits(); self.pad_hazards()
        if align is not None: self.align8(*align)
        return self.text()

def _ab(ins):
    t = ins.text.split(';')[0].split(None, 1)[1]
    ops = [x.strip() for x in re.split(r',(?![^\[]*\])', t)]
    return _expand(ops[1]) + _expand(ops[2])

def _wt(x):
    if isinstance(x, list): return sum(_wt(y) for y in x)
    i = I(x) if isinstance(x, str) else x
    return 2 if i.kind == 'trans' else 1

def interleave(main, fill, start=0, end=None, cost=None):
    n = len(main); end = n if end is None else end
    gaps = end - start
    w = [_wt(x) for x in fill]
    tot = sum(w); out = []; k = 0; acc = 0
    def emit(x):
        if isinstance(x, list): out.extend(x)
        else: out.append(x)
    for g in range(n):
        out += main[g]
        if start <= g < end:
            target = tot * (g - start + 1) / gaps
            while k < len(fill) and acc + w[k] / 2 <= target:
                emit(fill[k]); acc += w[k]; k += 1
    for x in fill[k:]: emit(x)
    return out

HDR = '.amdgcn_target "amdgcn-amd-amdhsa--gfx950"\n.text\n'
def kernel(name, body, vgpr=256, sgpr=102, agpr=0):
    acc = (vgpr + 3) // 4 * 4
    return f""".text
.globl {name}
.p2align 8
.type {name},@function
{name}:
{body}.section .rodata,"a"
.p2align 6
.amdhsa_kernel {name}
  .amdhsa_next_free_vgpr {acc + agpr if agpr else vgpr}
  .amdhsa_next_free_sgpr {sgpr}
  .amdhsa_accum_offset {acc}
  .amdhsa_group_segment_fixed_size 0
  .amdhsa_kernarg_size 88
  .amdhsa_user_sgpr_count 2
  .amdhsa_user_sgpr_kernarg_segment_ptr 1
  .amdhsa_system_sgpr_workgroup_id_x 1
.end_amdhsa_kernel
"""


class SC:
    m = dict(ptr=68, t=70, r0=90, r1=92, srd=96, ex=94)
    ws = False
    nl = 9
    amp = None
BIG = dict(ptr=68, t=70, r0=90, r1=92, srd=96, ex=94)
SMALL = dict(ptr=64, t=66, r0=76, r1=78, srd=12, ex=26)
def stamp_init(p):
    m = SC.m
    p(f"s_load_dwordx2 s[{m['ptr']}:{m['ptr']+1}], s[0:1], 72\ns_memtime s[{m['t']}:{m['t']+1}]\ns_memrealtime s[{m['r0']}:{m['r0']+1}]")
def stamp(i):
    t = SC.m['t']
    return f"s_memtime s[{t+2*i}:{t+1+2*i}]"
def stamp_end(p, n, name, stride=32, wave=0, idr='s2'):
    m = SC.m; t = m['t']; r0 = m['r0']; r1 = m['r1']; d = m['srd']; ex = m['ex']
    if SC.ws:
        TS = 0x4000000
        p(f"s_waitcnt vmcnt(0)\ns_memrealtime s[{r1}:{r1+1}]\ns_waitcnt lgkmcnt(0)")
        p(f"s_sub_u32 s{r1}, s{r1}, s{r0}\ns_lshl_b32 s{r1}, s{r1}, 20\ns_and_b32 s{r0}, s{r0}, 0xfffff\ns_or_b32 s{r0}, s{r0}, s{r1}")
        p(f"""s_cmp_eq_u32 {idr}, 0
s_cbranch_scc0 L_{name}_dend
s_mov_b64 exec, -1
v_cmp_eq_u32 vcc, 0, v0
s_and_saveexec_b64 s[{ex}:{ex+1}], vcc
s_cbranch_execz L_{name}_dend
s_bfe_u32 s{r1}, s{m['ptr']}, 0x40009
s_lshl_b32 s{r1}, s{r1}, 2
s_add_u32 s{r1}, s{r1}, {TS}
v_mov_b32 v5, s{r0}
v_mov_b32 v6, 0
buffer_store_dword v5, v6, s[8:11], s{r1} offen""")
        if name == 'd2':
            p(f"""s_waitcnt vmcnt(0)
s_mov_b64 exec, 0xffff
v_lshlrev_b32 v6, 2, v0
s_bfe_u32 s{r1}, s{m['ptr']}, 0x40009
s_add_u32 s{r1}, s{r1}, {17 - SC.nl}
v_add_u32 v7, s{r1}, v0
v_and_b32 v7, 15, v7
v_lshlrev_b32 v7, 2, v7
s_mov_b32 s{r1}, {TS}
buffer_load_dword v5, v7, s[8:11], s{r1} offen sc1
s_mov_b32 s{d}, s{m['ptr']}
s_mov_b32 s{d+1}, s{m['ptr']+1}
s_mov_b32 s{d+2}, 256
s_mov_b32 s{d+3}, 0x20000
s_waitcnt vmcnt(0)
buffer_store_dword v5, v6, s[{d}:{d+3}], 0 offen""")
            if SC.amp is not None:
                i0, i1, wd, K = SC.amp
                p(f"""v_readlane_b32 s20, v5, {i0}
v_readlane_b32 s21, v5, {i1}
s_lshr_b32 s22, s21, 20
s_mul_i32 s22, s22, {wd}
s_add_u32 s21, s21, s22
s_sub_u32 s21, s21, s20
s_and_b32 s21, s21, 0xfffff
s_min_u32 s21, s21, 20000
s_mul_i32 s21, s21, {K}
s_memrealtime s[22:23]
s_waitcnt lgkmcnt(0)
L_spin:
s_sleep 8
s_memrealtime s[24:25]
s_waitcnt lgkmcnt(0)
s_sub_u32 s24, s24, s22
s_cmp_lt_u32 s24, s21
s_cbranch_scc1 L_spin""")
        p(f"L_{name}_dend:")
        return
    p(f"s_waitcnt vmcnt(0)\ns_memtime s[{t+2*n}:{t+1+2*n}]\ns_memrealtime s[{r1}:{r1+1}]\ns_waitcnt lgkmcnt(0)")
    p(f"s_sub_u32 s{r1}, s{r1}, s{r0}\ns_lshl_b32 s{r1}, s{r1}, 20\ns_and_b32 s{r0}, s{r0}, 0xfffff\ns_or_b32 s{r0}, s{r0}, s{r1}")
    for i in range(1, n+1): p(f"s_sub_u32 s{t+2*i}, s{t+2*i}, s{t}")
    p(f"""s_and_b32 s{r1}, {idr}, {stride-1}
s_cmp_eq_u32 s{r1}, 0
s_cbranch_scc0 L_{name}_dend
s_mov_b32 s{d}, s{m['ptr']}
s_mov_b32 s{d+1}, s{m['ptr']+1}
s_mov_b32 s{d+2}, 256
s_mov_b32 s{d+3}, 0x20000
s_lshr_b32 s{r1}, {idr}, {stride.bit_length()-1}
s_lshl_b32 s{r1}, s{r1}, 5
s_mov_b64 exec, -1
v_mov_b32 v6, s{r1}
v_cmp_eq_u32 vcc, {wave*64}, v0
s_and_saveexec_b64 s[{ex}:{ex+1}], vcc
s_cbranch_execz L_{name}_dend
v_mov_b32 v5, s{r0}
buffer_store_dword v5, v6, s[{d}:{d+3}], 0 offen""")
    for i in range(1, n+1):
        p(f"v_mov_b32 v5, s{t+2*i}\nbuffer_store_dword v5, v6, s[{d}:{d+3}], 0 offen offset:{4*i}")
    p(f"L_{name}_dend:")


def prefetch(regions, q, vlane, va, vd, st=60):
    L = [f"v_lshlrev_b32 v{va}, 7, v{vlane}"]
    for ri, (base, n) in enumerate(regions):
        L.append(f"s_mul_i32 s{st}, s{q}, {n*128}")
        L.append(f"s_add_u32 s{st}, s{st}, {base}")
        if n < 64:
            L.append(f"s_mov_b32 exec_lo, {hex((1 << min(n, 32)) - 1)}")
            L.append(f"s_mov_b32 exec_hi, {hex((1 << max(n - 32, 0)) - 1)}")
        L.append(f"buffer_load_dword v{vd+ri}, v{va}, s[8:11], s{st} offen")
    L.append("s_mov_b64 exec, -1")
    return L
```

```python
import sys
sys.path.insert(0, "gen")
from asmlib import *
import k0, ka, kb, kc, kc3, kd
HEAD = open("interleave_layers__linear_attn_block__mixer_channel_mlp__prompt.s.ref").read().split("; Override")[0]
def build(**kw):
    D = kw.get('dbg', False)
    SC.ws = kw.get('tl', False); SC.full = kw.get('full', False)
    FZ = kw.get('fuse', False)
    order = list(kw.get('order', range(9) if not FZ else ([0, 1, 2, 4, 5, 6, 8] if FZ == 1 else [0, 1, 2, 5, 6])))
    SC.nl = len(order); SC.amp = kw.get('amp')
    a0 = a1 = ka.a_kernel(dbg=D, kv2=FZ == 2, **kw.get('a', {}))
    if FZ == 2: a0, a1 = a0
    b = kb.b_kernel(dbg=D, **kw.get('b', {})); c = kc3.c3_kernel(dbg=D, **kw['c3']) if 'c3' in kw else kc.c_kernel(dbg=D, **kw.get('c', {}))
    if FZ:
        sent = kw.get('sent', False)
        cz = kc.c_kernel(dbg=D, fused=True, dz=FZ == 2, ds=kd.d_sent(dbg=D, **kw.get('d', {})) if sent else None, **kw.get('c', {}))
        b = kb.b_kernel(dbg=D, cz=cz, dz=("\n" if sent else (kd.d_cnt2 if kw.get('cnt2') else kd.d_part)(dbg=D, **kw.get('d', {}))) if FZ == 2 else None, **kw.get('b', {})); c = ("", "")
    b1 = b
    if FZ == 2:
        b, b1 = b
        kw['d'] = {}
    d0 = k0.d_kernel(0, dbg=D, zkv=FZ, **kw.get('d', {})); d1 = k0.d_kernel(1, dbg=D, **kw.get('d', {}))
    k = k0.k0_kernel(dbg=D, **kw.get('k', {}))
    if FZ == 2: d0 = d1 = ("", "")
    ks = [k, a0, b, c, d0, a1, b1, c, d1]
    ex = []
    if 9 in order:
        p = Prog()
        p("s_load_dwordx2 s[4:5], s[0:1], 80")
        if D: stamp_init(p)
        p("s_waitcnt lgkmcnt(0)")
        k0.srd(p, 8, 4, 0x10000000)
        if D: stamp_end(p, 1, 'e')
        p("s_endpgm")
        ex = [(kernel("e_kernel", p.finish(), vgpr=16), "; @launch kernel=e_kernel grid=(256,1,1) block=(256,1,1) lds=0\n")]
        ks += ex
    return HEAD + "".join(ks[i][1] for i in order) + HDR + "".join(x[0] for x in [k, a0, b, c, d0, d1] + ex)
if __name__ == "__main__":
    out = sys.argv[1] if len(sys.argv) > 1 else "interleave_layers__linear_attn_block__mixer_channel_mlp__prompt.s"
    s = build(dbg=len(sys.argv) > 2)
    open(out, "w").write(s)
    print(out, len(s))
```

```python
from asmlib import *
from layout import *

def srd(p, s, lo, size):
    p(f"s_mov_b32 s{s}, s{lo}\ns_mov_b32 s{s+1}, s{lo+1}\ns_mov_b32 s{s+2}, {size}\ns_mov_b32 s{s+3}, 0x20000")

def unpack8(p, src, dst):
    for i in range(4):
        p(f"v_lshlrev_b32 v{dst+2*i}, 16, v{src+i}")
        p(f"v_and_b32 v{dst+2*i+1}, 0xffff0000, v{src+i}")

def row_body(mode, side=None, pf=True, dbg=False, sf="", ssf="", lf="", zkv=False):
    ldsbase = 27648 if mode == 'k0' else 0
    p = Prog()
    p("s_load_dwordx2 s[4:5], s[0:1], 80")
    if dbg: stamp_init(p)
    if mode == 'k0': p("s_load_dwordx2 s[6:7], s[0:1], 0")
    else: p("s_load_dwordx2 s[6:7], s[0:1], 56")
    if mode == 'd2': p("s_load_dwordx2 s[20:21], s[0:1], 64")
    if side: p(f"s_load_dwordx2 s[20:21], s[0:1], {8 if side == 'wq' else 16}")
    p("""v_lshrrev_b32 v1, 3, v0
v_and_b32 v2, 7, v0
v_lshlrev_b32 v3, 9, v1
v_lshl_add_u32 v3, v2, 4, v3
v_lshlrev_b32 v4, 4, v1
v_mul_u32_u24 v5, 1152, v2
v_add_u32 v5, v5, v4
s_and_b32 s16, s2, 7
s_lshl_b32 s16, s16, 5
s_lshr_b32 s17, s2, 3
s_add_u32 s16, s16, s17
s_lshr_b32 s17, s16, 2
s_mul_i32 s18, s17, 36864
s_and_b32 s19, s16, 3
s_lshl_b32 s22, s19, 7
s_add_u32 s18, s18, s22
s_mul_i32 s23, s16, 9216""")
    if mode == 'k0' or zkv:
        p("v_lshrrev_b32 v56, 6, v0\nv_and_b32 v57, 63, v0\nv_readfirstlane_b32 s36, v56")
    if side:
        RS = 3456 if side == 'wq' else 1152
        p(f"""v_lshrrev_b32 v58, 2, v57
v_mul_u32_u24 v58, {RS}, v58
v_and_b32 v59, 3, v57
v_lshl_add_u32 v58, v59, 4, v58
s_mul_i32 s39, s36, 3072""")
        if side == 'wq':
            p(f"""s_and_b32 s42, s2, 3
s_mul_i32 s42, s42, 9
s_add_u32 s42, s42, s36
s_lshr_b32 s43, s2, 2
s_mul_i32 s37, s42, {16*3456}
s_mul_i32 s44, s43, 36
s_add_u32 s37, s37, s44
s_add_u32 s40, s44, s42
s_lshl_b32 s40, s40, 11
s_add_u32 s40, s40, {WQF}
s_add_u32 s41, s40, 1024""")
        else:
            p(f"""s_sub_u32 s42, s2, 128
s_mul_i32 s43, s42, 7282
s_lshr_b32 s43, s43, 16
s_mul_i32 s44, s43, 9
s_sub_u32 s42, s42, s44
s_add_u32 s44, s44, s36
s_mul_i32 s37, s44, {16*1152}
s_lshl_b32 s45, s42, 7
s_add_u32 s37, s37, s45
s_mul_i32 s40, s42, 72
s_add_u32 s40, s40, s44
s_lshl_b32 s40, s40, 10
s_add_u32 s40, s40, {WOF}
s_add_u32 s41, s40, {36*1024}""")
    p("s_waitcnt lgkmcnt(0)")
    srd(p, 8, 4, WSSZ)
    srd(p, 12, 6, ACT if mode == 'k0' else 1152)
    X = 16
    if mode == 'k0':
        p(f"buffer_load_dwordx4 v[8:11], v5, s[12:15], s23 offen {lf}")
        if side:
            srd(p, 32, 20, 576*1728*2 if side == 'wq' else 576*576*2)
            for u in range(3 if side == 'wq' else 2):
                p(f"s_add_u32 m0, s39, {u*1024}")
                p("buffer_load_dwordx4 v58, s[32:35], s37 offen lds", tag='dma')
                p(f"s_add_u32 s37, s37, {1152 if side == 'wq' else 64}")
            p("""v_bfe_u32 v56, v57, 4, 1
v_lshl_add_u32 v56, v56, 2, v59
v_bfe_u32 v58, v57, 2, 2
v_lshrrev_b32 v59, 5, v57""")
            if side == 'wq':
                p("""v_lshl_add_u32 v58, v59, 3, v58
v_lshlrev_b32 v58, 6, v58
v_add_u32 v58, s39, v58
v_lshlrev_b32 v59, 3, v56
v_add_u32 v60, 1024, v59
v_subrev_u32 v61, 40, v59
v_cmp_gt_u32 vcc, 5, v56
v_cndmask_b32 v60, v61, v60, vcc
v_mov_b32 v61, 32
v_cmp_eq_u32 vcc, 7, v56
v_cndmask_b32 v60, v60, v61, vcc
v_add_u32 v62, 2048, v59
v_subrev_u32 v61, 32, v59
v_cmp_gt_u32 vcc, 6, v56
v_cndmask_b32 v62, v61, v62, vcc
v_add_u32 v60, v60, v58
v_add_u32 v62, v62, v58""")
                trs = [(60, 0), (60, 256), (62, 0), (62, 256)]
            else:
                p("""v_lshrrev_b32 v60, 1, v56
v_add_u32 v60, s43, v60
v_and_b32 v60, 3, v60
v_lshlrev_b32 v60, 4, v60
v_and_b32 v56, 1, v56
v_lshl_add_u32 v56, v56, 3, v60
s_mul_i32 s44, s36, 18
s_cmp_lt_u32 s36, 8
s_cselect_b32 s44, s44, 16
s_cselect_b32 s45, 8, 72
s_cselect_b32 s46, 4, 18
s_cselect_b32 s47, 2, 36
v_mul_u32_u24 v59, s46, v59
v_lshrrev_b32 v60, 1, v58
v_mul_u32_u24 v60, s47, v60
v_and_b32 v58, 1, v58
v_add3_u32 v58, v58, v59, v60
v_add_u32 v58, s44, v58
v_add_u32 v59, s45, v58""")
                for r, a in ((58, 60), (59, 62)):
                    p(f"""v_lshrrev_b32 v{a}, 4, v{r}
v_mul_u32_u24 v{a}, 3072, v{a}
v_and_b32 v{r}, 15, v{r}
v_lshl_add_u32 v{a}, v{r}, 6, v{a}
v_add_u32 v{a}, v{a}, v56""")
                trs = [(60, 0), (62, 0), (60, 1024), (62, 1024)]
        p(f"""s_add_u32 s24, s18, {XF}
buffer_store_dwordx4 v[8:11], v3, s[8:11], s24 offen {sf}""")
        unpack8(p, 8, X)
    else:
        p(f"""s_lshl_b32 s24, s17, 8
s_lshl_b32 s25, s19, 5
s_add_u32 s24, s24, s25
s_add_u32 s24, s24, {ST}
v_lshlrev_b32 v6, 2, v2
buffer_load_dword v24, v6, s[8:11], s24 offen
buffer_load_dword v25, v6, s[8:11], s24 offen offset:128""")
        for j in range(8):
            p(f"s_add_u32 s24, s18, {PART + j*ACT}")
            p(f"buffer_load_dwordx4 v[{32+4*j}:{35+4*j}], v3, s[8:11], s24 offen")
        p(f"s_add_u32 s24, s18, {X1F}")
        p("buffer_load_dwordx4 v[8:11], v3, s[8:11], s24 offen")
        p("buffer_load_dwordx4 v[12:15], v4, s[12:15], 0 offen")
        if pf and mode == 'd1':
            p(f"""v_lshrrev_b32 v30, 6, v0
v_and_b32 v31, 63, v0
v_readfirstlane_b32 s61, v30
s_lshr_b32 s62, s2, 3
s_mul_i32 s62, s62, 9
s_add_u32 s61, s61, s62
s_and_b32 s62, s2, 3
s_mul_i32 s62, s62, {8*73728}
s_add_u32 s62, s62, {WQF}""")
            p.ext(prefetch([('s62', 16)], 61, 31, 30, 31))
        if dbg: p(stamp(1))
        p("""v_mul_f32 v24, 0x3ae38e39, v24
v_mul_f32 v25, 0x3ae38e39, v25
v_fma_f32 v25, -v24, v24, v25
v_max_f32 v25, 0, v25
v_mov_b32 v26, 0x3f800054
v_mov_b32 v27, 0x2edbe6ff
v_fma_f32 v25, v25, v26, v27
v_rsq_f32 v25, v25""")
        unpack8(p, 32, X)
        for j in range(1, 8):
            for i in range(4):
                p(f"v_lshlrev_b32 v28, 16, v{32+4*j+i}")
                p(f"v_and_b32 v29, 0xffff0000, v{32+4*j+i}")
                p(f"v_add_f32 v{X+2*i}, v{X+2*i}, v28")
                p(f"v_add_f32 v{X+2*i+1}, v{X+2*i+1}, v29")
        if dbg: p(stamp(2))
        unpack8(p, 8, 32)
        unpack8(p, 12, 40)
        for i in range(8):
            p(f"v_fma_f32 v{X+i}, v{X+i}, v25, v{40+i}")
            p(f"v_add_f32 v{X+i}, v{X+i}, v{32+i}")
        for i in range(4): p(f"v_cvt_pk_bf16_f32 v{8+i}, v{X+2*i}, v{X+2*i+1}")
        if mode == 'd2':
            srd(p, 12, 20, ACT)
            p(f"buffer_store_dwordx4 v[8:11], v5, s[12:15], s23 offen {sf}")
            if dbg: p(stamp(3)); stamp_end(p, 4, mode)
            p("s_endpgm")
            return p.finish()
        p(f"s_add_u32 s24, s18, {XF}")
        p(f"buffer_store_dwordx4 v[8:11], v3, s[8:11], s24 offen {sf}")
        unpack8(p, 8, X)
    p(f"v_add_f32 v24, v{X}, v{X+1}")
    p(f"v_mul_f32 v25, v{X}, v{X}")
    for i in range(2, 8): p(f"v_add_f32 v24, v24, v{X+i}")
    for i in range(1, 8): p(f"v_fmac_f32 v25, v{X+i}, v{X+i}")
    p(f"""v_permlane32_swap_b32 v24, v25
v_add_f32 v24, v24, v25
v_mov_b32 v25, v24
v_permlane16_swap_b32 v24, v25
v_add_f32 v24, v24, v25
v_add_f32 v24, v24, v24 row_ror:8
v_lshrrev_b32 v26, 6, v0
v_bfe_u32 v27, v0, 5, 1
v_lshl_add_u32 v27, v2, 1, v27
v_mul_u32_u24 v27, 48, v27
v_lshl_add_u32 v27, v26, 2, v27
v_and_b32 v28, 24, v0
v_cmp_eq_u32 vcc, 0, v28
s_and_saveexec_b64 s[26:27], vcc
ds_write_b32 v27, v24 offset:{ldsbase}
s_mov_b64 exec, s[26:27]
v_mul_u32_u24 v27, 96, v2
s_waitcnt lgkmcnt(0)""")
    p("s_barrier", needs=['dma'] if side == 'wo' else [])
    p(f"""ds_read_b128 v[32:35], v27 offset:{ldsbase}
ds_read_b128 v[36:39], v27 offset:{ldsbase+16}
ds_read_b32 v40, v27 offset:{ldsbase+32}
ds_read_b128 v[44:47], v27 offset:{ldsbase+48}
ds_read_b128 v[48:51], v27 offset:{ldsbase+64}
ds_read_b32 v52, v27 offset:{ldsbase+80}""")
    for i in range(1, 9): p(f"v_add_f32 v32, v32, v{32+i}")
    for i in range(1, 9): p(f"v_add_f32 v44, v44, v{44+i}")
    p("""v_mul_f32 v32, 0x3ae38e39, v32
v_mul_f32 v44, 0x3ae38e39, v44
v_fma_f32 v44, -v32, v32, v44
v_max_f32 v44, 0, v44
v_add_f32 v44, 0x3727c5ac, v44
v_rsq_f32 v44, v44""")
    for i in range(8): p(f"v_sub_f32 v{X+i}, v{X+i}, v32")
    for i in range(8): p(f"v_mul_f32 v{X+i}, v{X+i}, v44")
    for i in range(4): p(f"v_cvt_pk_bf16_f32 v{12+i}, v{X+2*i}, v{X+2*i+1}")
    p(f"s_add_u32 s24, s18, {YF}")
    p(f"buffer_store_dwordx4 v[12:15], v3, s[8:11], s24 offen {sf}")
    if side:
        for k, (a, o) in enumerate(trs):
            p(f"ds_read_b64_tr_b16 v[{32+2*k}:{33+2*k}], v{a} offset:{o}", needs=['dma'])
        p("v_lshlrev_b32 v56, 4, v57")
        p(f"buffer_store_dwordx4 v[32:35], v56, s[8:11], s40 offen {ssf}")
        p(f"buffer_store_dwordx4 v[36:39], v56, s[8:11], s41 offen {ssf}")
    if mode == 'k0' or zkv:
        p(f"""s_mul_i32 s24, s2, 320
s_mul_i32 s25, s36, 36
s_add_u32 s24, s24, s25
s_add_u32 s24, s24, {KV}
v_mov_b32 v40, 0
v_and_b32 v41, 63, v0
v_lshlrev_b32 v41, 2, v41
s_mov_b64 exec, 0x1ff
buffer_store_dword v40, v41, s[8:11], s24 offen
s_mov_b64 exec, -1""")
    if dbg: p(stamp(3)); stamp_end(p, 4, mode + str(side))
    p("s_endpgm")
    return p.finish()

def side_body(ssf="sc1", dbg=False, X=(), lf=""):
    p = Prog()
    WB = WSN*1024
    p("""s_load_dwordx2 s[4:5], s[0:1], 80
s_load_dwordx2 s[6:7], s[0:1], 32
s_load_dwordx2 s[20:21], s[0:1], 48
s_load_dwordx2 s[22:23], s[0:1], 40""")
    if dbg: stamp_init(p)
    p(f"""v_lshrrev_b32 v1, 6, v0
v_and_b32 v2, 63, v0
v_readfirstlane_b32 s16, v1
v_bfe_u32 v5, v2, 2, 3
v_and_b32 v4, 3, v2
v_lshrrev_b32 v6, 5, v2
v_lshlrev_b32 v7, 6, v6
v_lshl_add_u32 v7, v4, 4, v7
v_mul_u32_u24 v3, 9216, v5
v_add_u32 v3, v3, v7
v_mul_u32_u24 v5, 1152, v5
v_add_u32 v5, v5, v7
v_lshlrev_b32 v7, 4, v2
s_and_b32 s17, s3, 7
s_bfe_u32 s18, s3, 0x20003
s_lshr_b32 s19, s3, 5
s_mul_i32 s24, s18, 9
s_add_u32 s24, s24, s16
s_mul_i32 s25, s24, {16*9216}
s_mul_i32 s26, s17, 1152
s_add_u32 s25, s25, s26
s_lshl_b32 s27, s19, 7
s_add_u32 s25, s25, s27
s_mul_i32 s26, s17, 36
s_add_u32 s26, s26, s24
s_mul_i32 s26, s26, {16*1152}
s_add_u32 s26, s26, s27
s_lshl_b32 s27, s16, 12
s_waitcnt lgkmcnt(0)""")
    srd(p, 12, 6, 576*4608*2); srd(p, 28, 20, 576*4608*2)
    for u in range(2):
        p(f"s_add_u32 m0, s27, {u*1024}")
        p("buffer_load_dwordx4 v3, s[12:15], s25 offen " + lf + " lds", tag='a')
        if u < 1: p(f"s_add_u32 s25, s25, {8*9216}")
    for u in range(2):
        p(f"s_add_u32 m0, s27, {2048 + u*1024}")
        p("buffer_load_dwordx4 v5, s[28:31], s26 offen " + lf + " lds", tag='b')
        if u < 1: p(f"s_add_u32 s26, s26, {8*1152}")
    srd(p, 8, 4, WSSZ); srd(p, 32, 22, 4608*2)
    p(f"""s_mul_i32 s36, s17, 18
s_lshl_b32 s37, s19, 1
s_add_u32 s36, s36, s37
s_lshl_b32 s36, s36, 6
v_lshlrev_b32 v40, 1, v2
buffer_load_ushort v43, v40, s[32:35], s36 offen
v_lshlrev_b32 v8, 3, v4
v_bfe_u32 v9, v2, 2, 2
v_lshl_add_u32 v8, v9, 6, v8
v_bfe_u32 v9, v2, 4, 1
v_lshl_add_u32 v8, v9, 5, v8
v_add_u32 v8, s27, v8
v_lshl_add_u32 v9, v6, 8, v8
v_lshl_add_u32 v8, v6, 10, v8
v_mov_b32 v10, 0x3f803f80
v_mov_b32 v11, 0
v_mov_b32 v12, 0
s_lshl_b32 s37, s17, 2
s_and_b32 s38, s19, 1
s_lshl_b32 s38, s38, 1
s_add_u32 s37, s37, s38
s_mul_i32 s37, s37, {WB}
s_add_u32 s37, s37, {WSTR}
s_lshr_b32 s38, s19, 1
s_add_u32 s41, s38, 91
s_add_u32 s42, s38, 90
s_add_u32 s43, s38, 163
s_cmp_lt_u32 s19, 4
s_cselect_b32 s39, 5, 4
s_cselect_b32 s40, s38, s41
s_cselect_b32 s42, s42, s43
s_cselect_b32 s44, 3, 2
s_lshl_b32 s44, s44, 10
s_cmp_eq_u32 s19, 8
s_cselect_b32 s39, 5, s39
s_cselect_b32 s40, 2, s40
s_cselect_b32 s42, 92, s42
s_cselect_b32 s61, {WB}, 0
s_add_u32 s62, s61, {WB}
s_add_u32 s63, s38, 1
s_and_b32 s63, s63, 3
s_lshl_b32 s63, s63, 4
s_add_u32 s63, s63, 265""")
    def dests(d0, beta):
        p(f"""s_lshl_b32 s50, s50, 10
s_add_u32 s50, s50, s37
s_cmp_eq_u32 s19, 8
s_cselect_b32 s52, s61, s{beta}
s_cselect_b32 s53, 0, s{beta}
s_mul_i32 s52, s52, s51
s_add_u32 s{d0}, s50, s52
s_add_u32 s50, s50, s62
s_add_u32 s50, s50, s53
s_sub_u32 s53, s50, s52
s_add_u32 s50, s50, s52
s_cmp_eq_u32 s19, 8
s_cselect_b32 s{d0+1}, s50, s53""")
    p(f"""s_lshr_b32 s56, s24, 1
s_and_b32 s51, s24, 1
s_mul_i32 s50, s56, s39
s_add_u32 s50, s50, s40""")
    dests(54, 44)
    p(f"""s_sub_u32 s57, s56, 8
s_cmp_lt_u32 s56, 8
s_cselect_b32 s50, s56, s57
s_mul_i32 s50, s50, 9
s_add_u32 s50, s50, 167
s_add_u32 s50, s50, s38
s_lshl_b32 s58, s57, 1
s_add_u32 s58, s58, s63
s_add_u32 s59, s57, 257
s_cmp_eq_u32 s19, 8
s_cselect_b32 s58, s59, s58
s_cmp_lt_u32 s57, 8
s_cselect_b32 s50, s58, s50
s_cselect_b32 s45, 1, 5
s_lshl_b32 s45, s45, 10""")
    dests(46, 45)
    p(f"""v_lshlrev_b32 v42, 2, v0
v_and_b32 v44, 31, v2
v_lshlrev_b32 v44, 4, v44
v_mul_u32_u24 v45, s62, v6
v_add_u32 v44, v44, v45
s_lshl_b32 s42, s42, 10
s_add_u32 s42, s42, s37
s_lshr_b32 s43, s18, 1
s_lshl_b32 s43, s43, 9
s_add_u32 s42, s42, s43
s_and_b32 s43, s18, 1
s_lshl_b32 s43, s43, 3
s_add_u32 s42, s42, s43
s_add_u32 s43, s42, s61
s_cmp_lt_u32 s18, 2
s_cselect_b32 s48, 0xffff, 0""")
    if dbg: p(stamp(1))
    for tt in range(2):
        b = 16 + 4*tt
        p(f"ds_read_b64_tr_b16 v[{b}:{b+1}], v8 offset:{tt*512}", needs=['a'])
        p(f"ds_read_b64_tr_b16 v[{b+2}:{b+3}], v8 offset:{tt*512 + 256}")
    if dbg: p(stamp(2))
    for tt in range(2):
        b = 16 + 4*tt
        p(f"buffer_store_dwordx4 v[{b}:{b+3}], v7, s[8:11], s{54+tt} offen {ssf}")
        for q in range(4): p(f"v_dot2c_f32_bf16 v{11+tt}, v{b+q}, v10")
    p(f"""v_permlane32_swap_b32 v11, v12
v_add_f32 v11, v11, v12
ds_write_b32 v42, v11 offset:36864""", tag='cs')
    for tt in range(2):
        b = 24 + 4*tt
        p(f"ds_read_b64_tr_b16 v[{b}:{b+1}], v9 offset:{2048 + tt*512}", needs=['b'])
        p(f"ds_read_b64_tr_b16 v[{b+2}:{b+3}], v9 offset:{2048 + tt*512 + 1024}")
    for tt in range(2):
        b = 24 + 4*tt
        p(f"buffer_store_dwordx4 v[{b}:{b+3}], v7, s[8:11], s{46+tt} offen {ssf}")
    p("s_waitcnt lgkmcnt(0)\ns_barrier")
    p("""s_cmp_eq_u32 s16, 0
s_cbranch_scc0 L_side_end""")
    for w in range(9): p(f"ds_read_b32 v{48+w}, v42 offset:{36864 + w*256}")
    for w in range(1, 9): p(f"v_add_f32 v48, v48, v{48+w}")
    p(f"""v_cvt_pk_bf16_f32 v60, v48, v48
v_and_b32 v49, 0xffff0000, v60
v_sub_f32 v49, v48, v49
v_cvt_pk_bf16_f32 v61, v49, 0
v_and_b32 v43, s48, v43
v_lshl_or_b32 v61, v43, 16, v61
buffer_store_dwordx2 v[60:61], v44, s[8:11], s42 offen
buffer_store_dwordx2 v[60:61], v44, s[8:11], s43 offen
L_side_end:""")
    if dbg: p(stamp(3)); stamp_end(p, 4, 'side', stride=64, idr='s3')
    p("s_endpgm")
    if 'nost' in X: p.ins = [i for i in p.ins if not i.op.startswith('buffer_store_dwordx4')]
    if 'nold' in X: p.ins = [i for i in p.ins if not i.isdma]
    if 'now1' in X: p.ins = [i for i in p.ins if not (i.isdma and i.tag == 'a')]
    return p.finish()

def k0_kernel(dbg=False, sf="", ssf="", wsf="", dside=False, sfirst=True, side=True, X=(), lf='nt', lf2='nt'):
    SC.m = SMALL
    if sfirst:
        body = """  s_mov_b32 s3, s2
  s_cmp_lt_u32 s2, 288
  s_cbranch_scc1 L_side
  s_sub_u32 s2, s2, 288
"""
    else:
        body = """  s_sub_u32 s3, s2, 256
  s_cmp_lt_u32 s3, 288
  s_cbranch_scc1 L_side
"""
    body += """  s_cmp_lt_u32 s2, 128
  s_cbranch_scc1 L_k0_wq
  s_cmp_lt_u32 s2, 164
  s_cbranch_scc1 L_k0_wo
  s_cmp_lt_u32 s2, 256
  s_cbranch_scc1 L_k0_ln
  s_endpgm
"""
    for r in ('wq', 'wo', None):
        body += f"L_k0_{r or 'ln'}:\n" + row_body('k0', side=r, dbg=dbg and not dside, sf=sf, ssf=ssf, lf=lf2)
    body += "L_side:\n" + ("" if side else "  s_endpgm\n") + side_body(wsf, dbg and dside, X, lf)
    SC.m = BIG
    return kernel("k0_kernel", body, vgpr=64, sgpr=80), "; @launch kernel=k0_kernel grid=(544,1,1) block=(576,1,1) lds=39168\n"

def d_kernel(layer, pf=False, dbg=False, sf="sc1", zkv=False):
    name = f"d{layer}_kernel"
    body = f"  s_cmp_lt_u32 s2, 256\n  s_cbranch_scc1 L_{name}_go\n  s_endpgm\nL_{name}_go:\n" + row_body('d1' if layer == 0 else 'd2', pf=pf, dbg=dbg, sf=sf, zkv=zkv and layer == 0)
    return kernel(name, body, vgpr=64), f"; @launch kernel={name} grid=(256,1,1) block=(576,1,1) lds=1024\n"
```

```python
from asmlib import *
from layout import *
from k0 import srd

def phi(regs, tmp):
    L = []
    for b in range(0, len(regs), 4):
        g = regs[b:b+4]
        for i, r in enumerate(g): L.append(f"v_mul_f32 v{tmp+i}, 0x3fb8aa3b, v{r}")
        for i, r in enumerate(g): L.append(f"v_exp_f32 v{tmp+i}, v{tmp+i} clamp")
        for i, r in enumerate(g): L.append(f"v_max_f32 v{r}, 0x358637bd, v{r}")
        for i, r in enumerate(g): L.append(f"v_add_f32 v{r}, v{r}, v{tmp+i}")
    return L

QB = 73728

def a_body(dbg=False, pf=True, YR=16, D0=12, RAMP=1, NW=8, prio=0, qsf="sc1", align=None, s16=False, kv2=False):
    p = Prog()
    p("s_load_dwordx2 s[4:5], s[0:1], 80")
    if dbg: stamp_init(p)
    if prio: p(f"s_setprio {prio}")
    p(f"""v_lshrrev_b32 v1, 6, v0
v_and_b32 v2, 63, v0
v_readfirstlane_b32 s16, v1
v_lshlrev_b32 v3, 4, v2
s_and_b32 s17, s2, 7
s_lshr_b32 s18, s2, 3
s_lshr_b32 s19, s17, 2
s_lshl_b32 s19, s19, 2
s_and_b32 s20, s18, 3
s_add_u32 s19, s19, s20
s_and_b32 s20, s17, 3
s_lshl_b32 s20, s20, 3
s_lshr_b32 s21, s18, 2
s_add_u32 s20, s20, s21
s_lshl_b32 s21, s19, 3
s_lshl_b32 s22, s16, 1
s_add_u32 s21, s21, s22
s_mul_i32 s22, s21, 36864
s_add_u32 s22, s22, {YF}
s_mul_i32 s24, s20, 73728
s_add_u32 s24, s24, {WQF}
s_lshl_b32 s25, s16, 11
s_add_u32 s24, s24, s25
s_mov_b32 s10, {WSSZ}
s_mov_b32 s11, 0x20000
s_waitcnt lgkmcnt(0)
s_mov_b32 s8, s4
s_mov_b32 s9, s5""")
    ACC, WR, P0, V1, TMP, KVA, QO = 16, 80, 112, 120, 128, 136, 152
    assert WR + 4*NW <= P0
    items = []
    for g in range(72):
        if g < 36 and g % 4 == 0:
            c = g // 4
            L = [f"s_add_u32 m0, s25, {c*8192}" if c else "s_mov_b32 m0, s25"]
            for i in range(2): L.append(I(f"buffer_load_dwordx4 v3, s[8:11], s24 offen offset:{i*1024} lds", tag=f"w{c}"))
            if c < 8: L.append("s_addk_i32 s24, 8192")
            items.append((g, L, False))
        s = 4*(g % YR)
        pre = ["s_addk_i32 s22, 4096"] if (g % 4 == 0 and g) else []
        items.append((g, pre + [f"buffer_load_dwordx4 a[{s}:{s+3}], v3, s[8:11], s22 offen offset:{(g%4)*1024}"], True))
    ip = 0
    def issue_upto(gmax):
        nonlocal ip
        L = []
        while ip < len(items) and items[ip][0] <= gmax:
            L += items[ip][1]; ip += 1
        return L
    p.ext(issue_upto(D0 - 1))
    p("v_mov_b32 v10, 0")
    p("v_lshlrev_b32 v13, 2, v0")
    p(f"""v_add_u32 v4, 65536, v3
s_mul_i32 s28, s16, 1280
s_add_u32 s28, s28, {QB - 20*64}
v_and_b32 v5, 31, v2
v_lshlrev_b32 v5, 6, v5
v_lshrrev_b32 v9, 5, v2
v_lshl_add_u32 v5, v9, 5, v5
v_add_u32 v5, s28, v5
v_bfe_u32 v6, v2, 2, 2
v_lshl_add_u32 v6, v9, 2, v6
v_lshlrev_b32 v6, 6, v6
v_and_b32 v7, 1, v2
v_lshl_add_u32 v6, v7, 5, v6
v_bfe_u32 v7, v2, 4, 1
v_lshl_add_u32 v6, v7, 4, v6
v_bfe_u32 v7, v2, 1, 1
v_lshl_add_u32 v6, v7, 3, v6
s_add_u32 s28, s28, {20*64}
v_add_u32 v6, s28, v6
v_lshlrev_b32 v7, 2, v2
s_mul_i32 s28, s16, 2560
v_add_u32 v15, s28, v3
v_lshlrev_b32 v14, 3, v2
v_add_u32 v14, s28, v14
v_and_b32 v8, 27, v2
v_cmp_eq_u32 s[30:31], 18, v8
v_mov_b32 v8, 0x3f803f80
s_mov_b32 s32, 0xfff00000
s_mov_b32 s33, 0xfff00000
s_lshl_b32 s26, s21, 5
s_add_u32 s26, s26, s20
s_lshl_b32 s27, s26, 8
s_lshl_b32 s26, s26, 10
s_add_u32 s26, s26, {PQ16}
s_add_u32 s27, s27, {PQ4}
s_lshl_b32 s28, s2, 6
s_lshl_b32 s29, s16, 4
s_add_u32 s28, s28, s29
s_lshl_b32 s29, s28, 2
s_add_u32 s28, s28, {ST}
s_add_u32 s29, s29, {FLG}
s_mov_b64 exec, 15
buffer_store_dword v10, v7, s[8:11], s28 offen
buffer_store_dword v10, v7, s[8:11], s29 offen
s_mov_b64 exec, -1""")
    def wrd(f):
        g = f % 72
        s = WR + 4*(f % NW)
        L = []
        if f < 72 and f % 8 == 0: L.append(I("s_barrier", needs=[f"w{f//8}"]))
        L.append(f"ds_read_b128 v[{s}:{s+3}], v3 offset:{g*1024}" if g < 64 else f"ds_read_b128 v[{s}:{s+3}], v4 offset:{(g-64)*1024}")
        return L
    if dbg: p(stamp(1))
    for f in range(NW - 1): p.ext(wrd(f))
    if dbg: p(stamp(2))
    G = []
    for g in range(72):
        y = 4*(g % YR)
        for t in range(2):
            f = 2*g + t
            w = WR + 4*(f % NW)
            acc = ACC + 32*(g // 36) + 16*t
            c = "0" if g % 36 == 0 else f"v[{acc}:{acc+15}]"
            grp = [f"v_mfma_f32_32x32x16_bf16 v[{acc}:{acc+15}], a[{y}:{y+3}], v[{w}:{w+3}], {c}"]
            if s16:
                a2 = acc + 8*(g % 2); y2 = 4*((g - 1) % YR) if g else y
                cc = lambda a: "0" if g % 36 < 2 else f"v[{a}:{a+3}]"
                grp = [f"v_mfma_f32_16x16x32_bf16 v[{a2}:{a2+3}], a[{y}:{y+3}], v[{w}:{w+3}], {cc(a2)}", "@",
                       f"v_mfma_f32_16x16x32_bf16 v[{a2+4}:{a2+7}], a[{y2}:{y2+3}], v[{w}:{w+3}], {cc(a2+4)}"]
            if f + NW - 1 < 144: grp += wrd(f + NW - 1)
            if t == 1:
                depth = min(YR - (1 if s16 else 0), D0 + 1 + g*RAMP)
                grp += issue_upto(g + depth)
            if s16:
                k = grp.index("@"); grp = [grp[0]] + grp[3:4] + [grp[2]] + grp[4:]
            G.append(grp)
    assert ip == len(items)
    def epi1(rt):
        T0 = ACC + 32*rt; T1 = T0 + 16
        L = []
        for i in range(8): L.append(f"v_cvt_pk_bf16_f32 v{V1+i}, v{T1+2*i}, v{T1+2*i+1}")
        for i in range(8): L.append(f"v_cndmask_b32 v{V1+i}, v{V1+i}, v8, s[30:31]")
        ph = phi(list(range(T0, T0 + 16)), TMP)
        pk = [f"v_cvt_pk_bf16_f32 v{P0+i}, v{T0+2*i}, v{T0+2*i+1}" for i in range(8)]
        mm = [f"v_mfma_f32_32x32x16_bf16 v[{KVA}:{KVA+15}], v[{P0+4*q}:{P0+4*q+3}], v[{V1+4*q}:{V1+4*q+3}], " + ("0" if (rt == 0 and q == 0) else f"v[{KVA}:{KVA+15}]") for q in range(2)]
        L = ph[:32] + pk[:4] + L + [mm[0]] + ph[32:] + pk[4:] + [mm[1]]
        L.append(["s_mov_b64 exec, s[32:33]",
                  f"ds_write_b128 v5, v[{V1}:{V1+3}] offset:512", f"ds_write_b128 v5, v[{V1+4}:{V1+7}] offset:528",
                  f"ds_write_b128 v5, v[{P0}:{P0+3}]", f"ds_write_b128 v5, v[{P0+4}:{P0+7}] offset:16",
                  "s_mov_b64 exec, -1"])
        L += [f"ds_read_b64_tr_b16 v[{QO}:{QO+1}], v6", f"ds_read_b64_tr_b16 v[{QO+2}:{QO+3}], v6 offset:768", f"ds_read_b64_tr_b16 v[{QO+4}:{QO+5}], v6 offset:512"]
        return L
    def epi2(rt):
        u = TMP + 4
        L = [f"v_lshlrev_b32 v{u}, 16, v{QO+2}", f"v_and_b32 v{u+1}, 0xffff0000, v{QO+2}", f"v_lshlrev_b32 v{u+2}, 16, v{QO+3}", f"v_and_b32 v{u+3}, 0xffff0000, v{QO+3}"]
        L += phi([u, u+1, u+2, u+3], TMP)
        L += [f"v_cvt_pk_bf16_f32 v{QO+2}, v{u}, v{u+1}", f"v_cvt_pk_bf16_f32 v{QO+3}, v{u+2}, v{u+3}"]
        return L
    def qst(rt):
        L = ["s_add_u32 s26, s26, 32768", "s_add_u32 s27, s27, 8192"] if rt else []
        return L + [f"buffer_store_dwordx4 v[{QO}:{QO+3}], v3, s[8:11], s26 offen {qsf}", f"buffer_store_dword v{QO+4}, v7, s[8:11], s27 offen {qsf}"]
    late = f"""v_bfe_u32 v10, v0, 2, 5
v_lshrrev_b32 v12, 1, v0
v_cmp_gt_u32 s[34:35], 19, v10
v_cmp_eq_u32 s[36:37], 22, v10
s_or_b64 s[34:35], s[34:35], s[36:37]
v_cmp_gt_u32 s[38:39], 19, v12
v_cmp_eq_u32 s[36:37], 22, v12
s_or_b64 s[38:39], s[38:39], s[36:37]
s_mul_i32 s28, s20, 2560
s_add_u32 s28, s28, {'s63' if kv2 else KV}""".split("\n")
    pfl = []
    if pf:
        pfl = ["s_lshl_b32 s61, s18, 2", "s_add_u32 s61, s61, s16", prefetch([(WOF, 41)], 61, 2, 158, 159)]
    G[116] = G[116] + ["s_barrier"]
    if dbg:
        G[72] = [stamp(3)] + G[72]
    for grp in G[:20]: p.ext(grp)
    p.ext(interleave(G[20:60], late))
    for grp in G[60:74]: p.ext(grp)
    p.ext(interleave(G[74:124], epi1(0) + epi2(0) + qst(0)))
    p.ext(interleave(G[124:], pfl))
    if dbg: p(stamp(4))
    p.ext([x for y in epi1(1) for x in (y if isinstance(y, list) else [y])])
    p(f"ds_write_b128 v15, v[{KVA}:{KVA+3}]\nds_write_b128 v15, v[{KVA+4}:{KVA+7}] offset:1024\nds_write_b64 v14, v[{KVA+8}:{KVA+9}] offset:2048")
    p("s_waitcnt lgkmcnt(0)")
    if dbg: p(stamp(5))
    p("s_barrier")
    for it in range(3):
        for w in range(4): p(f"ds_read_b32 v{16 + 4*it + w}, v13 offset:{w*2560 + it*1024}")
    p.ext(epi2(1))
    for it in range(3):
        b = 16 + 4*it
        p(f"v_add_f32 v{b}, v{b}, v{b+1}\nv_add_f32 v{b+2}, v{b+2}, v{b+3}\nv_add_f32 v{b}, v{b}, v{b+2}")
    p(f"""s_mov_b64 exec, s[34:35]
buffer_atomic_add_f32 v16, v13, s[8:11], s28 offen
buffer_atomic_add_f32 v20, v13, s[8:11], s28 offen offset:1024
s_mov_b64 exec, -1""")
    p.ext(qst(1))
    p(f"""s_cmp_eq_u32 s16, 0
s_cbranch_scc0 L_a_end
s_mov_b64 exec, s[38:39]
buffer_atomic_add_f32 v24, v13, s[8:11], s28 offen offset:2048
L_a_end:""")
    if dbg: p(stamp(6)); stamp_end(p, 7, 'a')
    p("s_endpgm")
    return p.finish(align)

def noise_body(N, K, st):
    p = Prog()
    p("""s_load_dwordx2 s[6:7], s[0:1], 32
s_load_dwordx2 s[4:5], s[0:1], 80
v_lshlrev_b32 v3, 4, v0
s_sub_u32 s3, s2, 256
s_mul_i32 s20, s3, 20480
s_add_u32 s21, s20, 0x4000000
s_waitcnt lgkmcnt(0)""")
    srd(p, 12, 6, 576*4608*2); srd(p, 8, 4, WSSZ)
    for r in range(N):
        for k in range(K):
            p(f"buffer_load_dwordx4 v[{8+4*k}:{11+4*k}], v3, s[12:15], s20 offen nt")
            p("s_add_u32 s20, s20, 4096")
        p("s_waitcnt vmcnt(0)")
        if st:
            for k in range(K):
                p(f"buffer_store_dwordx4 v[{8+4*k}:{11+4*k}], v3, s[8:11], s21 offen sc1")
                p("s_add_u32 s21, s21, 4096")
    p("s_endpgm")
    return p.finish()

def a_kernel(dbg=False, noise=None, **kw):
    YR = kw.get('YR', 16)
    if noise:
        b = """  s_cmp_lt_u32 s2, 256
  s_cbranch_scc1 L_abody
  s_cmp_lt_u32 s2, 512
  s_cbranch_scc1 L_noise
  s_endpgm
L_abody:
""" + a_body(dbg, **kw) + "L_noise:\n" + noise_body(*noise)
        return kernel("a_kernel", b, vgpr=160, agpr=4*YR), "; @launch kernel=a_kernel grid=(512,1,1) block=(256,1,1) lds=81920\n"
    b = """  s_cmp_lt_u32 s2, 256
  s_cbranch_scc1 L_abody
  s_endpgm
L_abody:
""" + a_body(dbg, **kw)
    L = lambda n: f"; @launch kernel={n} grid=(256,1,1) block=(256,1,1) lds=98304\n"
    if kw.get('kv2'):
        k0 = kernel("a0_kernel", f"  s_mov_b32 s63, {KV}\n  s_branch L_a_entry\n", vgpr=160, agpr=4*YR)
        return (k0 + kernel("a1_kernel", f"  s_mov_b32 s63, {KV + KVL}\nL_a_entry:\n" + b, vgpr=160, agpr=4*YR), L("a0_kernel")), ("", L("a1_kernel"))
    return kernel("a_kernel", b, vgpr=160, agpr=4*YR), L("a_kernel")
```

```python
from asmlib import *
from layout import *
from k0 import srd

def b_body(NT, dbg=False, pf=False, N0=18, LA=3, mask=True, xsf="sc1", fz=None, kv2=False):
    p = Prog()
    KVR, NUM, TL, ACC, XR = 16, 112, 144, 152, 232
    aPQ, aWO = 0, 48
    p(f"""s_lshl_b32 s19, s16, 3
s_mul_i32 s20, s19, 2560
s_add_u32 s20, s20, {'s63' if kv2 else KV}
s_lshl_b32 s21, s17, 5
s_add_u32 s21, s21, s19
s_lshl_b32 s22, s21, 8
s_lshl_b32 s21, s21, 10
s_add_u32 s21, s21, {PQ16}
s_add_u32 s22, s22, {PQ4}
v_lshlrev_b32 v4, 3, v2
v_lshlrev_b32 v5, 2, v2
v_mov_b32 v12, v3""")
    if mask:
        p("""v_and_b32 v6, 24, v2
v_cmp_eq_u32 vcc, 24, v6
v_mov_b32 v6, 0x40000000
v_cndmask_b32 v12, v3, v6, vcc
v_cndmask_b32 v4, v4, v6, vcc""")
    p(f"""v_add_u32 v6, 4096, v3
v_add_u32 v7, 8192, v3
s_mul_i32 s23, s18, 36864
s_mul_i32 s24, s16, 9216
s_add_u32 s23, s23, s24
s_add_u32 s30, s23, {WOF}""")
    def kvl(h):
        k = KVR + 12*h; q = aPQ + 6*h
        L = [f"buffer_load_dwordx4 v[{k}:{k+3}], v12, s[8:11], s20 offen",
             f"buffer_load_dwordx4 v[{k+4}:{k+7}], v12, s[8:11], s20 offen offset:1024",
             f"buffer_load_dwordx2 v[{k+8}:{k+9}], v4, s[8:11], s20 offen offset:2048",
             f"buffer_load_dwordx4 a[{q}:{q+3}], v{(3,6)[h//4]}, s[8:11], s21 offen offset:{(h%4)*1024}",
             f"buffer_load_dword a{q+4}, v5, s[8:11], s22 offen offset:{h*256}"]
        if h < 7: L[2] = [L[2], "s_addk_i32 s20, 2560"]
        return L
    def wol(ks):
        return [f"buffer_load_dwordx4 a[{aWO+4*(ks*NT+t)}:{aWO+4*(ks*NT+t)+3}], v{(3,6,7)[ks//4]}, s[8:11], s{30+t} offen offset:{(ks%4)*1024}" for t in range(NT)]
    xl = [f"buffer_load_dwordx2 v[{XR+2*t}:{XR+2*t+1}], v{8 + t//2}, s[8:11], s26 offen offset:{(t%2)*2048}" for t in range(NT)]
    loads = []
    for st in range(11):
        if st < 8: loads += [(st, x) for x in kvl(st)]
        if 0 <= st - 2 <= 8: loads += [(st, x) for x in wol(st - 2)]
    loads += [(11, x) for x in xl]
    flat = lambda L: [y for x in L for y in (x if isinstance(x, list) else [x])]
    p.ext(flat([x for _, x in loads[:10]]))
    for t in range(1, NT): p(f"s_add_u32 s{30+t}, s30, {t*36864}")
    p.ext(flat([x for _, x in loads[10:N0]]))
    lp = N0
    p(f"""s_mul_i32 s25, s17, 36864
s_lshl_b32 s26, s18, 11
s_add_u32 s25, s25, s26
s_lshl_b32 s26, s16, 9
s_add_u32 s25, s25, s26
s_add_u32 s26, s25, {XF}
s_add_u32 s27, s25, {X1F}
v_and_b32 v8, 31, v2
v_lshlrev_b32 v8, 4, v8
v_lshrrev_b32 v9, 5, v2
v_lshl_add_u32 v8, v9, 3, v8
v_add_u32 v9, 4096, v8
v_add_u32 v10, 8192, v8""")
    for h in range(8): p(f"v_accvgpr_write_b32 a{aPQ+6*h+5}, 0")
    for g in range(1, 4):
        p(f"""s_add_u32 s28, s16, {g}
s_and_b32 s28, s28, 3
s_mul_i32 s28, s28, {3*NT*1024}
s_add_u32 s28, s28, {(g-1)*NT*1024}
v_add_u32 v{242+g}, s28, v3""")
    p(f"s_mul_i32 s28, s16, {3*NT*1024}\nv_add_u32 v14, s28, v3")
    p(f"""s_lshl_b32 s28, s17, 8
s_add_u32 s28, s28, {ST}""")
    if fz: p.ext(fz[0]); p(f"s_lshr_b32 s67, s17, 1\ns_lshl_b32 s67, s67, 7\ns_add_u32 s67, s67, {CNT}"); dbg0 = dbg; dbg = False
    if dbg: p(stamp(1))
    def prep(h):
        k = KVR + 12*h; q = aPQ + 6*h; n = NUM + 16*(h % 2)
        L = [f"v_cvt_pk_bf16_f32 v{k+i}, v{k+2*i}, v{k+2*i+1}" for i in range(5)]
        L.append(f"v_mov_b32 v{k+5}, 0")
        L.append(f"v_mfma_f32_32x32x16_bf16 v[{n}:{n+15}], v[{k}:{k+3}], a[{q}:{q+3}], 0")
        L.append(f"v_mfma_f32_32x32x8_bf16 v[{n}:{n+15}], v[{k+4}:{k+5}], a[{q+4}:{q+5}], v[{n}:{n+15}]")
        return L
    def post(h):
        n = NUM + 16*(h % 2); o = KVR + 12*h + 8
        L = [f"v_add_f32 v11, 0x358637bd, v{n+10}", "v_rcp_f32 v11, v11"]
        for i in range(10): L.append(f"v_mul_f32 v{n+i}, v{n+i}, v11")
        for i in range(4): L.append(f"v_cvt_pk_bf16_f32 v{o+i}, v{n+2*i}, v{n+2*i+1}")
        L.append(f"v_cvt_pk_bf16_f32 v{TL + h//2 + 4*(h%2)}, v{n+8}, v{n+9}")
        return L
    def gemm(ks):
        o = KVR + 12*ks + 8 if ks < 8 else TL
        G = []
        for t in range(NT):
            r = aWO + 4*(ks*NT + t); a = ACC + 16*t
            c = "0" if ks == 0 else f"v[{a}:{a+15}]"
            G.append([f"v_mfma_f32_32x32x16_bf16 v[{a}:{a+15}], a[{r}:{r+3}], v[{o}:{o+3}], {c}"])
        return G
    pfl = []
    if pf:
        pfl = f"""s_and_b32 s62, s2, 7
s_mul_i32 s62, s62, {4*WSN*1024}
s_add_u32 s62, s62, {WSTR}
s_add_u32 s63, s62, {2*WSN*1024}
s_lshr_b32 s61, s2, 3
s_lshl_b32 s61, s61, 2
s_add_u32 s61, s61, s16""".split("\n") + [prefetch([('s62', 42), ('s63', 42)], 61, 2, 250, 251)]
    for st in range(11):
        nl = []
        while lp < len(loads) and loads[lp][0] <= st + LA: nl.append(loads[lp][1]); lp += 1
        if st < 8: p.ext(prep(st))
        fill = post(st - 1) if 0 <= st - 1 < 8 else []
        if st == 9: fill = [f"v_permlane32_swap_b32 v{TL+i}, v{TL+4+i}" for i in range(4)] + pfl
        if nl:
            m = []
            step = max(1, len(fill) // len(nl)) if fill else 1
            fi = 0
            for x in nl:
                m.append(x); m += fill[fi:fi+step]; fi += step
            m += fill[fi:]
            fill = m
        if st == 10:
            G = gemm(8)
            for t in range(NT):
                p.ext(G[t])
                if t: p.ext([f"ds_write_b128 v{242+g}, v[{ACC+16*(t-1)+4*g}:{ACC+16*(t-1)+4*g+3}] offset:{(t-1)*1024}" for g in range(1, 4)] if False else [])
        elif st >= 2: p.ext(interleave(gemm(st - 2), fill))
        else: p.ext(flat(fill))
        if dbg and st in (0, 4): p(stamp(2 + st//4))
    assert lp == len(loads)
    if dbg: p(stamp(4))
    wr = [f"ds_write_b128 v{242+g}, v[{ACC + 16*t + 4*g}:{ACC + 16*t + 4*g + 3}] offset:{t*1024}" for t in range(NT) for g in range(1, 4)]
    if fz:
        npa = len(fz[1]) * fz[2] // 100
        p.ext(interleave([[x] for x in wr], fz[1][:npa]))
    else: p.ext(wr)
    p("s_waitcnt lgkmcnt(0)\ns_barrier")
    if dbg: p(stamp(5))
    RD = KVR
    for t in range(NT):
        for g in range(3):
            r = RD + 12*t + 4*g
            p(f"ds_read_b128 v[{r}:{r+3}], v14 offset:{(g*NT + t)*1024}")
    if fz: p.ext(fz[1][npa:])
    p("v_mov_b32 v15, 0\nv_mov_b32 v11, 0")
    for t in range(NT):
        a = ACC + 16*t; x = XR + 2*t; u = a + 4
        p(f"v_lshlrev_b32 v{u}, 16, v{x}\nv_and_b32 v{u+1}, 0xffff0000, v{x}\nv_lshlrev_b32 v{u+2}, 16, v{x+1}\nv_and_b32 v{u+3}, 0xffff0000, v{x+1}")
        for i in range(4): p(f"v_add_f32 v{a+i}, v{a+i}, v{u+i}")
    for t in range(NT):
        a = ACC + 16*t; r = RD + 12*t; x = XR + 2*t; u = a + 4
        for i in range(4): p(f"v_add_f32 v{a+i}, v{a+i}, v{r+i}")
        for i in range(4): p(f"v_add_f32 v{r+4+i}, v{r+4+i}, v{r+8+i}")
        for i in range(4): p(f"v_add_f32 v{a+i}, v{a+i}, v{r+4+i}")
        p(f"v_cvt_pk_bf16_f32 v{x}, v{a}, v{a+1}\nv_cvt_pk_bf16_f32 v{x+1}, v{a+2}, v{a+3}")
        p(f"buffer_store_dwordx2 v[{x}:{x+1}], v{8 + t//2}, s[8:11], s27 offen offset:{(t%2)*2048} {xsf}")
    for t in range(NT):
        a = ACC + 16*t; x = XR + 2*t; u = a + 4
        p(f"v_lshlrev_b32 v{u}, 16, v{x}\nv_and_b32 v{u+1}, 0xffff0000, v{x}\nv_lshlrev_b32 v{u+2}, 16, v{x+1}\nv_and_b32 v{u+3}, 0xffff0000, v{x+1}")
        for i in range(4): p(f"v_add_f32 v15, v15, v{u+i}\nv_fmac_f32 v11, v{u+i}, v{u+i}")
    p(f"""v_permlane32_swap_b32 v15, v11
v_add_f32 v15, v15, v11
buffer_atomic_add_f32 v15, v5, s[8:11], s28 offen""")
    if fz:
        p("""v_mov_b32 v4, 0
v_mov_b32 v6, 1
s_waitcnt vmcnt(0)
s_mov_b64 exec, 1
buffer_atomic_add v6, v4, s[8:11], s67 offen
s_mov_b64 exec, -1""")
        if dbg0: p(stamp(1))
        if NT == 5: p("s_branch L_bc_c")
        return p.finish()
    if dbg: p(stamp(6)); stamp_end(p, 7, "b" + str(NT))
    p("s_endpgm")
    return p.finish()

def b_kernel(dbg=False, cz=None, split=60, dz=None, **kw):
    name = "b_kernel" if cz is None else "bc_kernel"
    if dz: name = "bcd1_kernel"
    if cz: kw['fz'] = (cz[1], cz[2], split)
    p = Prog()
    if dz: p(f"s_mov_b32 s62, 1\ns_mov_b32 s63, {KV + KVL}\nL_bcd_entry:"); kw['kv2'] = True
    p(f"""s_cmp_lt_u32 s2, 256
s_cbranch_scc1 L_{name}_go
s_endpgm
L_{name}_go:
s_load_dwordx2 s[4:5], s[0:1], 80""")
    if dz: p("s_load_dwordx4 s[40:43], s[0:1], 56")
    if dbg: stamp_init(p)
    p(f"""v_lshrrev_b32 v1, 6, v0
v_and_b32 v2, 63, v0
v_readfirstlane_b32 s16, v1
v_lshlrev_b32 v3, 4, v2
s_and_b32 s17, s2, 7
s_lshl_b32 s17, s17, 3
s_bfe_u32 s19, s2, 0x30003
s_add_u32 s17, s17, s19
s_lshr_b32 s19, s2, 6
s_waitcnt lgkmcnt(0)""")
    srd(p, 8, 4, WSSZ)
    p(f"""s_cmp_lt_u32 s19, 2
s_cbranch_scc0 L_{name}_4
s_mul_i32 s18, s19, 5""")
    body = p.finish() + b_body(5, dbg, **kw)
    body += f"L_{name}_4:\n  s_lshl_b32 s18, s19, 2\n  s_add_u32 s18, s18, 2\n" + b_body(4, dbg, **kw)
    if cz:
        body += "L_bc_c:\n" + cz[0]
        if dz:
            L = lambda n: f"; @launch kernel={n} grid=(256,1,1) block=(256,1,1) lds=163840\n"
            k0 = kernel("bcd0_kernel", f"  s_mov_b32 s62, 0\n  s_mov_b32 s63, {KV}\n  s_branch L_bcd_entry\n", vgpr=256, agpr=256)
            return (k0 + kernel(name, body + dz, vgpr=256, agpr=256), L("bcd0_kernel")), ("", L(name))
        return kernel(name, body, vgpr=256, agpr=256), f"; @launch kernel={name} grid=(256,1,1) block=(256,1,1) lds=163840\n"
    return kernel(name, body, vgpr=256, agpr=232), f"; @launch kernel={name} grid=(256,1,1) block=(256,1,1) lds=61440\n"
```

```python
from asmlib import *
from layout import *
from k0 import srd

def gelu8(x, k1, k3, tmp, out, grp=4):
    L = []
    for b in range(0, 8, grp):
        idx = range(b, b + grp)
        T = lambda i: tmp + i
        for i in idx: L.append(f"v_mul_f32 v{T(i)}, v{x+i}, v{x+i}")
        for i in idx: L.append(f"v_fma_f32 v{T(i)}, v{T(i)}, v{k3}, v{k1}")
        for i in idx: L.append(f"v_mul_f32 v{T(i)}, v{T(i)}, v{x+i}")
        for i in idx: L.append(f"v_exp_f32 v{T(i)}, v{T(i)}")
        for i in idx: L.append(f"v_add_f32 v{T(i)}, 1.0, v{T(i)}")
        for i in idx: L.append(f"v_rcp_f32 v{T(i)}, v{T(i)}")
        for i in idx: L.append(f"v_mul_f32 v{T(i)}, v{T(i)}, v{x+i}")
        for i in list(idx)[::2]: L.append(f"v_cvt_pk_bf16_f32 v{out+i//2}, v{T(i)}, v{T(i+1)}")
    return L

def c_kernel(DW=32, D0=12, YCH=4, stfl="sc1", dbg=False, RAMP=3, X=(), merge=True, YLA=0, amap=2, align=None, s16=False, mk=None, fused=False, NPRE=31, yfl='', dz=False, fine=False, ds=None, armw=(0.0, 1.0), prein=False, wpf=None, arms=18, armp=0, sigp=0.5, armf='sc1', OW=30, EP=2, EW=30):
    name = "c_kernel"
    p = Prog()
    YB, HB, XB = 0, 73728, 147456
    vL = 3
    vRD = 6
    vHW = 10
    vXW, vXR = 13, 14
    vK1, vK3 = 16, 18
    TMP, PK = 24, 32
    A_, B_, C_, D_, OS, N2, N3 = 40, 72, 104, 136, 168, 184, 216
    aODD, aAUG, aLR, aT, aW = 0, 32, 40, 64, 128
    NL = 3
    assert aW + 4*DW <= 256
    if not fused:
        p(f"""s_cmp_lt_u32 s2, 256
s_cbranch_scc1 L_{name}_go
s_endpgm
L_{name}_go:
s_load_dwordx2 s[4:5], s[0:1], 80""")
        if dbg: stamp_init(p)
    else: D0 = NPRE
    AM = "s_and_b32 s17, s2, 7\ns_lshr_b32 s18, s2, 3" if not amap else "s_bfe_u32 s17, s2, 0x30003\ns_and_b32 s18, s2, 7\ns_lshl_b32 s18, s18, 2\ns_lshr_b32 s19, s2, 6\ns_add_u32 s18, s18, s19"
    if amap == 2: AM = "s_and_b32 s17, s2, 3\ns_lshl_b32 s17, s17, 1\ns_bfe_u32 s18, s2, 0x10003\ns_add_u32 s17, s17, s18\ns_bfe_u32 s18, s2, 0x10002\ns_lshl_b32 s18, s18, 4\ns_lshr_b32 s19, s2, 4\ns_add_u32 s18, s18, s19"
    if amap == 4: AM = "s_and_b32 s17, s2, 1\ns_lshl_b32 s17, s17, 2\ns_bfe_u32 s18, s2, 0x20003\ns_add_u32 s17, s17, s18\ns_bfe_u32 s18, s2, 0x20001\ns_lshl_b32 s18, s18, 3\ns_lshr_b32 s19, s2, 5\ns_add_u32 s18, s18, s19"
    p(f"""v_lshrrev_b32 v1, 6, v0
v_and_b32 v2, 63, v0
v_readfirstlane_b32 s16, v1
v_lshlrev_b32 v{vL}, 4, v2
{AM}
s_and_b32 s19, s16, 1
s_lshr_b32 s20, s16, 1
s_lshl_b32 s30, s17, 2
s_add_u32 s30, s30, s16
s_mul_i32 s30, s30, {WSN*1024}
s_add_u32 s30, s30, {WSTR}
s_mul_i32 s25, s18, 73728
s_lshl_b32 s26, s16, 10
s_add_u32 s27, s25, s26
s_add_u32 s27, s27, {X1F}
s_add_u32 s28, s27, 36864
s_add_u32 s31, s26, 36864
s_lshl_b32 s21, s18, 1
s_xor_b32 s29, s19, 1
s_add_u32 s45, s21, s19
s_add_u32 s46, s21, s29
s_lshl_b32 s47, s45, 8
s_lshl_b32 s48, s46, 8
s_add_u32 s47, s47, {ST}
s_add_u32 s48, s48, {ST}
v_lshlrev_b32 v15, 2, v2""")
    if not fused:
        p(f"""s_mov_b32 s10, {WSSZ}
s_mov_b32 s11, 0x20000
s_waitcnt lgkmcnt(0)
s_mov_b32 s8, s4
s_mov_b32 s9, s5""")
    else:
        pre_setup = AM.replace("s17", "s64").replace("s18", "s65").replace("s19", "s66").split("\n") + f"""s_lshl_b32 s64, s64, 2
s_add_u32 s64, s64, s16
s_mul_i32 s64, s64, {WSN*1024}
s_add_u32 s64, s64, {WSTR}
s_lshl_b32 s65, s65, 7
s_add_u32 s65, s65, {CNT}""".split("\n")
        p(f"""s_mov_b32 s30, s64
v_mov_b32 v4, 0
s_mov_b32 s49, 0x40000
s_cmp_eq_u32 s16, 0
s_cbranch_scc0 L_bc_go
L_bc_poll:
buffer_load_dword v5, v4, s[8:11], s65 offen sc1
s_waitcnt vmcnt(0)
v_readfirstlane_b32 s50, v5
s_sub_u32 s49, s49, 1
s_cmp_eq_u32 s49, 0
s_cbranch_scc1 L_bc_go
s_cmp_lt_u32 s50, 32
s_cbranch_scc1 L_bc_poll
L_bc_go:
s_barrier""")
        if dbg and not fine: p(stamp(2))
    steps = []
    def fr(acc, rts=(0, 1), first=False, ag=False, kk=None):
        return dict(m=[(acc + 16*rt, ag, rt, first) for rt in rts], kk=kk)
    for kk in range(36):
        f = [fr(A_, first=kk == 0), fr(B_, first=kk == 0)]
        if kk % 2 == 0: f.append(fr(aODD, first=kk == 0, ag=True))
        steps.append(dict(l=('Y', kk), f=f, ph='p1'))
    steps.append(dict(l=None, f=[fr(A_), fr(B_), fr(aODD, rts=(0,), ag=True)], ph='p1'))
    for kk in range(36):
        steps.append(dict(l=('Y', kk), f=[fr(C_, first=kk == 0), fr(D_, first=kk == 0)], ph='p2'))
    steps.append(dict(l=None, f=[fr(C_), fr(D_)], ph='p2'))
    korder = list(range(16)) + [32, 33, 34, 35]
    NACC = [A_, B_, N2, N3]
    for i, kk in enumerate(korder):
        f = [fr(NACC[n], first=i == 0) for n in range(4)]
        if kk % 2 == 0: f.append(fr(aODD, first=i == 0, ag=True))
        steps.append(dict(l=('H', kk), f=f, ph='q'))
    n_p1 = 37; n_p2 = 74; n_t = 94
    tstart = {}
    for n in (4, 3, 0, 1, 2):
        f = [fr(aODD, ag=True, kk=kk) for kk in range(16, 32, 2)] if n == 4 else [fr(NACC[n], kk=kk) for kk in range(16, 32)]
        tstart[n] = len(steps)
        for b in range(0, len(f), 4): steps.append(dict(l=None, f=f[b:b+4], ph='t'))
    def treg(kk, rt):
        i = (kk - 16) // 2
        if kk % 2 == 0: return 'a', aT + 8*i + 4*rt
        return 'v', C_ + 8*i + 4*rt
    frags = [(si, fi) for si, st in enumerate(steps) for fi in range(len(st['f']))]
    assert len(frags) == WSN
    issue = []
    ych_at = {}
    for c in range(36 // YCH):
        gi = next(g for g, (si, fi) in enumerate(frags) if si == c*YCH)
        ych_at.setdefault(max(0, gi - YLA), []).append(c)
    for g, (si, fi) in enumerate(frags):
        for c in ych_at.get(g, []):
            L = []
            for kk0 in range(c*YCH, (c+1)*YCH, 4):
                for rt in range(2):
                    L.append(f"s_add_u32 m0, s{(26, 31)[rt]}, {YB + kk0*1024}" if kk0 else f"s_mov_b32 m0, s{(26, 31)[rt]}")
                    L.append(I(f"buffer_load_dwordx4 v{vL}, s[8:11], s{27+rt} offen {yfl} lds", tag=f"y{c}"))
                    L.append(f"s_addk_i32 s{27+rt}, 4096")
            issue.append(('y', L, g))
        d = aW + 4*(g % DW)
        pre = ["s_addk_i32 s30, 4096"] if (g % 4 == 0 and g > 0) else []
        issue.append(('w', pre + [I(f"buffer_load_dwordx4 a[{d}:{d+3}], v{vL}, s[8:11], s30 offen offset:{(g%4)*1024}", tag=f"w{g}")], g))
    if fused:
        pre_loads = [y for x in issue if x[0] == 'w' and x[2] < NPRE for y in x[1]]
        pre_loads = [(y.text if isinstance(y, I) else y).replace("s30", "s64") for y in pre_loads]
        issue = [x for x in issue if not (x[0] == 'w' and x[2] < NPRE)]
    ip = 0
    def issue_upto(gmax):
        nonlocal ip
        L = []
        while ip < len(issue) and issue[ip][2] <= gmax:
            L += issue[ip][1]; ip += 1
        return L
    p.ext(issue_upto(D0 - 1))
    p(f"buffer_load_dword v22, v15, s[8:11], s47 offen {'sc1' if fused else ''}\nbuffer_load_dword v23, v15, s[8:11], s48 offen {'sc1' if fused else ''}")
    p(f"""s_mul_i32 s50, s19, {37*1024}
s_mul_i32 s51, s19, {35*1024}
v_add_u32 v{vRD}, s50, v{vL}
v_add_u32 v{vRD+1}, s51, v{vL}
v_subrev_u32 v{vRD+2}, s51, v{vL}
v_subrev_u32 v{vRD+3}, s50, v{vL}
v_add_u32 v{vRD+2}, 36864, v{vRD+2}
v_add_u32 v{vRD+3}, 36864, v{vRD+3}""")
    setup = f"""s_mul_i32 s50, s19, 36864
s_mul_i32 s51, s29, 36864
s_lshl_b32 s52, s16, 11
s_add_u32 s53, s50, s52
s_add_u32 s53, s53, {HB}
v_add_u32 v{vHW}, s53, v{vL}
s_add_u32 s53, s51, s52
s_add_u32 s53, s53, {HB}
v_add_u32 v{vHW+1}, s53, v{vL}
s_lshl_b32 s52, s20, 11
s_add_u32 s53, s50, s52
s_add_u32 s53, s53, {HB + 32*1024}
v_add_u32 v{vHW+2}, s53, v{vL}
s_lshl_b32 s52, s16, 12
s_add_u32 s53, s52, {XB}
v_add_u32 v{vXW}, s53, v{vL}
s_xor_b32 s52, s52, 4096
s_add_u32 s53, s52, {XB}
v_add_u32 v{vXR}, s53, v{vL}
s_mul_i32 s54, s17, {ACT}
s_add_u32 s54, s54, {PART}
s_mul_i32 s55, s45, 36864
s_mul_i32 s56, s46, 36864
s_add_u32 s55, s55, s54
s_add_u32 s56, s56, s54
s_lshl_b32 s57, s20, 11
s_add_u32 s57, s57, {16*2048}
s_add_u32 s57, s57, s55
s_lshl_b32 s58, s16, 11
s_add_u32 s55, s55, s58
s_add_u32 s56, s56, s58
s_mul_i32 s50, s2, 320
s_mul_i32 s51, s16, 80
s_add_u32 s50, s50, s51
s_add_u32 s50, s50, {KV}
v_mov_b32 v{TMP}, 0""".split("\n") + [["s_mov_b64 exec, 0xfffff", f"buffer_store_dword v{TMP}, v15, s[8:11], s50 offen", "s_mov_b64 exec, -1"]]
    if fused: setup = setup[:-6]
    statf = []
    for rt in range(2):
        s = 22 + rt; t = TMP
        statf += f"""v_mov_b32 v{t}, v{s}
v_permlane32_swap_b32 v{s}, v{t}
v_mul_f32 v{s}, 0x3ae38e39, v{s}
v_mul_f32 v{t}, 0x3ae38e39, v{t}
v_fma_f32 v{t}, -v{s}, v{s}, v{t}
v_max_f32 v{t}, 0, v{t}
v_mov_b32 v{t+1}, 0x3f800054
v_mov_b32 v{t+2}, 0x2edbe6ff
v_fma_f32 v{t}, v{t}, v{t+1}, v{t+2}
v_rsq_f32 v{t+1}, v{t}
v_mul_f32 v{t}, v{t}, v{t+1}
v_mul_f32 v{vK1+rt}, 0xc0135761, v{t+1}
v_mul_f32 v{t+2}, v{t+1}, v{t+1}
v_mul_f32 v{t+2}, v{t+2}, v{t+1}
v_mul_f32 v{vK3+rt}, 0xbdd2d3e8, v{t+2}
v_sub_f32 v{s}, 0, v{s}
v_cvt_pk_bf16_f32 v{t+3}, v{s}, v{t}
v_lshlrev_b32 v{t+4}, 16, v{t+3}
v_and_b32 v{t+5}, 0xffff0000, v{t+3}
v_sub_f32 v{t+4}, v{s}, v{t+4}
v_sub_f32 v{t+5}, v{t}, v{t+5}
v_cvt_pk_bf16_f32 v{t+6}, v{s}, v{t+4}
v_cvt_pk_bf16_f32 v{t+7}, v{s}, v{t+5}
v_accvgpr_write_b32 a{aAUG+4*rt}, v{t+6}
v_accvgpr_write_b32 a{aAUG+4*rt+1}, v{t+3}
v_accvgpr_write_b32 a{aAUG+4*rt+2}, v{t+6}
v_accvgpr_write_b32 a{aAUG+4*rt+3}, v{t+7}""".split("\n")
    pkc = [0]
    def gl(acc, rt, waddr, woff, tag):
        L = []
        for q in range(2):
            o = PK + 4*(pkc[0] % 2); pkc[0] += 1
            L += gelu8(acc + 8*q, vK1 + rt, vK3 + rt, TMP, o)
            L.append(I(f"ds_write_b128 v{waddr}, v[{o}:{o+3}] offset:{woff + q*1024}", tag=tag))
        return L
    xw = lambda tag: [I(f"ds_write_b128 v{vXW}, a[{aODD+16+4*i}:{aODD+19+4*i}] offset:{i*1024}", tag=tag) for i in range(4)]
    xr = [f"ds_read_b128 v[{OS+4*i}:{OS+4*i+3}], v{vXR} offset:{i*1024}" for i in range(4)]
    def xadd():
        L = []
        for b in range(0, 16, 4):
            for i in range(4): L.append(f"v_accvgpr_read_b32 v{TMP+i}, a{aODD+b+i}")
            for i in range(4): L.append(f"v_add_f32 v{OS+b+i}, v{OS+b+i}, v{TMP+i}")
        return L
    def gtile(role, acc, tag): return gl(acc, 0, vHW, role*8192, tag) + gl(acc + 16, 1, vHW + 1, role*8192, tag)
    fa = gtile(0, A_, 'hab'); h = len(fa) // 2
    seg = [xw('xw') + fa[:h] + [I("s_barrier", needs=['xw'])] + xr + fa[h:] + xadd() + gtile(1, B_, 'hab'),
           gl(OS, 0, vHW + 2, 0, 'ho') + gtile(2, C_, 'hcd') + gtile(3, D_, 'hcd')]
    hbar = {n_p2: 'hab', n_p2 + 16: 'ho', n_t: 'hcd'}
    def lread(si):
        st = steps[si]
        L = []
        if si in hbar:
            L.append(I("s_barrier", needs=[hbar[si]]))
            if si == n_p2:
                for i in range(4): L.append(f"v_add_u32 v{vRD+i}, {HB}, v{vRD+i}")
        if n_t <= si < n_t + 4:
            ks = [list(range(16, 24, 2)), list(range(24, 32, 2)), list(range(17, 24, 2)), list(range(25, 32, 2))][si - n_t]
            for kk in ks:
                for rt in range(2):
                    R, d = treg(kk, rt)
                    L.append(f"ds_read_b128 {R}[{d}:{d+3}], v{vRD + 2*rt + kk % 2} offset:{kk*1024}")
        if st['l'] is None: return L
        kind, kk = st['l']
        if kind == 'Y' and st['ph'] == 'p1' and kk % YCH == 0: L.append(I("s_barrier", needs=[f"y{kk//YCH}"]))
        for rt in range(2):
            d = aLR + 8*(si % NL) + 4*rt
            L.append(I(f"ds_read_b128 a[{d}:{d+3}], v{vRD + 2*rt + kk % 2} offset:{kk*1024}", tag=f"l{si}"))
        return L
    p.ext(lread(0)); p.ext(lread(1))
    if dbg and not fine: p(stamp(3 if fused else 1))
    g = 0
    G = []
    stepstart = {}
    cnt16 = {}
    for si, st in enumerate(steps):
        first_in_step = True
        for fi, fx in enumerate(st['f']):
            ms = fx['m']
            w = aW + 4*(g % DW)
            for mi, (acc, ag, rt, first) in enumerate(ms):
                if st['ph'] == 't':
                    Rb, bb = treg(fx['kk'], rt)
                else:
                    Rb = 'a'; bb = (aLR + 8*(si % NL) + 4*rt) if st['l'] is not None else aAUG + 4*rt
                R = 'a' if ag else 'v'
                c = "0" if first else f"{R}[{acc}:{acc+15}]"
                needs = [f"w{g + len(st['f']) - 1}", f"l{si}"] if (merge and first_in_step and si > 0) else []
                grp = [I(f"v_mfma_f32_32x32x16_bf16 {R}[{acc}:{acc+15}], a[{w}:{w+3}], {Rb}[{bb}:{bb+3}], {c}", needs=needs)]
                if s16:
                    cnt16[(R, acc)] = cnt16.get((R, acc), -1) + 1
                    if first: cnt16[(R, acc)] = 0
                    n = cnt16[(R, acc)]; a2 = acc + 8*(n % 2); b2 = bb ^ 4
                    cc = lambda a: "0" if n < 2 else f"{R}[{a}:{a+3}]"
                    G.append([I(f"v_mfma_f32_16x16x32_bf16 {R}[{a2}:{a2+3}], a[{w}:{w+3}], {Rb}[{bb}:{bb+3}], {cc(a2)}", needs=needs)])
                    grp = [I(f"v_mfma_f32_16x16x32_bf16 {R}[{a2+4}:{a2+7}], a[{w}:{w+3}], {Rb}[{b2}:{b2+3}], {cc(a2+4)}")]
                if first_in_step:
                    stepstart[si] = len(G) - (1 if s16 else 0)
                    if si + 2 < len(steps): grp += lread(si + 2)
                    first_in_step = False
                if mi == len(ms) - 1:
                    depth = min(DW - 1, D0 + g // RAMP)
                    grp += issue_upto(g + depth)
                G.append(grp)
            g += 1
    assert ip == len(issue)
    stepstart[len(steps)] = len(G)
    def outp(acc, sreg, tag=None):
        L = []
        for hf in range(2):
            o = PK + 4*(pkc[0] % 2); pkc[0] += 1
            src = acc + 8*hf
            for i in range(4): L.append(f"v_cvt_pk_bf16_f32 v{o+i}, v{src+2*i}, v{src+2*i+1}")
            if ds:
                for i in range(4): L.append(f"v_min_u32 v{o+i}, s44, v{o+i}")
            L += [f"v_permlane32_swap_b32 v{o}, v{o+2}", f"v_permlane32_swap_b32 v{o+1}, v{o+3}"]
            L.append(I(f"buffer_store_dwordx4 v[{o}:{o+3}], v{vL}, s[8:11], s{sreg} offen offset:{hf*1024} {stfl}", tag=tag))
        return L
    def otile(n):
        acc = NACC[n]
        return [f"s_add_u32 s58, s55, {n*8192}", f"s_add_u32 s59, s56, {n*8192}"] + outp(acc, 58, f"o{n}") + outp(acc + 16, 59, f"o{n}")
    ts = {n: stepstart[tstart[n]] for n in tstart}
    plan = [(setup, 4, 40), (statf, 60, 120 if not s16 else 200),
            (seg[0], stepstart[n_p1] + 2, stepstart[n_p2 - 2]),
            (seg[1], stepstart[n_p2 - 2], stepstart[n_t - 2]),
            (xw('xw2'), ts[3] + 2, ts[3] + 6),
            ([I("s_barrier", needs=['xw2'])] + xr + xadd() + outp(OS, 57), ts[3] + 12, ts[0]),
            (otile(3), ts[0] + 2, ts[1]), (otile(0), ts[1] + 2, ts[2]), (otile(1), ts[2] + 2, len(G))]
    if ds:
        def mix(a, b, lo=0.0, hi=1.0):
            i0 = int(len(a)*lo); i1 = int(len(a)*hi); out = list(a[:i0]); n = i1 - i0; k = 0
            for i in range(n):
                out.append(a[i0 + i])
                while k < len(b) and (k + 0.5) * n <= (i + 1) * len(b): out.append(b[k]); k += 1
            return out + b[k:] + list(a[i1:])
        setup += [f"v_mov_b32 v{248+i}, -1" for i in range(4)] + ["v_mov_b32 v20, 0", "v_mov_b32 v21, 1", "s_mov_b32 s44, -2",
                  "s_lshl_b32 s66, s18, 7", f"s_add_u32 s66, s66, {CNT + 4096}"]
        arm = []
        st = lambda sr, o: I(f"buffer_store_dwordx4 v[248:251], v{vL}, s[8:11], s{sr} offen offset:{o} {armf}", tag='arm')
        for n in range(4):
            arm += [[f"s_add_u32 s58, s55, {n*8192}", st(58, 0)], st(58, 1024), [f"s_add_u32 s59, s56, {n*8192}", st(59, 0)], st(59, 1024)]
        arm += [st(57, 0), st(57, 1024)]
        sig = [["s_mov_b64 exec, 1", I("buffer_atomic_add v21, v20, s[8:11], s66 offen", needs=['arm']), "s_mov_b64 exec, -1"]]
        apoll = ["buffer_load_dword v252, v20, s[8:11], s66 offen sc1"]
        achk = [["v_readfirstlane_b32 s50, v252", "s_cmp_lt_u32 s50, 32", "s_cbranch_scc1 L_arm_w", "L_arm_k:"]]
        sS = [x for x in ds['setup'] if x.startswith('s_')]; sV = [x for x in ds['setup'] if not x.startswith('s_')]
        plan = [(setup, 4, 40), (statf, 60, 120), (arm[:armp], 120, stepstart[n_p1]),
                (mix(seg[0], arm[armp:arms], *armw), stepstart[n_p1] + 2, stepstart[n_p2 - 2]),
                (mix(mix(seg[1], sig, sigp, sigp + 0.05), arm[arms:], 0.0, sigp - 0.3), stepstart[n_p2 - 2], stepstart[n_t - 2]),
                (xw('xw2'), ts[3] + 2, ts[3] + 6), (apoll + sS, ts[3] + 6, ts[3] + 12),
                ([I("s_barrier", needs=['xw2'])] + xr + xadd() + outp(OS, 57), ts[3] + 12, ts[0]),
                (otile(3), ts[0] + 2, ts[0] + 2 + min(OW, 20)), (sV + ds['ld0'], ts[0] + 2 + min(OW, 20), ts[1]),
                (otile(0), ts[1] + 2, ts[1] + 2 + min(OW, 16 if prein else 30)), (ds['pre'] if prein else [], ts[1] + 2 + min(OW, 16 if prein else 30), ts[2])]
        ds['prein'] = prein
        if wpf:
            pfs = f"""s_lshr_b32 s50, s2, 3
s_lshl_b32 s50, s50, 2
s_add_u32 s50, s50, s16
s_and_b32 s51, s50, 7
s_and_b32 s52, s2, 3
s_lshl_b32 s52, s52, 3
s_add_u32 s51, s51, s52
s_mul_i32 s51, s51, {WSN*1024}
s_lshr_b32 s50, s50, 3
s_lshl_b32 s50, s50, 14
s_add_u32 s51, s51, s50
s_add_u32 s51, s51, {WSTR + (WSN - 256)*1024}
s_add_u32 s52, s51, 8192
v_lshlrev_b32 v253, 7, v2
buffer_load_dword v254, v253, s[8:11], s51 offen
buffer_load_dword v255, v253, s[8:11], s52 offen""".split("\n")
            plan = plan[:1] + [(pfs, wpf, wpf + 8)] + plan[1:] if wpf < 60 else plan[:2] + [(pfs, wpf, wpf + 8)] + plan[3:]
        o1 = otile(1)
        if EP <= 2: plan += [(achk, ts[2] + 1, ts[2] + 2), (mix(o1, ds['early']), ts[2] + 2, ts[2] + 2 + EW)]
        else: plan += [(o1, ts[2] + 2, ts[2] + EP), (achk + ds['early'], ts[2] + EP, min(len(G), ts[2] + EP + EW))]
    marks = {stepstart[n_p1]: 2, stepstart[n_p2]: 3, stepstart[n_t]: 4, ts[1]: 5}
    if fused: marks = {stepstart[n_p1]: 4, stepstart[n_t]: 5}
    if fine: marks = {}
    if mk: marks = {stepstart[x]: i + 2 for i, x in enumerate(mk)}
    for k, v in marks.items():
        if dbg: G[k] = [stamp(v)] + G[k]
    pos = 0
    for fill, a, b in plan:
        if 'nofill' in X: fill = [f for f in fill if isinstance(f, list) or not ((f if isinstance(f, I) else I(f)).kind in ('valu', 'trans'))]
        assert a >= pos
        for grp in G[pos:a]: p.ext(grp)
        p.ext(interleave(G[a:b], fill))
        pos = b
    for grp in G[pos:]: p.ext(grp)
    if dbg and fine: p(stamp(2))
    p.ext(otile(2))
    extra = ""
    if ds:
        extra = ds['fin'](p) + """L_arm_w:
  buffer_load_dword v252, v20, s[8:11], s66 offen sc1
  s_waitcnt vmcnt(0)
  v_readfirstlane_b32 s50, v252
  s_sub_u32 s49, s49, 1
  s_cmp_eq_u32 s49, 0
  s_cbranch_scc1 L_arm_k
  s_cmp_lt_u32 s50, 32
  s_cbranch_scc1 L_arm_w
  s_branch L_arm_k
"""
    if not dz:
        if dbg: p(stamp(6))
        if dbg: stamp_end(p, 7, name)
        p("s_endpgm")
    idx = {id(i): k for k, i in enumerate(p.ins)}
    for k, i in enumerate(p.ins):
        if i.op == 's_barrier':
            for t in i.needs:
                assert all(kk < k for kk, j in enumerate(p.ins) if j.tag == t), t
    if 'noarm' in X: p.ins = [i for i in p.ins if i.tag != 'arm']
    if 'nolds' in X: p.ins = [i for i in p.ins if not i.op.startswith('ds_read')]
    if 'nobar' in X: p.ins = [i for i in p.ins if i.op != 's_barrier']
    if 'now' in X: p.ins = [i for i in p.ins if not (i.op == 'buffer_load_dwordx4' and not i.isdma)]
    if 'noy' in X: p.ins = [i for i in p.ins if not i.isdma]
    if 'nost' in X: p.ins = [i for i in p.ins if not i.op.startswith('buffer_store_dwordx4')]
    t = p.finish(align) + extra
    if fused: return t, pre_setup, pre_loads
    if align: print('c align', Prog.stats)
    return kernel(name, t, vgpr=256, agpr=256), f"; @launch kernel={name} grid=(256,1,1) block=(256,1,1) lds=163840\n"
```

```python
from asmlib import *
from layout import *
from kc import gelu8

CH0 = [4, 4, 4, 8]
RING = 160

def c3_sched(NG1=4, KO=12, KP=8, xch=True, NQ=9, KT=None):
    S = []
    for kk in range(36):
        for t in range(NG1): S.append(('w1', t, kk))
    for t in range(NG1): S.append(('aug', t, 0))
    for t in range(NG1, 9):
        for kk in range(36): S.append(('w1', t, kk))
        S.append(('aug', t, 0))
    if xch:
        for k in range(KO):
            for n in range(9): S.append(('own', n, k))
        for k in range(KP):
            for n in range(9): S.append(('par', n, k))
        for k in range(KO, 18):
            for n in range(9): S.append(('own', n, k))
        KT = KP if KT is None else KT
        for k in range(KP, KT):
            for n in range(9): S.append(('par', n, k))
        for n in range(9):
            for k in range(KT, 18): S.append(('par', n, k))
    else:
        for k in range(18):
            for n in range(NQ): S.append(('own', n, k))
        for n in range(NQ, 18):
            for k in range(18): S.append(('own', n, k))
    assert len(S) == 657
    return S

def cost(x, CV=4):
    if isinstance(x, list): return sum(cost(y, CV) for y in x)
    i = I(x) if isinstance(x, str) else x
    if i.kind in ('label', 'dir'): return 0
    if i.kind == 'trans': return 8
    if i.kind == 'vm': return CV
    return 4

def gelu_ops(x, k1, k3, TR, e0, out):
    ch = []
    for e in range(16):
        t = TR[(e0 + e) % len(TR)]; v = x + e
        ch.append([f"v_mul_f32 v{t}, v{v}, v{v}", f"v_fma_f32 v{t}, v{t}, v{k3}, v{k1}", f"v_mul_f32 v{t}, v{t}, v{v}",
                   f"v_exp_f32 v{t}, v{t}", f"v_add_f32 v{t}, 1.0, v{t}", f"v_rcp_f32 v{t}, v{t}", f"v_mul_f32 v{t}, v{t}, v{v}"])
    cv = [f"v_cvt_pk_bf16_f32 v{out+i}, v{TR[(e0+2*i) % len(TR)]}, v{TR[(e0+2*i+1) % len(TR)]}" for i in range(8)]
    return ch, cv

def c3_kernel(dbg=False, NG1=4, KO=12, KP=8, xch=True, NQ=9, NW=8, D0=24, RATE=0.3, GS=2, stfl="sc1", hfl="sc1",
              FG=((0, 4), (4, 7), (7, 9)), DF=40, DP=35, DC=40, X=(), mw=4, CS=16, BUD=24, CV=4, CWT=4, amap=0, KT=None, SB=None, SL=7, PL=5, SPC=3, mk=None):
    name = "c_kernel"
    p = Prog()
    S = c3_sched(NG1, KO, KP, xch, NQ, KT)
    NM = len(S)
    vL, vB1, vB2, vK1, vK3, vST, vL4, vZ, vPO = 3, 4, 5, 6, 7, 8, 9, 10, 11
    TMP, H, P = 12, 20, 92
    aY, aW = 0, 144
    aAUG = aW + 4*NW
    aPH, aACC = 0, 72
    p(f"""s_cmp_lt_u32 s2, 256
s_cbranch_scc1 L_{name}_go
s_endpgm
L_{name}_go:
s_load_dwordx2 s[4:5], s[0:1], 80""")
    if dbg: stamp_init(p)
    AM = ["s_and_b32 s17, s2, 7\ns_bfe_u32 s18, s2, 0x10003\ns_lshr_b32 s19, s2, 4",
          "s_and_b32 s17, s2, 3\ns_lshl_b32 s17, s17, 1\ns_bfe_u32 s19, s2, 0x10004\ns_add_u32 s17, s17, s19\ns_bfe_u32 s18, s2, 0x10003\ns_bfe_u32 s19, s2, 0x10002\ns_lshl_b32 s19, s19, 3\ns_lshr_b32 s20, s2, 5\ns_add_u32 s19, s19, s20"][amap]
    p(f"""v_lshrrev_b32 v1, 6, v0
v_and_b32 v2, 63, v0
v_readfirstlane_b32 s16, v1
v_lshlrev_b32 v{vL}, 4, v2
{AM}
s_lshl_b32 s20, s17, 1
s_add_u32 s20, s20, s18
s_lshl_b32 s21, s19, 2
s_add_u32 s21, s21, s16
s_mul_i32 s30, s20, {WS3*1024}
s_add_u32 s30, s30, {WSTR}
s_lshl_b32 s24, s16, 10
s_lshl_b32 s25, s16, 11
s_lshl_b32 s26, s16, 12
s_add_u32 s31, s30, s24
s_add_u32 s32, s30, s25
s_add_u32 s33, s30, s26
s_mul_i32 s27, s21, 36864
s_add_u32 s28, s27, {X1F}
s_lshl_b32 s29, s21, 8
s_add_u32 s29, s29, {ST}
v_lshlrev_b32 v{vL4}, 2, v2
s_mov_b32 s10, {WSSZ}
s_mov_b32 s11, 0x20000
s_mov_b32 s60, 0
s_waitcnt lgkmcnt(0)
s_mov_b32 s8, s4
s_mov_b32 s9, s5""")
    RING = 160 if SB is None else 144
    chunks = []; f = 0
    for n in CH0 + ([16]*40 if CS == 16 else [16, 16] + [32]*19):
        chunks.append((f, n)); f += n
    assert f == WS3
    pos = lambda f: ((f - 20) % RING) * 1024
    cstart = {f0: c for c, (f0, n) in enumerate(chunks)}
    barpos = lambda c: max(0, chunks[c][0] - (NW - 1))
    items = []
    for c, (f0, n) in enumerate(chunks):
        k = n // 4; src = {1: 31, 2: 32, 4: 33, 8: 33}[k]; ld = {1: 24, 2: 25, 4: 26, 8: 26}[k]
        for i in range(k):
            last_old = f0 + min(n, 16*(i//4) + 16) - 1 - RING
            ear = -1
            if last_old >= 0:
                b = next(b for b in range(len(chunks)) if chunks[b][0] - NW - (SL if SB is not None else 0) >= last_old)
                ear = barpos(b)
            L = []
            if i % 4 == 0: L = [f"s_add_u32 m0, s{ld}, {pos(f0 + 4*i)}", f"s_add_u32 s34, s{src}, {(f0 + 4*i)*1024}"]
            L.append(I(f"buffer_load_dwordx4 v{vL}, s[8:11], s34 offen offset:{(i%4)*1024} lds", tag=f"w{c}"))
            items.append((f0 - (NW - 1) - (SL if (SB is not None and c >= SB) else 0), ear, L, 'w'))
    for kk in range(36):
        pre = ["s_addk_i32 s28, 4096"] if (kk % 4 == 0 and kk) else []
        items.append((kk*NG1 - 0.5, -1, pre + [f"buffer_load_dwordx4 a[{aY+4*kk}:{aY+4*kk+3}], v{vL}, s[8:11], s28 offen offset:{(kk%4)*1024}"], 'y'))
    items.sort(key=lambda x: x[0])
    ip = 0
    def issue(g, lim, maxn):
        nonlocal ip
        L = []; k = 0
        while ip < len(items) and items[ip][0] <= lim and items[ip][1] <= g and k < maxn:
            L += items[ip][2]; ip += 1; k += 1
        return L
    p.ext(issue(-1, D0, 99))
    p(f"buffer_load_dword v252, v{vL4}, s[8:11], s29 offen")
    p(f"v_add_u32 v{vB1}, 65536, v{vL}\nv_add_u32 v{vB2}, 131072, v{vL}")
    if SB is not None:
        p(f"""v_lshlrev_b32 v0, 2, v0
v_add_u32 v0, {RING*1024}, v0
v_and_b32 v1, 3, v2
v_lshlrev_b32 v1, 8, v1
v_add_u32 v1, {RING*1024}, v1
v_mov_b32 v{vPO}, 0
ds_write_b32 v0, v{vPO}
s_waitcnt lgkmcnt(0)""")
    setup = f"""s_lshl_b32 s40, s21, 4
s_add_u32 s41, s40, s20
s_xor_b32 s42, s41, 1
s_mul_i32 s43, s41, 18432
s_add_u32 s43, s43, {HX}
s_mul_i32 s44, s42, 18432
s_add_u32 s44, s44, {HX}
s_lshl_b32 s45, s41, 6
s_add_u32 s45, s45, {FLG}
s_lshl_b32 s46, s42, 6
s_add_u32 s46, s46, {FLG}
s_mul_i32 s54, s{17 if xch else 20}, {ACT}
s_add_u32 s54, s54, {PART}
s_add_u32 s54, s54, s27
s_mul_i32 s55, s18, {18432 if xch else 0}
s_add_u32 s54, s54, s55
s_mul_i32 s50, s2, 320
s_mul_i32 s51, s16, 80
s_add_u32 s50, s50, s51
s_add_u32 s50, s50, {KV}
v_mov_b32 v{vZ}, 0""".split("\n") + [["s_mov_b64 exec, 0xfffff", f"buffer_store_dword v{vZ}, v{vL4}, s[8:11], s50 offen", "s_mov_b64 exec, -1"]]
    s = 252; t = TMP
    statf = f"""v_mov_b32 v{t}, v{s}
v_permlane32_swap_b32 v{s}, v{t}
v_mul_f32 v{s}, 0x3ae38e39, v{s}
v_mul_f32 v{t}, 0x3ae38e39, v{t}
v_fma_f32 v{t}, -v{s}, v{s}, v{t}
v_max_f32 v{t}, 0, v{t}
v_mov_b32 v{t+1}, 0x3f800054
v_mov_b32 v{t+2}, 0x2edbe6ff
v_fma_f32 v{t}, v{t}, v{t+1}, v{t+2}
v_rsq_f32 v{t+1}, v{t}
v_mul_f32 v{t}, v{t}, v{t+1}
v_mul_f32 v{vK1}, 0xc0135761, v{t+1}
v_mul_f32 v{t+2}, v{t+1}, v{t+1}
v_mul_f32 v{t+2}, v{t+2}, v{t+1}
v_mul_f32 v{vK3}, 0xbdd2d3e8, v{t+2}
v_sub_f32 v{s}, 0, v{s}
v_cvt_pk_bf16_f32 v{t+3}, v{s}, v{t}
v_lshlrev_b32 v{t+4}, 16, v{t+3}
v_and_b32 v{t+5}, 0xffff0000, v{t+3}
v_sub_f32 v{t+4}, v{s}, v{t+4}
v_sub_f32 v{t+5}, v{t}, v{t+5}
v_cvt_pk_bf16_f32 v{t+6}, v{s}, v{t+4}
v_cvt_pk_bf16_f32 v{t+7}, v{s}, v{t+5}
v_accvgpr_write_b32 a{aAUG}, v{t+6}
v_accvgpr_write_b32 a{aAUG+1}, v{t+3}
v_accvgpr_write_b32 a{aAUG+2}, v{t+6}
v_accvgpr_write_b32 a{aAUG+3}, v{t+7}""".split("\n")
    TR = list(range(TMP, TMP + 8)) + [252, 253, 254, 255]
    first = {}; last = {}
    for f, (k, tl, kk) in enumerate(S):
        key = ('h', tl) if k in ('w1', 'aug') else ('o', tl)
        first.setdefault(key, f); last[key] = f
    NO = 9 if xch else 18
    free = {('v', P + 16*i): -1 for i in range(10)}
    for i in range(4 if xch else 9): free[('a', (aACC if xch else 0) + 16*i)] = last[('h', 8)]
    acc = {}
    def lrd(f):
        L = []
        if f in cstart:
            c = cstart[f]
            if SB is None or c < SB: L.append(I("s_barrier", needs=[f"w{c}"]))
            else: L += [f"s_cbranch_vccnz L_c_sb{c}", f"L_c_sr{c}:"]
        o = pos(f); b = (vL, vB1, vB2)[o >> 16]
        d = aW + 4*(f % NW)
        L.append(I(f"ds_read_b128 a[{d}:{d+3}], v{b} offset:{o & 0xffff}", tag=f"l{f}"))
        return L
    for f in range(NW - 1): p.ext(lrd(f))
    if dbg: p(stamp(1))
    must = {}
    def at(g, L): must.setdefault(g, []).extend(L)
    for i, x in enumerate(setup): at(4 + i, [x])
    for i, x in enumerate(statf): at(60 + i, [x])
    spin = ""
    if SB is not None:
        for c in range(SB, len(chunks)):
            K = barpos(c)
            at(K - SL, [f"v_mov_b32 v{vPO}, {c}", I(f"ds_write_b32 v0, v{vPO}", needs=[f"w{c}"])])
            at(K - PL, [f"ds_read_b32 v{vST}, v1"])
            at(K - 2, [f"v_cmp_gt_u32 vcc, {c}, v{vST}"])
            spin += f"""L_c_sb{c}:
  s_add_u32 s60, s60, 0x1000000
L_c_sl{c}:
  ds_read_b32 v{vST}, v1
  s_waitcnt lgkmcnt(0)
  v_cmp_gt_u32 vcc, {c}, v{vST}
  s_nop 4
  s_cbranch_vccnz L_c_sl{c}
  s_branch L_c_sr{c}
"""
    marks = {36*NG1: 2, 333: 3, 495: 4, 600: 5}
    if mk: marks = {x: i + 2 for i, x in enumerate(mk)}
    chains = {}; cvts = {}
    stage = {}
    when = {}
    cvdone = {}
    hready = {}
    nins = 0
    NT = len(TR)
    nextE = 0
    oq = []
    odone = set(); oend = {}
    fdone = set()
    pkc = [0]
    def outp(n):
        R, a0 = acc[('o', n)]
        L = [f"s_add_u32 s58, s54, {n*2048}"]
        for hf in range(2):
            o = TMP + 4*(pkc[0] % 2); pkc[0] += 1
            src = a0 + 8*hf
            for i in range(4):
                if R == 'a':
                    u = 252 + 2*(i % 2)
                    L += [f"v_accvgpr_read_b32 v{u}, a{src+2*i}", f"v_accvgpr_read_b32 v{u+1}, a{src+2*i+1}", f"v_cvt_pk_bf16_f32 v{o+i}, v{u}, v{u+1}"]
                else: L.append(f"v_cvt_pk_bf16_f32 v{o+i}, v{src+2*i}, v{src+2*i+1}")
            L += [f"v_permlane32_swap_b32 v{o}, v{o+2}", f"v_permlane32_swap_b32 v{o+1}, v{o+3}"]
            L.append(f"buffer_store_dwordx4 v[{o}:{o+3}], v{vL}, s[8:11], s58 offen offset:{hf*1024} {stfl}")
        return L
    hst = 0
    for f, (k, tl, kk) in enumerate(S):
        key = ('h', tl) if k in ('w1', 'aug') else ('o', tl)
        if first[key] == f:
            cand = [r for r, tf in free.items() if tf is not None and tf < f and (key[0] == 'o' or r[0] == 'v')]
            cand.sort(key=lambda r: (r[0] == 'a', r[1]))
            assert cand, (key, f)
            acc[key] = cand[0]; free[cand[0]] = None
        if k == 'own': assert kk in hready and hready[kk] < f, ("own H late", f, kk)
        if k == 'par': assert ('p', kk) in hready and hready[('p', kk)] < f, ("partner H late", f, kk)
        R, a0 = acc[key]
        B = {'w1': f"a[{aY+4*kk}:{aY+4*kk+3}]", 'aug': f"a[{aAUG}:{aAUG+3}]", 'own': f"v[{H+4*kk}:{H+4*kk+3}]", 'par': f"a[{aPH+4*kk}:{aPH+4*kk+3}]"}[k]
        w = aW + 4*(f % NW)
        c = "0" if first[key] == f else f"{R}[{a0}:{a0+15}]"
        grp = []
        if dbg and f in marks: grp.append(stamp(marks[f]))
        grp.append(I(f"v_mfma_f32_32x32x16_bf16 {R}[{a0}:{a0+15}], a[{w}:{w+3}], {B}, {c}", needs=[f"l{f+mw-1}"] if f % mw == 0 else []))
        rest = []
        if f + NW - 1 < NM: rest += lrd(f + NW - 1)
        if f < 36*NG1 or f % SPC == 0: rest += issue(f, f + D0 + f*RATE, 1 if f > 8 else 2)
        for x in must.get(f, []): rest += x if isinstance(x, list) else [x]
        used = cost(rest, CV) + (CWT if (f + 1) % mw == 0 else 0) + (CWT if (f + NW - 1) in cstart else 0)
        nins += 1 + len(rest)
        for t in range(9):
            if last[('h', t)] + GS == f:
                chains[t], cvts[t] = gelu_ops(acc[('h', t)][1], vK1, vK3, TR, 16*t, H + 8*t)
        for n in range(NO):
            if last[('o', n)] + GS == f: oq += [(n, x) for x in outp(n)]
        ntr = 0
        while True:
            room = BUD - used
            pick = None
            t, i = hst // 8, hst % 8
            if t < 9 and stage.get(16*t + 2*i) == 7 and stage.get(16*t + 2*i + 1) == 7 and nins - max(when[16*t+2*i], when[16*t+2*i+1]) >= 2 and room >= 4:
                pick = ('cv', t, i)
            if pick is None:
                cands = [E for E in sorted(stage) if stage[E] < 7]
                if nextE < 144 and nextE // 16 in chains and (nextE < NT or cvdone.get((nextE - NT) // 2)): cands.append(nextE)
                best = None
                for E in cands:
                    sg = stage.get(E, 0); tr = sg in (3, 5)
                    gapn = 3 if sg in (4, 6) else 2
                    if E in when and nins - when[E] < gapn: continue
                    if tr and (room < 8 or ntr >= (1 if BUD <= 24 else 2)): continue
                    if room < 4: continue
                    sc = (0 if (tr and ntr == 0) else 1, E)
                    if best is None or sc < best[0]: best = (sc, E)
                if best: pick = ('op', best[1])
            if pick is None and oq and nextE == 144 and hst == 72 and cost(oq[0][1], CV) <= room: pick = ('o',)
            if pick is None: break
            if pick[0] == 'cv':
                _, t, i = pick
                rest.append(cvts[t][i]); used += 4; nins += 1; cvdone[8*t + i] = True; hst += 1
                del stage[16*t+2*i]; del stage[16*t+2*i+1]
                if i == 7: free[acc[('h', t)]] = f
                if i % 4 == 3:
                    fr = 2*t + i // 4; hready[fr] = f
                    if xch:
                        o = H + 4*fr
                        st = I(f"buffer_store_dwordx4 v[{o}:{o+3}], v{vL}, s[8:11], s43 offen offset:{(fr%4)*1024} {hfl}", tag=f"h{t}")
                        at(f + 1, [st] + (["s_addk_i32 s43, 4096"] if fr % 4 == 3 else []))
                        for gi, (t0, t1) in enumerate(FG):
                            if fr != 2*t1 - 1: continue
                            fa = f + 1 + DF; pa = max(fa + DP, last[('h', 8)] + 1 - DC); ca = pa + DC
                            at(fa, [f"v_mov_b32 v{vL4}, {gi+1}", I(f"buffer_store_dword v{vL4}, v{vZ}, s[8:11], s45 offen sc1", needs=[f"h{x}" for x in range(t0, t1)])])
                            at(pa, [f"buffer_load_dword v2, v{vZ}, s[8:11], s46 offen sc1"])
                            at(ca, ["v_readfirstlane_b32 s47, v2"])
                            at(ca + 1, [f"s_cmp_ge_u32 s47, {gi+1}", f"s_cbranch_scc0 L_c_spin{gi}", f"L_c_back{gi}:"])
                            for j, q in enumerate(range(2*t0, 2*t1)):
                                L = [f"s_add_u32 s48, s44, {(q//4)*4096}"] if (j == 0 or q % 4 == 0) else []
                                at(ca + 2 + j, L + [f"buffer_load_dwordx4 a[{aPH+4*q}:{aPH+4*q+3}], v{vL}, s[8:11], s48 offen offset:{(q%4)*1024} sc1"])
                                hready[('p', q)] = ca + 2 + j
                            if dbg: print("flag", gi, "gelu", f, "store", fa, "poll", pa, "check", ca, "first use", min(g for g, x in enumerate(S) if x[0] == 'par' and x[2] == 2*t0))
                            spin += f"""L_c_spin{gi}:
  s_mov_b32 s49, 0x40000
  s_add_u32 s60, s60, {1 << (8*gi)}
L_c_loop{gi}:
  s_sleep 2
  buffer_load_dword v2, v{vZ}, s[8:11], s46 offen sc1
  s_waitcnt vmcnt(0)
  v_readfirstlane_b32 s47, v2
  s_nop 0
  s_cmp_ge_u32 s47, {gi+1}
  s_cbranch_scc1 L_c_back{gi}
  s_sub_u32 s49, s49, 1
  s_cmp_eq_u32 s49, 0
  s_cbranch_scc0 L_c_loop{gi}
  s_branch L_c_back{gi}
"""
            elif pick[0] == 'op':
                E = pick[1]; sg = stage.get(E, 0)
                x = chains[E // 16][E % 16][sg]
                if 'nofill' not in X: rest.append(x)
                used += 8 if sg in (3, 5) else 4; ntr += sg in (3, 5); nins += 1
                stage[E] = sg + 1; when[E] = nins
                if E == nextE: nextE += 1
            else:
                n, x = oq.pop(0); rest.append(x); used += cost(x, CV); nins += 1
                if not any(m == n for m, _ in oq): free[acc[('o', n)]] = f
        p.ext(grp + rest)
    assert ip == len(items), (ip, len(items))
    assert hst == 72 and all(g < NM for g in must)
    for n in range(NO):
        if last[('o', n)] + GS >= NM: oq += [(n, x) for x in outp(n)]
    if dbg: print("tail instrs", len(oq))
    p.ext([x for _, x in oq])
    if dbg:
        p(stamp(6))
        if 'cnt' in X: p("s_waitcnt lgkmcnt(0)\ns_add_u32 s80, s70, s60")
        if SB is not None: p(f"v_subrev_u32 v0, {RING*1024}, v0\nv_lshrrev_b32 v0, 2, v0")
        stamp_end(p, 7, name)
    p("s_endpgm")
    if 'nobar' in X: p.ins = [I("s_nop 0", needs=i.needs) if i.op == 's_barrier' else i for i in p.ins]
    if 'now' in X: p.ins = [i for i in p.ins if not i.isdma]
    if 'nofw' in X:
        for i in p.ins:
            if i.op == 'buffer_store_dword': i.needs = []
    if 'nopoll' in X: p.ins = [i for i in p.ins if not (i.op == 'buffer_load_dword' and 's46' in i.text) and not 'L_c_spin' in i.text]
    if 'nopl' in X: p.ins = [i for i in p.ins if not 's48 offen' in i.text]
    if 'nohs' in X: p.ins = [i for i in p.ins if not 's43 offen' in i.text]
    if 'noos' in X: p.ins = [i for i in p.ins if not 's58 offen' in i.text]
    if 'nost' in X: p.ins = [i for i in p.ins if not i.op.startswith('buffer_store_dwordx4')]
    t = p.finish() + spin
    if dbg: print("nops", t.count("s_nop"), "waits", t.count("s_waitcnt"))
    return kernel(name, t, vgpr=256, agpr=aAUG + 4), f"; @launch kernel={name} grid=(256,1,1) block=(256,1,1) lds=163840\n"
```

```python
from asmlib import *
from layout import *
from k0 import srd

def d_part(dbg=False, sf="sc1", dot=True, lf="sc1", fine=False):
    p = Prog()
    PL = 32
    XL = 112
    BL = 124
    X = 136
    p(f"""s_lshr_b32 s20, s17, 2
s_lshl_b32 s21, s18, 1
s_add_u32 s20, s20, s21
s_and_b32 s21, s17, 3
s_mul_i32 s22, s20, 36864
s_lshl_b32 s23, s21, 7
s_add_u32 s22, s22, s23
s_lshl_b32 s24, s20, 8
s_lshl_b32 s25, s21, 5
s_add_u32 s24, s24, s25
s_add_u32 s24, s24, {ST}
s_lshl_b32 s25, s20, 5
s_lshl_b32 s26, s21, 3
s_add_u32 s25, s25, s26
s_mul_i32 s25, s25, 1152
s_lshl_b32 s26, s18, 7
s_add_u32 s26, s26, {CNT + 4096}
v_and_b32 v4, 7, v0
v_lshrrev_b32 v5, 3, v0
v_lshlrev_b32 v6, 9, v5
v_lshl_add_u32 v6, v4, 4, v6
v_add_u32 v7, 16384, v6
v_lshrrev_b32 v8, 2, v5
v_lshlrev_b32 v8, 9, v8
v_lshl_add_u32 v8, v4, 4, v8
v_and_b32 v9, 3, v5
v_lshl_add_u32 v8, v9, 2, v8
v_add_u32 v8, 32768, v8
v_lshlrev_b32 v9, 4, v5
v_lshlrev_b32 v10, 2, v5
v_lshlrev_b32 v11, 2, v4
s_add_u32 s27, s22, {X1F}""")
    srd(p, 12, 40, 1152)
    p(f"""buffer_load_dword v24, v11, s[8:11], s24 offen sc1
buffer_load_dword v25, v11, s[8:11], s24 offen offset:128 sc1
buffer_load_dwordx4 v[{XL}:{XL+3}], v6, s[8:11], s27 offen
buffer_load_dwordx4 v[{XL+4}:{XL+7}], v7, s[8:11], s27 offen
buffer_load_dword v{XL+8}, v8, s[8:11], s27 offen
buffer_load_dwordx4 v[{BL}:{BL+3}], v9, s[12:15], 0 offen
buffer_load_dwordx4 v[{BL+4}:{BL+7}], v9, s[12:15], 0 offen offset:512
buffer_load_dword v{BL+8}, v10, s[12:15], 0 offen offset:1024
v_mov_b32 v12, 0
v_mov_b32 v13, 1
s_mov_b32 s49, 0x40000
s_waitcnt vmcnt(8)
s_mov_b64 exec, 1
buffer_atomic_add v13, v12, s[8:11], s26 offen
s_mov_b64 exec, -1""")
    if dbg: p(stamp(3 if fine else 6))
    p(f"""v_mul_f32 v24, 0x3ae38e39, v24
v_mul_f32 v25, 0x3ae38e39, v25
v_fma_f32 v25, -v24, v24, v25
v_max_f32 v25, 0, v25
v_mov_b32 v26, 0x3f800054
v_mov_b32 v27, 0x2edbe6ff
v_fma_f32 v25, v25, v26, v27
v_rsq_f32 v25, v25
v_mov_b32 v14, 0x3f80
v_mov_b32 v15, 0x3f800000
v_mul_u32_u24 v16, 1152, v4
v_add_u32 v17, v16, v10
v_add_u32 v16, v16, v9""")
    nd = [4, 4, 1]
    U = 160
    for r in range(3):
        for i in range(nd[r]):
            x = XL + 4*r + i; b = BL + 4*r + i; u = U + 8*r + 2*i
            p(f"v_lshlrev_b32 v{u}, 16, v{x}\nv_and_b32 v{u+1}, 0xffff0000, v{x}\nv_lshlrev_b32 v{x}, 16, v{b}\nv_and_b32 v{b}, 0xffff0000, v{b}")
    for j in range(8): p(f"s_add_u32 s{28+j}, s22, {PART + j*ACT}")
    p(f"""s_cmp_eq_u32 s16, 0
s_cbranch_scc0 L_cd_go
L_cd_poll:
buffer_load_dword v28, v12, s[8:11], s26 offen sc1
s_waitcnt vmcnt(0)
v_readfirstlane_b32 s50, v28
s_sub_u32 s49, s49, 1
s_cmp_eq_u32 s49, 0
s_cbranch_scc1 L_cd_go
s_cmp_lt_u32 s50, 32
s_cbranch_scc1 L_cd_poll
L_cd_go:
s_barrier""")
    if dbg and fine: p(stamp(4))
    for r in range(2):
        for j in range(8): p(f"buffer_load_dwordx4 v[{PL+32*r+4*j}:{PL+32*r+4*j+3}], v{6+r}, s[8:11], s{28+j} offen {lf}")
    for j in range(8): p(f"buffer_load_dword v{PL+64+j}, v8, s[8:11], s{28+j} offen {lf}")
    if dbg and fine: p("s_waitcnt vmcnt(0)"); p(stamp(5))
    for r in range(3):
        src = lambda j, i: PL + 32*r + 4*j + i if r < 2 else PL + 64 + j
        for i in range(nd[r]): p(f"v_lshlrev_b32 v{X+8*r+2*i}, 16, v{src(0, i)}\nv_and_b32 v{X+8*r+2*i+1}, 0xffff0000, v{src(0, i)}")
        for j in range(1, 8):
            if dot:
                for i in range(nd[r]): p(f"v_dot2c_f32_bf16 v{X+8*r+2*i}, v{src(j, i)}, v14\nv_dot2c_f32_bf16 v{X+8*r+2*i+1}, v{src(j, i)}, v15")
            else:
                for i in range(nd[r]): p(f"v_lshlrev_b32 v28, 16, v{src(j, i)}\nv_and_b32 v29, 0xffff0000, v{src(j, i)}\nv_add_f32 v{X+8*r+2*i}, v{X+8*r+2*i}, v28\nv_add_f32 v{X+8*r+2*i+1}, v{X+8*r+2*i+1}, v29")
        for i in range(nd[r]):
            x = X + 8*r + 2*i
            p(f"v_fma_f32 v{x}, v{x}, v25, v{XL+4*r+i}\nv_fma_f32 v{x+1}, v{x+1}, v25, v{BL+4*r+i}")
        for i in range(2*nd[r]): p(f"v_add_f32 v{X+8*r+i}, v{X+8*r+i}, v{U+8*r+i}")
        for i in range(nd[r]): p(f"v_cvt_pk_bf16_f32 v{PL+32*r+i}, v{X+8*r+2*i}, v{X+8*r+2*i+1}")
    O = [PL, PL + 32, PL + 64]
    if dbg and fine: p(stamp(6))
    p("s_cmp_eq_u32 s62, 0\ns_cbranch_scc1 L_cd_mid")
    srd(p, 12, 42, ACT)
    p(f"""buffer_store_dwordx4 v[{O[0]}:{O[0]+3}], v16, s[12:15], s25 offen {sf}
buffer_store_dwordx4 v[{O[1]}:{O[1]+3}], v16, s[12:15], s25 offen offset:512 {sf}
buffer_store_dword v{O[2]}, v17, s[12:15], s25 offen offset:1024 {sf}""")
    if dbg: stamp_end(p, 7, 'd2')
    p("s_endpgm\nL_cd_mid:")
    p(f"""s_add_u32 s27, s22, {XF}
s_add_u32 s28, s22, {YF}
buffer_store_dwordx4 v[{O[0]}:{O[0]+3}], v6, s[8:11], s27 offen {sf}
buffer_store_dwordx4 v[{O[1]}:{O[1]+3}], v7, s[8:11], s27 offen {sf}
buffer_store_dword v{O[2]}, v8, s[8:11], s27 offen {sf}""")
    XS = []
    for r in range(3):
        for i in range(nd[r]):
            p(f"v_lshlrev_b32 v{X+8*r+2*i}, 16, v{O[r]+i}\nv_and_b32 v{X+8*r+2*i+1}, 0xffff0000, v{O[r]+i}")
            XS += [X+8*r+2*i, X+8*r+2*i+1]
    p(f"v_add_f32 v24, v{XS[0]}, v{XS[1]}\nv_add_f32 v26, v{XS[2]}, v{XS[3]}\nv_mul_f32 v25, v{XS[0]}, v{XS[0]}\nv_mul_f32 v27, v{XS[1]}, v{XS[1]}")
    for k, x in enumerate(XS[4:]): p(f"v_add_f32 v{24 + 2*(k%2)}, v{24 + 2*(k%2)}, v{x}")
    for k, x in enumerate(XS[2:]): p(f"v_fmac_f32 v{25 + 2*(k%2)}, v{x}, v{x}")
    p(f"""v_add_f32 v24, v24, v26
v_add_f32 v25, v25, v27
v_permlane32_swap_b32 v24, v25
v_add_f32 v24, v24, v25
v_mov_b32 v25, v24
v_permlane16_swap_b32 v24, v25
v_add_f32 v24, v24, v25
v_add_f32 v24, v24, v24 row_ror:8
v_bfe_u32 v27, v0, 5, 1
v_lshl_add_u32 v27, v4, 1, v27
v_lshlrev_b32 v27, 4, v27
s_lshl_b32 s29, s16, 2
v_add_u32 v27, s29, v27
v_and_b32 v28, 24, v0
v_cmp_eq_u32 vcc, 0, v28
s_and_saveexec_b64 s[30:31], vcc
ds_write_b32 v27, v24
s_mov_b64 exec, s[30:31]
v_lshlrev_b32 v27, 5, v4
s_mul_i32 s24, s2, 320
s_mul_i32 s25, s16, 80
s_add_u32 s24, s24, s25
s_add_u32 s24, s24, {KV + KVL}
v_lshlrev_b32 v28, 2, v2
s_mov_b64 exec, 0xfffff
buffer_store_dword v12, v28, s[8:11], s24 offen
s_mov_b64 exec, -1
s_waitcnt lgkmcnt(0)
s_barrier
ds_read_b128 v[20:23], v27
ds_read_b128 v[28:31], v27 offset:16
v_add_f32 v20, v20, v21
v_add_f32 v22, v22, v23
v_add_f32 v28, v28, v29
v_add_f32 v30, v30, v31
v_add_f32 v20, v20, v22
v_add_f32 v28, v28, v30
v_mul_f32 v20, 0x3ae38e39, v20
v_mul_f32 v28, 0x3ae38e39, v28
v_fma_f32 v28, -v20, v20, v28
v_max_f32 v28, 0, v28
v_add_f32 v28, 0x3727c5ac, v28
v_rsq_f32 v28, v28""")
    for x in XS: p(f"v_sub_f32 v{x}, v{x}, v20")
    for x in XS: p(f"v_mul_f32 v{x}, v{x}, v28")
    for k in range(9): p(f"v_cvt_pk_bf16_f32 v{U+k}, v{XS[2*k]}, v{XS[2*k+1]}")
    p(f"""buffer_store_dwordx4 v[{U}:{U+3}], v6, s[8:11], s28 offen {sf}
buffer_store_dwordx4 v[{U+4}:{U+7}], v7, s[8:11], s28 offen {sf}
buffer_store_dword v{U+8}, v8, s[8:11], s28 offen {sf}""")
    if dbg: stamp_end(p, 7, 'd1')
    p("s_endpgm")
    return p.finish()


def d_cnt2(dbg=False, sf="sc1", dot=True, lf="sc1", fine=False, pa='early', pb='first', NA=8):
    p = Prog()
    CB = 128
    PL = 32
    XL = 112
    BL = 124
    X = 136
    p(f"""s_lshl_b32 s26, s18, 8
s_add_u32 s26, s26, {CNT + 4096}
v_mov_b32 v12, 0
v_mov_b32 v13, 1
s_waitcnt vmcnt({NA})
s_mov_b64 exec, 1
buffer_atomic_add v13, v12, s[8:11], s26 offen
s_mov_b64 exec, -1
s_lshr_b32 s20, s17, 2
s_lshl_b32 s21, s18, 1
s_add_u32 s20, s20, s21
s_and_b32 s21, s17, 3
s_mul_i32 s22, s20, 36864
s_lshl_b32 s23, s21, 7
s_add_u32 s22, s22, s23
s_lshl_b32 s24, s20, 8
s_lshl_b32 s25, s21, 5
s_add_u32 s24, s24, s25
s_add_u32 s24, s24, {ST}
s_lshl_b32 s25, s20, 5
s_lshl_b32 s27, s21, 3
s_add_u32 s25, s25, s27
s_mul_i32 s25, s25, 1152
v_and_b32 v4, 7, v0
v_lshrrev_b32 v5, 3, v0
v_add_u32 v18, 48, v5
v_and_b32 v18, 63, v18
v_lshlrev_b32 v6, 9, v18
v_lshl_add_u32 v6, v4, 4, v6
v_lshlrev_b32 v7, 9, v5
v_lshl_add_u32 v7, v4, 4, v7
v_add_u32 v7, 8192, v7
v_lshlrev_b32 v18, 4, v18
v_lshrrev_b32 v8, 2, v5
v_lshlrev_b32 v8, 9, v8
v_lshl_add_u32 v8, v4, 4, v8
v_and_b32 v9, 3, v5
v_lshl_add_u32 v8, v9, 2, v8
v_add_u32 v8, 32768, v8
v_lshlrev_b32 v9, 4, v5
v_lshlrev_b32 v10, 2, v5
v_lshlrev_b32 v11, 2, v4
s_add_u32 s27, s22, {X1F}""")
    srd(p, 12, 40, 1152)
    p(f"""buffer_load_dword v24, v11, s[8:11], s24 offen sc1
buffer_load_dword v25, v11, s[8:11], s24 offen offset:128 sc1
buffer_load_dwordx4 v[{XL}:{XL+3}], v6, s[8:11], s27 offen
buffer_load_dwordx4 v[{XL+4}:{XL+7}], v7, s[8:11], s27 offen
buffer_load_dword v{XL+8}, v8, s[8:11], s27 offen
buffer_load_dwordx4 v[{BL}:{BL+3}], v18, s[12:15], 0 offen
buffer_load_dwordx4 v[{BL+4}:{BL+7}], v9, s[12:15], 0 offen offset:256
buffer_load_dword v{BL+8}, v10, s[12:15], 0 offen offset:1024
s_mov_b32 s49, 0x40000""")
    for j in range(8): p(f"s_add_u32 s{28+j}, s22, {PART + j*ACT}")
    pl = lambda o: f"buffer_load_dword v28, v12, s[8:11], s26 offen offset:{o} sc1"
    if pa == 'early': p(pl(0))
    p(f"""s_waitcnt vmcnt({10 if pa == 'early' else 9})
s_mov_b64 exec, 1
buffer_atomic_add v13, v12, s[8:11], s26 offen offset:{CB}
s_mov_b64 exec, -1""")
    if pa != 'early': p(pl(0))
    if dbg: p(stamp(3 if fine else 6))
    p(f"""v_mul_f32 v24, 0x3ae38e39, v24
v_mul_f32 v25, 0x3ae38e39, v25
v_fma_f32 v25, -v24, v24, v25
v_max_f32 v25, 0, v25
v_mov_b32 v26, 0x3f800054
v_mov_b32 v27, 0x2edbe6ff
v_fma_f32 v25, v25, v26, v27
v_rsq_f32 v25, v25
v_mov_b32 v14, 0x3f80
v_mov_b32 v15, 0x3f800000
v_mul_u32_u24 v16, 1152, v4
v_add_u32 v17, v16, v10
v_add_u32 v18, v16, v18
v_add_u32 v16, v16, v9""")
    nd = [4, 4, 1]
    U = 160
    for r in range(3):
        for i in range(nd[r]):
            x = XL + 4*r + i; b = BL + 4*r + i; u = U + 8*r + 2*i
            p(f"v_lshlrev_b32 v{u}, 16, v{x}\nv_and_b32 v{u+1}, 0xffff0000, v{x}\nv_lshlrev_b32 v{x}, 16, v{b}\nv_and_b32 v{b}, 0xffff0000, v{b}")
    def spin(n, o):
        p(f"""v_readfirstlane_b32 s50, v28
s_cmp_lt_u32 s50, 32
s_cbranch_scc0 L_cd_go{n}
L_cd_poll{n}:
{pl(o)} ; @
s_waitcnt vmcnt(0)
v_readfirstlane_b32 s50, v28
s_sub_u32 s49, s49, 1
s_cmp_eq_u32 s49, 0
s_cbranch_scc1 L_cd_go{n}
s_cmp_lt_u32 s50, 32
s_cbranch_scc1 L_cd_poll{n}
L_cd_go{n}:""".replace("s_waitcnt vmcnt(0)", "s_waitcnt vmcnt(0) ; @"))
    spin(0, 0)
    if dbg and fine: p(stamp(4))
    if pb == 'first': p(pl(CB))
    for j in range(8): p(f"buffer_load_dword v{PL+64+j}, v8, s[8:11], s{28+j} offen {lf}")
    for j in range(8): p(f"buffer_load_dwordx4 v[{PL+4*j}:{PL+4*j+3}], v6, s[8:11], s{28+j} offen {lf}")
    if pb != 'first': p(pl(CB))
    spin(1, CB)
    if dbg and fine: p(stamp(5))
    for j in range(8): p(f"buffer_load_dwordx4 v[{PL+32+4*j}:{PL+32+4*j+3}], v7, s[8:11], s{28+j} offen {lf}")
    for r in (2, 0, 1):
        src = lambda j, i: PL + 32*r + 4*j + i if r < 2 else PL + 64 + j
        for i in range(nd[r]): p(f"v_lshlrev_b32 v{X+8*r+2*i}, 16, v{src(0, i)}\nv_and_b32 v{X+8*r+2*i+1}, 0xffff0000, v{src(0, i)}")
        for j in range(1, 8):
            if dot:
                for i in range(nd[r]): p(f"v_dot2c_f32_bf16 v{X+8*r+2*i}, v{src(j, i)}, v14\nv_dot2c_f32_bf16 v{X+8*r+2*i+1}, v{src(j, i)}, v15")
            else:
                for i in range(nd[r]): p(f"v_lshlrev_b32 v28, 16, v{src(j, i)}\nv_and_b32 v29, 0xffff0000, v{src(j, i)}\nv_add_f32 v{X+8*r+2*i}, v{X+8*r+2*i}, v28\nv_add_f32 v{X+8*r+2*i+1}, v{X+8*r+2*i+1}, v29")
        for i in range(nd[r]):
            x = X + 8*r + 2*i
            p(f"v_fma_f32 v{x}, v{x}, v25, v{XL+4*r+i}\nv_fma_f32 v{x+1}, v{x+1}, v25, v{BL+4*r+i}")
        for i in range(2*nd[r]): p(f"v_add_f32 v{X+8*r+i}, v{X+8*r+i}, v{U+8*r+i}")
        for i in range(nd[r]): p(f"v_cvt_pk_bf16_f32 v{PL+32*r+i}, v{X+8*r+2*i}, v{X+8*r+2*i+1}")
    O = [PL, PL + 32, PL + 64]
    if dbg and fine: p(stamp(6))
    p("s_cmp_eq_u32 s62, 0\ns_cbranch_scc1 L_cd_mid")
    srd(p, 12, 42, ACT)
    p(f"""buffer_store_dwordx4 v[{O[0]}:{O[0]+3}], v18, s[12:15], s25 offen {sf}
buffer_store_dwordx4 v[{O[1]}:{O[1]+3}], v16, s[12:15], s25 offen offset:256 {sf}
buffer_store_dword v{O[2]}, v17, s[12:15], s25 offen offset:1024 {sf}""")
    if dbg: stamp_end(p, 7, 'd2')
    p("s_endpgm\nL_cd_mid:")
    p(f"""s_add_u32 s27, s22, {XF}
s_add_u32 s28, s22, {YF}
buffer_store_dwordx4 v[{O[0]}:{O[0]+3}], v6, s[8:11], s27 offen {sf}
buffer_store_dwordx4 v[{O[1]}:{O[1]+3}], v7, s[8:11], s27 offen {sf}
buffer_store_dword v{O[2]}, v8, s[8:11], s27 offen {sf}""")
    XS = []
    for r in range(3):
        for i in range(nd[r]):
            p(f"v_lshlrev_b32 v{X+8*r+2*i}, 16, v{O[r]+i}\nv_and_b32 v{X+8*r+2*i+1}, 0xffff0000, v{O[r]+i}")
            XS += [X+8*r+2*i, X+8*r+2*i+1]
    p(f"v_add_f32 v24, v{XS[0]}, v{XS[1]}\nv_add_f32 v26, v{XS[2]}, v{XS[3]}\nv_mul_f32 v25, v{XS[0]}, v{XS[0]}\nv_mul_f32 v27, v{XS[1]}, v{XS[1]}")
    for k, x in enumerate(XS[4:]): p(f"v_add_f32 v{24 + 2*(k%2)}, v{24 + 2*(k%2)}, v{x}")
    for k, x in enumerate(XS[2:]): p(f"v_fmac_f32 v{25 + 2*(k%2)}, v{x}, v{x}")
    p(f"""v_add_f32 v24, v24, v26
v_add_f32 v25, v25, v27
v_permlane32_swap_b32 v24, v25
v_add_f32 v24, v24, v25
v_mov_b32 v25, v24
v_permlane16_swap_b32 v24, v25
v_add_f32 v24, v24, v25
v_add_f32 v24, v24, v24 row_ror:8
v_bfe_u32 v27, v0, 5, 1
v_lshl_add_u32 v27, v4, 1, v27
v_lshlrev_b32 v27, 4, v27
s_lshl_b32 s29, s16, 2
v_add_u32 v27, s29, v27
v_and_b32 v28, 24, v0
v_cmp_eq_u32 vcc, 0, v28
s_and_saveexec_b64 s[30:31], vcc
ds_write_b32 v27, v24
s_mov_b64 exec, s[30:31]
v_lshlrev_b32 v27, 5, v4
s_mul_i32 s24, s2, 320
s_mul_i32 s25, s16, 80
s_add_u32 s24, s24, s25
s_add_u32 s24, s24, {KV + KVL}
v_lshlrev_b32 v28, 2, v2
s_mov_b64 exec, 0xfffff
buffer_store_dword v12, v28, s[8:11], s24 offen
s_mov_b64 exec, -1
s_waitcnt lgkmcnt(0)
s_barrier
ds_read_b128 v[20:23], v27
ds_read_b128 v[28:31], v27 offset:16
v_add_f32 v20, v20, v21
v_add_f32 v22, v22, v23
v_add_f32 v28, v28, v29
v_add_f32 v30, v30, v31
v_add_f32 v20, v20, v22
v_add_f32 v28, v28, v30
v_mul_f32 v20, 0x3ae38e39, v20
v_mul_f32 v28, 0x3ae38e39, v28
v_fma_f32 v28, -v20, v20, v28
v_max_f32 v28, 0, v28
v_add_f32 v28, 0x3727c5ac, v28
v_rsq_f32 v28, v28""")
    for x in XS: p(f"v_sub_f32 v{x}, v{x}, v20")
    for x in XS: p(f"v_mul_f32 v{x}, v{x}, v28")
    for k in range(9): p(f"v_cvt_pk_bf16_f32 v{U+k}, v{XS[2*k]}, v{XS[2*k+1]}")
    p(f"""buffer_store_dwordx4 v[{U}:{U+3}], v6, s[8:11], s28 offen {sf}
buffer_store_dwordx4 v[{U+4}:{U+7}], v7, s[8:11], s28 offen {sf}
buffer_store_dword v{U+8}, v8, s[8:11], s28 offen {sf}""")
    if dbg: stamp_end(p, 7, 'd1')
    p("s_endpgm")
    return p.finish()


def d_sent(dbg=False, sf="sc1", lf="sc1", fine=False, early=(4, 3), mid=(0, 1), wown=True):
    GR = {4: 240, 3: 168, 0: 40, 1: 56, 2: 88}
    RX, RB, RS = 216, 226, 236
    U, X, O = 104, 184, 204
    T0 = 24
    ci = lambda g: 4*g
    D = {}
    D['setup'] = f"""s_lshr_b32 s20, s17, 2
s_lshl_b32 s21, s18, 1
s_add_u32 s20, s20, s21
s_and_b32 s21, s17, 3
s_mul_i32 s22, s20, 36864
s_lshl_b32 s23, s21, 7
s_add_u32 s22, s22, s23
s_lshl_b32 s24, s20, 8
s_lshl_b32 s25, s21, 5
s_add_u32 s24, s24, s25
s_add_u32 s24, s24, {ST}
s_lshl_b32 s25, s20, 5
s_lshl_b32 s26, s21, 3
s_add_u32 s25, s25, s26
s_mul_i32 s25, s25, 1152
s_add_u32 s27, s22, {X1F}
v_lshrrev_b32 v5, 4, v0
v_and_b32 v4, 15, v0
v_lshlrev_b32 v6, 9, v5
v_lshl_add_u32 v6, v4, 3, v6
v_add_u32 v7, 8192, v6
v_add_u32 v8, 16384, v6
v_add_u32 v9, 24576, v6
v_bfe_u32 v4, v0, 1, 3
v_and_b32 v12, 1, v0
v_lshl_add_u32 v12, v5, 1, v12
v_lshlrev_b32 v11, 3, v12
v_lshrrev_b32 v10, 2, v12
v_lshlrev_b32 v10, 9, v10
v_lshl_add_u32 v10, v4, 4, v10
v_and_b32 v16, 3, v12
v_lshl_add_u32 v10, v16, 2, v10
v_add_u32 v10, 32768, v10
v_lshlrev_b32 v12, 2, v12
v_lshlrev_b32 v16, 2, v4
v_mul_u32_u24 v17, 1152, v4
v_add_u32 v18, v17, v12
v_add_u32 v17, v17, v11
s_mov_b32 s12, s40
s_mov_b32 s13, s41
s_mov_b32 s14, 1152
s_mov_b32 s15, 0x20000
s_mov_b32 s28, 0x3f80
s_mov_b32 s29, 0x3f800000
s_mov_b32 s49, 0x40000""".split("\n") + [f"s_add_u32 s{32+j}, s22, {PART + j*ACT}" for j in range(8)]
    D['ld0'] = [f"buffer_load_dword v{RS}, v16, s[8:11], s24 offen sc1", f"buffer_load_dword v{RS+1}, v16, s[8:11], s24 offen offset:128 sc1"] + \
        [f"buffer_load_dwordx2 v[{RX+2*g}:{RX+2*g+1}], v{6+g}, s[8:11], s27 offen" for g in range(4)] + [f"buffer_load_dword v{RX+8}, v10, s[8:11], s27 offen"] + \
        [f"buffer_load_dwordx2 v[{RB+2*g}:{RB+2*g+1}], v11, s[12:15], 0 offen offset:{256*g}" for g in range(4)] + [f"buffer_load_dword v{RB+8}, v12, s[12:15], 0 offen offset:1024"]
    a, b = RS, RS + 1
    pre = f"""v_mul_f32 v{a}, 0x3ae38e39, v{a}
v_mul_f32 v{b}, 0x3ae38e39, v{b}
v_fma_f32 v{b}, -v{a}, v{a}, v{b}
v_max_f32 v{b}, 0, v{b}
v_mov_b32 v{a}, 0x3f800054
v_mov_b32 v{RS+2}, 0x2edbe6ff
v_fma_f32 v{b}, v{b}, v{a}, v{RS+2}
v_rsq_f32 v{b}, v{b}""".split("\n")
    for i in range(9):
        x = RX + i; bb = RB + i; t = T0 + 2*(i % 4)
        pre += [f"v_lshlrev_b32 v{t}, 16, v{x}", f"v_lshlrev_b32 v{t+1}, 16, v{bb}", f"v_and_b32 v{x}, 0xffff0000, v{x}", f"v_and_b32 v{bb}, 0xffff0000, v{bb}",
                f"v_add_f32 v{bb}, v{x}, v{bb}", f"v_add_f32 v{x}, v{t}, v{t+1}"]
    D['pre'] = pre
    def gl(g):
        r = GR[g]
        if g == 4: return [f"buffer_load_dword v{r+j}, v10, s[8:11], s{32+j} offen {lf}" for j in range(8)]
        return [f"buffer_load_dwordx2 v[{r+2*j}:{r+2*j+1}], v{6+g}, s[8:11], s{32+j} offen {lf}" for j in range(8)]
    D['early'] = [x for g in early for x in gl(g)]
    def chk(g):
        r = GR[g]; n = 8 if g == 4 else 16
        L = [f"v_max3_u32 v{T0}, v{r}, v{r+1}, v{r+2}", f"v_max3_u32 v{T0+1}, v{r+3}, v{r+4}, v{r+5}"]
        k = 6
        while k + 1 < n:
            t = T0 + (k // 2 + 1) % 2
            L.append(f"v_max3_u32 v{t}, v{t}, v{r+k}, v{r+k+1}"); k += 2
        L += [f"v_max_u32 v{T0}, v{T0}, v{T0+1}", f"v_cmp_eq_u32 vcc, -1, v{T0}"]
        return L
    tail = []
    def use(p, g):
        p.ext(chk(g))
        p(f"s_cbranch_vccnz L_dr{g}\nL_dk{g}:")
        q = Prog()
        q(f"L_dr{g}:\ns_sub_u32 s49, s49, 1\ns_cmp_eq_u32 s49, 0\ns_cbranch_scc1 L_dk{g}")
        q.ext(gl(g)); q("s_waitcnt vmcnt(0)"); q.ext(chk(g))
        q(f"s_cbranch_vccnz L_dr{g}\ns_branch L_dk{g}")
        tail.append(q.finish())
        r = GR[g]; nd = 1 if g == 4 else 2; x = X + ci(g)
        for i in range(nd): p(f"v_lshlrev_b32 v{x+2*i}, 16, v{r+i}\nv_and_b32 v{x+2*i+1}, 0xffff0000, v{r+i}")
        for j in range(1, 8):
            for i in range(nd): p(f"v_dot2c_f32_bf16 v{x+2*i}, s28, v{r+nd*j+i}\nv_dot2c_f32_bf16 v{x+2*i+1}, s29, v{r+nd*j+i}")
        for i in range(2*nd): p(f"v_fma_f32 v{x+i}, v{x+i}, v{RS+1}, v{(RX, RB)[i % 2] + 2*g + i//2}")
        for i in range(nd): p(f"v_cvt_pk_bf16_f32 v{O+2*g+i}, v{x+2*i}, v{x+2*i+1}")
    def fin(p):
        for g in mid: p.ext(gl(g))
        late = [g for g in (4, 3, 0, 1, 2) if g not in early and g not in mid]
        if not D['prein']: p.ext(pre)
        for g in early: use(p, g)
        if dbg and fine: p(stamp(3))
        first = True
        for g in late:
            L = gl(g)
            p(L[0], needs=['o2'] if (wown and first) else []); p.ext(L[1:]); first = False
        if dbg and fine: p(stamp(4))
        for g in mid: use(p, g)
        if dbg and fine: p(stamp(5))
        for g in late: use(p, g)
        if dbg and fine: p(stamp(6))
        p("s_cmp_eq_u32 s62, 0\ns_cbranch_scc1 L_cd_mid")
        srd(p, 12, 42, ACT)
        for g in range(4): p(f"buffer_store_dwordx2 v[{O+2*g}:{O+2*g+1}], v17, s[12:15], s25 offen offset:{256*g} {sf}")
        p(f"buffer_store_dword v{O+8}, v18, s[12:15], s25 offen offset:1024 {sf}")
        if dbg: stamp_end(p, 7, 'd2')
        p("s_endpgm\nL_cd_mid:")
        p(f"s_add_u32 s27, s22, {XF}\ns_add_u32 s26, s22, {YF}")
        for g in range(4): p(f"buffer_store_dwordx2 v[{O+2*g}:{O+2*g+1}], v{6+g}, s[8:11], s27 offen {sf}")
        p(f"buffer_store_dword v{O+8}, v10, s[8:11], s27 offen {sf}")
        for i in range(9): p(f"v_lshlrev_b32 v{X+2*i}, 16, v{O+i}\nv_and_b32 v{X+2*i+1}, 0xffff0000, v{O+i}")
        XS = list(range(X, X + 18))
        p(f"v_add_f32 v24, v{XS[0]}, v{XS[1]}\nv_add_f32 v26, v{XS[2]}, v{XS[3]}\nv_mul_f32 v25, v{XS[0]}, v{XS[0]}\nv_mul_f32 v27, v{XS[1]}, v{XS[1]}")
        for k, x in enumerate(XS[4:]): p(f"v_add_f32 v{24 + 2*(k%2)}, v{24 + 2*(k%2)}, v{x}")
        for k, x in enumerate(XS[2:]): p(f"v_fmac_f32 v{25 + 2*(k%2)}, v{x}, v{x}")
        p(f"""v_add_f32 v24, v24, v26
v_add_f32 v25, v25, v27
v_permlane32_swap_b32 v24, v25
v_add_f32 v24, v24, v25
v_mov_b32 v25, v24
v_permlane16_swap_b32 v24, v25
v_add_f32 v24, v24, v25
v_add_f32 v24, v24, v24 quad_perm:[1,0,3,2] row_mask:0xf bank_mask:0xf
v_bfe_u32 v27, v0, 5, 1
v_lshl_add_u32 v27, v4, 1, v27
v_lshlrev_b32 v27, 4, v27
s_lshl_b32 s29, s16, 2
v_add_u32 v27, s29, v27
v_and_b32 v28, 17, v0
v_cmp_eq_u32 vcc, 0, v28
s_and_saveexec_b64 s[30:31], vcc
ds_write_b32 v27, v24
s_mov_b64 exec, s[30:31]
v_lshlrev_b32 v27, 5, v4
s_mul_i32 s24, s2, 320
s_mul_i32 s25, s16, 80
s_add_u32 s24, s24, s25
s_add_u32 s24, s24, {KV + KVL}
v_lshlrev_b32 v28, 2, v2
v_mov_b32 v12, 0
s_mov_b64 exec, 0xfffff
buffer_store_dword v12, v28, s[8:11], s24 offen
s_mov_b64 exec, -1
s_waitcnt lgkmcnt(0)
s_barrier
ds_read_b128 v[20:23], v27
ds_read_b128 v[28:31], v27 offset:16
v_add_f32 v20, v20, v21
v_add_f32 v22, v22, v23
v_add_f32 v28, v28, v29
v_add_f32 v30, v30, v31
v_add_f32 v20, v20, v22
v_add_f32 v28, v28, v30
v_mul_f32 v20, 0x3ae38e39, v20
v_mul_f32 v28, 0x3ae38e39, v28
v_fma_f32 v28, -v20, v20, v28
v_max_f32 v28, 0, v28
v_add_f32 v28, 0x3727c5ac, v28
v_rsq_f32 v28, v28""")
        for x in XS: p(f"v_sub_f32 v{x}, v{x}, v20")
        for x in XS: p(f"v_mul_f32 v{x}, v{x}, v28")
        for k in range(9): p(f"v_cvt_pk_bf16_f32 v{U+k}, v{XS[2*k]}, v{XS[2*k+1]}")
        for g in range(4): p(f"buffer_store_dwordx2 v[{U+2*g}:{U+2*g+1}], v{6+g}, s[8:11], s26 offen {sf}")
        p(f"buffer_store_dword v{U+8}, v10, s[8:11], s26 offen {sf}")
        if dbg: stamp_end(p, 7, 'd1')
        p("s_endpgm")
        return "".join(tail)
    D['fin'] = fin
    return D
```

```python
YF   = 0x0000000
XF   = 0x0240000
X1F  = 0x0480000
PQ16 = 0x06C0000
PQ4  = 0x08C0000
KV   = 0x0940000
KVL  = 32*2560
ST   = 0x0968000
STL  = 16384
WQF  = 0x0A00000
WOF  = 0x0E00000
PART = 0x2000000
ACT  = 2359296
WSSZ = 0x10000000
WSTR = 0x1000000
WSN = 329
WS3 = 660
HX   = 0x5000000
FLG  = 0x0970000
CNT  = FLG
```

```python
import re

def _expand(tok):
    tok = tok.strip()
    tok = re.sub(r'^-', '', tok)
    m = re.match(r'^(?:abs\(|\|)(.*?)(?:\)|\|)$', tok)
    if m: tok = m.group(1)
    m = re.match(r'^([vsa])\[(\d+):(\d+)\]$', tok)
    if m: return [f"{m.group(1)}{i}" for i in range(int(m.group(2)), int(m.group(3)) + 1)]
    m = re.match(r'^([vsa])(\d+)$', tok)
    if m: return [tok]
    if tok in ('vcc', 'exec'): return [tok]
    if tok in ('vcc_lo', 'vcc_hi'): return ['vcc']
    if tok in ('exec_lo', 'exec_hi'): return ['exec']
    if tok == 'm0': return ['m0']
    return []

TRANS = ('v_exp_f32', 'v_log_f32', 'v_rcp_f32', 'v_rsq_f32', 'v_sqrt_f32', 'v_sin_f32', 'v_cos_f32', 'v_rcp_iflag_f32')

class I:
    __slots__ = ('text', 'op', 'kind', 'w', 'r', 'tag', 'needs', 'srcC', 'passes', 'isdma', 'wide', 'sdata')
    def __init__(self, text, tag=None, needs=()):
        self.text = text.strip(); self.tag = tag; self.needs = list(needs)
        self.srcC = []; self.passes = 0; self.isdma = False; self.wide = False; self.sdata = []
        t = self.text.split(';')[0].strip()
        if t.endswith(':') or t == '' or t.startswith('.'):
            self.op = 'label' if t.endswith(':') else 'dir'; self.kind = self.op; self.w = []; self.r = []; return
        parts = t.split(None, 1)
        self.op = op = re.sub(r'_(e32|e64|dpp|sdwa)$', '', parts[0])
        rest = parts[1] if len(parts) > 1 else ''
        ops = [x.strip() for x in re.split(r',(?![^\[]*\])', rest)]
        mods = ''
        if ops:
            lp = ops[-1].split(None, 1)
            if lp:
                ops[-1] = lp[0]
                mods = lp[1] if len(lp) > 1 else ''
        E = lambda i: _expand(ops[i]) if i < len(ops) else []
        allr = lambda a: [x for i in range(a, len(ops)) for x in E(i)]
        w, r = [], []
        if op.startswith('v_mfma'):
            self.kind = 'mfma'; w = E(0); r = E(1) + E(2) + E(3); self.srcC = E(3)
            self.passes = 8 if '32x32' in op else 4
        elif op.startswith('ds_read') or op.startswith('ds_bpermute') or op.startswith('ds_swizzle') or op.startswith('ds_permute'):
            self.kind = 'dsr'; w = E(0); r = allr(1)
        elif op.startswith('ds_write') or op.startswith('ds_add'):
            self.kind = 'dsw'; r = allr(0)
        elif op.startswith('buffer_load') or op.startswith('global_load'):
            self.kind = 'vm'
            if ' lds' in (' ' + mods) or op.startswith('global_load_lds'):
                self.isdma = True; r = allr(0) + ['m0']
            else:
                w = E(0); r = allr(1)
                if 'd16' in op: r += E(0)
        elif op.startswith('buffer_store') or op.startswith('global_store') or op.startswith('buffer_atomic') or op.startswith('global_atomic'):
            self.kind = 'vm'; r = allr(0)
            if op.startswith('buffer_'): self.sdata = E(0)
            else: self.sdata = E(1)
            if 'x4' in op or 'x3' in op: self.wide = True
            if 'atomic' in op and 'sc0' in mods: w = E(0)
        elif op.startswith('buffer_wbl2') or op.startswith('buffer_inv'):
            self.kind = 'vm'
        elif op.startswith('s_load') or op.startswith('s_memtime') or op.startswith('s_memrealtime') or op.startswith('s_buffer_load'):
            self.kind = 'smem'; w = E(0); r = allr(1)
        elif op in ('s_waitcnt', 's_barrier', 's_nop', 's_setprio', 's_endpgm', 's_sleep', 's_branch') or op.startswith('s_cbranch'):
            self.kind = 'ctl'
            if 'scc' in op: r = ['scc']
            if 'vcc' in op: r = ['vcc']
            if 'exec' in op: r = ['exec']
        elif op.startswith('s_cmp') or op.startswith('s_bitcmp'):
            self.kind = 'salu'; w = ['scc']; r = allr(0)
        elif op.startswith('s_'):
            self.kind = 'salu'; w = E(0); r = allr(1)
            if 'saveexec' in op: w += ['exec']; r += ['exec']
            if op in ('s_addc_u32', 's_subb_u32', 's_cselect_b32', 's_cselect_b64'): r += ['scc']
            if op in ('s_addk_i32', 's_mulk_i32'): r += E(0)
            if not op.startswith('s_mov') and not op.startswith('s_mul') and not op.startswith('s_cselect') and not op.startswith('s_getreg'): w += ['scc']
        elif op.startswith('v_'):
            self.kind = 'trans' if op in TRANS else 'valu'
            if op.startswith('v_cmp'):
                w = E(0); r = allr(1)
                if op.startswith('v_cmpx'): w += ['exec']
            elif op in ('v_add_co_u32', 'v_sub_co_u32', 'v_addc_co_u32', 'v_subb_co_u32'):
                w = E(0) + E(1); r = allr(2)
            elif op.startswith('v_permlane') and 'swap' in op:
                w = E(0) + E(1); r = E(0) + E(1)
            else:
                w = E(0); r = allr(1)
                if op.startswith('v_fmac') or op.startswith('v_pk_fmac') or op in ('v_writelane_b32',) or op.startswith('v_dot2c'): r += E(0)
                if ('row_' in mods or 'quad_perm' in mods or 'wave_' in mods or 'bank_mask' in mods): self.kind = 'dpp'; r += E(0)
                if 'dst_sel' in mods or 'op_sel' in mods: r += E(0)
        else:
            raise ValueError("unknown op " + text)
        self.w = w; self.r = r
    def states(self):
        if self.op == 's_nop':
            return int(self.text.split()[1], 0) + 1
        if self.kind in ('label', 'dir'): return 0
        return 1
    def isvalu(self): return self.kind in ('valu', 'trans', 'dpp')

class Prog:
    def __init__(self):
        self.ins = []
    def add(self, text, tag=None, needs=()):
        for line in text.split('\n'):
            if line.strip(): self.ins.append(I(line, tag, needs))
        return self
    def __call__(self, text, tag=None, needs=()): return self.add(text, tag, needs)
    def ext(self, lst):
        for x in lst:
            if isinstance(x, I): self.ins.append(x)
            else: self.add(x)
    def resolve_waits(self, check_only=False):
        out = []
        vm = []
        lg = []
        def need_vm(pred):
            idx = -1
            for k, o in enumerate(vm):
                if pred(o): idx = k
            return idx
        for ins in self.ins:
            if ins.text.endswith('; @'):
                ins.text = ins.text[:-3].rstrip(); out.append(ins); continue
            if ins.op == 's_waitcnt':
                m = re.search(r'vmcnt\((\d+)\)', ins.text)
                if m:
                    n = int(m.group(1));
                    if len(vm) > n: vm = vm[len(vm) - n:] if n else []
                m = re.search(r'lgkmcnt\((\d+)\)', ins.text)
                if m:
                    n = int(m.group(1))
                    if any(o.kind == 'smem' for o in lg):
                        if n == 0: lg = []
                    elif len(lg) > n: lg = lg[len(lg) - n:] if n else []
                out.append(ins); continue
            touched = set(ins.r) | set(ins.w)
            iv = -1; il = -1
            for k, o in enumerate(vm):
                if (set(o.w) & touched) or (o.tag is not None and o.tag in ins.needs): iv = k
            for k, o in enumerate(lg):
                if (set(o.w) & touched) or (o.tag is not None and o.tag in ins.needs): il = k
            parts = []
            if iv >= 0:
                n = len(vm) - 1 - iv
                assert n <= 63
                parts.append(f"vmcnt({n})"); vm = vm[iv + 1:]
            if il >= 0:
                if any(o.kind == 'smem' for o in lg):
                    parts.append("lgkmcnt(0)"); lg = []
                else:
                    n = len(lg) - 1 - il
                    n = min(n, 15)
                    parts.append(f"lgkmcnt({n})"); lg = lg[len(lg) - n:] if n else []
            if parts: out.append(I("s_waitcnt " + " ".join(parts)))
            out.append(ins)
            if ins.kind == 'vm':
                vm.append(ins)
                assert len(vm) <= 63, "too many outstanding vmem"
            elif ins.kind in ('dsr', 'dsw', 'smem'): lg.append(ins)
        self.ins = out
        return self
    def pad_hazards(self):
        out = []
        def dist_back(pred, maxd):
            d = 0
            for o in reversed(out):
                if pred(o): return d
                d += o.states()
                if d >= maxd: return None
            return None
        for ins in self.ins:
            need = 0
            R = set(ins.r); W = set(ins.w)
            def req(pred, n):
                nonlocal need
                d = dist_back(pred, n)
                if d is not None and n - d > need: need = n - d
            vr = {x for x in R if x[0] in 'va' and x not in ('vcc',)}
            vw = {x for x in W if x[0] in 'va' and x not in ('vcc',)}
            sr = {x for x in R if x[0] == 's' and x != 'scc'} | ({'vcc'} & R)
            if ins.kind == 'mfma':
                req(lambda o: o.isvalu() and set(o.w) & vr, 2)
                ab = set(ins.r) - set(ins.srcC) if set(ins.srcC) != set(ins.r) else set(ins.r)
                abr = set(_ab(ins))
                for p, n in ((4, 8), (8, 12)):
                    req(lambda o, p=p: o.kind == 'mfma' and o.passes == p and set(o.w) & abr, n)
                for p, n in ((4, 6), (8, 10)):
                    req(lambda o, p=p: o.kind == 'mfma' and o.passes == p and set(o.w) & set(ins.srcC) and not (o.w == ins.srcC and o.passes == ins.passes), n)
                    req(lambda o, p=p: o.kind == 'mfma' and o.passes == p and set(o.w) & set(ins.w) and not (o.w == ins.srcC and o.passes == ins.passes), n)
                req(lambda o: o.isvalu() and 'exec' in o.w, 4)
            elif ins.isvalu() or ins.kind in ('vm', 'dsr', 'dsw'):
                for p, n in ((4, 8), (8, 12)):
                    req(lambda o, p=p: o.kind == 'mfma' and o.passes == p and set(o.w) & (vr | vw), n)
                if ins.isvalu() or ins.kind in ('vm', 'dsr'):
                    for p, n in ((4, 3), (8, 7)):
                        req(lambda o, p=p: o.kind == 'mfma' and o.passes == p and set(o.srcC) & vw, n)
            if ins.isvalu() or ins.kind in ('vm', 'dsw', 'mfma'):
                req(lambda o: o.op.startswith('v_dot') and o.op != ins.op and set(o.w) & (vr | vw), 3)
            if ins.isvalu():
                if ins.kind != 'trans': req(lambda o: o.kind == 'trans' and set(o.w) & vr, 1)
                req(lambda o: o.isvalu() and set(o.w) & sr, 2)
                req(lambda o: o.kind == 'vm' and o.wide and set(o.sdata) & vw, 2)
                if ins.kind == 'dpp':
                    req(lambda o: (o.isvalu() or o.kind=='mfma') and set(o.w) & vr, 2)
                    req(lambda o: o.isvalu() and 'exec' in o.w, 5)
                if ins.op.startswith('v_permlane'):
                    req(lambda o: o.isvalu() and set(o.w) & vr, 2)
                    req(lambda o: o.isvalu() and 'exec' in o.w, 4)
                if ins.op in ('v_readlane_b32', 'v_readfirstlane_b32'):
                    req(lambda o: o.isvalu() and set(o.w) & vr, 1)
                    req(lambda o: o.isvalu() and 'exec' in o.w, 4)
                    req(lambda o: o.isvalu() and set(o.w) & sr, 4)
                if ins.op == 'v_div_fmas_f32': req(lambda o: o.isvalu() and 'vcc' in o.w, 4)
                req(lambda o: o.isvalu() and ('op_sel' in o.text or 'dst_sel' in o.text) and set(o.w) & (vr | vw), 1)
            if ins.kind in ('dsr',) or (ins.kind == 'vm' and vw):
                req(lambda o: o.kind == 'vm' and o.wide and set(o.sdata) & vw, 1)
            if ins.kind == 'vm':
                req(lambda o: o.isvalu() and set(o.w) & sr, 5)
                if ins.isdma: req(lambda o: o.kind == 'salu' and 'm0' in o.w, 1)
            if ins.kind == 'salu' or ins.kind == 'smem' or ins.kind == 'ctl':
                if ins.op in ('s_cbranch_vccz', 's_cbranch_vccnz'): req(lambda o: o.isvalu() and 'vcc' in o.w, 5)
                if ins.op in ('s_cbranch_execz', 's_cbranch_execnz'): req(lambda o: o.isvalu() and 'exec' in o.w, 5)
                req(lambda o: o.isvalu() and set(o.w) & sr, 1)
            while need > 0:
                k = min(need, 16)
                out.append(I(f"s_nop {k-1}")); need -= k
            out.append(ins)
        self.ins = out
        return self
    def text(self):
        return "".join(("" if i.kind == 'label' else "  ") + i.text + "\n" for i in self.ins)
    def sizes(self):
        import subprocess
        lines = [i.text for i in self.ins]
        isbr = lambda i: i.op == 's_branch' or i.op.startswith('s_cbranch')
        src = "\n".join("s_nop 0" if (i.kind in ('label', 'dir') or isbr(i)) else i.text for i in self.ins) + "\n"
        r = subprocess.run(["llvm-mc", "-triple=amdgcn-amd-amdhsa", "-mcpu=gfx950", "-show-encoding"], input=src, capture_output=True, text=True)
        assert r.returncode == 0, r.stderr
        enc = [l.split("encoding:")[1].count("0x") for l in r.stdout.split("\n") if "encoding:" in l]
        assert len(enc) == len(self.ins)
        return [0 if i.kind in ('label', 'dir') else e for i, e in zip(self.ins, enc)]
    def align8(self, start=0, nop=False):
        sz = self.sizes()
        out = []; run = []; pos = start; nfix = nmiss = 0
        def widen(i):
            t = i.text
            if i.kind in ('valu', 'trans') and not re.search(r'_(e64|dpp|sdwa)\b', t) and not i.op.startswith(('v_readfirstlane', 'v_accvgpr', 'v_permlane', 'v_dot2c', 'v_fmaak', 'v_fmamk')):
                return I(re.sub(r'^(\S+?)(_e32)?(\s)', r'\1_e64\3', t, count=1), i.tag, i.needs)
            m = re.match(r's_addk_i32 (s\d+), (\d+)$', t)
            if m and int(m.group(2)) > 64: return I(f"s_add_u32 {m.group(1)}, {m.group(1)}, {m.group(2)}", i.tag, i.needs)
            return None
        for i, n in zip(self.ins, sz):
            if n == 8 and pos % 8 == 4:
                for k in reversed(run):
                    w = widen(out[k])
                    if w is not None:
                        out[k] = w; pos += 4; nfix += 1; break
                else:
                    if nop: out.append(I("s_nop 0")); pos += 4
                    nmiss += 1
            if n == 4: run.append(len(out))
            elif n == 8: run = []
            out.append(i); pos += n
        self.ins = out
        Prog.stats = (nfix, nmiss, pos)
        return self
    def finish(self, align=None):
        self.resolve_waits(); self.pad_hazards()
        if align is not None: self.align8(*align)
        return self.text()

def _ab(ins):
    t = ins.text.split(';')[0].split(None, 1)[1]
    ops = [x.strip() for x in re.split(r',(?![^\[]*\])', t)]
    return _expand(ops[1]) + _expand(ops[2])

def _wt(x):
    if isinstance(x, list): return sum(_wt(y) for y in x)
    i = I(x) if isinstance(x, str) else x
    return 2 if i.kind == 'trans' else 1

def interleave(main, fill, start=0, end=None, cost=None):
    n = len(main); end = n if end is None else end
    gaps = end - start
    w = [_wt(x) for x in fill]
    tot = sum(w); out = []; k = 0; acc = 0
    def emit(x):
        if isinstance(x, list): out.extend(x)
        else: out.append(x)
    for g in range(n):
        out += main[g]
        if start <= g < end:
            target = tot * (g - start + 1) / gaps
            while k < len(fill) and acc + w[k] / 2 <= target:
                emit(fill[k]); acc += w[k]; k += 1
    for x in fill[k:]: emit(x)
    return out

HDR = '.amdgcn_target "amdgcn-amd-amdhsa--gfx950"\n.text\n'
def kernel(name, body, vgpr=256, sgpr=102, agpr=0):
    acc = (vgpr + 3) // 4 * 4
    return f""".text
.globl {name}
.p2align 8
.type {name},@function
{name}:
{body}.section .rodata,"a"
.p2align 6
.amdhsa_kernel {name}
  .amdhsa_next_free_vgpr {acc + agpr if agpr else vgpr}
  .amdhsa_next_free_sgpr {sgpr}
  .amdhsa_accum_offset {acc}
  .amdhsa_group_segment_fixed_size 0
  .amdhsa_kernarg_size 88
  .amdhsa_user_sgpr_count 2
  .amdhsa_user_sgpr_kernarg_segment_ptr 1
  .amdhsa_system_sgpr_workgroup_id_x 1
.end_amdhsa_kernel
"""


class SC:
    m = dict(ptr=68, t=70, r0=90, r1=92, srd=96, ex=94)
    ws = False
    full = False
    nl = 9
    amp = None
BIG = dict(ptr=68, t=70, r0=90, r1=92, srd=96, ex=94)
SMALL = dict(ptr=64, t=66, r0=76, r1=78, srd=12, ex=26)
def stamp_init(p):
    m = SC.m
    p(f"s_load_dwordx2 s[{m['ptr']}:{m['ptr']+1}], s[0:1], 72\ns_memtime s[{m['t']}:{m['t']+1}]\ns_memrealtime s[{m['r0']}:{m['r0']+1}]")
def stamp(i):
    t = SC.m['t']
    return f"s_memtime s[{t+2*i}:{t+1+2*i}]"
def stamp_end(p, n, name, stride=32, wave=0, idr='s2'):
    m = SC.m; t = m['t']; r0 = m['r0']; r1 = m['r1']; d = m['srd']; ex = m['ex']
    if SC.ws:
        TS = 0x4000000
        p(f"s_waitcnt vmcnt(0)\ns_memrealtime s[{r1}:{r1+1}]\ns_waitcnt lgkmcnt(0)")
        p(f"s_sub_u32 s{r1}, s{r1}, s{r0}\ns_lshl_b32 s{r1}, s{r1}, 20\ns_and_b32 s{r0}, s{r0}, 0xfffff\ns_or_b32 s{r0}, s{r0}, s{r1}")
        p(f"""s_cmp_eq_u32 {idr}, 0
s_cbranch_scc0 L_{name}_dend
s_mov_b64 exec, -1
v_cmp_eq_u32 vcc, 0, v0
s_and_saveexec_b64 s[{ex}:{ex+1}], vcc
s_cbranch_execz L_{name}_dend
s_bfe_u32 s{r1}, s{m['ptr']}, 0x40009
s_lshl_b32 s{r1}, s{r1}, 2
s_add_u32 s{r1}, s{r1}, {TS}
v_mov_b32 v5, s{r0}
v_mov_b32 v6, 0
buffer_store_dword v5, v6, s[8:11], s{r1} offen""")
        if name == 'd2':
            p(f"""s_waitcnt vmcnt(0)
s_mov_b64 exec, 0xffff
v_lshlrev_b32 v6, 2, v0
s_bfe_u32 s{r1}, s{m['ptr']}, 0x40009
s_add_u32 s{r1}, s{r1}, {17 - SC.nl}
v_add_u32 v7, s{r1}, v0
v_and_b32 v7, 15, v7
v_lshlrev_b32 v7, 2, v7
s_mov_b32 s{r1}, {TS}
buffer_load_dword v5, v7, s[8:11], s{r1} offen sc1
s_mov_b32 s{d}, s{m['ptr']}
s_mov_b32 s{d+1}, s{m['ptr']+1}
s_mov_b32 s{d+2}, 256
s_mov_b32 s{d+3}, 0x20000
s_waitcnt vmcnt(0)
buffer_store_dword v5, v6, s[{d}:{d+3}], 0 offen""")
            if SC.amp is not None:
                i0, i1, wd, K = SC.amp
                p(f"""v_readlane_b32 s20, v5, {i0}
v_readlane_b32 s21, v5, {i1}
s_lshr_b32 s22, s21, 20
s_mul_i32 s22, s22, {wd}
s_add_u32 s21, s21, s22
s_sub_u32 s21, s21, s20
s_and_b32 s21, s21, 0xfffff
s_min_u32 s21, s21, 20000
s_mul_i32 s21, s21, {K}
s_memrealtime s[22:23]
s_waitcnt lgkmcnt(0)
L_spin:
s_sleep 8
s_memrealtime s[24:25]
s_waitcnt lgkmcnt(0)
s_sub_u32 s24, s24, s22
s_cmp_lt_u32 s24, s21
s_cbranch_scc1 L_spin""")
        p(f"L_{name}_dend:")
        return
    p(f"s_waitcnt vmcnt(0)\ns_memtime s[{t+2*n}:{t+1+2*n}]\ns_memrealtime s[{r1}:{r1+1}]\ns_waitcnt lgkmcnt(0)")
    p(f"s_sub_u32 s{r1}, s{r1}, s{r0}\ns_lshl_b32 s{r1}, s{r1}, 20\ns_and_b32 s{r0}, s{r0}, 0xfffff\ns_or_b32 s{r0}, s{r0}, s{r1}")
    for i in range(1, n+1): p(f"s_sub_u32 s{t+2*i}, s{t+2*i}, s{t}")
    if SC.full:
        p(f"""s_bfe_u32 s{r1}, s{m['ptr']}, 0x40009
s_lshl_b32 s{r1}, s{r1}, 14
s_add_u32 s{r1}, s{r1}, 0x4000000
s_lshl_b32 s{r1+1}, {idr}, 5
s_add_u32 s{r1}, s{r1}, s{r1+1}
s_mov_b64 exec, -1
v_mov_b32 v6, 0
v_cmp_eq_u32 vcc, {wave*64}, v0
s_and_saveexec_b64 s[{ex}:{ex+1}], vcc
s_cbranch_execz L_{name}_dend
v_mov_b32 v5, s{r0}
buffer_store_dword v5, v6, s[8:11], s{r1} offen""")
        for i in range(1, n+1):
            p(f"v_mov_b32 v5, s{t+2*i}\nbuffer_store_dword v5, v6, s[8:11], s{r1} offen offset:{4*i}")
        p(f"L_{name}_dend:")
        return
    p(f"""s_and_b32 s{r1}, {idr}, {stride-1}
s_cmp_eq_u32 s{r1}, 0
s_cbranch_scc0 L_{name}_dend
s_mov_b32 s{d}, s{m['ptr']}
s_mov_b32 s{d+1}, s{m['ptr']+1}
s_mov_b32 s{d+2}, 256
s_mov_b32 s{d+3}, 0x20000
s_lshr_b32 s{r1}, {idr}, {stride.bit_length()-1}
s_lshl_b32 s{r1}, s{r1}, 5
s_mov_b64 exec, -1
v_mov_b32 v6, s{r1}
v_cmp_eq_u32 vcc, {wave*64}, v0
s_and_saveexec_b64 s[{ex}:{ex+1}], vcc
s_cbranch_execz L_{name}_dend
v_mov_b32 v5, s{r0}
buffer_store_dword v5, v6, s[{d}:{d+3}], 0 offen""")
    for i in range(1, n+1):
        p(f"v_mov_b32 v5, s{t+2*i}\nbuffer_store_dword v5, v6, s[{d}:{d+3}], 0 offen offset:{4*i}")
    p(f"L_{name}_dend:")


def prefetch(regions, q, vlane, va, vd, st=60):
    L = [f"v_lshlrev_b32 v{va}, 7, v{vlane}"]
    for ri, (base, n) in enumerate(regions):
        L.append(f"s_mul_i32 s{st}, s{q}, {n*128}")
        L.append(f"s_add_u32 s{st}, s{st}, {base}")
        if n < 64:
            L.append(f"s_mov_b32 exec_lo, {hex((1 << min(n, 32)) - 1)}")
            L.append(f"s_mov_b32 exec_hi, {hex((1 << max(n - 32, 0)) - 1)}")
        L.append(f"buffer_load_dword v{vd+ri}, v{va}, s[8:11], s{st} offen")
    L.append("s_mov_b64 exec, -1")
    return L
```

```python
import re

def _expand(tok):
    tok = tok.strip()
    tok = re.sub(r'^-', '', tok)
    m = re.match(r'^(?:abs\(|\|)(.*?)(?:\)|\|)$', tok)
    if m: tok = m.group(1)
    m = re.match(r'^([vsa])\[(\d+):(\d+)\]$', tok)
    if m: return [f"{m.group(1)}{i}" for i in range(int(m.group(2)), int(m.group(3)) + 1)]
    m = re.match(r'^([vsa])(\d+)$', tok)
    if m: return [tok]
    if tok in ('vcc', 'exec'): return [tok]
    if tok in ('vcc_lo', 'vcc_hi'): return ['vcc']
    if tok in ('exec_lo', 'exec_hi'): return ['exec']
    if tok == 'm0': return ['m0']
    return []

TRANS = ('v_exp_f32', 'v_log_f32', 'v_rcp_f32', 'v_rsq_f32', 'v_sqrt_f32', 'v_sin_f32', 'v_cos_f32', 'v_rcp_iflag_f32')

class I:
    __slots__ = ('text', 'op', 'kind', 'w', 'r', 'tag', 'needs', 'srcC', 'passes', 'isdma', 'wide', 'sdata')
    def __init__(self, text, tag=None, needs=()):
        self.text = text.strip(); self.tag = tag; self.needs = list(needs)
        self.srcC = []; self.passes = 0; self.isdma = False; self.wide = False; self.sdata = []
        t = self.text.split(';')[0].strip()
        if t.endswith(':') or t == '' or t.startswith('.'):
            self.op = 'label' if t.endswith(':') else 'dir'; self.kind = self.op; self.w = []; self.r = []; return
        parts = t.split(None, 1)
        self.op = op = re.sub(r'_(e32|e64|dpp|sdwa)$', '', parts[0])
        rest = parts[1] if len(parts) > 1 else ''
        ops = [x.strip() for x in re.split(r',(?![^\[]*\])', rest)]
        mods = ''
        if ops:
            lp = ops[-1].split(None, 1)
            if lp:
                ops[-1] = lp[0]
                mods = lp[1] if len(lp) > 1 else ''
        E = lambda i: _expand(ops[i]) if i < len(ops) else []
        allr = lambda a: [x for i in range(a, len(ops)) for x in E(i)]
        w, r = [], []
        if op.startswith('v_mfma'):
            self.kind = 'mfma'; w = E(0); r = E(1) + E(2) + E(3); self.srcC = E(3)
            self.passes = 8 if '32x32' in op else 4
        elif op.startswith('ds_read') or op.startswith('ds_bpermute') or op.startswith('ds_swizzle') or op.startswith('ds_permute'):
            self.kind = 'dsr'; w = E(0); r = allr(1)
        elif op.startswith('ds_write') or op.startswith('ds_add'):
            self.kind = 'dsw'; r = allr(0)
        elif op.startswith('buffer_load') or op.startswith('global_load'):
            self.kind = 'vm'
            if ' lds' in (' ' + mods) or op.startswith('global_load_lds'):
                self.isdma = True; r = allr(0) + ['m0']
            else:
                w = E(0); r = allr(1)
                if 'd16' in op: r += E(0)
        elif op.startswith('buffer_store') or op.startswith('global_store') or op.startswith('buffer_atomic') or op.startswith('global_atomic'):
            self.kind = 'vm'; r = allr(0)
            if op.startswith('buffer_'): self.sdata = E(0)
            else: self.sdata = E(1)
            if 'x4' in op or 'x3' in op: self.wide = True
            if 'atomic' in op and 'sc0' in mods: w = E(0)
        elif op.startswith('buffer_wbl2') or op.startswith('buffer_inv'):
            self.kind = 'vm'
        elif op.startswith('s_load') or op.startswith('s_memtime') or op.startswith('s_memrealtime') or op.startswith('s_buffer_load'):
            self.kind = 'smem'; w = E(0); r = allr(1)
        elif op in ('s_waitcnt', 's_barrier', 's_nop', 's_setprio', 's_endpgm', 's_sleep', 's_branch') or op.startswith('s_cbranch'):
            self.kind = 'ctl'
            if 'scc' in op: r = ['scc']
            if 'vcc' in op: r = ['vcc']
            if 'exec' in op: r = ['exec']
        elif op.startswith('s_cmp') or op.startswith('s_bitcmp'):
            self.kind = 'salu'; w = ['scc']; r = allr(0)
        elif op.startswith('s_'):
            self.kind = 'salu'; w = E(0); r = allr(1)
            if 'saveexec' in op: w += ['exec']; r += ['exec']
            if op in ('s_addc_u32', 's_subb_u32', 's_cselect_b32', 's_cselect_b64'): r += ['scc']
            if op in ('s_addk_i32', 's_mulk_i32'): r += E(0)
            if not op.startswith('s_mov') and not op.startswith('s_mul') and not op.startswith('s_cselect') and not op.startswith('s_getreg'): w += ['scc']
        elif op.startswith('v_'):
            self.kind = 'trans' if op in TRANS else 'valu'
            if op.startswith('v_cmp'):
                w = E(0); r = allr(1)
                if op.startswith('v_cmpx'): w += ['exec']
            elif op in ('v_add_co_u32', 'v_sub_co_u32', 'v_addc_co_u32', 'v_subb_co_u32'):
                w = E(0) + E(1); r = allr(2)
            elif op.startswith('v_permlane') and 'swap' in op:
                w = E(0) + E(1); r = E(0) + E(1)
            else:
                w = E(0); r = allr(1)
                if op.startswith('v_fmac') or op.startswith('v_pk_fmac') or op in ('v_writelane_b32',) or op.startswith('v_dot2c'): r += E(0)
                if ('row_' in mods or 'quad_perm' in mods or 'wave_' in mods or 'bank_mask' in mods): self.kind = 'dpp'; r += E(0)
                if 'dst_sel' in mods or 'op_sel' in mods: r += E(0)
        else:
            raise ValueError("unknown op " + text)
        self.w = w; self.r = r
    def states(self):
        if self.op == 's_nop':
            return int(self.text.split()[1], 0) + 1
        if self.kind in ('label', 'dir'): return 0
        return 1
    def isvalu(self): return self.kind in ('valu', 'trans', 'dpp')

class Prog:
    def __init__(self):
        self.ins = []
    def add(self, text, tag=None, needs=()):
        for line in text.split('\n'):
            if line.strip(): self.ins.append(I(line, tag, needs))
        return self
    def __call__(self, text, tag=None, needs=()): return self.add(text, tag, needs)
    def ext(self, lst):
        for x in lst:
            if isinstance(x, I): self.ins.append(x)
            else: self.add(x)
    def resolve_waits(self, check_only=False):
        out = []
        vm = []
        lg = []
        def need_vm(pred):
            idx = -1
            for k, o in enumerate(vm):
                if pred(o): idx = k
            return idx
        for ins in self.ins:
            if ins.op == 's_waitcnt':
                m = re.search(r'vmcnt\((\d+)\)', ins.text)
                if m:
                    n = int(m.group(1));
                    if len(vm) > n: vm = vm[len(vm) - n:] if n else []
                m = re.search(r'lgkmcnt\((\d+)\)', ins.text)
                if m:
                    n = int(m.group(1))
                    if any(o.kind == 'smem' for o in lg):
                        if n == 0: lg = []
                    elif len(lg) > n: lg = lg[len(lg) - n:] if n else []
                out.append(ins); continue
            touched = set(ins.r) | set(ins.w)
            iv = -1; il = -1
            for k, o in enumerate(vm):
                if (set(o.w) & touched) or (o.tag is not None and o.tag in ins.needs): iv = k
            for k, o in enumerate(lg):
                if (set(o.w) & touched) or (o.tag is not None and o.tag in ins.needs): il = k
            parts = []
            if iv >= 0:
                n = len(vm) - 1 - iv
                assert n <= 63
                parts.append(f"vmcnt({n})"); vm = vm[iv + 1:]
            if il >= 0:
                if any(o.kind == 'smem' for o in lg):
                    parts.append("lgkmcnt(0)"); lg = []
                else:
                    n = len(lg) - 1 - il
                    n = min(n, 15)
                    parts.append(f"lgkmcnt({n})"); lg = lg[len(lg) - n:] if n else []
            if parts: out.append(I("s_waitcnt " + " ".join(parts)))
            out.append(ins)
            if ins.kind == 'vm':
                vm.append(ins)
                assert len(vm) <= 63, "too many outstanding vmem"
            elif ins.kind in ('dsr', 'dsw', 'smem'): lg.append(ins)
        self.ins = out
        return self
    def pad_hazards(self):
        out = []
        def dist_back(pred, maxd):
            d = 0
            for o in reversed(out):
                if pred(o): return d
                d += o.states()
                if d >= maxd: return None
            return None
        for ins in self.ins:
            need = 0
            R = set(ins.r); W = set(ins.w)
            def req(pred, n):
                nonlocal need
                d = dist_back(pred, n)
                if d is not None and n - d > need: need = n - d
            vr = {x for x in R if x[0] in 'va' and x not in ('vcc',)}
            vw = {x for x in W if x[0] in 'va' and x not in ('vcc',)}
            sr = {x for x in R if x[0] == 's' and x != 'scc'} | ({'vcc'} & R)
            if ins.kind == 'mfma':
                req(lambda o: o.isvalu() and set(o.w) & vr, 2)
                ab = set(ins.r) - set(ins.srcC) if set(ins.srcC) != set(ins.r) else set(ins.r)
                abr = set(_ab(ins))
                for p, n in ((4, 8), (8, 12)):
                    req(lambda o, p=p: o.kind == 'mfma' and o.passes == p and set(o.w) & abr, n)
                for p, n in ((4, 6), (8, 10)):
                    req(lambda o, p=p: o.kind == 'mfma' and o.passes == p and set(o.w) & set(ins.srcC) and not (o.w == ins.srcC and o.passes == ins.passes), n)
                    req(lambda o, p=p: o.kind == 'mfma' and o.passes == p and set(o.w) & set(ins.w) and not (o.w == ins.srcC and o.passes == ins.passes), n)
                req(lambda o: o.isvalu() and 'exec' in o.w, 4)
            elif ins.isvalu() or ins.kind in ('vm', 'dsr', 'dsw'):
                for p, n in ((4, 8), (8, 12)):
                    req(lambda o, p=p: o.kind == 'mfma' and o.passes == p and set(o.w) & (vr | vw), n)
                if ins.isvalu() or ins.kind in ('vm', 'dsr'):
                    for p, n in ((4, 3), (8, 7)):
                        req(lambda o, p=p: o.kind == 'mfma' and o.passes == p and set(o.srcC) & vw, n)
            if ins.isvalu() or ins.kind in ('vm', 'dsw', 'mfma'):
                req(lambda o: o.op.startswith('v_dot') and o.op != ins.op and set(o.w) & (vr | vw), 3)
            if ins.isvalu():
                if ins.kind != 'trans': req(lambda o: o.kind == 'trans' and set(o.w) & vr, 1)
                req(lambda o: o.isvalu() and set(o.w) & sr, 2)
                req(lambda o: o.kind == 'vm' and o.wide and set(o.sdata) & vw, 2)
                if ins.kind == 'dpp':
                    req(lambda o: (o.isvalu() or o.kind=='mfma') and set(o.w) & vr, 2)
                    req(lambda o: o.isvalu() and 'exec' in o.w, 5)
                if ins.op.startswith('v_permlane'):
                    req(lambda o: o.isvalu() and set(o.w) & vr, 2)
                    req(lambda o: o.isvalu() and 'exec' in o.w, 4)
                if ins.op in ('v_readlane_b32', 'v_readfirstlane_b32'):
                    req(lambda o: o.isvalu() and set(o.w) & vr, 1)
                    req(lambda o: o.isvalu() and 'exec' in o.w, 4)
                    req(lambda o: o.isvalu() and set(o.w) & sr, 4)
                if ins.op == 'v_div_fmas_f32': req(lambda o: o.isvalu() and 'vcc' in o.w, 4)
                req(lambda o: o.isvalu() and ('op_sel' in o.text or 'dst_sel' in o.text) and set(o.w) & (vr | vw), 1)
            if ins.kind in ('dsr',) or (ins.kind == 'vm' and vw):
                req(lambda o: o.kind == 'vm' and o.wide and set(o.sdata) & vw, 1)
            if ins.kind == 'vm':
                req(lambda o: o.isvalu() and set(o.w) & sr, 5)
                if ins.isdma: req(lambda o: o.kind == 'salu' and 'm0' in o.w, 1)
            if ins.kind == 'salu' or ins.kind == 'smem' or ins.kind == 'ctl':
                if ins.op in ('s_cbranch_vccz', 's_cbranch_vccnz'): req(lambda o: o.isvalu() and 'vcc' in o.w, 5)
                if ins.op in ('s_cbranch_execz', 's_cbranch_execnz'): req(lambda o: o.isvalu() and 'exec' in o.w, 5)
                req(lambda o: o.isvalu() and set(o.w) & sr, 1)
            while need > 0:
                k = min(need, 16)
                out.append(I(f"s_nop {k-1}")); need -= k
            out.append(ins)
        self.ins = out
        return self
    def text(self):
        return "".join(("" if i.kind == 'label' else "  ") + i.text + "\n" for i in self.ins)
    def sizes(self):
        import subprocess
        lines = [i.text for i in self.ins]
        isbr = lambda i: i.op == 's_branch' or i.op.startswith('s_cbranch')
        src = "\n".join("s_nop 0" if (i.kind in ('label', 'dir') or isbr(i)) else i.text for i in self.ins) + "\n"
        r = subprocess.run(["llvm-mc", "-triple=amdgcn-amd-amdhsa", "-mcpu=gfx950", "-show-encoding"], input=src, capture_output=True, text=True)
        assert r.returncode == 0, r.stderr
        enc = [l.split("encoding:")[1].count("0x") for l in r.stdout.split("\n") if "encoding:" in l]
        assert len(enc) == len(self.ins)
        return [0 if i.kind in ('label', 'dir') else e for i, e in zip(self.ins, enc)]
    def align8(self, start=0, nop=False):
        sz = self.sizes()
        out = []; run = []; pos = start; nfix = nmiss = 0
        def widen(i):
            t = i.text
            if i.kind in ('valu', 'trans') and not re.search(r'_(e64|dpp|sdwa)\b', t) and not i.op.startswith(('v_readfirstlane', 'v_accvgpr', 'v_permlane', 'v_dot2c', 'v_fmaak', 'v_fmamk')):
                return I(re.sub(r'^(\S+?)(_e32)?(\s)', r'\1_e64\3', t, count=1), i.tag, i.needs)
            m = re.match(r's_addk_i32 (s\d+), (\d+)$', t)
            if m and int(m.group(2)) > 64: return I(f"s_add_u32 {m.group(1)}, {m.group(1)}, {m.group(2)}", i.tag, i.needs)
            return None
        for i, n in zip(self.ins, sz):
            if n == 8 and pos % 8 == 4:
                for k in reversed(run):
                    w = widen(out[k])
                    if w is not None:
                        out[k] = w; pos += 4; nfix += 1; break
                else:
                    if nop: out.append(I("s_nop 0")); pos += 4
                    nmiss += 1
            if n == 4: run.append(len(out))
            elif n == 8: run = []
            out.append(i); pos += n
        self.ins = out
        Prog.stats = (nfix, nmiss, pos)
        return self
    def finish(self, align=None):
        self.resolve_waits(); self.pad_hazards()
        if align is not None: self.align8(*align)
        return self.text()

def _ab(ins):
    t = ins.text.split(';')[0].split(None, 1)[1]
    ops = [x.strip() for x in re.split(r',(?![^\[]*\])', t)]
    return _expand(ops[1]) + _expand(ops[2])

def _wt(x):
    if isinstance(x, list): return sum(_wt(y) for y in x)
    i = I(x) if isinstance(x, str) else x
    return 2 if i.kind == 'trans' else 1

def interleave(main, fill, start=0, end=None, cost=None):
    n = len(main); end = n if end is None else end
    gaps = end - start
    w = [_wt(x) for x in fill]
    tot = sum(w); out = []; k = 0; acc = 0
    def emit(x):
        if isinstance(x, list): out.extend(x)
        else: out.append(x)
    for g in range(n):
        out += main[g]
        if start <= g < end:
            target = tot * (g - start + 1) / gaps
            while k < len(fill) and acc + w[k] / 2 <= target:
                emit(fill[k]); acc += w[k]; k += 1
    for x in fill[k:]: emit(x)
    return out

HDR = '.amdgcn_target "amdgcn-amd-amdhsa--gfx950"\n.text\n'
def kernel(name, body, vgpr=256, sgpr=102, agpr=0):
    acc = (vgpr + 3) // 4 * 4
    return f""".text
.globl {name}
.p2align 8
.type {name},@function
{name}:
{body}.section .rodata,"a"
.p2align 6
.amdhsa_kernel {name}
  .amdhsa_next_free_vgpr {acc + agpr if agpr else vgpr}
  .amdhsa_next_free_sgpr {sgpr}
  .amdhsa_accum_offset {acc}
  .amdhsa_group_segment_fixed_size 0
  .amdhsa_kernarg_size 88
  .amdhsa_user_sgpr_count 2
  .amdhsa_user_sgpr_kernarg_segment_ptr 1
  .amdhsa_system_sgpr_workgroup_id_x 1
.end_amdhsa_kernel
"""


class SC:
    m = dict(ptr=68, t=70, r0=90, r1=92, srd=96, ex=94)
    ws = False
    nl = 9
    amp = None
BIG = dict(ptr=68, t=70, r0=90, r1=92, srd=96, ex=94)
SMALL = dict(ptr=64, t=66, r0=76, r1=78, srd=12, ex=26)
def stamp_init(p):
    m = SC.m
    p(f"s_load_dwordx2 s[{m['ptr']}:{m['ptr']+1}], s[0:1], 72\ns_memtime s[{m['t']}:{m['t']+1}]\ns_memrealtime s[{m['r0']}:{m['r0']+1}]")
def stamp(i):
    t = SC.m['t']
    return f"s_memtime s[{t+2*i}:{t+1+2*i}]"
def stamp_end(p, n, name, stride=32, wave=0, idr='s2'):
    m = SC.m; t = m['t']; r0 = m['r0']; r1 = m['r1']; d = m['srd']; ex = m['ex']
    if SC.ws:
        TS = 0x4000000
        p(f"s_waitcnt vmcnt(0)\ns_memrealtime s[{r1}:{r1+1}]\ns_waitcnt lgkmcnt(0)")
        p(f"s_sub_u32 s{r1}, s{r1}, s{r0}\ns_lshl_b32 s{r1}, s{r1}, 20\ns_and_b32 s{r0}, s{r0}, 0xfffff\ns_or_b32 s{r0}, s{r0}, s{r1}")
        p(f"""s_cmp_eq_u32 {idr}, 0
s_cbranch_scc0 L_{name}_dend
s_mov_b64 exec, -1
v_cmp_eq_u32 vcc, 0, v0
s_and_saveexec_b64 s[{ex}:{ex+1}], vcc
s_cbranch_execz L_{name}_dend
s_bfe_u32 s{r1}, s{m['ptr']}, 0x40009
s_lshl_b32 s{r1}, s{r1}, 2
s_add_u32 s{r1}, s{r1}, {TS}
v_mov_b32 v5, s{r0}
v_mov_b32 v6, 0
buffer_store_dword v5, v6, s[8:11], s{r1} offen""")
        if name == 'd2':
            p(f"""s_waitcnt vmcnt(0)
s_mov_b64 exec, 0xffff
v_lshlrev_b32 v6, 2, v0
s_bfe_u32 s{r1}, s{m['ptr']}, 0x40009
s_add_u32 s{r1}, s{r1}, {17 - SC.nl}
v_add_u32 v7, s{r1}, v0
v_and_b32 v7, 15, v7
v_lshlrev_b32 v7, 2, v7
s_mov_b32 s{r1}, {TS}
buffer_load_dword v5, v7, s[8:11], s{r1} offen sc1
s_mov_b32 s{d}, s{m['ptr']}
s_mov_b32 s{d+1}, s{m['ptr']+1}
s_mov_b32 s{d+2}, 256
s_mov_b32 s{d+3}, 0x20000
s_waitcnt vmcnt(0)
buffer_store_dword v5, v6, s[{d}:{d+3}], 0 offen""")
            if SC.amp is not None:
                i0, i1, wd, K = SC.amp
                p(f"""v_readlane_b32 s20, v5, {i0}
v_readlane_b32 s21, v5, {i1}
s_lshr_b32 s22, s21, 20
s_mul_i32 s22, s22, {wd}
s_add_u32 s21, s21, s22
s_sub_u32 s21, s21, s20
s_and_b32 s21, s21, 0xfffff
s_min_u32 s21, s21, 20000
s_mul_i32 s21, s21, {K}
s_memrealtime s[22:23]
s_waitcnt lgkmcnt(0)
L_spin:
s_sleep 8
s_memrealtime s[24:25]
s_waitcnt lgkmcnt(0)
s_sub_u32 s24, s24, s22
s_cmp_lt_u32 s24, s21
s_cbranch_scc1 L_spin""")
        p(f"L_{name}_dend:")
        return
    p(f"s_waitcnt vmcnt(0)\ns_memtime s[{t+2*n}:{t+1+2*n}]\ns_memrealtime s[{r1}:{r1+1}]\ns_waitcnt lgkmcnt(0)")
    p(f"s_sub_u32 s{r1}, s{r1}, s{r0}\ns_lshl_b32 s{r1}, s{r1}, 20\ns_and_b32 s{r0}, s{r0}, 0xfffff\ns_or_b32 s{r0}, s{r0}, s{r1}")
    for i in range(1, n+1): p(f"s_sub_u32 s{t+2*i}, s{t+2*i}, s{t}")
    p(f"""s_and_b32 s{r1}, {idr}, {stride-1}
s_cmp_eq_u32 s{r1}, 0
s_cbranch_scc0 L_{name}_dend
s_mov_b32 s{d}, s{m['ptr']}
s_mov_b32 s{d+1}, s{m['ptr']+1}
s_mov_b32 s{d+2}, 256
s_mov_b32 s{d+3}, 0x20000
s_lshr_b32 s{r1}, {idr}, {stride.bit_length()-1}
s_lshl_b32 s{r1}, s{r1}, 5
s_mov_b64 exec, -1
v_mov_b32 v6, s{r1}
v_cmp_eq_u32 vcc, {wave*64}, v0
s_and_saveexec_b64 s[{ex}:{ex+1}], vcc
s_cbranch_execz L_{name}_dend
v_mov_b32 v5, s{r0}
buffer_store_dword v5, v6, s[{d}:{d+3}], 0 offen""")
    for i in range(1, n+1):
        p(f"v_mov_b32 v5, s{t+2*i}\nbuffer_store_dword v5, v6, s[{d}:{d+3}], 0 offen offset:{4*i}")
    p(f"L_{name}_dend:")


def prefetch(regions, q, vlane, va, vd, st=60):
    L = [f"v_lshlrev_b32 v{va}, 7, v{vlane}"]
    for ri, (base, n) in enumerate(regions):
        L.append(f"s_mul_i32 s{st}, s{q}, {n*128}")
        L.append(f"s_add_u32 s{st}, s{st}, {base}")
        if n < 64:
            L.append(f"s_mov_b32 exec_lo, {hex((1 << min(n, 32)) - 1)}")
            L.append(f"s_mov_b32 exec_hi, {hex((1 << max(n - 32, 0)) - 1)}")
        L.append(f"buffer_load_dword v{vd+ri}, v{va}, s[8:11], s{st} offen")
    L.append("s_mov_b64 exec, -1")
    return L
```

```python
import sys
sys.path.insert(0, "gen")
from asmlib import *
import k0, ka, kb, kc
HEAD = open("interleave_layers__linear_attn_block__mixer_channel_mlp__prompt.s.ref").read().split("; Override")[0]
def build(**kw):
    D = kw.get('dbg', False)
    SC.ws = kw.get('tl', False)
    order = list(kw.get('order', range(9)))
    SC.nl = len(order); SC.amp = kw.get('amp')
    a0 = a1 = ka.a_kernel(dbg=D, **kw.get('a', {}))
    b = kb.b_kernel(dbg=D, **kw.get('b', {})); c = kc.c_kernel(dbg=D, **kw.get('c', {}))
    d0 = k0.d_kernel(0, dbg=D, **kw.get('d', {})); d1 = k0.d_kernel(1, dbg=D, **kw.get('d', {}))
    k = k0.k0_kernel(dbg=D, **kw.get('k', {}))
    ks = [k, a0, b, c, d0, a1, b, c, d1]
    ex = []
    if 9 in order:
        p = Prog()
        p("s_load_dwordx2 s[4:5], s[0:1], 80")
        if D: stamp_init(p)
        p("s_waitcnt lgkmcnt(0)")
        k0.srd(p, 8, 4, 0x10000000)
        if D: stamp_end(p, 1, 'e')
        p("s_endpgm")
        ex = [(kernel("e_kernel", p.finish(), vgpr=16), "; @launch kernel=e_kernel grid=(256,1,1) block=(256,1,1) lds=0\n")]
        ks += ex
    return HEAD + "".join(ks[i][1] for i in order) + HDR + "".join(x[0] for x in [k, a0, b, c, d0, d1] + ex)
if __name__ == "__main__":
    out = sys.argv[1] if len(sys.argv) > 1 else "interleave_layers__linear_attn_block__mixer_channel_mlp__prompt.s"
    s = build(dbg=len(sys.argv) > 2)
    open(out, "w").write(s)
    print(out, len(s))
```

```python
import sys
sys.path.insert(0, "gen")
from asmlib import *
import k0, ka, kb, kc, kc3, kd
HEAD = open("interleave_layers__linear_attn_block__mixer_channel_mlp__prompt.s.ref").read().split("; Override")[0]
def build(**kw):
    D = kw.get('dbg', False)
    SC.ws = kw.get('tl', False)
    FZ = kw.get('fuse', False)
    order = list(kw.get('order', range(9) if not FZ else ([0, 1, 2, 4, 5, 6, 8] if FZ == 1 else [0, 1, 2, 5, 6])))
    SC.nl = len(order); SC.amp = kw.get('amp')
    a0 = a1 = ka.a_kernel(dbg=D, kv2=FZ == 2, **kw.get('a', {}))
    if FZ == 2: a0, a1 = a0
    b = kb.b_kernel(dbg=D, **kw.get('b', {})); c = kc3.c3_kernel(dbg=D, **kw['c3']) if 'c3' in kw else kc.c_kernel(dbg=D, **kw.get('c', {}))
    if FZ:
        cz = kc.c_kernel(dbg=D, fused=True, dz=FZ == 2, **kw.get('c', {}))
        b = kb.b_kernel(dbg=D, cz=cz, dz=kd.d_part(dbg=D, **kw.get('d', {})) if FZ == 2 else None, **kw.get('b', {})); c = ("", "")
    b1 = b
    if FZ == 2:
        b, b1 = b
        kw['d'] = {}
    d0 = k0.d_kernel(0, dbg=D, zkv=FZ, **kw.get('d', {})); d1 = k0.d_kernel(1, dbg=D, **kw.get('d', {}))
    k = k0.k0_kernel(dbg=D, **kw.get('k', {}))
    if FZ == 2: d0 = d1 = ("", "")
    ks = [k, a0, b, c, d0, a1, b1, c, d1]
    ex = []
    if 9 in order:
        p = Prog()
        p("s_load_dwordx2 s[4:5], s[0:1], 80")
        if D: stamp_init(p)
        p("s_waitcnt lgkmcnt(0)")
        k0.srd(p, 8, 4, 0x10000000)
        if D: stamp_end(p, 1, 'e')
        p("s_endpgm")
        ex = [(kernel("e_kernel", p.finish(), vgpr=16), "; @launch kernel=e_kernel grid=(256,1,1) block=(256,1,1) lds=0\n")]
        ks += ex
    return HEAD + "".join(ks[i][1] for i in order) + HDR + "".join(x[0] for x in [k, a0, b, c, d0, d1] + ex)
if __name__ == "__main__":
    out = sys.argv[1] if len(sys.argv) > 1 else "interleave_layers__linear_attn_block__mixer_channel_mlp__prompt.s"
    s = build(dbg=len(sys.argv) > 2)
    open(out, "w").write(s)
    print(out, len(s))
```

```python
from asmlib import *
from layout import *
from k0 import srd

def gelu8(x, k1, k3, tmp, out, grp=4):
    L = []
    for b in range(0, 8, grp):
        idx = range(b, b + grp)
        T = lambda i: tmp + i
        for i in idx: L.append(f"v_mul_f32 v{T(i)}, v{x+i}, v{x+i}")
        for i in idx: L.append(f"v_fma_f32 v{T(i)}, v{T(i)}, v{k3}, v{k1}")
        for i in idx: L.append(f"v_mul_f32 v{T(i)}, v{T(i)}, v{x+i}")
        for i in idx: L.append(f"v_exp_f32 v{T(i)}, v{T(i)}")
        for i in idx: L.append(f"v_add_f32 v{T(i)}, 1.0, v{T(i)}")
        for i in idx: L.append(f"v_rcp_f32 v{T(i)}, v{T(i)}")
        for i in idx: L.append(f"v_mul_f32 v{T(i)}, v{T(i)}, v{x+i}")
        for i in list(idx)[::2]: L.append(f"v_cvt_pk_bf16_f32 v{out+i//2}, v{T(i)}, v{T(i+1)}")
    return L

def c_kernel(DW=32, D0=12, YCH=4, stfl="sc1", dbg=False, RAMP=3, X=(), merge=True, YLA=0, amap=2, align=None, s16=False, mk=None, fused=False, NPRE=31, yfl='', dz=False):
    name = "c_kernel"
    p = Prog()
    YB, HB, XB = 0, 73728, 147456
    vL = 3
    vRD = 6
    vHW = 10
    vXW, vXR = 13, 14
    vK1, vK3 = 16, 18
    TMP, PK = 24, 32
    A_, B_, C_, D_, OS, N2, N3 = 40, 72, 104, 136, 168, 184, 216
    aODD, aAUG, aLR, aT, aW = 0, 32, 40, 64, 128
    NL = 3
    assert aW + 4*DW <= 256
    if not fused:
        p(f"""s_cmp_lt_u32 s2, 256
s_cbranch_scc1 L_{name}_go
s_endpgm
L_{name}_go:
s_load_dwordx2 s[4:5], s[0:1], 80""")
        if dbg: stamp_init(p)
    else: D0 = NPRE
    AM = "s_and_b32 s17, s2, 7\ns_lshr_b32 s18, s2, 3" if not amap else "s_bfe_u32 s17, s2, 0x30003\ns_and_b32 s18, s2, 7\ns_lshl_b32 s18, s18, 2\ns_lshr_b32 s19, s2, 6\ns_add_u32 s18, s18, s19"
    if amap == 2: AM = "s_and_b32 s17, s2, 3\ns_lshl_b32 s17, s17, 1\ns_bfe_u32 s18, s2, 0x10003\ns_add_u32 s17, s17, s18\ns_bfe_u32 s18, s2, 0x10002\ns_lshl_b32 s18, s18, 4\ns_lshr_b32 s19, s2, 4\ns_add_u32 s18, s18, s19"
    if amap == 4: AM = "s_and_b32 s17, s2, 1\ns_lshl_b32 s17, s17, 2\ns_bfe_u32 s18, s2, 0x20003\ns_add_u32 s17, s17, s18\ns_bfe_u32 s18, s2, 0x20001\ns_lshl_b32 s18, s18, 3\ns_lshr_b32 s19, s2, 5\ns_add_u32 s18, s18, s19"
    p(f"""v_lshrrev_b32 v1, 6, v0
v_and_b32 v2, 63, v0
v_readfirstlane_b32 s16, v1
v_lshlrev_b32 v{vL}, 4, v2
{AM}
s_and_b32 s19, s16, 1
s_lshr_b32 s20, s16, 1
s_lshl_b32 s30, s17, 2
s_add_u32 s30, s30, s16
s_mul_i32 s30, s30, {WSN*1024}
s_add_u32 s30, s30, {WSTR}
s_mul_i32 s25, s18, 73728
s_lshl_b32 s26, s16, 10
s_add_u32 s27, s25, s26
s_add_u32 s27, s27, {X1F}
s_add_u32 s28, s27, 36864
s_add_u32 s31, s26, 36864
s_lshl_b32 s21, s18, 1
s_xor_b32 s29, s19, 1
s_add_u32 s45, s21, s19
s_add_u32 s46, s21, s29
s_lshl_b32 s47, s45, 8
s_lshl_b32 s48, s46, 8
s_add_u32 s47, s47, {ST}
s_add_u32 s48, s48, {ST}
v_lshlrev_b32 v15, 2, v2""")
    if not fused:
        p(f"""s_mov_b32 s10, {WSSZ}
s_mov_b32 s11, 0x20000
s_waitcnt lgkmcnt(0)
s_mov_b32 s8, s4
s_mov_b32 s9, s5""")
    else:
        pre_setup = AM.replace("s17", "s64").replace("s18", "s65").replace("s19", "s66").split("\n") + f"""s_lshl_b32 s64, s64, 2
s_add_u32 s64, s64, s16
s_mul_i32 s64, s64, {WSN*1024}
s_add_u32 s64, s64, {WSTR}
s_lshl_b32 s65, s65, 7
s_add_u32 s65, s65, {CNT}""".split("\n")
        p(f"""s_mov_b32 s30, s64
v_mov_b32 v4, 0
s_mov_b32 s49, 0x40000
s_cmp_eq_u32 s16, 0
s_cbranch_scc0 L_bc_go
L_bc_poll:
buffer_load_dword v5, v4, s[8:11], s65 offen sc1
s_waitcnt vmcnt(0)
v_readfirstlane_b32 s50, v5
s_sub_u32 s49, s49, 1
s_cmp_eq_u32 s49, 0
s_cbranch_scc1 L_bc_go
s_cmp_lt_u32 s50, 32
s_cbranch_scc1 L_bc_poll
L_bc_go:
s_barrier""")
        if dbg: p(stamp(2))
    steps = []
    def fr(acc, rts=(0, 1), first=False, ag=False, kk=None):
        return dict(m=[(acc + 16*rt, ag, rt, first) for rt in rts], kk=kk)
    for kk in range(36):
        f = [fr(A_, first=kk == 0), fr(B_, first=kk == 0)]
        if kk % 2 == 0: f.append(fr(aODD, first=kk == 0, ag=True))
        steps.append(dict(l=('Y', kk), f=f, ph='p1'))
    steps.append(dict(l=None, f=[fr(A_), fr(B_), fr(aODD, rts=(0,), ag=True)], ph='p1'))
    for kk in range(36):
        steps.append(dict(l=('Y', kk), f=[fr(C_, first=kk == 0), fr(D_, first=kk == 0)], ph='p2'))
    steps.append(dict(l=None, f=[fr(C_), fr(D_)], ph='p2'))
    korder = list(range(16)) + [32, 33, 34, 35]
    NACC = [A_, B_, N2, N3]
    for i, kk in enumerate(korder):
        f = [fr(NACC[n], first=i == 0) for n in range(4)]
        if kk % 2 == 0: f.append(fr(aODD, first=i == 0, ag=True))
        steps.append(dict(l=('H', kk), f=f, ph='q'))
    n_p1 = 37; n_p2 = 74; n_t = 94
    tstart = {}
    for n in (4, 3, 0, 1, 2):
        f = [fr(aODD, ag=True, kk=kk) for kk in range(16, 32, 2)] if n == 4 else [fr(NACC[n], kk=kk) for kk in range(16, 32)]
        tstart[n] = len(steps)
        for b in range(0, len(f), 4): steps.append(dict(l=None, f=f[b:b+4], ph='t'))
    def treg(kk, rt):
        i = (kk - 16) // 2
        if kk % 2 == 0: return 'a', aT + 8*i + 4*rt
        return 'v', C_ + 8*i + 4*rt
    frags = [(si, fi) for si, st in enumerate(steps) for fi in range(len(st['f']))]
    assert len(frags) == WSN
    issue = []
    ych_at = {}
    for c in range(36 // YCH):
        gi = next(g for g, (si, fi) in enumerate(frags) if si == c*YCH)
        ych_at.setdefault(max(0, gi - YLA), []).append(c)
    for g, (si, fi) in enumerate(frags):
        for c in ych_at.get(g, []):
            L = []
            for kk0 in range(c*YCH, (c+1)*YCH, 4):
                for rt in range(2):
                    L.append(f"s_add_u32 m0, s{(26, 31)[rt]}, {YB + kk0*1024}" if kk0 else f"s_mov_b32 m0, s{(26, 31)[rt]}")
                    L.append(I(f"buffer_load_dwordx4 v{vL}, s[8:11], s{27+rt} offen {yfl} lds", tag=f"y{c}"))
                    L.append(f"s_addk_i32 s{27+rt}, 4096")
            issue.append(('y', L, g))
        d = aW + 4*(g % DW)
        pre = ["s_addk_i32 s30, 4096"] if (g % 4 == 0 and g > 0) else []
        issue.append(('w', pre + [I(f"buffer_load_dwordx4 a[{d}:{d+3}], v{vL}, s[8:11], s30 offen offset:{(g%4)*1024}", tag=f"w{g}")], g))
    if fused:
        pre_loads = [y for x in issue if x[0] == 'w' and x[2] < NPRE for y in x[1]]
        pre_loads = [(y.text if isinstance(y, I) else y).replace("s30", "s64") for y in pre_loads]
        issue = [x for x in issue if not (x[0] == 'w' and x[2] < NPRE)]
    ip = 0
    def issue_upto(gmax):
        nonlocal ip
        L = []
        while ip < len(issue) and issue[ip][2] <= gmax:
            L += issue[ip][1]; ip += 1
        return L
    p.ext(issue_upto(D0 - 1))
    p(f"buffer_load_dword v22, v15, s[8:11], s47 offen {'sc1' if fused else ''}\nbuffer_load_dword v23, v15, s[8:11], s48 offen {'sc1' if fused else ''}")
    p(f"""s_mul_i32 s50, s19, {37*1024}
s_mul_i32 s51, s19, {35*1024}
v_add_u32 v{vRD}, s50, v{vL}
v_add_u32 v{vRD+1}, s51, v{vL}
v_subrev_u32 v{vRD+2}, s51, v{vL}
v_subrev_u32 v{vRD+3}, s50, v{vL}
v_add_u32 v{vRD+2}, 36864, v{vRD+2}
v_add_u32 v{vRD+3}, 36864, v{vRD+3}""")
    setup = f"""s_mul_i32 s50, s19, 36864
s_mul_i32 s51, s29, 36864
s_lshl_b32 s52, s16, 11
s_add_u32 s53, s50, s52
s_add_u32 s53, s53, {HB}
v_add_u32 v{vHW}, s53, v{vL}
s_add_u32 s53, s51, s52
s_add_u32 s53, s53, {HB}
v_add_u32 v{vHW+1}, s53, v{vL}
s_lshl_b32 s52, s20, 11
s_add_u32 s53, s50, s52
s_add_u32 s53, s53, {HB + 32*1024}
v_add_u32 v{vHW+2}, s53, v{vL}
s_lshl_b32 s52, s16, 12
s_add_u32 s53, s52, {XB}
v_add_u32 v{vXW}, s53, v{vL}
s_xor_b32 s52, s52, 4096
s_add_u32 s53, s52, {XB}
v_add_u32 v{vXR}, s53, v{vL}
s_mul_i32 s54, s17, {ACT}
s_add_u32 s54, s54, {PART}
s_mul_i32 s55, s45, 36864
s_mul_i32 s56, s46, 36864
s_add_u32 s55, s55, s54
s_add_u32 s56, s56, s54
s_lshl_b32 s57, s20, 11
s_add_u32 s57, s57, {16*2048}
s_add_u32 s57, s57, s55
s_lshl_b32 s58, s16, 11
s_add_u32 s55, s55, s58
s_add_u32 s56, s56, s58
s_mul_i32 s50, s2, 320
s_mul_i32 s51, s16, 80
s_add_u32 s50, s50, s51
s_add_u32 s50, s50, {KV}
v_mov_b32 v{TMP}, 0""".split("\n") + [["s_mov_b64 exec, 0xfffff", f"buffer_store_dword v{TMP}, v15, s[8:11], s50 offen", "s_mov_b64 exec, -1"]]
    if fused: setup = setup[:-6]
    statf = []
    for rt in range(2):
        s = 22 + rt; t = TMP
        statf += f"""v_mov_b32 v{t}, v{s}
v_permlane32_swap_b32 v{s}, v{t}
v_mul_f32 v{s}, 0x3ae38e39, v{s}
v_mul_f32 v{t}, 0x3ae38e39, v{t}
v_fma_f32 v{t}, -v{s}, v{s}, v{t}
v_max_f32 v{t}, 0, v{t}
v_mov_b32 v{t+1}, 0x3f800054
v_mov_b32 v{t+2}, 0x2edbe6ff
v_fma_f32 v{t}, v{t}, v{t+1}, v{t+2}
v_rsq_f32 v{t+1}, v{t}
v_mul_f32 v{t}, v{t}, v{t+1}
v_mul_f32 v{vK1+rt}, 0xc0135761, v{t+1}
v_mul_f32 v{t+2}, v{t+1}, v{t+1}
v_mul_f32 v{t+2}, v{t+2}, v{t+1}
v_mul_f32 v{vK3+rt}, 0xbdd2d3e8, v{t+2}
v_sub_f32 v{s}, 0, v{s}
v_cvt_pk_bf16_f32 v{t+3}, v{s}, v{t}
v_lshlrev_b32 v{t+4}, 16, v{t+3}
v_and_b32 v{t+5}, 0xffff0000, v{t+3}
v_sub_f32 v{t+4}, v{s}, v{t+4}
v_sub_f32 v{t+5}, v{t}, v{t+5}
v_cvt_pk_bf16_f32 v{t+6}, v{s}, v{t+4}
v_cvt_pk_bf16_f32 v{t+7}, v{s}, v{t+5}
v_accvgpr_write_b32 a{aAUG+4*rt}, v{t+6}
v_accvgpr_write_b32 a{aAUG+4*rt+1}, v{t+3}
v_accvgpr_write_b32 a{aAUG+4*rt+2}, v{t+6}
v_accvgpr_write_b32 a{aAUG+4*rt+3}, v{t+7}""".split("\n")
    pkc = [0]
    def gl(acc, rt, waddr, woff, tag):
        L = []
        for q in range(2):
            o = PK + 4*(pkc[0] % 2); pkc[0] += 1
            L += gelu8(acc + 8*q, vK1 + rt, vK3 + rt, TMP, o)
            L.append(I(f"ds_write_b128 v{waddr}, v[{o}:{o+3}] offset:{woff + q*1024}", tag=tag))
        return L
    xw = lambda tag: [I(f"ds_write_b128 v{vXW}, a[{aODD+16+4*i}:{aODD+19+4*i}] offset:{i*1024}", tag=tag) for i in range(4)]
    xr = [f"ds_read_b128 v[{OS+4*i}:{OS+4*i+3}], v{vXR} offset:{i*1024}" for i in range(4)]
    def xadd():
        L = []
        for b in range(0, 16, 4):
            for i in range(4): L.append(f"v_accvgpr_read_b32 v{TMP+i}, a{aODD+b+i}")
            for i in range(4): L.append(f"v_add_f32 v{OS+b+i}, v{OS+b+i}, v{TMP+i}")
        return L
    def gtile(role, acc, tag): return gl(acc, 0, vHW, role*8192, tag) + gl(acc + 16, 1, vHW + 1, role*8192, tag)
    fa = gtile(0, A_, 'hab'); h = len(fa) // 2
    seg = [xw('xw') + fa[:h] + [I("s_barrier", needs=['xw'])] + xr + fa[h:] + xadd() + gtile(1, B_, 'hab'),
           gl(OS, 0, vHW + 2, 0, 'ho') + gtile(2, C_, 'hcd') + gtile(3, D_, 'hcd')]
    hbar = {n_p2: 'hab', n_p2 + 16: 'ho', n_t: 'hcd'}
    def lread(si):
        st = steps[si]
        L = []
        if si in hbar:
            L.append(I("s_barrier", needs=[hbar[si]]))
            if si == n_p2:
                for i in range(4): L.append(f"v_add_u32 v{vRD+i}, {HB}, v{vRD+i}")
        if n_t <= si < n_t + 4:
            ks = [list(range(16, 24, 2)), list(range(24, 32, 2)), list(range(17, 24, 2)), list(range(25, 32, 2))][si - n_t]
            for kk in ks:
                for rt in range(2):
                    R, d = treg(kk, rt)
                    L.append(f"ds_read_b128 {R}[{d}:{d+3}], v{vRD + 2*rt + kk % 2} offset:{kk*1024}")
        if st['l'] is None: return L
        kind, kk = st['l']
        if kind == 'Y' and st['ph'] == 'p1' and kk % YCH == 0: L.append(I("s_barrier", needs=[f"y{kk//YCH}"]))
        for rt in range(2):
            d = aLR + 8*(si % NL) + 4*rt
            L.append(I(f"ds_read_b128 a[{d}:{d+3}], v{vRD + 2*rt + kk % 2} offset:{kk*1024}", tag=f"l{si}"))
        return L
    p.ext(lread(0)); p.ext(lread(1))
    if dbg: p(stamp(3 if fused else 1))
    g = 0
    G = []
    stepstart = {}
    cnt16 = {}
    for si, st in enumerate(steps):
        first_in_step = True
        for fi, fx in enumerate(st['f']):
            ms = fx['m']
            w = aW + 4*(g % DW)
            for mi, (acc, ag, rt, first) in enumerate(ms):
                if st['ph'] == 't':
                    Rb, bb = treg(fx['kk'], rt)
                else:
                    Rb = 'a'; bb = (aLR + 8*(si % NL) + 4*rt) if st['l'] is not None else aAUG + 4*rt
                R = 'a' if ag else 'v'
                c = "0" if first else f"{R}[{acc}:{acc+15}]"
                needs = [f"w{g + len(st['f']) - 1}", f"l{si}"] if (merge and first_in_step and si > 0) else []
                grp = [I(f"v_mfma_f32_32x32x16_bf16 {R}[{acc}:{acc+15}], a[{w}:{w+3}], {Rb}[{bb}:{bb+3}], {c}", needs=needs)]
                if s16:
                    cnt16[(R, acc)] = cnt16.get((R, acc), -1) + 1
                    if first: cnt16[(R, acc)] = 0
                    n = cnt16[(R, acc)]; a2 = acc + 8*(n % 2); b2 = bb ^ 4
                    cc = lambda a: "0" if n < 2 else f"{R}[{a}:{a+3}]"
                    G.append([I(f"v_mfma_f32_16x16x32_bf16 {R}[{a2}:{a2+3}], a[{w}:{w+3}], {Rb}[{bb}:{bb+3}], {cc(a2)}", needs=needs)])
                    grp = [I(f"v_mfma_f32_16x16x32_bf16 {R}[{a2+4}:{a2+7}], a[{w}:{w+3}], {Rb}[{b2}:{b2+3}], {cc(a2+4)}")]
                if first_in_step:
                    stepstart[si] = len(G) - (1 if s16 else 0)
                    if si + 2 < len(steps): grp += lread(si + 2)
                    first_in_step = False
                if mi == len(ms) - 1:
                    depth = min(DW - 1, D0 + g // RAMP)
                    grp += issue_upto(g + depth)
                G.append(grp)
            g += 1
    assert ip == len(issue)
    stepstart[len(steps)] = len(G)
    def outp(acc, sreg, off=0):
        L = []
        for hf in range(2):
            o = PK + 4*(pkc[0] % 2); pkc[0] += 1
            src = acc + 8*hf
            for i in range(4): L.append(f"v_cvt_pk_bf16_f32 v{o+i}, v{src+2*i}, v{src+2*i+1}")
            L += [f"v_permlane32_swap_b32 v{o}, v{o+2}", f"v_permlane32_swap_b32 v{o+1}, v{o+3}"]
            L.append(f"buffer_store_dwordx4 v[{o}:{o+3}], v{vL}, s[8:11], s{sreg} offen offset:{hf*1024} {stfl}")
        return L
    def otile(n):
        acc = NACC[n]
        return [f"s_add_u32 s58, s55, {n*8192}", f"s_add_u32 s59, s56, {n*8192}"] + outp(acc, 58) + outp(acc + 16, 59)
    ts = {n: stepstart[tstart[n]] for n in tstart}
    plan = [(setup, 4, 40), (statf, 60, 120 if not s16 else 200),
            (seg[0], stepstart[n_p1] + 2, stepstart[n_p2 - 2]),
            (seg[1], stepstart[n_p2 - 2], stepstart[n_t - 2]),
            (xw('xw2'), ts[3] + 2, ts[3] + 6),
            ([I("s_barrier", needs=['xw2'])] + xr + xadd() + outp(OS, 57), ts[3] + 12, ts[0]),
            (otile(3), ts[0] + 2, ts[1]), (otile(0), ts[1] + 2, ts[2]), (otile(1), ts[2] + 2, len(G))]
    marks = {stepstart[n_p1]: 2, stepstart[n_p2]: 3, stepstart[n_t]: 4, ts[1]: 5}
    if fused: marks = {stepstart[n_p1]: 4, stepstart[n_t]: 5}
    if mk: marks = {stepstart[x]: i + 2 for i, x in enumerate(mk)}
    for k, v in marks.items():
        if dbg: G[k] = [stamp(v)] + G[k]
    pos = 0
    for fill, a, b in plan:
        if 'nofill' in X: fill = [f for f in fill if isinstance(f, list) or not ((f if isinstance(f, I) else I(f)).kind in ('valu', 'trans'))]
        assert a >= pos
        for grp in G[pos:a]: p.ext(grp)
        p.ext(interleave(G[a:b], fill))
        pos = b
    for grp in G[pos:]: p.ext(grp)
    p.ext(otile(2))
    if not dz:
        if dbg: p(stamp(6))
        if dbg: stamp_end(p, 7, name)
        p("s_endpgm")
    idx = {id(i): k for k, i in enumerate(p.ins)}
    for k, i in enumerate(p.ins):
        if i.op == 's_barrier':
            for t in i.needs:
                assert all(kk < k for kk, j in enumerate(p.ins) if j.tag == t), t
    if 'nolds' in X: p.ins = [i for i in p.ins if not i.op.startswith('ds_read')]
    if 'nobar' in X: p.ins = [i for i in p.ins if i.op != 's_barrier']
    if 'now' in X: p.ins = [i for i in p.ins if not (i.op == 'buffer_load_dwordx4' and not i.isdma)]
    if 'noy' in X: p.ins = [i for i in p.ins if not i.isdma]
    if 'nost' in X: p.ins = [i for i in p.ins if not i.op.startswith('buffer_store_dwordx4')]
    t = p.finish(align)
    if fused: return t, pre_setup, pre_loads
    if align: print('c align', Prog.stats)
    return kernel(name, t, vgpr=256, agpr=256), f"; @launch kernel={name} grid=(256,1,1) block=(256,1,1) lds=163840\n"
```

```python
from asmlib import *
from layout import *
from k0 import srd

def d_part(dbg=False, sf="sc1", dot=True, lf="sc1"):
    p = Prog()
    PL = 32
    XL = 112
    BL = 124
    X = 136
    p(f"""s_lshr_b32 s20, s17, 2
s_lshl_b32 s21, s18, 1
s_add_u32 s20, s20, s21
s_and_b32 s21, s17, 3
s_mul_i32 s22, s20, 36864
s_lshl_b32 s23, s21, 7
s_add_u32 s22, s22, s23
s_lshl_b32 s24, s20, 8
s_lshl_b32 s25, s21, 5
s_add_u32 s24, s24, s25
s_add_u32 s24, s24, {ST}
s_lshl_b32 s25, s20, 5
s_lshl_b32 s26, s21, 3
s_add_u32 s25, s25, s26
s_mul_i32 s25, s25, 1152
s_lshl_b32 s26, s18, 7
s_add_u32 s26, s26, {CNT + 4096}
v_and_b32 v4, 7, v0
v_lshrrev_b32 v5, 3, v0
v_lshlrev_b32 v6, 9, v5
v_lshl_add_u32 v6, v4, 4, v6
v_add_u32 v7, 16384, v6
v_lshrrev_b32 v8, 2, v5
v_lshlrev_b32 v8, 9, v8
v_lshl_add_u32 v8, v4, 4, v8
v_and_b32 v9, 3, v5
v_lshl_add_u32 v8, v9, 2, v8
v_add_u32 v8, 32768, v8
v_lshlrev_b32 v9, 4, v5
v_lshlrev_b32 v10, 2, v5
v_lshlrev_b32 v11, 2, v4
s_add_u32 s27, s22, {X1F}""")
    srd(p, 12, 40, 1152)
    p(f"""buffer_load_dword v24, v11, s[8:11], s24 offen sc1
buffer_load_dword v25, v11, s[8:11], s24 offen offset:128 sc1
buffer_load_dwordx4 v[{XL}:{XL+3}], v6, s[8:11], s27 offen
buffer_load_dwordx4 v[{XL+4}:{XL+7}], v7, s[8:11], s27 offen
buffer_load_dword v{XL+8}, v8, s[8:11], s27 offen
buffer_load_dwordx4 v[{BL}:{BL+3}], v9, s[12:15], 0 offen
buffer_load_dwordx4 v[{BL+4}:{BL+7}], v9, s[12:15], 0 offen offset:512
buffer_load_dword v{BL+8}, v10, s[12:15], 0 offen offset:1024
v_mov_b32 v12, 0
v_mov_b32 v13, 1
s_mov_b32 s49, 0x40000
s_waitcnt vmcnt(8)
s_mov_b64 exec, 1
buffer_atomic_add v13, v12, s[8:11], s26 offen
s_mov_b64 exec, -1""")
    if dbg: p(stamp(6))
    p(f"""v_mul_f32 v24, 0x3ae38e39, v24
v_mul_f32 v25, 0x3ae38e39, v25
v_fma_f32 v25, -v24, v24, v25
v_max_f32 v25, 0, v25
v_mov_b32 v26, 0x3f800054
v_mov_b32 v27, 0x2edbe6ff
v_fma_f32 v25, v25, v26, v27
v_rsq_f32 v25, v25
v_mov_b32 v14, 0x3f80
v_mov_b32 v15, 0x3f800000
v_mul_u32_u24 v16, 1152, v4
v_add_u32 v17, v16, v10
v_add_u32 v16, v16, v9""")
    nd = [4, 4, 1]
    U = 160
    for r in range(3):
        for i in range(nd[r]):
            x = XL + 4*r + i; b = BL + 4*r + i; u = U + 8*r + 2*i
            p(f"v_lshlrev_b32 v{u}, 16, v{x}\nv_and_b32 v{u+1}, 0xffff0000, v{x}\nv_lshlrev_b32 v{x}, 16, v{b}\nv_and_b32 v{b}, 0xffff0000, v{b}")
    for j in range(8): p(f"s_add_u32 s{28+j}, s22, {PART + j*ACT}")
    p(f"""s_cmp_eq_u32 s16, 0
s_cbranch_scc0 L_cd_go
L_cd_poll:
buffer_load_dword v28, v12, s[8:11], s26 offen sc1
s_waitcnt vmcnt(0)
v_readfirstlane_b32 s50, v28
s_sub_u32 s49, s49, 1
s_cmp_eq_u32 s49, 0
s_cbranch_scc1 L_cd_go
s_cmp_lt_u32 s50, 32
s_cbranch_scc1 L_cd_poll
L_cd_go:
s_barrier""")
    for r in range(2):
        for j in range(8): p(f"buffer_load_dwordx4 v[{PL+32*r+4*j}:{PL+32*r+4*j+3}], v{6+r}, s[8:11], s{28+j} offen {lf}")
    for j in range(8): p(f"buffer_load_dword v{PL+64+j}, v8, s[8:11], s{28+j} offen {lf}")
    for r in range(3):
        src = lambda j, i: PL + 32*r + 4*j + i if r < 2 else PL + 64 + j
        for i in range(nd[r]): p(f"v_lshlrev_b32 v{X+8*r+2*i}, 16, v{src(0, i)}\nv_and_b32 v{X+8*r+2*i+1}, 0xffff0000, v{src(0, i)}")
        for j in range(1, 8):
            if dot:
                for i in range(nd[r]): p(f"v_dot2c_f32_bf16 v{X+8*r+2*i}, v{src(j, i)}, v14\nv_dot2c_f32_bf16 v{X+8*r+2*i+1}, v{src(j, i)}, v15")
            else:
                for i in range(nd[r]): p(f"v_lshlrev_b32 v28, 16, v{src(j, i)}\nv_and_b32 v29, 0xffff0000, v{src(j, i)}\nv_add_f32 v{X+8*r+2*i}, v{X+8*r+2*i}, v28\nv_add_f32 v{X+8*r+2*i+1}, v{X+8*r+2*i+1}, v29")
        for i in range(nd[r]):
            x = X + 8*r + 2*i
            p(f"v_fma_f32 v{x}, v{x}, v25, v{XL+4*r+i}\nv_fma_f32 v{x+1}, v{x+1}, v25, v{BL+4*r+i}")
        for i in range(2*nd[r]): p(f"v_add_f32 v{X+8*r+i}, v{X+8*r+i}, v{U+8*r+i}")
        for i in range(nd[r]): p(f"v_cvt_pk_bf16_f32 v{PL+32*r+i}, v{X+8*r+2*i}, v{X+8*r+2*i+1}")
    O = [PL, PL + 32, PL + 64]
    p("s_cmp_eq_u32 s62, 0\ns_cbranch_scc1 L_cd_mid")
    srd(p, 12, 42, ACT)
    p(f"""buffer_store_dwordx4 v[{O[0]}:{O[0]+3}], v16, s[12:15], s25 offen {sf}
buffer_store_dwordx4 v[{O[1]}:{O[1]+3}], v16, s[12:15], s25 offen offset:512 {sf}
buffer_store_dword v{O[2]}, v17, s[12:15], s25 offen offset:1024 {sf}""")
    if dbg: stamp_end(p, 7, 'd2')
    p("s_endpgm\nL_cd_mid:")
    p(f"""s_add_u32 s27, s22, {XF}
s_add_u32 s28, s22, {YF}
buffer_store_dwordx4 v[{O[0]}:{O[0]+3}], v6, s[8:11], s27 offen {sf}
buffer_store_dwordx4 v[{O[1]}:{O[1]+3}], v7, s[8:11], s27 offen {sf}
buffer_store_dword v{O[2]}, v8, s[8:11], s27 offen {sf}""")
    XS = []
    for r in range(3):
        for i in range(nd[r]):
            p(f"v_lshlrev_b32 v{X+8*r+2*i}, 16, v{O[r]+i}\nv_and_b32 v{X+8*r+2*i+1}, 0xffff0000, v{O[r]+i}")
            XS += [X+8*r+2*i, X+8*r+2*i+1]
    p(f"v_add_f32 v24, v{XS[0]}, v{XS[1]}\nv_add_f32 v26, v{XS[2]}, v{XS[3]}\nv_mul_f32 v25, v{XS[0]}, v{XS[0]}\nv_mul_f32 v27, v{XS[1]}, v{XS[1]}")
    for k, x in enumerate(XS[4:]): p(f"v_add_f32 v{24 + 2*(k%2)}, v{24 + 2*(k%2)}, v{x}")
    for k, x in enumerate(XS[2:]): p(f"v_fmac_f32 v{25 + 2*(k%2)}, v{x}, v{x}")
    p(f"""v_add_f32 v24, v24, v26
v_add_f32 v25, v25, v27
v_permlane32_swap_b32 v24, v25
v_add_f32 v24, v24, v25
v_mov_b32 v25, v24
v_permlane16_swap_b32 v24, v25
v_add_f32 v24, v24, v25
v_add_f32 v24, v24, v24 row_ror:8
v_bfe_u32 v27, v0, 5, 1
v_lshl_add_u32 v27, v4, 1, v27
v_lshlrev_b32 v27, 4, v27
s_lshl_b32 s29, s16, 2
v_add_u32 v27, s29, v27
v_and_b32 v28, 24, v0
v_cmp_eq_u32 vcc, 0, v28
s_and_saveexec_b64 s[30:31], vcc
ds_write_b32 v27, v24
s_mov_b64 exec, s[30:31]
v_lshlrev_b32 v27, 5, v4
s_mul_i32 s24, s2, 320
s_mul_i32 s25, s16, 80
s_add_u32 s24, s24, s25
s_add_u32 s24, s24, {KV + KVL}
v_lshlrev_b32 v28, 2, v2
s_mov_b64 exec, 0xfffff
buffer_store_dword v12, v28, s[8:11], s24 offen
s_mov_b64 exec, -1
s_waitcnt lgkmcnt(0)
s_barrier
ds_read_b128 v[20:23], v27
ds_read_b128 v[28:31], v27 offset:16
v_add_f32 v20, v20, v21
v_add_f32 v22, v22, v23
v_add_f32 v28, v28, v29
v_add_f32 v30, v30, v31
v_add_f32 v20, v20, v22
v_add_f32 v28, v28, v30
v_mul_f32 v20, 0x3ae38e39, v20
v_mul_f32 v28, 0x3ae38e39, v28
v_fma_f32 v28, -v20, v20, v28
v_max_f32 v28, 0, v28
v_add_f32 v28, 0x3727c5ac, v28
v_rsq_f32 v28, v28""")
    for x in XS: p(f"v_sub_f32 v{x}, v{x}, v20")
    for x in XS: p(f"v_mul_f32 v{x}, v{x}, v28")
    for k in range(9): p(f"v_cvt_pk_bf16_f32 v{U+k}, v{XS[2*k]}, v{XS[2*k+1]}")
    p(f"""buffer_store_dwordx4 v[{U}:{U+3}], v6, s[8:11], s28 offen {sf}
buffer_store_dwordx4 v[{U+4}:{U+7}], v7, s[8:11], s28 offen {sf}
buffer_store_dword v{U+8}, v8, s[8:11], s28 offen {sf}""")
    if dbg: stamp_end(p, 7, 'd1')
    p("s_endpgm")
    return p.finish()
```

```python
import re

def _expand(tok):
    tok = tok.strip()
    tok = re.sub(r'^-', '', tok)
    m = re.match(r'^(?:abs\(|\|)(.*?)(?:\)|\|)$', tok)
    if m: tok = m.group(1)
    m = re.match(r'^([vsa])\[(\d+):(\d+)\]$', tok)
    if m: return [f"{m.group(1)}{i}" for i in range(int(m.group(2)), int(m.group(3)) + 1)]
    m = re.match(r'^([vsa])(\d+)$', tok)
    if m: return [tok]
    if tok in ('vcc', 'exec'): return [tok]
    if tok in ('vcc_lo', 'vcc_hi'): return ['vcc']
    if tok in ('exec_lo', 'exec_hi'): return ['exec']
    if tok == 'm0': return ['m0']
    return []

TRANS = ('v_exp_f32', 'v_log_f32', 'v_rcp_f32', 'v_rsq_f32', 'v_sqrt_f32', 'v_sin_f32', 'v_cos_f32', 'v_rcp_iflag_f32')

class I:
    __slots__ = ('text', 'op', 'kind', 'w', 'r', 'tag', 'needs', 'srcC', 'passes', 'isdma', 'wide', 'sdata')
    def __init__(self, text, tag=None, needs=()):
        self.text = text.strip(); self.tag = tag; self.needs = list(needs)
        self.srcC = []; self.passes = 0; self.isdma = False; self.wide = False; self.sdata = []
        t = self.text.split(';')[0].strip()
        if t.endswith(':') or t == '' or t.startswith('.'):
            self.op = 'label' if t.endswith(':') else 'dir'; self.kind = self.op; self.w = []; self.r = []; return
        parts = t.split(None, 1)
        self.op = op = re.sub(r'_(e32|e64|dpp|sdwa)$', '', parts[0])
        rest = parts[1] if len(parts) > 1 else ''
        ops = [x.strip() for x in re.split(r',(?![^\[]*\])', rest)]
        mods = ''
        if ops:
            lp = ops[-1].split(None, 1)
            if lp:
                ops[-1] = lp[0]
                mods = lp[1] if len(lp) > 1 else ''
        E = lambda i: _expand(ops[i]) if i < len(ops) else []
        allr = lambda a: [x for i in range(a, len(ops)) for x in E(i)]
        w, r = [], []
        if op.startswith('v_mfma'):
            self.kind = 'mfma'; w = E(0); r = E(1) + E(2) + E(3); self.srcC = E(3)
            self.passes = 8 if '32x32' in op else 4
        elif op.startswith('ds_read') or op.startswith('ds_bpermute') or op.startswith('ds_swizzle') or op.startswith('ds_permute'):
            self.kind = 'dsr'; w = E(0); r = allr(1)
        elif op.startswith('ds_write') or op.startswith('ds_add'):
            self.kind = 'dsw'; r = allr(0)
        elif op.startswith('buffer_load') or op.startswith('global_load'):
            self.kind = 'vm'
            if ' lds' in (' ' + mods) or op.startswith('global_load_lds'):
                self.isdma = True; r = allr(0) + ['m0']
            else:
                w = E(0); r = allr(1)
                if 'd16' in op: r += E(0)
        elif op.startswith('buffer_store') or op.startswith('global_store') or op.startswith('buffer_atomic') or op.startswith('global_atomic'):
            self.kind = 'vm'; r = allr(0)
            if op.startswith('buffer_'): self.sdata = E(0)
            else: self.sdata = E(1)
            if 'x4' in op or 'x3' in op: self.wide = True
            if 'atomic' in op and 'sc0' in mods: w = E(0)
        elif op.startswith('buffer_wbl2') or op.startswith('buffer_inv'):
            self.kind = 'vm'
        elif op.startswith('s_load') or op.startswith('s_memtime') or op.startswith('s_memrealtime') or op.startswith('s_buffer_load'):
            self.kind = 'smem'; w = E(0); r = allr(1)
        elif op in ('s_waitcnt', 's_barrier', 's_nop', 's_setprio', 's_endpgm', 's_sleep', 's_branch') or op.startswith('s_cbranch'):
            self.kind = 'ctl'
            if 'scc' in op: r = ['scc']
            if 'vcc' in op: r = ['vcc']
            if 'exec' in op: r = ['exec']
        elif op.startswith('s_cmp') or op.startswith('s_bitcmp'):
            self.kind = 'salu'; w = ['scc']; r = allr(0)
        elif op.startswith('s_'):
            self.kind = 'salu'; w = E(0); r = allr(1)
            if 'saveexec' in op: w += ['exec']; r += ['exec']
            if op in ('s_addc_u32', 's_subb_u32', 's_cselect_b32', 's_cselect_b64'): r += ['scc']
            if op in ('s_addk_i32', 's_mulk_i32'): r += E(0)
            if not op.startswith('s_mov') and not op.startswith('s_mul') and not op.startswith('s_cselect') and not op.startswith('s_getreg'): w += ['scc']
        elif op.startswith('v_'):
            self.kind = 'trans' if op in TRANS else 'valu'
            if op.startswith('v_cmp'):
                w = E(0); r = allr(1)
                if op.startswith('v_cmpx'): w += ['exec']
            elif op in ('v_add_co_u32', 'v_sub_co_u32', 'v_addc_co_u32', 'v_subb_co_u32'):
                w = E(0) + E(1); r = allr(2)
            elif op.startswith('v_permlane') and 'swap' in op:
                w = E(0) + E(1); r = E(0) + E(1)
            else:
                w = E(0); r = allr(1)
                if op.startswith('v_fmac') or op.startswith('v_pk_fmac') or op in ('v_writelane_b32',) or op.startswith('v_dot2c'): r += E(0)
                if ('row_' in mods or 'quad_perm' in mods or 'wave_' in mods or 'bank_mask' in mods): self.kind = 'dpp'; r += E(0)
                if 'dst_sel' in mods or 'op_sel' in mods: r += E(0)
        else:
            raise ValueError("unknown op " + text)
        self.w = w; self.r = r
    def states(self):
        if self.op == 's_nop':
            return int(self.text.split()[1], 0) + 1
        if self.kind in ('label', 'dir'): return 0
        return 1
    def isvalu(self): return self.kind in ('valu', 'trans', 'dpp')

class Prog:
    def __init__(self):
        self.ins = []
    def add(self, text, tag=None, needs=()):
        for line in text.split('\n'):
            if line.strip(): self.ins.append(I(line, tag, needs))
        return self
    def __call__(self, text, tag=None, needs=()): return self.add(text, tag, needs)
    def ext(self, lst):
        for x in lst:
            if isinstance(x, I): self.ins.append(x)
            else: self.add(x)
    def resolve_waits(self, check_only=False):
        out = []
        vm = []
        lg = []
        def need_vm(pred):
            idx = -1
            for k, o in enumerate(vm):
                if pred(o): idx = k
            return idx
        for ins in self.ins:
            if ins.text.endswith('; @'):
                ins.text = ins.text[:-3].rstrip(); out.append(ins); continue
            if ins.tag == '__clr': vm = []; continue
            if ins.op == 's_waitcnt':
                m = re.search(r'vmcnt\((\d+)\)', ins.text)
                if m:
                    n = int(m.group(1));
                    if len(vm) > n: vm = vm[len(vm) - n:] if n else []
                m = re.search(r'lgkmcnt\((\d+)\)', ins.text)
                if m:
                    n = int(m.group(1))
                    if any(o.kind == 'smem' for o in lg):
                        if n == 0: lg = []
                    elif len(lg) > n: lg = lg[len(lg) - n:] if n else []
                out.append(ins); continue
            touched = set(ins.r) | set(ins.w)
            iv = -1; il = -1
            for k, o in enumerate(vm):
                if (set(o.w) & touched) or (o.tag is not None and o.tag in ins.needs): iv = k
            for k, o in enumerate(lg):
                if (set(o.w) & touched) or (o.tag is not None and o.tag in ins.needs): il = k
            parts = []
            if iv >= 0:
                n = len(vm) - 1 - iv
                n = min(n, 62)
                parts.append(f"vmcnt({n})"); vm = vm[len(vm) - n:] if n else []
            if il >= 0:
                if any(o.kind == 'smem' for o in lg):
                    parts.append("lgkmcnt(0)"); lg = []
                else:
                    n = len(lg) - 1 - il
                    n = min(n, 15)
                    parts.append(f"lgkmcnt({n})"); lg = lg[len(lg) - n:] if n else []
            if parts: out.append(I("s_waitcnt " + " ".join(parts)))
            out.append(ins)
            if ins.kind == 'vm':
                vm.append(ins)
                Prog.maxvm = max(getattr(Prog, 'maxvm', 0), len(vm))
            elif ins.kind in ('dsr', 'dsw', 'smem'): lg.append(ins)
        self.ins = out
        return self
    def pad_hazards(self):
        out = []
        def dist_back(pred, maxd):
            d = 0
            for o in reversed(out):
                if pred(o): return d
                d += o.states()
                if d >= maxd: return None
            return None
        for ins in self.ins:
            need = 0
            R = set(ins.r); W = set(ins.w)
            def req(pred, n):
                nonlocal need
                d = dist_back(pred, n)
                if d is not None and n - d > need: need = n - d
            vr = {x for x in R if x[0] in 'va' and x not in ('vcc',)}
            vw = {x for x in W if x[0] in 'va' and x not in ('vcc',)}
            sr = {x for x in R if x[0] == 's' and x != 'scc'} | ({'vcc'} & R)
            if ins.kind == 'mfma':
                req(lambda o: o.isvalu() and set(o.w) & vr, 2)
                ab = set(ins.r) - set(ins.srcC) if set(ins.srcC) != set(ins.r) else set(ins.r)
                abr = set(_ab(ins))
                for p, n in ((4, 8), (8, 12)):
                    req(lambda o, p=p: o.kind == 'mfma' and o.passes == p and set(o.w) & abr, n)
                for p, n in ((4, 6), (8, 10)):
                    req(lambda o, p=p: o.kind == 'mfma' and o.passes == p and set(o.w) & set(ins.srcC) and not (o.w == ins.srcC and o.passes == ins.passes), n)
                    req(lambda o, p=p: o.kind == 'mfma' and o.passes == p and set(o.w) & set(ins.w) and not (o.w == ins.srcC and o.passes == ins.passes), n)
                req(lambda o: o.isvalu() and 'exec' in o.w, 4)
            elif ins.isvalu() or ins.kind in ('vm', 'dsr', 'dsw'):
                for p, n in ((4, 8), (8, 12)):
                    req(lambda o, p=p: o.kind == 'mfma' and o.passes == p and set(o.w) & (vr | vw), n)
                if ins.isvalu() or ins.kind in ('vm', 'dsr'):
                    for p, n in ((4, 3), (8, 7)):
                        req(lambda o, p=p: o.kind == 'mfma' and o.passes == p and set(o.srcC) & vw, n)
            if ins.isvalu() or ins.kind in ('vm', 'dsw', 'mfma'):
                req(lambda o: o.op.startswith('v_dot') and o.op != ins.op and set(o.w) & (vr | vw), 3)
            if ins.isvalu():
                if ins.kind != 'trans': req(lambda o: o.kind == 'trans' and set(o.w) & vr, 1)
                req(lambda o: o.isvalu() and set(o.w) & sr, 2)
                req(lambda o: o.kind == 'vm' and o.wide and set(o.sdata) & vw, 2)
                if ins.kind == 'dpp':
                    req(lambda o: (o.isvalu() or o.kind=='mfma') and set(o.w) & vr, 2)
                    req(lambda o: o.isvalu() and 'exec' in o.w, 5)
                if ins.op.startswith('v_permlane'):
                    req(lambda o: o.isvalu() and set(o.w) & vr, 2)
                    req(lambda o: o.isvalu() and 'exec' in o.w, 4)
                if ins.op in ('v_readlane_b32', 'v_readfirstlane_b32'):
                    req(lambda o: o.isvalu() and set(o.w) & vr, 1)
                    req(lambda o: o.isvalu() and 'exec' in o.w, 4)
                    req(lambda o: o.isvalu() and set(o.w) & sr, 4)
                if ins.op == 'v_div_fmas_f32': req(lambda o: o.isvalu() and 'vcc' in o.w, 4)
                req(lambda o: o.isvalu() and ('op_sel' in o.text or 'dst_sel' in o.text) and set(o.w) & (vr | vw), 1)
            if ins.kind in ('dsr',) or (ins.kind == 'vm' and vw):
                req(lambda o: o.kind == 'vm' and o.wide and set(o.sdata) & vw, 1)
            if ins.kind == 'vm':
                req(lambda o: o.isvalu() and set(o.w) & sr, 5)
                if ins.isdma: req(lambda o: o.kind == 'salu' and 'm0' in o.w, 1)
            if ins.kind == 'salu' or ins.kind == 'smem' or ins.kind == 'ctl':
                if ins.op in ('s_cbranch_vccz', 's_cbranch_vccnz'): req(lambda o: o.isvalu() and 'vcc' in o.w, 5)
                if ins.op in ('s_cbranch_execz', 's_cbranch_execnz'): req(lambda o: o.isvalu() and 'exec' in o.w, 5)
                req(lambda o: o.isvalu() and set(o.w) & sr, 1)
            while need > 0:
                k = min(need, 16)
                out.append(I(f"s_nop {k-1}")); need -= k
            out.append(ins)
        self.ins = out
        return self
    def text(self):
        return "".join(("" if i.kind == 'label' else "  ") + i.text + "\n" for i in self.ins)
    def sizes(self):
        import subprocess
        lines = [i.text for i in self.ins]
        isbr = lambda i: i.op == 's_branch' or i.op.startswith('s_cbranch')
        src = "\n".join("s_nop 0" if (i.kind in ('label', 'dir') or isbr(i)) else i.text for i in self.ins) + "\n"
        r = subprocess.run(["llvm-mc", "-triple=amdgcn-amd-amdhsa", "-mcpu=gfx950", "-show-encoding"], input=src, capture_output=True, text=True)
        assert r.returncode == 0, r.stderr
        enc = [l.split("encoding:")[1].count("0x") for l in r.stdout.split("\n") if "encoding:" in l]
        assert len(enc) == len(self.ins)
        return [0 if i.kind in ('label', 'dir') else e for i, e in zip(self.ins, enc)]
    def align8(self, start=0, nop=False):
        sz = self.sizes()
        out = []; run = []; pos = start; nfix = nmiss = 0
        def widen(i):
            t = i.text
            if i.kind in ('valu', 'trans') and not re.search(r'_(e64|dpp|sdwa)\b', t) and not i.op.startswith(('v_readfirstlane', 'v_accvgpr', 'v_permlane', 'v_dot2c', 'v_fmaak', 'v_fmamk')):
                return I(re.sub(r'^(\S+?)(_e32)?(\s)', r'\1_e64\3', t, count=1), i.tag, i.needs)
            m = re.match(r's_addk_i32 (s\d+), (\d+)$', t)
            if m and int(m.group(2)) > 64: return I(f"s_add_u32 {m.group(1)}, {m.group(1)}, {m.group(2)}", i.tag, i.needs)
            return None
        for i, n in zip(self.ins, sz):
            if n == 8 and pos % 8 == 4:
                for k in reversed(run):
                    w = widen(out[k])
                    if w is not None:
                        out[k] = w; pos += 4; nfix += 1; break
                else:
                    if nop: out.append(I("s_nop 0")); pos += 4
                    nmiss += 1
            if n == 4: run.append(len(out))
            elif n == 8: run = []
            out.append(i); pos += n
        self.ins = out
        Prog.stats = (nfix, nmiss, pos)
        return self
    def finish(self, align=None):
        self.resolve_waits(); self.pad_hazards()
        if align is not None: self.align8(*align)
        return self.text()

def _ab(ins):
    t = ins.text.split(';')[0].split(None, 1)[1]
    ops = [x.strip() for x in re.split(r',(?![^\[]*\])', t)]
    return _expand(ops[1]) + _expand(ops[2])

def _wt(x):
    if isinstance(x, list): return sum(_wt(y) for y in x)
    i = I(x) if isinstance(x, str) else x
    return 2 if i.kind == 'trans' else 1

def interleave(main, fill, start=0, end=None, cost=None):
    n = len(main); end = n if end is None else end
    gaps = end - start
    w = [_wt(x) for x in fill]
    tot = sum(w); out = []; k = 0; acc = 0
    def emit(x):
        if isinstance(x, list): out.extend(x)
        else: out.append(x)
    for g in range(n):
        out += main[g]
        if start <= g < end:
            target = tot * (g - start + 1) / gaps
            while k < len(fill) and acc + w[k] / 2 <= target:
                emit(fill[k]); acc += w[k]; k += 1
    for x in fill[k:]: emit(x)
    return out

HDR = '.amdgcn_target "amdgcn-amd-amdhsa--gfx950"\n.text\n'
def kernel(name, body, vgpr=256, sgpr=102, agpr=0):
    acc = (vgpr + 3) // 4 * 4
    return f""".text
.globl {name}
.p2align 8
.type {name},@function
{name}:
{body}.section .rodata,"a"
.p2align 6
.amdhsa_kernel {name}
  .amdhsa_next_free_vgpr {acc + agpr if agpr else vgpr}
  .amdhsa_next_free_sgpr {sgpr}
  .amdhsa_accum_offset {acc}
  .amdhsa_group_segment_fixed_size 0
  .amdhsa_kernarg_size 88
  .amdhsa_user_sgpr_count 2
  .amdhsa_user_sgpr_kernarg_segment_ptr 1
  .amdhsa_system_sgpr_workgroup_id_x 1
.end_amdhsa_kernel
"""


class SC:
    m = dict(ptr=68, t=70, r0=90, r1=92, srd=96, ex=94)
    ws = False
    full = False
    sel = {}
    nl = 9
    amp = None
    dw = 0
BIG = dict(ptr=68, t=70, r0=90, r1=92, srd=96, ex=94)
SMALL = dict(ptr=64, t=66, r0=76, r1=78, srd=12, ex=26)
def stamp_init(p):
    m = SC.m
    p(f"s_load_dwordx2 s[{m['ptr']}:{m['ptr']+1}], s[0:1], 72\ns_memtime s[{m['t']}:{m['t']+1}]\ns_memrealtime s[{m['r0']}:{m['r0']+1}]")
def stamp(i):
    t = SC.m['t']
    return f"s_memtime s[{t+2*i}:{t+1+2*i}]"
def stamp_end(p, n, name, stride=32, wave=0, idr='s2'):
    m = SC.m; t = m['t']; r0 = m['r0']; r1 = m['r1']; d = m['srd']; ex = m['ex']
    if SC.ws:
        TS = 0x4000000
        p(f"s_waitcnt vmcnt(0)\ns_memrealtime s[{r1}:{r1+1}]\ns_waitcnt lgkmcnt(0)")
        p(f"s_sub_u32 s{r1}, s{r1}, s{r0}\ns_lshl_b32 s{r1}, s{r1}, 20\ns_and_b32 s{r0}, s{r0}, 0xfffff\ns_or_b32 s{r0}, s{r0}, s{r1}")
        p(f"""s_cmp_eq_u32 {idr}, 0
s_cbranch_scc0 L_{name}_dend
s_mov_b64 exec, -1
v_cmp_eq_u32 vcc, 0, v0
s_and_saveexec_b64 s[{ex}:{ex+1}], vcc
s_cbranch_execz L_{name}_dend
s_bfe_u32 s{r1}, s{m['ptr']}, 0x40009
s_lshl_b32 s{r1}, s{r1}, 2
s_add_u32 s{r1}, s{r1}, {TS}
v_mov_b32 v5, s{r0}
v_mov_b32 v6, 0
buffer_store_dword v5, v6, s[8:11], s{r1} offen""")
        if name == 'd2':
            p(f"""s_waitcnt vmcnt(0)
s_mov_b64 exec, 0xffff
v_lshlrev_b32 v6, 2, v0
s_bfe_u32 s{r1}, s{m['ptr']}, 0x40009
s_add_u32 s{r1}, s{r1}, {17 - SC.nl}
v_add_u32 v7, s{r1}, v0
v_and_b32 v7, 15, v7
v_lshlrev_b32 v7, 2, v7
s_mov_b32 s{r1}, {TS}
buffer_load_dword v5, v7, s[8:11], s{r1} offen sc1
s_mov_b32 s{d}, s{m['ptr']}
s_mov_b32 s{d+1}, s{m['ptr']+1}
s_mov_b32 s{d+2}, 256
s_mov_b32 s{d+3}, 0x20000
s_waitcnt vmcnt(0)
buffer_store_dword v5, v6, s[{d}:{d+3}], 0 offen""")
            if SC.amp is not None:
                i0, i1, wd, K = SC.amp
                p(f"""v_readlane_b32 s20, v5, {i0}
v_readlane_b32 s21, v5, {i1}
s_lshr_b32 s22, s21, 20
s_mul_i32 s22, s22, {wd}
s_add_u32 s21, s21, s22
s_sub_u32 s21, s21, s20
s_and_b32 s21, s21, 0xfffff
s_min_u32 s21, s21, 20000
s_mul_i32 s21, s21, {K}
s_memrealtime s[22:23]
s_waitcnt lgkmcnt(0)
L_spin:
s_sleep 8
s_memrealtime s[24:25]
s_waitcnt lgkmcnt(0)
s_sub_u32 s24, s24, s22
s_cmp_lt_u32 s24, s21
s_cbranch_scc1 L_spin""")
        p(f"L_{name}_dend:")
        return
    p(f"s_waitcnt vmcnt(0)\ns_memtime s[{t+2*n}:{t+1+2*n}]\ns_memrealtime s[{r1}:{r1+1}]\ns_waitcnt lgkmcnt(0)")
    p(f"s_sub_u32 s{r1}, s{r1}, s{r0}\ns_lshl_b32 s{r1}, s{r1}, 20\ns_and_b32 s{r0}, s{r0}, 0xfffff\ns_or_b32 s{r0}, s{r0}, s{r1}")
    for i in range(1, n+1): p(f"s_sub_u32 s{t+2*i}, s{t+2*i}, s{t}")
    if SC.full:
        p(f"""s_bfe_u32 s{r1}, s{m['ptr']}, 0x40009
s_lshl_b32 s{r1}, s{r1}, 14
s_add_u32 s{r1}, s{r1}, 0x4000000
s_lshl_b32 s{r1+1}, {idr}, 5
s_add_u32 s{r1}, s{r1}, s{r1+1}
s_mov_b64 exec, -1
v_mov_b32 v6, 0
v_cmp_eq_u32 vcc, {wave*64}, v0
s_and_saveexec_b64 s[{ex}:{ex+1}], vcc
s_cbranch_execz L_{name}_dend
v_mov_b32 v5, s{r0}
buffer_store_dword v5, v6, s[8:11], s{r1} offen""")
        for i in range(1, n+1):
            p(f"v_mov_b32 v5, s{t+2*i}\nbuffer_store_dword v5, v6, s[8:11], s{r1} offen offset:{4*i}")
        p(f"L_{name}_dend:")
        return
    p(f"""s_and_b32 s{r1}, {idr}, {stride-1}
s_cmp_eq_u32 s{r1}, 0
s_cbranch_scc0 L_{name}_dend
s_mov_b32 s{d}, s{m['ptr']}
s_mov_b32 s{d+1}, s{m['ptr']+1}
s_mov_b32 s{d+2}, 256
s_mov_b32 s{d+3}, 0x20000
s_lshr_b32 s{r1}, {idr}, {stride.bit_length()-1}
s_lshl_b32 s{r1}, s{r1}, 5
s_mov_b64 exec, -1
v_mov_b32 v6, s{r1}
v_cmp_eq_u32 vcc, {wave*64}, v0
s_and_saveexec_b64 s[{ex}:{ex+1}], vcc
s_cbranch_execz L_{name}_dend
v_mov_b32 v5, s{r0}
buffer_store_dword v5, v6, s[{d}:{d+3}], 0 offen""")
    for i in range(1, n+1):
        p(f"v_mov_b32 v5, s{t+2*i}\nbuffer_store_dword v5, v6, s[{d}:{d+3}], 0 offen offset:{4*i}")
    p(f"L_{name}_dend:")


def prefetch(regions, q, vlane, va, vd, st=60):
    L = [f"v_lshlrev_b32 v{va}, 7, v{vlane}"]
    for ri, (base, n) in enumerate(regions):
        L.append(f"s_mul_i32 s{st}, s{q}, {n*128}")
        L.append(f"s_add_u32 s{st}, s{st}, {base}")
        if n < 64:
            L.append(f"s_mov_b32 exec_lo, {hex((1 << min(n, 32)) - 1)}")
            L.append(f"s_mov_b32 exec_hi, {hex((1 << max(n - 32, 0)) - 1)}")
        L.append(f"buffer_load_dword v{vd+ri}, v{va}, s[8:11], s{st} offen")
    L.append("s_mov_b64 exec, -1")
    return L


def nst(name):
    return stamp(SC.sel[name]).replace("s_memtime", "s_memrealtime") if name in SC.sel else ""
def nst_dump(p, name):
    if not SC.sel: return
    m = SC.m; t = m['t']; r1 = m['r1']; ex = m['ex']
    p(f"""s_waitcnt lgkmcnt(0)
s_lshl_b32 s{r1}, s2, 5
s_add_u32 s{r1}, s{r1}, 0x4000000
s_add_u32 s{r1}, s{r1}, s63
v_mov_b32 v6, 0
v_mov_b32 v5, {64*SC.dw}
v_cmp_eq_u32 vcc, v5, v0
s_and_saveexec_b64 s[{ex}:{ex+1}], vcc
s_cbranch_execz L_{name}_dend""")
    for i in range(8):
        p(f"v_mov_b32 v5, s{t+2*i}\nbuffer_store_dword v5, v6, s[8:11], s{r1} offen offset:{4*i} ; @")
    p(f"L_{name}_dend:\ns_mov_b64 exec, -1")


def atomize(L):
    out = []; i = 0
    ins = lambda x: x if isinstance(x, I) else I(x)
    while i < len(L):
        x = L[i]
        if not isinstance(x, list) and ins(x).op.startswith(('s_cmp', 's_bitcmp')):
            j = i + 1
            while j < len(L) and not isinstance(L[j], list) and 'scc' in ins(L[j]).r: j += 1
            assert j > i + 1, x
            out.append(list(L[i:j])); i = j
        else:
            assert isinstance(x, list) or 'scc' not in ins(x).r, x
            out.append(x); i += 1
    return out
```

```python
import sys
sys.path.insert(0, "gen")
from asmlib import *
import k0, ka, kb, kc, kc3, kd
HEAD = open("interleave_layers__linear_attn_block__mixer_channel_mlp__prompt.s.ref").read().split("; Override")[0]
def build(**kw):
    if kw.get('fuse') == 4:
        import km
        SC.sel = {n: i + 1 for i, n in enumerate(kw.get('sel', []))}
        m = km.main_kernel(kw.get('a', {}), kw.get('b', {}), kw.get('c', {}), kw.get('d', {}), kw.get('bk', 0), None, kw.get('p', {}), kw.get('hf', 'sc1'), kw.get('sfl', {}))
        return HEAD + m[1] + HDR + ('; sel: ' + ' '.join(kw['sel']) + '\n' if SC.sel else '') + m[0]
    if kw.get('fuse') == 3:
        import km
        SC.sel = {n: i + 1 for i, n in enumerate(kw.get('sel', []))}
        m = km.main_kernel(kw.get('a', {}), kw.get('b', {}), kw.get('c', {}), kw.get('d', {}), kw.get('bk', 0), kw.get('side'))
        k = k0.k0_kernel(nside=32 if kw.get('side') is not None else 288, **kw.get('k', {}))
        return HEAD + k[1] + m[1] + HDR + ('; sel: ' + ' '.join(kw['sel']) + '\n' if SC.sel else '') + k[0] + m[0]
    D = kw.get('dbg', False)
    SC.ws = kw.get('tl', False); SC.full = kw.get('full', False)
    FZ = kw.get('fuse', False)
    order = list(kw.get('order', range(9) if not FZ else ([0, 1, 2, 4, 5, 6, 8] if FZ == 1 else [0, 1, 2, 5, 6])))
    SC.nl = len(order); SC.amp = kw.get('amp')
    a0 = a1 = ka.a_kernel(dbg=D, kv2=FZ == 2, **kw.get('a', {}))
    if FZ == 2: a0, a1 = a0
    b = kb.b_kernel(dbg=D, **kw.get('b', {})); c = kc3.c3_kernel(dbg=D, **kw['c3']) if 'c3' in kw else kc.c_kernel(dbg=D, **kw.get('c', {}))
    if FZ:
        sent = kw.get('sent', False)
        cz = kc.c_kernel(dbg=D, fused=True, dz=FZ == 2, ds=kd.d_sent(dbg=D, **kw.get('d', {})) if sent else None, **kw.get('c', {}))
        b = kb.b_kernel(dbg=D, cz=cz, dz=("\n" if sent else (kd.d_cnt2 if kw.get('cnt2') else kd.d_part)(dbg=D, **kw.get('d', {}))) if FZ == 2 else None, **kw.get('b', {})); c = ("", "")
    b1 = b
    if FZ == 2:
        b, b1 = b
        kw['d'] = {}
    d0 = k0.d_kernel(0, dbg=D, zkv=FZ, **kw.get('d', {})); d1 = k0.d_kernel(1, dbg=D, **kw.get('d', {}))
    k = k0.k0_kernel(dbg=D, **kw.get('k', {}))
    if FZ == 2: d0 = d1 = ("", "")
    ks = [k, a0, b, c, d0, a1, b1, c, d1]
    ex = []
    if 9 in order:
        p = Prog()
        p("s_load_dwordx2 s[4:5], s[0:1], 80")
        if D: stamp_init(p)
        p("s_waitcnt lgkmcnt(0)")
        k0.srd(p, 8, 4, 0x10000000)
        if D: stamp_end(p, 1, 'e')
        p("s_endpgm")
        ex = [(kernel("e_kernel", p.finish(), vgpr=16), "; @launch kernel=e_kernel grid=(256,1,1) block=(256,1,1) lds=0\n")]
        ks += ex
    return HEAD + "".join(ks[i][1] for i in order) + HDR + "".join(x[0] for x in [k, a0, b, c, d0, d1] + ex)
if __name__ == "__main__":
    out = sys.argv[1] if len(sys.argv) > 1 else "interleave_layers__linear_attn_block__mixer_channel_mlp__prompt.s"
    s = build(dbg=len(sys.argv) > 2)
    open(out, "w").write(s)
    print(out, len(s))
```

```python
from asmlib import *
from layout import *

def srd(p, s, lo, size):
    p(f"s_mov_b32 s{s}, s{lo}\ns_mov_b32 s{s+1}, s{lo+1}\ns_mov_b32 s{s+2}, {size}\ns_mov_b32 s{s+3}, 0x20000")

def unpack8(p, src, dst):
    for i in range(4):
        p(f"v_lshlrev_b32 v{dst+2*i}, 16, v{src+i}")
        p(f"v_and_b32 v{dst+2*i+1}, 0xffff0000, v{src+i}")

def row_body(mode, side=None, pf=True, dbg=False, sf="", ssf="", lf="", zkv=False):
    ldsbase = 27648 if mode == 'k0' else 0
    p = Prog()
    p("s_load_dwordx2 s[4:5], s[0:1], 80")
    if dbg: stamp_init(p)
    if mode == 'k0': p("s_load_dwordx2 s[6:7], s[0:1], 0")
    else: p("s_load_dwordx2 s[6:7], s[0:1], 56")
    if mode == 'd2': p("s_load_dwordx2 s[20:21], s[0:1], 64")
    if side: p(f"s_load_dwordx2 s[20:21], s[0:1], {8 if side == 'wq' else 16}")
    p("""v_lshrrev_b32 v1, 3, v0
v_and_b32 v2, 7, v0
v_lshlrev_b32 v3, 9, v1
v_lshl_add_u32 v3, v2, 4, v3
v_lshlrev_b32 v4, 4, v1
v_mul_u32_u24 v5, 1152, v2
v_add_u32 v5, v5, v4
s_and_b32 s16, s2, 7
s_lshl_b32 s16, s16, 5
s_lshr_b32 s17, s2, 3
s_add_u32 s16, s16, s17
s_lshr_b32 s17, s16, 2
s_mul_i32 s18, s17, 36864
s_and_b32 s19, s16, 3
s_lshl_b32 s22, s19, 7
s_add_u32 s18, s18, s22
s_mul_i32 s23, s16, 9216""")
    if mode == 'k0' or zkv:
        p("v_lshrrev_b32 v56, 6, v0\nv_and_b32 v57, 63, v0\nv_readfirstlane_b32 s36, v56")
    if side:
        RS = 3456 if side == 'wq' else 1152
        p(f"""v_lshrrev_b32 v58, 2, v57
v_mul_u32_u24 v58, {RS}, v58
v_and_b32 v59, 3, v57
v_lshl_add_u32 v58, v59, 4, v58
s_mul_i32 s39, s36, 3072""")
        if side == 'wq':
            p(f"""s_and_b32 s42, s2, 3
s_mul_i32 s42, s42, 9
s_add_u32 s42, s42, s36
s_lshr_b32 s43, s2, 2
s_mul_i32 s37, s42, {16*3456}
s_mul_i32 s44, s43, 36
s_add_u32 s37, s37, s44
s_add_u32 s40, s44, s42
s_lshl_b32 s40, s40, 11
s_add_u32 s40, s40, {WQF}
s_add_u32 s41, s40, 1024""")
        else:
            p(f"""s_sub_u32 s42, s2, 128
s_mul_i32 s43, s42, 7282
s_lshr_b32 s43, s43, 16
s_mul_i32 s44, s43, 9
s_sub_u32 s42, s42, s44
s_add_u32 s44, s44, s36
s_mul_i32 s37, s44, {16*1152}
s_lshl_b32 s45, s42, 7
s_add_u32 s37, s37, s45
s_mul_i32 s40, s42, 72
s_add_u32 s40, s40, s44
s_lshl_b32 s40, s40, 10
s_add_u32 s40, s40, {WOF}
s_add_u32 s41, s40, {36*1024}""")
    p("s_waitcnt lgkmcnt(0)")
    srd(p, 8, 4, WSSZ)
    srd(p, 12, 6, ACT if mode == 'k0' else 1152)
    X = 16
    if mode == 'k0':
        p(f"buffer_load_dwordx4 v[8:11], v5, s[12:15], s23 offen {lf}")
        if side:
            srd(p, 32, 20, 576*1728*2 if side == 'wq' else 576*576*2)
            for u in range(3 if side == 'wq' else 2):
                p(f"s_add_u32 m0, s39, {u*1024}")
                p("buffer_load_dwordx4 v58, s[32:35], s37 offen lds", tag='dma')
                p(f"s_add_u32 s37, s37, {1152 if side == 'wq' else 64}")
            p("""v_bfe_u32 v56, v57, 4, 1
v_lshl_add_u32 v56, v56, 2, v59
v_bfe_u32 v58, v57, 2, 2
v_lshrrev_b32 v59, 5, v57""")
            if side == 'wq':
                p("""v_lshl_add_u32 v58, v59, 3, v58
v_lshlrev_b32 v58, 6, v58
v_add_u32 v58, s39, v58
v_lshlrev_b32 v59, 3, v56
v_add_u32 v60, 1024, v59
v_subrev_u32 v61, 40, v59
v_cmp_gt_u32 vcc, 5, v56
v_cndmask_b32 v60, v61, v60, vcc
v_mov_b32 v61, 32
v_cmp_eq_u32 vcc, 7, v56
v_cndmask_b32 v60, v60, v61, vcc
v_add_u32 v62, 2048, v59
v_subrev_u32 v61, 32, v59
v_cmp_gt_u32 vcc, 6, v56
v_cndmask_b32 v62, v61, v62, vcc
v_add_u32 v60, v60, v58
v_add_u32 v62, v62, v58""")
                trs = [(60, 0), (60, 256), (62, 0), (62, 256)]
            else:
                p("""v_lshrrev_b32 v60, 1, v56
v_add_u32 v60, s43, v60
v_and_b32 v60, 3, v60
v_lshlrev_b32 v60, 4, v60
v_and_b32 v56, 1, v56
v_lshl_add_u32 v56, v56, 3, v60
s_mul_i32 s44, s36, 18
s_cmp_lt_u32 s36, 8
s_cselect_b32 s44, s44, 16
s_cselect_b32 s45, 8, 72
s_cselect_b32 s46, 4, 18
s_cselect_b32 s47, 2, 36
v_mul_u32_u24 v59, s46, v59
v_lshrrev_b32 v60, 1, v58
v_mul_u32_u24 v60, s47, v60
v_and_b32 v58, 1, v58
v_add3_u32 v58, v58, v59, v60
v_add_u32 v58, s44, v58
v_add_u32 v59, s45, v58""")
                for r, a in ((58, 60), (59, 62)):
                    p(f"""v_lshrrev_b32 v{a}, 4, v{r}
v_mul_u32_u24 v{a}, 3072, v{a}
v_and_b32 v{r}, 15, v{r}
v_lshl_add_u32 v{a}, v{r}, 6, v{a}
v_add_u32 v{a}, v{a}, v56""")
                trs = [(60, 0), (62, 0), (60, 1024), (62, 1024)]
        p(f"""s_add_u32 s24, s18, {XF}
buffer_store_dwordx4 v[8:11], v3, s[8:11], s24 offen {sf}""")
        unpack8(p, 8, X)
    else:
        p(f"""s_lshl_b32 s24, s17, 8
s_lshl_b32 s25, s19, 5
s_add_u32 s24, s24, s25
s_add_u32 s24, s24, {ST}
v_lshlrev_b32 v6, 2, v2
buffer_load_dword v24, v6, s[8:11], s24 offen
buffer_load_dword v25, v6, s[8:11], s24 offen offset:128""")
        for j in range(8):
            p(f"s_add_u32 s24, s18, {PART + j*ACT}")
            p(f"buffer_load_dwordx4 v[{32+4*j}:{35+4*j}], v3, s[8:11], s24 offen")
        p(f"s_add_u32 s24, s18, {X1F}")
        p("buffer_load_dwordx4 v[8:11], v3, s[8:11], s24 offen")
        p("buffer_load_dwordx4 v[12:15], v4, s[12:15], 0 offen")
        if pf and mode == 'd1':
            p(f"""v_lshrrev_b32 v30, 6, v0
v_and_b32 v31, 63, v0
v_readfirstlane_b32 s61, v30
s_lshr_b32 s62, s2, 3
s_mul_i32 s62, s62, 9
s_add_u32 s61, s61, s62
s_and_b32 s62, s2, 3
s_mul_i32 s62, s62, {8*73728}
s_add_u32 s62, s62, {WQF}""")
            p.ext(prefetch([('s62', 16)], 61, 31, 30, 31))
        if dbg: p(stamp(1))
        p("""v_mul_f32 v24, 0x3ae38e39, v24
v_mul_f32 v25, 0x3ae38e39, v25
v_fma_f32 v25, -v24, v24, v25
v_max_f32 v25, 0, v25
v_mov_b32 v26, 0x3f800054
v_mov_b32 v27, 0x2edbe6ff
v_fma_f32 v25, v25, v26, v27
v_rsq_f32 v25, v25""")
        unpack8(p, 32, X)
        for j in range(1, 8):
            for i in range(4):
                p(f"v_lshlrev_b32 v28, 16, v{32+4*j+i}")
                p(f"v_and_b32 v29, 0xffff0000, v{32+4*j+i}")
                p(f"v_add_f32 v{X+2*i}, v{X+2*i}, v28")
                p(f"v_add_f32 v{X+2*i+1}, v{X+2*i+1}, v29")
        if dbg: p(stamp(2))
        unpack8(p, 8, 32)
        unpack8(p, 12, 40)
        for i in range(8):
            p(f"v_fma_f32 v{X+i}, v{X+i}, v25, v{40+i}")
            p(f"v_add_f32 v{X+i}, v{X+i}, v{32+i}")
        for i in range(4): p(f"v_cvt_pk_bf16_f32 v{8+i}, v{X+2*i}, v{X+2*i+1}")
        if mode == 'd2':
            srd(p, 12, 20, ACT)
            p(f"buffer_store_dwordx4 v[8:11], v5, s[12:15], s23 offen {sf}")
            if dbg: p(stamp(3)); stamp_end(p, 4, mode)
            p("s_endpgm")
            return p.finish()
        p(f"s_add_u32 s24, s18, {XF}")
        p(f"buffer_store_dwordx4 v[8:11], v3, s[8:11], s24 offen {sf}")
        unpack8(p, 8, X)
    p(f"v_add_f32 v24, v{X}, v{X+1}")
    p(f"v_mul_f32 v25, v{X}, v{X}")
    for i in range(2, 8): p(f"v_add_f32 v24, v24, v{X+i}")
    for i in range(1, 8): p(f"v_fmac_f32 v25, v{X+i}, v{X+i}")
    p(f"""v_permlane32_swap_b32 v24, v25
v_add_f32 v24, v24, v25
v_mov_b32 v25, v24
v_permlane16_swap_b32 v24, v25
v_add_f32 v24, v24, v25
v_add_f32 v24, v24, v24 row_ror:8
v_lshrrev_b32 v26, 6, v0
v_bfe_u32 v27, v0, 5, 1
v_lshl_add_u32 v27, v2, 1, v27
v_mul_u32_u24 v27, 48, v27
v_lshl_add_u32 v27, v26, 2, v27
v_and_b32 v28, 24, v0
v_cmp_eq_u32 vcc, 0, v28
s_and_saveexec_b64 s[26:27], vcc
ds_write_b32 v27, v24 offset:{ldsbase}
s_mov_b64 exec, s[26:27]
v_mul_u32_u24 v27, 96, v2
s_waitcnt lgkmcnt(0)""")
    p("s_barrier", needs=['dma'] if side == 'wo' else [])
    p(f"""ds_read_b128 v[32:35], v27 offset:{ldsbase}
ds_read_b128 v[36:39], v27 offset:{ldsbase+16}
ds_read_b32 v40, v27 offset:{ldsbase+32}
ds_read_b128 v[44:47], v27 offset:{ldsbase+48}
ds_read_b128 v[48:51], v27 offset:{ldsbase+64}
ds_read_b32 v52, v27 offset:{ldsbase+80}""")
    for i in range(1, 9): p(f"v_add_f32 v32, v32, v{32+i}")
    for i in range(1, 9): p(f"v_add_f32 v44, v44, v{44+i}")
    p("""v_mul_f32 v32, 0x3ae38e39, v32
v_mul_f32 v44, 0x3ae38e39, v44
v_fma_f32 v44, -v32, v32, v44
v_max_f32 v44, 0, v44
v_add_f32 v44, 0x3727c5ac, v44
v_rsq_f32 v44, v44""")
    for i in range(8): p(f"v_sub_f32 v{X+i}, v{X+i}, v32")
    for i in range(8): p(f"v_mul_f32 v{X+i}, v{X+i}, v44")
    for i in range(4): p(f"v_cvt_pk_bf16_f32 v{12+i}, v{X+2*i}, v{X+2*i+1}")
    p(f"s_add_u32 s24, s18, {YF}")
    p(f"buffer_store_dwordx4 v[12:15], v3, s[8:11], s24 offen {sf}")
    if side:
        for k, (a, o) in enumerate(trs):
            p(f"ds_read_b64_tr_b16 v[{32+2*k}:{33+2*k}], v{a} offset:{o}", needs=['dma'])
        p("v_lshlrev_b32 v56, 4, v57")
        p(f"buffer_store_dwordx4 v[32:35], v56, s[8:11], s40 offen {ssf}")
        p(f"buffer_store_dwordx4 v[36:39], v56, s[8:11], s41 offen {ssf}")
    if mode == 'k0' and NEW:
        p(f"""s_lshl_b32 s24, s2, 10
s_lshl_b32 s25, s36, 7
s_add_u32 s24, s24, s25
s_add_u32 s24, s24, {ZR}
s_add_u32 s25, s24, {LS}
v_mov_b32 v40, 0
v_and_b32 v41, 63, v0
v_lshlrev_b32 v41, 2, v41
s_mov_b32 exec_hi, 0
buffer_store_dword v40, v41, s[8:11], s24 offen
buffer_store_dword v40, v41, s[8:11], s25 offen
s_mov_b64 exec, -1""")
    elif mode == 'k0' or zkv:
        p(f"""s_mul_i32 s24, s2, 320
s_mul_i32 s25, s36, 36
s_add_u32 s24, s24, s25
s_add_u32 s24, s24, {KV}
v_mov_b32 v40, 0
v_and_b32 v41, 63, v0
v_lshlrev_b32 v41, 2, v41
s_mov_b64 exec, 0x1ff
buffer_store_dword v40, v41, s[8:11], s24 offen
s_mov_b64 exec, -1""")
    if dbg: p(stamp(3)); stamp_end(p, 4, mode + str(side))
    p("s_endpgm")
    return p.finish()

def side_body(ssf="sc1", dbg=False, X=(), lf=""):
    p = Prog()
    WB = WSN*1024
    p("""s_load_dwordx2 s[4:5], s[0:1], 80
s_load_dwordx2 s[6:7], s[0:1], 32
s_load_dwordx2 s[20:21], s[0:1], 48
s_load_dwordx2 s[22:23], s[0:1], 40""")
    if dbg: stamp_init(p)
    p(f"""v_lshrrev_b32 v1, 6, v0
v_and_b32 v2, 63, v0
v_readfirstlane_b32 s16, v1
v_bfe_u32 v5, v2, 2, 3
v_and_b32 v4, 3, v2
v_lshrrev_b32 v6, 5, v2
v_lshlrev_b32 v7, 6, v6
v_lshl_add_u32 v7, v4, 4, v7
v_mul_u32_u24 v3, 9216, v5
v_add_u32 v3, v3, v7
v_mul_u32_u24 v5, 1152, v5
v_add_u32 v5, v5, v7
v_lshlrev_b32 v7, 4, v2
s_and_b32 s17, s3, 7
s_bfe_u32 s18, s3, 0x20003
s_lshr_b32 s19, s3, 5
s_mul_i32 s24, s18, 9
s_add_u32 s24, s24, s16
s_mul_i32 s25, s24, {16*9216}
s_mul_i32 s26, s17, 1152
s_add_u32 s25, s25, s26
s_lshl_b32 s27, s19, 7
s_add_u32 s25, s25, s27
s_mul_i32 s26, s17, 36
s_add_u32 s26, s26, s24
s_mul_i32 s26, s26, {16*1152}
s_add_u32 s26, s26, s27
s_lshl_b32 s27, s16, 12
s_waitcnt lgkmcnt(0)""")
    srd(p, 12, 6, 576*4608*2); srd(p, 28, 20, 576*4608*2)
    for u in range(2):
        p(f"s_add_u32 m0, s27, {u*1024}")
        p("buffer_load_dwordx4 v3, s[12:15], s25 offen " + lf + " lds", tag='a')
        if u < 1: p(f"s_add_u32 s25, s25, {8*9216}")
    for u in range(2):
        p(f"s_add_u32 m0, s27, {2048 + u*1024}")
        p("buffer_load_dwordx4 v5, s[28:31], s26 offen " + lf + " lds", tag='b')
        if u < 1: p(f"s_add_u32 s26, s26, {8*1152}")
    srd(p, 8, 4, WSSZ); srd(p, 32, 22, 4608*2)
    p(f"""s_mul_i32 s36, s17, 18
s_lshl_b32 s37, s19, 1
s_add_u32 s36, s36, s37
s_lshl_b32 s36, s36, 6
v_lshlrev_b32 v40, 1, v2
buffer_load_ushort v43, v40, s[32:35], s36 offen
v_lshlrev_b32 v8, 3, v4
v_bfe_u32 v9, v2, 2, 2
v_lshl_add_u32 v8, v9, 6, v8
v_bfe_u32 v9, v2, 4, 1
v_lshl_add_u32 v8, v9, 5, v8
v_add_u32 v8, s27, v8
v_lshl_add_u32 v9, v6, 8, v8
v_lshl_add_u32 v8, v6, 10, v8
v_mov_b32 v10, 0x3f803f80
v_mov_b32 v11, 0
v_mov_b32 v12, 0
s_lshl_b32 s37, s17, 2
s_and_b32 s38, s19, 1
s_lshl_b32 s38, s38, 1
s_add_u32 s37, s37, s38
s_mul_i32 s37, s37, {WB}
s_add_u32 s37, s37, {WSTR}
s_lshr_b32 s38, s19, 1
s_add_u32 s41, s38, 91
s_add_u32 s42, s38, 90
s_add_u32 s43, s38, 163
s_cmp_lt_u32 s19, 4
s_cselect_b32 s39, 5, 4
s_cselect_b32 s40, s38, s41
s_cselect_b32 s42, s42, s43
s_cselect_b32 s44, 3, 2
s_lshl_b32 s44, s44, 10
s_cmp_eq_u32 s19, 8
s_cselect_b32 s39, 5, s39
s_cselect_b32 s40, 2, s40
s_cselect_b32 s42, 92, s42
s_cselect_b32 s61, {WB}, 0
s_add_u32 s62, s61, {WB}
s_add_u32 s63, s38, 1
s_and_b32 s63, s63, 3
s_lshl_b32 s63, s63, 4
s_add_u32 s63, s63, 265""")
    def dests(d0, beta):
        p(f"""s_lshl_b32 s50, s50, 10
s_add_u32 s50, s50, s37
s_cmp_eq_u32 s19, 8
s_cselect_b32 s52, s61, s{beta}
s_cselect_b32 s53, 0, s{beta}
s_mul_i32 s52, s52, s51
s_add_u32 s{d0}, s50, s52
s_add_u32 s50, s50, s62
s_add_u32 s50, s50, s53
s_sub_u32 s53, s50, s52
s_add_u32 s50, s50, s52
s_cmp_eq_u32 s19, 8
s_cselect_b32 s{d0+1}, s50, s53""")
    p(f"""s_lshr_b32 s56, s24, 1
s_and_b32 s51, s24, 1
s_mul_i32 s50, s56, s39
s_add_u32 s50, s50, s40""")
    dests(54, 44)
    p(f"""s_sub_u32 s57, s56, 8
s_cmp_lt_u32 s56, 8
s_cselect_b32 s50, s56, s57
s_mul_i32 s50, s50, 9
s_add_u32 s50, s50, 167
s_add_u32 s50, s50, s38
s_lshl_b32 s58, s57, 1
s_add_u32 s58, s58, s63
s_add_u32 s59, s57, 257
s_cmp_eq_u32 s19, 8
s_cselect_b32 s58, s59, s58
s_cmp_lt_u32 s57, 8
s_cselect_b32 s50, s58, s50
s_cselect_b32 s45, 1, 5
s_lshl_b32 s45, s45, 10""")
    dests(46, 45)
    p(f"""v_lshlrev_b32 v42, 2, v0
v_and_b32 v44, 31, v2
v_lshlrev_b32 v44, 4, v44
v_mul_u32_u24 v45, s62, v6
v_add_u32 v44, v44, v45
s_lshl_b32 s42, s42, 10
s_add_u32 s42, s42, s37
s_lshr_b32 s43, s18, 1
s_lshl_b32 s43, s43, 9
s_add_u32 s42, s42, s43
s_and_b32 s43, s18, 1
s_lshl_b32 s43, s43, 3
s_add_u32 s42, s42, s43
s_add_u32 s43, s42, s61
s_cmp_lt_u32 s18, 2
s_cselect_b32 s48, 0xffff, 0""")
    if dbg: p(stamp(1))
    for tt in range(2):
        b = 16 + 4*tt
        p(f"ds_read_b64_tr_b16 v[{b}:{b+1}], v8 offset:{tt*512}", needs=['a'])
        p(f"ds_read_b64_tr_b16 v[{b+2}:{b+3}], v8 offset:{tt*512 + 256}")
    if dbg: p(stamp(2))
    for tt in range(2):
        b = 16 + 4*tt
        p(f"buffer_store_dwordx4 v[{b}:{b+3}], v7, s[8:11], s{54+tt} offen {ssf}")
        for q in range(4): p(f"v_dot2c_f32_bf16 v{11+tt}, v{b+q}, v10")
    p(f"""v_permlane32_swap_b32 v11, v12
v_add_f32 v11, v11, v12
ds_write_b32 v42, v11 offset:36864""", tag='cs')
    for tt in range(2):
        b = 24 + 4*tt
        p(f"ds_read_b64_tr_b16 v[{b}:{b+1}], v9 offset:{2048 + tt*512}", needs=['b'])
        p(f"ds_read_b64_tr_b16 v[{b+2}:{b+3}], v9 offset:{2048 + tt*512 + 1024}")
    for tt in range(2):
        b = 24 + 4*tt
        p(f"buffer_store_dwordx4 v[{b}:{b+3}], v7, s[8:11], s{46+tt} offen {ssf}")
    p("s_waitcnt lgkmcnt(0)\ns_barrier")
    p("""s_cmp_eq_u32 s16, 0
s_cbranch_scc0 L_side_end""")
    for w in range(9): p(f"ds_read_b32 v{48+w}, v42 offset:{36864 + w*256}")
    for w in range(1, 9): p(f"v_add_f32 v48, v48, v{48+w}")
    p(f"""v_cvt_pk_bf16_f32 v60, v48, v48
v_and_b32 v49, 0xffff0000, v60
v_sub_f32 v49, v48, v49
v_cvt_pk_bf16_f32 v61, v49, 0
v_and_b32 v43, s48, v43
v_lshl_or_b32 v61, v43, 16, v61
buffer_store_dwordx2 v[60:61], v44, s[8:11], s42 offen
buffer_store_dwordx2 v[60:61], v44, s[8:11], s43 offen
L_side_end:""")
    if dbg: p(stamp(3)); stamp_end(p, 4, 'side', stride=64, idr='s3')
    p("s_endpgm")
    if 'nost' in X: p.ins = [i for i in p.ins if not i.op.startswith('buffer_store_dwordx4')]
    if 'nold' in X: p.ins = [i for i in p.ins if not i.isdma]
    if 'now1' in X: p.ins = [i for i in p.ins if not (i.isdma and i.tag == 'a')]
    return p.finish()

def k0_kernel(dbg=False, sf="", ssf="", wsf="", dside=False, sfirst=True, side=True, X=(), lf='nt', lf2='nt', nside=288):
    SC.m = SMALL
    pre = ""
    if SC.sel:
        pre = f"""  s_cmp_eq_u32 s2, 0
  s_cbranch_scc0 L_k0_ns
  s_memrealtime s[30:31]
  s_load_dwordx2 s[4:5], s[0:1], 80
  s_waitcnt lgkmcnt(0)
  s_mov_b32 s8, s4
  s_mov_b32 s9, s5
  s_mov_b32 s10, {WSSZ}
  s_mov_b32 s11, 0x20000
  v_mov_b32 v1, s30
  v_mov_b32 v2, 0x4010000
  buffer_store_dword v1, v2, s[8:11], 0 offen
L_k0_ns:
"""
    if sfirst:
        body = f"""  s_add_u32 s3, s2, {288 - nside}
  s_cmp_lt_u32 s2, {nside}
  s_cbranch_scc1 L_side
  s_sub_u32 s2, s2, {nside}
"""
    else:
        body = """  s_sub_u32 s3, s2, 256
  s_cmp_lt_u32 s3, 288
  s_cbranch_scc1 L_side
"""
    body += """  s_cmp_lt_u32 s2, 128
  s_cbranch_scc1 L_k0_wq
  s_cmp_lt_u32 s2, 164
  s_cbranch_scc1 L_k0_wo
  s_cmp_lt_u32 s2, 256
  s_cbranch_scc1 L_k0_ln
  s_endpgm
"""
    for r in ('wq', 'wo', None):
        body += f"L_k0_{r or 'ln'}:\n" + row_body('k0', side=r, dbg=dbg and not dside, sf=sf, ssf=ssf, lf=lf2)
    body += "L_side:\n" + ("" if side else "  s_endpgm\n") + side_body(wsf, dbg and dside, X, lf)
    SC.m = BIG
    return kernel("k0_kernel", pre + body, vgpr=64, sgpr=80), "; @launch kernel=k0_kernel grid=(%d,1,1) block=(576,1,1) lds=39168\n" % (256 + nside)

def d_kernel(layer, pf=False, dbg=False, sf="sc1", zkv=False):
    name = f"d{layer}_kernel"
    body = f"  s_cmp_lt_u32 s2, 256\n  s_cbranch_scc1 L_{name}_go\n  s_endpgm\nL_{name}_go:\n" + row_body('d1' if layer == 0 else 'd2', pf=pf, dbg=dbg, sf=sf, zkv=zkv and layer == 0)
    return kernel(name, body, vgpr=64), f"; @launch kernel={name} grid=(256,1,1) block=(576,1,1) lds=1024\n"
```

```python
from asmlib import *
from layout import *
from k0 import srd

def gelu8(x, k1, k3, tmp, out, grp=4):
    L = []
    for b in range(0, 8, grp):
        idx = range(b, b + grp)
        T = lambda i: tmp + i
        for i in idx: L.append(f"v_mul_f32 v{T(i)}, v{x+i}, v{x+i}")
        for i in idx: L.append(f"v_fma_f32 v{T(i)}, v{T(i)}, v{k3}, v{k1}")
        for i in idx: L.append(f"v_mul_f32 v{T(i)}, v{T(i)}, v{x+i}")
        for i in idx: L.append(f"v_exp_f32 v{T(i)}, v{T(i)}")
        for i in idx: L.append(f"v_add_f32 v{T(i)}, 1.0, v{T(i)}")
        for i in idx: L.append(f"v_rcp_f32 v{T(i)}, v{T(i)}")
        for i in idx: L.append(f"v_mul_f32 v{T(i)}, v{T(i)}, v{x+i}")
        for i in list(idx)[::2]: L.append(f"v_cvt_pk_bf16_f32 v{out+i//2}, v{T(i)}, v{T(i+1)}")
    return L

def c_kernel(DW=32, D0=12, YCH=4, stfl="sc1", dbg=False, RAMP=3, X=(), merge=True, YLA=0, amap=2, align=None, s16=False, mk=None, fused=False, NPRE=31, yfl='', wfl='', rev=False, poll=None, PD=1, dz=False, fine=False, ds=None, armw=(0.0, 1.0), prein=False, wpf=None, arms=18, armp=0, sigp=0.5, armf='sc1', OW=30, EP=2, EW=30):
    name = "c_kernel"
    p = Prog()
    YB, HB, XB = 0, 73728, 147456
    vL = 3
    vRD = 6
    vHW = 10
    vXW, vXR = 13, 14
    vK1, vK3 = 16, 18
    TMP, PK = 24, 32
    A_, B_, C_, D_, OS, N2, N3 = 40, 72, 104, 136, 168, 184, 216
    aODD, aAUG, aLR, aT, aW = 0, 32, 40, 64, 128
    NL = 3
    assert aW + 4*DW <= 256
    wslot = (lambda g: aW + 4*(DW - 1 - g % DW)) if rev else (lambda g: aW + 4*(g % DW))
    if not fused:
        p(f"""s_cmp_lt_u32 s2, 256
s_cbranch_scc1 L_{name}_go
s_endpgm
L_{name}_go:
s_load_dwordx2 s[4:5], s[0:1], 80""")
        if dbg: stamp_init(p)
    else: D0 = NPRE
    AM = "s_and_b32 s17, s2, 7\ns_lshr_b32 s18, s2, 3" if not amap else "s_bfe_u32 s17, s2, 0x30003\ns_and_b32 s18, s2, 7\ns_lshl_b32 s18, s18, 2\ns_lshr_b32 s19, s2, 6\ns_add_u32 s18, s18, s19"
    if amap == 2: AM = "s_and_b32 s17, s2, 3\ns_lshl_b32 s17, s17, 1\ns_bfe_u32 s18, s2, 0x10003\ns_add_u32 s17, s17, s18\ns_bfe_u32 s18, s2, 0x10002\ns_lshl_b32 s18, s18, 4\ns_lshr_b32 s19, s2, 4\ns_add_u32 s18, s18, s19"
    if amap == 4: AM = "s_and_b32 s17, s2, 1\ns_lshl_b32 s17, s17, 2\ns_bfe_u32 s18, s2, 0x20003\ns_add_u32 s17, s17, s18\ns_bfe_u32 s18, s2, 0x20001\ns_lshl_b32 s18, s18, 3\ns_lshr_b32 s19, s2, 5\ns_add_u32 s18, s18, s19"
    p(f"""v_lshrrev_b32 v1, 6, v0
v_and_b32 v2, 63, v0
v_readfirstlane_b32 s16, v1
v_lshlrev_b32 v{vL}, 4, v2
{AM}
s_and_b32 s19, s16, 1
s_lshr_b32 s20, s16, 1
s_lshl_b32 s30, s17, 2
s_add_u32 s30, s30, s16
s_mul_i32 s30, s30, {WSN*1024}
s_add_u32 s30, s30, {WSTR}
s_mul_i32 s25, s18, 73728
s_lshl_b32 s26, s16, 10
s_add_u32 s27, s25, s26
s_add_u32 s27, s27, {X1F}{lay('s27')}
s_add_u32 s28, s27, 36864
s_add_u32 s31, s26, 36864
s_lshl_b32 s21, s18, 1
s_xor_b32 s29, s19, 1
s_add_u32 s45, s21, s19
s_add_u32 s46, s21, s29
s_lshl_b32 s47, s45, 8
s_lshl_b32 s48, s46, 8
s_add_u32 s47, s47, {ST}{lay('s47')}
s_add_u32 s48, s48, {ST}{lay('s48')}
v_lshlrev_b32 v15, 2, v2""")
    if not fused:
        p(f"""s_mov_b32 s10, {WSSZ}
s_mov_b32 s11, 0x20000
s_waitcnt lgkmcnt(0)
s_mov_b32 s8, s4
s_mov_b32 s9, s5""")
    else:
        pre_setup = AM.replace("s17", "s64").replace("s18", "s65").replace("s19", "s66").split("\n") + f"""s_lshl_b32 s64, s64, 2
s_add_u32 s64, s64, s16
s_mul_i32 s64, s64, {WSN*1024}
s_add_u32 s64, s64, {WSTR}
s_lshl_b32 s65, s65, {9 if poll else 7}
s_add_u32 s65, s65, {CNT}{lay('s65')}""".split("\n")
        if poll: p(f"s_mov_b32 s30, s64\nv_lshlrev_b32 v4, 7, v2\ns_mov_b32 s49, 0x40000\ns_cmp_eq_u32 s16, 0\ns_cbranch_scc0 L_bc_go\n" + poll(PD) + "\ns_barrier")
        else: p(f"""s_mov_b32 s30, s64
v_mov_b32 v4, 0
s_mov_b32 s49, 0x40000
s_cmp_eq_u32 s16, 0
s_cbranch_scc0 L_bc_go
L_bc_poll:
buffer_load_dword v5, v4, s[8:11], s65 offen sc1
s_waitcnt vmcnt(0)
v_readfirstlane_b32 s50, v5
s_sub_u32 s49, s49, 1
s_cmp_eq_u32 s49, 0
s_cbranch_scc1 L_bc_go
s_cmp_lt_u32 s50, 32
s_cbranch_scc1 L_bc_poll
L_bc_go:
s_barrier""")
        if dbg and not fine: p(stamp(2))
        p(nst('c_go'))
    steps = []
    def fr(acc, rts=(0, 1), first=False, ag=False, kk=None):
        return dict(m=[(acc + 16*rt, ag, rt, first) for rt in rts], kk=kk)
    for kk in range(36):
        f = [fr(A_, first=kk == 0), fr(B_, first=kk == 0)]
        if kk % 2 == 0: f.append(fr(aODD, first=kk == 0, ag=True))
        steps.append(dict(l=('Y', kk), f=f, ph='p1'))
    steps.append(dict(l=None, f=[fr(A_), fr(B_), fr(aODD, rts=(0,), ag=True)], ph='p1'))
    for kk in range(36):
        steps.append(dict(l=('Y', kk), f=[fr(C_, first=kk == 0), fr(D_, first=kk == 0)], ph='p2'))
    steps.append(dict(l=None, f=[fr(C_), fr(D_)], ph='p2'))
    korder = list(range(16)) + [32, 33, 34, 35]
    NACC = [A_, B_, N2, N3]
    for i, kk in enumerate(korder):
        f = [fr(NACC[n], first=i == 0) for n in range(4)]
        if kk % 2 == 0: f.append(fr(aODD, first=i == 0, ag=True))
        steps.append(dict(l=('H', kk), f=f, ph='q'))
    n_p1 = 37; n_p2 = 74; n_t = 94
    tstart = {}
    for n in (4, 3, 0, 1, 2):
        f = [fr(aODD, ag=True, kk=kk) for kk in range(16, 32, 2)] if n == 4 else [fr(NACC[n], kk=kk) for kk in range(16, 32)]
        tstart[n] = len(steps)
        for b in range(0, len(f), 4): steps.append(dict(l=None, f=f[b:b+4], ph='t'))
    def treg(kk, rt):
        i = (kk - 16) // 2
        if kk % 2 == 0: return 'a', aT + 8*i + 4*rt
        return 'v', C_ + 8*i + 4*rt
    frags = [(si, fi) for si, st in enumerate(steps) for fi in range(len(st['f']))]
    assert len(frags) == WSN
    issue = []
    ych_at = {}
    for c in range(36 // YCH):
        gi = next(g for g, (si, fi) in enumerate(frags) if si == c*YCH)
        ych_at.setdefault(max(0, gi - YLA), []).append(c)
    for g, (si, fi) in enumerate(frags):
        for c in ych_at.get(g, []):
            L = []
            for kk0 in range(c*YCH, (c+1)*YCH, 4):
                for rt in range(2):
                    L.append(f"s_add_u32 m0, s{(26, 31)[rt]}, {YB + kk0*1024}" if kk0 else f"s_mov_b32 m0, s{(26, 31)[rt]}")
                    L.append(I(f"buffer_load_dwordx4 v{vL}, s[8:11], s{27+rt} offen {yfl} lds", tag=f"y{c}"))
                    L.append(f"s_addk_i32 s{27+rt}, 4096")
            issue.append(('y', L, g))
        d = wslot(g)
        pre = ["s_addk_i32 s30, 4096"] if (g % 4 == 0 and g > 0) else []
        issue.append(('w', pre + [I(f"buffer_load_dwordx4 a[{d}:{d+3}], v{vL}, s[8:11], s30 offen offset:{(g%4)*1024} {wfl}", tag=f"w{g}")], g))
    if fused:
        pre_loads = [y for x in issue if x[0] == 'w' and x[2] < NPRE for y in x[1]]
        pre_loads = [(y.text if isinstance(y, I) else y).replace("s30", "s64") for y in pre_loads]
        pre_grp = [[(y.text if isinstance(y, I) else y).replace("s30", "s64") for y in x[1]] for x in issue if x[0] == 'w' and x[2] < NPRE]
        issue = [x for x in issue if not (x[0] == 'w' and x[2] < NPRE)]
    ip = 0
    def issue_upto(gmax):
        nonlocal ip
        L = []
        while ip < len(issue) and issue[ip][2] <= gmax:
            L += issue[ip][1]; ip += 1
        return L
    p.ext(issue_upto(D0 - 1))
    p(f"buffer_load_dword v22, v15, s[8:11], s47 offen {'sc1' if fused else ''}\nbuffer_load_dword v23, v15, s[8:11], s48 offen {'sc1' if fused else ''}")
    p(f"""s_mul_i32 s50, s19, {37*1024}
s_mul_i32 s51, s19, {35*1024}
v_add_u32 v{vRD}, s50, v{vL}
v_add_u32 v{vRD+1}, s51, v{vL}
v_subrev_u32 v{vRD+2}, s51, v{vL}
v_subrev_u32 v{vRD+3}, s50, v{vL}
v_add_u32 v{vRD+2}, 36864, v{vRD+2}
v_add_u32 v{vRD+3}, 36864, v{vRD+3}""")
    setup = f"""s_mul_i32 s50, s19, 36864
s_mul_i32 s51, s29, 36864
s_lshl_b32 s52, s16, 11
s_add_u32 s53, s50, s52
s_add_u32 s53, s53, {HB}
v_add_u32 v{vHW}, s53, v{vL}
s_add_u32 s53, s51, s52
s_add_u32 s53, s53, {HB}
v_add_u32 v{vHW+1}, s53, v{vL}
s_lshl_b32 s52, s20, 11
s_add_u32 s53, s50, s52
s_add_u32 s53, s53, {HB + 32*1024}
v_add_u32 v{vHW+2}, s53, v{vL}
s_lshl_b32 s52, s16, 12
s_add_u32 s53, s52, {XB}
v_add_u32 v{vXW}, s53, v{vL}
s_xor_b32 s52, s52, 4096
s_add_u32 s53, s52, {XB}
v_add_u32 v{vXR}, s53, v{vL}
s_mul_i32 s54, s17, {ACT}
s_add_u32 s54, s54, {PART}{lay('s54')}
s_mul_i32 s55, s45, 36864
s_mul_i32 s56, s46, 36864
s_add_u32 s55, s55, s54
s_add_u32 s56, s56, s54
s_lshl_b32 s57, s20, 11
s_add_u32 s57, s57, {16*2048}
s_add_u32 s57, s57, s55
s_lshl_b32 s58, s16, 11
s_add_u32 s55, s55, s58
s_add_u32 s56, s56, s58
s_mul_i32 s50, s2, 320
s_mul_i32 s51, s16, 80
s_add_u32 s50, s50, s51
s_add_u32 s50, s50, {KV}
v_mov_b32 v{TMP}, 0""".split("\n") + [["s_mov_b64 exec, 0xfffff", f"buffer_store_dword v{TMP}, v15, s[8:11], s50 offen", "s_mov_b64 exec, -1"]]
    if fused: setup = setup[:-6]
    statf = []
    for rt in range(2):
        s = 22 + rt; t = TMP
        statf += f"""v_mov_b32 v{t}, v{s}
v_permlane32_swap_b32 v{s}, v{t}
v_mul_f32 v{s}, 0x3ae38e39, v{s}
v_mul_f32 v{t}, 0x3ae38e39, v{t}
v_fma_f32 v{t}, -v{s}, v{s}, v{t}
v_max_f32 v{t}, 0, v{t}
v_mov_b32 v{t+1}, 0x3f800054
v_mov_b32 v{t+2}, 0x2edbe6ff
v_fma_f32 v{t}, v{t}, v{t+1}, v{t+2}
v_rsq_f32 v{t+1}, v{t}
v_mul_f32 v{t}, v{t}, v{t+1}
v_mul_f32 v{vK1+rt}, 0xc0135761, v{t+1}
v_mul_f32 v{t+2}, v{t+1}, v{t+1}
v_mul_f32 v{t+2}, v{t+2}, v{t+1}
v_mul_f32 v{vK3+rt}, 0xbdd2d3e8, v{t+2}
v_sub_f32 v{s}, 0, v{s}
v_cvt_pk_bf16_f32 v{t+3}, v{s}, v{t}
v_lshlrev_b32 v{t+4}, 16, v{t+3}
v_and_b32 v{t+5}, 0xffff0000, v{t+3}
v_sub_f32 v{t+4}, v{s}, v{t+4}
v_sub_f32 v{t+5}, v{t}, v{t+5}
v_cvt_pk_bf16_f32 v{t+6}, v{s}, v{t+4}
v_cvt_pk_bf16_f32 v{t+7}, v{s}, v{t+5}
v_accvgpr_write_b32 a{aAUG+4*rt}, v{t+6}
v_accvgpr_write_b32 a{aAUG+4*rt+1}, v{t+3}
v_accvgpr_write_b32 a{aAUG+4*rt+2}, v{t+6}
v_accvgpr_write_b32 a{aAUG+4*rt+3}, v{t+7}""".split("\n")
    pkc = [0]
    def gl(acc, rt, waddr, woff, tag):
        L = []
        for q in range(2):
            o = PK + 4*(pkc[0] % 2); pkc[0] += 1
            L += gelu8(acc + 8*q, vK1 + rt, vK3 + rt, TMP, o)
            L.append(I(f"ds_write_b128 v{waddr}, v[{o}:{o+3}] offset:{woff + q*1024}", tag=tag))
        return L
    xw = lambda tag: [I(f"ds_write_b128 v{vXW}, a[{aODD+16+4*i}:{aODD+19+4*i}] offset:{i*1024}", tag=tag) for i in range(4)]
    xr = [f"ds_read_b128 v[{OS+4*i}:{OS+4*i+3}], v{vXR} offset:{i*1024}" for i in range(4)]
    def xadd():
        L = []
        for b in range(0, 16, 4):
            for i in range(4): L.append(f"v_accvgpr_read_b32 v{TMP+i}, a{aODD+b+i}")
            for i in range(4): L.append(f"v_add_f32 v{OS+b+i}, v{OS+b+i}, v{TMP+i}")
        return L
    def gtile(role, acc, tag): return gl(acc, 0, vHW, role*8192, tag) + gl(acc + 16, 1, vHW + 1, role*8192, tag)
    fa = gtile(0, A_, 'hab'); h = len(fa) // 2
    seg = [xw('xw') + fa[:h] + [I("s_barrier", needs=['xw'])] + xr + fa[h:] + xadd() + gtile(1, B_, 'hab'),
           gl(OS, 0, vHW + 2, 0, 'ho') + gtile(2, C_, 'hcd') + gtile(3, D_, 'hcd')]
    hbar = {n_p2: 'hab', n_p2 + 16: 'ho', n_t: 'hcd'}
    def lread(si):
        st = steps[si]
        L = []
        if si in hbar:
            L.append(I("s_barrier", needs=[hbar[si]]))
            if si == n_p2:
                for i in range(4): L.append(f"v_add_u32 v{vRD+i}, {HB}, v{vRD+i}")
        if n_t <= si < n_t + 4:
            ks = [list(range(16, 24, 2)), list(range(24, 32, 2)), list(range(17, 24, 2)), list(range(25, 32, 2))][si - n_t]
            for kk in ks:
                for rt in range(2):
                    R, d = treg(kk, rt)
                    L.append(f"ds_read_b128 {R}[{d}:{d+3}], v{vRD + 2*rt + kk % 2} offset:{kk*1024}")
        if st['l'] is None: return L
        kind, kk = st['l']
        if kind == 'Y' and st['ph'] == 'p1' and kk % YCH == 0: L.append(I("s_barrier", needs=[f"y{kk//YCH}"]))
        for rt in range(2):
            d = aLR + 8*(si % NL) + 4*rt
            L.append(I(f"ds_read_b128 a[{d}:{d+3}], v{vRD + 2*rt + kk % 2} offset:{kk*1024}", tag=f"l{si}"))
        return L
    p.ext(lread(0)); p.ext(lread(1))
    if dbg and not fine: p(stamp(3 if fused else 1))
    p(nst('c_first'))
    g = 0
    G = []
    stepstart = {}
    cnt16 = {}
    for si, st in enumerate(steps):
        first_in_step = True
        for fi, fx in enumerate(st['f']):
            ms = fx['m']
            w = wslot(g)
            for mi, (acc, ag, rt, first) in enumerate(ms):
                if st['ph'] == 't':
                    Rb, bb = treg(fx['kk'], rt)
                else:
                    Rb = 'a'; bb = (aLR + 8*(si % NL) + 4*rt) if st['l'] is not None else aAUG + 4*rt
                R = 'a' if ag else 'v'
                c = "0" if first else f"{R}[{acc}:{acc+15}]"
                needs = [f"w{g + len(st['f']) - 1}", f"l{si}"] if (merge and first_in_step and si > 0) else []
                grp = [I(f"v_mfma_f32_32x32x16_bf16 {R}[{acc}:{acc+15}], a[{w}:{w+3}], {Rb}[{bb}:{bb+3}], {c}", needs=needs)]
                if s16:
                    cnt16[(R, acc)] = cnt16.get((R, acc), -1) + 1
                    if first: cnt16[(R, acc)] = 0
                    n = cnt16[(R, acc)]; a2 = acc + 8*(n % 2); b2 = bb ^ 4
                    cc = lambda a: "0" if n < 2 else f"{R}[{a}:{a+3}]"
                    G.append([I(f"v_mfma_f32_16x16x32_bf16 {R}[{a2}:{a2+3}], a[{w}:{w+3}], {Rb}[{bb}:{bb+3}], {cc(a2)}", needs=needs)])
                    grp = [I(f"v_mfma_f32_16x16x32_bf16 {R}[{a2+4}:{a2+7}], a[{w}:{w+3}], {Rb}[{b2}:{b2+3}], {cc(a2+4)}")]
                if first_in_step:
                    stepstart[si] = len(G) - (1 if s16 else 0)
                    if si + 2 < len(steps): grp += lread(si + 2)
                    first_in_step = False
                if mi == len(ms) - 1:
                    depth = min(DW - 1, D0 + g // RAMP)
                    grp += issue_upto(g + depth)
                G.append(grp)
            g += 1
    assert ip == len(issue)
    stepstart[len(steps)] = len(G)
    def outp(acc, sreg, tag=None):
        L = []
        for hf in range(2):
            o = PK + 4*(pkc[0] % 2); pkc[0] += 1
            src = acc + 8*hf
            for i in range(4): L.append(f"v_cvt_pk_bf16_f32 v{o+i}, v{src+2*i}, v{src+2*i+1}")
            if ds:
                for i in range(4): L.append(f"v_min_u32 v{o+i}, s44, v{o+i}")
            L += [f"v_permlane32_swap_b32 v{o}, v{o+2}", f"v_permlane32_swap_b32 v{o+1}, v{o+3}"]
            L.append(I(f"buffer_store_dwordx4 v[{o}:{o+3}], v{vL}, s[8:11], s{sreg} offen offset:{hf*1024} {stfl}", tag=tag))
        return L
    def otile(n):
        acc = NACC[n]
        return [f"s_add_u32 s58, s55, {n*8192}", f"s_add_u32 s59, s56, {n*8192}"] + outp(acc, 58, f"o{n}") + outp(acc + 16, 59, f"o{n}")
    ts = {n: stepstart[tstart[n]] for n in tstart}
    plan = [(setup, 4, 40), (statf, 60, 120 if not s16 else 200),
            (seg[0], stepstart[n_p1] + 2, stepstart[n_p2 - 2]),
            (seg[1], stepstart[n_p2 - 2], stepstart[n_t - 2]),
            (xw('xw2'), ts[3] + 2, ts[3] + 6),
            ([I("s_barrier", needs=['xw2'])] + xr + xadd() + outp(OS, 57), ts[3] + 12, ts[0]),
            (otile(3), ts[0] + 2, ts[1]), (otile(0), ts[1] + 2, ts[2]), (otile(1), ts[2] + 2, len(G))]
    if ds:
        def mix(a, b, lo=0.0, hi=1.0):
            i0 = int(len(a)*lo); i1 = int(len(a)*hi); out = list(a[:i0]); n = i1 - i0; k = 0
            for i in range(n):
                out.append(a[i0 + i])
                while k < len(b) and (k + 0.5) * n <= (i + 1) * len(b): out.append(b[k]); k += 1
            return out + b[k:] + list(a[i1:])
        setup += [f"v_mov_b32 v{248+i}, -1" for i in range(4)] + ["v_mov_b32 v20, 0", "v_mov_b32 v21, 1", "s_mov_b32 s44, -2",
                  "s_lshl_b32 s66, s18, 7", f"s_add_u32 s66, s66, {CNT + 4096}"]
        arm = []
        st = lambda sr, o: I(f"buffer_store_dwordx4 v[248:251], v{vL}, s[8:11], s{sr} offen offset:{o} {armf}", tag='arm')
        for n in range(4):
            arm += [[f"s_add_u32 s58, s55, {n*8192}", st(58, 0)], st(58, 1024), [f"s_add_u32 s59, s56, {n*8192}", st(59, 0)], st(59, 1024)]
        arm += [st(57, 0), st(57, 1024)]
        sig = [["s_mov_b64 exec, 1", I("buffer_atomic_add v21, v20, s[8:11], s66 offen", needs=['arm']), "s_mov_b64 exec, -1"]]
        apoll = ["buffer_load_dword v252, v20, s[8:11], s66 offen sc1"]
        achk = [["v_readfirstlane_b32 s50, v252", "s_cmp_lt_u32 s50, 32", "s_cbranch_scc1 L_arm_w", "L_arm_k:"]]
        sS = [x for x in ds['setup'] if x.startswith('s_')]; sV = [x for x in ds['setup'] if not x.startswith('s_')]
        plan = [(setup, 4, 40), (statf, 60, 120), (arm[:armp], 120, stepstart[n_p1]),
                (mix(seg[0], arm[armp:arms], *armw), stepstart[n_p1] + 2, stepstart[n_p2 - 2]),
                (mix(mix(seg[1], sig, sigp, sigp + 0.05), arm[arms:], 0.0, sigp - 0.3), stepstart[n_p2 - 2], stepstart[n_t - 2]),
                (xw('xw2'), ts[3] + 2, ts[3] + 6), (apoll + sS, ts[3] + 6, ts[3] + 12),
                ([I("s_barrier", needs=['xw2'])] + xr + xadd() + outp(OS, 57), ts[3] + 12, ts[0]),
                (otile(3), ts[0] + 2, ts[0] + 2 + min(OW, 20)), (sV + ds['ld0'], ts[0] + 2 + min(OW, 20), ts[1]),
                (otile(0), ts[1] + 2, ts[1] + 2 + min(OW, 16 if prein else 30)), (ds['pre'] if prein else [], ts[1] + 2 + min(OW, 16 if prein else 30), ts[2])]
        ds['prein'] = prein
        if wpf:
            pfs = f"""s_lshr_b32 s50, s2, 3
s_lshl_b32 s50, s50, 2
s_add_u32 s50, s50, s16
s_and_b32 s51, s50, 7
s_and_b32 s52, s2, 3
s_lshl_b32 s52, s52, 3
s_add_u32 s51, s51, s52
s_mul_i32 s51, s51, {WSN*1024}
s_lshr_b32 s50, s50, 3
s_lshl_b32 s50, s50, 14
s_add_u32 s51, s51, s50
s_add_u32 s51, s51, {WSTR + (WSN - 256)*1024}
s_add_u32 s52, s51, 8192
v_lshlrev_b32 v253, 7, v2
buffer_load_dword v254, v253, s[8:11], s51 offen
buffer_load_dword v255, v253, s[8:11], s52 offen""".split("\n")
            plan = plan[:1] + [(pfs, wpf, wpf + 8)] + plan[1:] if wpf < 60 else plan[:2] + [(pfs, wpf, wpf + 8)] + plan[3:]
        o1 = otile(1)
        if EP <= 2: plan += [(achk, ts[2] + 1, ts[2] + 2), (mix(o1, ds['early']), ts[2] + 2, ts[2] + 2 + EW)]
        else: plan += [(o1, ts[2] + 2, ts[2] + EP), (achk + ds['early'], ts[2] + EP, min(len(G), ts[2] + EP + EW))]
    marks = {stepstart[n_p1]: 2, stepstart[n_p2]: 3, stepstart[n_t]: 4, ts[1]: 5}
    if fused: marks = {stepstart[n_p1]: 4, stepstart[n_t]: 5}
    if fine: marks = {}
    if mk: marks = {stepstart[x]: i + 2 for i, x in enumerate(mk)}
    for k, v in marks.items():
        if dbg: G[k] = [stamp(v)] + G[k]
    for nm, k in (('c_p1', stepstart[n_p1]), ('c_p2', stepstart[n_p2]), ('c_t', stepstart[n_t])):
        if nst(nm): G[k] = [nst(nm)] + G[k]
    pos = 0
    for fill, a, b in plan:
        if 'nofill' in X: fill = [f for f in fill if isinstance(f, list) or not ((f if isinstance(f, I) else I(f)).kind in ('valu', 'trans'))]
        assert a >= pos
        for grp in G[pos:a]: p.ext(grp)
        p.ext(interleave(G[a:b], fill))
        pos = b
    for grp in G[pos:]: p.ext(grp)
    if dbg and fine: p(stamp(2))
    p(nst('c_end'))
    p.ext(otile(2))
    extra = ""
    if ds:
        extra = ds['fin'](p) + """L_arm_w:
  buffer_load_dword v252, v20, s[8:11], s66 offen sc1
  s_waitcnt vmcnt(0)
  v_readfirstlane_b32 s50, v252
  s_sub_u32 s49, s49, 1
  s_cmp_eq_u32 s49, 0
  s_cbranch_scc1 L_arm_k
  s_cmp_lt_u32 s50, 32
  s_cbranch_scc1 L_arm_w
  s_branch L_arm_k
"""
    if not dz:
        if dbg: p(stamp(6))
        if dbg: stamp_end(p, 7, name)
        p("s_endpgm")
    idx = {id(i): k for k, i in enumerate(p.ins)}
    for k, i in enumerate(p.ins):
        if i.op == 's_barrier':
            for t in i.needs:
                assert all(kk < k for kk, j in enumerate(p.ins) if j.tag == t), t
    if 'noarm' in X: p.ins = [i for i in p.ins if i.tag != 'arm']
    if 'nolds' in X: p.ins = [i for i in p.ins if not i.op.startswith('ds_read')]
    if 'nobar' in X: p.ins = [i for i in p.ins if i.op != 's_barrier']
    if 'now' in X: p.ins = [i for i in p.ins if not (i.op == 'buffer_load_dwordx4' and not i.isdma)]
    if 'noy' in X: p.ins = [i for i in p.ins if not i.isdma]
    if 'nost' in X: p.ins = [i for i in p.ins if not i.op.startswith('buffer_store_dwordx4')]
    t = p.finish(align) + extra
    if fused: return t, pre_setup, pre_loads, pre_grp
    if align: print('c align', Prog.stats)
    return kernel(name, t, vgpr=256, agpr=256), f"; @launch kernel={name} grid=(256,1,1) block=(256,1,1) lds=163840\n"
```

```python
from asmlib import *
from layout import *
from k0 import srd
from ka import phi, QB
import kc, kp
HF = ['']

CCD, CDA, CAB = 16384, 32768, 49152
aWOr = lambda ks, t: 64 + 4*((8 - ks)*5 + t)

BK = [0]
def spin(tag, sreg, va, vd, lanes, target, depth=1):
    ld = lambda k: f"buffer_load_dword v{vd+k}, v{va}, s[8:11], s{sreg} offen sc1 ; @"
    L = ([f"s_mov_b64 exec, {(1 << lanes) - 1}"] if lanes < 32 else ["s_mov_b32 exec_hi, 0"]) + [ld(k) for k in range(depth - 1)] + [f"L_{tag}_poll:"]
    for k in range(depth):
        L += [ld((k + depth - 1) % depth), f"s_waitcnt vmcnt({depth - 1}) ; @", f"v_cmp_gt_u32 vcc, {target}, v{vd+k}",
              "s_nop 4", f"s_cbranch_vccz L_{tag}_ok"]
    L += ["s_nop 15"] * BK[0]
    L += ["s_sub_u32 s49, s49, 1", "s_cmp_eq_u32 s49, 0", f"s_cbranch_scc0 L_{tag}_poll", f"L_{tag}_ok:", "s_mov_b64 exec, -1"]
    L.append(f"L_{tag}_go:")
    return "\n".join(L)

A_MAP = """s_and_b32 s17, s2, 7
s_lshr_b32 s18, s2, 3
s_lshr_b32 s19, s17, 2
s_lshl_b32 s19, s19, 2
s_and_b32 s20, s18, 3
s_add_u32 s19, s19, s20
s_and_b32 s20, s17, 3
s_lshl_b32 s20, s20, 3
s_lshr_b32 s21, s18, 2
s_add_u32 s20, s20, s21"""
A_WS = f"""s_mul_i32 s24, s20, 73728
s_add_u32 s24, s24, {WQF}
s_lshl_b32 s25, s16, 11
s_add_u32 s24, s24, s25"""
def a_wchunk(c):
    L = [f"s_add_u32 m0, s25, {c*8192}" if c else "s_mov_b32 m0, s25"]
    for i in range(2): L.append(I(f"buffer_load_dwordx4 v3, s[8:11], s24 offen offset:{i*1024} {HF[0]} lds", tag=f"w{c}"))
    if c < 8: L.append("s_addk_i32 s24, 8192")
    return L

def wo_loads(ts, sreg=50):
    G = []
    for t in ts:
        for ks in range(9):
            pre = []
            if ks in (4, 8): pre = [f"s_addk_i32 s{sreg}, 4096"]
            if ks == 0 and t != ts[0]: pre = [f"s_add_u32 s{sreg}, s{sreg}, {36864 - 8192}"]
            r = aWOr(ks, t)
            G.append(pre + [f"buffer_load_dwordx4 a[{r}:{r+3}], v3, s[8:11], s{sreg} offen offset:{(ks%4)*1024} {HF[0]}"])
    return G

def side_parts(ssf="sc1", lf="nt"):
    WB = WSN*1024
    SB = 98304
    V = 160
    v3_, v5_, vs_, t1, t2, ts1, ts2, c0, c1, vb, vcs, vag, T = V, V+1, V+2, V+3, V+4, V+5, V+6, V+7, V+8, V+9, V+10, V+11, V+12
    D = V + 16
    ka = "s_load_dwordx4 s[56:59], s[0:1], 32\ns_load_dwordx2 s[60:61], s[0:1], 48"
    setup = f"""s_mov_b32 s12, s56
s_mov_b32 s13, s57
s_mov_b32 s14, {576*4608*2}
s_mov_b32 s15, 0x20000
s_mov_b32 s44, s60
s_mov_b32 s45, s61
s_mov_b32 s46, {576*4608*2}
s_mov_b32 s47, 0x20000
s_mov_b32 s64, s58
s_mov_b32 s65, s59
s_mov_b32 s66, {4608*2}
s_mov_b32 s67, 0x20000
s_cmp_lt_u32 s16, 2
s_cselect_b32 s96, s56, s60
s_cselect_b32 s97, s57, s61
s_mov_b32 s98, {576*4608*2}
s_mov_b32 s99, 0x20000
s_and_b32 s56, s2, 7
s_bfe_u32 s57, s2, 0x20003
s_lshr_b32 s58, s2, 5
s_mul_i32 s59, s57, 9
s_add_u32 s60, s59, s16
s_mul_i32 s62, s60, {16*9216}
s_mul_i32 s68, s56, 1152
s_lshl_b32 s69, s58, 7
s_add_u32 s68, s68, s69
s_add_u32 s62, s62, s68
s_mul_i32 s87, s56, 36
s_add_u32 s87, s87, s60
s_mul_i32 s87, s87, {16*1152}
s_add_u32 s87, s87, s69
s_add_u32 s60, s59, 8
s_mul_i32 s88, s60, {16*9216}
s_add_u32 s88, s88, s68
s_mul_i32 s68, s56, 36
s_add_u32 s68, s68, s60
s_mul_i32 s68, s68, {16*1152}
s_add_u32 s68, s68, s69
s_cmp_lt_u32 s16, 2
s_cselect_b32 s88, s88, s68
s_cselect_b32 s68, 8, 1
s_mul_i32 s68, s68, 1152
s_and_b32 s69, s16, 1
s_lshl_b32 s69, s69, 6
s_add_u32 s88, s88, s69
s_mul_i32 s55, s16, 9216
s_add_u32 s55, s55, {SB}
v_bfe_u32 v{T}, v2, 2, 3
v_and_b32 v{T+1}, 3, v2
v_lshrrev_b32 v{T+2}, 5, v2
v_lshlrev_b32 v{T+3}, 6, v{T+2}
v_lshl_add_u32 v{T+3}, v{T+1}, 4, v{T+3}
v_mul_u32_u24 v{v3_}, 9216, v{T}
v_add_u32 v{v3_}, v{v3_}, v{T+3}
v_mul_u32_u24 v{v5_}, 1152, v{T}
v_add_u32 v{v5_}, v{v5_}, v{T+3}
v_lshrrev_b32 v{T}, 2, v2
v_mul_u32_u24 v{vs_}, s68, v{T}
v_lshl_add_u32 v{vs_}, v{T+1}, 4, v{vs_}""".split("\n")
    dma = []
    for b in range(2):
        for mi, (vo, sr, srd_, rs) in enumerate(((v3_, 62, 12, 9216), (v5_, 87, 44, 1152))):
            for u in range(2):
                L = [f"s_add_u32 m0, s55, {(2*b + mi)*2048 + u*1024}", I(f"buffer_load_dwordx4 v{vo}, s[{srd_}:{srd_+3}], s{sr} offen {lf} lds", tag=f"sd{b}{mi}")]
                if not (b == 1 and u == 1): L.append(f"s_add_u32 s{sr}, s{sr}, {(8 if u == 0 else 56)*rs}")
                dma.append(L)
    dma.append([f"s_add_u32 m0, s55, 8192", I(f"buffer_load_dwordx4 v{vs_}, s[96:99], s88 offen {lf} lds", tag="sds")])
    setup2 = f"""s_mul_i32 s68, s56, 18
s_lshl_b32 s69, s58, 1
s_add_u32 s68, s68, s69
s_lshl_b32 s68, s68, 6
v_lshlrev_b32 v{vb}, 1, v2
buffer_load_ushort v{vb}, v{vb}, s[64:67], s68 offen
v_and_b32 v{T+1}, 3, v2
v_lshrrev_b32 v{T+2}, 5, v2
v_lshlrev_b32 v{T}, 3, v{T+1}
v_bfe_u32 v{T+3}, v2, 2, 2
v_lshl_add_u32 v{T}, v{T+3}, 6, v{T}
v_bfe_u32 v{T+3}, v2, 4, 1
v_lshl_add_u32 v{T}, v{T+3}, 5, v{T}
v_add_u32 v{T}, s55, v{T}
v_lshl_add_u32 v{t1}, v{T+2}, 10, v{T}
v_lshl_add_u32 v{t2}, v{T+2}, 8, v{T}
s_cmp_lt_u32 s16, 2
s_cselect_b32 s68, 2, 1
s_cselect_b32 s69, 1, 2
s_lshl_b32 s68, s68, 8
s_lshl_b32 s69, s69, 8
v_mul_u32_u24 v{ts1}, s68, v{T+2}
v_add_u32 v{ts1}, v{ts1}, v{T}
v_add_u32 v{ts2}, s69, v{ts1}
v_mov_b32 v{c0}, 0
v_mov_b32 v{c1}, 0
s_lshl_b32 s89, s56, 2
s_and_b32 s68, s58, 1
s_lshl_b32 s68, s68, 1
s_add_u32 s89, s89, s68
s_mul_i32 s89, s89, {WB}
s_add_u32 s89, s89, {WSTR}
s_lshr_b32 s90, s58, 1
s_add_u32 s68, s90, 91
s_add_u32 s69, s90, 90
s_add_u32 s61, s90, 163
s_cmp_lt_u32 s58, 4
s_cselect_b32 s91, 5, 4
s_cselect_b32 s93, s90, s68
s_cselect_b32 s61, s69, s61
s_cselect_b32 s100, 3, 2
s_lshl_b32 s100, s100, 10
s_add_u32 s101, s90, 1
s_and_b32 s101, s101, 3
s_lshl_b32 s101, s101, 4
s_add_u32 s101, s101, 265
s_lshl_b32 s61, s61, 10
s_add_u32 s61, s61, s89
s_lshr_b32 s68, s57, 1
s_lshl_b32 s68, s68, 9
s_add_u32 s61, s61, s68
s_and_b32 s68, s57, 1
s_lshl_b32 s68, s68, 3
s_add_u32 s61, s61, s68
s_cmp_lt_u32 s57, 2
s_cselect_b32 s57, 0xffff, 0
v_lshlrev_b32 v{vcs}, 2, v0
v_add_u32 v{vcs}, {SB + 36864}, v{vcs}
v_and_b32 v{vag}, 31, v2
v_lshlrev_b32 v{vag}, 4, v{vag}
v_mul_u32_u24 v{T}, {WB}, v{T+2}
v_add_u32 v{vag}, v{vag}, v{T}""".split("\n")
    def dest(m):
        L = ["s_lshr_b32 s56, s60, 1", "s_and_b32 s58, s60, 1"]
        if m == 0:
            L += ["s_mul_i32 s68, s56, s91", "s_add_u32 s68, s68, s93", "s_mov_b32 s69, s100"]
        else:
            L += """s_sub_u32 s88, s56, 8
s_cmp_lt_u32 s56, 8
s_cselect_b32 s68, s56, s88
s_mul_i32 s68, s68, 9
s_add_u32 s68, s68, 167
s_add_u32 s68, s68, s90
s_lshl_b32 s69, s88, 1
s_add_u32 s69, s69, s101
s_cmp_lt_u32 s88, 8
s_cselect_b32 s68, s69, s68
s_cselect_b32 s69, 1, 5
s_lshl_b32 s69, s69, 10""".split("\n")
        L += f"""s_lshl_b32 s68, s68, 10
s_add_u32 s68, s68, s89
s_mul_i32 s58, s58, s69
s_add_u32 s62, s68, s58
s_add_u32 s68, s68, s69
s_sub_u32 s68, s68, s58
s_add_u32 s87, s68, {WB}""".split("\n")
        return L
    work = []
    for b in range(2):
        for mi in range(2):
            d = D + 8*((2*b + mi) % 4)
            base = (2*b + mi)*2048
            ra, o2 = ((t1, 256), (t2, 1024))[mi]
            for tt in range(2):
                work.append(I(f"ds_read_b64_tr_b16 v[{d+4*tt}:{d+4*tt+1}], v{ra} offset:{base + tt*512}", needs=[f"sd{b}{mi}"]))
                work.append(f"ds_read_b64_tr_b16 v[{d+4*tt+2}:{d+4*tt+3}], v{ra} offset:{base + tt*512 + o2}")
            if mi == 0: work.append(f"s_add_u32 s60, s59, s16" if b == 0 else "s_add_u32 s60, s60, 4")
            work += dest(mi)
            for tt in range(2):
                work.append(f"buffer_store_dwordx4 v[{d+4*tt}:{d+4*tt+3}], v3, s[8:11], s{(62, 87)[tt]} offen {ssf}")
                if mi == 0: work += [f"v_dot2c_f32_bf16 v{(c0, c1)[tt]}, v8, v{d+4*tt+q}" for q in range(4)]
    d = D + 32
    work += [I(f"ds_read_b64_tr_b16 v[{d}:{d+1}], v{ts1} offset:8192", needs=["sds"]), f"ds_read_b64_tr_b16 v[{d+2}:{d+3}], v{ts2} offset:8192", "s_add_u32 s60, s59, 8"]
    work += dest(0) + ["s_bitcmp1_b32 s16, 0", "s_cselect_b32 s55, s87, s62"] + dest(1)
    work += ["s_bitcmp1_b32 s16, 0", "s_cselect_b32 s62, s87, s62", "s_cmp_lt_u32 s16, 2", "s_cselect_b32 s62, s55, s62",
             f"buffer_store_dwordx4 v[{d}:{d+3}], v3, s[8:11], s62 offen {ssf}",
             "s_cmp_eq_u32 s16, 0", "s_cselect_b32 s68, 0x3f803f80, 0", "s_cmp_eq_u32 s16, 1", "s_cselect_b32 s69, 0x3f803f80, 0"]
    for q in range(4): work += [f"v_dot2c_f32_bf16 v{c0}, s68, v{d+q}", f"v_dot2c_f32_bf16 v{c1}, s69, v{d+q}"]
    work += [f"v_permlane32_swap_b32 v{c0}, v{c1}", f"v_add_f32 v{c0}, v{c0}, v{c1}", I(f"ds_write_b32 v{vcs}, v{c0}", tag='scs')]
    fin = [f"v_lshlrev_b32 v{vcs}, 2, v2", f"v_add_u32 v{vcs}, {SB + 36864}, v{vcs}"]
    fin += [f"ds_read_b32 v{D+w}, v{vcs} offset:{w*256}" for w in range(4)]
    fin += f"""v_add_f32 v{D}, v{D}, v{D+1}
v_add_f32 v{D+2}, v{D+2}, v{D+3}
v_add_f32 v{D}, v{D}, v{D+2}
v_cvt_pk_bf16_f32 v{D+4}, v{D}, v{D}
v_and_b32 v{D+1}, 0xffff0000, v{D+4}
v_sub_f32 v{D+1}, v{D}, v{D+1}
v_cvt_pk_bf16_f32 v{D+5}, v{D+1}, 0
v_and_b32 v{vb}, s57, v{vb}
v_lshl_or_b32 v{D+5}, v{vb}, 16, v{D+5}
buffer_store_dwordx2 v[{D+4}:{D+5}], v{vag}, s[8:11], s61 offen {ssf}""".split("\n")
    return ka, atomize(setup), dma, atomize(setup2), atomize(work), fin

def a_part(first, p0=None, dw=False, YR=16, D0=12, RAMP=1, NW=8, qsf="sc1", NP1=36, NPa=16, PD=1, yf='sc1', side=None, SW=(2, 12, 12, 34, 60, 112)):
    n = "a0" if first else "a1"
    p = Prog()
    p(A_MAP)
    p(f"""s_lshl_b32 s21, s19, 3
s_lshl_b32 s22, s16, 1
s_add_u32 s21, s21, s22
s_mul_i32 s22, s21, 36864
s_add_u32 s22, s22, {YF if first else YF + LS}""")
    if first: p(A_WS)
    if first and dw:
        p(f'''s_load_dwordx2 s[56:57], s[0:1], 8
v_lshrrev_b32 v200, 3, v2
v_mul_u32_u24 v200, 3456, v200
v_and_b32 v201, 3, v2
v_bfe_u32 v202, v2, 2, 1
v_lshlrev_b32 v203, 4, v201
v_mul_u32_u24 v204, 1152, v202
v_add_u32 v203, v203, v204
v_add_u32 v203, 1152, v203
v_lshlrev_b32 v204, 4, v202
v_cmp_eq_u32 vcc, 3, v201
v_cndmask_b32 v203, v203, v204, vcc
v_add_u32 v200, v200, v203
v_add_u32 v201, {8*3456 - 1024}, v200
s_mul_i32 s24, s20, 36
s_mul_i32 s58, s16, {16*3456}
s_add_u32 s24, s24, s58
s_waitcnt lgkmcnt(0)
s_mov_b32 s12, s56
s_mov_b32 s13, s57
s_mov_b32 s14, {576*1728*2}
s_mov_b32 s15, 0x20000''')
    ACC, WR, P0, V1, TMP, KVA, QO = 16, 80, 112, 120, 128, 136, 152
    items = []
    for g in range(72):
        if first and g < 36 and g % 4 == 0:
            wc = a_wchunk(g // 4)
            if dw:
                c = g // 4
                wc = [wc[0]] + [I(f"buffer_load_dwordx4 v{200+i}, s[12:15], s24 offen offset:{i*1024} lds", tag=f"w{c}") for i in range(2)] + ([f"s_add_u32 s24, s24, {64*3456}"] if c < 8 else [])
            items.append((g, wc))
        s = 4*(g % YR)
        pre = ["s_addk_i32 s22, 4096"] if (g % 4 == 0 and g) else []
        items.append((g, pre + [f"buffer_load_dwordx4 a[{s}:{s+3}], v3, s[8:11], s22 offen offset:{(g%4)*1024} {'' if first and not p0 else yf}"]))
    ip = 0
    def issue_upto(gmax):
        nonlocal ip
        L = []
        while ip < len(items) and items[ip][0] <= gmax:
            L += items[ip][1]; ip += 1
        return L
    setup = f"""v_lshlrev_b32 v13, 2, v0
v_add_u32 v4, 65536, v3
s_mul_i32 s28, s16, 1280
s_add_u32 s28, s28, {QB - 20*64}
v_and_b32 v5, 31, v2
v_lshlrev_b32 v5, 6, v5
v_lshrrev_b32 v9, 5, v2
v_lshl_add_u32 v5, v9, 5, v5
v_add_u32 v5, s28, v5
v_bfe_u32 v6, v2, 2, 2
v_lshl_add_u32 v6, v9, 2, v6
v_lshlrev_b32 v6, 6, v6
v_and_b32 v7, 1, v2
v_lshl_add_u32 v6, v7, 5, v6
v_bfe_u32 v7, v2, 4, 1
v_lshl_add_u32 v6, v7, 4, v6
v_bfe_u32 v7, v2, 1, 1
v_lshl_add_u32 v6, v7, 3, v6
s_add_u32 s28, s28, {20*64}
v_add_u32 v6, s28, v6
v_lshlrev_b32 v7, 2, v2
s_mul_i32 s28, s16, 2560
v_add_u32 v15, s28, v3
v_lshlrev_b32 v14, 3, v2
v_add_u32 v14, s28, v14
v_and_b32 v8, 27, v2
v_cmp_eq_u32 s[30:31], 18, v8
v_mov_b32 v8, 0x3f803f80
s_mov_b32 s32, 0xfff00000
s_mov_b32 s33, 0xfff00000
s_lshl_b32 s26, s21, 5
s_add_u32 s26, s26, s20
s_lshl_b32 s27, s26, 8
s_lshl_b32 s26, s26, 10
s_add_u32 s26, s26, {PQ16 + (0 if first else LS)}
s_add_u32 s27, s27, {PQ4 + (0 if first else LS)}"""
    if first and p0:
        n = "a0" + p0[0]
        p(setup)
        p(f"""s_and_b32 s56, s2, 7
s_lshl_b32 s56, s56, 10
s_add_u32 s56, s56, {kp.PFL}
s_mov_b32 s49, 0x40000
s_cmp_eq_u32 s16, 0
s_cbranch_scc0 L_{n}p_go""")
        p(kp.poll(n + "p", 56, 250) + f"L_{n}p_go:\ns_barrier")
        p(nst('a_go'))
        p.ext(issue_upto(D0 - 1))
    elif first:
        p.ext(issue_upto(D0 - 1))
        p(setup)
    else:
        p(setup)
        p(f"""s_lshl_b32 s28, s19, 2
s_bfe_u32 s29, s2, 0x20005
s_add_u32 s28, s28, s29
s_lshl_b32 s28, s28, 9
s_add_u32 s28, s28, {CNT + LS + CDA}
v_lshlrev_b32 v10, 7, v2
s_mov_b32 s49, 0x40000
s_waitcnt vmcnt(0)
s_cmp_eq_u32 s16, 0
s_cbranch_scc0 L_da_go""")
        p(spin("da", 28, 10, 250, 4, 8, PD))
        p("s_barrier")
        p(nst('a_go'))
        p.ext(issue_upto(YR - 1))
    def wrd(f):
        g = f % 72
        s = WR + 4*(f % NW)
        L = []
        if first and f < 72 and f % 8 == 0: L.append(I("s_barrier", needs=[f"w{f//8}"]))
        L.append(f"ds_read_b128 v[{s}:{s+3}], v3 offset:{g*1024}" if g < 64 else f"ds_read_b128 v[{s}:{s+3}], v4 offset:{(g-64)*1024}")
        return L
    for f in range(NW - 1): p.ext(wrd(f))
    p(nst('a_first'))
    G = []
    for g in range(72):
        y = 4*(g % YR)
        for t in range(2):
            f = 2*g + t
            w = WR + 4*(f % NW)
            acc = ACC + 32*(g // 36) + 16*t
            c = "0" if g % 36 == 0 else f"v[{acc}:{acc+15}]"
            grp = [f"v_mfma_f32_32x32x16_bf16 v[{acc}:{acc+15}], a[{y}:{y+3}], v[{w}:{w+3}], {c}"]
            if f + NW - 1 < 144: grp += wrd(f + NW - 1)
            if t == 1:
                depth = min(YR, D0 + 1 + g*RAMP) if first else YR
                grp += issue_upto(g + depth)
            G.append(grp)
    assert ip == len(items)
    def epi1(rt):
        T0 = ACC + 32*rt; T1 = T0 + 16
        L = []
        for i in range(8): L.append(f"v_cvt_pk_bf16_f32 v{V1+i}, v{T1+2*i}, v{T1+2*i+1}")
        for i in range(8): L.append(f"v_cndmask_b32 v{V1+i}, v{V1+i}, v8, s[30:31]")
        ph = phi(list(range(T0, T0 + 16)), TMP)
        pk = [f"v_cvt_pk_bf16_f32 v{P0+i}, v{T0+2*i}, v{T0+2*i+1}" for i in range(8)]
        mm = [f"v_mfma_f32_32x32x16_bf16 v[{KVA}:{KVA+15}], v[{P0+4*q}:{P0+4*q+3}], v[{V1+4*q}:{V1+4*q+3}], " + ("0" if (rt == 0 and q == 0) else f"v[{KVA}:{KVA+15}]") for q in range(2)]
        L = ph[:32] + pk[:4] + L + [mm[0]] + ph[32:] + pk[4:] + [mm[1]]
        L.append(["s_mov_b64 exec, s[32:33]",
                  f"ds_write_b128 v5, v[{V1}:{V1+3}] offset:512", f"ds_write_b128 v5, v[{V1+4}:{V1+7}] offset:528",
                  f"ds_write_b128 v5, v[{P0}:{P0+3}]", f"ds_write_b128 v5, v[{P0+4}:{P0+7}] offset:16",
                  "s_mov_b64 exec, -1"])
        L += [f"ds_read_b64_tr_b16 v[{QO}:{QO+1}], v6", f"ds_read_b64_tr_b16 v[{QO+2}:{QO+3}], v6 offset:768", f"ds_read_b64_tr_b16 v[{QO+4}:{QO+5}], v6 offset:512"]
        return L
    def epi2(rt):
        u = TMP + 4
        L = [f"v_lshlrev_b32 v{u}, 16, v{QO+2}", f"v_and_b32 v{u+1}, 0xffff0000, v{QO+2}", f"v_lshlrev_b32 v{u+2}, 16, v{QO+3}", f"v_and_b32 v{u+3}, 0xffff0000, v{QO+3}"]
        L += phi([u, u+1, u+2, u+3], TMP)
        L += [f"v_cvt_pk_bf16_f32 v{QO+2}, v{u}, v{u+1}", f"v_cvt_pk_bf16_f32 v{QO+3}, v{u+2}, v{u+3}"]
        return L
    def qst(rt):
        L = ["s_add_u32 s26, s26, 32768", "s_add_u32 s27, s27, 8192"] if rt else []
        return L + [f"buffer_store_dwordx4 v[{QO}:{QO+3}], v3, s[8:11], s26 offen {qsf}", f"buffer_store_dword v{QO+4}, v7, s[8:11], s27 offen {qsf}"]
    late = f"""v_bfe_u32 v10, v0, 2, 5
v_lshrrev_b32 v12, 1, v0
v_cmp_gt_u32 s[34:35], 19, v10
v_cmp_eq_u32 s[36:37], 22, v10
s_or_b64 s[34:35], s[34:35], s[36:37]
v_cmp_gt_u32 s[38:39], 19, v12
v_cmp_eq_u32 s[36:37], 22, v12
s_or_b64 s[38:39], s[38:39], s[36:37]
s_mul_i32 s28, s20, 2560
s_add_u32 s28, s28, {KV + (0 if first else LS)}
s_lshr_b32 s51, s2, 6
s_mul_i32 s52, s51, 5
s_lshl_b32 s53, s51, 2
s_add_u32 s53, s53, 2
s_cmp_lt_u32 s51, 2
s_cselect_b32 s52, s52, s53
s_mul_i32 s50, s52, 36864
s_mul_i32 s53, s16, 9216
s_add_u32 s50, s50, s53
s_add_u32 s50, s50, {WOF}
s_lshl_b32 s54, s20, 7
s_add_u32 s54, s54, {CNT + CAB + (0 if first else LS)}
v_lshlrev_b32 v10, 12, v2
v_mov_b32 v11, 1""".split("\n")
    wo = wo_loads(range(4))[:NP1]
    if side and first:
        _, su, dma, su2, work, fin = side
        G[116] = G[116] + [I("s_barrier", needs=['scs'])]
        def put(L, a, b):
            for k, x in enumerate(L): G[a + k*(b - a)//len(L)] += x if isinstance(x, list) else [x]
        put(su, SW[0], SW[1]); put(dma, SW[2], SW[3]); put(su2, SW[3], SW[4]); put(work, SW[4], SW[5]); put(fin, 117, 130)
    elif first and p0:
        G[116] = G[116] + [I("s_barrier", needs=['scs'])]
        for L, a, b in ((p0[1], SW[0], SW[1]), (p0[2], 117, 130)):
            for k, x in enumerate(L): G[a + k*(b - a)//len(L)] += x if isinstance(x, list) else [x]
    else: G[116] = G[116] + ["s_barrier"]
    for grp in G[:20]: p.ext(grp)
    p.ext(interleave(G[20:60], atomize(late)))
    for grp in G[60:74]: p.ext(grp)
    p.ext(interleave(G[74:124], epi1(0) + epi2(0) + qst(0)))
    p.ext(interleave(G[124:], wo[:NPa]))
    p(nst('a_epi'))
    e1 = epi1(1)
    rest = wo[NPa:]
    k1 = len(rest) * 2 // 3
    p.ext(interleave([x if isinstance(x, list) else [x] for x in e1], rest[:k1]))
    p(f"ds_write_b128 v15, v[{KVA}:{KVA+3}]\nds_write_b128 v15, v[{KVA+4}:{KVA+7}] offset:1024\nds_write_b64 v14, v[{KVA+8}:{KVA+9}] offset:2048")
    for x in rest[k1:]: p.ext(x)
    p("s_waitcnt lgkmcnt(0)")
    p("s_barrier")
    for it in range(3):
        for w in range(4): p(f"ds_read_b32 v{16 + 4*it + w}, v13 offset:{w*2560 + it*1024}")
    p.ext(epi2(1))
    for it in range(3):
        b = 16 + 4*it
        p(f"v_add_f32 v{b}, v{b}, v{b+1}\nv_add_f32 v{b+2}, v{b+2}, v{b+3}\nv_add_f32 v{b}, v{b}, v{b+2}")
    p(f"""s_mov_b64 exec, s[34:35]
buffer_atomic_add_f32 v16, v13, s[8:11], s28 offen
buffer_atomic_add_f32 v20, v13, s[8:11], s28 offen offset:1024
s_mov_b64 exec, -1""")
    p.ext(qst(1))
    p(f"""s_cmp_eq_u32 s16, 0
s_cbranch_scc0 L_{n}_end
s_mov_b64 exec, s[38:39]
buffer_atomic_add_f32 v24, v13, s[8:11], s28 offen offset:2048
s_mov_b64 exec, -1
L_{n}_end:""")
    p(nst('a_st'))
    if first: p("s_branch L_ab")
    return p.finish()

def ab_link(NP1=36):
    p = Prog()
    p(f"""s_and_b32 s17, s2, 7
s_lshl_b32 s17, s17, 3
s_bfe_u32 s19, s2, 0x30003
s_add_u32 s17, s17, s19
s_mov_b32 s18, s52
s_waitcnt vmcnt(0)
s_barrier
s_cmp_eq_u32 s16, 0
s_cbranch_scc0 L_ab_ns
s_mov_b64 exec, 0xffff
buffer_atomic_add v11, v10, s[8:11], s54 offen
s_mov_b64 exec, -1
L_ab_ns:""")
    p(nst('a_sig'))
    for x in wo_loads(range(4))[NP1:]: p.ext(x)
    p("s_cmp_lt_u32 s51, 2\ns_cbranch_scc0 L_b4")
    return p.finish()

def b_part(NT, cz, xsf="sc1", PFD=3, PD=1, lf='sc1', allp=False, pbar=False):
    p = Prog()
    KVR, NUM, TL, ACC, XR = 16, 112, 144, 152, 232
    aPQ = 0
    if NT == 5:
        for x in wo_loads(range(3, 5))[9:]: p.ext(x)
    p(f"""s_lshl_b32 s19, s16, 3
s_mul_i32 s20, s19, 2560
s_add_u32 s20, s20, {KV}{lay('s20')}
s_lshl_b32 s21, s17, 5
s_add_u32 s21, s21, s19
s_lshl_b32 s22, s21, 8
s_lshl_b32 s21, s21, 10
s_add_u32 s21, s21, {PQ16}{lay('s21')}
s_add_u32 s22, s22, {PQ4}{lay('s22')}
v_lshlrev_b32 v4, 3, v2
v_lshlrev_b32 v5, 2, v2
v_and_b32 v6, 24, v2
v_cmp_eq_u32 vcc, 24, v6
v_mov_b32 v6, 0x40000000
v_cndmask_b32 v12, v3, v6, vcc
v_cndmask_b32 v4, v4, v6, vcc
v_add_u32 v6, 4096, v3
s_mul_i32 s25, s17, 36864
s_lshl_b32 s26, s18, 11
s_add_u32 s25, s25, s26
s_lshl_b32 s26, s16, 9
s_add_u32 s25, s25, s26{lay('s25')}
s_add_u32 s26, s25, {XF}
s_add_u32 s27, s25, {X1F}
v_and_b32 v8, 31, v2
v_lshlrev_b32 v8, 4, v8
v_lshrrev_b32 v9, 5, v2
v_lshl_add_u32 v8, v9, 3, v8
v_add_u32 v9, 4096, v8
v_add_u32 v10, 8192, v8""")
    for h in range(8): p(f"v_accvgpr_write_b32 a{aPQ+6*h+5}, 0")
    for g in range(1, 4):
        p(f"""s_add_u32 s28, s16, {g}
s_and_b32 s28, s28, 3
s_mul_i32 s28, s28, {3*NT*1024}
s_add_u32 s28, s28, {(g-1)*NT*1024}
v_add_u32 v{242+g}, s28, v3""")
    p(f"s_mul_i32 s28, s16, {3*NT*1024}\nv_add_u32 v14, s28, v3")
    p(f"s_lshl_b32 s28, s17, 8\ns_add_u32 s28, s28, {ST}{lay('s28')}")
    p.ext(cz[1])
    p(f"s_lshr_b32 s67, s17, 1\ns_lshl_b32 s67, s67, 2\ns_add_u32 s67, s67, s16\ns_lshl_b32 s67, s67, 7\ns_add_u32 s67, s67, {CNT}{lay('s67')}")
    pf = list(cz[3])
    if not allp and not pbar:
        for x in pf[:3]: p.ext(x)
    p(f"""s_lshl_b32 s29, s16, 10
s_bfe_u32 s30, s2, 0x40003
s_lshl_b32 s30, s30, 12
s_add_u32 s29, s29, s30
s_add_u32 s29, s29, {CNT + CAB}{lay('s29')}
v_lshlrev_b32 v7, 7, v2
s_mov_b32 s49, 0x40000""")
    if allp:
        p(f"s_waitcnt vmcnt(0)\ns_cmp_eq_u32 s16, 0\ns_cbranch_scc0 L_ab{NT}_go")
        p(spin(f"ab{NT}", 29, 7, 250, 32, 8, PD)); p("s_barrier")
    else: p(spin(f"ab{NT}", 29, 7, 250, 8, 8, PD))
    p.ins.append(I("s_nop 0", tag='__clr'))
    p(nst('b_go'))
    for h in range(8):
        k = KVR + 12*h; q = aPQ + 6*h
        p(f"""buffer_load_dwordx4 v[{k}:{k+3}], v12, s[8:11], s20 offen {lf}
buffer_load_dwordx4 v[{k+4}:{k+7}], v12, s[8:11], s20 offen offset:1024 {lf}
buffer_load_dwordx2 v[{k+8}:{k+9}], v4, s[8:11], s20 offen offset:2048 {lf}
buffer_load_dwordx4 a[{q}:{q+3}], v{(3,6)[h//4]}, s[8:11], s21 offen offset:{(h%4)*1024} {lf}
buffer_load_dword a{q+4}, v5, s[8:11], s22 offen offset:{h*256} {lf}""")
        if h < 7: p("s_addk_i32 s20, 2560")
    for t in range(NT): p(f"buffer_load_dwordx2 v[{XR+2*t}:{XR+2*t+1}], v{8 + t//2}, s[8:11], s26 offen offset:{(t%2)*2048} {lf}")
    def prep(h):
        k = KVR + 12*h; q = aPQ + 6*h; n = NUM + 16*(h % 2)
        L = [f"v_cvt_pk_bf16_f32 v{k+i}, v{k+2*i}, v{k+2*i+1}" for i in range(5)]
        L.append(f"v_mov_b32 v{k+5}, 0")
        L.append(f"v_mfma_f32_32x32x16_bf16 v[{n}:{n+15}], v[{k}:{k+3}], a[{q}:{q+3}], 0")
        L.append(f"v_mfma_f32_32x32x8_bf16 v[{n}:{n+15}], v[{k+4}:{k+5}], a[{q+4}:{q+5}], v[{n}:{n+15}]")
        return L
    def post(h):
        n = NUM + 16*(h % 2); o = KVR + 12*h + 8
        L = [f"v_add_f32 v11, 0x358637bd, v{n+10}", "v_rcp_f32 v11, v11"]
        for i in range(10): L.append(f"v_mul_f32 v{n+i}, v{n+i}, v11")
        for i in range(4): L.append(f"v_cvt_pk_bf16_f32 v{o+i}, v{n+2*i}, v{n+2*i+1}")
        L.append(f"v_cvt_pk_bf16_f32 v{TL + h//2 + 4*(h%2)}, v{n+8}, v{n+9}")
        return L
    def gemm(ks):
        o = KVR + 12*ks + 8 if ks < 8 else TL
        G = []
        for t in range(NT):
            r = aWOr(ks, t); a = ACC + 16*t
            c = "0" if ks == 0 else f"v[{a}:{a+15}]"
            G.append([f"v_mfma_f32_32x32x16_bf16 v[{a}:{a+15}], a[{r}:{r+3}], v[{o}:{o+3}], {c}"])
        return G
    flat = lambda L: [y for x in L for y in (x if isinstance(x, list) else [x])]
    for st in range(11):
        ks = st - PFD
        nl = pf[3 + 5*ks: 8 + 5*ks] if ks >= 0 else []
        if (allp or pbar) and ks == -1: nl = pf[:3]
        if pbar and ks == -1: p('s_barrier')
        if st < 8: p.ext(prep(st))
        fill = post(st - 1) if 0 <= st - 1 < 8 else []
        if st == 9: fill = [f"v_permlane32_swap_b32 v{TL+i}, v{TL+4+i}" for i in range(4)]
        if nl:
            m = []; step = max(1, len(fill) // len(nl)) if fill else 1; fi = 0
            for x in nl:
                m.append(x); m += fill[fi:fi+step]; fi += step
            fill = m + fill[fi:]
        if st >= 2: p.ext(interleave(gemm(st - 2), fill))
        else: p.ext(flat(fill))
    assert 3 + 5*(10 - PFD + 1) >= len(pf)
    p(nst('b_gemm'))
    p.ext([f"ds_write_b128 v{242+g}, v[{ACC + 16*t + 4*g}:{ACC + 16*t + 4*g + 3}] offset:{t*1024}" for t in range(NT) for g in range(1, 4)])
    p("s_waitcnt lgkmcnt(0)\ns_barrier")
    RD = KVR
    for t in range(NT):
        for g in range(3):
            r = RD + 12*t + 4*g
            p(f"ds_read_b128 v[{r}:{r+3}], v14 offset:{(g*NT + t)*1024}")
    p("v_mov_b32 v15, 0\nv_mov_b32 v11, 0")
    for t in range(NT):
        a = ACC + 16*t; x = XR + 2*t; u = a + 4
        p(f"v_lshlrev_b32 v{u}, 16, v{x}\nv_and_b32 v{u+1}, 0xffff0000, v{x}\nv_lshlrev_b32 v{u+2}, 16, v{x+1}\nv_and_b32 v{u+3}, 0xffff0000, v{x+1}")
        for i in range(4): p(f"v_add_f32 v{a+i}, v{a+i}, v{u+i}")
    for t in range(NT):
        a = ACC + 16*t; r = RD + 12*t; x = XR + 2*t
        for i in range(4): p(f"v_add_f32 v{a+i}, v{a+i}, v{r+i}")
        for i in range(4): p(f"v_add_f32 v{r+4+i}, v{r+4+i}, v{r+8+i}")
        for i in range(4): p(f"v_add_f32 v{a+i}, v{a+i}, v{r+4+i}")
        p(f"v_cvt_pk_bf16_f32 v{x}, v{a}, v{a+1}\nv_cvt_pk_bf16_f32 v{x+1}, v{a+2}, v{a+3}")
        p(f"buffer_store_dwordx2 v[{x}:{x+1}], v{8 + t//2}, s[8:11], s27 offen offset:{(t%2)*2048} {xsf}")
    for t in range(NT):
        a = ACC + 16*t; x = XR + 2*t; u = a + 4
        p(f"v_lshlrev_b32 v{u}, 16, v{x}\nv_and_b32 v{u+1}, 0xffff0000, v{x}\nv_lshlrev_b32 v{u+2}, 16, v{x+1}\nv_and_b32 v{u+3}, 0xffff0000, v{x+1}")
        for i in range(4): p(f"v_add_f32 v15, v15, v{u+i}\nv_fmac_f32 v11, v{u+i}, v{u+i}")
    p(f"""v_permlane32_swap_b32 v15, v11
v_add_f32 v15, v15, v11
buffer_atomic_add_f32 v15, v5, s[8:11], s28 offen
v_mov_b32 v4, 0
v_mov_b32 v6, 1
s_waitcnt vmcnt(0)
s_mov_b64 exec, 1
buffer_atomic_add v6, v4, s[8:11], s67 offen
s_mov_b64 exec, -1""")
    p(nst('b_sig'))
    if NT == 5: p("s_branch L_bc_c")
    return p.finish()

def w_mid():
    L = f"""s_cmp_eq_u32 s63, 0
s_cbranch_scc0 L_wm_skip
s_and_b32 s52, s2, 3
s_lshl_b32 s52, s52, 3
s_lshr_b32 s53, s2, 5
s_add_u32 s52, s52, s53
s_mul_i32 s52, s52, 73728
s_add_u32 s52, s52, {WQF}
s_mul_i32 s53, s16, 18432
s_add_u32 s52, s52, s53
s_mov_b32 m0, s53""".split("\n")
    for k in range(5):
        if k: L += [f"s_add_u32 m0, s53, {k*4096}", "s_addk_i32 s52, 4096"]
        L += ["s_nop 0"] + [f"buffer_load_dwordx4 v3, s[8:11], s52 offen offset:{i*1024} {HF[0]} lds" for i in range(4 if k < 4 else 2)]
    return L

def w_early():
    L = f"""s_cmp_eq_u32 s63, 0
s_cbranch_scc0 L_we_skip
s_and_b32 s52, s2, 3
s_lshl_b32 s52, s52, 3
s_lshr_b32 s53, s2, 5
s_add_u32 s52, s52, s53
s_mul_i32 s52, s52, 73728
s_add_u32 s52, s52, {WQF}
s_sub_u32 s53, s16, 1
s_mul_i32 s53, s53, 24576
s_add_u32 s52, s52, s53
s_mov_b32 m0, s53""".split("\n")
    for k in range(6):
        if k: L += [f"s_add_u32 m0, s53, {k*4096}", "s_addk_i32 s52, 4096"]
        L += ["s_nop 0"] + [f"buffer_load_dwordx4 v3, s[8:11], s52 offen offset:{i*1024} lds ; @" for i in range(4)]
    return L + ["L_we_skip:", "s_branch L_cd_go"]

def d_part(sf="sc1", lf="sc1", PD=1, we=True, p0=False):
    p = Prog()
    PL, XL, BL, X, U = 32, 112, 124, 136, 160
    LX = 131072
    p(f"""s_lshr_b32 s20, s17, 2
s_lshl_b32 s21, s18, 1
s_add_u32 s20, s20, s21
s_and_b32 s21, s17, 3
s_mul_i32 s22, s20, 36864
s_lshl_b32 s23, s21, 7
s_add_u32 s22, s22, s23
s_add_u32 s22, s22, s63
s_lshl_b32 s24, s20, 8
s_lshl_b32 s25, s21, 5
s_add_u32 s24, s24, s25
s_add_u32 s24, s24, {ST}
s_add_u32 s24, s24, s63
s_lshl_b32 s25, s20, 5
s_lshl_b32 s26, s21, 3
s_add_u32 s25, s25, s26
s_mul_i32 s25, s25, 1152
s_lshl_b32 s26, s18, 9
s_add_u32 s26, s26, {CNT + CCD}
s_add_u32 s26, s26, s63
s_lshl_b32 s36, s16, 7
s_add_u32 s36, s36, s26
v_and_b32 v4, 7, v0
v_lshrrev_b32 v5, 3, v0
v_lshlrev_b32 v6, 9, v5
v_lshl_add_u32 v6, v4, 4, v6
v_add_u32 v7, 16384, v6
v_lshrrev_b32 v8, 2, v5
v_lshlrev_b32 v8, 9, v8
v_lshl_add_u32 v8, v4, 4, v8
v_and_b32 v9, 3, v5
v_lshl_add_u32 v8, v9, 2, v8
v_add_u32 v8, 32768, v8
v_lshlrev_b32 v9, 4, v5
v_lshlrev_b32 v10, 2, v5
v_lshlrev_b32 v11, 2, v4
s_add_u32 s27, s22, {X1F}""")
    srd(p, 12, 40, 1152)
    p(f"""buffer_load_dword v24, v11, s[8:11], s24 offen sc1
buffer_load_dword v25, v11, s[8:11], s24 offen offset:128 sc1
buffer_load_dwordx4 v[{XL}:{XL+3}], v6, s[8:11], s27 offen sc1
buffer_load_dwordx4 v[{XL+4}:{XL+7}], v7, s[8:11], s27 offen sc1
buffer_load_dword v{XL+8}, v8, s[8:11], s27 offen sc1
buffer_load_dwordx4 v[{BL}:{BL+3}], v9, s[12:15], 0 offen
buffer_load_dwordx4 v[{BL+4}:{BL+7}], v9, s[12:15], 0 offen offset:512
buffer_load_dword v{BL+8}, v10, s[12:15], 0 offen offset:1024
v_mov_b32 v12, 0
v_mov_b32 v13, 1
s_mov_b32 s49, 0x40000
s_waitcnt vmcnt(8)
s_mov_b64 exec, 1
buffer_atomic_add v13, v12, s[8:11], s36 offen
s_mov_b64 exec, -1
v_lshlrev_b32 v12, 7, v2""")
    p(nst('d_sig'))
    p(f"""v_mul_f32 v24, 0x3ae38e39, v24
v_mul_f32 v25, 0x3ae38e39, v25
v_fma_f32 v25, -v24, v24, v25
v_max_f32 v25, 0, v25
v_mov_b32 v26, 0x3f800054
v_mov_b32 v27, 0x2edbe6ff
v_fma_f32 v25, v25, v26, v27
v_rsq_f32 v25, v25
v_mov_b32 v14, 0x3f80
v_mov_b32 v15, 0x3f800000
v_mul_u32_u24 v16, 1152, v4
v_add_u32 v17, v16, v10
v_add_u32 v16, v16, v9""")
    nd = [4, 4, 1]
    for r in range(3):
        for i in range(nd[r]):
            x = XL + 4*r + i; b = BL + 4*r + i; u = U + 8*r + 2*i
            p(f"v_lshlrev_b32 v{u}, 16, v{x}\nv_and_b32 v{u+1}, 0xffff0000, v{x}\nv_lshlrev_b32 v{x}, 16, v{b}\nv_and_b32 v{b}, 0xffff0000, v{b}")
            p(f"v_add_f32 v{u}, v{u}, v{x}\nv_add_f32 v{u+1}, v{u+1}, v{b}")
    for j in range(8): p(f"s_add_u32 s{28+j}, s22, {PART + j*ACT}")
    if we == 1:
        p("s_cmp_eq_u32 s16, 0\ns_cbranch_scc1 L_cd_w0")
        p.ext(w_early()); p("L_cd_w0:")
    else: p("s_cmp_eq_u32 s16, 0\ns_cbranch_scc0 L_cd_go")
    p(spin("cd", 26, 12, 250, 4, 8, PD))
    p("s_barrier")
    p(nst('d_go'))
    for r in range(2):
        for j in range(8): p(f"buffer_load_dwordx4 v[{PL+32*r+4*j}:{PL+32*r+4*j+3}], v{6+r}, s[8:11], s{28+j} offen {lf}")
    for j in range(8): p(f"buffer_load_dword v{PL+64+j}, v8, s[8:11], s{28+j} offen {lf}")
    def sums(p):
        for r in range(3):
            src = lambda j, i: PL + 32*r + 4*j + i if r < 2 else PL + 64 + j
            for i in range(nd[r]): p(f"v_lshlrev_b32 v{X+8*r+2*i}, 16, v{src(0, i)}\nv_and_b32 v{X+8*r+2*i+1}, 0xffff0000, v{src(0, i)}")
            for j in range(1, 8):
                for i in range(nd[r]): p(f"v_dot2c_f32_bf16 v{X+8*r+2*i}, v{src(j, i)}, v14\nv_dot2c_f32_bf16 v{X+8*r+2*i+1}, v{src(j, i)}, v15")
            for i in range(2*nd[r]): p(f"v_fma_f32 v{X+8*r+i}, v{X+8*r+i}, v25, v{U+8*r+i}")
            for i in range(nd[r]): p(f"v_cvt_pk_bf16_f32 v{PL+32*r+i}, v{X+8*r+2*i}, v{X+8*r+2*i+1}")
    if we == 2:
        p.ext(w_mid())
        n0 = len(p.ins); sums(p)
        p("s_branch L_cd_mid\nL_wm_skip:")
        q = Prog()
        for r in range(2):
            for j in range(8): q(f"buffer_load_dwordx4 v[{PL+32*r+4*j}:{PL+32*r+4*j+3}], v{6+r}, s[8:11], s{28+j} offen {lf}")
        for j in range(8): q(f"buffer_load_dword v{PL+64+j}, v8, s[8:11], s{28+j} offen {lf}")
        sums(q); q.resolve_waits()
        for i in q.ins[24:]: i.text += " ; @"
        p.ins += q.ins[24:]
    else: sums(p)
    O = [PL, PL + 32, PL + 64]
    p(nst('d_use'))
    if we != 2: p("s_cmp_eq_u32 s63, 0\ns_cbranch_scc1 L_cd_mid")
    srd(p, 12, 42, ACT)
    p(f"""buffer_store_dwordx4 v[{O[0]}:{O[0]+3}], v16, s[12:15], s25 offen {sf}
buffer_store_dwordx4 v[{O[1]}:{O[1]+3}], v16, s[12:15], s25 offen offset:512 {sf}
buffer_store_dword v{O[2]}, v17, s[12:15], s25 offen offset:1024 {sf}""")
    if p0:
        srd(p, 36, 6, 256)
        p('''s_or_b32 s60, s2, s16
s_cmp_eq_u32 s60, 0
s_cbranch_scc0 L_d_nt
v_mov_b32 v20, 0
s_mov_b64 exec, 1
buffer_store_dword v20, v20, s[36:39], 0 offen sc1 ; @
s_mov_b64 exec, -1
L_d_nt:''')
    if SC.sel: p("s_waitcnt vmcnt(0) ; @"); p(nst('d_end')); nst_dump(p, 'd2')
    p("s_endpgm\nL_cd_mid:")
    p(f"""s_add_u32 s27, s22, {XF + LS}
s_add_u32 s28, s22, {YF + LS}
buffer_store_dwordx4 v[{O[0]}:{O[0]+3}], v6, s[8:11], s27 offen {sf}
buffer_store_dwordx4 v[{O[1]}:{O[1]+3}], v7, s[8:11], s27 offen {sf}
buffer_store_dword v{O[2]}, v8, s[8:11], s27 offen {sf}""")
    XS = []
    for r in range(3):
        for i in range(nd[r]):
            p(f"v_lshlrev_b32 v{X+8*r+2*i}, 16, v{O[r]+i}\nv_and_b32 v{X+8*r+2*i+1}, 0xffff0000, v{O[r]+i}")
            XS += [X+8*r+2*i, X+8*r+2*i+1]
    p(f"v_add_f32 v24, v{XS[0]}, v{XS[1]}\nv_add_f32 v26, v{XS[2]}, v{XS[3]}\nv_mul_f32 v25, v{XS[0]}, v{XS[0]}\nv_mul_f32 v27, v{XS[1]}, v{XS[1]}")
    for k, x in enumerate(XS[4:]): p(f"v_add_f32 v{24 + 2*(k%2)}, v{24 + 2*(k%2)}, v{x}")
    for k, x in enumerate(XS[2:]): p(f"v_fmac_f32 v{25 + 2*(k%2)}, v{x}, v{x}")
    p(f"""v_add_f32 v24, v24, v26
v_add_f32 v25, v25, v27
v_permlane32_swap_b32 v24, v25
v_add_f32 v24, v24, v25
v_mov_b32 v25, v24
v_permlane16_swap_b32 v24, v25
v_add_f32 v24, v24, v25
v_add_f32 v24, v24, v24 row_ror:8
v_bfe_u32 v27, v0, 5, 1
v_lshl_add_u32 v27, v4, 1, v27
v_lshlrev_b32 v27, 4, v27
s_lshl_b32 s29, s16, 2
s_add_u32 s29, s29, {LX}
v_add_u32 v27, s29, v27
v_and_b32 v28, 24, v0
v_cmp_eq_u32 vcc, 0, v28
s_and_saveexec_b64 s[30:31], vcc
ds_write_b32 v27, v24
s_mov_b64 exec, s[30:31]
v_lshlrev_b32 v27, 5, v4
v_add_u32 v27, {LX}, v27
s_lshr_b32 s29, s18, 2
s_lshl_b32 s29, s29, 4
s_and_b32 s36, s18, 3
s_add_u32 s29, s29, s36
s_lshl_b32 s29, s29, 7
s_add_u32 s29, s29, {CNT + LS + CDA}""")
    if not we: p(A_MAP); p(A_WS)
    p(f"""s_waitcnt lgkmcnt(0)
s_barrier
ds_read_b128 v[20:23], v27
ds_read_b128 v[28:31], v27 offset:16
v_add_f32 v20, v20, v21
v_add_f32 v22, v22, v23
v_add_f32 v28, v28, v29
v_add_f32 v30, v30, v31
v_add_f32 v20, v20, v22
v_add_f32 v28, v28, v30
v_mul_f32 v20, 0x3ae38e39, v20
v_mul_f32 v28, 0x3ae38e39, v28
v_fma_f32 v28, -v20, v20, v28
v_max_f32 v28, 0, v28
v_add_f32 v28, 0x3727c5ac, v28
v_rsq_f32 v28, v28""")
    for x in XS: p(f"v_sub_f32 v{x}, v{x}, v20")
    for x in XS: p(f"v_mul_f32 v{x}, v{x}, v28")
    for k in range(9): p(f"v_cvt_pk_bf16_f32 v{U+k}, v{XS[2*k]}, v{XS[2*k+1]}")
    p(f"""buffer_store_dwordx4 v[{U}:{U+3}], v6, s[8:11], s28 offen {sf}
buffer_store_dwordx4 v[{U+4}:{U+7}], v7, s[8:11], s28 offen {sf}
buffer_store_dword v{U+8}, v8, s[8:11], s28 offen {sf}""")
    if not we:
        for c in range(9): p.ext(a_wchunk(c))
    p(f"""v_lshlrev_b32 v12, 9, v2
s_waitcnt vmcnt({0 if we else 18})
s_barrier
s_cmp_eq_u32 s16, 0
s_cbranch_scc0 L_da_ns
s_mov_b64 exec, 15
buffer_atomic_add v13, v12, s[8:11], s29 offen
s_mov_b64 exec, -1
L_da_ns:""")
    p(nst('d_end')); nst_dump(p, 'd1')
    p(f"s_mov_b32 s63, {LS}\ns_branch L_a1")
    return p.finish()

def main_kernel(a={}, b={}, c={}, d={}, bk=0, side=None, p0=None, hf='sc1', sfl={}):
    assert NEW
    BK[0] = bk
    HF[0] = hf if p0 is not None else ''
    if p0 is not None: b = dict(b, pbar=True); d = dict(d, p0=True); c = dict(c, wfl=hf)
    cz = kc.c_kernel(fused=True, dz=True, rev=True, poll=lambda PD: spin('bc', 65, 4, 250, 4, 8, PD), **c)
    p = Prog()
    p("""s_cmp_lt_u32 s2, 256
s_cbranch_scc1 L_m_go
s_endpgm
L_m_go:
s_load_dwordx2 s[4:5], s[0:1], 80
s_load_dwordx4 s[40:43], s[0:1], 56""")
    if side is not None:
        sp = side_parts(**side); p(sp[0]); a = dict(a, side=sp); b = dict(b, allp=True)
    if p0 is not None: p(kp.KARGS)
    if SC.sel: p(f"s_memrealtime s[{SC.m['t']}:{SC.m['t']+1}]")
    p(f"""v_lshrrev_b32 v1, 6, v0
v_and_b32 v2, 63, v0
v_readfirstlane_b32 s16, v1
v_lshlrev_b32 v3, 4, v2
s_mov_b32 s63, 0
s_mov_b32 s10, {WSSZ}
s_mov_b32 s11, 0x20000""")
    if p0 is None: p("s_waitcnt lgkmcnt(0)\ns_mov_b32 s8, s4\ns_mov_b32 s9, s5")
    NP1 = a.get('NP1', 36)
    a0 = a_part(True, **a) if p0 is None else (kp.HEAD + kp.variant('q', **p0) + kp.variant('o', **p0) + "L_a0w1:\n" + a_part(True, p0=('w1',) + kp.side_fill(False, **sfl), **dict(dict(SW=(6, 110)), **a))
        + kp.variant('w2', **p0) + a_part(True, p0=('w2',) + kp.side_fill(True, **sfl), **dict(dict(SW=(6, 110)), **a)))
    body = p.finish() + a0 + "L_a1:\n" + a_part(False, **a) + "L_ab:\n" + ab_link(NP1)
    body += b_part(5, cz, **b) + "L_b4:\n" + b_part(4, cz, **b) + "L_bc_c:\n" + cz[0] + d_part(**d)
    if p0 is not None:
        return kernel("interleave_layers__linear_attn_block__mixer_channel_mlp__prompt_kernel", body, vgpr=256, agpr=256), "; @launch grid=(256,1,1) block=(256,1,1) lds=163840\n"
    return kernel("main_kernel", body, vgpr=256, agpr=256), "; @launch kernel=main_kernel grid=(256,1,1) block=(256,1,1) lds=163840\n"
```

```python
from asmlib import *
from layout import *
from k0 import srd

PFL = 0x9800000
NLDS = 81920
STG = 90112
WB = WSN*1024
VN = 160

KARGS = """s_load_dwordx8 s[44:51], s[0:1], 0
s_load_dwordx4 s[52:55], s[0:1], 32
s_load_dwordx2 s[56:57], s[0:1], 48
s_load_dwordx2 s[6:7], s[0:1], 72"""

def ln_stats(p, O, X, LX):
    nd = [4, 4, 1]; XS = []
    for r in range(3):
        for i in range(nd[r]):
            p(f"v_lshlrev_b32 v{X+8*r+2*i}, 16, v{O[r]+i}\nv_and_b32 v{X+8*r+2*i+1}, 0xffff0000, v{O[r]+i}")
            XS += [X+8*r+2*i, X+8*r+2*i+1]
    p(f"v_add_f32 v24, v{XS[0]}, v{XS[1]}\nv_add_f32 v26, v{XS[2]}, v{XS[3]}\nv_mul_f32 v25, v{XS[0]}, v{XS[0]}\nv_mul_f32 v27, v{XS[1]}, v{XS[1]}")
    for k, x in enumerate(XS[4:]): p(f"v_add_f32 v{24 + 2*(k%2)}, v{24 + 2*(k%2)}, v{x}")
    for k, x in enumerate(XS[2:]): p(f"v_fmac_f32 v{25 + 2*(k%2)}, v{x}, v{x}")
    p(f"""v_add_f32 v24, v24, v26
v_add_f32 v25, v25, v27
v_permlane32_swap_b32 v24, v25
v_add_f32 v24, v24, v25
v_mov_b32 v25, v24
v_permlane16_swap_b32 v24, v25
v_add_f32 v24, v24, v25
v_add_f32 v24, v24, v24 row_ror:8
v_bfe_u32 v27, v0, 5, 1
v_lshl_add_u32 v27, v4, 1, v27
v_lshlrev_b32 v27, 4, v27
s_lshl_b32 s60, s16, 2
s_add_u32 s60, s60, {LX}
v_add_u32 v27, s60, v27
v_and_b32 v28, 24, v0
v_cmp_eq_u32 vcc, 0, v28
s_and_saveexec_b64 s[64:65], vcc
ds_write_b32 v27, v24
s_mov_b64 exec, s[64:65]
v_lshlrev_b32 v27, 5, v4
v_add_u32 v27, {LX}, v27""")
    return XS

def ln_norm(p, XS, U):
    p("""ds_read_b128 v[20:23], v27
ds_read_b128 v[28:31], v27 offset:16
v_add_f32 v20, v20, v21
v_add_f32 v22, v22, v23
v_add_f32 v28, v28, v29
v_add_f32 v30, v30, v31
v_add_f32 v20, v20, v22
v_add_f32 v28, v28, v30
v_mul_f32 v20, 0x3ae38e39, v20
v_mul_f32 v28, 0x3ae38e39, v28
v_fma_f32 v28, -v20, v20, v28
v_max_f32 v28, 0, v28
v_add_f32 v28, 0x3727c5ac, v28
v_rsq_f32 v28, v28""")
    for x in XS: p(f"v_sub_f32 v{x}, v{x}, v20")
    for x in XS: p(f"v_mul_f32 v{x}, v{x}, v28")
    for k in range(9): p(f"v_cvt_pk_bf16_f32 v{U+k}, v{XS[2*k]}, v{XS[2*k+1]}")

def wq_addr(it, src, dst):
    return f"""s_and_b32 s60, s{it}, 31
s_mul_i32 s60, s60, 36
s_lshr_b32 s61, s{it}, 5
s_mul_i32 s{src}, s61, {16*3456}
s_add_u32 s{src}, s{src}, s60
s_add_u32 s{dst}, s60, s61
s_lshl_b32 s{dst}, s{dst}, 11
s_add_u32 s{dst}, s{dst}, {WQF}"""

VQ, VQ0, VQ1, VS, VT, VO, VOT, VZ, VB, C0, C1, VAG, VCS = range(170, 183)
CSL = NLDS + 512

def variant(kind, sf="sc1", lf="", slf="nt", cf="", late=0):
    p = Prog()
    n = "p" + kind
    O, X, U, D = [32, 36, 40], 44, 68, 80
    vq, vq0, vq1, vs, vt, vo, vot, vz, vb, c0, c1, vag = VQ, VQ0, VQ1, VS, VT, VO, VOT, VZ, VB, C0, C1, VAG
    T = 20
    p(f"""s_mul_i32 s19, s16, 18432
s_add_u32 s19, s19, {STG}
s_lshr_b32 s58, s2, 2
s_mul_i32 s58, s58, 36864
s_and_b32 s59, s2, 3
s_lshl_b32 s59, s59, 7
s_add_u32 s58, s58, s59
s_mul_i32 s59, s2, 9216
v_and_b32 v4, 7, v0
v_lshrrev_b32 v5, 3, v0
v_lshlrev_b32 v9, 4, v5
v_lshlrev_b32 v10, 2, v5
v_mul_u32_u24 v16, 1152, v4
v_add_u32 v17, v16, v10
v_add_u32 v16, v16, v9
s_lshl_b32 s62, s2, 2
s_add_u32 s62, s62, s16""")
    p(wq_addr(62, 66, 67))
    p(f"""v_and_b32 v{T}, 3, v2
v_lshrrev_b32 v{T+1}, 2, v2
v_lshrrev_b32 v{T+2}, 5, v2
v_mul_u32_u24 v{vq}, 3456, v{T+1}
v_lshl_add_u32 v{vq}, v{T}, 4, v{vq}
v_mov_b32 v{T+3}, 0x40000000
v_cmp_eq_u32 vcc, 3, v{T}
v_cndmask_b32 v{vq}, v{vq}, v{T+3}, vcc""")
    if kind == 'q':
        p("s_add_u32 s62, s62, 1024"); p(wq_addr(62, 68, 69))
    if kind == 'o':
        p(f"""s_sub_u32 s62, s62, 128
s_sub_u32 s60, s62, 324
s_cmp_lt_u32 s62, 324
s_cselect_b32 s62, s62, s60
s_mul_i32 s60, s62, 1821
s_lshr_b32 s60, s60, 16
s_mul_i32 s61, s60, 36
s_sub_u32 s61, s62, s61
s_mul_i32 s69, s60, 72
s_add_u32 s69, s69, s61
s_lshl_b32 s69, s69, 10
s_add_u32 s69, s69, {WOF}
s_mul_i32 s86, s61, 7282
s_lshr_b32 s86, s86, 16
s_mul_i32 s87, s86, 9
s_sub_u32 s87, s61, s87
s_mul_i32 s68, s86, 144
s_mul_i32 s88, s87, 18
s_cmp_lt_u32 s87, 8
s_cselect_b32 s88, s88, 16
s_cselect_b32 s89, 4, 18
s_cselect_b32 s90, 2, 1
s_cselect_b32 s91, 8, 36
s_cselect_b32 s93, 3, 1
s_mul_i32 s89, s89, 1152
s_sub_u32 s89, s89, 1024
s_mul_i32 s91, s91, 1152
s_add_u32 s68, s68, s88
s_mul_i32 s68, s68, 1152
s_lshl_b32 s60, s60, 7
s_add_u32 s68, s68, s60
v_and_b32 v{T+3}, 7, v{T+1}
v_lshrrev_b32 v{T+4}, s90, v{T+3}
v_mul_u32_u24 v{vo}, s91, v{T+4}
v_and_b32 v{T+3}, s93, v{T+3}
v_mul_u32_u24 v{T+3}, 1152, v{T+3}
v_add_u32 v{vo}, v{vo}, v{T+3}
v_lshl_add_u32 v{vo}, v{T+2}, 6, v{vo}
v_lshl_add_u32 v{vo}, v{T}, 4, v{vo}""")
    RS = 1152 if kind == 'w2' else 9216
    p(f"""v_and_b32 v{T+3}, 7, v{T+1}
v_mul_u32_u24 v{vs}, {RS}, v{T+3}
v_lshl_add_u32 v{vs}, v{T+2}, 6, v{vs}
v_lshl_add_u32 v{vs}, v{T}, 4, v{vs}""")
    if kind != 'w2':
        p(f"""s_and_b32 s3, s2, 3
s_lshr_b32 s100, s2, 2
s_lshl_b32 s100, s100, 1
s_lshr_b32 s60, s16, 1
s_add_u32 s100, s100, s60
s_mul_i32 s17, s100, 7282
s_lshr_b32 s17, s17, 16
s_mul_i32 s18, s17, 9
s_sub_u32 s18, s100, s18
s_mul_i32 s101, s3, 9
s_and_b32 s60, s16, 1
s_lshl_b32 s60, s60, 2
s_add_u32 s101, s101, s60
s_mul_i32 s87, s101, {16*9216}
s_lshl_b32 s100, s100, 7
s_add_u32 s87, s87, s100""")
    else:
        p(f"""s_sub_u32 s60, s18, 18
s_lshl_b32 s60, s60, 2
s_add_u32 s60, s60, s16
s_min_u32 s60, s60, 53
s_mul_i32 s88, s60, 7282
s_lshr_b32 s88, s88, 16
s_mul_i32 s61, s88, 9
s_sub_u32 s86, s60, s61
s_mul_i32 s87, s17, 36
s_mul_i32 s61, s88, 6
s_add_u32 s87, s87, s61
s_mul_i32 s87, s87, {16*1152}
s_lshl_b32 s61, s86, 7
s_add_u32 s87, s87, s61""")
    p(nst('p_0'))
    p("s_waitcnt lgkmcnt(0)\ns_mov_b32 s8, s4\ns_mov_b32 s9, s5")
    p(nst('p_ka'))
    srd(p, 12, 44, ACT); srd(p, 20, 46, 576*1728*2)
    p(f"""buffer_load_dwordx4 v[{O[0]}:{O[0]+3}], v16, s[12:15], s59 offen {lf}
buffer_load_dwordx4 v[{O[1]}:{O[1]+3}], v16, s[12:15], s59 offen offset:512 {lf}
buffer_load_dword v{O[2]}, v17, s[12:15], s59 offen offset:1024 {lf}
s_mov_b32 m0, s19""")
    def wq_dma(src, tag):
        for u in range(3):
            p(f"buffer_load_dwordx4 v{vq}, s[20:23], s{src} offen offset:{u*1024} {cf} lds", tag=tag)
            if u < 2: p(f"s_add_u32 s{src}, s{src}, 128")
    wq_dma(66, 'q0')
    if kind == 'q':
        p("s_add_u32 m0, s19, 3072"); wq_dma(68, 'q1')
    if kind == 'o':
        srd(p, 24, 48, 576*576*2)
        p("s_add_u32 m0, s19, 3072")
        p(f"buffer_load_dwordx4 v{vo}, s[24:27], s68 offen {cf} lds", tag='o')
        p("s_add_u32 s68, s68, s89")
        p(f"buffer_load_dwordx4 v{vo}, s[24:27], s68 offen offset:1024 {cf} lds", tag='o')
    p(nst('p_q'))
    srd(p, 36, 6, 256)
    srd(p, 28, 56 if kind == 'w2' else 52, 576*4608*2)
    if kind != 'w2': srd(p, 32, 54, 4608*2)
    p(f"""s_or_b32 s60, s2, s16
s_cmp_eq_u32 s60, 0
s_cbranch_scc0 L_{n}_nt
s_memrealtime s[60:61]
v_mov_b32 v{T+3}, 0
s_waitcnt lgkmcnt(0)
s_or_b32 s60, s60, 1
v_mov_b32 v{T+4}, s60
s_mov_b64 exec, 1
buffer_store_dword v{T+4}, v{T+3}, s[36:39], 0 offen sc1 ; @
s_mov_b64 exec, -1
L_{n}_nt:""")
    ND = 12 if kind == 'w2' else 10
    def side_dma(i0, i1):
        for i in range(i0, i1):
            if i % 4 == 0 or i == i0: p(f"s_add_u32 m0, s19, {6144 + (i//4)*4096}")
            p(f"buffer_load_dwordx4 v{vs}, s[28:31], s87 offen offset:{(i%4)*1024} {slf} lds")
            if i < ND - 1: p(f"s_add_u32 s87, s87, {8*RS - 1024 if i % 4 < 3 else 8*RS + 3072}")
        if i1 == ND: p(nst('p_sd'))
    p(f"""v_and_b32 v{vz}, 15, v2
v_lshlrev_b32 v{vz}, 4, v{vz}
v_bfe_u32 v{T+3}, v2, 4, 1
v_lshl_add_u32 v{vz}, v{T+3}, {LS.bit_length() - 1}, v{vz}
s_lshl_b32 s60, s2, 10
s_lshl_b32 s61, s16, 8
s_add_u32 s60, s60, s61
s_add_u32 s60, s60, {ZR}
v_mov_b32 v28, 0
v_mov_b32 v29, 0
v_mov_b32 v30, 0
v_mov_b32 v31, 0
s_mov_b32 exec_hi, 0
buffer_store_dwordx4 v[28:31], v{vz}, s[8:11], s60 offen {sf}
s_mov_b64 exec, -1""")
    if kind != 'w2': p(f"v_lshlrev_b32 v{vb}, 1, v2\nbuffer_load_ushort v{vb}, v{vb}, s[32:35], s100 offen")
    side_dma(0, ND - late)
    p(f"""v_lshlrev_b32 v6, 9, v5
v_lshl_add_u32 v6, v4, 4, v6
v_add_u32 v7, 16384, v6
v_lshrrev_b32 v8, 2, v5
v_lshlrev_b32 v8, 9, v8
v_lshl_add_u32 v8, v4, 4, v8
v_and_b32 v9, 3, v5
v_lshl_add_u32 v8, v9, 2, v8
v_add_u32 v8, 32768, v8
s_add_u32 s59, s58, {YF}
s_add_u32 s58, s58, {XF}
v_bfe_u32 v{T+3}, v2, 4, 1
v_lshl_add_u32 v{T+3}, v{T+3}, 2, v{T}
v_and_b32 v{T+1}, 3, v{T+1}
v_lshlrev_b32 v{T+1}, 6, v{T+1}
v_add_u32 v{T+1}, s19, v{T+1}
v_lshlrev_b32 v{T+4}, 3, v{T+3}
v_add_u32 v{vt}, v{T+1}, v{T+4}
v_lshl_add_u32 v{vt}, v{T+2}, {8 if kind == 'w2' else 10}, v{vt}
v_add_u32 v{vq0}, 1024, v{T+4}
v_subrev_u32 v{T+5}, 40, v{T+4}
v_cmp_gt_u32 vcc, 5, v{T+3}
v_cndmask_b32 v{vq0}, v{T+5}, v{vq0}, vcc
v_mov_b32 v{T+5}, 32
v_cmp_eq_u32 vcc, 7, v{T+3}
v_cndmask_b32 v{vq0}, v{vq0}, v{T+5}, vcc
v_add_u32 v{vq1}, 2048, v{T+4}
v_subrev_u32 v{T+5}, 32, v{T+4}
v_cmp_gt_u32 vcc, 6, v{T+3}
v_cndmask_b32 v{vq1}, v{T+5}, v{vq1}, vcc
v_lshl_add_u32 v{T+5}, v{T+2}, 9, v{T+1}
v_add_u32 v{vq0}, v{vq0}, v{T+5}
v_add_u32 v{vq1}, v{vq1}, v{T+5}""")
    if kind == 'o':
        p(f"""v_lshrrev_b32 v{vot}, 1, v{T+3}
v_add_u32 v{vot}, s86, v{vot}
v_and_b32 v{vot}, 3, v{vot}
v_lshlrev_b32 v{vot}, 4, v{vot}
v_and_b32 v{T+4}, 1, v{T+3}
v_lshl_add_u32 v{vot}, v{T+4}, 3, v{vot}
v_add_u32 v{vot}, v{vot}, v{T+1}
v_lshl_add_u32 v{vot}, v{T+2}, 10, v{vot}""")
    p(nst('p_iss'))
    p(f"""buffer_store_dwordx4 v[{O[0]}:{O[0]+3}], v6, s[8:11], s58 offen {sf}
buffer_store_dwordx4 v[{O[1]}:{O[1]+3}], v7, s[8:11], s58 offen {sf}
buffer_store_dword v{O[2]}, v8, s[8:11], s58 offen {sf}""")
    p(nst('p_x'))
    XS = ln_stats(p, O, X, NLDS + 128)
    def wq_tr(off, d, tag):
        for t in range(2):
            for h in range(2):
                p(f"ds_read_b64_tr_b16 v[{d+4*t+2*h}:{d+4*t+2*h+1}], v{(vq0, vq1)[t]} offset:{off + h*256}", needs=[tag])
    def wq_st(d, dst):
        for t in range(2): p(f"buffer_store_dwordx4 v[{d+4*t}:{d+4*t+3}], v3, s[8:11], s{dst} offen offset:{t*1024} {sf}")
    p("s_waitcnt lgkmcnt(0)\ns_barrier")
    wq_tr(0, D, 'q0')
    if kind == 'q': wq_tr(3072, D + 8, 'q1')
    if kind == 'o':
        for t in range(2):
            for h in range(2): p(f"ds_read_b64_tr_b16 v[{D+8+4*t+2*h}:{D+9+4*t+2*h}], v{vot} offset:{3072 + t*512 + h*256}", needs=['o'])
    ln_norm(p, XS, U)
    wq_st(D, 67)
    if kind == 'q': wq_st(D + 8, 69)
    if kind == 'o': p(f"buffer_store_dwordx4 v[{D+8}:{D+11}], v3, s[8:11], s69 offen {sf}\ns_add_u32 s69, s69, {36*1024}\nbuffer_store_dwordx4 v[{D+12}:{D+15}], v3, s[8:11], s69 offen {sf}")
    p(f"""buffer_store_dwordx4 v[{U}:{U+3}], v6, s[8:11], s59 offen {sf}
buffer_store_dwordx4 v[{U+4}:{U+7}], v7, s[8:11], s59 offen {sf}
buffer_store_dword v{U+8}, v8, s[8:11], s59 offen {sf}""")
    p(nst('p_st'))
    p(f"""v_mov_b32 v20, 0
v_lshlrev_b32 v21, 10, v2
s_mov_b32 s49, 0x40000
s_cmp_eq_u32 s16, 0
s_cbranch_scc0 L_{n}_t0
buffer_load_dword v{VN}, v20, s[36:39], 0 offen sc1 ; @
L_{n}_t0:""")
    p(f"""s_lshl_b32 s60, s2, 2
s_add_u32 s60, s60, {PFL}
s_waitcnt vmcnt(0)
s_cmp_eq_u32 s16, 0
s_cbranch_scc0 L_{n}_w
L_{n}_tg:
v_readfirstlane_b32 s61, v{VN}
s_sub_u32 s49, s49, 1
s_cmp_eq_u32 s49, 0
s_cbranch_scc1 L_{n}_tk
s_cmp_eq_u32 s61, 0
s_cbranch_scc0 L_{n}_tk
buffer_load_dword v{VN}, v20, s[36:39], 0 offen sc1 ; @
s_waitcnt vmcnt(0) ; @
s_branch L_{n}_tg
L_{n}_tk:
L_{n}_w:
s_barrier
s_cmp_eq_u32 s16, 0
s_cbranch_scc0 L_{n}_ns
s_mov_b64 exec, 0xff
buffer_store_dword v{VN}, v21, s[8:11], s60 offen sc1 ; @
s_mov_b64 exec, -1
L_{n}_ns:""")
    p(nst('p_sig'))
    if late: side_dma(ND - late, ND)
    if kind != 'w2':
        p(f"""s_lshr_b32 s62, s18, 1
s_and_b32 s87, s18, 1
s_lshl_b32 s87, s87, 1
s_lshl_b32 s88, s17, 2
s_add_u32 s87, s87, s88
s_mul_i32 s87, s87, {WB}
s_add_u32 s87, s87, {WSTR}
s_add_u32 s88, s62, 91
s_add_u32 s89, s62, 90
s_add_u32 s96, s62, 163
s_cmp_lt_u32 s18, 4
s_cselect_b32 s60, 5, 4
s_cselect_b32 s61, 3, 2
s_cselect_b32 s62, s62, s88
s_cselect_b32 s96, s89, s96
s_lshl_b32 s61, s61, 10
s_sub_u32 s99, 0, s61
s_cmp_eq_u32 s18, 8
s_cselect_b32 s60, 5, s60
s_cselect_b32 s86, 0, s61
s_cselect_b32 s61, {WB}, s61
s_cselect_b32 s99, s61, s99
s_cselect_b32 s62, 2, s62
s_cselect_b32 s96, 92, s96
s_cselect_b32 s97, {WB}, 0
s_add_u32 s98, s97, {WB}
v_lshrrev_b32 v{T+2}, 5, v2
v_mul_u32_u24 v{T+2}, s98, v{T+2}
v_and_b32 v{vag}, 31, v2
v_lshl_add_u32 v{vag}, v{vag}, 4, v{T+2}
s_add_u32 s86, s86, s98
s_lshl_b32 s60, s60, 10
s_lshl_b32 s96, s96, 10
s_add_u32 s96, s96, s87
s_lshr_b32 s88, s3, 1
s_lshl_b32 s88, s88, 9
s_add_u32 s96, s96, s88
s_and_b32 s88, s3, 1
s_lshl_b32 s88, s88, 3
s_add_u32 s96, s96, s88
s_add_u32 s97, s97, s96
s_lshl_b32 s62, s62, 10
s_add_u32 s87, s87, s62
s_lshr_b32 s62, s101, 1
s_mul_i32 s62, s62, s60
s_add_u32 s87, s87, s62
s_add_u32 s86, s86, s87
s_and_b32 s101, s101, 1
s_mul_i32 s62, s101, s61
s_add_u32 s87, s87, s62
s_mul_i32 s62, s101, s99
s_add_u32 s86, s86, s62
s_sub_u32 s62, s60, s61
s_sub_u32 s60, s60, s99
s_cmp_eq_u32 s101, 0
s_cselect_b32 s88, s61, s62
s_cselect_b32 s89, s62, s61
s_cselect_b32 s90, s99, s60
s_cselect_b32 s91, s60, s99
s_cmp_lt_u32 s3, 2
s_cselect_b32 s93, 0xffff, 0
s_bitcmp1_b32 s16, 0
s_cselect_b32 s98, 0, 0x3f803f80
v_mov_b32 v{c0}, 0
v_mov_b32 v{c1}, 0
v_lshlrev_b32 v{VCS}, 2, v0
v_add_u32 v{VCS}, {CSL}, v{VCS}""")
    else:
        p(f"""s_and_b32 s87, s86, 1
s_lshl_b32 s87, s87, 1
s_lshl_b32 s60, s17, 2
s_add_u32 s87, s87, s60
s_mul_i32 s87, s87, {WB}
s_add_u32 s87, s87, {WSTR}
s_lshr_b32 s89, s86, 1
s_add_u32 s91, s89, 1
s_and_b32 s91, s91, 3
s_lshl_b32 s91, s91, 4
s_add_u32 s91, s91, 265
s_cmp_eq_u32 s86, 8
s_cselect_b32 s90, 2, 1
s_cselect_b32 s91, 257, s91
s_cselect_b32 s93, 0, 1
s_mul_i32 s90, s90, {WB}
s_mul_i32 s88, s88, 3""")
    if kind == 'q': p("s_branch L_a0w1")
    return f"L_{n}:\n" + p.finish()

def side_fill(w2, sf="sc1", LA=2, **kw):
    E = 184; NR = 4
    rd, st = [], []
    k = 0
    for b in range(6 if w2 else 5):
        for t in range(2):
            d = E + 4*(k % NR); k += 1
            rd.append([f"ds_read_b64_tr_b16 v[{d+2*h}:{d+2*h+1}], v{VT} offset:{6144 + b*2048 + t*512 + h*(1024 if w2 else 256)}" for h in range(2)])
            stf = lambda sr: f"buffer_store_dwordx4 v[{d}:{d+3}], v3, s[8:11], s{sr} offen {sf}"
            if w2:
                pre = []
                if b % 2 == 0 and t == 0:
                    pre = f"""s_sub_u32 s60, s88, 8
s_cmp_lt_u32 s88, 8
s_cselect_b32 s96, s88, s60
s_mul_i32 s96, s96, 9
s_add_u32 s96, s96, 167
s_add_u32 s96, s96, s89
s_lshl_b32 s61, s60, s93
s_add_u32 s61, s61, s91
s_cmp_lt_u32 s60, 8
s_cselect_b32 s96, s61, s96
s_cselect_b32 s97, 1, 5
s_lshl_b32 s97, s97, 10
s_cmp_eq_u32 s93, 0
s_cselect_b32 s97, {WB}, s97
s_cselect_b32 s98, 0, s97
s_lshl_b32 s96, s96, 10
s_add_u32 s96, s96, s87
s_add_u32 s99, s96, s97
s_add_u32 s100, s96, s90
s_add_u32 s101, s100, s97
s_sub_u32 s101, s101, s98
s_add_u32 s100, s100, s98
s_add_u32 s88, s88, 1""".split("\n")
                st.append(pre + [stf(((96, 100), (99, 101))[b % 2][t])])
            else:
                sr = (87, 86)[t]
                st.append([stf(sr)] + ([f"s_add_u32 s{sr}, s{sr}, s{88 + 2*t + b % 2}"] if b < 4 else []) +
                          [f"v_dot2c_f32_bf16 v{(C0, C1)[t]}, {'s98' if b == 0 else 'v8'}, v{d+q}" for q in range(4)])
    work = []
    for x in rd[:LA]: work += x
    for i, x in enumerate(st):
        work += x
        if i + LA < len(rd): work += rd[i + LA]
    fin = []
    if not w2:
        work += [f"v_permlane32_swap_b32 v{C0}, v{C1}", f"v_add_f32 v{C0}, v{C0}, v{C1}", I(f"ds_write_b32 v{VCS}, v{C0}", tag='scs'),
                 f"v_xor_b32 v{VCS}, 256, v{VCS}"]
        fin = f"""ds_read_b32 v{C1}, v{VCS}
v_add_f32 v{C0}, v{C0}, v{C1}
v_cvt_pk_bf16_f32 v{E}, v{C0}, v{C0}
v_and_b32 v{C1}, 0xffff0000, v{E}
v_sub_f32 v{C1}, v{C0}, v{C1}
v_cvt_pk_bf16_f32 v{E+1}, v{C1}, 0
v_and_b32 v{VB}, s93, v{VB}
v_lshl_or_b32 v{E+1}, v{VB}, 16, v{E+1}
buffer_store_dwordx2 v[{E}:{E+1}], v{VAG}, s[8:11], s96 offen {sf}
buffer_store_dwordx2 v[{E}:{E+1}], v{VAG}, s[8:11], s97 offen {sf}""".split("\n")
    return atomize(work), fin

def poll(tag, sreg, vd, loop=True):
    chk = f"""v_xor_b32 v{vd}, v{vd}, v{VN}
v_xor_b32 v{vd+1}, v{vd+1}, v{VN}
v_xor_b32 v{vd+2}, v{vd+2}, v{VN}
v_xor_b32 v{vd+3}, v{vd+3}, v{VN}
v_or3_b32 v{vd}, v{vd}, v{vd+1}, v{vd+2}
v_or_b32 v{vd}, v{vd}, v{vd+3}
v_cmp_ne_u32 vcc, 0, v{vd}"""
    if not loop: return chk
    return f"""L_{tag}_poll:
buffer_load_dwordx4 v[{vd}:{vd+3}], v3, s[8:11], s{sreg} offen sc1 ; @
s_waitcnt vmcnt(0) ; @
{chk}
s_nop 4
s_cbranch_vccz L_{tag}_go
s_sub_u32 s49, s49, 1
s_cmp_eq_u32 s49, 0
s_cbranch_scc0 L_{tag}_poll
"""

HEAD = """  s_and_b32 s17, s2, 7
  s_lshr_b32 s18, s2, 3
  s_cmp_lt_u32 s18, 18
  s_cbranch_scc0 L_pw2
  s_cmp_lt_u32 s18, 4
  s_cbranch_scc0 L_po
"""
```

```python
YF   = 0x0000000
XF   = 0x0240000
X1F  = 0x0480000
PQ16 = 0x06C0000
PQ4  = 0x08C0000
KV   = 0x0940000
KVL  = 32*2560
ST   = 0x0968000
STL  = 16384
WQF  = 0x0A00000
WOF  = 0x0E00000
PART = 0x2000000
ACT  = 2359296
WSSZ = 0x10000000
WSTR = 0x1000000
WSN = 329
WS3 = 660
HX   = 0x5000000
FLG  = 0x0970000
CNT  = FLG

import os
NEW = os.environ.get("LAYNEW") == "1"
LS = 0
if NEW:
    LS   = 0x2000000
    ST   = 0x0954000
    CNT  = FLG = 0x0958000
    ZR   = KV
    PART = 0x0A00000
    WQF  = 0x8000000 + int(os.environ.get("WQO", "0"), 0)
    WOF  = 0x8400000
    WSTR = 0x8600000 + int(os.environ.get("WSO", "0"), 0)
def lay(r):
    return f"\ns_add_u32 {r}, {r}, s63" if NEW else ""
```

```python
import sys
sys.path.insert(0, "gen")
from asmlib import *
import k0, ka, kb, kc, kc3, kd
HEAD = open("interleave_layers__linear_attn_block__mixer_channel_mlp__prompt.s.ref").read().split("; Override")[0]
def build(**kw):
    SC.dw = kw.get('dw', 0)
    if kw.get('fuse') == 5:
        import km
        SC.sel = {n: i + 1 for i, n in enumerate(kw.get('sel', []))}
        m = km.main_kernel(kw.get('a', {}), kw.get('b', {}), kw.get('c', {}), kw.get('d', {}), kw.get('bk', 0), None, None, kw.get('hf', 'sc1'), {}, kw.get('a0', {}), kw.get('p', {}))
        return HEAD + m[1] + HDR + ('; sel: ' + ' '.join(kw['sel']) + '\n' if SC.sel else '') + m[0]
    if kw.get('fuse') == 4:
        import km
        SC.sel = {n: i + 1 for i, n in enumerate(kw.get('sel', []))}
        m = km.main_kernel(kw.get('a', {}), kw.get('b', {}), kw.get('c', {}), kw.get('d', {}), kw.get('bk', 0), None, kw.get('p', {}), kw.get('hf', 'sc1'), kw.get('sfl', {}), kw.get('a0', {}))
        return HEAD + m[1] + HDR + ('; sel: ' + ' '.join(kw['sel']) + '\n' if SC.sel else '') + m[0]
    if kw.get('fuse') == 3:
        import km
        SC.sel = {n: i + 1 for i, n in enumerate(kw.get('sel', []))}
        m = km.main_kernel(kw.get('a', {}), kw.get('b', {}), kw.get('c', {}), kw.get('d', {}), kw.get('bk', 0), kw.get('side'))
        k = k0.k0_kernel(nside=32 if kw.get('side') is not None else 288, **kw.get('k', {}))
        return HEAD + k[1] + m[1] + HDR + ('; sel: ' + ' '.join(kw['sel']) + '\n' if SC.sel else '') + k[0] + m[0]
    D = kw.get('dbg', False)
    SC.ws = kw.get('tl', False); SC.full = kw.get('full', False)
    FZ = kw.get('fuse', False)
    order = list(kw.get('order', range(9) if not FZ else ([0, 1, 2, 4, 5, 6, 8] if FZ == 1 else [0, 1, 2, 5, 6])))
    SC.nl = len(order); SC.amp = kw.get('amp')
    a0 = a1 = ka.a_kernel(dbg=D, kv2=FZ == 2, **kw.get('a', {}))
    if FZ == 2: a0, a1 = a0
    b = kb.b_kernel(dbg=D, **kw.get('b', {})); c = kc3.c3_kernel(dbg=D, **kw['c3']) if 'c3' in kw else kc.c_kernel(dbg=D, **kw.get('c', {}))
    if FZ:
        sent = kw.get('sent', False)
        cz = kc.c_kernel(dbg=D, fused=True, dz=FZ == 2, ds=kd.d_sent(dbg=D, **kw.get('d', {})) if sent else None, **kw.get('c', {}))
        b = kb.b_kernel(dbg=D, cz=cz, dz=("\n" if sent else (kd.d_cnt2 if kw.get('cnt2') else kd.d_part)(dbg=D, **kw.get('d', {}))) if FZ == 2 else None, **kw.get('b', {})); c = ("", "")
    b1 = b
    if FZ == 2:
        b, b1 = b
        kw['d'] = {}
    d0 = k0.d_kernel(0, dbg=D, zkv=FZ, **kw.get('d', {})); d1 = k0.d_kernel(1, dbg=D, **kw.get('d', {}))
    k = k0.k0_kernel(dbg=D, **kw.get('k', {}))
    if FZ == 2: d0 = d1 = ("", "")
    ks = [k, a0, b, c, d0, a1, b1, c, d1]
    ex = []
    if 9 in order:
        p = Prog()
        p("s_load_dwordx2 s[4:5], s[0:1], 80")
        if D: stamp_init(p)
        p("s_waitcnt lgkmcnt(0)")
        k0.srd(p, 8, 4, 0x10000000)
        if D: stamp_end(p, 1, 'e')
        p("s_endpgm")
        ex = [(kernel("e_kernel", p.finish(), vgpr=16), "; @launch kernel=e_kernel grid=(256,1,1) block=(256,1,1) lds=0\n")]
        ks += ex
    return HEAD + "".join(ks[i][1] for i in order) + HDR + "".join(x[0] for x in [k, a0, b, c, d0, d1] + ex)
if __name__ == "__main__":
    out = sys.argv[1] if len(sys.argv) > 1 else "interleave_layers__linear_attn_block__mixer_channel_mlp__prompt.s"
    s = build(dbg=len(sys.argv) > 2)
    open(out, "w").write(s)
    print(out, len(s))
```

```python
from asmlib import *
from layout import *
from k0 import srd

def gelu8(x, k1, k3, tmp, out, grp=4):
    L = []
    for b in range(0, 8, grp):
        idx = range(b, b + grp)
        T = lambda i: tmp + i
        for i in idx: L.append(f"v_mul_f32 v{T(i)}, v{x+i}, v{x+i}")
        for i in idx: L.append(f"v_fma_f32 v{T(i)}, v{T(i)}, v{k3}, v{k1}")
        for i in idx: L.append(f"v_mul_f32 v{T(i)}, v{T(i)}, v{x+i}")
        for i in idx: L.append(f"v_exp_f32 v{T(i)}, v{T(i)}")
        for i in idx: L.append(f"v_add_f32 v{T(i)}, 1.0, v{T(i)}")
        for i in idx: L.append(f"v_rcp_f32 v{T(i)}, v{T(i)}")
        for i in idx: L.append(f"v_mul_f32 v{T(i)}, v{T(i)}, v{x+i}")
        for i in list(idx)[::2]: L.append(f"v_cvt_pk_bf16_f32 v{out+i//2}, v{T(i)}, v{T(i+1)}")
    return L

def c_kernel(DW=32, D0=12, YCH=4, stfl="sc1", dbg=False, RAMP=3, X=(), merge=True, YLA=0, amap=2, align=None, s16=False, mk=None, fused=False, NPRE=31, yfl='', wfl='', rev=False, poll=None, PD=1, dz=False, fine=False, ds=None, armw=(0.0, 1.0), prein=False, wpf=None, arms=18, armp=0, sigp=0.5, armf='sc1', OW=30, EP=2, EW=30, f3=False, F3P=(60, 126)):
    name = "c_kernel"
    p = Prog()
    YB, HB, XB = 0, 73728, 147456
    vL = 3
    vRD = 6
    vHW = 10
    vXW, vXR = 13, 14
    vK1, vK3 = 16, 18
    TMP, PK = 24, 32
    A_, B_, C_, D_, OS, N2, N3 = 40, 72, 104, 136, 168, 184, 216
    aODD, aAUG, aLR, aT, aW = 0, 32, 40, 64, 128
    NL = 3
    assert aW + 4*DW <= 256
    wslot = (lambda g: aW + 4*(DW - 1 - g % DW)) if rev else (lambda g: aW + 4*(g % DW))
    if not fused:
        p(f"""s_cmp_lt_u32 s2, 256
s_cbranch_scc1 L_{name}_go
s_endpgm
L_{name}_go:
s_load_dwordx2 s[4:5], s[0:1], 80""")
        if dbg: stamp_init(p)
    else: D0 = NPRE
    AM = "s_and_b32 s17, s2, 7\ns_lshr_b32 s18, s2, 3" if not amap else "s_bfe_u32 s17, s2, 0x30003\ns_and_b32 s18, s2, 7\ns_lshl_b32 s18, s18, 2\ns_lshr_b32 s19, s2, 6\ns_add_u32 s18, s18, s19"
    if amap == 2: AM = "s_and_b32 s17, s2, 3\ns_lshl_b32 s17, s17, 1\ns_bfe_u32 s18, s2, 0x10003\ns_add_u32 s17, s17, s18\ns_bfe_u32 s18, s2, 0x10002\ns_lshl_b32 s18, s18, 4\ns_lshr_b32 s19, s2, 4\ns_add_u32 s18, s18, s19"
    if amap == 4: AM = "s_and_b32 s17, s2, 1\ns_lshl_b32 s17, s17, 2\ns_bfe_u32 s18, s2, 0x20003\ns_add_u32 s17, s17, s18\ns_bfe_u32 s18, s2, 0x20001\ns_lshl_b32 s18, s18, 3\ns_lshr_b32 s19, s2, 5\ns_add_u32 s18, s18, s19"
    p(f"""v_lshrrev_b32 v1, 6, v0
v_and_b32 v2, 63, v0
v_readfirstlane_b32 s16, v1
v_lshlrev_b32 v{vL}, 4, v2
{AM}
s_and_b32 s19, s16, 1
s_lshr_b32 s20, s16, 1
s_lshl_b32 s30, s17, 2
s_add_u32 s30, s30, s16
s_mul_i32 s30, s30, {WSN*1024}
s_add_u32 s30, s30, {WSTR}
s_mul_i32 s25, s18, 73728
s_lshl_b32 s26, s16, 10
s_add_u32 s27, s25, s26
s_add_u32 s27, s27, {X1F}{lay('s27')}
s_add_u32 s28, s27, 36864
s_add_u32 s31, s26, 36864
s_lshl_b32 s21, s18, 1
s_xor_b32 s29, s19, 1
s_add_u32 s45, s21, s19
s_add_u32 s46, s21, s29
s_lshl_b32 s47, s45, 8
s_lshl_b32 s48, s46, 8
s_add_u32 s47, s47, {ST}{lay('s47')}
s_add_u32 s48, s48, {ST}{lay('s48')}
v_lshlrev_b32 v15, 2, v2""")
    if not fused:
        p(f"""s_mov_b32 s10, {WSSZ}
s_mov_b32 s11, 0x20000
s_waitcnt lgkmcnt(0)
s_mov_b32 s8, s4
s_mov_b32 s9, s5""")
    else:
        pre_setup = AM.replace("s17", "s64").replace("s18", "s65").replace("s19", "s66").split("\n") + f"""s_lshl_b32 s64, s64, 2
s_add_u32 s64, s64, s16
s_mul_i32 s64, s64, {WSN*1024}
s_add_u32 s64, s64, {WSTR}
s_lshl_b32 s65, s65, {9 if poll else 7}
s_add_u32 s65, s65, {CNT}{lay('s65')}""".split("\n")
        if poll: p(f"s_mov_b32 s30, s64\nv_lshlrev_b32 v4, 7, v2\ns_mov_b32 s49, 0x40000\ns_cmp_eq_u32 s16, 0\ns_cbranch_scc0 L_bc_go\n" + poll(PD) + "\ns_barrier")
        else: p(f"""s_mov_b32 s30, s64
v_mov_b32 v4, 0
s_mov_b32 s49, 0x40000
s_cmp_eq_u32 s16, 0
s_cbranch_scc0 L_bc_go
L_bc_poll:
buffer_load_dword v5, v4, s[8:11], s65 offen sc1
s_waitcnt vmcnt(0)
v_readfirstlane_b32 s50, v5
s_sub_u32 s49, s49, 1
s_cmp_eq_u32 s49, 0
s_cbranch_scc1 L_bc_go
s_cmp_lt_u32 s50, 32
s_cbranch_scc1 L_bc_poll
L_bc_go:
s_barrier""")
        if dbg and not fine: p(stamp(2))
        p(nst('c_go'))
        if f3:
            import kq
            F3SIG = [f"s_lshl_b32 s50, s2, 2", f"s_add_u32 s50, s50, {kq.PFL + kq.F3O}"] + kq.fsig('f3', 248, 249, 50)
    steps = []
    def fr(acc, rts=(0, 1), first=False, ag=False, kk=None):
        return dict(m=[(acc + 16*rt, ag, rt, first) for rt in rts], kk=kk)
    for kk in range(36):
        f = [fr(A_, first=kk == 0), fr(B_, first=kk == 0)]
        if kk % 2 == 0: f.append(fr(aODD, first=kk == 0, ag=True))
        steps.append(dict(l=('Y', kk), f=f, ph='p1'))
    steps.append(dict(l=None, f=[fr(A_), fr(B_), fr(aODD, rts=(0,), ag=True)], ph='p1'))
    for kk in range(36):
        steps.append(dict(l=('Y', kk), f=[fr(C_, first=kk == 0), fr(D_, first=kk == 0)], ph='p2'))
    steps.append(dict(l=None, f=[fr(C_), fr(D_)], ph='p2'))
    korder = list(range(16)) + [32, 33, 34, 35]
    NACC = [A_, B_, N2, N3]
    for i, kk in enumerate(korder):
        f = [fr(NACC[n], first=i == 0) for n in range(4)]
        if kk % 2 == 0: f.append(fr(aODD, first=i == 0, ag=True))
        steps.append(dict(l=('H', kk), f=f, ph='q'))
    n_p1 = 37; n_p2 = 74; n_t = 94
    tstart = {}
    for n in (4, 3, 0, 1, 2):
        f = [fr(aODD, ag=True, kk=kk) for kk in range(16, 32, 2)] if n == 4 else [fr(NACC[n], kk=kk) for kk in range(16, 32)]
        tstart[n] = len(steps)
        for b in range(0, len(f), 4): steps.append(dict(l=None, f=f[b:b+4], ph='t'))
    def treg(kk, rt):
        i = (kk - 16) // 2
        if kk % 2 == 0: return 'a', aT + 8*i + 4*rt
        return 'v', C_ + 8*i + 4*rt
    frags = [(si, fi) for si, st in enumerate(steps) for fi in range(len(st['f']))]
    assert len(frags) == WSN
    issue = []
    ych_at = {}
    for c in range(36 // YCH):
        gi = next(g for g, (si, fi) in enumerate(frags) if si == c*YCH)
        ych_at.setdefault(max(0, gi - YLA), []).append(c)
    for g, (si, fi) in enumerate(frags):
        for c in ych_at.get(g, []):
            L = []
            for kk0 in range(c*YCH, (c+1)*YCH, 4):
                for rt in range(2):
                    L.append(f"s_add_u32 m0, s{(26, 31)[rt]}, {YB + kk0*1024}" if kk0 else f"s_mov_b32 m0, s{(26, 31)[rt]}")
                    L.append(I(f"buffer_load_dwordx4 v{vL}, s[8:11], s{27+rt} offen {yfl} lds", tag=f"y{c}"))
                    L.append(f"s_addk_i32 s{27+rt}, 4096")
            issue.append(('y', L, g))
        d = wslot(g)
        pre = ["s_addk_i32 s30, 4096"] if (g % 4 == 0 and g > 0) else []
        issue.append(('w', pre + [I(f"buffer_load_dwordx4 a[{d}:{d+3}], v{vL}, s[8:11], s30 offen offset:{(g%4)*1024} {wfl}", tag=f"w{g}")], g))
    if fused:
        pre_loads = [y for x in issue if x[0] == 'w' and x[2] < NPRE for y in x[1]]
        pre_loads = [(y.text if isinstance(y, I) else y).replace("s30", "s64") for y in pre_loads]
        pre_grp = [[(y.text if isinstance(y, I) else y).replace("s30", "s64") for y in x[1]] for x in issue if x[0] == 'w' and x[2] < NPRE]
        issue = [x for x in issue if not (x[0] == 'w' and x[2] < NPRE)]
    ip = 0
    def issue_upto(gmax):
        nonlocal ip
        L = []
        while ip < len(issue) and issue[ip][2] <= gmax:
            L += issue[ip][1]; ip += 1
        return L
    p.ext(issue_upto(D0 - 1))
    if f3: p.ext(F3SIG)
    p(f"buffer_load_dword v22, v15, s[8:11], s47 offen {'sc1' if fused else ''}\nbuffer_load_dword v23, v15, s[8:11], s48 offen {'sc1' if fused else ''}")
    p(f"""s_mul_i32 s50, s19, {37*1024}
s_mul_i32 s51, s19, {35*1024}
v_add_u32 v{vRD}, s50, v{vL}
v_add_u32 v{vRD+1}, s51, v{vL}
v_subrev_u32 v{vRD+2}, s51, v{vL}
v_subrev_u32 v{vRD+3}, s50, v{vL}
v_add_u32 v{vRD+2}, 36864, v{vRD+2}
v_add_u32 v{vRD+3}, 36864, v{vRD+3}""")
    setup = f"""s_mul_i32 s50, s19, 36864
s_mul_i32 s51, s29, 36864
s_lshl_b32 s52, s16, 11
s_add_u32 s53, s50, s52
s_add_u32 s53, s53, {HB}
v_add_u32 v{vHW}, s53, v{vL}
s_add_u32 s53, s51, s52
s_add_u32 s53, s53, {HB}
v_add_u32 v{vHW+1}, s53, v{vL}
s_lshl_b32 s52, s20, 11
s_add_u32 s53, s50, s52
s_add_u32 s53, s53, {HB + 32*1024}
v_add_u32 v{vHW+2}, s53, v{vL}
s_lshl_b32 s52, s16, 12
s_add_u32 s53, s52, {XB}
v_add_u32 v{vXW}, s53, v{vL}
s_xor_b32 s52, s52, 4096
s_add_u32 s53, s52, {XB}
v_add_u32 v{vXR}, s53, v{vL}
s_mul_i32 s54, s17, {ACT}
s_add_u32 s54, s54, {PART}{lay('s54')}
s_mul_i32 s55, s45, 36864
s_mul_i32 s56, s46, 36864
s_add_u32 s55, s55, s54
s_add_u32 s56, s56, s54
s_lshl_b32 s57, s20, 11
s_add_u32 s57, s57, {16*2048}
s_add_u32 s57, s57, s55
s_lshl_b32 s58, s16, 11
s_add_u32 s55, s55, s58
s_add_u32 s56, s56, s58
s_mul_i32 s50, s2, 320
s_mul_i32 s51, s16, 80
s_add_u32 s50, s50, s51
s_add_u32 s50, s50, {KV}
v_mov_b32 v{TMP}, 0""".split("\n") + [["s_mov_b64 exec, 0xfffff", f"buffer_store_dword v{TMP}, v15, s[8:11], s50 offen", "s_mov_b64 exec, -1"]]
    if fused: setup = setup[:-6]
    statf = []
    for rt in range(2):
        s = 22 + rt; t = TMP
        statf += f"""v_mov_b32 v{t}, v{s}
v_permlane32_swap_b32 v{s}, v{t}
v_mul_f32 v{s}, 0x3ae38e39, v{s}
v_mul_f32 v{t}, 0x3ae38e39, v{t}
v_fma_f32 v{t}, -v{s}, v{s}, v{t}
v_max_f32 v{t}, 0, v{t}
v_mov_b32 v{t+1}, 0x3f800054
v_mov_b32 v{t+2}, 0x2edbe6ff
v_fma_f32 v{t}, v{t}, v{t+1}, v{t+2}
v_rsq_f32 v{t+1}, v{t}
v_mul_f32 v{t}, v{t}, v{t+1}
v_mul_f32 v{vK1+rt}, 0xc0135761, v{t+1}
v_mul_f32 v{t+2}, v{t+1}, v{t+1}
v_mul_f32 v{t+2}, v{t+2}, v{t+1}
v_mul_f32 v{vK3+rt}, 0xbdd2d3e8, v{t+2}
v_sub_f32 v{s}, 0, v{s}
v_cvt_pk_bf16_f32 v{t+3}, v{s}, v{t}
v_lshlrev_b32 v{t+4}, 16, v{t+3}
v_and_b32 v{t+5}, 0xffff0000, v{t+3}
v_sub_f32 v{t+4}, v{s}, v{t+4}
v_sub_f32 v{t+5}, v{t}, v{t+5}
v_cvt_pk_bf16_f32 v{t+6}, v{s}, v{t+4}
v_cvt_pk_bf16_f32 v{t+7}, v{s}, v{t+5}
v_accvgpr_write_b32 a{aAUG+4*rt}, v{t+6}
v_accvgpr_write_b32 a{aAUG+4*rt+1}, v{t+3}
v_accvgpr_write_b32 a{aAUG+4*rt+2}, v{t+6}
v_accvgpr_write_b32 a{aAUG+4*rt+3}, v{t+7}""".split("\n")
    pkc = [0]
    def gl(acc, rt, waddr, woff, tag):
        L = []
        for q in range(2):
            o = PK + 4*(pkc[0] % 2); pkc[0] += 1
            L += gelu8(acc + 8*q, vK1 + rt, vK3 + rt, TMP, o)
            L.append(I(f"ds_write_b128 v{waddr}, v[{o}:{o+3}] offset:{woff + q*1024}", tag=tag))
        return L
    xw = lambda tag: [I(f"ds_write_b128 v{vXW}, a[{aODD+16+4*i}:{aODD+19+4*i}] offset:{i*1024}", tag=tag) for i in range(4)]
    xr = [f"ds_read_b128 v[{OS+4*i}:{OS+4*i+3}], v{vXR} offset:{i*1024}" for i in range(4)]
    def xadd():
        L = []
        for b in range(0, 16, 4):
            for i in range(4): L.append(f"v_accvgpr_read_b32 v{TMP+i}, a{aODD+b+i}")
            for i in range(4): L.append(f"v_add_f32 v{OS+b+i}, v{OS+b+i}, v{TMP+i}")
        return L
    def gtile(role, acc, tag): return gl(acc, 0, vHW, role*8192, tag) + gl(acc + 16, 1, vHW + 1, role*8192, tag)
    fa = gtile(0, A_, 'hab'); h = len(fa) // 2
    seg = [xw('xw') + fa[:h] + [I("s_barrier", needs=['xw'])] + xr + fa[h:] + xadd() + gtile(1, B_, 'hab'),
           gl(OS, 0, vHW + 2, 0, 'ho') + gtile(2, C_, 'hcd') + gtile(3, D_, 'hcd')]
    hbar = {n_p2: 'hab', n_p2 + 16: 'ho', n_t: 'hcd'}
    def lread(si):
        st = steps[si]
        L = []
        if si in hbar:
            L.append(I("s_barrier", needs=[hbar[si]]))
            if si == n_p2:
                for i in range(4): L.append(f"v_add_u32 v{vRD+i}, {HB}, v{vRD+i}")
        if n_t <= si < n_t + 4:
            ks = [list(range(16, 24, 2)), list(range(24, 32, 2)), list(range(17, 24, 2)), list(range(25, 32, 2))][si - n_t]
            for kk in ks:
                for rt in range(2):
                    R, d = treg(kk, rt)
                    L.append(f"ds_read_b128 {R}[{d}:{d+3}], v{vRD + 2*rt + kk % 2} offset:{kk*1024}")
        if st['l'] is None: return L
        kind, kk = st['l']
        if kind == 'Y' and st['ph'] == 'p1' and kk % YCH == 0: L.append(I("s_barrier", needs=[f"y{kk//YCH}"]))
        for rt in range(2):
            d = aLR + 8*(si % NL) + 4*rt
            L.append(I(f"ds_read_b128 a[{d}:{d+3}], v{vRD + 2*rt + kk % 2} offset:{kk*1024}", tag=f"l{si}"))
        return L
    p.ext(lread(0)); p.ext(lread(1))
    if dbg and not fine: p(stamp(3 if fused else 1))
    p(nst('c_first'))
    g = 0
    G = []
    stepstart = {}
    cnt16 = {}
    for si, st in enumerate(steps):
        first_in_step = True
        for fi, fx in enumerate(st['f']):
            ms = fx['m']
            w = wslot(g)
            for mi, (acc, ag, rt, first) in enumerate(ms):
                if st['ph'] == 't':
                    Rb, bb = treg(fx['kk'], rt)
                else:
                    Rb = 'a'; bb = (aLR + 8*(si % NL) + 4*rt) if st['l'] is not None else aAUG + 4*rt
                R = 'a' if ag else 'v'
                c = "0" if first else f"{R}[{acc}:{acc+15}]"
                needs = [f"w{g + len(st['f']) - 1}", f"l{si}"] if (merge and first_in_step and si > 0) else []
                grp = [I(f"v_mfma_f32_32x32x16_bf16 {R}[{acc}:{acc+15}], a[{w}:{w+3}], {Rb}[{bb}:{bb+3}], {c}", needs=needs)]
                if s16:
                    cnt16[(R, acc)] = cnt16.get((R, acc), -1) + 1
                    if first: cnt16[(R, acc)] = 0
                    n = cnt16[(R, acc)]; a2 = acc + 8*(n % 2); b2 = bb ^ 4
                    cc = lambda a: "0" if n < 2 else f"{R}[{a}:{a+3}]"
                    G.append([I(f"v_mfma_f32_16x16x32_bf16 {R}[{a2}:{a2+3}], a[{w}:{w+3}], {Rb}[{bb}:{bb+3}], {cc(a2)}", needs=needs)])
                    grp = [I(f"v_mfma_f32_16x16x32_bf16 {R}[{a2+4}:{a2+7}], a[{w}:{w+3}], {Rb}[{b2}:{b2+3}], {cc(a2+4)}")]
                if first_in_step:
                    stepstart[si] = len(G) - (1 if s16 else 0)
                    if si + 2 < len(steps): grp += lread(si + 2)
                    first_in_step = False
                if mi == len(ms) - 1:
                    depth = min(DW - 1, D0 + g // RAMP)
                    grp += issue_upto(g + depth)
                G.append(grp)
            g += 1
    assert ip == len(issue)
    stepstart[len(steps)] = len(G)
    def outp(acc, sreg, tag=None):
        L = []
        for hf in range(2):
            o = PK + 4*(pkc[0] % 2); pkc[0] += 1
            src = acc + 8*hf
            for i in range(4): L.append(f"v_cvt_pk_bf16_f32 v{o+i}, v{src+2*i}, v{src+2*i+1}")
            if ds:
                for i in range(4): L.append(f"v_min_u32 v{o+i}, s44, v{o+i}")
            L += [f"v_permlane32_swap_b32 v{o}, v{o+2}", f"v_permlane32_swap_b32 v{o+1}, v{o+3}"]
            L.append(I(f"buffer_store_dwordx4 v[{o}:{o+3}], v{vL}, s[8:11], s{sreg} offen offset:{hf*1024} {stfl}", tag=tag))
        return L
    def otile(n):
        acc = NACC[n]
        return [f"s_add_u32 s58, s55, {n*8192}", f"s_add_u32 s59, s56, {n*8192}"] + outp(acc, 58, f"o{n}") + outp(acc + 16, 59, f"o{n}")
    ts = {n: stepstart[tstart[n]] for n in tstart}
    plan = [(setup, 4, 40), (statf, 60, 120 if not s16 else 200),
            (seg[0], stepstart[n_p1] + 2, stepstart[n_p2 - 2]),
            (seg[1], stepstart[n_p2 - 2], stepstart[n_t - 2]),
            (xw('xw2'), ts[3] + 2, ts[3] + 6),
            ([I("s_barrier", needs=['xw2'])] + xr + xadd() + outp(OS, 57), ts[3] + 12, ts[0]),
            (otile(3), ts[0] + 2, ts[1]), (otile(0), ts[1] + 2, ts[2]), (otile(1), ts[2] + 2, len(G))]
    if ds:
        def mix(a, b, lo=0.0, hi=1.0):
            i0 = int(len(a)*lo); i1 = int(len(a)*hi); out = list(a[:i0]); n = i1 - i0; k = 0
            for i in range(n):
                out.append(a[i0 + i])
                while k < len(b) and (k + 0.5) * n <= (i + 1) * len(b): out.append(b[k]); k += 1
            return out + b[k:] + list(a[i1:])
        setup += [f"v_mov_b32 v{248+i}, -1" for i in range(4)] + ["v_mov_b32 v20, 0", "v_mov_b32 v21, 1", "s_mov_b32 s44, -2",
                  "s_lshl_b32 s66, s18, 7", f"s_add_u32 s66, s66, {CNT + 4096}"]
        arm = []
        st = lambda sr, o: I(f"buffer_store_dwordx4 v[248:251], v{vL}, s[8:11], s{sr} offen offset:{o} {armf}", tag='arm')
        for n in range(4):
            arm += [[f"s_add_u32 s58, s55, {n*8192}", st(58, 0)], st(58, 1024), [f"s_add_u32 s59, s56, {n*8192}", st(59, 0)], st(59, 1024)]
        arm += [st(57, 0), st(57, 1024)]
        sig = [["s_mov_b64 exec, 1", I("buffer_atomic_add v21, v20, s[8:11], s66 offen", needs=['arm']), "s_mov_b64 exec, -1"]]
        apoll = ["buffer_load_dword v252, v20, s[8:11], s66 offen sc1"]
        achk = [["v_readfirstlane_b32 s50, v252", "s_cmp_lt_u32 s50, 32", "s_cbranch_scc1 L_arm_w", "L_arm_k:"]]
        sS = [x for x in ds['setup'] if x.startswith('s_')]; sV = [x for x in ds['setup'] if not x.startswith('s_')]
        plan = [(setup, 4, 40), (statf, 60, 120), (arm[:armp], 120, stepstart[n_p1]),
                (mix(seg[0], arm[armp:arms], *armw), stepstart[n_p1] + 2, stepstart[n_p2 - 2]),
                (mix(mix(seg[1], sig, sigp, sigp + 0.05), arm[arms:], 0.0, sigp - 0.3), stepstart[n_p2 - 2], stepstart[n_t - 2]),
                (xw('xw2'), ts[3] + 2, ts[3] + 6), (apoll + sS, ts[3] + 6, ts[3] + 12),
                ([I("s_barrier", needs=['xw2'])] + xr + xadd() + outp(OS, 57), ts[3] + 12, ts[0]),
                (otile(3), ts[0] + 2, ts[0] + 2 + min(OW, 20)), (sV + ds['ld0'], ts[0] + 2 + min(OW, 20), ts[1]),
                (otile(0), ts[1] + 2, ts[1] + 2 + min(OW, 16 if prein else 30)), (ds['pre'] if prein else [], ts[1] + 2 + min(OW, 16 if prein else 30), ts[2])]
        ds['prein'] = prein
        if wpf:
            pfs = f"""s_lshr_b32 s50, s2, 3
s_lshl_b32 s50, s50, 2
s_add_u32 s50, s50, s16
s_and_b32 s51, s50, 7
s_and_b32 s52, s2, 3
s_lshl_b32 s52, s52, 3
s_add_u32 s51, s51, s52
s_mul_i32 s51, s51, {WSN*1024}
s_lshr_b32 s50, s50, 3
s_lshl_b32 s50, s50, 14
s_add_u32 s51, s51, s50
s_add_u32 s51, s51, {WSTR + (WSN - 256)*1024}
s_add_u32 s52, s51, 8192
v_lshlrev_b32 v253, 7, v2
buffer_load_dword v254, v253, s[8:11], s51 offen
buffer_load_dword v255, v253, s[8:11], s52 offen""".split("\n")
            plan = plan[:1] + [(pfs, wpf, wpf + 8)] + plan[1:] if wpf < 60 else plan[:2] + [(pfs, wpf, wpf + 8)] + plan[3:]
        o1 = otile(1)
        if EP <= 2: plan += [(achk, ts[2] + 1, ts[2] + 2), (mix(o1, ds['early']), ts[2] + 2, ts[2] + 2 + EW)]
        else: plan += [(o1, ts[2] + 2, ts[2] + EP), (achk + ds['early'], ts[2] + EP, min(len(G), ts[2] + EP + EW))]
    marks = {stepstart[n_p1]: 2, stepstart[n_p2]: 3, stepstart[n_t]: 4, ts[1]: 5}
    if fused: marks = {stepstart[n_p1]: 4, stepstart[n_t]: 5}
    if fine: marks = {}
    if mk: marks = {stepstart[x]: i + 2 for i, x in enumerate(mk)}
    for k, v in marks.items():
        if dbg: G[k] = [stamp(v)] + G[k]
    for nm, k in (('c_p1', stepstart[n_p1]), ('c_p2', stepstart[n_p2]), ('c_t', stepstart[n_t])):
        if nst(nm): G[k] = [nst(nm)] + G[k]
    if f3:
        f3c = kq.fchk('f3', 248, 60, 's3')
        gpos = {}
        for k, grp in enumerate(G):
            for x in grp:
                if isinstance(x, I) and x.tag and x.tag[0] == 'w' and x.tag[1:].isdigit(): gpos[int(x.tag[1:])] = k
        ka, kb = gpos[F3P[0] + DW - 1], gpos[F3P[1] + DW - 1]
        assert kb + 6 < gpos[167]
        G[ka] = G[ka] + ["s_and_b32 s60, s2, 7", "s_lshl_b32 s60, s60, 10", f"s_add_u32 s60, s60, {kq.PFL + kq.F3O}", f3c[0]]
        for k, x in enumerate(f3c[1]): G[kb + k//2] = G[kb + k//2] + [x]
        G[kb + 5] = G[kb + 5] + f3c[2]
    pos = 0
    for fill, a, b in plan:
        if 'nofill' in X: fill = [f for f in fill if isinstance(f, list) or not ((f if isinstance(f, I) else I(f)).kind in ('valu', 'trans'))]
        assert a >= pos
        for grp in G[pos:a]: p.ext(grp)
        p.ext(interleave(G[a:b], fill))
        pos = b
    for grp in G[pos:]: p.ext(grp)
    if dbg and fine: p(stamp(2))
    p(nst('c_end'))
    p.ext(otile(2))
    extra = ""
    if ds:
        extra = ds['fin'](p) + """L_arm_w:
  buffer_load_dword v252, v20, s[8:11], s66 offen sc1
  s_waitcnt vmcnt(0)
  v_readfirstlane_b32 s50, v252
  s_sub_u32 s49, s49, 1
  s_cmp_eq_u32 s49, 0
  s_cbranch_scc1 L_arm_k
  s_cmp_lt_u32 s50, 32
  s_cbranch_scc1 L_arm_w
  s_branch L_arm_k
"""
    if not dz:
        if dbg: p(stamp(6))
        if dbg: stamp_end(p, 7, name)
        p("s_endpgm")
    idx = {id(i): k for k, i in enumerate(p.ins)}
    for k, i in enumerate(p.ins):
        if i.op == 's_barrier':
            for t in i.needs:
                assert all(kk < k for kk, j in enumerate(p.ins) if j.tag == t), t
    if 'noarm' in X: p.ins = [i for i in p.ins if i.tag != 'arm']
    if 'nolds' in X: p.ins = [i for i in p.ins if not i.op.startswith('ds_read')]
    if 'nobar' in X: p.ins = [i for i in p.ins if i.op != 's_barrier']
    if 'now' in X: p.ins = [i for i in p.ins if not (i.op == 'buffer_load_dwordx4' and not i.isdma)]
    if 'noy' in X: p.ins = [i for i in p.ins if not i.isdma]
    if 'nost' in X: p.ins = [i for i in p.ins if not i.op.startswith('buffer_store_dwordx4')]
    t = p.finish(align) + extra
    if fused: return t, pre_setup, pre_loads, pre_grp, (f3c[3] if f3 else '')
    if align: print('c align', Prog.stats)
    return kernel(name, t, vgpr=256, agpr=256), f"; @launch kernel={name} grid=(256,1,1) block=(256,1,1) lds=163840\n"
```

```python
from asmlib import *
from layout import *
from k0 import srd
from ka import phi, QB
import kc, kp, kq
HF = ['']

CCD, CDA, CAB = 16384, 32768, 49152
aWOr = lambda ks, t: 64 + 4*((8 - ks)*5 + t)

BK = [0]
def spin(tag, sreg, va, vd, lanes, target, depth=1):
    ld = lambda k: f"buffer_load_dword v{vd+k}, v{va}, s[8:11], s{sreg} offen sc1 ; @"
    L = ([f"s_mov_b64 exec, {(1 << lanes) - 1}"] if lanes < 32 else ["s_mov_b32 exec_hi, 0"]) + [ld(k) for k in range(depth - 1)] + [f"L_{tag}_poll:"]
    for k in range(depth):
        L += [ld((k + depth - 1) % depth), f"s_waitcnt vmcnt({depth - 1}) ; @", f"v_cmp_gt_u32 vcc, {target}, v{vd+k}",
              "s_nop 4", f"s_cbranch_vccz L_{tag}_ok"]
    L += ["s_nop 15"] * BK[0]
    L += ["s_sub_u32 s49, s49, 1", "s_cmp_eq_u32 s49, 0", f"s_cbranch_scc0 L_{tag}_poll", f"L_{tag}_ok:", "s_mov_b64 exec, -1"]
    L.append(f"L_{tag}_go:")
    return "\n".join(L)

A_MAP = """s_and_b32 s17, s2, 7
s_lshr_b32 s18, s2, 3
s_lshr_b32 s19, s17, 2
s_lshl_b32 s19, s19, 2
s_and_b32 s20, s18, 3
s_add_u32 s19, s19, s20
s_and_b32 s20, s17, 3
s_lshl_b32 s20, s20, 3
s_lshr_b32 s21, s18, 2
s_add_u32 s20, s20, s21"""
A_WS = f"""s_mul_i32 s24, s20, 73728
s_add_u32 s24, s24, {WQF}
s_lshl_b32 s25, s16, 11
s_add_u32 s24, s24, s25"""
def a_wchunk(c):
    L = [f"s_add_u32 m0, s25, {c*8192}" if c else "s_mov_b32 m0, s25"]
    for i in range(2): L.append(I(f"buffer_load_dwordx4 v3, s[8:11], s24 offen offset:{i*1024} {HF[0]} lds", tag=f"w{c}"))
    if c < 8: L.append("s_addk_i32 s24, 8192")
    return L

def wo_loads(ts, sreg=50):
    G = []
    for t in ts:
        for ks in range(9):
            pre = []
            if ks in (4, 8): pre = [f"s_addk_i32 s{sreg}, 4096"]
            if ks == 0 and t != ts[0]: pre = [f"s_add_u32 s{sreg}, s{sreg}, {36864 - 8192}"]
            r = aWOr(ks, t)
            G.append(pre + [f"buffer_load_dwordx4 a[{r}:{r+3}], v3, s[8:11], s{sreg} offen offset:{(ks%4)*1024} {HF[0]}"])
    return G

def side_parts(ssf="sc1", lf="nt"):
    WB = WSN*1024
    SB = 98304
    V = 160
    v3_, v5_, vs_, t1, t2, ts1, ts2, c0, c1, vb, vcs, vag, T = V, V+1, V+2, V+3, V+4, V+5, V+6, V+7, V+8, V+9, V+10, V+11, V+12
    D = V + 16
    ka = "s_load_dwordx4 s[56:59], s[0:1], 32\ns_load_dwordx2 s[60:61], s[0:1], 48"
    setup = f"""s_mov_b32 s12, s56
s_mov_b32 s13, s57
s_mov_b32 s14, {576*4608*2}
s_mov_b32 s15, 0x20000
s_mov_b32 s44, s60
s_mov_b32 s45, s61
s_mov_b32 s46, {576*4608*2}
s_mov_b32 s47, 0x20000
s_mov_b32 s64, s58
s_mov_b32 s65, s59
s_mov_b32 s66, {4608*2}
s_mov_b32 s67, 0x20000
s_cmp_lt_u32 s16, 2
s_cselect_b32 s96, s56, s60
s_cselect_b32 s97, s57, s61
s_mov_b32 s98, {576*4608*2}
s_mov_b32 s99, 0x20000
s_and_b32 s56, s2, 7
s_bfe_u32 s57, s2, 0x20003
s_lshr_b32 s58, s2, 5
s_mul_i32 s59, s57, 9
s_add_u32 s60, s59, s16
s_mul_i32 s62, s60, {16*9216}
s_mul_i32 s68, s56, 1152
s_lshl_b32 s69, s58, 7
s_add_u32 s68, s68, s69
s_add_u32 s62, s62, s68
s_mul_i32 s87, s56, 36
s_add_u32 s87, s87, s60
s_mul_i32 s87, s87, {16*1152}
s_add_u32 s87, s87, s69
s_add_u32 s60, s59, 8
s_mul_i32 s88, s60, {16*9216}
s_add_u32 s88, s88, s68
s_mul_i32 s68, s56, 36
s_add_u32 s68, s68, s60
s_mul_i32 s68, s68, {16*1152}
s_add_u32 s68, s68, s69
s_cmp_lt_u32 s16, 2
s_cselect_b32 s88, s88, s68
s_cselect_b32 s68, 8, 1
s_mul_i32 s68, s68, 1152
s_and_b32 s69, s16, 1
s_lshl_b32 s69, s69, 6
s_add_u32 s88, s88, s69
s_mul_i32 s55, s16, 9216
s_add_u32 s55, s55, {SB}
v_bfe_u32 v{T}, v2, 2, 3
v_and_b32 v{T+1}, 3, v2
v_lshrrev_b32 v{T+2}, 5, v2
v_lshlrev_b32 v{T+3}, 6, v{T+2}
v_lshl_add_u32 v{T+3}, v{T+1}, 4, v{T+3}
v_mul_u32_u24 v{v3_}, 9216, v{T}
v_add_u32 v{v3_}, v{v3_}, v{T+3}
v_mul_u32_u24 v{v5_}, 1152, v{T}
v_add_u32 v{v5_}, v{v5_}, v{T+3}
v_lshrrev_b32 v{T}, 2, v2
v_mul_u32_u24 v{vs_}, s68, v{T}
v_lshl_add_u32 v{vs_}, v{T+1}, 4, v{vs_}""".split("\n")
    dma = []
    for b in range(2):
        for mi, (vo, sr, srd_, rs) in enumerate(((v3_, 62, 12, 9216), (v5_, 87, 44, 1152))):
            for u in range(2):
                L = [f"s_add_u32 m0, s55, {(2*b + mi)*2048 + u*1024}", I(f"buffer_load_dwordx4 v{vo}, s[{srd_}:{srd_+3}], s{sr} offen {lf} lds", tag=f"sd{b}{mi}")]
                if not (b == 1 and u == 1): L.append(f"s_add_u32 s{sr}, s{sr}, {(8 if u == 0 else 56)*rs}")
                dma.append(L)
    dma.append([f"s_add_u32 m0, s55, 8192", I(f"buffer_load_dwordx4 v{vs_}, s[96:99], s88 offen {lf} lds", tag="sds")])
    setup2 = f"""s_mul_i32 s68, s56, 18
s_lshl_b32 s69, s58, 1
s_add_u32 s68, s68, s69
s_lshl_b32 s68, s68, 6
v_lshlrev_b32 v{vb}, 1, v2
buffer_load_ushort v{vb}, v{vb}, s[64:67], s68 offen
v_and_b32 v{T+1}, 3, v2
v_lshrrev_b32 v{T+2}, 5, v2
v_lshlrev_b32 v{T}, 3, v{T+1}
v_bfe_u32 v{T+3}, v2, 2, 2
v_lshl_add_u32 v{T}, v{T+3}, 6, v{T}
v_bfe_u32 v{T+3}, v2, 4, 1
v_lshl_add_u32 v{T}, v{T+3}, 5, v{T}
v_add_u32 v{T}, s55, v{T}
v_lshl_add_u32 v{t1}, v{T+2}, 10, v{T}
v_lshl_add_u32 v{t2}, v{T+2}, 8, v{T}
s_cmp_lt_u32 s16, 2
s_cselect_b32 s68, 2, 1
s_cselect_b32 s69, 1, 2
s_lshl_b32 s68, s68, 8
s_lshl_b32 s69, s69, 8
v_mul_u32_u24 v{ts1}, s68, v{T+2}
v_add_u32 v{ts1}, v{ts1}, v{T}
v_add_u32 v{ts2}, s69, v{ts1}
v_mov_b32 v{c0}, 0
v_mov_b32 v{c1}, 0
s_lshl_b32 s89, s56, 2
s_and_b32 s68, s58, 1
s_lshl_b32 s68, s68, 1
s_add_u32 s89, s89, s68
s_mul_i32 s89, s89, {WB}
s_add_u32 s89, s89, {WSTR}
s_lshr_b32 s90, s58, 1
s_add_u32 s68, s90, 91
s_add_u32 s69, s90, 90
s_add_u32 s61, s90, 163
s_cmp_lt_u32 s58, 4
s_cselect_b32 s91, 5, 4
s_cselect_b32 s93, s90, s68
s_cselect_b32 s61, s69, s61
s_cselect_b32 s100, 3, 2
s_lshl_b32 s100, s100, 10
s_add_u32 s101, s90, 1
s_and_b32 s101, s101, 3
s_lshl_b32 s101, s101, 4
s_add_u32 s101, s101, 265
s_lshl_b32 s61, s61, 10
s_add_u32 s61, s61, s89
s_lshr_b32 s68, s57, 1
s_lshl_b32 s68, s68, 9
s_add_u32 s61, s61, s68
s_and_b32 s68, s57, 1
s_lshl_b32 s68, s68, 3
s_add_u32 s61, s61, s68
s_cmp_lt_u32 s57, 2
s_cselect_b32 s57, 0xffff, 0
v_lshlrev_b32 v{vcs}, 2, v0
v_add_u32 v{vcs}, {SB + 36864}, v{vcs}
v_and_b32 v{vag}, 31, v2
v_lshlrev_b32 v{vag}, 4, v{vag}
v_mul_u32_u24 v{T}, {WB}, v{T+2}
v_add_u32 v{vag}, v{vag}, v{T}""".split("\n")
    def dest(m):
        L = ["s_lshr_b32 s56, s60, 1", "s_and_b32 s58, s60, 1"]
        if m == 0:
            L += ["s_mul_i32 s68, s56, s91", "s_add_u32 s68, s68, s93", "s_mov_b32 s69, s100"]
        else:
            L += """s_sub_u32 s88, s56, 8
s_cmp_lt_u32 s56, 8
s_cselect_b32 s68, s56, s88
s_mul_i32 s68, s68, 9
s_add_u32 s68, s68, 167
s_add_u32 s68, s68, s90
s_lshl_b32 s69, s88, 1
s_add_u32 s69, s69, s101
s_cmp_lt_u32 s88, 8
s_cselect_b32 s68, s69, s68
s_cselect_b32 s69, 1, 5
s_lshl_b32 s69, s69, 10""".split("\n")
        L += f"""s_lshl_b32 s68, s68, 10
s_add_u32 s68, s68, s89
s_mul_i32 s58, s58, s69
s_add_u32 s62, s68, s58
s_add_u32 s68, s68, s69
s_sub_u32 s68, s68, s58
s_add_u32 s87, s68, {WB}""".split("\n")
        return L
    work = []
    for b in range(2):
        for mi in range(2):
            d = D + 8*((2*b + mi) % 4)
            base = (2*b + mi)*2048
            ra, o2 = ((t1, 256), (t2, 1024))[mi]
            for tt in range(2):
                work.append(I(f"ds_read_b64_tr_b16 v[{d+4*tt}:{d+4*tt+1}], v{ra} offset:{base + tt*512}", needs=[f"sd{b}{mi}"]))
                work.append(f"ds_read_b64_tr_b16 v[{d+4*tt+2}:{d+4*tt+3}], v{ra} offset:{base + tt*512 + o2}")
            if mi == 0: work.append(f"s_add_u32 s60, s59, s16" if b == 0 else "s_add_u32 s60, s60, 4")
            work += dest(mi)
            for tt in range(2):
                work.append(f"buffer_store_dwordx4 v[{d+4*tt}:{d+4*tt+3}], v3, s[8:11], s{(62, 87)[tt]} offen {ssf}")
                if mi == 0: work += [f"v_dot2c_f32_bf16 v{(c0, c1)[tt]}, v8, v{d+4*tt+q}" for q in range(4)]
    d = D + 32
    work += [I(f"ds_read_b64_tr_b16 v[{d}:{d+1}], v{ts1} offset:8192", needs=["sds"]), f"ds_read_b64_tr_b16 v[{d+2}:{d+3}], v{ts2} offset:8192", "s_add_u32 s60, s59, 8"]
    work += dest(0) + ["s_bitcmp1_b32 s16, 0", "s_cselect_b32 s55, s87, s62"] + dest(1)
    work += ["s_bitcmp1_b32 s16, 0", "s_cselect_b32 s62, s87, s62", "s_cmp_lt_u32 s16, 2", "s_cselect_b32 s62, s55, s62",
             f"buffer_store_dwordx4 v[{d}:{d+3}], v3, s[8:11], s62 offen {ssf}",
             "s_cmp_eq_u32 s16, 0", "s_cselect_b32 s68, 0x3f803f80, 0", "s_cmp_eq_u32 s16, 1", "s_cselect_b32 s69, 0x3f803f80, 0"]
    for q in range(4): work += [f"v_dot2c_f32_bf16 v{c0}, s68, v{d+q}", f"v_dot2c_f32_bf16 v{c1}, s69, v{d+q}"]
    work += [f"v_permlane32_swap_b32 v{c0}, v{c1}", f"v_add_f32 v{c0}, v{c0}, v{c1}", I(f"ds_write_b32 v{vcs}, v{c0}", tag='scs')]
    fin = [f"v_lshlrev_b32 v{vcs}, 2, v2", f"v_add_u32 v{vcs}, {SB + 36864}, v{vcs}"]
    fin += [f"ds_read_b32 v{D+w}, v{vcs} offset:{w*256}" for w in range(4)]
    fin += f"""v_add_f32 v{D}, v{D}, v{D+1}
v_add_f32 v{D+2}, v{D+2}, v{D+3}
v_add_f32 v{D}, v{D}, v{D+2}
v_cvt_pk_bf16_f32 v{D+4}, v{D}, v{D}
v_and_b32 v{D+1}, 0xffff0000, v{D+4}
v_sub_f32 v{D+1}, v{D}, v{D+1}
v_cvt_pk_bf16_f32 v{D+5}, v{D+1}, 0
v_and_b32 v{vb}, s57, v{vb}
v_lshl_or_b32 v{D+5}, v{vb}, 16, v{D+5}
buffer_store_dwordx2 v[{D+4}:{D+5}], v{vag}, s[8:11], s61 offen {ssf}""".split("\n")
    return ka, atomize(setup), dma, atomize(setup2), atomize(work), fin

def a_part(first, p2=None, FP=(0, 0, 84, 118), p0=None, SD=(10, 75), dw=False, YR=16, D0=12, RAMP=1, NW=8, qsf="sc1", NP1=36, NPa=16, PD=1, yf='sc1', side=None, SW=(2, 12, 12, 34, 60, 112)):
    n = "a0" if first else "a1"
    p = Prog()
    p(A_MAP)
    p(f"""s_lshl_b32 s21, s19, 3
s_lshl_b32 s22, s16, 1
s_add_u32 s21, s21, s22
s_mul_i32 s22, s21, 36864
s_add_u32 s22, s22, {YF if first else YF + LS}""")
    if first: p(A_WS)
    if first and dw:
        p(f'''s_load_dwordx2 s[56:57], s[0:1], 8
v_lshrrev_b32 v200, 3, v2
v_mul_u32_u24 v200, 3456, v200
v_and_b32 v201, 3, v2
v_bfe_u32 v202, v2, 2, 1
v_lshlrev_b32 v203, 4, v201
v_mul_u32_u24 v204, 1152, v202
v_add_u32 v203, v203, v204
v_add_u32 v203, 1152, v203
v_lshlrev_b32 v204, 4, v202
v_cmp_eq_u32 vcc, 3, v201
v_cndmask_b32 v203, v203, v204, vcc
v_add_u32 v200, v200, v203
v_add_u32 v201, {8*3456 - 1024}, v200
s_mul_i32 s24, s20, 36
s_mul_i32 s58, s16, {16*3456}
s_add_u32 s24, s24, s58
s_waitcnt lgkmcnt(0)
s_mov_b32 s12, s56
s_mov_b32 s13, s57
s_mov_b32 s14, {576*1728*2}
s_mov_b32 s15, 0x20000''')
    ACC, WR, P0, V1, TMP, KVA, QO = 16, 80, 112, 120, 128, 136, 152
    items = []
    for g in range(72):
        if first and g < 36 and g % 4 == 0:
            wc = a_wchunk(g // 4)
            if dw:
                c = g // 4
                wc = [wc[0]] + [I(f"buffer_load_dwordx4 v{200+i}, s[12:15], s24 offen offset:{i*1024} lds", tag=f"w{c}") for i in range(2)] + ([f"s_add_u32 s24, s24, {64*3456}"] if c < 8 else [])
            items.append((g, wc))
        s = 4*(g % YR)
        pre = ["s_addk_i32 s22, 4096"] if (g % 4 == 0 and g) else []
        items.append((g, pre + [f"buffer_load_dwordx4 a[{s}:{s+3}], v3, s[8:11], s22 offen offset:{(g%4)*1024} {'' if first and not p0 and p2 is None else yf}"]))
    ip = 0
    def issue_upto(gmax):
        nonlocal ip
        L = []
        while ip < len(items) and items[ip][0] <= gmax:
            L += items[ip][1]; ip += 1
        return L
    setup = f"""v_lshlrev_b32 v13, 2, v0
v_add_u32 v4, 65536, v3
s_mul_i32 s28, s16, 1280
s_add_u32 s28, s28, {QB - 20*64}
v_and_b32 v5, 31, v2
v_lshlrev_b32 v5, 6, v5
v_lshrrev_b32 v9, 5, v2
v_lshl_add_u32 v5, v9, 5, v5
v_add_u32 v5, s28, v5
v_bfe_u32 v6, v2, 2, 2
v_lshl_add_u32 v6, v9, 2, v6
v_lshlrev_b32 v6, 6, v6
v_and_b32 v7, 1, v2
v_lshl_add_u32 v6, v7, 5, v6
v_bfe_u32 v7, v2, 4, 1
v_lshl_add_u32 v6, v7, 4, v6
v_bfe_u32 v7, v2, 1, 1
v_lshl_add_u32 v6, v7, 3, v6
s_add_u32 s28, s28, {20*64}
v_add_u32 v6, s28, v6
v_lshlrev_b32 v7, 2, v2
s_mul_i32 s28, s16, 2560
v_add_u32 v15, s28, v3
v_lshlrev_b32 v14, 3, v2
v_add_u32 v14, s28, v14
v_and_b32 v8, 27, v2
v_cmp_eq_u32 s[30:31], 18, v8
v_mov_b32 v8, 0x3f803f80
s_mov_b32 s32, 0xfff00000
s_mov_b32 s33, 0xfff00000
s_lshl_b32 s26, s21, 5
s_add_u32 s26, s26, s20
s_lshl_b32 s27, s26, 8
s_lshl_b32 s26, s26, 10
s_add_u32 s26, s26, {PQ16 + (0 if first else LS)}
s_add_u32 s27, s27, {PQ4 + (0 if first else LS)}"""
    if first and p2 is not None:
        p(setup)
        p(kq.a0_go())
        p(nst('a_go'))
        p.ext(issue_upto(D0 - 1))
        p("ds_read_b32 v161, v162\nv_readfirstlane_b32 s3, v161")
    elif first and p0:
        n = "a0" + p0[0]
        p(setup)
        p(f"""s_and_b32 s56, s2, 7
s_lshl_b32 s56, s56, 10
s_add_u32 s56, s56, {kp.PFL}
s_mov_b32 s49, 0x40000
s_cmp_eq_u32 s16, 0
s_cbranch_scc0 L_{n}p_go""")
        p(kp.poll(n + "p", 56, 250) + f"L_{n}p_go:\ns_barrier")
        p(nst('a_go'))
        p.ext(issue_upto(D0 - 1))
    elif first:
        p.ext(issue_upto(D0 - 1))
        p(setup)
    else:
        p(setup)
        p(f"""s_lshl_b32 s28, s19, 2
s_bfe_u32 s29, s2, 0x20005
s_add_u32 s28, s28, s29
s_lshl_b32 s28, s28, 9
s_add_u32 s28, s28, {CNT + LS + CDA}
v_lshlrev_b32 v10, 7, v2
s_mov_b32 s49, 0x40000
s_waitcnt vmcnt(0)
s_cmp_eq_u32 s16, 0
s_cbranch_scc0 L_da_go""")
        p(spin("da", 28, 10, 250, 4, 8, PD))
        p("s_barrier")
        p(nst('a_go'))
        p.ext(issue_upto(YR - 1))
    def wrd(f):
        g = f % 72
        s = WR + 4*(f % NW)
        L = []
        if first and f < 72 and f % 8 == 0: L.append(I("s_barrier", needs=[f"w{f//8}"]))
        L.append(f"ds_read_b128 v[{s}:{s+3}], v3 offset:{g*1024}" if g < 64 else f"ds_read_b128 v[{s}:{s+3}], v4 offset:{(g-64)*1024}")
        return L
    for f in range(NW - 1): p.ext(wrd(f))
    p(nst('a_first'))
    G = []
    for g in range(72):
        y = 4*(g % YR)
        for t in range(2):
            f = 2*g + t
            w = WR + 4*(f % NW)
            acc = ACC + 32*(g // 36) + 16*t
            c = "0" if g % 36 == 0 else f"v[{acc}:{acc+15}]"
            grp = [f"v_mfma_f32_32x32x16_bf16 v[{acc}:{acc+15}], a[{y}:{y+3}], v[{w}:{w+3}], {c}"]
            if f + NW - 1 < 144: grp += wrd(f + NW - 1)
            if t == 1:
                depth = min(YR, D0 + 1 + g*RAMP) if first else YR
                grp += issue_upto(g + depth)
            G.append(grp)
    assert ip == len(items)
    def epi1(rt):
        T0 = ACC + 32*rt; T1 = T0 + 16
        L = []
        for i in range(8): L.append(f"v_cvt_pk_bf16_f32 v{V1+i}, v{T1+2*i}, v{T1+2*i+1}")
        for i in range(8): L.append(f"v_cndmask_b32 v{V1+i}, v{V1+i}, v8, s[30:31]")
        ph = phi(list(range(T0, T0 + 16)), TMP)
        pk = [f"v_cvt_pk_bf16_f32 v{P0+i}, v{T0+2*i}, v{T0+2*i+1}" for i in range(8)]
        mm = [f"v_mfma_f32_32x32x16_bf16 v[{KVA}:{KVA+15}], v[{P0+4*q}:{P0+4*q+3}], v[{V1+4*q}:{V1+4*q+3}], " + ("0" if (rt == 0 and q == 0) else f"v[{KVA}:{KVA+15}]") for q in range(2)]
        L = ph[:32] + pk[:4] + L + [mm[0]] + ph[32:] + pk[4:] + [mm[1]]
        L.append(["s_mov_b64 exec, s[32:33]",
                  f"ds_write_b128 v5, v[{V1}:{V1+3}] offset:512", f"ds_write_b128 v5, v[{V1+4}:{V1+7}] offset:528",
                  f"ds_write_b128 v5, v[{P0}:{P0+3}]", f"ds_write_b128 v5, v[{P0+4}:{P0+7}] offset:16",
                  "s_mov_b64 exec, -1"])
        L += [f"ds_read_b64_tr_b16 v[{QO}:{QO+1}], v6", f"ds_read_b64_tr_b16 v[{QO+2}:{QO+3}], v6 offset:768", f"ds_read_b64_tr_b16 v[{QO+4}:{QO+5}], v6 offset:512"]
        return L
    def epi2(rt):
        u = TMP + 4
        L = [f"v_lshlrev_b32 v{u}, 16, v{QO+2}", f"v_and_b32 v{u+1}, 0xffff0000, v{QO+2}", f"v_lshlrev_b32 v{u+2}, 16, v{QO+3}", f"v_and_b32 v{u+3}, 0xffff0000, v{QO+3}"]
        L += phi([u, u+1, u+2, u+3], TMP)
        L += [f"v_cvt_pk_bf16_f32 v{QO+2}, v{u}, v{u+1}", f"v_cvt_pk_bf16_f32 v{QO+3}, v{u+2}, v{u+3}"]
        return L
    def qst(rt):
        L = ["s_add_u32 s26, s26, 32768", "s_add_u32 s27, s27, 8192"] if rt else []
        return L + [f"buffer_store_dwordx4 v[{QO}:{QO+3}], v3, s[8:11], s26 offen {qsf}", f"buffer_store_dword v{QO+4}, v7, s[8:11], s27 offen {qsf}"]
    late = f"""v_bfe_u32 v10, v0, 2, 5
v_lshrrev_b32 v12, 1, v0
v_cmp_gt_u32 s[34:35], 19, v10
v_cmp_eq_u32 s[36:37], 22, v10
s_or_b64 s[34:35], s[34:35], s[36:37]
v_cmp_gt_u32 s[38:39], 19, v12
v_cmp_eq_u32 s[36:37], 22, v12
s_or_b64 s[38:39], s[38:39], s[36:37]
s_mul_i32 s28, s20, 2560
s_add_u32 s28, s28, {KV + (0 if first else LS)}
s_lshr_b32 s51, s2, 6
s_mul_i32 s52, s51, 5
s_lshl_b32 s53, s51, 2
s_add_u32 s53, s53, 2
s_cmp_lt_u32 s51, 2
s_cselect_b32 s52, s52, s53
s_mul_i32 s50, s52, 36864
s_mul_i32 s53, s16, 9216
s_add_u32 s50, s50, s53
s_add_u32 s50, s50, {WOF}
s_lshl_b32 s54, s20, 7
s_add_u32 s54, s54, {CNT + CAB + (0 if first else LS)}
v_lshlrev_b32 v10, 12, v2
v_mov_b32 v11, 1""".split("\n")
    wo = wo_loads(range(4))[:NP1]
    if side and first:
        _, su, dma, su2, work, fin = side
        G[116] = G[116] + [I("s_barrier", needs=['scs'])]
        def put(L, a, b):
            for k, x in enumerate(L): G[a + k*(b - a)//len(L)] += x if isinstance(x, list) else [x]
        put(su, SW[0], SW[1]); put(dma, SW[2], SW[3]); put(su2, SW[3], SW[4]); put(work, SW[4], SW[5]); put(fin, 117, 130)
    elif first and p2 is not None:
        G[116] = G[116] + ["s_barrier"]
        f2 = kq.fchk('f2', 232, 57, 's3')
        G[FP[0]] = G[FP[0]] + kq.fsig('f2', 161, 162, 58)
        G[FP[2]] = G[FP[2]] + [f2[0]]
        for k, x in enumerate(f2[1]): G[FP[3] - 4 + k//2] = G[FP[3] - 4 + k//2] + [x]
        G[FP[3] + 1] = G[FP[3] + 1] + f2[2]
        G = [[y for x in g for y in (x if isinstance(x, list) else [x])] for g in G]
    elif first and p0:
        lf = SW[1] > 112
        G[116] = G[116] + [I("s_barrier", needs=[] if lf else ['scs'])]
        for L, a, b in ((p0[3], SD[0], SD[1]), (p0[1], SW[0], SW[1]), ([] if lf else p0[2], 117, 130)):
            for k, x in enumerate(L): G[a + k*(b - a)//len(L)] += x if isinstance(x, list) else [x]
    else: G[116] = G[116] + ["s_barrier"]
    for k in range(1, 144):
        if nst(f'a_g{k}'): G[k] = [nst(f'a_g{k}')] + G[k]
    for grp in G[:20]: p.ext(grp)
    p.ext(interleave(G[20:60], atomize(late)))
    for grp in G[60:74]: p.ext(grp)
    p.ext(interleave(G[74:124], epi1(0) + epi2(0) + qst(0)))
    p.ext(interleave(G[124:], wo[:NPa]))
    p(nst('a_epi'))
    e1 = epi1(1)
    rest = wo[NPa:]
    k1 = len(rest) * 2 // 3
    p.ext(interleave([x if isinstance(x, list) else [x] for x in e1], rest[:k1]))
    p(f"ds_write_b128 v15, v[{KVA}:{KVA+3}]\nds_write_b128 v15, v[{KVA+4}:{KVA+7}] offset:1024\nds_write_b64 v14, v[{KVA+8}:{KVA+9}] offset:2048")
    for x in rest[k1:]: p.ext(x)
    p("s_waitcnt lgkmcnt(0)")
    p("s_barrier")
    for it in range(3):
        for w in range(4): p(f"ds_read_b32 v{16 + 4*it + w}, v13 offset:{w*2560 + it*1024}")
    p.ext(epi2(1))
    if first and p0 and SW[1] > 112: p.ext(p0[2])
    for it in range(3):
        b = 16 + 4*it
        p(f"v_add_f32 v{b}, v{b}, v{b+1}\nv_add_f32 v{b+2}, v{b+2}, v{b+3}\nv_add_f32 v{b}, v{b}, v{b+2}")
    p(f"""s_mov_b64 exec, s[34:35]
buffer_atomic_add_f32 v16, v13, s[8:11], s28 offen
buffer_atomic_add_f32 v20, v13, s[8:11], s28 offen offset:1024
s_mov_b64 exec, -1""")
    p.ext(qst(1))
    p(f"""s_cmp_eq_u32 s16, 0
s_cbranch_scc0 L_{n}_end
s_mov_b64 exec, s[38:39]
buffer_atomic_add_f32 v24, v13, s[8:11], s28 offen offset:2048
s_mov_b64 exec, -1
L_{n}_end:""")
    for k, i in enumerate(p.ins):
        if i.kind == 'vm' and i.w and i.w[0][0] == 'a' and 's50' in i.r:
            assert not any(j.kind == 'mfma' and set(j.r) & set(i.w) for j in p.ins[k:]), i.text
    p(nst('a_st'))
    if first: p("s_branch L_ab")
    return p.finish() + (f2[3] if first and p2 is not None else "")

def ab_link(NP1=36):
    p = Prog()
    p(f"""s_and_b32 s17, s2, 7
s_lshl_b32 s17, s17, 3
s_bfe_u32 s19, s2, 0x30003
s_add_u32 s17, s17, s19
s_mov_b32 s18, s52
s_waitcnt vmcnt(0)
s_barrier
s_cmp_eq_u32 s16, 0
s_cbranch_scc0 L_ab_ns
s_mov_b64 exec, 0xffff
buffer_atomic_add v11, v10, s[8:11], s54 offen
s_mov_b64 exec, -1
L_ab_ns:""")
    p(nst('a_sig'))
    for x in wo_loads(range(4))[NP1:]: p.ext(x)
    p("s_cmp_lt_u32 s51, 2\ns_cbranch_scc0 L_b4")
    return p.finish()

def b_part(NT, cz, xsf="sc1", PFD=3, PD=1, lf='sc1', allp=False, pbar=False, x4=False, dx=False, sb=None):
    p = Prog()
    KVR, NUM, TL, ACC, XR = 16, 112, 144, 152, 232
    aPQ = 0
    if NT == 5:
        for x in wo_loads(range(3, 5))[9:]: p.ext(x)
    p(f"""s_lshl_b32 s19, s16, 3
s_mul_i32 s20, s19, 2560
s_add_u32 s20, s20, {KV}{lay('s20')}
s_lshl_b32 s21, s17, 5
s_add_u32 s21, s21, s19
s_lshl_b32 s22, s21, 8
s_lshl_b32 s21, s21, 10
s_add_u32 s21, s21, {PQ16}{lay('s21')}
s_add_u32 s22, s22, {PQ4}{lay('s22')}
v_lshlrev_b32 v4, 3, v2
v_lshlrev_b32 v5, 2, v2
v_and_b32 v6, 24, v2
v_cmp_eq_u32 vcc, 24, v6
v_mov_b32 v6, 0x40000000
v_cndmask_b32 v12, v3, v6, vcc
v_cndmask_b32 v4, v4, v6, vcc
v_add_u32 v6, 4096, v3
s_mul_i32 s25, s17, 36864
s_lshl_b32 s26, s18, 11
s_add_u32 s25, s25, s26
s_lshl_b32 s26, s16, 9
s_add_u32 s25, s25, s26{lay('s25')}
s_add_u32 s26, s25, {XF}
s_add_u32 s27, s25, {X1F}
v_and_b32 v8, 31, v2
v_lshlrev_b32 v8, 4, v8
v_lshrrev_b32 v9, 5, v2
v_lshl_add_u32 v8, v9, 3, v8
v_add_u32 v9, 4096, v8
v_add_u32 v10, 8192, v8""")
    if x4:
        p("""v_and_b32 v246, 31, v2
v_lshrrev_b32 v247, 5, v2
v_lshlrev_b32 v8, 4, v246
v_lshl_add_u32 v8, v247, 11, v8
v_add_u32 v9, 4096, v8""")
        if dx:
            p(f"""s_mul_i32 s31, s17, 36864
s_lshl_b32 s32, s18, 6
s_add_u32 s31, s31, s32
s_lshl_b32 s32, s16, 4
s_add_u32 s31, s31, s32
s_cmp_eq_u32 s63, 0
s_cselect_b32 s26, s31, s26
s_cselect_b32 s31, 1152, 16
s_cselect_b32 s32, 64, 2048
v_mul_u32_u24 v246, s31, v246
v_mul_u32_u24 v13, s32, v247
v_lshl_add_u32 v247, v247, 3, v246
v_add_u32 v246, v246, v13
s_lshl_b32 s32, s32, 1
s_add_u32 s31, s26, s32
s_add_u32 s32, s31, s32""")
    for h in range(8): p(f"v_accvgpr_write_b32 a{aPQ+6*h+5}, 0")
    for g in range(1, 4):
        p(f"""s_add_u32 s28, s16, {g}
s_and_b32 s28, s28, 3
s_mul_i32 s28, s28, {3*NT*1024}
s_add_u32 s28, s28, {(g-1)*NT*1024}
v_add_u32 v{242+g}, s28, v3""")
    p(f"s_mul_i32 s28, s16, {3*NT*1024}\nv_add_u32 v14, s28, v3")
    p(f"s_lshl_b32 s28, s17, 8\ns_add_u32 s28, s28, {ST}{lay('s28')}")
    p.ext(cz[1])
    p(f"s_lshr_b32 s67, s17, 1\ns_lshl_b32 s67, s67, 2\ns_add_u32 s67, s67, s16\ns_lshl_b32 s67, s67, 7\ns_add_u32 s67, s67, {CNT}{lay('s67')}")
    pf = list(cz[3])
    if not allp and not pbar:
        for x in pf[:3]: p.ext(x)
    p(f"""s_lshl_b32 s29, s16, 10
s_bfe_u32 s30, s2, 0x40003
s_lshl_b32 s30, s30, 12
s_add_u32 s29, s29, s30
s_add_u32 s29, s29, {CNT + CAB}{lay('s29')}
v_lshlrev_b32 v7, 7, v2
s_mov_b32 s49, 0x40000""")
    if allp:
        p(f"s_waitcnt vmcnt(0)\ns_cmp_eq_u32 s16, 0\ns_cbranch_scc0 L_ab{NT}_go")
        p(spin(f"ab{NT}", 29, 7, 250, 32, 8, PD)); p("s_barrier")
    else: p(spin(f"ab{NT}", 29, 7, 250, 8, 8, PD))
    p.ins.append(I("s_nop 0", tag='__clr'))
    p(nst('b_go'))
    for h in range(8):
        k = KVR + 12*h; q = aPQ + 6*h
        p(f"""buffer_load_dwordx4 v[{k}:{k+3}], v12, s[8:11], s20 offen {lf}
buffer_load_dwordx4 v[{k+4}:{k+7}], v12, s[8:11], s20 offen offset:1024 {lf}
buffer_load_dwordx2 v[{k+8}:{k+9}], v4, s[8:11], s20 offen offset:2048 {lf}
buffer_load_dwordx4 a[{q}:{q+3}], v{(3,6)[h//4]}, s[8:11], s21 offen offset:{(h%4)*1024} {lf}
buffer_load_dword a{q+4}, v5, s[8:11], s22 offen offset:{h*256} {lf}""")
        if h < 7: p("s_addk_i32 s20, 2560")
    if x4:
        for u in range(2): p(f"buffer_load_dwordx4 v[{XR+4*u}:{XR+4*u+3}], " + (f"v246, s[12:15], s{(26, 31)[u]}" if dx else f"v{8+u}, s[8:11], s26") + f" offen {lf}")
        if NT == 5: p(f"buffer_load_dwordx2 v[{XR+8}:{XR+9}], " + ("v247, s[12:15], s32" if dx else "v10, s[8:11], s26") + f" offen {lf}")
    else:
        for t in range(NT): p(f"buffer_load_dwordx2 v[{XR+2*t}:{XR+2*t+1}], v{8 + t//2}, s[8:11], s26 offen offset:{(t%2)*2048} {lf}")
    if sb is not None: p(kq.side_b(f"sb{NT}", **sb))
    def prep(h):
        k = KVR + 12*h; q = aPQ + 6*h; n = NUM + 16*(h % 2)
        L = [f"v_cvt_pk_bf16_f32 v{k+i}, v{k+2*i}, v{k+2*i+1}" for i in range(5)]
        L.append(f"v_mov_b32 v{k+5}, 0")
        L.append(f"v_mfma_f32_32x32x16_bf16 v[{n}:{n+15}], v[{k}:{k+3}], a[{q}:{q+3}], 0")
        L.append(f"v_mfma_f32_32x32x8_bf16 v[{n}:{n+15}], v[{k+4}:{k+5}], a[{q+4}:{q+5}], v[{n}:{n+15}]")
        return L
    def post(h):
        n = NUM + 16*(h % 2); o = KVR + 12*h + 8
        L = [f"v_add_f32 v11, 0x358637bd, v{n+10}", "v_rcp_f32 v11, v11"]
        for i in range(10): L.append(f"v_mul_f32 v{n+i}, v{n+i}, v11")
        for i in range(4): L.append(f"v_cvt_pk_bf16_f32 v{o+i}, v{n+2*i}, v{n+2*i+1}")
        L.append(f"v_cvt_pk_bf16_f32 v{TL + h//2 + 4*(h%2)}, v{n+8}, v{n+9}")
        return L
    def gemm(ks):
        o = KVR + 12*ks + 8 if ks < 8 else TL
        G = []
        for t in range(NT):
            r = aWOr(ks, t); a = ACC + 16*t
            c = "0" if ks == 0 else f"v[{a}:{a+15}]"
            G.append([f"v_mfma_f32_32x32x16_bf16 v[{a}:{a+15}], a[{r}:{r+3}], v[{o}:{o+3}], {c}"])
        return G
    flat = lambda L: [y for x in L for y in (x if isinstance(x, list) else [x])]
    for st in range(11):
        ks = st - PFD
        nl = pf[3 + 5*ks: 8 + 5*ks] if ks >= 0 else []
        if (allp or pbar) and ks == -1: nl = pf[:3]
        if pbar and ks == -1: p('s_barrier')
        if st < 8: p.ext(prep(st))
        fill = post(st - 1) if 0 <= st - 1 < 8 else []
        if st == 9: fill = [f"v_permlane32_swap_b32 v{TL+i}, v{TL+4+i}" for i in range(4)]
        if nl:
            m = []; step = max(1, len(fill) // len(nl)) if fill else 1; fi = 0
            for x in nl:
                m.append(x); m += fill[fi:fi+step]; fi += step
            fill = m + fill[fi:]
        if st >= 2: p.ext(interleave(gemm(st - 2), fill))
        else: p.ext(flat(fill))
    assert 3 + 5*(10 - PFD + 1) >= len(pf)
    p(nst('b_gemm'))
    p.ext([f"ds_write_b128 v{242+g}, v[{ACC + 16*t + 4*g}:{ACC + 16*t + 4*g + 3}] offset:{t*1024}" for t in range(NT) for g in range(1, 4)])
    p("s_waitcnt lgkmcnt(0)\ns_barrier")
    RD = KVR
    for t in range(NT):
        for g in range(3):
            r = RD + 12*t + 4*g
            p(f"ds_read_b128 v[{r}:{r+3}], v14 offset:{(g*NT + t)*1024}")
    p("v_mov_b32 v15, 0\nv_mov_b32 v11, 0")
    swp = lambda u: f"v_permlane32_swap_b32 v{XR+4*u}, v{XR+4*u+2}\nv_permlane32_swap_b32 v{XR+4*u+1}, v{XR+4*u+3}"
    if x4:
        for u in range(2): p(swp(u))
    for t in range(NT):
        a = ACC + 16*t; x = XR + 2*t; u = a + 4
        p(f"v_lshlrev_b32 v{u}, 16, v{x}\nv_and_b32 v{u+1}, 0xffff0000, v{x}\nv_lshlrev_b32 v{u+2}, 16, v{x+1}\nv_and_b32 v{u+3}, 0xffff0000, v{x+1}")
        for i in range(4): p(f"v_add_f32 v{a+i}, v{a+i}, v{u+i}")
    for t in range(NT):
        a = ACC + 16*t; r = RD + 12*t; x = XR + 2*t
        for i in range(4): p(f"v_add_f32 v{a+i}, v{a+i}, v{r+i}")
        for i in range(4): p(f"v_add_f32 v{r+4+i}, v{r+4+i}, v{r+8+i}")
        for i in range(4): p(f"v_add_f32 v{a+i}, v{a+i}, v{r+4+i}")
        p(f"v_cvt_pk_bf16_f32 v{x}, v{a}, v{a+1}\nv_cvt_pk_bf16_f32 v{x+1}, v{a+2}, v{a+3}")
        if not x4 or t == 4: p(f"buffer_store_dwordx2 v[{x}:{x+1}], v{8 + t//2}, s[8:11], s27 offen offset:{(t%2)*2048} {xsf}")
        elif t % 2: p(swp(t//2)); p(f"buffer_store_dwordx4 v[{x-2}:{x+1}], v{8 + t//2}, s[8:11], s27 offen {xsf}")
    for t in range(NT):
        a = ACC + 16*t; x = XR + 2*t; u = a + 4
        p(f"v_lshlrev_b32 v{u}, 16, v{x}\nv_and_b32 v{u+1}, 0xffff0000, v{x}\nv_lshlrev_b32 v{u+2}, 16, v{x+1}\nv_and_b32 v{u+3}, 0xffff0000, v{x+1}")
        for i in range(4): p(f"v_add_f32 v15, v15, v{u+i}\nv_fmac_f32 v11, v{u+i}, v{u+i}")
    p(f"""v_permlane32_swap_b32 v15, v11
v_add_f32 v15, v15, v11
buffer_atomic_add_f32 v15, v5, s[8:11], s28 offen
v_mov_b32 v4, 0
v_mov_b32 v6, 1
s_waitcnt vmcnt(0)
s_mov_b64 exec, 1
buffer_atomic_add v6, v4, s[8:11], s67 offen
s_mov_b64 exec, -1""")
    p(nst('b_sig'))
    if NT == 5: p("s_branch L_bc_c")
    return p.finish()

def w_mid():
    L = f"""s_cmp_eq_u32 s63, 0
s_cbranch_scc0 L_wm_skip
s_and_b32 s52, s2, 3
s_lshl_b32 s52, s52, 3
s_lshr_b32 s53, s2, 5
s_add_u32 s52, s52, s53
s_mul_i32 s52, s52, 73728
s_add_u32 s52, s52, {WQF}
s_mul_i32 s53, s16, 18432
s_add_u32 s52, s52, s53
s_mov_b32 m0, s53""".split("\n")
    for k in range(5):
        if k: L += [f"s_add_u32 m0, s53, {k*4096}", "s_addk_i32 s52, 4096"]
        L += ["s_nop 0"] + [f"buffer_load_dwordx4 v3, s[8:11], s52 offen offset:{i*1024} {HF[0]} lds" for i in range(4 if k < 4 else 2)]
    return L

def w_early():
    L = f"""s_cmp_eq_u32 s63, 0
s_cbranch_scc0 L_we_skip
s_and_b32 s52, s2, 3
s_lshl_b32 s52, s52, 3
s_lshr_b32 s53, s2, 5
s_add_u32 s52, s52, s53
s_mul_i32 s52, s52, 73728
s_add_u32 s52, s52, {WQF}
s_sub_u32 s53, s16, 1
s_mul_i32 s53, s53, 24576
s_add_u32 s52, s52, s53
s_mov_b32 m0, s53""".split("\n")
    for k in range(6):
        if k: L += [f"s_add_u32 m0, s53, {k*4096}", "s_addk_i32 s52, 4096"]
        L += ["s_nop 0"] + [f"buffer_load_dwordx4 v3, s[8:11], s52 offen offset:{i*1024} lds ; @" for i in range(4)]
    return L + ["L_we_skip:", "s_branch L_cd_go"]

def d_part(sf="sc1", lf="sc1", PD=1, we=True, p0=False, dx=False):
    p = Prog()
    PL, XL, BL, X, U = 32, 112, 124, 136, 160
    LX = 131072
    p(f"""s_lshr_b32 s20, s17, 2
s_lshl_b32 s21, s18, 1
s_add_u32 s20, s20, s21
s_and_b32 s21, s17, 3
s_mul_i32 s22, s20, 36864
s_lshl_b32 s23, s21, 7
s_add_u32 s22, s22, s23
s_add_u32 s22, s22, s63
s_lshl_b32 s24, s20, 8
s_lshl_b32 s25, s21, 5
s_add_u32 s24, s24, s25
s_add_u32 s24, s24, {ST}
s_add_u32 s24, s24, s63
s_lshl_b32 s25, s20, 5
s_lshl_b32 s26, s21, 3
s_add_u32 s25, s25, s26
s_mul_i32 s25, s25, 1152
s_lshl_b32 s26, s18, 9
s_add_u32 s26, s26, {CNT + CCD}
s_add_u32 s26, s26, s63
s_lshl_b32 s36, s16, 7
s_add_u32 s36, s36, s26
v_and_b32 v4, 7, v0
v_lshrrev_b32 v5, 3, v0
v_lshlrev_b32 v6, 9, v5
v_lshl_add_u32 v6, v4, 4, v6
v_add_u32 v7, 16384, v6
v_lshrrev_b32 v8, 2, v5
v_lshlrev_b32 v8, 9, v8
v_lshl_add_u32 v8, v4, 4, v8
v_and_b32 v9, 3, v5
v_lshl_add_u32 v8, v9, 2, v8
v_add_u32 v8, 32768, v8
v_lshlrev_b32 v9, 4, v5
v_lshlrev_b32 v10, 2, v5
v_lshlrev_b32 v11, 2, v4
s_add_u32 s27, s22, {X1F}""")
    srd(p, 12, 40, 1152)
    p(f"""buffer_load_dword v24, v11, s[8:11], s24 offen sc1
buffer_load_dword v25, v11, s[8:11], s24 offen offset:128 sc1
buffer_load_dwordx4 v[{XL}:{XL+3}], v6, s[8:11], s27 offen sc1
buffer_load_dwordx4 v[{XL+4}:{XL+7}], v7, s[8:11], s27 offen sc1
buffer_load_dword v{XL+8}, v8, s[8:11], s27 offen sc1
buffer_load_dwordx4 v[{BL}:{BL+3}], v9, s[12:15], 0 offen
buffer_load_dwordx4 v[{BL+4}:{BL+7}], v9, s[12:15], 0 offen offset:512
buffer_load_dword v{BL+8}, v10, s[12:15], 0 offen offset:1024
v_mov_b32 v12, 0
v_mov_b32 v13, 1
s_mov_b32 s49, 0x40000
s_waitcnt vmcnt(8)
s_mov_b64 exec, 1
buffer_atomic_add v13, v12, s[8:11], s36 offen
s_mov_b64 exec, -1
v_lshlrev_b32 v12, 7, v2""")
    p(nst('d_sig'))
    p(f"""v_mul_f32 v24, 0x3ae38e39, v24
v_mul_f32 v25, 0x3ae38e39, v25
v_fma_f32 v25, -v24, v24, v25
v_max_f32 v25, 0, v25
v_mov_b32 v26, 0x3f800054
v_mov_b32 v27, 0x2edbe6ff
v_fma_f32 v25, v25, v26, v27
v_rsq_f32 v25, v25
v_mov_b32 v14, 0x3f80
v_mov_b32 v15, 0x3f800000
v_mul_u32_u24 v16, 1152, v4
v_add_u32 v17, v16, v10
v_add_u32 v16, v16, v9""")
    nd = [4, 4, 1]
    for r in range(3):
        for i in range(nd[r]):
            x = XL + 4*r + i; b = BL + 4*r + i; u = U + 8*r + 2*i
            p(f"v_lshlrev_b32 v{u}, 16, v{x}\nv_and_b32 v{u+1}, 0xffff0000, v{x}\nv_lshlrev_b32 v{x}, 16, v{b}\nv_and_b32 v{b}, 0xffff0000, v{b}")
            p(f"v_add_f32 v{u}, v{u}, v{x}\nv_add_f32 v{u+1}, v{u+1}, v{b}")
    for j in range(8): p(f"s_add_u32 s{28+j}, s22, {PART + j*ACT}")
    if we == 1:
        p("s_cmp_eq_u32 s16, 0\ns_cbranch_scc1 L_cd_w0")
        p.ext(w_early()); p("L_cd_w0:")
    else: p("s_cmp_eq_u32 s16, 0\ns_cbranch_scc0 L_cd_go")
    p(spin("cd", 26, 12, 250, 4, 8, PD))
    p("s_barrier")
    p(nst('d_go'))
    for r in range(2):
        for j in range(8): p(f"buffer_load_dwordx4 v[{PL+32*r+4*j}:{PL+32*r+4*j+3}], v{6+r}, s[8:11], s{28+j} offen {lf}")
    for j in range(8): p(f"buffer_load_dword v{PL+64+j}, v8, s[8:11], s{28+j} offen {lf}")
    def sums(p):
        for r in range(3):
            src = lambda j, i: PL + 32*r + 4*j + i if r < 2 else PL + 64 + j
            for i in range(nd[r]): p(f"v_lshlrev_b32 v{X+8*r+2*i}, 16, v{src(0, i)}\nv_and_b32 v{X+8*r+2*i+1}, 0xffff0000, v{src(0, i)}")
            for j in range(1, 8):
                for i in range(nd[r]): p(f"v_dot2c_f32_bf16 v{X+8*r+2*i}, v{src(j, i)}, v14\nv_dot2c_f32_bf16 v{X+8*r+2*i+1}, v{src(j, i)}, v15")
            for i in range(2*nd[r]): p(f"v_fma_f32 v{X+8*r+i}, v{X+8*r+i}, v25, v{U+8*r+i}")
            for i in range(nd[r]): p(f"v_cvt_pk_bf16_f32 v{PL+32*r+i}, v{X+8*r+2*i}, v{X+8*r+2*i+1}")
    if we == 2:
        p.ext(w_mid())
        n0 = len(p.ins); sums(p)
        p("s_branch L_cd_mid\nL_wm_skip:")
        q = Prog()
        for r in range(2):
            for j in range(8): q(f"buffer_load_dwordx4 v[{PL+32*r+4*j}:{PL+32*r+4*j+3}], v{6+r}, s[8:11], s{28+j} offen {lf}")
        for j in range(8): q(f"buffer_load_dword v{PL+64+j}, v8, s[8:11], s{28+j} offen {lf}")
        sums(q); q.resolve_waits()
        for i in q.ins[24:]: i.text += " ; @"
        p.ins += q.ins[24:]
    else: sums(p)
    O = [PL, PL + 32, PL + 64]
    p(nst('d_use'))
    if we != 2: p("s_cmp_eq_u32 s63, 0\ns_cbranch_scc1 L_cd_mid")
    srd(p, 12, 42, ACT)
    p(f"""buffer_store_dwordx4 v[{O[0]}:{O[0]+3}], v16, s[12:15], s25 offen {sf}
buffer_store_dwordx4 v[{O[1]}:{O[1]+3}], v16, s[12:15], s25 offen offset:512 {sf}
buffer_store_dword v{O[2]}, v17, s[12:15], s25 offen offset:1024 {sf}""")
    if p0:
        srd(p, 36, 6, 256)
        p('''s_or_b32 s60, s2, s16
s_cmp_eq_u32 s60, 0
s_cbranch_scc0 L_d_nt
v_mov_b32 v20, 0
s_mov_b64 exec, 1
buffer_store_dword v20, v20, s[36:39], 0 offen sc1 ; @
s_mov_b64 exec, -1
L_d_nt:''')
    if SC.sel: p("s_waitcnt vmcnt(0) ; @"); p(nst('d_end')); nst_dump(p, 'd2')
    p("s_endpgm\nL_cd_mid:")
    p(f"""s_add_u32 s27, s22, {XF + LS}
s_add_u32 s28, s22, {YF + LS}
buffer_store_dwordx4 v[{O[0]}:{O[0]+3}], v6, s[8:11], s27 offen {sf}
buffer_store_dwordx4 v[{O[1]}:{O[1]+3}], v7, s[8:11], s27 offen {sf}
buffer_store_dword v{O[2]}, v8, s[8:11], s27 offen {sf}""")
    XS = []
    for r in range(3):
        for i in range(nd[r]):
            p(f"v_lshlrev_b32 v{X+8*r+2*i}, 16, v{O[r]+i}\nv_and_b32 v{X+8*r+2*i+1}, 0xffff0000, v{O[r]+i}")
            XS += [X+8*r+2*i, X+8*r+2*i+1]
    p(f"v_add_f32 v24, v{XS[0]}, v{XS[1]}\nv_add_f32 v26, v{XS[2]}, v{XS[3]}\nv_mul_f32 v25, v{XS[0]}, v{XS[0]}\nv_mul_f32 v27, v{XS[1]}, v{XS[1]}")
    for k, x in enumerate(XS[4:]): p(f"v_add_f32 v{24 + 2*(k%2)}, v{24 + 2*(k%2)}, v{x}")
    for k, x in enumerate(XS[2:]): p(f"v_fmac_f32 v{25 + 2*(k%2)}, v{x}, v{x}")
    p(f"""v_add_f32 v24, v24, v26
v_add_f32 v25, v25, v27
v_permlane32_swap_b32 v24, v25
v_add_f32 v24, v24, v25
v_mov_b32 v25, v24
v_permlane16_swap_b32 v24, v25
v_add_f32 v24, v24, v25
v_add_f32 v24, v24, v24 row_ror:8
v_bfe_u32 v27, v0, 5, 1
v_lshl_add_u32 v27, v4, 1, v27
v_lshlrev_b32 v27, 4, v27
s_lshl_b32 s29, s16, 2
s_add_u32 s29, s29, {LX}
v_add_u32 v27, s29, v27
v_and_b32 v28, 24, v0
v_cmp_eq_u32 vcc, 0, v28
s_and_saveexec_b64 s[30:31], vcc
ds_write_b32 v27, v24
s_mov_b64 exec, s[30:31]
v_lshlrev_b32 v27, 5, v4
v_add_u32 v27, {LX}, v27
s_lshr_b32 s29, s18, 2
s_lshl_b32 s29, s29, 4
s_and_b32 s36, s18, 3
s_add_u32 s29, s29, s36
s_lshl_b32 s29, s29, 7
s_add_u32 s29, s29, {CNT + LS + CDA}""")
    if not we: p(A_MAP); p(A_WS)
    p(f"""s_waitcnt lgkmcnt(0)
s_barrier
ds_read_b128 v[20:23], v27
ds_read_b128 v[28:31], v27 offset:16
v_add_f32 v20, v20, v21
v_add_f32 v22, v22, v23
v_add_f32 v28, v28, v29
v_add_f32 v30, v30, v31
v_add_f32 v20, v20, v22
v_add_f32 v28, v28, v30
v_mul_f32 v20, 0x3ae38e39, v20
v_mul_f32 v28, 0x3ae38e39, v28
v_fma_f32 v28, -v20, v20, v28
v_max_f32 v28, 0, v28
v_add_f32 v28, 0x3727c5ac, v28
v_rsq_f32 v28, v28""")
    for x in XS: p(f"v_sub_f32 v{x}, v{x}, v20")
    for x in XS: p(f"v_mul_f32 v{x}, v{x}, v28")
    for k in range(9): p(f"v_cvt_pk_bf16_f32 v{U+k}, v{XS[2*k]}, v{XS[2*k+1]}")
    p(f"""buffer_store_dwordx4 v[{U}:{U+3}], v6, s[8:11], s28 offen {sf}
buffer_store_dwordx4 v[{U+4}:{U+7}], v7, s[8:11], s28 offen {sf}
buffer_store_dword v{U+8}, v8, s[8:11], s28 offen {sf}""")
    if not we:
        for c in range(9): p.ext(a_wchunk(c))
    p(f"""v_lshlrev_b32 v12, 9, v2
s_waitcnt vmcnt({0 if we else 18})
s_barrier
s_cmp_eq_u32 s16, 0
s_cbranch_scc0 L_da_ns
s_mov_b64 exec, 15
buffer_atomic_add v13, v12, s[8:11], s29 offen
s_mov_b64 exec, -1
L_da_ns:""")
    p(nst('d_end')); nst_dump(p, 'd1')
    if dx: srd(p, 12, 4, WSSZ)
    p(f"s_mov_b32 s63, {LS}\ns_branch L_a1")
    return p.finish()

def main_kernel(a={}, b={}, c={}, d={}, bk=0, side=None, p0=None, hf='sc1', sfl={}, a0={}, p2=None):
    assert NEW
    BK[0] = bk
    HF[0] = hf if p0 is not None else ''
    if p0 is not None: b = dict(b, pbar=True); d = dict(d, p0=True); c = dict(c, wfl=hf)
    if p2 is not None: HF[0] = hf; b = dict(b, x4=True, dx=True, sb=p2.get('s', {})); d = dict(d, p0=True, dx=True); c = dict(c, wfl=hf, f3=True)
    cz = kc.c_kernel(fused=True, dz=True, rev=True, poll=lambda PD: spin('bc', 65, 4, 250, 4, 8, PD), **c)
    p = Prog()
    p("""s_cmp_lt_u32 s2, 256
s_cbranch_scc1 L_m_go
s_endpgm
L_m_go:
s_load_dwordx2 s[4:5], s[0:1], 80
s_load_dwordx4 s[40:43], s[0:1], 56""")
    if side is not None:
        sp = side_parts(**side); p(sp[0]); a = dict(a, side=sp); b = dict(b, allp=True)
    if p0 is not None or p2 is not None: p(kp.KARGS)
    if SC.sel: p(f"s_memrealtime s[{SC.m['t']}:{SC.m['t']+1}]")
    p(f"""v_lshrrev_b32 v1, 6, v0
v_and_b32 v2, 63, v0
v_readfirstlane_b32 s16, v1
v_lshlrev_b32 v3, 4, v2
s_mov_b32 s63, 0
s_mov_b32 s10, {WSSZ}
s_mov_b32 s11, 0x20000""")
    if p0 is None and p2 is None: p("s_waitcnt lgkmcnt(0)\ns_mov_b32 s8, s4\ns_mov_b32 s9, s5")
    NP1 = a.get('NP1', 36)
    if p2 is not None:
        a0 = kq.HEAD + kq.crit(**p2.get('c', {})) + kq.loader(**p2.get('l', {})) + kq.side(**p2.get('s', {})) + "L_a0:\n" + a_part(True, p2=p2.get('s', {}), **dict(a, **a0))
    else:
        a0 = a_part(True, **a) if p0 is None else (kp.HEAD + kp.variant('q', **p0) + kp.variant('o', **p0) + "L_a0w1:\n" + a_part(True, p0=('w1',) + kp.side_fill(False, **sfl) + (kp.side_dmas(False) if p0.get('late', 0) < 0 else [],), **dict(dict(SW=(6, 110)), **a, **a0))
        + kp.variant('w2', **p0) + a_part(True, p0=('w2',) + kp.side_fill(True, **sfl) + (kp.side_dmas(True) if p0.get('late', 0) < 0 else [],), **dict(dict(SW=(6, 110)), **a, **a0)))
    body = p.finish() + a0 + "L_a1:\n" + a_part(False, **a) + "L_ab:\n" + ab_link(NP1)
    body += b_part(5, cz, **b) + "L_b4:\n" + b_part(4, cz, **b) + "L_bc_c:\n" + cz[0] + d_part(**d) + (cz[4] if p2 is not None else '')
    if p0 is not None or p2 is not None:
        return kernel("interleave_layers__linear_attn_block__mixer_channel_mlp__prompt_kernel", body, vgpr=256, agpr=256), "; @launch grid=(256,1,1) block=(256,1,1) lds=163840\n"
    return kernel("main_kernel", body, vgpr=256, agpr=256), "; @launch kernel=main_kernel grid=(256,1,1) block=(256,1,1) lds=163840\n"
```

```python
from asmlib import *
from layout import *
from k0 import srd

PFL = 0x9800000
NLDS = 81920
STG = 90112
WB = WSN*1024
VN = 160

KARGS = """s_load_dwordx8 s[44:51], s[0:1], 0
s_load_dwordx4 s[52:55], s[0:1], 32
s_load_dwordx2 s[56:57], s[0:1], 48
s_load_dwordx2 s[6:7], s[0:1], 72"""

def ln_stats(p, O, X, LX):
    nd = [4, 4, 1]; XS = []
    for r in range(3):
        for i in range(nd[r]):
            p(f"v_lshlrev_b32 v{X+8*r+2*i}, 16, v{O[r]+i}\nv_and_b32 v{X+8*r+2*i+1}, 0xffff0000, v{O[r]+i}")
            XS += [X+8*r+2*i, X+8*r+2*i+1]
    p(f"v_add_f32 v24, v{XS[0]}, v{XS[1]}\nv_add_f32 v26, v{XS[2]}, v{XS[3]}\nv_mul_f32 v25, v{XS[0]}, v{XS[0]}\nv_mul_f32 v27, v{XS[1]}, v{XS[1]}")
    for k, x in enumerate(XS[4:]): p(f"v_add_f32 v{24 + 2*(k%2)}, v{24 + 2*(k%2)}, v{x}")
    for k, x in enumerate(XS[2:]): p(f"v_fmac_f32 v{25 + 2*(k%2)}, v{x}, v{x}")
    p(f"""v_add_f32 v24, v24, v26
v_add_f32 v25, v25, v27
v_permlane32_swap_b32 v24, v25
v_add_f32 v24, v24, v25
v_mov_b32 v25, v24
v_permlane16_swap_b32 v24, v25
v_add_f32 v24, v24, v25
v_add_f32 v24, v24, v24 row_ror:8
v_bfe_u32 v27, v0, 5, 1
v_lshl_add_u32 v27, v4, 1, v27
v_lshlrev_b32 v27, 4, v27
s_lshl_b32 s60, s16, 2
s_add_u32 s60, s60, {LX}
v_add_u32 v27, s60, v27
v_and_b32 v28, 24, v0
v_cmp_eq_u32 vcc, 0, v28
s_and_saveexec_b64 s[64:65], vcc
ds_write_b32 v27, v24
s_mov_b64 exec, s[64:65]
v_lshlrev_b32 v27, 5, v4
v_add_u32 v27, {LX}, v27""")
    return XS

def ln_norm(p, XS, U):
    p("""ds_read_b128 v[20:23], v27
ds_read_b128 v[28:31], v27 offset:16
v_add_f32 v20, v20, v21
v_add_f32 v22, v22, v23
v_add_f32 v28, v28, v29
v_add_f32 v30, v30, v31
v_add_f32 v20, v20, v22
v_add_f32 v28, v28, v30
v_mul_f32 v20, 0x3ae38e39, v20
v_mul_f32 v28, 0x3ae38e39, v28
v_fma_f32 v28, -v20, v20, v28
v_max_f32 v28, 0, v28
v_add_f32 v28, 0x3727c5ac, v28
v_rsq_f32 v28, v28""")
    for x in XS: p(f"v_sub_f32 v{x}, v{x}, v20")
    for x in XS: p(f"v_mul_f32 v{x}, v{x}, v28")
    for k in range(9): p(f"v_cvt_pk_bf16_f32 v{U+k}, v{XS[2*k]}, v{XS[2*k+1]}")

def wq_addr(it, src, dst):
    return f"""s_and_b32 s60, s{it}, 31
s_mul_i32 s60, s60, 36
s_lshr_b32 s61, s{it}, 5
s_mul_i32 s{src}, s61, {16*3456}
s_add_u32 s{src}, s{src}, s60
s_add_u32 s{dst}, s60, s61
s_lshl_b32 s{dst}, s{dst}, 11
s_add_u32 s{dst}, s{dst}, {WQF}"""

VQ, VQ0, VQ1, VS, VT, VO, VOT, VZ, VB, C0, C1, VAG, VCS = range(170, 183)
CSL = NLDS + 512

def variant(kind, sf="sc1", lf="", slf="nt", cf="", late=0, XX=()):
    p = Prog()
    n = "p" + kind
    O, X, U, D = [32, 36, 40], 44, 68, 80
    vq, vq0, vq1, vs, vt, vo, vot, vz, vb, c0, c1, vag = VQ, VQ0, VQ1, VS, VT, VO, VOT, VZ, VB, C0, C1, VAG
    T = 20
    p(f"""s_mul_i32 s19, s16, 18432
s_add_u32 s19, s19, {STG}
s_lshr_b32 s58, s2, 2
s_mul_i32 s58, s58, 36864
s_and_b32 s59, s2, 3
s_lshl_b32 s59, s59, 7
s_add_u32 s58, s58, s59
s_mul_i32 s59, s2, 9216
v_and_b32 v4, 7, v0
v_lshrrev_b32 v5, 3, v0
v_lshlrev_b32 v9, 4, v5
v_lshlrev_b32 v10, 2, v5
v_mul_u32_u24 v16, 1152, v4
v_add_u32 v17, v16, v10
v_add_u32 v16, v16, v9
s_lshl_b32 s62, s2, 2
s_add_u32 s62, s62, s16""")
    p(wq_addr(62, 66, 67))
    p(f"""v_and_b32 v{T}, 3, v2
v_lshrrev_b32 v{T+1}, 2, v2
v_lshrrev_b32 v{T+2}, 5, v2
v_mul_u32_u24 v{vq}, 3456, v{T+1}
v_lshl_add_u32 v{vq}, v{T}, 4, v{vq}
v_mov_b32 v{T+3}, 0x40000000
v_cmp_eq_u32 vcc, 3, v{T}
v_cndmask_b32 v{vq}, v{vq}, v{T+3}, vcc""")
    if kind == 'q':
        p("s_add_u32 s62, s62, 1024"); p(wq_addr(62, 68, 69))
    if kind == 'o':
        p(f"""s_sub_u32 s62, s62, 128
s_sub_u32 s60, s62, 324
s_cmp_lt_u32 s62, 324
s_cselect_b32 s62, s62, s60
s_mul_i32 s60, s62, 1821
s_lshr_b32 s60, s60, 16
s_mul_i32 s61, s60, 36
s_sub_u32 s61, s62, s61
s_mul_i32 s69, s60, 72
s_add_u32 s69, s69, s61
s_lshl_b32 s69, s69, 10
s_add_u32 s69, s69, {WOF}
s_mul_i32 s86, s61, 7282
s_lshr_b32 s86, s86, 16
s_mul_i32 s87, s86, 9
s_sub_u32 s87, s61, s87
s_mul_i32 s68, s86, 144
s_mul_i32 s88, s87, 18
s_cmp_lt_u32 s87, 8
s_cselect_b32 s88, s88, 16
s_cselect_b32 s89, 4, 18
s_cselect_b32 s90, 2, 1
s_cselect_b32 s91, 8, 36
s_cselect_b32 s93, 3, 1
s_mul_i32 s89, s89, 1152
s_sub_u32 s89, s89, 1024
s_mul_i32 s91, s91, 1152
s_add_u32 s68, s68, s88
s_mul_i32 s68, s68, 1152
s_lshl_b32 s60, s60, 7
s_add_u32 s68, s68, s60
v_and_b32 v{T+3}, 7, v{T+1}
v_lshrrev_b32 v{T+4}, s90, v{T+3}
v_mul_u32_u24 v{vo}, s91, v{T+4}
v_and_b32 v{T+3}, s93, v{T+3}
v_mul_u32_u24 v{T+3}, 1152, v{T+3}
v_add_u32 v{vo}, v{vo}, v{T+3}
v_lshl_add_u32 v{vo}, v{T+2}, 6, v{vo}
v_lshl_add_u32 v{vo}, v{T}, 4, v{vo}""")
    RS = 1152 if kind == 'w2' else 9216
    p(f"""v_and_b32 v{T+3}, 7, v{T+1}
v_mul_u32_u24 v{vs}, {RS}, v{T+3}
v_lshl_add_u32 v{vs}, v{T+2}, 6, v{vs}
v_lshl_add_u32 v{vs}, v{T}, 4, v{vs}""")
    if kind != 'w2':
        p(f"""s_and_b32 s3, s2, 3
s_lshr_b32 s100, s2, 2
s_lshl_b32 s100, s100, 1
s_lshr_b32 s60, s16, 1
s_add_u32 s100, s100, s60
s_mul_i32 s17, s100, 7282
s_lshr_b32 s17, s17, 16
s_mul_i32 s18, s17, 9
s_sub_u32 s18, s100, s18
s_mul_i32 s101, s3, 9
s_and_b32 s60, s16, 1
s_lshl_b32 s60, s60, 2
s_add_u32 s101, s101, s60
s_mul_i32 s87, s101, {16*9216}
s_lshl_b32 s100, s100, 7
s_add_u32 s87, s87, s100""")
    else:
        p(f"""s_sub_u32 s60, s18, 18
s_lshl_b32 s60, s60, 2
s_add_u32 s60, s60, s16
s_min_u32 s60, s60, 53
s_mul_i32 s88, s60, 7282
s_lshr_b32 s88, s88, 16
s_mul_i32 s61, s88, 9
s_sub_u32 s86, s60, s61
s_mul_i32 s87, s17, 36
s_mul_i32 s61, s88, 6
s_add_u32 s87, s87, s61
s_mul_i32 s87, s87, {16*1152}
s_lshl_b32 s61, s86, 7
s_add_u32 s87, s87, s61""")
    p(nst('p_0'))
    p("s_waitcnt lgkmcnt(0)\ns_mov_b32 s8, s4\ns_mov_b32 s9, s5")
    p(nst('p_ka'))
    srd(p, 12, 44, ACT); srd(p, 20, 46, 576*1728*2)
    p(f"""buffer_load_dwordx4 v[{O[0]}:{O[0]+3}], v16, s[12:15], s59 offen {lf}
buffer_load_dwordx4 v[{O[1]}:{O[1]+3}], v16, s[12:15], s59 offen offset:512 {lf}
buffer_load_dword v{O[2]}, v17, s[12:15], s59 offen offset:1024 {lf}
s_mov_b32 m0, s19""")
    def wq_dma(src, tag):
        for u in range(3):
            p(f"buffer_load_dwordx4 v{vq}, s[20:23], s{src} offen offset:{u*1024} {cf} lds", tag=tag)
            if u < 2: p(f"s_add_u32 s{src}, s{src}, 128")
    wq_dma(66, 'q0')
    if kind == 'q':
        p("s_add_u32 m0, s19, 3072"); wq_dma(68, 'q1')
    if kind == 'o':
        srd(p, 24, 48, 576*576*2)
        p("s_add_u32 m0, s19, 3072")
        p(f"buffer_load_dwordx4 v{vo}, s[24:27], s68 offen {cf} lds", tag='o')
        p("s_add_u32 s68, s68, s89")
        p(f"buffer_load_dwordx4 v{vo}, s[24:27], s68 offen offset:1024 {cf} lds", tag='o')
    p(nst('p_q'))
    srd(p, 36, 6, 256)
    srd(p, 12 if late < 0 else 28, 56 if kind == 'w2' else 52, 576*4608*2)
    if kind != 'w2': srd(p, 32, 54, 4608*2)
    p(f"""s_or_b32 s60, s2, s16
s_cmp_eq_u32 s60, 0
s_cbranch_scc0 L_{n}_nt
s_memrealtime s[60:61]
v_mov_b32 v{T+3}, 0
s_waitcnt lgkmcnt(0)
s_or_b32 s60, s60, 1
v_mov_b32 v{T+4}, s60
s_mov_b64 exec, 1
buffer_store_dword v{T+4}, v{T+3}, s[36:39], 0 offen sc1 ; @
s_mov_b64 exec, -1
L_{n}_nt:""")
    ND = 12 if kind == 'w2' else 10
    def side_dma(i0, i1):
        for i in range(i0, i1):
            if i % 4 == 0 or i == i0: p(f"s_add_u32 m0, s19, {6144 + (i//4)*4096}")
            p(f"buffer_load_dwordx4 v{vs}, s[28:31], s87 offen offset:{(i%4)*1024} {slf} lds")
            if i < ND - 1: p(f"s_add_u32 s87, s87, {8*RS - 1024 if i % 4 < 3 else 8*RS + 3072}")
        if i1 == ND: p(nst('p_sd'))
    p(f"""v_and_b32 v{vz}, 15, v2
v_lshlrev_b32 v{vz}, 4, v{vz}
v_bfe_u32 v{T+3}, v2, 4, 1
v_lshl_add_u32 v{vz}, v{T+3}, {LS.bit_length() - 1}, v{vz}
s_lshl_b32 s60, s2, 10
s_lshl_b32 s61, s16, 8
s_add_u32 s60, s60, s61
s_add_u32 s60, s60, {ZR}
v_mov_b32 v28, 0
v_mov_b32 v29, 0
v_mov_b32 v30, 0
v_mov_b32 v31, 0
s_mov_b32 exec_hi, 0
buffer_store_dwordx4 v[28:31], v{vz}, s[8:11], s60 offen {sf}
s_mov_b64 exec, -1""")
    if kind != 'w2': p(f"v_lshlrev_b32 v{vb}, 1, v2\nbuffer_load_ushort v{vb}, v{vb}, s[32:35], s100 offen")
    if late >= 0: side_dma(0, ND - late)
    else: p('s_mov_b32 s55, s87\ns_add_u32 s48, s19, 6144')
    p(f"""v_lshlrev_b32 v6, 9, v5
v_lshl_add_u32 v6, v4, 4, v6
v_add_u32 v7, 16384, v6
v_lshrrev_b32 v8, 2, v5
v_lshlrev_b32 v8, 9, v8
v_lshl_add_u32 v8, v4, 4, v8
v_and_b32 v9, 3, v5
v_lshl_add_u32 v8, v9, 2, v8
v_add_u32 v8, 32768, v8
s_add_u32 s59, s58, {YF}
s_add_u32 s58, s58, {XF}
v_bfe_u32 v{T+3}, v2, 4, 1
v_lshl_add_u32 v{T+3}, v{T+3}, 2, v{T}
v_and_b32 v{T+1}, 3, v{T+1}
v_lshlrev_b32 v{T+1}, 6, v{T+1}
v_add_u32 v{T+1}, s19, v{T+1}
v_lshlrev_b32 v{T+4}, 3, v{T+3}
v_add_u32 v{vt}, v{T+1}, v{T+4}
v_lshl_add_u32 v{vt}, v{T+2}, {8 if kind == 'w2' else 10}, v{vt}
v_add_u32 v{vq0}, 1024, v{T+4}
v_subrev_u32 v{T+5}, 40, v{T+4}
v_cmp_gt_u32 vcc, 5, v{T+3}
v_cndmask_b32 v{vq0}, v{T+5}, v{vq0}, vcc
v_mov_b32 v{T+5}, 32
v_cmp_eq_u32 vcc, 7, v{T+3}
v_cndmask_b32 v{vq0}, v{vq0}, v{T+5}, vcc
v_add_u32 v{vq1}, 2048, v{T+4}
v_subrev_u32 v{T+5}, 32, v{T+4}
v_cmp_gt_u32 vcc, 6, v{T+3}
v_cndmask_b32 v{vq1}, v{T+5}, v{vq1}, vcc
v_lshl_add_u32 v{T+5}, v{T+2}, 9, v{T+1}
v_add_u32 v{vq0}, v{vq0}, v{T+5}
v_add_u32 v{vq1}, v{vq1}, v{T+5}""")
    if kind == 'o':
        p(f"""v_lshrrev_b32 v{vot}, 1, v{T+3}
v_add_u32 v{vot}, s86, v{vot}
v_and_b32 v{vot}, 3, v{vot}
v_lshlrev_b32 v{vot}, 4, v{vot}
v_and_b32 v{T+4}, 1, v{T+3}
v_lshl_add_u32 v{vot}, v{T+4}, 3, v{vot}
v_add_u32 v{vot}, v{vot}, v{T+1}
v_lshl_add_u32 v{vot}, v{T+2}, 10, v{vot}""")
    p(nst('p_iss'))
    p(f"""buffer_store_dwordx4 v[{O[0]}:{O[0]+3}], v6, s[8:11], s58 offen {sf}
buffer_store_dwordx4 v[{O[1]}:{O[1]+3}], v7, s[8:11], s58 offen {sf}
buffer_store_dword v{O[2]}, v8, s[8:11], s58 offen {sf}""")
    p(nst('p_x'))
    XS = ln_stats(p, O, X, NLDS + 128)
    def wq_tr(off, d, tag):
        for t in range(2):
            for h in range(2):
                p(f"ds_read_b64_tr_b16 v[{d+4*t+2*h}:{d+4*t+2*h+1}], v{(vq0, vq1)[t]} offset:{off + h*256}", needs=[tag])
    def wq_st(d, dst):
        for t in range(2): p(f"buffer_store_dwordx4 v[{d+4*t}:{d+4*t+3}], v3, s[8:11], s{dst} offen offset:{t*1024} {sf}")
    p("s_waitcnt lgkmcnt(0)\ns_barrier")
    wq_tr(0, D, 'q0')
    if kind == 'q': wq_tr(3072, D + 8, 'q1')
    if kind == 'o':
        for t in range(2):
            for h in range(2): p(f"ds_read_b64_tr_b16 v[{D+8+4*t+2*h}:{D+9+4*t+2*h}], v{vot} offset:{3072 + t*512 + h*256}", needs=['o'])
    ln_norm(p, XS, U)
    wq_st(D, 67)
    if kind == 'q': wq_st(D + 8, 69)
    if kind == 'o': p(f"buffer_store_dwordx4 v[{D+8}:{D+11}], v3, s[8:11], s69 offen {sf}\ns_add_u32 s69, s69, {36*1024}\nbuffer_store_dwordx4 v[{D+12}:{D+15}], v3, s[8:11], s69 offen {sf}")
    p(f"""buffer_store_dwordx4 v[{U}:{U+3}], v6, s[8:11], s59 offen {sf}
buffer_store_dwordx4 v[{U+4}:{U+7}], v7, s[8:11], s59 offen {sf}
buffer_store_dword v{U+8}, v8, s[8:11], s59 offen {sf}""")
    p(nst('p_st'))
    p(f"""v_mov_b32 v20, 0
v_lshlrev_b32 v21, 10, v2
s_mov_b32 s49, 0x40000
s_cmp_eq_u32 s16, 0
s_cbranch_scc0 L_{n}_t0
buffer_load_dword v{VN}, v20, s[36:39], 0 offen sc1 ; @
L_{n}_t0:""")
    p(f"""s_lshl_b32 s60, s2, 2
s_add_u32 s60, s60, {PFL}
s_waitcnt vmcnt(0)
s_cmp_eq_u32 s16, 0
s_cbranch_scc0 L_{n}_w
L_{n}_tg:
v_readfirstlane_b32 s61, v{VN}
s_sub_u32 s49, s49, 1
s_cmp_eq_u32 s49, 0
s_cbranch_scc1 L_{n}_tk
s_cmp_eq_u32 s61, 0
s_cbranch_scc0 L_{n}_tk
buffer_load_dword v{VN}, v20, s[36:39], 0 offen sc1 ; @
s_waitcnt vmcnt(0) ; @
s_branch L_{n}_tg
L_{n}_tk:
L_{n}_w:
s_barrier
s_cmp_eq_u32 s16, 0
s_cbranch_scc0 L_{n}_ns
s_mov_b64 exec, 0xff
buffer_store_dword v{VN}, v21, s[8:11], s60 offen sc1 ; @
s_mov_b64 exec, -1
L_{n}_ns:""")
    p(nst('p_sig'))
    if late > 0: side_dma(ND - late, ND)
    if kind != 'w2':
        p(f"""s_lshr_b32 s62, s18, 1
s_and_b32 s87, s18, 1
s_lshl_b32 s87, s87, 1
s_lshl_b32 s88, s17, 2
s_add_u32 s87, s87, s88
s_mul_i32 s87, s87, {WB}
s_add_u32 s87, s87, {WSTR}
s_add_u32 s88, s62, 91
s_add_u32 s89, s62, 90
s_add_u32 s96, s62, 163
s_cmp_lt_u32 s18, 4
s_cselect_b32 s60, 5, 4
s_cselect_b32 s61, 3, 2
s_cselect_b32 s62, s62, s88
s_cselect_b32 s96, s89, s96
s_lshl_b32 s61, s61, 10
s_sub_u32 s99, 0, s61
s_cmp_eq_u32 s18, 8
s_cselect_b32 s60, 5, s60
s_cselect_b32 s86, 0, s61
s_cselect_b32 s61, {WB}, s61
s_cselect_b32 s99, s61, s99
s_cselect_b32 s62, 2, s62
s_cselect_b32 s96, 92, s96
s_cselect_b32 s97, {WB}, 0
s_add_u32 s98, s97, {WB}
v_lshrrev_b32 v{T+2}, 5, v2
v_mul_u32_u24 v{T+2}, s98, v{T+2}
v_and_b32 v{vag}, 31, v2
v_lshl_add_u32 v{vag}, v{vag}, 4, v{T+2}
s_add_u32 s86, s86, s98
s_lshl_b32 s60, s60, 10
s_lshl_b32 s96, s96, 10
s_add_u32 s96, s96, s87
s_lshr_b32 s88, s3, 1
s_lshl_b32 s88, s88, 9
s_add_u32 s96, s96, s88
s_and_b32 s88, s3, 1
s_lshl_b32 s88, s88, 3
s_add_u32 s96, s96, s88
s_add_u32 s97, s97, s96
s_lshl_b32 s62, s62, 10
s_add_u32 s87, s87, s62
s_lshr_b32 s62, s101, 1
s_mul_i32 s62, s62, s60
s_add_u32 s87, s87, s62
s_add_u32 s86, s86, s87
s_and_b32 s101, s101, 1
s_mul_i32 s62, s101, s61
s_add_u32 s87, s87, s62
s_mul_i32 s62, s101, s99
s_add_u32 s86, s86, s62
s_sub_u32 s62, s60, s61
s_sub_u32 s60, s60, s99
s_cmp_eq_u32 s101, 0
s_cselect_b32 s88, s61, s62
s_cselect_b32 s89, s62, s61
s_cselect_b32 s90, s99, s60
s_cselect_b32 s91, s60, s99
s_cmp_lt_u32 s3, 2
s_cselect_b32 s93, 0xffff, 0
s_bitcmp1_b32 s16, 0
s_cselect_b32 s98, 0, 0x3f803f80
v_mov_b32 v{c0}, 0
v_mov_b32 v{c1}, 0
v_lshlrev_b32 v{VCS}, 2, v0
v_add_u32 v{VCS}, {CSL}, v{VCS}""")
    else:
        p(f"""s_and_b32 s87, s86, 1
s_lshl_b32 s87, s87, 1
s_lshl_b32 s60, s17, 2
s_add_u32 s87, s87, s60
s_mul_i32 s87, s87, {WB}
s_add_u32 s87, s87, {WSTR}
s_lshr_b32 s89, s86, 1
s_add_u32 s91, s89, 1
s_and_b32 s91, s91, 3
s_lshl_b32 s91, s91, 4
s_add_u32 s91, s91, 265
s_cmp_eq_u32 s86, 8
s_cselect_b32 s90, 2, 1
s_cselect_b32 s91, 257, s91
s_cselect_b32 s93, 0, 1
s_mul_i32 s90, s90, {WB}
s_mul_i32 s88, s88, 3""")
    if kind == 'q': p("s_branch L_a0w1")
    if 'nob' in XX: p.ins = [i for i in p.ins if i.op != 'buffer_load_ushort']
    if 'nol' in XX: p.ins = [i for i in p.ins if i.tag not in ('q1', 'o')]
    if 'nos' in XX: p.ins = [i for i in p.ins if not (i.op == 'buffer_store_dwordx4' and 's69' in i.r)]
    if 'noz' in XX: p.ins = [i for i in p.ins if not (i.op == 'buffer_store_dwordx4' and 'v28' in i.r)]
    if 'nox' in XX: p.ins = [i for i in p.ins if not (i.op.startswith('buffer_store') and 's58' in i.r)]
    return f"L_{n}:\n" + p.finish()

def side_dmas(w2, slf="nt"):
    ND = 12 if w2 else 10; RS = 1152 if w2 else 9216
    L = []
    for i in range(ND):
        g = [f"s_add_u32 m0, s48, {i*1024}", I(f"buffer_load_dwordx4 v{VS}, s[12:15], s55 offen {slf} lds", tag=f"sd{i//2}")]
        if i < ND - 1: g.append(f"s_add_u32 s55, s55, {8*RS}")
        L.append(g)
    return L

def side_fill(w2, sf="sc1", LA=2, **kw):
    E = 184; NR = 4
    rd, st = [], []
    k = 0
    for b in range(6 if w2 else 5):
        for t in range(2):
            d = E + 4*(k % NR); k += 1
            rd.append([I(f"ds_read_b64_tr_b16 v[{d+2*h}:{d+2*h+1}], v{VT} offset:{6144 + b*2048 + t*512 + h*(1024 if w2 else 256)}", needs=[f"sd{b}"]) for h in range(2)])
            stf = lambda sr: f"buffer_store_dwordx4 v[{d}:{d+3}], v3, s[8:11], s{sr} offen {sf}"
            if w2:
                pre = []
                if b % 2 == 0 and t == 0:
                    pre = f"""s_sub_u32 s60, s88, 8
s_cmp_lt_u32 s88, 8
s_cselect_b32 s96, s88, s60
s_mul_i32 s96, s96, 9
s_add_u32 s96, s96, 167
s_add_u32 s96, s96, s89
s_lshl_b32 s61, s60, s93
s_add_u32 s61, s61, s91
s_cmp_lt_u32 s60, 8
s_cselect_b32 s96, s61, s96
s_cselect_b32 s97, 1, 5
s_lshl_b32 s97, s97, 10
s_cmp_eq_u32 s93, 0
s_cselect_b32 s97, {WB}, s97
s_cselect_b32 s98, 0, s97
s_lshl_b32 s96, s96, 10
s_add_u32 s96, s96, s87
s_add_u32 s99, s96, s97
s_add_u32 s100, s96, s90
s_add_u32 s101, s100, s97
s_sub_u32 s101, s101, s98
s_add_u32 s100, s100, s98
s_add_u32 s88, s88, 1""".split("\n")
                st.append(pre + [stf(((96, 100), (99, 101))[b % 2][t])])
            else:
                sr = (87, 86)[t]
                st.append([stf(sr)] + ([f"s_add_u32 s{sr}, s{sr}, s{88 + 2*t + b % 2}"] if b < 4 else []) +
                          [f"v_dot2c_f32_bf16 v{(C0, C1)[t]}, {'s98' if b == 0 else 'v8'}, v{d+q}" for q in range(4)])
    work = []
    for x in rd[:LA]: work += x
    for i, x in enumerate(st):
        work += x
        if i + LA < len(rd): work += rd[i + LA]
    fin = []
    if not w2:
        work += [f"v_permlane32_swap_b32 v{C0}, v{C1}", f"v_add_f32 v{C0}, v{C0}, v{C1}", I(f"ds_write_b32 v{VCS}, v{C0}", tag='scs'),
                 f"v_xor_b32 v{VCS}, 256, v{VCS}"]
        fin = f"""ds_read_b32 v{C1}, v{VCS}
v_add_f32 v{C0}, v{C0}, v{C1}
v_cvt_pk_bf16_f32 v{E}, v{C0}, v{C0}
v_and_b32 v{C1}, 0xffff0000, v{E}
v_sub_f32 v{C1}, v{C0}, v{C1}
v_cvt_pk_bf16_f32 v{E+1}, v{C1}, 0
v_and_b32 v{VB}, s93, v{VB}
v_lshl_or_b32 v{E+1}, v{VB}, 16, v{E+1}
buffer_store_dwordx2 v[{E}:{E+1}], v{VAG}, s[8:11], s96 offen {sf}
buffer_store_dwordx2 v[{E}:{E+1}], v{VAG}, s[8:11], s97 offen {sf}""".split("\n")
    return atomize(work), fin

def poll(tag, sreg, vd, loop=True):
    chk = f"""v_xor_b32 v{vd}, v{vd}, v{VN}
v_xor_b32 v{vd+1}, v{vd+1}, v{VN}
v_xor_b32 v{vd+2}, v{vd+2}, v{VN}
v_xor_b32 v{vd+3}, v{vd+3}, v{VN}
v_or3_b32 v{vd}, v{vd}, v{vd+1}, v{vd+2}
v_or_b32 v{vd}, v{vd}, v{vd+3}
v_cmp_ne_u32 vcc, 0, v{vd}"""
    if not loop: return chk
    return f"""L_{tag}_poll:
buffer_load_dwordx4 v[{vd}:{vd+3}], v3, s[8:11], s{sreg} offen sc1 ; @
s_waitcnt vmcnt(0) ; @
{chk}
s_nop 4
s_cbranch_vccz L_{tag}_go
s_sub_u32 s49, s49, 1
s_cmp_eq_u32 s49, 0
s_cbranch_scc0 L_{tag}_poll
"""

HEAD = """  s_and_b32 s17, s2, 7
  s_lshr_b32 s18, s2, 3
  s_cmp_lt_u32 s18, 18
  s_cbranch_scc0 L_pw2
  s_cmp_lt_u32 s18, 4
  s_cbranch_scc0 L_po
"""
```

```python
from asmlib import *
from layout import *
from k0 import srd

PFL = 0x9800000
FL1 = PFL + 0x4000
LX  = 81920
LC  = LX + 256
CSL = LX + 512
STG = 90112
WB  = WSN*1024
VN  = 160
VS, VT, VO, VOT, VB, C0, C1, VAG, VCS, VONE = range(170, 180)
E   = 184

KARGS = """s_load_dwordx8 s[44:51], s[0:1], 0
s_load_dwordx4 s[52:55], s[0:1], 32
s_load_dwordx2 s[56:57], s[0:1], 48
s_load_dwordx2 s[6:7], s[0:1], 72"""

def off(L):
    return "\n".join(l + " ; @" if l.strip() and not l.strip().endswith(':') else l for l in L.split("\n"))

def wo_idx(i):
    return f"""s_mul_i32 s60, s{i}, 1821
s_lshr_b32 s60, s60, 16
s_mul_i32 s61, s60, 36
s_sub_u32 s61, s{i}, s61
s_mul_i32 s64, s61, 7282
s_lshr_b32 s64, s64, 16
s_mul_i32 s65, s64, 9
s_sub_u32 s65, s61, s65"""

def setup_w1(T):
    return f"""s_and_b32 s67, s2, 3
s_lshr_b32 s100, s2, 2
s_lshl_b32 s100, s100, 1
s_cmp_eq_u32 s16, 3
s_cselect_b32 s60, 1, 0
s_cselect_b32 s68, 9, 0
s_add_u32 s100, s100, s60
s_mul_i32 s58, s100, 7282
s_lshr_b32 s58, s58, 16
s_mul_i32 s59, s58, 9
s_sub_u32 s59, s100, s59
s_mul_i32 s101, s67, 9
s_cmp_eq_u32 s16, 2
s_cselect_b32 s60, 5, 0
s_add_u32 s101, s101, s60
s_add_u32 s68, s68, s60
s_lshl_b32 s68, s68, 11
s_add_u32 s68, s68, {STG + 6144}
s_lshr_b32 s62, s59, 1
s_and_b32 s87, s59, 1
s_lshl_b32 s87, s87, 1
s_lshl_b32 s88, s58, 2
s_add_u32 s87, s87, s88
s_mul_i32 s87, s87, {WB}
s_add_u32 s87, s87, {WSTR}
s_add_u32 s88, s62, 91
s_add_u32 s89, s62, 90
s_add_u32 s96, s62, 163
s_cmp_lt_u32 s59, 4
s_cselect_b32 s60, 5, 4
s_cselect_b32 s61, 3, 2
s_cselect_b32 s62, s62, s88
s_cselect_b32 s96, s89, s96
s_lshl_b32 s61, s61, 10
s_sub_u32 s99, 0, s61
s_cmp_eq_u32 s59, 8
s_cselect_b32 s60, 5, s60
s_cselect_b32 s86, 0, s61
s_cselect_b32 s61, {WB}, s61
s_cselect_b32 s99, s61, s99
s_cselect_b32 s62, 2, s62
s_cselect_b32 s96, 92, s96
s_cselect_b32 s97, {WB}, 0
s_add_u32 s98, s97, {WB}
v_lshrrev_b32 v{T+2}, 5, v2
v_mul_u32_u24 v{T+3}, s98, v{T+2}
v_and_b32 v{VAG}, 31, v2
v_lshl_add_u32 v{VAG}, v{VAG}, 4, v{T+3}
s_add_u32 s86, s86, s98
s_lshl_b32 s60, s60, 10
s_lshl_b32 s96, s96, 10
s_add_u32 s96, s96, s87
s_lshr_b32 s88, s67, 1
s_lshl_b32 s88, s88, 9
s_add_u32 s96, s96, s88
s_and_b32 s88, s67, 1
s_lshl_b32 s88, s88, 3
s_add_u32 s96, s96, s88
s_add_u32 s97, s97, s96
s_lshl_b32 s62, s62, 10
s_add_u32 s87, s87, s62
s_lshr_b32 s62, s101, 1
s_mul_i32 s62, s62, s60
s_add_u32 s87, s87, s62
s_add_u32 s86, s86, s87
s_and_b32 s101, s101, 1
s_mul_i32 s62, s101, s61
s_add_u32 s87, s87, s62
s_mul_i32 s62, s101, s99
s_add_u32 s86, s86, s62
s_sub_u32 s62, s60, s61
s_sub_u32 s60, s60, s99
s_cmp_eq_u32 s101, 0
s_cselect_b32 s88, s61, s62
s_cselect_b32 s89, s62, s61
s_cselect_b32 s90, s99, s60
s_cselect_b32 s91, s60, s99
s_cmp_lt_u32 s67, 2
s_cselect_b32 s93, 0xffff, 0
v_mov_b32 v{C0}, 0
v_mov_b32 v{C1}, 0
v_mov_b32 v{VONE}, 0x3f803f80
v_lshlrev_b32 v{VCS}, 2, v2
v_add_u32 v{VCS}, {CSL}, v{VCS}
v_and_b32 v{T}, 3, v2
v_bfe_u32 v{T+4}, v2, 4, 1
v_lshl_add_u32 v{T+4}, v{T+4}, 2, v{T}
v_bfe_u32 v{T+5}, v2, 2, 2
v_lshlrev_b32 v{T+5}, 6, v{T+5}
v_lshl_add_u32 v{T+5}, v{T+2}, 10, v{T+5}
v_lshl_add_u32 v{VT}, v{T+4}, 3, v{T+5}
v_add_u32 v{VT}, s68, v{VT}
s_mul_i32 s62, s2, 3
s_add_u32 s62, s62, s16
s_sub_u32 s62, s62, 1
{wo_idx(62)}
s_mul_i32 s69, s60, 72
s_add_u32 s69, s69, s61
s_lshl_b32 s69, s69, 10
s_add_u32 s69, s69, {WOF}
s_lshl_b32 s60, s16, 11
s_add_u32 s60, s60, {STG - 2048}
v_lshrrev_b32 v{VOT}, 1, v{T+4}
v_add_u32 v{VOT}, s64, v{VOT}
v_and_b32 v{VOT}, 3, v{VOT}
v_lshlrev_b32 v{VOT}, 4, v{VOT}
v_and_b32 v{T+3}, 1, v{T+4}
v_lshl_add_u32 v{VOT}, v{T+3}, 3, v{VOT}
v_add3_u32 v{VOT}, v{VOT}, v{T+5}, s60"""

def bias(cb):
    return f"""s_mov_b32 s44, s54
s_mov_b32 s45, s55
s_mov_b32 s46, {4608*2}
s_mov_b32 s47, 0x20000
s_lshr_b32 s61, s2, 2
s_lshl_b32 s61, s61, 8
v_lshlrev_b32 v{VB}, 1, v2
buffer_load_ushort v{VB}, v{VB}, s[44:47], s61 offen offset:{cb*128}"""

def w2_idx(w):
    return f"""s_lshr_b32 s60, s2, 3
s_sub_u32 s60, s60, 18
s_lshl_b32 s60, s60, 2
s_add_u32 s60, s60, {w}
s_min_u32 s60, s60, 53
s_mul_i32 s88, s60, 7282
s_lshr_b32 s88, s88, 16
s_mul_i32 s61, s88, 9
s_sub_u32 s86, s60, s61"""

def lspin(tag, va, cmp, val, out, vd=20, o=0):
    return "s_mov_b32 s49, 0x400000\n" + off(f"""L_{tag}:
ds_read_b32 v{vd}, v{va} offset:{o}
s_waitcnt lgkmcnt(0)
v_readfirstlane_b32 s60, v{vd}
s_sub_u32 s49, s49, 1
s_cmp_eq_u32 s49, 0
s_cbranch_scc1 {out}
s_cmp_{cmp}_u32 s60, {val}
s_cbranch_scc1 L_{tag}""")

def crit(sf="sc1", lf="", cf="", wql=False, XX=()):
    p = Prog()
    O, X, U, D, T = 32, 44, 68, 80, 20
    vx, vy, vq, vq2, va, vb, vw, vf = 4, 5, 6, 7, 8, 9, 10, 11
    p(f"""L_pc:
v_and_b32 v12, 7, v2
v_lshrrev_b32 v13, 3, v2
v_mul_u32_u24 v{vx}, 1152, v12
v_lshl_add_u32 v{vx}, v13, 4, v{vx}
s_mul_i32 s59, s2, 9216
s_mul_i32 s60, s16, 384
s_add_u32 s59, s59, s60
s_and_b32 s64, s2, 7
s_lshl_b32 s64, s64, 2
s_bfe_u32 s60, s2, 0x20003
s_add_u32 s64, s64, s60
s_lshr_b32 s65, s2, 5
s_mul_i32 s66, s65, 3
s_add_u32 s66, s66, s16
s_mul_i32 s67, s66, 3
s_mul_i32 s66, s66, {24*3456}
s_mul_i32 s60, s64, 36
s_add_u32 s66, s66, s60
s_mul_i32 s19, s16, 5120
v_and_b32 v{T}, 3, v2
v_lshrrev_b32 v{T+1}, 2, v2
v_lshrrev_b32 v{T+2}, 5, v2
v_mul_u32_u24 v{vq}, 3456, v{T+1}
v_lshl_add_u32 v{vq}, v{T}, 4, v{vq}
v_mul_u32_u24 v{vq2}, {8*3456 - 1152}, v{T+2}
v_sub_u32 v{vq2}, v{vq}, v{vq2}
v_mov_b32 v{T+3}, 0x40000000
v_cmp_eq_u32 vcc, 3, v{T}
v_cndmask_b32 v{vq}, v{vq}, v{T+3}, vcc
v_cndmask_b32 v{vq2}, v{vq2}, v{T+3}, vcc""")
    p(nst('p_0'))
    p("s_waitcnt lgkmcnt(0)\ns_mov_b32 s8, s4\ns_mov_b32 s9, s5")
    p(nst('p_ka'))
    srd(p, 12, 44, ACT); srd(p, 20, 46, 576*1728*2)
    for i in range(3): p(f"buffer_load_dwordx4 v[{O+4*i}:{O+4*i+3}], v{vx}, s[12:15], s59 offen offset:{i*128} {lf}")
    p("s_mov_b32 m0, s19")
    for u in range(3):
        p(f"buffer_load_dwordx4 v{vq}, s[20:23], s66 offen offset:{u*1024} {cf} lds", tag='q0')
        p(f"s_add_u32 s66, s66, {128 if u < 2 else 16*3456 - 256 - 3072}")
    p(f"buffer_load_dwordx4 v{vq2}, s[20:23], s66 offen offset:3072 {cf} lds", tag='q1')
    p(f"s_add_u32 m0, s19, 4096\ns_add_u32 s66, s66, {2304 + 3072}\ns_mov_b32 exec_hi, 0")
    p(f"buffer_load_dwordx4 v{vq2}, s[20:23], s66 offen {cf} lds", tag='q1')
    p("s_mov_b64 exec, -1\ns_barrier")
    srd(p, 36, 6, 256)
    p(f"""s_or_b32 s60, s2, s16
s_cmp_eq_u32 s60, 0
s_cbranch_scc0 L_pc_nt
s_memrealtime s[60:61]
v_mov_b32 v{T+3}, 0
s_waitcnt lgkmcnt(0)
s_or_b32 s60, s60, 1
v_mov_b32 v{T+4}, s60
s_mov_b64 exec, 1
buffer_store_dword v{T+4}, v{T+3}, s[36:39], 0 offen sc1 ; @
s_mov_b64 exec, -1
L_pc_nt:""")
    p(nst('p_q'))
    p(bias(0))
    p(f"""v_lshlrev_b32 v{vy}, 9, v13
v_lshl_add_u32 v{vy}, v12, 4, v{vy}
s_lshr_b32 s58, s2, 2
s_mul_i32 s58, s58, 36864
s_and_b32 s59, s2, 3
s_lshl_b32 s59, s59, 7
s_add_u32 s58, s58, s59
s_mul_i32 s59, s16, 12288
s_add_u32 s24, s58, s59
s_add_u32 s24, s24, {YF}
s_add_u32 s25, s24, 4096
s_add_u32 s26, s24, 8192
s_mul_i32 s27, s64, 73728
s_add_u32 s27, s27, {WQF}""")
    for k in range(3):
        p(f"""s_add_u32 s60, s67, {k}
s_lshr_b32 s61, s60, 1
s_lshl_b32 s61, s61, 11
s_and_b32 s60, s60, 1
s_lshl_b32 s60, s60, 9
s_add_u32 s61, s61, s60
s_add_u32 s{28+k}, s27, s61""")
    p(f"""s_lshl_b32 s31, s64, 7
s_lshl_b32 s60, s65, 4
s_add_u32 s31, s31, s60
s_lshl_b32 s32, s2, 4
s_add_u32 s31, s31, 4096
s_sub_u32 s31, s31, s32
s_add_u32 s32, s32, {FL1}
v_mul_u32_u24 v{vf}, s31, v2
v_and_b32 v{vw}, 31, v2
v_lshlrev_b32 v{vw}, 4, v{vw}
v_lshl_add_u32 v{vw}, v{T+2}, 10, v{vw}
v_bfe_u32 v{T+3}, v2, 4, 1
v_lshl_add_u32 v{T+3}, v{T+3}, 2, v{T}
v_lshlrev_b32 v{T+4}, 3, v{T+3}
v_add_u32 v{va}, 1024, v{T+4}
v_subrev_u32 v{T+5}, 40, v{T+4}
v_cmp_gt_u32 vcc, 5, v{T+3}
v_cndmask_b32 v{va}, v{T+5}, v{va}, vcc
v_mov_b32 v{T+5}, 32
v_cmp_eq_u32 vcc, 7, v{T+3}
v_cndmask_b32 v{va}, v{va}, v{T+5}, vcc
v_add_u32 v{vb}, 2048, v{T+4}
v_subrev_u32 v{T+5}, 32, v{T+4}
v_cmp_gt_u32 vcc, 6, v{T+3}
v_cndmask_b32 v{vb}, v{T+5}, v{vb}, vcc
v_cmp_lt_u32 vcc, 31, v2
v_cndmask_b32 v{va}, v{va}, v{vb}, vcc
v_lshrrev_b32 v{vb}, 10, v{va}
v_lshlrev_b32 v{vb}, 9, v{vb}
v_sub_u32 v{vb}, v{va}, v{vb}
v_and_b32 v{T+1}, 3, v{T+1}
v_lshlrev_b32 v{T+1}, 6, v{T+1}
v_add_u32 v{T+1}, s19, v{T+1}
v_add_u32 v{va}, v{va}, v{T+1}
v_add_u32 v{vb}, v{vb}, v{T+1}
v_bfe_u32 v14, v2, 5, 1
v_lshl_add_u32 v14, v12, 1, v14
v_lshlrev_b32 v14, 4, v14
s_lshl_b32 s60, s16, 2
s_add_u32 s60, s60, {LX}
v_add_u32 v14, s60, v14
v_lshlrev_b32 v15, 5, v12
v_add_u32 v15, {LX}, v15
v_and_b32 v16, 24, v2
v_cmp_eq_u32 s[34:35], 0, v16
v_mov_b32 v17, 0
v_mov_b32 v18, {LC}
v_mov_b32 v19, 1
s_mov_b32 s49, 0x40000""")
    p(nst('p_iss'))
    XS = list(range(X, X + 24))
    for i in range(12): p(f"v_lshlrev_b32 v{X+2*i}, 16, v{O+i}\nv_and_b32 v{X+2*i+1}, 0xffff0000, v{O+i}")
    p(nst('p_x'))
    ARR = ["s_mov_b64 exec, 1", "ds_add_u32 v18, v19 offset:20", "s_mov_b64 exec, -1"]
    p.ext(ARR)
    p(f"v_add_f32 v24, v{XS[0]}, v{XS[1]}\nv_add_f32 v26, v{XS[2]}, v{XS[3]}\nv_mul_f32 v25, v{XS[0]}, v{XS[0]}\nv_mul_f32 v27, v{XS[1]}, v{XS[1]}")
    for k, x in enumerate(XS[4:]): p(f"v_add_f32 v{24 + 2*(k%2)}, v{24 + 2*(k%2)}, v{x}")
    for k, x in enumerate(XS[2:]): p(f"v_fmac_f32 v{25 + 2*(k%2)}, v{x}, v{x}")
    p(f"""v_add_f32 v24, v24, v26
v_add_f32 v25, v25, v27
v_permlane32_swap_b32 v24, v25
v_add_f32 v24, v24, v25
v_mov_b32 v25, v24
v_permlane16_swap_b32 v24, v25
v_add_f32 v24, v24, v25
v_add_f32 v24, v24, v24 row_ror:8
s_mov_b64 exec, s[34:35]
ds_write_b32 v14, v24
s_mov_b64 exec, -1""")
    p(nst('p_s1'))
    def wq():
        for k in range(3):
            for h in range(2):
                p(f"ds_read_b64_tr_b16 v[{D+4*k+2*h}:{D+4*k+2*h+1}], v{va if k < 2 else vb} offset:{(k*512 if k < 2 else 3072) + h*256}", needs=['q0' if k < 2 else 'q1'])
        p.ext(ARR)
        for k in range(3): p(f"buffer_store_dwordx4 v[{D+4*k}:{D+4*k+3}], v{vw}, s[8:11], s{28+k} offen {sf}")
    if not wql: wq()
    p(nst('p_wq'))
    p(off(f"""L_pc_sw:
ds_read_b128 v[20:23], v15
ds_read_b128 v[28:31], v15 offset:16
s_waitcnt lgkmcnt(0)
v_max3_u32 v24, v20, v21, v22
v_max3_u32 v25, v28, v29, v30
v_max_u32 v24, v24, v25
v_cmp_eq_u32 vcc, -1, v24
s_sub_u32 s49, s49, 1
s_cmp_eq_u32 s49, 0
s_cbranch_scc1 L_pc_sk
s_nop 2
s_cbranch_vccnz L_pc_sw
L_pc_sk:"""))
    p(nst('p_s2'))
    p("""v_add_f32 v20, v20, v21
v_add_f32 v28, v28, v29
v_add_f32 v20, v20, v22
v_add_f32 v28, v28, v30
v_mul_f32 v20, 0x3ae38e39, v20
v_mul_f32 v28, 0x3ae38e39, v28
v_fma_f32 v28, -v20, v20, v28
v_max_f32 v28, 0, v28
v_add_f32 v28, 0x3727c5ac, v28
v_rsq_f32 v28, v28""")
    for i in range(3):
        xs = XS[8*i:8*i+8]
        for x in xs: p(f"v_sub_f32 v{x}, v{x}, v20")
        for x in xs: p(f"v_mul_f32 v{x}, v{x}, v28")
        for k in range(4): p(f"v_cvt_pk_bf16_f32 v{U+4*i+k}, v{xs[2*k]}, v{xs[2*k+1]}")
        p(f"buffer_store_dwordx4 v[{U+4*i}:{U+4*i+3}], v{vy}, s[8:11], s{24+i} offen {sf}")
    if wql: wq()
    p(f"buffer_load_dword v{VN}, v17, s[36:39], 0 offen sc1")
    p(nst('p_st'))
    p("s_mov_b32 s49, 0x40000\ns_waitcnt vmcnt(0)")
    p(off(f"""L_pc_tg:
v_readfirstlane_b32 s61, v{VN}
s_sub_u32 s49, s49, 1
s_cmp_eq_u32 s49, 0
s_cbranch_scc1 L_pc_tk
s_cmp_eq_u32 s61, 0
s_cbranch_scc0 L_pc_tk
buffer_load_dword v{VN}, v17, s[36:39], 0 offen sc1
s_waitcnt vmcnt(0)
s_branch L_pc_tg
L_pc_tk:"""))
    p(f"""s_mov_b64 exec, 1
ds_add_rtn_u32 v20, v18, v19
s_waitcnt lgkmcnt(0)
v_readfirstlane_b32 s60, v20
s_mov_b64 exec, 3
s_cmp_eq_u32 s60, 2
s_cbranch_scc0 L_pc_ns
buffer_store_dword v{VN}, v{vf}, s[8:11], s32 offen sc1 ; @
L_pc_ns:
s_mov_b64 exec, -1""")
    p(nst('p_sig'))
    p(f"""s_cmp_eq_u32 s16, 0
s_cbranch_scc1 L_a0
s_cmp_lt_u32 s2, 144
s_cbranch_scc0 L_a0""")
    p(setup_w1(T))
    p("s_lshl_b32 s60, s16, 2\nv_add_u32 v18, s60, v18")
    p(lspin('pc_lw', 18, 'eq', 0, 'L_side'))
    p("s_branch L_side")
    return p.finish()

def loader(sf="sc1", slf="nt", cf="", order="1234", TH=64, G1=0, G2=0, G3=0, XX=()):
    out = ""
    T = 20
    p = Prog()
    p(f"""L_pl:
s_lshl_b32 s58, s2, 10
s_add_u32 s58, s58, {ZR}
s_add_u32 s59, s58, {LS}
v_mov_b32 v28, 0
v_mov_b32 v29, 0
v_mov_b32 v30, 0
v_mov_b32 v31, 0
v_and_b32 v{T}, 3, v2
v_bfe_u32 v{T+1}, v2, 2, 3
v_lshrrev_b32 v{T+2}, 5, v2
v_lshlrev_b32 v{T+6}, 6, v{T+2}
v_lshl_add_u32 v{T+6}, v{T}, 4, v{T+6}
s_cmp_lt_u32 s2, 144
s_cselect_b32 s60, 8, 1
s_mul_i32 s60, s60, 1152
v_mul_u32_u24 v{VS}, s60, v{T+1}
v_add_u32 v{VS}, v{VS}, v{T+6}
v_mov_b32 v18, {LC}
v_mov_b32 v19, 1
s_waitcnt lgkmcnt(0)
s_mov_b32 s8, s4
s_mov_b32 s9, s5""")
    srd(p, 12, 44, ACT)
    p(f"""buffer_store_dwordx4 v[28:31], v3, s[8:11], s58 offen {sf}
buffer_store_dwordx4 v[28:31], v3, s[8:11], s59 offen {sf}
s_cmp_lt_u32 s2, 144
s_cbranch_scc0 L_pl2""")
    out += p.finish()
    def dmas(p, n, lds, RS, tag):
        for i in range(n):
            if i % 4 == 0: p(f"s_mov_b32 m0, {lds + (i//4)*4096}")
            p(f"buffer_load_dwordx4 v{VS}, s[28:31], s67 offen offset:{(i%4)*1024} {slf} lds", tag=tag)
            if i < n - 1: p(f"s_add_u32 s67, s67, {8*RS - 1024 if i % 4 < 3 else 8*RS + 3072}")
    def throttle(p):
        if TH < 64:
            ins = []; k = 0
            for i in p.ins:
                if i.isdma:
                    if k >= TH: ins.append(I(f"s_waitcnt vmcnt({TH - 1})"))
                    k += 1
                ins.append(i)
            p.ins = ins
        if 'nold' in XX: p.ins = [i for i in p.ins if not i.isdma]
    p = Prog()
    srd(p, 28, 52, 576*4608*2); srd(p, 24, 48, 576*576*2)
    p(f"""s_and_b32 s60, s2, 3
s_mul_i32 s66, s60, {9*16*9216}
s_lshr_b32 s60, s2, 2
s_lshl_b32 s60, s60, 8
s_add_u32 s66, s66, s60""")
    p(bias(1))
    p("s_barrier")
    if G1: p(lspin('pl_g1', 18, 'lt', G1, 'L_pl_g1e', o=20) + "\nL_pl_g1e:")
    def wo(w, tag):
        p(f"""s_mul_i32 s62, s2, 3
s_add_u32 s62, s62, {w - 1}
s_cmp_lt_u32 s62, 324
s_cselect_b32 s62, s62, 0
{wo_idx(62)}
s_mul_i32 s68, s64, 144
s_mul_i32 s88, s65, 18
s_cmp_lt_u32 s65, 8
s_cselect_b32 s88, s88, 16
s_cselect_b32 s89, 4, 18
s_cselect_b32 s90, 2, 1
s_cselect_b32 s91, 8, 36
s_cselect_b32 s93, 3, 1
s_mul_i32 s89, s89, 1152
s_sub_u32 s89, s89, 1024
s_mul_i32 s91, s91, 1152
s_add_u32 s68, s68, s88
s_mul_i32 s68, s68, 1152
s_lshl_b32 s60, s60, 7
s_add_u32 s68, s68, s60
v_lshrrev_b32 v{T+4}, s90, v{T+1}
v_mul_u32_u24 v{VO}, s91, v{T+4}
v_and_b32 v{T+3}, s93, v{T+1}
v_mul_u32_u24 v{T+3}, 1152, v{T+3}
v_add3_u32 v{VO}, v{VO}, v{T+3}, v{T+6}
s_mov_b32 m0, {STG + (w - 1)*2048}""")
        p(f"buffer_load_dwordx4 v{VO}, s[24:27], s68 offen {cf} lds", tag=tag)
        p("s_add_u32 s68, s68, s89")
        p(f"buffer_load_dwordx4 v{VO}, s[24:27], s68 offen offset:1024 {cf} lds", tag=tag)
    parts = {'1': (0, 0, 5, 1), '2': (0, 5, 4, 2), '3': (1, 0, 5, 0), '4': (1, 5, 4, 3)}
    for o in order:
        cb, b0, nb, w = parts[o]
        p(f"s_add_u32 s67, s66, {b0*16*9216 + cb*128}")
        dmas(p, 2*nb, STG + 6144 + (cb*9 + b0)*2048, 9216, f"sh{o}")
        if w: wo(w, f"sh{o}")
    throttle(p)
    p(nst('p_sd'))
    p(setup_w1(T))
    for o in order:
        if o in '12': p(f"ds_write_b32 v18, v19 offset:{int(o)*4}", needs=[f"sh{o}"])
    p("s_nop 0", needs=["sh3", "sh4"])
    p(nst('p_ld'))
    if G3: p(lspin('pl_g3', 18, 'lt', 3, 'L_side'))
    p("s_branch L_side")
    out += p.finish()
    p = Prog()
    p("L_pl2:")
    srd(p, 28, 56, 576*4608*2)
    p("s_barrier")
    if G2: p(lspin('pl_g2', 18, 'lt', G2 if G2 < 7 else 3, 'L_pl_g2e', o=20 if G2 < 7 else 0) + "\nL_pl_g2e:")
    for w in range(4):
        p(f"""{w2_idx(w)}
s_and_b32 s60, s2, 7
s_mul_i32 s67, s60, 36
s_mul_i32 s61, s88, 6
s_add_u32 s67, s67, s61
s_mul_i32 s67, s67, {16*1152}
s_lshl_b32 s61, s86, 7
s_add_u32 s67, s67, s61""")
        dmas(p, 12, STG + w*12288, 1152, None)
    throttle(p)
    p(nst('p_sd'))
    p("s_branch L_a0")
    out += p.finish()
    return out

def side(sf="sc1", LA=6, XX=()):
    p = Prog()
    p("L_side:")
    rd, st = [], []
    for b in range(9):
        for t in range(2):
            d = E + 4*((2*b + t) % 12)
            rd.append([f"ds_read_b64_tr_b16 v[{d+2*h}:{d+2*h+1}], v{VT} offset:{b*2048 + t*512 + h*256}" for h in range(2)])
            sr = (87, 86)[t]
            x = [f"buffer_store_dwordx4 v[{d}:{d+3}], v3, s[8:11], s{sr} offen {sf}"] + ([f"s_add_u32 s{sr}, s{sr}, s{88 + 2*t + b % 2}"] if b < 8 else [])
            x += [f"v_dot2c_f32_bf16 v{(C0, C1)[t]}, v{VONE}, v{d+q}" for q in range(4)]
            if t == 1 and b in (3, 4): x += [f"s_cmp_eq_u32 s16, {5 - b}", "s_cbranch_scc1 L_side_x"]
            st.append(x)
    for x in rd[:LA]: p.ext(x)
    for i, x in enumerate(st):
        p.ext(x)
        if i + LA < len(rd): p.ext(rd[i + LA])
    p(f"""L_side_x:
s_waitcnt lgkmcnt(0)
s_nop 2
v_permlane32_swap_b32 v{C0}, v{C1}
s_cmp_lt_u32 s2, 108
s_cbranch_scc0 L_side_w""")
    for t in range(2):
        d = E + 4*t
        for h in range(2): p(f"ds_read_b64_tr_b16 v[{d+2*h}:{d+2*h+1}], v{VOT} offset:{t*512 + h*256}")
    p(f"buffer_store_dwordx4 v[{E}:{E+3}], v3, s[8:11], s69 offen {sf}\ns_add_u32 s69, s69, {36*1024}\nbuffer_store_dwordx4 v[{E+4}:{E+7}], v3, s[8:11], s69 offen {sf}")
    p(f"""L_side_w:
v_add_f32 v{C0}, v{C0}, v{C1}
s_cmp_eq_u32 s16, 2
s_cbranch_scc0 L_side_f
ds_write_b32 v{VCS}, v{C0}
s_branch L_a0
L_side_f:
s_cmp_eq_u32 s16, 3
s_cbranch_scc1 L_side_g
s_mov_b32 s49, 0x400000""")
    p(off(f"""L_side_s:
ds_read_b32 v{C1}, v{VCS}
s_waitcnt lgkmcnt(0)
v_cmp_eq_u32 vcc, -1, v{C1}
s_sub_u32 s49, s49, 1
s_cmp_eq_u32 s49, 0
s_cbranch_scc1 L_side_k
s_nop 2
s_cbranch_vccnz L_side_s
L_side_k:"""))
    F = E + 8
    p(f"""v_add_f32 v{C0}, v{C0}, v{C1}
L_side_g:
v_cvt_pk_bf16_f32 v{F}, v{C0}, v{C0}
v_and_b32 v{C1}, 0xffff0000, v{F}
v_sub_f32 v{C1}, v{C0}, v{C1}
v_cvt_pk_bf16_f32 v{F+1}, v{C1}, 0
v_and_b32 v{VB}, s93, v{VB}
v_lshl_or_b32 v{F+1}, v{VB}, 16, v{F+1}
buffer_store_dwordx2 v[{F}:{F+1}], v{VAG}, s[8:11], s96 offen {sf}
s_cmp_eq_u32 s96, s97
s_cbranch_scc1 L_a0
buffer_store_dwordx2 v[{F}:{F+1}], v{VAG}, s[8:11], s97 offen {sf}""")
    if 'nost' in XX: p.ins = [i for i in p.ins if not i.op.startswith('buffer_store')]
    return p.finish()

def side_b(tag, sf="sc1", LA=6, T=112, D=152, XX=()):
    p = Prog()
    vt = T + 6
    p(f"""{w2_idx('s16')}
s_mul_i32 s62, s16, 12288
s_add_u32 s62, s62, {STG}
v_and_b32 v{T}, 3, v2
v_bfe_u32 v{T+4}, v2, 4, 1
v_lshl_add_u32 v{T+4}, v{T+4}, 2, v{T}
v_bfe_u32 v{T+5}, v2, 2, 2
v_lshlrev_b32 v{T+5}, 6, v{T+5}
v_add_u32 v{T+5}, s62, v{T+5}
v_lshl_add_u32 v{vt}, v{T+4}, 3, v{T+5}
v_lshrrev_b32 v{T+2}, 5, v2
v_lshl_add_u32 v{vt}, v{T+2}, 8, v{vt}""")
    su = f"""s_and_b32 s87, s86, 1
s_lshl_b32 s87, s87, 1
s_and_b32 s60, s2, 7
s_lshl_b32 s60, s60, 2
s_add_u32 s87, s87, s60
s_mul_i32 s87, s87, {WB}
s_add_u32 s87, s87, {WSTR}
s_lshr_b32 s89, s86, 1
s_add_u32 s91, s89, 1
s_and_b32 s91, s91, 3
s_lshl_b32 s91, s91, 4
s_add_u32 s91, s91, 265
s_cmp_eq_u32 s86, 8
s_cselect_b32 s90, 2, 1
s_cselect_b32 s91, 257, s91
s_cselect_b32 s93, 0, 1
s_mul_i32 s90, s90, {WB}
s_mul_i32 s88, s88, 3"""
    rd, st = [], []
    for b in range(6):
        for t in range(2):
            d = D + 4*(2*b + t)
            rd.append([f"ds_read_b64_tr_b16 v[{d+2*h}:{d+2*h+1}], v{vt} offset:{b*2048 + t*512 + h*1024}" for h in range(2)])
            pre = []
            if b % 2 == 0 and t == 0:
                pre = f"""s_sub_u32 s60, s88, 8
s_cmp_lt_u32 s88, 8
s_cselect_b32 s96, s88, s60
s_mul_i32 s96, s96, 9
s_add_u32 s96, s96, 167
s_add_u32 s96, s96, s89
s_lshl_b32 s61, s60, s93
s_add_u32 s61, s61, s91
s_cmp_lt_u32 s60, 8
s_cselect_b32 s96, s61, s96
s_cselect_b32 s97, 1, 5
s_lshl_b32 s97, s97, 10
s_cmp_eq_u32 s93, 0
s_cselect_b32 s97, {WB}, s97
s_cselect_b32 s98, 0, s97
s_lshl_b32 s96, s96, 10
s_add_u32 s96, s96, s87
s_add_u32 s99, s96, s97
s_add_u32 s100, s96, s90
s_add_u32 s101, s100, s97
s_sub_u32 s101, s101, s98
s_add_u32 s100, s100, s98
s_add_u32 s88, s88, 1""".split("\n")
            st.append(pre + [f"buffer_store_dwordx4 v[{d}:{d+3}], v3, s[8:11], s{((96, 100), (99, 101))[b % 2][t]} offen {sf}"])
    for x in rd[:LA]: p.ext(x)
    p(su)
    for i, x in enumerate(st):
        p.ext(x)
        if i + LA < len(rd): p.ext(rd[i + LA])
    if 'nost' in XX: p.ins = [i for i in p.ins if not i.op.startswith('buffer_store')]
    return f"s_cmp_eq_u32 s63, 0\ns_cselect_b32 s60, s2, 0\ns_cmp_lt_u32 s60, 144\ns_cbranch_scc1 L_{tag}\n" + off(p.finish().strip()) + f"\ns_nop 1\nL_{tag}:"

HEAD = f"""  v_lshlrev_b32 v20, 2, v2
  v_mov_b32 v21, -1
  v_mov_b32 v22, 0
  v_add_u32 v20, {LX}, v20
  ds_write_b32 v20, v21
  ds_write_b32 v20, v22 offset:256
  ds_write_b32 v20, v21 offset:512
  v_mov_b32 v7, 0
  v_mov_b32 v13, 0
  v_mov_b32 v{VAG}, 0
  s_cmp_eq_u32 s16, 3
  s_cbranch_scc1 L_pl
"""

def a0_go():
    return f"""s_lshl_b32 s56, s19, 9
s_lshl_b32 s57, s20, 7
s_add_u32 s57, s57, {4096 - 512}
s_sub_u32 s57, s57, s56
s_add_u32 s56, s56, {FL1}
v_lshrrev_b32 v161, 5, v2
v_mul_u32_u24 v161, s57, v161
v_add_u32 v161, v161, v3
v_mov_b32 v162, {LC + 16}
s_and_b32 s57, s2, 7
s_lshl_b32 s57, s57, 10
s_add_u32 s57, s57, {PFL}
s_lshl_b32 s58, s2, 2
s_add_u32 s58, s58, {PFL}
s_mov_b32 s49, 0x40000
s_cmp_eq_u32 s16, 0
s_cbranch_scc0 L_a0p_go
ds_write_b32 v162, v{VN} ; @
s_mov_b32 exec_hi, 0xff
L_a0p_poll:
buffer_load_dword v250, v161, s[8:11], s56 offen sc1 ; @
s_waitcnt vmcnt(0) lgkmcnt(0) ; @
v_cmp_ne_u32 vcc, v250, v{VN}
s_nop 4
s_cbranch_vccz L_a0p_ok
s_sub_u32 s49, s49, 1
s_cmp_eq_u32 s49, 0
s_cbranch_scc0 L_a0p_poll
L_a0p_ok:
s_mov_b64 exec, -1
L_a0p_go:
s_barrier"""

def fchk(n, v, sa, tag):
    CHK = [f"v_xor_b32 v{v+i}, {tag}, v{v+i}" for i in range(4)] + [f"v_or3_b32 v{v}, v{v}, v{v+1}, v{v+2}", f"v_or_b32 v{v}, v{v}, v{v+3}", f"v_cmp_ne_u32 vcc, 0, v{v}"]
    LD = f"buffer_load_dwordx4 v[{v}:{v+3}], v3, s[8:11], s{sa} offen sc1"
    LOOP = f"L_{n}_w:\n  s_mov_b32 s49, 0x40000\nL_{n}_l:\n" + "".join("  " + l + "\n" for l in ["s_nop 15"]*8 + [LD, "s_waitcnt vmcnt(0)"] + CHK + ["s_sub_u32 s49, s49, 1", "s_cmp_eq_u32 s49, 0", f"s_cbranch_scc1 L_{n}_k", "s_nop 2", f"s_cbranch_vccnz L_{n}_l", f"s_branch L_{n}_k"])
    return LD, CHK, [f"s_cbranch_vccnz L_{n}_w", f"L_{n}_k:"], LOOP
def fsig(n, vd, va, sa):
    return ["s_cmp_eq_u32 s16, 0", f"s_cbranch_scc0 L_{n}_ns", f"v_mov_b32 v{vd}, s3", f"v_lshlrev_b32 v{va}, 10, v2", "s_mov_b64 exec, 0xff", f"buffer_store_dword v{vd}, v{va}, s[8:11], s{sa} offen sc1 ; @", "s_mov_b64 exec, -1", f"L_{n}_ns:"]
F3O = 0x2000
```

```python
from asmlib import *
from layout import *
from k0 import srd

def gelu8(x, k1, k3, tmp, out, grp=4):
    L = []
    for b in range(0, 8, grp):
        idx = range(b, b + grp)
        T = lambda i: tmp + i
        for i in idx: L.append(f"v_mul_f32 v{T(i)}, v{x+i}, v{x+i}")
        for i in idx: L.append(f"v_fma_f32 v{T(i)}, v{T(i)}, v{k3}, v{k1}")
        for i in idx: L.append(f"v_mul_f32 v{T(i)}, v{T(i)}, v{x+i}")
        for i in idx: L.append(f"v_exp_f32 v{T(i)}, v{T(i)}")
        for i in idx: L.append(f"v_add_f32 v{T(i)}, 1.0, v{T(i)}")
        for i in idx: L.append(f"v_rcp_f32 v{T(i)}, v{T(i)}")
        for i in idx: L.append(f"v_mul_f32 v{T(i)}, v{T(i)}, v{x+i}")
        for i in list(idx)[::2]: L.append(f"v_cvt_pk_bf16_f32 v{out+i//2}, v{T(i)}, v{T(i+1)}")
    return L

def c_kernel(DW=32, D0=12, YCH=4, stfl="sc1", dbg=False, RAMP=3, X=(), merge=True, YLA=0, amap=2, align=None, s16=False, mk=None, fused=False, NPRE=31, yfl='', wfl='', rev=False, poll=None, PD=1, dz=False, fine=False, ds=None, armw=(0.0, 1.0), prein=False, wpf=None, arms=18, armp=0, sigp=0.5, armf='sc1', OW=30, EP=2, EW=30, f3=None):
    name = "c_kernel"
    p = Prog()
    YB, HB, XB = 0, 73728, 147456
    vL = 3
    vRD = 6
    vHW = 10
    vXW, vXR = 13, 14
    vK1, vK3 = 16, 18
    TMP, PK = 24, 32
    A_, B_, C_, D_, OS, N2, N3 = 40, 72, 104, 136, 168, 184, 216
    aODD, aAUG, aLR, aT, aW = 0, 32, 40, 64, 128
    NL = 3
    assert aW + 4*DW <= 256
    wslot = (lambda g: aW + 4*(DW - 1 - g % DW)) if rev else (lambda g: aW + 4*(g % DW))
    if not fused:
        p(f"""s_cmp_lt_u32 s2, 256
s_cbranch_scc1 L_{name}_go
s_endpgm
L_{name}_go:
s_load_dwordx2 s[4:5], s[0:1], 80""")
        if dbg: stamp_init(p)
    else: D0 = NPRE
    AM = "s_and_b32 s17, s2, 7\ns_lshr_b32 s18, s2, 3" if not amap else "s_bfe_u32 s17, s2, 0x30003\ns_and_b32 s18, s2, 7\ns_lshl_b32 s18, s18, 2\ns_lshr_b32 s19, s2, 6\ns_add_u32 s18, s18, s19"
    if amap == 2: AM = "s_and_b32 s17, s2, 3\ns_lshl_b32 s17, s17, 1\ns_bfe_u32 s18, s2, 0x10003\ns_add_u32 s17, s17, s18\ns_bfe_u32 s18, s2, 0x10002\ns_lshl_b32 s18, s18, 4\ns_lshr_b32 s19, s2, 4\ns_add_u32 s18, s18, s19"
    if amap == 4: AM = "s_and_b32 s17, s2, 1\ns_lshl_b32 s17, s17, 2\ns_bfe_u32 s18, s2, 0x20003\ns_add_u32 s17, s17, s18\ns_bfe_u32 s18, s2, 0x20001\ns_lshl_b32 s18, s18, 3\ns_lshr_b32 s19, s2, 5\ns_add_u32 s18, s18, s19"
    p(f"""v_lshrrev_b32 v1, 6, v0
v_and_b32 v2, 63, v0
v_readfirstlane_b32 s16, v1
v_lshlrev_b32 v{vL}, 4, v2
{AM}
s_and_b32 s19, s16, 1
s_lshr_b32 s20, s16, 1
s_lshl_b32 s30, s17, 2
s_add_u32 s30, s30, s16
s_mul_i32 s30, s30, {WSN*1024}
s_add_u32 s30, s30, {WSTR}
s_mul_i32 s25, s18, 73728
s_lshl_b32 s26, s16, 10
s_add_u32 s27, s25, s26
s_add_u32 s27, s27, {X1F}{lay('s27')}
s_add_u32 s28, s27, 36864
s_add_u32 s31, s26, 36864
s_lshl_b32 s21, s18, 1
s_xor_b32 s29, s19, 1
s_add_u32 s45, s21, s19
s_add_u32 s46, s21, s29
s_lshl_b32 s47, s45, 8
s_lshl_b32 s48, s46, 8
s_add_u32 s47, s47, {ST}{lay('s47')}
s_add_u32 s48, s48, {ST}{lay('s48')}
v_lshlrev_b32 v15, 2, v2""")
    if not fused:
        p(f"""s_mov_b32 s10, {WSSZ}
s_mov_b32 s11, 0x20000
s_waitcnt lgkmcnt(0)
s_mov_b32 s8, s4
s_mov_b32 s9, s5""")
    else:
        pre_setup = AM.replace("s17", "s64").replace("s18", "s65").replace("s19", "s66").split("\n") + f"""s_lshl_b32 s64, s64, 2
s_add_u32 s64, s64, s16
s_mul_i32 s64, s64, {WSN*1024}
s_add_u32 s64, s64, {WSTR}
s_lshl_b32 s65, s65, {9 if poll else 7}
s_add_u32 s65, s65, {CNT}{lay('s65')}""".split("\n")
        if f3 is not None:
            import kq
            f3 = dict(f3); F3S = f3.pop('S', 1); F3L = f3.pop('L', 84); F3P = f3.pop('P', 114); F3W = f3.pop('W', (12, 50)); F3H = f3.pop('H', 0); F4 = f3.pop('W2', None)
            p(f"s_and_b32 s60, s2, 7\ns_lshl_b32 s60, s60, 10\ns_add_u32 s60, s60, {kq.PFL + kq.F3O}\ns_lshl_b32 s61, s2, 2\ns_add_u32 s61, s61, {kq.PFL + kq.F3O}")
        if poll: p(f"s_mov_b32 s30, s64\nv_lshlrev_b32 v4, 7, v2\ns_mov_b32 s49, 0x40000\ns_cmp_eq_u32 s16, 0\ns_cbranch_scc0 L_bc_go\n" + poll(PD) + "\ns_barrier")
        else: p(f"""s_mov_b32 s30, s64
v_mov_b32 v4, 0
s_mov_b32 s49, 0x40000
s_cmp_eq_u32 s16, 0
s_cbranch_scc0 L_bc_go
L_bc_poll:
buffer_load_dword v5, v4, s[8:11], s65 offen sc1
s_waitcnt vmcnt(0)
v_readfirstlane_b32 s50, v5
s_sub_u32 s49, s49, 1
s_cmp_eq_u32 s49, 0
s_cbranch_scc1 L_bc_go
s_cmp_lt_u32 s50, 32
s_cbranch_scc1 L_bc_poll
L_bc_go:
s_barrier""")
        if dbg and not fine: p(stamp(2))
        p(nst('c_go'))
        if f3 is not None: f3c = kq.fchk('f3', 248, 60, 's3')
    steps = []
    def fr(acc, rts=(0, 1), first=False, ag=False, kk=None):
        return dict(m=[(acc + 16*rt, ag, rt, first) for rt in rts], kk=kk)
    for kk in range(36):
        f = [fr(A_, first=kk == 0), fr(B_, first=kk == 0)]
        if kk % 2 == 0: f.append(fr(aODD, first=kk == 0, ag=True))
        steps.append(dict(l=('Y', kk), f=f, ph='p1'))
    steps.append(dict(l=None, f=[fr(A_), fr(B_), fr(aODD, rts=(0,), ag=True)], ph='p1'))
    for kk in range(36):
        steps.append(dict(l=('Y', kk), f=[fr(C_, first=kk == 0), fr(D_, first=kk == 0)], ph='p2'))
    steps.append(dict(l=None, f=[fr(C_), fr(D_)], ph='p2'))
    korder = list(range(16)) + [32, 33, 34, 35]
    NACC = [A_, B_, N2, N3]
    for i, kk in enumerate(korder):
        f = [fr(NACC[n], first=i == 0) for n in range(4)]
        if kk % 2 == 0: f.append(fr(aODD, first=i == 0, ag=True))
        steps.append(dict(l=('H', kk), f=f, ph='q'))
    n_p1 = 37; n_p2 = 74; n_t = 94
    tstart = {}
    for n in (4, 3, 0, 1, 2):
        f = [fr(aODD, ag=True, kk=kk) for kk in range(16, 32, 2)] if n == 4 else [fr(NACC[n], kk=kk) for kk in range(16, 32)]
        tstart[n] = len(steps)
        for b in range(0, len(f), 4): steps.append(dict(l=None, f=f[b:b+4], ph='t'))
    def treg(kk, rt):
        i = (kk - 16) // 2
        if kk % 2 == 0: return 'a', aT + 8*i + 4*rt
        return 'v', C_ + 8*i + 4*rt
    frags = [(si, fi) for si, st in enumerate(steps) for fi in range(len(st['f']))]
    assert len(frags) == WSN
    issue = []
    ych_at = {}
    for c in range(36 // YCH):
        gi = next(g for g, (si, fi) in enumerate(frags) if si == c*YCH)
        ych_at.setdefault(max(0, gi - YLA), []).append(c)
    for g, (si, fi) in enumerate(frags):
        for c in ych_at.get(g, []):
            L = []
            for kk0 in range(c*YCH, (c+1)*YCH, 4):
                for rt in range(2):
                    L.append(f"s_add_u32 m0, s{(26, 31)[rt]}, {YB + kk0*1024}" if kk0 else f"s_mov_b32 m0, s{(26, 31)[rt]}")
                    L.append(I(f"buffer_load_dwordx4 v{vL}, s[8:11], s{27+rt} offen {yfl} lds", tag=f"y{c}"))
                    L.append(f"s_addk_i32 s{27+rt}, 4096")
            issue.append(('y', L, g))
        d = wslot(g)
        pre = ["s_addk_i32 s30, 4096"] if (g % 4 == 0 and g > 0) else []
        issue.append(('w', pre + [I(f"buffer_load_dwordx4 a[{d}:{d+3}], v{vL}, s[8:11], s30 offen offset:{(g%4)*1024} {wfl}", tag=f"w{g}")], g))
    if fused:
        pre_loads = [y for x in issue if x[0] == 'w' and x[2] < NPRE for y in x[1]]
        pre_loads = [(y.text if isinstance(y, I) else y).replace("s30", "s64") for y in pre_loads]
        pre_grp = [[(y.text if isinstance(y, I) else y).replace("s30", "s64") for y in x[1]] for x in issue if x[0] == 'w' and x[2] < NPRE]
        issue = [x for x in issue if not (x[0] == 'w' and x[2] < NPRE)]
    ip = 0
    def issue_upto(gmax):
        nonlocal ip
        L = []
        while ip < len(issue) and issue[ip][2] <= gmax:
            L += issue[ip][1]; ip += 1
        return L
    p.ext(issue_upto(D0 - 1))
    p(f"buffer_load_dword v22, v15, s[8:11], s47 offen {'sc1' if fused else ''}\nbuffer_load_dword v23, v15, s[8:11], s48 offen {'sc1' if fused else ''}")
    p(f"""s_mul_i32 s50, s19, {37*1024}
s_mul_i32 s51, s19, {35*1024}
v_add_u32 v{vRD}, s50, v{vL}
v_add_u32 v{vRD+1}, s51, v{vL}
v_subrev_u32 v{vRD+2}, s51, v{vL}
v_subrev_u32 v{vRD+3}, s50, v{vL}
v_add_u32 v{vRD+2}, 36864, v{vRD+2}
v_add_u32 v{vRD+3}, 36864, v{vRD+3}""")
    setup = f"""s_mul_i32 s50, s19, 36864
s_mul_i32 s51, s29, 36864
s_lshl_b32 s52, s16, 11
s_add_u32 s53, s50, s52
s_add_u32 s53, s53, {HB}
v_add_u32 v{vHW}, s53, v{vL}
s_add_u32 s53, s51, s52
s_add_u32 s53, s53, {HB}
v_add_u32 v{vHW+1}, s53, v{vL}
s_lshl_b32 s52, s20, 11
s_add_u32 s53, s50, s52
s_add_u32 s53, s53, {HB + 32*1024}
v_add_u32 v{vHW+2}, s53, v{vL}
s_lshl_b32 s52, s16, 12
s_add_u32 s53, s52, {XB}
v_add_u32 v{vXW}, s53, v{vL}
s_xor_b32 s52, s52, 4096
s_add_u32 s53, s52, {XB}
v_add_u32 v{vXR}, s53, v{vL}
s_mul_i32 s54, s17, {ACT}
s_add_u32 s54, s54, {PART}{lay('s54')}
s_mul_i32 s55, s45, 36864
s_mul_i32 s56, s46, 36864
s_add_u32 s55, s55, s54
s_add_u32 s56, s56, s54
s_lshl_b32 s57, s20, 11
s_add_u32 s57, s57, {16*2048}
s_add_u32 s57, s57, s55
s_lshl_b32 s58, s16, 11
s_add_u32 s55, s55, s58
s_add_u32 s56, s56, s58
s_mul_i32 s50, s2, 320
s_mul_i32 s51, s16, 80
s_add_u32 s50, s50, s51
s_add_u32 s50, s50, {KV}
v_mov_b32 v{TMP}, 0""".split("\n") + [["s_mov_b64 exec, 0xfffff", f"buffer_store_dword v{TMP}, v15, s[8:11], s50 offen", "s_mov_b64 exec, -1"]]
    if fused: setup = setup[:-6]
    statf = []
    for rt in range(2):
        s = 22 + rt; t = TMP
        statf += f"""v_mov_b32 v{t}, v{s}
v_permlane32_swap_b32 v{s}, v{t}
v_mul_f32 v{s}, 0x3ae38e39, v{s}
v_mul_f32 v{t}, 0x3ae38e39, v{t}
v_fma_f32 v{t}, -v{s}, v{s}, v{t}
v_max_f32 v{t}, 0, v{t}
v_mov_b32 v{t+1}, 0x3f800054
v_mov_b32 v{t+2}, 0x2edbe6ff
v_fma_f32 v{t}, v{t}, v{t+1}, v{t+2}
v_rsq_f32 v{t+1}, v{t}
v_mul_f32 v{t}, v{t}, v{t+1}
v_mul_f32 v{vK1+rt}, 0xc0135761, v{t+1}
v_mul_f32 v{t+2}, v{t+1}, v{t+1}
v_mul_f32 v{t+2}, v{t+2}, v{t+1}
v_mul_f32 v{vK3+rt}, 0xbdd2d3e8, v{t+2}
v_sub_f32 v{s}, 0, v{s}
v_cvt_pk_bf16_f32 v{t+3}, v{s}, v{t}
v_lshlrev_b32 v{t+4}, 16, v{t+3}
v_and_b32 v{t+5}, 0xffff0000, v{t+3}
v_sub_f32 v{t+4}, v{s}, v{t+4}
v_sub_f32 v{t+5}, v{t}, v{t+5}
v_cvt_pk_bf16_f32 v{t+6}, v{s}, v{t+4}
v_cvt_pk_bf16_f32 v{t+7}, v{s}, v{t+5}
v_accvgpr_write_b32 a{aAUG+4*rt}, v{t+6}
v_accvgpr_write_b32 a{aAUG+4*rt+1}, v{t+3}
v_accvgpr_write_b32 a{aAUG+4*rt+2}, v{t+6}
v_accvgpr_write_b32 a{aAUG+4*rt+3}, v{t+7}""".split("\n")
    pkc = [0]
    def gl(acc, rt, waddr, woff, tag):
        L = []
        for q in range(2):
            o = PK + 4*(pkc[0] % 2); pkc[0] += 1
            L += gelu8(acc + 8*q, vK1 + rt, vK3 + rt, TMP, o)
            L.append(I(f"ds_write_b128 v{waddr}, v[{o}:{o+3}] offset:{woff + q*1024}", tag=tag))
        return L
    xw = lambda tag: [I(f"ds_write_b128 v{vXW}, a[{aODD+16+4*i}:{aODD+19+4*i}] offset:{i*1024}", tag=tag) for i in range(4)]
    xr = [f"ds_read_b128 v[{OS+4*i}:{OS+4*i+3}], v{vXR} offset:{i*1024}" for i in range(4)]
    def xadd():
        L = []
        for b in range(0, 16, 4):
            for i in range(4): L.append(f"v_accvgpr_read_b32 v{TMP+i}, a{aODD+b+i}")
            for i in range(4): L.append(f"v_add_f32 v{OS+b+i}, v{OS+b+i}, v{TMP+i}")
        return L
    def gtile(role, acc, tag): return gl(acc, 0, vHW, role*8192, tag) + gl(acc + 16, 1, vHW + 1, role*8192, tag)
    fa = gtile(0, A_, 'hab'); h = len(fa) // 2
    seg = [xw('xw') + fa[:h] + [I("s_barrier", needs=['xw'])] + xr + fa[h:] + xadd() + gtile(1, B_, 'hab'),
           gl(OS, 0, vHW + 2, 0, 'ho') + gtile(2, C_, 'hcd') + gtile(3, D_, 'hcd')]
    hbar = {n_p2: 'hab', n_p2 + 16: 'ho', n_t: 'hcd'}
    def lread(si):
        st = steps[si]
        L = []
        if si in hbar:
            L.append(I("s_barrier", needs=[hbar[si]]))
            if si == n_p2:
                for i in range(4): L.append(f"v_add_u32 v{vRD+i}, {HB}, v{vRD+i}")
        if n_t <= si < n_t + 4:
            ks = [list(range(16, 24, 2)), list(range(24, 32, 2)), list(range(17, 24, 2)), list(range(25, 32, 2))][si - n_t]
            for kk in ks:
                for rt in range(2):
                    R, d = treg(kk, rt)
                    L.append(f"ds_read_b128 {R}[{d}:{d+3}], v{vRD + 2*rt + kk % 2} offset:{kk*1024}")
        if st['l'] is None: return L
        kind, kk = st['l']
        if kind == 'Y' and st['ph'] == 'p1' and kk % YCH == 0:
            sg = f3 is not None and kk // YCH == F3S
            L.append(I("s_barrier", needs=[f"y{kk//YCH}"] + (['xl'] if sg else [])))
            if sg: L += kq.fsig('f3', 20, 21, 61)
        for rt in range(2):
            d = aLR + 8*(si % NL) + 4*rt
            L.append(I(f"ds_read_b128 a[{d}:{d+3}], v{vRD + 2*rt + kk % 2} offset:{kk*1024}", tag=f"l{si}"))
        return L
    p.ext(lread(0)); p.ext(lread(1))
    if dbg and not fine: p(stamp(3 if fused else 1))
    p(nst('c_first'))
    g = 0
    G = []
    stepstart = {}
    cnt16 = {}
    for si, st in enumerate(steps):
        first_in_step = True
        for fi, fx in enumerate(st['f']):
            ms = fx['m']
            w = wslot(g)
            for mi, (acc, ag, rt, first) in enumerate(ms):
                if st['ph'] == 't':
                    Rb, bb = treg(fx['kk'], rt)
                else:
                    Rb = 'a'; bb = (aLR + 8*(si % NL) + 4*rt) if st['l'] is not None else aAUG + 4*rt
                R = 'a' if ag else 'v'
                c = "0" if first else f"{R}[{acc}:{acc+15}]"
                needs = [f"w{g + len(st['f']) - 1}", f"l{si}"] if (merge and first_in_step and si > 0) else []
                grp = [I(f"v_mfma_f32_32x32x16_bf16 {R}[{acc}:{acc+15}], a[{w}:{w+3}], {Rb}[{bb}:{bb+3}], {c}", needs=needs)]
                if s16:
                    cnt16[(R, acc)] = cnt16.get((R, acc), -1) + 1
                    if first: cnt16[(R, acc)] = 0
                    n = cnt16[(R, acc)]; a2 = acc + 8*(n % 2); b2 = bb ^ 4
                    cc = lambda a: "0" if n < 2 else f"{R}[{a}:{a+3}]"
                    G.append([I(f"v_mfma_f32_16x16x32_bf16 {R}[{a2}:{a2+3}], a[{w}:{w+3}], {Rb}[{bb}:{bb+3}], {cc(a2)}", needs=needs)])
                    grp = [I(f"v_mfma_f32_16x16x32_bf16 {R}[{a2+4}:{a2+7}], a[{w}:{w+3}], {Rb}[{b2}:{b2+3}], {cc(a2+4)}")]
                if first_in_step:
                    stepstart[si] = len(G) - (1 if s16 else 0)
                    if si + 2 < len(steps): grp += lread(si + 2)
                    first_in_step = False
                if mi == len(ms) - 1:
                    depth = min(DW - 1, D0 + g // RAMP)
                    gm = g + depth
                    if f3 is not None and F3H: gm = min(gm, 92 + max(0, 2*(g - F3H + 1)))
                    if f3 is not None and F4 and F4.get('H'): gm = min(gm, 166 + max(0, 2*(g - F4['H'] + 1)))
                    grp += issue_upto(gm)
                G.append(grp)
            g += 1
    assert ip == len(issue)
    stepstart[len(steps)] = len(G)
    def outp(acc, sreg, tag=None):
        L = []
        for hf in range(2):
            o = PK + 4*(pkc[0] % 2); pkc[0] += 1
            src = acc + 8*hf
            for i in range(4): L.append(f"v_cvt_pk_bf16_f32 v{o+i}, v{src+2*i}, v{src+2*i+1}")
            if ds:
                for i in range(4): L.append(f"v_min_u32 v{o+i}, s44, v{o+i}")
            L += [f"v_permlane32_swap_b32 v{o}, v{o+2}", f"v_permlane32_swap_b32 v{o+1}, v{o+3}"]
            L.append(I(f"buffer_store_dwordx4 v[{o}:{o+3}], v{vL}, s[8:11], s{sreg} offen offset:{hf*1024} {stfl}", tag=tag))
        return L
    def otile(n):
        acc = NACC[n]
        return [f"s_add_u32 s58, s55, {n*8192}", f"s_add_u32 s59, s56, {n*8192}"] + outp(acc, 58, f"o{n}") + outp(acc + 16, 59, f"o{n}")
    ts = {n: stepstart[tstart[n]] for n in tstart}
    plan = [(setup, 4, 40), (statf, 60, 120 if not s16 else 200),
            (seg[0], stepstart[n_p1] + 2, stepstart[n_p2 - 2]),
            (seg[1], stepstart[n_p2 - 2], stepstart[n_t - 2]),
            (xw('xw2'), ts[3] + 2, ts[3] + 6),
            ([I("s_barrier", needs=['xw2'])] + xr + xadd() + outp(OS, 57), ts[3] + 12, ts[0]),
            (otile(3), ts[0] + 2, ts[1]), (otile(0), ts[1] + 2, ts[2]), (otile(1), ts[2] + 2, len(G))]
    if ds:
        def mix(a, b, lo=0.0, hi=1.0):
            i0 = int(len(a)*lo); i1 = int(len(a)*hi); out = list(a[:i0]); n = i1 - i0; k = 0
            for i in range(n):
                out.append(a[i0 + i])
                while k < len(b) and (k + 0.5) * n <= (i + 1) * len(b): out.append(b[k]); k += 1
            return out + b[k:] + list(a[i1:])
        setup += [f"v_mov_b32 v{248+i}, -1" for i in range(4)] + ["v_mov_b32 v20, 0", "v_mov_b32 v21, 1", "s_mov_b32 s44, -2",
                  "s_lshl_b32 s66, s18, 7", f"s_add_u32 s66, s66, {CNT + 4096}"]
        arm = []
        st = lambda sr, o: I(f"buffer_store_dwordx4 v[248:251], v{vL}, s[8:11], s{sr} offen offset:{o} {armf}", tag='arm')
        for n in range(4):
            arm += [[f"s_add_u32 s58, s55, {n*8192}", st(58, 0)], st(58, 1024), [f"s_add_u32 s59, s56, {n*8192}", st(59, 0)], st(59, 1024)]
        arm += [st(57, 0), st(57, 1024)]
        sig = [["s_mov_b64 exec, 1", I("buffer_atomic_add v21, v20, s[8:11], s66 offen", needs=['arm']), "s_mov_b64 exec, -1"]]
        apoll = ["buffer_load_dword v252, v20, s[8:11], s66 offen sc1"]
        achk = [["v_readfirstlane_b32 s50, v252", "s_cmp_lt_u32 s50, 32", "s_cbranch_scc1 L_arm_w", "L_arm_k:"]]
        sS = [x for x in ds['setup'] if x.startswith('s_')]; sV = [x for x in ds['setup'] if not x.startswith('s_')]
        plan = [(setup, 4, 40), (statf, 60, 120), (arm[:armp], 120, stepstart[n_p1]),
                (mix(seg[0], arm[armp:arms], *armw), stepstart[n_p1] + 2, stepstart[n_p2 - 2]),
                (mix(mix(seg[1], sig, sigp, sigp + 0.05), arm[arms:], 0.0, sigp - 0.3), stepstart[n_p2 - 2], stepstart[n_t - 2]),
                (xw('xw2'), ts[3] + 2, ts[3] + 6), (apoll + sS, ts[3] + 6, ts[3] + 12),
                ([I("s_barrier", needs=['xw2'])] + xr + xadd() + outp(OS, 57), ts[3] + 12, ts[0]),
                (otile(3), ts[0] + 2, ts[0] + 2 + min(OW, 20)), (sV + ds['ld0'], ts[0] + 2 + min(OW, 20), ts[1]),
                (otile(0), ts[1] + 2, ts[1] + 2 + min(OW, 16 if prein else 30)), (ds['pre'] if prein else [], ts[1] + 2 + min(OW, 16 if prein else 30), ts[2])]
        ds['prein'] = prein
        if wpf:
            pfs = f"""s_lshr_b32 s50, s2, 3
s_lshl_b32 s50, s50, 2
s_add_u32 s50, s50, s16
s_and_b32 s51, s50, 7
s_and_b32 s52, s2, 3
s_lshl_b32 s52, s52, 3
s_add_u32 s51, s51, s52
s_mul_i32 s51, s51, {WSN*1024}
s_lshr_b32 s50, s50, 3
s_lshl_b32 s50, s50, 14
s_add_u32 s51, s51, s50
s_add_u32 s51, s51, {WSTR + (WSN - 256)*1024}
s_add_u32 s52, s51, 8192
v_lshlrev_b32 v253, 7, v2
buffer_load_dword v254, v253, s[8:11], s51 offen
buffer_load_dword v255, v253, s[8:11], s52 offen""".split("\n")
            plan = plan[:1] + [(pfs, wpf, wpf + 8)] + plan[1:] if wpf < 60 else plan[:2] + [(pfs, wpf, wpf + 8)] + plan[3:]
        o1 = otile(1)
        if EP <= 2: plan += [(achk, ts[2] + 1, ts[2] + 2), (mix(o1, ds['early']), ts[2] + 2, ts[2] + 2 + EW)]
        else: plan += [(o1, ts[2] + 2, ts[2] + EP), (achk + ds['early'], ts[2] + EP, min(len(G), ts[2] + EP + EW))]
    marks = {stepstart[n_p1]: 2, stepstart[n_p2]: 3, stepstart[n_t]: 4, ts[1]: 5}
    if fused: marks = {stepstart[n_p1]: 4, stepstart[n_t]: 5}
    if fine: marks = {}
    if mk: marks = {stepstart[x]: i + 2 for i, x in enumerate(mk)}
    for k, v in marks.items():
        if dbg: G[k] = [stamp(v)] + G[k]
    for nm, k in (('c_p1', stepstart[n_p1]), ('c_p2', stepstart[n_p2]), ('c_t', stepstart[n_t])):
        if nst(nm): G[k] = [nst(nm)] + G[k]
    for k in range(1, len(G)):
        if nst(f'c_g{k}'): G[k] = [nst(f'c_g{k}')] + G[k]
    if f3 is not None:
        gpos = {}
        for k, grp in enumerate(G):
            for x in grp:
                if isinstance(x, I) and x.tag and x.tag[0] == 'w' and x.tag[1:].isdigit(): gpos[int(x.tag[1:])] = k
        kb = F3P
        assert kb + 5 < gpos[93], gpos[93]
        G[F3L] = G[F3L] + [f3c[0]]

        for k, x in enumerate(f3c[1]): G[kb + k//2] = G[kb + k//2] + [x]
        G[kb + 5] = G[kb + 5] + f3c[2]
        if F4:
            f4c = kq.fchk('f4', 248, 60, 's3')
            G[kb + 6] = G[kb + 6] + [f"s_add_u32 s60, s60, {kq.F4O - kq.F3O}", f"s_add_u32 s61, s61, {kq.F4O - kq.F3O}"]
            W = F4.get('W', 122); kb = F4.get('P', 258)
            G[W] = G[W] + kq.late_w2()
            nx = 'w%d' % min(g for g, k in gpos.items() if k > W)
            sg = kq.fsig('f4', 20, 21, 61)
            if F4.get('S', 'xw') == 'xw':
                i = [k for k, x in enumerate(seg[0]) if isinstance(x, I) and x.op == 's_barrier'][0]
                seg[0][i].needs.append(nx); seg[0].insert(i + 1, sg)
            elif isinstance(F4['S'], int): G[F4['S']] = G[F4['S']] + [I("s_barrier", needs=[nx])] + sg
            else:
                for grp in G:
                    for i, x in enumerate(grp):
                        if isinstance(x, I) and x.op == 's_barrier' and F4['S'] in x.needs: x.needs.append(nx); grp[i+1:i+1] = sg; break
            assert kb + 5 < gpos[167], gpos[167]
            G[F4.get('L', 232)] = G[F4.get('L', 232)] + [f4c[0]]
            for k, x in enumerate(f4c[1]): G[kb + k//2] = G[kb + k//2] + [x]
            G[kb + 5] = G[kb + 5] + f4c[2]
    pos = 0
    for fill, a, b in plan:
        if 'nofill' in X: fill = [f for f in fill if isinstance(f, list) or not ((f if isinstance(f, I) else I(f)).kind in ('valu', 'trans'))]
        assert a >= pos
        for grp in G[pos:a]: p.ext(grp)
        p.ext(interleave(G[a:b], fill))
        pos = b
    for grp in G[pos:]: p.ext(grp)
    if dbg and fine: p(stamp(2))
    p(nst('c_end'))
    p.ext(otile(2))
    extra = ""
    if ds:
        extra = ds['fin'](p) + """L_arm_w:
  buffer_load_dword v252, v20, s[8:11], s66 offen sc1
  s_waitcnt vmcnt(0)
  v_readfirstlane_b32 s50, v252
  s_sub_u32 s49, s49, 1
  s_cmp_eq_u32 s49, 0
  s_cbranch_scc1 L_arm_k
  s_cmp_lt_u32 s50, 32
  s_cbranch_scc1 L_arm_w
  s_branch L_arm_k
"""
    if not dz:
        if dbg: p(stamp(6))
        if dbg: stamp_end(p, 7, name)
        p("s_endpgm")
    idx = {id(i): k for k, i in enumerate(p.ins)}
    for k, i in enumerate(p.ins):
        if i.op == 's_barrier':
            for t in i.needs:
                assert all(kk < k for kk, j in enumerate(p.ins) if j.tag == t), t

    if 'noarm' in X: p.ins = [i for i in p.ins if i.tag != 'arm']
    if 'nolds' in X: p.ins = [i for i in p.ins if not i.op.startswith('ds_read')]
    if 'nobar' in X: p.ins = [i for i in p.ins if i.op != 's_barrier']
    if 'now' in X: p.ins = [i for i in p.ins if not (i.op == 'buffer_load_dwordx4' and not i.isdma)]
    if 'noy' in X: p.ins = [i for i in p.ins if not i.isdma]
    if 'nost' in X: p.ins = [i for i in p.ins if not i.op.startswith('buffer_store_dwordx4')]
    t = p.finish(align) + extra
    if fused: return t, pre_setup, pre_loads, pre_grp, (f3c[3] + (f4c[3] if F4 else '') if f3 is not None else '')
    if align: print('c align', Prog.stats)
    return kernel(name, t, vgpr=256, agpr=256), f"; @launch kernel={name} grid=(256,1,1) block=(256,1,1) lds=163840\n"
```

```python
from asmlib import *
from layout import *
from k0 import srd
from ka import phi, QB
import kc, kp, kq
HF = ['']

CCD, CDA, CAB = 16384, 32768, 49152
aWOr = lambda ks, t: 64 + 4*((8 - ks)*5 + t)

BK = [0]
def spin(tag, sreg, va, vd, lanes, target, depth=1):
    ld = lambda k: f"buffer_load_dword v{vd+k}, v{va}, s[8:11], s{sreg} offen sc1 ; @"
    L = ([f"s_mov_b64 exec, {(1 << lanes) - 1}"] if lanes < 32 else ["s_mov_b32 exec_hi, 0"]) + [ld(k) for k in range(depth - 1)] + [f"L_{tag}_poll:"]
    for k in range(depth):
        L += [ld((k + depth - 1) % depth), f"s_waitcnt vmcnt({depth - 1}) ; @", f"v_cmp_gt_u32 vcc, {target}, v{vd+k}",
              "s_nop 4", f"s_cbranch_vccz L_{tag}_ok"]
    L += ["s_nop 15"] * BK[0]
    L += ["s_sub_u32 s49, s49, 1", "s_cmp_eq_u32 s49, 0", f"s_cbranch_scc0 L_{tag}_poll", f"L_{tag}_ok:", "s_mov_b64 exec, -1"]
    L.append(f"L_{tag}_go:")
    return "\n".join(L)

A_MAP = """s_and_b32 s17, s2, 7
s_lshr_b32 s18, s2, 3
s_lshr_b32 s19, s17, 2
s_lshl_b32 s19, s19, 2
s_and_b32 s20, s18, 3
s_add_u32 s19, s19, s20
s_and_b32 s20, s17, 3
s_lshl_b32 s20, s20, 3
s_lshr_b32 s21, s18, 2
s_add_u32 s20, s20, s21"""
A_WS = f"""s_mul_i32 s24, s20, 73728
s_add_u32 s24, s24, {WQF}
s_lshl_b32 s25, s16, 11
s_add_u32 s24, s24, s25"""
def a_wchunk(c):
    L = [f"s_add_u32 m0, s25, {c*8192}" if c else "s_mov_b32 m0, s25"]
    for i in range(2): L.append(I(f"buffer_load_dwordx4 v3, s[8:11], s24 offen offset:{i*1024} {HF[0]} lds", tag=f"w{c}"))
    if c < 8: L.append("s_addk_i32 s24, 8192")
    return L

def wo_loads(ts, sreg=50):
    G = []
    for t in ts:
        for ks in range(9):
            pre = []
            if ks in (4, 8): pre = [f"s_addk_i32 s{sreg}, 4096"]
            if ks == 0 and t != ts[0]: pre = [f"s_add_u32 s{sreg}, s{sreg}, {36864 - 8192}"]
            r = aWOr(ks, t)
            G.append(pre + [f"buffer_load_dwordx4 a[{r}:{r+3}], v3, s[8:11], s{sreg} offen offset:{(ks%4)*1024} {HF[0]}"])
    return G

def side_parts(ssf="sc1", lf="nt"):
    WB = WSN*1024
    SB = 98304
    V = 160
    v3_, v5_, vs_, t1, t2, ts1, ts2, c0, c1, vb, vcs, vag, T = V, V+1, V+2, V+3, V+4, V+5, V+6, V+7, V+8, V+9, V+10, V+11, V+12
    D = V + 16
    ka = "s_load_dwordx4 s[56:59], s[0:1], 32\ns_load_dwordx2 s[60:61], s[0:1], 48"
    setup = f"""s_mov_b32 s12, s56
s_mov_b32 s13, s57
s_mov_b32 s14, {576*4608*2}
s_mov_b32 s15, 0x20000
s_mov_b32 s44, s60
s_mov_b32 s45, s61
s_mov_b32 s46, {576*4608*2}
s_mov_b32 s47, 0x20000
s_mov_b32 s64, s58
s_mov_b32 s65, s59
s_mov_b32 s66, {4608*2}
s_mov_b32 s67, 0x20000
s_cmp_lt_u32 s16, 2
s_cselect_b32 s96, s56, s60
s_cselect_b32 s97, s57, s61
s_mov_b32 s98, {576*4608*2}
s_mov_b32 s99, 0x20000
s_and_b32 s56, s2, 7
s_bfe_u32 s57, s2, 0x20003
s_lshr_b32 s58, s2, 5
s_mul_i32 s59, s57, 9
s_add_u32 s60, s59, s16
s_mul_i32 s62, s60, {16*9216}
s_mul_i32 s68, s56, 1152
s_lshl_b32 s69, s58, 7
s_add_u32 s68, s68, s69
s_add_u32 s62, s62, s68
s_mul_i32 s87, s56, 36
s_add_u32 s87, s87, s60
s_mul_i32 s87, s87, {16*1152}
s_add_u32 s87, s87, s69
s_add_u32 s60, s59, 8
s_mul_i32 s88, s60, {16*9216}
s_add_u32 s88, s88, s68
s_mul_i32 s68, s56, 36
s_add_u32 s68, s68, s60
s_mul_i32 s68, s68, {16*1152}
s_add_u32 s68, s68, s69
s_cmp_lt_u32 s16, 2
s_cselect_b32 s88, s88, s68
s_cselect_b32 s68, 8, 1
s_mul_i32 s68, s68, 1152
s_and_b32 s69, s16, 1
s_lshl_b32 s69, s69, 6
s_add_u32 s88, s88, s69
s_mul_i32 s55, s16, 9216
s_add_u32 s55, s55, {SB}
v_bfe_u32 v{T}, v2, 2, 3
v_and_b32 v{T+1}, 3, v2
v_lshrrev_b32 v{T+2}, 5, v2
v_lshlrev_b32 v{T+3}, 6, v{T+2}
v_lshl_add_u32 v{T+3}, v{T+1}, 4, v{T+3}
v_mul_u32_u24 v{v3_}, 9216, v{T}
v_add_u32 v{v3_}, v{v3_}, v{T+3}
v_mul_u32_u24 v{v5_}, 1152, v{T}
v_add_u32 v{v5_}, v{v5_}, v{T+3}
v_lshrrev_b32 v{T}, 2, v2
v_mul_u32_u24 v{vs_}, s68, v{T}
v_lshl_add_u32 v{vs_}, v{T+1}, 4, v{vs_}""".split("\n")
    dma = []
    for b in range(2):
        for mi, (vo, sr, srd_, rs) in enumerate(((v3_, 62, 12, 9216), (v5_, 87, 44, 1152))):
            for u in range(2):
                L = [f"s_add_u32 m0, s55, {(2*b + mi)*2048 + u*1024}", I(f"buffer_load_dwordx4 v{vo}, s[{srd_}:{srd_+3}], s{sr} offen {lf} lds", tag=f"sd{b}{mi}")]
                if not (b == 1 and u == 1): L.append(f"s_add_u32 s{sr}, s{sr}, {(8 if u == 0 else 56)*rs}")
                dma.append(L)
    dma.append([f"s_add_u32 m0, s55, 8192", I(f"buffer_load_dwordx4 v{vs_}, s[96:99], s88 offen {lf} lds", tag="sds")])
    setup2 = f"""s_mul_i32 s68, s56, 18
s_lshl_b32 s69, s58, 1
s_add_u32 s68, s68, s69
s_lshl_b32 s68, s68, 6
v_lshlrev_b32 v{vb}, 1, v2
buffer_load_ushort v{vb}, v{vb}, s[64:67], s68 offen
v_and_b32 v{T+1}, 3, v2
v_lshrrev_b32 v{T+2}, 5, v2
v_lshlrev_b32 v{T}, 3, v{T+1}
v_bfe_u32 v{T+3}, v2, 2, 2
v_lshl_add_u32 v{T}, v{T+3}, 6, v{T}
v_bfe_u32 v{T+3}, v2, 4, 1
v_lshl_add_u32 v{T}, v{T+3}, 5, v{T}
v_add_u32 v{T}, s55, v{T}
v_lshl_add_u32 v{t1}, v{T+2}, 10, v{T}
v_lshl_add_u32 v{t2}, v{T+2}, 8, v{T}
s_cmp_lt_u32 s16, 2
s_cselect_b32 s68, 2, 1
s_cselect_b32 s69, 1, 2
s_lshl_b32 s68, s68, 8
s_lshl_b32 s69, s69, 8
v_mul_u32_u24 v{ts1}, s68, v{T+2}
v_add_u32 v{ts1}, v{ts1}, v{T}
v_add_u32 v{ts2}, s69, v{ts1}
v_mov_b32 v{c0}, 0
v_mov_b32 v{c1}, 0
s_lshl_b32 s89, s56, 2
s_and_b32 s68, s58, 1
s_lshl_b32 s68, s68, 1
s_add_u32 s89, s89, s68
s_mul_i32 s89, s89, {WB}
s_add_u32 s89, s89, {WSTR}
s_lshr_b32 s90, s58, 1
s_add_u32 s68, s90, 91
s_add_u32 s69, s90, 90
s_add_u32 s61, s90, 163
s_cmp_lt_u32 s58, 4
s_cselect_b32 s91, 5, 4
s_cselect_b32 s93, s90, s68
s_cselect_b32 s61, s69, s61
s_cselect_b32 s100, 3, 2
s_lshl_b32 s100, s100, 10
s_add_u32 s101, s90, 1
s_and_b32 s101, s101, 3
s_lshl_b32 s101, s101, 4
s_add_u32 s101, s101, 265
s_lshl_b32 s61, s61, 10
s_add_u32 s61, s61, s89
s_lshr_b32 s68, s57, 1
s_lshl_b32 s68, s68, 9
s_add_u32 s61, s61, s68
s_and_b32 s68, s57, 1
s_lshl_b32 s68, s68, 3
s_add_u32 s61, s61, s68
s_cmp_lt_u32 s57, 2
s_cselect_b32 s57, 0xffff, 0
v_lshlrev_b32 v{vcs}, 2, v0
v_add_u32 v{vcs}, {SB + 36864}, v{vcs}
v_and_b32 v{vag}, 31, v2
v_lshlrev_b32 v{vag}, 4, v{vag}
v_mul_u32_u24 v{T}, {WB}, v{T+2}
v_add_u32 v{vag}, v{vag}, v{T}""".split("\n")
    def dest(m):
        L = ["s_lshr_b32 s56, s60, 1", "s_and_b32 s58, s60, 1"]
        if m == 0:
            L += ["s_mul_i32 s68, s56, s91", "s_add_u32 s68, s68, s93", "s_mov_b32 s69, s100"]
        else:
            L += """s_sub_u32 s88, s56, 8
s_cmp_lt_u32 s56, 8
s_cselect_b32 s68, s56, s88
s_mul_i32 s68, s68, 9
s_add_u32 s68, s68, 167
s_add_u32 s68, s68, s90
s_lshl_b32 s69, s88, 1
s_add_u32 s69, s69, s101
s_cmp_lt_u32 s88, 8
s_cselect_b32 s68, s69, s68
s_cselect_b32 s69, 1, 5
s_lshl_b32 s69, s69, 10""".split("\n")
        L += f"""s_lshl_b32 s68, s68, 10
s_add_u32 s68, s68, s89
s_mul_i32 s58, s58, s69
s_add_u32 s62, s68, s58
s_add_u32 s68, s68, s69
s_sub_u32 s68, s68, s58
s_add_u32 s87, s68, {WB}""".split("\n")
        return L
    work = []
    for b in range(2):
        for mi in range(2):
            d = D + 8*((2*b + mi) % 4)
            base = (2*b + mi)*2048
            ra, o2 = ((t1, 256), (t2, 1024))[mi]
            for tt in range(2):
                work.append(I(f"ds_read_b64_tr_b16 v[{d+4*tt}:{d+4*tt+1}], v{ra} offset:{base + tt*512}", needs=[f"sd{b}{mi}"]))
                work.append(f"ds_read_b64_tr_b16 v[{d+4*tt+2}:{d+4*tt+3}], v{ra} offset:{base + tt*512 + o2}")
            if mi == 0: work.append(f"s_add_u32 s60, s59, s16" if b == 0 else "s_add_u32 s60, s60, 4")
            work += dest(mi)
            for tt in range(2):
                work.append(f"buffer_store_dwordx4 v[{d+4*tt}:{d+4*tt+3}], v3, s[8:11], s{(62, 87)[tt]} offen {ssf}")
                if mi == 0: work += [f"v_dot2c_f32_bf16 v{(c0, c1)[tt]}, v8, v{d+4*tt+q}" for q in range(4)]
    d = D + 32
    work += [I(f"ds_read_b64_tr_b16 v[{d}:{d+1}], v{ts1} offset:8192", needs=["sds"]), f"ds_read_b64_tr_b16 v[{d+2}:{d+3}], v{ts2} offset:8192", "s_add_u32 s60, s59, 8"]
    work += dest(0) + ["s_bitcmp1_b32 s16, 0", "s_cselect_b32 s55, s87, s62"] + dest(1)
    work += ["s_bitcmp1_b32 s16, 0", "s_cselect_b32 s62, s87, s62", "s_cmp_lt_u32 s16, 2", "s_cselect_b32 s62, s55, s62",
             f"buffer_store_dwordx4 v[{d}:{d+3}], v3, s[8:11], s62 offen {ssf}",
             "s_cmp_eq_u32 s16, 0", "s_cselect_b32 s68, 0x3f803f80, 0", "s_cmp_eq_u32 s16, 1", "s_cselect_b32 s69, 0x3f803f80, 0"]
    for q in range(4): work += [f"v_dot2c_f32_bf16 v{c0}, s68, v{d+q}", f"v_dot2c_f32_bf16 v{c1}, s69, v{d+q}"]
    work += [f"v_permlane32_swap_b32 v{c0}, v{c1}", f"v_add_f32 v{c0}, v{c0}, v{c1}", I(f"ds_write_b32 v{vcs}, v{c0}", tag='scs')]
    fin = [f"v_lshlrev_b32 v{vcs}, 2, v2", f"v_add_u32 v{vcs}, {SB + 36864}, v{vcs}"]
    fin += [f"ds_read_b32 v{D+w}, v{vcs} offset:{w*256}" for w in range(4)]
    fin += f"""v_add_f32 v{D}, v{D}, v{D+1}
v_add_f32 v{D+2}, v{D+2}, v{D+3}
v_add_f32 v{D}, v{D}, v{D+2}
v_cvt_pk_bf16_f32 v{D+4}, v{D}, v{D}
v_and_b32 v{D+1}, 0xffff0000, v{D+4}
v_sub_f32 v{D+1}, v{D}, v{D+1}
v_cvt_pk_bf16_f32 v{D+5}, v{D+1}, 0
v_and_b32 v{vb}, s57, v{vb}
v_lshl_or_b32 v{D+5}, v{vb}, 16, v{D+5}
buffer_store_dwordx2 v[{D+4}:{D+5}], v{vag}, s[8:11], s61 offen {ssf}""".split("\n")
    return ka, atomize(setup), dma, atomize(setup2), atomize(work), fin

def a_part(first, pfy=0, pfa=0, p2=None, FP=(0, 0, 84, 118), LW=(62, 74, 113, 124), p0=None, SD=(10, 75), dw=False, YR=16, D0=12, RAMP=1, NW=8, qsf="sc1", NP1=36, NPa=16, PD=1, yf='sc1', side=None, SW=(2, 12, 12, 34, 60, 112)):
    n = "a0" if first else "a1"
    p = Prog()
    p(A_MAP)
    p(f"""s_lshl_b32 s21, s19, 3
s_lshl_b32 s22, s16, 1
s_add_u32 s21, s21, s22
s_mul_i32 s22, s21, 36864
s_add_u32 s22, s22, {YF if first else YF + LS}""")
    if first: p(A_WS)
    if first and dw:
        p(f'''s_load_dwordx2 s[56:57], s[0:1], 8
v_lshrrev_b32 v200, 3, v2
v_mul_u32_u24 v200, 3456, v200
v_and_b32 v201, 3, v2
v_bfe_u32 v202, v2, 2, 1
v_lshlrev_b32 v203, 4, v201
v_mul_u32_u24 v204, 1152, v202
v_add_u32 v203, v203, v204
v_add_u32 v203, 1152, v203
v_lshlrev_b32 v204, 4, v202
v_cmp_eq_u32 vcc, 3, v201
v_cndmask_b32 v203, v203, v204, vcc
v_add_u32 v200, v200, v203
v_add_u32 v201, {8*3456 - 1024}, v200
s_mul_i32 s24, s20, 36
s_mul_i32 s58, s16, {16*3456}
s_add_u32 s24, s24, s58
s_waitcnt lgkmcnt(0)
s_mov_b32 s12, s56
s_mov_b32 s13, s57
s_mov_b32 s14, {576*1728*2}
s_mov_b32 s15, 0x20000''')
    ACC, WR, P0, V1, TMP, KVA, QO = 16, 80, 112, 120, 128, 136, 152
    items = []
    for g in range(72):
        if first and g < 36 and g % 4 == 0:
            wc = a_wchunk(g // 4)
            if dw:
                c = g // 4
                wc = [wc[0]] + [I(f"buffer_load_dwordx4 v{200+i}, s[12:15], s24 offen offset:{i*1024} lds", tag=f"w{c}") for i in range(2)] + ([f"s_add_u32 s24, s24, {64*3456}"] if c < 8 else [])
            items.append((g, wc))
        s = 4*(g % YR)
        pre = ["s_addk_i32 s22, 4096"] if (g % 4 == 0 and g) else []
        items.append((g, pre + [f"buffer_load_dwordx4 a[{s}:{s+3}], v3, s[8:11], s22 offen offset:{(g%4)*1024} {'' if first and not p0 and p2 is None else yf}"]))
    ip = 0
    def issue_upto(gmax):
        nonlocal ip
        L = []
        while ip < len(items) and items[ip][0] <= gmax:
            L += items[ip][1]; ip += 1
        return L
    def ypf(skip):
        if not pfy: return []
        n = 72 - skip
        return [f"s_mov_b32 exec_hi, {hex((1 << (n - 32)) - 1)}", f"buffer_load_dword v254, v255, s[8:11], s23 offen {yf}", "s_mov_b64 exec, -1"]
    SK = D0 if first else YR
    if pfy: p(f"s_lshr_b32 s23, s2, 5\ns_mul_i32 s23, s23, {(72 - SK)*128}\ns_add_u32 s23, s23, s22\ns_add_u32 s23, s23, {SK*1024}\nv_lshlrev_b32 v255, 7, v2")
    setup = f"""v_lshlrev_b32 v13, 2, v0
v_add_u32 v4, 65536, v3
s_mul_i32 s28, s16, 1280
s_add_u32 s28, s28, {QB - 20*64}
v_and_b32 v5, 31, v2
v_lshlrev_b32 v5, 6, v5
v_lshrrev_b32 v9, 5, v2
v_lshl_add_u32 v5, v9, 5, v5
v_add_u32 v5, s28, v5
v_bfe_u32 v6, v2, 2, 2
v_lshl_add_u32 v6, v9, 2, v6
v_lshlrev_b32 v6, 6, v6
v_and_b32 v7, 1, v2
v_lshl_add_u32 v6, v7, 5, v6
v_bfe_u32 v7, v2, 4, 1
v_lshl_add_u32 v6, v7, 4, v6
v_bfe_u32 v7, v2, 1, 1
v_lshl_add_u32 v6, v7, 3, v6
s_add_u32 s28, s28, {20*64}
v_add_u32 v6, s28, v6
v_lshlrev_b32 v7, 2, v2
s_mul_i32 s28, s16, 2560
v_add_u32 v15, s28, v3
v_lshlrev_b32 v14, 3, v2
v_add_u32 v14, s28, v14
v_and_b32 v8, 27, v2
v_cmp_eq_u32 s[30:31], 18, v8
v_mov_b32 v8, 0x3f803f80
s_mov_b32 s32, 0xfff00000
s_mov_b32 s33, 0xfff00000
s_lshl_b32 s26, s21, 5
s_add_u32 s26, s26, s20
s_lshl_b32 s27, s26, 8
s_lshl_b32 s26, s26, 10
s_add_u32 s26, s26, {PQ16 + (0 if first else LS)}
s_add_u32 s27, s27, {PQ4 + (0 if first else LS)}"""
    if first and p2 is not None:
        p(setup)
        p(kq.a0_go())
        p(nst('a_go'))
        if pfa: p.ext(issue_upto(pfa - 1)); p.ext(ypf(SK)); p.ext(issue_upto(D0 - 1))
        else: p.ext(issue_upto(D0 - 1)); p.ext(ypf(SK))
        p("ds_read_b32 v161, v162\nv_readfirstlane_b32 s3, v161")
    elif first and p0:
        n = "a0" + p0[0]
        p(setup)
        p(f"""s_and_b32 s56, s2, 7
s_lshl_b32 s56, s56, 10
s_add_u32 s56, s56, {kp.PFL}
s_mov_b32 s49, 0x40000
s_cmp_eq_u32 s16, 0
s_cbranch_scc0 L_{n}p_go""")
        p(kp.poll(n + "p", 56, 250) + f"L_{n}p_go:\ns_barrier")
        p(nst('a_go'))
        p.ext(issue_upto(D0 - 1))
    elif first:
        p.ext(issue_upto(D0 - 1))
        p(setup)
    else:
        p(setup)
        p(f"""s_lshl_b32 s28, s19, 2
s_bfe_u32 s29, s2, 0x20005
s_add_u32 s28, s28, s29
s_lshl_b32 s28, s28, 9
s_add_u32 s28, s28, {CNT + LS + CDA}
v_lshlrev_b32 v10, 7, v2
s_mov_b32 s49, 0x40000
s_waitcnt vmcnt(0)
s_cmp_eq_u32 s16, 0
s_cbranch_scc0 L_da_go""")
        p(spin("da", 28, 10, 250, 4, 8, PD))
        p("s_barrier")
        p(nst('a_go'))
        if pfa: p.ext(issue_upto(pfa - 1)); p.ext(ypf(SK)); p.ext(issue_upto(YR - 1))
        else: p.ext(issue_upto(YR - 1)); p.ext(ypf(SK))
    def wrd(f):
        g = f % 72
        s = WR + 4*(f % NW)
        L = []
        if first and f < 72 and f % 8 == 0: L.append(I("s_barrier", needs=[f"w{f//8}"]))
        L.append(f"ds_read_b128 v[{s}:{s+3}], v3 offset:{g*1024}" if g < 64 else f"ds_read_b128 v[{s}:{s+3}], v4 offset:{(g-64)*1024}")
        return L
    for f in range(NW - 1): p.ext(wrd(f))
    p(nst('a_first'))
    G = []
    for g in range(72):
        y = 4*(g % YR)
        for t in range(2):
            f = 2*g + t
            w = WR + 4*(f % NW)
            acc = ACC + 32*(g // 36) + 16*t
            c = "0" if g % 36 == 0 else f"v[{acc}:{acc+15}]"
            grp = [f"v_mfma_f32_32x32x16_bf16 v[{acc}:{acc+15}], a[{y}:{y+3}], v[{w}:{w+3}], {c}"]
            if f + NW - 1 < 144: grp += wrd(f + NW - 1)
            if t == 1:
                depth = min(YR, D0 + 1 + g*RAMP) if first else YR
                grp += issue_upto(g + depth)
            G.append(grp)
    assert ip == len(items)
    def epi1(rt):
        T0 = ACC + 32*rt; T1 = T0 + 16
        L = []
        for i in range(8): L.append(f"v_cvt_pk_bf16_f32 v{V1+i}, v{T1+2*i}, v{T1+2*i+1}")
        for i in range(8): L.append(f"v_cndmask_b32 v{V1+i}, v{V1+i}, v8, s[30:31]")
        ph = phi(list(range(T0, T0 + 16)), TMP)
        pk = [f"v_cvt_pk_bf16_f32 v{P0+i}, v{T0+2*i}, v{T0+2*i+1}" for i in range(8)]
        mm = [f"v_mfma_f32_32x32x16_bf16 v[{KVA}:{KVA+15}], v[{P0+4*q}:{P0+4*q+3}], v[{V1+4*q}:{V1+4*q+3}], " + ("0" if (rt == 0 and q == 0) else f"v[{KVA}:{KVA+15}]") for q in range(2)]
        L = ph[:32] + pk[:4] + L + [mm[0]] + ph[32:] + pk[4:] + [mm[1]]
        L.append(["s_mov_b64 exec, s[32:33]",
                  f"ds_write_b128 v5, v[{V1}:{V1+3}] offset:512", f"ds_write_b128 v5, v[{V1+4}:{V1+7}] offset:528",
                  f"ds_write_b128 v5, v[{P0}:{P0+3}]", f"ds_write_b128 v5, v[{P0+4}:{P0+7}] offset:16",
                  "s_mov_b64 exec, -1"])
        L += [f"ds_read_b64_tr_b16 v[{QO}:{QO+1}], v6", f"ds_read_b64_tr_b16 v[{QO+2}:{QO+3}], v6 offset:768", f"ds_read_b64_tr_b16 v[{QO+4}:{QO+5}], v6 offset:512"]
        return L
    def epi2(rt):
        u = TMP + 4
        L = [f"v_lshlrev_b32 v{u}, 16, v{QO+2}", f"v_and_b32 v{u+1}, 0xffff0000, v{QO+2}", f"v_lshlrev_b32 v{u+2}, 16, v{QO+3}", f"v_and_b32 v{u+3}, 0xffff0000, v{QO+3}"]
        L += phi([u, u+1, u+2, u+3], TMP)
        L += [f"v_cvt_pk_bf16_f32 v{QO+2}, v{u}, v{u+1}", f"v_cvt_pk_bf16_f32 v{QO+3}, v{u+2}, v{u+3}"]
        return L
    def qst(rt):
        L = ["s_add_u32 s26, s26, 32768", "s_add_u32 s27, s27, 8192"] if rt else []
        return L + [f"buffer_store_dwordx4 v[{QO}:{QO+3}], v3, s[8:11], s26 offen {qsf}", f"buffer_store_dword v{QO+4}, v7, s[8:11], s27 offen {qsf}"]
    late = f"""v_bfe_u32 v10, v0, 2, 5
v_lshrrev_b32 v12, 1, v0
v_cmp_gt_u32 s[34:35], 19, v10
v_cmp_eq_u32 s[36:37], 22, v10
s_or_b64 s[34:35], s[34:35], s[36:37]
v_cmp_gt_u32 s[38:39], 19, v12
v_cmp_eq_u32 s[36:37], 22, v12
s_or_b64 s[38:39], s[38:39], s[36:37]
s_mul_i32 s28, s20, 2560
s_add_u32 s28, s28, {KV + (0 if first else LS)}
s_lshr_b32 s51, s2, 6
s_mul_i32 s52, s51, 5
s_lshl_b32 s53, s51, 2
s_add_u32 s53, s53, 2
s_cmp_lt_u32 s51, 2
s_cselect_b32 s52, s52, s53
s_mul_i32 s50, s52, 36864
s_mul_i32 s53, s16, 9216
s_add_u32 s50, s50, s53
s_add_u32 s50, s50, {WOF}
s_lshl_b32 s54, s20, 7
s_add_u32 s54, s54, {CNT + CAB + (0 if first else LS)}
v_lshlrev_b32 v10, 12, v2
v_mov_b32 v11, 1""".split("\n")
    wo = wo_loads(range(4))[:NP1]
    if side and first:
        _, su, dma, su2, work, fin = side
        G[116] = G[116] + [I("s_barrier", needs=['scs'])]
        def put(L, a, b):
            for k, x in enumerate(L): G[a + k*(b - a)//len(L)] += x if isinstance(x, list) else [x]
        put(su, SW[0], SW[1]); put(dma, SW[2], SW[3]); put(su2, SW[3], SW[4]); put(work, SW[4], SW[5]); put(fin, 117, 130)
    elif first and p2 is not None:
        G[116] = G[116] + ["s_barrier"]
        f2 = kq.fchk('f2', 232, 57, 's3')
        G[FP[0]] = G[FP[0]] + kq.fsig('f2', 161, 162, 58)
        G[FP[2]] = G[FP[2]] + [f2[0]]
        for k, x in enumerate(f2[1]): G[FP[3] - 4 + k//2] = G[FP[3] - 4 + k//2] + [x]
        G[FP[3] + 1] = G[FP[3] + 1] + f2[2]
        G = [[y for x in g for y in (x if isinstance(x, list) else [x])] for g in G]
    elif first and p0:
        lf = SW[1] > 112
        G[116] = G[116] + [I("s_barrier", needs=[] if lf else ['scs'])]
        for L, a, b in ((p0[3], SD[0], SD[1]), (p0[1], SW[0], SW[1]), ([] if lf else p0[2], 117, 130)):
            for k, x in enumerate(L): G[a + k*(b - a)//len(L)] += x if isinstance(x, list) else [x]
    else: G[116] = G[116] + ["s_barrier"]
    for k in range(1, 144):
        if nst(f'a_g{k}'): G[k] = [nst(f'a_g{k}')] + G[k]
    for grp in G[:20]: p.ext(grp)
    p.ext(interleave(G[20:60], atomize(late)))
    for grp in G[60:74]: p.ext(grp)
    p.ext(interleave(G[74:124], epi1(0) + epi2(0) + qst(0)))
    p.ext(interleave(G[124:], wo[:NPa]))
    p(nst('a_epi'))
    e1 = epi1(1)
    rest = wo[NPa:]
    k1 = len(rest) * 2 // 3
    p.ext(interleave([x if isinstance(x, list) else [x] for x in e1], rest[:k1]))
    p(f"ds_write_b128 v15, v[{KVA}:{KVA+3}]\nds_write_b128 v15, v[{KVA+4}:{KVA+7}] offset:1024\nds_write_b64 v14, v[{KVA+8}:{KVA+9}] offset:2048")
    for x in rest[k1:]: p.ext(x)
    p("s_waitcnt lgkmcnt(0)")
    p("s_barrier")
    for it in range(3):
        for w in range(4): p(f"ds_read_b32 v{16 + 4*it + w}, v13 offset:{w*2560 + it*1024}")
    p.ext(epi2(1))
    if first and p0 and SW[1] > 112: p.ext(p0[2])
    for it in range(3):
        b = 16 + 4*it
        p(f"v_add_f32 v{b}, v{b}, v{b+1}\nv_add_f32 v{b+2}, v{b+2}, v{b+3}\nv_add_f32 v{b}, v{b}, v{b+2}")
    p(f"""s_mov_b64 exec, s[34:35]
buffer_atomic_add_f32 v16, v13, s[8:11], s28 offen
buffer_atomic_add_f32 v20, v13, s[8:11], s28 offen offset:1024
s_mov_b64 exec, -1""")
    p.ext(qst(1))
    p(f"""s_cmp_eq_u32 s16, 0
s_cbranch_scc0 L_{n}_end
s_mov_b64 exec, s[38:39]
buffer_atomic_add_f32 v24, v13, s[8:11], s28 offen offset:2048
s_mov_b64 exec, -1
L_{n}_end:""")
    for k, i in enumerate(p.ins):
        if i.kind == 'vm' and i.w and i.w[0][0] == 'a' and 's50' in i.r:
            assert not any(j.kind == 'mfma' and set(j.r) & set(i.w) for j in p.ins[k:]), i.text
    p(nst('a_st'))
    if first: p("s_branch L_ab")
    return p.finish() + (f2[3] if first and p2 is not None else "")

def ab_link(NP1=36, lp=None):
    p = Prog()
    if lp is not None: p(kq.LATE_KA)
    p(f"""s_and_b32 s17, s2, 7
s_lshl_b32 s17, s17, 3
s_bfe_u32 s19, s2, 0x30003
s_add_u32 s17, s17, s19
s_mov_b32 s18, s52
s_waitcnt vmcnt(0)
s_barrier
s_cmp_eq_u32 s16, 0
s_cbranch_scc0 L_ab_ns
s_mov_b64 exec, 0xffff
buffer_atomic_add v11, v10, s[8:11], s54 offen
s_mov_b64 exec, -1
L_ab_ns:""")
    p(nst('a_sig'))
    for x in wo_loads(range(4))[NP1:]: p.ext(x)
    if lp is not None: p(kq.late_setup()); p(kq.late_dmas(**lp))
    return p.finish() + "  s_cmp_lt_u32 s51, 2\n  s_cbranch_scc0 L_b4\n"

def b_part(NT, cz, xsf="sc1", PFD=3, PD=1, lf='sc1', allp=False, pbar=False, x4=False, dx=False, sb=None):
    p = Prog()
    KVR, NUM, TL, ACC, XR = 16, 112, 144, 152, 232
    aPQ = 0
    if NT == 5:
        for x in wo_loads(range(3, 5))[9:]: p.ext(x)
    p(f"""s_lshl_b32 s19, s16, 3
s_mul_i32 s20, s19, 2560
s_add_u32 s20, s20, {KV}{lay('s20')}
s_lshl_b32 s21, s17, 5
s_add_u32 s21, s21, s19
s_lshl_b32 s22, s21, 8
s_lshl_b32 s21, s21, 10
s_add_u32 s21, s21, {PQ16}{lay('s21')}
s_add_u32 s22, s22, {PQ4}{lay('s22')}
v_lshlrev_b32 v4, 3, v2
v_lshlrev_b32 v5, 2, v2
v_and_b32 v6, 24, v2
v_cmp_eq_u32 vcc, 24, v6
v_mov_b32 v6, 0x40000000
v_cndmask_b32 v12, v3, v6, vcc
v_cndmask_b32 v4, v4, v6, vcc
v_add_u32 v6, 4096, v3
s_mul_i32 s25, s17, 36864
s_lshl_b32 s26, s18, 11
s_add_u32 s25, s25, s26
s_lshl_b32 s26, s16, 9
s_add_u32 s25, s25, s26{lay('s25')}
s_add_u32 s26, s25, {XF}
s_add_u32 s27, s25, {X1F}
v_and_b32 v8, 31, v2
v_lshlrev_b32 v8, 4, v8
v_lshrrev_b32 v9, 5, v2
v_lshl_add_u32 v8, v9, 3, v8
v_add_u32 v9, 4096, v8
v_add_u32 v10, 8192, v8""")
    if x4:
        p("""v_and_b32 v246, 31, v2
v_lshrrev_b32 v247, 5, v2
v_lshlrev_b32 v8, 4, v246
v_lshl_add_u32 v8, v247, 11, v8
v_add_u32 v9, 4096, v8""")
        if dx:
            p(f"""s_mul_i32 s31, s17, 36864
s_lshl_b32 s32, s18, 6
s_add_u32 s31, s31, s32
s_lshl_b32 s32, s16, 4
s_add_u32 s31, s31, s32
s_cmp_eq_u32 s63, 0
s_cselect_b32 s26, s31, s26
s_cselect_b32 s31, 1152, 16
s_cselect_b32 s32, 64, 2048
v_mul_u32_u24 v246, s31, v246
v_mul_u32_u24 v13, s32, v247
v_lshl_add_u32 v247, v247, 3, v246
v_add_u32 v246, v246, v13
s_lshl_b32 s32, s32, 1
s_add_u32 s31, s26, s32
s_add_u32 s32, s31, s32""")
    for h in range(8): p(f"v_accvgpr_write_b32 a{aPQ+6*h+5}, 0")
    for g in range(1, 4):
        p(f"""s_add_u32 s28, s16, {g}
s_and_b32 s28, s28, 3
s_mul_i32 s28, s28, {3*NT*1024}
s_add_u32 s28, s28, {(g-1)*NT*1024}
v_add_u32 v{242+g}, s28, v3""")
    p(f"s_mul_i32 s28, s16, {3*NT*1024}\nv_add_u32 v14, s28, v3")
    p(f"s_lshl_b32 s28, s17, 8\ns_add_u32 s28, s28, {ST}{lay('s28')}")
    p.ext(cz[1])
    p(f"s_lshr_b32 s67, s17, 1\ns_lshl_b32 s67, s67, 2\ns_add_u32 s67, s67, s16\ns_lshl_b32 s67, s67, 7\ns_add_u32 s67, s67, {CNT}{lay('s67')}")
    pf = list(cz[3])
    if not allp and not pbar:
        for x in pf[:3]: p.ext(x)
    p(f"""s_lshl_b32 s29, s16, 10
s_bfe_u32 s30, s2, 0x40003
s_lshl_b32 s30, s30, 12
s_add_u32 s29, s29, s30
s_add_u32 s29, s29, {CNT + CAB}{lay('s29')}
v_lshlrev_b32 v7, 7, v2
s_mov_b32 s49, 0x40000""")
    if allp:
        p(f"s_waitcnt vmcnt(0)\ns_cmp_eq_u32 s16, 0\ns_cbranch_scc0 L_ab{NT}_go")
        p(spin(f"ab{NT}", 29, 7, 250, 32, 8, PD)); p("s_barrier")
    elif sb is not None:
        p(f"s_cmp_eq_u32 s16, 0\ns_cbranch_scc0 L_ab{NT}_go")
        p(spin(f"ab{NT}", 29, 7, 250, 32, 8, PD)); p("s_barrier")
    else: p(spin(f"ab{NT}", 29, 7, 250, 8, 8, PD))
    if sb is None: p.ins.append(I("s_nop 0", tag='__clr'))
    p(nst('b_go'))
    for h in range(8):
        k = KVR + 12*h; q = aPQ + 6*h
        p(f"""buffer_load_dwordx4 v[{k}:{k+3}], v12, s[8:11], s20 offen {lf}
buffer_load_dwordx4 v[{k+4}:{k+7}], v12, s[8:11], s20 offen offset:1024 {lf}
buffer_load_dwordx2 v[{k+8}:{k+9}], v4, s[8:11], s20 offen offset:2048 {lf}
buffer_load_dwordx4 a[{q}:{q+3}], v{(3,6)[h//4]}, s[8:11], s21 offen offset:{(h%4)*1024} {lf}
buffer_load_dword a{q+4}, v5, s[8:11], s22 offen offset:{h*256} {lf}""")
        if h < 7: p("s_addk_i32 s20, 2560")
    if x4:
        for u in range(2): p(f"buffer_load_dwordx4 v[{XR+4*u}:{XR+4*u+3}], " + (f"v246, s[12:15], s{(26, 31)[u]}" if dx else f"v{8+u}, s[8:11], s26") + f" offen {lf}")
        if NT == 5: p(f"buffer_load_dwordx2 v[{XR+8}:{XR+9}], " + ("v247, s[12:15], s32" if dx else "v10, s[8:11], s26") + f" offen {lf}")
    else:
        for t in range(NT): p(f"buffer_load_dwordx2 v[{XR+2*t}:{XR+2*t+1}], v{8 + t//2}, s[8:11], s26 offen offset:{(t%2)*2048} {lf}")
    def prep(h):
        k = KVR + 12*h; q = aPQ + 6*h; n = NUM + 16*(h % 2)
        L = [f"v_cvt_pk_bf16_f32 v{k+i}, v{k+2*i}, v{k+2*i+1}" for i in range(5)]
        L.append(f"v_mov_b32 v{k+5}, 0")
        L.append(f"v_mfma_f32_32x32x16_bf16 v[{n}:{n+15}], v[{k}:{k+3}], a[{q}:{q+3}], 0")
        L.append(f"v_mfma_f32_32x32x8_bf16 v[{n}:{n+15}], v[{k+4}:{k+5}], a[{q+4}:{q+5}], v[{n}:{n+15}]")
        return L
    def post(h):
        n = NUM + 16*(h % 2); o = KVR + 12*h + 8
        L = [f"v_add_f32 v11, 0x358637bd, v{n+10}", "v_rcp_f32 v11, v11"]
        for i in range(10): L.append(f"v_mul_f32 v{n+i}, v{n+i}, v11")
        for i in range(4): L.append(f"v_cvt_pk_bf16_f32 v{o+i}, v{n+2*i}, v{n+2*i+1}")
        L.append(f"v_cvt_pk_bf16_f32 v{TL + h//2 + 4*(h%2)}, v{n+8}, v{n+9}")
        return L
    def gemm(ks):
        o = KVR + 12*ks + 8 if ks < 8 else TL
        G = []
        for t in range(NT):
            r = aWOr(ks, t); a = ACC + 16*t
            c = "0" if ks == 0 else f"v[{a}:{a+15}]"
            G.append([f"v_mfma_f32_32x32x16_bf16 v[{a}:{a+15}], a[{r}:{r+3}], v[{o}:{o+3}], {c}"])
        return G
    flat = lambda L: [y for x in L for y in (x if isinstance(x, list) else [x])]
    for st in range(11):
        ks = st - PFD
        nl = pf[3 + 5*ks: 8 + 5*ks] if ks >= 0 else []
        if (allp or pbar) and ks == -1: nl = pf[:3]
        if pbar and ks == -1: p('s_barrier')
        if st < 8: p.ext(prep(st))
        fill = post(st - 1) if 0 <= st - 1 < 8 else []
        if st == 9: fill = [f"v_permlane32_swap_b32 v{TL+i}, v{TL+4+i}" for i in range(4)]
        if nl:
            m = []; step = max(1, len(fill) // len(nl)) if fill else 1; fi = 0
            for x in nl:
                m.append(x); m += fill[fi:fi+step]; fi += step
            fill = m + fill[fi:]
        if st >= 2: p.ext(interleave(gemm(st - 2), fill))
        else: p.ext(flat(fill))
    assert 3 + 5*(10 - PFD + 1) >= len(pf)
    p(nst('b_gemm'))
    p.ext([f"ds_write_b128 v{242+g}, v[{ACC + 16*t + 4*g}:{ACC + 16*t + 4*g + 3}] offset:{t*1024}" for t in range(NT) for g in range(1, 4)])
    p("s_waitcnt lgkmcnt(0)")
    p("s_barrier")
    RD = KVR
    for t in range(NT):
        for g in range(3):
            r = RD + 12*t + 4*g
            p(f"ds_read_b128 v[{r}:{r+3}], v14 offset:{(g*NT + t)*1024}")
    p("v_mov_b32 v15, 0\nv_mov_b32 v11, 0")
    swp = lambda u: f"v_permlane32_swap_b32 v{XR+4*u}, v{XR+4*u+2}\nv_permlane32_swap_b32 v{XR+4*u+1}, v{XR+4*u+3}"
    if x4:
        for u in range(2): p(swp(u))
    for t in range(NT):
        a = ACC + 16*t; x = XR + 2*t; u = a + 4
        p(f"v_lshlrev_b32 v{u}, 16, v{x}\nv_and_b32 v{u+1}, 0xffff0000, v{x}\nv_lshlrev_b32 v{u+2}, 16, v{x+1}\nv_and_b32 v{u+3}, 0xffff0000, v{x+1}")
        for i in range(4): p(f"v_add_f32 v{a+i}, v{a+i}, v{u+i}")
    for t in range(NT):
        a = ACC + 16*t; r = RD + 12*t; x = XR + 2*t
        for i in range(4): p(f"v_add_f32 v{a+i}, v{a+i}, v{r+i}")
        for i in range(4): p(f"v_add_f32 v{r+4+i}, v{r+4+i}, v{r+8+i}")
        for i in range(4): p(f"v_add_f32 v{a+i}, v{a+i}, v{r+4+i}")
        p(f"v_cvt_pk_bf16_f32 v{x}, v{a}, v{a+1}\nv_cvt_pk_bf16_f32 v{x+1}, v{a+2}, v{a+3}")
        if not x4 or t == 4: p(f"buffer_store_dwordx2 v[{x}:{x+1}], v{8 + t//2}, s[8:11], s27 offen offset:{(t%2)*2048} {xsf}")
        elif t % 2: p(swp(t//2)); p(f"buffer_store_dwordx4 v[{x-2}:{x+1}], v{8 + t//2}, s[8:11], s27 offen {xsf}")
    for t in range(NT):
        a = ACC + 16*t; x = XR + 2*t; u = a + 4
        p(f"v_lshlrev_b32 v{u}, 16, v{x}\nv_and_b32 v{u+1}, 0xffff0000, v{x}\nv_lshlrev_b32 v{u+2}, 16, v{x+1}\nv_and_b32 v{u+3}, 0xffff0000, v{x+1}")
        for i in range(4): p(f"v_add_f32 v15, v15, v{u+i}\nv_fmac_f32 v11, v{u+i}, v{u+i}")
    p(f"""v_permlane32_swap_b32 v15, v11
v_add_f32 v15, v15, v11
buffer_atomic_add_f32 v15, v5, s[8:11], s28 offen
v_mov_b32 v4, 0
v_mov_b32 v6, 1
s_waitcnt vmcnt(0)
s_mov_b64 exec, 1
buffer_atomic_add v6, v4, s[8:11], s67 offen
s_mov_b64 exec, -1""")
    p(nst('b_sig'))
    if NT == 5: p("s_branch L_bc_c")
    return p.finish(), ''

def w_mid():
    L = f"""s_cmp_eq_u32 s63, 0
s_cbranch_scc0 L_wm_skip
s_and_b32 s52, s2, 3
s_lshl_b32 s52, s52, 3
s_lshr_b32 s53, s2, 5
s_add_u32 s52, s52, s53
s_mul_i32 s52, s52, 73728
s_add_u32 s52, s52, {WQF}
s_mul_i32 s53, s16, 18432
s_add_u32 s52, s52, s53
s_mov_b32 m0, s53""".split("\n")
    for k in range(5):
        if k: L += [f"s_add_u32 m0, s53, {k*4096}", "s_addk_i32 s52, 4096"]
        L += ["s_nop 0"] + [f"buffer_load_dwordx4 v3, s[8:11], s52 offen offset:{i*1024} {HF[0]} lds" for i in range(4 if k < 4 else 2)]
    return L

def w_early():
    L = f"""s_cmp_eq_u32 s63, 0
s_cbranch_scc0 L_we_skip
s_and_b32 s52, s2, 3
s_lshl_b32 s52, s52, 3
s_lshr_b32 s53, s2, 5
s_add_u32 s52, s52, s53
s_mul_i32 s52, s52, 73728
s_add_u32 s52, s52, {WQF}
s_sub_u32 s53, s16, 1
s_mul_i32 s53, s53, 24576
s_add_u32 s52, s52, s53
s_mov_b32 m0, s53""".split("\n")
    for k in range(6):
        if k: L += [f"s_add_u32 m0, s53, {k*4096}", "s_addk_i32 s52, 4096"]
        L += ["s_nop 0"] + [f"buffer_load_dwordx4 v3, s[8:11], s52 offen offset:{i*1024} lds ; @" for i in range(4)]
    return L + ["L_we_skip:", "s_branch L_cd_go"]

def d_part(sf="sc1", lf="sc1", PD=1, we=True, p0=False, dx=False):
    p = Prog()
    PL, XL, BL, X, U = 32, 112, 124, 136, 160
    LX = 131072
    p(f"""s_lshr_b32 s20, s17, 2
s_lshl_b32 s21, s18, 1
s_add_u32 s20, s20, s21
s_and_b32 s21, s17, 3
s_mul_i32 s22, s20, 36864
s_lshl_b32 s23, s21, 7
s_add_u32 s22, s22, s23
s_add_u32 s22, s22, s63
s_lshl_b32 s24, s20, 8
s_lshl_b32 s25, s21, 5
s_add_u32 s24, s24, s25
s_add_u32 s24, s24, {ST}
s_add_u32 s24, s24, s63
s_lshl_b32 s25, s20, 5
s_lshl_b32 s26, s21, 3
s_add_u32 s25, s25, s26
s_mul_i32 s25, s25, 1152
s_lshl_b32 s26, s18, 9
s_add_u32 s26, s26, {CNT + CCD}
s_add_u32 s26, s26, s63
s_lshl_b32 s36, s16, 7
s_add_u32 s36, s36, s26
v_and_b32 v4, 7, v0
v_lshrrev_b32 v5, 3, v0
v_lshlrev_b32 v6, 9, v5
v_lshl_add_u32 v6, v4, 4, v6
v_add_u32 v7, 16384, v6
v_lshrrev_b32 v8, 2, v5
v_lshlrev_b32 v8, 9, v8
v_lshl_add_u32 v8, v4, 4, v8
v_and_b32 v9, 3, v5
v_lshl_add_u32 v8, v9, 2, v8
v_add_u32 v8, 32768, v8
v_lshlrev_b32 v9, 4, v5
v_lshlrev_b32 v10, 2, v5
v_lshlrev_b32 v11, 2, v4
s_add_u32 s27, s22, {X1F}""")
    srd(p, 12, 40, 1152)
    p(f"""buffer_load_dword v24, v11, s[8:11], s24 offen sc1
buffer_load_dword v25, v11, s[8:11], s24 offen offset:128 sc1
buffer_load_dwordx4 v[{XL}:{XL+3}], v6, s[8:11], s27 offen sc1
buffer_load_dwordx4 v[{XL+4}:{XL+7}], v7, s[8:11], s27 offen sc1
buffer_load_dword v{XL+8}, v8, s[8:11], s27 offen sc1
buffer_load_dwordx4 v[{BL}:{BL+3}], v9, s[12:15], 0 offen
buffer_load_dwordx4 v[{BL+4}:{BL+7}], v9, s[12:15], 0 offen offset:512
buffer_load_dword v{BL+8}, v10, s[12:15], 0 offen offset:1024
v_mov_b32 v12, 0
v_mov_b32 v13, 1
s_mov_b32 s49, 0x40000
s_waitcnt vmcnt(8)
s_mov_b64 exec, 1
buffer_atomic_add v13, v12, s[8:11], s36 offen
s_mov_b64 exec, -1
v_lshlrev_b32 v12, 7, v2""")
    p(nst('d_sig'))
    p(f"""v_mul_f32 v24, 0x3ae38e39, v24
v_mul_f32 v25, 0x3ae38e39, v25
v_fma_f32 v25, -v24, v24, v25
v_max_f32 v25, 0, v25
v_mov_b32 v26, 0x3f800054
v_mov_b32 v27, 0x2edbe6ff
v_fma_f32 v25, v25, v26, v27
v_rsq_f32 v25, v25
v_mov_b32 v14, 0x3f80
v_mov_b32 v15, 0x3f800000
v_mul_u32_u24 v16, 1152, v4
v_add_u32 v17, v16, v10
v_add_u32 v16, v16, v9""")
    nd = [4, 4, 1]
    for r in range(3):
        for i in range(nd[r]):
            x = XL + 4*r + i; b = BL + 4*r + i; u = U + 8*r + 2*i
            p(f"v_lshlrev_b32 v{u}, 16, v{x}\nv_and_b32 v{u+1}, 0xffff0000, v{x}\nv_lshlrev_b32 v{x}, 16, v{b}\nv_and_b32 v{b}, 0xffff0000, v{b}")
            p(f"v_add_f32 v{u}, v{u}, v{x}\nv_add_f32 v{u+1}, v{u+1}, v{b}")
    for j in range(8): p(f"s_add_u32 s{28+j}, s22, {PART + j*ACT}")
    if we == 1:
        p("s_cmp_eq_u32 s16, 0\ns_cbranch_scc1 L_cd_w0")
        p.ext(w_early()); p("L_cd_w0:")
    else: p("s_cmp_eq_u32 s16, 0\ns_cbranch_scc0 L_cd_go")
    p(spin("cd", 26, 12, 250, 4, 8, PD))
    p("s_barrier")
    p(nst('d_go'))
    for r in range(2):
        for j in range(8): p(f"buffer_load_dwordx4 v[{PL+32*r+4*j}:{PL+32*r+4*j+3}], v{6+r}, s[8:11], s{28+j} offen {lf}")
    for j in range(8): p(f"buffer_load_dword v{PL+64+j}, v8, s[8:11], s{28+j} offen {lf}")
    def sums(p):
        for r in range(3):
            src = lambda j, i: PL + 32*r + 4*j + i if r < 2 else PL + 64 + j
            for i in range(nd[r]): p(f"v_lshlrev_b32 v{X+8*r+2*i}, 16, v{src(0, i)}\nv_and_b32 v{X+8*r+2*i+1}, 0xffff0000, v{src(0, i)}")
            for j in range(1, 8):
                for i in range(nd[r]): p(f"v_dot2c_f32_bf16 v{X+8*r+2*i}, v{src(j, i)}, v14\nv_dot2c_f32_bf16 v{X+8*r+2*i+1}, v{src(j, i)}, v15")
            for i in range(2*nd[r]): p(f"v_fma_f32 v{X+8*r+i}, v{X+8*r+i}, v25, v{U+8*r+i}")
            for i in range(nd[r]): p(f"v_cvt_pk_bf16_f32 v{PL+32*r+i}, v{X+8*r+2*i}, v{X+8*r+2*i+1}")
    if we == 2:
        p.ext(w_mid())
        n0 = len(p.ins); sums(p)
        p("s_branch L_cd_mid\nL_wm_skip:")
        q = Prog()
        for r in range(2):
            for j in range(8): q(f"buffer_load_dwordx4 v[{PL+32*r+4*j}:{PL+32*r+4*j+3}], v{6+r}, s[8:11], s{28+j} offen {lf}")
        for j in range(8): q(f"buffer_load_dword v{PL+64+j}, v8, s[8:11], s{28+j} offen {lf}")
        sums(q); q.resolve_waits()
        for i in q.ins[24:]: i.text += " ; @"
        p.ins += q.ins[24:]
    else: sums(p)
    O = [PL, PL + 32, PL + 64]
    p(nst('d_use'))
    if we != 2: p("s_cmp_eq_u32 s63, 0\ns_cbranch_scc1 L_cd_mid")
    srd(p, 12, 42, ACT)
    p(f"""buffer_store_dwordx4 v[{O[0]}:{O[0]+3}], v16, s[12:15], s25 offen {sf}
buffer_store_dwordx4 v[{O[1]}:{O[1]+3}], v16, s[12:15], s25 offen offset:512 {sf}
buffer_store_dword v{O[2]}, v17, s[12:15], s25 offen offset:1024 {sf}""")
    if p0:
        srd(p, 36, 6, 256)
        p('''s_or_b32 s60, s2, s16
s_cmp_eq_u32 s60, 0
s_cbranch_scc0 L_d_nt
v_mov_b32 v20, 0
s_mov_b64 exec, 1
buffer_store_dword v20, v20, s[36:39], 0 offen sc1 ; @
s_mov_b64 exec, -1
L_d_nt:''')
    if SC.sel: p("s_waitcnt vmcnt(0) ; @"); p(nst('d_end')); nst_dump(p, 'd2')
    p("s_endpgm\nL_cd_mid:")
    p(f"""s_add_u32 s27, s22, {XF + LS}
s_add_u32 s28, s22, {YF + LS}
buffer_store_dwordx4 v[{O[0]}:{O[0]+3}], v6, s[8:11], s27 offen {sf}
buffer_store_dwordx4 v[{O[1]}:{O[1]+3}], v7, s[8:11], s27 offen {sf}
buffer_store_dword v{O[2]}, v8, s[8:11], s27 offen {sf}""")
    XS = []
    for r in range(3):
        for i in range(nd[r]):
            p(f"v_lshlrev_b32 v{X+8*r+2*i}, 16, v{O[r]+i}\nv_and_b32 v{X+8*r+2*i+1}, 0xffff0000, v{O[r]+i}")
            XS += [X+8*r+2*i, X+8*r+2*i+1]
    p(f"v_add_f32 v24, v{XS[0]}, v{XS[1]}\nv_add_f32 v26, v{XS[2]}, v{XS[3]}\nv_mul_f32 v25, v{XS[0]}, v{XS[0]}\nv_mul_f32 v27, v{XS[1]}, v{XS[1]}")
    for k, x in enumerate(XS[4:]): p(f"v_add_f32 v{24 + 2*(k%2)}, v{24 + 2*(k%2)}, v{x}")
    for k, x in enumerate(XS[2:]): p(f"v_fmac_f32 v{25 + 2*(k%2)}, v{x}, v{x}")
    p(f"""v_add_f32 v24, v24, v26
v_add_f32 v25, v25, v27
v_permlane32_swap_b32 v24, v25
v_add_f32 v24, v24, v25
v_mov_b32 v25, v24
v_permlane16_swap_b32 v24, v25
v_add_f32 v24, v24, v25
v_add_f32 v24, v24, v24 row_ror:8
v_bfe_u32 v27, v0, 5, 1
v_lshl_add_u32 v27, v4, 1, v27
v_lshlrev_b32 v27, 4, v27
s_lshl_b32 s29, s16, 2
s_add_u32 s29, s29, {LX}
v_add_u32 v27, s29, v27
v_and_b32 v28, 24, v0
v_cmp_eq_u32 vcc, 0, v28
s_and_saveexec_b64 s[30:31], vcc
ds_write_b32 v27, v24
s_mov_b64 exec, s[30:31]
v_lshlrev_b32 v27, 5, v4
v_add_u32 v27, {LX}, v27
s_lshr_b32 s29, s18, 2
s_lshl_b32 s29, s29, 4
s_and_b32 s36, s18, 3
s_add_u32 s29, s29, s36
s_lshl_b32 s29, s29, 7
s_add_u32 s29, s29, {CNT + LS + CDA}""")
    if not we: p(A_MAP); p(A_WS)
    p(f"""s_waitcnt lgkmcnt(0)
s_barrier
ds_read_b128 v[20:23], v27
ds_read_b128 v[28:31], v27 offset:16
v_add_f32 v20, v20, v21
v_add_f32 v22, v22, v23
v_add_f32 v28, v28, v29
v_add_f32 v30, v30, v31
v_add_f32 v20, v20, v22
v_add_f32 v28, v28, v30
v_mul_f32 v20, 0x3ae38e39, v20
v_mul_f32 v28, 0x3ae38e39, v28
v_fma_f32 v28, -v20, v20, v28
v_max_f32 v28, 0, v28
v_add_f32 v28, 0x3727c5ac, v28
v_rsq_f32 v28, v28""")
    for x in XS: p(f"v_sub_f32 v{x}, v{x}, v20")
    for x in XS: p(f"v_mul_f32 v{x}, v{x}, v28")
    for k in range(9): p(f"v_cvt_pk_bf16_f32 v{U+k}, v{XS[2*k]}, v{XS[2*k+1]}")
    p(f"""buffer_store_dwordx4 v[{U}:{U+3}], v6, s[8:11], s28 offen {sf}
buffer_store_dwordx4 v[{U+4}:{U+7}], v7, s[8:11], s28 offen {sf}
buffer_store_dword v{U+8}, v8, s[8:11], s28 offen {sf}""")
    if not we:
        for c in range(9): p.ext(a_wchunk(c))
    p(f"""v_lshlrev_b32 v12, 9, v2
s_waitcnt vmcnt({0 if we else 18})
s_barrier
s_cmp_eq_u32 s16, 0
s_cbranch_scc0 L_da_ns
s_mov_b64 exec, 15
buffer_atomic_add v13, v12, s[8:11], s29 offen
s_mov_b64 exec, -1
L_da_ns:""")
    p(nst('d_end')); nst_dump(p, 'd1')
    if dx: srd(p, 12, 4, WSSZ)
    p(f"s_mov_b32 s63, {LS}\ns_branch L_a1")
    return p.finish()

def late_out(**kw):
    q = Prog(); q(kq.late_st('lo', uni=False, **kw)[0])
    return kq.late_pre(run=False, split=kw.get('split', False)) + q.finish()

def main_kernel(a={}, b={}, c={}, d={}, bk=0, side=None, p0=None, hf='sc1', sfl={}, a0={}, p2=None):
    assert NEW
    BK[0] = bk
    HF[0] = hf if p0 is not None else ''
    if p0 is not None: b = dict(b, pbar=True); d = dict(d, p0=True); c = dict(c, wfl=hf)
    if p2 is not None: HF[0] = hf; b = dict(b, x4=True, dx=True, sb=p2.get('s', {})); d = dict(d, p0=True, dx=True); c = dict(c, wfl=hf, f3=p2.get('f', {}))
    cz = kc.c_kernel(fused=True, dz=True, rev=True, poll=lambda PD: spin('bc', 65, 4, 250, 4, 8, PD), **c)
    p = Prog()
    p("""s_cmp_lt_u32 s2, 256
s_cbranch_scc1 L_m_go
s_endpgm
L_m_go:
s_load_dwordx2 s[4:5], s[0:1], 80
s_load_dwordx4 s[40:43], s[0:1], 56""")
    if side is not None:
        sp = side_parts(**side); p(sp[0]); a = dict(a, side=sp); b = dict(b, allp=True)
    if p0 is not None or p2 is not None: p(kp.KARGS)
    if SC.sel: p(f"s_memrealtime s[{SC.m['t']}:{SC.m['t']+1}]")
    p(f"""v_lshrrev_b32 v1, 6, v0
v_and_b32 v2, 63, v0
v_readfirstlane_b32 s16, v1
v_lshlrev_b32 v3, 4, v2
s_mov_b32 s63, 0
s_mov_b32 s10, {WSSZ}
s_mov_b32 s11, 0x20000""")
    if p0 is None and p2 is None: p("s_waitcnt lgkmcnt(0)\ns_mov_b32 s8, s4\ns_mov_b32 s9, s5")
    NP1 = a.get('NP1', 36)
    if p2 is not None:
        a0 = kq.HEAD + kq.crit(**p2.get('c', {})) + kq.loader(**p2.get('l', {})) + "L_a0:\n" + a_part(True, p2=p2.get('t', {}), **dict(a, **a0))
    else:
        a0 = a_part(True, **a) if p0 is None else (kp.HEAD + kp.variant('q', **p0) + kp.variant('o', **p0) + "L_a0w1:\n" + a_part(True, p0=('w1',) + kp.side_fill(False, **sfl) + (kp.side_dmas(False) if p0.get('late', 0) < 0 else [],), **dict(dict(SW=(6, 110)), **a, **a0))
        + kp.variant('w2', **p0) + a_part(True, p0=('w2',) + kp.side_fill(True, **sfl) + (kp.side_dmas(True) if p0.get('late', 0) < 0 else [],), **dict(dict(SW=(6, 110)), **a, **a0)))
    body = p.finish() + a0 + "L_a1:\n" + a_part(False, **a) + "L_ab:\n" + ab_link(NP1, p2.get('s', {}) if p2 is not None else None)
    b5 = b_part(5, cz, **b); b4 = b_part(4, cz, **b)
    body += b5[0] + b5[1] + b4[1] + "L_b4:\n" + b4[0] + "L_bc_c:\n" + (late_out(**dict(p2.get('o', {}), split='W2' in p2.get('f', {}))) if p2 is not None else '') + cz[0] + d_part(**d) + (cz[4] + "  s_endpgm\nL_kend:\n" if p2 is not None else '')
    if p0 is not None or p2 is not None:
        return kernel("interleave_layers__linear_attn_block__mixer_channel_mlp__prompt_kernel", body, vgpr=256, agpr=256), "; @launch grid=(256,1,1) block=(256,1,1) lds=163840\n"
    return kernel("main_kernel", body, vgpr=256, agpr=256), "; @launch kernel=main_kernel grid=(256,1,1) block=(256,1,1) lds=163840\n"
```

```python
from asmlib import *
from layout import *
from k0 import srd

PFL = 0x9800000
FL1 = PFL + 0x4000
LX  = 81920
LC  = LX + 256
CSL = LX + 512
STG = 90112
WB  = WSN*1024
VN  = 160
VS, VT, VO, VOT, VB, C0, C1, VAG, VCS, VONE = range(170, 180)
E   = 184

KARGS = """s_load_dwordx8 s[44:51], s[0:1], 0
s_load_dwordx4 s[52:55], s[0:1], 32
s_load_dwordx2 s[56:57], s[0:1], 48
s_load_dwordx2 s[6:7], s[0:1], 72"""

def off(L):
    return "\n".join(l + " ; @" if l.strip() and not l.strip().endswith(':') else l for l in L.split("\n"))

def wo_idx(i):
    return f"""s_mul_i32 s60, s{i}, 1821
s_lshr_b32 s60, s60, 16
s_mul_i32 s61, s60, 36
s_sub_u32 s61, s{i}, s61
s_mul_i32 s64, s61, 7282
s_lshr_b32 s64, s64, 16
s_mul_i32 s65, s64, 9
s_sub_u32 s65, s61, s65"""

def dest_w1(T, vag):
    return f"""s_mul_i32 s101, s100, 9
s_lshr_b32 s62, s59, 1
s_and_b32 s87, s59, 1
s_lshl_b32 s87, s87, 1
s_lshl_b32 s88, s58, 2
s_add_u32 s87, s87, s88
s_mul_i32 s87, s87, {WB}
s_add_u32 s87, s87, {WSTR}
s_add_u32 s88, s62, 91
s_add_u32 s89, s62, 90
s_add_u32 s96, s62, 163
s_cmp_lt_u32 s59, 4
s_cselect_b32 s60, 5, 4
s_cselect_b32 s61, 3, 2
s_cselect_b32 s62, s62, s88
s_cselect_b32 s96, s89, s96
s_lshl_b32 s61, s61, 10
s_sub_u32 s99, 0, s61
s_cmp_eq_u32 s59, 8
s_cselect_b32 s60, 5, s60
s_cselect_b32 s86, 0, s61
s_cselect_b32 s61, {WB}, s61
s_cselect_b32 s99, s61, s99
s_cselect_b32 s62, 2, s62
s_cselect_b32 s96, 92, s96
s_cselect_b32 s97, {WB}, 0
s_add_u32 s98, s97, {WB}
v_lshrrev_b32 v{T}, 5, v2
v_mul_u32_u24 v{T}, s98, v{T}
v_and_b32 v{vag}, 31, v2
v_lshl_add_u32 v{vag}, v{vag}, 4, v{T}
s_add_u32 s86, s86, s98
s_lshl_b32 s60, s60, 10
s_lshl_b32 s96, s96, 10
s_add_u32 s96, s96, s87
s_lshr_b32 s88, s100, 1
s_lshl_b32 s88, s88, 9
s_add_u32 s96, s96, s88
s_and_b32 s88, s100, 1
s_lshl_b32 s88, s88, 3
s_add_u32 s96, s96, s88
s_add_u32 s97, s97, s96
s_lshl_b32 s62, s62, 10
s_add_u32 s87, s87, s62
s_lshr_b32 s62, s101, 1
s_mul_i32 s62, s62, s60
s_add_u32 s87, s87, s62
s_add_u32 s86, s86, s87
s_and_b32 s101, s101, 1
s_mul_i32 s62, s101, s61
s_add_u32 s87, s87, s62
s_mul_i32 s62, s101, s99
s_add_u32 s86, s86, s62
s_sub_u32 s62, s60, s61
s_sub_u32 s60, s60, s99
s_cmp_eq_u32 s101, 0
s_cselect_b32 s88, s61, s62
s_cselect_b32 s89, s62, s61
s_cselect_b32 s90, s99, s60
s_cselect_b32 s91, s60, s99
s_cmp_lt_u32 s100, 2
s_cselect_b32 s93, 0xffff, 0"""

def tr_addr(T, vt, base, sh):
    return f"""v_and_b32 v{T}, 3, v2
v_bfe_u32 v{T+1}, v2, 4, 1
v_lshl_add_u32 v{T+1}, v{T+1}, 2, v{T}
v_bfe_u32 v{T+2}, v2, 2, 2
v_lshlrev_b32 v{T+2}, 6, v{T+2}
v_lshrrev_b32 v{T}, 5, v2
v_lshl_add_u32 v{T+2}, v{T}, {sh}, v{T+2}
v_lshl_add_u32 v{vt}, v{T+1}, 3, v{T+2}
v_add_u32 v{vt}, {base}, v{vt}"""

def fin_val(c0, c1, f, vb):
    return f"""v_permlane32_swap_b32 v{c0}, v{c1}
v_add_f32 v{c0}, v{c0}, v{c1}
v_cvt_pk_bf16_f32 v{f}, v{c0}, v{c0}
v_and_b32 v{c1}, 0xffff0000, v{f}
v_sub_f32 v{c1}, v{c0}, v{c1}
v_cvt_pk_bf16_f32 v{f+1}, v{c1}, 0
v_and_b32 v{vb}, s93, v{vb}
v_lshl_or_b32 v{f+1}, v{vb}, 16, v{f+1}"""

SRDS = lambda w: f"""s_mov_b32 s44, s54
s_mov_b32 s45, s55
s_mov_b32 s46, {4608*2}
s_mov_b32 s47, 0x20000
s_mov_b32 s64, s{w}
s_mov_b32 s65, s{w+1}
s_mov_b32 s66, {576*4608*2}
s_mov_b32 s67, 0x20000"""

def w2_idx(w):
    return f"""s_lshr_b32 s60, s2, 3
s_sub_u32 s60, s60, 18
s_lshl_b32 s60, s60, 2
s_add_u32 s60, s60, {w}
s_min_u32 s60, s60, 53
s_mul_i32 s88, s60, 7282
s_lshr_b32 s88, s88, 16
s_mul_i32 s61, s88, 9
s_sub_u32 s86, s60, s61"""

def lspin(tag, va, cmp, val, out, vd=20, o=0):
    return "s_mov_b32 s49, 0x400000\n" + off(f"""L_{tag}:
ds_read_b32 v{vd}, v{va} offset:{o}
s_waitcnt lgkmcnt(0)
v_readfirstlane_b32 s60, v{vd}
s_sub_u32 s49, s49, 1
s_cmp_eq_u32 s49, 0
s_cbranch_scc1 {out}
s_cmp_{cmp}_u32 s60, {val}
s_cbranch_scc1 L_{tag}""")

def crit(sf="sc1", lf="", cf="", wql=False, XX=()):
    p = Prog()
    O, X, U, D, T = 32, 44, 68, 80, 20
    vx, vy, vq, vq2, va, vb, vw, vf = 4, 5, 6, 7, 8, 9, 10, 11
    p(f"""L_pc:
v_and_b32 v12, 7, v2
v_lshrrev_b32 v13, 3, v2
v_mul_u32_u24 v{vx}, 1152, v12
v_lshl_add_u32 v{vx}, v13, 4, v{vx}
s_mul_i32 s59, s2, 9216
s_mul_i32 s60, s16, 384
s_add_u32 s59, s59, s60
s_lshr_b32 s17, s2, 3
s_and_b32 s18, s2, 7
s_mul_i32 s33, s18, 3
s_add_u32 s33, s33, s16
s_mul_i32 s18, s33, 3
s_mul_i32 s33, s33, {24*3456}
s_mul_i32 s60, s17, 36
s_add_u32 s33, s33, s60
s_mul_i32 s19, s16, 5120
v_and_b32 v{T}, 3, v2
v_lshrrev_b32 v{T+1}, 2, v2
v_lshrrev_b32 v{T+2}, 5, v2
v_mul_u32_u24 v{vq}, 3456, v{T+1}
v_lshl_add_u32 v{vq}, v{T}, 4, v{vq}
v_mul_u32_u24 v{vq2}, {8*3456 - 1152}, v{T+2}
v_sub_u32 v{vq2}, v{vq}, v{vq2}
v_mov_b32 v{T+3}, 0x40000000
v_cmp_eq_u32 vcc, 3, v{T}
v_cndmask_b32 v{vq}, v{vq}, v{T+3}, vcc
v_cndmask_b32 v{vq2}, v{vq2}, v{T+3}, vcc""")
    p(nst('p_0'))
    p("s_waitcnt lgkmcnt(0)\ns_mov_b32 s8, s4\ns_mov_b32 s9, s5")
    p(nst('p_ka'))
    srd(p, 12, 44, ACT); srd(p, 20, 46, 576*1728*2)
    def xl():
        for i in range(3): p(f"buffer_load_dwordx4 v[{O+4*i}:{O+4*i+3}], v{vx}, s[12:15], s59 offen offset:{i*128} {lf}")
    if 'al' in XX: p("s_and_b32 s33, s33, -16")
    if 'al128' in XX: p("s_and_b32 s33, s33, -128")
    if 'xco' in XX: p(f"v_mul_u32_u24 v{vx}, 1152, v13\nv_lshl_add_u32 v{vx}, v12, 4, v{vx}")
    if 'wqf' not in XX: xl()
    p("s_mov_b32 m0, s19")
    for u in range(3):
        p(f"buffer_load_dwordx4 v{vq}, s[20:23], s33 offen offset:{u*1024} {cf} lds", tag='q0')
        p(f"s_add_u32 s33, s33, {128 if u < 2 else 16*3456 - 256 - 3072}")
    p(f"buffer_load_dwordx4 v{vq2}, s[20:23], s33 offen offset:3072 {cf} lds", tag='q1')
    p(f"s_add_u32 m0, s19, 4096\ns_add_u32 s33, s33, {2304 + 3072}\ns_mov_b32 exec_hi, 0")
    p(f"buffer_load_dwordx4 v{vq2}, s[20:23], s33 offen {cf} lds", tag='q1')
    if 'wqf' in XX: p("s_mov_b64 exec, -1"); xl()
    p("s_mov_b64 exec, -1\ns_barrier")
    srd(p, 36, 6, 256)
    p(f"""s_or_b32 s60, s2, s16
s_cmp_eq_u32 s60, 0
s_cbranch_scc0 L_pc_nt
s_memrealtime s[60:61]
v_mov_b32 v{T+3}, 0
s_waitcnt lgkmcnt(0)
s_or_b32 s60, s60, 1
v_mov_b32 v{T+4}, s60
s_mov_b64 exec, 1
buffer_store_dword v{T+4}, v{T+3}, s[36:39], 0 offen sc1 ; @
s_mov_b64 exec, -1
L_pc_nt:""")
    p(nst('p_q'))
    p(f"""v_lshlrev_b32 v{vy}, 9, v13
v_lshl_add_u32 v{vy}, v12, 4, v{vy}
s_lshr_b32 s58, s2, 2
s_mul_i32 s58, s58, 36864
s_and_b32 s59, s2, 3
s_lshl_b32 s59, s59, 7
s_add_u32 s58, s58, s59
s_mul_i32 s59, s16, 12288
s_add_u32 s24, s58, s59
s_add_u32 s24, s24, {YF}
s_add_u32 s25, s24, 4096
s_add_u32 s26, s24, 8192
s_mul_i32 s27, s17, 73728
s_add_u32 s27, s27, {WQF}""")
    for k in range(3):
        p(f"""s_add_u32 s60, s18, {k}
s_lshr_b32 s61, s60, 1
s_lshl_b32 s61, s61, 11
s_and_b32 s60, s60, 1
s_lshl_b32 s60, s60, 9
s_add_u32 s61, s61, s60
s_add_u32 s{28+k}, s27, s61""")
    p(f"""s_lshl_b32 s32, s2, 4
s_add_u32 s32, s32, {FL1}
v_and_b32 v{vw}, 31, v2
v_lshlrev_b32 v{vw}, 4, v{vw}
v_lshl_add_u32 v{vw}, v{T+2}, 10, v{vw}
v_bfe_u32 v{T+3}, v2, 4, 1
v_lshl_add_u32 v{T+3}, v{T+3}, 2, v{T}
v_lshlrev_b32 v{T+4}, 3, v{T+3}
v_add_u32 v{va}, 1024, v{T+4}
v_subrev_u32 v{T+5}, 40, v{T+4}
v_cmp_gt_u32 vcc, 5, v{T+3}
v_cndmask_b32 v{va}, v{T+5}, v{va}, vcc
v_mov_b32 v{T+5}, 32
v_cmp_eq_u32 vcc, 7, v{T+3}
v_cndmask_b32 v{va}, v{va}, v{T+5}, vcc
v_add_u32 v{vb}, 2048, v{T+4}
v_subrev_u32 v{T+5}, 32, v{T+4}
v_cmp_gt_u32 vcc, 6, v{T+3}
v_cndmask_b32 v{vb}, v{T+5}, v{vb}, vcc
v_cmp_lt_u32 vcc, 31, v2
v_cndmask_b32 v{va}, v{va}, v{vb}, vcc
v_lshrrev_b32 v{vb}, 10, v{va}
v_lshlrev_b32 v{vb}, 9, v{vb}
v_sub_u32 v{vb}, v{va}, v{vb}
v_and_b32 v{T+1}, 3, v{T+1}
v_lshlrev_b32 v{T+1}, 6, v{T+1}
v_add_u32 v{T+1}, s19, v{T+1}
v_add_u32 v{va}, v{va}, v{T+1}
v_add_u32 v{vb}, v{vb}, v{T+1}
v_bfe_u32 v14, v2, 5, 1
v_lshl_add_u32 v14, v12, 1, v14
v_lshlrev_b32 v14, 4, v14
s_lshl_b32 s60, s16, 2
s_add_u32 s60, s60, {LX}
v_add_u32 v14, s60, v14
v_lshlrev_b32 v15, 5, v12
v_add_u32 v15, {LX}, v15
v_and_b32 v16, 24, v2
v_cmp_eq_u32 s[34:35], 0, v16
v_mov_b32 v17, 0
v_mov_b32 v18, {LC}
v_mov_b32 v19, 1
s_mov_b32 s49, 0x40000""")
    p(nst('p_iss'))
    XS = list(range(X, X + 24))
    for i in range(12): p(f"v_lshlrev_b32 v{X+2*i}, 16, v{O+i}\nv_and_b32 v{X+2*i+1}, 0xffff0000, v{O+i}")
    p(nst('p_x'))
    ARR = ["s_mov_b64 exec, 1", "ds_add_u32 v18, v19 offset:20", "s_mov_b64 exec, -1"]
    p.ext(ARR)
    p(f"v_add_f32 v24, v{XS[0]}, v{XS[1]}\nv_add_f32 v26, v{XS[2]}, v{XS[3]}\nv_mul_f32 v25, v{XS[0]}, v{XS[0]}\nv_mul_f32 v27, v{XS[1]}, v{XS[1]}")
    for k, x in enumerate(XS[4:]): p(f"v_add_f32 v{24 + 2*(k%2)}, v{24 + 2*(k%2)}, v{x}")
    for k, x in enumerate(XS[2:]): p(f"v_fmac_f32 v{25 + 2*(k%2)}, v{x}, v{x}")
    p(f"""v_add_f32 v24, v24, v26
v_add_f32 v25, v25, v27
v_permlane32_swap_b32 v24, v25
v_add_f32 v24, v24, v25
v_mov_b32 v25, v24
v_permlane16_swap_b32 v24, v25
v_add_f32 v24, v24, v25
v_add_f32 v24, v24, v24 row_ror:8
s_mov_b64 exec, s[34:35]
ds_write_b32 v14, v24
s_mov_b64 exec, -1""")
    p(nst('p_s1'))
    def wq():
        for k in range(3):
            for h in range(2):
                p(f"ds_read_b64_tr_b16 v[{D+4*k+2*h}:{D+4*k+2*h+1}], v{va if k < 2 else vb} offset:{(k*512 if k < 2 else 3072) + h*256}", needs=['q0' if k < 2 else 'q1'])
        p.ext(ARR)
        for k in range(3): p(f"buffer_store_dwordx4 v[{D+4*k}:{D+4*k+3}], v{vw}, s[8:11], s{28+k} offen {sf}")
    if not wql: wq()
    p(nst('p_wq'))
    p(off(f"""L_pc_sw:
ds_read_b128 v[20:23], v15
ds_read_b128 v[28:31], v15 offset:16
s_waitcnt lgkmcnt(0)
v_max3_u32 v24, v20, v21, v22
v_max3_u32 v25, v28, v29, v30
v_max_u32 v24, v24, v25
v_cmp_eq_u32 vcc, -1, v24
s_sub_u32 s49, s49, 1
s_cmp_eq_u32 s49, 0
s_cbranch_scc1 L_pc_sk
s_nop 2
s_cbranch_vccnz L_pc_sw
L_pc_sk:"""))
    p(nst('p_s2'))
    p("""v_add_f32 v20, v20, v21
v_add_f32 v28, v28, v29
v_add_f32 v20, v20, v22
v_add_f32 v28, v28, v30
v_mul_f32 v20, 0x3ae38e39, v20
v_mul_f32 v28, 0x3ae38e39, v28
v_fma_f32 v28, -v20, v20, v28
v_max_f32 v28, 0, v28
v_add_f32 v28, 0x3727c5ac, v28
v_rsq_f32 v28, v28""")
    for i in range(3):
        xs = XS[8*i:8*i+8]
        for x in xs: p(f"v_sub_f32 v{x}, v{x}, v20")
        for x in xs: p(f"v_mul_f32 v{x}, v{x}, v28")
        for k in range(4): p(f"v_cvt_pk_bf16_f32 v{U+4*i+k}, v{xs[2*k]}, v{xs[2*k+1]}")
        p(f"buffer_store_dwordx4 v[{U+4*i}:{U+4*i+3}], v{vy}, s[8:11], s{24+i} offen {sf}")
    if wql: wq()
    p(f"buffer_load_dword v{VN}, v17, s[36:39], 0 offen sc1")
    p(nst('p_st'))
    p("s_mov_b32 s49, 0x40000\ns_waitcnt vmcnt(0)")
    p(off(f"""L_pc_tg:
v_readfirstlane_b32 s61, v{VN}
s_sub_u32 s49, s49, 1
s_cmp_eq_u32 s49, 0
s_cbranch_scc1 L_pc_tk
s_cmp_eq_u32 s61, 0
s_cbranch_scc0 L_pc_tk
buffer_load_dword v{VN}, v17, s[36:39], 0 offen sc1
s_waitcnt vmcnt(0)
s_branch L_pc_tg
L_pc_tk:"""))
    p(f"""s_mov_b64 exec, 1
ds_add_rtn_u32 v20, v18, v19
s_waitcnt lgkmcnt(0)
v_readfirstlane_b32 s60, v20
s_cmp_eq_u32 s60, 2
s_cbranch_scc0 L_pc_ns
buffer_store_dword v{VN}, v17, s[8:11], s32 offen sc1 ; @
L_pc_ns:
s_mov_b64 exec, -1""")
    p(nst('p_sig'))
    p("s_branch L_a0")
    return p.finish()

NE, NO, NB = 160, 241, 4
def lane_off(T):
    return f"""v_and_b32 v{T}, 3, v2
v_bfe_u32 v{T+1}, v2, 2, 3
v_lshrrev_b32 v{T+2}, 5, v2
v_lshlrev_b32 v{T+2}, 6, v{T+2}
v_lshl_add_u32 v{T+2}, v{T}, 4, v{T+2}"""

def loader(sf="sc1", slf="nt", cf="", G1=0, G3=0, LA=6, XX=(), cp=0):
    T = 20
    p = Prog()
    p(f"""L_pl:
s_lshl_b32 s58, s2, 10
s_add_u32 s58, s58, {ZR}
s_add_u32 s59, s58, {LS}
v_mov_b32 v28, 0
v_mov_b32 v29, 0
v_mov_b32 v30, 0
v_mov_b32 v31, 0
{lane_off(T)}
v_mov_b32 v18, {LC}
s_waitcnt lgkmcnt(0)
s_mov_b32 s8, s4
s_mov_b32 s9, s5""")
    srd(p, 12, 44, ACT); srd(p, 24, 48, 576*576*2)
    p(SRDS(52))
    p(f"""buffer_store_dwordx4 v[28:31], v3, s[8:11], s58 offen {sf}
buffer_store_dwordx4 v[28:31], v3, s[8:11], s59 offen {sf}
s_barrier""")
    if cp:
        p(f"""s_getpc_b64 s[86:87]
L_cp:
s_lshr_b32 s60, s2, 3
s_mul_i32 s60, s60, {cp}
v_min_u32 v26, {cp - 1}, v2
v_add_u32 v26, s60, v26
v_lshlrev_b32 v26, 7, v26
s_mov_b32 s60, L_kend-L_cp-4
v_min_u32 v26, s60, v26
global_load_dword v25, v26, s[86:87]""")
    p(f"""s_cmp_lt_u32 s2, {NO}
s_cbranch_scc0 L_plx""")
    if G1: p(lspin('pl_g1', 18, 'lt', G1, 'L_pl_g1e', vd=27, o=20) + "\nL_pl_g1e:")
    p(f"s_cmp_lt_u32 s2, {NE}\ns_cbranch_scc0 L_plo")
    out = p.finish()
    p = Prog()
    p(f"""s_and_b32 s58, s2, 7
s_lshr_b32 s59, s2, 5
s_bfe_u32 s100, s2, 0x20003
s_cmp_lt_u32 s59, 4
s_cselect_b32 s59, s59, 8
s_mul_i32 s61, s58, 9
s_add_u32 s61, s61, s59
s_lshl_b32 s61, s61, 7
s_mul_i32 s68, s100, {9*16*9216}
s_add_u32 s68, s68, s61
v_mul_u32_u24 v{VS}, 9216, v{T+1}
v_add_u32 v{VS}, v{VS}, v{T+2}
v_lshlrev_b32 v{VB}, 1, v2""")
    for i in range(18):
        if i % 4 == 0: p(f"s_mov_b32 m0, {STG + (i//4)*4096}")
        p(f"buffer_load_dwordx4 v{VS}, s[64:67], s68 offen offset:{(i%4)*1024} {slf} lds", tag=f"e{i//2}")
        if i < 17: p(f"s_add_u32 s68, s68, {8*9216 - 1024 if i % 4 < 3 else 8*9216 + 3072}")
    p(f"buffer_load_ushort v{VB}, v{VB}, s[44:47], s61 offen")
    if 'nold' in XX: p.ins = [i for i in p.ins if not i.isdma]
    p(nst('p_sd'))
    p(dest_w1(T, VAG)); p(tr_addr(T, VT, STG, 10))
    p(f"v_mov_b32 v{C0}, 0\nv_mov_b32 v{C1}, 0\nv_mov_b32 v{VONE}, 0x3f803f80")
    if G3: p(lspin('pl_g3', 18, 'lt', 3, 'L_pl_g3e', vd=27) + "\nL_pl_g3e:")
    rd, st = [], []
    for b in range(9):
        for t in range(2):
            d = E + 4*((2*b + t) % 12)
            rd.append([I(f"ds_read_b64_tr_b16 v[{d+2*h}:{d+2*h+1}], v{VT} offset:{b*2048 + t*512 + h*256}", needs=[f"e{b}"]) for h in range(2)])
            sr = (87, 86)[t]
            st.append([f"buffer_store_dwordx4 v[{d}:{d+3}], v3, s[8:11], s{sr} offen {sf}"] + ([f"s_add_u32 s{sr}, s{sr}, s{88 + 2*t + b % 2}"] if b < 8 else []) +
                      [f"v_dot2c_f32_bf16 v{(C0, C1)[t]}, v{VONE}, v{d+q}" for q in range(4)])
    for x in rd[:LA]: p.ext(x)
    for i, x in enumerate(st):
        p.ext(x)
        if i + LA < len(rd): p.ext(rd[i + LA])
    p(fin_val(C0, C1, T, VB))
    p(f"""buffer_store_dwordx2 v[{T}:{T+1}], v{VAG}, s[8:11], s96 offen {sf}""")
    p(nst('p_ld'))
    p(f"""s_cmp_eq_u32 s96, s97
s_cbranch_scc1 L_a0
buffer_store_dwordx2 v[{T}:{T+1}], v{VAG}, s[8:11], s97 offen {sf}
s_branch L_a0""")
    if 'nost' in XX: p.ins = [i for i in p.ins if not i.op.startswith('buffer_store')]
    out += p.finish()
    p = Prog()
    p("L_plo:")
    WBK, WD = 28, 32
    for k in range(NB):
        p(f"""s_mul_i32 s62, s2, {NB}
s_sub_u32 s62, s62, {NB*NE - k}
{wo_idx(62)}
s_mul_i32 s68, s{WBK+k}, 144
s_mul_i32 s89, s69, 18
s_cmp_lt_u32 s69, 8
s_cselect_b32 s89, s89, 16
s_cselect_b32 s90, 4, 18
s_cselect_b32 s91, 2, 1
s_cselect_b32 s93, 8, 36
s_cselect_b32 s96, 3, 1
s_mul_i32 s90, s90, 1152
s_sub_u32 s90, s90, 1024
s_mul_i32 s93, s93, 1152
s_add_u32 s68, s68, s89
s_mul_i32 s68, s68, 1152
s_lshl_b32 s62, s60, 7
s_add_u32 s68, s68, s62
v_lshrrev_b32 v{T+4}, s91, v{T+1}
v_mul_u32_u24 v{VO}, s93, v{T+4}
v_and_b32 v{T+3}, s96, v{T+1}
v_mul_u32_u24 v{T+3}, 1152, v{T+3}
v_add3_u32 v{VO}, v{VO}, v{T+3}, v{T+2}
s_mov_b32 m0, {STG + k*2048}""".replace("s64", f"s{WBK+k}").replace("s65", "s69"))
        p(f"buffer_load_dwordx4 v{VO}, s[24:27], s68 offen {cf} lds", tag=f"o{k}")
        p("s_add_u32 s68, s68, s90")
        p(f"buffer_load_dwordx4 v{VO}, s[24:27], s68 offen offset:1024 {cf} lds", tag=f"o{k}")
        p(f"""s_mul_i32 s{WD+k}, s60, 72
s_add_u32 s{WD+k}, s{WD+k}, s61
s_lshl_b32 s{WD+k}, s{WD+k}, 10
s_add_u32 s{WD+k}, s{WD+k}, {WOF}""")
    if 'nold' in XX: p.ins = [i for i in p.ins if not i.isdma]
    p(nst('p_sd'))
    p(tr_addr(T, VT, STG, 10))
    p(f"v_and_b32 v{T+3}, 1, v{T+1}\nv_lshl_add_u32 v{T+2}, v{T+3}, 3, v{T+2}\nv_lshrrev_b32 v{T+1}, 1, v{T+1}\nv_add_u32 v{T+2}, {STG}, v{T+2}")
    for k in range(NB): p(f"v_add_u32 v{T+12+k}, s{WBK+k}, v{T+1}\nv_and_b32 v{T+12+k}, 3, v{T+12+k}\nv_lshl_add_u32 v{T+12+k}, v{T+12+k}, 4, v{T+2}")
    if G3: p(lspin('pl_g4', 18, 'lt', 3, 'L_pl_g4e', vd=27) + "\nL_pl_g4e:")
    for k in range(NB):
        for t in range(2):
            d = E + 8*k + 4*t
            for h in range(2): p(f"ds_read_b64_tr_b16 v[{d+2*h}:{d+2*h+1}], v{T+12+k} offset:{k*2048 + t*512 + h*256}", needs=[f"o{k}"])
    for k in range(NB):
        d = E + 8*k
        p(f"buffer_store_dwordx4 v[{d}:{d+3}], v3, s[8:11], s{WD+k} offen {sf}\ns_add_u32 s{WD+k}, s{WD+k}, {36*1024}\nbuffer_store_dwordx4 v[{d+4}:{d+7}], v3, s[8:11], s{WD+k} offen {sf}")
    p(nst('p_ld'))
    p("s_branch L_a0")
    if 'nost' in XX: p.ins = [i for i in p.ins if not i.op.startswith('buffer_store')]
    out += p.finish()
    p = Prog()
    p(f"""L_plx:
s_cmp_lt_u32 s2, {NO + 8}
s_cbranch_scc0 L_a0
s_mov_b32 s64, s56
s_mov_b32 s65, s57
s_and_b32 s58, s2, 7
s_mul_i32 s68, s58, {36*16*1152}
s_add_u32 s68, s68, {32*16*1152 + 8*128}
v_mul_u32_u24 v{VS}, 1152, v{T+1}
v_add_u32 v{VS}, v{VS}, v{T+2}""")
    for i in range(8):
        if i % 4 == 0: p(f"s_mov_b32 m0, {STG + (i//4)*4096}")
        p(f"buffer_load_dwordx4 v{VS}, s[64:67], s68 offen offset:{(i%4)*1024} {slf} lds")
        if i < 7: p(f"s_add_u32 s68, s68, {8*1152 - 1024 if i % 4 < 3 else 8*1152 + 3072}")
    return out + p.finish()

LVS, LVB, LAG, LF, LD = 248, 251, 249, 252, 152
LATE_KA = "s_load_dwordx4 s[96:99], s[0:1], 32\ns_load_dwordx2 s[86:87], s[0:1], 48"
def late_setup(T=112):
    return f"""s_mov_b32 s55, 0
s_cmp_eq_u32 s63, 0
s_cbranch_scc0 L_ld_e
s_and_b32 s58, s2, 7
s_lshr_b32 s60, s2, 3
s_lshr_b32 s59, s60, 2
s_and_b32 s100, s60, 3
s_lshl_b32 s61, s16, 5
s_sub_u32 s61, s61, 32
s_cmp_eq_u32 s16, 3
s_cselect_b32 s55, 16, 32
s_cmp_lt_u32 s60, s55
s_cselect_b32 s55, 2, 1
s_cselect_b32 s61, s61, 0
s_add_u32 s60, s60, s61
s_sub_u32 s61, s2, {NO}
s_cmp_lt_u32 s61, 8
s_cselect_b32 s61, 0, 1
s_add_u32 s61, s61, 80
s_cmp_eq_u32 s16, 0
s_cselect_b32 s60, s61, s60
s_mul_i32 s61, s60, 7282
s_lshr_b32 s61, s61, 16
s_mul_i32 s62, s61, 9
s_sub_u32 s62, s60, s62
s_cmp_lt_u32 s60, 81
s_cselect_b32 s55, s55, 0
s_cmp_eq_u32 s55, 1
s_cselect_b32 s59, s59, s62
s_cselect_b32 s100, s100, s61
s_cselect_b32 s69, 8, 1
s_cselect_b32 s60, 72, 4
s_cselect_b32 s61, 0, 36
s_cselect_b32 s62, 9, 0
s_mul_i32 s68, s100, s60
s_mul_i32 s61, s61, s58
s_add_u32 s68, s68, s61
s_mul_i32 s68, s68, {16*1152}
s_mul_i32 s61, s62, s58
s_add_u32 s61, s61, s59
s_lshl_b32 s61, s61, 7
s_add_u32 s68, s68, s61
s_mul_i32 s69, s69, 1152
{lane_off(T)}
v_mul_u32_u24 v{LVS}, s69, v{T+1}
v_add_u32 v{LVS}, v{LVS}, v{T+2}
v_lshlrev_b32 v{LVB}, 1, v2
s_lshl_b32 s69, s69, 3
s_sub_u32 s69, s69, 1024
s_mul_i32 s62, s16, 18432
s_add_u32 s62, s62, {STG}
s_mov_b32 s90, {576*4608*2}
s_mov_b32 s91, 0x20000
s_cmp_eq_u32 s55, 1
s_waitcnt lgkmcnt(0)
s_cselect_b32 s88, s96, s86
s_cselect_b32 s89, s97, s87
s_mov_b32 s44, s98
s_mov_b32 s45, s99
s_mov_b32 s46, {4608*2}
s_mov_b32 s47, 0x20000"""

def late_dmas(slf="nt", XX=()):
    L = ["s_cmp_eq_u32 s55, 0", "s_cbranch_scc1 L_ld_e", "s_cmp_eq_u32 s16, 0", "s_cbranch_scc1 L_ld_e"]
    for i in range(18):
        if i == 8: L += ["s_cmp_eq_u32 s55, 1", "s_cbranch_scc0 L_ld_e", f"buffer_load_ushort v{LVB}, v{LVB}, s[44:47], s61 offen"]
        if i % 4 == 0: L += [f"s_add_u32 m0, s62, {(i//4)*4096}", "s_nop 0"]
        if 'nold' not in XX: L.append(f"buffer_load_dwordx4 v{LVS}, s[88:91], s68 offen offset:{(i%4)*1024} {slf} lds")
        if i < 17: L.append("s_add_u32 s68, s68, s69")
        if i % 4 == 3: L.append("s_addk_i32 s68, 4096")
    return off("\n".join(L + ["L_ld_e:"]))

LD2, F4O = 184, 0x6000
def late_pre(T=112, run=True, split=False):
    L2 = LD2 if split else LD
    out = "  s_mov_b32 s38, s55\n  s_cmp_eq_u32 s55, 0\n  s_cbranch_scc1 L_lp_e\n  s_cmp_eq_u32 s55, 1\n  s_cbranch_scc0 L_lp_2\n"
    vt, c0, c1, one = T + 4, T + 5, T + 6, T + 7
    p = Prog()
    p(tr_addr(T, vt, 's62', 10))
    p(f"v_mov_b32 v{c0}, 0\nv_mov_b32 v{c1}, 0\nv_mov_b32 v{one}, 0x3f803f80")
    rd = [[f"ds_read_b64_tr_b16 v[{LD+4*u+2*h}:{LD+4*u+2*h+1}], v{vt} offset:{(u//2)*2048 + (u%2)*512 + h*256}" for h in range(2)] for u in range(18)]
    for x in rd[:7]: p.ext(x)
    p(dest_w1(T, LAG))
    for u in range(18):
        p.ext([f"v_dot2c_f32_bf16 v{(c0, c1)[u%2]}, v{one}, v{LD+4*u+q}" for q in range(4)])
        if u + 7 < 18: p.ext(rd[u + 7])
    p(fin_val(c0, c1, LF, LVB))
    p("s_branch L_lp_e")
    out += p.finish()
    p = Prog()
    p("L_lp_2:")
    p(tr_addr(T, vt, 's62', 8))
    for u in range(8):
        for h in range(2): p(f"ds_read_b64_tr_b16 v[{L2+4*u+2*h}:{L2+4*u+2*h+1}], v{vt} offset:{(u//2)*2048 + (u%2)*512 + h*1024}")
    p(f"""s_and_b32 s62, s59, 1
s_lshl_b32 s62, s62, 1
s_lshl_b32 s60, s58, 2
s_add_u32 s62, s62, s60
s_mul_i32 s62, s62, {WB}
s_add_u32 s62, s62, {WSTR}
s_lshr_b32 s68, s59, 1
s_add_u32 s61, s68, 1
s_and_b32 s61, s61, 3
s_lshl_b32 s61, s61, 4
s_add_u32 s61, s61, 265
s_cmp_eq_u32 s59, 8
s_cselect_b32 s69, 2, 1
s_cselect_b32 s61, 257, s61
s_cselect_b32 s101, 0, 1
s_mul_i32 s69, s69, {WB}
s_lshl_b32 s100, s100, 1""")
    W2D = [(86, 87, 88, 89), (90, 91, 96, 97)]
    for a0, a1, b0, b1 in W2D:
        p(f"""s_sub_u32 s60, s100, 8
s_cmp_lt_u32 s100, 8
s_cselect_b32 s{a0}, s100, s60
s_mul_i32 s{a0}, s{a0}, 9
s_add_u32 s{a0}, s{a0}, 167
s_add_u32 s{a0}, s{a0}, s68
s_lshl_b32 s99, s60, s101
s_add_u32 s99, s99, s61
s_cmp_lt_u32 s60, 8
s_cselect_b32 s{a0}, s99, s{a0}
s_cselect_b32 s99, 1, 5
s_lshl_b32 s99, s99, 10
s_cmp_eq_u32 s101, 0
s_cselect_b32 s99, {WB}, s99
s_cselect_b32 s98, 0, s99
s_lshl_b32 s{a0}, s{a0}, 10
s_add_u32 s{a0}, s{a0}, s62
s_add_u32 s{b0}, s{a0}, s99
s_add_u32 s{a1}, s{a0}, s69
s_add_u32 s{b1}, s{a1}, s99
s_sub_u32 s{b1}, s{b1}, s98
s_add_u32 s{a1}, s{a1}, s98
s_add_u32 s100, s100, 1""")
    if run:
        p("""s_sub_u32 s60, s88, s86
s_sub_u32 s61, s90, s88
s_sub_u32 s62, s89, s87
s_sub_u32 s91, s91, s89
s_mov_b32 s88, s60
s_mov_b32 s89, s61
s_mov_b32 s90, s62
s_mov_b32 s60, s86
s_mov_b32 s86, s87
s_mov_b32 s87, s60""")
    p("s_waitcnt lgkmcnt(0)")
    q = Prog()
    if run: q(f"""s_cmp_eq_u32 s55, 0
s_cselect_b32 s60, 0x40000000, 0
v_or_b32 v{LSA}, s60, v3
s_cmp_eq_u32 s55, 1
s_cselect_b32 s60, 0, 0x40000000
v_or_b32 v{LSB}, s60, v3
v_or_b32 v{LAG}, s60, v{LAG}""")
    return out + p.finish() + "L_lp_e:\n" + q.finish()

LSA, LSB = 254, 255
def late_stu(sf="sc1", n=1, XX=()):
    L = []
    for u in range(18):
        sr = (87, 86)[u % 2]
        g = [f"s_mov_b64 exec, s[{34 if u < 8 else 36}:{35 if u < 8 else 37}]"] if (u % n == 0 or u == 8) else []
        g.append(I(f"buffer_store_dwordx4 v[{LD+4*u}:{LD+4*u+3}], v{LSA if u < 8 else LSB}, s[8:11], s{sr} offen {sf}", tag='xl'))
        if u % n == n - 1 or u == 17: g.append("s_mov_b64 exec, -1")
        if u < 16: g.append(f"s_add_u32 s{sr}, s{sr}, s{88 + 2*(u%2) + (u//2) % 2}")
        if u % n == 0: L.append(g)
        else: L[-1] += g
    L.append(["s_mov_b64 exec, s[36:37]"] + [I(f"buffer_store_dwordx2 v[{LF}:{LF+1}], v{LAG}, s[8:11], s{sr} offen {sf}", tag='xl') for sr in (96, 97)] + ["s_mov_b64 exec, -1"])
    if 'nost' in XX: L = [[x for x in g if not isinstance(x, I)] for g in L]
    if 'noex' in XX: L = [[x for x in g if isinstance(x, I) or 'exec' not in x] for g in L]
    return L

def late_w2(sf="sc1"):
    return off("\n".join(["s_cmp_eq_u32 s38, 2", "s_cbranch_scc0 L_lw2_e"] + [f"buffer_store_dwordx4 v[{LD2+4*u}:{LD2+4*u+3}], v3, s[8:11], s{sr} offen {sf}" for u, sr in enumerate((86, 87, 88, 89, 90, 91, 96, 97))] + ["L_lw2_e:"])).split("\n")

def late_st(tag, sf="sc1", XX=(), uni=True, vd=254, vo=255, split=False):
    st = lambda u, sr: f"buffer_store_dwordx4 v[{LD+4*u}:{LD+4*u+3}], v3, s[8:11], s{sr} offen {sf}"
    L1 = []
    for u in range(18):
        sr = (87, 86)[u % 2]
        L1 += [st(u, sr)] + ([f"s_add_u32 s{sr}, s{sr}, s{88 + 2*(u%2) + (u//2) % 2}"] if u < 16 else [])
    L2 = [st(u, sr) for u, sr in enumerate((86, 87, 88, 89, 90, 91, 96, 97))]
    if uni:
        L1 += [f"buffer_store_dwordx2 v[{LF}:{LF+1}], v{LAG}, s[8:11], s{sr} offen {sf}" for sr in (96, 97)]
        dm = lambda n: [f"v_mov_b32 v{vo}, 0x40000000", "s_mov_b64 exec, 1"] + [f"buffer_load_dword v{vd}, v{vo}, s[8:11], 0 offen"]*n + ["s_mov_b64 exec, -1", f"s_branch L_{tag}_e"]
        main = "\n".join(["s_cmp_eq_u32 s55, 1", f"s_cbranch_scc0 L_{tag}_o"] + L1 + [f"L_{tag}_e:"])
        ool = [f"L_{tag}_o:", "s_cmp_eq_u32 s55, 0", f"s_cbranch_scc1 L_{tag}_0"] + L2 + dm(12) + [f"L_{tag}_0:"] + dm(20)
        return main, "".join(("" if l.endswith(':') else "  ") + l + "\n" for l in ool)
    L1 += [f"buffer_store_dwordx2 v[{LF}:{LF+1}], v{LAG}, s[8:11], s96 offen {sf}", "s_cmp_eq_u32 s96, s97", f"s_cbranch_scc1 L_{tag}_e",
           f"buffer_store_dwordx2 v[{LF}:{LF+1}], v{LAG}, s[8:11], s97 offen {sf}", f"s_branch L_{tag}_e"]
    if 'nost' in XX: L1 = [x for x in L1 if not x.startswith('buffer')]; L2 = []
    if split: L2 = []
    return off("\n".join(["s_cmp_eq_u32 s55, 0", f"s_cbranch_scc1 L_{tag}_e", "s_cmp_eq_u32 s55, 1", f"s_cbranch_scc0 L_{tag}_2"] + L1 + [f"L_{tag}_2:"] + L2 + [f"L_{tag}_e:"])), ""

HEAD = f"""  v_lshlrev_b32 v20, 2, v2
  v_mov_b32 v21, -1
  v_mov_b32 v22, 0
  v_add_u32 v20, {LX}, v20
  ds_write_b32 v20, v21
  ds_write_b32 v20, v22 offset:256
  v_mov_b32 v7, 0
  v_mov_b32 v13, 0
  v_mov_b32 v{LAG}, 0
  s_mov_b32 s3, 0
  s_cmp_eq_u32 s16, 3
  s_cbranch_scc1 L_pl
"""

def a0_go():
    return f"""s_lshl_b32 s56, s19, 9
s_lshl_b32 s57, s20, 7
s_sub_u32 s57, s57, 512
v_mov_b32 v161, s56
v_mov_b32 v162, s57
v_cmp_lt_u32 vcc, 31, v2
v_cndmask_b32 v161, v161, v162, vcc
v_add_u32 v161, v161, v3
s_mov_b32 s56, {FL1}
v_mov_b32 v162, {LC + 16}
s_and_b32 s57, s2, 7
s_lshl_b32 s57, s57, 10
s_add_u32 s57, s57, {PFL}
s_lshl_b32 s58, s2, 2
s_add_u32 s58, s58, {PFL}
s_mov_b32 s49, 0x40000
s_cmp_eq_u32 s16, 0
s_cbranch_scc0 L_a0p_go
ds_write_b32 v162, v{VN} ; @
s_mov_b32 exec_hi, 0xff
L_a0p_poll:
buffer_load_dword v250, v161, s[8:11], s56 offen sc1 ; @
s_waitcnt vmcnt(0) lgkmcnt(0) ; @
v_cmp_ne_u32 vcc, v250, v{VN}
s_nop 4
s_cbranch_vccz L_a0p_ok
s_sub_u32 s49, s49, 1
s_cmp_eq_u32 s49, 0
s_cbranch_scc0 L_a0p_poll
L_a0p_ok:
s_mov_b64 exec, -1
L_a0p_go:
s_barrier"""

def fchk(n, v, sa, tag):
    CHK = [f"v_xor_b32 v{v+i}, {tag}, v{v+i}" for i in range(4)] + [f"v_or3_b32 v{v}, v{v}, v{v+1}, v{v+2}", f"v_or_b32 v{v}, v{v}, v{v+3}", f"v_cmp_ne_u32 vcc, 0, v{v}"]
    LD = f"buffer_load_dwordx4 v[{v}:{v+3}], v3, s[8:11], s{sa} offen sc1"
    LOOP = f"L_{n}_w:\n  s_mov_b32 s49, 0x40000\nL_{n}_l:\n" + "".join("  " + l + "\n" for l in ["s_nop 15"]*8 + [LD, "s_waitcnt vmcnt(0)"] + CHK + ["s_sub_u32 s49, s49, 1", "s_cmp_eq_u32 s49, 0", f"s_cbranch_scc1 L_{n}_k", "s_nop 2", f"s_cbranch_vccnz L_{n}_l", f"s_branch L_{n}_k"])
    return LD, CHK, [f"s_cbranch_vccnz L_{n}_w", f"L_{n}_k:"], LOOP
def fsig(n, vd, va, sa):
    return ["s_cmp_eq_u32 s16, 0", f"s_cbranch_scc0 L_{n}_ns", f"v_mov_b32 v{vd}, s3", f"v_lshlrev_b32 v{va}, 10, v2", "s_mov_b64 exec, 0xff", f"buffer_store_dword v{vd}, v{va}, s[8:11], s{sa} offen sc1 ; @", "s_mov_b64 exec, -1", f"L_{n}_ns:"]
F3O = 0x2000
```

```python
from asmlib import *
from layout import *
from k0 import srd
from ka import phi, QB
import kc, kp, kq
HF = ['']

CCD, CDA, CAB = 16384, 32768, 49152
aWOr = lambda ks, t: 64 + 4*((8 - ks)*5 + t)

BK = [0]
def spin(tag, sreg, va, vd, lanes, target, depth=1):
    ld = lambda k: f"buffer_load_dword v{vd+k}, v{va}, s[8:11], s{sreg} offen sc1 ; @"
    L = ([f"s_mov_b64 exec, {(1 << lanes) - 1}"] if lanes < 32 else ["s_mov_b32 exec_hi, 0"]) + [ld(k) for k in range(depth - 1)] + [f"L_{tag}_poll:"]
    for k in range(depth):
        L += [ld((k + depth - 1) % depth), f"s_waitcnt vmcnt({depth - 1}) ; @", f"v_cmp_gt_u32 vcc, {target}, v{vd+k}",
              "s_nop 4", f"s_cbranch_vccz L_{tag}_ok"]
    L += ["s_nop 15"] * BK[0]
    L += ["s_sub_u32 s49, s49, 1", "s_cmp_eq_u32 s49, 0", f"s_cbranch_scc0 L_{tag}_poll", f"L_{tag}_ok:", "s_mov_b64 exec, -1"]
    L.append(f"L_{tag}_go:")
    return "\n".join(L)

A_MAP = """s_and_b32 s17, s2, 7
s_lshr_b32 s18, s2, 3
s_lshr_b32 s19, s17, 2
s_lshl_b32 s19, s19, 2
s_and_b32 s20, s18, 3
s_add_u32 s19, s19, s20
s_and_b32 s20, s17, 3
s_lshl_b32 s20, s20, 3
s_lshr_b32 s21, s18, 2
s_add_u32 s20, s20, s21"""
A_WS = f"""s_mul_i32 s24, s20, 73728
s_add_u32 s24, s24, {WQF}
s_lshl_b32 s25, s16, 11
s_add_u32 s24, s24, s25"""
def a_wchunk(c):
    L = [f"s_add_u32 m0, s25, {c*8192}" if c else "s_mov_b32 m0, s25"]
    for i in range(2): L.append(I(f"buffer_load_dwordx4 v3, s[8:11], s24 offen offset:{i*1024} {HF[0]} lds", tag=f"w{c}"))
    if c < 8: L.append("s_addk_i32 s24, 8192")
    return L

def wo_loads(ts, sreg=50):
    G = []
    for t in ts:
        for ks in range(9):
            pre = []
            if ks in (4, 8): pre = [f"s_addk_i32 s{sreg}, 4096"]
            if ks == 0 and t != ts[0]: pre = [f"s_add_u32 s{sreg}, s{sreg}, {36864 - 8192}"]
            r = aWOr(ks, t)
            G.append(pre + [f"buffer_load_dwordx4 a[{r}:{r+3}], v3, s[8:11], s{sreg} offen offset:{(ks%4)*1024} {HF[0]}"])
    return G

def side_parts(ssf="sc1", lf="nt"):
    WB = WSN*1024
    SB = 98304
    V = 160
    v3_, v5_, vs_, t1, t2, ts1, ts2, c0, c1, vb, vcs, vag, T = V, V+1, V+2, V+3, V+4, V+5, V+6, V+7, V+8, V+9, V+10, V+11, V+12
    D = V + 16
    ka = "s_load_dwordx4 s[56:59], s[0:1], 32\ns_load_dwordx2 s[60:61], s[0:1], 48"
    setup = f"""s_mov_b32 s12, s56
s_mov_b32 s13, s57
s_mov_b32 s14, {576*4608*2}
s_mov_b32 s15, 0x20000
s_mov_b32 s44, s60
s_mov_b32 s45, s61
s_mov_b32 s46, {576*4608*2}
s_mov_b32 s47, 0x20000
s_mov_b32 s64, s58
s_mov_b32 s65, s59
s_mov_b32 s66, {4608*2}
s_mov_b32 s67, 0x20000
s_cmp_lt_u32 s16, 2
s_cselect_b32 s96, s56, s60
s_cselect_b32 s97, s57, s61
s_mov_b32 s98, {576*4608*2}
s_mov_b32 s99, 0x20000
s_and_b32 s56, s2, 7
s_bfe_u32 s57, s2, 0x20003
s_lshr_b32 s58, s2, 5
s_mul_i32 s59, s57, 9
s_add_u32 s60, s59, s16
s_mul_i32 s62, s60, {16*9216}
s_mul_i32 s68, s56, 1152
s_lshl_b32 s69, s58, 7
s_add_u32 s68, s68, s69
s_add_u32 s62, s62, s68
s_mul_i32 s87, s56, 36
s_add_u32 s87, s87, s60
s_mul_i32 s87, s87, {16*1152}
s_add_u32 s87, s87, s69
s_add_u32 s60, s59, 8
s_mul_i32 s88, s60, {16*9216}
s_add_u32 s88, s88, s68
s_mul_i32 s68, s56, 36
s_add_u32 s68, s68, s60
s_mul_i32 s68, s68, {16*1152}
s_add_u32 s68, s68, s69
s_cmp_lt_u32 s16, 2
s_cselect_b32 s88, s88, s68
s_cselect_b32 s68, 8, 1
s_mul_i32 s68, s68, 1152
s_and_b32 s69, s16, 1
s_lshl_b32 s69, s69, 6
s_add_u32 s88, s88, s69
s_mul_i32 s55, s16, 9216
s_add_u32 s55, s55, {SB}
v_bfe_u32 v{T}, v2, 2, 3
v_and_b32 v{T+1}, 3, v2
v_lshrrev_b32 v{T+2}, 5, v2
v_lshlrev_b32 v{T+3}, 6, v{T+2}
v_lshl_add_u32 v{T+3}, v{T+1}, 4, v{T+3}
v_mul_u32_u24 v{v3_}, 9216, v{T}
v_add_u32 v{v3_}, v{v3_}, v{T+3}
v_mul_u32_u24 v{v5_}, 1152, v{T}
v_add_u32 v{v5_}, v{v5_}, v{T+3}
v_lshrrev_b32 v{T}, 2, v2
v_mul_u32_u24 v{vs_}, s68, v{T}
v_lshl_add_u32 v{vs_}, v{T+1}, 4, v{vs_}""".split("\n")
    dma = []
    for b in range(2):
        for mi, (vo, sr, srd_, rs) in enumerate(((v3_, 62, 12, 9216), (v5_, 87, 44, 1152))):
            for u in range(2):
                L = [f"s_add_u32 m0, s55, {(2*b + mi)*2048 + u*1024}", I(f"buffer_load_dwordx4 v{vo}, s[{srd_}:{srd_+3}], s{sr} offen {lf} lds", tag=f"sd{b}{mi}")]
                if not (b == 1 and u == 1): L.append(f"s_add_u32 s{sr}, s{sr}, {(8 if u == 0 else 56)*rs}")
                dma.append(L)
    dma.append([f"s_add_u32 m0, s55, 8192", I(f"buffer_load_dwordx4 v{vs_}, s[96:99], s88 offen {lf} lds", tag="sds")])
    setup2 = f"""s_mul_i32 s68, s56, 18
s_lshl_b32 s69, s58, 1
s_add_u32 s68, s68, s69
s_lshl_b32 s68, s68, 6
v_lshlrev_b32 v{vb}, 1, v2
buffer_load_ushort v{vb}, v{vb}, s[64:67], s68 offen
v_and_b32 v{T+1}, 3, v2
v_lshrrev_b32 v{T+2}, 5, v2
v_lshlrev_b32 v{T}, 3, v{T+1}
v_bfe_u32 v{T+3}, v2, 2, 2
v_lshl_add_u32 v{T}, v{T+3}, 6, v{T}
v_bfe_u32 v{T+3}, v2, 4, 1
v_lshl_add_u32 v{T}, v{T+3}, 5, v{T}
v_add_u32 v{T}, s55, v{T}
v_lshl_add_u32 v{t1}, v{T+2}, 10, v{T}
v_lshl_add_u32 v{t2}, v{T+2}, 8, v{T}
s_cmp_lt_u32 s16, 2
s_cselect_b32 s68, 2, 1
s_cselect_b32 s69, 1, 2
s_lshl_b32 s68, s68, 8
s_lshl_b32 s69, s69, 8
v_mul_u32_u24 v{ts1}, s68, v{T+2}
v_add_u32 v{ts1}, v{ts1}, v{T}
v_add_u32 v{ts2}, s69, v{ts1}
v_mov_b32 v{c0}, 0
v_mov_b32 v{c1}, 0
s_lshl_b32 s89, s56, 2
s_and_b32 s68, s58, 1
s_lshl_b32 s68, s68, 1
s_add_u32 s89, s89, s68
s_mul_i32 s89, s89, {WB}
s_add_u32 s89, s89, {WSTR}
s_lshr_b32 s90, s58, 1
s_add_u32 s68, s90, 91
s_add_u32 s69, s90, 90
s_add_u32 s61, s90, 163
s_cmp_lt_u32 s58, 4
s_cselect_b32 s91, 5, 4
s_cselect_b32 s93, s90, s68
s_cselect_b32 s61, s69, s61
s_cselect_b32 s100, 3, 2
s_lshl_b32 s100, s100, 10
s_add_u32 s101, s90, 1
s_and_b32 s101, s101, 3
s_lshl_b32 s101, s101, 4
s_add_u32 s101, s101, 265
s_lshl_b32 s61, s61, 10
s_add_u32 s61, s61, s89
s_lshr_b32 s68, s57, 1
s_lshl_b32 s68, s68, 9
s_add_u32 s61, s61, s68
s_and_b32 s68, s57, 1
s_lshl_b32 s68, s68, 3
s_add_u32 s61, s61, s68
s_cmp_lt_u32 s57, 2
s_cselect_b32 s57, 0xffff, 0
v_lshlrev_b32 v{vcs}, 2, v0
v_add_u32 v{vcs}, {SB + 36864}, v{vcs}
v_and_b32 v{vag}, 31, v2
v_lshlrev_b32 v{vag}, 4, v{vag}
v_mul_u32_u24 v{T}, {WB}, v{T+2}
v_add_u32 v{vag}, v{vag}, v{T}""".split("\n")
    def dest(m):
        L = ["s_lshr_b32 s56, s60, 1", "s_and_b32 s58, s60, 1"]
        if m == 0:
            L += ["s_mul_i32 s68, s56, s91", "s_add_u32 s68, s68, s93", "s_mov_b32 s69, s100"]
        else:
            L += """s_sub_u32 s88, s56, 8
s_cmp_lt_u32 s56, 8
s_cselect_b32 s68, s56, s88
s_mul_i32 s68, s68, 9
s_add_u32 s68, s68, 167
s_add_u32 s68, s68, s90
s_lshl_b32 s69, s88, 1
s_add_u32 s69, s69, s101
s_cmp_lt_u32 s88, 8
s_cselect_b32 s68, s69, s68
s_cselect_b32 s69, 1, 5
s_lshl_b32 s69, s69, 10""".split("\n")
        L += f"""s_lshl_b32 s68, s68, 10
s_add_u32 s68, s68, s89
s_mul_i32 s58, s58, s69
s_add_u32 s62, s68, s58
s_add_u32 s68, s68, s69
s_sub_u32 s68, s68, s58
s_add_u32 s87, s68, {WB}""".split("\n")
        return L
    work = []
    for b in range(2):
        for mi in range(2):
            d = D + 8*((2*b + mi) % 4)
            base = (2*b + mi)*2048
            ra, o2 = ((t1, 256), (t2, 1024))[mi]
            for tt in range(2):
                work.append(I(f"ds_read_b64_tr_b16 v[{d+4*tt}:{d+4*tt+1}], v{ra} offset:{base + tt*512}", needs=[f"sd{b}{mi}"]))
                work.append(f"ds_read_b64_tr_b16 v[{d+4*tt+2}:{d+4*tt+3}], v{ra} offset:{base + tt*512 + o2}")
            if mi == 0: work.append(f"s_add_u32 s60, s59, s16" if b == 0 else "s_add_u32 s60, s60, 4")
            work += dest(mi)
            for tt in range(2):
                work.append(f"buffer_store_dwordx4 v[{d+4*tt}:{d+4*tt+3}], v3, s[8:11], s{(62, 87)[tt]} offen {ssf}")
                if mi == 0: work += [f"v_dot2c_f32_bf16 v{(c0, c1)[tt]}, v8, v{d+4*tt+q}" for q in range(4)]
    d = D + 32
    work += [I(f"ds_read_b64_tr_b16 v[{d}:{d+1}], v{ts1} offset:8192", needs=["sds"]), f"ds_read_b64_tr_b16 v[{d+2}:{d+3}], v{ts2} offset:8192", "s_add_u32 s60, s59, 8"]
    work += dest(0) + ["s_bitcmp1_b32 s16, 0", "s_cselect_b32 s55, s87, s62"] + dest(1)
    work += ["s_bitcmp1_b32 s16, 0", "s_cselect_b32 s62, s87, s62", "s_cmp_lt_u32 s16, 2", "s_cselect_b32 s62, s55, s62",
             f"buffer_store_dwordx4 v[{d}:{d+3}], v3, s[8:11], s62 offen {ssf}",
             "s_cmp_eq_u32 s16, 0", "s_cselect_b32 s68, 0x3f803f80, 0", "s_cmp_eq_u32 s16, 1", "s_cselect_b32 s69, 0x3f803f80, 0"]
    for q in range(4): work += [f"v_dot2c_f32_bf16 v{c0}, s68, v{d+q}", f"v_dot2c_f32_bf16 v{c1}, s69, v{d+q}"]
    work += [f"v_permlane32_swap_b32 v{c0}, v{c1}", f"v_add_f32 v{c0}, v{c0}, v{c1}", I(f"ds_write_b32 v{vcs}, v{c0}", tag='scs')]
    fin = [f"v_lshlrev_b32 v{vcs}, 2, v2", f"v_add_u32 v{vcs}, {SB + 36864}, v{vcs}"]
    fin += [f"ds_read_b32 v{D+w}, v{vcs} offset:{w*256}" for w in range(4)]
    fin += f"""v_add_f32 v{D}, v{D}, v{D+1}
v_add_f32 v{D+2}, v{D+2}, v{D+3}
v_add_f32 v{D}, v{D}, v{D+2}
v_cvt_pk_bf16_f32 v{D+4}, v{D}, v{D}
v_and_b32 v{D+1}, 0xffff0000, v{D+4}
v_sub_f32 v{D+1}, v{D}, v{D+1}
v_cvt_pk_bf16_f32 v{D+5}, v{D+1}, 0
v_and_b32 v{vb}, s57, v{vb}
v_lshl_or_b32 v{D+5}, v{vb}, 16, v{D+5}
buffer_store_dwordx2 v[{D+4}:{D+5}], v{vag}, s[8:11], s61 offen {ssf}""".split("\n")
    return ka, atomize(setup), dma, atomize(setup2), atomize(work), fin

def a_part(first, pfy=0, pfa=0, p2=None, FP=(0, 0, 84, 118), LW=(62, 74, 113, 124), p0=None, SD=(10, 75), dw=False, YR=16, D0=12, RAMP=1, NW=8, qsf="sc1", NP1=36, NPa=16, PD=1, yf='sc1', side=None, SW=(2, 12, 12, 34, 60, 112)):
    n = "a0" if first else "a1"
    p = Prog()
    p(A_MAP)
    p(f"""s_lshl_b32 s21, s19, 3
s_lshl_b32 s22, s16, 1
s_add_u32 s21, s21, s22
s_mul_i32 s22, s21, 36864
s_add_u32 s22, s22, {YF if first else YF + LS}""")
    if first: p(A_WS)
    if first and dw:
        p(f'''s_load_dwordx2 s[56:57], s[0:1], 8
v_lshrrev_b32 v200, 3, v2
v_mul_u32_u24 v200, 3456, v200
v_and_b32 v201, 3, v2
v_bfe_u32 v202, v2, 2, 1
v_lshlrev_b32 v203, 4, v201
v_mul_u32_u24 v204, 1152, v202
v_add_u32 v203, v203, v204
v_add_u32 v203, 1152, v203
v_lshlrev_b32 v204, 4, v202
v_cmp_eq_u32 vcc, 3, v201
v_cndmask_b32 v203, v203, v204, vcc
v_add_u32 v200, v200, v203
v_add_u32 v201, {8*3456 - 1024}, v200
s_mul_i32 s24, s20, 36
s_mul_i32 s58, s16, {16*3456}
s_add_u32 s24, s24, s58
s_waitcnt lgkmcnt(0)
s_mov_b32 s12, s56
s_mov_b32 s13, s57
s_mov_b32 s14, {576*1728*2}
s_mov_b32 s15, 0x20000''')
    ACC, WR, P0, V1, TMP, KVA, QO = 16, 80, 112, 120, 128, 136, 152
    items = []
    for g in range(72):
        if first and g < 36 and g % 4 == 0:
            wc = a_wchunk(g // 4)
            if dw:
                c = g // 4
                wc = [wc[0]] + [I(f"buffer_load_dwordx4 v{200+i}, s[12:15], s24 offen offset:{i*1024} lds", tag=f"w{c}") for i in range(2)] + ([f"s_add_u32 s24, s24, {64*3456}"] if c < 8 else [])
            items.append((g, wc))
        s = 4*(g % YR)
        pre = ["s_addk_i32 s22, 4096"] if (g % 4 == 0 and g) else []
        items.append((g, pre + [f"buffer_load_dwordx4 a[{s}:{s+3}], v3, s[8:11], s22 offen offset:{(g%4)*1024} {'' if first and not p0 and p2 is None else yf}"]))
    ip = 0
    def issue_upto(gmax):
        nonlocal ip
        L = []
        while ip < len(items) and items[ip][0] <= gmax:
            L += items[ip][1]; ip += 1
        return L
    def ypf(skip):
        if not pfy: return []
        n = 72 - skip
        return [f"s_mov_b32 exec_hi, {hex((1 << (n - 32)) - 1)}", f"buffer_load_dword v254, v255, s[8:11], s23 offen {yf}", "s_mov_b64 exec, -1"]
    SK = D0 if first else YR
    if pfy: p(f"s_lshr_b32 s23, s2, 5\ns_mul_i32 s23, s23, {(72 - SK)*128}\ns_add_u32 s23, s23, s22\ns_add_u32 s23, s23, {SK*1024}\nv_lshlrev_b32 v255, 7, v2")
    setup = f"""v_lshlrev_b32 v13, 2, v0
v_add_u32 v4, 65536, v3
s_mul_i32 s28, s16, 1280
s_add_u32 s28, s28, {QB - 20*64}
v_and_b32 v5, 31, v2
v_lshlrev_b32 v5, 6, v5
v_lshrrev_b32 v9, 5, v2
v_lshl_add_u32 v5, v9, 5, v5
v_add_u32 v5, s28, v5
v_bfe_u32 v6, v2, 2, 2
v_lshl_add_u32 v6, v9, 2, v6
v_lshlrev_b32 v6, 6, v6
v_and_b32 v7, 1, v2
v_lshl_add_u32 v6, v7, 5, v6
v_bfe_u32 v7, v2, 4, 1
v_lshl_add_u32 v6, v7, 4, v6
v_bfe_u32 v7, v2, 1, 1
v_lshl_add_u32 v6, v7, 3, v6
s_add_u32 s28, s28, {20*64}
v_add_u32 v6, s28, v6
v_lshlrev_b32 v7, 2, v2
s_mul_i32 s28, s16, 2560
v_add_u32 v15, s28, v3
v_lshlrev_b32 v14, 3, v2
v_add_u32 v14, s28, v14
v_and_b32 v8, 27, v2
v_cmp_eq_u32 s[30:31], 18, v8
v_mov_b32 v8, 0x3f803f80
s_mov_b32 s32, 0xfff00000
s_mov_b32 s33, 0xfff00000
s_lshl_b32 s26, s21, 5
s_add_u32 s26, s26, s20
s_lshl_b32 s27, s26, 8
s_lshl_b32 s26, s26, 10
s_add_u32 s26, s26, {PQ16 + (0 if first else LS)}
s_add_u32 s27, s27, {PQ4 + (0 if first else LS)}"""
    if first and p2 is not None:
        p(setup)
        p(kq.a0_go())
        p(nst('a_go'))
        if pfa: p.ext(issue_upto(pfa - 1)); p.ext(ypf(SK)); p.ext(issue_upto(D0 - 1))
        else: p.ext(issue_upto(D0 - 1)); p.ext(ypf(SK))
        p("ds_read_b32 v161, v162\nv_readfirstlane_b32 s3, v161")
    elif first and p0:
        n = "a0" + p0[0]
        p(setup)
        p(f"""s_and_b32 s56, s2, 7
s_lshl_b32 s56, s56, 10
s_add_u32 s56, s56, {kp.PFL}
s_mov_b32 s49, 0x40000
s_cmp_eq_u32 s16, 0
s_cbranch_scc0 L_{n}p_go""")
        p(kp.poll(n + "p", 56, 250) + f"L_{n}p_go:\ns_barrier")
        p(nst('a_go'))
        p.ext(issue_upto(D0 - 1))
    elif first:
        p.ext(issue_upto(D0 - 1))
        p(setup)
    else:
        p(setup)
        p(f"""s_lshl_b32 s28, s19, 2
s_bfe_u32 s29, s2, 0x20005
s_add_u32 s28, s28, s29
s_lshl_b32 s28, s28, 9
s_add_u32 s28, s28, {CNT + LS + CDA}
v_lshlrev_b32 v10, 7, v2
s_mov_b32 s49, 0x40000
s_waitcnt vmcnt(0)
s_cmp_eq_u32 s16, 0
s_cbranch_scc0 L_da_go""")
        p(spin("da", 28, 10, 250, 4, 8, PD))
        p("s_barrier")
        p(nst('a_go'))
        if pfa: p.ext(issue_upto(pfa - 1)); p.ext(ypf(SK)); p.ext(issue_upto(YR - 1))
        else: p.ext(issue_upto(YR - 1)); p.ext(ypf(SK))
    def wrd(f):
        g = f % 72
        s = WR + 4*(f % NW)
        L = []
        if first and f < 72 and f % 8 == 0: L.append(I("s_barrier", needs=[f"w{f//8}"]))
        L.append(f"ds_read_b128 v[{s}:{s+3}], v3 offset:{g*1024}" if g < 64 else f"ds_read_b128 v[{s}:{s+3}], v4 offset:{(g-64)*1024}")
        return L
    for f in range(NW - 1): p.ext(wrd(f))
    p(nst('a_first'))
    G = []
    for g in range(72):
        y = 4*(g % YR)
        for t in range(2):
            f = 2*g + t
            w = WR + 4*(f % NW)
            acc = ACC + 32*(g // 36) + 16*t
            c = "0" if g % 36 == 0 else f"v[{acc}:{acc+15}]"
            grp = [f"v_mfma_f32_32x32x16_bf16 v[{acc}:{acc+15}], a[{y}:{y+3}], v[{w}:{w+3}], {c}"]
            if f + NW - 1 < 144: grp += wrd(f + NW - 1)
            if t == 1:
                depth = min(YR, D0 + 1 + g*RAMP) if first else YR
                grp += issue_upto(g + depth)
            G.append(grp)
    assert ip == len(items)
    def epi1(rt):
        T0 = ACC + 32*rt; T1 = T0 + 16
        L = []
        for i in range(8): L.append(f"v_cvt_pk_bf16_f32 v{V1+i}, v{T1+2*i}, v{T1+2*i+1}")
        for i in range(8): L.append(f"v_cndmask_b32 v{V1+i}, v{V1+i}, v8, s[30:31]")
        ph = phi(list(range(T0, T0 + 16)), TMP)
        pk = [f"v_cvt_pk_bf16_f32 v{P0+i}, v{T0+2*i}, v{T0+2*i+1}" for i in range(8)]
        mm = [f"v_mfma_f32_32x32x16_bf16 v[{KVA}:{KVA+15}], v[{P0+4*q}:{P0+4*q+3}], v[{V1+4*q}:{V1+4*q+3}], " + ("0" if (rt == 0 and q == 0) else f"v[{KVA}:{KVA+15}]") for q in range(2)]
        L = ph[:32] + pk[:4] + L + [mm[0]] + ph[32:] + pk[4:] + [mm[1]]
        L.append(["s_mov_b64 exec, s[32:33]",
                  f"ds_write_b128 v5, v[{V1}:{V1+3}] offset:512", f"ds_write_b128 v5, v[{V1+4}:{V1+7}] offset:528",
                  f"ds_write_b128 v5, v[{P0}:{P0+3}]", f"ds_write_b128 v5, v[{P0+4}:{P0+7}] offset:16",
                  "s_mov_b64 exec, -1"])
        L += [f"ds_read_b64_tr_b16 v[{QO}:{QO+1}], v6", f"ds_read_b64_tr_b16 v[{QO+2}:{QO+3}], v6 offset:768", f"ds_read_b64_tr_b16 v[{QO+4}:{QO+5}], v6 offset:512"]
        return L
    def epi2(rt):
        u = TMP + 4
        L = [f"v_lshlrev_b32 v{u}, 16, v{QO+2}", f"v_and_b32 v{u+1}, 0xffff0000, v{QO+2}", f"v_lshlrev_b32 v{u+2}, 16, v{QO+3}", f"v_and_b32 v{u+3}, 0xffff0000, v{QO+3}"]
        L += phi([u, u+1, u+2, u+3], TMP)
        L += [f"v_cvt_pk_bf16_f32 v{QO+2}, v{u}, v{u+1}", f"v_cvt_pk_bf16_f32 v{QO+3}, v{u+2}, v{u+3}"]
        return L
    def qst(rt):
        L = ["s_add_u32 s26, s26, 32768", "s_add_u32 s27, s27, 8192"] if rt else []
        return L + [f"buffer_store_dwordx4 v[{QO}:{QO+3}], v3, s[8:11], s26 offen {qsf}", f"buffer_store_dword v{QO+4}, v7, s[8:11], s27 offen {qsf}"]
    late = f"""v_bfe_u32 v10, v0, 2, 5
v_lshrrev_b32 v12, 1, v0
v_cmp_gt_u32 s[34:35], 19, v10
v_cmp_eq_u32 s[36:37], 22, v10
s_or_b64 s[34:35], s[34:35], s[36:37]
v_cmp_gt_u32 s[38:39], 19, v12
v_cmp_eq_u32 s[36:37], 22, v12
s_or_b64 s[38:39], s[38:39], s[36:37]
s_mul_i32 s28, s20, 2560
s_add_u32 s28, s28, {KV + (0 if first else LS)}
s_lshr_b32 s51, s2, 6
s_mul_i32 s52, s51, 5
s_lshl_b32 s53, s51, 2
s_add_u32 s53, s53, 2
s_cmp_lt_u32 s51, 2
s_cselect_b32 s52, s52, s53
s_mul_i32 s50, s52, 36864
s_mul_i32 s53, s16, 9216
s_add_u32 s50, s50, s53
s_add_u32 s50, s50, {WOF}
s_lshl_b32 s54, s20, 7
s_add_u32 s54, s54, {CNT + CAB + (0 if first else LS)}
v_lshlrev_b32 v10, 12, v2
v_mov_b32 v11, 1""".split("\n")
    wo = wo_loads(range(4))[:NP1]
    if side and first:
        _, su, dma, su2, work, fin = side
        G[116] = G[116] + [I("s_barrier", needs=['scs'])]
        def put(L, a, b):
            for k, x in enumerate(L): G[a + k*(b - a)//len(L)] += x if isinstance(x, list) else [x]
        put(su, SW[0], SW[1]); put(dma, SW[2], SW[3]); put(su2, SW[3], SW[4]); put(work, SW[4], SW[5]); put(fin, 117, 130)
    elif first and p2 is not None:
        G[116] = G[116] + ["s_barrier"]
        f2 = kq.fchk('f2', 232, 57, 's3')
        G[FP[0]] = G[FP[0]] + kq.fsig('f2', 161, 162, 58)
        G[FP[2]] = G[FP[2]] + [f2[0]]
        for k, x in enumerate(f2[1]): G[FP[3] - 4 + k//2] = G[FP[3] - 4 + k//2] + [x]
        G[FP[3] + 1] = G[FP[3] + 1] + f2[2]
        G = [[y for x in g for y in (x if isinstance(x, list) else [x])] for g in G]
    elif first and p0:
        lf = SW[1] > 112
        G[116] = G[116] + [I("s_barrier", needs=[] if lf else ['scs'])]
        for L, a, b in ((p0[3], SD[0], SD[1]), (p0[1], SW[0], SW[1]), ([] if lf else p0[2], 117, 130)):
            for k, x in enumerate(L): G[a + k*(b - a)//len(L)] += x if isinstance(x, list) else [x]
    else: G[116] = G[116] + ["s_barrier"]
    for k in range(1, 144):
        if nst(f'a_g{k}'): G[k] = [nst(f'a_g{k}')] + G[k]
    for grp in G[:20]: p.ext(grp)
    p.ext(interleave(G[20:60], atomize(late)))
    for grp in G[60:74]: p.ext(grp)
    p.ext(interleave(G[74:124], epi1(0) + epi2(0) + qst(0)))
    p.ext(interleave(G[124:], wo[:NPa]))
    p(nst('a_epi'))
    e1 = epi1(1)
    rest = wo[NPa:]
    k1 = len(rest) * 2 // 3
    p.ext(interleave([x if isinstance(x, list) else [x] for x in e1], rest[:k1]))
    p(f"ds_write_b128 v15, v[{KVA}:{KVA+3}]\nds_write_b128 v15, v[{KVA+4}:{KVA+7}] offset:1024\nds_write_b64 v14, v[{KVA+8}:{KVA+9}] offset:2048")
    for x in rest[k1:]: p.ext(x)
    p("s_waitcnt lgkmcnt(0)")
    p("s_barrier")
    for it in range(3):
        for w in range(4): p(f"ds_read_b32 v{16 + 4*it + w}, v13 offset:{w*2560 + it*1024}")
    p.ext(epi2(1))
    if first and p0 and SW[1] > 112: p.ext(p0[2])
    for it in range(3):
        b = 16 + 4*it
        p(f"v_add_f32 v{b}, v{b}, v{b+1}\nv_add_f32 v{b+2}, v{b+2}, v{b+3}\nv_add_f32 v{b}, v{b}, v{b+2}")
    p(f"""s_mov_b64 exec, s[34:35]
buffer_atomic_add_f32 v16, v13, s[8:11], s28 offen
buffer_atomic_add_f32 v20, v13, s[8:11], s28 offen offset:1024
s_mov_b64 exec, -1""")
    p.ext(qst(1))
    p(f"""s_cmp_eq_u32 s16, 0
s_cbranch_scc0 L_{n}_end
s_mov_b64 exec, s[38:39]
buffer_atomic_add_f32 v24, v13, s[8:11], s28 offen offset:2048
s_mov_b64 exec, -1
L_{n}_end:""")
    for k, i in enumerate(p.ins):
        if i.kind == 'vm' and i.w and i.w[0][0] == 'a' and 's50' in i.r:
            assert not any(j.kind == 'mfma' and set(j.r) & set(i.w) for j in p.ins[k:]), i.text
    p(nst('a_st'))
    if first: p("s_branch L_ab")
    return p.finish() + (f2[3] if first and p2 is not None else "")

def ab_link(NP1=36, lp=None):
    p = Prog()
    if lp is not None: p(kq.LATE_KA)
    p(f"""s_and_b32 s17, s2, 7
s_lshl_b32 s17, s17, 3
s_bfe_u32 s19, s2, 0x30003
s_add_u32 s17, s17, s19
s_mov_b32 s18, s52
s_waitcnt vmcnt(0)
s_barrier
s_cmp_eq_u32 s16, 0
s_cbranch_scc0 L_ab_ns
s_mov_b64 exec, 0xffff
buffer_atomic_add v11, v10, s[8:11], s54 offen
s_mov_b64 exec, -1
L_ab_ns:""")
    p(nst('a_sig'))
    for x in wo_loads(range(4))[NP1:]: p.ext(x)
    if lp is not None: p(kq.late_setup()); p(kq.late_dmas(**lp))
    return p.finish() + "  s_cmp_lt_u32 s51, 2\n  s_cbranch_scc0 L_b4\n"

def b_part(NT, cz, xsf="sc1", PFD=3, PD=1, lf='sc1', allp=False, pbar=False, x4=False, dx=False, sb=None):
    p = Prog()
    KVR, NUM, TL, ACC, XR = 16, 112, 144, 152, 232
    aPQ = 0
    if NT == 5:
        for x in wo_loads(range(3, 5))[9:]: p.ext(x)
    p(f"""s_lshl_b32 s19, s16, 3
s_mul_i32 s20, s19, 2560
s_add_u32 s20, s20, {KV}{lay('s20')}
s_lshl_b32 s21, s17, 5
s_add_u32 s21, s21, s19
s_lshl_b32 s22, s21, 8
s_lshl_b32 s21, s21, 10
s_add_u32 s21, s21, {PQ16}{lay('s21')}
s_add_u32 s22, s22, {PQ4}{lay('s22')}
v_lshlrev_b32 v4, 3, v2
v_lshlrev_b32 v5, 2, v2
v_and_b32 v6, 24, v2
v_cmp_eq_u32 vcc, 24, v6
v_mov_b32 v6, 0x40000000
v_cndmask_b32 v12, v3, v6, vcc
v_cndmask_b32 v4, v4, v6, vcc
v_add_u32 v6, 4096, v3
s_mul_i32 s25, s17, 36864
s_lshl_b32 s26, s18, 11
s_add_u32 s25, s25, s26
s_lshl_b32 s26, s16, 9
s_add_u32 s25, s25, s26{lay('s25')}
s_add_u32 s26, s25, {XF}
s_add_u32 s27, s25, {X1F}
v_and_b32 v8, 31, v2
v_lshlrev_b32 v8, 4, v8
v_lshrrev_b32 v9, 5, v2
v_lshl_add_u32 v8, v9, 3, v8
v_add_u32 v9, 4096, v8
v_add_u32 v10, 8192, v8""")
    if x4:
        p("""v_and_b32 v246, 31, v2
v_lshrrev_b32 v247, 5, v2
v_lshlrev_b32 v8, 4, v246
v_lshl_add_u32 v8, v247, 11, v8
v_add_u32 v9, 4096, v8""")
        if dx:
            p(f"""s_mul_i32 s31, s17, 36864
s_lshl_b32 s32, s18, 6
s_add_u32 s31, s31, s32
s_lshl_b32 s32, s16, 4
s_add_u32 s31, s31, s32
s_cmp_eq_u32 s63, 0
s_cselect_b32 s26, s31, s26
s_cselect_b32 s31, 1152, 16
s_cselect_b32 s32, 64, 2048
v_mul_u32_u24 v246, s31, v246
v_mul_u32_u24 v13, s32, v247
v_lshl_add_u32 v247, v247, 3, v246
v_add_u32 v246, v246, v13
s_lshl_b32 s32, s32, 1
s_add_u32 s31, s26, s32
s_add_u32 s32, s31, s32""")
    for h in range(8): p(f"v_accvgpr_write_b32 a{aPQ+6*h+5}, 0")
    for g in range(1, 4):
        p(f"""s_add_u32 s28, s16, {g}
s_and_b32 s28, s28, 3
s_mul_i32 s28, s28, {3*NT*1024}
s_add_u32 s28, s28, {(g-1)*NT*1024}
v_add_u32 v{242+g}, s28, v3""")
    p(f"s_mul_i32 s28, s16, {3*NT*1024}\nv_add_u32 v14, s28, v3")
    p(f"s_lshl_b32 s28, s17, 8\ns_add_u32 s28, s28, {ST}{lay('s28')}")
    p.ext(cz[1])
    p(f"s_lshr_b32 s67, s17, 1\ns_lshl_b32 s67, s67, 2\ns_add_u32 s67, s67, s16\ns_lshl_b32 s67, s67, 7\ns_add_u32 s67, s67, {CNT}{lay('s67')}")
    pf = list(cz[3])
    if not allp and not pbar:
        for x in pf[:3]: p.ext(x)
    p(f"""s_lshl_b32 s29, s16, 10
s_bfe_u32 s30, s2, 0x40003
s_lshl_b32 s30, s30, 12
s_add_u32 s29, s29, s30
s_add_u32 s29, s29, {CNT + CAB}{lay('s29')}
v_lshlrev_b32 v7, 7, v2
s_mov_b32 s49, 0x40000""")
    if allp:
        p(f"s_waitcnt vmcnt(0)\ns_cmp_eq_u32 s16, 0\ns_cbranch_scc0 L_ab{NT}_go")
        p(spin(f"ab{NT}", 29, 7, 250, 32, 8, PD)); p("s_barrier")
    elif sb is not None:
        p(f"s_cmp_eq_u32 s16, 0\ns_cbranch_scc0 L_ab{NT}_go")
        p(spin(f"ab{NT}", 29, 7, 250, 32, 8, PD)); p("s_barrier")
    else: p(spin(f"ab{NT}", 29, 7, 250, 8, 8, PD))
    if sb is None: p.ins.append(I("s_nop 0", tag='__clr'))
    p(nst('b_go'))
    for h in range(8):
        k = KVR + 12*h; q = aPQ + 6*h
        p(f"""buffer_load_dwordx4 v[{k}:{k+3}], v12, s[8:11], s20 offen {lf}
buffer_load_dwordx4 v[{k+4}:{k+7}], v12, s[8:11], s20 offen offset:1024 {lf}
buffer_load_dwordx2 v[{k+8}:{k+9}], v4, s[8:11], s20 offen offset:2048 {lf}
buffer_load_dwordx4 a[{q}:{q+3}], v{(3,6)[h//4]}, s[8:11], s21 offen offset:{(h%4)*1024} {lf}
buffer_load_dword a{q+4}, v5, s[8:11], s22 offen offset:{h*256} {lf}""")
        if h < 7: p("s_addk_i32 s20, 2560")
    if x4:
        for u in range(2): p(f"buffer_load_dwordx4 v[{XR+4*u}:{XR+4*u+3}], " + (f"v246, s[12:15], s{(26, 31)[u]}" if dx else f"v{8+u}, s[8:11], s26") + f" offen {lf}")
        if NT == 5: p(f"buffer_load_dwordx2 v[{XR+8}:{XR+9}], " + ("v247, s[12:15], s32" if dx else "v10, s[8:11], s26") + f" offen {lf}")
    else:
        for t in range(NT): p(f"buffer_load_dwordx2 v[{XR+2*t}:{XR+2*t+1}], v{8 + t//2}, s[8:11], s26 offen offset:{(t%2)*2048} {lf}")
    def prep(h):
        k = KVR + 12*h; q = aPQ + 6*h; n = NUM + 16*(h % 2)
        L = [f"v_cvt_pk_bf16_f32 v{k+i}, v{k+2*i}, v{k+2*i+1}" for i in range(5)]
        L.append(f"v_mov_b32 v{k+5}, 0")
        L.append(f"v_mfma_f32_32x32x16_bf16 v[{n}:{n+15}], v[{k}:{k+3}], a[{q}:{q+3}], 0")
        L.append(f"v_mfma_f32_32x32x8_bf16 v[{n}:{n+15}], v[{k+4}:{k+5}], a[{q+4}:{q+5}], v[{n}:{n+15}]")
        return L
    def post(h):
        n = NUM + 16*(h % 2); o = KVR + 12*h + 8
        L = [f"v_add_f32 v11, 0x358637bd, v{n+10}", "v_rcp_f32 v11, v11"]
        for i in range(10): L.append(f"v_mul_f32 v{n+i}, v{n+i}, v11")
        for i in range(4): L.append(f"v_cvt_pk_bf16_f32 v{o+i}, v{n+2*i}, v{n+2*i+1}")
        L.append(f"v_cvt_pk_bf16_f32 v{TL + h//2 + 4*(h%2)}, v{n+8}, v{n+9}")
        return L
    def gemm(ks):
        o = KVR + 12*ks + 8 if ks < 8 else TL
        G = []
        for t in range(NT):
            r = aWOr(ks, t); a = ACC + 16*t
            c = "0" if ks == 0 else f"v[{a}:{a+15}]"
            G.append([f"v_mfma_f32_32x32x16_bf16 v[{a}:{a+15}], a[{r}:{r+3}], v[{o}:{o+3}], {c}"])
        return G
    flat = lambda L: [y for x in L for y in (x if isinstance(x, list) else [x])]
    for st in range(11):
        ks = st - PFD
        nl = pf[3 + 5*ks: 8 + 5*ks] if ks >= 0 else []
        if (allp or pbar) and ks == -1: nl = pf[:3]
        if pbar and ks == -1: p('s_barrier')
        if st < 8: p.ext(prep(st))
        fill = post(st - 1) if 0 <= st - 1 < 8 else []
        if st == 9: fill = [f"v_permlane32_swap_b32 v{TL+i}, v{TL+4+i}" for i in range(4)]
        if nl:
            m = []; step = max(1, len(fill) // len(nl)) if fill else 1; fi = 0
            for x in nl:
                m.append(x); m += fill[fi:fi+step]; fi += step
            fill = m + fill[fi:]
        if st >= 2: p.ext(interleave(gemm(st - 2), fill))
        else: p.ext(flat(fill))
    assert 3 + 5*(10 - PFD + 1) >= len(pf)
    p(nst('b_gemm'))
    p.ext([f"ds_write_b128 v{242+g}, v[{ACC + 16*t + 4*g}:{ACC + 16*t + 4*g + 3}] offset:{t*1024}" for t in range(NT) for g in range(1, 4)])
    p("s_waitcnt lgkmcnt(0)")
    p("s_barrier")
    RD = KVR
    for t in range(NT):
        for g in range(3):
            r = RD + 12*t + 4*g
            p(f"ds_read_b128 v[{r}:{r+3}], v14 offset:{(g*NT + t)*1024}")
    p("v_mov_b32 v15, 0\nv_mov_b32 v11, 0")
    swp = lambda u: f"v_permlane32_swap_b32 v{XR+4*u}, v{XR+4*u+2}\nv_permlane32_swap_b32 v{XR+4*u+1}, v{XR+4*u+3}"
    if x4:
        for u in range(2): p(swp(u))
    for t in range(NT):
        a = ACC + 16*t; x = XR + 2*t; u = a + 4
        p(f"v_lshlrev_b32 v{u}, 16, v{x}\nv_and_b32 v{u+1}, 0xffff0000, v{x}\nv_lshlrev_b32 v{u+2}, 16, v{x+1}\nv_and_b32 v{u+3}, 0xffff0000, v{x+1}")
        for i in range(4): p(f"v_add_f32 v{a+i}, v{a+i}, v{u+i}")
    for t in range(NT):
        a = ACC + 16*t; r = RD + 12*t; x = XR + 2*t
        for i in range(4): p(f"v_add_f32 v{a+i}, v{a+i}, v{r+i}")
        for i in range(4): p(f"v_add_f32 v{r+4+i}, v{r+4+i}, v{r+8+i}")
        for i in range(4): p(f"v_add_f32 v{a+i}, v{a+i}, v{r+4+i}")
        p(f"v_cvt_pk_bf16_f32 v{x}, v{a}, v{a+1}\nv_cvt_pk_bf16_f32 v{x+1}, v{a+2}, v{a+3}")
        if not x4 or t == 4: p(f"buffer_store_dwordx2 v[{x}:{x+1}], v{8 + t//2}, s[8:11], s27 offen offset:{(t%2)*2048} {xsf}")
        elif t % 2: p(swp(t//2)); p(f"buffer_store_dwordx4 v[{x-2}:{x+1}], v{8 + t//2}, s[8:11], s27 offen {xsf}")
    for t in range(NT):
        a = ACC + 16*t; x = XR + 2*t; u = a + 4
        p(f"v_lshlrev_b32 v{u}, 16, v{x}\nv_and_b32 v{u+1}, 0xffff0000, v{x}\nv_lshlrev_b32 v{u+2}, 16, v{x+1}\nv_and_b32 v{u+3}, 0xffff0000, v{x+1}")
        for i in range(4): p(f"v_add_f32 v15, v15, v{u+i}\nv_fmac_f32 v11, v{u+i}, v{u+i}")
    p(f"""v_permlane32_swap_b32 v15, v11
v_add_f32 v15, v15, v11
buffer_atomic_add_f32 v15, v5, s[8:11], s28 offen
v_mov_b32 v4, 0
v_mov_b32 v6, 1
s_waitcnt vmcnt(0)
s_mov_b64 exec, 1
buffer_atomic_add v6, v4, s[8:11], s67 offen
s_mov_b64 exec, -1""")
    p(nst('b_sig'))
    if NT == 5: p("s_branch L_bc_c")
    return p.finish(), ''

def w_mid():
    L = f"""s_cmp_eq_u32 s63, 0
s_cbranch_scc0 L_wm_skip
s_and_b32 s52, s2, 3
s_lshl_b32 s52, s52, 3
s_lshr_b32 s53, s2, 5
s_add_u32 s52, s52, s53
s_mul_i32 s52, s52, 73728
s_add_u32 s52, s52, {WQF}
s_mul_i32 s53, s16, 18432
s_add_u32 s52, s52, s53
s_mov_b32 m0, s53""".split("\n")
    for k in range(5):
        if k: L += [f"s_add_u32 m0, s53, {k*4096}", "s_addk_i32 s52, 4096"]
        L += ["s_nop 0"] + [f"buffer_load_dwordx4 v3, s[8:11], s52 offen offset:{i*1024} {HF[0]} lds" for i in range(4 if k < 4 else 2)]
    return L

def w_early():
    L = f"""s_cmp_eq_u32 s63, 0
s_cbranch_scc0 L_we_skip
s_and_b32 s52, s2, 3
s_lshl_b32 s52, s52, 3
s_lshr_b32 s53, s2, 5
s_add_u32 s52, s52, s53
s_mul_i32 s52, s52, 73728
s_add_u32 s52, s52, {WQF}
s_sub_u32 s53, s16, 1
s_mul_i32 s53, s53, 24576
s_add_u32 s52, s52, s53
s_mov_b32 m0, s53""".split("\n")
    for k in range(6):
        if k: L += [f"s_add_u32 m0, s53, {k*4096}", "s_addk_i32 s52, 4096"]
        L += ["s_nop 0"] + [f"buffer_load_dwordx4 v3, s[8:11], s52 offen offset:{i*1024} lds ; @" for i in range(4)]
    return L + ["L_we_skip:", "s_branch L_cd_go"]

def d_part(sf="sc1", lf="sc1", PD=1, we=True, p0=False, dx=False):
    p = Prog()
    PL, XL, BL, X, U = 32, 112, 124, 136, 160
    LX = 131072
    p(f"""s_lshr_b32 s20, s17, 2
s_lshl_b32 s21, s18, 1
s_add_u32 s20, s20, s21
s_and_b32 s21, s17, 3
s_mul_i32 s22, s20, 36864
s_lshl_b32 s23, s21, 7
s_add_u32 s22, s22, s23
s_add_u32 s22, s22, s63
s_lshl_b32 s24, s20, 8
s_lshl_b32 s25, s21, 5
s_add_u32 s24, s24, s25
s_add_u32 s24, s24, {ST}
s_add_u32 s24, s24, s63
s_lshl_b32 s25, s20, 5
s_lshl_b32 s26, s21, 3
s_add_u32 s25, s25, s26
s_mul_i32 s25, s25, 1152
s_lshl_b32 s26, s18, 9
s_add_u32 s26, s26, {CNT + CCD}
s_add_u32 s26, s26, s63
s_lshl_b32 s36, s16, 7
s_add_u32 s36, s36, s26
v_and_b32 v4, 7, v0
v_lshrrev_b32 v5, 3, v0
v_lshlrev_b32 v6, 9, v5
v_lshl_add_u32 v6, v4, 4, v6
v_add_u32 v7, 16384, v6
v_lshrrev_b32 v8, 2, v5
v_lshlrev_b32 v8, 9, v8
v_lshl_add_u32 v8, v4, 4, v8
v_and_b32 v9, 3, v5
v_lshl_add_u32 v8, v9, 2, v8
v_add_u32 v8, 32768, v8
v_lshlrev_b32 v9, 4, v5
v_lshlrev_b32 v10, 2, v5
v_lshlrev_b32 v11, 2, v4
s_add_u32 s27, s22, {X1F}""")
    srd(p, 12, 40, 1152)
    p(f"""buffer_load_dword v24, v11, s[8:11], s24 offen sc1
buffer_load_dword v25, v11, s[8:11], s24 offen offset:128 sc1
buffer_load_dwordx4 v[{XL}:{XL+3}], v6, s[8:11], s27 offen sc1
buffer_load_dwordx4 v[{XL+4}:{XL+7}], v7, s[8:11], s27 offen sc1
buffer_load_dword v{XL+8}, v8, s[8:11], s27 offen sc1
buffer_load_dwordx4 v[{BL}:{BL+3}], v9, s[12:15], 0 offen
buffer_load_dwordx4 v[{BL+4}:{BL+7}], v9, s[12:15], 0 offen offset:512
buffer_load_dword v{BL+8}, v10, s[12:15], 0 offen offset:1024
v_mov_b32 v12, 0
v_mov_b32 v13, 1
s_mov_b32 s49, 0x40000
s_waitcnt vmcnt(8)
s_mov_b64 exec, 1
buffer_atomic_add v13, v12, s[8:11], s36 offen
s_mov_b64 exec, -1
v_lshlrev_b32 v12, 7, v2""")
    p(nst('d_sig'))
    p(f"""v_mul_f32 v24, 0x3ae38e39, v24
v_mul_f32 v25, 0x3ae38e39, v25
v_fma_f32 v25, -v24, v24, v25
v_max_f32 v25, 0, v25
v_mov_b32 v26, 0x3f800054
v_mov_b32 v27, 0x2edbe6ff
v_fma_f32 v25, v25, v26, v27
v_rsq_f32 v25, v25
v_mov_b32 v14, 0x3f80
v_mov_b32 v15, 0x3f800000
v_mul_u32_u24 v16, 1152, v4
v_add_u32 v17, v16, v10
v_add_u32 v16, v16, v9""")
    nd = [4, 4, 1]
    for r in range(3):
        for i in range(nd[r]):
            x = XL + 4*r + i; b = BL + 4*r + i; u = U + 8*r + 2*i
            p(f"v_lshlrev_b32 v{u}, 16, v{x}\nv_and_b32 v{u+1}, 0xffff0000, v{x}\nv_lshlrev_b32 v{x}, 16, v{b}\nv_and_b32 v{b}, 0xffff0000, v{b}")
            p(f"v_add_f32 v{u}, v{u}, v{x}\nv_add_f32 v{u+1}, v{u+1}, v{b}")
    for j in range(8): p(f"s_add_u32 s{28+j}, s22, {PART + j*ACT}")
    if we == 1:
        p("s_cmp_eq_u32 s16, 0\ns_cbranch_scc1 L_cd_w0")
        p.ext(w_early()); p("L_cd_w0:")
    else: p("s_cmp_eq_u32 s16, 0\ns_cbranch_scc0 L_cd_go")
    p(spin("cd", 26, 12, 250, 4, 8, PD))
    p("s_barrier")
    p(nst('d_go'))
    for r in range(2):
        for j in range(8): p(f"buffer_load_dwordx4 v[{PL+32*r+4*j}:{PL+32*r+4*j+3}], v{6+r}, s[8:11], s{28+j} offen {lf}")
    for j in range(8): p(f"buffer_load_dword v{PL+64+j}, v8, s[8:11], s{28+j} offen {lf}")
    def sums(p):
        for r in range(3):
            src = lambda j, i: PL + 32*r + 4*j + i if r < 2 else PL + 64 + j
            for i in range(nd[r]): p(f"v_lshlrev_b32 v{X+8*r+2*i}, 16, v{src(0, i)}\nv_and_b32 v{X+8*r+2*i+1}, 0xffff0000, v{src(0, i)}")
            for j in range(1, 8):
                for i in range(nd[r]): p(f"v_dot2c_f32_bf16 v{X+8*r+2*i}, v{src(j, i)}, v14\nv_dot2c_f32_bf16 v{X+8*r+2*i+1}, v{src(j, i)}, v15")
            for i in range(2*nd[r]): p(f"v_fma_f32 v{X+8*r+i}, v{X+8*r+i}, v25, v{U+8*r+i}")
            for i in range(nd[r]): p(f"v_cvt_pk_bf16_f32 v{PL+32*r+i}, v{X+8*r+2*i}, v{X+8*r+2*i+1}")
    if we == 2:
        p.ext(w_mid())
        n0 = len(p.ins); sums(p)
        p("s_branch L_cd_mid\nL_wm_skip:")
        q = Prog()
        for r in range(2):
            for j in range(8): q(f"buffer_load_dwordx4 v[{PL+32*r+4*j}:{PL+32*r+4*j+3}], v{6+r}, s[8:11], s{28+j} offen {lf}")
        for j in range(8): q(f"buffer_load_dword v{PL+64+j}, v8, s[8:11], s{28+j} offen {lf}")
        sums(q); q.resolve_waits()
        for i in q.ins[24:]: i.text += " ; @"
        p.ins += q.ins[24:]
    else: sums(p)
    O = [PL, PL + 32, PL + 64]
    p(nst('d_use'))
    if we != 2: p("s_cmp_eq_u32 s63, 0\ns_cbranch_scc1 L_cd_mid")
    srd(p, 12, 42, ACT)
    p(f"""buffer_store_dwordx4 v[{O[0]}:{O[0]+3}], v16, s[12:15], s25 offen {sf}
buffer_store_dwordx4 v[{O[1]}:{O[1]+3}], v16, s[12:15], s25 offen offset:512 {sf}
buffer_store_dword v{O[2]}, v17, s[12:15], s25 offen offset:1024 {sf}""")
    if p0:
        srd(p, 36, 6, 256)
        p('''s_or_b32 s60, s2, s16
s_cmp_eq_u32 s60, 0
s_cbranch_scc0 L_d_nt
v_mov_b32 v20, 0
s_mov_b64 exec, 1
buffer_store_dword v20, v20, s[36:39], 0 offen sc1 ; @
s_mov_b64 exec, -1
L_d_nt:''')
    if SC.sel: p("s_waitcnt vmcnt(0) ; @"); p(nst('d_end')); nst_dump(p, 'd2')
    p("s_endpgm\nL_cd_mid:")
    p(f"""s_add_u32 s27, s22, {XF + LS}
s_add_u32 s28, s22, {YF + LS}
buffer_store_dwordx4 v[{O[0]}:{O[0]+3}], v6, s[8:11], s27 offen {sf}
buffer_store_dwordx4 v[{O[1]}:{O[1]+3}], v7, s[8:11], s27 offen {sf}
buffer_store_dword v{O[2]}, v8, s[8:11], s27 offen {sf}""")
    XS = []
    for r in range(3):
        for i in range(nd[r]):
            p(f"v_lshlrev_b32 v{X+8*r+2*i}, 16, v{O[r]+i}\nv_and_b32 v{X+8*r+2*i+1}, 0xffff0000, v{O[r]+i}")
            XS += [X+8*r+2*i, X+8*r+2*i+1]
    p(f"v_add_f32 v24, v{XS[0]}, v{XS[1]}\nv_add_f32 v26, v{XS[2]}, v{XS[3]}\nv_mul_f32 v25, v{XS[0]}, v{XS[0]}\nv_mul_f32 v27, v{XS[1]}, v{XS[1]}")
    for k, x in enumerate(XS[4:]): p(f"v_add_f32 v{24 + 2*(k%2)}, v{24 + 2*(k%2)}, v{x}")
    for k, x in enumerate(XS[2:]): p(f"v_fmac_f32 v{25 + 2*(k%2)}, v{x}, v{x}")
    p(f"""v_add_f32 v24, v24, v26
v_add_f32 v25, v25, v27
v_permlane32_swap_b32 v24, v25
v_add_f32 v24, v24, v25
v_mov_b32 v25, v24
v_permlane16_swap_b32 v24, v25
v_add_f32 v24, v24, v25
v_add_f32 v24, v24, v24 row_ror:8
v_bfe_u32 v27, v0, 5, 1
v_lshl_add_u32 v27, v4, 1, v27
v_lshlrev_b32 v27, 4, v27
s_lshl_b32 s29, s16, 2
s_add_u32 s29, s29, {LX}
v_add_u32 v27, s29, v27
v_and_b32 v28, 24, v0
v_cmp_eq_u32 vcc, 0, v28
s_and_saveexec_b64 s[30:31], vcc
ds_write_b32 v27, v24
s_mov_b64 exec, s[30:31]
v_lshlrev_b32 v27, 5, v4
v_add_u32 v27, {LX}, v27
s_lshr_b32 s29, s18, 2
s_lshl_b32 s29, s29, 4
s_and_b32 s36, s18, 3
s_add_u32 s29, s29, s36
s_lshl_b32 s29, s29, 7
s_add_u32 s29, s29, {CNT + LS + CDA}""")
    if not we: p(A_MAP); p(A_WS)
    p(f"""s_waitcnt lgkmcnt(0)
s_barrier
ds_read_b128 v[20:23], v27
ds_read_b128 v[28:31], v27 offset:16
v_add_f32 v20, v20, v21
v_add_f32 v22, v22, v23
v_add_f32 v28, v28, v29
v_add_f32 v30, v30, v31
v_add_f32 v20, v20, v22
v_add_f32 v28, v28, v30
v_mul_f32 v20, 0x3ae38e39, v20
v_mul_f32 v28, 0x3ae38e39, v28
v_fma_f32 v28, -v20, v20, v28
v_max_f32 v28, 0, v28
v_add_f32 v28, 0x3727c5ac, v28
v_rsq_f32 v28, v28""")
    for x in XS: p(f"v_sub_f32 v{x}, v{x}, v20")
    for x in XS: p(f"v_mul_f32 v{x}, v{x}, v28")
    for k in range(9): p(f"v_cvt_pk_bf16_f32 v{U+k}, v{XS[2*k]}, v{XS[2*k+1]}")
    p(f"""buffer_store_dwordx4 v[{U}:{U+3}], v6, s[8:11], s28 offen {sf}
buffer_store_dwordx4 v[{U+4}:{U+7}], v7, s[8:11], s28 offen {sf}
buffer_store_dword v{U+8}, v8, s[8:11], s28 offen {sf}""")
    if not we:
        for c in range(9): p.ext(a_wchunk(c))
    p(f"""v_lshlrev_b32 v12, 9, v2
s_waitcnt vmcnt({0 if we else 18})
s_barrier
s_cmp_eq_u32 s16, 0
s_cbranch_scc0 L_da_ns
s_mov_b64 exec, 15
buffer_atomic_add v13, v12, s[8:11], s29 offen
s_mov_b64 exec, -1
L_da_ns:""")
    p(nst('d_end')); nst_dump(p, 'd1')
    if dx: srd(p, 12, 4, WSSZ)
    p(f"s_mov_b32 s63, {LS}\ns_branch L_a1")
    return p.finish()

def late_out(**kw):
    q = Prog(); q(kq.late_st('lo', uni=False, **kw)[0])
    return kq.late_pre(run=False, split=kw.get('split', False)) + q.finish()

def main_kernel(a={}, b={}, c={}, d={}, bk=0, side=None, p0=None, hf='sc1', sfl={}, a0={}, p2=None):
    assert NEW
    BK[0] = bk
    HF[0] = hf if p0 is not None else ''
    if p0 is not None: b = dict(b, pbar=True); d = dict(d, p0=True); c = dict(c, wfl=hf)
    if p2 is not None: HF[0] = hf; b = dict(b, x4=True, dx=True, sb=p2.get('s', {})); d = dict(d, p0=True, dx=True); c = dict(c, wfl=hf, f3=p2.get('f', {}))
    cz = kc.c_kernel(fused=True, dz=True, rev=True, poll=lambda PD: spin('bc', 65, 4, 250, 4, 8, PD), **c)
    p = Prog()
    p("""s_cmp_lt_u32 s2, 256
s_cbranch_scc1 L_m_go
s_endpgm
L_m_go:
s_load_dwordx2 s[4:5], s[0:1], 80
s_load_dwordx4 s[40:43], s[0:1], 56""")
    if side is not None:
        sp = side_parts(**side); p(sp[0]); a = dict(a, side=sp); b = dict(b, allp=True)
    if p0 is not None or p2 is not None: p(kp.KARGS)
    if SC.sel: p(f"s_memrealtime s[{SC.m['t']}:{SC.m['t']+1}]")
    p(f"""v_lshrrev_b32 v1, 6, v0
v_and_b32 v2, 63, v0
v_readfirstlane_b32 s16, v1
v_lshlrev_b32 v3, 4, v2
s_mov_b32 s63, 0
s_mov_b32 s10, {WSSZ}
s_mov_b32 s11, 0x20000""")
    cp = p2.get('cp', 0) if p2 is not None else 0
    if cp:
        p(f"""s_cmp_eq_u32 s16, {p2.get('cpw', 3)}
s_cbranch_scc0 L_cp_e
s_getpc_b64 s[86:87]
L_cp0:
s_lshr_b32 s60, s2, 3
v_min_u32 v26, {cp - 1}, v2
v_lshlrev_b32 v26, 5, v26
v_add_u32 v26, s60, v26
v_lshlrev_b32 v26, 7, v26
s_mov_b32 s60, L_kend-L_cp0-4
v_min_u32 v26, s60, v26
global_load_dword v25, v26, s[86:87] ; @
L_cp_e:""")
    if p0 is None and p2 is None: p("s_waitcnt lgkmcnt(0)\ns_mov_b32 s8, s4\ns_mov_b32 s9, s5")
    NP1 = a.get('NP1', 36)
    if p2 is not None:
        a0 = kq.HEAD + kq.crit(**p2.get('c', {})) + kq.loader(**p2.get('l', {})) + "L_a0:\n" + a_part(True, p2=p2.get('t', {}), **dict(a, **a0))
    else:
        a0 = a_part(True, **a) if p0 is None else (kp.HEAD + kp.variant('q', **p0) + kp.variant('o', **p0) + "L_a0w1:\n" + a_part(True, p0=('w1',) + kp.side_fill(False, **sfl) + (kp.side_dmas(False) if p0.get('late', 0) < 0 else [],), **dict(dict(SW=(6, 110)), **a, **a0))
        + kp.variant('w2', **p0) + a_part(True, p0=('w2',) + kp.side_fill(True, **sfl) + (kp.side_dmas(True) if p0.get('late', 0) < 0 else [],), **dict(dict(SW=(6, 110)), **a, **a0)))
    body = p.finish() + a0 + "L_a1:\n" + a_part(False, **a) + "L_ab:\n" + ab_link(NP1, p2.get('s', {}) if p2 is not None else None)
    b5 = b_part(5, cz, **b); b4 = b_part(4, cz, **b)
    body += b5[0] + b5[1] + b4[1] + "L_b4:\n" + b4[0] + "L_bc_c:\n" + (late_out(**dict(p2.get('o', {}), split='W2' in p2.get('f', {}))) if p2 is not None else '') + cz[0] + d_part(**d) + (cz[4] + "  s_endpgm\nL_kend:\n" if p2 is not None else '')
    if p0 is not None or p2 is not None:
        return kernel("interleave_layers__linear_attn_block__mixer_channel_mlp__prompt_kernel", body, vgpr=256, agpr=256), "; @launch grid=(256,1,1) block=(256,1,1) lds=163840\n"
    return kernel("main_kernel", body, vgpr=256, agpr=256), "; @launch kernel=main_kernel grid=(256,1,1) block=(256,1,1) lds=163840\n"
```

```python
import re

def _expand(tok):
    tok = tok.strip()
    tok = re.sub(r'^-', '', tok)
    m = re.match(r'^(?:abs\(|\|)(.*?)(?:\)|\|)$', tok)
    if m: tok = m.group(1)
    m = re.match(r'^([vsa])\[(\d+):(\d+)\]$', tok)
    if m: return [f"{m.group(1)}{i}" for i in range(int(m.group(2)), int(m.group(3)) + 1)]
    m = re.match(r'^([vsa])(\d+)$', tok)
    if m: return [tok]
    if tok in ('vcc', 'exec'): return [tok]
    if tok in ('vcc_lo', 'vcc_hi'): return ['vcc']
    if tok in ('exec_lo', 'exec_hi'): return ['exec']
    if tok == 'm0': return ['m0']
    return []

TRANS = ('v_exp_f32', 'v_log_f32', 'v_rcp_f32', 'v_rsq_f32', 'v_sqrt_f32', 'v_sin_f32', 'v_cos_f32', 'v_rcp_iflag_f32')

class I:
    __slots__ = ('text', 'op', 'kind', 'w', 'r', 'tag', 'needs', 'srcC', 'passes', 'isdma', 'wide', 'sdata')
    def __init__(self, text, tag=None, needs=()):
        self.text = text.strip(); self.tag = tag; self.needs = list(needs)
        self.srcC = []; self.passes = 0; self.isdma = False; self.wide = False; self.sdata = []
        t = self.text.split(';')[0].strip()
        if t.endswith(':') or t == '' or t.startswith('.'):
            self.op = 'label' if t.endswith(':') else 'dir'; self.kind = self.op; self.w = []; self.r = []; return
        parts = t.split(None, 1)
        self.op = op = re.sub(r'_(e32|e64|dpp|sdwa)$', '', parts[0])
        rest = parts[1] if len(parts) > 1 else ''
        ops = [x.strip() for x in re.split(r',(?![^\[]*\])', rest)]
        mods = ''
        if ops:
            lp = ops[-1].split(None, 1)
            if lp:
                ops[-1] = lp[0]
                mods = lp[1] if len(lp) > 1 else ''
        E = lambda i: _expand(ops[i]) if i < len(ops) else []
        allr = lambda a: [x for i in range(a, len(ops)) for x in E(i)]
        w, r = [], []
        if op.startswith('v_mfma'):
            self.kind = 'mfma'; w = E(0); r = E(1) + E(2) + E(3); self.srcC = E(3)
            self.passes = 8 if '32x32' in op else 4
        elif op.startswith('ds_read') or op.startswith('ds_bpermute') or op.startswith('ds_swizzle') or op.startswith('ds_permute'):
            self.kind = 'dsr'; w = E(0); r = allr(1)
        elif op.startswith('ds_write') or op.startswith('ds_add'):
            self.kind = 'dsw'; r = allr(0)
        elif op.startswith('buffer_load') or op.startswith('global_load'):
            self.kind = 'vm'
            if ' lds' in (' ' + mods) or op.startswith('global_load_lds'):
                self.isdma = True; r = allr(0) + ['m0']
            else:
                w = E(0); r = allr(1)
                if 'd16' in op: r += E(0)
        elif op.startswith('buffer_store') or op.startswith('global_store') or op.startswith('buffer_atomic') or op.startswith('global_atomic'):
            self.kind = 'vm'; r = allr(0)
            if op.startswith('buffer_'): self.sdata = E(0)
            else: self.sdata = E(1)
            if 'x4' in op or 'x3' in op: self.wide = True
            if 'atomic' in op and 'sc0' in mods: w = E(0)
        elif op.startswith('buffer_wbl2') or op.startswith('buffer_inv'):
            self.kind = 'vm'
        elif op.startswith('s_load') or op.startswith('s_memtime') or op.startswith('s_memrealtime') or op.startswith('s_buffer_load'):
            self.kind = 'smem'; w = E(0); r = allr(1)
        elif op in ('s_waitcnt', 's_barrier', 's_nop', 's_setprio', 's_endpgm', 's_sleep', 's_branch') or op.startswith('s_cbranch'):
            self.kind = 'ctl'
            if 'scc' in op: r = ['scc']
            if 'vcc' in op: r = ['vcc']
            if 'exec' in op: r = ['exec']
        elif op.startswith('s_cmp') or op.startswith('s_bitcmp'):
            self.kind = 'salu'; w = ['scc']; r = allr(0)
        elif op.startswith('s_'):
            self.kind = 'salu'; w = E(0); r = allr(1)
            if 'saveexec' in op: w += ['exec']; r += ['exec']
            if op in ('s_addc_u32', 's_subb_u32', 's_cselect_b32', 's_cselect_b64'): r += ['scc']
            if op in ('s_addk_i32', 's_mulk_i32'): r += E(0)
            if not op.startswith('s_mov') and not op.startswith('s_mul') and not op.startswith('s_cselect') and not op.startswith('s_getreg'): w += ['scc']
        elif op.startswith('v_'):
            self.kind = 'trans' if op in TRANS else 'valu'
            if op.startswith('v_cmp'):
                w = E(0); r = allr(1)
                if op.startswith('v_cmpx'): w += ['exec']
            elif op in ('v_add_co_u32', 'v_sub_co_u32', 'v_addc_co_u32', 'v_subb_co_u32'):
                w = E(0) + E(1); r = allr(2)
            elif op.startswith('v_permlane') and 'swap' in op:
                w = E(0) + E(1); r = E(0) + E(1)
            else:
                w = E(0); r = allr(1)
                if op.startswith('v_fmac') or op.startswith('v_pk_fmac') or op in ('v_writelane_b32',) or op.startswith('v_dot2c'): r += E(0)
                if ('row_' in mods or 'quad_perm' in mods or 'wave_' in mods or 'bank_mask' in mods): self.kind = 'dpp'; r += E(0)
                if 'dst_sel' in mods or 'op_sel' in mods: r += E(0)
        else:
            raise ValueError("unknown op " + text)
        self.w = w; self.r = r
    def states(self):
        if self.op == 's_nop':
            return int(self.text.split()[1], 0) + 1
        if self.kind in ('label', 'dir'): return 0
        return 1
    def isvalu(self): return self.kind in ('valu', 'trans', 'dpp')

class Prog:
    def __init__(self):
        self.ins = []
    def add(self, text, tag=None, needs=()):
        for line in text.split('\n'):
            if line.strip(): self.ins.append(I(line, tag, needs))
        return self
    def __call__(self, text, tag=None, needs=()): return self.add(text, tag, needs)
    def ext(self, lst):
        for x in lst:
            if isinstance(x, I): self.ins.append(x)
            else: self.add(x)
    def resolve_waits(self, check_only=False):
        out = []
        vm = []
        lg = []
        def need_vm(pred):
            idx = -1
            for k, o in enumerate(vm):
                if pred(o): idx = k
            return idx
        for ins in self.ins:
            if ins.text.endswith('; @'):
                ins.text = ins.text[:-3].rstrip(); out.append(ins); continue
            if ins.tag == '__clr': vm = []; continue
            if ins.op == 's_waitcnt':
                m = re.search(r'vmcnt\((\d+)\)', ins.text)
                if m:
                    n = int(m.group(1));
                    if len(vm) > n: vm = vm[len(vm) - n:] if n else []
                m = re.search(r'lgkmcnt\((\d+)\)', ins.text)
                if m:
                    n = int(m.group(1))
                    if any(o.kind == 'smem' for o in lg):
                        if n == 0: lg = []
                    elif len(lg) > n: lg = lg[len(lg) - n:] if n else []
                out.append(ins); continue
            touched = set(ins.r) | set(ins.w)
            iv = -1; il = -1
            for k, o in enumerate(vm):
                if (set(o.w) & touched) or (o.tag is not None and o.tag in ins.needs): iv = k
            for k, o in enumerate(lg):
                if (set(o.w) & touched) or (o.tag is not None and o.tag in ins.needs): il = k
            parts = []
            if iv >= 0:
                n = len(vm) - 1 - iv
                n = min(n, 62)
                parts.append(f"vmcnt({n})"); vm = vm[len(vm) - n:] if n else []
            if il >= 0:
                if any(o.kind == 'smem' for o in lg):
                    parts.append("lgkmcnt(0)"); lg = []
                else:
                    n = len(lg) - 1 - il
                    n = min(n, 15)
                    parts.append(f"lgkmcnt({n})"); lg = lg[len(lg) - n:] if n else []
            if parts: out.append(I("s_waitcnt " + " ".join(parts)))
            out.append(ins)
            if ins.kind == 'vm':
                vm.append(ins)
                Prog.maxvm = max(getattr(Prog, 'maxvm', 0), len(vm))
            elif ins.kind in ('dsr', 'dsw', 'smem'): lg.append(ins)
        self.ins = out
        return self
    def pad_hazards(self):
        out = []
        def dist_back(pred, maxd):
            d = 0
            for o in reversed(out):
                if pred(o): return d
                d += o.states()
                if d >= maxd: return None
            return None
        for ins in self.ins:
            need = 0
            R = set(ins.r); W = set(ins.w)
            def req(pred, n):
                nonlocal need
                d = dist_back(pred, n)
                if d is not None and n - d > need: need = n - d
            vr = {x for x in R if x[0] in 'va' and x not in ('vcc',)}
            vw = {x for x in W if x[0] in 'va' and x not in ('vcc',)}
            sr = {x for x in R if x[0] == 's' and x != 'scc'} | ({'vcc'} & R)
            if ins.kind == 'mfma':
                req(lambda o: o.isvalu() and set(o.w) & vr, 2)
                ab = set(ins.r) - set(ins.srcC) if set(ins.srcC) != set(ins.r) else set(ins.r)
                abr = set(_ab(ins))
                for p, n in ((4, 8), (8, 12)):
                    req(lambda o, p=p: o.kind == 'mfma' and o.passes == p and set(o.w) & abr, n)
                for p, n in ((4, 6), (8, 10)):
                    req(lambda o, p=p: o.kind == 'mfma' and o.passes == p and set(o.w) & set(ins.srcC) and not (o.w == ins.srcC and o.passes == ins.passes), n)
                    req(lambda o, p=p: o.kind == 'mfma' and o.passes == p and set(o.w) & set(ins.w) and not (o.w == ins.srcC and o.passes == ins.passes), n)
                req(lambda o: o.isvalu() and 'exec' in o.w, 4)
            elif ins.isvalu() or ins.kind in ('vm', 'dsr', 'dsw'):
                for p, n in ((4, 8), (8, 12)):
                    req(lambda o, p=p: o.kind == 'mfma' and o.passes == p and set(o.w) & (vr | vw), n)
                if ins.isvalu() or ins.kind in ('vm', 'dsr'):
                    for p, n in ((4, 3), (8, 7)):
                        req(lambda o, p=p: o.kind == 'mfma' and o.passes == p and set(o.srcC) & vw, n)
            if ins.isvalu() or ins.kind in ('vm', 'dsw', 'mfma'):
                req(lambda o: o.op.startswith('v_dot') and o.op != ins.op and set(o.w) & (vr | vw), 3)
            if ins.isvalu():
                if ins.kind != 'trans': req(lambda o: o.kind == 'trans' and set(o.w) & vr, 1)
                req(lambda o: o.isvalu() and set(o.w) & sr, 2)
                req(lambda o: o.kind == 'vm' and o.wide and set(o.sdata) & vw, 2)
                if ins.kind == 'dpp':
                    req(lambda o: (o.isvalu() or o.kind=='mfma') and set(o.w) & vr, 2)
                    req(lambda o: o.isvalu() and 'exec' in o.w, 5)
                if ins.op.startswith('v_permlane'):
                    req(lambda o: o.isvalu() and set(o.w) & vr, 2)
                    req(lambda o: o.isvalu() and 'exec' in o.w, 4)
                if ins.op in ('v_readlane_b32', 'v_readfirstlane_b32'):
                    req(lambda o: o.isvalu() and set(o.w) & vr, 1)
                    req(lambda o: o.isvalu() and 'exec' in o.w, 4)
                    req(lambda o: o.isvalu() and set(o.w) & sr, 4)
                if ins.op == 'v_div_fmas_f32': req(lambda o: o.isvalu() and 'vcc' in o.w, 4)
                req(lambda o: o.isvalu() and ('op_sel' in o.text or 'dst_sel' in o.text) and set(o.w) & (vr | vw), 1)
            if ins.kind in ('dsr',) or (ins.kind == 'vm' and vw):
                req(lambda o: o.kind == 'vm' and o.wide and set(o.sdata) & vw, 1)
            if ins.kind == 'vm':
                req(lambda o: o.isvalu() and set(o.w) & sr, 5)
                if ins.isdma: req(lambda o: o.kind == 'salu' and 'm0' in o.w, 1)
            if ins.kind == 'salu' or ins.kind == 'smem' or ins.kind == 'ctl':
                if ins.op in ('s_cbranch_vccz', 's_cbranch_vccnz'): req(lambda o: o.isvalu() and 'vcc' in o.w, 5)
                if ins.op in ('s_cbranch_execz', 's_cbranch_execnz'): req(lambda o: o.isvalu() and 'exec' in o.w, 5)
                req(lambda o: o.isvalu() and set(o.w) & sr, 1)
            while need > 0:
                k = min(need, 16)
                out.append(I(f"s_nop {k-1}")); need -= k
            out.append(ins)
        self.ins = out
        return self
    def text(self):
        return "".join(("" if i.kind == 'label' else "  ") + i.text + "\n" for i in self.ins)
    def sizes(self):
        import subprocess
        lines = [i.text for i in self.ins]
        isbr = lambda i: i.op == 's_branch' or i.op.startswith('s_cbranch')
        src = "\n".join("s_nop 0" if (i.kind in ('label', 'dir') or isbr(i)) else i.text for i in self.ins) + "\n"
        r = subprocess.run(["llvm-mc", "-triple=amdgcn-amd-amdhsa", "-mcpu=gfx950", "-show-encoding"], input=src, capture_output=True, text=True)
        assert r.returncode == 0, r.stderr
        enc = [l.split("encoding:")[1].count("0x") for l in r.stdout.split("\n") if "encoding:" in l]
        assert len(enc) == len(self.ins)
        return [0 if i.kind in ('label', 'dir') else e for i, e in zip(self.ins, enc)]
    def align8(self, start=0, nop=False):
        sz = self.sizes()
        out = []; run = []; pos = start; nfix = nmiss = 0
        def widen(i):
            t = i.text
            if i.kind in ('valu', 'trans') and not re.search(r'_(e64|dpp|sdwa)\b', t) and not i.op.startswith(('v_readfirstlane', 'v_accvgpr', 'v_permlane', 'v_dot2c', 'v_fmaak', 'v_fmamk')):
                return I(re.sub(r'^(\S+?)(_e32)?(\s)', r'\1_e64\3', t, count=1), i.tag, i.needs)
            m = re.match(r's_addk_i32 (s\d+), (\d+)$', t)
            if m and int(m.group(2)) > 64: return I(f"s_add_u32 {m.group(1)}, {m.group(1)}, {m.group(2)}", i.tag, i.needs)
            return None
        for i, n in zip(self.ins, sz):
            if n == 8 and pos % 8 == 4:
                for k in reversed(run):
                    w = widen(out[k])
                    if w is not None:
                        out[k] = w; pos += 4; nfix += 1; break
                else:
                    if nop: out.append(I("s_nop 0")); pos += 4
                    nmiss += 1
            if n == 4: run.append(len(out))
            elif n == 8: run = []
            out.append(i); pos += n
        self.ins = out
        Prog.stats = (nfix, nmiss, pos)
        return self
    def finish(self, align=None):
        self.resolve_waits(); self.pad_hazards()
        if align is not None: self.align8(*align)
        return self.text()

def _ab(ins):
    t = ins.text.split(';')[0].split(None, 1)[1]
    ops = [x.strip() for x in re.split(r',(?![^\[]*\])', t)]
    return _expand(ops[1]) + _expand(ops[2])

def _wt(x):
    if isinstance(x, list): return sum(_wt(y) for y in x)
    i = I(x) if isinstance(x, str) else x
    return 2 if i.kind == 'trans' else 1

def interleave(main, fill, start=0, end=None, cost=None):
    n = len(main); end = n if end is None else end
    gaps = end - start
    w = [_wt(x) for x in fill]
    tot = sum(w); out = []; k = 0; acc = 0
    def emit(x):
        if isinstance(x, list): out.extend(x)
        else: out.append(x)
    for g in range(n):
        out += main[g]
        if start <= g < end:
            target = tot * (g - start + 1) / gaps
            while k < len(fill) and acc + w[k] / 2 <= target:
                emit(fill[k]); acc += w[k]; k += 1
    for x in fill[k:]: emit(x)
    return out

HDR = '.amdgcn_target "amdgcn-amd-amdhsa--gfx950"\n.text\n'
def kernel(name, body, vgpr=256, sgpr=102, agpr=0):
    acc = (vgpr + 3) // 4 * 4
    return f""".text
.globl {name}
.p2align 8
.type {name},@function
{name}:
{body}.section .rodata,"a"
.p2align 6
.amdhsa_kernel {name}
  .amdhsa_next_free_vgpr {acc + agpr if agpr else vgpr}
  .amdhsa_next_free_sgpr {sgpr}
  .amdhsa_accum_offset {acc}
  .amdhsa_group_segment_fixed_size 0
  .amdhsa_kernarg_size 88
  .amdhsa_user_sgpr_count 2
  .amdhsa_user_sgpr_kernarg_segment_ptr 1
  .amdhsa_system_sgpr_workgroup_id_x 1
.end_amdhsa_kernel
"""


class SC:
    m = dict(ptr=68, t=70, r0=90, r1=92, srd=96, ex=94)
    ws = False
    full = False
    sel = {}
    nl = 9
    amp = None
    dw = 0
BIG = dict(ptr=68, t=70, r0=90, r1=92, srd=96, ex=94)
SMALL = dict(ptr=64, t=66, r0=76, r1=78, srd=12, ex=26)
def stamp_init(p):
    m = SC.m
    p(f"s_load_dwordx2 s[{m['ptr']}:{m['ptr']+1}], s[0:1], 72\ns_memtime s[{m['t']}:{m['t']+1}]\ns_memrealtime s[{m['r0']}:{m['r0']+1}]")
def stamp(i):
    t = SC.m['t']
    return f"s_memtime s[{t+2*i}:{t+1+2*i}]"
def stamp_end(p, n, name, stride=32, wave=0, idr='s2'):
    m = SC.m; t = m['t']; r0 = m['r0']; r1 = m['r1']; d = m['srd']; ex = m['ex']
    if SC.ws:
        TS = 0x4000000
        p(f"s_waitcnt vmcnt(0)\ns_memrealtime s[{r1}:{r1+1}]\ns_waitcnt lgkmcnt(0)")
        p(f"s_sub_u32 s{r1}, s{r1}, s{r0}\ns_lshl_b32 s{r1}, s{r1}, 20\ns_and_b32 s{r0}, s{r0}, 0xfffff\ns_or_b32 s{r0}, s{r0}, s{r1}")
        p(f"""s_cmp_eq_u32 {idr}, 0
s_cbranch_scc0 L_{name}_dend
s_mov_b64 exec, -1
v_cmp_eq_u32 vcc, 0, v0
s_and_saveexec_b64 s[{ex}:{ex+1}], vcc
s_cbranch_execz L_{name}_dend
s_bfe_u32 s{r1}, s{m['ptr']}, 0x40009
s_lshl_b32 s{r1}, s{r1}, 2
s_add_u32 s{r1}, s{r1}, {TS}
v_mov_b32 v5, s{r0}
v_mov_b32 v6, 0
buffer_store_dword v5, v6, s[8:11], s{r1} offen""")
        if name == 'd2':
            p(f"""s_waitcnt vmcnt(0)
s_mov_b64 exec, 0xffff
v_lshlrev_b32 v6, 2, v0
s_bfe_u32 s{r1}, s{m['ptr']}, 0x40009
s_add_u32 s{r1}, s{r1}, {17 - SC.nl}
v_add_u32 v7, s{r1}, v0
v_and_b32 v7, 15, v7
v_lshlrev_b32 v7, 2, v7
s_mov_b32 s{r1}, {TS}
buffer_load_dword v5, v7, s[8:11], s{r1} offen sc1
s_mov_b32 s{d}, s{m['ptr']}
s_mov_b32 s{d+1}, s{m['ptr']+1}
s_mov_b32 s{d+2}, 256
s_mov_b32 s{d+3}, 0x20000
s_waitcnt vmcnt(0)
buffer_store_dword v5, v6, s[{d}:{d+3}], 0 offen""")
            if SC.amp is not None:
                i0, i1, wd, K = SC.amp
                p(f"""v_readlane_b32 s20, v5, {i0}
v_readlane_b32 s21, v5, {i1}
s_lshr_b32 s22, s21, 20
s_mul_i32 s22, s22, {wd}
s_add_u32 s21, s21, s22
s_sub_u32 s21, s21, s20
s_and_b32 s21, s21, 0xfffff
s_min_u32 s21, s21, 20000
s_mul_i32 s21, s21, {K}
s_memrealtime s[22:23]
s_waitcnt lgkmcnt(0)
L_spin:
s_sleep 8
s_memrealtime s[24:25]
s_waitcnt lgkmcnt(0)
s_sub_u32 s24, s24, s22
s_cmp_lt_u32 s24, s21
s_cbranch_scc1 L_spin""")
        p(f"L_{name}_dend:")
        return
    p(f"s_waitcnt vmcnt(0)\ns_memtime s[{t+2*n}:{t+1+2*n}]\ns_memrealtime s[{r1}:{r1+1}]\ns_waitcnt lgkmcnt(0)")
    p(f"s_sub_u32 s{r1}, s{r1}, s{r0}\ns_lshl_b32 s{r1}, s{r1}, 20\ns_and_b32 s{r0}, s{r0}, 0xfffff\ns_or_b32 s{r0}, s{r0}, s{r1}")
    for i in range(1, n+1): p(f"s_sub_u32 s{t+2*i}, s{t+2*i}, s{t}")
    if SC.full:
        p(f"""s_bfe_u32 s{r1}, s{m['ptr']}, 0x40009
s_lshl_b32 s{r1}, s{r1}, 14
s_add_u32 s{r1}, s{r1}, 0x4000000
s_lshl_b32 s{r1+1}, {idr}, 5
s_add_u32 s{r1}, s{r1}, s{r1+1}
s_mov_b64 exec, -1
v_mov_b32 v6, 0
v_cmp_eq_u32 vcc, {wave*64}, v0
s_and_saveexec_b64 s[{ex}:{ex+1}], vcc
s_cbranch_execz L_{name}_dend
v_mov_b32 v5, s{r0}
buffer_store_dword v5, v6, s[8:11], s{r1} offen""")
        for i in range(1, n+1):
            p(f"v_mov_b32 v5, s{t+2*i}\nbuffer_store_dword v5, v6, s[8:11], s{r1} offen offset:{4*i}")
        p(f"L_{name}_dend:")
        return
    p(f"""s_and_b32 s{r1}, {idr}, {stride-1}
s_cmp_eq_u32 s{r1}, 0
s_cbranch_scc0 L_{name}_dend
s_mov_b32 s{d}, s{m['ptr']}
s_mov_b32 s{d+1}, s{m['ptr']+1}
s_mov_b32 s{d+2}, 256
s_mov_b32 s{d+3}, 0x20000
s_lshr_b32 s{r1}, {idr}, {stride.bit_length()-1}
s_lshl_b32 s{r1}, s{r1}, 5
s_mov_b64 exec, -1
v_mov_b32 v6, s{r1}
v_cmp_eq_u32 vcc, {wave*64}, v0
s_and_saveexec_b64 s[{ex}:{ex+1}], vcc
s_cbranch_execz L_{name}_dend
v_mov_b32 v5, s{r0}
buffer_store_dword v5, v6, s[{d}:{d+3}], 0 offen""")
    for i in range(1, n+1):
        p(f"v_mov_b32 v5, s{t+2*i}\nbuffer_store_dword v5, v6, s[{d}:{d+3}], 0 offen offset:{4*i}")
    p(f"L_{name}_dend:")


def prefetch(regions, q, vlane, va, vd, st=60):
    L = [f"v_lshlrev_b32 v{va}, 7, v{vlane}"]
    for ri, (base, n) in enumerate(regions):
        L.append(f"s_mul_i32 s{st}, s{q}, {n*128}")
        L.append(f"s_add_u32 s{st}, s{st}, {base}")
        if n < 64:
            L.append(f"s_mov_b32 exec_lo, {hex((1 << min(n, 32)) - 1)}")
            L.append(f"s_mov_b32 exec_hi, {hex((1 << max(n - 32, 0)) - 1)}")
        L.append(f"buffer_load_dword v{vd+ri}, v{va}, s[8:11], s{st} offen")
    L.append("s_mov_b64 exec, -1")
    return L


def nst(name):
    import os
    if os.environ.get('CYC') and name in SC.sel: return stamp(SC.sel[name])
    return stamp(SC.sel[name]).replace("s_memtime", "s_memrealtime") if name in SC.sel else ""
def nst_dump(p, name):
    if not SC.sel: return
    m = SC.m; t = m['t']; r1 = m['r1']; ex = m['ex']
    p(f"""s_waitcnt lgkmcnt(0)
s_lshl_b32 s{r1}, s2, 5
s_add_u32 s{r1}, s{r1}, 0x4000000
s_add_u32 s{r1}, s{r1}, s63
v_mov_b32 v6, 0
v_mov_b32 v5, {64*SC.dw}
v_cmp_eq_u32 vcc, v5, v0
s_and_saveexec_b64 s[{ex}:{ex+1}], vcc
s_cbranch_execz L_{name}_dend""")
    for i in range(8):
        p(f"v_mov_b32 v5, s{t+2*i}\nbuffer_store_dword v5, v6, s[8:11], s{r1} offen offset:{4*i} ; @")
    p(f"L_{name}_dend:\ns_mov_b64 exec, -1")


def atomize(L):
    out = []; i = 0
    ins = lambda x: x if isinstance(x, I) else I(x)
    while i < len(L):
        x = L[i]
        if not isinstance(x, list) and ins(x).op.startswith(('s_cmp', 's_bitcmp')):
            j = i + 1
            while j < len(L) and not isinstance(L[j], list) and 'scc' in ins(L[j]).r: j += 1
            assert j > i + 1, x
            out.append(list(L[i:j])); i = j
        else:
            assert isinstance(x, list) or 'scc' not in ins(x).r, x
            out.append(x); i += 1
    return out


def add_pads(body, walks):
    import subprocess
    lines = body.split("\n")
    ins = [I(l) if l.strip() else None for l in lines]
    isbr = lambda i: i.op == 's_branch' or i.op.startswith('s_cbranch')
    src = "\n".join("s_nop 0" if (i is None or i.kind in ('label', 'dir') or isbr(i)) else re.sub(r'L_\w+-L_\w+-4', '0x12345', i.text) for i in ins) + "\n"
    r = subprocess.run(["llvm-mc", "-triple=amdgcn-amd-amdhsa", "-mcpu=gfx950", "-show-encoding"], input=src, capture_output=True, text=True)
    assert r.returncode == 0, r.stderr
    enc = [l.split("encoding:")[1].count("0x") for l in r.stdout.split("\n") if "encoding:" in l]
    assert len(enc) == len(ins)
    sz = [0 if (i is None or i.kind in ('label', 'dir')) else e for i, e in zip(ins, enc)]
    start = {}
    for n, w in walks.items():
        for a, b in w['regions']: start[a + ':'] = (n, b + ':', w['step'])
    out = []; pos = 0; cur = None; full = True; pads = {n: [] for n in walks}; last = -1
    for l, i, n in zip(lines, ins, sz):
        t = l.strip()
        if cur and t == cur[1]: cur = None
        if cur and n and full and pos // cur[2] != last and not i.op.startswith(('s_cselect', 's_cbranch', 's_nop')):
            k = len(pads[cur[0]]); pads[cur[0]].append(len(out))
            out.append(f"@PAD {cur[0]} {k}"); last = pos // cur[2]; pos += 4
        out.append(l); pos += n
        if t in start: cur = start[t]; last = -1; full = True
        if i is not None and 'exec' in i.w: full = i.text.replace(' ', '').startswith('s_mov_b64exec,-1')
    for n, P in pads.items():
        nw = walks[n]['waves']; N = len(P)
        first = [k*N//nw for k in range(nw)]
        for k, idx in enumerate(P):
            nxt = f"L_{n}_ret" if (k + 1 in first or k + 1 == N) else f"L_{n}_p{k+1}"
            out[idx] = (f"L_{n}_e{first.index(k)}:\n" if k in first else "") + f"L_{n}_p{k}:\n  s_cbranch_execz {nxt}"
        print('pads', n, N)
    return "\n".join(out)

def walk(n, first_wave, nw, l0=True):
    L = (["s_cmp_eq_u32 s63, 0", f"s_cbranch_scc0 L_{n}_skip"] if l0 else []) + ["s_mov_b64 exec, 0"]
    for k in range(nw - 1): L += [f"s_cmp_eq_u32 s16, {first_wave + k}", f"s_cbranch_scc1 L_{n}_e{k}"]
    return "\n".join(L + [f"s_branch L_{n}_e{nw - 1}", f"L_{n}_ret:", "s_mov_b64 exec, -1", f"L_{n}_skip:"])
```

```python
from asmlib import *
from layout import *
from k0 import srd

def gelu8(x, k1, k3, tmp, out, grp=4):
    L = []
    for b in range(0, 8, grp):
        idx = range(b, b + grp)
        T = lambda i: tmp + i
        for i in idx: L.append(f"v_mul_f32 v{T(i)}, v{x+i}, v{x+i}")
        for i in idx: L.append(f"v_fma_f32 v{T(i)}, v{T(i)}, v{k3}, v{k1}")
        for i in idx: L.append(f"v_mul_f32 v{T(i)}, v{T(i)}, v{x+i}")
        for i in idx: L.append(f"v_exp_f32 v{T(i)}, v{T(i)}")
        for i in idx: L.append(f"v_add_f32 v{T(i)}, 1.0, v{T(i)}")
        for i in idx: L.append(f"v_rcp_f32 v{T(i)}, v{T(i)}")
        for i in idx: L.append(f"v_mul_f32 v{T(i)}, v{T(i)}, v{x+i}")
        for i in list(idx)[::2]: L.append(f"v_cvt_pk_bf16_f32 v{out+i//2}, v{T(i)}, v{T(i+1)}")
    return L

def c_kernel(DW=32, D0=12, YCH=4, stfl="sc1", dbg=False, RAMP=3, X=(), merge=True, YLA=0, amap=2, align=None, s16=False, mk=None, fused=False, NPRE=31, yfl='', wfl='', rev=False, poll=None, PD=1, dz=False, fine=False, ds=None, armw=(0.0, 1.0), prein=False, wpf=None, arms=18, armp=0, sigp=0.5, armf='sc1', OW=30, EP=2, EW=30, f3=None, bcrep=(0, 1), sigA=None, OW0=None, OW1=None, pkA=None, own=False):
    name = "c_kernel"
    p = Prog()
    YB, HB, XB = 0, 73728, 147456
    vL = 3
    vRD = 6
    vHW = 10
    vXW, vXR = 13, 14
    vK1, vK3 = 16, 18
    TMP, PK = 24, 32
    A_, B_, C_, D_, OS, N2, N3 = 40, 72, 104, 136, 168, 184, 216
    aODD, aAUG, aLR, aT, aW = 0, 32, 40, 64, 128
    NL = 3
    assert aW + 4*DW <= 256
    wslot = (lambda g: aW + 4*(DW - 1 - g % DW)) if rev else (lambda g: aW + 4*(g % DW))
    if not fused:
        p(f"""s_cmp_lt_u32 s2, 256
s_cbranch_scc1 L_{name}_go
s_endpgm
L_{name}_go:
s_load_dwordx2 s[4:5], s[0:1], 80""")
        if dbg: stamp_init(p)
    else: D0 = NPRE
    AM = "s_and_b32 s17, s2, 7\ns_lshr_b32 s18, s2, 3" if not amap else "s_bfe_u32 s17, s2, 0x30003\ns_and_b32 s18, s2, 7\ns_lshl_b32 s18, s18, 2\ns_lshr_b32 s19, s2, 6\ns_add_u32 s18, s18, s19"
    if amap == 2: AM = "s_and_b32 s17, s2, 3\ns_lshl_b32 s17, s17, 1\ns_bfe_u32 s18, s2, 0x10003\ns_add_u32 s17, s17, s18\ns_bfe_u32 s18, s2, 0x10002\ns_lshl_b32 s18, s18, 4\ns_lshr_b32 s19, s2, 4\ns_add_u32 s18, s18, s19"
    if amap == 4: AM = "s_and_b32 s17, s2, 1\ns_lshl_b32 s17, s17, 2\ns_bfe_u32 s18, s2, 0x20003\ns_add_u32 s17, s17, s18\ns_bfe_u32 s18, s2, 0x20001\ns_lshl_b32 s18, s18, 3\ns_lshr_b32 s19, s2, 5\ns_add_u32 s18, s18, s19"
    p(f"""v_lshrrev_b32 v1, 6, v0
v_and_b32 v2, 63, v0
v_readfirstlane_b32 s16, v1
v_lshlrev_b32 v{vL}, 4, v2
{AM}
s_and_b32 s19, s16, 1
s_lshr_b32 s20, s16, 1
s_lshl_b32 s30, s17, 2
s_add_u32 s30, s30, s16
s_mul_i32 s30, s30, {WSN*1024}
s_add_u32 s30, s30, {WSTR}
s_mul_i32 s25, s18, 73728
s_lshl_b32 s26, s16, 10
s_add_u32 s27, s25, s26
s_add_u32 s27, s27, {X1F}{lay('s27')}
s_add_u32 s28, s27, 36864
s_add_u32 s31, s26, 36864
s_lshl_b32 s21, s18, 1
s_xor_b32 s29, s19, 1
s_add_u32 s45, s21, s19
s_add_u32 s46, s21, s29
s_lshl_b32 s47, s45, 8
s_lshl_b32 s48, s46, 8
s_add_u32 s47, s47, {ST}{lay('s47')}
s_add_u32 s48, s48, {ST}{lay('s48')}
v_lshlrev_b32 v15, 2, v2""")
    if not fused:
        p(f"""s_mov_b32 s10, {WSSZ}
s_mov_b32 s11, 0x20000
s_waitcnt lgkmcnt(0)
s_mov_b32 s8, s4
s_mov_b32 s9, s5""")
    else:
        pre_setup = AM.replace("s17", "s64").replace("s18", "s65").replace("s19", "s66").split("\n") + f"""s_lshl_b32 s64, s64, 2
s_add_u32 s64, s64, s16
s_mul_i32 s64, s64, {WSN*1024}
s_add_u32 s64, s64, {WSTR}
s_lshl_b32 s65, s65, {9 if poll else 7}
s_add_u32 s65, s65, {CNT + bcrep[0]}{lay('s65')}""".split("\n") + ([f"s_and_b32 s66, s2, {bcrep[1] - 1}", "s_lshl_b32 s66, s66, 14", "s_add_u32 s65, s65, s66"] if bcrep[1] > 1 else [])
        if f3 is not None:
            import kq
            f3 = dict(f3); F3S = f3.pop('S', 1); F3L = f3.pop('L', 84); F3P = f3.pop('P', 114); F3W = f3.pop('W', (12, 50)); F3H = f3.pop('H', 0); F4 = f3.pop('W2', None)
            p(f"s_and_b32 s60, s2, 7\ns_lshl_b32 s60, s60, 10\ns_add_u32 s60, s60, {kq.PFL + kq.F3O}\ns_lshl_b32 s61, s2, 2\ns_add_u32 s61, s61, {kq.PFL + kq.F3O}")
        if poll: p(f"s_mov_b32 s30, s64\nv_lshlrev_b32 v4, 7, v2\ns_mov_b32 s49, 0x40000\ns_cmp_eq_u32 s16, 0\ns_cbranch_scc0 L_bc_go\n" + poll(PD) + "\ns_barrier")
        else: p(f"""s_mov_b32 s30, s64
v_mov_b32 v4, 0
s_mov_b32 s49, 0x40000
s_cmp_eq_u32 s16, 0
s_cbranch_scc0 L_bc_go
L_bc_poll:
buffer_load_dword v5, v4, s[8:11], s65 offen sc1
s_waitcnt vmcnt(0)
v_readfirstlane_b32 s50, v5
s_sub_u32 s49, s49, 1
s_cmp_eq_u32 s49, 0
s_cbranch_scc1 L_bc_go
s_cmp_lt_u32 s50, 32
s_cbranch_scc1 L_bc_poll
L_bc_go:
s_barrier""")
        if dbg and not fine: p(stamp(2))
        p(nst('c_go'))
        if f3 is not None: f3c = kq.fchk('f3', 248, 60, 's3')
    steps = []
    def fr(acc, rts=(0, 1), first=False, ag=False, kk=None):
        return dict(m=[(acc + 16*rt, ag, rt, first) for rt in rts], kk=kk)
    for kk in range(36):
        f = [fr(A_, first=kk == 0), fr(B_, first=kk == 0)]
        if kk % 2 == 0: f.append(fr(aODD, first=kk == 0, ag=True))
        steps.append(dict(l=('Y', kk), f=f, ph='p1'))
    steps.append(dict(l=None, f=[fr(A_), fr(B_), fr(aODD, rts=(0,), ag=True)], ph='p1'))
    for kk in range(36):
        steps.append(dict(l=('Y', kk), f=[fr(C_, first=kk == 0), fr(D_, first=kk == 0)], ph='p2'))
    steps.append(dict(l=None, f=[fr(C_), fr(D_)], ph='p2'))
    korder = list(range(16)) + [32, 33, 34, 35]
    NACC = [A_, B_, N2, N3]
    for i, kk in enumerate(korder):
        f = [fr(NACC[n], first=i == 0) for n in range(4)]
        if kk % 2 == 0: f.append(fr(aODD, first=i == 0, ag=True))
        steps.append(dict(l=('H', kk), f=f, ph='q'))
    n_p1 = 37; n_p2 = 74; n_t = 94
    tstart = {}
    for n in (4, 3, 0, 1, 2):
        f = [fr(aODD, ag=True, kk=kk) for kk in range(16, 32, 2)] if n == 4 else [fr(NACC[n], kk=kk) for kk in range(16, 32)]
        tstart[n] = len(steps)
        for b in range(0, len(f), 4): steps.append(dict(l=None, f=f[b:b+4], ph='t'))
    def treg(kk, rt):
        i = (kk - 16) // 2
        if kk % 2 == 0: return 'a', aT + 8*i + 4*rt
        return 'v', C_ + 8*i + 4*rt
    frags = [(si, fi) for si, st in enumerate(steps) for fi in range(len(st['f']))]
    assert len(frags) == WSN
    issue = []
    ych_at = {}
    for c in range(36 // YCH):
        gi = next(g for g, (si, fi) in enumerate(frags) if si == c*YCH)
        ych_at.setdefault(max(0, gi - YLA), []).append(c)
    for g, (si, fi) in enumerate(frags):
        for c in ych_at.get(g, []):
            L = []
            for kk0 in range(c*YCH, (c+1)*YCH, 4):
                for rt in range(2):
                    L.append(f"s_add_u32 m0, s{(26, 31)[rt]}, {YB + kk0*1024}" if kk0 else f"s_mov_b32 m0, s{(26, 31)[rt]}")
                    L.append(I(f"buffer_load_dwordx4 v{vL}, s[8:11], s{27+rt} offen {yfl} lds", tag=f"y{c}"))
                    L.append(f"s_addk_i32 s{27+rt}, 4096")
            issue.append(('y', L, g))
        d = wslot(g)
        pre = ["s_addk_i32 s30, 4096"] if (g % 4 == 0 and g > 0) else []
        issue.append(('w', pre + [I(f"buffer_load_dwordx4 a[{d}:{d+3}], v{vL}, s[8:11], s30 offen offset:{(g%4)*1024} {wfl}", tag=f"w{g}")], g))
    if fused:
        pre_loads = [y for x in issue if x[0] == 'w' and x[2] < NPRE for y in x[1]]
        pre_loads = [(y.text if isinstance(y, I) else y).replace("s30", "s64") for y in pre_loads]
        pre_grp = [[(y.text if isinstance(y, I) else y).replace("s30", "s64") for y in x[1]] for x in issue if x[0] == 'w' and x[2] < NPRE]
        issue = [x for x in issue if not (x[0] == 'w' and x[2] < NPRE)]
    ip = 0
    def issue_upto(gmax):
        nonlocal ip
        L = []
        while ip < len(issue) and issue[ip][2] <= gmax:
            L += issue[ip][1]; ip += 1
        return L
    p.ext(issue_upto(D0 - 1))
    p(f"buffer_load_dword v22, v15, s[8:11], s47 offen {'sc1' if fused else ''}\nbuffer_load_dword v23, v15, s[8:11], s48 offen {'sc1' if fused else ''}")
    p(f"""s_mul_i32 s50, s19, {37*1024}
s_mul_i32 s51, s19, {35*1024}
v_add_u32 v{vRD}, s50, v{vL}
v_add_u32 v{vRD+1}, s51, v{vL}
v_subrev_u32 v{vRD+2}, s51, v{vL}
v_subrev_u32 v{vRD+3}, s50, v{vL}
v_add_u32 v{vRD+2}, 36864, v{vRD+2}
v_add_u32 v{vRD+3}, 36864, v{vRD+3}""")
    setup = f"""s_mul_i32 s50, s19, 36864
s_mul_i32 s51, s29, 36864
s_lshl_b32 s52, s16, 11
s_add_u32 s53, s50, s52
s_add_u32 s53, s53, {HB}
v_add_u32 v{vHW}, s53, v{vL}
s_add_u32 s53, s51, s52
s_add_u32 s53, s53, {HB}
v_add_u32 v{vHW+1}, s53, v{vL}
s_lshl_b32 s52, s20, 11
s_add_u32 s53, s50, s52
s_add_u32 s53, s53, {HB + 32*1024}
v_add_u32 v{vHW+2}, s53, v{vL}
s_lshl_b32 s52, s16, 12
s_add_u32 s53, s52, {XB}
v_add_u32 v{vXW}, s53, v{vL}
s_xor_b32 s52, s52, 4096
s_add_u32 s53, s52, {XB}
v_add_u32 v{vXR}, s53, v{vL}
s_mul_i32 s54, s17, {ACT}
s_add_u32 s54, s54, {PART}{lay('s54')}
s_mul_i32 s55, s45, 36864
s_mul_i32 s56, s46, 36864
s_add_u32 s55, s55, s54
s_add_u32 s56, s56, s54
s_lshl_b32 s57, s20, 11
s_add_u32 s57, s57, {16*2048}
s_add_u32 s57, s57, s55
s_lshl_b32 s58, s16, 11
s_add_u32 s55, s55, s58
s_add_u32 s56, s56, s58
s_mul_i32 s50, s2, 320
s_mul_i32 s51, s16, 80
s_add_u32 s50, s50, s51
s_add_u32 s50, s50, {KV}
v_mov_b32 v{TMP}, 0""".split("\n") + [["s_mov_b64 exec, 0xfffff", f"buffer_store_dword v{TMP}, v15, s[8:11], s50 offen", "s_mov_b64 exec, -1"]]
    if fused: setup = setup[:-6]
    statf = []
    for rt in range(2):
        s = 22 + rt; t = TMP
        statf += f"""v_mov_b32 v{t}, v{s}
v_permlane32_swap_b32 v{s}, v{t}
v_mul_f32 v{s}, 0x3ae38e39, v{s}
v_mul_f32 v{t}, 0x3ae38e39, v{t}
v_fma_f32 v{t}, -v{s}, v{s}, v{t}
v_max_f32 v{t}, 0, v{t}
v_mov_b32 v{t+1}, 0x3f800054
v_mov_b32 v{t+2}, 0x2edbe6ff
v_fma_f32 v{t}, v{t}, v{t+1}, v{t+2}
v_rsq_f32 v{t+1}, v{t}
v_mul_f32 v{t}, v{t}, v{t+1}
v_mul_f32 v{vK1+rt}, 0xc0135761, v{t+1}
v_mul_f32 v{t+2}, v{t+1}, v{t+1}
v_mul_f32 v{t+2}, v{t+2}, v{t+1}
v_mul_f32 v{vK3+rt}, 0xbdd2d3e8, v{t+2}
v_sub_f32 v{s}, 0, v{s}
v_cvt_pk_bf16_f32 v{t+3}, v{s}, v{t}
v_lshlrev_b32 v{t+4}, 16, v{t+3}
v_and_b32 v{t+5}, 0xffff0000, v{t+3}
v_sub_f32 v{t+4}, v{s}, v{t+4}
v_sub_f32 v{t+5}, v{t}, v{t+5}
v_cvt_pk_bf16_f32 v{t+6}, v{s}, v{t+4}
v_cvt_pk_bf16_f32 v{t+7}, v{s}, v{t+5}
v_accvgpr_write_b32 a{aAUG+4*rt}, v{t+6}
v_accvgpr_write_b32 a{aAUG+4*rt+1}, v{t+3}
v_accvgpr_write_b32 a{aAUG+4*rt+2}, v{t+6}
v_accvgpr_write_b32 a{aAUG+4*rt+3}, v{t+7}""".split("\n")
    pkc = [0]
    def gl(acc, rt, waddr, woff, tag):
        L = []
        for q in range(2):
            o = PK + 4*(pkc[0] % 2); pkc[0] += 1
            L += gelu8(acc + 8*q, vK1 + rt, vK3 + rt, TMP, o)
            L.append(I(f"ds_write_b128 v{waddr}, v[{o}:{o+3}] offset:{woff + q*1024}", tag=tag))
        return L
    xw = lambda tag: [I(f"ds_write_b128 v{vXW}, a[{aODD+16+4*i}:{aODD+19+4*i}] offset:{i*1024}", tag=tag) for i in range(4)]
    xr = [f"ds_read_b128 v[{OS+4*i}:{OS+4*i+3}], v{vXR} offset:{i*1024}" for i in range(4)]
    def xadd():
        L = []
        for b in range(0, 16, 4):
            for i in range(4): L.append(f"v_accvgpr_read_b32 v{TMP+i}, a{aODD+b+i}")
            for i in range(4): L.append(f"v_add_f32 v{OS+b+i}, v{OS+b+i}, v{TMP+i}")
        return L
    def gtile(role, acc, tag): return gl(acc, 0, vHW, role*8192, tag) + gl(acc + 16, 1, vHW + 1, role*8192, tag)
    fa = gtile(0, A_, 'hab'); h = len(fa) // 2
    seg = [xw('xw') + fa[:h] + [I("s_barrier", needs=['xw'])] + xr + fa[h:] + xadd() + gtile(1, B_, 'hab'),
           gl(OS, 0, vHW + 2, 0, 'ho') + gtile(2, C_, 'hcd') + gtile(3, D_, 'hcd')]
    hbar = {n_p2: 'hab', n_p2 + 16: 'ho', n_t: 'hcd'}
    def lread(si):
        st = steps[si]
        L = []
        if si in hbar:
            L.append(I("s_barrier", needs=[hbar[si]]))
            if si == n_p2:
                for i in range(4): L.append(f"v_add_u32 v{vRD+i}, {HB}, v{vRD+i}")
        if n_t <= si < n_t + 4:
            ks = [list(range(16, 24, 2)), list(range(24, 32, 2)), list(range(17, 24, 2)), list(range(25, 32, 2))][si - n_t]
            for kk in ks:
                for rt in range(2):
                    R, d = treg(kk, rt)
                    L.append(f"ds_read_b128 {R}[{d}:{d+3}], v{vRD + 2*rt + kk % 2} offset:{kk*1024}")
        if st['l'] is None: return L
        kind, kk = st['l']
        if kind == 'Y' and st['ph'] == 'p1' and kk % YCH == 0:
            sg = f3 is not None and kk // YCH == F3S
            L.append(I("s_barrier", needs=[f"y{kk//YCH}"] + (['xl'] if sg else [])))
            if sg: L += kq.fsig('f3', 20, 21, 61)
        for rt in range(2):
            d = aLR + 8*(si % NL) + 4*rt
            L.append(I(f"ds_read_b128 a[{d}:{d+3}], v{vRD + 2*rt + kk % 2} offset:{kk*1024}", tag=f"l{si}"))
        return L
    p.ext(lread(0)); p.ext(lread(1))
    if dbg and not fine: p(stamp(3 if fused else 1))
    p(nst('c_first'))
    g = 0
    G = []
    stepstart = {}
    cnt16 = {}
    for si, st in enumerate(steps):
        first_in_step = True
        for fi, fx in enumerate(st['f']):
            ms = fx['m']
            w = wslot(g)
            for mi, (acc, ag, rt, first) in enumerate(ms):
                if st['ph'] == 't':
                    Rb, bb = treg(fx['kk'], rt)
                else:
                    Rb = 'a'; bb = (aLR + 8*(si % NL) + 4*rt) if st['l'] is not None else aAUG + 4*rt
                R = 'a' if ag else 'v'
                c = "0" if first else f"{R}[{acc}:{acc+15}]"
                needs = [f"w{g + len(st['f']) - 1}", f"l{si}"] if (merge and first_in_step and si > 0) else []
                grp = [I(f"v_mfma_f32_32x32x16_bf16 {R}[{acc}:{acc+15}], a[{w}:{w+3}], {Rb}[{bb}:{bb+3}], {c}", needs=needs)]
                if s16:
                    cnt16[(R, acc)] = cnt16.get((R, acc), -1) + 1
                    if first: cnt16[(R, acc)] = 0
                    n = cnt16[(R, acc)]; a2 = acc + 8*(n % 2); b2 = bb ^ 4
                    cc = lambda a: "0" if n < 2 else f"{R}[{a}:{a+3}]"
                    G.append([I(f"v_mfma_f32_16x16x32_bf16 {R}[{a2}:{a2+3}], a[{w}:{w+3}], {Rb}[{bb}:{bb+3}], {cc(a2)}", needs=needs)])
                    grp = [I(f"v_mfma_f32_16x16x32_bf16 {R}[{a2+4}:{a2+7}], a[{w}:{w+3}], {Rb}[{b2}:{b2+3}], {cc(a2+4)}")]
                if first_in_step:
                    stepstart[si] = len(G) - (1 if s16 else 0)
                    if si + 2 < len(steps): grp += lread(si + 2)
                    first_in_step = False
                if mi == len(ms) - 1:
                    depth = min(DW - 1, D0 + g // RAMP)
                    gm = g + depth
                    if f3 is not None and F3H: gm = min(gm, 92 + max(0, 2*(g - F3H + 1)))
                    if f3 is not None and F4 and F4.get('H'): gm = min(gm, 166 + max(0, 2*(g - F4['H'] + 1)))
                    grp += issue_upto(gm)
                G.append(grp)
            g += 1
    assert ip == len(issue)
    stepstart[len(steps)] = len(G)
    def outp(acc, sreg, tag=None, rt=0, lo=None):
        L = []
        for hf in range(2):
            o = PK + 4*(pkc[0] % 2); pkc[0] += 1
            src = acc + 8*hf
            for i in range(4): L.append(f"v_cvt_pk_bf16_f32 v{o+i}, v{src+2*i}, v{src+2*i+1}")
            if ds:
                for i in range(4): L.append(f"v_min_u32 v{o+i}, s44, v{o+i}")
            L += [f"v_permlane32_swap_b32 v{o}, v{o+2}", f"v_permlane32_swap_b32 v{o+1}, v{o+3}"]
            L.append(I(f"buffer_store_dwordx4 v[{o}:{o+3}], v{4 + rt if own else vL}, s[8:11], s{sreg} offen offset:{hf*1024} {stfl}", tag=tag))
            if own: L.append(f"ds_write_b128 v{vHW + rt if lo is not None else vHW + 2}, v[{o}:{o+3}] offset:{(lo or 0) + hf*1024}")
        return L
    def otile(n):
        acc = NACC[n]
        return [f"s_add_u32 s58, s55, {n*8192}", f"s_add_u32 s59, s56, {n*8192}"] + outp(acc, 58, f"o{n}", 0, n*8192) + outp(acc + 16, 59, f"o{n}", 1, n*8192)
    ts = {n: stepstart[tstart[n]] for n in tstart}
    plan = [(setup, 4, 40), (statf, 60, 120 if not s16 else 200),
            (seg[0], stepstart[n_p1] + 2, stepstart[n_p2 - 2]),
            (seg[1], stepstart[n_p2 - 2], stepstart[n_t - 2]),
            (xw('xw2'), ts[3] + 2, ts[3] + 6),
            ([I("s_barrier", needs=['xw2'])] + xr + xadd() + outp(OS, 57), ts[3] + 12, ts[0]),
            (otile(3), ts[0] + 2, ts[1]), (otile(0), ts[1] + 2, ts[2] if OW0 is None else ts[1] + 2 + OW0), (otile(1), ts[2] + 2, len(G) if OW1 is None else ts[2] + 2 + OW1)]
    if own:
        setup += [["v_bfe_u32 v4, v2, 3, 2", "s_and_b32 s50, s17, 3", "v_cmp_eq_u32 vcc, s50, v4", "v_mov_b32 v5, 0x40000000", f"v_cndmask_b32 v5, v{vL}, v5, vcc",
                   "s_lshr_b32 s50, s17, 2", "s_cmp_eq_u32 s50, s19", "s_cselect_b64 vcc, -1, 0", f"v_cndmask_b32 v4, v{vL}, v5, vcc", f"v_cndmask_b32 v5, v5, v{vL}, vcc"]]
    if sigA:
        setup += ["s_lshl_b32 s66, s18, 2", "s_add_u32 s66, s66, s16", "s_lshl_b32 s66, s66, 7", f"s_add_u32 s66, s66, {CNT + sigA[0]}", "s_add_u32 s66, s66, s63"]
        sgA = ["v_lshlrev_b32 v20, 14, v2", "v_mov_b32 v21, 1", f"s_mov_b64 exec, {(1 << sigA[1]) - 1}", I("buffer_atomic_add v21, v20, s[8:11], s66 offen", needs=['o0']), "s_mov_b64 exec, -1"]
        if sigA[2] is not None: G[ts[2] + sigA[2]] = G[ts[2] + sigA[2]] + sgA
        if pkA is not None:
            setup += ["s_lshl_b32 s65, s18, 9", f"s_add_u32 s65, s65, {CNT + sigA[0]}", "s_add_u32 s65, s65, s63"]
            if sigA[1] > 1: setup += [f"s_and_b32 s64, s2, {sigA[1] - 1}", "s_lshl_b32 s64, s64, 14", "s_add_u32 s65, s65, s64"]
            G[len(G) - 1 - pkA] = G[len(G) - 1 - pkA] + ["v_lshlrev_b32 v22, 7, v2", "s_mov_b64 exec, 15", "buffer_load_dword v23, v22, s[8:11], s65 offen sc1 ; @", "s_mov_b64 exec, -1"]
    if ds:
        def mix(a, b, lo=0.0, hi=1.0):
            i0 = int(len(a)*lo); i1 = int(len(a)*hi); out = list(a[:i0]); n = i1 - i0; k = 0
            for i in range(n):
                out.append(a[i0 + i])
                while k < len(b) and (k + 0.5) * n <= (i + 1) * len(b): out.append(b[k]); k += 1
            return out + b[k:] + list(a[i1:])
        setup += [f"v_mov_b32 v{248+i}, -1" for i in range(4)] + ["v_mov_b32 v20, 0", "v_mov_b32 v21, 1", "s_mov_b32 s44, -2",
                  "s_lshl_b32 s66, s18, 7", f"s_add_u32 s66, s66, {CNT + 4096}"]
        arm = []
        st = lambda sr, o: I(f"buffer_store_dwordx4 v[248:251], v{vL}, s[8:11], s{sr} offen offset:{o} {armf}", tag='arm')
        for n in range(4):
            arm += [[f"s_add_u32 s58, s55, {n*8192}", st(58, 0)], st(58, 1024), [f"s_add_u32 s59, s56, {n*8192}", st(59, 0)], st(59, 1024)]
        arm += [st(57, 0), st(57, 1024)]
        sig = [["s_mov_b64 exec, 1", I("buffer_atomic_add v21, v20, s[8:11], s66 offen", needs=['arm']), "s_mov_b64 exec, -1"]]
        apoll = ["buffer_load_dword v252, v20, s[8:11], s66 offen sc1"]
        achk = [["v_readfirstlane_b32 s50, v252", "s_cmp_lt_u32 s50, 32", "s_cbranch_scc1 L_arm_w", "L_arm_k:"]]
        sS = [x for x in ds['setup'] if x.startswith('s_')]; sV = [x for x in ds['setup'] if not x.startswith('s_')]
        plan = [(setup, 4, 40), (statf, 60, 120), (arm[:armp], 120, stepstart[n_p1]),
                (mix(seg[0], arm[armp:arms], *armw), stepstart[n_p1] + 2, stepstart[n_p2 - 2]),
                (mix(mix(seg[1], sig, sigp, sigp + 0.05), arm[arms:], 0.0, sigp - 0.3), stepstart[n_p2 - 2], stepstart[n_t - 2]),
                (xw('xw2'), ts[3] + 2, ts[3] + 6), (apoll + sS, ts[3] + 6, ts[3] + 12),
                ([I("s_barrier", needs=['xw2'])] + xr + xadd() + outp(OS, 57), ts[3] + 12, ts[0]),
                (otile(3), ts[0] + 2, ts[0] + 2 + min(OW, 20)), (sV + ds['ld0'], ts[0] + 2 + min(OW, 20), ts[1]),
                (otile(0), ts[1] + 2, ts[1] + 2 + min(OW, 16 if prein else 30)), (ds['pre'] if prein else [], ts[1] + 2 + min(OW, 16 if prein else 30), ts[2])]
        ds['prein'] = prein
        if wpf:
            pfs = f"""s_lshr_b32 s50, s2, 3
s_lshl_b32 s50, s50, 2
s_add_u32 s50, s50, s16
s_and_b32 s51, s50, 7
s_and_b32 s52, s2, 3
s_lshl_b32 s52, s52, 3
s_add_u32 s51, s51, s52
s_mul_i32 s51, s51, {WSN*1024}
s_lshr_b32 s50, s50, 3
s_lshl_b32 s50, s50, 14
s_add_u32 s51, s51, s50
s_add_u32 s51, s51, {WSTR + (WSN - 256)*1024}
s_add_u32 s52, s51, 8192
v_lshlrev_b32 v253, 7, v2
buffer_load_dword v254, v253, s[8:11], s51 offen
buffer_load_dword v255, v253, s[8:11], s52 offen""".split("\n")
            plan = plan[:1] + [(pfs, wpf, wpf + 8)] + plan[1:] if wpf < 60 else plan[:2] + [(pfs, wpf, wpf + 8)] + plan[3:]
        o1 = otile(1)
        if EP <= 2: plan += [(achk, ts[2] + 1, ts[2] + 2), (mix(o1, ds['early']), ts[2] + 2, ts[2] + 2 + EW)]
        else: plan += [(o1, ts[2] + 2, ts[2] + EP), (achk + ds['early'], ts[2] + EP, min(len(G), ts[2] + EP + EW))]
    marks = {stepstart[n_p1]: 2, stepstart[n_p2]: 3, stepstart[n_t]: 4, ts[1]: 5}
    if fused: marks = {stepstart[n_p1]: 4, stepstart[n_t]: 5}
    if fine: marks = {}
    if mk: marks = {stepstart[x]: i + 2 for i, x in enumerate(mk)}
    for k, v in marks.items():
        if dbg: G[k] = [stamp(v)] + G[k]
    for nm, k in (('c_p1', stepstart[n_p1]), ('c_p2', stepstart[n_p2]), ('c_t', stepstart[n_t])):
        if nst(nm): G[k] = [nst(nm)] + G[k]
    for k in range(1, len(G)):
        if nst(f'c_g{k}'): G[k] = [nst(f'c_g{k}')] + G[k]
    if f3 is not None:
        gpos = {}
        for k, grp in enumerate(G):
            for x in grp:
                if isinstance(x, I) and x.tag and x.tag[0] == 'w' and x.tag[1:].isdigit(): gpos[int(x.tag[1:])] = k
        kb = F3P
        assert kb + 5 < gpos[93], gpos[93]
        G[F3L] = G[F3L] + [f3c[0]]

        for k, x in enumerate(f3c[1]): G[kb + k//2] = G[kb + k//2] + [x]
        G[kb + 5] = G[kb + 5] + f3c[2]
        if F4:
            f4c = kq.fchk('f4', 248, 60, 's3')
            G[kb + 6] = G[kb + 6] + [f"s_add_u32 s60, s60, {kq.F4O - kq.F3O}", f"s_add_u32 s61, s61, {kq.F4O - kq.F3O}"]
            W = F4.get('W', 122); kb = F4.get('P', 258)
            G[W] = G[W] + kq.late_w2()
            nx = 'w%d' % min(g for g, k in gpos.items() if k > W)
            sg = kq.fsig('f4', 20, 21, 61)
            if F4.get('S', 'xw') == 'xw':
                i = [k for k, x in enumerate(seg[0]) if isinstance(x, I) and x.op == 's_barrier'][0]
                seg[0][i].needs.append(nx); seg[0].insert(i + 1, sg)
            elif isinstance(F4['S'], int): G[F4['S']] = G[F4['S']] + [I("s_barrier", needs=[nx])] + sg
            else:
                for grp in G:
                    for i, x in enumerate(grp):
                        if isinstance(x, I) and x.op == 's_barrier' and F4['S'] in x.needs: x.needs.append(nx); grp[i+1:i+1] = sg; break
            assert kb + 5 < gpos[167], gpos[167]
            G[F4.get('L', 232)] = G[F4.get('L', 232)] + [f4c[0]]
            for k, x in enumerate(f4c[1]): G[kb + k//2] = G[kb + k//2] + [x]
            G[kb + 5] = G[kb + 5] + f4c[2]
    pos = 0
    for fill, a, b in plan:
        if 'nofill' in X: fill = [f for f in fill if isinstance(f, list) or not ((f if isinstance(f, I) else I(f)).kind in ('valu', 'trans'))]
        assert a >= pos
        for grp in G[pos:a]: p.ext(grp)
        p.ext(interleave(G[a:b], fill))
        pos = b
    for grp in G[pos:]: p.ext(grp)
    if dbg and fine: p(stamp(2))
    p(nst('c_end'))
    if sigA and sigA[2] is None: p.ext(sgA)
    p.ext(otile(2))
    extra = ""
    if ds:
        extra = ds['fin'](p) + """L_arm_w:
  buffer_load_dword v252, v20, s[8:11], s66 offen sc1
  s_waitcnt vmcnt(0)
  v_readfirstlane_b32 s50, v252
  s_sub_u32 s49, s49, 1
  s_cmp_eq_u32 s49, 0
  s_cbranch_scc1 L_arm_k
  s_cmp_lt_u32 s50, 32
  s_cbranch_scc1 L_arm_w
  s_branch L_arm_k
"""
    if not dz:
        if dbg: p(stamp(6))
        if dbg: stamp_end(p, 7, name)
        p("s_endpgm")
    idx = {id(i): k for k, i in enumerate(p.ins)}
    for k, i in enumerate(p.ins):
        if i.op == 's_barrier':
            for t in i.needs:
                assert all(kk < k for kk, j in enumerate(p.ins) if j.tag == t), t

    if 'noarm' in X: p.ins = [i for i in p.ins if i.tag != 'arm']
    if 'nolds' in X: p.ins = [i for i in p.ins if not i.op.startswith('ds_read')]
    if 'nobar' in X: p.ins = [i for i in p.ins if i.op != 's_barrier']
    if 'now' in X: p.ins = [i for i in p.ins if not (i.op == 'buffer_load_dwordx4' and not i.isdma)]
    for x in X:
        if isinstance(x, tuple) and x[0] == 'skipw':
            sk = {f"w{g}" for g in x[1]}
            p.ins = [i for i in p.ins if i.tag not in sk]
    if 'noy' in X: p.ins = [i for i in p.ins if not i.isdma]
    if 'nost' in X: p.ins = [i for i in p.ins if not i.op.startswith('buffer_store_dwordx4')]
    t = p.finish(align) + extra
    if fused: return t, pre_setup, pre_loads, pre_grp, (f3c[3] + (f4c[3] if F4 else '') if f3 is not None else '')
    if align: print('c align', Prog.stats)
    return kernel(name, t, vgpr=256, agpr=256), f"; @launch kernel={name} grid=(256,1,1) block=(256,1,1) lds=163840\n"
```

```python
from asmlib import *
from layout import *
from k0 import srd
from ka import phi, QB
import kc, kp, kq
HF = ['']

CCD, CDA, CAB = 16384, 32768, 49152
REP = dict(bc=(0, 1), cd=(16384, 1))
aWOr = lambda ks, t: 64 + 4*((8 - ks)*5 + t)

BK = [0]
def spin(tag, sreg, va, vd, lanes, target, depth=1):
    ld = lambda k: f"buffer_load_dword v{vd+k}, v{va}, s[8:11], s{sreg} offen sc1 ; @"
    L = ([f"s_mov_b64 exec, {(1 << lanes) - 1}"] if lanes < 32 else ["s_mov_b32 exec_hi, 0"]) + [ld(k) for k in range(depth - 1)] + [f"L_{tag}_poll:"]
    for k in range(depth):
        L += [ld((k + depth - 1) % depth), f"s_waitcnt vmcnt({depth - 1}) ; @", f"v_cmp_gt_u32 vcc, {target}, v{vd+k}",
              "s_nop 4", f"s_cbranch_vccz L_{tag}_ok"]
    L += ["s_nop 15"] * BK[0]
    L += ["s_sub_u32 s49, s49, 1", "s_cmp_eq_u32 s49, 0", f"s_cbranch_scc0 L_{tag}_poll", f"L_{tag}_ok:", "s_mov_b64 exec, -1"]
    L.append(f"L_{tag}_go:")
    return "\n".join(L)

A_MAP = """s_and_b32 s17, s2, 7
s_lshr_b32 s18, s2, 3
s_lshr_b32 s19, s17, 2
s_lshl_b32 s19, s19, 2
s_and_b32 s20, s18, 3
s_add_u32 s19, s19, s20
s_and_b32 s20, s17, 3
s_lshl_b32 s20, s20, 3
s_lshr_b32 s21, s18, 2
s_add_u32 s20, s20, s21"""
AM1 = [0]
def a_map1():
    if AM1[0] == 0: return A_MAP
    if AM1[0] == 1: return "s_bfe_u32 s19, s2, 0x20001\ns_lshl_b32 s19, s19, 1\ns_bfe_u32 s20, s2, 0x10003\ns_add_u32 s19, s19, s20\ns_and_b32 s20, s2, 1\ns_lshl_b32 s20, s20, 4\ns_lshr_b32 s21, s2, 4\ns_add_u32 s20, s20, s21"
    return "s_and_b32 s19, s2, 7\ns_lshr_b32 s20, s2, 3"
def a_head1():
    if AM1[0] == 0: return "s_and_b32 s52, s2, 3\ns_lshl_b32 s52, s52, 3\ns_lshr_b32 s53, s2, 5\ns_add_u32 s52, s52, s53"
    if AM1[0] == 1: return "s_and_b32 s52, s2, 1\ns_lshl_b32 s52, s52, 4\ns_lshr_b32 s53, s2, 4\ns_add_u32 s52, s52, s53"
    return "s_lshr_b32 s52, s2, 3"
A_WS = f"""s_mul_i32 s24, s20, 73728
s_add_u32 s24, s24, {WQF}
s_lshl_b32 s25, s16, 11
s_add_u32 s24, s24, s25"""
def a_wchunk(c):
    L = [f"s_add_u32 m0, s25, {c*8192}" if c else "s_mov_b32 m0, s25"]
    for i in range(2): L.append(I(f"buffer_load_dwordx4 v3, s[8:11], s24 offen offset:{i*1024} {HF[0]} lds", tag=f"w{c}"))
    if c < 8: L.append("s_addk_i32 s24, 8192")
    return L

def wo_loads(ts, sreg=50):
    G = []
    for t in ts:
        for ks in range(9):
            pre = []
            if ks in (4, 8): pre = [f"s_addk_i32 s{sreg}, 4096"]
            if ks == 0 and t != ts[0]: pre = [f"s_add_u32 s{sreg}, s{sreg}, {36864 - 8192}"]
            r = aWOr(ks, t)
            G.append(pre + [f"buffer_load_dwordx4 a[{r}:{r+3}], v3, s[8:11], s{sreg} offen offset:{(ks%4)*1024} {HF[0]}"])
    return G

def side_parts(ssf="sc1", lf="nt"):
    WB = WSN*1024
    SB = 98304
    V = 160
    v3_, v5_, vs_, t1, t2, ts1, ts2, c0, c1, vb, vcs, vag, T = V, V+1, V+2, V+3, V+4, V+5, V+6, V+7, V+8, V+9, V+10, V+11, V+12
    D = V + 16
    ka = "s_load_dwordx4 s[56:59], s[0:1], 32\ns_load_dwordx2 s[60:61], s[0:1], 48"
    setup = f"""s_mov_b32 s12, s56
s_mov_b32 s13, s57
s_mov_b32 s14, {576*4608*2}
s_mov_b32 s15, 0x20000
s_mov_b32 s44, s60
s_mov_b32 s45, s61
s_mov_b32 s46, {576*4608*2}
s_mov_b32 s47, 0x20000
s_mov_b32 s64, s58
s_mov_b32 s65, s59
s_mov_b32 s66, {4608*2}
s_mov_b32 s67, 0x20000
s_cmp_lt_u32 s16, 2
s_cselect_b32 s96, s56, s60
s_cselect_b32 s97, s57, s61
s_mov_b32 s98, {576*4608*2}
s_mov_b32 s99, 0x20000
s_and_b32 s56, s2, 7
s_bfe_u32 s57, s2, 0x20003
s_lshr_b32 s58, s2, 5
s_mul_i32 s59, s57, 9
s_add_u32 s60, s59, s16
s_mul_i32 s62, s60, {16*9216}
s_mul_i32 s68, s56, 1152
s_lshl_b32 s69, s58, 7
s_add_u32 s68, s68, s69
s_add_u32 s62, s62, s68
s_mul_i32 s87, s56, 36
s_add_u32 s87, s87, s60
s_mul_i32 s87, s87, {16*1152}
s_add_u32 s87, s87, s69
s_add_u32 s60, s59, 8
s_mul_i32 s88, s60, {16*9216}
s_add_u32 s88, s88, s68
s_mul_i32 s68, s56, 36
s_add_u32 s68, s68, s60
s_mul_i32 s68, s68, {16*1152}
s_add_u32 s68, s68, s69
s_cmp_lt_u32 s16, 2
s_cselect_b32 s88, s88, s68
s_cselect_b32 s68, 8, 1
s_mul_i32 s68, s68, 1152
s_and_b32 s69, s16, 1
s_lshl_b32 s69, s69, 6
s_add_u32 s88, s88, s69
s_mul_i32 s55, s16, 9216
s_add_u32 s55, s55, {SB}
v_bfe_u32 v{T}, v2, 2, 3
v_and_b32 v{T+1}, 3, v2
v_lshrrev_b32 v{T+2}, 5, v2
v_lshlrev_b32 v{T+3}, 6, v{T+2}
v_lshl_add_u32 v{T+3}, v{T+1}, 4, v{T+3}
v_mul_u32_u24 v{v3_}, 9216, v{T}
v_add_u32 v{v3_}, v{v3_}, v{T+3}
v_mul_u32_u24 v{v5_}, 1152, v{T}
v_add_u32 v{v5_}, v{v5_}, v{T+3}
v_lshrrev_b32 v{T}, 2, v2
v_mul_u32_u24 v{vs_}, s68, v{T}
v_lshl_add_u32 v{vs_}, v{T+1}, 4, v{vs_}""".split("\n")
    dma = []
    for b in range(2):
        for mi, (vo, sr, srd_, rs) in enumerate(((v3_, 62, 12, 9216), (v5_, 87, 44, 1152))):
            for u in range(2):
                L = [f"s_add_u32 m0, s55, {(2*b + mi)*2048 + u*1024}", I(f"buffer_load_dwordx4 v{vo}, s[{srd_}:{srd_+3}], s{sr} offen {lf} lds", tag=f"sd{b}{mi}")]
                if not (b == 1 and u == 1): L.append(f"s_add_u32 s{sr}, s{sr}, {(8 if u == 0 else 56)*rs}")
                dma.append(L)
    dma.append([f"s_add_u32 m0, s55, 8192", I(f"buffer_load_dwordx4 v{vs_}, s[96:99], s88 offen {lf} lds", tag="sds")])
    setup2 = f"""s_mul_i32 s68, s56, 18
s_lshl_b32 s69, s58, 1
s_add_u32 s68, s68, s69
s_lshl_b32 s68, s68, 6
v_lshlrev_b32 v{vb}, 1, v2
buffer_load_ushort v{vb}, v{vb}, s[64:67], s68 offen
v_and_b32 v{T+1}, 3, v2
v_lshrrev_b32 v{T+2}, 5, v2
v_lshlrev_b32 v{T}, 3, v{T+1}
v_bfe_u32 v{T+3}, v2, 2, 2
v_lshl_add_u32 v{T}, v{T+3}, 6, v{T}
v_bfe_u32 v{T+3}, v2, 4, 1
v_lshl_add_u32 v{T}, v{T+3}, 5, v{T}
v_add_u32 v{T}, s55, v{T}
v_lshl_add_u32 v{t1}, v{T+2}, 10, v{T}
v_lshl_add_u32 v{t2}, v{T+2}, 8, v{T}
s_cmp_lt_u32 s16, 2
s_cselect_b32 s68, 2, 1
s_cselect_b32 s69, 1, 2
s_lshl_b32 s68, s68, 8
s_lshl_b32 s69, s69, 8
v_mul_u32_u24 v{ts1}, s68, v{T+2}
v_add_u32 v{ts1}, v{ts1}, v{T}
v_add_u32 v{ts2}, s69, v{ts1}
v_mov_b32 v{c0}, 0
v_mov_b32 v{c1}, 0
s_lshl_b32 s89, s56, 2
s_and_b32 s68, s58, 1
s_lshl_b32 s68, s68, 1
s_add_u32 s89, s89, s68
s_mul_i32 s89, s89, {WB}
s_add_u32 s89, s89, {WSTR}
s_lshr_b32 s90, s58, 1
s_add_u32 s68, s90, 91
s_add_u32 s69, s90, 90
s_add_u32 s61, s90, 163
s_cmp_lt_u32 s58, 4
s_cselect_b32 s91, 5, 4
s_cselect_b32 s93, s90, s68
s_cselect_b32 s61, s69, s61
s_cselect_b32 s100, 3, 2
s_lshl_b32 s100, s100, 10
s_add_u32 s101, s90, 1
s_and_b32 s101, s101, 3
s_lshl_b32 s101, s101, 4
s_add_u32 s101, s101, 265
s_lshl_b32 s61, s61, 10
s_add_u32 s61, s61, s89
s_lshr_b32 s68, s57, 1
s_lshl_b32 s68, s68, 9
s_add_u32 s61, s61, s68
s_and_b32 s68, s57, 1
s_lshl_b32 s68, s68, 3
s_add_u32 s61, s61, s68
s_cmp_lt_u32 s57, 2
s_cselect_b32 s57, 0xffff, 0
v_lshlrev_b32 v{vcs}, 2, v0
v_add_u32 v{vcs}, {SB + 36864}, v{vcs}
v_and_b32 v{vag}, 31, v2
v_lshlrev_b32 v{vag}, 4, v{vag}
v_mul_u32_u24 v{T}, {WB}, v{T+2}
v_add_u32 v{vag}, v{vag}, v{T}""".split("\n")
    def dest(m):
        L = ["s_lshr_b32 s56, s60, 1", "s_and_b32 s58, s60, 1"]
        if m == 0:
            L += ["s_mul_i32 s68, s56, s91", "s_add_u32 s68, s68, s93", "s_mov_b32 s69, s100"]
        else:
            L += """s_sub_u32 s88, s56, 8
s_cmp_lt_u32 s56, 8
s_cselect_b32 s68, s56, s88
s_mul_i32 s68, s68, 9
s_add_u32 s68, s68, 167
s_add_u32 s68, s68, s90
s_lshl_b32 s69, s88, 1
s_add_u32 s69, s69, s101
s_cmp_lt_u32 s88, 8
s_cselect_b32 s68, s69, s68
s_cselect_b32 s69, 1, 5
s_lshl_b32 s69, s69, 10""".split("\n")
        L += f"""s_lshl_b32 s68, s68, 10
s_add_u32 s68, s68, s89
s_mul_i32 s58, s58, s69
s_add_u32 s62, s68, s58
s_add_u32 s68, s68, s69
s_sub_u32 s68, s68, s58
s_add_u32 s87, s68, {WB}""".split("\n")
        return L
    work = []
    for b in range(2):
        for mi in range(2):
            d = D + 8*((2*b + mi) % 4)
            base = (2*b + mi)*2048
            ra, o2 = ((t1, 256), (t2, 1024))[mi]
            for tt in range(2):
                work.append(I(f"ds_read_b64_tr_b16 v[{d+4*tt}:{d+4*tt+1}], v{ra} offset:{base + tt*512}", needs=[f"sd{b}{mi}"]))
                work.append(f"ds_read_b64_tr_b16 v[{d+4*tt+2}:{d+4*tt+3}], v{ra} offset:{base + tt*512 + o2}")
            if mi == 0: work.append(f"s_add_u32 s60, s59, s16" if b == 0 else "s_add_u32 s60, s60, 4")
            work += dest(mi)
            for tt in range(2):
                work.append(f"buffer_store_dwordx4 v[{d+4*tt}:{d+4*tt+3}], v3, s[8:11], s{(62, 87)[tt]} offen {ssf}")
                if mi == 0: work += [f"v_dot2c_f32_bf16 v{(c0, c1)[tt]}, v8, v{d+4*tt+q}" for q in range(4)]
    d = D + 32
    work += [I(f"ds_read_b64_tr_b16 v[{d}:{d+1}], v{ts1} offset:8192", needs=["sds"]), f"ds_read_b64_tr_b16 v[{d+2}:{d+3}], v{ts2} offset:8192", "s_add_u32 s60, s59, 8"]
    work += dest(0) + ["s_bitcmp1_b32 s16, 0", "s_cselect_b32 s55, s87, s62"] + dest(1)
    work += ["s_bitcmp1_b32 s16, 0", "s_cselect_b32 s62, s87, s62", "s_cmp_lt_u32 s16, 2", "s_cselect_b32 s62, s55, s62",
             f"buffer_store_dwordx4 v[{d}:{d+3}], v3, s[8:11], s62 offen {ssf}",
             "s_cmp_eq_u32 s16, 0", "s_cselect_b32 s68, 0x3f803f80, 0", "s_cmp_eq_u32 s16, 1", "s_cselect_b32 s69, 0x3f803f80, 0"]
    for q in range(4): work += [f"v_dot2c_f32_bf16 v{c0}, s68, v{d+q}", f"v_dot2c_f32_bf16 v{c1}, s69, v{d+q}"]
    work += [f"v_permlane32_swap_b32 v{c0}, v{c1}", f"v_add_f32 v{c0}, v{c0}, v{c1}", I(f"ds_write_b32 v{vcs}, v{c0}", tag='scs')]
    fin = [f"v_lshlrev_b32 v{vcs}, 2, v2", f"v_add_u32 v{vcs}, {SB + 36864}, v{vcs}"]
    fin += [f"ds_read_b32 v{D+w}, v{vcs} offset:{w*256}" for w in range(4)]
    fin += f"""v_add_f32 v{D}, v{D}, v{D+1}
v_add_f32 v{D+2}, v{D+2}, v{D+3}
v_add_f32 v{D}, v{D}, v{D+2}
v_cvt_pk_bf16_f32 v{D+4}, v{D}, v{D}
v_and_b32 v{D+1}, 0xffff0000, v{D+4}
v_sub_f32 v{D+1}, v{D}, v{D+1}
v_cvt_pk_bf16_f32 v{D+5}, v{D+1}, 0
v_and_b32 v{vb}, s57, v{vb}
v_lshl_or_b32 v{D+5}, v{vb}, 16, v{D+5}
buffer_store_dwordx2 v[{D+4}:{D+5}], v{vag}, s[8:11], s61 offen {ssf}""".split("\n")
    return ka, atomize(setup), dma, atomize(setup2), atomize(work), fin

def a_part(first, wl=False, skipy=(), D1=None, R1=1, pfy=0, pfa=0, p2=None, FP=(0, 0, 84, 118), LW=(62, 74, 113, 124), p0=None, SD=(10, 75), dw=False, YR=16, D0=12, RAMP=1, NW=8, qsf="sc1", NP1=36, NPa=16, PD=1, yf='sc1', side=None, SW=(2, 12, 12, 34, 60, 112)):
    n = "a0" if first else "a1"
    p = Prog()
    p(A_MAP if first else a_map1())
    p(f"""s_lshl_b32 s21, s19, 3
s_lshl_b32 s22, s16, 1
s_add_u32 s21, s21, s22
s_mul_i32 s22, s21, 36864
s_add_u32 s22, s22, {YF if first else YF + LS}""")
    if first: p(A_WS)
    if first and dw:
        p(f'''s_load_dwordx2 s[56:57], s[0:1], 8
v_lshrrev_b32 v200, 3, v2
v_mul_u32_u24 v200, 3456, v200
v_and_b32 v201, 3, v2
v_bfe_u32 v202, v2, 2, 1
v_lshlrev_b32 v203, 4, v201
v_mul_u32_u24 v204, 1152, v202
v_add_u32 v203, v203, v204
v_add_u32 v203, 1152, v203
v_lshlrev_b32 v204, 4, v202
v_cmp_eq_u32 vcc, 3, v201
v_cndmask_b32 v203, v203, v204, vcc
v_add_u32 v200, v200, v203
v_add_u32 v201, {8*3456 - 1024}, v200
s_mul_i32 s24, s20, 36
s_mul_i32 s58, s16, {16*3456}
s_add_u32 s24, s24, s58
s_waitcnt lgkmcnt(0)
s_mov_b32 s12, s56
s_mov_b32 s13, s57
s_mov_b32 s14, {576*1728*2}
s_mov_b32 s15, 0x20000''')
    ACC, WR, P0, V1, TMP, KVA, QO = 16, 80, 112, 120, 128, 136, 152
    items = []
    for g in range(72):
        if first and g < 36 and g % 4 == 0:
            wc = a_wchunk(g // 4)
            if dw:
                c = g // 4
                wc = [wc[0]] + [I(f"buffer_load_dwordx4 v{200+i}, s[12:15], s24 offen offset:{i*1024} lds", tag=f"w{c}") for i in range(2)] + ([f"s_add_u32 s24, s24, {64*3456}"] if c < 8 else [])
            items.append((g, wc))
        s = 4*(g % YR)
        pre = ["s_addk_i32 s22, 4096"] if (g % 4 == 0 and g) else []
        items.append((g, pre + ([] if g in skipy else [f"buffer_load_dwordx4 a[{s}:{s+3}], v3, s[8:11], s22 offen offset:{(g%4)*1024} {'' if first and not p0 and p2 is None else yf}"])))
    ip = 0
    def issue_upto(gmax):
        nonlocal ip
        L = []
        while ip < len(items) and items[ip][0] <= gmax:
            L += items[ip][1]; ip += 1
        return L
    def ypf(skip):
        if not pfy: return []
        n = 72 - skip
        return [f"s_mov_b32 exec_hi, {hex((1 << (n - 32)) - 1)}", f"buffer_load_dword v254, v255, s[8:11], s23 offen {yf}", "s_mov_b64 exec, -1"]
    SK = D0 if first else YR
    if pfy: p(f"s_lshr_b32 s23, s2, 5\ns_mul_i32 s23, s23, {(72 - SK)*128}\ns_add_u32 s23, s23, s22\ns_add_u32 s23, s23, {SK*1024}\nv_lshlrev_b32 v255, 7, v2")
    setup = f"""v_lshlrev_b32 v13, 2, v0
v_add_u32 v4, 65536, v3
s_mul_i32 s28, s16, 1280
s_add_u32 s28, s28, {QB - 20*64}
v_and_b32 v5, 31, v2
v_lshlrev_b32 v5, 6, v5
v_lshrrev_b32 v9, 5, v2
v_lshl_add_u32 v5, v9, 5, v5
v_add_u32 v5, s28, v5
v_bfe_u32 v6, v2, 2, 2
v_lshl_add_u32 v6, v9, 2, v6
v_lshlrev_b32 v6, 6, v6
v_and_b32 v7, 1, v2
v_lshl_add_u32 v6, v7, 5, v6
v_bfe_u32 v7, v2, 4, 1
v_lshl_add_u32 v6, v7, 4, v6
v_bfe_u32 v7, v2, 1, 1
v_lshl_add_u32 v6, v7, 3, v6
s_add_u32 s28, s28, {20*64}
v_add_u32 v6, s28, v6
v_lshlrev_b32 v7, 2, v2
s_mul_i32 s28, s16, 2560
v_add_u32 v15, s28, v3
v_lshlrev_b32 v14, 3, v2
v_add_u32 v14, s28, v14
v_and_b32 v8, 27, v2
v_cmp_eq_u32 s[30:31], 18, v8
v_mov_b32 v8, 0x3f803f80
s_mov_b32 s32, 0xfff00000
s_mov_b32 s33, 0xfff00000
s_lshl_b32 s26, s21, 5
s_add_u32 s26, s26, s20
s_lshl_b32 s27, s26, 8
s_lshl_b32 s26, s26, 10
s_add_u32 s26, s26, {PQ16 + (0 if first else LS)}
s_add_u32 s27, s27, {PQ4 + (0 if first else LS)}"""
    if first and p2 is not None:
        p(setup)
        p(kq.a0_go())
        p(nst('a_go'))
        if pfa: p.ext(issue_upto(pfa - 1)); p.ext(ypf(SK)); p.ext(issue_upto(D0 - 1))
        else: p.ext(issue_upto(D0 - 1)); p.ext(ypf(SK))
        p("ds_read_b32 v161, v162\nv_readfirstlane_b32 s3, v161")
    elif first and p0:
        n = "a0" + p0[0]
        p(setup)
        p(f"""s_and_b32 s56, s2, 7
s_lshl_b32 s56, s56, 10
s_add_u32 s56, s56, {kp.PFL}
s_mov_b32 s49, 0x40000
s_cmp_eq_u32 s16, 0
s_cbranch_scc0 L_{n}p_go""")
        p(kp.poll(n + "p", 56, 250) + f"L_{n}p_go:\ns_barrier")
        p(nst('a_go'))
        p.ext(issue_upto(D0 - 1))
    elif first:
        p.ext(issue_upto(D0 - 1))
        p(setup)
    else:
        p(setup)
        p(f"""s_lshl_b32 s28, s19, 2
s_bfe_u32 s29, s2, {('0x20005', '0x20000')[RAB[1]]}
s_add_u32 s28, s28, s29
s_lshl_b32 s28, s28, 9
s_add_u32 s28, s28, {CNT + LS + CDA}
v_lshlrev_b32 v10, 7, v2
s_mov_b32 s49, 0x40000
s_waitcnt vmcnt(0)
s_cmp_eq_u32 s16, 0
s_cbranch_scc{1 if wl else 0} L_da_{'w0' if wl else 'go'}""")
        if wl:
            L = f"""s_sub_u32 s29, s16, 1
s_mul_i32 s56, s29, 24576
s_mul_i32 s57, s20, 73728
s_add_u32 s57, s57, s56
s_add_u32 s57, s57, {WQF}""".split("\n")
            for k in range(6):
                L += [f"s_add_u32 m0, s56, {k*4096}", "s_nop 0"] + [f"buffer_load_dwordx4 v3, s[8:11], s57 offen offset:{i*1024} {HF[0]} lds" for i in range(4)] + (["s_addk_i32 s57, 4096"] if k < 5 else [])
            p(kq.off("\n".join(L + ["s_waitcnt vmcnt(0)", "s_branch L_da_go", "L_da_w0:"])))
        p(spin("da", 28, 10, 250, 4, 8, PD))
        p("s_barrier")
        p(nst('a_go'))
        if pfa: p.ext(issue_upto(pfa - 1)); p.ext(ypf(SK)); p.ext(issue_upto(YR - 1))
        else: p.ext(issue_upto((D1 or YR) - 1)); p.ext(ypf(SK))
    def wrd(f):
        g = f % 72
        s = WR + 4*(f % NW)
        L = []
        if first and f < 72 and f % 8 == 0: L.append(I("s_barrier", needs=[f"w{f//8}"]))
        L.append(f"ds_read_b128 v[{s}:{s+3}], v3 offset:{g*1024}" if g < 64 else f"ds_read_b128 v[{s}:{s+3}], v4 offset:{(g-64)*1024}")
        return L
    for f in range(NW - 1): p.ext(wrd(f))
    p(nst('a_first'))
    G = []
    for g in range(72):
        y = 4*(g % YR)
        for t in range(2):
            f = 2*g + t
            w = WR + 4*(f % NW)
            acc = ACC + 32*(g // 36) + 16*t
            c = "0" if g % 36 == 0 else f"v[{acc}:{acc+15}]"
            grp = [f"v_mfma_f32_32x32x16_bf16 v[{acc}:{acc+15}], a[{y}:{y+3}], v[{w}:{w+3}], {c}"]
            if f + NW - 1 < 144: grp += wrd(f + NW - 1)
            if t == 1:
                depth = min(YR, D0 + 1 + g*RAMP) if first else (min(YR, int(D1 + 1 + g*R1)) if D1 else YR)
                grp += issue_upto(g + depth)
            G.append(grp)
    assert ip == len(items)
    def epi1(rt):
        T0 = ACC + 32*rt; T1 = T0 + 16
        L = []
        for i in range(8): L.append(f"v_cvt_pk_bf16_f32 v{V1+i}, v{T1+2*i}, v{T1+2*i+1}")
        for i in range(8): L.append(f"v_cndmask_b32 v{V1+i}, v{V1+i}, v8, s[30:31]")
        ph = phi(list(range(T0, T0 + 16)), TMP)
        pk = [f"v_cvt_pk_bf16_f32 v{P0+i}, v{T0+2*i}, v{T0+2*i+1}" for i in range(8)]
        mm = [f"v_mfma_f32_32x32x16_bf16 v[{KVA}:{KVA+15}], v[{P0+4*q}:{P0+4*q+3}], v[{V1+4*q}:{V1+4*q+3}], " + ("0" if (rt == 0 and q == 0) else f"v[{KVA}:{KVA+15}]") for q in range(2)]
        L = ph[:32] + pk[:4] + L + [mm[0]] + ph[32:] + pk[4:] + [mm[1]]
        L.append(["s_mov_b64 exec, s[32:33]",
                  f"ds_write_b128 v5, v[{V1}:{V1+3}] offset:512", f"ds_write_b128 v5, v[{V1+4}:{V1+7}] offset:528",
                  f"ds_write_b128 v5, v[{P0}:{P0+3}]", f"ds_write_b128 v5, v[{P0+4}:{P0+7}] offset:16",
                  "s_mov_b64 exec, -1"])
        L += [f"ds_read_b64_tr_b16 v[{QO}:{QO+1}], v6", f"ds_read_b64_tr_b16 v[{QO+2}:{QO+3}], v6 offset:768", f"ds_read_b64_tr_b16 v[{QO+4}:{QO+5}], v6 offset:512"]
        return L
    def epi2(rt):
        u = TMP + 4
        L = [f"v_lshlrev_b32 v{u}, 16, v{QO+2}", f"v_and_b32 v{u+1}, 0xffff0000, v{QO+2}", f"v_lshlrev_b32 v{u+2}, 16, v{QO+3}", f"v_and_b32 v{u+3}, 0xffff0000, v{QO+3}"]
        L += phi([u, u+1, u+2, u+3], TMP)
        L += [f"v_cvt_pk_bf16_f32 v{QO+2}, v{u}, v{u+1}", f"v_cvt_pk_bf16_f32 v{QO+3}, v{u+2}, v{u+3}"]
        return L
    def qst(rt):
        L = ["s_add_u32 s26, s26, 32768", "s_add_u32 s27, s27, 8192"] if rt else []
        return L + [f"buffer_store_dwordx4 v[{QO}:{QO+3}], v3, s[8:11], s26 offen {qsf}", f"buffer_store_dword v{QO+4}, v7, s[8:11], s27 offen {qsf}"]
    late = f"""v_bfe_u32 v10, v0, 2, 5
v_lshrrev_b32 v12, 1, v0
v_cmp_gt_u32 s[34:35], 19, v10
v_cmp_eq_u32 s[36:37], 22, v10
s_or_b64 s[34:35], s[34:35], s[36:37]
v_cmp_gt_u32 s[38:39], 19, v12
v_cmp_eq_u32 s[36:37], 22, v12
s_or_b64 s[38:39], s[38:39], s[36:37]
s_mul_i32 s28, s20, 2560
s_add_u32 s28, s28, {KV + (0 if first else LS)}
s_lshr_b32 s51, s2, 6
s_mul_i32 s52, s51, 5
s_lshl_b32 s53, s51, 2
s_add_u32 s53, s53, 2
s_cmp_lt_u32 s51, 2
s_cselect_b32 s52, s52, s53
s_mul_i32 s50, s52, 36864
s_mul_i32 s53, s16, 9216
s_add_u32 s50, s50, s53
s_add_u32 s50, s50, {WOF}
s_lshl_b32 s54, s20, 7
s_add_u32 s54, s54, {CNT + CAB + (0 if first else LS)}
v_lshlrev_b32 v10, 12, v2
v_mov_b32 v11, 1""".split("\n")
    wo = wo_loads(range(4))[:NP1]
    if side and first:
        _, su, dma, su2, work, fin = side
        G[116] = G[116] + [I("s_barrier", needs=['scs'])]
        def put(L, a, b):
            for k, x in enumerate(L): G[a + k*(b - a)//len(L)] += x if isinstance(x, list) else [x]
        put(su, SW[0], SW[1]); put(dma, SW[2], SW[3]); put(su2, SW[3], SW[4]); put(work, SW[4], SW[5]); put(fin, 117, 130)
    elif first and p2 is not None:
        G[116] = G[116] + ["s_barrier"]
        f2 = kq.fchk('f2', 232, 57, 's3')
        G[FP[0]] = G[FP[0]] + kq.fsig('f2', 161, 162, 58)
        G[FP[2]] = G[FP[2]] + [f2[0]]
        for k, x in enumerate(f2[1]): G[FP[3] - 4 + k//2] = G[FP[3] - 4 + k//2] + [x]
        G[FP[3] + 1] = G[FP[3] + 1] + f2[2]
        G = [[y for x in g for y in (x if isinstance(x, list) else [x])] for g in G]
    elif first and p0:
        lf = SW[1] > 112
        G[116] = G[116] + [I("s_barrier", needs=[] if lf else ['scs'])]
        for L, a, b in ((p0[3], SD[0], SD[1]), (p0[1], SW[0], SW[1]), ([] if lf else p0[2], 117, 130)):
            for k, x in enumerate(L): G[a + k*(b - a)//len(L)] += x if isinstance(x, list) else [x]
    else: G[116] = G[116] + ["s_barrier"]
    for k in range(1, 144):
        if nst(f'a_g{k}'): G[k] = [nst(f'a_g{k}')] + G[k]
    for grp in G[:20]: p.ext(grp)
    p.ext(interleave(G[20:60], atomize(late)))
    for grp in G[60:74]: p.ext(grp)
    p.ext(interleave(G[74:124], epi1(0) + epi2(0) + qst(0)))
    p.ext(interleave(G[124:], wo[:NPa]))
    p(nst('a_epi'))
    e1 = epi1(1)
    rest = wo[NPa:]
    k1 = len(rest) * 2 // 3
    p.ext(interleave([x if isinstance(x, list) else [x] for x in e1], rest[:k1]))
    p(f"ds_write_b128 v15, v[{KVA}:{KVA+3}]\nds_write_b128 v15, v[{KVA+4}:{KVA+7}] offset:1024\nds_write_b64 v14, v[{KVA+8}:{KVA+9}] offset:2048")
    for x in rest[k1:]: p.ext(x)
    p("s_waitcnt lgkmcnt(0)")
    p("s_barrier")
    for it in range(3):
        for w in range(4): p(f"ds_read_b32 v{16 + 4*it + w}, v13 offset:{w*2560 + it*1024}")
    p.ext(epi2(1))
    if first and p0 and SW[1] > 112: p.ext(p0[2])
    for it in range(3):
        b = 16 + 4*it
        p(f"v_add_f32 v{b}, v{b}, v{b+1}\nv_add_f32 v{b+2}, v{b+2}, v{b+3}\nv_add_f32 v{b}, v{b}, v{b+2}")
    p(f"""s_mov_b64 exec, s[34:35]
buffer_atomic_add_f32 v16, v13, s[8:11], s28 offen
buffer_atomic_add_f32 v20, v13, s[8:11], s28 offen offset:1024
s_mov_b64 exec, -1""")
    p.ext(qst(1))
    p(f"""s_cmp_eq_u32 s16, 0
s_cbranch_scc0 L_{n}_end
s_mov_b64 exec, s[38:39]
buffer_atomic_add_f32 v24, v13, s[8:11], s28 offen offset:2048
s_mov_b64 exec, -1
L_{n}_end:""")
    for k, i in enumerate(p.ins):
        if i.kind == 'vm' and i.w and i.w[0][0] == 'a' and 's50' in i.r:
            assert not any(j.kind == 'mfma' and set(j.r) & set(i.w) for j in p.ins[k:]), i.text
    p(nst('a_st'))
    if first: p("s_branch L_ab")
    return p.finish() + (f2[3] if first and p2 is not None else "")

A2 = [False]
RAB = [0, 0]
QB2, TAGL, LXD, S80 = 147456, 152576, 152832, 153600
A_MAP2 = """s_and_b32 s17, s2, 7
s_lshr_b32 s18, s2, 3
s_lshr_b32 s19, s17, 2
s_lshl_b32 s19, s19, 3
s_and_b32 s20, s18, 7
s_add_u32 s19, s19, s20
s_and_b32 s20, s17, 3
s_lshl_b32 s20, s20, 2
s_lshr_b32 s21, s18, 3
s_add_u32 s20, s20, s21
s_lshl_b32 s17, s20, 1
s_and_b32 s18, s19, 1
s_add_u32 s17, s17, s18
s_xor_b32 s18, s17, 1"""

def a_map2(m):
    if m == 0: return A_MAP2
    nb = 3 - m
    return f"""s_bfe_u32 s19, s2, {hex(((1 + m) << 16) | (2 - m))}
s_lshl_b32 s19, s19, {nb}
s_bfe_u32 s20, s2, {hex((nb << 16) | 3)}
s_add_u32 s19, s19, s20
""" + (f"s_and_b32 s20, s2, 1\ns_lshl_b32 s20, s20, 3\ns_lshr_b32 s21, s2, 5\ns_add_u32 s20, s20, s21\n" if m == 1 else "s_lshr_b32 s20, s2, 4\n") + """s_lshl_b32 s17, s20, 1
s_and_b32 s18, s19, 1
s_add_u32 s17, s17, s18
s_xor_b32 s18, s17, 1"""
def a2_part(first, p2=None, K1=12, D0=10, RT=1.25, D1=8, R1=1.0, NW=8, qsf="sc1", NP1=36, PD=1, yf='sc1', FP=(0, 0, 100, 132),
            BAR=None, E0=2, E1=None, W1=(50, 94), NPa=8, LT=(20, 44), rr=0, SG=3, LEAD=8, c32=False, **kw):
    n = "a0" if first else "a1"
    L_ = 0 if first else LS
    p = Prog()
    p(A_MAP2 if first else a_map2(AM1[0]))
    p(f"""s_lshl_b32 s21, s19, 2
s_add_u32 s21, s21, s16
s_mul_i32 s22, s21, 36864
s_add_u32 s22, s22, {YF + L_}""")
    if first: p(f"""s_lshl_b32 s25, s16, 11
s_mul_i32 s24, s17, 73728
s_mul_i32 s23, s18, 73728
s_add_u32 s60, s25, {WQF}
s_add_u32 s24, s24, s60
s_add_u32 s23, s23, s60""")
    ACC, WR, P0, V1, TMP, KVA, QO, VB2 = 16, 80, 112, 120, 128, 136, 152, 158
    KVO = (0, 11264)
    yreg = lambda kk: ('a', 4*kk) if kk < 16 else ('v', 164 + 4*(kk - 16))
    units = [(kk, h) for kk in range(K1) for h in range(2)] + [(kk, 0) for kk in range(K1, 36)] + [(kk, 1) for kk in range(K1, 36)]
    uof = {u: i for i, u in enumerate(units)}
    C1 = K1 // 4
    if BAR is None:
        BAR = [[(0, c), (1, c)] for c in range(C1)] + [[(0, c), (0, c + 1)] if c < 8 else [(0, c)] for c in range(C1, 9, 2)] + [[(1, c) for c in range(c0, min(9, c0 + SG))] for c0 in range(C1, 9, SG)]
    assert sorted(x for g in BAR for x in g) == [(h, c) for h in range(2) for c in range(9)]
    bar_at = {}
    items = []
    for g in BAR:
        u0 = min(uof[(4*c, h)] for h, c in g)
        bar_at[2*u0] = [f"w{h}{c}" for h, c in g]
        if first:
            for h, c in g:
                sr = (24, 23)[h]
                L = [f"s_add_u32 m0, s25, {h*73728 + c*8192}" if (h or c) else "s_mov_b32 m0, s25"]
                a = I(f"buffer_load_dwordx4 v3, s[8:11], s{sr} offen {HF[0]} lds", tag=f"w{h}{c}")
                b = I(f"buffer_load_dwordx4 v3, s[8:11], s{sr} offen offset:1024 {HF[0]} lds", tag=f"w{h}{c}")
                items.append((u0 - 4, 2, L + [a, b] + ([f"s_addk_i32 s{sr}, 8192"] if c < 8 else [])))
    for kk in range(36):
        R, r = yreg(kk)
        pre = ["s_addk_i32 s22, 4096"] if (kk % 4 == 0 and kk) else []
        items.append((uof[(kk, 0)], 1, pre + [f"buffer_load_dwordx4 {R}[{r}:{r+3}], v3, s[8:11], s22 offen offset:{(kk%4)*1024} {yf}"]))
    items.sort(key=lambda x: x[0])
    st = dict(ip=0, n=0)
    def issue(nmax, u=-99):
        L = []
        while st['ip'] < len(items) and (st['n'] < nmax or items[st['ip']][0] <= u + LEAD):
            L += items[st['ip']][2]; st['n'] += items[st['ip']][1]; st['ip'] += 1
        return L
    setup = f"""v_lshlrev_b32 v13, 2, v0
v_add_u32 v4, 65536, v3
v_add_u32 v{VB2}, 131072, v3
s_mul_i32 s28, s16, 1280
s_add_u32 s28, s28, {QB2 - 20*64}
v_and_b32 v5, 31, v2
v_lshlrev_b32 v5, 6, v5
v_lshrrev_b32 v9, 5, v2
v_lshl_add_u32 v5, v9, 5, v5
v_add_u32 v5, s28, v5
v_bfe_u32 v6, v2, 2, 2
v_lshl_add_u32 v6, v9, 2, v6
v_lshlrev_b32 v6, 6, v6
v_and_b32 v7, 1, v2
v_lshl_add_u32 v6, v7, 5, v6
v_bfe_u32 v7, v2, 4, 1
v_lshl_add_u32 v6, v7, 4, v6
v_bfe_u32 v7, v2, 1, 1
v_lshl_add_u32 v6, v7, 3, v6
s_add_u32 s28, s28, {20*64}
v_add_u32 v6, s28, v6
v_lshlrev_b32 v7, 2, v2
s_mul_i32 s28, s16, 2560
v_add_u32 v15, s28, v3
v_lshlrev_b32 v14, 3, v2
v_add_u32 v14, s28, v14
v_and_b32 v8, 27, v2
v_cmp_eq_u32 s[30:31], 18, v8
v_mov_b32 v8, 0x3f803f80
s_mov_b32 s32, 0xfff00000
s_mov_b32 s33, 0xfff00000
s_lshl_b32 s26, s21, 5
s_add_u32 s26, s26, s17
s_lshl_b32 s27, s26, 8
s_lshl_b32 s26, s26, 10
s_add_u32 s26, s26, {PQ16 + L_}
s_add_u32 s27, s27, {PQ4 + L_}"""
    p(setup)
    if first:
        p(kq.a0_go(True))
        p(nst('a_go'))
        p.ext(issue(D0))
        p("ds_read_b32 v161, v162\nv_readfirstlane_b32 s3, v161")
    else:
        p(f"""s_lshl_b32 s28, s19, 2
{"s_and_b32 s29, s2, 3" if rr == 0 else "s_lshr_b32 s29, s2, 6"}
s_add_u32 s28, s28, s29
s_lshl_b32 s28, s28, 8
s_add_u32 s28, s28, {CNT + LS + CDA}
v_lshlrev_b32 v10, 7, v2
s_mov_b32 s49, 0x40000
s_waitcnt vmcnt(0)
s_cmp_eq_u32 s16, 0
s_cbranch_scc1 L_da_w0""")
        L = f"""s_sub_u32 s29, s16, 1
s_lshl_b32 s56, s29, 13
s_add_u32 s56, s56, {2048*(36 - K1)}
s_mul_i32 s57, s17, 73728
s_add_u32 s57, s57, s56
s_add_u32 s57, s57, {WQF}""".split("\n")
        assert K1 == 12
        for k in range(2):
            L += [f"s_add_u32 m0, s56, {k*4096}", "s_nop 0"] + [f"buffer_load_dwordx4 v3, s[8:11], s57 offen offset:{i*1024} {HF[0]} lds" for i in range(4)] + (["s_addk_i32 s57, 4096"] if k == 0 else [])
        L += f"""s_lshl_b32 s56, s29, 14
s_add_u32 s56, s56, {2048*K1}
s_mul_i32 s57, s18, 73728
s_add_u32 s57, s57, s56
s_add_u32 s57, s57, {WQF}""".split("\n")
        for k in range(4):
            L += [f"s_add_u32 m0, s56, {73728 + k*4096}", "s_nop 0"] + [f"buffer_load_dwordx4 v3, s[8:11], s57 offen offset:{i*1024} {HF[0]} lds" for i in range(4)] + (["s_addk_i32 s57, 4096"] if k < 3 else [])
        p(kq.off("\n".join(L + ["s_branch L_da_go", "L_da_w0:"])))
        p(spin("da", 28, 10, 250, 2, 8, PD))
        p("s_barrier")
        p(nst('a_go'))
        p.ext(issue(D1))
    def wrd(f):
        kk, h = units[f // 2]; t = f % 2
        s = WR + 4*(f % NW)
        L = []
        if first and f in bar_at: L.append(I("s_barrier", needs=bar_at[f]))
        a = h*73728 + kk*2048 + t*1024
        L.append(f"ds_read_b128 v[{s}:{s+3}], v{(3, 4, VB2)[a >> 16]} offset:{a & 65535}")
        return L
    for f in range(NW - 1): p.ext(wrd(f))
    p(nst('a_first'))
    G = []
    for u, (kk, h) in enumerate(units):
        R, y = yreg(kk)
        for t in range(2):
            f = 2*u + t
            w = WR + 4*(f % NW)
            acc = ACC + 32*h + 16*t
            c = "0" if kk == 0 else f"v[{acc}:{acc+15}]"
            grp = [f"v_mfma_f32_32x32x16_bf16 v[{acc}:{acc+15}], {R}[{y}:{y+3}], v[{w}:{w+3}], {c}"]
            if f + NW - 1 < 144: grp += wrd(f + NW - 1)
            if t == 1: grp += issue((D0 + (u + 1)*RT) if first else (D1 + (u + 1)*R1), u)
            G.append(grp)
    assert st['ip'] == len(items)
    def epi1(h):
        T0 = ACC + 32*h; T1 = T0 + 16
        L = []
        for i in range(8): L.append(f"v_cvt_pk_bf16_f32 v{V1+i}, v{T1+2*i}, v{T1+2*i+1}")
        for i in range(8): L.append(f"v_cndmask_b32 v{V1+i}, v{V1+i}, v8, s[30:31]")
        ph = phi(list(range(T0, T0 + 16)), TMP)
        pk = [f"v_cvt_pk_bf16_f32 v{P0+i}, v{T0+2*i}, v{T0+2*i+1}" for i in range(8)]
        mm = [f"v_mfma_f32_32x32x16_bf16 v[{KVA}:{KVA+15}], v[{P0+4*q}:{P0+4*q+3}], v[{V1+4*q}:{V1+4*q+3}], " + ("0" if q == 0 else f"v[{KVA}:{KVA+15}]") for q in range(2)]
        L = ph[:32] + pk[:4] + L + [mm[0]] + ph[32:] + pk[4:] + [mm[1]]
        L.append(["s_mov_b64 exec, s[32:33]",
                  f"ds_write_b128 v5, v[{V1}:{V1+3}] offset:512", f"ds_write_b128 v5, v[{V1+4}:{V1+7}] offset:528",
                  f"ds_write_b128 v5, v[{P0}:{P0+3}]", f"ds_write_b128 v5, v[{P0+4}:{P0+7}] offset:16",
                  "s_mov_b64 exec, -1"])
        L += [f"ds_read_b64_tr_b16 v[{QO}:{QO+1}], v6", f"ds_read_b64_tr_b16 v[{QO+2}:{QO+3}], v6 offset:768", f"ds_read_b64_tr_b16 v[{QO+4}:{QO+5}], v6 offset:512"]
        return L
    def epi2():
        u = TMP + 4
        L = [f"v_lshlrev_b32 v{u}, 16, v{QO+2}", f"v_and_b32 v{u+1}, 0xffff0000, v{QO+2}", f"v_lshlrev_b32 v{u+2}, 16, v{QO+3}", f"v_and_b32 v{u+3}, 0xffff0000, v{QO+3}"]
        L += phi([u, u+1, u+2, u+3], TMP)
        L += [f"v_cvt_pk_bf16_f32 v{QO+2}, v{u}, v{u+1}", f"v_cvt_pk_bf16_f32 v{QO+3}, v{u+2}, v{u+3}"]
        return L
    def qst(h):
        L = ["s_xor_b32 s26, s26, 1024", "s_xor_b32 s27, s27, 256"] if h else []
        return L + [f"buffer_store_dwordx4 v[{QO}:{QO+3}], v3, s[8:11], s26 offen {qsf}", f"buffer_store_dword v{QO+4}, v7, s[8:11], s27 offen {qsf}"]
    kvw = lambda h: [I(f"ds_write_b128 v15, v[{KVA}:{KVA+3}] offset:{KVO[h]}", tag=f'kv{h}'), I(f"ds_write_b128 v15, v[{KVA+4}:{KVA+7}] offset:{KVO[h] + 1024}", tag=f'kv{h}'),
                     I(f"ds_write_b64 v14, v[{KVA+8}:{KVA+9}] offset:{KVO[h] + 2048}", tag=f'kv{h}')]
    RB = (16, 32)
    kvr = lambda h: [f"ds_read_b32 v{RB[h] + 4*it + w}, v13 offset:{KVO[h] + w*2560 + it*1024}" for it in range(3) for w in range(4)]
    def kva(h):
        L = []
        for it in range(3):
            b = RB[h] + 4*it
            L += [f"v_add_f32 v{b}, v{b}, v{b+1}", f"v_add_f32 v{b+2}, v{b+2}, v{b+3}", f"v_add_f32 v{b}, v{b}, v{b+2}"]
        return L
    def kat(h):
        b = RB[h]; sk = 28 + h
        return [["s_mov_b64 exec, s[34:35]", f"buffer_atomic_add_f32 v{b}, v13, s[8:11], s{sk} offen", f"buffer_atomic_add_f32 v{b+4}, v13, s[8:11], s{sk} offen offset:1024", "s_mov_b64 exec, -1"]], \
               [["s_cmp_eq_u32 s16, 0", f"s_cbranch_scc0 L_{n}_k{h}", "s_mov_b64 exec, s[38:39]", f"buffer_atomic_add_f32 v{b+8}, v13, s[8:11], s{sk} offen offset:2048 ; @", "s_mov_b64 exec, -1", f"L_{n}_k{h}:"]]
    late = f"""v_bfe_u32 v10, v0, 2, 5
v_lshrrev_b32 v12, 1, v0
v_cmp_gt_u32 s[34:35], 19, v10
v_cmp_eq_u32 s[36:37], 22, v10
s_or_b64 s[34:35], s[34:35], s[36:37]
v_cmp_gt_u32 s[38:39], 19, v12
v_cmp_eq_u32 s[36:37], 22, v12
s_or_b64 s[38:39], s[38:39], s[36:37]
s_mul_i32 s28, s17, 2560
s_add_u32 s28, s28, {KV + L_}
s_mul_i32 s29, s18, 2560
s_add_u32 s29, s29, {KV + L_}
s_lshr_b32 s51, s2, 6
s_mul_i32 s52, s51, 5
s_lshl_b32 s53, s51, 2
s_add_u32 s53, s53, 2
s_cmp_lt_u32 s51, 2
s_cselect_b32 s52, s52, s53
s_mul_i32 s50, s52, 36864
s_mul_i32 s53, s16, 9216
s_add_u32 s50, s50, s53
s_add_u32 s50, s50, {WOF}
s_lshl_b32 s54, s{17 if c32 else 20}, 7
s_add_u32 s54, s54, {CNT + CAB + L_}
v_lshlrev_b32 v10, 12, v2
v_mov_b32 v11, 1""".split("\n")
    wo = wo_loads(range(4))[:NP1]
    def put(L, a, b):
        for k, x in enumerate(L): G[a + k*(b - a)//len(L)] += x if isinstance(x, list) else [x]
    P3 = 2*(36 + K1)
    if first:
        f2 = kq.fchk('f2', 244, 57, 's3')
        G[FP[0]] = G[FP[0]] + kq.fsig('f2', 161, 162, 58)
        G[FP[2]] = G[FP[2]] + [f2[0]]
        for k, x in enumerate(f2[1]): G[FP[3] - 4 + k//2] = G[FP[3] - 4 + k//2] + [x]
        G[FP[3] + 1] = G[FP[3] + 1] + f2[2]
        put(wo[:NPa], FP[3] + 2, 144); rest = wo[NPa:]
    else:
        G[48] = G[48] + ["s_barrier"]
        assert 2*uof[(24, 0)] - NW >= 48
        put(wo, W1[0], W1[1]); rest = []
    G = [[y for x in g for y in (x if isinstance(x, list) else [x])] for g in G]
    for k in range(1, 144):
        if nst(f'a_g{k}'): G[k] = [nst(f'a_g{k}')] + G[k]
    k0, k1 = kat(0)
    fill = epi1(0) + kvw(0) + epi2() + qst(0) + [I("s_barrier", needs=['kv0'])] + kvr(0) + kva(0) + k0 + k1
    a = P3 + E0; b = E1 or 144
    for grp in G[:LT[0]]: p.ext(grp)
    p.ext(interleave(G[LT[0]:LT[1]], atomize(late)))
    for grp in G[LT[1]:a]: p.ext(grp)
    p.ext(interleave(G[a:b], fill))
    for grp in G[b:]: p.ext(grp)
    p(nst('a_epi'))
    e1 = epi1(1)
    kx = len(rest) * 2 // 3
    p.ext(interleave([x if isinstance(x, list) else [x] for x in e1], rest[:kx]))
    p.ext(kvw(1))
    for x in rest[kx:]: p.ext(x)
    p("s_waitcnt lgkmcnt(0)")
    p("s_barrier")
    p.ext(kvr(1)); p.ext(epi2()); p.ext(kva(1))
    k0, k1 = kat(1)
    p.ext(k0[0]); p.ext(qst(1)); p.ext(k1[0])
    for k, i in enumerate(p.ins):
        if i.op == 's_barrier':
            for t in i.needs: assert all(kk < k for kk, j in enumerate(p.ins) if j.tag == t), t
    p(nst('a_st'))
    if first: p("s_branch L_ab")
    return p.finish() + (f2[3] if first else "")

def w_mid2():
    L = f"""s_cmp_eq_u32 s63, 0
s_cbranch_scc0 L_wm_skip
s_and_b32 s52, s2, {(3, 1, 0)[AM1[0]]}
s_lshl_b32 s52, s52, {3 + AM1[0]}
s_lshr_b32 s53, s2, {6 - AM1[0]}
s_lshl_b32 s53, s53, 1
s_add_u32 s52, s52, s53
s_bfe_u32 s53, s2, 0x10003
s_add_u32 s52, s52, s53
s_xor_b32 s37, s52, 1
s_mul_i32 s52, s52, 73728
s_mul_i32 s37, s37, 73728
s_mul_i32 s53, s16, 12288
s_add_u32 s52, s52, s53
s_add_u32 s52, s52, {WQF}
s_mov_b32 m0, s53""".split("\n")
    for k in range(3):
        if k: L += [f"s_add_u32 m0, s53, {k*4096}", "s_addk_i32 s52, 4096"]
        L += ["s_nop 0"] + [f"buffer_load_dwordx4 v3, s[8:11], s52 offen offset:{i*1024} {HF[0]} lds" for i in range(4)]
    L += ["s_lshr_b32 s53, s53, 1", "s_add_u32 s37, s37, s53", f"s_add_u32 s37, s37, {WQF}"]
    for k in range(2):
        L += [f"s_add_u32 m0, s53, {73728 + k*4096}"] + (["s_addk_i32 s37, 4096"] if k else [])
        L += ["s_nop 0"] + [f"buffer_load_dwordx4 v3, s[8:11], s37 offen offset:{i*1024} {HF[0]} lds" for i in range(4 if k == 0 else 2)]
    return L

def ab_link(NP1=36, lp=None):
    p = Prog()
    if lp is not None: p(kq.LATE_KA)
    p(f"""s_and_b32 s17, s2, 7
s_lshl_b32 s17, s17, 3
s_bfe_u32 s19, s2, 0x30003
s_add_u32 s17, s17, s19
s_mov_b32 s18, s52
s_waitcnt vmcnt(0)
s_barrier
s_cmp_eq_u32 s16, 0
s_cbranch_scc0 L_ab_ns
s_mov_b64 exec, {0xff if RAB[0] == 1 else 0xffff}
buffer_atomic_add v11, v10, s[8:11], s54 offen
s_mov_b64 exec, -1
L_ab_ns:""")
    p(nst('a_sig'))
    for x in wo_loads(range(4))[NP1:]: p.ext(x)
    if lp is not None: p(kq.late_setup()); p(kq.late_dmas(**lp))
    return p.finish() + "  s_cmp_lt_u32 s51, 2\n  s_cbranch_scc0 L_b4\n"

def b_part(NT, cz, xsf="sc1", PFD=3, PD=1, lf='sc1', allp=False, pbar=False, x4=False, dx=False, sb=None, PFN=5, PFR=(99, 0)):
    p = Prog()
    KVR, NUM, TL, ACC, XR = 16, 112, 144, 152, 232
    aPQ = 0
    if NT == 5:
        for x in wo_loads(range(3, 5))[9:]: p.ext(x)
    p(f"""s_lshl_b32 s19, s16, 3
s_mul_i32 s20, s19, 2560
s_add_u32 s20, s20, {KV}{lay('s20')}
s_lshl_b32 s21, s17, 5
s_add_u32 s21, s21, s19
s_lshl_b32 s22, s21, 8
s_lshl_b32 s21, s21, 10
s_add_u32 s21, s21, {PQ16}{lay('s21')}
s_add_u32 s22, s22, {PQ4}{lay('s22')}
v_lshlrev_b32 v4, 3, v2
v_lshlrev_b32 v5, 2, v2
v_and_b32 v6, 24, v2
v_cmp_eq_u32 vcc, 24, v6
v_mov_b32 v6, 0x40000000
v_cndmask_b32 v12, v3, v6, vcc
v_cndmask_b32 v4, v4, v6, vcc
v_add_u32 v6, 4096, v3
s_mul_i32 s25, s17, 36864
s_lshl_b32 s26, s18, 11
s_add_u32 s25, s25, s26
s_lshl_b32 s26, s16, 9
s_add_u32 s25, s25, s26{lay('s25')}
s_add_u32 s26, s25, {XF}
s_add_u32 s27, s25, {X1F}
v_and_b32 v8, 31, v2
v_lshlrev_b32 v8, 4, v8
v_lshrrev_b32 v9, 5, v2
v_lshl_add_u32 v8, v9, 3, v8
v_add_u32 v9, 4096, v8
v_add_u32 v10, 8192, v8""")
    if x4:
        p("""v_and_b32 v246, 31, v2
v_lshrrev_b32 v247, 5, v2
v_lshlrev_b32 v8, 4, v246
v_lshl_add_u32 v8, v247, 11, v8
v_add_u32 v9, 4096, v8""")
        if dx:
            p(f"""s_mul_i32 s31, s17, 36864
s_lshl_b32 s32, s18, 6
s_add_u32 s31, s31, s32
s_lshl_b32 s32, s16, 4
s_add_u32 s31, s31, s32
s_cmp_eq_u32 s63, 0
s_cselect_b32 s26, s31, s26
s_cselect_b32 s31, 1152, 16
s_cselect_b32 s32, 64, 2048
v_mul_u32_u24 v246, s31, v246
v_mul_u32_u24 v13, s32, v247
v_lshl_add_u32 v247, v247, 3, v246
v_add_u32 v246, v246, v13
s_lshl_b32 s32, s32, 1
s_add_u32 s31, s26, s32
s_add_u32 s32, s31, s32""")
    for h in range(8): p(f"v_accvgpr_write_b32 a{aPQ+6*h+5}, 0")
    for g in range(1, 4):
        p(f"""s_add_u32 s28, s16, {g}
s_and_b32 s28, s28, 3
s_mul_i32 s28, s28, {3*NT*1024}
s_add_u32 s28, s28, {(g-1)*NT*1024}
v_add_u32 v{242+g}, s28, v3""")
    p(f"s_mul_i32 s28, s16, {3*NT*1024}\nv_add_u32 v14, s28, v3")
    p(f"s_lshl_b32 s28, s17, 8\ns_add_u32 s28, s28, {ST}{lay('s28')}")
    p.ext(cz[1])
    p(f"s_lshr_b32 s67, s17, 1\ns_lshl_b32 s67, s67, 2\ns_add_u32 s67, s67, s16\ns_lshl_b32 s67, s67, 7\ns_add_u32 s67, s67, {CNT + REP['bc'][0]}{lay('s67')}")
    pf = list(cz[3])
    if not allp and not pbar:
        for x in pf[:3]: p.ext(x)
    p(f"""s_lshl_b32 s29, s16, 10
s_bfe_u32 s30, s2, {('0x40003', '0x30000', '0x40000')[RAB[0]]}
s_lshl_b32 s30, s30, 12
s_add_u32 s29, s29, s30
s_add_u32 s29, s29, {CNT + CAB}{lay('s29')}
v_lshlrev_b32 v7, 7, v2
s_mov_b32 s49, 0x40000""")
    if allp:
        p(f"s_waitcnt vmcnt(0)\ns_cmp_eq_u32 s16, 0\ns_cbranch_scc0 L_ab{NT}_go")
        p(spin(f"ab{NT}", 29, 7, 250, 32, 8, PD)); p("s_barrier")
    elif sb is not None:
        p(f"s_cmp_eq_u32 s16, 0\ns_cbranch_scc0 L_ab{NT}_go")
        p(spin(f"ab{NT}", 29, 7, 250, 16, 16, PD) if A2[0] == 1 else spin(f"ab{NT}", 29, 7, 250, 32, 8, PD)); p("s_barrier")
    else: p(spin(f"ab{NT}", 29, 7, 250, 8, 8, PD))
    if sb is None: p.ins.append(I("s_nop 0", tag='__clr'))
    p(nst('b_go'))
    for h in range(8):
        k = KVR + 12*h; q = aPQ + 6*h
        p(f"""buffer_load_dwordx4 v[{k}:{k+3}], v12, s[8:11], s20 offen {lf}
buffer_load_dwordx4 v[{k+4}:{k+7}], v12, s[8:11], s20 offen offset:1024 {lf}
buffer_load_dwordx2 v[{k+8}:{k+9}], v4, s[8:11], s20 offen offset:2048 {lf}
buffer_load_dwordx4 a[{q}:{q+3}], v{(3,6)[h//4]}, s[8:11], s21 offen offset:{(h%4)*1024} {lf}
buffer_load_dword a{q+4}, v5, s[8:11], s22 offen offset:{h*256} {lf}""")
        if h < 7: p("s_addk_i32 s20, 2560")
    if x4:
        for u in range(2): p(f"buffer_load_dwordx4 v[{XR+4*u}:{XR+4*u+3}], " + (f"v246, s[12:15], s{(26, 31)[u]}" if dx else f"v{8+u}, s[8:11], s26") + f" offen {lf}")
        if NT == 5: p(f"buffer_load_dwordx2 v[{XR+8}:{XR+9}], " + ("v247, s[12:15], s32" if dx else "v10, s[8:11], s26") + f" offen {lf}")
    else:
        for t in range(NT): p(f"buffer_load_dwordx2 v[{XR+2*t}:{XR+2*t+1}], v{8 + t//2}, s[8:11], s26 offen offset:{(t%2)*2048} {lf}")
    def prep(h):
        k = KVR + 12*h; q = aPQ + 6*h; n = NUM + 16*(h % 2)
        L = [f"v_cvt_pk_bf16_f32 v{k+i}, v{k+2*i}, v{k+2*i+1}" for i in range(5)]
        L.append(f"v_mov_b32 v{k+5}, 0")
        L.append(f"v_mfma_f32_32x32x16_bf16 v[{n}:{n+15}], v[{k}:{k+3}], a[{q}:{q+3}], 0")
        L.append(f"v_mfma_f32_32x32x8_bf16 v[{n}:{n+15}], v[{k+4}:{k+5}], a[{q+4}:{q+5}], v[{n}:{n+15}]")
        return L
    def post(h):
        n = NUM + 16*(h % 2); o = KVR + 12*h + 8
        L = [f"v_add_f32 v11, 0x358637bd, v{n+10}", "v_rcp_f32 v11, v11"]
        for i in range(10): L.append(f"v_mul_f32 v{n+i}, v{n+i}, v11")
        for i in range(4): L.append(f"v_cvt_pk_bf16_f32 v{o+i}, v{n+2*i}, v{n+2*i+1}")
        L.append(f"v_cvt_pk_bf16_f32 v{TL + h//2 + 4*(h%2)}, v{n+8}, v{n+9}")
        return L
    def gemm(ks):
        o = KVR + 12*ks + 8 if ks < 8 else TL
        G = []
        for t in range(NT):
            r = aWOr(ks, t); a = ACC + 16*t
            c = "0" if ks == 0 else f"v[{a}:{a+15}]"
            G.append([f"v_mfma_f32_32x32x16_bf16 v[{a}:{a+15}], a[{r}:{r+3}], v[{o}:{o+3}], {c}"])
        return G
    flat = lambda L: [y for x in L for y in (x if isinstance(x, list) else [x])]
    for st in range(11):
        ks = st - PFD
        nl = pf[3 + PFN*ks: 3 + PFN*(ks + 1)] if ks >= 0 else []
        if (allp or pbar) and ks == -1: nl = pf[:3]
        if pbar and ks == -1: p('s_barrier')
        if st < 8: p.ext(prep(st))
        fill = post(st - 1) if 0 <= st - 1 < 8 else []
        if st == 9: fill = [f"v_permlane32_swap_b32 v{TL+i}, v{TL+4+i}" for i in range(4)]
        if nl:
            m = []; step = max(1, len(fill) // len(nl)) if fill else 1; fi = 0
            for x in nl:
                m.append(x); m += fill[fi:fi+step]; fi += step
            fill = m + fill[fi:]
        if st >= 2: p.ext(interleave(gemm(st - 2), fill))
        else: p.ext(flat(fill))
    rest = pf[3 + PFN*(10 - PFD + 1):]
    r0, r1, r2 = rest[:PFR[0]], rest[PFR[0]:PFR[0] + PFR[1]], rest[PFR[0] + PFR[1]:]
    p(nst('b_gemm'))
    p.ext(interleave([[f"ds_write_b128 v{242+g}, v[{ACC + 16*t + 4*g}:{ACC + 16*t + 4*g + 3}] offset:{t*1024}"] for t in range(NT) for g in range(1, 4)], r0))
    p("s_waitcnt lgkmcnt(0)")
    p("s_barrier")
    RD = KVR
    for t in range(NT):
        for g in range(3):
            r = RD + 12*t + 4*g
            p(f"ds_read_b128 v[{r}:{r+3}], v14 offset:{(g*NT + t)*1024}")
    for x in r1: p.ext(x)
    p("v_mov_b32 v15, 0\nv_mov_b32 v11, 0")
    swp = lambda u: f"v_permlane32_swap_b32 v{XR+4*u}, v{XR+4*u+2}\nv_permlane32_swap_b32 v{XR+4*u+1}, v{XR+4*u+3}"
    if x4:
        for u in range(2): p(swp(u))
    for t in range(NT):
        a = ACC + 16*t; x = XR + 2*t; u = a + 4
        p(f"v_lshlrev_b32 v{u}, 16, v{x}\nv_and_b32 v{u+1}, 0xffff0000, v{x}\nv_lshlrev_b32 v{u+2}, 16, v{x+1}\nv_and_b32 v{u+3}, 0xffff0000, v{x+1}")
        for i in range(4): p(f"v_add_f32 v{a+i}, v{a+i}, v{u+i}")
    for t in range(NT):
        a = ACC + 16*t; r = RD + 12*t; x = XR + 2*t
        for i in range(4): p(f"v_add_f32 v{a+i}, v{a+i}, v{r+i}")
        for i in range(4): p(f"v_add_f32 v{r+4+i}, v{r+4+i}, v{r+8+i}")
        for i in range(4): p(f"v_add_f32 v{a+i}, v{a+i}, v{r+4+i}")
        p(f"v_cvt_pk_bf16_f32 v{x}, v{a}, v{a+1}\nv_cvt_pk_bf16_f32 v{x+1}, v{a+2}, v{a+3}")
        if not x4 or t == 4: p(f"buffer_store_dwordx2 v[{x}:{x+1}], v{8 + t//2}, s[8:11], s27 offen offset:{(t%2)*2048} {xsf}")
        elif t % 2: p(swp(t//2)); p(f"buffer_store_dwordx4 v[{x-2}:{x+1}], v{8 + t//2}, s[8:11], s27 offen {xsf}")
    for t in range(NT):
        a = ACC + 16*t; x = XR + 2*t; u = a + 4
        p(f"v_lshlrev_b32 v{u}, 16, v{x}\nv_and_b32 v{u+1}, 0xffff0000, v{x}\nv_lshlrev_b32 v{u+2}, 16, v{x+1}\nv_and_b32 v{u+3}, 0xffff0000, v{x+1}")
        for i in range(4): p(f"v_add_f32 v15, v15, v{u+i}\nv_fmac_f32 v11, v{u+i}, v{u+i}")
    p(f"""v_permlane32_swap_b32 v15, v11
v_add_f32 v15, v15, v11
buffer_atomic_add_f32 v15, v5, s[8:11], s28 offen
v_lshlrev_b32 v4, 14, v2
v_mov_b32 v6, 1
s_waitcnt vmcnt(0)
s_mov_b64 exec, {(1 << REP['bc'][1]) - 1}
buffer_atomic_add v6, v4, s[8:11], s67 offen
s_mov_b64 exec, -1""")
    p(nst('b_sig'))
    for x in r2: p.ext(x)
    if NT == 5: p("s_branch L_bc_c")
    return p.finish(), ''

def w_mid():
    L = f"""s_cmp_eq_u32 s63, 0
s_cbranch_scc0 L_wm_skip
{a_head1()}
s_mul_i32 s52, s52, 73728
s_add_u32 s52, s52, {WQF}
s_mul_i32 s53, s16, 18432
s_add_u32 s52, s52, s53
s_mov_b32 m0, s53""".split("\n")
    for k in range(5):
        if k: L += [f"s_add_u32 m0, s53, {k*4096}", "s_addk_i32 s52, 4096"]
        L += ["s_nop 0"] + [f"buffer_load_dwordx4 v3, s[8:11], s52 offen offset:{i*1024} {HF[0]} lds" for i in range(4 if k < 4 else 2)]
    return L

def w_early():
    L = f"""s_cmp_eq_u32 s63, 0
s_cbranch_scc0 L_we_skip
s_and_b32 s52, s2, 3
s_lshl_b32 s52, s52, 3
s_lshr_b32 s53, s2, 5
s_add_u32 s52, s52, s53
s_mul_i32 s52, s52, 73728
s_add_u32 s52, s52, {WQF}
s_sub_u32 s53, s16, 1
s_mul_i32 s53, s53, 24576
s_add_u32 s52, s52, s53
s_mov_b32 m0, s53""".split("\n")
    for k in range(6):
        if k: L += [f"s_add_u32 m0, s53, {k*4096}", "s_addk_i32 s52, 4096"]
        L += ["s_nop 0"] + [f"buffer_load_dwordx4 v3, s[8:11], s52 offen offset:{i*1024} lds ; @" for i in range(4)]
    return L + ["L_we_skip:", "s_branch L_cd_go"]

def d_part(sf="sc1", lf="sc1", PD=1, we=True, p0=False, dx=False, wk=False, two=None, peek=False, pre=False, late=False, own=False, xl=False):
    p = Prog()
    PL, XL, BL, X, U = 32, 112, 124, 136, 160
    LX = LXD if A2[0] else 131072
    p(f"""s_lshr_b32 s20, s17, 2
s_lshl_b32 s21, s18, 1
s_add_u32 s20, s20, s21
s_and_b32 s21, s17, 3
s_mul_i32 s22, s20, 36864
s_lshl_b32 s23, s21, 7
s_add_u32 s22, s22, s23
s_add_u32 s22, s22, s63
s_lshl_b32 s24, s20, 8
s_lshl_b32 s25, s21, 5
s_add_u32 s24, s24, s25
s_add_u32 s24, s24, {ST}
s_add_u32 s24, s24, s63
s_lshl_b32 s25, s20, 5
s_lshl_b32 s26, s21, 3
s_add_u32 s25, s25, s26
s_mul_i32 s25, s25, 1152
s_lshl_b32 s26, s18, 9
s_add_u32 s26, s26, {CNT + REP['cd'][0]}
s_add_u32 s26, s26, s63
s_lshl_b32 s36, s16, 7
s_add_u32 s36, s36, s26
s_and_b32 s27, s2, {REP['cd'][1] - 1}
s_lshl_b32 s27, s27, 14
s_add_u32 s26, s26, s27
v_and_b32 v4, 7, v0
v_lshrrev_b32 v5, 3, v0
v_lshlrev_b32 v6, 9, v5
v_lshl_add_u32 v6, v4, 4, v6
v_add_u32 v7, {8192 if two else 16384}, v6
v_lshrrev_b32 v8, 2, v5
v_lshlrev_b32 v8, 9, v8
v_lshl_add_u32 v8, v4, 4, v8
v_and_b32 v9, 3, v5
v_lshl_add_u32 v8, v9, 2, v8
v_add_u32 v8, 32768, v8
v_lshlrev_b32 v9, 4, v5
v_lshlrev_b32 v10, 2, v5
v_lshlrev_b32 v11, 2, v4
s_add_u32 s27, s22, {X1F}""")
    B0, O1 = (18, 256) if two else (9, 512)
    md = two[2] if two else None
    B1 = 9
    if md:
        B1, O1 = 18, 128
        p(f"""s_cmp_eq_u32 s16, 0
s_cselect_b32 s37, 2, 3
s_cmp_eq_u32 s16, 2
s_cselect_b32 s37, -2, s37
s_lshl_b32 s37, s37, 7
v_add_u32 v18, s37, v9
s_lshl_b32 s37, s37, 5
v_add_u32 v6, s37, v6
v_add_u32 v7, 4096, v6""")
    elif two:
        p(f"""s_lshr_b32 s37, s16, 1
s_lshl_b32 s37, s37, 9
v_add_u32 v18, s37, v9
s_lshl_b32 s37, s37, 5
v_add_u32 v6, s37, v6""")
    if two:
        p(f"""s_lshl_b32 s37, s18, 9
s_add_u32 s37, s37, {CNT + two[0]}
s_add_u32 s37, s37, s63""")
        if two[1] > 1: p(f"s_and_b32 s49, s2, {two[1] - 1}\ns_lshl_b32 s49, s49, 14\ns_add_u32 s37, s37, s49")
    srd(p, 12, 40, 1152)
    p(f"""buffer_load_dword v24, v11, s[8:11], s24 offen sc1
buffer_load_dword v25, v11, s[8:11], s24 offen offset:128 sc1""")
    if not xl: p(f"""buffer_load_dwordx4 v[{XL}:{XL+3}], v6, s[8:11], s27 offen sc1
buffer_load_dwordx4 v[{XL+4}:{XL+7}], v7, s[8:11], s27 offen sc1
buffer_load_dword v{XL+8}, v8, s[8:11], s27 offen sc1""")
    p(f"""buffer_load_dwordx4 v[{BL}:{BL+3}], v{B0}, s[12:15], 0 offen
buffer_load_dwordx4 v[{BL+4}:{BL+7}], v{B1}, s[12:15], 0 offen offset:{O1}
buffer_load_dword v{BL+8}, v10, s[12:15], 0 offen offset:1024
v_lshlrev_b32 v12, 14, v2
v_mov_b32 v13, 1
s_mov_b32 s49, 0x40000""")
    ldr = lambda r: [f"buffer_load_dwordx4 v[{PL+32*r+4*j}:{PL+32*r+4*j+3}], v{6+r}, s[8:11], s{28+j} offen {lf}" if r < 2 else f"buffer_load_dword v{PL+64+j}, v8, s[8:11], s{28+j} offen {lf}" for j in range(1 if own else 0, 8)]
    NA = 14 if own else 16
    def ptrs():
        for j in range(8):
            if not own: p(f"s_add_u32 s{28+j}, s22, {PART + j*ACT}")
            elif j: p(f"s_add_u32 s{28+j}, s17, {j}\ns_and_b32 s{28+j}, s{28+j}, 7\ns_mul_i32 s{28+j}, s{28+j}, {ACT}\ns_add_u32 s{28+j}, s{28+j}, s28")
            else: p(f"s_add_u32 s28, s22, {PART}\ns_lshr_b32 s29, s17, 2\ns_mul_i32 s29, s29, 36864\ns_add_u32 s29, s29, s23\ns_add_u32 s29, s29, 73728\nv_add_u32 v20, s29, v6\nv_add_u32 v21, s29, v7\nv_add_u32 v28, s29, v8")
    OWN = [f"ds_read_b128 v[{PL}:{PL+3}], v20", f"ds_read_b32 v{PL+64}, v28", f"ds_read_b128 v[{PL+32}:{PL+35}], v21"] if own else []
    LDS_ = ldr(0) + ldr(2) + ldr(1) if two and not md else ldr(0) + ldr(1) + ldr(2)
    SIG = f"""s_mov_b64 exec, {(1 << REP['cd'][1]) - 1}
buffer_atomic_add v13, v12, s[8:11], s36 offen
s_mov_b64 exec, -1
v_lshlrev_b32 v12, 7, v2"""
    if own: assert two and late and not md and not peek
    if peek or late: ptrs()
    if xl:
        assert own and pre
        p(f"v_subrev_u32 v29, 73728, v20\nv_subrev_u32 v30, 73728, v21\nv_subrev_u32 v31, 73728, v28\nds_read_b128 v[{XL}:{XL+3}], v29\nds_read_b128 v[{XL+4}:{XL+7}], v30\nds_read_b32 v{XL+8}, v31")
    if own: p("s_waitcnt lgkmcnt(0)")
    if peek:
        p(kq.off("\n".join(["s_waitcnt vmcnt(12)", "s_mov_b64 exec, 15", "v_cmp_gt_u32 vcc, 8, v23", "s_mov_b64 exec, -1", "s_nop 3", "s_cbranch_vccnz L_ca_slow"] + LDS_[:16] +
                           ["s_waitcnt vmcnt(24)", SIG, "s_barrier", "s_branch L_ca_m", "L_ca_slow:"])))
        p("s_waitcnt vmcnt(8)\n" + SIG)
        p("s_cmp_eq_u32 s16, 0\ns_cbranch_scc0 L_ca_go")
        sp = spin("ca", 37, 12, 250, 4, 8, PD).split("\n")
        p("\n".join(sp[:-1]))
        p(kq.off("\n".join(LDS_[:16] + ["s_barrier", "s_branch L_ca_m"])))
        p(sp[-1])
        p("s_barrier")
        p.ext(LDS_[:16])
        p("L_ca_m:")
    elif pre:
        p("v_lshlrev_b32 v22, 7, v2\ns_mov_b64 exec, 15\nbuffer_load_dword v23, v22, s[8:11], s37 offen sc1\ns_mov_b64 exec, -1\ns_waitcnt vmcnt(%d)\n" % (6 if xl else 9) + SIG)
    else: p("s_waitcnt vmcnt(8)\n" + SIG)
    p(nst('d_sig'))
    nd = [4, 4, 1]
    def precomp():
        p(f"""v_mul_f32 v24, 0x3ae38e39, v24
v_mul_f32 v25, 0x3ae38e39, v25
v_fma_f32 v25, -v24, v24, v25
v_max_f32 v25, 0, v25
v_mov_b32 v26, 0x3f800054
v_mov_b32 v27, 0x2edbe6ff
v_fma_f32 v25, v25, v26, v27
v_rsq_f32 v25, v25
v_mov_b32 v14, 0x3f80
v_mov_b32 v15, 0x3f800000
v_mul_u32_u24 v16, 1152, v4
v_add_u32 v17, v16, v10
v_add_u32 v19, v16, v{B1}
v_add_u32 v18, v16, v{B0}""")
        for r in range(3):
            for i in range(nd[r]):
                x = XL + 4*r + i; b = BL + 4*r + i; u = U + 8*r + 2*i
                p(f"v_lshlrev_b32 v{u}, 16, v{x}\nv_and_b32 v{u+1}, 0xffff0000, v{x}\nv_lshlrev_b32 v{x}, 16, v{b}\nv_and_b32 v{b}, 0xffff0000, v{b}")
                p(f"v_add_f32 v{u}, v{u}, v{x}\nv_add_f32 v{u+1}, v{u+1}, v{b}")
    if not late: precomp()
    if not peek and not late:
        for j in range(8): p(f"s_add_u32 s{28+j}, s22, {PART + j*ACT}")
    if we == 1:
        p("s_cmp_eq_u32 s16, 0\ns_cbranch_scc1 L_cd_w0")
        p.ext(w_early()); p("L_cd_w0:")
    elif wk: p("s_cmp_eq_u32 s16, 0\ns_cbranch_scc1 L_cd_w0\n" + walk('wd', 1, 3) + "\ns_branch L_cd_go\nL_cd_w0:")
    elif not two or peek: p("s_cmp_eq_u32 s16, 0\ns_cbranch_scc0 L_cd_go")
    if md == 'own':
        p("s_cmp_lt_u32 s16, 2\ns_cselect_b32 s26, s26, s37")
        p(spin("cd", 26, 12, 250, 4, 8, PD))
        p(nst('d_go'))
        p.ext(LDS_)
    elif md == 'bar':
        p("s_cmp_eq_u32 s16, 0\ns_cbranch_scc0 L_ca_go")
        p(spin("ca", 37, 12, 250, 4, 8, PD))
        p("s_barrier")
        p(nst('d_ga'))
        p("s_cmp_lt_u32 s16, 2\ns_cbranch_scc1 L_cd_w0")
        p(kq.off("\n".join(LDS_ + ["s_barrier", "s_branch L_cd_ld"])))
        p("L_cd_w0:\ns_cmp_eq_u32 s16, 0\ns_cbranch_scc0 L_cd_go")
        p(spin("cd", 26, 12, 250, 4, 8, PD))
        p("s_barrier")
        p(nst('d_go'))
        p.ext(LDS_)
        p("L_cd_ld:")
    elif two and not peek:
        p("s_cmp_eq_u32 s16, 0\ns_cbranch_scc0 L_ca_go")
        if pre: p(kq.off("s_waitcnt vmcnt(1)\ns_mov_b64 exec, 15\nv_cmp_gt_u32 vcc, 8, v23\ns_nop 4\ns_cbranch_vccz L_ca_ok"))
        sp = spin("ca", 37, 12, 250, 4, 8, PD).split("\n")
        p("\n".join(sp[:-1]))
        p(kq.off("\n".join(LDS_[:NA] + ["s_barrier", "s_branch L_cd_w0"])))
        p(sp[-1])
        p("s_barrier")
        p(nst('d_ga'))
        p.ext(LDS_[:NA])
        if late:
            p("L_cd_w0:"); p.ext(OWN); precomp(); p("s_waitcnt lgkmcnt(0)" if own else ""); p("s_cmp_eq_u32 s16, 0\ns_cbranch_scc0 L_cd_go")
        else: p("s_branch L_cd_go\nL_cd_w0:")
    if not md:
        p(spin("cd", 26, 12, 250, 4, 8, PD))
        p("s_barrier")
        p(nst('d_go'))
        p.ext(LDS_[NA:] if two else LDS_)
    def sums(p):
        for r in ((0, 2, 1) if two and not md else range(3)):
            src = lambda j, i: PL + 32*r + 4*j + i if r < 2 else PL + 64 + j
            for i in range(nd[r]): p(f"v_lshlrev_b32 v{X+8*r+2*i}, 16, v{src(0, i)}\nv_and_b32 v{X+8*r+2*i+1}, 0xffff0000, v{src(0, i)}")
            for j in range(1, 8):
                for i in range(nd[r]): p(f"v_dot2c_f32_bf16 v{X+8*r+2*i}, v{src(j, i)}, v14\nv_dot2c_f32_bf16 v{X+8*r+2*i+1}, v{src(j, i)}, v15")
            for i in range(2*nd[r]): p(f"v_fma_f32 v{X+8*r+i}, v{X+8*r+i}, v25, v{U+8*r+i}")
            for i in range(nd[r]): p(f"v_cvt_pk_bf16_f32 v{PL+32*r+i}, v{X+8*r+2*i}, v{X+8*r+2*i+1}")
    if we == 2:
        p.ext(w_mid2() if A2[0] else w_mid())
        n0 = len(p.ins); sums(p)
        p("s_branch L_cd_mid\nL_wm_skip:")
        q = Prog()
        q.ext(LDS_)
        sums(q); q.resolve_waits()
        for i in q.ins[len(LDS_):]: i.text += " ; @"
        p.ins += q.ins[len(LDS_):]
    else: sums(p)
    O = [PL, PL + 32, PL + 64]
    p(nst('d_use'))
    if we != 2: p("s_cmp_eq_u32 s63, 0\ns_cbranch_scc1 L_cd_mid")
    srd(p, 12, 42, ACT)
    p(f"""buffer_store_dwordx4 v[{O[0]}:{O[0]+3}], v18, s[12:15], s25 offen {sf}
buffer_store_dwordx4 v[{O[1]}:{O[1]+3}], v19, s[12:15], s25 offen offset:{O1} {sf}
buffer_store_dword v{O[2]}, v17, s[12:15], s25 offen offset:1024 {sf}""")
    if p0:
        srd(p, 36, 6, 256)
        p('''s_or_b32 s60, s2, s16
s_cmp_eq_u32 s60, 0
s_cbranch_scc0 L_d_nt
v_mov_b32 v20, 0
s_mov_b64 exec, 1
buffer_store_dword v20, v20, s[36:39], 0 offen sc1 ; @
s_mov_b64 exec, -1
L_d_nt:''')
    if SC.sel: p("s_waitcnt vmcnt(0) ; @"); p(nst('d_end')); nst_dump(p, 'd2')
    p("s_endpgm\nL_cd_mid:")
    p(f"""s_add_u32 s27, s22, {XF + LS}
s_add_u32 s28, s22, {YF + LS}
buffer_store_dwordx4 v[{O[0]}:{O[0]+3}], v6, s[8:11], s27 offen {sf}
buffer_store_dwordx4 v[{O[1]}:{O[1]+3}], v7, s[8:11], s27 offen {sf}
buffer_store_dword v{O[2]}, v8, s[8:11], s27 offen {sf}""")
    XS = []
    for r in range(3):
        for i in range(nd[r]):
            p(f"v_lshlrev_b32 v{X+8*r+2*i}, 16, v{O[r]+i}\nv_and_b32 v{X+8*r+2*i+1}, 0xffff0000, v{O[r]+i}")
            XS += [X+8*r+2*i, X+8*r+2*i+1]
    p(f"v_add_f32 v24, v{XS[0]}, v{XS[1]}\nv_add_f32 v26, v{XS[2]}, v{XS[3]}\nv_mul_f32 v25, v{XS[0]}, v{XS[0]}\nv_mul_f32 v27, v{XS[1]}, v{XS[1]}")
    for k, x in enumerate(XS[4:]): p(f"v_add_f32 v{24 + 2*(k%2)}, v{24 + 2*(k%2)}, v{x}")
    for k, x in enumerate(XS[2:]): p(f"v_fmac_f32 v{25 + 2*(k%2)}, v{x}, v{x}")
    p(f"""v_add_f32 v24, v24, v26
v_add_f32 v25, v25, v27
v_permlane32_swap_b32 v24, v25
v_add_f32 v24, v24, v25
v_mov_b32 v25, v24
v_permlane16_swap_b32 v24, v25
v_add_f32 v24, v24, v25
v_add_f32 v24, v24, v24 row_ror:8
v_bfe_u32 v27, v0, 5, 1
v_lshl_add_u32 v27, v4, 1, v27
v_lshlrev_b32 v27, 4, v27
s_lshl_b32 s29, s16, 2
s_add_u32 s29, s29, {LX}
v_add_u32 v27, s29, v27
v_and_b32 v28, 24, v0
v_cmp_eq_u32 vcc, 0, v28
s_and_saveexec_b64 s[30:31], vcc
ds_write_b32 v27, v24
s_mov_b64 exec, -1
v_lshlrev_b32 v27, 5, v4
v_add_u32 v27, {LX}, v27
s_lshr_b32 s29, s18, {1 if A2[0] else 2}
s_lshl_b32 s29, s29, {3 if A2[0] else 4}
s_and_b32 s36, s18, {1 if A2[0] else 3}
s_add_u32 s29, s29, s36
s_lshl_b32 s29, s29, 7
s_add_u32 s29, s29, {CNT + LS + CDA}""")
    if not we: p(A_MAP); p(A_WS)
    p(f"""s_waitcnt lgkmcnt(0)
s_barrier
ds_read_b128 v[20:23], v27
ds_read_b128 v[28:31], v27 offset:16
v_add_f32 v20, v20, v21
v_add_f32 v22, v22, v23
v_add_f32 v28, v28, v29
v_add_f32 v30, v30, v31
v_add_f32 v20, v20, v22
v_add_f32 v28, v28, v30
v_mul_f32 v20, 0x3ae38e39, v20
v_mul_f32 v28, 0x3ae38e39, v28
v_fma_f32 v28, -v20, v20, v28
v_max_f32 v28, 0, v28
v_add_f32 v28, 0x3727c5ac, v28
v_rsq_f32 v28, v28""")
    for x in XS: p(f"v_sub_f32 v{x}, v{x}, v20")
    for x in XS: p(f"v_mul_f32 v{x}, v{x}, v28")
    for k in range(9): p(f"v_cvt_pk_bf16_f32 v{U+k}, v{XS[2*k]}, v{XS[2*k+1]}")
    p(f"""buffer_store_dwordx4 v[{U}:{U+3}], v6, s[8:11], s28 offen {sf}
buffer_store_dwordx4 v[{U+4}:{U+7}], v7, s[8:11], s28 offen {sf}
buffer_store_dword v{U+8}, v8, s[8:11], s28 offen {sf}""")
    if not we:
        for c in range(9): p.ext(a_wchunk(c))
    p(f"""v_lshlrev_b32 v12, {8 if A2[0] else 9}, v2
s_waitcnt vmcnt({0 if we else 18})
s_barrier
s_cmp_eq_u32 s16, 0
s_cbranch_scc0 L_da_ns
s_mov_b64 exec, 15
buffer_atomic_add v13, v12, s[8:11], s29 offen
s_mov_b64 exec, -1
L_da_ns:""")
    p(nst('d_end')); nst_dump(p, 'd1')
    if dx: srd(p, 12, 4, WSSZ)
    p(f"s_mov_b32 s63, {LS}\ns_branch L_a1")
    return p.finish()

def late_out(**kw):
    q = Prog(); q(kq.late_st('lo', uni=False, **kw)[0])
    return kq.late_pre(run=False, split=kw.get('split', False)) + q.finish()

def main_kernel(a={}, b={}, c={}, d={}, bk=0, side=None, p0=None, hf='sc1', sfl={}, a0={}, p2=None):
    assert NEW
    BK[0] = bk
    A2[0] = kq.A2[0] = (2 if a.get('c32') else 1) if a.get('v2') else 0
    ap = a2_part if A2[0] else a_part
    b = dict(b); REP.update(b.pop('rep', {})); c = dict(c, bcrep=REP['bc'])
    a = dict(a); AM1[0] = a.pop('am1', 0); RAB[:] = a.pop('rab', (0, 0))
    HF[0] = hf if p0 is not None else ''
    if p0 is not None: b = dict(b, pbar=True); d = dict(d, p0=True); c = dict(c, wfl=hf)
    if p2 is not None: HF[0] = hf; b = dict(b, x4=True, dx=True, sb=p2.get('s', {})); d = dict(d, p0=True, dx=True); c = dict(c, wfl=hf, f3=p2.get('f', {}))
    if d.get('two'): c = dict(c, sigA=d['two'][:3]); d = dict(d, two=d['two'][:2] + (d['two'][3] if len(d['two']) > 3 else None,))
    if d.get('we') == 3: a = dict(a, wl=True)
    if c.get('pkA') is not None: d = dict(d, peek=True)
    if d.get('own'): c = dict(c, own=True)
    WK = p2.get('wk', {}) if p2 is not None else {}
    if 'wd' in WK: d = dict(d, wk=True)
    cz = kc.c_kernel(fused=True, dz=True, rev=True, poll=lambda PD: spin('bc', 65, 4, 250, 4, 8, PD), **c)
    p = Prog()
    p("""s_cmp_lt_u32 s2, 256
s_cbranch_scc1 L_m_go
s_endpgm
L_m_go:
s_load_dwordx2 s[4:5], s[0:1], 80
s_load_dwordx4 s[40:43], s[0:1], 56""")
    if side is not None:
        sp = side_parts(**side); p(sp[0]); a = dict(a, side=sp); b = dict(b, allp=True)
    if p0 is not None or p2 is not None: p(kp.KARGS)
    if SC.sel: p(f"s_memrealtime s[{SC.m['t']}:{SC.m['t']+1}]")
    p(f"""v_lshrrev_b32 v1, 6, v0
v_and_b32 v2, 63, v0
v_readfirstlane_b32 s16, v1
v_lshlrev_b32 v3, 4, v2
s_mov_b32 s63, 0
s_mov_b32 s10, {WSSZ}
s_mov_b32 s11, 0x20000""")
    cp = p2.get('cp', 0) if p2 is not None else 0
    if cp:
        p(f"""s_cmp_eq_u32 s16, {p2.get('cpw', 3)}
s_cbranch_scc0 L_cp_e
s_getpc_b64 s[86:87]
L_cp0:
s_lshr_b32 s60, s2, 3
v_min_u32 v26, {cp - 1}, v2
v_lshlrev_b32 v26, 5, v26
v_add_u32 v26, s60, v26
v_lshlrev_b32 v26, 7, v26
s_mov_b32 s60, L_kend-L_cp0-4
v_min_u32 v26, s60, v26
global_load_dword v25, v26, s[86:87] ; @
L_cp_e:""")
    if p0 is None and p2 is None: p("s_waitcnt lgkmcnt(0)\ns_mov_b32 s8, s4\ns_mov_b32 s9, s5")
    NP1 = a.get('NP1', 36)
    if p2 is not None:
        a0 = kq.HEAD + kq.crit(**p2.get('c', {})) + kq.loader(**p2.get('l', {})) + "L_a0:\n" + ap(True, p2=p2.get('t', {}), **dict(a, **a0))
    else:
        a0 = a_part(True, **a) if p0 is None else (kp.HEAD + kp.variant('q', **p0) + kp.variant('o', **p0) + "L_a0w1:\n" + a_part(True, p0=('w1',) + kp.side_fill(False, **sfl) + (kp.side_dmas(False) if p0.get('late', 0) < 0 else [],), **dict(dict(SW=(6, 110)), **a, **a0))
        + kp.variant('w2', **p0) + a_part(True, p0=('w2',) + kp.side_fill(True, **sfl) + (kp.side_dmas(True) if p0.get('late', 0) < 0 else [],), **dict(dict(SW=(6, 110)), **a, **a0)))
    body = p.finish() + a0 + "L_a1:\n" + ap(False, **a) + "L_ab:\n" + ab_link(NP1, p2.get('s', {}) if p2 is not None else None)
    b5 = b_part(5, cz, **b); b4 = b_part(4, cz, **b)
    body += b5[0] + b5[1] + b4[1] + "L_b4:\n" + b4[0] + "L_bc_c:\n" + (late_out(**dict(p2.get('o', {}), split='W2' in p2.get('f', {}))) if p2 is not None else '') + cz[0] + d_part(**d) + (cz[4] + "  s_endpgm\nL_kend:\n" if p2 is not None else '')
    if WK:
        R = dict(wd=dict(regions=[('L_cd_go', 'L_wm_skip'), ('L_cd_mid', 'L_da_ns'), ('L_a1', 'L_da_poll')], waves=3))
        body = add_pads(body, {n: dict(R[n], step=st) for n, st in WK.items()})
    if p0 is not None or p2 is not None:
        return kernel("interleave_layers__linear_attn_block__mixer_channel_mlp__prompt_kernel", body, vgpr=256, agpr=256), "; @launch grid=(256,1,1) block=(256,1,1) lds=163840\n"
    return kernel("main_kernel", body, vgpr=256, agpr=256), "; @launch kernel=main_kernel grid=(256,1,1) block=(256,1,1) lds=163840\n"
```

```python
from asmlib import *
from layout import *
from k0 import srd

PFL = 0x9800000
FL1 = PFL + 0x4000
LX  = 81920
LC  = LX + 256
CSL = LX + 512
STG = 90112
WB  = WSN*1024
VN  = 160
A2  = [False]
TAGL, S80 = 152576, 153600
VS, VT, VO, VOT, VB, C0, C1, VAG, VCS, VONE = range(170, 180)
E   = 184

KARGS = """s_load_dwordx8 s[44:51], s[0:1], 0
s_load_dwordx4 s[52:55], s[0:1], 32
s_load_dwordx2 s[56:57], s[0:1], 48
s_load_dwordx2 s[6:7], s[0:1], 72"""

def off(L):
    return "\n".join(l + " ; @" if l.strip() and not l.strip().endswith(':') else l for l in L.split("\n"))

def wo_idx(i):
    return f"""s_mul_i32 s60, s{i}, 1821
s_lshr_b32 s60, s60, 16
s_mul_i32 s61, s60, 36
s_sub_u32 s61, s{i}, s61
s_mul_i32 s64, s61, 7282
s_lshr_b32 s64, s64, 16
s_mul_i32 s65, s64, 9
s_sub_u32 s65, s61, s65"""

def dest_w1(T, vag):
    return f"""s_mul_i32 s101, s100, 9
s_lshr_b32 s62, s59, 1
s_and_b32 s87, s59, 1
s_lshl_b32 s87, s87, 1
s_lshl_b32 s88, s58, 2
s_add_u32 s87, s87, s88
s_mul_i32 s87, s87, {WB}
s_add_u32 s87, s87, {WSTR}
s_add_u32 s88, s62, 91
s_add_u32 s89, s62, 90
s_add_u32 s96, s62, 163
s_cmp_lt_u32 s59, 4
s_cselect_b32 s60, 5, 4
s_cselect_b32 s61, 3, 2
s_cselect_b32 s62, s62, s88
s_cselect_b32 s96, s89, s96
s_lshl_b32 s61, s61, 10
s_sub_u32 s99, 0, s61
s_cmp_eq_u32 s59, 8
s_cselect_b32 s60, 5, s60
s_cselect_b32 s86, 0, s61
s_cselect_b32 s61, {WB}, s61
s_cselect_b32 s99, s61, s99
s_cselect_b32 s62, 2, s62
s_cselect_b32 s96, 92, s96
s_cselect_b32 s97, {WB}, 0
s_add_u32 s98, s97, {WB}
v_lshrrev_b32 v{T}, 5, v2
v_mul_u32_u24 v{T}, s98, v{T}
v_and_b32 v{vag}, 31, v2
v_lshl_add_u32 v{vag}, v{vag}, 4, v{T}
s_add_u32 s86, s86, s98
s_lshl_b32 s60, s60, 10
s_lshl_b32 s96, s96, 10
s_add_u32 s96, s96, s87
s_lshr_b32 s88, s100, 1
s_lshl_b32 s88, s88, 9
s_add_u32 s96, s96, s88
s_and_b32 s88, s100, 1
s_lshl_b32 s88, s88, 3
s_add_u32 s96, s96, s88
s_add_u32 s97, s97, s96
s_lshl_b32 s62, s62, 10
s_add_u32 s87, s87, s62
s_lshr_b32 s62, s101, 1
s_mul_i32 s62, s62, s60
s_add_u32 s87, s87, s62
s_add_u32 s86, s86, s87
s_and_b32 s101, s101, 1
s_mul_i32 s62, s101, s61
s_add_u32 s87, s87, s62
s_mul_i32 s62, s101, s99
s_add_u32 s86, s86, s62
s_sub_u32 s62, s60, s61
s_sub_u32 s60, s60, s99
s_cmp_eq_u32 s101, 0
s_cselect_b32 s88, s61, s62
s_cselect_b32 s89, s62, s61
s_cselect_b32 s90, s99, s60
s_cselect_b32 s91, s60, s99
s_cmp_lt_u32 s100, 2
s_cselect_b32 s93, 0xffff, 0"""

def tr_addr(T, vt, base, sh):
    return f"""v_and_b32 v{T}, 3, v2
v_bfe_u32 v{T+1}, v2, 4, 1
v_lshl_add_u32 v{T+1}, v{T+1}, 2, v{T}
v_bfe_u32 v{T+2}, v2, 2, 2
v_lshlrev_b32 v{T+2}, 6, v{T+2}
v_lshrrev_b32 v{T}, 5, v2
v_lshl_add_u32 v{T+2}, v{T}, {sh}, v{T+2}
v_lshl_add_u32 v{vt}, v{T+1}, 3, v{T+2}
v_add_u32 v{vt}, {base}, v{vt}"""

def fin_val(c0, c1, f, vb):
    return f"""v_permlane32_swap_b32 v{c0}, v{c1}
v_add_f32 v{c0}, v{c0}, v{c1}
v_cvt_pk_bf16_f32 v{f}, v{c0}, v{c0}
v_and_b32 v{c1}, 0xffff0000, v{f}
v_sub_f32 v{c1}, v{c0}, v{c1}
v_cvt_pk_bf16_f32 v{f+1}, v{c1}, 0
v_and_b32 v{vb}, s93, v{vb}
v_lshl_or_b32 v{f+1}, v{vb}, 16, v{f+1}"""

SRDS = lambda w: f"""s_mov_b32 s44, s54
s_mov_b32 s45, s55
s_mov_b32 s46, {4608*2}
s_mov_b32 s47, 0x20000
s_mov_b32 s64, s{w}
s_mov_b32 s65, s{w+1}
s_mov_b32 s66, {576*4608*2}
s_mov_b32 s67, 0x20000"""

def w2_idx(w):
    return f"""s_lshr_b32 s60, s2, 3
s_sub_u32 s60, s60, 18
s_lshl_b32 s60, s60, 2
s_add_u32 s60, s60, {w}
s_min_u32 s60, s60, 53
s_mul_i32 s88, s60, 7282
s_lshr_b32 s88, s88, 16
s_mul_i32 s61, s88, 9
s_sub_u32 s86, s60, s61"""

def lspin(tag, va, cmp, val, out, vd=20, o=0):
    return "s_mov_b32 s49, 0x400000\n" + off(f"""L_{tag}:
ds_read_b32 v{vd}, v{va} offset:{o}
s_waitcnt lgkmcnt(0)
v_readfirstlane_b32 s60, v{vd}
s_sub_u32 s49, s49, 1
s_cmp_eq_u32 s49, 0
s_cbranch_scc1 {out}
s_cmp_{cmp}_u32 s60, {val}
s_cbranch_scc1 L_{tag}""")

def crit(sf="sc1", lf="", cf="", wql=False, XX=()):
    p = Prog()
    O, X, U, D, T = 32, 44, 68, 80, 20
    vx, vy, vq, vq2, va, vb, vw, vf = 4, 5, 6, 7, 8, 9, 10, 11
    p(f"""L_pc:
v_and_b32 v12, 7, v2
v_lshrrev_b32 v13, 3, v2
v_mul_u32_u24 v{vx}, 1152, v12
v_lshl_add_u32 v{vx}, v13, 4, v{vx}
s_mul_i32 s59, s2, 9216
s_mul_i32 s60, s16, 384
s_add_u32 s59, s59, s60
s_lshr_b32 s17, s2, 3
s_and_b32 s18, s2, 7
s_mul_i32 s33, s18, 3
s_add_u32 s33, s33, s16
s_mul_i32 s18, s33, 3
s_mul_i32 s33, s33, {24*3456}
s_mul_i32 s60, s17, 36
s_add_u32 s33, s33, s60
s_mul_i32 s19, s16, 5120
v_and_b32 v{T}, 3, v2
v_lshrrev_b32 v{T+1}, 2, v2
v_lshrrev_b32 v{T+2}, 5, v2
v_mul_u32_u24 v{vq}, 3456, v{T+1}
v_lshl_add_u32 v{vq}, v{T}, 4, v{vq}
v_mul_u32_u24 v{vq2}, {8*3456 - 1152}, v{T+2}
v_sub_u32 v{vq2}, v{vq}, v{vq2}
v_mov_b32 v{T+3}, 0x40000000
v_cmp_eq_u32 vcc, 3, v{T}
v_cndmask_b32 v{vq}, v{vq}, v{T+3}, vcc
v_cndmask_b32 v{vq2}, v{vq2}, v{T+3}, vcc""")
    p(nst('p_0'))
    p("s_waitcnt lgkmcnt(0)\ns_mov_b32 s8, s4\ns_mov_b32 s9, s5")
    p(nst('p_ka'))
    srd(p, 12, 44, ACT); srd(p, 20, 46, 576*1728*2)
    def xl():
        for i in range(3): p(f"buffer_load_dwordx4 v[{O+4*i}:{O+4*i+3}], v{vx}, s[12:15], s59 offen offset:{i*128} {lf}")
    if 'al' in XX: p("s_and_b32 s33, s33, -16")
    if 'al128' in XX: p("s_and_b32 s33, s33, -128")
    if 'xco' in XX: p(f"v_mul_u32_u24 v{vx}, 1152, v13\nv_lshl_add_u32 v{vx}, v12, 4, v{vx}")
    if 'wqf' not in XX: xl()
    p("s_mov_b32 m0, s19")
    for u in range(3):
        p(f"buffer_load_dwordx4 v{vq}, s[20:23], s33 offen offset:{u*1024} {cf} lds", tag='q0')
        p(f"s_add_u32 s33, s33, {128 if u < 2 else 16*3456 - 256 - 3072}")
    p(f"buffer_load_dwordx4 v{vq2}, s[20:23], s33 offen offset:3072 {cf} lds", tag='q1')
    p(f"s_add_u32 m0, s19, 4096\ns_add_u32 s33, s33, {2304 + 3072}\ns_mov_b32 exec_hi, 0")
    p(f"buffer_load_dwordx4 v{vq2}, s[20:23], s33 offen {cf} lds", tag='q1')
    if 'wqf' in XX: p("s_mov_b64 exec, -1"); xl()
    p("s_mov_b64 exec, -1\ns_barrier")
    srd(p, 36, 6, 256)
    p(f"""s_or_b32 s60, s2, s16
s_cmp_eq_u32 s60, 0
s_cbranch_scc0 L_pc_nt
s_memrealtime s[60:61]
v_mov_b32 v{T+3}, 0
s_waitcnt lgkmcnt(0)
s_or_b32 s60, s60, 1
v_mov_b32 v{T+4}, s60
s_mov_b64 exec, 1
buffer_store_dword v{T+4}, v{T+3}, s[36:39], 0 offen sc1 ; @
s_mov_b64 exec, -1
L_pc_nt:""")
    p(nst('p_q'))
    p(f"""v_lshlrev_b32 v{vy}, 9, v13
v_lshl_add_u32 v{vy}, v12, 4, v{vy}
s_lshr_b32 s58, s2, 2
s_mul_i32 s58, s58, 36864
s_and_b32 s59, s2, 3
s_lshl_b32 s59, s59, 7
s_add_u32 s58, s58, s59
s_mul_i32 s59, s16, 12288
s_add_u32 s24, s58, s59
s_add_u32 s24, s24, {YF}
s_add_u32 s25, s24, 4096
s_add_u32 s26, s24, 8192
s_mul_i32 s27, s17, 73728
s_add_u32 s27, s27, {WQF}""")
    for k in range(3):
        p(f"""s_add_u32 s60, s18, {k}
s_lshr_b32 s61, s60, 1
s_lshl_b32 s61, s61, 11
s_and_b32 s60, s60, 1
s_lshl_b32 s60, s60, 9
s_add_u32 s61, s61, s60
s_add_u32 s{28+k}, s27, s61""")
    p(f"""s_lshl_b32 s32, s2, 4
s_add_u32 s32, s32, {FL1}
v_and_b32 v{vw}, 31, v2
v_lshlrev_b32 v{vw}, 4, v{vw}
v_lshl_add_u32 v{vw}, v{T+2}, 10, v{vw}
v_bfe_u32 v{T+3}, v2, 4, 1
v_lshl_add_u32 v{T+3}, v{T+3}, 2, v{T}
v_lshlrev_b32 v{T+4}, 3, v{T+3}
v_add_u32 v{va}, 1024, v{T+4}
v_subrev_u32 v{T+5}, 40, v{T+4}
v_cmp_gt_u32 vcc, 5, v{T+3}
v_cndmask_b32 v{va}, v{T+5}, v{va}, vcc
v_mov_b32 v{T+5}, 32
v_cmp_eq_u32 vcc, 7, v{T+3}
v_cndmask_b32 v{va}, v{va}, v{T+5}, vcc
v_add_u32 v{vb}, 2048, v{T+4}
v_subrev_u32 v{T+5}, 32, v{T+4}
v_cmp_gt_u32 vcc, 6, v{T+3}
v_cndmask_b32 v{vb}, v{T+5}, v{vb}, vcc
v_cmp_lt_u32 vcc, 31, v2
v_cndmask_b32 v{va}, v{va}, v{vb}, vcc
v_lshrrev_b32 v{vb}, 10, v{va}
v_lshlrev_b32 v{vb}, 9, v{vb}
v_sub_u32 v{vb}, v{va}, v{vb}
v_and_b32 v{T+1}, 3, v{T+1}
v_lshlrev_b32 v{T+1}, 6, v{T+1}
v_add_u32 v{T+1}, s19, v{T+1}
v_add_u32 v{va}, v{va}, v{T+1}
v_add_u32 v{vb}, v{vb}, v{T+1}
v_bfe_u32 v14, v2, 5, 1
v_lshl_add_u32 v14, v12, 1, v14
v_lshlrev_b32 v14, 4, v14
s_lshl_b32 s60, s16, 2
s_add_u32 s60, s60, {LX}
v_add_u32 v14, s60, v14
v_lshlrev_b32 v15, 5, v12
v_add_u32 v15, {LX}, v15
v_and_b32 v16, 24, v2
v_cmp_eq_u32 s[34:35], 0, v16
v_mov_b32 v17, 0
v_mov_b32 v18, {LC}
v_mov_b32 v19, 1
s_mov_b32 s49, 0x40000""")
    p(nst('p_iss'))
    XS = list(range(X, X + 24))
    for i in range(12): p(f"v_lshlrev_b32 v{X+2*i}, 16, v{O+i}\nv_and_b32 v{X+2*i+1}, 0xffff0000, v{O+i}")
    p(nst('p_x'))
    ARR = ["s_mov_b64 exec, 1", "ds_add_u32 v18, v19 offset:20", "s_mov_b64 exec, -1"]
    p.ext(ARR)
    p(f"v_add_f32 v24, v{XS[0]}, v{XS[1]}\nv_add_f32 v26, v{XS[2]}, v{XS[3]}\nv_mul_f32 v25, v{XS[0]}, v{XS[0]}\nv_mul_f32 v27, v{XS[1]}, v{XS[1]}")
    for k, x in enumerate(XS[4:]): p(f"v_add_f32 v{24 + 2*(k%2)}, v{24 + 2*(k%2)}, v{x}")
    for k, x in enumerate(XS[2:]): p(f"v_fmac_f32 v{25 + 2*(k%2)}, v{x}, v{x}")
    p(f"""v_add_f32 v24, v24, v26
v_add_f32 v25, v25, v27
v_permlane32_swap_b32 v24, v25
v_add_f32 v24, v24, v25
v_mov_b32 v25, v24
v_permlane16_swap_b32 v24, v25
v_add_f32 v24, v24, v25
v_add_f32 v24, v24, v24 row_ror:8
s_mov_b64 exec, s[34:35]
ds_write_b32 v14, v24
s_mov_b64 exec, -1""")
    p(nst('p_s1'))
    def wq():
        for k in range(3):
            for h in range(2):
                p(f"ds_read_b64_tr_b16 v[{D+4*k+2*h}:{D+4*k+2*h+1}], v{va if k < 2 else vb} offset:{(k*512 if k < 2 else 3072) + h*256}", needs=['q0' if k < 2 else 'q1'])
        p.ext(ARR)
        for k in range(3): p(f"buffer_store_dwordx4 v[{D+4*k}:{D+4*k+3}], v{vw}, s[8:11], s{28+k} offen {sf}")
    if not wql: wq()
    p(nst('p_wq'))
    p(off(f"""L_pc_sw:
ds_read_b128 v[20:23], v15
ds_read_b128 v[28:31], v15 offset:16
s_waitcnt lgkmcnt(0)
v_max3_u32 v24, v20, v21, v22
v_max3_u32 v25, v28, v29, v30
v_max_u32 v24, v24, v25
v_cmp_eq_u32 vcc, -1, v24
s_sub_u32 s49, s49, 1
s_cmp_eq_u32 s49, 0
s_cbranch_scc1 L_pc_sk
s_nop 2
s_cbranch_vccnz L_pc_sw
L_pc_sk:"""))
    p(nst('p_s2'))
    p("""v_add_f32 v20, v20, v21
v_add_f32 v28, v28, v29
v_add_f32 v20, v20, v22
v_add_f32 v28, v28, v30
v_mul_f32 v20, 0x3ae38e39, v20
v_mul_f32 v28, 0x3ae38e39, v28
v_fma_f32 v28, -v20, v20, v28
v_max_f32 v28, 0, v28
v_add_f32 v28, 0x3727c5ac, v28
v_rsq_f32 v28, v28""")
    for i in range(3):
        xs = XS[8*i:8*i+8]
        for x in xs: p(f"v_sub_f32 v{x}, v{x}, v20")
        for x in xs: p(f"v_mul_f32 v{x}, v{x}, v28")
        for k in range(4): p(f"v_cvt_pk_bf16_f32 v{U+4*i+k}, v{xs[2*k]}, v{xs[2*k+1]}")
        p(f"buffer_store_dwordx4 v[{U+4*i}:{U+4*i+3}], v{vy}, s[8:11], s{24+i} offen {sf}")
    if wql: wq()
    p(f"buffer_load_dword v{VN}, v17, s[36:39], 0 offen sc1")
    p(nst('p_st'))
    p("s_mov_b32 s49, 0x40000\ns_waitcnt vmcnt(0)")
    p(off(f"""L_pc_tg:
v_readfirstlane_b32 s61, v{VN}
s_sub_u32 s49, s49, 1
s_cmp_eq_u32 s49, 0
s_cbranch_scc1 L_pc_tk
s_cmp_eq_u32 s61, 0
s_cbranch_scc0 L_pc_tk
buffer_load_dword v{VN}, v17, s[36:39], 0 offen sc1
s_waitcnt vmcnt(0)
s_branch L_pc_tg
L_pc_tk:"""))
    p(f"""s_mov_b64 exec, 1
ds_add_rtn_u32 v20, v18, v19
s_waitcnt lgkmcnt(0)
v_readfirstlane_b32 s60, v20
s_cmp_eq_u32 s60, 2
s_cbranch_scc0 L_pc_ns
buffer_store_dword v{VN}, v17, s[8:11], s32 offen sc1 ; @
L_pc_ns:
s_mov_b64 exec, -1""")
    p(nst('p_sig'))
    p("s_branch L_a0")
    return p.finish()

NE, NO, NB = 160, 241, 4
def lane_off(T):
    return f"""v_and_b32 v{T}, 3, v2
v_bfe_u32 v{T+1}, v2, 2, 3
v_lshrrev_b32 v{T+2}, 5, v2
v_lshlrev_b32 v{T+2}, 6, v{T+2}
v_lshl_add_u32 v{T+2}, v{T}, 4, v{T+2}"""

def loader(sf="sc1", slf="nt", cf="", G1=0, G3=0, LA=6, XX=(), cp=0):
    T = 20
    p = Prog()
    p(f"""L_pl:
s_lshl_b32 s58, s2, 10
s_add_u32 s58, s58, {ZR}
s_add_u32 s59, s58, {LS}
v_mov_b32 v28, 0
v_mov_b32 v29, 0
v_mov_b32 v30, 0
v_mov_b32 v31, 0
{lane_off(T)}
v_mov_b32 v18, {LC}
s_waitcnt lgkmcnt(0)
s_mov_b32 s8, s4
s_mov_b32 s9, s5""")
    srd(p, 12, 44, ACT); srd(p, 24, 48, 576*576*2)
    p(SRDS(52))
    p(f"""buffer_store_dwordx4 v[28:31], v3, s[8:11], s58 offen {sf}
buffer_store_dwordx4 v[28:31], v3, s[8:11], s59 offen {sf}
s_barrier""")
    if cp:
        p(f"""s_getpc_b64 s[86:87]
L_cp:
s_lshr_b32 s60, s2, 3
s_mul_i32 s60, s60, {cp}
v_min_u32 v26, {cp - 1}, v2
v_add_u32 v26, s60, v26
v_lshlrev_b32 v26, 7, v26
s_mov_b32 s60, L_kend-L_cp-4
v_min_u32 v26, s60, v26
global_load_dword v25, v26, s[86:87]""")
    p(f"""s_cmp_lt_u32 s2, {NO}
s_cbranch_scc0 L_plx""")
    if G1: p(lspin('pl_g1', 18, 'lt', G1, 'L_pl_g1e', vd=27, o=20) + "\nL_pl_g1e:")
    p(f"s_cmp_lt_u32 s2, {NE}\ns_cbranch_scc0 L_plo")
    out = p.finish()
    p = Prog()
    p(f"""s_and_b32 s58, s2, 7
s_lshr_b32 s59, s2, 5
s_bfe_u32 s100, s2, 0x20003
s_cmp_lt_u32 s59, 4
s_cselect_b32 s59, s59, 8
s_mul_i32 s61, s58, 9
s_add_u32 s61, s61, s59
s_lshl_b32 s61, s61, 7
s_mul_i32 s68, s100, {9*16*9216}
s_add_u32 s68, s68, s61
v_mul_u32_u24 v{VS}, 9216, v{T+1}
v_add_u32 v{VS}, v{VS}, v{T+2}
v_lshlrev_b32 v{VB}, 1, v2""")
    for i in range(18):
        if i % 4 == 0: p(f"s_mov_b32 m0, {STG + (i//4)*4096}")
        p(f"buffer_load_dwordx4 v{VS}, s[64:67], s68 offen offset:{(i%4)*1024} {slf} lds", tag=f"e{i//2}")
        if i < 17: p(f"s_add_u32 s68, s68, {8*9216 - 1024 if i % 4 < 3 else 8*9216 + 3072}")
    p(f"buffer_load_ushort v{VB}, v{VB}, s[44:47], s61 offen")
    if 'nold' in XX: p.ins = [i for i in p.ins if not i.isdma]
    p(nst('p_sd'))
    p(dest_w1(T, VAG)); p(tr_addr(T, VT, STG, 10))
    p(f"v_mov_b32 v{C0}, 0\nv_mov_b32 v{C1}, 0\nv_mov_b32 v{VONE}, 0x3f803f80")
    if G3: p(lspin('pl_g3', 18, 'lt', 3, 'L_pl_g3e', vd=27) + "\nL_pl_g3e:")
    rd, st = [], []
    for b in range(9):
        for t in range(2):
            d = E + 4*((2*b + t) % 12)
            rd.append([I(f"ds_read_b64_tr_b16 v[{d+2*h}:{d+2*h+1}], v{VT} offset:{b*2048 + t*512 + h*256}", needs=[f"e{b}"]) for h in range(2)])
            sr = (87, 86)[t]
            st.append([f"buffer_store_dwordx4 v[{d}:{d+3}], v3, s[8:11], s{sr} offen {sf}"] + ([f"s_add_u32 s{sr}, s{sr}, s{88 + 2*t + b % 2}"] if b < 8 else []) +
                      [f"v_dot2c_f32_bf16 v{(C0, C1)[t]}, v{VONE}, v{d+q}" for q in range(4)])
    for x in rd[:LA]: p.ext(x)
    for i, x in enumerate(st):
        p.ext(x)
        if i + LA < len(rd): p.ext(rd[i + LA])
    p(fin_val(C0, C1, T, VB))
    p(f"""buffer_store_dwordx2 v[{T}:{T+1}], v{VAG}, s[8:11], s96 offen {sf}""")
    p(nst('p_ld'))
    p(f"""s_cmp_eq_u32 s96, s97
s_cbranch_scc1 L_a0
buffer_store_dwordx2 v[{T}:{T+1}], v{VAG}, s[8:11], s97 offen {sf}
s_branch L_a0""")
    if 'nost' in XX: p.ins = [i for i in p.ins if not i.op.startswith('buffer_store')]
    out += p.finish()
    p = Prog()
    p("L_plo:")
    WBK, WD = 28, 32
    for k in range(NB):
        p(f"""s_mul_i32 s62, s2, {NB}
s_sub_u32 s62, s62, {NB*NE - k}
{wo_idx(62)}
s_mul_i32 s68, s{WBK+k}, 144
s_mul_i32 s89, s69, 18
s_cmp_lt_u32 s69, 8
s_cselect_b32 s89, s89, 16
s_cselect_b32 s90, 4, 18
s_cselect_b32 s91, 2, 1
s_cselect_b32 s93, 8, 36
s_cselect_b32 s96, 3, 1
s_mul_i32 s90, s90, 1152
s_sub_u32 s90, s90, 1024
s_mul_i32 s93, s93, 1152
s_add_u32 s68, s68, s89
s_mul_i32 s68, s68, 1152
s_lshl_b32 s62, s60, 7
s_add_u32 s68, s68, s62
v_lshrrev_b32 v{T+4}, s91, v{T+1}
v_mul_u32_u24 v{VO}, s93, v{T+4}
v_and_b32 v{T+3}, s96, v{T+1}
v_mul_u32_u24 v{T+3}, 1152, v{T+3}
v_add3_u32 v{VO}, v{VO}, v{T+3}, v{T+2}
s_mov_b32 m0, {STG + k*2048}""".replace("s64", f"s{WBK+k}").replace("s65", "s69"))
        p(f"buffer_load_dwordx4 v{VO}, s[24:27], s68 offen {cf} lds", tag=f"o{k}")
        p("s_add_u32 s68, s68, s90")
        p(f"buffer_load_dwordx4 v{VO}, s[24:27], s68 offen offset:1024 {cf} lds", tag=f"o{k}")
        p(f"""s_mul_i32 s{WD+k}, s60, 72
s_add_u32 s{WD+k}, s{WD+k}, s61
s_lshl_b32 s{WD+k}, s{WD+k}, 10
s_add_u32 s{WD+k}, s{WD+k}, {WOF}""")
    if 'nold' in XX: p.ins = [i for i in p.ins if not i.isdma]
    p(nst('p_sd'))
    p(tr_addr(T, VT, STG, 10))
    p(f"v_and_b32 v{T+3}, 1, v{T+1}\nv_lshl_add_u32 v{T+2}, v{T+3}, 3, v{T+2}\nv_lshrrev_b32 v{T+1}, 1, v{T+1}\nv_add_u32 v{T+2}, {STG}, v{T+2}")
    for k in range(NB): p(f"v_add_u32 v{T+12+k}, s{WBK+k}, v{T+1}\nv_and_b32 v{T+12+k}, 3, v{T+12+k}\nv_lshl_add_u32 v{T+12+k}, v{T+12+k}, 4, v{T+2}")
    if G3: p(lspin('pl_g4', 18, 'lt', 3, 'L_pl_g4e', vd=27) + "\nL_pl_g4e:")
    for k in range(NB):
        for t in range(2):
            d = E + 8*k + 4*t
            for h in range(2): p(f"ds_read_b64_tr_b16 v[{d+2*h}:{d+2*h+1}], v{T+12+k} offset:{k*2048 + t*512 + h*256}", needs=[f"o{k}"])
    for k in range(NB):
        d = E + 8*k
        p(f"buffer_store_dwordx4 v[{d}:{d+3}], v3, s[8:11], s{WD+k} offen {sf}\ns_add_u32 s{WD+k}, s{WD+k}, {36*1024}\nbuffer_store_dwordx4 v[{d+4}:{d+7}], v3, s[8:11], s{WD+k} offen {sf}")
    p(nst('p_ld'))
    p("s_branch L_a0")
    if 'nost' in XX: p.ins = [i for i in p.ins if not i.op.startswith('buffer_store')]
    out += p.finish()
    p = Prog()
    p(f"""L_plx:
s_cmp_lt_u32 s2, {NO + 8}
s_cbranch_scc0 L_a0
s_mov_b32 s64, s56
s_mov_b32 s65, s57
s_and_b32 s58, s2, 7
s_mul_i32 s68, s58, {36*16*1152}
s_add_u32 s68, s68, {32*16*1152 + 8*128}
v_mul_u32_u24 v{VS}, 1152, v{T+1}
v_add_u32 v{VS}, v{VS}, v{T+2}""")
    for i in range(8):
        if i % 4 == 0: p(f"s_mov_b32 m0, {(S80 if A2[0] else STG) + (i//4)*4096}")
        p(f"buffer_load_dwordx4 v{VS}, s[64:67], s68 offen offset:{(i%4)*1024} {slf} lds")
        if i < 7: p(f"s_add_u32 s68, s68, {8*1152 - 1024 if i % 4 < 3 else 8*1152 + 3072}")
    return out + p.finish()

LVS, LVB, LAG, LF, LD = 248, 251, 249, 252, 152
LATE_KA = "s_load_dwordx4 s[96:99], s[0:1], 32\ns_load_dwordx2 s[86:87], s[0:1], 48"
def late_setup(T=112):
    return f"""s_mov_b32 s55, 0
s_cmp_eq_u32 s63, 0
s_cbranch_scc0 L_ld_e
s_and_b32 s58, s2, 7
s_lshr_b32 s60, s2, 3
s_lshr_b32 s59, s60, 2
s_and_b32 s100, s60, 3
s_lshl_b32 s61, s16, 5
s_sub_u32 s61, s61, 32
s_cmp_eq_u32 s16, 3
s_cselect_b32 s55, 16, 32
s_cmp_lt_u32 s60, s55
s_cselect_b32 s55, 2, 1
s_cselect_b32 s61, s61, 0
s_add_u32 s60, s60, s61
s_sub_u32 s61, s2, {NO}
s_cmp_lt_u32 s61, 8
s_cselect_b32 s61, 0, 1
s_add_u32 s61, s61, 80
s_cmp_eq_u32 s16, 0
s_cselect_b32 s60, s61, s60
s_mul_i32 s61, s60, 7282
s_lshr_b32 s61, s61, 16
s_mul_i32 s62, s61, 9
s_sub_u32 s62, s60, s62
s_cmp_lt_u32 s60, 81
s_cselect_b32 s55, s55, 0
s_cmp_eq_u32 s55, 1
s_cselect_b32 s59, s59, s62
s_cselect_b32 s100, s100, s61
s_cselect_b32 s69, 8, 1
s_cselect_b32 s60, 72, 4
s_cselect_b32 s61, 0, 36
s_cselect_b32 s62, 9, 0
s_mul_i32 s68, s100, s60
s_mul_i32 s61, s61, s58
s_add_u32 s68, s68, s61
s_mul_i32 s68, s68, {16*1152}
s_mul_i32 s61, s62, s58
s_add_u32 s61, s61, s59
s_lshl_b32 s61, s61, 7
s_add_u32 s68, s68, s61
s_mul_i32 s69, s69, 1152
{lane_off(T)}
v_mul_u32_u24 v{LVS}, s69, v{T+1}
v_add_u32 v{LVS}, v{LVS}, v{T+2}
v_lshlrev_b32 v{LVB}, 1, v2
s_lshl_b32 s69, s69, 3
s_sub_u32 s69, s69, 1024
s_mul_i32 s62, s16, 18432
s_add_u32 s62, s62, {55296 if A2[0] else STG}
{f"s_cmp_eq_u32 s16, 0{chr(10)}s_cselect_b32 s62, {S80}, s62" if A2[0] else ""}
s_mov_b32 s90, {576*4608*2}
s_mov_b32 s91, 0x20000
s_cmp_eq_u32 s55, 1
s_waitcnt lgkmcnt(0)
s_cselect_b32 s88, s96, s86
s_cselect_b32 s89, s97, s87
s_mov_b32 s44, s98
s_mov_b32 s45, s99
s_mov_b32 s46, {4608*2}
s_mov_b32 s47, 0x20000"""

def late_dmas(slf="nt", XX=()):
    L = ["s_cmp_eq_u32 s55, 0", "s_cbranch_scc1 L_ld_e", "s_cmp_eq_u32 s16, 0", "s_cbranch_scc1 L_ld_e"]
    for i in range(18):
        if i == 8: L += ["s_cmp_eq_u32 s55, 1", "s_cbranch_scc0 L_ld_e", f"buffer_load_ushort v{LVB}, v{LVB}, s[44:47], s61 offen"]
        if i % 4 == 0: L += [f"s_add_u32 m0, s62, {(i//4)*4096}", "s_nop 0"]
        if 'nold' not in XX: L.append(f"buffer_load_dwordx4 v{LVS}, s[88:91], s68 offen offset:{(i%4)*1024} {slf} lds")
        if i < 17: L.append("s_add_u32 s68, s68, s69")
        if i % 4 == 3: L.append("s_addk_i32 s68, 4096")
    return off("\n".join(L + ["L_ld_e:"]))

LD2, F4O = 184, 0x6000
def late_pre(T=112, run=True, split=False):
    L2 = LD2 if split else LD
    out = "  s_mov_b32 s38, s55\n  s_cmp_eq_u32 s55, 0\n  s_cbranch_scc1 L_lp_e\n  s_cmp_eq_u32 s55, 1\n  s_cbranch_scc0 L_lp_2\n"
    vt, c0, c1, one = T + 4, T + 5, T + 6, T + 7
    p = Prog()
    p(tr_addr(T, vt, 's62', 10))
    p(f"v_mov_b32 v{c0}, 0\nv_mov_b32 v{c1}, 0\nv_mov_b32 v{one}, 0x3f803f80")
    rd = [[f"ds_read_b64_tr_b16 v[{LD+4*u+2*h}:{LD+4*u+2*h+1}], v{vt} offset:{(u//2)*2048 + (u%2)*512 + h*256}" for h in range(2)] for u in range(18)]
    for x in rd[:7]: p.ext(x)
    p(dest_w1(T, LAG))
    for u in range(18):
        p.ext([f"v_dot2c_f32_bf16 v{(c0, c1)[u%2]}, v{one}, v{LD+4*u+q}" for q in range(4)])
        if u + 7 < 18: p.ext(rd[u + 7])
    p(fin_val(c0, c1, LF, LVB))
    p("s_branch L_lp_e")
    out += p.finish()
    p = Prog()
    p("L_lp_2:")
    p(tr_addr(T, vt, 's62', 8))
    for u in range(8):
        for h in range(2): p(f"ds_read_b64_tr_b16 v[{L2+4*u+2*h}:{L2+4*u+2*h+1}], v{vt} offset:{(u//2)*2048 + (u%2)*512 + h*1024}")
    p(f"""s_and_b32 s62, s59, 1
s_lshl_b32 s62, s62, 1
s_lshl_b32 s60, s58, 2
s_add_u32 s62, s62, s60
s_mul_i32 s62, s62, {WB}
s_add_u32 s62, s62, {WSTR}
s_lshr_b32 s68, s59, 1
s_add_u32 s61, s68, 1
s_and_b32 s61, s61, 3
s_lshl_b32 s61, s61, 4
s_add_u32 s61, s61, 265
s_cmp_eq_u32 s59, 8
s_cselect_b32 s69, 2, 1
s_cselect_b32 s61, 257, s61
s_cselect_b32 s101, 0, 1
s_mul_i32 s69, s69, {WB}
s_lshl_b32 s100, s100, 1""")
    W2D = [(86, 87, 88, 89), (90, 91, 96, 97)]
    for a0, a1, b0, b1 in W2D:
        p(f"""s_sub_u32 s60, s100, 8
s_cmp_lt_u32 s100, 8
s_cselect_b32 s{a0}, s100, s60
s_mul_i32 s{a0}, s{a0}, 9
s_add_u32 s{a0}, s{a0}, 167
s_add_u32 s{a0}, s{a0}, s68
s_lshl_b32 s99, s60, s101
s_add_u32 s99, s99, s61
s_cmp_lt_u32 s60, 8
s_cselect_b32 s{a0}, s99, s{a0}
s_cselect_b32 s99, 1, 5
s_lshl_b32 s99, s99, 10
s_cmp_eq_u32 s101, 0
s_cselect_b32 s99, {WB}, s99
s_cselect_b32 s98, 0, s99
s_lshl_b32 s{a0}, s{a0}, 10
s_add_u32 s{a0}, s{a0}, s62
s_add_u32 s{b0}, s{a0}, s99
s_add_u32 s{a1}, s{a0}, s69
s_add_u32 s{b1}, s{a1}, s99
s_sub_u32 s{b1}, s{b1}, s98
s_add_u32 s{a1}, s{a1}, s98
s_add_u32 s100, s100, 1""")
    if run:
        p("""s_sub_u32 s60, s88, s86
s_sub_u32 s61, s90, s88
s_sub_u32 s62, s89, s87
s_sub_u32 s91, s91, s89
s_mov_b32 s88, s60
s_mov_b32 s89, s61
s_mov_b32 s90, s62
s_mov_b32 s60, s86
s_mov_b32 s86, s87
s_mov_b32 s87, s60""")
    p("s_waitcnt lgkmcnt(0)")
    q = Prog()
    if run: q(f"""s_cmp_eq_u32 s55, 0
s_cselect_b32 s60, 0x40000000, 0
v_or_b32 v{LSA}, s60, v3
s_cmp_eq_u32 s55, 1
s_cselect_b32 s60, 0, 0x40000000
v_or_b32 v{LSB}, s60, v3
v_or_b32 v{LAG}, s60, v{LAG}""")
    return out + p.finish() + "L_lp_e:\n" + q.finish()

LSA, LSB = 254, 255
def late_stu(sf="sc1", n=1, XX=()):
    L = []
    for u in range(18):
        sr = (87, 86)[u % 2]
        g = [f"s_mov_b64 exec, s[{34 if u < 8 else 36}:{35 if u < 8 else 37}]"] if (u % n == 0 or u == 8) else []
        g.append(I(f"buffer_store_dwordx4 v[{LD+4*u}:{LD+4*u+3}], v{LSA if u < 8 else LSB}, s[8:11], s{sr} offen {sf}", tag='xl'))
        if u % n == n - 1 or u == 17: g.append("s_mov_b64 exec, -1")
        if u < 16: g.append(f"s_add_u32 s{sr}, s{sr}, s{88 + 2*(u%2) + (u//2) % 2}")
        if u % n == 0: L.append(g)
        else: L[-1] += g
    L.append(["s_mov_b64 exec, s[36:37]"] + [I(f"buffer_store_dwordx2 v[{LF}:{LF+1}], v{LAG}, s[8:11], s{sr} offen {sf}", tag='xl') for sr in (96, 97)] + ["s_mov_b64 exec, -1"])
    if 'nost' in XX: L = [[x for x in g if not isinstance(x, I)] for g in L]
    if 'noex' in XX: L = [[x for x in g if isinstance(x, I) or 'exec' not in x] for g in L]
    return L

def late_w2(sf="sc1"):
    return off("\n".join(["s_cmp_eq_u32 s38, 2", "s_cbranch_scc0 L_lw2_e"] + [f"buffer_store_dwordx4 v[{LD2+4*u}:{LD2+4*u+3}], v3, s[8:11], s{sr} offen {sf}" for u, sr in enumerate((86, 87, 88, 89, 90, 91, 96, 97))] + ["L_lw2_e:"])).split("\n")

def late_st(tag, sf="sc1", XX=(), uni=True, vd=254, vo=255, split=False):
    st = lambda u, sr: f"buffer_store_dwordx4 v[{LD+4*u}:{LD+4*u+3}], v3, s[8:11], s{sr} offen {sf}"
    L1 = []
    for u in range(18):
        sr = (87, 86)[u % 2]
        L1 += [st(u, sr)] + ([f"s_add_u32 s{sr}, s{sr}, s{88 + 2*(u%2) + (u//2) % 2}"] if u < 16 else [])
    L2 = [st(u, sr) for u, sr in enumerate((86, 87, 88, 89, 90, 91, 96, 97))]
    if uni:
        L1 += [f"buffer_store_dwordx2 v[{LF}:{LF+1}], v{LAG}, s[8:11], s{sr} offen {sf}" for sr in (96, 97)]
        dm = lambda n: [f"v_mov_b32 v{vo}, 0x40000000", "s_mov_b64 exec, 1"] + [f"buffer_load_dword v{vd}, v{vo}, s[8:11], 0 offen"]*n + ["s_mov_b64 exec, -1", f"s_branch L_{tag}_e"]
        main = "\n".join(["s_cmp_eq_u32 s55, 1", f"s_cbranch_scc0 L_{tag}_o"] + L1 + [f"L_{tag}_e:"])
        ool = [f"L_{tag}_o:", "s_cmp_eq_u32 s55, 0", f"s_cbranch_scc1 L_{tag}_0"] + L2 + dm(12) + [f"L_{tag}_0:"] + dm(20)
        return main, "".join(("" if l.endswith(':') else "  ") + l + "\n" for l in ool)
    L1 += [f"buffer_store_dwordx2 v[{LF}:{LF+1}], v{LAG}, s[8:11], s96 offen {sf}", "s_cmp_eq_u32 s96, s97", f"s_cbranch_scc1 L_{tag}_e",
           f"buffer_store_dwordx2 v[{LF}:{LF+1}], v{LAG}, s[8:11], s97 offen {sf}", f"s_branch L_{tag}_e"]
    if 'nost' in XX: L1 = [x for x in L1 if not x.startswith('buffer')]; L2 = []
    if split: L2 = []
    return off("\n".join(["s_cmp_eq_u32 s55, 0", f"s_cbranch_scc1 L_{tag}_e", "s_cmp_eq_u32 s55, 1", f"s_cbranch_scc0 L_{tag}_2"] + L1 + [f"L_{tag}_2:"] + L2 + [f"L_{tag}_e:"])), ""

HEAD = f"""  v_lshlrev_b32 v20, 2, v2
  v_mov_b32 v21, -1
  v_mov_b32 v22, 0
  v_add_u32 v20, {LX}, v20
  ds_write_b32 v20, v21
  ds_write_b32 v20, v22 offset:256
  v_mov_b32 v7, 0
  v_mov_b32 v13, 0
  v_mov_b32 v{LAG}, 0
  s_mov_b32 s3, 0
  s_cmp_eq_u32 s16, 3
  s_cbranch_scc1 L_pl
"""

def a0_go(two=False):
    return f"""s_lshl_b32 s56, s19, {8 if two else 9}
s_lshl_b32 s57, s20, {8 if two else 7}
s_sub_u32 s57, s57, {256 if two else 512}
v_mov_b32 v161, s56
v_mov_b32 v162, s57
v_cmp_lt_u32 vcc, {15 if two else 31}, v2
v_cndmask_b32 v161, v161, v162, vcc
v_add_u32 v161, v161, v3
s_mov_b32 s56, {FL1}
v_mov_b32 v162, {TAGL if two else LC + 16}
s_and_b32 s57, s2, 7
s_lshl_b32 s57, s57, 10
s_add_u32 s57, s57, {PFL}
s_lshl_b32 s58, s2, 2
s_add_u32 s58, s58, {PFL}
s_mov_b32 s49, 0x40000
s_cmp_eq_u32 s16, 0
s_cbranch_scc0 L_a0p_go
ds_write_b32 v162, v{VN} ; @
s_mov_b32 exec_hi, {0 if two else 0xff}
L_a0p_poll:
buffer_load_dword v250, v161, s[8:11], s56 offen sc1 ; @
s_waitcnt vmcnt(0) lgkmcnt(0) ; @
v_cmp_ne_u32 vcc, v250, v{VN}
s_nop 4
s_cbranch_vccz L_a0p_ok
s_sub_u32 s49, s49, 1
s_cmp_eq_u32 s49, 0
s_cbranch_scc0 L_a0p_poll
L_a0p_ok:
s_mov_b64 exec, -1
L_a0p_go:
s_barrier"""

def fchk(n, v, sa, tag):
    CHK = [f"v_xor_b32 v{v+i}, {tag}, v{v+i}" for i in range(4)] + [f"v_or3_b32 v{v}, v{v}, v{v+1}, v{v+2}", f"v_or_b32 v{v}, v{v}, v{v+3}", f"v_cmp_ne_u32 vcc, 0, v{v}"]
    LD = f"buffer_load_dwordx4 v[{v}:{v+3}], v3, s[8:11], s{sa} offen sc1"
    LOOP = f"L_{n}_w:\n  s_mov_b32 s49, 0x40000\nL_{n}_l:\n" + "".join("  " + l + "\n" for l in ["s_nop 15"]*8 + [LD, "s_waitcnt vmcnt(0)"] + CHK + ["s_sub_u32 s49, s49, 1", "s_cmp_eq_u32 s49, 0", f"s_cbranch_scc1 L_{n}_k", "s_nop 2", f"s_cbranch_vccnz L_{n}_l", f"s_branch L_{n}_k"])
    return LD, CHK, [f"s_cbranch_vccnz L_{n}_w", f"L_{n}_k:"], LOOP
def fsig(n, vd, va, sa):
    return ["s_cmp_eq_u32 s16, 0", f"s_cbranch_scc0 L_{n}_ns", f"v_mov_b32 v{vd}, s3", f"v_lshlrev_b32 v{va}, 10, v2", "s_mov_b64 exec, 0xff", f"buffer_store_dword v{vd}, v{va}, s[8:11], s{sa} offen sc1 ; @", "s_mov_b64 exec, -1", f"L_{n}_ns:"]
F3O = 0x2000
```

```python
from asmlib import *
from layout import *
from k0 import srd

def gelu8(x, k1, k3, tmp, out, grp=4):
    L = []
    for b in range(0, 8, grp):
        idx = range(b, b + grp)
        T = lambda i: tmp + i
        for i in idx: L.append(f"v_mul_f32 v{T(i)}, v{x+i}, v{x+i}")
        for i in idx: L.append(f"v_fma_f32 v{T(i)}, v{T(i)}, v{k3}, v{k1}")
        for i in idx: L.append(f"v_mul_f32 v{T(i)}, v{T(i)}, v{x+i}")
        for i in idx: L.append(f"v_exp_f32 v{T(i)}, v{T(i)}")
        for i in idx: L.append(f"v_add_f32 v{T(i)}, 1.0, v{T(i)}")
        for i in idx: L.append(f"v_rcp_f32 v{T(i)}, v{T(i)}")
        for i in idx: L.append(f"v_mul_f32 v{T(i)}, v{T(i)}, v{x+i}")
        for i in list(idx)[::2]: L.append(f"v_cvt_pk_bf16_f32 v{out+i//2}, v{T(i)}, v{T(i+1)}")
    return L

def c_kernel(DW=32, D0=12, YCH=4, stfl="sc1", dbg=False, RAMP=3, X=(), merge=True, YLA=0, amap=2, align=None, s16=False, mk=None, fused=False, NPRE=31, yfl='', wfl='', rev=False, poll=None, PD=1, dz=False, fine=False, ds=None, armw=(0.0, 1.0), prein=False, wpf=None, arms=18, armp=0, sigp=0.5, armf='sc1', OW=30, EP=2, EW=30, f3=None, bcrep=(0, 1), sigA=None, OW0=None, OW1=None, pkA=None, own=False, sigA1=None, OW3=None, spl=None, LP=0, dl=None, snake=0, gat=0):
    name = "c_kernel"
    p = Prog()
    YB, HB, XB = 0, 73728, 147456
    vL = 3
    vRD = 6
    vHW = 10
    vXW, vXR = 13, 14
    vK1, vK3 = 16, 18
    TMP, PK = 24, 32
    A_, B_, C_, D_, OS, N2, N3 = 40, 72, 104, 136, 168, 184, 216
    aODD, aAUG, aLR, aT, aW = 0, 32, 40, 64, 128
    NL = 3
    assert aW + 4*DW <= 256
    wslot = (lambda g: aW + 4*(DW - 1 - g % DW)) if rev else (lambda g: aW + 4*(g % DW))
    if not fused:
        p(f"""s_cmp_lt_u32 s2, 256
s_cbranch_scc1 L_{name}_go
s_endpgm
L_{name}_go:
s_load_dwordx2 s[4:5], s[0:1], 80""")
        if dbg: stamp_init(p)
    else: D0 = NPRE
    AM = "s_and_b32 s17, s2, 7\ns_lshr_b32 s18, s2, 3" if not amap else "s_bfe_u32 s17, s2, 0x30003\ns_and_b32 s18, s2, 7\ns_lshl_b32 s18, s18, 2\ns_lshr_b32 s19, s2, 6\ns_add_u32 s18, s18, s19"
    if amap == 2: AM = "s_and_b32 s17, s2, 3\ns_lshl_b32 s17, s17, 1\ns_bfe_u32 s18, s2, 0x10003\ns_add_u32 s17, s17, s18\ns_bfe_u32 s18, s2, 0x10002\ns_lshl_b32 s18, s18, 4\ns_lshr_b32 s19, s2, 4\ns_add_u32 s18, s18, s19"
    if amap == 4: AM = "s_and_b32 s17, s2, 1\ns_lshl_b32 s17, s17, 2\ns_bfe_u32 s18, s2, 0x20003\ns_add_u32 s17, s17, s18\ns_bfe_u32 s18, s2, 0x20001\ns_lshl_b32 s18, s18, 3\ns_lshr_b32 s19, s2, 5\ns_add_u32 s18, s18, s19"
    p(f"""v_lshrrev_b32 v1, 6, v0
v_and_b32 v2, 63, v0
v_readfirstlane_b32 s16, v1
v_lshlrev_b32 v{vL}, 4, v2
{AM}
s_and_b32 s19, s16, 1
s_lshr_b32 s20, s16, 1
s_lshl_b32 s30, s17, 2
s_add_u32 s30, s30, s16
s_mul_i32 s30, s30, {WSN*1024}
s_add_u32 s30, s30, {WSTR}
s_mul_i32 s25, s18, 73728
s_lshl_b32 s26, s16, 10
s_add_u32 s27, s25, s26
s_add_u32 s27, s27, {X1F}{lay('s27')}
s_add_u32 s28, s27, 36864
s_add_u32 s31, s26, 36864
s_lshl_b32 s21, s18, 1
s_xor_b32 s29, s19, 1
s_add_u32 s45, s21, s19
s_add_u32 s46, s21, s29
s_lshl_b32 s47, s45, 8
s_lshl_b32 s48, s46, 8
s_add_u32 s47, s47, {ST}{lay('s47')}
s_add_u32 s48, s48, {ST}{lay('s48')}
v_lshlrev_b32 v15, 2, v2""")
    if not fused:
        p(f"""s_mov_b32 s10, {WSSZ}
s_mov_b32 s11, 0x20000
s_waitcnt lgkmcnt(0)
s_mov_b32 s8, s4
s_mov_b32 s9, s5""")
    else:
        pre_setup = AM.replace("s17", "s64").replace("s18", "s65").replace("s19", "s66").split("\n") + f"""s_lshl_b32 s64, s64, 2
s_add_u32 s64, s64, s16
s_mul_i32 s64, s64, {WSN*1024}
s_add_u32 s64, s64, {WSTR}
s_lshl_b32 s65, s65, {9 if poll else 7}
s_add_u32 s65, s65, {CNT + bcrep[0]}{lay('s65')}""".split("\n") + ([f"s_and_b32 s66, s2, {bcrep[1] - 1}", "s_lshl_b32 s66, s66, 14", "s_add_u32 s65, s65, s66"] if bcrep[1] > 1 else [])
        if f3 is not None:
            import kq
            f3 = dict(f3); F3S = f3.pop('S', 1); F3L = f3.pop('L', 84); F3P = f3.pop('P', 114); F3W = f3.pop('W', (12, 50)); F3H = f3.pop('H', 0); F4 = f3.pop('W2', None)
            p(f"s_and_b32 s60, s2, 7\ns_lshl_b32 s60, s60, 10\ns_add_u32 s60, s60, {kq.PFL + kq.F3O}\ns_lshl_b32 s61, s2, 2\ns_add_u32 s61, s61, {kq.PFL + kq.F3O}")
        if LP:
            import kq
            L = ["s_cmp_eq_u32 s16, 0", "s_cbranch_scc1 L_lp_skip", f"s_add_u32 s50, s64, {(NPRE - (NPRE - 1)//4*4)*1024}", "s_mul_i32 s51, s16, 18432", f"s_add_u32 s51, s51, {kq.STG}",
                 f"s_mul_i32 s52, s16, {WSN*1024 - 5120}", "s_sub_u32 s52, s50, s52", "s_sub_u32 s52, s52, 5120", "s_mul_i32 s53, s16, 5120", f"s_add_u32 s53, s53, {HB - 5120}"]
            own_ = []; z = []
            for i in range(LP):
                if i % 4 == 0: own_.append([f"s_add_u32 m0, s51, {i*1024}"] + ([f"s_addk_i32 s50, 4096"] if i else ["s_nop 0"]))
                own_[-1].append(f"buffer_load_dwordx4 v{vL}, s[8:11], s50 offen offset:{(i%4)*1024} {wfl} lds")
            for i in range(6):
                if i % 4 == 0: z.append([f"s_add_u32 m0, s53, {i*1024}"] + ([f"s_addk_i32 s52, 4096"] if i else ["s_nop 0"]))
                z[-1].append(f"buffer_load_dwordx4 v{vL}, s[8:11], s52 offen offset:{(i%4)*1024} {wfl} lds")
            for x in own_[:1] + z[:1] + own_[1:2] + z[1:] + own_[2:]: L += x
            p(kq.off("\n".join(L + ["L_lp_skip:"])))
            p(f"s_mul_i32 s51, s16, 18432\ns_add_u32 s51, s51, {kq.STG}\ns_cmp_eq_u32 s16, 0\ns_cselect_b32 s51, {HB}, s51\nv_add_u32 v{PK+7}, s51, v{vL}")
        if poll: p(f"s_mov_b32 s30, s64\nv_lshlrev_b32 v4, 7, v2\ns_mov_b32 s49, 0x40000\ns_cmp_eq_u32 s16, 0\ns_cbranch_scc0 L_bc_go\n" + poll(PD) + "\ns_barrier")
        else: p(f"""s_mov_b32 s30, s64
v_mov_b32 v4, 0
s_mov_b32 s49, 0x40000
s_cmp_eq_u32 s16, 0
s_cbranch_scc0 L_bc_go
L_bc_poll:
buffer_load_dword v5, v4, s[8:11], s65 offen sc1
s_waitcnt vmcnt(0)
v_readfirstlane_b32 s50, v5
s_sub_u32 s49, s49, 1
s_cmp_eq_u32 s49, 0
s_cbranch_scc1 L_bc_go
s_cmp_lt_u32 s50, 32
s_cbranch_scc1 L_bc_poll
L_bc_go:
s_barrier""")
        if dbg and not fine: p(stamp(2))
        p(nst('c_go'))
        if f3 is not None: f3c = kq.fchk('f3', 248, 60, 's3')
    steps = []
    def fr(acc, rts=(0, 1), first=False, ag=False, kk=None):
        return dict(m=[(acc + 16*rt, ag, rt, first) for rt in rts], kk=kk)
    for kk in range(36):
        f = [fr(A_, first=kk == 0), fr(B_, first=kk == 0)]
        if kk % 2 == 0: f.append(fr(aODD, first=kk == 0, ag=True))
        steps.append(dict(l=('Y', kk), f=f, ph='p1'))
    steps.append(dict(l=None, f=[fr(A_), fr(B_), fr(aODD, rts=(0,), ag=True)], ph='p1'))
    for kk in range(36):
        steps.append(dict(l=('Y', kk), f=[fr(C_, first=kk == 0), fr(D_, first=kk == 0)], ph='p2'))
    steps.append(dict(l=None, f=[fr(C_), fr(D_)], ph='p2'))
    korder = list(range(16)) + [32, 33, 34, 35]
    NACC = [A_, B_, N2, N3]
    for i, kk in enumerate(korder):
        f = [fr(NACC[n], first=i == 0) for n in range(4)]
        if kk % 2 == 0: f.append(fr(aODD, first=i == 0, ag=True))
        steps.append(dict(l=('H', kk), f=f, ph='q'))
    n_p1 = 37; n_p2 = 74; n_t = 94
    tstart = {}
    for n in (4, 3, 0, 1, 2):
        f = [fr(aODD, ag=True, kk=kk) for kk in range(16, 32, 2)] if n == 4 else [fr(NACC[n], kk=kk) for kk in range(16, 32)]
        tstart[n] = len(steps)
        for b in range(0, len(f), 4): steps.append(dict(l=None, f=f[b:b+4], ph='t'))
    def treg(kk, rt):
        i = (kk - 16) // 2
        if kk % 2 == 0: return 'a', aT + 8*i + 4*rt
        return 'v', C_ + 8*i + 4*rt
    frags = [(si, fi) for si, st in enumerate(steps) for fi in range(len(st['f']))]
    assert len(frags) == WSN
    issue = []
    ych_at = {}
    for c in range(36 // YCH):
        gi = next(g for g, (si, fi) in enumerate(frags) if si == c*YCH)
        ych_at.setdefault(max(0, gi - YLA), []).append(c)
    for g, (si, fi) in enumerate(frags):
        for c in ych_at.get(g, []):
            L = []
            for kk0 in range(c*YCH, (c+1)*YCH, 4):
                for rt in range(2):
                    L.append(f"s_add_u32 m0, s{(26, 31)[rt]}, {YB + kk0*1024}" if kk0 else f"s_mov_b32 m0, s{(26, 31)[rt]}")
                    L.append(I(f"buffer_load_dwordx4 v{vL}, s[8:11], s{27+rt} offen {yfl} lds", tag=f"y{c}"))
                    L.append(f"s_addk_i32 s{27+rt}, 4096")
            issue.append(('y', L, g))
        d = wslot(g)
        pre = ["s_addk_i32 s30, 4096"] if (g % 4 == 0 and g > 0) else []
        if NPRE <= g < NPRE + LP: issue.append(('w', pre + [I(f"ds_read_b128 a[{d}:{d+3}], v{PK+7} offset:{(g - NPRE)*1024}", tag=f"w{g}")], g))
        elif gat and g >= NPRE: issue.append(('w', pre + [I(f"buffer_load_dwordx4 a[{d}:{d+3}], v1, s[8:11], s30 offen offset:{(g%4)//2*2048 + (g%2)*128} {wfl}", tag=f"w{g}")], g))
        else: issue.append(('w', pre + [I(f"buffer_load_dwordx4 a[{d}:{d+3}], v{vL}, s[8:11], s30 offen offset:{(g%4)*1024} {wfl}", tag=f"w{g}")], g))
    if fused:
        pre_loads = [y for x in issue if x[0] == 'w' and x[2] < NPRE for y in x[1]]
        pre_loads = [(y.text if isinstance(y, I) else y).replace("s30", "s64") for y in pre_loads]
        pre_grp = [[(y.text if isinstance(y, I) else y).replace("s30", "s64") for y in x[1]] for x in issue if x[0] == 'w' and x[2] < NPRE]
        issue = [x for x in issue if not (x[0] == 'w' and x[2] < NPRE)]
    ip = 0
    def issue_upto(gmax):
        nonlocal ip
        L = []
        while ip < len(issue) and issue[ip][2] <= gmax:
            L += issue[ip][1]; ip += 1
        return L
    if gat: p(f"v_lshrrev_b32 v1, 5, v2\nv_mul_u32_u24 v1, {gat}, v1\nv_bfe_u32 v20, v2, 4, 1\nv_lshl_add_u32 v1, v20, 9, v1\nv_bfe_u32 v20, v2, 3, 1\nv_lshl_add_u32 v1, v20, 8, v1\nv_and_b32 v20, 7, v2\nv_lshl_add_u32 v1, v20, 4, v1")
    p.ext(issue_upto(D0 - 1))
    p(f"buffer_load_dword v22, v15, s[8:11], s47 offen {'sc1' if fused else ''}\nbuffer_load_dword v23, v15, s[8:11], s48 offen {'sc1' if fused else ''}")
    p(f"""s_mul_i32 s50, s19, {37*1024}
s_mul_i32 s51, s19, {35*1024}
v_add_u32 v{vRD}, s50, v{vL}
v_add_u32 v{vRD+1}, s51, v{vL}
v_subrev_u32 v{vRD+2}, s51, v{vL}
v_subrev_u32 v{vRD+3}, s50, v{vL}
v_add_u32 v{vRD+2}, 36864, v{vRD+2}
v_add_u32 v{vRD+3}, 36864, v{vRD+3}""")
    setup = f"""s_mul_i32 s50, s19, 36864
s_mul_i32 s51, s29, 36864
s_lshl_b32 s52, s16, 11
s_add_u32 s53, s50, s52
s_add_u32 s53, s53, {HB}
v_add_u32 v{vHW}, s53, v{vL}
s_add_u32 s53, s51, s52
s_add_u32 s53, s53, {HB}
v_add_u32 v{vHW+1}, s53, v{vL}
s_lshl_b32 s52, s20, 11
s_add_u32 s53, s50, s52
s_add_u32 s53, s53, {HB + 32*1024}
v_add_u32 v{vHW+2}, s53, v{vL}
s_lshl_b32 s52, s16, 12
s_add_u32 s53, s52, {XB}
v_add_u32 v{vXW}, s53, v{vL}
s_xor_b32 s52, s52, 4096
s_add_u32 s53, s52, {XB}
v_add_u32 v{vXR}, s53, v{vL}
s_mul_i32 s54, s17, {ACT}
s_add_u32 s54, s54, {PART}{lay('s54')}
s_mul_i32 s55, s45, 36864
s_mul_i32 s56, s46, 36864
s_add_u32 s55, s55, s54
s_add_u32 s56, s56, s54
s_lshl_b32 s57, s20, 11
s_add_u32 s57, s57, {16*2048}
s_add_u32 s57, s57, s55
s_lshl_b32 s58, s16, 11
s_add_u32 s55, s55, s58
s_add_u32 s56, s56, s58
s_mul_i32 s50, s2, 320
s_mul_i32 s51, s16, 80
s_add_u32 s50, s50, s51
s_add_u32 s50, s50, {KV}
v_mov_b32 v{TMP}, 0""".split("\n") + [["s_mov_b64 exec, 0xfffff", f"buffer_store_dword v{TMP}, v15, s[8:11], s50 offen", "s_mov_b64 exec, -1"]]
    if fused: setup = setup[:-6]
    statf = []
    for rt in range(2):
        s = 22 + rt; t = TMP
        statf += f"""v_mov_b32 v{t}, v{s}
v_permlane32_swap_b32 v{s}, v{t}
v_mul_f32 v{s}, 0x3ae38e39, v{s}
v_mul_f32 v{t}, 0x3ae38e39, v{t}
v_fma_f32 v{t}, -v{s}, v{s}, v{t}
v_max_f32 v{t}, 0, v{t}
v_mov_b32 v{t+1}, 0x3f800054
v_mov_b32 v{t+2}, 0x2edbe6ff
v_fma_f32 v{t}, v{t}, v{t+1}, v{t+2}
v_rsq_f32 v{t+1}, v{t}
v_mul_f32 v{t}, v{t}, v{t+1}
v_mul_f32 v{vK1+rt}, 0xc0135761, v{t+1}
v_mul_f32 v{t+2}, v{t+1}, v{t+1}
v_mul_f32 v{t+2}, v{t+2}, v{t+1}
v_mul_f32 v{vK3+rt}, 0xbdd2d3e8, v{t+2}
v_sub_f32 v{s}, 0, v{s}
v_cvt_pk_bf16_f32 v{t+3}, v{s}, v{t}
v_lshlrev_b32 v{t+4}, 16, v{t+3}
v_and_b32 v{t+5}, 0xffff0000, v{t+3}
v_sub_f32 v{t+4}, v{s}, v{t+4}
v_sub_f32 v{t+5}, v{t}, v{t+5}
v_cvt_pk_bf16_f32 v{t+6}, v{s}, v{t+4}
v_cvt_pk_bf16_f32 v{t+7}, v{s}, v{t+5}
v_accvgpr_write_b32 a{aAUG+4*rt}, v{t+6}
v_accvgpr_write_b32 a{aAUG+4*rt+1}, v{t+3}
v_accvgpr_write_b32 a{aAUG+4*rt+2}, v{t+6}
v_accvgpr_write_b32 a{aAUG+4*rt+3}, v{t+7}""".split("\n")
    pkc = [0]
    def gl(acc, rt, waddr, woff, tag):
        L = []
        for q in range(2):
            o = PK + 4*(pkc[0] % 2); pkc[0] += 1
            L += gelu8(acc + 8*q, vK1 + rt, vK3 + rt, TMP, o)
            L.append(I(f"ds_write_b128 v{waddr}, v[{o}:{o+3}] offset:{woff + q*1024}", tag=tag))
        return L
    xw = lambda tag: [I(f"ds_write_b128 v{vXW}, a[{aODD+16+4*i}:{aODD+19+4*i}] offset:{i*1024}", tag=tag) for i in range(4)]
    xr = [f"ds_read_b128 v[{OS+4*i}:{OS+4*i+3}], v{vXR} offset:{i*1024}" for i in range(4)]
    def xadd():
        L = []
        for b in range(0, 16, 4):
            for i in range(4): L.append(f"v_accvgpr_read_b32 v{TMP+i}, a{aODD+b+i}")
            for i in range(4): L.append(f"v_add_f32 v{OS+b+i}, v{OS+b+i}, v{TMP+i}")
        return L
    def gtile(role, acc, tag): return gl(acc, 0, vHW, role*8192, tag) + gl(acc + 16, 1, vHW + 1, role*8192, tag)
    fa = gtile(0, A_, 'hab'); h = len(fa) // 2
    seg = [xw('xw') + fa[:h] + [I("s_barrier", needs=['xw'])] + xr + fa[h:] + xadd() + gtile(1, B_, 'hab'),
           gl(OS, 0, vHW + 2, 0, 'ho') + gtile(2, C_, 'hcd') + gtile(3, D_, 'hcd')]
    hbar = {n_p2: 'hab', n_p2 + 16: 'ho', n_t: 'hcd'}
    def lread(si):
        st = steps[si]
        L = []
        if si in hbar:
            L.append(I("s_barrier", needs=[hbar[si]]))
            if si == n_p2:
                for i in range(4): L.append(f"v_add_u32 v{vRD+i}, {HB}, v{vRD+i}")
        if n_t <= si < n_t + 4:
            ks = [list(range(16, 24, 2)), list(range(24, 32, 2)), list(range(17, 24, 2)), list(range(25, 32, 2))][si - n_t]
            for kk in ks:
                for rt in range(2):
                    R, d = treg(kk, rt)
                    L.append(f"ds_read_b128 {R}[{d}:{d+3}], v{vRD + 2*rt + kk % 2} offset:{kk*1024}")
        if st['l'] is None: return L
        kind, kk = st['l']
        if kind == 'Y' and st['ph'] == 'p1' and kk % YCH == 0:
            sg = f3 is not None and kk // YCH == F3S
            L.append(I("s_barrier", needs=[f"y{kk//YCH}"] + (['xl'] if sg else [])))
            if sg: L += kq.fsig('f3', 20, 21, 61)
        for rt in range(2):
            d = aLR + 8*(si % NL) + 4*rt
            L.append(I(f"ds_read_b128 a[{d}:{d+3}], v{vRD + 2*rt + kk % 2} offset:{kk*1024}", tag=f"l{si}"))
        return L
    p.ext(lread(0)); p.ext(lread(1))
    if dbg and not fine: p(stamp(3 if fused else 1))
    p(nst('c_first'))
    g = 0
    G = []
    stepstart = {}
    cnt16 = {}
    for si, st in enumerate(steps):
        first_in_step = True
        for fi, fx in enumerate(st['f']):
            ms = fx['m']
            if snake and st['ph'] != 't' and (fi + (si if snake == 2 else 0)) % 2: ms = ms[::-1]
            w = wslot(g)
            for mi, (acc, ag, rt, first) in enumerate(ms):
                if st['ph'] == 't':
                    Rb, bb = treg(fx['kk'], rt)
                else:
                    Rb = 'a'; bb = (aLR + 8*(si % NL) + 4*rt) if st['l'] is not None else aAUG + 4*rt
                R = 'a' if ag else 'v'
                c = "0" if first else f"{R}[{acc}:{acc+15}]"
                needs = [f"w{g + len(st['f']) - 1}", f"l{si}"] if (merge and first_in_step and si > 0) else []
                grp = [I(f"v_mfma_f32_32x32x16_bf16 {R}[{acc}:{acc+15}], a[{w}:{w+3}], {Rb}[{bb}:{bb+3}], {c}", needs=needs)]
                if s16 and st['ph'] in s16:
                    cnt16[(R, acc)] = cnt16.get((R, acc), -1) + 1
                    if first: cnt16[(R, acc)] = 0
                    n = cnt16[(R, acc)]; a2 = acc + 8*(n % 2); b2 = bb ^ 4
                    cc = lambda a: "0" if n < 2 else f"{R}[{a}:{a+3}]"
                    G.append([I(f"v_mfma_f32_16x16x32_bf16 {R}[{a2}:{a2+3}], a[{w}:{w+3}], {Rb}[{bb}:{bb+3}], {cc(a2)}", needs=needs)])
                    grp = [I(f"v_mfma_f32_16x16x32_bf16 {R}[{a2+4}:{a2+7}], a[{w}:{w+3}], {Rb}[{b2}:{b2+3}], {cc(a2+4)}")]
                if first_in_step:
                    stepstart[si] = len(G) - (1 if s16 and st['ph'] in s16 else 0)
                    if si + 2 < len(steps): grp += lread(si + 2)
                    first_in_step = False
                if mi == len(ms) - 1:
                    depth = min(DW - 1, D0 + g // RAMP)
                    gm = g + depth
                    if f3 is not None and F3H: gm = min(gm, 92 + max(0, 2*(g - F3H + 1)))
                    if f3 is not None and F4 and F4.get('H'): gm = min(gm, 166 + max(0, 2*(g - F4['H'] + 1)))
                    grp += issue_upto(gm)
                G.append(grp)
            g += 1
    assert ip == len(issue)
    stepstart[len(steps)] = len(G)
    def outp(acc, sreg, tag=None, rt=0, lo=None):
        L = []
        for hf in range(2):
            o = PK + 4*(pkc[0] % 2); pkc[0] += 1
            src = acc + 8*hf
            for i in range(4): L.append(f"v_cvt_pk_bf16_f32 v{o+i}, v{src+2*i}, v{src+2*i+1}")
            if ds:
                for i in range(4): L.append(f"v_min_u32 v{o+i}, s44, v{o+i}")
            L += [f"v_permlane32_swap_b32 v{o}, v{o+2}", f"v_permlane32_swap_b32 v{o+1}, v{o+3}"]
            L.append(I(f"buffer_store_dwordx4 v[{o}:{o+3}], v{4 + rt if own else vL}, s[8:11], s{sreg} offen offset:{hf*1024} {stfl}", tag=tag))
            if own: L.append(f"ds_write_b128 v{vHW + rt if lo is not None else vHW + 2}, v[{o}:{o+3}] offset:{(lo or 0) + hf*1024}")
        return L
    def otile(n):
        acc = NACC[n]
        return [f"s_add_u32 s58, s55, {n*8192}", f"s_add_u32 s59, s56, {n*8192}"] + outp(acc, 58, f"o{n}", 0, n*8192) + outp(acc + 16, 59, f"o{n}", 1, n*8192)
    ts = {n: stepstart[tstart[n]] for n in tstart}
    plan = [(setup, 4, 40), (statf, 60, 120 if not (s16 and 'p1' in s16) else 200),
            (seg[0], stepstart[n_p1] + 2, stepstart[n_p2 - 2]),
            (seg[1], stepstart[n_p2 - 2], stepstart[n_t - 2]),
            (xw('xw2'), ts[3] + 2, ts[3] + 6),
            ([I("s_barrier", needs=['xw2'])] + xr + xadd() + outp(OS, 57), ts[3] + 12, ts[0]),
            (otile(3), ts[0] + 2, ts[1] if OW3 is None else ts[0] + 2 + OW3), (otile(0), ts[1] + 2, ts[2] if OW0 is None else ts[1] + 2 + OW0), (otile(1), ts[2] + 2, len(G) if OW1 is None else ts[2] + 2 + OW1)]
    if dl:
        os_ = outp(OS, 57); o3 = otile(3); o0 = otile(0); o1 = otile(1)
        plan = plan[:5] + [([I("s_barrier", needs=['xw2'])] + xr + xadd() + (os_ if dl[3] else []), ts[3] + 12, ts[0]), (([] if dl[3] else os_) + o3, ts[1] + dl[0], ts[1] + dl[1]),
                           (o0, ts[1] + max(2, dl[1]), ts[1] + dl[2]), (o1, ts[2] + 2, ts[2] + 2 + OW1)]
    if spl:
        tl = G[ts[2]:]; assert len(tl) == 32 and all(len(x) == 1 for x in tl)
        G[ts[2]:] = tl[0::2] + tl[1::2]
        plan.append((["s_add_u32 s58, s55, 16384"] + outp(NACC[2], 58, "o2", 0, 16384), ts[2] + 18, ts[2] + 18 + spl))
    if own:
        setup += [["v_bfe_u32 v4, v2, 3, 2", "s_and_b32 s50, s17, 3", "v_cmp_eq_u32 vcc, s50, v4", "v_mov_b32 v5, 0x40000000", f"v_cndmask_b32 v5, v{vL}, v5, vcc",
                   "s_lshr_b32 s50, s17, 2", "s_cmp_eq_u32 s50, s19", "s_cselect_b64 vcc, -1, 0", f"v_cndmask_b32 v4, v{vL}, v5, vcc", f"v_cndmask_b32 v5, v5, v{vL}, vcc"]]
    if sigA:
        setup += ["s_lshl_b32 s66, s18, 2", "s_add_u32 s66, s66, s16", "s_lshl_b32 s66, s66, 7", f"s_add_u32 s66, s66, {CNT + sigA[0]}", "s_add_u32 s66, s66, s63"]
        sgA = ["v_lshlrev_b32 v20, 14, v2", "v_mov_b32 v21, 1", f"s_mov_b64 exec, {(1 << sigA[1]) - 1}", I("buffer_atomic_add v21, v20, s[8:11], s66 offen", needs=['o0']), "s_mov_b64 exec, -1"]
        if sigA[2] is not None: G[ts[2] + sigA[2]] = G[ts[2] + sigA[2]] + sgA
        if sigA1:
            G[ts[1] + sigA1[1]] = G[ts[1] + sigA1[1]] + ["v_lshlrev_b32 v20, 14, v2", "v_mov_b32 v21, 1", f"s_add_u32 s65, s66, {sigA1[0] - sigA[0]}", f"s_mov_b64 exec, {(1 << sigA[1]) - 1}",
                                                         I("buffer_atomic_add v21, v20, s[8:11], s65 offen", needs=['o3']), "s_mov_b64 exec, -1"]
        if pkA is not None:
            setup += ["s_lshl_b32 s65, s18, 9", f"s_add_u32 s65, s65, {CNT + sigA[0]}", "s_add_u32 s65, s65, s63"]
            if sigA[1] > 1: setup += [f"s_and_b32 s64, s2, {sigA[1] - 1}", "s_lshl_b32 s64, s64, 14", "s_add_u32 s65, s65, s64"]
            G[len(G) - 1 - pkA] = G[len(G) - 1 - pkA] + ["v_lshlrev_b32 v22, 7, v2", "s_mov_b64 exec, 15", "buffer_load_dword v23, v22, s[8:11], s65 offen sc1 ; @", "s_mov_b64 exec, -1"]
    if ds:
        def mix(a, b, lo=0.0, hi=1.0):
            i0 = int(len(a)*lo); i1 = int(len(a)*hi); out = list(a[:i0]); n = i1 - i0; k = 0
            for i in range(n):
                out.append(a[i0 + i])
                while k < len(b) and (k + 0.5) * n <= (i + 1) * len(b): out.append(b[k]); k += 1
            return out + b[k:] + list(a[i1:])
        setup += [f"v_mov_b32 v{248+i}, -1" for i in range(4)] + ["v_mov_b32 v20, 0", "v_mov_b32 v21, 1", "s_mov_b32 s44, -2",
                  "s_lshl_b32 s66, s18, 7", f"s_add_u32 s66, s66, {CNT + 4096}"]
        arm = []
        st = lambda sr, o: I(f"buffer_store_dwordx4 v[248:251], v{vL}, s[8:11], s{sr} offen offset:{o} {armf}", tag='arm')
        for n in range(4):
            arm += [[f"s_add_u32 s58, s55, {n*8192}", st(58, 0)], st(58, 1024), [f"s_add_u32 s59, s56, {n*8192}", st(59, 0)], st(59, 1024)]
        arm += [st(57, 0), st(57, 1024)]
        sig = [["s_mov_b64 exec, 1", I("buffer_atomic_add v21, v20, s[8:11], s66 offen", needs=['arm']), "s_mov_b64 exec, -1"]]
        apoll = ["buffer_load_dword v252, v20, s[8:11], s66 offen sc1"]
        achk = [["v_readfirstlane_b32 s50, v252", "s_cmp_lt_u32 s50, 32", "s_cbranch_scc1 L_arm_w", "L_arm_k:"]]
        sS = [x for x in ds['setup'] if x.startswith('s_')]; sV = [x for x in ds['setup'] if not x.startswith('s_')]
        plan = [(setup, 4, 40), (statf, 60, 120), (arm[:armp], 120, stepstart[n_p1]),
                (mix(seg[0], arm[armp:arms], *armw), stepstart[n_p1] + 2, stepstart[n_p2 - 2]),
                (mix(mix(seg[1], sig, sigp, sigp + 0.05), arm[arms:], 0.0, sigp - 0.3), stepstart[n_p2 - 2], stepstart[n_t - 2]),
                (xw('xw2'), ts[3] + 2, ts[3] + 6), (apoll + sS, ts[3] + 6, ts[3] + 12),
                ([I("s_barrier", needs=['xw2'])] + xr + xadd() + outp(OS, 57), ts[3] + 12, ts[0]),
                (otile(3), ts[0] + 2, ts[0] + 2 + min(OW, 20)), (sV + ds['ld0'], ts[0] + 2 + min(OW, 20), ts[1]),
                (otile(0), ts[1] + 2, ts[1] + 2 + min(OW, 16 if prein else 30)), (ds['pre'] if prein else [], ts[1] + 2 + min(OW, 16 if prein else 30), ts[2])]
        ds['prein'] = prein
        if wpf:
            pfs = f"""s_lshr_b32 s50, s2, 3
s_lshl_b32 s50, s50, 2
s_add_u32 s50, s50, s16
s_and_b32 s51, s50, 7
s_and_b32 s52, s2, 3
s_lshl_b32 s52, s52, 3
s_add_u32 s51, s51, s52
s_mul_i32 s51, s51, {WSN*1024}
s_lshr_b32 s50, s50, 3
s_lshl_b32 s50, s50, 14
s_add_u32 s51, s51, s50
s_add_u32 s51, s51, {WSTR + (WSN - 256)*1024}
s_add_u32 s52, s51, 8192
v_lshlrev_b32 v253, 7, v2
buffer_load_dword v254, v253, s[8:11], s51 offen
buffer_load_dword v255, v253, s[8:11], s52 offen""".split("\n")
            plan = plan[:1] + [(pfs, wpf, wpf + 8)] + plan[1:] if wpf < 60 else plan[:2] + [(pfs, wpf, wpf + 8)] + plan[3:]
        o1 = otile(1)
        if EP <= 2: plan += [(achk, ts[2] + 1, ts[2] + 2), (mix(o1, ds['early']), ts[2] + 2, ts[2] + 2 + EW)]
        else: plan += [(o1, ts[2] + 2, ts[2] + EP), (achk + ds['early'], ts[2] + EP, min(len(G), ts[2] + EP + EW))]
    marks = {stepstart[n_p1]: 2, stepstart[n_p2]: 3, stepstart[n_t]: 4, ts[1]: 5}
    if fused: marks = {stepstart[n_p1]: 4, stepstart[n_t]: 5}
    if fine: marks = {}
    if mk: marks = {stepstart[x]: i + 2 for i, x in enumerate(mk)}
    for k, v in marks.items():
        if dbg: G[k] = [stamp(v)] + G[k]
    for nm, k in (('c_p1', stepstart[n_p1]), ('c_p2', stepstart[n_p2]), ('c_t', stepstart[n_t])):
        if nst(nm): G[k] = [nst(nm)] + G[k]
    for k in range(1, len(G)):
        if nst(f'c_g{k}'): G[k] = [nst(f'c_g{k}')] + G[k]
    if f3 is not None:
        gpos = {}
        for k, grp in enumerate(G):
            for x in grp:
                if isinstance(x, I) and x.tag and x.tag[0] == 'w' and x.tag[1:].isdigit(): gpos[int(x.tag[1:])] = k
        kb = F3P
        assert kb + 5 < gpos[93], gpos[93]
        G[F3L] = G[F3L] + [f3c[0]]

        for k, x in enumerate(f3c[1]): G[kb + k//2] = G[kb + k//2] + [x]
        G[kb + 5] = G[kb + 5] + f3c[2]
        if F4:
            f4c = kq.fchk('f4', 248, 60, 's3')
            G[kb + 6] = G[kb + 6] + [f"s_add_u32 s60, s60, {kq.F4O - kq.F3O}", f"s_add_u32 s61, s61, {kq.F4O - kq.F3O}"]
            W = F4.get('W', 122); kb = F4.get('P', 258)
            G[W] = G[W] + kq.late_w2()
            nx = 'w%d' % min(g for g, k in gpos.items() if k > W)
            sg = kq.fsig('f4', 20, 21, 61)
            if F4.get('S', 'xw') == 'xw':
                i = [k for k, x in enumerate(seg[0]) if isinstance(x, I) and x.op == 's_barrier'][0]
                seg[0][i].needs.append(nx); seg[0].insert(i + 1, sg)
            elif isinstance(F4['S'], int): G[F4['S']] = G[F4['S']] + [I("s_barrier", needs=[nx])] + sg
            else:
                for grp in G:
                    for i, x in enumerate(grp):
                        if isinstance(x, I) and x.op == 's_barrier' and F4['S'] in x.needs: x.needs.append(nx); grp[i+1:i+1] = sg; break
            assert kb + 5 < gpos[167], gpos[167]
            G[F4.get('L', 232)] = G[F4.get('L', 232)] + [f4c[0]]
            for k, x in enumerate(f4c[1]): G[kb + k//2] = G[kb + k//2] + [x]
            G[kb + 5] = G[kb + 5] + f4c[2]
    pos = 0
    for fill, a, b in plan:
        if 'nofill' in X: fill = [f for f in fill if isinstance(f, list) or not ((f if isinstance(f, I) else I(f)).kind in ('valu', 'trans'))]
        assert a >= pos
        for grp in G[pos:a]: p.ext(grp)
        p.ext(interleave(G[a:b], fill))
        pos = b
    for grp in G[pos:]: p.ext(grp)
    if dbg and fine: p(stamp(2))
    p(nst('c_end'))
    if sigA and sigA[2] is None: p.ext(sgA)
    p.ext(["s_add_u32 s59, s56, 16384"] + outp(NACC[2] + 16, 59, "o2", 1, 16384) if spl else otile(2))
    extra = ""
    if ds:
        extra = ds['fin'](p) + """L_arm_w:
  buffer_load_dword v252, v20, s[8:11], s66 offen sc1
  s_waitcnt vmcnt(0)
  v_readfirstlane_b32 s50, v252
  s_sub_u32 s49, s49, 1
  s_cmp_eq_u32 s49, 0
  s_cbranch_scc1 L_arm_k
  s_cmp_lt_u32 s50, 32
  s_cbranch_scc1 L_arm_w
  s_branch L_arm_k
"""
    if not dz:
        if dbg: p(stamp(6))
        if dbg: stamp_end(p, 7, name)
        p("s_endpgm")
    idx = {id(i): k for k, i in enumerate(p.ins)}
    for k, i in enumerate(p.ins):
        if i.op == 's_barrier':
            for t in i.needs:
                assert all(kk < k for kk, j in enumerate(p.ins) if j.tag == t), t

    if 'noarm' in X: p.ins = [i for i in p.ins if i.tag != 'arm']
    if 'nolds' in X: p.ins = [i for i in p.ins if not i.op.startswith('ds_read')]
    if 'nobar' in X: p.ins = [i for i in p.ins if i.op != 's_barrier']
    if 'now' in X: p.ins = [i for i in p.ins if not (i.op == 'buffer_load_dwordx4' and not i.isdma)]
    for x in X:
        if isinstance(x, tuple) and x[0] == 'skipw':
            sk = {f"w{g}" for g in x[1]}
            p.ins = [i for i in p.ins if i.tag not in sk]
    if 'noy' in X: p.ins = [i for i in p.ins if not i.isdma]
    if 'nost' in X: p.ins = [i for i in p.ins if not i.op.startswith('buffer_store_dwordx4')]
    t = p.finish(align) + extra
    if fused: return t, pre_setup, pre_loads, pre_grp, (f3c[3] + (f4c[3] if F4 else '') if f3 is not None else '')
    if align: print('c align', Prog.stats)
    return kernel(name, t, vgpr=256, agpr=256), f"; @launch kernel={name} grid=(256,1,1) block=(256,1,1) lds=163840\n"
```

```python
from asmlib import *
from asmlib import _ab
from layout import *
import kq

def gelu(x, n, k1, k3, tmp, out, grp=4):
    L = []
    for b in range(0, n, grp):
        idx = range(b, b + grp)
        T = lambda i: tmp + i
        for i in idx: L.append(f"v_mul_f32 v{T(i)}, v{x+i}, v{x+i}")
        for i in idx: L.append(f"v_fma_f32 v{T(i)}, v{T(i)}, v{k3}, v{k1}")
        for i in idx: L.append(f"v_mul_f32 v{T(i)}, v{T(i)}, v{x+i}")
        for i in idx: L.append(f"v_exp_f32 v{T(i)}, v{T(i)}")
        for i in idx: L.append(f"v_add_f32 v{T(i)}, 1.0, v{T(i)}")
        for i in idx: L.append(f"v_rcp_f32 v{T(i)}, v{T(i)}")
        for i in idx: L.append(f"v_mul_f32 v{T(i)}, v{T(i)}, v{x+i}")
        for i in list(idx)[::2]: L.append(f"v_cvt_pk_bf16_f32 v{out+i//2}, v{T(i)}, v{T(i+1)}")
    return L

def c16(DW=32, YCH=4, stfl="sc1", YLA=30, NPRE=31, yfl='', wfl='', poll=None, PD=1, f3=None, bcrep=(0, 1), sigA=None, OW1=28, LP=True, dl=(-16, 4, 24, 1),
        own=True, ST0=(120, 240), SU=(8, 80), MG=5, LRS=2, TR=(4, 6), S0=(4, 0), S1=(0, 0), grp=4, OP=1, NTL=8, HLD=None, **_):
    p = Prog()
    WB = WSN*1024
    YB, HB = 0, 73728
    vL, vWo, vW, vPA = 3, 1, 13, 15
    vRD, vHW, vHO = 6, 10, (12, 14)
    vST = (4, 5, 8, 9)
    vK1, vK3 = 16, 20
    TMP, PK = 24, 32
    vLP, vLPo = PK + 7, PK + 6
    A_, B_, C_, D_, OS, N2, N3 = 40, 72, 104, 136, 168, 184, 216
    aODD, aAUG, aLR, aT, aW = 0, 16, 24, 64, 128
    wslot = lambda g: aW + 4*(DW - 1 - g % DW)
    AM = "s_and_b32 s17, s2, 3\ns_lshl_b32 s17, s17, 1\ns_bfe_u32 s18, s2, 0x10003\ns_add_u32 s17, s17, s18\ns_bfe_u32 s18, s2, 0x10002\ns_lshl_b32 s18, s18, 4\ns_lshr_b32 s19, s2, 4\ns_add_u32 s18, s18, s19"
    p(f"""{AM}
s_and_b32 s19, s16, 1
s_lshr_b32 s20, s16, 1
s_mul_i32 s25, s18, 73728
s_lshl_b32 s26, s16, 10
s_add_u32 s27, s25, s26
s_add_u32 s27, s27, {X1F}{lay('s27')}
s_add_u32 s28, s27, 36864
s_add_u32 s31, s26, 36864
s_lshl_b32 s21, s18, 1
s_xor_b32 s29, s19, 1
s_add_u32 s45, s21, s19
s_add_u32 s46, s21, s29
s_lshl_b32 s47, s45, 8
s_lshl_b32 s48, s46, 8
s_add_u32 s47, s47, {ST}{lay('s47')}
s_add_u32 s48, s48, {ST}{lay('s48')}
v_lshlrev_b32 v15, 2, v2""")
    pre_setup = AM.replace("s17", "s64").replace("s18", "s65").replace("s19", "s66").split("\n") + f"""s_lshl_b32 s64, s64, 2
s_add_u32 s64, s64, s16
s_mul_i32 s64, s64, {WB}
s_add_u32 s64, s64, {WSTR - WB}
s_lshl_b32 s65, s65, 9
s_add_u32 s65, s65, {CNT + bcrep[0]}{lay('s65')}""".split("\n") + ([f"s_and_b32 s66, s2, {bcrep[1] - 1}", "s_lshl_b32 s66, s66, 14", "s_add_u32 s65, s65, s66"] if bcrep[1] > 1 else [])
    pre_setup += f"""v_bfe_u32 v11, v2, 4, 1
v_lshlrev_b32 v{vW}, 9, v11
v_bfe_u32 v11, v2, 3, 1
v_lshl_add_u32 v{vW}, v11, 8, v{vW}
v_and_b32 v11, 7, v2
v_lshl_add_u32 v{vW}, v11, 4, v{vW}
v_add_u32 v{vW}, {WB}, v{vW}
s_and_b32 s66, s16, 1
s_lshl_b32 s67, s66, 7
v_add_u32 v{vWo}, s67, v{vW}
s_mul_i32 s66, s66, {(-2*WB) & 0xffffffff}
s_add_u32 s66, s66, {WB}
v_lshrrev_b32 v11, 5, v2
v_mul_lo_u32 v15, v11, s66
v_add_u32 v{vWo}, v{vWo}, v15
v_mul_u32_u24 v11, 3072, v11
v_add_u32 v{vW}, v{vW}, v11""".split("\n")
    f3 = dict(f3); F3S = f3.pop('S', 1); F3L = f3.pop('L', 168); F3P = f3.pop('P', 228); F4 = f3.pop('W2')
    p(f"s_and_b32 s60, s2, 7\ns_lshl_b32 s60, s60, 10\ns_add_u32 s60, s60, {kq.PFL + kq.F3O}\ns_lshl_b32 s61, s2, 2\ns_add_u32 s61, s61, {kq.PFL + kq.F3O}")
    slots = []
    steps = []
    def sl(idx, acc, t, R='v', first=False, odd=False, aug=False, kk=None):
        return dict(idx=idx, acc=acc, t=t, R=R, first=first, odd=odd, aug=aug, kk=kk)
    od = lambda i: [sl(5*i + 2, OS, 0, first=i == 0, odd=True)]
    oda = [sl(92, OS, 0, aug=True, odd=True)]
    for i in range(18):
        b = 5*i; f = i == 0
        steps.append(dict(l=('Y', i), ph='p1', D=3072, f=[sl(b, A_, 0, first=f), sl(b, A_, 1, first=f), sl(b + 1, B_, 0, first=f), sl(b + 1, B_, 1, first=f)] + (od(i) if OP == 1 else [])))
    steps.append(dict(l=None, ph='p1', f=[sl(90, A_, 0, aug=True), sl(91, B_, 0, aug=True)] + (oda if OP == 1 else [])))
    for i in range(18):
        b = 93 + 4*i; f = i == 0
        steps.append(dict(l=('Y', i), ph='p2', D=2048, f=[sl(b, C_, 0, first=f), sl(b, C_, 1, first=f), sl(b + 1, D_, 0, first=f), sl(b + 1, D_, 1, first=f)] + (od(i) if OP == 2 else [])))
    steps.append(dict(l=None, ph='p2', f=(oda if OP == 2 else []) + [sl(165, C_, 0, aug=True), sl(166, D_, 0, aug=True)]))
    NACC = [A_, B_, N2, N3]
    TX = {3: 0, 0: 1, 1: 2, 2: 3}
    for i, ds in enumerate(list(range(8)) + [16, 17]):
        b = 167 + 9*i; f = i == 0
        steps.append(dict(l=('H', ds), ph='q', D=5120, f=[sl(b + n, NACC[n], t, first=f) for n in range(4) for t in range(2)] + [sl(b + 4, aODD, 0, R='a', first=f, odd=True)]))
    for i in range(8 - NTL):
        steps.append(dict(l=('H', 8 + i), ph='q', D=1024, f=[sl(265 + 16*TX[n] + 2*i, NACC[n], t) for n in (3, 0, 1, 2) for t in range(2)] + [sl(257 + i, aODD, 0, R='a', odd=True)]))
    n_p1, n_p2, n_t = 19, 38, len(steps)
    T0 = 8 - NTL
    tstart = {}
    tstart[4] = len(steps)
    for b in range(0, NTL, 4): steps.append(dict(l=None, ph='t', D=1024, f=[sl(257 + T0 + i, aODD, 0, R='a', odd=True, kk=i) for i in range(b, min(b + 4, NTL))]))
    for n in (3, 0, 1, 2):
        tstart[n] = len(steps)
        for b in range(0, NTL, 2): steps.append(dict(l=None, ph='t', D=1024, f=[sl(265 + 16*TX[n] + 2*(T0 + i), NACC[n], t, kk=i) for i in range(b, min(b + 2, NTL)) for t in range(2)]))
    frags = [(si, fi) for si, st in enumerate(steps) for fi in range(len(st['f']))]
    assert len(frags) == WSN
    def treg(i, o):
        return ('a', aT + 16*(i//2) + 4*o) if i % 2 == 0 else ('v', C_ + 16*(i//2) + 4*o)
    LP0 = 30; LPN = 15
    inlp = (lambda g: NPRE <= g < 45) if OP == 1 else (lambda g: 32 <= g < 48)
    issue = []; ych_at = {}
    for c in range(36 // YCH):
        gi = next(g for g, (si, fi) in enumerate(frags) if si == c*YCH//2)
        ych_at.setdefault(max(0, gi - YLA), []).append(c)
    cur = [0, 0]; dcur = 3072
    for g, (si, fi) in enumerate(frags):
        for c in ych_at.get(g, []):
            L = []
            for kk0 in range(c*YCH, (c+1)*YCH, 4):
                for rt in range(2):
                    L.append(f"s_add_u32 m0, s{(26, 31)[rt]}, {YB + kk0*1024}" if kk0 else f"s_mov_b32 m0, s{(26, 31)[rt]}")
                    L.append(I(f"buffer_load_dwordx4 v{vL}, s[8:11], s{27+rt} offen {yfl} lds", tag=f"y{c}"))
                    L.append(f"s_addk_i32 s{27+rt}, 4096")
            issue.append(('y', L, g))
        x = steps[si]['f'][fi]; d = wslot(g); idx = x['idx']; L = []
        if g == NPRE: cur[1] = cur[0]
        if LP and inlp(g):
            lo = (idx - LP0)*1024 if OP == 1 else (si - 8)*4096 + (idx % 5)*1024
            L.append(I(f"ds_read_b128 a[{d}:{d+3}], v{vLPo if x['odd'] else vLP} offset:{lo + x['t']*128}", tag=f"w{g}"))
            issue.append(('w', L, g)); continue
        k = 1 if x['odd'] and g >= NPRE else 0; sp = (30, 64)[k]
        if idx // 4 != cur[k]:
            dd = (idx//4 - cur[k])*4096
            L.append(f"s_addk_i32 s{sp}, {dd}" if abs(dd) < 32768 else f"s_add_u32 s{sp}, s{sp}, {dd & 0xffffffff}"); cur[k] = idx // 4
        o = (idx % 4)*1024
        if x['aug']:
            if x['odd']: L += ["s_lshl_b32 s50, s19, 7", f"s_add_u32 s50, s50, s{sp}", I(f"buffer_load_dwordx2 a[{d}:{d+1}], v{vPA}, s[8:11], s50 offen offset:{o} {wfl}", tag=f"w{g}")]
            else: L += [I(f"buffer_load_dwordx2 a[{d+2*t}:{d+2*t+1}], v{vPA}, s[8:11], s30 offen offset:{o + 128*t} {wfl}", tag=f"w{g}") for t in range(2)]
        else:
            if not x['odd'] and steps[si]['D'] != dcur:
                dn = steps[si]['D']
                L += ["s_mov_b32 exec_lo, 0", f"v_add_u32 v{vW}, {(dn - dcur) & 0xffffffff}, v{vW}", "s_mov_b32 exec_lo, -1"]; dcur = dn
            L.append(I(f"buffer_load_dwordx4 a[{d}:{d+3}], v{vWo if x['odd'] else vW}, s[8:11], s{sp} offen offset:{o + 128*x['t']} {wfl}", tag=f"w{g}"))
        issue.append(('w', L, g))
    pre_grp = [[(y.text if isinstance(y, I) else y).replace("s30", "s64") for y in x[1]] for x in issue if x[0] == 'w' and x[2] < NPRE]
    padv = sum(int(y.split(',')[1]) for x in pre_grp for y in x if y.startswith('s_addk'))
    issue = [x for x in issue if not (x[0] == 'w' and x[2] < NPRE)]
    if LP:
        ld = lambda sr, o: f"buffer_load_dwordx4 v{vL}, s[8:11], s{sr} offen offset:{o} {wfl} lds"
        own_ = []; z = []
        if OP == 1:
            L = ["s_cmp_eq_u32 s16, 0", "s_cbranch_scc1 L_lp_skip", f"s_add_u32 s50, s64, {WB + LP0*1024 - padv}", "s_mul_i32 s51, s16, 18432", f"s_add_u32 s51, s51, {kq.STG}",
                 f"s_mul_i32 s52, s16, {WB - 5120}", "s_sub_u32 s52, s50, s52", "s_sub_u32 s52, s52, 5120", "s_mul_i32 s53, s16, 5120", f"s_add_u32 s53, s53, {HB - 5120}"]
            for i in range(LPN):
                if i % 4 == 0: own_.append([f"s_add_u32 m0, s51, {i*1024}"] + (["s_addk_i32 s50, 4096"] if i else ["s_nop 0"]))
                own_[-1].append(ld(50, (i%4)*1024))
            for i in range(5):
                if i % 4 == 0: z.append([f"s_add_u32 m0, s53, {i*1024}"] + (["s_addk_i32 s52, 4096"] if i else ["s_nop 0"]))
                z[-1].append(ld(52, (i%4)*1024))
            for x in own_[:1] + z[:1] + own_[1:2] + z[1:] + own_[2:]: L += x
        else:
            L = ["s_cmp_eq_u32 s16, 0", "s_cbranch_scc1 L_lp_skip", f"s_add_u32 s50, s64, {WB + 40*1024 - padv}", "s_mul_i32 s51, s16, 18432", f"s_add_u32 s51, s51, {kq.STG}",
                 f"s_mul_i32 s52, s16, {WB}", "s_sub_u32 s52, s50, s52", "s_cmp_eq_u32 s16, 2", "s_cselect_b32 s53, 3, 5", "s_cselect_b32 s54, 8, 13", "s_cmp_eq_u32 s16, 1",
                 "s_cselect_b32 s53, 0, s53", "s_cselect_b32 s54, 0, s54", "s_cselect_b32 s55, 3, 2", "s_lshl_b32 s54, s54, 10", "s_add_u32 s52, s52, s54", "s_lshl_b32 s53, s53, 11",
                 f"s_add_u32 s53, s53, {HB}", "s_lshl_b32 s55, s55, 10", "s_sub_u32 s56, 5120, s55"]
            for k in range(8): own_.append([f"s_add_u32 m0, s51, {k*2048}"] + ([f"s_addk_i32 s50, {(2048, 3072)[k % 2]}"] if k else ["s_nop 0"]) + [ld(50, 0), ld(50, 1024)])
            for k in range(3): z.append([f"s_add_u32 m0, s53, {k*2048}"] + ([f"s_add_u32 s52, s52, s{54 + k}"] if k else ["s_nop 0"]) + [ld(52, 0), ld(52, 1024)])
            for x in own_[:2] + z[:1] + own_[2:4] + z[1:2] + own_[4:6] + z[2:] + own_[6:]: L += x
        p(kq.off("\n".join(L + ["L_lp_skip:"])))
        p(f"""s_mul_i32 s51, s16, 18432
s_add_u32 s51, s51, {kq.STG}
s_cmp_eq_u32 s16, 0
s_cselect_b32 s51, {HB}, s51
s_xor_b32 s52, s16, 1
s_mul_i32 s53, s52, 18432
s_add_u32 s53, s53, {kq.STG}
s_cmp_eq_u32 s52, 0
s_cselect_b32 s53, {HB}, s53
s_sub_u32 s52, s51, {WB}
v_add_u32 v{vLP}, s52, v{vW}
v_and_b32 v{vLPo}, 0x3ff, v{vW}
s_lshl_b32 s52, s19, 7
v_add_u32 v{vLPo}, s52, v{vLPo}
v_mov_b32 v{PK}, s51
v_mov_b32 v{PK+1}, s53
v_cmp_gt_u32 vcc, 32, v2
v_cndmask_b32 v{PK}, v{PK+1}, v{PK}, vcc
v_add_u32 v{vLPo}, v{vLPo}, v{PK}""")
        if OP == 2: p(f"v_lshrrev_b32 v{PK}, 5, v2\nv_lshlrev_b32 v{PK}, 10, v{PK}\nv_sub_u32 v{vLP}, v{vLP}, v{PK}")
        assert WB % 1024 == 0
    p(f"s_mov_b32 s30, s64\nv_lshlrev_b32 v4, 7, v2\ns_mov_b32 s49, 0x40000\ns_cmp_eq_u32 s16, 0\ns_cbranch_scc0 L_bc_go\n" + poll(PD) + "\ns_barrier")
    p(nst('c_go'))
    f3c = kq.fchk('f3', 248, 60, 's3')
    ip = 0
    def issue_upto(gmax):
        nonlocal ip
        L = []
        while ip < len(issue) and issue[ip][2] <= gmax:
            L += issue[ip][1]; ip += 1
        return L
    p.ext(issue_upto(NPRE - 1))
    p("buffer_load_dword v22, v15, s[8:11], s47 offen sc1\nbuffer_load_dword v23, v15, s[8:11], s48 offen sc1")
    U = PK + 2
    p(f"""v_lshrrev_b32 v{PK+3}, 4, v2
v_and_b32 v{U}, 15, v2
v_lshlrev_b32 v{U}, 4, v{U}
v_lshl_add_u32 v{U}, v{PK+3}, 9, v{U}
s_lshl_b32 s50, s19, 10
v_xor_b32 v{PK+3}, s50, v{U}
s_mul_i32 s50, s19, 36864
s_mul_i32 s51, s29, 36864
v_add_u32 v{vRD}, s50, v{PK+3}
v_add_u32 v{vRD+1}, s51, v{PK+3}""")
    setup = f"""s_mul_i32 s50, s19, 36864
s_mul_i32 s51, s29, 36864
s_lshl_b32 s52, s16, 11
s_add_u32 s53, s50, s52
s_add_u32 s53, s53, {HB}
v_add_u32 v{vHW}, s53, v{U}
s_add_u32 s53, s51, s52
s_add_u32 s53, s53, {HB}
v_add_u32 v{vHW+1}, s53, v{U}
s_lshl_b32 s52, s20, 11
s_lshl_b32 s53, s19, 3
s_add_u32 s52, s52, s53
s_add_u32 s52, s52, {HB + 32*1024}
s_add_u32 s53, s50, s52
v_add_u32 v{vHO[0]}, s53, v{U}
s_add_u32 s53, s51, s52
v_add_u32 v{vHO[1]}, s53, v{U}
s_mul_i32 s54, s17, {ACT}
s_add_u32 s54, s54, {PART}{lay('s54')}
s_mul_i32 s55, s45, 36864
s_mul_i32 s56, s46, 36864
s_add_u32 s55, s55, s54
s_add_u32 s56, s56, s54
s_lshl_b32 s57, s20, 11
s_add_u32 s57, s57, {16*2048}
s_add_u32 s54, s57, s56
s_add_u32 s57, s57, s55
s_lshl_b32 s58, s16, 11
s_add_u32 s55, s55, s58
s_add_u32 s56, s56, s58
v_lshrrev_b32 v{PK+3}, 5, v2
v_lshlrev_b32 v{vPA}, 9, v{PK+3}
v_bfe_u32 v{PK+3}, v2, 4, 1
v_lshl_add_u32 v{vPA}, v{PK+3}, 3, v{vPA}
v_and_b32 v{PK+3}, 0x1ff, v{vW}
v_add_u32 v{vPA}, v{vPA}, v{PK+3}
v_add_u32 v{vPA}, {WB}, v{vPA}""".split("\n")
    setup += [["v_bfe_u32 v4, v2, 3, 1", "s_and_b32 s50, s17, 1", "v_cmp_eq_u32 vcc, s50, v4", f"v_mov_b32 v{PK+3}, 0x40000000", f"v_cndmask_b32 v{PK+3}, v{U}, v{PK+3}, vcc",
               "s_lshr_b32 s44, s17, 1", "s_lshl_b32 s50, s19, 1", "s_xor_b32 s44, s44, s50"]]
    for o in range(4): setup += [[f"s_cmp_eq_u32 s44, {o}", "s_cselect_b64 vcc, -1, 0", f"v_cndmask_b32 v{vST[o]}, v{U}, v{PK+3}, vcc"]]
    setup += ["s_lshl_b32 s66, s18, 2", "s_add_u32 s66, s66, s16", "s_lshl_b32 s66, s66, 7", f"s_add_u32 s66, s66, {CNT + sigA[0]}", "s_add_u32 s66, s66, s63"]
    statf = []
    for rt in range(2):
        s = 22 + rt; t = TMP; k1 = vK1 + 2*rt; k3 = vK3 + 2*rt; e = PK
        statf += f"""v_mov_b32 v{t}, v{s}
v_mov_b32 v{e}, v{s}
v_permlane32_swap_b32 v{e}, v{t}
v_mul_f32 v{e}, 0x3ae38e39, v{e}
v_mul_f32 v{t}, 0x3ae38e39, v{t}
v_fma_f32 v{t}, -v{e}, v{e}, v{t}
v_max_f32 v{t}, 0, v{t}
v_mov_b32 v{t+1}, 0x3f800054
v_mov_b32 v{t+2}, 0x2edbe6ff
v_fma_f32 v{t}, v{t}, v{t+1}, v{t+2}
v_rsq_f32 v{t+1}, v{t}
v_mul_f32 v{t}, v{t}, v{t+1}
v_mul_f32 v{k1}, 0xc0135761, v{t+1}
v_mul_f32 v{k1+1}, 0xc0135761, v{t+1}
v_mul_f32 v{t+2}, v{t+1}, v{t+1}
v_mul_f32 v{t+2}, v{t+2}, v{t+1}
v_mul_f32 v{e+1}, 0xbdd2d3e8, v{t+2}
v_mul_f32 v{e+4}, 0xbdd2d3e8, v{t+2}
v_permlane16_swap_b32 v{k1}, v{k1+1}
v_sub_f32 v{e}, 0, v{e}
v_permlane16_swap_b32 v{e+1}, v{e+4}
v_cvt_pk_bf16_f32 v{t+3}, v{e}, v{t}
v_lshlrev_b32 v{t+4}, 16, v{t+3}
v_and_b32 v{t+5}, 0xffff0000, v{t+3}
v_sub_f32 v{t+4}, v{e}, v{t+4}
v_sub_f32 v{t+5}, v{t}, v{t+5}
v_cvt_pk_bf16_f32 v{t+6}, v{e}, v{t+4}
v_cvt_pk_bf16_f32 v{t+2}, v{e}, v{t+4}
v_cvt_pk_bf16_f32 v{t+7}, v{e}, v{t+5}
v_permlane16_swap_b32 v{t+6}, v{t+2}
v_permlane16_swap_b32 v{t+3}, v{t+7}
v_accvgpr_write_b32 a{aAUG+4*rt}, v{t+6}
v_accvgpr_write_b32 a{aAUG+4*rt+1}, v{t+3}
v_accvgpr_write_b32 a{aAUG+4*rt+2}, v{t+2}
v_accvgpr_write_b32 a{aAUG+4*rt+3}, v{t+7}""".split("\n")
        statf += ([f"v_mov_b32 v{k3}, v{e+1}", f"v_mov_b32 v{k3+1}, v{e+4}"])
        if rt == 0: statf += []
    pkc = [0]
    def gl(acc, rt, woff, tag):
        L = []
        for rh in range(2):
            o = PK + 4*(pkc[0] % 2); pkc[0] += 1
            L += gelu(acc + 16*rt + 8*rh, 8, vK1 + 2*rt + rh, vK3 + 2*rt + rh, TMP, o, grp)
            L.append(I(f"ds_write_b128 v{vHW + rt}, v[{o}:{o+3}] offset:{woff + rh*256}", tag=tag))
        return L
    def gtile(role, acc, tag): return gl(acc, 0, role*8192, tag) + gl(acc, 1, role*8192, tag)
    def godd():
        L = []
        for o in range(4):
            q = PK + 4*(pkc[0] % 2); pkc[0] += 1
            L += gelu(OS + 4*o, 4, vK1 + o, vK3 + o, TMP + 4*(o % 2), q)
            L.append(I(f"ds_write_b64 v{vHO[o//2]}, v[{q}:{q+1}] offset:{(o % 2)*256}", tag='ho'))
        return L
    seg = [gtile(0, A_, 'hab') + gtile(1, B_, 'hab'), godd() + gtile(2, C_, 'hc') + gtile(3, D_, 'hd')]
    hbar = {n_p2: 'hab', n_p2 + 8: 'ho', n_t: 'hd'}
    if NTL < 8: hbar[n_p2 + 10] = 'hc'
    assert NTL >= 4
    def lread(si):
        st = steps[si]; B = []; L = []
        if si in hbar:
            B.append(I("s_barrier", needs=[hbar[si]]))
            if si == n_p2:
                for i in range(2): B.append(f"v_add_u32 v{vRD+i}, {HB}, v{vRD+i}")
        if st['l'] is None: return B, L
        kind, ds = st['l']
        if kind == 'Y' and st['ph'] == 'p1' and (2*ds) % YCH == 0:
            c = 2*ds // YCH
            B.append(I("s_barrier", needs=[f"y{c}"]))
            if c == F3S: B += kq.fsig('f3', PK + 4, PK + 5, 61)
        for o in range(4):
            d = aLR + 16*(lcnt[si] % 2) + 4*o
            L.append(I(f"ds_read_b128 a[{d}:{d+3}], v{vRD + o//2} offset:{ds*2048 + (o % 2)*256}", tag=f"l{si}"))
        return B, L
    GL1 = next(g for g, (si, fi) in enumerate(frags) if si == n_p1); GL2 = next(g for g, (si, fi) in enumerate(frags) if si == n_p2)
    lcnt = {}; k = 0
    for si, st in enumerate(steps):
        if st['l'] is not None: lcnt[si] = k; k += 1
    nxt = lambda si: next((s for s in range(si + 1, len(steps)) if steps[s]['l'] is not None or s in hbar), None)
    b0, r0 = lread(0); p.ext(b0); p.ext(r0)
    p(nst('c_first'))
    G = []; stepstart = {}; g = 0; done = {0}
    tail = [f"ds_read_b128 {treg(i, o)[0]}[{treg(i, o)[1]}:{treg(i, o)[1]+3}], v{vRD + o//2} offset:{(8 + T0 + i)*2048 + (o % 2)*256}" for i in range(NTL) for o in range(4)]
    for si, st in enumerate(steps):
        stepstart[si] = len(G)
        nx = nxt(si)
        pend = []
        if nx is not None and nx not in done and (nx == si + 1 or st['l'] is None or steps[si + 1]['l'] is None):
            if not (st['l'] is not None and nx != si + 1):
                B, L = lread(nx); pend = [B + L[:1]] + [[x] for x in L[1:]]; done.add(nx)
        for fi, x in enumerate(st['f']):
            w = wslot(g)
            tl = (0, 1) if x['aug'] and not x['odd'] else (x['t'],)
            ms = [(t, o) for t in tl for o in range(4)]
            for mi, (t, o) in enumerate(ms):
                R = x['R']
                acc = x['acc'] + (4*o if x['odd'] else 8*o + 4*t)
                c = "0" if x['first'] else f"{R}[{acc}:{acc+3}]"
                if x['aug']: op = f"v_mfma_f32_16x16x16_bf16 {R}[{acc}:{acc+3}], a[{w+2*t}:{w+2*t+1}], a[{aAUG+2*o}:{aAUG+2*o+1}], {c}"
                else:
                    Rb, bb = treg(x['kk'], o) if st['ph'] == 't' else ('a', aLR + 16*(lcnt[si] % 2) + 4*o)
                    op = f"v_mfma_f32_16x16x32_bf16 {R}[{acc}:{acc+3}], a[{w}:{w+3}], {Rb}[{bb}:{bb+3}], {c}"
                needs = []
                if mi == 0 and fi % MG == 0 and si > 0: needs = [f"w{g + min(MG, len(st['f']) - fi) - 1}"] + ([f"l{si}"] if fi == 0 else [])
                grp_ = [I(op, needs=needs)]
                kq_ = len(G) - stepstart[si]
                if pend and kq_ % LRS == 0: grp_ += pend.pop(0)
                if mi == len(ms) - 1:
                    gm = g + DW - 1
                    if HLD: gm = min(gm, GL1 - 1 + max(0, 2*(g - HLD + 1)))
                    grp_ += issue_upto(gm)
                G.append(grp_)
            g += 1
        assert not pend
    assert ip == len(issue)
    stepstart[len(steps)] = len(G)
    k0 = stepstart[n_t - 1] + 1
    for k, x in enumerate(tail): G[k0 + k*TR[1]//TR[0]] = G[k0 + k*TR[1]//TR[0]] + [x]
    def outp(acc, rt, sreg, tag, lo):
        L = []
        for rh in range(2):
            o = PK + 4*(pkc[0] % 2); pkc[0] += 1
            src = acc + 16*rt + 8*rh
            for i in range(4): L.append(f"v_cvt_pk_bf16_f32 v{o+i}, v{src+2*i}, v{src+2*i+1}")
            L += [f"v_permlane16_swap_b32 v{o}, v{o+2}", f"v_permlane16_swap_b32 v{o+1}, v{o+3}"]
            L.append(I(f"buffer_store_dwordx4 v[{o}:{o+3}], v{vST[2*rt + rh]}, s[8:11], s{sreg} offen offset:{rh*256} {stfl}", tag=tag))
            L.append(f"ds_write_b128 v{vHW + rt}, v[{o}:{o+3}] offset:{lo + rh*256}")
        return L
    def otile(n):
        return [f"s_add_u32 s58, s55, {n*8192}", f"s_add_u32 s59, s56, {n*8192}"] + outp(NACC[n], 0, 58, f"o{n}", n*8192) + outp(NACC[n], 1, 59, f"o{n}", n*8192)
    def oodd():
        T = TMP
        A = [f"v_lshrrev_b32 v{T}, 5, v2", f"v_and_b32 v{T+1}, 31, v2", f"v_lshlrev_b32 v{T+1}, 4, v{T+1}", f"v_lshl_add_u32 v{T}, v{T}, 10, v{T+1}", "s_lshl_b32 s50, s19, 9", f"v_add_u32 v{T}, s50, v{T}",
             [f"v_bfe_u32 v{T+1}, v2, 3, 2", "s_and_b32 s50, s17, 3", f"v_cmp_eq_u32 vcc, s50, v{T+1}", f"v_mov_b32 v{T+1}, 0x40000000", f"v_cndmask_b32 v{T+1}, v{T}, v{T+1}, vcc",
              "s_cmp_lt_u32 s44, 2", "s_cselect_b64 vcc, -1, 0", f"v_cndmask_b32 v{T+2}, v{T}, v{T+1}, vcc", f"v_cndmask_b32 v{T+3}, v{T+1}, v{T}, vcc"],
             "s_lshl_b32 s50, s20, 11", f"s_add_u32 s50, s50, {HB + 32768}", "s_mul_i32 s51, s19, 36864", "s_add_u32 s51, s51, s50", f"v_add_u32 v{T+4}, s51, v{T}",
             "s_mul_i32 s51, s29, 36864", "s_add_u32 s51, s51, s50", f"v_add_u32 v{T+5}, s51, v{T}"]
        A += [f"v_accvgpr_read_b32 v{OS+i}, a{aODD+i}" for i in range(16)]
        L = []
        for rt in range(2):
            o = PK + 4*(pkc[0] % 2); pkc[0] += 1
            for i in range(4): L.append(f"v_cvt_pk_bf16_f32 v{o+i}, v{OS+8*rt+2*i}, v{OS+8*rt+2*i+1}")
            L += [f"v_permlane16_swap_b32 v{o}, v{o+2}", f"v_permlane16_swap_b32 v{o+1}, v{o+3}"]
            L.append(I(f"buffer_store_dwordx4 v[{o}:{o+3}], v{T+2+rt}, s[8:11], s{(57, 54)[rt]} offen {stfl}", tag='o4'))
            L.append(f"ds_write_b128 v{T+4+rt}, v[{o}:{o+3}]")
        return A, L
    ts = {n: stepstart[tstart[n]] for n in tstart}
    oa, os_ = oodd(); o3 = otile(3); o0 = otile(0); o1 = otile(1)
    plan = [(setup, SU[0], SU[1]), (statf, ST0[0], ST0[1]),
            (seg[0], stepstart[n_p1] + S0[0], stepstart[n_p2 - 1] - (8 if OP == 1 else 0) - S0[1]),
            (seg[1], stepstart[n_p2 - 1] + (-8 if OP == 1 else 8) + S1[0], stepstart[n_t - 1] - S1[1]),
            (oa + (os_ if dl[3] else []), ts[3] + 4, ts[0]), (([] if dl[3] else os_) + o3, ts[1] + dl[0], ts[1] + dl[1]),
            (o0, ts[1] + max(4, dl[1]), ts[1] + dl[2]), (o1, ts[2] + 4, ts[2] + 4 + OW1)]
    sgA = ["v_lshlrev_b32 v20, 14, v2", "v_mov_b32 v21, 1", f"s_mov_b64 exec, {(1 << sigA[1]) - 1}", I("buffer_atomic_add v21, v20, s[8:11], s66 offen", needs=['o0']), "s_mov_b64 exec, -1"]
    G[ts[2] + sigA[2]] = G[ts[2] + sigA[2]] + sgA
    for nm, k in (('c_p1', stepstart[n_p1]), ('c_p2', stepstart[n_p2]), ('c_t', stepstart[n_t])):
        if nst(nm): G[k] = [nst(nm)] + G[k]
    for k in range(1, len(G)):
        if nst(f'c_g{k}'): G[k] = [nst(f'c_g{k}')] + G[k]
    gpos = {}
    for k, grp_ in enumerate(G):
        for x in grp_:
            if isinstance(x, I) and x.tag and x.tag[0] == 'w' and x.tag[1:].isdigit(): gpos.setdefault(int(x.tag[1:]), k)
    kb = F3P
    assert kb + 5 < gpos[GL1], gpos[GL1]
    G[F3L] = G[F3L] + [f3c[0]]
    for k, x in enumerate(f3c[1]): G[kb + k//2] = G[kb + k//2] + [x]
    G[kb + 5] = G[kb + 5] + f3c[2]
    f4c = kq.fchk('f4', 248, 60, 's3')
    G[kb + 6] = G[kb + 6] + [f"s_add_u32 s60, s60, {kq.F4O - kq.F3O}", f"s_add_u32 s61, s61, {kq.F4O - kq.F3O}"]
    W = F4.get('W', 192); kb = F4.get('P', 528)
    G[W] = G[W] + kq.late_w2()
    nx = 'w%d' % min(g for g, k in gpos.items() if k > W)
    sg = kq.fsig('f4', PK + 4, PK + 5, 61)
    if isinstance(F4['S'], int):
        sg = kq.fsig('f4', 252, 253, 61)
        G[F4['S']] = G[F4['S']] + [I("s_barrier", needs=[nx])] + sg
    else:
        hit = 0
        for grp_ in G:
            for i, x in enumerate(grp_):
                if isinstance(x, I) and x.op == 's_barrier' and F4['S'] in x.needs: x.needs.append(nx); grp_[i+1:i+1] = sg; hit += 1; break
        assert hit == 1
    assert kb + 5 < gpos[GL2], gpos[GL2]
    G[F4.get('L', 460)] = G[F4.get('L', 460)] + [f4c[0]]
    for k, x in enumerate(f4c[1]): G[kb + k//2] = G[kb + k//2] + [x]
    G[kb + 5] = G[kb + 5] + f4c[2]
    pos = 0
    for fill, a, b in plan:
        assert a >= pos and b >= a, (a, b, pos)
        for grp_ in G[pos:a]: p.ext(grp_)
        p.ext(interleave(G[a:b], fill))
        pos = b
    for grp_ in G[pos:]: p.ext(grp_)
    p(nst('c_end'))
    p.ext(otile(2))
    for k, i in enumerate(p.ins):
        if i.op == 's_barrier':
            for t in i.needs:
                assert all(kk < k for kk, j in enumerate(p.ins) if j.tag == t), t
    nxw = {}
    for i in reversed(p.ins):
        if i.kind == 'mfma':
            for r in i.w: nxw[r] = 'first' if not i.srcC else 'acc'
        elif i.isvalu():
            for r in i.r: assert nxw.get(r) != 'acc', i.text
            for r in i.w: nxw.pop(r, None)
        elif i.kind == 'dsr':
            for r in i.w: nxw.pop(r, None)
    seen = set()
    tset = set(tail)
    for i in p.ins:
        if i.text in tset: seen |= set(i.w)
        if i.kind == 'mfma' and seen:
            b = _ab(i)[4:]
            tr = {x for t in tail for x in I(t).w}
            if set(b) <= tr: assert set(b) <= seen, i.text
    c16.info = dict(n=len(G), ss={k: stepstart[k] for k in (n_p1, n_p2 - 1, n_p2, n_t - 1, n_t)}, ts=ts, g1=gpos[GL1], g2=gpos[GL2])
    import os
    if os.environ.get('INFO'): print(c16.info)
    return p.finish(), pre_setup, None, pre_grp, f3c[3] + f4c[3]
```

```python
from asmlib import *
from layout import *
from k0 import srd
from ka import phi, QB
import kc, kp, kq
HF = ['']

CCD, CDA, CAB = 16384, 32768, 49152
REP = dict(bc=(0, 1), cd=(16384, 1))
aWOr = lambda ks, t: 64 + 4*((8 - ks)*5 + t)

BK = [0]
def spin(tag, sreg, va, vd, lanes, target, depth=1):
    ld = lambda k: f"buffer_load_dword v{vd+k}, v{va}, s[8:11], s{sreg} offen sc1 ; @"
    L = ([f"s_mov_b64 exec, {(1 << lanes) - 1}"] if lanes < 32 else ["s_mov_b32 exec_hi, 0"]) + [ld(k) for k in range(depth - 1)] + [f"L_{tag}_poll:"]
    for k in range(depth):
        L += [ld((k + depth - 1) % depth), f"s_waitcnt vmcnt({depth - 1}) ; @", f"v_cmp_gt_u32 vcc, {target}, v{vd+k}",
              "s_nop 4", f"s_cbranch_vccz L_{tag}_ok"]
    L += ["s_nop 15"] * BK[0]
    L += ["s_sub_u32 s49, s49, 1", "s_cmp_eq_u32 s49, 0", f"s_cbranch_scc0 L_{tag}_poll", f"L_{tag}_ok:", "s_mov_b64 exec, -1"]
    L.append(f"L_{tag}_go:")
    return "\n".join(L)

A_MAP = """s_and_b32 s17, s2, 7
s_lshr_b32 s18, s2, 3
s_lshr_b32 s19, s17, 2
s_lshl_b32 s19, s19, 2
s_and_b32 s20, s18, 3
s_add_u32 s19, s19, s20
s_and_b32 s20, s17, 3
s_lshl_b32 s20, s20, 3
s_lshr_b32 s21, s18, 2
s_add_u32 s20, s20, s21"""
AM1 = [0]
def a_map1():
    if AM1[0] == 0: return A_MAP
    if AM1[0] == 1: return "s_bfe_u32 s19, s2, 0x20001\ns_lshl_b32 s19, s19, 1\ns_bfe_u32 s20, s2, 0x10003\ns_add_u32 s19, s19, s20\ns_and_b32 s20, s2, 1\ns_lshl_b32 s20, s20, 4\ns_lshr_b32 s21, s2, 4\ns_add_u32 s20, s20, s21"
    return "s_and_b32 s19, s2, 7\ns_lshr_b32 s20, s2, 3"
def a_head1():
    if AM1[0] == 0: return "s_and_b32 s52, s2, 3\ns_lshl_b32 s52, s52, 3\ns_lshr_b32 s53, s2, 5\ns_add_u32 s52, s52, s53"
    if AM1[0] == 1: return "s_and_b32 s52, s2, 1\ns_lshl_b32 s52, s52, 4\ns_lshr_b32 s53, s2, 4\ns_add_u32 s52, s52, s53"
    return "s_lshr_b32 s52, s2, 3"
A_WS = f"""s_mul_i32 s24, s20, 73728
s_add_u32 s24, s24, {WQF}
s_lshl_b32 s25, s16, 11
s_add_u32 s24, s24, s25"""
def a_wchunk(c):
    L = [f"s_add_u32 m0, s25, {c*8192}" if c else "s_mov_b32 m0, s25"]
    for i in range(2): L.append(I(f"buffer_load_dwordx4 v3, s[8:11], s24 offen offset:{i*1024} {HF[0]} lds", tag=f"w{c}"))
    if c < 8: L.append("s_addk_i32 s24, 8192")
    return L

def wo_loads(ts, sreg=50):
    G = []
    for t in ts:
        for ks in range(9):
            pre = []
            if ks in (4, 8): pre = [f"s_addk_i32 s{sreg}, 4096"]
            if ks == 0 and t != ts[0]: pre = [f"s_add_u32 s{sreg}, s{sreg}, {36864 - 8192}"]
            r = aWOr(ks, t)
            G.append(pre + [f"buffer_load_dwordx4 a[{r}:{r+3}], v3, s[8:11], s{sreg} offen offset:{(ks%4)*1024} {HF[0]}"])
    return G

def side_parts(ssf="sc1", lf="nt"):
    WB = WSN*1024
    SB = 98304
    V = 160
    v3_, v5_, vs_, t1, t2, ts1, ts2, c0, c1, vb, vcs, vag, T = V, V+1, V+2, V+3, V+4, V+5, V+6, V+7, V+8, V+9, V+10, V+11, V+12
    D = V + 16
    ka = "s_load_dwordx4 s[56:59], s[0:1], 32\ns_load_dwordx2 s[60:61], s[0:1], 48"
    setup = f"""s_mov_b32 s12, s56
s_mov_b32 s13, s57
s_mov_b32 s14, {576*4608*2}
s_mov_b32 s15, 0x20000
s_mov_b32 s44, s60
s_mov_b32 s45, s61
s_mov_b32 s46, {576*4608*2}
s_mov_b32 s47, 0x20000
s_mov_b32 s64, s58
s_mov_b32 s65, s59
s_mov_b32 s66, {4608*2}
s_mov_b32 s67, 0x20000
s_cmp_lt_u32 s16, 2
s_cselect_b32 s96, s56, s60
s_cselect_b32 s97, s57, s61
s_mov_b32 s98, {576*4608*2}
s_mov_b32 s99, 0x20000
s_and_b32 s56, s2, 7
s_bfe_u32 s57, s2, 0x20003
s_lshr_b32 s58, s2, 5
s_mul_i32 s59, s57, 9
s_add_u32 s60, s59, s16
s_mul_i32 s62, s60, {16*9216}
s_mul_i32 s68, s56, 1152
s_lshl_b32 s69, s58, 7
s_add_u32 s68, s68, s69
s_add_u32 s62, s62, s68
s_mul_i32 s87, s56, 36
s_add_u32 s87, s87, s60
s_mul_i32 s87, s87, {16*1152}
s_add_u32 s87, s87, s69
s_add_u32 s60, s59, 8
s_mul_i32 s88, s60, {16*9216}
s_add_u32 s88, s88, s68
s_mul_i32 s68, s56, 36
s_add_u32 s68, s68, s60
s_mul_i32 s68, s68, {16*1152}
s_add_u32 s68, s68, s69
s_cmp_lt_u32 s16, 2
s_cselect_b32 s88, s88, s68
s_cselect_b32 s68, 8, 1
s_mul_i32 s68, s68, 1152
s_and_b32 s69, s16, 1
s_lshl_b32 s69, s69, 6
s_add_u32 s88, s88, s69
s_mul_i32 s55, s16, 9216
s_add_u32 s55, s55, {SB}
v_bfe_u32 v{T}, v2, 2, 3
v_and_b32 v{T+1}, 3, v2
v_lshrrev_b32 v{T+2}, 5, v2
v_lshlrev_b32 v{T+3}, 6, v{T+2}
v_lshl_add_u32 v{T+3}, v{T+1}, 4, v{T+3}
v_mul_u32_u24 v{v3_}, 9216, v{T}
v_add_u32 v{v3_}, v{v3_}, v{T+3}
v_mul_u32_u24 v{v5_}, 1152, v{T}
v_add_u32 v{v5_}, v{v5_}, v{T+3}
v_lshrrev_b32 v{T}, 2, v2
v_mul_u32_u24 v{vs_}, s68, v{T}
v_lshl_add_u32 v{vs_}, v{T+1}, 4, v{vs_}""".split("\n")
    dma = []
    for b in range(2):
        for mi, (vo, sr, srd_, rs) in enumerate(((v3_, 62, 12, 9216), (v5_, 87, 44, 1152))):
            for u in range(2):
                L = [f"s_add_u32 m0, s55, {(2*b + mi)*2048 + u*1024}", I(f"buffer_load_dwordx4 v{vo}, s[{srd_}:{srd_+3}], s{sr} offen {lf} lds", tag=f"sd{b}{mi}")]
                if not (b == 1 and u == 1): L.append(f"s_add_u32 s{sr}, s{sr}, {(8 if u == 0 else 56)*rs}")
                dma.append(L)
    dma.append([f"s_add_u32 m0, s55, 8192", I(f"buffer_load_dwordx4 v{vs_}, s[96:99], s88 offen {lf} lds", tag="sds")])
    setup2 = f"""s_mul_i32 s68, s56, 18
s_lshl_b32 s69, s58, 1
s_add_u32 s68, s68, s69
s_lshl_b32 s68, s68, 6
v_lshlrev_b32 v{vb}, 1, v2
buffer_load_ushort v{vb}, v{vb}, s[64:67], s68 offen
v_and_b32 v{T+1}, 3, v2
v_lshrrev_b32 v{T+2}, 5, v2
v_lshlrev_b32 v{T}, 3, v{T+1}
v_bfe_u32 v{T+3}, v2, 2, 2
v_lshl_add_u32 v{T}, v{T+3}, 6, v{T}
v_bfe_u32 v{T+3}, v2, 4, 1
v_lshl_add_u32 v{T}, v{T+3}, 5, v{T}
v_add_u32 v{T}, s55, v{T}
v_lshl_add_u32 v{t1}, v{T+2}, 10, v{T}
v_lshl_add_u32 v{t2}, v{T+2}, 8, v{T}
s_cmp_lt_u32 s16, 2
s_cselect_b32 s68, 2, 1
s_cselect_b32 s69, 1, 2
s_lshl_b32 s68, s68, 8
s_lshl_b32 s69, s69, 8
v_mul_u32_u24 v{ts1}, s68, v{T+2}
v_add_u32 v{ts1}, v{ts1}, v{T}
v_add_u32 v{ts2}, s69, v{ts1}
v_mov_b32 v{c0}, 0
v_mov_b32 v{c1}, 0
s_lshl_b32 s89, s56, 2
s_and_b32 s68, s58, 1
s_lshl_b32 s68, s68, 1
s_add_u32 s89, s89, s68
s_mul_i32 s89, s89, {WB}
s_add_u32 s89, s89, {WSTR}
s_lshr_b32 s90, s58, 1
s_add_u32 s68, s90, 91
s_add_u32 s69, s90, 90
s_add_u32 s61, s90, 163
s_cmp_lt_u32 s58, 4
s_cselect_b32 s91, 5, 4
s_cselect_b32 s93, s90, s68
s_cselect_b32 s61, s69, s61
s_cselect_b32 s100, 3, 2
s_lshl_b32 s100, s100, 10
s_add_u32 s101, s90, 1
s_and_b32 s101, s101, 3
s_lshl_b32 s101, s101, 4
s_add_u32 s101, s101, 265
s_lshl_b32 s61, s61, 10
s_add_u32 s61, s61, s89
s_lshr_b32 s68, s57, 1
s_lshl_b32 s68, s68, 9
s_add_u32 s61, s61, s68
s_and_b32 s68, s57, 1
s_lshl_b32 s68, s68, 3
s_add_u32 s61, s61, s68
s_cmp_lt_u32 s57, 2
s_cselect_b32 s57, 0xffff, 0
v_lshlrev_b32 v{vcs}, 2, v0
v_add_u32 v{vcs}, {SB + 36864}, v{vcs}
v_and_b32 v{vag}, 31, v2
v_lshlrev_b32 v{vag}, 4, v{vag}
v_mul_u32_u24 v{T}, {WB}, v{T+2}
v_add_u32 v{vag}, v{vag}, v{T}""".split("\n")
    def dest(m):
        L = ["s_lshr_b32 s56, s60, 1", "s_and_b32 s58, s60, 1"]
        if m == 0:
            L += ["s_mul_i32 s68, s56, s91", "s_add_u32 s68, s68, s93", "s_mov_b32 s69, s100"]
        else:
            L += """s_sub_u32 s88, s56, 8
s_cmp_lt_u32 s56, 8
s_cselect_b32 s68, s56, s88
s_mul_i32 s68, s68, 9
s_add_u32 s68, s68, 167
s_add_u32 s68, s68, s90
s_lshl_b32 s69, s88, 1
s_add_u32 s69, s69, s101
s_cmp_lt_u32 s88, 8
s_cselect_b32 s68, s69, s68
s_cselect_b32 s69, 1, 5
s_lshl_b32 s69, s69, 10""".split("\n")
        L += f"""s_lshl_b32 s68, s68, 10
s_add_u32 s68, s68, s89
s_mul_i32 s58, s58, s69
s_add_u32 s62, s68, s58
s_add_u32 s68, s68, s69
s_sub_u32 s68, s68, s58
s_add_u32 s87, s68, {WB}""".split("\n")
        return L
    work = []
    for b in range(2):
        for mi in range(2):
            d = D + 8*((2*b + mi) % 4)
            base = (2*b + mi)*2048
            ra, o2 = ((t1, 256), (t2, 1024))[mi]
            for tt in range(2):
                work.append(I(f"ds_read_b64_tr_b16 v[{d+4*tt}:{d+4*tt+1}], v{ra} offset:{base + tt*512}", needs=[f"sd{b}{mi}"]))
                work.append(f"ds_read_b64_tr_b16 v[{d+4*tt+2}:{d+4*tt+3}], v{ra} offset:{base + tt*512 + o2}")
            if mi == 0: work.append(f"s_add_u32 s60, s59, s16" if b == 0 else "s_add_u32 s60, s60, 4")
            work += dest(mi)
            for tt in range(2):
                work.append(f"buffer_store_dwordx4 v[{d+4*tt}:{d+4*tt+3}], v3, s[8:11], s{(62, 87)[tt]} offen {ssf}")
                if mi == 0: work += [f"v_dot2c_f32_bf16 v{(c0, c1)[tt]}, v8, v{d+4*tt+q}" for q in range(4)]
    d = D + 32
    work += [I(f"ds_read_b64_tr_b16 v[{d}:{d+1}], v{ts1} offset:8192", needs=["sds"]), f"ds_read_b64_tr_b16 v[{d+2}:{d+3}], v{ts2} offset:8192", "s_add_u32 s60, s59, 8"]
    work += dest(0) + ["s_bitcmp1_b32 s16, 0", "s_cselect_b32 s55, s87, s62"] + dest(1)
    work += ["s_bitcmp1_b32 s16, 0", "s_cselect_b32 s62, s87, s62", "s_cmp_lt_u32 s16, 2", "s_cselect_b32 s62, s55, s62",
             f"buffer_store_dwordx4 v[{d}:{d+3}], v3, s[8:11], s62 offen {ssf}",
             "s_cmp_eq_u32 s16, 0", "s_cselect_b32 s68, 0x3f803f80, 0", "s_cmp_eq_u32 s16, 1", "s_cselect_b32 s69, 0x3f803f80, 0"]
    for q in range(4): work += [f"v_dot2c_f32_bf16 v{c0}, s68, v{d+q}", f"v_dot2c_f32_bf16 v{c1}, s69, v{d+q}"]
    work += [f"v_permlane32_swap_b32 v{c0}, v{c1}", f"v_add_f32 v{c0}, v{c0}, v{c1}", I(f"ds_write_b32 v{vcs}, v{c0}", tag='scs')]
    fin = [f"v_lshlrev_b32 v{vcs}, 2, v2", f"v_add_u32 v{vcs}, {SB + 36864}, v{vcs}"]
    fin += [f"ds_read_b32 v{D+w}, v{vcs} offset:{w*256}" for w in range(4)]
    fin += f"""v_add_f32 v{D}, v{D}, v{D+1}
v_add_f32 v{D+2}, v{D+2}, v{D+3}
v_add_f32 v{D}, v{D}, v{D+2}
v_cvt_pk_bf16_f32 v{D+4}, v{D}, v{D}
v_and_b32 v{D+1}, 0xffff0000, v{D+4}
v_sub_f32 v{D+1}, v{D}, v{D+1}
v_cvt_pk_bf16_f32 v{D+5}, v{D+1}, 0
v_and_b32 v{vb}, s57, v{vb}
v_lshl_or_b32 v{D+5}, v{vb}, 16, v{D+5}
buffer_store_dwordx2 v[{D+4}:{D+5}], v{vag}, s[8:11], s61 offen {ssf}""".split("\n")
    return ka, atomize(setup), dma, atomize(setup2), atomize(work), fin

def touch(w1=True, wo=True):
    L = []
    if w1: L.append(f"""s_and_b32 s64, s2, 3
s_lshl_b32 s64, s64, 1
s_bfe_u32 s65, s2, 0x10003
s_add_u32 s64, s64, s65
s_lshl_b32 s64, s64, 2
s_add_u32 s64, s64, s16
s_mul_i32 s64, s64, {WSN*1024}
s_lshr_b32 s65, s2, 4
s_mul_i32 s65, s65, 3072
s_add_u32 s64, s64, s65
s_add_u32 s64, s64, {WSTR}
v_min_u32 v240, 23, v2
v_lshlrev_b32 v240, 7, v240
buffer_load_dword v241, v240, s[8:11], s64 offen {HF[0]}""".split("\n"))
    if wo: L.append(f"""s_lshr_b32 s65, s2, 3
s_lshl_b32 s65, s65, 2
s_add_u32 s65, s65, s16
s_mul_i32 s65, s65, 41
v_min_u32 v242, 40, v2
v_add_u32 v242, s65, v242
v_min_u32 v242, 5183, v242
v_lshlrev_b32 v242, 7, v242
s_mov_b32 s66, {WOF}
buffer_load_dword v243, v242, s[8:11], s66 offen {HF[0]}""".split("\n"))
    return L
WOP = f"""s_lshr_b32 s51, s2, 6
s_mul_i32 s52, s51, 5
s_lshl_b32 s53, s51, 2
s_add_u32 s53, s53, 2
s_cmp_lt_u32 s51, 2
s_cselect_b32 s52, s52, s53
s_mul_i32 s50, s52, 36864
s_mul_i32 s53, s16, 9216
s_add_u32 s50, s50, s53
s_add_u32 s50, s50, {WOF}"""
def a_part(first, tw=None, NP0=0, NPa1=None, w0p=0, wl=False, skipy=(), D1=None, R1=1, pfy=0, pfa=0, p2=None, FP=(0, 0, 84, 118), LW=(62, 74, 113, 124), p0=None, SD=(10, 75), dw=False, YR=16, D0=12, RAMP=1, NW=8, qsf="sc1", NP1=36, NPa=16, PD=1, yf='sc1', side=None, SW=(2, 12, 12, 34, 60, 112)):
    n = "a0" if first else "a1"
    p = Prog()
    p(A_MAP if first else a_map1())
    p(f"""s_lshl_b32 s21, s19, 3
s_lshl_b32 s22, s16, 1
s_add_u32 s21, s21, s22
s_mul_i32 s22, s21, 36864
s_add_u32 s22, s22, {YF if first else YF + LS}""")
    if first: p(A_WS)
    if first and dw:
        p(f'''s_load_dwordx2 s[56:57], s[0:1], 8
v_lshrrev_b32 v200, 3, v2
v_mul_u32_u24 v200, 3456, v200
v_and_b32 v201, 3, v2
v_bfe_u32 v202, v2, 2, 1
v_lshlrev_b32 v203, 4, v201
v_mul_u32_u24 v204, 1152, v202
v_add_u32 v203, v203, v204
v_add_u32 v203, 1152, v203
v_lshlrev_b32 v204, 4, v202
v_cmp_eq_u32 vcc, 3, v201
v_cndmask_b32 v203, v203, v204, vcc
v_add_u32 v200, v200, v203
v_add_u32 v201, {8*3456 - 1024}, v200
s_mul_i32 s24, s20, 36
s_mul_i32 s58, s16, {16*3456}
s_add_u32 s24, s24, s58
s_waitcnt lgkmcnt(0)
s_mov_b32 s12, s56
s_mov_b32 s13, s57
s_mov_b32 s14, {576*1728*2}
s_mov_b32 s15, 0x20000''')
    ACC, WR, P0, V1, TMP, KVA, QO = 16, 80, 112, 120, 128, 136, 152
    items = []
    for g in range(72):
        if first and g < 36 and g % 4 == 0:
            wc = a_wchunk(g // 4)
            if dw:
                c = g // 4
                wc = [wc[0]] + [I(f"buffer_load_dwordx4 v{200+i}, s[12:15], s24 offen offset:{i*1024} lds", tag=f"w{c}") for i in range(2)] + ([f"s_add_u32 s24, s24, {64*3456}"] if c < 8 else [])
            items.append((g, wc))
        s = 4*(g % YR)
        pre = ["s_addk_i32 s22, 4096"] if (g % 4 == 0 and g) else []
        items.append((g, pre + ([] if g in skipy else [f"buffer_load_dwordx4 a[{s}:{s+3}], v3, s[8:11], s22 offen offset:{(g%4)*1024} {'' if first and not p0 and p2 is None else yf}"])))
    ip = 0
    def issue_upto(gmax):
        nonlocal ip
        L = []
        while ip < len(items) and items[ip][0] <= gmax:
            L += items[ip][1]; ip += 1
        return L
    def ypf(skip):
        if not pfy: return []
        n = 72 - skip
        return [f"s_mov_b32 exec_hi, {hex((1 << (n - 32)) - 1)}", f"buffer_load_dword v254, v255, s[8:11], s23 offen {yf}", "s_mov_b64 exec, -1"]
    SK = D0 if first else YR
    if pfy: p(f"s_lshr_b32 s23, s2, 5\ns_mul_i32 s23, s23, {(72 - SK)*128}\ns_add_u32 s23, s23, s22\ns_add_u32 s23, s23, {SK*1024}\nv_lshlrev_b32 v255, 7, v2")
    setup = f"""v_lshlrev_b32 v13, 2, v0
v_add_u32 v4, 65536, v3
s_mul_i32 s28, s16, 1280
s_add_u32 s28, s28, {QB - 20*64}
v_and_b32 v5, 31, v2
v_lshlrev_b32 v5, 6, v5
v_lshrrev_b32 v9, 5, v2
v_lshl_add_u32 v5, v9, 5, v5
v_add_u32 v5, s28, v5
v_bfe_u32 v6, v2, 2, 2
v_lshl_add_u32 v6, v9, 2, v6
v_lshlrev_b32 v6, 6, v6
v_and_b32 v7, 1, v2
v_lshl_add_u32 v6, v7, 5, v6
v_bfe_u32 v7, v2, 4, 1
v_lshl_add_u32 v6, v7, 4, v6
v_bfe_u32 v7, v2, 1, 1
v_lshl_add_u32 v6, v7, 3, v6
s_add_u32 s28, s28, {20*64}
v_add_u32 v6, s28, v6
v_lshlrev_b32 v7, 2, v2
s_mul_i32 s28, s16, 2560
v_add_u32 v15, s28, v3
v_lshlrev_b32 v14, 3, v2
v_add_u32 v14, s28, v14
v_and_b32 v8, 27, v2
v_cmp_eq_u32 s[30:31], 18, v8
v_mov_b32 v8, 0x3f803f80
s_mov_b32 s32, 0xfff00000
s_mov_b32 s33, 0xfff00000
s_lshl_b32 s26, s21, 5
s_add_u32 s26, s26, s20
s_lshl_b32 s27, s26, 8
s_lshl_b32 s26, s26, 10
s_add_u32 s26, s26, {PQ16 + (0 if first else LS)}
s_add_u32 s27, s27, {PQ4 + (0 if first else LS)}"""
    if first and p2 is not None:
        p(setup)
        p(kq.a0_go())
        p(nst('a_go'))
        if pfa: p.ext(issue_upto(pfa - 1)); p.ext(ypf(SK)); p.ext(issue_upto(D0 - 1))
        else: p.ext(issue_upto(D0 - 1)); p.ext(ypf(SK))
        p("ds_read_b32 v161, v162\nv_readfirstlane_b32 s3, v161")
    elif first and p0:
        n = "a0" + p0[0]
        p(setup)
        p(f"""s_and_b32 s56, s2, 7
s_lshl_b32 s56, s56, 10
s_add_u32 s56, s56, {kp.PFL}
s_mov_b32 s49, 0x40000
s_cmp_eq_u32 s16, 0
s_cbranch_scc0 L_{n}p_go""")
        p(kp.poll(n + "p", 56, 250) + f"L_{n}p_go:\ns_barrier")
        p(nst('a_go'))
        p.ext(issue_upto(D0 - 1))
    elif first:
        p.ext(issue_upto(D0 - 1))
        p(setup)
    else:
        p(setup)
        if NP0: p(WOP)
        if tw and tw[1] == 'pre': wo0_t = [y for x in touch(tw[2], tw[4]) for y in x]
        else: wo0_t = []
        wo0 = wo0_t + [y for x in wo_loads(range(4))[:NP0] for y in x]
        NV = len([x for x in wo0 if x.startswith('buffer')])
        p(f"""s_lshl_b32 s28, s19, 2
s_bfe_u32 s29, s2, {('0x20005', '0x20000')[RAB[1]]}
s_add_u32 s28, s28, s29
s_lshl_b32 s28, s28, 9
s_add_u32 s28, s28, {CNT + LS + CDA}
v_lshlrev_b32 v10, 7, v2
s_mov_b32 s49, 0x40000
s_waitcnt vmcnt(0)
s_cmp_eq_u32 s16, 0
s_cbranch_scc{1 if wl or NP0 else 0} L_da_{'w0' if wl or NP0 else 'go'}""")
        if NP0 and not wl: p(kq.off("\n".join(wo0 + ["s_branch L_da_go", "L_da_w0:"] + ([] if w0p else wo0))))
        if wl:
            L = f"""s_sub_u32 s29, s16, 1
s_mul_i32 s56, s29, 24576
s_mul_i32 s57, s20, 73728
s_add_u32 s57, s57, s56
s_add_u32 s57, s57, {WQF}""".split("\n")
            for k in range(6):
                L += [f"s_add_u32 m0, s56, {k*4096}", "s_nop 0"] + [f"buffer_load_dwordx4 v3, s[8:11], s57 offen offset:{i*1024} {HF[0]} lds" for i in range(4)] + (["s_addk_i32 s57, 4096"] if k < 5 else [])
            p(kq.off("\n".join(L + wo0 + [f"s_waitcnt vmcnt({NV})", "s_branch L_da_go", "L_da_w0:"] + ([] if w0p else wo0))))
        sp = spin("da", 28, 10, 250, 4, 8, PD)
        if w0p: sp = sp.replace("L_da_go:", kq.off("\n".join(wo0)) + "\nL_da_go:")
        p(sp)
        p("s_barrier")
        p(nst('a_go'))
        if pfa: p.ext(issue_upto(pfa - 1)); p.ext(ypf(SK)); p.ext(issue_upto(YR - 1))
        else: p.ext(issue_upto((D1 or YR) - 1)); p.ext(ypf(SK))
    def wrd(f):
        g = f % 72
        s = WR + 4*(f % NW)
        L = []
        if first and f < 72 and f % 8 == 0: L.append(I("s_barrier", needs=[f"w{f//8}"]))
        L.append(f"ds_read_b128 v[{s}:{s+3}], v3 offset:{g*1024}" if g < 64 else f"ds_read_b128 v[{s}:{s+3}], v4 offset:{(g-64)*1024}")
        return L
    for f in range(NW - 1): p.ext(wrd(f))
    p(nst('a_first'))
    G = []
    for g in range(72):
        y = 4*(g % YR)
        for t in range(2):
            f = 2*g + t
            w = WR + 4*(f % NW)
            acc = ACC + 32*(g // 36) + 16*t
            c = "0" if g % 36 == 0 else f"v[{acc}:{acc+15}]"
            grp = [f"v_mfma_f32_32x32x16_bf16 v[{acc}:{acc+15}], a[{y}:{y+3}], v[{w}:{w+3}], {c}"]
            if f + NW - 1 < 144: grp += wrd(f + NW - 1)
            if t == 1:
                depth = min(YR, D0 + 1 + g*RAMP) if first else (min(YR, int(D1 + 1 + g*R1)) if D1 else YR)
                grp += issue_upto(g + depth)
            G.append(grp)
    assert ip == len(items)
    def epi1(rt):
        T0 = ACC + 32*rt; T1 = T0 + 16
        L = []
        for i in range(8): L.append(f"v_cvt_pk_bf16_f32 v{V1+i}, v{T1+2*i}, v{T1+2*i+1}")
        for i in range(8): L.append(f"v_cndmask_b32 v{V1+i}, v{V1+i}, v8, s[30:31]")
        ph = phi(list(range(T0, T0 + 16)), TMP)
        pk = [f"v_cvt_pk_bf16_f32 v{P0+i}, v{T0+2*i}, v{T0+2*i+1}" for i in range(8)]
        mm = [f"v_mfma_f32_32x32x16_bf16 v[{KVA}:{KVA+15}], v[{P0+4*q}:{P0+4*q+3}], v[{V1+4*q}:{V1+4*q+3}], " + ("0" if (rt == 0 and q == 0) else f"v[{KVA}:{KVA+15}]") for q in range(2)]
        L = ph[:32] + pk[:4] + L + [mm[0]] + ph[32:] + pk[4:] + [mm[1]]
        L.append(["s_mov_b64 exec, s[32:33]",
                  f"ds_write_b128 v5, v[{V1}:{V1+3}] offset:512", f"ds_write_b128 v5, v[{V1+4}:{V1+7}] offset:528",
                  f"ds_write_b128 v5, v[{P0}:{P0+3}]", f"ds_write_b128 v5, v[{P0+4}:{P0+7}] offset:16",
                  "s_mov_b64 exec, -1"])
        L += [f"ds_read_b64_tr_b16 v[{QO}:{QO+1}], v6", f"ds_read_b64_tr_b16 v[{QO+2}:{QO+3}], v6 offset:768", f"ds_read_b64_tr_b16 v[{QO+4}:{QO+5}], v6 offset:512"]
        return L
    def epi2(rt):
        u = TMP + 4
        L = [f"v_lshlrev_b32 v{u}, 16, v{QO+2}", f"v_and_b32 v{u+1}, 0xffff0000, v{QO+2}", f"v_lshlrev_b32 v{u+2}, 16, v{QO+3}", f"v_and_b32 v{u+3}, 0xffff0000, v{QO+3}"]
        L += phi([u, u+1, u+2, u+3], TMP)
        L += [f"v_cvt_pk_bf16_f32 v{QO+2}, v{u}, v{u+1}", f"v_cvt_pk_bf16_f32 v{QO+3}, v{u+2}, v{u+3}"]
        return L
    def qst(rt):
        L = ["s_add_u32 s26, s26, 32768", "s_add_u32 s27, s27, 8192"] if rt else []
        return L + [f"buffer_store_dwordx4 v[{QO}:{QO+3}], v3, s[8:11], s26 offen {qsf}", f"buffer_store_dword v{QO+4}, v7, s[8:11], s27 offen {qsf}"]
    late = f"""v_bfe_u32 v10, v0, 2, 5
v_lshrrev_b32 v12, 1, v0
v_cmp_gt_u32 s[34:35], 19, v10
v_cmp_eq_u32 s[36:37], 22, v10
s_or_b64 s[34:35], s[34:35], s[36:37]
v_cmp_gt_u32 s[38:39], 19, v12
v_cmp_eq_u32 s[36:37], 22, v12
s_or_b64 s[38:39], s[38:39], s[36:37]
s_mul_i32 s28, s20, 2560
s_add_u32 s28, s28, {KV + (0 if first else LS)}
{WOP if first or not NP0 else 's_nop 0'}
s_lshl_b32 s54, s20, 7
s_add_u32 s54, s54, {CNT + CAB + (0 if first else LS)}
v_lshlrev_b32 v10, 12, v2
v_mov_b32 v11, 1""".split("\n")
    wo = wo_loads(range(4))[(0 if first else NP0):NP1]
    if not first and NPa1 is not None: NPa = NPa1
    if side and first:
        _, su, dma, su2, work, fin = side
        G[116] = G[116] + [I("s_barrier", needs=['scs'])]
        def put(L, a, b):
            for k, x in enumerate(L): G[a + k*(b - a)//len(L)] += x if isinstance(x, list) else [x]
        put(su, SW[0], SW[1]); put(dma, SW[2], SW[3]); put(su2, SW[3], SW[4]); put(work, SW[4], SW[5]); put(fin, 117, 130)
    elif first and p2 is not None:
        G[116] = G[116] + ["s_barrier"]
        f2 = kq.fchk('f2', 232, 57, 's3')
        G[FP[0]] = G[FP[0]] + kq.fsig('f2', 161, 162, 58)
        G[FP[2]] = G[FP[2]] + [f2[0]]
        for k, x in enumerate(f2[1]): G[FP[3] - 4 + k//2] = G[FP[3] - 4 + k//2] + [x]
        G[FP[3] + 1] = G[FP[3] + 1] + f2[2]
        G = [[y for x in g for y in (x if isinstance(x, list) else [x])] for g in G]
    elif first and p0:
        lf = SW[1] > 112
        G[116] = G[116] + [I("s_barrier", needs=[] if lf else ['scs'])]
        for L, a, b in ((p0[3], SD[0], SD[1]), (p0[1], SW[0], SW[1]), ([] if lf else p0[2], 117, 130)):
            for k, x in enumerate(L): G[a + k*(b - a)//len(L)] += x if isinstance(x, list) else [x]
    else: G[116] = G[116] + ["s_barrier"]
    tg = tw and tw[0 if first else 1]
    if isinstance(tg, int):
        for k, x in enumerate(touch(tw[2], tw[3 if first else 4])[::-1]): G[tg + k] = G[tg + k] + x
    for k in range(1, 144):
        if nst(f'a_g{k}'): G[k] = [nst(f'a_g{k}')] + G[k]
    for grp in G[:20]: p.ext(grp)
    p.ext(interleave(G[20:60], atomize(late)))
    for grp in G[60:74]: p.ext(grp)
    p.ext(interleave(G[74:124], epi1(0) + epi2(0) + qst(0)))
    p.ext(interleave(G[124:], wo[:NPa]))
    p(nst('a_epi'))
    e1 = epi1(1)
    rest = wo[NPa:]
    k1 = len(rest) * 2 // 3
    p.ext(interleave([x if isinstance(x, list) else [x] for x in e1], rest[:k1]))
    p(f"ds_write_b128 v15, v[{KVA}:{KVA+3}]\nds_write_b128 v15, v[{KVA+4}:{KVA+7}] offset:1024\nds_write_b64 v14, v[{KVA+8}:{KVA+9}] offset:2048")
    for x in rest[k1:]: p.ext(x)
    p("s_waitcnt lgkmcnt(0)")
    p("s_barrier")
    for it in range(3):
        for w in range(4): p(f"ds_read_b32 v{16 + 4*it + w}, v13 offset:{w*2560 + it*1024}")
    p.ext(epi2(1))
    if first and p0 and SW[1] > 112: p.ext(p0[2])
    for it in range(3):
        b = 16 + 4*it
        p(f"v_add_f32 v{b}, v{b}, v{b+1}\nv_add_f32 v{b+2}, v{b+2}, v{b+3}\nv_add_f32 v{b}, v{b}, v{b+2}")
    p(f"""s_mov_b64 exec, s[34:35]
buffer_atomic_add_f32 v16, v13, s[8:11], s28 offen
buffer_atomic_add_f32 v20, v13, s[8:11], s28 offen offset:1024
s_mov_b64 exec, -1""")
    p.ext(qst(1))
    p(f"""s_cmp_eq_u32 s16, 0
s_cbranch_scc0 L_{n}_end
s_mov_b64 exec, s[38:39]
buffer_atomic_add_f32 v24, v13, s[8:11], s28 offen offset:2048
s_mov_b64 exec, -1
L_{n}_end:""")
    for k, i in enumerate(p.ins):
        if i.kind == 'vm' and i.w and i.w[0][0] == 'a' and 's50' in i.r:
            assert not any(j.kind == 'mfma' and set(j.r) & set(i.w) for j in p.ins[k:]), i.text
    p(nst('a_st'))
    if first: p("s_branch L_ab")
    return p.finish() + (f2[3] if first and p2 is not None else "")

A2 = [False]
RAB = [0, 0]
QB2, TAGL, LXD, S80 = 147456, 152576, 152832, 153600
A_MAP2 = """s_and_b32 s17, s2, 7
s_lshr_b32 s18, s2, 3
s_lshr_b32 s19, s17, 2
s_lshl_b32 s19, s19, 3
s_and_b32 s20, s18, 7
s_add_u32 s19, s19, s20
s_and_b32 s20, s17, 3
s_lshl_b32 s20, s20, 2
s_lshr_b32 s21, s18, 3
s_add_u32 s20, s20, s21
s_lshl_b32 s17, s20, 1
s_and_b32 s18, s19, 1
s_add_u32 s17, s17, s18
s_xor_b32 s18, s17, 1"""

def a_map2(m):
    if m == 0: return A_MAP2
    nb = 3 - m
    return f"""s_bfe_u32 s19, s2, {hex(((1 + m) << 16) | (2 - m))}
s_lshl_b32 s19, s19, {nb}
s_bfe_u32 s20, s2, {hex((nb << 16) | 3)}
s_add_u32 s19, s19, s20
""" + (f"s_and_b32 s20, s2, 1\ns_lshl_b32 s20, s20, 3\ns_lshr_b32 s21, s2, 5\ns_add_u32 s20, s20, s21\n" if m == 1 else "s_lshr_b32 s20, s2, 4\n") + """s_lshl_b32 s17, s20, 1
s_and_b32 s18, s19, 1
s_add_u32 s17, s17, s18
s_xor_b32 s18, s17, 1"""
def a2_part(first, p2=None, K1=12, D0=10, RT=1.25, D1=8, R1=1.0, NW=8, qsf="sc1", NP1=36, PD=1, yf='sc1', FP=(0, 0, 100, 132),
            BAR=None, E0=2, E1=None, W1=(50, 94), NPa=8, LT=(20, 44), rr=0, SG=3, LEAD=8, c32=False, **kw):
    n = "a0" if first else "a1"
    L_ = 0 if first else LS
    p = Prog()
    p(A_MAP2 if first else a_map2(AM1[0]))
    p(f"""s_lshl_b32 s21, s19, 2
s_add_u32 s21, s21, s16
s_mul_i32 s22, s21, 36864
s_add_u32 s22, s22, {YF + L_}""")
    if first: p(f"""s_lshl_b32 s25, s16, 11
s_mul_i32 s24, s17, 73728
s_mul_i32 s23, s18, 73728
s_add_u32 s60, s25, {WQF}
s_add_u32 s24, s24, s60
s_add_u32 s23, s23, s60""")
    ACC, WR, P0, V1, TMP, KVA, QO, VB2 = 16, 80, 112, 120, 128, 136, 152, 158
    KVO = (0, 11264)
    yreg = lambda kk: ('a', 4*kk) if kk < 16 else ('v', 164 + 4*(kk - 16))
    units = [(kk, h) for kk in range(K1) for h in range(2)] + [(kk, 0) for kk in range(K1, 36)] + [(kk, 1) for kk in range(K1, 36)]
    uof = {u: i for i, u in enumerate(units)}
    C1 = K1 // 4
    if BAR is None:
        BAR = [[(0, c), (1, c)] for c in range(C1)] + [[(0, c), (0, c + 1)] if c < 8 else [(0, c)] for c in range(C1, 9, 2)] + [[(1, c) for c in range(c0, min(9, c0 + SG))] for c0 in range(C1, 9, SG)]
    assert sorted(x for g in BAR for x in g) == [(h, c) for h in range(2) for c in range(9)]
    bar_at = {}
    items = []
    for g in BAR:
        u0 = min(uof[(4*c, h)] for h, c in g)
        bar_at[2*u0] = [f"w{h}{c}" for h, c in g]
        if first:
            for h, c in g:
                sr = (24, 23)[h]
                L = [f"s_add_u32 m0, s25, {h*73728 + c*8192}" if (h or c) else "s_mov_b32 m0, s25"]
                a = I(f"buffer_load_dwordx4 v3, s[8:11], s{sr} offen {HF[0]} lds", tag=f"w{h}{c}")
                b = I(f"buffer_load_dwordx4 v3, s[8:11], s{sr} offen offset:1024 {HF[0]} lds", tag=f"w{h}{c}")
                items.append((u0 - 4, 2, L + [a, b] + ([f"s_addk_i32 s{sr}, 8192"] if c < 8 else [])))
    for kk in range(36):
        R, r = yreg(kk)
        pre = ["s_addk_i32 s22, 4096"] if (kk % 4 == 0 and kk) else []
        items.append((uof[(kk, 0)], 1, pre + [f"buffer_load_dwordx4 {R}[{r}:{r+3}], v3, s[8:11], s22 offen offset:{(kk%4)*1024} {yf}"]))
    items.sort(key=lambda x: x[0])
    st = dict(ip=0, n=0)
    def issue(nmax, u=-99):
        L = []
        while st['ip'] < len(items) and (st['n'] < nmax or items[st['ip']][0] <= u + LEAD):
            L += items[st['ip']][2]; st['n'] += items[st['ip']][1]; st['ip'] += 1
        return L
    setup = f"""v_lshlrev_b32 v13, 2, v0
v_add_u32 v4, 65536, v3
v_add_u32 v{VB2}, 131072, v3
s_mul_i32 s28, s16, 1280
s_add_u32 s28, s28, {QB2 - 20*64}
v_and_b32 v5, 31, v2
v_lshlrev_b32 v5, 6, v5
v_lshrrev_b32 v9, 5, v2
v_lshl_add_u32 v5, v9, 5, v5
v_add_u32 v5, s28, v5
v_bfe_u32 v6, v2, 2, 2
v_lshl_add_u32 v6, v9, 2, v6
v_lshlrev_b32 v6, 6, v6
v_and_b32 v7, 1, v2
v_lshl_add_u32 v6, v7, 5, v6
v_bfe_u32 v7, v2, 4, 1
v_lshl_add_u32 v6, v7, 4, v6
v_bfe_u32 v7, v2, 1, 1
v_lshl_add_u32 v6, v7, 3, v6
s_add_u32 s28, s28, {20*64}
v_add_u32 v6, s28, v6
v_lshlrev_b32 v7, 2, v2
s_mul_i32 s28, s16, 2560
v_add_u32 v15, s28, v3
v_lshlrev_b32 v14, 3, v2
v_add_u32 v14, s28, v14
v_and_b32 v8, 27, v2
v_cmp_eq_u32 s[30:31], 18, v8
v_mov_b32 v8, 0x3f803f80
s_mov_b32 s32, 0xfff00000
s_mov_b32 s33, 0xfff00000
s_lshl_b32 s26, s21, 5
s_add_u32 s26, s26, s17
s_lshl_b32 s27, s26, 8
s_lshl_b32 s26, s26, 10
s_add_u32 s26, s26, {PQ16 + L_}
s_add_u32 s27, s27, {PQ4 + L_}"""
    p(setup)
    if first:
        p(kq.a0_go(True))
        p(nst('a_go'))
        p.ext(issue(D0))
        p("ds_read_b32 v161, v162\nv_readfirstlane_b32 s3, v161")
    else:
        p(f"""s_lshl_b32 s28, s19, 2
{"s_and_b32 s29, s2, 3" if rr == 0 else "s_lshr_b32 s29, s2, 6"}
s_add_u32 s28, s28, s29
s_lshl_b32 s28, s28, 8
s_add_u32 s28, s28, {CNT + LS + CDA}
v_lshlrev_b32 v10, 7, v2
s_mov_b32 s49, 0x40000
s_waitcnt vmcnt(0)
s_cmp_eq_u32 s16, 0
s_cbranch_scc1 L_da_w0""")
        L = f"""s_sub_u32 s29, s16, 1
s_lshl_b32 s56, s29, 13
s_add_u32 s56, s56, {2048*(36 - K1)}
s_mul_i32 s57, s17, 73728
s_add_u32 s57, s57, s56
s_add_u32 s57, s57, {WQF}""".split("\n")
        assert K1 == 12
        for k in range(2):
            L += [f"s_add_u32 m0, s56, {k*4096}", "s_nop 0"] + [f"buffer_load_dwordx4 v3, s[8:11], s57 offen offset:{i*1024} {HF[0]} lds" for i in range(4)] + (["s_addk_i32 s57, 4096"] if k == 0 else [])
        L += f"""s_lshl_b32 s56, s29, 14
s_add_u32 s56, s56, {2048*K1}
s_mul_i32 s57, s18, 73728
s_add_u32 s57, s57, s56
s_add_u32 s57, s57, {WQF}""".split("\n")
        for k in range(4):
            L += [f"s_add_u32 m0, s56, {73728 + k*4096}", "s_nop 0"] + [f"buffer_load_dwordx4 v3, s[8:11], s57 offen offset:{i*1024} {HF[0]} lds" for i in range(4)] + (["s_addk_i32 s57, 4096"] if k < 3 else [])
        p(kq.off("\n".join(L + ["s_branch L_da_go", "L_da_w0:"])))
        p(spin("da", 28, 10, 250, 2, 8, PD))
        p("s_barrier")
        p(nst('a_go'))
        p.ext(issue(D1))
    def wrd(f):
        kk, h = units[f // 2]; t = f % 2
        s = WR + 4*(f % NW)
        L = []
        if first and f in bar_at: L.append(I("s_barrier", needs=bar_at[f]))
        a = h*73728 + kk*2048 + t*1024
        L.append(f"ds_read_b128 v[{s}:{s+3}], v{(3, 4, VB2)[a >> 16]} offset:{a & 65535}")
        return L
    for f in range(NW - 1): p.ext(wrd(f))
    p(nst('a_first'))
    G = []
    for u, (kk, h) in enumerate(units):
        R, y = yreg(kk)
        for t in range(2):
            f = 2*u + t
            w = WR + 4*(f % NW)
            acc = ACC + 32*h + 16*t
            c = "0" if kk == 0 else f"v[{acc}:{acc+15}]"
            grp = [f"v_mfma_f32_32x32x16_bf16 v[{acc}:{acc+15}], {R}[{y}:{y+3}], v[{w}:{w+3}], {c}"]
            if f + NW - 1 < 144: grp += wrd(f + NW - 1)
            if t == 1: grp += issue((D0 + (u + 1)*RT) if first else (D1 + (u + 1)*R1), u)
            G.append(grp)
    assert st['ip'] == len(items)
    def epi1(h):
        T0 = ACC + 32*h; T1 = T0 + 16
        L = []
        for i in range(8): L.append(f"v_cvt_pk_bf16_f32 v{V1+i}, v{T1+2*i}, v{T1+2*i+1}")
        for i in range(8): L.append(f"v_cndmask_b32 v{V1+i}, v{V1+i}, v8, s[30:31]")
        ph = phi(list(range(T0, T0 + 16)), TMP)
        pk = [f"v_cvt_pk_bf16_f32 v{P0+i}, v{T0+2*i}, v{T0+2*i+1}" for i in range(8)]
        mm = [f"v_mfma_f32_32x32x16_bf16 v[{KVA}:{KVA+15}], v[{P0+4*q}:{P0+4*q+3}], v[{V1+4*q}:{V1+4*q+3}], " + ("0" if q == 0 else f"v[{KVA}:{KVA+15}]") for q in range(2)]
        L = ph[:32] + pk[:4] + L + [mm[0]] + ph[32:] + pk[4:] + [mm[1]]
        L.append(["s_mov_b64 exec, s[32:33]",
                  f"ds_write_b128 v5, v[{V1}:{V1+3}] offset:512", f"ds_write_b128 v5, v[{V1+4}:{V1+7}] offset:528",
                  f"ds_write_b128 v5, v[{P0}:{P0+3}]", f"ds_write_b128 v5, v[{P0+4}:{P0+7}] offset:16",
                  "s_mov_b64 exec, -1"])
        L += [f"ds_read_b64_tr_b16 v[{QO}:{QO+1}], v6", f"ds_read_b64_tr_b16 v[{QO+2}:{QO+3}], v6 offset:768", f"ds_read_b64_tr_b16 v[{QO+4}:{QO+5}], v6 offset:512"]
        return L
    def epi2():
        u = TMP + 4
        L = [f"v_lshlrev_b32 v{u}, 16, v{QO+2}", f"v_and_b32 v{u+1}, 0xffff0000, v{QO+2}", f"v_lshlrev_b32 v{u+2}, 16, v{QO+3}", f"v_and_b32 v{u+3}, 0xffff0000, v{QO+3}"]
        L += phi([u, u+1, u+2, u+3], TMP)
        L += [f"v_cvt_pk_bf16_f32 v{QO+2}, v{u}, v{u+1}", f"v_cvt_pk_bf16_f32 v{QO+3}, v{u+2}, v{u+3}"]
        return L
    def qst(h):
        L = ["s_xor_b32 s26, s26, 1024", "s_xor_b32 s27, s27, 256"] if h else []
        return L + [f"buffer_store_dwordx4 v[{QO}:{QO+3}], v3, s[8:11], s26 offen {qsf}", f"buffer_store_dword v{QO+4}, v7, s[8:11], s27 offen {qsf}"]
    kvw = lambda h: [I(f"ds_write_b128 v15, v[{KVA}:{KVA+3}] offset:{KVO[h]}", tag=f'kv{h}'), I(f"ds_write_b128 v15, v[{KVA+4}:{KVA+7}] offset:{KVO[h] + 1024}", tag=f'kv{h}'),
                     I(f"ds_write_b64 v14, v[{KVA+8}:{KVA+9}] offset:{KVO[h] + 2048}", tag=f'kv{h}')]
    RB = (16, 32)
    kvr = lambda h: [f"ds_read_b32 v{RB[h] + 4*it + w}, v13 offset:{KVO[h] + w*2560 + it*1024}" for it in range(3) for w in range(4)]
    def kva(h):
        L = []
        for it in range(3):
            b = RB[h] + 4*it
            L += [f"v_add_f32 v{b}, v{b}, v{b+1}", f"v_add_f32 v{b+2}, v{b+2}, v{b+3}", f"v_add_f32 v{b}, v{b}, v{b+2}"]
        return L
    def kat(h):
        b = RB[h]; sk = 28 + h
        return [["s_mov_b64 exec, s[34:35]", f"buffer_atomic_add_f32 v{b}, v13, s[8:11], s{sk} offen", f"buffer_atomic_add_f32 v{b+4}, v13, s[8:11], s{sk} offen offset:1024", "s_mov_b64 exec, -1"]], \
               [["s_cmp_eq_u32 s16, 0", f"s_cbranch_scc0 L_{n}_k{h}", "s_mov_b64 exec, s[38:39]", f"buffer_atomic_add_f32 v{b+8}, v13, s[8:11], s{sk} offen offset:2048 ; @", "s_mov_b64 exec, -1", f"L_{n}_k{h}:"]]
    late = f"""v_bfe_u32 v10, v0, 2, 5
v_lshrrev_b32 v12, 1, v0
v_cmp_gt_u32 s[34:35], 19, v10
v_cmp_eq_u32 s[36:37], 22, v10
s_or_b64 s[34:35], s[34:35], s[36:37]
v_cmp_gt_u32 s[38:39], 19, v12
v_cmp_eq_u32 s[36:37], 22, v12
s_or_b64 s[38:39], s[38:39], s[36:37]
s_mul_i32 s28, s17, 2560
s_add_u32 s28, s28, {KV + L_}
s_mul_i32 s29, s18, 2560
s_add_u32 s29, s29, {KV + L_}
s_lshr_b32 s51, s2, 6
s_mul_i32 s52, s51, 5
s_lshl_b32 s53, s51, 2
s_add_u32 s53, s53, 2
s_cmp_lt_u32 s51, 2
s_cselect_b32 s52, s52, s53
s_mul_i32 s50, s52, 36864
s_mul_i32 s53, s16, 9216
s_add_u32 s50, s50, s53
s_add_u32 s50, s50, {WOF}
s_lshl_b32 s54, s{17 if c32 else 20}, 7
s_add_u32 s54, s54, {CNT + CAB + L_}
v_lshlrev_b32 v10, 12, v2
v_mov_b32 v11, 1""".split("\n")
    wo = wo_loads(range(4))[:NP1]
    def put(L, a, b):
        for k, x in enumerate(L): G[a + k*(b - a)//len(L)] += x if isinstance(x, list) else [x]
    P3 = 2*(36 + K1)
    if first:
        f2 = kq.fchk('f2', 244, 57, 's3')
        G[FP[0]] = G[FP[0]] + kq.fsig('f2', 161, 162, 58)
        G[FP[2]] = G[FP[2]] + [f2[0]]
        for k, x in enumerate(f2[1]): G[FP[3] - 4 + k//2] = G[FP[3] - 4 + k//2] + [x]
        G[FP[3] + 1] = G[FP[3] + 1] + f2[2]
        put(wo[:NPa], FP[3] + 2, 144); rest = wo[NPa:]
    else:
        G[48] = G[48] + ["s_barrier"]
        assert 2*uof[(24, 0)] - NW >= 48
        put(wo, W1[0], W1[1]); rest = []
    G = [[y for x in g for y in (x if isinstance(x, list) else [x])] for g in G]
    for k in range(1, 144):
        if nst(f'a_g{k}'): G[k] = [nst(f'a_g{k}')] + G[k]
    k0, k1 = kat(0)
    fill = epi1(0) + kvw(0) + epi2() + qst(0) + [I("s_barrier", needs=['kv0'])] + kvr(0) + kva(0) + k0 + k1
    a = P3 + E0; b = E1 or 144
    for grp in G[:LT[0]]: p.ext(grp)
    p.ext(interleave(G[LT[0]:LT[1]], atomize(late)))
    for grp in G[LT[1]:a]: p.ext(grp)
    p.ext(interleave(G[a:b], fill))
    for grp in G[b:]: p.ext(grp)
    p(nst('a_epi'))
    e1 = epi1(1)
    kx = len(rest) * 2 // 3
    p.ext(interleave([x if isinstance(x, list) else [x] for x in e1], rest[:kx]))
    p.ext(kvw(1))
    for x in rest[kx:]: p.ext(x)
    p("s_waitcnt lgkmcnt(0)")
    p("s_barrier")
    p.ext(kvr(1)); p.ext(epi2()); p.ext(kva(1))
    k0, k1 = kat(1)
    p.ext(k0[0]); p.ext(qst(1)); p.ext(k1[0])
    for k, i in enumerate(p.ins):
        if i.op == 's_barrier':
            for t in i.needs: assert all(kk < k for kk, j in enumerate(p.ins) if j.tag == t), t
    p(nst('a_st'))
    if first: p("s_branch L_ab")
    return p.finish() + (f2[3] if first else "")

def w_mid2():
    L = f"""s_cmp_eq_u32 s63, 0
s_cbranch_scc0 L_wm_skip
s_and_b32 s52, s2, {(3, 1, 0)[AM1[0]]}
s_lshl_b32 s52, s52, {3 + AM1[0]}
s_lshr_b32 s53, s2, {6 - AM1[0]}
s_lshl_b32 s53, s53, 1
s_add_u32 s52, s52, s53
s_bfe_u32 s53, s2, 0x10003
s_add_u32 s52, s52, s53
s_xor_b32 s37, s52, 1
s_mul_i32 s52, s52, 73728
s_mul_i32 s37, s37, 73728
s_mul_i32 s53, s16, 12288
s_add_u32 s52, s52, s53
s_add_u32 s52, s52, {WQF}
s_mov_b32 m0, s53""".split("\n")
    for k in range(3):
        if k: L += [f"s_add_u32 m0, s53, {k*4096}", "s_addk_i32 s52, 4096"]
        L += ["s_nop 0"] + [f"buffer_load_dwordx4 v3, s[8:11], s52 offen offset:{i*1024} {HF[0]} lds" for i in range(4)]
    L += ["s_lshr_b32 s53, s53, 1", "s_add_u32 s37, s37, s53", f"s_add_u32 s37, s37, {WQF}"]
    for k in range(2):
        L += [f"s_add_u32 m0, s53, {73728 + k*4096}"] + (["s_addk_i32 s37, 4096"] if k else [])
        L += ["s_nop 0"] + [f"buffer_load_dwordx4 v3, s[8:11], s37 offen offset:{i*1024} {HF[0]} lds" for i in range(4 if k == 0 else 2)]
    return L

def ab_link(NP1=36, lp=None, NPw=0):
    p = Prog()
    if lp is not None: p(kq.LATE_KA)
    p(f"""s_and_b32 s17, s2, 7
s_lshl_b32 s17, s17, 3
s_bfe_u32 s19, s2, 0x30003
s_add_u32 s17, s17, s19
s_mov_b32 s18, s52
{chr(10).join(y for x in wo_loads(range(4))[NP1:NP1 + NPw] for y in x)}
s_waitcnt vmcnt({NPw})
s_barrier
s_cmp_eq_u32 s16, 0
s_cbranch_scc0 L_ab_ns
s_mov_b64 exec, {0xff if RAB[0] == 1 else 0xffff}
buffer_atomic_add v11, v10, s[8:11], s54 offen
s_mov_b64 exec, -1
L_ab_ns:""")
    p(nst('a_sig'))
    for x in wo_loads(range(4))[NP1 + NPw:]: p.ext(x)
    if lp is not None: p(kq.late_setup()); p(kq.late_dmas(**lp))
    return p.finish() + "  s_cmp_lt_u32 s51, 2\n  s_cbranch_scc0 L_b4\n"

def b_part(NT, cz, xsf="sc1", PFD=3, PD=1, lf='sc1', allp=False, pbar=False, x4=False, dx=False, sb=None, PFN=5, PFR=(99, 0), BL0=8, BLX=None):
    p = Prog()
    KVR, NUM, TL, ACC, XR = 16, 112, 144, 152, 232
    aPQ = 0
    if NT == 5:
        for x in wo_loads(range(3, 5))[9:]: p.ext(x)
    p(f"""s_lshl_b32 s19, s16, 3
s_mul_i32 s20, s19, 2560
s_add_u32 s20, s20, {KV}{lay('s20')}
s_lshl_b32 s21, s17, 5
s_add_u32 s21, s21, s19
s_lshl_b32 s22, s21, 8
s_lshl_b32 s21, s21, 10
s_add_u32 s21, s21, {PQ16}{lay('s21')}
s_add_u32 s22, s22, {PQ4}{lay('s22')}
v_lshlrev_b32 v4, 3, v2
v_lshlrev_b32 v5, 2, v2
v_and_b32 v6, 24, v2
v_cmp_eq_u32 vcc, 24, v6
v_mov_b32 v6, 0x40000000
v_cndmask_b32 v12, v3, v6, vcc
v_cndmask_b32 v4, v4, v6, vcc
v_add_u32 v6, 4096, v3
s_mul_i32 s25, s17, 36864
s_lshl_b32 s26, s18, 11
s_add_u32 s25, s25, s26
s_lshl_b32 s26, s16, 9
s_add_u32 s25, s25, s26{lay('s25')}
s_add_u32 s26, s25, {XF}
s_add_u32 s27, s25, {X1F}
v_and_b32 v8, 31, v2
v_lshlrev_b32 v8, 4, v8
v_lshrrev_b32 v9, 5, v2
v_lshl_add_u32 v8, v9, 3, v8
v_add_u32 v9, 4096, v8
v_add_u32 v10, 8192, v8""")
    if x4:
        p("""v_and_b32 v246, 31, v2
v_lshrrev_b32 v247, 5, v2
v_lshlrev_b32 v8, 4, v246
v_lshl_add_u32 v8, v247, 11, v8
v_add_u32 v9, 4096, v8""")
        if dx:
            p(f"""s_mul_i32 s31, s17, 36864
s_lshl_b32 s32, s18, 6
s_add_u32 s31, s31, s32
s_lshl_b32 s32, s16, 4
s_add_u32 s31, s31, s32
s_cmp_eq_u32 s63, 0
s_cselect_b32 s26, s31, s26
s_cselect_b32 s31, 1152, 16
s_cselect_b32 s32, 64, 2048
v_mul_u32_u24 v246, s31, v246
v_mul_u32_u24 v13, s32, v247
v_lshl_add_u32 v247, v247, 3, v246
v_add_u32 v246, v246, v13
s_lshl_b32 s32, s32, 1
s_add_u32 s31, s26, s32
s_add_u32 s32, s31, s32""")
    for h in range(8): p(f"v_accvgpr_write_b32 a{aPQ+6*h+5}, 0")
    for g in range(1, 4):
        p(f"""s_add_u32 s28, s16, {g}
s_and_b32 s28, s28, 3
s_mul_i32 s28, s28, {3*NT*1024}
s_add_u32 s28, s28, {(g-1)*NT*1024}
v_add_u32 v{242+g}, s28, v3""")
    p(f"s_mul_i32 s28, s16, {3*NT*1024}\nv_add_u32 v14, s28, v3")
    p(f"s_lshl_b32 s28, s17, 8\ns_add_u32 s28, s28, {ST}{lay('s28')}")
    p.ext(cz[1])
    p(f"s_lshr_b32 s67, s17, 1\ns_lshl_b32 s67, s67, 2\ns_add_u32 s67, s67, s16\ns_lshl_b32 s67, s67, 7\ns_add_u32 s67, s67, {CNT + REP['bc'][0]}{lay('s67')}")
    pf = list(cz[3])
    if not allp and not pbar:
        for x in pf[:3]: p.ext(x)
    p(f"""s_lshl_b32 s29, s16, 10
s_bfe_u32 s30, s2, {('0x40003', '0x30000', '0x40000')[RAB[0]]}
s_lshl_b32 s30, s30, 12
s_add_u32 s29, s29, s30
s_add_u32 s29, s29, {CNT + CAB}{lay('s29')}
v_lshlrev_b32 v7, 7, v2
s_mov_b32 s49, 0x40000""")
    if allp:
        p(f"s_waitcnt vmcnt(0)\ns_cmp_eq_u32 s16, 0\ns_cbranch_scc0 L_ab{NT}_go")
        p(spin(f"ab{NT}", 29, 7, 250, 32, 8, PD)); p("s_barrier")
    elif sb is not None:
        p(f"s_cmp_eq_u32 s16, 0\ns_cbranch_scc0 L_ab{NT}_go")
        p(spin(f"ab{NT}", 29, 7, 250, 16, 16, PD) if A2[0] == 1 else spin(f"ab{NT}", 29, 7, 250, 32, 8, PD)); p("s_barrier")
    else: p(spin(f"ab{NT}", 29, 7, 250, 8, 8, PD))
    if sb is None: p.ins.append(I("s_nop 0", tag='__clr'))
    p(nst('b_go'))
    def hld(h):
        k = KVR + 12*h; q = aPQ + 6*h
        L = f"""buffer_load_dwordx4 v[{k}:{k+3}], v12, s[8:11], s20 offen {lf}
buffer_load_dwordx4 v[{k+4}:{k+7}], v12, s[8:11], s20 offen offset:1024 {lf}
buffer_load_dwordx2 v[{k+8}:{k+9}], v4, s[8:11], s20 offen offset:2048 {lf}
buffer_load_dwordx4 a[{q}:{q+3}], v{(3,6)[h//4]}, s[8:11], s21 offen offset:{(h%4)*1024} {lf}
buffer_load_dword a{q+4}, v5, s[8:11], s22 offen offset:{h*256} {lf}""".split("\n")
        L = [[x] for x in L]
        if h < 7: L[2].append("s_addk_i32 s20, 2560")
        return L
    xld = []
    if x4:
        for u in range(2): xld.append([f"buffer_load_dwordx4 v[{XR+4*u}:{XR+4*u+3}], " + (f"v246, s[12:15], s{(26, 31)[u]}" if dx else f"v{8+u}, s[8:11], s26") + f" offen {lf}"])
        if NT == 5: xld.append([f"buffer_load_dwordx2 v[{XR+8}:{XR+9}], " + ("v247, s[12:15], s32" if dx else "v10, s[8:11], s26") + f" offen {lf}"])
    else:
        for t in range(NT): xld.append([f"buffer_load_dwordx2 v[{XR+2*t}:{XR+2*t+1}], v{8 + t//2}, s[8:11], s26 offen offset:{(t%2)*2048} {lf}"])
    for h in range(BL0):
        for x in hld(h): p.ext(x)
    if BLX is None: BLX = 8 - BL0
    if BL0 == 8:
        for x in xld: p.ext(x)
    def prep(h):
        k = KVR + 12*h; q = aPQ + 6*h; n = NUM + 16*(h % 2)
        L = [f"v_cvt_pk_bf16_f32 v{k+i}, v{k+2*i}, v{k+2*i+1}" for i in range(5)]
        L.append(f"v_mov_b32 v{k+5}, 0")
        L.append(f"v_mfma_f32_32x32x16_bf16 v[{n}:{n+15}], v[{k}:{k+3}], a[{q}:{q+3}], 0")
        L.append(f"v_mfma_f32_32x32x8_bf16 v[{n}:{n+15}], v[{k+4}:{k+5}], a[{q+4}:{q+5}], v[{n}:{n+15}]")
        return L
    def post(h):
        n = NUM + 16*(h % 2); o = KVR + 12*h + 8
        L = [f"v_add_f32 v11, 0x358637bd, v{n+10}", "v_rcp_f32 v11, v11"]
        for i in range(10): L.append(f"v_mul_f32 v{n+i}, v{n+i}, v11")
        for i in range(4): L.append(f"v_cvt_pk_bf16_f32 v{o+i}, v{n+2*i}, v{n+2*i+1}")
        L.append(f"v_cvt_pk_bf16_f32 v{TL + h//2 + 4*(h%2)}, v{n+8}, v{n+9}")
        return L
    def gemm(ks):
        o = KVR + 12*ks + 8 if ks < 8 else TL
        G = []
        for t in range(NT):
            r = aWOr(ks, t); a = ACC + 16*t
            c = "0" if ks == 0 else f"v[{a}:{a+15}]"
            G.append([f"v_mfma_f32_32x32x16_bf16 v[{a}:{a+15}], a[{r}:{r+3}], v[{o}:{o+3}], {c}"])
        return G
    flat = lambda L: [y for x in L for y in (x if isinstance(x, list) else [x])]
    for st in range(11):
        ks = st - PFD
        nl = pf[3 + PFN*ks: 3 + PFN*(ks + 1)] if ks >= 0 else []
        if BL0 < 8: nl = (hld(st + BL0) if st + BL0 < 8 else []) + (xld if st == BLX else []) + nl
        if (allp or pbar) and ks == -1: nl = pf[:3]
        if pbar and ks == -1: p('s_barrier')
        p(nst(f'b_s{st}'))
        if st < 8: p.ext(prep(st))
        fill = post(st - 1) if 0 <= st - 1 < 8 else []
        if st == 9: fill = [f"v_permlane32_swap_b32 v{TL+i}, v{TL+4+i}" for i in range(4)]
        if nl:
            m = []; step = max(1, len(fill) // len(nl)) if fill else 1; fi = 0
            for x in nl:
                m.append(x); m += fill[fi:fi+step]; fi += step
            fill = m + fill[fi:]
        if st >= 2: p.ext(interleave(gemm(st - 2), fill))
        else: p.ext(flat(fill))
    rest = pf[3 + PFN*(10 - PFD + 1):]
    r0, r1, r2 = rest[:PFR[0]], rest[PFR[0]:PFR[0] + PFR[1]], rest[PFR[0] + PFR[1]:]
    p(nst('b_gemm'))
    p.ext(interleave([[f"ds_write_b128 v{242+g}, v[{ACC + 16*t + 4*g}:{ACC + 16*t + 4*g + 3}] offset:{t*1024}"] for t in range(NT) for g in range(1, 4)], r0))
    p("s_waitcnt lgkmcnt(0)")
    p(nst('b_w'))
    p("s_barrier")
    p(nst('b_bar'))
    RD = KVR
    for t in range(NT):
        for g in range(3):
            r = RD + 12*t + 4*g
            p(f"ds_read_b128 v[{r}:{r+3}], v14 offset:{(g*NT + t)*1024}")
    for x in r1: p.ext(x)
    p("v_mov_b32 v15, 0\nv_mov_b32 v11, 0")
    swp = lambda u: f"v_permlane32_swap_b32 v{XR+4*u}, v{XR+4*u+2}\nv_permlane32_swap_b32 v{XR+4*u+1}, v{XR+4*u+3}"
    if x4:
        for u in range(2): p(swp(u))
    for t in range(NT):
        a = ACC + 16*t; x = XR + 2*t; u = a + 4
        p(f"v_lshlrev_b32 v{u}, 16, v{x}\nv_and_b32 v{u+1}, 0xffff0000, v{x}\nv_lshlrev_b32 v{u+2}, 16, v{x+1}\nv_and_b32 v{u+3}, 0xffff0000, v{x+1}")
        for i in range(4): p(f"v_add_f32 v{a+i}, v{a+i}, v{u+i}")
    for t in range(NT):
        a = ACC + 16*t; r = RD + 12*t; x = XR + 2*t
        for i in range(4): p(f"v_add_f32 v{a+i}, v{a+i}, v{r+i}")
        for i in range(4): p(f"v_add_f32 v{r+4+i}, v{r+4+i}, v{r+8+i}")
        for i in range(4): p(f"v_add_f32 v{a+i}, v{a+i}, v{r+4+i}")
        p(f"v_cvt_pk_bf16_f32 v{x}, v{a}, v{a+1}\nv_cvt_pk_bf16_f32 v{x+1}, v{a+2}, v{a+3}")
        if not x4 or t == 4: p(f"buffer_store_dwordx2 v[{x}:{x+1}], v{8 + t//2}, s[8:11], s27 offen offset:{(t%2)*2048} {xsf}")
        elif t % 2: p(swp(t//2)); p(f"buffer_store_dwordx4 v[{x-2}:{x+1}], v{8 + t//2}, s[8:11], s27 offen {xsf}")
    p(nst('b_x1'))
    for t in range(NT):
        a = ACC + 16*t; x = XR + 2*t; u = a + 4
        p(f"v_lshlrev_b32 v{u}, 16, v{x}\nv_and_b32 v{u+1}, 0xffff0000, v{x}\nv_lshlrev_b32 v{u+2}, 16, v{x+1}\nv_and_b32 v{u+3}, 0xffff0000, v{x+1}")
        for i in range(4): p(f"v_add_f32 v15, v15, v{u+i}\nv_fmac_f32 v11, v{u+i}, v{u+i}")
    p(f"""v_permlane32_swap_b32 v15, v11
v_add_f32 v15, v15, v11
buffer_atomic_add_f32 v15, v5, s[8:11], s28 offen
v_lshlrev_b32 v4, 14, v2
v_mov_b32 v6, 1
{nst('b_st')}
s_waitcnt vmcnt(0)
s_mov_b64 exec, {(1 << REP['bc'][1]) - 1}
buffer_atomic_add v6, v4, s[8:11], s67 offen
s_mov_b64 exec, -1""")
    p(nst('b_sig'))
    for x in r2: p.ext(x)
    if NT == 5: p("s_branch L_bc_c")
    return p.finish(), ''

def w_mid():
    L = f"""s_cmp_eq_u32 s63, 0
s_cbranch_scc0 L_wm_skip
{a_head1()}
s_mul_i32 s52, s52, 73728
s_add_u32 s52, s52, {WQF}
s_mul_i32 s53, s16, 18432
s_add_u32 s52, s52, s53
s_mov_b32 m0, s53""".split("\n")
    for k in range(5):
        if k: L += [f"s_add_u32 m0, s53, {k*4096}", "s_addk_i32 s52, 4096"]
        L += ["s_nop 0"] + [f"buffer_load_dwordx4 v3, s[8:11], s52 offen offset:{i*1024} {HF[0]} lds" for i in range(4 if k < 4 else 2)]
    return L

def w_early():
    L = f"""s_cmp_eq_u32 s63, 0
s_cbranch_scc0 L_we_skip
s_and_b32 s52, s2, 3
s_lshl_b32 s52, s52, 3
s_lshr_b32 s53, s2, 5
s_add_u32 s52, s52, s53
s_mul_i32 s52, s52, 73728
s_add_u32 s52, s52, {WQF}
s_sub_u32 s53, s16, 1
s_mul_i32 s53, s53, 24576
s_add_u32 s52, s52, s53
s_mov_b32 m0, s53""".split("\n")
    for k in range(6):
        if k: L += [f"s_add_u32 m0, s53, {k*4096}", "s_addk_i32 s52, 4096"]
        L += ["s_nop 0"] + [f"buffer_load_dwordx4 v3, s[8:11], s52 offen offset:{i*1024} lds ; @" for i in range(4)]
    return L + ["L_we_skip:", "s_branch L_cd_go"]

def d_part(sf="sc1", lf="sc1", PD=1, we=True, p0=False, dx=False, wk=False, two=None, peek=False, pre=False, late=False, own=False, xl=False, three=None, xlate=False):
    p = Prog()
    PL, XL, BL, X, U = 32, 112, 124, 136, 160
    LX = LXD if A2[0] else 131072
    p(f"""s_lshr_b32 s20, s17, 2
s_lshl_b32 s21, s18, 1
s_add_u32 s20, s20, s21
s_and_b32 s21, s17, 3
s_mul_i32 s22, s20, 36864
s_lshl_b32 s23, s21, 7
s_add_u32 s22, s22, s23
s_add_u32 s22, s22, s63
s_lshl_b32 s24, s20, 8
s_lshl_b32 s25, s21, 5
s_add_u32 s24, s24, s25
s_add_u32 s24, s24, {ST}
s_add_u32 s24, s24, s63
s_lshl_b32 s25, s20, 5
s_lshl_b32 s26, s21, 3
s_add_u32 s25, s25, s26
s_mul_i32 s25, s25, 1152
s_lshl_b32 s26, s18, 9
s_add_u32 s26, s26, {CNT + REP['cd'][0]}
s_add_u32 s26, s26, s63
s_lshl_b32 s36, s16, 7
s_add_u32 s36, s36, s26
s_and_b32 s27, s2, {REP['cd'][1] - 1}
s_lshl_b32 s27, s27, 14
s_add_u32 s26, s26, s27
v_and_b32 v4, 7, v0
v_lshrrev_b32 v5, 3, v0
v_lshlrev_b32 v6, 9, v5
v_lshl_add_u32 v6, v4, 4, v6
v_add_u32 v7, {8192 if two else 16384}, v6
v_lshrrev_b32 v8, 2, v5
v_lshlrev_b32 v8, 9, v8
v_lshl_add_u32 v8, v4, 4, v8
v_and_b32 v9, 3, v5
v_lshl_add_u32 v8, v9, 2, v8
v_add_u32 v8, 32768, v8
v_lshlrev_b32 v9, 4, v5
v_lshlrev_b32 v10, 2, v5
v_lshlrev_b32 v11, 2, v4
s_add_u32 s27, s22, {X1F}""")
    B0, O1 = (18, 256) if two else (9, 512)
    md = two[2] if two else None
    B1 = 9
    if md:
        B1, O1 = 18, 128
        p(f"""s_cmp_eq_u32 s16, 0
s_cselect_b32 s37, 2, 3
s_cmp_eq_u32 s16, 2
s_cselect_b32 s37, -2, s37
s_lshl_b32 s37, s37, 7
v_add_u32 v18, s37, v9
s_lshl_b32 s37, s37, 5
v_add_u32 v6, s37, v6
v_add_u32 v7, 4096, v6""")
    elif two:
        p(f"""s_lshr_b32 s37, s16, 1
s_lshl_b32 s37, s37, 9
v_add_u32 v18, s37, v9
s_lshl_b32 s37, s37, 5
v_add_u32 v6, s37, v6""")
    if two:
        p(f"""s_lshl_b32 s37, s18, 9
s_add_u32 s37, s37, {CNT + two[0]}
s_add_u32 s37, s37, s63""")
        if two[1] > 1: p(f"s_and_b32 s49, s2, {two[1] - 1}\ns_lshl_b32 s49, s49, 14\ns_add_u32 s37, s37, s49")
    srd(p, 12, 40, 1152)
    p(f"""buffer_load_dword v24, v11, s[8:11], s24 offen sc1
buffer_load_dword v25, v11, s[8:11], s24 offen offset:128 sc1""")
    if not xl: p(f"""buffer_load_dwordx4 v[{XL}:{XL+3}], v6, s[8:11], s27 offen sc1
buffer_load_dwordx4 v[{XL+4}:{XL+7}], v7, s[8:11], s27 offen sc1
buffer_load_dword v{XL+8}, v8, s[8:11], s27 offen sc1""")
    p(f"""buffer_load_dwordx4 v[{BL}:{BL+3}], v{B0}, s[12:15], 0 offen
buffer_load_dwordx4 v[{BL+4}:{BL+7}], v{B1}, s[12:15], 0 offen offset:{O1}
buffer_load_dword v{BL+8}, v10, s[12:15], 0 offen offset:1024
v_lshlrev_b32 v12, 14, v2
v_mov_b32 v13, 1
s_mov_b32 s49, 0x40000""")
    ldr = lambda r: [f"buffer_load_dwordx4 v[{PL+32*r+4*j}:{PL+32*r+4*j+3}], v{6+r}, s[8:11], s{28+j} offen {lf}" if r < 2 else f"buffer_load_dword v{PL+64+j}, v8, s[8:11], s{28+j} offen {lf}" for j in range(1 if own else 0, 8)]
    NA = 14 if own else 16
    def ptrs():
        for j in range(8):
            if not own: p(f"s_add_u32 s{28+j}, s22, {PART + j*ACT}")
            elif j: p(f"s_add_u32 s{28+j}, s17, {j}\ns_and_b32 s{28+j}, s{28+j}, 7\ns_mul_i32 s{28+j}, s{28+j}, {ACT}\ns_add_u32 s{28+j}, s{28+j}, s28")
            else: p(f"s_add_u32 s28, s22, {PART}\ns_lshr_b32 s29, s17, 2\ns_mul_i32 s29, s29, 36864\ns_add_u32 s29, s29, s23\ns_add_u32 s29, s29, 73728\nv_add_u32 v20, s29, v6\nv_add_u32 v21, s29, v7\nv_add_u32 v28, s29, v8")
    OWN = [f"ds_read_b128 v[{PL}:{PL+3}], v20", f"ds_read_b32 v{PL+64}, v28", f"ds_read_b128 v[{PL+32}:{PL+35}], v21"] if own else []
    LDS_ = ldr(0) + ldr(2) + ldr(1) if two and not md else ldr(0) + ldr(1) + ldr(2)
    SIG = f"""s_mov_b64 exec, {(1 << REP['cd'][1]) - 1}
buffer_atomic_add v13, v12, s[8:11], s36 offen
s_mov_b64 exec, -1
v_lshlrev_b32 v12, 7, v2"""
    if own: assert two and late and not md and not peek
    if peek or late: ptrs()
    if xl:
        assert own and pre
        p(f"v_subrev_u32 v29, 73728, v20\nv_subrev_u32 v30, 73728, v21\nv_subrev_u32 v31, 73728, v28\nds_read_b128 v[{XL}:{XL+3}], v29\nds_read_b128 v[{XL+4}:{XL+7}], v30\nds_read_b32 v{XL+8}, v31")
    if own: p("s_waitcnt lgkmcnt(0)")
    if peek:
        p(kq.off("\n".join(["s_waitcnt vmcnt(12)", "s_mov_b64 exec, 15", "v_cmp_gt_u32 vcc, 8, v23", "s_mov_b64 exec, -1", "s_nop 3", "s_cbranch_vccnz L_ca_slow"] + LDS_[:16] +
                           ["s_waitcnt vmcnt(24)", SIG, "s_barrier", "s_branch L_ca_m", "L_ca_slow:"])))
        p("s_waitcnt vmcnt(8)\n" + SIG)
        p("s_cmp_eq_u32 s16, 0\ns_cbranch_scc0 L_ca_go")
        sp = spin("ca", 37, 12, 250, 4, 8, PD).split("\n")
        p("\n".join(sp[:-1]))
        p(kq.off("\n".join(LDS_[:16] + ["s_barrier", "s_branch L_ca_m"])))
        p(sp[-1])
        p("s_barrier")
        p.ext(LDS_[:16])
        p("L_ca_m:")
    elif three:
        p(f"s_add_u32 s39, s37, {three[0] - two[0]}\nv_lshlrev_b32 v22, 7, v2\ns_mov_b64 exec, 15\nbuffer_load_dword v23, v22, s[8:11], s39 offen sc1\ns_mov_b64 exec, -1\ns_waitcnt vmcnt(%d)\n" % (6 if xl else 9) + SIG)
    elif pre:
        p("v_lshlrev_b32 v22, 7, v2\ns_mov_b64 exec, 15\nbuffer_load_dword v23, v22, s[8:11], s37 offen sc1\ns_mov_b64 exec, -1\ns_waitcnt vmcnt(%d)\n" % (6 if xl else 9) + SIG)
    else: p("s_waitcnt vmcnt(8)\n" + SIG)
    p(nst('d_sig'))
    nd = [4, 4, 1]
    def precomp():
        p(f"""v_mul_f32 v24, 0x3ae38e39, v24
v_mul_f32 v25, 0x3ae38e39, v25
v_fma_f32 v25, -v24, v24, v25
v_max_f32 v25, 0, v25
v_mov_b32 v26, 0x3f800054
v_mov_b32 v27, 0x2edbe6ff
v_fma_f32 v25, v25, v26, v27
v_rsq_f32 v25, v25
v_mov_b32 v14, 0x3f80
v_mov_b32 v15, 0x3f800000
v_mul_u32_u24 v16, 1152, v4
v_add_u32 v17, v16, v10
v_add_u32 v19, v16, v{B1}
v_add_u32 v18, v16, v{B0}""")
        for r in range(3):
            for i in range(nd[r]):
                x = XL + 4*r + i; b = BL + 4*r + i; u = U + 8*r + 2*i
                p(f"v_lshlrev_b32 v{u}, 16, v{x}\nv_and_b32 v{u+1}, 0xffff0000, v{x}\nv_lshlrev_b32 v{x}, 16, v{b}\nv_and_b32 v{b}, 0xffff0000, v{b}")
                p(f"v_add_f32 v{u}, v{u}, v{x}\nv_add_f32 v{u+1}, v{u+1}, v{b}")
    if not late: precomp()
    if not peek and not late:
        for j in range(8): p(f"s_add_u32 s{28+j}, s22, {PART + j*ACT}")
    if we == 1:
        p("s_cmp_eq_u32 s16, 0\ns_cbranch_scc1 L_cd_w0")
        p.ext(w_early()); p("L_cd_w0:")
    elif wk: p("s_cmp_eq_u32 s16, 0\ns_cbranch_scc1 L_cd_w0\n" + walk('wd', 1, 3) + "\ns_branch L_cd_go\nL_cd_w0:")
    elif not two or peek: p("s_cmp_eq_u32 s16, 0\ns_cbranch_scc0 L_cd_go")
    if md == 'own':
        p("s_cmp_lt_u32 s16, 2\ns_cselect_b32 s26, s26, s37")
        p(spin("cd", 26, 12, 250, 4, 8, PD))
        p(nst('d_go'))
        p.ext(LDS_)
    elif md == 'bar':
        p("s_cmp_eq_u32 s16, 0\ns_cbranch_scc0 L_ca_go")
        p(spin("ca", 37, 12, 250, 4, 8, PD))
        p("s_barrier")
        p(nst('d_ga'))
        p("s_cmp_lt_u32 s16, 2\ns_cbranch_scc1 L_cd_w0")
        p(kq.off("\n".join(LDS_ + ["s_barrier", "s_branch L_cd_ld"])))
        p("L_cd_w0:\ns_cmp_eq_u32 s16, 0\ns_cbranch_scc0 L_cd_go")
        p(spin("cd", 26, 12, 250, 4, 8, PD))
        p("s_barrier")
        p(nst('d_go'))
        p.ext(LDS_)
        p("L_cd_ld:")
    elif three:
        n7 = NA // 2
        LDS_ = ldr(2) + ldr(0) + ldr(1)
        p("s_cmp_eq_u32 s16, 0\ns_cbranch_scc0 L_c1_go")
        p(kq.off("s_waitcnt vmcnt(1)\ns_mov_b64 exec, 15\nv_cmp_gt_u32 vcc, 8, v23\ns_nop 4\ns_cbranch_vccz L_c1_ok"))
        p(spin("c1", 39, 12, 250, 4, 8, PD))
        p("s_barrier")
        p(nst('d_g1'))
        p("s_cmp_lt_u32 s16, 2\ns_cbranch_scc1 L_c1_lo")
        p(kq.off("\n".join(ldr(0) + ldr(2) + ["s_barrier", "s_branch L_cd_w0", "L_c1_lo:"])))
        p.ext(LDS_[:n7])
        p("s_cmp_eq_u32 s16, 0\ns_cbranch_scc0 L_ca_go")
        p(spin("ca", 37, 12, 250, 4, 8, PD))
        p("s_barrier")
        p(nst('d_ga'))
        p.ext(LDS_[n7:NA])
        p("L_cd_w0:"); p.ext(OWN); precomp(); p("s_waitcnt lgkmcnt(0)" if own else ""); p("s_cmp_eq_u32 s16, 0\ns_cbranch_scc0 L_cd_go")
    elif two and not peek:
        p("s_cmp_eq_u32 s16, 0\ns_cbranch_scc0 L_ca_go")
        if pre: p(kq.off("s_waitcnt vmcnt(1)\ns_mov_b64 exec, 15\nv_cmp_gt_u32 vcc, 8, v23\ns_nop 4\ns_cbranch_vccz L_ca_ok"))
        sp = spin("ca", 37, 12, 250, 4, 8, PD).split("\n")
        p("\n".join(sp[:-1]))
        p(kq.off("\n".join(LDS_[:NA] + ["s_barrier", "s_branch L_cd_w0"])))
        p(sp[-1])
        p("s_barrier")
        p(nst('d_ga'))
        p.ext(LDS_[:NA])
        if late:
            p("L_cd_w0:"); p.ext(OWN); precomp(); p("s_waitcnt lgkmcnt(0)" if own else ""); p("s_cmp_eq_u32 s16, 0\ns_cbranch_scc0 L_cd_go")
        else: p("s_branch L_cd_go\nL_cd_w0:")
    if not md:
        p(spin("cd", 26, 12, 250, 4, 8, PD))
        p("s_barrier")
        p(nst('d_go'))
        p.ext(LDS_[NA:] if two else LDS_)
    def sums(p):
        for r in ((0, 2, 1) if two and not md else range(3)):
            src = lambda j, i: PL + 32*r + 4*j + i if r < 2 else PL + 64 + j
            for i in range(nd[r]): p(f"v_lshlrev_b32 v{X+8*r+2*i}, 16, v{src(0, i)}\nv_and_b32 v{X+8*r+2*i+1}, 0xffff0000, v{src(0, i)}")
            for j in range(1, 8):
                for i in range(nd[r]): p(f"v_dot2c_f32_bf16 v{X+8*r+2*i}, v{src(j, i)}, v14\nv_dot2c_f32_bf16 v{X+8*r+2*i+1}, v{src(j, i)}, v15")
            for i in range(2*nd[r]): p(f"v_fma_f32 v{X+8*r+i}, v{X+8*r+i}, v25, v{U+8*r+i}")
            for i in range(nd[r]): p(f"v_cvt_pk_bf16_f32 v{PL+32*r+i}, v{X+8*r+2*i}, v{X+8*r+2*i+1}")
    if we == 2:
        p.ext(w_mid2() if A2[0] else w_mid())
        n0 = len(p.ins); sums(p)
        p("s_branch L_cd_mid\nL_wm_skip:")
        q = Prog()
        q.ext(LDS_)
        sums(q); q.resolve_waits()
        for i in q.ins[len(LDS_):]: i.text += " ; @"
        p.ins += q.ins[len(LDS_):]
    else: sums(p)
    O = [PL, PL + 32, PL + 64]
    p(nst('d_use'))
    if we != 2: p("s_cmp_eq_u32 s63, 0\ns_cbranch_scc1 L_cd_mid")
    srd(p, 12, 42, ACT)
    p(f"""buffer_store_dwordx4 v[{O[0]}:{O[0]+3}], v18, s[12:15], s25 offen {sf}
buffer_store_dwordx4 v[{O[1]}:{O[1]+3}], v19, s[12:15], s25 offen offset:{O1} {sf}
buffer_store_dword v{O[2]}, v17, s[12:15], s25 offen offset:1024 {sf}""")
    if p0:
        srd(p, 36, 6, 256)
        p('''s_or_b32 s60, s2, s16
s_cmp_eq_u32 s60, 0
s_cbranch_scc0 L_d_nt
v_mov_b32 v20, 0
s_mov_b64 exec, 1
buffer_store_dword v20, v20, s[36:39], 0 offen sc1 ; @
s_mov_b64 exec, -1
L_d_nt:''')
    if SC.sel: p("s_waitcnt vmcnt(0) ; @"); p(nst('d_end')); nst_dump(p, 'd2')
    p("s_endpgm\nL_cd_mid:")
    p(f"""s_add_u32 s27, s22, {XF + LS}
s_add_u32 s28, s22, {YF + LS}""")
    XST = f"""buffer_store_dwordx4 v[{O[0]}:{O[0]+3}], v6, s[8:11], s27 offen {sf}
buffer_store_dwordx4 v[{O[1]}:{O[1]+3}], v7, s[8:11], s27 offen {sf}
buffer_store_dword v{O[2]}, v8, s[8:11], s27 offen {sf}"""
    if not xlate: p(XST)
    XS = []
    for r in range(3):
        for i in range(nd[r]):
            p(f"v_lshlrev_b32 v{X+8*r+2*i}, 16, v{O[r]+i}\nv_and_b32 v{X+8*r+2*i+1}, 0xffff0000, v{O[r]+i}")
            XS += [X+8*r+2*i, X+8*r+2*i+1]
    p(f"v_add_f32 v24, v{XS[0]}, v{XS[1]}\nv_add_f32 v26, v{XS[2]}, v{XS[3]}\nv_mul_f32 v25, v{XS[0]}, v{XS[0]}\nv_mul_f32 v27, v{XS[1]}, v{XS[1]}")
    for k, x in enumerate(XS[4:]): p(f"v_add_f32 v{24 + 2*(k%2)}, v{24 + 2*(k%2)}, v{x}")
    for k, x in enumerate(XS[2:]): p(f"v_fmac_f32 v{25 + 2*(k%2)}, v{x}, v{x}")
    p(f"""v_add_f32 v24, v24, v26
v_add_f32 v25, v25, v27
v_permlane32_swap_b32 v24, v25
v_add_f32 v24, v24, v25
v_mov_b32 v25, v24
v_permlane16_swap_b32 v24, v25
v_add_f32 v24, v24, v25
v_add_f32 v24, v24, v24 row_ror:8
v_bfe_u32 v27, v0, 5, 1
v_lshl_add_u32 v27, v4, 1, v27
v_lshlrev_b32 v27, 4, v27
s_lshl_b32 s29, s16, 2
s_add_u32 s29, s29, {LX}
v_add_u32 v27, s29, v27
v_and_b32 v28, 24, v0
v_cmp_eq_u32 vcc, 0, v28
s_and_saveexec_b64 s[30:31], vcc
ds_write_b32 v27, v24
s_mov_b64 exec, -1
v_lshlrev_b32 v27, 5, v4
v_add_u32 v27, {LX}, v27
s_lshr_b32 s29, s18, {1 if A2[0] else 2}
s_lshl_b32 s29, s29, {3 if A2[0] else 4}
s_and_b32 s36, s18, {1 if A2[0] else 3}
s_add_u32 s29, s29, s36
s_lshl_b32 s29, s29, 7
s_add_u32 s29, s29, {CNT + LS + CDA}""")
    if not we: p(A_MAP); p(A_WS)
    p(f"""s_waitcnt lgkmcnt(0)
s_barrier
ds_read_b128 v[20:23], v27
ds_read_b128 v[28:31], v27 offset:16
v_add_f32 v20, v20, v21
v_add_f32 v22, v22, v23
v_add_f32 v28, v28, v29
v_add_f32 v30, v30, v31
v_add_f32 v20, v20, v22
v_add_f32 v28, v28, v30
v_mul_f32 v20, 0x3ae38e39, v20
v_mul_f32 v28, 0x3ae38e39, v28
v_fma_f32 v28, -v20, v20, v28
v_max_f32 v28, 0, v28
v_add_f32 v28, 0x3727c5ac, v28
v_rsq_f32 v28, v28""")
    for x in XS: p(f"v_sub_f32 v{x}, v{x}, v20")
    for x in XS: p(f"v_mul_f32 v{x}, v{x}, v28")
    for k in range(9): p(f"v_cvt_pk_bf16_f32 v{U+k}, v{XS[2*k]}, v{XS[2*k+1]}")
    p(f"""buffer_store_dwordx4 v[{U}:{U+3}], v6, s[8:11], s28 offen {sf}
buffer_store_dwordx4 v[{U+4}:{U+7}], v7, s[8:11], s28 offen {sf}
buffer_store_dword v{U+8}, v8, s[8:11], s28 offen {sf}""")
    if not we:
        for c in range(9): p.ext(a_wchunk(c))
    if xlate == 1: p(XST)
    p(f"""v_lshlrev_b32 v12, {8 if A2[0] else 9}, v2
s_waitcnt vmcnt({(3 if xlate == 1 else 0) if we else 18})
s_barrier
s_cmp_eq_u32 s16, 0
s_cbranch_scc0 L_da_ns
s_mov_b64 exec, 15
buffer_atomic_add v13, v12, s[8:11], s29 offen
s_mov_b64 exec, -1
L_da_ns:""")
    if xlate == 2: p(XST)
    p(nst('d_end')); nst_dump(p, 'd1')
    if dx: srd(p, 12, 4, WSSZ)
    p(f"s_mov_b32 s63, {LS}\ns_branch L_a1")
    return p.finish()

def late_out(**kw):
    q = Prog(); q(kq.late_st('lo', uni=False, **kw)[0])
    return kq.late_pre(run=False, split=kw.get('split', False)) + q.finish()

def main_kernel(a={}, b={}, c={}, d={}, bk=0, side=None, p0=None, hf='sc1', sfl={}, a0={}, p2=None):
    assert NEW
    BK[0] = bk
    A2[0] = kq.A2[0] = (2 if a.get('c32') else 1) if a.get('v2') else 0
    ap = a2_part if A2[0] else a_part
    b = dict(b); REP.update(b.pop('rep', {})); c = dict(c, bcrep=REP['bc'])
    a = dict(a); AM1[0] = a.pop('am1', 0); RAB[:] = a.pop('rab', (0, 0))
    HF[0] = hf if p0 is not None else ''
    if p0 is not None: b = dict(b, pbar=True); d = dict(d, p0=True); c = dict(c, wfl=hf)
    if p2 is not None: HF[0] = hf; b = dict(b, x4=True, dx=True, sb=p2.get('s', {})); d = dict(d, p0=True, dx=True); c = dict(c, wfl=hf, f3=p2.get('f', {}))
    if d.get('two'): c = dict(c, sigA=d['two'][:3]); d = dict(d, two=d['two'][:2] + (d['two'][3] if len(d['two']) > 3 else None,))
    if d.get('we') == 3: a = dict(a, wl=True)
    if c.get('pkA') is not None: d = dict(d, peek=True)
    if d.get('own'): c = dict(c, own=True)
    if d.get('three'): c = dict(c, sigA1=d['three'])
    WK = p2.get('wk', {}) if p2 is not None else {}
    if 'wd' in WK: d = dict(d, wk=True)
    import kc16
    cz = (kc16.c16 if c.pop('m16', 0) else kc.c_kernel)(fused=True, dz=True, rev=True, poll=lambda PD: spin('bc', 65, 4, 250, 4, 8, PD), **c)
    p = Prog()
    p("""s_cmp_lt_u32 s2, 256
s_cbranch_scc1 L_m_go
s_endpgm
L_m_go:
s_load_dwordx2 s[4:5], s[0:1], 80
s_load_dwordx4 s[40:43], s[0:1], 56""")
    if side is not None:
        sp = side_parts(**side); p(sp[0]); a = dict(a, side=sp); b = dict(b, allp=True)
    if p0 is not None or p2 is not None: p(kp.KARGS)
    if SC.sel: p(f"s_memrealtime s[{SC.m['t']}:{SC.m['t']+1}]")
    p(f"""v_lshrrev_b32 v1, 6, v0
v_and_b32 v2, 63, v0
v_readfirstlane_b32 s16, v1
v_lshlrev_b32 v3, 4, v2
s_mov_b32 s63, 0
s_mov_b32 s10, {WSSZ}
s_mov_b32 s11, 0x20000""")
    cp = p2.get('cp', 0) if p2 is not None else 0
    if cp:
        p(f"""s_cmp_eq_u32 s16, {p2.get('cpw', 3)}
s_cbranch_scc0 L_cp_e
s_getpc_b64 s[86:87]
L_cp0:
s_lshr_b32 s60, s2, 3
v_min_u32 v26, {cp - 1}, v2
v_lshlrev_b32 v26, 5, v26
v_add_u32 v26, s60, v26
v_lshlrev_b32 v26, 7, v26
s_mov_b32 s60, L_kend-L_cp0-4
v_min_u32 v26, s60, v26
global_load_dword v25, v26, s[86:87] ; @
L_cp_e:""")
    if p0 is None and p2 is None: p("s_waitcnt lgkmcnt(0)\ns_mov_b32 s8, s4\ns_mov_b32 s9, s5")
    NP1 = a.get('NP1', 36); NPw = a.pop('NPw', 0)
    if p2 is not None:
        a0 = kq.HEAD + kq.crit(**p2.get('c', {})) + kq.loader(**p2.get('l', {})) + "L_a0:\n" + ap(True, p2=p2.get('t', {}), **dict(a, **a0))
    else:
        a0 = a_part(True, **a) if p0 is None else (kp.HEAD + kp.variant('q', **p0) + kp.variant('o', **p0) + "L_a0w1:\n" + a_part(True, p0=('w1',) + kp.side_fill(False, **sfl) + (kp.side_dmas(False) if p0.get('late', 0) < 0 else [],), **dict(dict(SW=(6, 110)), **a, **a0))
        + kp.variant('w2', **p0) + a_part(True, p0=('w2',) + kp.side_fill(True, **sfl) + (kp.side_dmas(True) if p0.get('late', 0) < 0 else [],), **dict(dict(SW=(6, 110)), **a, **a0)))
    body = p.finish() + a0 + "L_a1:\n" + ap(False, **a) + "L_ab:\n" + ab_link(NP1, p2.get('s', {}) if p2 is not None else None, NPw)
    b5 = b_part(5, cz, **b); b4 = b_part(4, cz, **b)
    body += b5[0] + b5[1] + b4[1] + "L_b4:\n" + b4[0] + "L_bc_c:\n" + (late_out(**dict(p2.get('o', {}), split='W2' in p2.get('f', {}))) if p2 is not None else '') + cz[0] + d_part(**d) + (cz[4] + "  s_endpgm\nL_kend:\n" if p2 is not None else '')
    if WK:
        R = dict(wd=dict(regions=[('L_cd_go', 'L_wm_skip'), ('L_cd_mid', 'L_da_ns'), ('L_a1', 'L_da_poll')], waves=3))
        body = add_pads(body, {n: dict(R[n], step=st) for n, st in WK.items()})
    if p0 is not None or p2 is not None:
        return kernel("interleave_layers__linear_attn_block__mixer_channel_mlp__prompt_kernel", body, vgpr=256, agpr=256), "; @launch grid=(256,1,1) block=(256,1,1) lds=163840\n"
    return kernel("main_kernel", body, vgpr=256, agpr=256), "; @launch kernel=main_kernel grid=(256,1,1) block=(256,1,1) lds=163840\n"
```

```python
from asmlib import *
from layout import *
from k0 import srd
from ka import phi, QB
import kc, kp, kq
HF = ['']

CCD, CDA, CAB = 16384, 32768, 49152
REP = dict(bc=(0, 1), cd=(16384, 1))
aWOr = lambda ks, t: 64 + 4*((8 - ks)*5 + t)

BK = [0]
def spin(tag, sreg, va, vd, lanes, target, depth=1):
    ld = lambda k: f"buffer_load_dword v{vd+k}, v{va}, s[8:11], s{sreg} offen sc1 ; @"
    L = ([f"s_mov_b64 exec, {(1 << lanes) - 1}"] if lanes < 32 else ["s_mov_b32 exec_hi, 0"]) + [ld(k) for k in range(depth - 1)] + [f"L_{tag}_poll:"]
    for k in range(depth):
        L += [ld((k + depth - 1) % depth), f"s_waitcnt vmcnt({depth - 1}) ; @", f"v_cmp_gt_u32 vcc, {target}, v{vd+k}",
              "s_nop 4", f"s_cbranch_vccz L_{tag}_ok"]
    L += ["s_nop 15"] * BK[0]
    L += ["s_sub_u32 s49, s49, 1", "s_cmp_eq_u32 s49, 0", f"s_cbranch_scc0 L_{tag}_poll", f"L_{tag}_ok:", "s_mov_b64 exec, -1"]
    L.append(f"L_{tag}_go:")
    return "\n".join(L)

A_MAP = """s_and_b32 s17, s2, 7
s_lshr_b32 s18, s2, 3
s_lshr_b32 s19, s17, 2
s_lshl_b32 s19, s19, 2
s_and_b32 s20, s18, 3
s_add_u32 s19, s19, s20
s_and_b32 s20, s17, 3
s_lshl_b32 s20, s20, 3
s_lshr_b32 s21, s18, 2
s_add_u32 s20, s20, s21"""
AM1 = [0]
def a_map1():
    if AM1[0] == 0: return A_MAP
    if AM1[0] == 1: return "s_bfe_u32 s19, s2, 0x20001\ns_lshl_b32 s19, s19, 1\ns_bfe_u32 s20, s2, 0x10003\ns_add_u32 s19, s19, s20\ns_and_b32 s20, s2, 1\ns_lshl_b32 s20, s20, 4\ns_lshr_b32 s21, s2, 4\ns_add_u32 s20, s20, s21"
    return "s_and_b32 s19, s2, 7\ns_lshr_b32 s20, s2, 3"
def a_head1():
    if AM1[0] == 0: return "s_and_b32 s52, s2, 3\ns_lshl_b32 s52, s52, 3\ns_lshr_b32 s53, s2, 5\ns_add_u32 s52, s52, s53"
    if AM1[0] == 1: return "s_and_b32 s52, s2, 1\ns_lshl_b32 s52, s52, 4\ns_lshr_b32 s53, s2, 4\ns_add_u32 s52, s52, s53"
    return "s_lshr_b32 s52, s2, 3"
A_WS = f"""s_mul_i32 s24, s20, 73728
s_add_u32 s24, s24, {WQF}
s_lshl_b32 s25, s16, 11
s_add_u32 s24, s24, s25"""
def a_wchunk(c):
    L = [f"s_add_u32 m0, s25, {c*8192}" if c else "s_mov_b32 m0, s25"]
    for i in range(2): L.append(I(f"buffer_load_dwordx4 v3, s[8:11], s24 offen offset:{i*1024} {HF[0]} lds", tag=f"w{c}"))
    if c < 8: L.append("s_addk_i32 s24, 8192")
    return L

def wo_loads(ts, sreg=50):
    G = []
    for t in ts:
        for ks in range(9):
            pre = []
            if ks in (4, 8): pre = [f"s_addk_i32 s{sreg}, 4096"]
            if ks == 0 and t != ts[0]: pre = [f"s_add_u32 s{sreg}, s{sreg}, {36864 - 8192}"]
            r = aWOr(ks, t)
            G.append(pre + [f"buffer_load_dwordx4 a[{r}:{r+3}], v3, s[8:11], s{sreg} offen offset:{(ks%4)*1024} {HF[0]}"])
    return G

def side_parts(ssf="sc1", lf="nt"):
    WB = WSN*1024
    SB = 98304
    V = 160
    v3_, v5_, vs_, t1, t2, ts1, ts2, c0, c1, vb, vcs, vag, T = V, V+1, V+2, V+3, V+4, V+5, V+6, V+7, V+8, V+9, V+10, V+11, V+12
    D = V + 16
    ka = "s_load_dwordx4 s[56:59], s[0:1], 32\ns_load_dwordx2 s[60:61], s[0:1], 48"
    setup = f"""s_mov_b32 s12, s56
s_mov_b32 s13, s57
s_mov_b32 s14, {576*4608*2}
s_mov_b32 s15, 0x20000
s_mov_b32 s44, s60
s_mov_b32 s45, s61
s_mov_b32 s46, {576*4608*2}
s_mov_b32 s47, 0x20000
s_mov_b32 s64, s58
s_mov_b32 s65, s59
s_mov_b32 s66, {4608*2}
s_mov_b32 s67, 0x20000
s_cmp_lt_u32 s16, 2
s_cselect_b32 s96, s56, s60
s_cselect_b32 s97, s57, s61
s_mov_b32 s98, {576*4608*2}
s_mov_b32 s99, 0x20000
s_and_b32 s56, s2, 7
s_bfe_u32 s57, s2, 0x20003
s_lshr_b32 s58, s2, 5
s_mul_i32 s59, s57, 9
s_add_u32 s60, s59, s16
s_mul_i32 s62, s60, {16*9216}
s_mul_i32 s68, s56, 1152
s_lshl_b32 s69, s58, 7
s_add_u32 s68, s68, s69
s_add_u32 s62, s62, s68
s_mul_i32 s87, s56, 36
s_add_u32 s87, s87, s60
s_mul_i32 s87, s87, {16*1152}
s_add_u32 s87, s87, s69
s_add_u32 s60, s59, 8
s_mul_i32 s88, s60, {16*9216}
s_add_u32 s88, s88, s68
s_mul_i32 s68, s56, 36
s_add_u32 s68, s68, s60
s_mul_i32 s68, s68, {16*1152}
s_add_u32 s68, s68, s69
s_cmp_lt_u32 s16, 2
s_cselect_b32 s88, s88, s68
s_cselect_b32 s68, 8, 1
s_mul_i32 s68, s68, 1152
s_and_b32 s69, s16, 1
s_lshl_b32 s69, s69, 6
s_add_u32 s88, s88, s69
s_mul_i32 s55, s16, 9216
s_add_u32 s55, s55, {SB}
v_bfe_u32 v{T}, v2, 2, 3
v_and_b32 v{T+1}, 3, v2
v_lshrrev_b32 v{T+2}, 5, v2
v_lshlrev_b32 v{T+3}, 6, v{T+2}
v_lshl_add_u32 v{T+3}, v{T+1}, 4, v{T+3}
v_mul_u32_u24 v{v3_}, 9216, v{T}
v_add_u32 v{v3_}, v{v3_}, v{T+3}
v_mul_u32_u24 v{v5_}, 1152, v{T}
v_add_u32 v{v5_}, v{v5_}, v{T+3}
v_lshrrev_b32 v{T}, 2, v2
v_mul_u32_u24 v{vs_}, s68, v{T}
v_lshl_add_u32 v{vs_}, v{T+1}, 4, v{vs_}""".split("\n")
    dma = []
    for b in range(2):
        for mi, (vo, sr, srd_, rs) in enumerate(((v3_, 62, 12, 9216), (v5_, 87, 44, 1152))):
            for u in range(2):
                L = [f"s_add_u32 m0, s55, {(2*b + mi)*2048 + u*1024}", I(f"buffer_load_dwordx4 v{vo}, s[{srd_}:{srd_+3}], s{sr} offen {lf} lds", tag=f"sd{b}{mi}")]
                if not (b == 1 and u == 1): L.append(f"s_add_u32 s{sr}, s{sr}, {(8 if u == 0 else 56)*rs}")
                dma.append(L)
    dma.append([f"s_add_u32 m0, s55, 8192", I(f"buffer_load_dwordx4 v{vs_}, s[96:99], s88 offen {lf} lds", tag="sds")])
    setup2 = f"""s_mul_i32 s68, s56, 18
s_lshl_b32 s69, s58, 1
s_add_u32 s68, s68, s69
s_lshl_b32 s68, s68, 6
v_lshlrev_b32 v{vb}, 1, v2
buffer_load_ushort v{vb}, v{vb}, s[64:67], s68 offen
v_and_b32 v{T+1}, 3, v2
v_lshrrev_b32 v{T+2}, 5, v2
v_lshlrev_b32 v{T}, 3, v{T+1}
v_bfe_u32 v{T+3}, v2, 2, 2
v_lshl_add_u32 v{T}, v{T+3}, 6, v{T}
v_bfe_u32 v{T+3}, v2, 4, 1
v_lshl_add_u32 v{T}, v{T+3}, 5, v{T}
v_add_u32 v{T}, s55, v{T}
v_lshl_add_u32 v{t1}, v{T+2}, 10, v{T}
v_lshl_add_u32 v{t2}, v{T+2}, 8, v{T}
s_cmp_lt_u32 s16, 2
s_cselect_b32 s68, 2, 1
s_cselect_b32 s69, 1, 2
s_lshl_b32 s68, s68, 8
s_lshl_b32 s69, s69, 8
v_mul_u32_u24 v{ts1}, s68, v{T+2}
v_add_u32 v{ts1}, v{ts1}, v{T}
v_add_u32 v{ts2}, s69, v{ts1}
v_mov_b32 v{c0}, 0
v_mov_b32 v{c1}, 0
s_lshl_b32 s89, s56, 2
s_and_b32 s68, s58, 1
s_lshl_b32 s68, s68, 1
s_add_u32 s89, s89, s68
s_mul_i32 s89, s89, {WB}
s_add_u32 s89, s89, {WSTR}
s_lshr_b32 s90, s58, 1
s_add_u32 s68, s90, 91
s_add_u32 s69, s90, 90
s_add_u32 s61, s90, 163
s_cmp_lt_u32 s58, 4
s_cselect_b32 s91, 5, 4
s_cselect_b32 s93, s90, s68
s_cselect_b32 s61, s69, s61
s_cselect_b32 s100, 3, 2
s_lshl_b32 s100, s100, 10
s_add_u32 s101, s90, 1
s_and_b32 s101, s101, 3
s_lshl_b32 s101, s101, 4
s_add_u32 s101, s101, 265
s_lshl_b32 s61, s61, 10
s_add_u32 s61, s61, s89
s_lshr_b32 s68, s57, 1
s_lshl_b32 s68, s68, 9
s_add_u32 s61, s61, s68
s_and_b32 s68, s57, 1
s_lshl_b32 s68, s68, 3
s_add_u32 s61, s61, s68
s_cmp_lt_u32 s57, 2
s_cselect_b32 s57, 0xffff, 0
v_lshlrev_b32 v{vcs}, 2, v0
v_add_u32 v{vcs}, {SB + 36864}, v{vcs}
v_and_b32 v{vag}, 31, v2
v_lshlrev_b32 v{vag}, 4, v{vag}
v_mul_u32_u24 v{T}, {WB}, v{T+2}
v_add_u32 v{vag}, v{vag}, v{T}""".split("\n")
    def dest(m):
        L = ["s_lshr_b32 s56, s60, 1", "s_and_b32 s58, s60, 1"]
        if m == 0:
            L += ["s_mul_i32 s68, s56, s91", "s_add_u32 s68, s68, s93", "s_mov_b32 s69, s100"]
        else:
            L += """s_sub_u32 s88, s56, 8
s_cmp_lt_u32 s56, 8
s_cselect_b32 s68, s56, s88
s_mul_i32 s68, s68, 9
s_add_u32 s68, s68, 167
s_add_u32 s68, s68, s90
s_lshl_b32 s69, s88, 1
s_add_u32 s69, s69, s101
s_cmp_lt_u32 s88, 8
s_cselect_b32 s68, s69, s68
s_cselect_b32 s69, 1, 5
s_lshl_b32 s69, s69, 10""".split("\n")
        L += f"""s_lshl_b32 s68, s68, 10
s_add_u32 s68, s68, s89
s_mul_i32 s58, s58, s69
s_add_u32 s62, s68, s58
s_add_u32 s68, s68, s69
s_sub_u32 s68, s68, s58
s_add_u32 s87, s68, {WB}""".split("\n")
        return L
    work = []
    for b in range(2):
        for mi in range(2):
            d = D + 8*((2*b + mi) % 4)
            base = (2*b + mi)*2048
            ra, o2 = ((t1, 256), (t2, 1024))[mi]
            for tt in range(2):
                work.append(I(f"ds_read_b64_tr_b16 v[{d+4*tt}:{d+4*tt+1}], v{ra} offset:{base + tt*512}", needs=[f"sd{b}{mi}"]))
                work.append(f"ds_read_b64_tr_b16 v[{d+4*tt+2}:{d+4*tt+3}], v{ra} offset:{base + tt*512 + o2}")
            if mi == 0: work.append(f"s_add_u32 s60, s59, s16" if b == 0 else "s_add_u32 s60, s60, 4")
            work += dest(mi)
            for tt in range(2):
                work.append(f"buffer_store_dwordx4 v[{d+4*tt}:{d+4*tt+3}], v3, s[8:11], s{(62, 87)[tt]} offen {ssf}")
                if mi == 0: work += [f"v_dot2c_f32_bf16 v{(c0, c1)[tt]}, v8, v{d+4*tt+q}" for q in range(4)]
    d = D + 32
    work += [I(f"ds_read_b64_tr_b16 v[{d}:{d+1}], v{ts1} offset:8192", needs=["sds"]), f"ds_read_b64_tr_b16 v[{d+2}:{d+3}], v{ts2} offset:8192", "s_add_u32 s60, s59, 8"]
    work += dest(0) + ["s_bitcmp1_b32 s16, 0", "s_cselect_b32 s55, s87, s62"] + dest(1)
    work += ["s_bitcmp1_b32 s16, 0", "s_cselect_b32 s62, s87, s62", "s_cmp_lt_u32 s16, 2", "s_cselect_b32 s62, s55, s62",
             f"buffer_store_dwordx4 v[{d}:{d+3}], v3, s[8:11], s62 offen {ssf}",
             "s_cmp_eq_u32 s16, 0", "s_cselect_b32 s68, 0x3f803f80, 0", "s_cmp_eq_u32 s16, 1", "s_cselect_b32 s69, 0x3f803f80, 0"]
    for q in range(4): work += [f"v_dot2c_f32_bf16 v{c0}, s68, v{d+q}", f"v_dot2c_f32_bf16 v{c1}, s69, v{d+q}"]
    work += [f"v_permlane32_swap_b32 v{c0}, v{c1}", f"v_add_f32 v{c0}, v{c0}, v{c1}", I(f"ds_write_b32 v{vcs}, v{c0}", tag='scs')]
    fin = [f"v_lshlrev_b32 v{vcs}, 2, v2", f"v_add_u32 v{vcs}, {SB + 36864}, v{vcs}"]
    fin += [f"ds_read_b32 v{D+w}, v{vcs} offset:{w*256}" for w in range(4)]
    fin += f"""v_add_f32 v{D}, v{D}, v{D+1}
v_add_f32 v{D+2}, v{D+2}, v{D+3}
v_add_f32 v{D}, v{D}, v{D+2}
v_cvt_pk_bf16_f32 v{D+4}, v{D}, v{D}
v_and_b32 v{D+1}, 0xffff0000, v{D+4}
v_sub_f32 v{D+1}, v{D}, v{D+1}
v_cvt_pk_bf16_f32 v{D+5}, v{D+1}, 0
v_and_b32 v{vb}, s57, v{vb}
v_lshl_or_b32 v{D+5}, v{vb}, 16, v{D+5}
buffer_store_dwordx2 v[{D+4}:{D+5}], v{vag}, s[8:11], s61 offen {ssf}""".split("\n")
    return ka, atomize(setup), dma, atomize(setup2), atomize(work), fin

def touch(w1=True, wo=True):
    L = []
    if w1: L.append(f"""s_and_b32 s64, s2, 3
s_lshl_b32 s64, s64, 1
s_bfe_u32 s65, s2, 0x10003
s_add_u32 s64, s64, s65
s_lshl_b32 s64, s64, 2
s_add_u32 s64, s64, s16
s_mul_i32 s64, s64, {WSN*1024}
s_lshr_b32 s65, s2, 4
s_mul_i32 s65, s65, 3072
s_add_u32 s64, s64, s65
s_add_u32 s64, s64, {WSTR}
v_min_u32 v240, 23, v2
v_lshlrev_b32 v240, 7, v240
buffer_load_dword v241, v240, s[8:11], s64 offen {HF[0]}""".split("\n"))
    if wo: L.append(f"""s_lshr_b32 s65, s2, 3
s_lshl_b32 s65, s65, 2
s_add_u32 s65, s65, s16
s_mul_i32 s65, s65, 41
v_min_u32 v242, 40, v2
v_add_u32 v242, s65, v242
v_min_u32 v242, 5183, v242
v_lshlrev_b32 v242, 7, v242
s_mov_b32 s66, {WOF}
buffer_load_dword v243, v242, s[8:11], s66 offen {HF[0]}""".split("\n"))
    return L
WOP = f"""s_lshr_b32 s51, s2, 6
s_mul_i32 s52, s51, 5
s_lshl_b32 s53, s51, 2
s_add_u32 s53, s53, 2
s_cmp_lt_u32 s51, 2
s_cselect_b32 s52, s52, s53
s_mul_i32 s50, s52, 36864
s_mul_i32 s53, s16, 9216
s_add_u32 s50, s50, s53
s_add_u32 s50, s50, {WOF}"""
def a_part(first, m16=False, E0=(148, 248), tw=None, NP0=0, NPa1=None, w0p=0, wl=False, skipy=(), D1=None, R1=1, pfy=0, pfa=0, p2=None, FP=(0, 0, 84, 118), LW=(62, 74, 113, 124), p0=None, SD=(10, 75), dw=False, YR=16, D0=12, RAMP=1, NW=8, qsf="sc1", NP1=36, NPa=16, PD=1, yf='sc1', side=None, SW=(2, 12, 12, 34, 60, 112)):
    n = "a0" if first else "a1"
    p = Prog()
    p(A_MAP if first else a_map1())
    p(f"""s_lshl_b32 s21, s19, 3
s_lshl_b32 s22, s16, 1
s_add_u32 s21, s21, s22
s_mul_i32 s22, s21, 36864
s_add_u32 s22, s22, {YF if first else YF + LS}""")
    if first: p(A_WS)
    if first and dw:
        p(f'''s_load_dwordx2 s[56:57], s[0:1], 8
v_lshrrev_b32 v200, 3, v2
v_mul_u32_u24 v200, 3456, v200
v_and_b32 v201, 3, v2
v_bfe_u32 v202, v2, 2, 1
v_lshlrev_b32 v203, 4, v201
v_mul_u32_u24 v204, 1152, v202
v_add_u32 v203, v203, v204
v_add_u32 v203, 1152, v203
v_lshlrev_b32 v204, 4, v202
v_cmp_eq_u32 vcc, 3, v201
v_cndmask_b32 v203, v203, v204, vcc
v_add_u32 v200, v200, v203
v_add_u32 v201, {8*3456 - 1024}, v200
s_mul_i32 s24, s20, 36
s_mul_i32 s58, s16, {16*3456}
s_add_u32 s24, s24, s58
s_waitcnt lgkmcnt(0)
s_mov_b32 s12, s56
s_mov_b32 s13, s57
s_mov_b32 s14, {576*1728*2}
s_mov_b32 s15, 0x20000''')
    ACC, WR, P0, V1, TMP, KVA, QO = 16, 80, 112, 120, 128, 136, 152
    items = []
    for g in range(72):
        if first and g < 36 and g % 4 == 0:
            wc = a_wchunk(g // 4)
            if dw:
                c = g // 4
                wc = [wc[0]] + [I(f"buffer_load_dwordx4 v{200+i}, s[12:15], s24 offen offset:{i*1024} lds", tag=f"w{c}") for i in range(2)] + ([f"s_add_u32 s24, s24, {64*3456}"] if c < 8 else [])
            items.append((g, wc))
        s = 4*(g % YR)
        pre = ["s_addk_i32 s22, 4096"] if (g % 4 == 0 and g) else []
        if m16: items.append((g, pre + [f"buffer_load_dwordx4 a[{s}:{s+3}], v164, s[8:11], s22 offen offset:{(g%4)//2*2048 + (g%2)*256} {yf}"])); continue
        items.append((g, pre + ([] if g in skipy else [f"buffer_load_dwordx4 a[{s}:{s+3}], v3, s[8:11], s22 offen offset:{(g%4)*1024} {'' if first and not p0 and p2 is None else yf}"])))
    ip = 0
    def issue_upto(gmax):
        nonlocal ip
        L = []
        while ip < len(items) and items[ip][0] <= gmax:
            L += items[ip][1]; ip += 1
        return L
    def ypf(skip):
        if not pfy: return []
        n = 72 - skip
        return [f"s_mov_b32 exec_hi, {hex((1 << (n - 32)) - 1)}", f"buffer_load_dword v254, v255, s[8:11], s23 offen {yf}", "s_mov_b64 exec, -1"]
    SK = D0 if first else YR
    if pfy: p(f"s_lshr_b32 s23, s2, 5\ns_mul_i32 s23, s23, {(72 - SK)*128}\ns_add_u32 s23, s23, s22\ns_add_u32 s23, s23, {SK*1024}\nv_lshlrev_b32 v255, 7, v2")
    setup = f"""v_lshlrev_b32 v13, 2, v0
v_add_u32 v4, 65536, v3
s_mul_i32 s28, s16, 1280
s_add_u32 s28, s28, {QB - 20*64}
v_and_b32 v5, 31, v2
v_lshlrev_b32 v5, 6, v5
v_lshrrev_b32 v9, 5, v2
v_lshl_add_u32 v5, v9, 5, v5
v_add_u32 v5, s28, v5
v_bfe_u32 v6, v2, 2, 2
v_lshl_add_u32 v6, v9, 2, v6
v_lshlrev_b32 v6, 6, v6
v_and_b32 v7, 1, v2
v_lshl_add_u32 v6, v7, 5, v6
v_bfe_u32 v7, v2, 4, 1
v_lshl_add_u32 v6, v7, 4, v6
v_bfe_u32 v7, v2, 1, 1
v_lshl_add_u32 v6, v7, 3, v6
s_add_u32 s28, s28, {20*64}
v_add_u32 v6, s28, v6
v_lshlrev_b32 v7, 2, v2
s_mul_i32 s28, s16, 2560
v_add_u32 v15, s28, v3
v_lshlrev_b32 v14, 3, v2
v_add_u32 v14, s28, v14
v_and_b32 v8, 27, v2
v_cmp_eq_u32 s[30:31], 18, v8
v_mov_b32 v8, 0x3f803f80
s_mov_b32 s32, 0xfff00000
s_mov_b32 s33, 0xfff00000
s_lshl_b32 s26, s21, 5
s_add_u32 s26, s26, s20
s_lshl_b32 s27, s26, 8
s_lshl_b32 s26, s26, 10
s_add_u32 s26, s26, {PQ16 + (0 if first else LS)}
s_add_u32 s27, s27, {PQ4 + (0 if first else LS)}"""
    if m16: setup += f"""
v_and_b32 v5, 15, v2
v_lshrrev_b32 v9, 4, v2
v_lshlrev_b32 v164, 4, v5
v_lshl_add_u32 v164, v9, 9, v164
v_add_u32 v15, s28, v164
v_and_b32 v9, 1, v9
v_lshlrev_b32 v14, 3, v5
v_lshl_add_u32 v14, v9, 8, v14
v_add_u32 v14, s28, v14
v_lshlrev_b32 v5, 6, v5
v_lshl_add_u32 v5, v9, 5, v5
v_lshrrev_b32 v9, 5, v2
v_lshl_add_u32 v5, v9, 3, v5
s_mul_i32 s28, s16, 1280
s_add_u32 s28, s28, {QB - 4*64}
v_add_u32 v5, s28, v5
v_lshl_add_u32 v165, v9, 10, v164
v_add_u32 v166, 65536, v165
v_and_b32 v9, 11, v2
v_cmp_eq_u32 s[30:31], 2, v9"""
    if first and p2 is not None:
        p(setup)
        p(kq.a0_go())
        p(nst('a_go'))
        if pfa: p.ext(issue_upto(pfa - 1)); p.ext(ypf(SK)); p.ext(issue_upto(D0 - 1))
        else: p.ext(issue_upto(D0 - 1)); p.ext(ypf(SK))
        p("ds_read_b32 v161, v162\nv_readfirstlane_b32 s3, v161")
    elif first and p0:
        n = "a0" + p0[0]
        p(setup)
        p(f"""s_and_b32 s56, s2, 7
s_lshl_b32 s56, s56, 10
s_add_u32 s56, s56, {kp.PFL}
s_mov_b32 s49, 0x40000
s_cmp_eq_u32 s16, 0
s_cbranch_scc0 L_{n}p_go""")
        p(kp.poll(n + "p", 56, 250) + f"L_{n}p_go:\ns_barrier")
        p(nst('a_go'))
        p.ext(issue_upto(D0 - 1))
    elif first:
        p.ext(issue_upto(D0 - 1))
        p(setup)
    else:
        p(setup)
        if NP0: p(WOP)
        if tw and tw[1] == 'pre': wo0_t = [y for x in touch(tw[2], tw[4]) for y in x]
        else: wo0_t = []
        wo0 = wo0_t + [y for x in wo_loads(range(4))[:NP0] for y in x]
        NV = len([x for x in wo0 if x.startswith('buffer')])
        p(f"""s_lshl_b32 s28, s19, 2
s_bfe_u32 s29, s2, {('0x20005', '0x20000')[RAB[1]]}
s_add_u32 s28, s28, s29
s_lshl_b32 s28, s28, 9
s_add_u32 s28, s28, {CNT + LS + CDA}
v_lshlrev_b32 v10, 7, v2
s_mov_b32 s49, 0x40000
s_waitcnt vmcnt(0)
s_cmp_eq_u32 s16, 0
s_cbranch_scc{1 if wl or NP0 else 0} L_da_{'w0' if wl or NP0 else 'go'}""")
        if NP0 and not wl: p(kq.off("\n".join(wo0 + ["s_branch L_da_go", "L_da_w0:"] + ([] if w0p else wo0))))
        if wl:
            L = f"""s_sub_u32 s29, s16, 1
s_mul_i32 s56, s29, 24576
s_mul_i32 s57, s20, 73728
s_add_u32 s57, s57, s56
s_add_u32 s57, s57, {WQF}""".split("\n")
            for k in range(6):
                L += [f"s_add_u32 m0, s56, {k*4096}", "s_nop 0"] + [f"buffer_load_dwordx4 v3, s[8:11], s57 offen offset:{i*1024} {HF[0]} lds" for i in range(4)] + (["s_addk_i32 s57, 4096"] if k < 5 else [])
            p(kq.off("\n".join(L + wo0 + [f"s_waitcnt vmcnt({NV})", "s_branch L_da_go", "L_da_w0:"] + ([] if w0p else wo0))))
        sp = spin("da", 28, 10, 250, 4, 8, PD)
        if w0p: sp = sp.replace("L_da_go:", kq.off("\n".join(wo0)) + "\nL_da_go:")
        p(sp)
        p("s_barrier")
        p(nst('a_go'))
        if pfa: p.ext(issue_upto(pfa - 1)); p.ext(ypf(SK)); p.ext(issue_upto(YR - 1))
        else: p.ext(issue_upto((D1 or YR) - 1)); p.ext(ypf(SK))
    def wrd(f):
        g = f % 72
        s = WR + 4*(f % NW)
        L = []
        if first and f < 72 and f % 8 == 0: L.append(I("s_barrier", needs=[f"w{f//8}"]))
        if m16:
            o = (g//4)*4096 + (g%4)//2*1024 + (g%2)*256
            L.append(f"ds_read_b128 v[{s}:{s+3}], v{165 + o//65536} offset:{o % 65536}")
            return L
        L.append(f"ds_read_b128 v[{s}:{s+3}], v3 offset:{g*1024}" if g < 64 else f"ds_read_b128 v[{s}:{s+3}], v4 offset:{(g-64)*1024}")
        return L
    for f in range(NW - 1): p.ext(wrd(f))
    p(nst('a_first'))
    G = []
    for ds in range(36 if m16 else 0):
        for c in range(4):
            f = 4*ds + c; w = WR + 4*(f % NW)
            for rh in range(2):
                y = 4*((2*ds + rh) % YR); acc = ACC + 32*(ds // 18) + 8*c + 4*rh
                grp = [f"v_mfma_f32_16x16x32_bf16 v[{acc}:{acc+3}], a[{y}:{y+3}], v[{w}:{w+3}], " + ("0" if ds % 18 == 0 else f"v[{acc}:{acc+3}]")]
                if rh == 1 and f + NW - 1 < 144: grp += wrd(f + NW - 1)
                if rh == 0 and c in (0, 2):
                    g = 2*ds - 2 + c//2
                    depth = min(YR, D0 + 2 + max(g, 0)*RAMP) if first else YR
                    grp += issue_upto(g + depth)
                G.append(grp)
    for g in range(0 if m16 else 72):
        y = 4*(g % YR)
        for t in range(2):
            f = 2*g + t
            w = WR + 4*(f % NW)
            acc = ACC + 32*(g // 36) + 16*t
            c = "0" if g % 36 == 0 else f"v[{acc}:{acc+15}]"
            grp = [f"v_mfma_f32_32x32x16_bf16 v[{acc}:{acc+15}], a[{y}:{y+3}], v[{w}:{w+3}], {c}"]
            if f + NW - 1 < 144: grp += wrd(f + NW - 1)
            if t == 1:
                depth = min(YR, D0 + 1 + g*RAMP) if first else (min(YR, int(D1 + 1 + g*R1)) if D1 else YR)
                grp += issue_upto(g + depth)
            G.append(grp)
    assert ip == len(items)
    def epi1(rt):
        T0 = ACC + 32*rt; T1 = T0 + 16
        L = []
        for i in range(8): L.append(f"v_cvt_pk_bf16_f32 v{V1+i}, v{T1+2*i}, v{T1+2*i+1}")
        for i in range(8): L.append(f"v_cndmask_b32 v{V1+i}, v{V1+i}, v8, s[30:31]")
        ph = phi(list(range(T0, T0 + 16)), TMP)
        pk = [f"v_cvt_pk_bf16_f32 v{P0+i}, v{T0+2*i}, v{T0+2*i+1}" for i in range(8)]
        mm = [f"v_mfma_f32_32x32x16_bf16 v[{KVA}:{KVA+15}], v[{P0+4*q}:{P0+4*q+3}], v[{V1+4*q}:{V1+4*q+3}], " + ("0" if (rt == 0 and q == 0) else f"v[{KVA}:{KVA+15}]") for q in range(2)]
        if m16:
            L = L[:8] + L[12:]
            mm = [f"v_mfma_f32_16x16x32_bf16 v[{KVA+8*mt+4*nt}:{KVA+8*mt+4*nt+3}], v[{P0+4*mt}:{P0+4*mt+3}], v[{V1+4*nt}:{V1+4*nt+3}], " + ("0" if rt == 0 else f"v[{KVA+8*mt+4*nt}:{KVA+8*mt+4*nt+3}]") for mt in range(2) for nt in range(2)]
            L = ph[:32] + pk[:4] + L + mm[:2] + ph[32:] + pk[4:] + mm[2:]
            L.append(["s_mov_b32 exec_lo, 0xff00ff00", "s_mov_b32 exec_hi, 0xff00ff00", f"ds_write2_b64 v5, v[{V1+4}:{V1+5}], v[{V1+6}:{V1+7}] offset0:64 offset1:66",
                      "s_mov_b32 exec_lo, 0xfff0fff0", "s_mov_b32 exec_hi, 0xfff0fff0", f"ds_write2_b64 v5, v[{P0+4}:{P0+5}], v[{P0+6}:{P0+7}] offset1:2", "s_mov_b64 exec, -1"])
            L += [f"ds_read_b64_tr_b16 v[{QO}:{QO+1}], v6", f"ds_read_b64_tr_b16 v[{QO+2}:{QO+3}], v6 offset:768", f"ds_read_b64_tr_b16 v[{QO+4}:{QO+5}], v6 offset:512"]
            return L
        L = ph[:32] + pk[:4] + L + [mm[0]] + ph[32:] + pk[4:] + [mm[1]]
        L.append(["s_mov_b64 exec, s[32:33]",
                  f"ds_write_b128 v5, v[{V1}:{V1+3}] offset:512", f"ds_write_b128 v5, v[{V1+4}:{V1+7}] offset:528",
                  f"ds_write_b128 v5, v[{P0}:{P0+3}]", f"ds_write_b128 v5, v[{P0+4}:{P0+7}] offset:16",
                  "s_mov_b64 exec, -1"])
        L += [f"ds_read_b64_tr_b16 v[{QO}:{QO+1}], v6", f"ds_read_b64_tr_b16 v[{QO+2}:{QO+3}], v6 offset:768", f"ds_read_b64_tr_b16 v[{QO+4}:{QO+5}], v6 offset:512"]
        return L
    def epi2(rt):
        u = TMP + 4
        L = [f"v_lshlrev_b32 v{u}, 16, v{QO+2}", f"v_and_b32 v{u+1}, 0xffff0000, v{QO+2}", f"v_lshlrev_b32 v{u+2}, 16, v{QO+3}", f"v_and_b32 v{u+3}, 0xffff0000, v{QO+3}"]
        L += phi([u, u+1, u+2, u+3], TMP)
        L += [f"v_cvt_pk_bf16_f32 v{QO+2}, v{u}, v{u+1}", f"v_cvt_pk_bf16_f32 v{QO+3}, v{u+2}, v{u+3}"]
        return L
    def qst(rt):
        L = ["s_add_u32 s26, s26, 32768", "s_add_u32 s27, s27, 8192"] if rt else []
        return L + [f"buffer_store_dwordx4 v[{QO}:{QO+3}], v3, s[8:11], s26 offen {qsf}", f"buffer_store_dword v{QO+4}, v7, s[8:11], s27 offen {qsf}"]
    late = f"""v_bfe_u32 v10, v0, 2, 5
v_lshrrev_b32 v12, 1, v0
v_cmp_gt_u32 s[34:35], 19, v10
v_cmp_eq_u32 s[36:37], 22, v10
s_or_b64 s[34:35], s[34:35], s[36:37]
v_cmp_gt_u32 s[38:39], 19, v12
v_cmp_eq_u32 s[36:37], 22, v12
s_or_b64 s[38:39], s[38:39], s[36:37]
s_mul_i32 s28, s20, 2560
s_add_u32 s28, s28, {KV + (0 if first else LS)}
{WOP if first or not NP0 else 's_nop 0'}
s_lshl_b32 s54, s20, 7
s_add_u32 s54, s54, {CNT + CAB + (0 if first else LS)}
v_lshlrev_b32 v10, 12, v2
v_mov_b32 v11, 1""".split("\n")
    wo = wo_loads(range(4))[(0 if first else NP0):NP1]
    if not first and NPa1 is not None: NPa = NPa1
    K = 2 if m16 else 1
    if side and first:
        _, su, dma, su2, work, fin = side
        G[116] = G[116] + [I("s_barrier", needs=['scs'])]
        def put(L, a, b):
            for k, x in enumerate(L): G[a + k*(b - a)//len(L)] += x if isinstance(x, list) else [x]
        put(su, SW[0], SW[1]); put(dma, SW[2], SW[3]); put(su2, SW[3], SW[4]); put(work, SW[4], SW[5]); put(fin, 117, 130)
    elif first and p2 is not None:
        if m16: FP = (2*FP[0], 0, 2*FP[2], 2*FP[3])
        G[116*K] = G[116*K] + ["s_barrier"]
        f2 = kq.fchk('f2', 232, 57, 's3')
        G[FP[0]] = G[FP[0]] + kq.fsig('f2', 161, 162, 58)
        G[FP[2]] = G[FP[2]] + [f2[0]]
        for k, x in enumerate(f2[1]): G[FP[3] - 4 + k//2] = G[FP[3] - 4 + k//2] + [x]
        G[FP[3] + 1] = G[FP[3] + 1] + f2[2]
        G = [[y for x in g for y in (x if isinstance(x, list) else [x])] for g in G]
    elif first and p0:
        lf = SW[1] > 112
        G[116] = G[116] + [I("s_barrier", needs=[] if lf else ['scs'])]
        for L, a, b in ((p0[3], SD[0], SD[1]), (p0[1], SW[0], SW[1]), ([] if lf else p0[2], 117, 130)):
            for k, x in enumerate(L): G[a + k*(b - a)//len(L)] += x if isinstance(x, list) else [x]
    else: G[116*K] = G[116*K] + ["s_barrier"]
    tg = tw and tw[0 if first else 1]
    if isinstance(tg, int):
        for k, x in enumerate(touch(tw[2], tw[3 if first else 4])[::-1]): G[tg + k] = G[tg + k] + x
    for k in range(1, 144*K):
        if nst(f'a_g{k}'): G[k] = [nst(f'a_g{k}')] + G[k]
    if not m16: E0 = (74, 124)
    for grp in G[:20*K]: p.ext(grp)
    p.ext(interleave(G[20*K:60*K], atomize(late)))
    for grp in G[60*K:E0[0]]: p.ext(grp)
    p.ext(interleave(G[E0[0]:E0[1]], epi1(0) + epi2(0) + qst(0)))
    p.ext(interleave(G[E0[1]:], wo[:NPa]))
    p(nst('a_epi'))
    e1 = epi1(1)
    rest = wo[NPa:]
    k1 = len(rest) * 2 // 3
    p.ext(interleave([x if isinstance(x, list) else [x] for x in e1], rest[:k1]))
    if m16: p(f"ds_write_b128 v15, v[{KVA}:{KVA+3}]\nds_write_b128 v15, v[{KVA+4}:{KVA+7}] offset:256\ns_mov_b32 exec_hi, 0\nds_write_b64 v14, v[{KVA+8}:{KVA+9}] offset:2048\nds_write_b64 v14, v[{KVA+12}:{KVA+13}] offset:2176\ns_mov_b64 exec, -1")
    else: p(f"ds_write_b128 v15, v[{KVA}:{KVA+3}]\nds_write_b128 v15, v[{KVA+4}:{KVA+7}] offset:1024\nds_write_b64 v14, v[{KVA+8}:{KVA+9}] offset:2048")
    for x in rest[k1:]: p.ext(x)
    p("s_waitcnt lgkmcnt(0)")
    p("s_barrier")
    for it in range(3):
        for w in range(4): p(f"ds_read_b32 v{16 + 4*it + w}, v13 offset:{w*2560 + it*1024}")
    p.ext(epi2(1))
    if first and p0 and SW[1] > 112: p.ext(p0[2])
    for it in range(3):
        b = 16 + 4*it
        p(f"v_add_f32 v{b}, v{b}, v{b+1}\nv_add_f32 v{b+2}, v{b+2}, v{b+3}\nv_add_f32 v{b}, v{b}, v{b+2}")
    p(f"""s_mov_b64 exec, s[34:35]
buffer_atomic_add_f32 v16, v13, s[8:11], s28 offen
buffer_atomic_add_f32 v20, v13, s[8:11], s28 offen offset:1024
s_mov_b64 exec, -1""")
    p.ext(qst(1))
    p(f"""s_cmp_eq_u32 s16, 0
s_cbranch_scc0 L_{n}_end
s_mov_b64 exec, s[38:39]
buffer_atomic_add_f32 v24, v13, s[8:11], s28 offen offset:2048
s_mov_b64 exec, -1
L_{n}_end:""")
    for k, i in enumerate(p.ins):
        if i.kind == 'vm' and i.w and i.w[0][0] == 'a' and 's50' in i.r:
            assert not any(j.kind == 'mfma' and set(j.r) & set(i.w) for j in p.ins[k:]), i.text
    p(nst('a_st'))
    if first: p("s_branch L_ab")
    return p.finish() + (f2[3] if first and p2 is not None else "")

A2 = [False]
RAB = [0, 0]
QB2, TAGL, LXD, S80 = 147456, 152576, 152832, 153600
A_MAP2 = """s_and_b32 s17, s2, 7
s_lshr_b32 s18, s2, 3
s_lshr_b32 s19, s17, 2
s_lshl_b32 s19, s19, 3
s_and_b32 s20, s18, 7
s_add_u32 s19, s19, s20
s_and_b32 s20, s17, 3
s_lshl_b32 s20, s20, 2
s_lshr_b32 s21, s18, 3
s_add_u32 s20, s20, s21
s_lshl_b32 s17, s20, 1
s_and_b32 s18, s19, 1
s_add_u32 s17, s17, s18
s_xor_b32 s18, s17, 1"""

def a_map2(m):
    if m == 0: return A_MAP2
    nb = 3 - m
    return f"""s_bfe_u32 s19, s2, {hex(((1 + m) << 16) | (2 - m))}
s_lshl_b32 s19, s19, {nb}
s_bfe_u32 s20, s2, {hex((nb << 16) | 3)}
s_add_u32 s19, s19, s20
""" + (f"s_and_b32 s20, s2, 1\ns_lshl_b32 s20, s20, 3\ns_lshr_b32 s21, s2, 5\ns_add_u32 s20, s20, s21\n" if m == 1 else "s_lshr_b32 s20, s2, 4\n") + """s_lshl_b32 s17, s20, 1
s_and_b32 s18, s19, 1
s_add_u32 s17, s17, s18
s_xor_b32 s18, s17, 1"""
def a2_part(first, p2=None, K1=12, D0=10, RT=1.25, D1=8, R1=1.0, NW=8, qsf="sc1", NP1=36, PD=1, yf='sc1', FP=(0, 0, 100, 132),
            BAR=None, E0=2, E1=None, W1=(50, 94), NPa=8, LT=(20, 44), rr=0, SG=3, LEAD=8, c32=False, **kw):
    n = "a0" if first else "a1"
    L_ = 0 if first else LS
    p = Prog()
    p(A_MAP2 if first else a_map2(AM1[0]))
    p(f"""s_lshl_b32 s21, s19, 2
s_add_u32 s21, s21, s16
s_mul_i32 s22, s21, 36864
s_add_u32 s22, s22, {YF + L_}""")
    if first: p(f"""s_lshl_b32 s25, s16, 11
s_mul_i32 s24, s17, 73728
s_mul_i32 s23, s18, 73728
s_add_u32 s60, s25, {WQF}
s_add_u32 s24, s24, s60
s_add_u32 s23, s23, s60""")
    ACC, WR, P0, V1, TMP, KVA, QO, VB2 = 16, 80, 112, 120, 128, 136, 152, 158
    KVO = (0, 11264)
    yreg = lambda kk: ('a', 4*kk) if kk < 16 else ('v', 164 + 4*(kk - 16))
    units = [(kk, h) for kk in range(K1) for h in range(2)] + [(kk, 0) for kk in range(K1, 36)] + [(kk, 1) for kk in range(K1, 36)]
    uof = {u: i for i, u in enumerate(units)}
    C1 = K1 // 4
    if BAR is None:
        BAR = [[(0, c), (1, c)] for c in range(C1)] + [[(0, c), (0, c + 1)] if c < 8 else [(0, c)] for c in range(C1, 9, 2)] + [[(1, c) for c in range(c0, min(9, c0 + SG))] for c0 in range(C1, 9, SG)]
    assert sorted(x for g in BAR for x in g) == [(h, c) for h in range(2) for c in range(9)]
    bar_at = {}
    items = []
    for g in BAR:
        u0 = min(uof[(4*c, h)] for h, c in g)
        bar_at[2*u0] = [f"w{h}{c}" for h, c in g]
        if first:
            for h, c in g:
                sr = (24, 23)[h]
                L = [f"s_add_u32 m0, s25, {h*73728 + c*8192}" if (h or c) else "s_mov_b32 m0, s25"]
                a = I(f"buffer_load_dwordx4 v3, s[8:11], s{sr} offen {HF[0]} lds", tag=f"w{h}{c}")
                b = I(f"buffer_load_dwordx4 v3, s[8:11], s{sr} offen offset:1024 {HF[0]} lds", tag=f"w{h}{c}")
                items.append((u0 - 4, 2, L + [a, b] + ([f"s_addk_i32 s{sr}, 8192"] if c < 8 else [])))
    for kk in range(36):
        R, r = yreg(kk)
        pre = ["s_addk_i32 s22, 4096"] if (kk % 4 == 0 and kk) else []
        items.append((uof[(kk, 0)], 1, pre + [f"buffer_load_dwordx4 {R}[{r}:{r+3}], v3, s[8:11], s22 offen offset:{(kk%4)*1024} {yf}"]))
    items.sort(key=lambda x: x[0])
    st = dict(ip=0, n=0)
    def issue(nmax, u=-99):
        L = []
        while st['ip'] < len(items) and (st['n'] < nmax or items[st['ip']][0] <= u + LEAD):
            L += items[st['ip']][2]; st['n'] += items[st['ip']][1]; st['ip'] += 1
        return L
    setup = f"""v_lshlrev_b32 v13, 2, v0
v_add_u32 v4, 65536, v3
v_add_u32 v{VB2}, 131072, v3
s_mul_i32 s28, s16, 1280
s_add_u32 s28, s28, {QB2 - 20*64}
v_and_b32 v5, 31, v2
v_lshlrev_b32 v5, 6, v5
v_lshrrev_b32 v9, 5, v2
v_lshl_add_u32 v5, v9, 5, v5
v_add_u32 v5, s28, v5
v_bfe_u32 v6, v2, 2, 2
v_lshl_add_u32 v6, v9, 2, v6
v_lshlrev_b32 v6, 6, v6
v_and_b32 v7, 1, v2
v_lshl_add_u32 v6, v7, 5, v6
v_bfe_u32 v7, v2, 4, 1
v_lshl_add_u32 v6, v7, 4, v6
v_bfe_u32 v7, v2, 1, 1
v_lshl_add_u32 v6, v7, 3, v6
s_add_u32 s28, s28, {20*64}
v_add_u32 v6, s28, v6
v_lshlrev_b32 v7, 2, v2
s_mul_i32 s28, s16, 2560
v_add_u32 v15, s28, v3
v_lshlrev_b32 v14, 3, v2
v_add_u32 v14, s28, v14
v_and_b32 v8, 27, v2
v_cmp_eq_u32 s[30:31], 18, v8
v_mov_b32 v8, 0x3f803f80
s_mov_b32 s32, 0xfff00000
s_mov_b32 s33, 0xfff00000
s_lshl_b32 s26, s21, 5
s_add_u32 s26, s26, s17
s_lshl_b32 s27, s26, 8
s_lshl_b32 s26, s26, 10
s_add_u32 s26, s26, {PQ16 + L_}
s_add_u32 s27, s27, {PQ4 + L_}"""
    p(setup)
    if first:
        p(kq.a0_go(True))
        p(nst('a_go'))
        p.ext(issue(D0))
        p("ds_read_b32 v161, v162\nv_readfirstlane_b32 s3, v161")
    else:
        p(f"""s_lshl_b32 s28, s19, 2
{"s_and_b32 s29, s2, 3" if rr == 0 else "s_lshr_b32 s29, s2, 6"}
s_add_u32 s28, s28, s29
s_lshl_b32 s28, s28, 8
s_add_u32 s28, s28, {CNT + LS + CDA}
v_lshlrev_b32 v10, 7, v2
s_mov_b32 s49, 0x40000
s_waitcnt vmcnt(0)
s_cmp_eq_u32 s16, 0
s_cbranch_scc1 L_da_w0""")
        L = f"""s_sub_u32 s29, s16, 1
s_lshl_b32 s56, s29, 13
s_add_u32 s56, s56, {2048*(36 - K1)}
s_mul_i32 s57, s17, 73728
s_add_u32 s57, s57, s56
s_add_u32 s57, s57, {WQF}""".split("\n")
        assert K1 == 12
        for k in range(2):
            L += [f"s_add_u32 m0, s56, {k*4096}", "s_nop 0"] + [f"buffer_load_dwordx4 v3, s[8:11], s57 offen offset:{i*1024} {HF[0]} lds" for i in range(4)] + (["s_addk_i32 s57, 4096"] if k == 0 else [])
        L += f"""s_lshl_b32 s56, s29, 14
s_add_u32 s56, s56, {2048*K1}
s_mul_i32 s57, s18, 73728
s_add_u32 s57, s57, s56
s_add_u32 s57, s57, {WQF}""".split("\n")
        for k in range(4):
            L += [f"s_add_u32 m0, s56, {73728 + k*4096}", "s_nop 0"] + [f"buffer_load_dwordx4 v3, s[8:11], s57 offen offset:{i*1024} {HF[0]} lds" for i in range(4)] + (["s_addk_i32 s57, 4096"] if k < 3 else [])
        p(kq.off("\n".join(L + ["s_branch L_da_go", "L_da_w0:"])))
        p(spin("da", 28, 10, 250, 2, 8, PD))
        p("s_barrier")
        p(nst('a_go'))
        p.ext(issue(D1))
    def wrd(f):
        kk, h = units[f // 2]; t = f % 2
        s = WR + 4*(f % NW)
        L = []
        if first and f in bar_at: L.append(I("s_barrier", needs=bar_at[f]))
        a = h*73728 + kk*2048 + t*1024
        L.append(f"ds_read_b128 v[{s}:{s+3}], v{(3, 4, VB2)[a >> 16]} offset:{a & 65535}")
        return L
    for f in range(NW - 1): p.ext(wrd(f))
    p(nst('a_first'))
    G = []
    for u, (kk, h) in enumerate(units):
        R, y = yreg(kk)
        for t in range(2):
            f = 2*u + t
            w = WR + 4*(f % NW)
            acc = ACC + 32*h + 16*t
            c = "0" if kk == 0 else f"v[{acc}:{acc+15}]"
            grp = [f"v_mfma_f32_32x32x16_bf16 v[{acc}:{acc+15}], {R}[{y}:{y+3}], v[{w}:{w+3}], {c}"]
            if f + NW - 1 < 144: grp += wrd(f + NW - 1)
            if t == 1: grp += issue((D0 + (u + 1)*RT) if first else (D1 + (u + 1)*R1), u)
            G.append(grp)
    assert st['ip'] == len(items)
    def epi1(h):
        T0 = ACC + 32*h; T1 = T0 + 16
        L = []
        for i in range(8): L.append(f"v_cvt_pk_bf16_f32 v{V1+i}, v{T1+2*i}, v{T1+2*i+1}")
        for i in range(8): L.append(f"v_cndmask_b32 v{V1+i}, v{V1+i}, v8, s[30:31]")
        ph = phi(list(range(T0, T0 + 16)), TMP)
        pk = [f"v_cvt_pk_bf16_f32 v{P0+i}, v{T0+2*i}, v{T0+2*i+1}" for i in range(8)]
        mm = [f"v_mfma_f32_32x32x16_bf16 v[{KVA}:{KVA+15}], v[{P0+4*q}:{P0+4*q+3}], v[{V1+4*q}:{V1+4*q+3}], " + ("0" if q == 0 else f"v[{KVA}:{KVA+15}]") for q in range(2)]
        L = ph[:32] + pk[:4] + L + [mm[0]] + ph[32:] + pk[4:] + [mm[1]]
        L.append(["s_mov_b64 exec, s[32:33]",
                  f"ds_write_b128 v5, v[{V1}:{V1+3}] offset:512", f"ds_write_b128 v5, v[{V1+4}:{V1+7}] offset:528",
                  f"ds_write_b128 v5, v[{P0}:{P0+3}]", f"ds_write_b128 v5, v[{P0+4}:{P0+7}] offset:16",
                  "s_mov_b64 exec, -1"])
        L += [f"ds_read_b64_tr_b16 v[{QO}:{QO+1}], v6", f"ds_read_b64_tr_b16 v[{QO+2}:{QO+3}], v6 offset:768", f"ds_read_b64_tr_b16 v[{QO+4}:{QO+5}], v6 offset:512"]
        return L
    def epi2():
        u = TMP + 4
        L = [f"v_lshlrev_b32 v{u}, 16, v{QO+2}", f"v_and_b32 v{u+1}, 0xffff0000, v{QO+2}", f"v_lshlrev_b32 v{u+2}, 16, v{QO+3}", f"v_and_b32 v{u+3}, 0xffff0000, v{QO+3}"]
        L += phi([u, u+1, u+2, u+3], TMP)
        L += [f"v_cvt_pk_bf16_f32 v{QO+2}, v{u}, v{u+1}", f"v_cvt_pk_bf16_f32 v{QO+3}, v{u+2}, v{u+3}"]
        return L
    def qst(h):
        L = ["s_xor_b32 s26, s26, 1024", "s_xor_b32 s27, s27, 256"] if h else []
        return L + [f"buffer_store_dwordx4 v[{QO}:{QO+3}], v3, s[8:11], s26 offen {qsf}", f"buffer_store_dword v{QO+4}, v7, s[8:11], s27 offen {qsf}"]
    kvw = lambda h: [I(f"ds_write_b128 v15, v[{KVA}:{KVA+3}] offset:{KVO[h]}", tag=f'kv{h}'), I(f"ds_write_b128 v15, v[{KVA+4}:{KVA+7}] offset:{KVO[h] + 1024}", tag=f'kv{h}'),
                     I(f"ds_write_b64 v14, v[{KVA+8}:{KVA+9}] offset:{KVO[h] + 2048}", tag=f'kv{h}')]
    RB = (16, 32)
    kvr = lambda h: [f"ds_read_b32 v{RB[h] + 4*it + w}, v13 offset:{KVO[h] + w*2560 + it*1024}" for it in range(3) for w in range(4)]
    def kva(h):
        L = []
        for it in range(3):
            b = RB[h] + 4*it
            L += [f"v_add_f32 v{b}, v{b}, v{b+1}", f"v_add_f32 v{b+2}, v{b+2}, v{b+3}", f"v_add_f32 v{b}, v{b}, v{b+2}"]
        return L
    def kat(h):
        b = RB[h]; sk = 28 + h
        return [["s_mov_b64 exec, s[34:35]", f"buffer_atomic_add_f32 v{b}, v13, s[8:11], s{sk} offen", f"buffer_atomic_add_f32 v{b+4}, v13, s[8:11], s{sk} offen offset:1024", "s_mov_b64 exec, -1"]], \
               [["s_cmp_eq_u32 s16, 0", f"s_cbranch_scc0 L_{n}_k{h}", "s_mov_b64 exec, s[38:39]", f"buffer_atomic_add_f32 v{b+8}, v13, s[8:11], s{sk} offen offset:2048 ; @", "s_mov_b64 exec, -1", f"L_{n}_k{h}:"]]
    late = f"""v_bfe_u32 v10, v0, 2, 5
v_lshrrev_b32 v12, 1, v0
v_cmp_gt_u32 s[34:35], 19, v10
v_cmp_eq_u32 s[36:37], 22, v10
s_or_b64 s[34:35], s[34:35], s[36:37]
v_cmp_gt_u32 s[38:39], 19, v12
v_cmp_eq_u32 s[36:37], 22, v12
s_or_b64 s[38:39], s[38:39], s[36:37]
s_mul_i32 s28, s17, 2560
s_add_u32 s28, s28, {KV + L_}
s_mul_i32 s29, s18, 2560
s_add_u32 s29, s29, {KV + L_}
s_lshr_b32 s51, s2, 6
s_mul_i32 s52, s51, 5
s_lshl_b32 s53, s51, 2
s_add_u32 s53, s53, 2
s_cmp_lt_u32 s51, 2
s_cselect_b32 s52, s52, s53
s_mul_i32 s50, s52, 36864
s_mul_i32 s53, s16, 9216
s_add_u32 s50, s50, s53
s_add_u32 s50, s50, {WOF}
s_lshl_b32 s54, s{17 if c32 else 20}, 7
s_add_u32 s54, s54, {CNT + CAB + L_}
v_lshlrev_b32 v10, 12, v2
v_mov_b32 v11, 1""".split("\n")
    wo = wo_loads(range(4))[:NP1]
    def put(L, a, b):
        for k, x in enumerate(L): G[a + k*(b - a)//len(L)] += x if isinstance(x, list) else [x]
    P3 = 2*(36 + K1)
    if first:
        f2 = kq.fchk('f2', 244, 57, 's3')
        G[FP[0]] = G[FP[0]] + kq.fsig('f2', 161, 162, 58)
        G[FP[2]] = G[FP[2]] + [f2[0]]
        for k, x in enumerate(f2[1]): G[FP[3] - 4 + k//2] = G[FP[3] - 4 + k//2] + [x]
        G[FP[3] + 1] = G[FP[3] + 1] + f2[2]
        put(wo[:NPa], FP[3] + 2, 144); rest = wo[NPa:]
    else:
        G[48] = G[48] + ["s_barrier"]
        assert 2*uof[(24, 0)] - NW >= 48
        put(wo, W1[0], W1[1]); rest = []
    G = [[y for x in g for y in (x if isinstance(x, list) else [x])] for g in G]
    for k in range(1, 144):
        if nst(f'a_g{k}'): G[k] = [nst(f'a_g{k}')] + G[k]
    k0, k1 = kat(0)
    fill = epi1(0) + kvw(0) + epi2() + qst(0) + [I("s_barrier", needs=['kv0'])] + kvr(0) + kva(0) + k0 + k1
    a = P3 + E0; b = E1 or 144
    for grp in G[:LT[0]]: p.ext(grp)
    p.ext(interleave(G[LT[0]:LT[1]], atomize(late)))
    for grp in G[LT[1]:a]: p.ext(grp)
    p.ext(interleave(G[a:b], fill))
    for grp in G[b:]: p.ext(grp)
    p(nst('a_epi'))
    e1 = epi1(1)
    kx = len(rest) * 2 // 3
    p.ext(interleave([x if isinstance(x, list) else [x] for x in e1], rest[:kx]))
    p.ext(kvw(1))
    for x in rest[kx:]: p.ext(x)
    p("s_waitcnt lgkmcnt(0)")
    p("s_barrier")
    p.ext(kvr(1)); p.ext(epi2()); p.ext(kva(1))
    k0, k1 = kat(1)
    p.ext(k0[0]); p.ext(qst(1)); p.ext(k1[0])
    for k, i in enumerate(p.ins):
        if i.op == 's_barrier':
            for t in i.needs: assert all(kk < k for kk, j in enumerate(p.ins) if j.tag == t), t
    p(nst('a_st'))
    if first: p("s_branch L_ab")
    return p.finish() + (f2[3] if first else "")

def w_mid2():
    L = f"""s_cmp_eq_u32 s63, 0
s_cbranch_scc0 L_wm_skip
s_and_b32 s52, s2, {(3, 1, 0)[AM1[0]]}
s_lshl_b32 s52, s52, {3 + AM1[0]}
s_lshr_b32 s53, s2, {6 - AM1[0]}
s_lshl_b32 s53, s53, 1
s_add_u32 s52, s52, s53
s_bfe_u32 s53, s2, 0x10003
s_add_u32 s52, s52, s53
s_xor_b32 s37, s52, 1
s_mul_i32 s52, s52, 73728
s_mul_i32 s37, s37, 73728
s_mul_i32 s53, s16, 12288
s_add_u32 s52, s52, s53
s_add_u32 s52, s52, {WQF}
s_mov_b32 m0, s53""".split("\n")
    for k in range(3):
        if k: L += [f"s_add_u32 m0, s53, {k*4096}", "s_addk_i32 s52, 4096"]
        L += ["s_nop 0"] + [f"buffer_load_dwordx4 v3, s[8:11], s52 offen offset:{i*1024} {HF[0]} lds" for i in range(4)]
    L += ["s_lshr_b32 s53, s53, 1", "s_add_u32 s37, s37, s53", f"s_add_u32 s37, s37, {WQF}"]
    for k in range(2):
        L += [f"s_add_u32 m0, s53, {73728 + k*4096}"] + (["s_addk_i32 s37, 4096"] if k else [])
        L += ["s_nop 0"] + [f"buffer_load_dwordx4 v3, s[8:11], s37 offen offset:{i*1024} {HF[0]} lds" for i in range(4 if k == 0 else 2)]
    return L

def ab_link(NP1=36, lp=None, NPw=0):
    p = Prog()
    if lp is not None: p(kq.LATE_KA)
    p(f"""s_and_b32 s17, s2, 7
s_lshl_b32 s17, s17, 3
s_bfe_u32 s19, s2, 0x30003
s_add_u32 s17, s17, s19
s_mov_b32 s18, s52
{chr(10).join(y for x in wo_loads(range(4))[NP1:NP1 + NPw] for y in x)}
s_waitcnt vmcnt({NPw})
s_barrier
s_cmp_eq_u32 s16, 0
s_cbranch_scc0 L_ab_ns
s_mov_b64 exec, {0xff if RAB[0] == 1 else 0xffff}
buffer_atomic_add v11, v10, s[8:11], s54 offen
s_mov_b64 exec, -1
L_ab_ns:""")
    p(nst('a_sig'))
    for x in wo_loads(range(4))[NP1 + NPw:]: p.ext(x)
    if lp is not None: p(kq.late_setup()); p(kq.late_dmas(**lp))
    return p.finish() + "  s_cmp_lt_u32 s51, 2\n  s_cbranch_scc0 L_b4\n"

def b_part(NT, cz, xsf="sc1", PFD=3, PD=1, lf='sc1', allp=False, pbar=False, x4=False, dx=False, sb=None, PFN=5, PFR=(99, 0), BL0=8, BLX=None):
    p = Prog()
    KVR, NUM, TL, ACC, XR = 16, 112, 144, 152, 232
    aPQ = 0
    if NT == 5:
        for x in wo_loads(range(3, 5))[9:]: p.ext(x)
    p(f"""s_lshl_b32 s19, s16, 3
s_mul_i32 s20, s19, 2560
s_add_u32 s20, s20, {KV}{lay('s20')}
s_lshl_b32 s21, s17, 5
s_add_u32 s21, s21, s19
s_lshl_b32 s22, s21, 8
s_lshl_b32 s21, s21, 10
s_add_u32 s21, s21, {PQ16}{lay('s21')}
s_add_u32 s22, s22, {PQ4}{lay('s22')}
v_lshlrev_b32 v4, 3, v2
v_lshlrev_b32 v5, 2, v2
v_and_b32 v6, 24, v2
v_cmp_eq_u32 vcc, 24, v6
v_mov_b32 v6, 0x40000000
v_cndmask_b32 v12, v3, v6, vcc
v_cndmask_b32 v4, v4, v6, vcc
v_add_u32 v6, 4096, v3
s_mul_i32 s25, s17, 36864
s_lshl_b32 s26, s18, 11
s_add_u32 s25, s25, s26
s_lshl_b32 s26, s16, 9
s_add_u32 s25, s25, s26{lay('s25')}
s_add_u32 s26, s25, {XF}
s_add_u32 s27, s25, {X1F}
v_and_b32 v8, 31, v2
v_lshlrev_b32 v8, 4, v8
v_lshrrev_b32 v9, 5, v2
v_lshl_add_u32 v8, v9, 3, v8
v_add_u32 v9, 4096, v8
v_add_u32 v10, 8192, v8""")
    if x4:
        p("""v_and_b32 v246, 31, v2
v_lshrrev_b32 v247, 5, v2
v_lshlrev_b32 v8, 4, v246
v_lshl_add_u32 v8, v247, 11, v8
v_add_u32 v9, 4096, v8""")
        if dx:
            p(f"""s_mul_i32 s31, s17, 36864
s_lshl_b32 s32, s18, 6
s_add_u32 s31, s31, s32
s_lshl_b32 s32, s16, 4
s_add_u32 s31, s31, s32
s_cmp_eq_u32 s63, 0
s_cselect_b32 s26, s31, s26
s_cselect_b32 s31, 1152, 16
s_cselect_b32 s32, 64, 2048
v_mul_u32_u24 v246, s31, v246
v_mul_u32_u24 v13, s32, v247
v_lshl_add_u32 v247, v247, 3, v246
v_add_u32 v246, v246, v13
s_lshl_b32 s32, s32, 1
s_add_u32 s31, s26, s32
s_add_u32 s32, s31, s32""")
    for h in range(8): p(f"v_accvgpr_write_b32 a{aPQ+6*h+5}, 0")
    for g in range(1, 4):
        p(f"""s_add_u32 s28, s16, {g}
s_and_b32 s28, s28, 3
s_mul_i32 s28, s28, {3*NT*1024}
s_add_u32 s28, s28, {(g-1)*NT*1024}
v_add_u32 v{242+g}, s28, v3""")
    p(f"s_mul_i32 s28, s16, {3*NT*1024}\nv_add_u32 v14, s28, v3")
    p(f"s_lshl_b32 s28, s17, 8\ns_add_u32 s28, s28, {ST}{lay('s28')}")
    p.ext(cz[1])
    p(f"s_lshr_b32 s67, s17, 1\ns_lshl_b32 s67, s67, 2\ns_add_u32 s67, s67, s16\ns_lshl_b32 s67, s67, 7\ns_add_u32 s67, s67, {CNT + REP['bc'][0]}{lay('s67')}")
    pf = list(cz[3])
    if not allp and not pbar:
        for x in pf[:3]: p.ext(x)
    p(f"""s_lshl_b32 s29, s16, 10
s_bfe_u32 s30, s2, {('0x40003', '0x30000', '0x40000')[RAB[0]]}
s_lshl_b32 s30, s30, 12
s_add_u32 s29, s29, s30
s_add_u32 s29, s29, {CNT + CAB}{lay('s29')}
v_lshlrev_b32 v7, 7, v2
s_mov_b32 s49, 0x40000""")
    if allp:
        p(f"s_waitcnt vmcnt(0)\ns_cmp_eq_u32 s16, 0\ns_cbranch_scc0 L_ab{NT}_go")
        p(spin(f"ab{NT}", 29, 7, 250, 32, 8, PD)); p("s_barrier")
    elif sb is not None:
        p(f"s_cmp_eq_u32 s16, 0\ns_cbranch_scc0 L_ab{NT}_go")
        p(spin(f"ab{NT}", 29, 7, 250, 16, 16, PD) if A2[0] == 1 else spin(f"ab{NT}", 29, 7, 250, 32, 8, PD)); p("s_barrier")
    else: p(spin(f"ab{NT}", 29, 7, 250, 8, 8, PD))
    if sb is None: p.ins.append(I("s_nop 0", tag='__clr'))
    p(nst('b_go'))
    def hld(h):
        k = KVR + 12*h; q = aPQ + 6*h
        L = f"""buffer_load_dwordx4 v[{k}:{k+3}], v12, s[8:11], s20 offen {lf}
buffer_load_dwordx4 v[{k+4}:{k+7}], v12, s[8:11], s20 offen offset:1024 {lf}
buffer_load_dwordx2 v[{k+8}:{k+9}], v4, s[8:11], s20 offen offset:2048 {lf}
buffer_load_dwordx4 a[{q}:{q+3}], v{(3,6)[h//4]}, s[8:11], s21 offen offset:{(h%4)*1024} {lf}
buffer_load_dword a{q+4}, v5, s[8:11], s22 offen offset:{h*256} {lf}""".split("\n")
        L = [[x] for x in L]
        if h < 7: L[2].append("s_addk_i32 s20, 2560")
        return L
    xld = []
    if x4:
        for u in range(2): xld.append([f"buffer_load_dwordx4 v[{XR+4*u}:{XR+4*u+3}], " + (f"v246, s[12:15], s{(26, 31)[u]}" if dx else f"v{8+u}, s[8:11], s26") + f" offen {lf}"])
        if NT == 5: xld.append([f"buffer_load_dwordx2 v[{XR+8}:{XR+9}], " + ("v247, s[12:15], s32" if dx else "v10, s[8:11], s26") + f" offen {lf}"])
    else:
        for t in range(NT): xld.append([f"buffer_load_dwordx2 v[{XR+2*t}:{XR+2*t+1}], v{8 + t//2}, s[8:11], s26 offen offset:{(t%2)*2048} {lf}"])
    for h in range(BL0):
        for x in hld(h): p.ext(x)
    if BLX is None: BLX = 8 - BL0
    if BL0 == 8:
        for x in xld: p.ext(x)
    def prep(h):
        k = KVR + 12*h; q = aPQ + 6*h; n = NUM + 16*(h % 2)
        L = [f"v_cvt_pk_bf16_f32 v{k+i}, v{k+2*i}, v{k+2*i+1}" for i in range(5)]
        L.append(f"v_mov_b32 v{k+5}, 0")
        L.append(f"v_mfma_f32_32x32x16_bf16 v[{n}:{n+15}], v[{k}:{k+3}], a[{q}:{q+3}], 0")
        L.append(f"v_mfma_f32_32x32x8_bf16 v[{n}:{n+15}], v[{k+4}:{k+5}], a[{q+4}:{q+5}], v[{n}:{n+15}]")
        return L
    def post(h):
        n = NUM + 16*(h % 2); o = KVR + 12*h + 8
        L = [f"v_add_f32 v11, 0x358637bd, v{n+10}", "v_rcp_f32 v11, v11"]
        for i in range(10): L.append(f"v_mul_f32 v{n+i}, v{n+i}, v11")
        for i in range(4): L.append(f"v_cvt_pk_bf16_f32 v{o+i}, v{n+2*i}, v{n+2*i+1}")
        L.append(f"v_cvt_pk_bf16_f32 v{TL + h//2 + 4*(h%2)}, v{n+8}, v{n+9}")
        return L
    def gemm(ks):
        o = KVR + 12*ks + 8 if ks < 8 else TL
        G = []
        for t in range(NT):
            r = aWOr(ks, t); a = ACC + 16*t
            c = "0" if ks == 0 else f"v[{a}:{a+15}]"
            G.append([f"v_mfma_f32_32x32x16_bf16 v[{a}:{a+15}], a[{r}:{r+3}], v[{o}:{o+3}], {c}"])
        return G
    flat = lambda L: [y for x in L for y in (x if isinstance(x, list) else [x])]
    for st in range(11):
        ks = st - PFD
        nl = pf[3 + PFN*ks: 3 + PFN*(ks + 1)] if ks >= 0 else []
        if BL0 < 8: nl = (hld(st + BL0) if st + BL0 < 8 else []) + (xld if st == BLX else []) + nl
        if (allp or pbar) and ks == -1: nl = pf[:3]
        if pbar and ks == -1: p('s_barrier')
        p(nst(f'b_s{st}'))
        if st < 8: p.ext(prep(st))
        fill = post(st - 1) if 0 <= st - 1 < 8 else []
        if st == 9: fill = [f"v_permlane32_swap_b32 v{TL+i}, v{TL+4+i}" for i in range(4)]
        if nl:
            m = []; step = max(1, len(fill) // len(nl)) if fill else 1; fi = 0
            for x in nl:
                m.append(x); m += fill[fi:fi+step]; fi += step
            fill = m + fill[fi:]
        if st >= 2: p.ext(interleave(gemm(st - 2), fill))
        else: p.ext(flat(fill))
    rest = pf[3 + PFN*(10 - PFD + 1):]
    r0, r1, r2 = rest[:PFR[0]], rest[PFR[0]:PFR[0] + PFR[1]], rest[PFR[0] + PFR[1]:]
    p(nst('b_gemm'))
    p.ext(interleave([[f"ds_write_b128 v{242+g}, v[{ACC + 16*t + 4*g}:{ACC + 16*t + 4*g + 3}] offset:{t*1024}"] for t in range(NT) for g in range(1, 4)], r0))
    p("s_waitcnt lgkmcnt(0)")
    p(nst('b_w'))
    p("s_barrier")
    p(nst('b_bar'))
    RD = KVR
    for t in range(NT):
        for g in range(3):
            r = RD + 12*t + 4*g
            p(f"ds_read_b128 v[{r}:{r+3}], v14 offset:{(g*NT + t)*1024}")
    for x in r1: p.ext(x)
    p("v_mov_b32 v15, 0\nv_mov_b32 v11, 0")
    swp = lambda u: f"v_permlane32_swap_b32 v{XR+4*u}, v{XR+4*u+2}\nv_permlane32_swap_b32 v{XR+4*u+1}, v{XR+4*u+3}"
    if x4:
        for u in range(2): p(swp(u))
    for t in range(NT):
        a = ACC + 16*t; x = XR + 2*t; u = a + 4
        p(f"v_lshlrev_b32 v{u}, 16, v{x}\nv_and_b32 v{u+1}, 0xffff0000, v{x}\nv_lshlrev_b32 v{u+2}, 16, v{x+1}\nv_and_b32 v{u+3}, 0xffff0000, v{x+1}")
        for i in range(4): p(f"v_add_f32 v{a+i}, v{a+i}, v{u+i}")
    for t in range(NT):
        a = ACC + 16*t; r = RD + 12*t; x = XR + 2*t
        for i in range(4): p(f"v_add_f32 v{a+i}, v{a+i}, v{r+i}")
        for i in range(4): p(f"v_add_f32 v{r+4+i}, v{r+4+i}, v{r+8+i}")
        for i in range(4): p(f"v_add_f32 v{a+i}, v{a+i}, v{r+4+i}")
        p(f"v_cvt_pk_bf16_f32 v{x}, v{a}, v{a+1}\nv_cvt_pk_bf16_f32 v{x+1}, v{a+2}, v{a+3}")
        if not x4 or t == 4: p(f"buffer_store_dwordx2 v[{x}:{x+1}], v{8 + t//2}, s[8:11], s27 offen offset:{(t%2)*2048} {xsf}")
        elif t % 2: p(swp(t//2)); p(f"buffer_store_dwordx4 v[{x-2}:{x+1}], v{8 + t//2}, s[8:11], s27 offen {xsf}")
    p(nst('b_x1'))
    for t in range(NT):
        a = ACC + 16*t; x = XR + 2*t; u = a + 4
        p(f"v_lshlrev_b32 v{u}, 16, v{x}\nv_and_b32 v{u+1}, 0xffff0000, v{x}\nv_lshlrev_b32 v{u+2}, 16, v{x+1}\nv_and_b32 v{u+3}, 0xffff0000, v{x+1}")
        for i in range(4): p(f"v_add_f32 v15, v15, v{u+i}\nv_fmac_f32 v11, v{u+i}, v{u+i}")
    p(f"""v_permlane32_swap_b32 v15, v11
v_add_f32 v15, v15, v11
buffer_atomic_add_f32 v15, v5, s[8:11], s28 offen
v_lshlrev_b32 v4, 14, v2
v_mov_b32 v6, 1
{nst('b_st')}
s_waitcnt vmcnt(0)
s_mov_b64 exec, {(1 << REP['bc'][1]) - 1}
buffer_atomic_add v6, v4, s[8:11], s67 offen
s_mov_b64 exec, -1""")
    p(nst('b_sig'))
    for x in r2: p.ext(x)
    if NT == 5: p("s_branch L_bc_c")
    return p.finish(), ''

def w_mid():
    L = f"""s_cmp_eq_u32 s63, 0
s_cbranch_scc0 L_wm_skip
{a_head1()}
s_mul_i32 s52, s52, 73728
s_add_u32 s52, s52, {WQF}
s_mul_i32 s53, s16, 18432
s_add_u32 s52, s52, s53
s_mov_b32 m0, s53""".split("\n")
    for k in range(5):
        if k: L += [f"s_add_u32 m0, s53, {k*4096}", "s_addk_i32 s52, 4096"]
        L += ["s_nop 0"] + [f"buffer_load_dwordx4 v3, s[8:11], s52 offen offset:{i*1024} {HF[0]} lds" for i in range(4 if k < 4 else 2)]
    return L

def w_early():
    L = f"""s_cmp_eq_u32 s63, 0
s_cbranch_scc0 L_we_skip
s_and_b32 s52, s2, 3
s_lshl_b32 s52, s52, 3
s_lshr_b32 s53, s2, 5
s_add_u32 s52, s52, s53
s_mul_i32 s52, s52, 73728
s_add_u32 s52, s52, {WQF}
s_sub_u32 s53, s16, 1
s_mul_i32 s53, s53, 24576
s_add_u32 s52, s52, s53
s_mov_b32 m0, s53""".split("\n")
    for k in range(6):
        if k: L += [f"s_add_u32 m0, s53, {k*4096}", "s_addk_i32 s52, 4096"]
        L += ["s_nop 0"] + [f"buffer_load_dwordx4 v3, s[8:11], s52 offen offset:{i*1024} lds ; @" for i in range(4)]
    return L + ["L_we_skip:", "s_branch L_cd_go"]

def d_part(sf="sc1", lf="sc1", PD=1, we=True, p0=False, dx=False, wk=False, two=None, peek=False, pre=False, late=False, own=False, xl=False, three=None, xlate=False):
    p = Prog()
    PL, XL, BL, X, U = 32, 112, 124, 136, 160
    LX = LXD if A2[0] else 131072
    p(f"""s_lshr_b32 s20, s17, 2
s_lshl_b32 s21, s18, 1
s_add_u32 s20, s20, s21
s_and_b32 s21, s17, 3
s_mul_i32 s22, s20, 36864
s_lshl_b32 s23, s21, 7
s_add_u32 s22, s22, s23
s_add_u32 s22, s22, s63
s_lshl_b32 s24, s20, 8
s_lshl_b32 s25, s21, 5
s_add_u32 s24, s24, s25
s_add_u32 s24, s24, {ST}
s_add_u32 s24, s24, s63
s_lshl_b32 s25, s20, 5
s_lshl_b32 s26, s21, 3
s_add_u32 s25, s25, s26
s_mul_i32 s25, s25, 1152
s_lshl_b32 s26, s18, 9
s_add_u32 s26, s26, {CNT + REP['cd'][0]}
s_add_u32 s26, s26, s63
s_lshl_b32 s36, s16, 7
s_add_u32 s36, s36, s26
s_and_b32 s27, s2, {REP['cd'][1] - 1}
s_lshl_b32 s27, s27, 14
s_add_u32 s26, s26, s27
v_and_b32 v4, 7, v0
v_lshrrev_b32 v5, 3, v0
v_lshlrev_b32 v6, 9, v5
v_lshl_add_u32 v6, v4, 4, v6
v_add_u32 v7, {8192 if two else 16384}, v6
v_lshrrev_b32 v8, 2, v5
v_lshlrev_b32 v8, 9, v8
v_lshl_add_u32 v8, v4, 4, v8
v_and_b32 v9, 3, v5
v_lshl_add_u32 v8, v9, 2, v8
v_add_u32 v8, 32768, v8
v_lshlrev_b32 v9, 4, v5
v_lshlrev_b32 v10, 2, v5
v_lshlrev_b32 v11, 2, v4
s_add_u32 s27, s22, {X1F}""")
    B0, O1 = (18, 256) if two else (9, 512)
    md = two[2] if two else None
    B1 = 9
    if md:
        B1, O1 = 18, 128
        p(f"""s_cmp_eq_u32 s16, 0
s_cselect_b32 s37, 2, 3
s_cmp_eq_u32 s16, 2
s_cselect_b32 s37, -2, s37
s_lshl_b32 s37, s37, 7
v_add_u32 v18, s37, v9
s_lshl_b32 s37, s37, 5
v_add_u32 v6, s37, v6
v_add_u32 v7, 4096, v6""")
    elif two:
        p(f"""s_lshr_b32 s37, s16, 1
s_lshl_b32 s37, s37, 9
v_add_u32 v18, s37, v9
s_lshl_b32 s37, s37, 5
v_add_u32 v6, s37, v6""")
    if two:
        p(f"""s_lshl_b32 s37, s18, 9
s_add_u32 s37, s37, {CNT + two[0]}
s_add_u32 s37, s37, s63""")
        if two[1] > 1: p(f"s_and_b32 s49, s2, {two[1] - 1}\ns_lshl_b32 s49, s49, 14\ns_add_u32 s37, s37, s49")
    srd(p, 12, 40, 1152)
    p(f"""buffer_load_dword v24, v11, s[8:11], s24 offen sc1
buffer_load_dword v25, v11, s[8:11], s24 offen offset:128 sc1""")
    if not xl: p(f"""buffer_load_dwordx4 v[{XL}:{XL+3}], v6, s[8:11], s27 offen sc1
buffer_load_dwordx4 v[{XL+4}:{XL+7}], v7, s[8:11], s27 offen sc1
buffer_load_dword v{XL+8}, v8, s[8:11], s27 offen sc1""")
    p(f"""buffer_load_dwordx4 v[{BL}:{BL+3}], v{B0}, s[12:15], 0 offen
buffer_load_dwordx4 v[{BL+4}:{BL+7}], v{B1}, s[12:15], 0 offen offset:{O1}
buffer_load_dword v{BL+8}, v10, s[12:15], 0 offen offset:1024
v_lshlrev_b32 v12, 14, v2
v_mov_b32 v13, 1
s_mov_b32 s49, 0x40000""")
    ldr = lambda r: [f"buffer_load_dwordx4 v[{PL+32*r+4*j}:{PL+32*r+4*j+3}], v{6+r}, s[8:11], s{28+j} offen {lf}" if r < 2 else f"buffer_load_dword v{PL+64+j}, v8, s[8:11], s{28+j} offen {lf}" for j in range(1 if own else 0, 8)]
    NA = 14 if own else 16
    def ptrs():
        for j in range(8):
            if not own: p(f"s_add_u32 s{28+j}, s22, {PART + j*ACT}")
            elif j: p(f"s_add_u32 s{28+j}, s17, {j}\ns_and_b32 s{28+j}, s{28+j}, 7\ns_mul_i32 s{28+j}, s{28+j}, {ACT}\ns_add_u32 s{28+j}, s{28+j}, s28")
            else: p(f"s_add_u32 s28, s22, {PART}\ns_lshr_b32 s29, s17, 2\ns_mul_i32 s29, s29, 36864\ns_add_u32 s29, s29, s23\ns_add_u32 s29, s29, 73728\nv_add_u32 v20, s29, v6\nv_add_u32 v21, s29, v7\nv_add_u32 v28, s29, v8")
    OWN = [f"ds_read_b128 v[{PL}:{PL+3}], v20", f"ds_read_b32 v{PL+64}, v28", f"ds_read_b128 v[{PL+32}:{PL+35}], v21"] if own else []
    LDS_ = ldr(0) + ldr(2) + ldr(1) if two and not md else ldr(0) + ldr(1) + ldr(2)
    SIG = f"""s_mov_b64 exec, {(1 << REP['cd'][1]) - 1}
buffer_atomic_add v13, v12, s[8:11], s36 offen
s_mov_b64 exec, -1
v_lshlrev_b32 v12, 7, v2"""
    if own: assert two and late and not md and not peek
    if peek or late: ptrs()
    if xl:
        assert own and pre
        p(f"v_subrev_u32 v29, 73728, v20\nv_subrev_u32 v30, 73728, v21\nv_subrev_u32 v31, 73728, v28\nds_read_b128 v[{XL}:{XL+3}], v29\nds_read_b128 v[{XL+4}:{XL+7}], v30\nds_read_b32 v{XL+8}, v31")
    if own: p("s_waitcnt lgkmcnt(0)")
    if peek:
        p(kq.off("\n".join(["s_waitcnt vmcnt(12)", "s_mov_b64 exec, 15", "v_cmp_gt_u32 vcc, 8, v23", "s_mov_b64 exec, -1", "s_nop 3", "s_cbranch_vccnz L_ca_slow"] + LDS_[:16] +
                           ["s_waitcnt vmcnt(24)", SIG, "s_barrier", "s_branch L_ca_m", "L_ca_slow:"])))
        p("s_waitcnt vmcnt(8)\n" + SIG)
        p("s_cmp_eq_u32 s16, 0\ns_cbranch_scc0 L_ca_go")
        sp = spin("ca", 37, 12, 250, 4, 8, PD).split("\n")
        p("\n".join(sp[:-1]))
        p(kq.off("\n".join(LDS_[:16] + ["s_barrier", "s_branch L_ca_m"])))
        p(sp[-1])
        p("s_barrier")
        p.ext(LDS_[:16])
        p("L_ca_m:")
    elif three:
        p(f"s_add_u32 s39, s37, {three[0] - two[0]}\nv_lshlrev_b32 v22, 7, v2\ns_mov_b64 exec, 15\nbuffer_load_dword v23, v22, s[8:11], s39 offen sc1\ns_mov_b64 exec, -1\ns_waitcnt vmcnt(%d)\n" % (6 if xl else 9) + SIG)
    elif pre:
        p("v_lshlrev_b32 v22, 7, v2\ns_mov_b64 exec, 15\nbuffer_load_dword v23, v22, s[8:11], s37 offen sc1\ns_mov_b64 exec, -1\ns_waitcnt vmcnt(%d)\n" % (6 if xl else 9) + SIG)
    else: p("s_waitcnt vmcnt(8)\n" + SIG)
    p(nst('d_sig'))
    nd = [4, 4, 1]
    def precomp():
        p(f"""v_mul_f32 v24, 0x3ae38e39, v24
v_mul_f32 v25, 0x3ae38e39, v25
v_fma_f32 v25, -v24, v24, v25
v_max_f32 v25, 0, v25
v_mov_b32 v26, 0x3f800054
v_mov_b32 v27, 0x2edbe6ff
v_fma_f32 v25, v25, v26, v27
v_rsq_f32 v25, v25
v_mov_b32 v14, 0x3f80
v_mov_b32 v15, 0x3f800000
v_mul_u32_u24 v16, 1152, v4
v_add_u32 v17, v16, v10
v_add_u32 v19, v16, v{B1}
v_add_u32 v18, v16, v{B0}""")
        for r in range(3):
            for i in range(nd[r]):
                x = XL + 4*r + i; b = BL + 4*r + i; u = U + 8*r + 2*i
                p(f"v_lshlrev_b32 v{u}, 16, v{x}\nv_and_b32 v{u+1}, 0xffff0000, v{x}\nv_lshlrev_b32 v{x}, 16, v{b}\nv_and_b32 v{b}, 0xffff0000, v{b}")
                p(f"v_add_f32 v{u}, v{u}, v{x}\nv_add_f32 v{u+1}, v{u+1}, v{b}")
    if not late: precomp()
    if not peek and not late:
        for j in range(8): p(f"s_add_u32 s{28+j}, s22, {PART + j*ACT}")
    if we == 1:
        p("s_cmp_eq_u32 s16, 0\ns_cbranch_scc1 L_cd_w0")
        p.ext(w_early()); p("L_cd_w0:")
    elif wk: p("s_cmp_eq_u32 s16, 0\ns_cbranch_scc1 L_cd_w0\n" + walk('wd', 1, 3) + "\ns_branch L_cd_go\nL_cd_w0:")
    elif not two or peek: p("s_cmp_eq_u32 s16, 0\ns_cbranch_scc0 L_cd_go")
    if md == 'own':
        p("s_cmp_lt_u32 s16, 2\ns_cselect_b32 s26, s26, s37")
        p(spin("cd", 26, 12, 250, 4, 8, PD))
        p(nst('d_go'))
        p.ext(LDS_)
    elif md == 'bar':
        p("s_cmp_eq_u32 s16, 0\ns_cbranch_scc0 L_ca_go")
        p(spin("ca", 37, 12, 250, 4, 8, PD))
        p("s_barrier")
        p(nst('d_ga'))
        p("s_cmp_lt_u32 s16, 2\ns_cbranch_scc1 L_cd_w0")
        p(kq.off("\n".join(LDS_ + ["s_barrier", "s_branch L_cd_ld"])))
        p("L_cd_w0:\ns_cmp_eq_u32 s16, 0\ns_cbranch_scc0 L_cd_go")
        p(spin("cd", 26, 12, 250, 4, 8, PD))
        p("s_barrier")
        p(nst('d_go'))
        p.ext(LDS_)
        p("L_cd_ld:")
    elif three:
        n7 = NA // 2
        LDS_ = ldr(2) + ldr(0) + ldr(1)
        p("s_cmp_eq_u32 s16, 0\ns_cbranch_scc0 L_c1_go")
        p(kq.off("s_waitcnt vmcnt(1)\ns_mov_b64 exec, 15\nv_cmp_gt_u32 vcc, 8, v23\ns_nop 4\ns_cbranch_vccz L_c1_ok"))
        p(spin("c1", 39, 12, 250, 4, 8, PD))
        p("s_barrier")
        p(nst('d_g1'))
        p("s_cmp_lt_u32 s16, 2\ns_cbranch_scc1 L_c1_lo")
        p(kq.off("\n".join(ldr(0) + ldr(2) + ["s_barrier", "s_branch L_cd_w0", "L_c1_lo:"])))
        p.ext(LDS_[:n7])
        p("s_cmp_eq_u32 s16, 0\ns_cbranch_scc0 L_ca_go")
        p(spin("ca", 37, 12, 250, 4, 8, PD))
        p("s_barrier")
        p(nst('d_ga'))
        p.ext(LDS_[n7:NA])
        p("L_cd_w0:"); p.ext(OWN); precomp(); p("s_waitcnt lgkmcnt(0)" if own else ""); p("s_cmp_eq_u32 s16, 0\ns_cbranch_scc0 L_cd_go")
    elif two and not peek:
        p("s_cmp_eq_u32 s16, 0\ns_cbranch_scc0 L_ca_go")
        if pre: p(kq.off("s_waitcnt vmcnt(1)\ns_mov_b64 exec, 15\nv_cmp_gt_u32 vcc, 8, v23\ns_nop 4\ns_cbranch_vccz L_ca_ok"))
        sp = spin("ca", 37, 12, 250, 4, 8, PD).split("\n")
        p("\n".join(sp[:-1]))
        p(kq.off("\n".join(LDS_[:NA] + ["s_barrier", "s_branch L_cd_w0"])))
        p(sp[-1])
        p("s_barrier")
        p(nst('d_ga'))
        p.ext(LDS_[:NA])
        if late:
            p("L_cd_w0:"); p.ext(OWN); precomp(); p("s_waitcnt lgkmcnt(0)" if own else ""); p("s_cmp_eq_u32 s16, 0\ns_cbranch_scc0 L_cd_go")
        else: p("s_branch L_cd_go\nL_cd_w0:")
    if not md:
        p(spin("cd", 26, 12, 250, 4, 8, PD))
        p("s_barrier")
        p(nst('d_go'))
        p.ext(LDS_[NA:] if two else LDS_)
    def sums(p):
        for r in ((0, 2, 1) if two and not md else range(3)):
            src = lambda j, i: PL + 32*r + 4*j + i if r < 2 else PL + 64 + j
            for i in range(nd[r]): p(f"v_lshlrev_b32 v{X+8*r+2*i}, 16, v{src(0, i)}\nv_and_b32 v{X+8*r+2*i+1}, 0xffff0000, v{src(0, i)}")
            for j in range(1, 8):
                for i in range(nd[r]): p(f"v_dot2c_f32_bf16 v{X+8*r+2*i}, v{src(j, i)}, v14\nv_dot2c_f32_bf16 v{X+8*r+2*i+1}, v{src(j, i)}, v15")
            for i in range(2*nd[r]): p(f"v_fma_f32 v{X+8*r+i}, v{X+8*r+i}, v25, v{U+8*r+i}")
            for i in range(nd[r]): p(f"v_cvt_pk_bf16_f32 v{PL+32*r+i}, v{X+8*r+2*i}, v{X+8*r+2*i+1}")
    if we == 2:
        p.ext(w_mid2() if A2[0] else w_mid())
        n0 = len(p.ins); sums(p)
        p("s_branch L_cd_mid\nL_wm_skip:")
        q = Prog()
        q.ext(LDS_)
        sums(q); q.resolve_waits()
        for i in q.ins[len(LDS_):]: i.text += " ; @"
        p.ins += q.ins[len(LDS_):]
    else: sums(p)
    O = [PL, PL + 32, PL + 64]
    p(nst('d_use'))
    if we != 2: p("s_cmp_eq_u32 s63, 0\ns_cbranch_scc1 L_cd_mid")
    srd(p, 12, 42, ACT)
    p(f"""buffer_store_dwordx4 v[{O[0]}:{O[0]+3}], v18, s[12:15], s25 offen {sf}
buffer_store_dwordx4 v[{O[1]}:{O[1]+3}], v19, s[12:15], s25 offen offset:{O1} {sf}
buffer_store_dword v{O[2]}, v17, s[12:15], s25 offen offset:1024 {sf}""")
    if p0:
        srd(p, 36, 6, 256)
        p('''s_or_b32 s60, s2, s16
s_cmp_eq_u32 s60, 0
s_cbranch_scc0 L_d_nt
v_mov_b32 v20, 0
s_mov_b64 exec, 1
buffer_store_dword v20, v20, s[36:39], 0 offen sc1 ; @
s_mov_b64 exec, -1
L_d_nt:''')
    if SC.sel: p("s_waitcnt vmcnt(0) ; @"); p(nst('d_end')); nst_dump(p, 'd2')
    p("s_endpgm\nL_cd_mid:")
    p(f"""s_add_u32 s27, s22, {XF + LS}
s_add_u32 s28, s22, {YF + LS}""")
    XST = f"""buffer_store_dwordx4 v[{O[0]}:{O[0]+3}], v6, s[8:11], s27 offen {sf}
buffer_store_dwordx4 v[{O[1]}:{O[1]+3}], v7, s[8:11], s27 offen {sf}
buffer_store_dword v{O[2]}, v8, s[8:11], s27 offen {sf}"""
    if not xlate: p(XST)
    XS = []
    for r in range(3):
        for i in range(nd[r]):
            p(f"v_lshlrev_b32 v{X+8*r+2*i}, 16, v{O[r]+i}\nv_and_b32 v{X+8*r+2*i+1}, 0xffff0000, v{O[r]+i}")
            XS += [X+8*r+2*i, X+8*r+2*i+1]
    p(f"v_add_f32 v24, v{XS[0]}, v{XS[1]}\nv_add_f32 v26, v{XS[2]}, v{XS[3]}\nv_mul_f32 v25, v{XS[0]}, v{XS[0]}\nv_mul_f32 v27, v{XS[1]}, v{XS[1]}")
    for k, x in enumerate(XS[4:]): p(f"v_add_f32 v{24 + 2*(k%2)}, v{24 + 2*(k%2)}, v{x}")
    for k, x in enumerate(XS[2:]): p(f"v_fmac_f32 v{25 + 2*(k%2)}, v{x}, v{x}")
    p(f"""v_add_f32 v24, v24, v26
v_add_f32 v25, v25, v27
v_permlane32_swap_b32 v24, v25
v_add_f32 v24, v24, v25
v_mov_b32 v25, v24
v_permlane16_swap_b32 v24, v25
v_add_f32 v24, v24, v25
v_add_f32 v24, v24, v24 row_ror:8
v_bfe_u32 v27, v0, 5, 1
v_lshl_add_u32 v27, v4, 1, v27
v_lshlrev_b32 v27, 4, v27
s_lshl_b32 s29, s16, 2
s_add_u32 s29, s29, {LX}
v_add_u32 v27, s29, v27
v_and_b32 v28, 24, v0
v_cmp_eq_u32 vcc, 0, v28
s_and_saveexec_b64 s[30:31], vcc
ds_write_b32 v27, v24
s_mov_b64 exec, -1
v_lshlrev_b32 v27, 5, v4
v_add_u32 v27, {LX}, v27
s_lshr_b32 s29, s18, {1 if A2[0] else 2}
s_lshl_b32 s29, s29, {3 if A2[0] else 4}
s_and_b32 s36, s18, {1 if A2[0] else 3}
s_add_u32 s29, s29, s36
s_lshl_b32 s29, s29, 7
s_add_u32 s29, s29, {CNT + LS + CDA}""")
    if not we: p(A_MAP); p(A_WS)
    p(f"""s_waitcnt lgkmcnt(0)
s_barrier
ds_read_b128 v[20:23], v27
ds_read_b128 v[28:31], v27 offset:16
v_add_f32 v20, v20, v21
v_add_f32 v22, v22, v23
v_add_f32 v28, v28, v29
v_add_f32 v30, v30, v31
v_add_f32 v20, v20, v22
v_add_f32 v28, v28, v30
v_mul_f32 v20, 0x3ae38e39, v20
v_mul_f32 v28, 0x3ae38e39, v28
v_fma_f32 v28, -v20, v20, v28
v_max_f32 v28, 0, v28
v_add_f32 v28, 0x3727c5ac, v28
v_rsq_f32 v28, v28""")
    for x in XS: p(f"v_sub_f32 v{x}, v{x}, v20")
    for x in XS: p(f"v_mul_f32 v{x}, v{x}, v28")
    for k in range(9): p(f"v_cvt_pk_bf16_f32 v{U+k}, v{XS[2*k]}, v{XS[2*k+1]}")
    p(f"""buffer_store_dwordx4 v[{U}:{U+3}], v6, s[8:11], s28 offen {sf}
buffer_store_dwordx4 v[{U+4}:{U+7}], v7, s[8:11], s28 offen {sf}
buffer_store_dword v{U+8}, v8, s[8:11], s28 offen {sf}""")
    if not we:
        for c in range(9): p.ext(a_wchunk(c))
    if xlate == 1: p(XST)
    p(f"""v_lshlrev_b32 v12, {8 if A2[0] else 9}, v2
s_waitcnt vmcnt({(3 if xlate == 1 else 0) if we else 18})
s_barrier
s_cmp_eq_u32 s16, 0
s_cbranch_scc0 L_da_ns
s_mov_b64 exec, 15
buffer_atomic_add v13, v12, s[8:11], s29 offen
s_mov_b64 exec, -1
L_da_ns:""")
    if xlate == 2: p(XST)
    p(nst('d_end')); nst_dump(p, 'd1')
    if dx: srd(p, 12, 4, WSSZ)
    p(f"s_mov_b32 s63, {LS}\ns_branch L_a1")
    return p.finish()

def late_out(**kw):
    q = Prog(); q(kq.late_st('lo', uni=False, **kw)[0])
    return kq.late_pre(run=False, split=kw.get('split', False)) + q.finish()

def main_kernel(a={}, b={}, c={}, d={}, bk=0, side=None, p0=None, hf='sc1', sfl={}, a0={}, p2=None):
    assert NEW
    BK[0] = bk
    A2[0] = kq.A2[0] = (2 if a.get('c32') else 1) if a.get('v2') else 0
    ap = a2_part if A2[0] else a_part
    b = dict(b); REP.update(b.pop('rep', {})); c = dict(c, bcrep=REP['bc'])
    a = dict(a); AM1[0] = a.pop('am1', 0); RAB[:] = a.pop('rab', (0, 0))
    HF[0] = hf if p0 is not None else ''
    if p0 is not None: b = dict(b, pbar=True); d = dict(d, p0=True); c = dict(c, wfl=hf)
    if p2 is not None: HF[0] = hf; b = dict(b, x4=True, dx=True, sb=p2.get('s', {})); d = dict(d, p0=True, dx=True); c = dict(c, wfl=hf, f3=p2.get('f', {}))
    if d.get('two'): c = dict(c, sigA=d['two'][:3]); d = dict(d, two=d['two'][:2] + (d['two'][3] if len(d['two']) > 3 else None,))
    if d.get('we') == 3: a = dict(a, wl=True)
    if c.get('pkA') is not None: d = dict(d, peek=True)
    if d.get('own'): c = dict(c, own=True)
    if d.get('three'): c = dict(c, sigA1=d['three'])
    WK = p2.get('wk', {}) if p2 is not None else {}
    if 'wd' in WK: d = dict(d, wk=True)
    import kc16
    cz = (kc16.c16 if c.pop('m16', 0) else kc.c_kernel)(fused=True, dz=True, rev=True, poll=lambda PD: spin('bc', 65, 4, 250, 4, 8, PD), **c)
    p = Prog()
    p("""s_cmp_lt_u32 s2, 256
s_cbranch_scc1 L_m_go
s_endpgm
L_m_go:
s_load_dwordx2 s[4:5], s[0:1], 80
s_load_dwordx4 s[40:43], s[0:1], 56""")
    if side is not None:
        sp = side_parts(**side); p(sp[0]); a = dict(a, side=sp); b = dict(b, allp=True)
    if p0 is not None or p2 is not None: p(kp.KARGS)
    if SC.sel: p(f"s_memrealtime s[{SC.m['t']}:{SC.m['t']+1}]")
    p(f"""v_lshrrev_b32 v1, 6, v0
v_and_b32 v2, 63, v0
v_readfirstlane_b32 s16, v1
v_lshlrev_b32 v3, 4, v2
s_mov_b32 s63, 0
s_mov_b32 s10, {WSSZ}
s_mov_b32 s11, 0x20000""")
    cp = p2.get('cp', 0) if p2 is not None else 0
    if cp:
        p(f"""s_cmp_eq_u32 s16, {p2.get('cpw', 3)}
s_cbranch_scc0 L_cp_e
s_getpc_b64 s[86:87]
L_cp0:
s_lshr_b32 s60, s2, 3
v_min_u32 v26, {cp - 1}, v2
v_lshlrev_b32 v26, 5, v26
v_add_u32 v26, s60, v26
v_lshlrev_b32 v26, 7, v26
s_mov_b32 s60, L_kend-L_cp0-4
v_min_u32 v26, s60, v26
global_load_dword v25, v26, s[86:87] ; @
L_cp_e:""")
    if p0 is None and p2 is None: p("s_waitcnt lgkmcnt(0)\ns_mov_b32 s8, s4\ns_mov_b32 s9, s5")
    NP1 = a.get('NP1', 36); NPw = a.pop('NPw', 0)
    if p2 is not None:
        a0 = kq.HEAD + kq.crit(**p2.get('c', {})) + kq.loader(**p2.get('l', {})) + "L_a0:\n" + ap(True, p2=p2.get('t', {}), **dict(a, **a0))
    else:
        a0 = a_part(True, **a) if p0 is None else (kp.HEAD + kp.variant('q', **p0) + kp.variant('o', **p0) + "L_a0w1:\n" + a_part(True, p0=('w1',) + kp.side_fill(False, **sfl) + (kp.side_dmas(False) if p0.get('late', 0) < 0 else [],), **dict(dict(SW=(6, 110)), **a, **a0))
        + kp.variant('w2', **p0) + a_part(True, p0=('w2',) + kp.side_fill(True, **sfl) + (kp.side_dmas(True) if p0.get('late', 0) < 0 else [],), **dict(dict(SW=(6, 110)), **a, **a0)))
    body = p.finish() + a0 + "L_a1:\n" + ap(False, **a) + "L_ab:\n" + ab_link(NP1, p2.get('s', {}) if p2 is not None else None, NPw)
    b5 = b_part(5, cz, **b); b4 = b_part(4, cz, **b)
    body += b5[0] + b5[1] + b4[1] + "L_b4:\n" + b4[0] + "L_bc_c:\n" + (late_out(**dict(p2.get('o', {}), split='W2' in p2.get('f', {}))) if p2 is not None else '') + cz[0] + d_part(**d) + (cz[4] + "  s_endpgm\nL_kend:\n" if p2 is not None else '')
    if WK:
        R = dict(wd=dict(regions=[('L_cd_go', 'L_wm_skip'), ('L_cd_mid', 'L_da_ns'), ('L_a1', 'L_da_poll')], waves=3))
        body = add_pads(body, {n: dict(R[n], step=st) for n, st in WK.items()})
    if p0 is not None or p2 is not None:
        return kernel("interleave_layers__linear_attn_block__mixer_channel_mlp__prompt_kernel", body, vgpr=256, agpr=256), "; @launch grid=(256,1,1) block=(256,1,1) lds=163840\n"
    return kernel("main_kernel", body, vgpr=256, agpr=256), "; @launch kernel=main_kernel grid=(256,1,1) block=(256,1,1) lds=163840\n"
```

```python
from asmlib import *
from layout import *
from k0 import srd
from ka import phi, QB
import kc, kp, kq
HF = ['']

CCD, CDA, CAB = 16384, 32768, 49152
REP = dict(bc=(0, 1), cd=(16384, 1))
aWOr = lambda ks, t: 64 + 4*((8 - ks)*5 + t)

BK = [0]
def spin(tag, sreg, va, vd, lanes, target, depth=1):
    ld = lambda k: f"buffer_load_dword v{vd+k}, v{va}, s[8:11], s{sreg} offen sc1 ; @"
    L = ([f"s_mov_b64 exec, {(1 << lanes) - 1}"] if lanes < 32 else ["s_mov_b32 exec_hi, 0"]) + [ld(k) for k in range(depth - 1)] + [f"L_{tag}_poll:"]
    for k in range(depth):
        L += [ld((k + depth - 1) % depth), f"s_waitcnt vmcnt({depth - 1}) ; @", f"v_cmp_gt_u32 vcc, {target}, v{vd+k}",
              "s_nop 4", f"s_cbranch_vccz L_{tag}_ok"]
    L += ["s_nop 15"] * BK[0]
    L += ["s_sub_u32 s49, s49, 1", "s_cmp_eq_u32 s49, 0", f"s_cbranch_scc0 L_{tag}_poll", f"L_{tag}_ok:", "s_mov_b64 exec, -1"]
    L.append(f"L_{tag}_go:")
    return "\n".join(L)

A_MAP = """s_and_b32 s17, s2, 7
s_lshr_b32 s18, s2, 3
s_lshr_b32 s19, s17, 2
s_lshl_b32 s19, s19, 2
s_and_b32 s20, s18, 3
s_add_u32 s19, s19, s20
s_and_b32 s20, s17, 3
s_lshl_b32 s20, s20, 3
s_lshr_b32 s21, s18, 2
s_add_u32 s20, s20, s21"""
AM1 = [0]
def a_map1():
    if AM1[0] == 0: return A_MAP
    if AM1[0] == 1: return "s_bfe_u32 s19, s2, 0x20001\ns_lshl_b32 s19, s19, 1\ns_bfe_u32 s20, s2, 0x10003\ns_add_u32 s19, s19, s20\ns_and_b32 s20, s2, 1\ns_lshl_b32 s20, s20, 4\ns_lshr_b32 s21, s2, 4\ns_add_u32 s20, s20, s21"
    return "s_and_b32 s19, s2, 7\ns_lshr_b32 s20, s2, 3"
def a_head1():
    if AM1[0] == 0: return "s_and_b32 s52, s2, 3\ns_lshl_b32 s52, s52, 3\ns_lshr_b32 s53, s2, 5\ns_add_u32 s52, s52, s53"
    if AM1[0] == 1: return "s_and_b32 s52, s2, 1\ns_lshl_b32 s52, s52, 4\ns_lshr_b32 s53, s2, 4\ns_add_u32 s52, s52, s53"
    return "s_lshr_b32 s52, s2, 3"
A_WS = f"""s_mul_i32 s24, s20, 73728
s_add_u32 s24, s24, {WQF}
s_lshl_b32 s25, s16, 11
s_add_u32 s24, s24, s25"""
def a_wchunk(c):
    L = [f"s_add_u32 m0, s25, {c*8192}" if c else "s_mov_b32 m0, s25"]
    for i in range(2): L.append(I(f"buffer_load_dwordx4 v3, s[8:11], s24 offen offset:{i*1024} {HF[0]} lds", tag=f"w{c}"))
    if c < 8: L.append("s_addk_i32 s24, 8192")
    return L

def wo_loads(ts, sreg=50):
    G = []
    for t in ts:
        for ks in range(9):
            pre = []
            if ks in (4, 8): pre = [f"s_addk_i32 s{sreg}, 4096"]
            if ks == 0 and t != ts[0]: pre = [f"s_add_u32 s{sreg}, s{sreg}, {36864 - 8192}"]
            r = aWOr(ks, t)
            G.append(pre + [f"buffer_load_dwordx4 a[{r}:{r+3}], v3, s[8:11], s{sreg} offen offset:{(ks%4)*1024} {HF[0]}"])
    return G

def side_parts(ssf="sc1", lf="nt"):
    WB = WSN*1024
    SB = 98304
    V = 160
    v3_, v5_, vs_, t1, t2, ts1, ts2, c0, c1, vb, vcs, vag, T = V, V+1, V+2, V+3, V+4, V+5, V+6, V+7, V+8, V+9, V+10, V+11, V+12
    D = V + 16
    ka = "s_load_dwordx4 s[56:59], s[0:1], 32\ns_load_dwordx2 s[60:61], s[0:1], 48"
    setup = f"""s_mov_b32 s12, s56
s_mov_b32 s13, s57
s_mov_b32 s14, {576*4608*2}
s_mov_b32 s15, 0x20000
s_mov_b32 s44, s60
s_mov_b32 s45, s61
s_mov_b32 s46, {576*4608*2}
s_mov_b32 s47, 0x20000
s_mov_b32 s64, s58
s_mov_b32 s65, s59
s_mov_b32 s66, {4608*2}
s_mov_b32 s67, 0x20000
s_cmp_lt_u32 s16, 2
s_cselect_b32 s96, s56, s60
s_cselect_b32 s97, s57, s61
s_mov_b32 s98, {576*4608*2}
s_mov_b32 s99, 0x20000
s_and_b32 s56, s2, 7
s_bfe_u32 s57, s2, 0x20003
s_lshr_b32 s58, s2, 5
s_mul_i32 s59, s57, 9
s_add_u32 s60, s59, s16
s_mul_i32 s62, s60, {16*9216}
s_mul_i32 s68, s56, 1152
s_lshl_b32 s69, s58, 7
s_add_u32 s68, s68, s69
s_add_u32 s62, s62, s68
s_mul_i32 s87, s56, 36
s_add_u32 s87, s87, s60
s_mul_i32 s87, s87, {16*1152}
s_add_u32 s87, s87, s69
s_add_u32 s60, s59, 8
s_mul_i32 s88, s60, {16*9216}
s_add_u32 s88, s88, s68
s_mul_i32 s68, s56, 36
s_add_u32 s68, s68, s60
s_mul_i32 s68, s68, {16*1152}
s_add_u32 s68, s68, s69
s_cmp_lt_u32 s16, 2
s_cselect_b32 s88, s88, s68
s_cselect_b32 s68, 8, 1
s_mul_i32 s68, s68, 1152
s_and_b32 s69, s16, 1
s_lshl_b32 s69, s69, 6
s_add_u32 s88, s88, s69
s_mul_i32 s55, s16, 9216
s_add_u32 s55, s55, {SB}
v_bfe_u32 v{T}, v2, 2, 3
v_and_b32 v{T+1}, 3, v2
v_lshrrev_b32 v{T+2}, 5, v2
v_lshlrev_b32 v{T+3}, 6, v{T+2}
v_lshl_add_u32 v{T+3}, v{T+1}, 4, v{T+3}
v_mul_u32_u24 v{v3_}, 9216, v{T}
v_add_u32 v{v3_}, v{v3_}, v{T+3}
v_mul_u32_u24 v{v5_}, 1152, v{T}
v_add_u32 v{v5_}, v{v5_}, v{T+3}
v_lshrrev_b32 v{T}, 2, v2
v_mul_u32_u24 v{vs_}, s68, v{T}
v_lshl_add_u32 v{vs_}, v{T+1}, 4, v{vs_}""".split("\n")
    dma = []
    for b in range(2):
        for mi, (vo, sr, srd_, rs) in enumerate(((v3_, 62, 12, 9216), (v5_, 87, 44, 1152))):
            for u in range(2):
                L = [f"s_add_u32 m0, s55, {(2*b + mi)*2048 + u*1024}", I(f"buffer_load_dwordx4 v{vo}, s[{srd_}:{srd_+3}], s{sr} offen {lf} lds", tag=f"sd{b}{mi}")]
                if not (b == 1 and u == 1): L.append(f"s_add_u32 s{sr}, s{sr}, {(8 if u == 0 else 56)*rs}")
                dma.append(L)
    dma.append([f"s_add_u32 m0, s55, 8192", I(f"buffer_load_dwordx4 v{vs_}, s[96:99], s88 offen {lf} lds", tag="sds")])
    setup2 = f"""s_mul_i32 s68, s56, 18
s_lshl_b32 s69, s58, 1
s_add_u32 s68, s68, s69
s_lshl_b32 s68, s68, 6
v_lshlrev_b32 v{vb}, 1, v2
buffer_load_ushort v{vb}, v{vb}, s[64:67], s68 offen
v_and_b32 v{T+1}, 3, v2
v_lshrrev_b32 v{T+2}, 5, v2
v_lshlrev_b32 v{T}, 3, v{T+1}
v_bfe_u32 v{T+3}, v2, 2, 2
v_lshl_add_u32 v{T}, v{T+3}, 6, v{T}
v_bfe_u32 v{T+3}, v2, 4, 1
v_lshl_add_u32 v{T}, v{T+3}, 5, v{T}
v_add_u32 v{T}, s55, v{T}
v_lshl_add_u32 v{t1}, v{T+2}, 10, v{T}
v_lshl_add_u32 v{t2}, v{T+2}, 8, v{T}
s_cmp_lt_u32 s16, 2
s_cselect_b32 s68, 2, 1
s_cselect_b32 s69, 1, 2
s_lshl_b32 s68, s68, 8
s_lshl_b32 s69, s69, 8
v_mul_u32_u24 v{ts1}, s68, v{T+2}
v_add_u32 v{ts1}, v{ts1}, v{T}
v_add_u32 v{ts2}, s69, v{ts1}
v_mov_b32 v{c0}, 0
v_mov_b32 v{c1}, 0
s_lshl_b32 s89, s56, 2
s_and_b32 s68, s58, 1
s_lshl_b32 s68, s68, 1
s_add_u32 s89, s89, s68
s_mul_i32 s89, s89, {WB}
s_add_u32 s89, s89, {WSTR}
s_lshr_b32 s90, s58, 1
s_add_u32 s68, s90, 91
s_add_u32 s69, s90, 90
s_add_u32 s61, s90, 163
s_cmp_lt_u32 s58, 4
s_cselect_b32 s91, 5, 4
s_cselect_b32 s93, s90, s68
s_cselect_b32 s61, s69, s61
s_cselect_b32 s100, 3, 2
s_lshl_b32 s100, s100, 10
s_add_u32 s101, s90, 1
s_and_b32 s101, s101, 3
s_lshl_b32 s101, s101, 4
s_add_u32 s101, s101, 265
s_lshl_b32 s61, s61, 10
s_add_u32 s61, s61, s89
s_lshr_b32 s68, s57, 1
s_lshl_b32 s68, s68, 9
s_add_u32 s61, s61, s68
s_and_b32 s68, s57, 1
s_lshl_b32 s68, s68, 3
s_add_u32 s61, s61, s68
s_cmp_lt_u32 s57, 2
s_cselect_b32 s57, 0xffff, 0
v_lshlrev_b32 v{vcs}, 2, v0
v_add_u32 v{vcs}, {SB + 36864}, v{vcs}
v_and_b32 v{vag}, 31, v2
v_lshlrev_b32 v{vag}, 4, v{vag}
v_mul_u32_u24 v{T}, {WB}, v{T+2}
v_add_u32 v{vag}, v{vag}, v{T}""".split("\n")
    def dest(m):
        L = ["s_lshr_b32 s56, s60, 1", "s_and_b32 s58, s60, 1"]
        if m == 0:
            L += ["s_mul_i32 s68, s56, s91", "s_add_u32 s68, s68, s93", "s_mov_b32 s69, s100"]
        else:
            L += """s_sub_u32 s88, s56, 8
s_cmp_lt_u32 s56, 8
s_cselect_b32 s68, s56, s88
s_mul_i32 s68, s68, 9
s_add_u32 s68, s68, 167
s_add_u32 s68, s68, s90
s_lshl_b32 s69, s88, 1
s_add_u32 s69, s69, s101
s_cmp_lt_u32 s88, 8
s_cselect_b32 s68, s69, s68
s_cselect_b32 s69, 1, 5
s_lshl_b32 s69, s69, 10""".split("\n")
        L += f"""s_lshl_b32 s68, s68, 10
s_add_u32 s68, s68, s89
s_mul_i32 s58, s58, s69
s_add_u32 s62, s68, s58
s_add_u32 s68, s68, s69
s_sub_u32 s68, s68, s58
s_add_u32 s87, s68, {WB}""".split("\n")
        return L
    work = []
    for b in range(2):
        for mi in range(2):
            d = D + 8*((2*b + mi) % 4)
            base = (2*b + mi)*2048
            ra, o2 = ((t1, 256), (t2, 1024))[mi]
            for tt in range(2):
                work.append(I(f"ds_read_b64_tr_b16 v[{d+4*tt}:{d+4*tt+1}], v{ra} offset:{base + tt*512}", needs=[f"sd{b}{mi}"]))
                work.append(f"ds_read_b64_tr_b16 v[{d+4*tt+2}:{d+4*tt+3}], v{ra} offset:{base + tt*512 + o2}")
            if mi == 0: work.append(f"s_add_u32 s60, s59, s16" if b == 0 else "s_add_u32 s60, s60, 4")
            work += dest(mi)
            for tt in range(2):
                work.append(f"buffer_store_dwordx4 v[{d+4*tt}:{d+4*tt+3}], v3, s[8:11], s{(62, 87)[tt]} offen {ssf}")
                if mi == 0: work += [f"v_dot2c_f32_bf16 v{(c0, c1)[tt]}, v8, v{d+4*tt+q}" for q in range(4)]
    d = D + 32
    work += [I(f"ds_read_b64_tr_b16 v[{d}:{d+1}], v{ts1} offset:8192", needs=["sds"]), f"ds_read_b64_tr_b16 v[{d+2}:{d+3}], v{ts2} offset:8192", "s_add_u32 s60, s59, 8"]
    work += dest(0) + ["s_bitcmp1_b32 s16, 0", "s_cselect_b32 s55, s87, s62"] + dest(1)
    work += ["s_bitcmp1_b32 s16, 0", "s_cselect_b32 s62, s87, s62", "s_cmp_lt_u32 s16, 2", "s_cselect_b32 s62, s55, s62",
             f"buffer_store_dwordx4 v[{d}:{d+3}], v3, s[8:11], s62 offen {ssf}",
             "s_cmp_eq_u32 s16, 0", "s_cselect_b32 s68, 0x3f803f80, 0", "s_cmp_eq_u32 s16, 1", "s_cselect_b32 s69, 0x3f803f80, 0"]
    for q in range(4): work += [f"v_dot2c_f32_bf16 v{c0}, s68, v{d+q}", f"v_dot2c_f32_bf16 v{c1}, s69, v{d+q}"]
    work += [f"v_permlane32_swap_b32 v{c0}, v{c1}", f"v_add_f32 v{c0}, v{c0}, v{c1}", I(f"ds_write_b32 v{vcs}, v{c0}", tag='scs')]
    fin = [f"v_lshlrev_b32 v{vcs}, 2, v2", f"v_add_u32 v{vcs}, {SB + 36864}, v{vcs}"]
    fin += [f"ds_read_b32 v{D+w}, v{vcs} offset:{w*256}" for w in range(4)]
    fin += f"""v_add_f32 v{D}, v{D}, v{D+1}
v_add_f32 v{D+2}, v{D+2}, v{D+3}
v_add_f32 v{D}, v{D}, v{D+2}
v_cvt_pk_bf16_f32 v{D+4}, v{D}, v{D}
v_and_b32 v{D+1}, 0xffff0000, v{D+4}
v_sub_f32 v{D+1}, v{D}, v{D+1}
v_cvt_pk_bf16_f32 v{D+5}, v{D+1}, 0
v_and_b32 v{vb}, s57, v{vb}
v_lshl_or_b32 v{D+5}, v{vb}, 16, v{D+5}
buffer_store_dwordx2 v[{D+4}:{D+5}], v{vag}, s[8:11], s61 offen {ssf}""".split("\n")
    return ka, atomize(setup), dma, atomize(setup2), atomize(work), fin

def touch(w1=True, wo=True):
    L = []
    if w1: L.append(f"""s_and_b32 s64, s2, 3
s_lshl_b32 s64, s64, 1
s_bfe_u32 s65, s2, 0x10003
s_add_u32 s64, s64, s65
s_lshl_b32 s64, s64, 2
s_add_u32 s64, s64, s16
s_mul_i32 s64, s64, {WSN*1024}
s_lshr_b32 s65, s2, 4
s_mul_i32 s65, s65, 3072
s_add_u32 s64, s64, s65
s_add_u32 s64, s64, {WSTR}
v_min_u32 v240, 23, v2
v_lshlrev_b32 v240, 7, v240
buffer_load_dword v241, v240, s[8:11], s64 offen {HF[0]}""".split("\n")[:(None if w1 == 1 else -3)] + ([] if w1 == 1 else [f"buffer_load_dwordx4 v[{168+4*i}:{171+4*i}], v3, s[8:11], s64 offen offset:{i*1024} {HF[0]}" for i in range(3)]))
    if wo: L.append(f"""s_lshr_b32 s65, s2, 3
s_lshl_b32 s65, s65, 2
s_add_u32 s65, s65, s16
s_mul_i32 s65, s65, 41
v_min_u32 v242, 40, v2
v_add_u32 v242, s65, v242
v_min_u32 v242, 5183, v242
v_lshlrev_b32 v242, 7, v242
s_mov_b32 s66, {WOF}
buffer_load_dword v243, v242, s[8:11], s66 offen {HF[0]}""".split("\n"))
    return L
WOP = f"""s_lshr_b32 s51, s2, 6
s_mul_i32 s52, s51, 5
s_lshl_b32 s53, s51, 2
s_add_u32 s53, s53, 2
s_cmp_lt_u32 s51, 2
s_cselect_b32 s52, s52, s53
s_mul_i32 s50, s52, 36864
s_mul_i32 s53, s16, 9216
s_add_u32 s50, s50, s53
s_add_u32 s50, s50, {WOF}"""
def a_part(first, m16=False, E0=(148, 248), ld=None, hw=None, hwf='', tw=None, NP0=0, NPa1=None, w0p=0, wl=False, skipy=(), D1=None, R1=1, pfy=0, pfa=0, p2=None, FP=(0, 0, 84, 118), LW=(62, 74, 113, 124), p0=None, SD=(10, 75), dw=False, YR=16, D0=12, RAMP=1, NW=8, qsf="sc1", NP1=36, NPa=16, PD=1, yf='sc1', side=None, SW=(2, 12, 12, 34, 60, 112)):
    n = "a0" if first else "a1"
    p = Prog()
    p(A_MAP if first else a_map1())
    p(f"""s_lshl_b32 s21, s19, 3
s_lshl_b32 s22, s16, 1
s_add_u32 s21, s21, s22
s_mul_i32 s22, s21, 36864
s_add_u32 s22, s22, {YF if first else YF + LS}""")
    if first: p(A_WS)
    if first and dw:
        p(f'''s_load_dwordx2 s[56:57], s[0:1], 8
v_lshrrev_b32 v200, 3, v2
v_mul_u32_u24 v200, 3456, v200
v_and_b32 v201, 3, v2
v_bfe_u32 v202, v2, 2, 1
v_lshlrev_b32 v203, 4, v201
v_mul_u32_u24 v204, 1152, v202
v_add_u32 v203, v203, v204
v_add_u32 v203, 1152, v203
v_lshlrev_b32 v204, 4, v202
v_cmp_eq_u32 vcc, 3, v201
v_cndmask_b32 v203, v203, v204, vcc
v_add_u32 v200, v200, v203
v_add_u32 v201, {8*3456 - 1024}, v200
s_mul_i32 s24, s20, 36
s_mul_i32 s58, s16, {16*3456}
s_add_u32 s24, s24, s58
s_waitcnt lgkmcnt(0)
s_mov_b32 s12, s56
s_mov_b32 s13, s57
s_mov_b32 s14, {576*1728*2}
s_mov_b32 s15, 0x20000''')
    ACC, WR, P0, V1, TMP, KVA, QO = 16, 80, 112, 120, 128, 136, 152
    items = []
    for g in range(72):
        if first and g < 36 and g % 4 == 0:
            wc = a_wchunk(g // 4)
            if dw:
                c = g // 4
                wc = [wc[0]] + [I(f"buffer_load_dwordx4 v{200+i}, s[12:15], s24 offen offset:{i*1024} lds", tag=f"w{c}") for i in range(2)] + ([f"s_add_u32 s24, s24, {64*3456}"] if c < 8 else [])
            items.append((g, wc))
        s = 4*(g % YR)
        pre = ["s_addk_i32 s22, 4096"] if (g % 4 == 0 and g) else []
        if m16: items.append((g, pre + [f"buffer_load_dwordx4 a[{s}:{s+3}], v164, s[8:11], s22 offen offset:{(g%4)//2*2048 + (g%2)*256} {yf}"])); continue
        items.append((g, pre + ([] if g in skipy else [f"buffer_load_dwordx4 a[{s}:{s+3}], v3, s[8:11], s22 offen offset:{(g%4)*1024} {'' if first and not p0 and p2 is None else yf}"])))
    ip = 0
    def issue_upto(gmax):
        nonlocal ip
        L = []
        while ip < len(items) and items[ip][0] <= gmax:
            L += items[ip][1]; ip += 1
        return L
    def ypf(skip):
        if not pfy: return []
        n = 72 - skip
        return [f"s_mov_b32 exec_hi, {hex((1 << (n - 32)) - 1)}", f"buffer_load_dword v254, v255, s[8:11], s23 offen {yf}", "s_mov_b64 exec, -1"]
    SK = D0 if first else YR
    if pfy: p(f"s_lshr_b32 s23, s2, 5\ns_mul_i32 s23, s23, {(72 - SK)*128}\ns_add_u32 s23, s23, s22\ns_add_u32 s23, s23, {SK*1024}\nv_lshlrev_b32 v255, 7, v2")
    setup = f"""v_lshlrev_b32 v13, 2, v0
v_add_u32 v4, 65536, v3
s_mul_i32 s28, s16, 1280
s_add_u32 s28, s28, {QB - 20*64}
v_and_b32 v5, 31, v2
v_lshlrev_b32 v5, 6, v5
v_lshrrev_b32 v9, 5, v2
v_lshl_add_u32 v5, v9, 5, v5
v_add_u32 v5, s28, v5
v_bfe_u32 v6, v2, 2, 2
v_lshl_add_u32 v6, v9, 2, v6
v_lshlrev_b32 v6, 6, v6
v_and_b32 v7, 1, v2
v_lshl_add_u32 v6, v7, 5, v6
v_bfe_u32 v7, v2, 4, 1
v_lshl_add_u32 v6, v7, 4, v6
v_bfe_u32 v7, v2, 1, 1
v_lshl_add_u32 v6, v7, 3, v6
s_add_u32 s28, s28, {20*64}
v_add_u32 v6, s28, v6
v_lshlrev_b32 v7, 2, v2
s_mul_i32 s28, s16, 2560
v_add_u32 v15, s28, v3
v_lshlrev_b32 v14, 3, v2
v_add_u32 v14, s28, v14
v_and_b32 v8, 27, v2
v_cmp_eq_u32 s[30:31], 18, v8
v_mov_b32 v8, 0x3f803f80
s_mov_b32 s32, 0xfff00000
s_mov_b32 s33, 0xfff00000
s_lshl_b32 s26, s21, 5
s_add_u32 s26, s26, s20
s_lshl_b32 s27, s26, 8
s_lshl_b32 s26, s26, 10
s_add_u32 s26, s26, {PQ16 + (0 if first else LS)}
s_add_u32 s27, s27, {PQ4 + (0 if first else LS)}"""
    if m16: setup += f"""
v_and_b32 v5, 15, v2
v_lshrrev_b32 v9, 4, v2
v_lshlrev_b32 v164, 4, v5
v_lshl_add_u32 v164, v9, 9, v164
v_add_u32 v15, s28, v164
v_and_b32 v9, 1, v9
v_lshlrev_b32 v14, 3, v5
v_lshl_add_u32 v14, v9, 8, v14
v_add_u32 v14, s28, v14
v_lshlrev_b32 v5, 6, v5
v_lshl_add_u32 v5, v9, 5, v5
v_lshrrev_b32 v9, 5, v2
v_lshl_add_u32 v5, v9, 3, v5
s_mul_i32 s28, s16, 1280
s_add_u32 s28, s28, {QB - 4*64}
v_add_u32 v5, s28, v5
v_lshl_add_u32 v165, v9, 10, v164
v_add_u32 v166, 65536, v165
v_and_b32 v9, 11, v2
v_cmp_eq_u32 s[30:31], 2, v9"""
    if first and p2 is not None:
        if hw or ld: p(kq.LATE_KA)
        p(setup)
        if ld: p('s_waitcnt lgkmcnt(0)')
        hn = 3 if hw and hw[0] == 'pre' else 4
        if hw: p(f'''s_and_b32 s60, s2, 7
s_lshr_b32 s61, s2, 3
s_max_u32 s59, s16, {4 - hn}
s_sub_u32 s59, s59, {4 - hn}
s_mul_i32 s62, s61, {hn}
s_add_u32 s62, s62, s59
s_mul_i32 s62, s62, {324//hn}
v_add_u32 v236, s62, v2
v_min_u32 v237, {324//hn - 65}, v2
v_add_u32 v237, s62, v237
v_lshlrev_b32 v236, 6, v236
v_lshlrev_b32 v237, 6, v237
v_add_u32 v237, 4096, v237
s_mul_i32 s100, s60, {576*1152}
s_mul_i32 s62, s59, {144//hn}
v_min_u32 v238, {144//hn - 1}, v2
v_add_u32 v238, s62, v238
v_lshrrev_b32 v239, 3, v238
v_and_b32 v238, 7, v238
v_mul_u32_u24 v239, 9216, v239
v_lshl_add_u32 v238, v238, 6, v239
s_lshl_b32 s59, s16, 1
s_add_u32 s59, s59, s61
s_and_b32 s59, s59, 7
s_mul_i32 s101, s61, {18*9216}
s_mul_i32 s60, s60, {9*128}
s_add_u32 s101, s101, s60
s_add_u32 s101, s101, 512
s_waitcnt lgkmcnt(0)
s_mov_b32 s88, s96
s_mov_b32 s89, s97
s_mov_b32 s90, {576*4608*2}
s_mov_b32 s91, 0x20000
s_mov_b32 s92, s86
s_mov_b32 s93, s87
s_mov_b32 s94, {576*4608*2}
s_mov_b32 s95, 0x20000''')
        HWL = (f"buffer_load_dword v244, v238, s[88:91], s101 offen {hwf}", f"buffer_load_dword v245, v236, s[92:95], s100 offen {hwf}", f"buffer_load_dword v246, v237, s[92:95], s100 offen {hwf}")
        if hn == 3: p(kq.off("\n".join(["s_cmp_eq_u32 s16, 0", "s_cbranch_scc1 L_hw_e"] + list(HWL[hw[1]:hw[2]]) + ["L_hw_e:"])))
        p(kq.a0_go())
        p(nst('a_go'))
        if pfa: p.ext(issue_upto(pfa - 1)); p.ext(ypf(SK)); p.ext(issue_upto(D0 - 1))
        else: p.ext(issue_upto(D0 - 1)); p.ext(ypf(SK))
        p("ds_read_b32 v161, v162\nv_readfirstlane_b32 s3, v161")
    elif first and p0:
        n = "a0" + p0[0]
        p(setup)
        p(f"""s_and_b32 s56, s2, 7
s_lshl_b32 s56, s56, 10
s_add_u32 s56, s56, {kp.PFL}
s_mov_b32 s49, 0x40000
s_cmp_eq_u32 s16, 0
s_cbranch_scc0 L_{n}p_go""")
        p(kp.poll(n + "p", 56, 250) + f"L_{n}p_go:\ns_barrier")
        p(nst('a_go'))
        p.ext(issue_upto(D0 - 1))
    elif first:
        p.ext(issue_upto(D0 - 1))
        p(setup)
    else:
        p(setup)
        if NP0: p(WOP)
        if tw and tw[1] == 'pre': wo0_t = [y for x in touch(tw[2], tw[4]) for y in x]
        else: wo0_t = []
        wo0 = wo0_t + [y for x in wo_loads(range(4))[:NP0] for y in x]
        NV = len([x for x in wo0 if x.startswith('buffer')])
        p(f"""s_lshl_b32 s28, s19, 2
s_bfe_u32 s29, s2, {('0x20005', '0x20000')[RAB[1]]}
s_add_u32 s28, s28, s29
s_lshl_b32 s28, s28, 9
s_add_u32 s28, s28, {CNT + LS + CDA}
v_lshlrev_b32 v10, 7, v2
s_mov_b32 s49, 0x40000
s_waitcnt vmcnt(0)
s_cmp_eq_u32 s16, 0
s_cbranch_scc{1 if wl or NP0 else 0} L_da_{'w0' if wl or NP0 else 'go'}""")
        if NP0 and not wl: p(kq.off("\n".join(wo0 + ["s_branch L_da_go", "L_da_w0:"] + ([] if w0p else wo0))))
        if wl:
            L = f"""s_sub_u32 s29, s16, 1
s_mul_i32 s56, s29, 24576
s_mul_i32 s57, s20, 73728
s_add_u32 s57, s57, s56
s_add_u32 s57, s57, {WQF}""".split("\n")
            for k in range(6):
                L += [f"s_add_u32 m0, s56, {k*4096}", "s_nop 0"] + [f"buffer_load_dwordx4 v3, s[8:11], s57 offen offset:{i*1024} {HF[0]} lds" for i in range(4)] + (["s_addk_i32 s57, 4096"] if k < 5 else [])
            p(kq.off("\n".join(L + wo0 + [f"s_waitcnt vmcnt({NV})", "s_branch L_da_go", "L_da_w0:"] + ([] if w0p else wo0))))
        sp = spin("da", 28, 10, 250, 4, 8, PD)
        if w0p: sp = sp.replace("L_da_go:", kq.off("\n".join(wo0)) + "\nL_da_go:")
        p(sp)
        p("s_barrier")
        p(nst('a_go'))
        if pfa: p.ext(issue_upto(pfa - 1)); p.ext(ypf(SK)); p.ext(issue_upto(YR - 1))
        else: p.ext(issue_upto((D1 or YR) - 1)); p.ext(ypf(SK))
    def wrd(f):
        g = f % 72
        s = WR + 4*(f % NW)
        L = []
        if first and f < 72 and f % 8 == 0: L.append(I("s_barrier", needs=[f"w{f//8}"]))
        if m16:
            o = (g//4)*4096 + (g%4)//2*1024 + (g%2)*256
            L.append(f"ds_read_b128 v[{s}:{s+3}], v{165 + o//65536} offset:{o % 65536}")
            return L
        L.append(f"ds_read_b128 v[{s}:{s+3}], v3 offset:{g*1024}" if g < 64 else f"ds_read_b128 v[{s}:{s+3}], v4 offset:{(g-64)*1024}")
        return L
    for f in range(NW - 1): p.ext(wrd(f))
    p(nst('a_first'))
    G = []
    for ds in range(36 if m16 else 0):
        for c in range(4):
            f = 4*ds + c; w = WR + 4*(f % NW)
            for rh in range(2):
                y = 4*((2*ds + rh) % YR); acc = ACC + 32*(ds // 18) + 8*c + 4*rh
                grp = [f"v_mfma_f32_16x16x32_bf16 v[{acc}:{acc+3}], a[{y}:{y+3}], v[{w}:{w+3}], " + ("0" if ds % 18 == 0 else f"v[{acc}:{acc+3}]")]
                if rh == 1 and f + NW - 1 < 144: grp += wrd(f + NW - 1)
                if rh == 0 and c in (0, 2):
                    g = 2*ds - 2 + c//2
                    depth = min(YR, D0 + 2 + max(g, 0)*RAMP) if first else YR
                    grp += issue_upto(g + depth)
                G.append(grp)
    for g in range(0 if m16 else 72):
        y = 4*(g % YR)
        for t in range(2):
            f = 2*g + t
            w = WR + 4*(f % NW)
            acc = ACC + 32*(g // 36) + 16*t
            c = "0" if g % 36 == 0 else f"v[{acc}:{acc+15}]"
            grp = [f"v_mfma_f32_32x32x16_bf16 v[{acc}:{acc+15}], a[{y}:{y+3}], v[{w}:{w+3}], {c}"]
            if f + NW - 1 < 144: grp += wrd(f + NW - 1)
            if t == 1:
                depth = min(YR, D0 + 1 + g*RAMP) if first else (min(YR, int(D1 + 1 + g*R1)) if D1 else YR)
                grp += issue_upto(g + depth)
            G.append(grp)
    assert ip == len(items)
    def epi1(rt):
        T0 = ACC + 32*rt; T1 = T0 + 16
        L = []
        for i in range(8): L.append(f"v_cvt_pk_bf16_f32 v{V1+i}, v{T1+2*i}, v{T1+2*i+1}")
        for i in range(8): L.append(f"v_cndmask_b32 v{V1+i}, v{V1+i}, v8, s[30:31]")
        ph = phi(list(range(T0, T0 + 16)), TMP)
        pk = [f"v_cvt_pk_bf16_f32 v{P0+i}, v{T0+2*i}, v{T0+2*i+1}" for i in range(8)]
        mm = [f"v_mfma_f32_32x32x16_bf16 v[{KVA}:{KVA+15}], v[{P0+4*q}:{P0+4*q+3}], v[{V1+4*q}:{V1+4*q+3}], " + ("0" if (rt == 0 and q == 0) else f"v[{KVA}:{KVA+15}]") for q in range(2)]
        if m16:
            L = L[:8] + L[12:]
            mm = [f"v_mfma_f32_16x16x32_bf16 v[{KVA+8*mt+4*nt}:{KVA+8*mt+4*nt+3}], v[{P0+4*mt}:{P0+4*mt+3}], v[{V1+4*nt}:{V1+4*nt+3}], " + ("0" if rt == 0 else f"v[{KVA+8*mt+4*nt}:{KVA+8*mt+4*nt+3}]") for mt in range(2) for nt in range(2)]
            L = ph[:32] + pk[:4] + L + mm[:2] + ph[32:] + pk[4:] + mm[2:]
            L.append(["s_mov_b32 exec_lo, 0xff00ff00", "s_mov_b32 exec_hi, 0xff00ff00", f"ds_write2_b64 v5, v[{V1+4}:{V1+5}], v[{V1+6}:{V1+7}] offset0:64 offset1:66",
                      "s_mov_b32 exec_lo, 0xfff0fff0", "s_mov_b32 exec_hi, 0xfff0fff0", f"ds_write2_b64 v5, v[{P0+4}:{P0+5}], v[{P0+6}:{P0+7}] offset1:2", "s_mov_b64 exec, -1"])
            L += [f"ds_read_b64_tr_b16 v[{QO}:{QO+1}], v6", f"ds_read_b64_tr_b16 v[{QO+2}:{QO+3}], v6 offset:768", f"ds_read_b64_tr_b16 v[{QO+4}:{QO+5}], v6 offset:512"]
            return L
        L = ph[:32] + pk[:4] + L + [mm[0]] + ph[32:] + pk[4:] + [mm[1]]
        L.append(["s_mov_b64 exec, s[32:33]",
                  f"ds_write_b128 v5, v[{V1}:{V1+3}] offset:512", f"ds_write_b128 v5, v[{V1+4}:{V1+7}] offset:528",
                  f"ds_write_b128 v5, v[{P0}:{P0+3}]", f"ds_write_b128 v5, v[{P0+4}:{P0+7}] offset:16",
                  "s_mov_b64 exec, -1"])
        L += [f"ds_read_b64_tr_b16 v[{QO}:{QO+1}], v6", f"ds_read_b64_tr_b16 v[{QO+2}:{QO+3}], v6 offset:768", f"ds_read_b64_tr_b16 v[{QO+4}:{QO+5}], v6 offset:512"]
        return L
    def epi2(rt):
        u = TMP + 4
        L = [f"v_lshlrev_b32 v{u}, 16, v{QO+2}", f"v_and_b32 v{u+1}, 0xffff0000, v{QO+2}", f"v_lshlrev_b32 v{u+2}, 16, v{QO+3}", f"v_and_b32 v{u+3}, 0xffff0000, v{QO+3}"]
        L += phi([u, u+1, u+2, u+3], TMP)
        L += [f"v_cvt_pk_bf16_f32 v{QO+2}, v{u}, v{u+1}", f"v_cvt_pk_bf16_f32 v{QO+3}, v{u+2}, v{u+3}"]
        return L
    def qst(rt):
        L = ["s_add_u32 s26, s26, 32768", "s_add_u32 s27, s27, 8192"] if rt else []
        return L + [f"buffer_store_dwordx4 v[{QO}:{QO+3}], v3, s[8:11], s26 offen {qsf}", f"buffer_store_dword v{QO+4}, v7, s[8:11], s27 offen {qsf}"]
    late = f"""v_bfe_u32 v10, v0, 2, 5
v_lshrrev_b32 v12, 1, v0
v_cmp_gt_u32 s[34:35], 19, v10
v_cmp_eq_u32 s[36:37], 22, v10
s_or_b64 s[34:35], s[34:35], s[36:37]
v_cmp_gt_u32 s[38:39], 19, v12
v_cmp_eq_u32 s[36:37], 22, v12
s_or_b64 s[38:39], s[38:39], s[36:37]
s_mul_i32 s28, s20, 2560
s_add_u32 s28, s28, {KV + (0 if first else LS)}
{WOP if first or not NP0 else 's_nop 0'}
s_lshl_b32 s54, s20, 7
s_add_u32 s54, s54, {CNT + CAB + (0 if first else LS)}
v_lshlrev_b32 v10, 12, v2
v_mov_b32 v11, 1""".split("\n")
    wo = wo_loads(range(4))[(0 if first else NP0):NP1]
    if not first and NPa1 is not None: NPa = NPa1
    K = 2 if m16 else 1
    if side and first:
        _, su, dma, su2, work, fin = side
        G[116] = G[116] + [I("s_barrier", needs=['scs'])]
        def put(L, a, b):
            for k, x in enumerate(L): G[a + k*(b - a)//len(L)] += x if isinstance(x, list) else [x]
        put(su, SW[0], SW[1]); put(dma, SW[2], SW[3]); put(su2, SW[3], SW[4]); put(work, SW[4], SW[5]); put(fin, 117, 130)
    elif first and p2 is not None:
        if m16: FP = (2*FP[0], 0, 2*FP[2], 2*FP[3])
        G[116*K] = G[116*K] + ["s_barrier"]
        f2 = kq.fchk('f2', 232, 57, 's3')
        G[FP[0]] = G[FP[0]] + kq.fsig('f2', 161, 162, 58)
        G[FP[2]] = G[FP[2]] + [f2[0]]
        for k, x in enumerate(f2[1]): G[FP[3] - 4 + k//2] = G[FP[3] - 4 + k//2] + [x]
        G[FP[3] + 1] = G[FP[3] + 1] + f2[2]
        G = [[y for x in g for y in (x if isinstance(x, list) else [x])] for g in G]
    elif first and p0:
        lf = SW[1] > 112
        G[116] = G[116] + [I("s_barrier", needs=[] if lf else ['scs'])]
        for L, a, b in ((p0[3], SD[0], SD[1]), (p0[1], SW[0], SW[1]), ([] if lf else p0[2], 117, 130)):
            for k, x in enumerate(L): G[a + k*(b - a)//len(L)] += x if isinstance(x, list) else [x]
    else: G[116*K] = G[116*K] + ["s_barrier"]
    if first and hw and hw[0] == 'st':
        for k in range(8): G[hw[1] + k*hw[2]] = G[hw[1] + k*hw[2]] + kq.off("\n".join([f"s_cmp_eq_u32 s59, {k}", f"s_cbranch_scc0 L_hw{k}"] + list(HWL) + [f"L_hw{k}:"])).split("\n")
    elif first and hw and hw[0] != 'pre':
        for k, x in zip(hw, HWL): G[k] = G[k] + [x]
    if first and ld:
        if ld[1] == 0: G[ld[0]] = G[ld[0]] + kq.late_dmas().split("\n")
        else:
            m, ool = kq.late_dmas_uni()
            G[ld[0]] = G[ld[0]] + m; f2 = f2[:3] + (f2[3] + ool,)
    tg = tw and tw[0 if first else 1]
    if isinstance(tg, int):
        for k, x in enumerate(touch(tw[2], tw[3 if first else 4])[::-1]): G[tg + k] = G[tg + k] + x
    for k in range(1, 144*K):
        if nst(f'a_g{k}'): G[k] = [nst(f'a_g{k}')] + G[k]
    if not m16: E0 = (74, 124)
    for grp in G[:20*K]: p.ext(grp)
    p.ext(interleave(G[20*K:60*K], atomize(late)))
    if first and ld:
        su = [l for l in kq.late_setup(236).split("\n")[3:] if l.strip() and not l.startswith('s_waitcnt')]
        p.ext(interleave(G[60*K:E0[0]], atomize(su)))
    else:
        for grp in G[60*K:E0[0]]: p.ext(grp)
    p.ext(interleave(G[E0[0]:E0[1]], epi1(0) + epi2(0) + qst(0)))
    p.ext(interleave(G[E0[1]:], wo[:NPa]))
    p(nst('a_epi'))
    e1 = epi1(1)
    rest = wo[NPa:]
    k1 = len(rest) * 2 // 3
    p.ext(interleave([x if isinstance(x, list) else [x] for x in e1], rest[:k1]))
    if m16: p(f"ds_write_b128 v15, v[{KVA}:{KVA+3}]\nds_write_b128 v15, v[{KVA+4}:{KVA+7}] offset:256\ns_mov_b32 exec_hi, 0\nds_write_b64 v14, v[{KVA+8}:{KVA+9}] offset:2048\nds_write_b64 v14, v[{KVA+12}:{KVA+13}] offset:2176\ns_mov_b64 exec, -1")
    else: p(f"ds_write_b128 v15, v[{KVA}:{KVA+3}]\nds_write_b128 v15, v[{KVA+4}:{KVA+7}] offset:1024\nds_write_b64 v14, v[{KVA+8}:{KVA+9}] offset:2048")
    for x in rest[k1:]: p.ext(x)
    p("s_waitcnt lgkmcnt(0)")
    p("s_barrier")
    for it in range(3):
        for w in range(4): p(f"ds_read_b32 v{16 + 4*it + w}, v13 offset:{w*2560 + it*1024}")
    p.ext(epi2(1))
    if first and p0 and SW[1] > 112: p.ext(p0[2])
    for it in range(3):
        b = 16 + 4*it
        p(f"v_add_f32 v{b}, v{b}, v{b+1}\nv_add_f32 v{b+2}, v{b+2}, v{b+3}\nv_add_f32 v{b}, v{b}, v{b+2}")
    p(f"""s_mov_b64 exec, s[34:35]
buffer_atomic_add_f32 v16, v13, s[8:11], s28 offen
buffer_atomic_add_f32 v20, v13, s[8:11], s28 offen offset:1024
s_mov_b64 exec, -1""")
    p.ext(qst(1))
    p(f"""s_cmp_eq_u32 s16, 0
s_cbranch_scc0 L_{n}_end
s_mov_b64 exec, s[38:39]
buffer_atomic_add_f32 v24, v13, s[8:11], s28 offen offset:2048
s_mov_b64 exec, -1
L_{n}_end:""")
    for k, i in enumerate(p.ins):
        if i.kind == 'vm' and i.w and i.w[0][0] == 'a' and 's50' in i.r:
            assert not any(j.kind == 'mfma' and set(j.r) & set(i.w) for j in p.ins[k:]), i.text
    p(nst('a_st'))
    if first: p("s_branch L_ab")
    return p.finish() + (f2[3] if first and p2 is not None else "")

A2 = [False]
RAB = [0, 0]
QB2, TAGL, LXD, S80 = 147456, 152576, 152832, 153600
A_MAP2 = """s_and_b32 s17, s2, 7
s_lshr_b32 s18, s2, 3
s_lshr_b32 s19, s17, 2
s_lshl_b32 s19, s19, 3
s_and_b32 s20, s18, 7
s_add_u32 s19, s19, s20
s_and_b32 s20, s17, 3
s_lshl_b32 s20, s20, 2
s_lshr_b32 s21, s18, 3
s_add_u32 s20, s20, s21
s_lshl_b32 s17, s20, 1
s_and_b32 s18, s19, 1
s_add_u32 s17, s17, s18
s_xor_b32 s18, s17, 1"""

def a_map2(m):
    if m == 0: return A_MAP2
    nb = 3 - m
    return f"""s_bfe_u32 s19, s2, {hex(((1 + m) << 16) | (2 - m))}
s_lshl_b32 s19, s19, {nb}
s_bfe_u32 s20, s2, {hex((nb << 16) | 3)}
s_add_u32 s19, s19, s20
""" + (f"s_and_b32 s20, s2, 1\ns_lshl_b32 s20, s20, 3\ns_lshr_b32 s21, s2, 5\ns_add_u32 s20, s20, s21\n" if m == 1 else "s_lshr_b32 s20, s2, 4\n") + """s_lshl_b32 s17, s20, 1
s_and_b32 s18, s19, 1
s_add_u32 s17, s17, s18
s_xor_b32 s18, s17, 1"""
def a2_part(first, p2=None, K1=12, D0=10, RT=1.25, D1=8, R1=1.0, NW=8, qsf="sc1", NP1=36, PD=1, yf='sc1', FP=(0, 0, 100, 132),
            BAR=None, E0=2, E1=None, W1=(50, 94), NPa=8, LT=(20, 44), rr=0, SG=3, LEAD=8, c32=False, **kw):
    n = "a0" if first else "a1"
    L_ = 0 if first else LS
    p = Prog()
    p(A_MAP2 if first else a_map2(AM1[0]))
    p(f"""s_lshl_b32 s21, s19, 2
s_add_u32 s21, s21, s16
s_mul_i32 s22, s21, 36864
s_add_u32 s22, s22, {YF + L_}""")
    if first: p(f"""s_lshl_b32 s25, s16, 11
s_mul_i32 s24, s17, 73728
s_mul_i32 s23, s18, 73728
s_add_u32 s60, s25, {WQF}
s_add_u32 s24, s24, s60
s_add_u32 s23, s23, s60""")
    ACC, WR, P0, V1, TMP, KVA, QO, VB2 = 16, 80, 112, 120, 128, 136, 152, 158
    KVO = (0, 11264)
    yreg = lambda kk: ('a', 4*kk) if kk < 16 else ('v', 164 + 4*(kk - 16))
    units = [(kk, h) for kk in range(K1) for h in range(2)] + [(kk, 0) for kk in range(K1, 36)] + [(kk, 1) for kk in range(K1, 36)]
    uof = {u: i for i, u in enumerate(units)}
    C1 = K1 // 4
    if BAR is None:
        BAR = [[(0, c), (1, c)] for c in range(C1)] + [[(0, c), (0, c + 1)] if c < 8 else [(0, c)] for c in range(C1, 9, 2)] + [[(1, c) for c in range(c0, min(9, c0 + SG))] for c0 in range(C1, 9, SG)]
    assert sorted(x for g in BAR for x in g) == [(h, c) for h in range(2) for c in range(9)]
    bar_at = {}
    items = []
    for g in BAR:
        u0 = min(uof[(4*c, h)] for h, c in g)
        bar_at[2*u0] = [f"w{h}{c}" for h, c in g]
        if first:
            for h, c in g:
                sr = (24, 23)[h]
                L = [f"s_add_u32 m0, s25, {h*73728 + c*8192}" if (h or c) else "s_mov_b32 m0, s25"]
                a = I(f"buffer_load_dwordx4 v3, s[8:11], s{sr} offen {HF[0]} lds", tag=f"w{h}{c}")
                b = I(f"buffer_load_dwordx4 v3, s[8:11], s{sr} offen offset:1024 {HF[0]} lds", tag=f"w{h}{c}")
                items.append((u0 - 4, 2, L + [a, b] + ([f"s_addk_i32 s{sr}, 8192"] if c < 8 else [])))
    for kk in range(36):
        R, r = yreg(kk)
        pre = ["s_addk_i32 s22, 4096"] if (kk % 4 == 0 and kk) else []
        items.append((uof[(kk, 0)], 1, pre + [f"buffer_load_dwordx4 {R}[{r}:{r+3}], v3, s[8:11], s22 offen offset:{(kk%4)*1024} {yf}"]))
    items.sort(key=lambda x: x[0])
    st = dict(ip=0, n=0)
    def issue(nmax, u=-99):
        L = []
        while st['ip'] < len(items) and (st['n'] < nmax or items[st['ip']][0] <= u + LEAD):
            L += items[st['ip']][2]; st['n'] += items[st['ip']][1]; st['ip'] += 1
        return L
    setup = f"""v_lshlrev_b32 v13, 2, v0
v_add_u32 v4, 65536, v3
v_add_u32 v{VB2}, 131072, v3
s_mul_i32 s28, s16, 1280
s_add_u32 s28, s28, {QB2 - 20*64}
v_and_b32 v5, 31, v2
v_lshlrev_b32 v5, 6, v5
v_lshrrev_b32 v9, 5, v2
v_lshl_add_u32 v5, v9, 5, v5
v_add_u32 v5, s28, v5
v_bfe_u32 v6, v2, 2, 2
v_lshl_add_u32 v6, v9, 2, v6
v_lshlrev_b32 v6, 6, v6
v_and_b32 v7, 1, v2
v_lshl_add_u32 v6, v7, 5, v6
v_bfe_u32 v7, v2, 4, 1
v_lshl_add_u32 v6, v7, 4, v6
v_bfe_u32 v7, v2, 1, 1
v_lshl_add_u32 v6, v7, 3, v6
s_add_u32 s28, s28, {20*64}
v_add_u32 v6, s28, v6
v_lshlrev_b32 v7, 2, v2
s_mul_i32 s28, s16, 2560
v_add_u32 v15, s28, v3
v_lshlrev_b32 v14, 3, v2
v_add_u32 v14, s28, v14
v_and_b32 v8, 27, v2
v_cmp_eq_u32 s[30:31], 18, v8
v_mov_b32 v8, 0x3f803f80
s_mov_b32 s32, 0xfff00000
s_mov_b32 s33, 0xfff00000
s_lshl_b32 s26, s21, 5
s_add_u32 s26, s26, s17
s_lshl_b32 s27, s26, 8
s_lshl_b32 s26, s26, 10
s_add_u32 s26, s26, {PQ16 + L_}
s_add_u32 s27, s27, {PQ4 + L_}"""
    p(setup)
    if first:
        p(kq.a0_go(True))
        p(nst('a_go'))
        p.ext(issue(D0))
        p("ds_read_b32 v161, v162\nv_readfirstlane_b32 s3, v161")
    else:
        p(f"""s_lshl_b32 s28, s19, 2
{"s_and_b32 s29, s2, 3" if rr == 0 else "s_lshr_b32 s29, s2, 6"}
s_add_u32 s28, s28, s29
s_lshl_b32 s28, s28, 8
s_add_u32 s28, s28, {CNT + LS + CDA}
v_lshlrev_b32 v10, 7, v2
s_mov_b32 s49, 0x40000
s_waitcnt vmcnt(0)
s_cmp_eq_u32 s16, 0
s_cbranch_scc1 L_da_w0""")
        L = f"""s_sub_u32 s29, s16, 1
s_lshl_b32 s56, s29, 13
s_add_u32 s56, s56, {2048*(36 - K1)}
s_mul_i32 s57, s17, 73728
s_add_u32 s57, s57, s56
s_add_u32 s57, s57, {WQF}""".split("\n")
        assert K1 == 12
        for k in range(2):
            L += [f"s_add_u32 m0, s56, {k*4096}", "s_nop 0"] + [f"buffer_load_dwordx4 v3, s[8:11], s57 offen offset:{i*1024} {HF[0]} lds" for i in range(4)] + (["s_addk_i32 s57, 4096"] if k == 0 else [])
        L += f"""s_lshl_b32 s56, s29, 14
s_add_u32 s56, s56, {2048*K1}
s_mul_i32 s57, s18, 73728
s_add_u32 s57, s57, s56
s_add_u32 s57, s57, {WQF}""".split("\n")
        for k in range(4):
            L += [f"s_add_u32 m0, s56, {73728 + k*4096}", "s_nop 0"] + [f"buffer_load_dwordx4 v3, s[8:11], s57 offen offset:{i*1024} {HF[0]} lds" for i in range(4)] + (["s_addk_i32 s57, 4096"] if k < 3 else [])
        p(kq.off("\n".join(L + ["s_branch L_da_go", "L_da_w0:"])))
        p(spin("da", 28, 10, 250, 2, 8, PD))
        p("s_barrier")
        p(nst('a_go'))
        p.ext(issue(D1))
    def wrd(f):
        kk, h = units[f // 2]; t = f % 2
        s = WR + 4*(f % NW)
        L = []
        if first and f in bar_at: L.append(I("s_barrier", needs=bar_at[f]))
        a = h*73728 + kk*2048 + t*1024
        L.append(f"ds_read_b128 v[{s}:{s+3}], v{(3, 4, VB2)[a >> 16]} offset:{a & 65535}")
        return L
    for f in range(NW - 1): p.ext(wrd(f))
    p(nst('a_first'))
    G = []
    for u, (kk, h) in enumerate(units):
        R, y = yreg(kk)
        for t in range(2):
            f = 2*u + t
            w = WR + 4*(f % NW)
            acc = ACC + 32*h + 16*t
            c = "0" if kk == 0 else f"v[{acc}:{acc+15}]"
            grp = [f"v_mfma_f32_32x32x16_bf16 v[{acc}:{acc+15}], {R}[{y}:{y+3}], v[{w}:{w+3}], {c}"]
            if f + NW - 1 < 144: grp += wrd(f + NW - 1)
            if t == 1: grp += issue((D0 + (u + 1)*RT) if first else (D1 + (u + 1)*R1), u)
            G.append(grp)
    assert st['ip'] == len(items)
    def epi1(h):
        T0 = ACC + 32*h; T1 = T0 + 16
        L = []
        for i in range(8): L.append(f"v_cvt_pk_bf16_f32 v{V1+i}, v{T1+2*i}, v{T1+2*i+1}")
        for i in range(8): L.append(f"v_cndmask_b32 v{V1+i}, v{V1+i}, v8, s[30:31]")
        ph = phi(list(range(T0, T0 + 16)), TMP)
        pk = [f"v_cvt_pk_bf16_f32 v{P0+i}, v{T0+2*i}, v{T0+2*i+1}" for i in range(8)]
        mm = [f"v_mfma_f32_32x32x16_bf16 v[{KVA}:{KVA+15}], v[{P0+4*q}:{P0+4*q+3}], v[{V1+4*q}:{V1+4*q+3}], " + ("0" if q == 0 else f"v[{KVA}:{KVA+15}]") for q in range(2)]
        L = ph[:32] + pk[:4] + L + [mm[0]] + ph[32:] + pk[4:] + [mm[1]]
        L.append(["s_mov_b64 exec, s[32:33]",
                  f"ds_write_b128 v5, v[{V1}:{V1+3}] offset:512", f"ds_write_b128 v5, v[{V1+4}:{V1+7}] offset:528",
                  f"ds_write_b128 v5, v[{P0}:{P0+3}]", f"ds_write_b128 v5, v[{P0+4}:{P0+7}] offset:16",
                  "s_mov_b64 exec, -1"])
        L += [f"ds_read_b64_tr_b16 v[{QO}:{QO+1}], v6", f"ds_read_b64_tr_b16 v[{QO+2}:{QO+3}], v6 offset:768", f"ds_read_b64_tr_b16 v[{QO+4}:{QO+5}], v6 offset:512"]
        return L
    def epi2():
        u = TMP + 4
        L = [f"v_lshlrev_b32 v{u}, 16, v{QO+2}", f"v_and_b32 v{u+1}, 0xffff0000, v{QO+2}", f"v_lshlrev_b32 v{u+2}, 16, v{QO+3}", f"v_and_b32 v{u+3}, 0xffff0000, v{QO+3}"]
        L += phi([u, u+1, u+2, u+3], TMP)
        L += [f"v_cvt_pk_bf16_f32 v{QO+2}, v{u}, v{u+1}", f"v_cvt_pk_bf16_f32 v{QO+3}, v{u+2}, v{u+3}"]
        return L
    def qst(h):
        L = ["s_xor_b32 s26, s26, 1024", "s_xor_b32 s27, s27, 256"] if h else []
        return L + [f"buffer_store_dwordx4 v[{QO}:{QO+3}], v3, s[8:11], s26 offen {qsf}", f"buffer_store_dword v{QO+4}, v7, s[8:11], s27 offen {qsf}"]
    kvw = lambda h: [I(f"ds_write_b128 v15, v[{KVA}:{KVA+3}] offset:{KVO[h]}", tag=f'kv{h}'), I(f"ds_write_b128 v15, v[{KVA+4}:{KVA+7}] offset:{KVO[h] + 1024}", tag=f'kv{h}'),
                     I(f"ds_write_b64 v14, v[{KVA+8}:{KVA+9}] offset:{KVO[h] + 2048}", tag=f'kv{h}')]
    RB = (16, 32)
    kvr = lambda h: [f"ds_read_b32 v{RB[h] + 4*it + w}, v13 offset:{KVO[h] + w*2560 + it*1024}" for it in range(3) for w in range(4)]
    def kva(h):
        L = []
        for it in range(3):
            b = RB[h] + 4*it
            L += [f"v_add_f32 v{b}, v{b}, v{b+1}", f"v_add_f32 v{b+2}, v{b+2}, v{b+3}", f"v_add_f32 v{b}, v{b}, v{b+2}"]
        return L
    def kat(h):
        b = RB[h]; sk = 28 + h
        return [["s_mov_b64 exec, s[34:35]", f"buffer_atomic_add_f32 v{b}, v13, s[8:11], s{sk} offen", f"buffer_atomic_add_f32 v{b+4}, v13, s[8:11], s{sk} offen offset:1024", "s_mov_b64 exec, -1"]], \
               [["s_cmp_eq_u32 s16, 0", f"s_cbranch_scc0 L_{n}_k{h}", "s_mov_b64 exec, s[38:39]", f"buffer_atomic_add_f32 v{b+8}, v13, s[8:11], s{sk} offen offset:2048 ; @", "s_mov_b64 exec, -1", f"L_{n}_k{h}:"]]
    late = f"""v_bfe_u32 v10, v0, 2, 5
v_lshrrev_b32 v12, 1, v0
v_cmp_gt_u32 s[34:35], 19, v10
v_cmp_eq_u32 s[36:37], 22, v10
s_or_b64 s[34:35], s[34:35], s[36:37]
v_cmp_gt_u32 s[38:39], 19, v12
v_cmp_eq_u32 s[36:37], 22, v12
s_or_b64 s[38:39], s[38:39], s[36:37]
s_mul_i32 s28, s17, 2560
s_add_u32 s28, s28, {KV + L_}
s_mul_i32 s29, s18, 2560
s_add_u32 s29, s29, {KV + L_}
s_lshr_b32 s51, s2, 6
s_mul_i32 s52, s51, 5
s_lshl_b32 s53, s51, 2
s_add_u32 s53, s53, 2
s_cmp_lt_u32 s51, 2
s_cselect_b32 s52, s52, s53
s_mul_i32 s50, s52, 36864
s_mul_i32 s53, s16, 9216
s_add_u32 s50, s50, s53
s_add_u32 s50, s50, {WOF}
s_lshl_b32 s54, s{17 if c32 else 20}, 7
s_add_u32 s54, s54, {CNT + CAB + L_}
v_lshlrev_b32 v10, 12, v2
v_mov_b32 v11, 1""".split("\n")
    wo = wo_loads(range(4))[:NP1]
    def put(L, a, b):
        for k, x in enumerate(L): G[a + k*(b - a)//len(L)] += x if isinstance(x, list) else [x]
    P3 = 2*(36 + K1)
    if first:
        f2 = kq.fchk('f2', 244, 57, 's3')
        G[FP[0]] = G[FP[0]] + kq.fsig('f2', 161, 162, 58)
        G[FP[2]] = G[FP[2]] + [f2[0]]
        for k, x in enumerate(f2[1]): G[FP[3] - 4 + k//2] = G[FP[3] - 4 + k//2] + [x]
        G[FP[3] + 1] = G[FP[3] + 1] + f2[2]
        put(wo[:NPa], FP[3] + 2, 144); rest = wo[NPa:]
    else:
        G[48] = G[48] + ["s_barrier"]
        assert 2*uof[(24, 0)] - NW >= 48
        put(wo, W1[0], W1[1]); rest = []
    G = [[y for x in g for y in (x if isinstance(x, list) else [x])] for g in G]
    for k in range(1, 144):
        if nst(f'a_g{k}'): G[k] = [nst(f'a_g{k}')] + G[k]
    k0, k1 = kat(0)
    fill = epi1(0) + kvw(0) + epi2() + qst(0) + [I("s_barrier", needs=['kv0'])] + kvr(0) + kva(0) + k0 + k1
    a = P3 + E0; b = E1 or 144
    for grp in G[:LT[0]]: p.ext(grp)
    p.ext(interleave(G[LT[0]:LT[1]], atomize(late)))
    for grp in G[LT[1]:a]: p.ext(grp)
    p.ext(interleave(G[a:b], fill))
    for grp in G[b:]: p.ext(grp)
    p(nst('a_epi'))
    e1 = epi1(1)
    kx = len(rest) * 2 // 3
    p.ext(interleave([x if isinstance(x, list) else [x] for x in e1], rest[:kx]))
    p.ext(kvw(1))
    for x in rest[kx:]: p.ext(x)
    p("s_waitcnt lgkmcnt(0)")
    p("s_barrier")
    p.ext(kvr(1)); p.ext(epi2()); p.ext(kva(1))
    k0, k1 = kat(1)
    p.ext(k0[0]); p.ext(qst(1)); p.ext(k1[0])
    for k, i in enumerate(p.ins):
        if i.op == 's_barrier':
            for t in i.needs: assert all(kk < k for kk, j in enumerate(p.ins) if j.tag == t), t
    p(nst('a_st'))
    if first: p("s_branch L_ab")
    return p.finish() + (f2[3] if first else "")

def w_mid2():
    L = f"""s_cmp_eq_u32 s63, 0
s_cbranch_scc0 L_wm_skip
s_and_b32 s52, s2, {(3, 1, 0)[AM1[0]]}
s_lshl_b32 s52, s52, {3 + AM1[0]}
s_lshr_b32 s53, s2, {6 - AM1[0]}
s_lshl_b32 s53, s53, 1
s_add_u32 s52, s52, s53
s_bfe_u32 s53, s2, 0x10003
s_add_u32 s52, s52, s53
s_xor_b32 s37, s52, 1
s_mul_i32 s52, s52, 73728
s_mul_i32 s37, s37, 73728
s_mul_i32 s53, s16, 12288
s_add_u32 s52, s52, s53
s_add_u32 s52, s52, {WQF}
s_mov_b32 m0, s53""".split("\n")
    for k in range(3):
        if k: L += [f"s_add_u32 m0, s53, {k*4096}", "s_addk_i32 s52, 4096"]
        L += ["s_nop 0"] + [f"buffer_load_dwordx4 v3, s[8:11], s52 offen offset:{i*1024} {HF[0]} lds" for i in range(4)]
    L += ["s_lshr_b32 s53, s53, 1", "s_add_u32 s37, s37, s53", f"s_add_u32 s37, s37, {WQF}"]
    for k in range(2):
        L += [f"s_add_u32 m0, s53, {73728 + k*4096}"] + (["s_addk_i32 s37, 4096"] if k else [])
        L += ["s_nop 0"] + [f"buffer_load_dwordx4 v3, s[8:11], s37 offen offset:{i*1024} {HF[0]} lds" for i in range(4 if k == 0 else 2)]
    return L

OOL = []
def ab_link(NP1=36, lp=None, NPw=0, ina=False, inb=False):
    p = Prog()
    if ina: lp = None; p("s_cmp_eq_u32 s63, 0\ns_cselect_b32 s55, s55, 0")
    if lp is not None: p(kq.LATE_KA)
    p(f"""s_and_b32 s17, s2, 7
s_lshl_b32 s17, s17, 3
s_bfe_u32 s19, s2, 0x30003
s_add_u32 s17, s17, s19
s_mov_b32 s18, s52
{chr(10).join(y for x in wo_loads(range(4))[NP1:NP1 + NPw] for y in x)}
s_waitcnt vmcnt({NPw})
s_barrier
s_cmp_eq_u32 s16, 0
s_cbranch_scc0 L_ab_ns
s_mov_b64 exec, {0xff if RAB[0] == 1 else 0xffff}
buffer_atomic_add v11, v10, s[8:11], s54 offen
s_mov_b64 exec, -1
L_ab_ns:""")
    p(nst('a_sig'))
    for x in wo_loads(range(4))[NP1 + NPw:]: p.ext(x)
    if lp is not None: p(kq.late_setup()); p('L_ld_e:' if inb else kq.late_dmas(**lp))
    return p.finish() + "  s_cmp_lt_u32 s51, 2\n  s_cbranch_scc0 L_b4\n"

def b_part(NT, cz, xsf="sc1", PFD=3, PD=1, lf='sc1', allp=False, pbar=False, x4=False, dx=False, sb=None, PFN=5, PFR=(99, 0), BL0=8, BLX=None, ldb=None):
    p = Prog()
    KVR, NUM, TL, ACC, XR = 16, 112, 144, 152, 232
    aPQ = 0
    if NT == 5:
        for x in wo_loads(range(3, 5))[9:]: p.ext(x)
    p(f"""s_lshl_b32 s19, s16, 3
s_mul_i32 s20, s19, 2560
s_add_u32 s20, s20, {KV}{lay('s20')}
s_lshl_b32 s21, s17, 5
s_add_u32 s21, s21, s19
s_lshl_b32 s22, s21, 8
s_lshl_b32 s21, s21, 10
s_add_u32 s21, s21, {PQ16}{lay('s21')}
s_add_u32 s22, s22, {PQ4}{lay('s22')}
v_lshlrev_b32 v4, 3, v2
v_lshlrev_b32 v5, 2, v2
v_and_b32 v6, 24, v2
v_cmp_eq_u32 vcc, 24, v6
v_mov_b32 v6, 0x40000000
v_cndmask_b32 v12, v3, v6, vcc
v_cndmask_b32 v4, v4, v6, vcc
v_add_u32 v6, 4096, v3
s_mul_i32 s25, s17, 36864
s_lshl_b32 s26, s18, 11
s_add_u32 s25, s25, s26
s_lshl_b32 s26, s16, 9
s_add_u32 s25, s25, s26{lay('s25')}
s_add_u32 s26, s25, {XF}
s_add_u32 s27, s25, {X1F}
v_and_b32 v8, 31, v2
v_lshlrev_b32 v8, 4, v8
v_lshrrev_b32 v9, 5, v2
v_lshl_add_u32 v8, v9, 3, v8
v_add_u32 v9, 4096, v8
v_add_u32 v10, 8192, v8""")
    if x4:
        p("""v_and_b32 v246, 31, v2
v_lshrrev_b32 v247, 5, v2
v_lshlrev_b32 v8, 4, v246
v_lshl_add_u32 v8, v247, 11, v8
v_add_u32 v9, 4096, v8""")
        if dx:
            p(f"""s_mul_i32 s31, s17, 36864
s_lshl_b32 s32, s18, 6
s_add_u32 s31, s31, s32
s_lshl_b32 s32, s16, 4
s_add_u32 s31, s31, s32
s_cmp_eq_u32 s63, 0
s_cselect_b32 s26, s31, s26
s_cselect_b32 s31, 1152, 16
s_cselect_b32 s32, 64, 2048
v_mul_u32_u24 v246, s31, v246
v_mul_u32_u24 v13, s32, v247
v_lshl_add_u32 v247, v247, 3, v246
v_add_u32 v246, v246, v13
s_lshl_b32 s32, s32, 1
s_add_u32 s31, s26, s32
s_add_u32 s32, s31, s32""")
    for h in range(8): p(f"v_accvgpr_write_b32 a{aPQ+6*h+5}, 0")
    for g in range(1, 4):
        p(f"""s_add_u32 s28, s16, {g}
s_and_b32 s28, s28, 3
s_mul_i32 s28, s28, {3*NT*1024}
s_add_u32 s28, s28, {(g-1)*NT*1024}
v_add_u32 v{242+g}, s28, v3""")
    p(f"s_mul_i32 s28, s16, {3*NT*1024}\nv_add_u32 v14, s28, v3")
    p(f"s_lshl_b32 s28, s17, 8\ns_add_u32 s28, s28, {ST}{lay('s28')}")
    p.ext(cz[1])
    p(f"s_lshr_b32 s67, s17, 1\ns_lshl_b32 s67, s67, 2\ns_add_u32 s67, s67, s16\ns_lshl_b32 s67, s67, 7\ns_add_u32 s67, s67, {CNT + REP['bc'][0]}{lay('s67')}")
    pf = list(cz[3])
    if not allp and not pbar:
        for x in pf[:3]: p.ext(x)
    p(f"""s_lshl_b32 s29, s16, 10
s_bfe_u32 s30, s2, {('0x40003', '0x30000', '0x40000')[RAB[0]]}
s_lshl_b32 s30, s30, 12
s_add_u32 s29, s29, s30
s_add_u32 s29, s29, {CNT + CAB}{lay('s29')}
v_lshlrev_b32 v7, 7, v2
s_mov_b32 s49, 0x40000""")
    if allp:
        p(f"s_waitcnt vmcnt(0)\ns_cmp_eq_u32 s16, 0\ns_cbranch_scc0 L_ab{NT}_go")
        p(spin(f"ab{NT}", 29, 7, 250, 32, 8, PD)); p("s_barrier")
    elif sb is not None:
        p(f"s_cmp_eq_u32 s16, 0\ns_cbranch_scc0 L_ab{NT}_go")
        p(spin(f"ab{NT}", 29, 7, 250, 16, 16, PD) if A2[0] == 1 else spin(f"ab{NT}", 29, 7, 250, 32, 8, PD)); p("s_barrier")
    else: p(spin(f"ab{NT}", 29, 7, 250, 8, 8, PD))
    if sb is None: p.ins.append(I("s_nop 0", tag='__clr'))
    p(nst('b_go'))
    def hld(h):
        k = KVR + 12*h; q = aPQ + 6*h
        L = f"""buffer_load_dwordx4 v[{k}:{k+3}], v12, s[8:11], s20 offen {lf}
buffer_load_dwordx4 v[{k+4}:{k+7}], v12, s[8:11], s20 offen offset:1024 {lf}
buffer_load_dwordx2 v[{k+8}:{k+9}], v4, s[8:11], s20 offen offset:2048 {lf}
buffer_load_dwordx4 a[{q}:{q+3}], v{(3,6)[h//4]}, s[8:11], s21 offen offset:{(h%4)*1024} {lf}
buffer_load_dword a{q+4}, v5, s[8:11], s22 offen offset:{h*256} {lf}""".split("\n")
        L = [[x] for x in L]
        if h < 7: L[2].append("s_addk_i32 s20, 2560")
        return L
    xld = []
    if x4:
        for u in range(2): xld.append([f"buffer_load_dwordx4 v[{XR+4*u}:{XR+4*u+3}], " + (f"v246, s[12:15], s{(26, 31)[u]}" if dx else f"v{8+u}, s[8:11], s26") + f" offen {lf}"])
        if NT == 5: xld.append([f"buffer_load_dwordx2 v[{XR+8}:{XR+9}], " + ("v247, s[12:15], s32" if dx else "v10, s[8:11], s26") + f" offen {lf}"])
    else:
        for t in range(NT): xld.append([f"buffer_load_dwordx2 v[{XR+2*t}:{XR+2*t+1}], v{8 + t//2}, s[8:11], s26 offen offset:{(t%2)*2048} {lf}"])
    for h in range(BL0):
        for x in hld(h): p.ext(x)
    if BLX is None: BLX = 8 - BL0
    if BL0 == 8:
        for x in xld: p.ext(x)
    def prep(h):
        k = KVR + 12*h; q = aPQ + 6*h; n = NUM + 16*(h % 2)
        L = [f"v_cvt_pk_bf16_f32 v{k+i}, v{k+2*i}, v{k+2*i+1}" for i in range(5)]
        L.append(f"v_mov_b32 v{k+5}, 0")
        L.append(f"v_mfma_f32_32x32x16_bf16 v[{n}:{n+15}], v[{k}:{k+3}], a[{q}:{q+3}], 0")
        L.append(f"v_mfma_f32_32x32x8_bf16 v[{n}:{n+15}], v[{k+4}:{k+5}], a[{q+4}:{q+5}], v[{n}:{n+15}]")
        return L
    def post(h):
        n = NUM + 16*(h % 2); o = KVR + 12*h + 8
        L = [f"v_add_f32 v11, 0x358637bd, v{n+10}", "v_rcp_f32 v11, v11"]
        for i in range(10): L.append(f"v_mul_f32 v{n+i}, v{n+i}, v11")
        for i in range(4): L.append(f"v_cvt_pk_bf16_f32 v{o+i}, v{n+2*i}, v{n+2*i+1}")
        L.append(f"v_cvt_pk_bf16_f32 v{TL + h//2 + 4*(h%2)}, v{n+8}, v{n+9}")
        return L
    def gemm(ks):
        o = KVR + 12*ks + 8 if ks < 8 else TL
        G = []
        for t in range(NT):
            r = aWOr(ks, t); a = ACC + 16*t
            c = "0" if ks == 0 else f"v[{a}:{a+15}]"
            G.append([f"v_mfma_f32_32x32x16_bf16 v[{a}:{a+15}], a[{r}:{r+3}], v[{o}:{o+3}], {c}"])
        return G
    flat = lambda L: [y for x in L for y in (x if isinstance(x, list) else [x])]
    for st in range(11):
        ks = st - PFD
        nl = pf[3 + PFN*ks: 3 + PFN*(ks + 1)] if ks >= 0 else []
        if BL0 < 8: nl = (hld(st + BL0) if st + BL0 < 8 else []) + (xld if st == BLX else []) + nl
        if (allp or pbar) and ks == -1: nl = pf[:3]
        if pbar and ks == -1: p('s_barrier')
        p(nst(f'b_s{st}'))
        if st == ldb:
            m_, ool_ = kq.late_dmas_uni(va=250, vd=253)
            p.ext([x.replace('L_lu', f'L_lu{NT}') for x in m_]); OOL.append(ool_.replace('L_lu', f'L_lu{NT}'))
        if st < 8: p.ext(prep(st))
        fill = post(st - 1) if 0 <= st - 1 < 8 else []
        if st == 9: fill = [f"v_permlane32_swap_b32 v{TL+i}, v{TL+4+i}" for i in range(4)]
        if nl:
            m = []; step = max(1, len(fill) // len(nl)) if fill else 1; fi = 0
            for x in nl:
                m.append(x); m += fill[fi:fi+step]; fi += step
            fill = m + fill[fi:]
        if st >= 2: p.ext(interleave(gemm(st - 2), fill))
        else: p.ext(flat(fill))
    rest = pf[3 + PFN*(10 - PFD + 1):]
    r0, r1, r2 = rest[:PFR[0]], rest[PFR[0]:PFR[0] + PFR[1]], rest[PFR[0] + PFR[1]:]
    p(nst('b_gemm'))
    p.ext(interleave([[f"ds_write_b128 v{242+g}, v[{ACC + 16*t + 4*g}:{ACC + 16*t + 4*g + 3}] offset:{t*1024}"] for t in range(NT) for g in range(1, 4)], r0))
    p("s_waitcnt lgkmcnt(0)")
    p(nst('b_w'))
    p("s_barrier")
    p(nst('b_bar'))
    RD = KVR
    for t in range(NT):
        for g in range(3):
            r = RD + 12*t + 4*g
            p(f"ds_read_b128 v[{r}:{r+3}], v14 offset:{(g*NT + t)*1024}")
    for x in r1: p.ext(x)
    p("v_mov_b32 v15, 0\nv_mov_b32 v11, 0")
    swp = lambda u: f"v_permlane32_swap_b32 v{XR+4*u}, v{XR+4*u+2}\nv_permlane32_swap_b32 v{XR+4*u+1}, v{XR+4*u+3}"
    if x4:
        for u in range(2): p(swp(u))
    for t in range(NT):
        a = ACC + 16*t; x = XR + 2*t; u = a + 4
        p(f"v_lshlrev_b32 v{u}, 16, v{x}\nv_and_b32 v{u+1}, 0xffff0000, v{x}\nv_lshlrev_b32 v{u+2}, 16, v{x+1}\nv_and_b32 v{u+3}, 0xffff0000, v{x+1}")
        for i in range(4): p(f"v_add_f32 v{a+i}, v{a+i}, v{u+i}")
    for t in range(NT):
        a = ACC + 16*t; r = RD + 12*t; x = XR + 2*t
        for i in range(4): p(f"v_add_f32 v{a+i}, v{a+i}, v{r+i}")
        for i in range(4): p(f"v_add_f32 v{r+4+i}, v{r+4+i}, v{r+8+i}")
        for i in range(4): p(f"v_add_f32 v{a+i}, v{a+i}, v{r+4+i}")
        p(f"v_cvt_pk_bf16_f32 v{x}, v{a}, v{a+1}\nv_cvt_pk_bf16_f32 v{x+1}, v{a+2}, v{a+3}")
        if not x4 or t == 4: p(f"buffer_store_dwordx2 v[{x}:{x+1}], v{8 + t//2}, s[8:11], s27 offen offset:{(t%2)*2048} {xsf}")
        elif t % 2: p(swp(t//2)); p(f"buffer_store_dwordx4 v[{x-2}:{x+1}], v{8 + t//2}, s[8:11], s27 offen {xsf}")
    p(nst('b_x1'))
    for t in range(NT):
        a = ACC + 16*t; x = XR + 2*t; u = a + 4
        p(f"v_lshlrev_b32 v{u}, 16, v{x}\nv_and_b32 v{u+1}, 0xffff0000, v{x}\nv_lshlrev_b32 v{u+2}, 16, v{x+1}\nv_and_b32 v{u+3}, 0xffff0000, v{x+1}")
        for i in range(4): p(f"v_add_f32 v15, v15, v{u+i}\nv_fmac_f32 v11, v{u+i}, v{u+i}")
    p(f"""v_permlane32_swap_b32 v15, v11
v_add_f32 v15, v15, v11
buffer_atomic_add_f32 v15, v5, s[8:11], s28 offen
v_lshlrev_b32 v4, 14, v2
v_mov_b32 v6, 1
{nst('b_st')}
s_waitcnt vmcnt(0)
s_mov_b64 exec, {(1 << REP['bc'][1]) - 1}
buffer_atomic_add v6, v4, s[8:11], s67 offen
s_mov_b64 exec, -1""")
    p(nst('b_sig'))
    for x in r2: p.ext(x)
    if NT == 5: p("s_branch L_bc_c")
    return p.finish(), ''

def w_mid():
    L = f"""s_cmp_eq_u32 s63, 0
s_cbranch_scc0 L_wm_skip
{a_head1()}
s_mul_i32 s52, s52, 73728
s_add_u32 s52, s52, {WQF}
s_mul_i32 s53, s16, 18432
s_add_u32 s52, s52, s53
s_mov_b32 m0, s53""".split("\n")
    for k in range(5):
        if k: L += [f"s_add_u32 m0, s53, {k*4096}", "s_addk_i32 s52, 4096"]
        L += ["s_nop 0"] + [f"buffer_load_dwordx4 v3, s[8:11], s52 offen offset:{i*1024} {HF[0]} lds" for i in range(4 if k < 4 else 2)]
    return L

def w_early():
    L = f"""s_cmp_eq_u32 s63, 0
s_cbranch_scc0 L_we_skip
s_and_b32 s52, s2, 3
s_lshl_b32 s52, s52, 3
s_lshr_b32 s53, s2, 5
s_add_u32 s52, s52, s53
s_mul_i32 s52, s52, 73728
s_add_u32 s52, s52, {WQF}
s_sub_u32 s53, s16, 1
s_mul_i32 s53, s53, 24576
s_add_u32 s52, s52, s53
s_mov_b32 m0, s53""".split("\n")
    for k in range(6):
        if k: L += [f"s_add_u32 m0, s53, {k*4096}", "s_addk_i32 s52, 4096"]
        L += ["s_nop 0"] + [f"buffer_load_dwordx4 v3, s[8:11], s52 offen offset:{i*1024} lds ; @" for i in range(4)]
    return L + ["L_we_skip:", "s_branch L_cd_go"]

def d_part(sf="sc1", lf="sc1", PD=1, we=True, p0=False, dx=False, wk=False, two=None, peek=False, pre=False, late=False, own=False, xl=False, three=None, xlate=False):
    p = Prog()
    PL, XL, BL, X, U = 32, 112, 124, 136, 160
    LX = LXD if A2[0] else 131072
    p(f"""s_lshr_b32 s20, s17, 2
s_lshl_b32 s21, s18, 1
s_add_u32 s20, s20, s21
s_and_b32 s21, s17, 3
s_mul_i32 s22, s20, 36864
s_lshl_b32 s23, s21, 7
s_add_u32 s22, s22, s23
s_add_u32 s22, s22, s63
s_lshl_b32 s24, s20, 8
s_lshl_b32 s25, s21, 5
s_add_u32 s24, s24, s25
s_add_u32 s24, s24, {ST}
s_add_u32 s24, s24, s63
s_lshl_b32 s25, s20, 5
s_lshl_b32 s26, s21, 3
s_add_u32 s25, s25, s26
s_mul_i32 s25, s25, 1152
s_lshl_b32 s26, s18, 9
s_add_u32 s26, s26, {CNT + REP['cd'][0]}
s_add_u32 s26, s26, s63
s_lshl_b32 s36, s16, 7
s_add_u32 s36, s36, s26
s_and_b32 s27, s2, {REP['cd'][1] - 1}
s_lshl_b32 s27, s27, 14
s_add_u32 s26, s26, s27
v_and_b32 v4, 7, v0
v_lshrrev_b32 v5, 3, v0
v_lshlrev_b32 v6, 9, v5
v_lshl_add_u32 v6, v4, 4, v6
v_add_u32 v7, {8192 if two else 16384}, v6
v_lshrrev_b32 v8, 2, v5
v_lshlrev_b32 v8, 9, v8
v_lshl_add_u32 v8, v4, 4, v8
v_and_b32 v9, 3, v5
v_lshl_add_u32 v8, v9, 2, v8
v_add_u32 v8, 32768, v8
v_lshlrev_b32 v9, 4, v5
v_lshlrev_b32 v10, 2, v5
v_lshlrev_b32 v11, 2, v4
s_add_u32 s27, s22, {X1F}""")
    B0, O1 = (18, 256) if two else (9, 512)
    md = two[2] if two else None
    B1 = 9
    if md:
        B1, O1 = 18, 128
        p(f"""s_cmp_eq_u32 s16, 0
s_cselect_b32 s37, 2, 3
s_cmp_eq_u32 s16, 2
s_cselect_b32 s37, -2, s37
s_lshl_b32 s37, s37, 7
v_add_u32 v18, s37, v9
s_lshl_b32 s37, s37, 5
v_add_u32 v6, s37, v6
v_add_u32 v7, 4096, v6""")
    elif two:
        p(f"""s_lshr_b32 s37, s16, 1
s_lshl_b32 s37, s37, 9
v_add_u32 v18, s37, v9
s_lshl_b32 s37, s37, 5
v_add_u32 v6, s37, v6""")
    if two:
        p(f"""s_lshl_b32 s37, s18, 9
s_add_u32 s37, s37, {CNT + two[0]}
s_add_u32 s37, s37, s63""")
        if two[1] > 1: p(f"s_and_b32 s49, s2, {two[1] - 1}\ns_lshl_b32 s49, s49, 14\ns_add_u32 s37, s37, s49")
    srd(p, 12, 40, 1152)
    p(f"""buffer_load_dword v24, v11, s[8:11], s24 offen sc1
buffer_load_dword v25, v11, s[8:11], s24 offen offset:128 sc1""")
    if not xl: p(f"""buffer_load_dwordx4 v[{XL}:{XL+3}], v6, s[8:11], s27 offen sc1
buffer_load_dwordx4 v[{XL+4}:{XL+7}], v7, s[8:11], s27 offen sc1
buffer_load_dword v{XL+8}, v8, s[8:11], s27 offen sc1""")
    p(f"""buffer_load_dwordx4 v[{BL}:{BL+3}], v{B0}, s[12:15], 0 offen
buffer_load_dwordx4 v[{BL+4}:{BL+7}], v{B1}, s[12:15], 0 offen offset:{O1}
buffer_load_dword v{BL+8}, v10, s[12:15], 0 offen offset:1024
v_lshlrev_b32 v12, 14, v2
v_mov_b32 v13, 1
s_mov_b32 s49, 0x40000""")
    ldr = lambda r: [f"buffer_load_dwordx4 v[{PL+32*r+4*j}:{PL+32*r+4*j+3}], v{6+r}, s[8:11], s{28+j} offen {lf}" if r < 2 else f"buffer_load_dword v{PL+64+j}, v8, s[8:11], s{28+j} offen {lf}" for j in range(1 if own else 0, 8)]
    NA = 14 if own else 16
    def ptrs():
        for j in range(8):
            if not own: p(f"s_add_u32 s{28+j}, s22, {PART + j*ACT}")
            elif j: p(f"s_add_u32 s{28+j}, s17, {j}\ns_and_b32 s{28+j}, s{28+j}, 7\ns_mul_i32 s{28+j}, s{28+j}, {ACT}\ns_add_u32 s{28+j}, s{28+j}, s28")
            else: p(f"s_add_u32 s28, s22, {PART}\ns_lshr_b32 s29, s17, 2\ns_mul_i32 s29, s29, 36864\ns_add_u32 s29, s29, s23\ns_add_u32 s29, s29, 73728\nv_add_u32 v20, s29, v6\nv_add_u32 v21, s29, v7\nv_add_u32 v28, s29, v8")
    OWN = [f"ds_read_b128 v[{PL}:{PL+3}], v20", f"ds_read_b32 v{PL+64}, v28", f"ds_read_b128 v[{PL+32}:{PL+35}], v21"] if own else []
    LDS_ = ldr(0) + ldr(2) + ldr(1) if two and not md else ldr(0) + ldr(1) + ldr(2)
    SIG = f"""s_mov_b64 exec, {(1 << REP['cd'][1]) - 1}
buffer_atomic_add v13, v12, s[8:11], s36 offen
s_mov_b64 exec, -1
v_lshlrev_b32 v12, 7, v2"""
    if own: assert two and late and not md and not peek
    if peek or late: ptrs()
    if xl:
        assert own and pre
        p(f"v_subrev_u32 v29, 73728, v20\nv_subrev_u32 v30, 73728, v21\nv_subrev_u32 v31, 73728, v28\nds_read_b128 v[{XL}:{XL+3}], v29\nds_read_b128 v[{XL+4}:{XL+7}], v30\nds_read_b32 v{XL+8}, v31")
    if own: p("s_waitcnt lgkmcnt(0)")
    if peek:
        p(kq.off("\n".join(["s_waitcnt vmcnt(12)", "s_mov_b64 exec, 15", "v_cmp_gt_u32 vcc, 8, v23", "s_mov_b64 exec, -1", "s_nop 3", "s_cbranch_vccnz L_ca_slow"] + LDS_[:16] +
                           ["s_waitcnt vmcnt(24)", SIG, "s_barrier", "s_branch L_ca_m", "L_ca_slow:"])))
        p("s_waitcnt vmcnt(8)\n" + SIG)
        p("s_cmp_eq_u32 s16, 0\ns_cbranch_scc0 L_ca_go")
        sp = spin("ca", 37, 12, 250, 4, 8, PD).split("\n")
        p("\n".join(sp[:-1]))
        p(kq.off("\n".join(LDS_[:16] + ["s_barrier", "s_branch L_ca_m"])))
        p(sp[-1])
        p("s_barrier")
        p.ext(LDS_[:16])
        p("L_ca_m:")
    elif three:
        p(f"s_add_u32 s39, s37, {three[0] - two[0]}\nv_lshlrev_b32 v22, 7, v2\ns_mov_b64 exec, 15\nbuffer_load_dword v23, v22, s[8:11], s39 offen sc1\ns_mov_b64 exec, -1\ns_waitcnt vmcnt(%d)\n" % (6 if xl else 9) + SIG)
    elif pre:
        p("v_lshlrev_b32 v22, 7, v2\ns_mov_b64 exec, 15\nbuffer_load_dword v23, v22, s[8:11], s37 offen sc1\ns_mov_b64 exec, -1\ns_waitcnt vmcnt(%d)\n" % (6 if xl else 9) + SIG)
    else: p("s_waitcnt vmcnt(8)\n" + SIG)
    p(nst('d_sig'))
    nd = [4, 4, 1]
    def precomp():
        p(f"""v_mul_f32 v24, 0x3ae38e39, v24
v_mul_f32 v25, 0x3ae38e39, v25
v_fma_f32 v25, -v24, v24, v25
v_max_f32 v25, 0, v25
v_mov_b32 v26, 0x3f800054
v_mov_b32 v27, 0x2edbe6ff
v_fma_f32 v25, v25, v26, v27
v_rsq_f32 v25, v25
v_mov_b32 v14, 0x3f80
v_mov_b32 v15, 0x3f800000
v_mul_u32_u24 v16, 1152, v4
v_add_u32 v17, v16, v10
v_add_u32 v19, v16, v{B1}
v_add_u32 v18, v16, v{B0}""")
        for r in range(3):
            for i in range(nd[r]):
                x = XL + 4*r + i; b = BL + 4*r + i; u = U + 8*r + 2*i
                p(f"v_lshlrev_b32 v{u}, 16, v{x}\nv_and_b32 v{u+1}, 0xffff0000, v{x}\nv_lshlrev_b32 v{x}, 16, v{b}\nv_and_b32 v{b}, 0xffff0000, v{b}")
                p(f"v_add_f32 v{u}, v{u}, v{x}\nv_add_f32 v{u+1}, v{u+1}, v{b}")
    if not late: precomp()
    if not peek and not late:
        for j in range(8): p(f"s_add_u32 s{28+j}, s22, {PART + j*ACT}")
    if we == 1:
        p("s_cmp_eq_u32 s16, 0\ns_cbranch_scc1 L_cd_w0")
        p.ext(w_early()); p("L_cd_w0:")
    elif wk: p("s_cmp_eq_u32 s16, 0\ns_cbranch_scc1 L_cd_w0\n" + walk('wd', 1, 3) + "\ns_branch L_cd_go\nL_cd_w0:")
    elif not two or peek: p("s_cmp_eq_u32 s16, 0\ns_cbranch_scc0 L_cd_go")
    if md == 'own':
        p("s_cmp_lt_u32 s16, 2\ns_cselect_b32 s26, s26, s37")
        p(spin("cd", 26, 12, 250, 4, 8, PD))
        p(nst('d_go'))
        p.ext(LDS_)
    elif md == 'bar':
        p("s_cmp_eq_u32 s16, 0\ns_cbranch_scc0 L_ca_go")
        p(spin("ca", 37, 12, 250, 4, 8, PD))
        p("s_barrier")
        p(nst('d_ga'))
        p("s_cmp_lt_u32 s16, 2\ns_cbranch_scc1 L_cd_w0")
        p(kq.off("\n".join(LDS_ + ["s_barrier", "s_branch L_cd_ld"])))
        p("L_cd_w0:\ns_cmp_eq_u32 s16, 0\ns_cbranch_scc0 L_cd_go")
        p(spin("cd", 26, 12, 250, 4, 8, PD))
        p("s_barrier")
        p(nst('d_go'))
        p.ext(LDS_)
        p("L_cd_ld:")
    elif three:
        n7 = NA // 2
        LDS_ = ldr(2) + ldr(0) + ldr(1)
        p("s_cmp_eq_u32 s16, 0\ns_cbranch_scc0 L_c1_go")
        p(kq.off("s_waitcnt vmcnt(1)\ns_mov_b64 exec, 15\nv_cmp_gt_u32 vcc, 8, v23\ns_nop 4\ns_cbranch_vccz L_c1_ok"))
        p(spin("c1", 39, 12, 250, 4, 8, PD))
        p("s_barrier")
        p(nst('d_g1'))
        p("s_cmp_lt_u32 s16, 2\ns_cbranch_scc1 L_c1_lo")
        p(kq.off("\n".join(ldr(0) + ldr(2) + ["s_barrier", "s_branch L_cd_w0", "L_c1_lo:"])))
        p.ext(LDS_[:n7])
        p("s_cmp_eq_u32 s16, 0\ns_cbranch_scc0 L_ca_go")
        p(spin("ca", 37, 12, 250, 4, 8, PD))
        p("s_barrier")
        p(nst('d_ga'))
        p.ext(LDS_[n7:NA])
        p("L_cd_w0:"); p.ext(OWN); precomp(); p("s_waitcnt lgkmcnt(0)" if own else ""); p("s_cmp_eq_u32 s16, 0\ns_cbranch_scc0 L_cd_go")
    elif two and not peek:
        p("s_cmp_eq_u32 s16, 0\ns_cbranch_scc0 L_ca_go")
        if pre: p(kq.off("s_waitcnt vmcnt(1)\ns_mov_b64 exec, 15\nv_cmp_gt_u32 vcc, 8, v23\ns_nop 4\ns_cbranch_vccz L_ca_ok"))
        sp = spin("ca", 37, 12, 250, 4, 8, PD).split("\n")
        p("\n".join(sp[:-1]))
        p(kq.off("\n".join(LDS_[:NA] + ["s_barrier", "s_branch L_cd_w0"])))
        p(sp[-1])
        p("s_barrier")
        p(nst('d_ga'))
        p.ext(LDS_[:NA])
        if late:
            p("L_cd_w0:"); p.ext(OWN); precomp(); p("s_waitcnt lgkmcnt(0)" if own else ""); p("s_cmp_eq_u32 s16, 0\ns_cbranch_scc0 L_cd_go")
        else: p("s_branch L_cd_go\nL_cd_w0:")
    if not md:
        p(spin("cd", 26, 12, 250, 4, 8, PD))
        p("s_barrier")
        p(nst('d_go'))
        p.ext(LDS_[NA:] if two else LDS_)
    def sums(p):
        for r in ((0, 2, 1) if two and not md else range(3)):
            src = lambda j, i: PL + 32*r + 4*j + i if r < 2 else PL + 64 + j
            for i in range(nd[r]): p(f"v_lshlrev_b32 v{X+8*r+2*i}, 16, v{src(0, i)}\nv_and_b32 v{X+8*r+2*i+1}, 0xffff0000, v{src(0, i)}")
            for j in range(1, 8):
                for i in range(nd[r]): p(f"v_dot2c_f32_bf16 v{X+8*r+2*i}, v{src(j, i)}, v14\nv_dot2c_f32_bf16 v{X+8*r+2*i+1}, v{src(j, i)}, v15")
            for i in range(2*nd[r]): p(f"v_fma_f32 v{X+8*r+i}, v{X+8*r+i}, v25, v{U+8*r+i}")
            for i in range(nd[r]): p(f"v_cvt_pk_bf16_f32 v{PL+32*r+i}, v{X+8*r+2*i}, v{X+8*r+2*i+1}")
    if we == 2:
        p.ext(w_mid2() if A2[0] else w_mid())
        n0 = len(p.ins); sums(p)
        p("s_branch L_cd_mid\nL_wm_skip:")
        q = Prog()
        q.ext(LDS_)
        sums(q); q.resolve_waits()
        for i in q.ins[len(LDS_):]: i.text += " ; @"
        p.ins += q.ins[len(LDS_):]
    else: sums(p)
    O = [PL, PL + 32, PL + 64]
    p(nst('d_use'))
    if we != 2: p("s_cmp_eq_u32 s63, 0\ns_cbranch_scc1 L_cd_mid")
    srd(p, 12, 42, ACT)
    p(f"""buffer_store_dwordx4 v[{O[0]}:{O[0]+3}], v18, s[12:15], s25 offen {sf}
buffer_store_dwordx4 v[{O[1]}:{O[1]+3}], v19, s[12:15], s25 offen offset:{O1} {sf}
buffer_store_dword v{O[2]}, v17, s[12:15], s25 offen offset:1024 {sf}""")
    if p0:
        srd(p, 36, 6, 256)
        p('''s_or_b32 s60, s2, s16
s_cmp_eq_u32 s60, 0
s_cbranch_scc0 L_d_nt
v_mov_b32 v20, 0
s_mov_b64 exec, 1
buffer_store_dword v20, v20, s[36:39], 0 offen sc1 ; @
s_mov_b64 exec, -1
L_d_nt:''')
    if SC.sel: p("s_waitcnt vmcnt(0) ; @"); p(nst('d_end')); nst_dump(p, 'd2')
    p("s_endpgm\nL_cd_mid:")
    p(f"""s_add_u32 s27, s22, {XF + LS}
s_add_u32 s28, s22, {YF + LS}""")
    XST = f"""buffer_store_dwordx4 v[{O[0]}:{O[0]+3}], v6, s[8:11], s27 offen {sf}
buffer_store_dwordx4 v[{O[1]}:{O[1]+3}], v7, s[8:11], s27 offen {sf}
buffer_store_dword v{O[2]}, v8, s[8:11], s27 offen {sf}"""
    if not xlate: p(XST)
    XS = []
    for r in range(3):
        for i in range(nd[r]):
            p(f"v_lshlrev_b32 v{X+8*r+2*i}, 16, v{O[r]+i}\nv_and_b32 v{X+8*r+2*i+1}, 0xffff0000, v{O[r]+i}")
            XS += [X+8*r+2*i, X+8*r+2*i+1]
    p(f"v_add_f32 v24, v{XS[0]}, v{XS[1]}\nv_add_f32 v26, v{XS[2]}, v{XS[3]}\nv_mul_f32 v25, v{XS[0]}, v{XS[0]}\nv_mul_f32 v27, v{XS[1]}, v{XS[1]}")
    for k, x in enumerate(XS[4:]): p(f"v_add_f32 v{24 + 2*(k%2)}, v{24 + 2*(k%2)}, v{x}")
    for k, x in enumerate(XS[2:]): p(f"v_fmac_f32 v{25 + 2*(k%2)}, v{x}, v{x}")
    p(f"""v_add_f32 v24, v24, v26
v_add_f32 v25, v25, v27
v_permlane32_swap_b32 v24, v25
v_add_f32 v24, v24, v25
v_mov_b32 v25, v24
v_permlane16_swap_b32 v24, v25
v_add_f32 v24, v24, v25
v_add_f32 v24, v24, v24 row_ror:8
v_bfe_u32 v27, v0, 5, 1
v_lshl_add_u32 v27, v4, 1, v27
v_lshlrev_b32 v27, 4, v27
s_lshl_b32 s29, s16, 2
s_add_u32 s29, s29, {LX}
v_add_u32 v27, s29, v27
v_and_b32 v28, 24, v0
v_cmp_eq_u32 vcc, 0, v28
s_and_saveexec_b64 s[30:31], vcc
ds_write_b32 v27, v24
s_mov_b64 exec, -1
v_lshlrev_b32 v27, 5, v4
v_add_u32 v27, {LX}, v27
s_lshr_b32 s29, s18, {1 if A2[0] else 2}
s_lshl_b32 s29, s29, {3 if A2[0] else 4}
s_and_b32 s36, s18, {1 if A2[0] else 3}
s_add_u32 s29, s29, s36
s_lshl_b32 s29, s29, 7
s_add_u32 s29, s29, {CNT + LS + CDA}""")
    if not we: p(A_MAP); p(A_WS)
    p(f"""s_waitcnt lgkmcnt(0)
s_barrier
ds_read_b128 v[20:23], v27
ds_read_b128 v[28:31], v27 offset:16
v_add_f32 v20, v20, v21
v_add_f32 v22, v22, v23
v_add_f32 v28, v28, v29
v_add_f32 v30, v30, v31
v_add_f32 v20, v20, v22
v_add_f32 v28, v28, v30
v_mul_f32 v20, 0x3ae38e39, v20
v_mul_f32 v28, 0x3ae38e39, v28
v_fma_f32 v28, -v20, v20, v28
v_max_f32 v28, 0, v28
v_add_f32 v28, 0x3727c5ac, v28
v_rsq_f32 v28, v28""")
    for x in XS: p(f"v_sub_f32 v{x}, v{x}, v20")
    for x in XS: p(f"v_mul_f32 v{x}, v{x}, v28")
    for k in range(9): p(f"v_cvt_pk_bf16_f32 v{U+k}, v{XS[2*k]}, v{XS[2*k+1]}")
    p(f"""buffer_store_dwordx4 v[{U}:{U+3}], v6, s[8:11], s28 offen {sf}
buffer_store_dwordx4 v[{U+4}:{U+7}], v7, s[8:11], s28 offen {sf}
buffer_store_dword v{U+8}, v8, s[8:11], s28 offen {sf}""")
    if not we:
        for c in range(9): p.ext(a_wchunk(c))
    if xlate == 1: p(XST)
    p(f"""v_lshlrev_b32 v12, {8 if A2[0] else 9}, v2
s_waitcnt vmcnt({(3 if xlate == 1 else 0) if we else 18})
s_barrier
s_cmp_eq_u32 s16, 0
s_cbranch_scc0 L_da_ns
s_mov_b64 exec, 15
buffer_atomic_add v13, v12, s[8:11], s29 offen
s_mov_b64 exec, -1
L_da_ns:""")
    if xlate == 2: p(XST)
    p(nst('d_end')); nst_dump(p, 'd1')
    if dx: srd(p, 12, 4, WSSZ)
    p(f"s_mov_b32 s63, {LS}\ns_branch L_a1")
    return p.finish()

def late_out(**kw):
    q = Prog(); q(kq.late_st('lo', uni=False, **kw)[0])
    return kq.late_pre(run=False, split=kw.get('split', False)) + q.finish()

def main_kernel(a={}, b={}, c={}, d={}, bk=0, side=None, p0=None, hf='sc1', sfl={}, a0={}, p2=None):
    assert NEW
    BK[0] = bk
    A2[0] = kq.A2[0] = (2 if a.get('c32') else 1) if a.get('v2') else 0
    ap = a2_part if A2[0] else a_part
    b = dict(b); REP.update(b.pop('rep', {})); c = dict(c, bcrep=REP['bc'])
    a = dict(a); AM1[0] = a.pop('am1', 0); RAB[:] = a.pop('rab', (0, 0))
    HF[0] = hf if p0 is not None else ''
    if p0 is not None: b = dict(b, pbar=True); d = dict(d, p0=True); c = dict(c, wfl=hf)
    if p2 is not None: HF[0] = hf; b = dict(b, x4=True, dx=True, sb=p2.get('s', {})); d = dict(d, p0=True, dx=True); c = dict(c, wfl=hf, f3=p2.get('f', {}))
    if d.get('two'): c = dict(c, sigA=d['two'][:3]); d = dict(d, two=d['two'][:2] + (d['two'][3] if len(d['two']) > 3 else None,))
    if d.get('we') == 3: a = dict(a, wl=True)
    if c.get('pkA') is not None: d = dict(d, peek=True)
    if d.get('own'): c = dict(c, own=True)
    if d.get('three'): c = dict(c, sigA1=d['three'])
    WK = p2.get('wk', {}) if p2 is not None else {}
    if 'wd' in WK: d = dict(d, wk=True)
    import kc16
    cz = (kc16.c16 if c.pop('m16', 0) else kc.c_kernel)(fused=True, dz=True, rev=True, poll=lambda PD: spin('bc', 65, 4, 250, 4, 8, PD), **c)
    p = Prog()
    p("""s_cmp_lt_u32 s2, 256
s_cbranch_scc1 L_m_go
s_endpgm
L_m_go:
s_load_dwordx2 s[4:5], s[0:1], 80
s_load_dwordx4 s[40:43], s[0:1], 56""")
    if side is not None:
        sp = side_parts(**side); p(sp[0]); a = dict(a, side=sp); b = dict(b, allp=True)
    if p0 is not None or p2 is not None: p(kp.KARGS)
    if SC.sel: p(f"s_memrealtime s[{SC.m['t']}:{SC.m['t']+1}]")
    p(f"""v_lshrrev_b32 v1, 6, v0
v_and_b32 v2, 63, v0
v_readfirstlane_b32 s16, v1
v_lshlrev_b32 v3, 4, v2
s_mov_b32 s63, 0
s_mov_b32 s10, {WSSZ}
s_mov_b32 s11, 0x20000""")
    cp = p2.get('cp', 0) if p2 is not None else 0
    if cp:
        p(f"""s_cmp_eq_u32 s16, {p2.get('cpw', 3)}
s_cbranch_scc0 L_cp_e
s_getpc_b64 s[86:87]
L_cp0:
s_lshr_b32 s60, s2, 3
v_min_u32 v26, {cp - 1}, v2
v_lshlrev_b32 v26, 5, v26
v_add_u32 v26, s60, v26
v_lshlrev_b32 v26, 7, v26
s_mov_b32 s60, L_kend-L_cp0-4
v_min_u32 v26, s60, v26
global_load_dword v25, v26, s[86:87] ; @
L_cp_e:""")
    if p0 is None and p2 is None: p("s_waitcnt lgkmcnt(0)\ns_mov_b32 s8, s4\ns_mov_b32 s9, s5")
    NP1 = a.get('NP1', 36); NPw = a.pop('NPw', 0)
    if p2 is not None:
        a0 = kq.HEAD + kq.crit(**p2.get('c', {})) + kq.loader(**p2.get('l', {})) + "L_a0:\n" + ap(True, p2=p2.get('t', {}), **dict(a, **a0))
    else:
        a0 = a_part(True, **a) if p0 is None else (kp.HEAD + kp.variant('q', **p0) + kp.variant('o', **p0) + "L_a0w1:\n" + a_part(True, p0=('w1',) + kp.side_fill(False, **sfl) + (kp.side_dmas(False) if p0.get('late', 0) < 0 else [],), **dict(dict(SW=(6, 110)), **a, **a0))
        + kp.variant('w2', **p0) + a_part(True, p0=('w2',) + kp.side_fill(True, **sfl) + (kp.side_dmas(True) if p0.get('late', 0) < 0 else [],), **dict(dict(SW=(6, 110)), **a, **a0)))
    body = p.finish() + a0 + "L_a1:\n" + ap(False, **a) + "L_ab:\n" + ab_link(NP1, p2.get('s', {}) if p2 is not None else None, NPw, bool(a.get('ld')), b.get('ldb') is not None)
    b5 = b_part(5, cz, **b); b4 = b_part(4, cz, **b)
    body += b5[0] + b5[1] + b4[1] + "L_b4:\n" + b4[0] + "L_bc_c:\n" + (late_out(**dict(p2.get('o', {}), split='W2' in p2.get('f', {}))) if p2 is not None else '') + cz[0] + d_part(**d) + (cz[4] + "  s_endpgm\n" + "".join(OOL) + ("  s_endpgm\n" if OOL else "") + "L_kend:\n" if p2 is not None else '')
    if WK:
        R = dict(wd=dict(regions=[('L_cd_go', 'L_wm_skip'), ('L_cd_mid', 'L_da_ns'), ('L_a1', 'L_da_poll')], waves=3))
        body = add_pads(body, {n: dict(R[n], step=st) for n, st in WK.items()})
    if p0 is not None or p2 is not None:
        return kernel("interleave_layers__linear_attn_block__mixer_channel_mlp__prompt_kernel", body, vgpr=256, agpr=256), "; @launch grid=(256,1,1) block=(256,1,1) lds=163840\n"
    return kernel("main_kernel", body, vgpr=256, agpr=256), "; @launch kernel=main_kernel grid=(256,1,1) block=(256,1,1) lds=163840\n"
```

```python
from asmlib import *
from layout import *
from k0 import srd

PFL = 0x9800000
FL1 = PFL + 0x4000
LX  = 81920
LC  = LX + 256
CSL = LX + 512
STG = 90112
WB  = WSN*1024
VN  = 160
A2  = [False]
import os
PX  = os.environ.get('PX', '')
TAGL, S80 = 152576, 153600
VS, VT, VO, VOT, VB, C0, C1, VAG, VCS, VONE = range(170, 180)
E   = 184

KARGS = """s_load_dwordx8 s[44:51], s[0:1], 0
s_load_dwordx4 s[52:55], s[0:1], 32
s_load_dwordx2 s[56:57], s[0:1], 48
s_load_dwordx2 s[6:7], s[0:1], 72"""

def off(L):
    return "\n".join(l + " ; @" if l.strip() and not l.strip().endswith(':') else l for l in L.split("\n"))

def wo_idx(i):
    return f"""s_mul_i32 s60, s{i}, 1821
s_lshr_b32 s60, s60, 16
s_mul_i32 s61, s60, 36
s_sub_u32 s61, s{i}, s61
s_mul_i32 s64, s61, 7282
s_lshr_b32 s64, s64, 16
s_mul_i32 s65, s64, 9
s_sub_u32 s65, s61, s65"""

def dest_w1(T, vag):
    return f"""s_mul_i32 s101, s100, 9
s_lshr_b32 s62, s59, 1
s_and_b32 s87, s59, 1
s_lshl_b32 s87, s87, 1
s_lshl_b32 s88, s58, 2
s_add_u32 s87, s87, s88
s_mul_i32 s87, s87, {WB}
s_add_u32 s87, s87, {WSTR}
s_add_u32 s88, s62, 91
s_add_u32 s89, s62, 90
s_add_u32 s96, s62, 163
s_cmp_lt_u32 s59, 4
s_cselect_b32 s60, 5, 4
s_cselect_b32 s61, 3, 2
s_cselect_b32 s62, s62, s88
s_cselect_b32 s96, s89, s96
s_lshl_b32 s61, s61, 10
s_sub_u32 s99, 0, s61
s_cmp_eq_u32 s59, 8
s_cselect_b32 s60, 5, s60
s_cselect_b32 s86, 0, s61
s_cselect_b32 s61, {WB}, s61
s_cselect_b32 s99, s61, s99
s_cselect_b32 s62, 2, s62
s_cselect_b32 s96, 92, s96
s_cselect_b32 s97, {WB}, 0
s_add_u32 s98, s97, {WB}
v_lshrrev_b32 v{T}, 5, v2
v_mul_u32_u24 v{T}, s98, v{T}
v_and_b32 v{vag}, 31, v2
v_lshl_add_u32 v{vag}, v{vag}, 4, v{T}
s_add_u32 s86, s86, s98
s_lshl_b32 s60, s60, 10
s_lshl_b32 s96, s96, 10
s_add_u32 s96, s96, s87
s_lshr_b32 s88, s100, 1
s_lshl_b32 s88, s88, 9
s_add_u32 s96, s96, s88
s_and_b32 s88, s100, 1
s_lshl_b32 s88, s88, 3
s_add_u32 s96, s96, s88
s_add_u32 s97, s97, s96
s_lshl_b32 s62, s62, 10
s_add_u32 s87, s87, s62
s_lshr_b32 s62, s101, 1
s_mul_i32 s62, s62, s60
s_add_u32 s87, s87, s62
s_add_u32 s86, s86, s87
s_and_b32 s101, s101, 1
s_mul_i32 s62, s101, s61
s_add_u32 s87, s87, s62
s_mul_i32 s62, s101, s99
s_add_u32 s86, s86, s62
s_sub_u32 s62, s60, s61
s_sub_u32 s60, s60, s99
s_cmp_eq_u32 s101, 0
s_cselect_b32 s88, s61, s62
s_cselect_b32 s89, s62, s61
s_cselect_b32 s90, s99, s60
s_cselect_b32 s91, s60, s99
s_cmp_lt_u32 s100, 2
s_cselect_b32 s93, 0xffff, 0"""

def tr_addr(T, vt, base, sh):
    return f"""v_and_b32 v{T}, 3, v2
v_bfe_u32 v{T+1}, v2, 4, 1
v_lshl_add_u32 v{T+1}, v{T+1}, 2, v{T}
v_bfe_u32 v{T+2}, v2, 2, 2
v_lshlrev_b32 v{T+2}, 6, v{T+2}
v_lshrrev_b32 v{T}, 5, v2
v_lshl_add_u32 v{T+2}, v{T}, {sh}, v{T+2}
v_lshl_add_u32 v{vt}, v{T+1}, 3, v{T+2}
v_add_u32 v{vt}, {base}, v{vt}"""

def fin_val(c0, c1, f, vb):
    return f"""v_permlane32_swap_b32 v{c0}, v{c1}
v_add_f32 v{c0}, v{c0}, v{c1}
v_cvt_pk_bf16_f32 v{f}, v{c0}, v{c0}
v_and_b32 v{c1}, 0xffff0000, v{f}
v_sub_f32 v{c1}, v{c0}, v{c1}
v_cvt_pk_bf16_f32 v{f+1}, v{c1}, 0
v_and_b32 v{vb}, s93, v{vb}
v_lshl_or_b32 v{f+1}, v{vb}, 16, v{f+1}"""

SRDS = lambda w: f"""s_mov_b32 s44, s54
s_mov_b32 s45, s55
s_mov_b32 s46, {4608*2}
s_mov_b32 s47, 0x20000
s_mov_b32 s64, s{w}
s_mov_b32 s65, s{w+1}
s_mov_b32 s66, {576*4608*2}
s_mov_b32 s67, 0x20000"""

def w2_idx(w):
    return f"""s_lshr_b32 s60, s2, 3
s_sub_u32 s60, s60, 18
s_lshl_b32 s60, s60, 2
s_add_u32 s60, s60, {w}
s_min_u32 s60, s60, 53
s_mul_i32 s88, s60, 7282
s_lshr_b32 s88, s88, 16
s_mul_i32 s61, s88, 9
s_sub_u32 s86, s60, s61"""

def lspin(tag, va, cmp, val, out, vd=20, o=0):
    return "s_mov_b32 s49, 0x400000\n" + off(f"""L_{tag}:
ds_read_b32 v{vd}, v{va} offset:{o}
s_waitcnt lgkmcnt(0)
v_readfirstlane_b32 s60, v{vd}
s_sub_u32 s49, s49, 1
s_cmp_eq_u32 s49, 0
s_cbranch_scc1 {out}
s_cmp_{cmp}_u32 s60, {val}
s_cbranch_scc1 L_{tag}""")

def crit(sf="sc1", lf="", cf="", wql=False, XX=(), tgf="sc1", t3=False):
    p = Prog()
    O, X, U, D, T = 32, 44, 68, 80, 20
    vx, vy, vq, vq2, va, vb, vw, vf = 4, 5, 6, 7, 8, 9, 10, 11
    p(f"""L_pc:
v_and_b32 v12, 7, v2
v_lshrrev_b32 v13, 3, v2
v_mul_u32_u24 v{vx}, 1152, v12
v_lshl_add_u32 v{vx}, v13, 4, v{vx}
s_mul_i32 s59, s2, 9216
s_mul_i32 s60, s16, 384
s_add_u32 s59, s59, s60
s_lshr_b32 s17, s2, 3
s_and_b32 s18, s2, 7
s_mul_i32 s33, s18, 3
s_add_u32 s33, s33, s16
s_mul_i32 s18, s33, 3
s_mul_i32 s33, s33, {24*3456}
s_mul_i32 s60, s17, 36
s_add_u32 s33, s33, s60
s_mul_i32 s19, s16, 5120
v_and_b32 v{T}, 3, v2
v_lshrrev_b32 v{T+1}, 2, v2
v_lshrrev_b32 v{T+2}, 5, v2
v_mul_u32_u24 v{vq}, 3456, v{T+1}
v_lshl_add_u32 v{vq}, v{T}, 4, v{vq}
v_mul_u32_u24 v{vq2}, {8*3456 - 1152}, v{T+2}
v_sub_u32 v{vq2}, v{vq}, v{vq2}
v_mov_b32 v{T+3}, 0x40000000
v_cmp_eq_u32 vcc, 3, v{T}
v_cndmask_b32 v{vq}, v{vq}, v{T+3}, vcc
v_cndmask_b32 v{vq2}, v{vq2}, v{T+3}, vcc""")
    p(nst('p_0'))
    p("s_waitcnt lgkmcnt(0)\ns_mov_b32 s8, s4\ns_mov_b32 s9, s5")
    p(nst('p_ka'))
    srd(p, 12, 44, ACT); srd(p, 20, 46, 576*1728*2)
    def xl():
        for i in range(3): p(f"buffer_load_dwordx4 v[{O+4*i}:{O+4*i+3}], v{vx}, s[12:15], s59 offen offset:{i*128} {lf}")
    if 'al' in XX: p("s_and_b32 s33, s33, -16")
    if 'al128' in XX: p("s_and_b32 s33, s33, -128")
    if 'xco' in XX: p(f"v_mul_u32_u24 v{vx}, 1152, v13\nv_lshl_add_u32 v{vx}, v12, 4, v{vx}")
    if 'wqf' not in XX: xl()
    p("s_mov_b32 m0, s19")
    for u in range(3):
        p(f"buffer_load_dwordx4 v{vq}, s[20:23], s33 offen offset:{u*1024} {cf} lds", tag='q0')
        p(f"s_add_u32 s33, s33, {128 if u < 2 else 16*3456 - 256 - 3072}")
    p(f"buffer_load_dwordx4 v{vq2}, s[20:23], s33 offen offset:3072 {cf} lds", tag='q1')
    p(f"s_add_u32 m0, s19, 4096\ns_add_u32 s33, s33, {2304 + 3072}\ns_mov_b32 exec_hi, 0")
    p(f"buffer_load_dwordx4 v{vq2}, s[20:23], s33 offen {cf} lds", tag='q1')
    if 'wqf' in XX: p("s_mov_b64 exec, -1"); xl()
    p("s_mov_b64 exec, -1\ns_barrier")
    if not t3: srd(p, 36, 6, 256)
    if not t3: p(f"""s_or_b32 s60, s2, s16
s_cmp_eq_u32 s60, 0
s_cbranch_scc0 L_pc_nt
s_memrealtime s[60:61]
v_mov_b32 v{T+3}, 0
s_waitcnt lgkmcnt(0)
s_or_b32 s60, s60, 1
v_mov_b32 v{T+4}, s60
s_mov_b64 exec, 1
buffer_store_dword v{T+4}, v{T+3}, s[36:39], 0 offen sc1 ; @
s_mov_b64 exec, -1
L_pc_nt:""")
    p(nst('p_q'))
    p(f"""v_lshlrev_b32 v{vy}, 9, v13
v_lshl_add_u32 v{vy}, v12, 4, v{vy}
s_lshr_b32 s58, s2, 2
s_mul_i32 s58, s58, 36864
s_and_b32 s59, s2, 3
s_lshl_b32 s59, s59, 7
s_add_u32 s58, s58, s59
s_mul_i32 s59, s16, 12288
s_add_u32 s24, s58, s59
s_add_u32 s24, s24, {YF}
s_add_u32 s25, s24, 4096
s_add_u32 s26, s24, 8192
s_mul_i32 s27, s17, 73728
s_add_u32 s27, s27, {WQF}""")
    for k in range(3):
        p(f"""s_add_u32 s60, s18, {k}
s_lshr_b32 s61, s60, 1
s_lshl_b32 s61, s61, 11
s_and_b32 s60, s60, 1
s_lshl_b32 s60, s60, 9
s_add_u32 s61, s61, s60
s_add_u32 s{28+k}, s27, s61""")
    p(f"""s_lshl_b32 s32, s2, 4
s_add_u32 s32, s32, {FL1}
v_and_b32 v{vw}, 31, v2
v_lshlrev_b32 v{vw}, 4, v{vw}
v_lshl_add_u32 v{vw}, v{T+2}, 10, v{vw}
v_bfe_u32 v{T+3}, v2, 4, 1
v_lshl_add_u32 v{T+3}, v{T+3}, 2, v{T}
v_lshlrev_b32 v{T+4}, 3, v{T+3}
v_add_u32 v{va}, 1024, v{T+4}
v_subrev_u32 v{T+5}, 40, v{T+4}
v_cmp_gt_u32 vcc, 5, v{T+3}
v_cndmask_b32 v{va}, v{T+5}, v{va}, vcc
v_mov_b32 v{T+5}, 32
v_cmp_eq_u32 vcc, 7, v{T+3}
v_cndmask_b32 v{va}, v{va}, v{T+5}, vcc
v_add_u32 v{vb}, 2048, v{T+4}
v_subrev_u32 v{T+5}, 32, v{T+4}
v_cmp_gt_u32 vcc, 6, v{T+3}
v_cndmask_b32 v{vb}, v{T+5}, v{vb}, vcc
v_cmp_lt_u32 vcc, 31, v2
v_cndmask_b32 v{va}, v{va}, v{vb}, vcc
v_lshrrev_b32 v{vb}, 10, v{va}
v_lshlrev_b32 v{vb}, 9, v{vb}
v_sub_u32 v{vb}, v{va}, v{vb}
v_and_b32 v{T+1}, 3, v{T+1}
v_lshlrev_b32 v{T+1}, 6, v{T+1}
v_add_u32 v{T+1}, s19, v{T+1}
v_add_u32 v{va}, v{va}, v{T+1}
v_add_u32 v{vb}, v{vb}, v{T+1}
v_bfe_u32 v14, v2, 5, 1
v_lshl_add_u32 v14, v12, 1, v14
v_lshlrev_b32 v14, 4, v14
s_lshl_b32 s60, s16, 2
s_add_u32 s60, s60, {LX}
v_add_u32 v14, s60, v14
v_lshlrev_b32 v15, 5, v12
v_add_u32 v15, {LX}, v15
v_and_b32 v16, 24, v2
v_cmp_eq_u32 s[34:35], 0, v16
v_mov_b32 v17, 0
v_mov_b32 v18, {LC}
v_mov_b32 v19, 1
s_mov_b32 s49, 0x40000""")
    p(nst('p_iss'))
    XS = list(range(X, X + 24))
    for i in range(12): p(f"v_lshlrev_b32 v{X+2*i}, 16, v{O+i}\nv_and_b32 v{X+2*i+1}, 0xffff0000, v{O+i}")
    p(nst('p_x'))
    ARR = ["s_mov_b64 exec, 1", "ds_add_u32 v18, v19 offset:20", "s_mov_b64 exec, -1"]
    p.ext(ARR)
    p(f"v_add_f32 v24, v{XS[0]}, v{XS[1]}\nv_add_f32 v26, v{XS[2]}, v{XS[3]}\nv_mul_f32 v25, v{XS[0]}, v{XS[0]}\nv_mul_f32 v27, v{XS[1]}, v{XS[1]}")
    for k, x in enumerate(XS[4:]): p(f"v_add_f32 v{24 + 2*(k%2)}, v{24 + 2*(k%2)}, v{x}")
    for k, x in enumerate(XS[2:]): p(f"v_fmac_f32 v{25 + 2*(k%2)}, v{x}, v{x}")
    p(f"""v_add_f32 v24, v24, v26
v_add_f32 v25, v25, v27
v_permlane32_swap_b32 v24, v25
v_add_f32 v24, v24, v25
v_mov_b32 v25, v24
v_permlane16_swap_b32 v24, v25
v_add_f32 v24, v24, v25
v_add_f32 v24, v24, v24 row_ror:8
s_mov_b64 exec, s[34:35]
ds_write_b32 v14, v24
s_mov_b64 exec, -1""")
    p(nst('p_s1'))
    def wq():
        for k in range(3):
            for h in range(2):
                p(f"ds_read_b64_tr_b16 v[{D+4*k+2*h}:{D+4*k+2*h+1}], v{va if k < 2 else vb} offset:{(k*512 if k < 2 else 3072) + h*256}", needs=['q0' if k < 2 else 'q1'])
        p.ext(ARR)
        for k in range(3): p(f"buffer_store_dwordx4 v[{D+4*k}:{D+4*k+3}], v{vw}, s[8:11], s{28+k} offen {sf}")
    if not wql: wq()
    p(nst('p_wq'))
    p(off(f"""L_pc_sw:
ds_read_b128 v[20:23], v15
ds_read_b128 v[28:31], v15 offset:16
s_waitcnt lgkmcnt(0)
v_max3_u32 v24, v20, v21, v22
v_max3_u32 v25, v28, v29, v30
v_max_u32 v24, v24, v25
v_cmp_eq_u32 vcc, -1, v24
s_sub_u32 s49, s49, 1
s_cmp_eq_u32 s49, 0
s_cbranch_scc1 L_pc_sk
s_nop 2
s_cbranch_vccnz L_pc_sw
L_pc_sk:"""))
    p(nst('p_s2'))
    p("""v_add_f32 v20, v20, v21
v_add_f32 v28, v28, v29
v_add_f32 v20, v20, v22
v_add_f32 v28, v28, v30
v_mul_f32 v20, 0x3ae38e39, v20
v_mul_f32 v28, 0x3ae38e39, v28
v_fma_f32 v28, -v20, v20, v28
v_max_f32 v28, 0, v28
v_add_f32 v28, 0x3727c5ac, v28
v_rsq_f32 v28, v28""")
    for i in range(3):
        xs = XS[8*i:8*i+8]
        for x in xs: p(f"v_sub_f32 v{x}, v{x}, v20")
        for x in xs: p(f"v_mul_f32 v{x}, v{x}, v28")
        for k in range(4): p(f"v_cvt_pk_bf16_f32 v{U+4*i+k}, v{xs[2*k]}, v{xs[2*k+1]}")
        p(f"buffer_store_dwordx4 v[{U+4*i}:{U+4*i+3}], v{vy}, s[8:11], s{24+i} offen {sf}")
    if wql: wq()
    if not t3: p(f"buffer_load_dword v{VN}, v17, s[36:39], 0 offen {tgf}")
    p(nst('p_st'))
    if t3: p(off(f"""s_mov_b32 s49, 0x1000000
L_pc_tg:
ds_read_b32 v{VN}, v18 offset:16
s_waitcnt lgkmcnt(0)
v_readfirstlane_b32 s61, v{VN}
s_sub_u32 s49, s49, 1
s_cmp_eq_u32 s49, 0
s_cbranch_scc1 L_pc_tk
s_cmp_eq_u32 s61, 0
s_cbranch_scc1 L_pc_tg
L_pc_tk:"""))
    p("s_mov_b32 s49, 0x40000\ns_waitcnt vmcnt(0)")
    if not t3: p(off(f"""L_pc_tg:
v_readfirstlane_b32 s61, v{VN}
s_sub_u32 s49, s49, 1
s_cmp_eq_u32 s49, 0
s_cbranch_scc1 L_pc_tk
s_cmp_eq_u32 s61, 0
s_cbranch_scc0 L_pc_tk
buffer_load_dword v{VN}, v17, s[36:39], 0 offen sc1
s_waitcnt vmcnt(0)
s_branch L_pc_tg
L_pc_tk:"""))
    p(f"""s_mov_b64 exec, 1
ds_add_rtn_u32 v20, v18, v19
s_waitcnt lgkmcnt(0)
v_readfirstlane_b32 s60, v20
s_cmp_eq_u32 s60, 2
s_cbranch_scc0 L_pc_ns
buffer_store_dword v{VN}, v17, s[8:11], s32 offen sc1 ; @
L_pc_ns:
s_mov_b64 exec, -1""")
    p(nst('p_sig'))
    p("s_branch L_a0")
    return p.finish()

NE, NO, NB = 160, 241, 4
def lane_off(T):
    return f"""v_and_b32 v{T}, 3, v2
v_bfe_u32 v{T+1}, v2, 2, 3
v_lshrrev_b32 v{T+2}, 5, v2
v_lshlrev_b32 v{T+2}, 6, v{T+2}
v_lshl_add_u32 v{T+2}, v{T}, 4, v{T+2}"""

def loader(sf="sc1", slf="nt", cf="", G1=0, G3=0, LA=6, XX=(), cp=0, tl=(), t3=0):
    T = 20
    p = Prog()
    p(f"""L_pl:
s_lshl_b32 s58, s2, 10
s_add_u32 s58, s58, {ZR}
s_add_u32 s59, s58, {LS}
v_mov_b32 v28, 0
v_mov_b32 v29, 0
v_mov_b32 v30, 0
v_mov_b32 v31, 0
{lane_off(T)}
v_mov_b32 v18, {LC}
s_waitcnt lgkmcnt(0)
s_mov_b32 s8, s4
s_mov_b32 s9, s5""")
    if t3:
        srd(p, 36, 6, 256)
        p(f"""s_cmp_eq_u32 s2, 0
s_cbranch_scc0 L_pl_nt
s_memrealtime s[60:61]
s_waitcnt lgkmcnt(0)
s_or_b32 s60, s60, 1
v_mov_b32 v27, s60
s_mov_b64 exec, 1
buffer_store_dword v27, v28, s[36:39], 0 offen sc1 ; @
s_mov_b64 exec, -1
L_pl_nt:""")
    srd(p, 12, 44, ACT); srd(p, 24, 48, 576*576*2)
    p(SRDS(52))
    p(f"""buffer_store_dwordx4 v[28:31], v3, s[8:11], s58 offen {sf}
buffer_store_dwordx4 v[28:31], v3, s[8:11], s59 offen {sf}
s_barrier""")
    if cp:
        p(f"""s_getpc_b64 s[86:87]
L_cp:
s_lshr_b32 s60, s2, 3
s_mul_i32 s60, s60, {cp}
v_min_u32 v26, {cp - 1}, v2
v_add_u32 v26, s60, v26
v_lshlrev_b32 v26, 7, v26
s_mov_b32 s60, L_kend-L_cp-4
v_min_u32 v26, s60, v26
global_load_dword v25, v26, s[86:87]""")
    if t3 == 2: p(lspin('pl_g0', 18, 'lt', 1, 'L_pl_g0e', vd=27, o=20) + "\nL_pl_g0e:")
    if t3: p(off(f"""s_mov_b32 s49, 0x40000
L_pl_tg:
buffer_load_dword v{VN}, v28, s[36:39], 0 offen sc1
s_waitcnt vmcnt(0)
v_readfirstlane_b32 s61, v{VN}
s_sub_u32 s49, s49, 1
s_cmp_eq_u32 s49, 0
s_cbranch_scc1 L_pl_tk
s_cmp_eq_u32 s61, 0
s_cbranch_scc1 L_pl_tg
L_pl_tk:
ds_write_b32 v18, v{VN} offset:16"""))
    p(f"""s_cmp_lt_u32 s2, {NO}
s_cbranch_scc0 L_plx""")
    if G1: p(lspin('pl_g1', 18, 'lt', G1, 'L_pl_g1e', vd=27, o=20) + "\nL_pl_g1e:")
    p(f"s_cmp_lt_u32 s2, {NE}\ns_cbranch_scc0 L_plo")
    out = p.finish()
    p = Prog()
    p(f"""s_and_b32 s58, s2, 7
s_lshr_b32 s59, s2, 5
s_bfe_u32 s100, s2, 0x20003
s_cmp_lt_u32 s59, 4
s_cselect_b32 s59, s59, 8
s_cselect_b32 s62, {4 if PX else 0}, 0
s_cmp_{PX or 'lt'}_u32 s58, 4
s_cselect_b32 s62, s62, 0
s_xor_b32 s62, s62, s59
s_mul_i32 s61, s58, 9
s_add_u32 s61, s61, s62
s_lshl_b32 s61, s61, 7
s_mul_i32 s68, s100, {9*16*9216}
s_add_u32 s68, s68, s61
v_mul_u32_u24 v{VS}, 9216, v{T+1}
v_add_u32 v{VS}, v{VS}, v{T+2}
v_lshlrev_b32 v{VB}, 1, v2""")
    for i in range(18):
        if i % 4 == 0: p(f"s_mov_b32 m0, {STG + (i//4)*4096}")
        p(f"buffer_load_dwordx4 v{VS}, s[64:67], s68 offen offset:{(i%4)*1024} {slf} lds", tag=f"e{i//2}")
        if i < 17: p(f"s_add_u32 s68, s68, {8*9216 - 1024 if i % 4 < 3 else 8*9216 + 3072}")
    p(f"buffer_load_ushort v{VB}, v{VB}, s[44:47], s61 offen")
    if 'nold' in XX: p.ins = [i for i in p.ins if not i.isdma]
    p(nst('p_sd'))
    p(dest_w1(T, VAG)); p(tr_addr(T, VT, STG, 10))
    p(f"v_mov_b32 v{C0}, 0\nv_mov_b32 v{C1}, 0\nv_mov_b32 v{VONE}, 0x3f803f80")
    if G3: p(lspin('pl_g3', 18, 'lt', 3, 'L_pl_g3e', vd=27) + "\nL_pl_g3e:")
    rd, st = [], []
    for b in range(9):
        for t in range(2):
            d = E + 4*((2*b + t) % 12)
            rd.append([I(f"ds_read_b64_tr_b16 v[{d+2*h}:{d+2*h+1}], v{VT} offset:{b*2048 + t*512 + h*256}", needs=[f"e{b}"]) for h in range(2)])
            sr = (87, 86)[t]
            st.append([f"buffer_store_dwordx4 v[{d}:{d+3}], v3, s[8:11], s{sr} offen {sf}"] + ([f"s_add_u32 s{sr}, s{sr}, s{88 + 2*t + b % 2}"] if b < 8 else []) +
                      [f"v_dot2c_f32_bf16 v{(C0, C1)[t]}, v{VONE}, v{d+q}" for q in range(4)])
    for x in rd[:LA]: p.ext(x)
    for i, x in enumerate(st):
        p.ext(x)
        if i + LA < len(rd): p.ext(rd[i + LA])
    p(fin_val(C0, C1, T, VB))
    p(f"""buffer_store_dwordx2 v[{T}:{T+1}], v{VAG}, s[8:11], s96 offen {sf}""")
    p(nst('p_ld'))
    p(f"""s_cmp_eq_u32 s96, s97
s_cbranch_scc1 L_a0
buffer_store_dwordx2 v[{T}:{T+1}], v{VAG}, s[8:11], s97 offen {sf}
s_branch L_a0""")
    if 'nost' in XX: p.ins = [i for i in p.ins if not i.op.startswith('buffer_store')]
    out += p.finish()
    p = Prog()
    p("L_plo:")
    WBK, WD = 28, 32
    for k in range(NB):
        p(f"""s_mul_i32 s62, s2, {NB}
s_sub_u32 s62, s62, {NB*NE - k}
{wo_idx(62)}
s_mul_i32 s68, s{WBK+k}, 144
s_mul_i32 s89, s69, 18
s_cmp_lt_u32 s69, 8
s_cselect_b32 s89, s89, 16
s_cselect_b32 s90, 4, 18
s_cselect_b32 s91, 2, 1
s_cselect_b32 s93, 8, 36
s_cselect_b32 s96, 3, 1
s_mul_i32 s90, s90, 1152
s_sub_u32 s90, s90, 1024
s_mul_i32 s93, s93, 1152
s_add_u32 s68, s68, s89
s_mul_i32 s68, s68, 1152
s_lshl_b32 s62, s60, 7
s_add_u32 s68, s68, s62
v_lshrrev_b32 v{T+4}, s91, v{T+1}
v_mul_u32_u24 v{VO}, s93, v{T+4}
v_and_b32 v{T+3}, s96, v{T+1}
v_mul_u32_u24 v{T+3}, 1152, v{T+3}
v_add3_u32 v{VO}, v{VO}, v{T+3}, v{T+2}
s_mov_b32 m0, {STG + k*2048}""".replace("s64", f"s{WBK+k}").replace("s65", "s69"))
        p(f"buffer_load_dwordx4 v{VO}, s[24:27], s68 offen {cf} lds", tag=f"o{k}")
        p("s_add_u32 s68, s68, s90")
        p(f"buffer_load_dwordx4 v{VO}, s[24:27], s68 offen offset:1024 {cf} lds", tag=f"o{k}")
        p(f"""s_mul_i32 s{WD+k}, s60, 72
s_add_u32 s{WD+k}, s{WD+k}, s61
s_lshl_b32 s{WD+k}, s{WD+k}, 10
s_add_u32 s{WD+k}, s{WD+k}, {WOF}""")
    if 'nold' in XX: p.ins = [i for i in p.ins if not i.isdma]
    p(nst('p_sd'))
    p(tr_addr(T, VT, STG, 10))
    p(f"v_and_b32 v{T+3}, 1, v{T+1}\nv_lshl_add_u32 v{T+2}, v{T+3}, 3, v{T+2}\nv_lshrrev_b32 v{T+1}, 1, v{T+1}\nv_add_u32 v{T+2}, {STG}, v{T+2}")
    for k in range(NB): p(f"v_add_u32 v{T+12+k}, s{WBK+k}, v{T+1}\nv_and_b32 v{T+12+k}, 3, v{T+12+k}\nv_lshl_add_u32 v{T+12+k}, v{T+12+k}, 4, v{T+2}")
    if G3: p(lspin('pl_g4', 18, 'lt', 3, 'L_pl_g4e', vd=27) + "\nL_pl_g4e:")
    for k in range(NB):
        for t in range(2):
            d = E + 8*k + 4*t
            for h in range(2): p(f"ds_read_b64_tr_b16 v[{d+2*h}:{d+2*h+1}], v{T+12+k} offset:{k*2048 + t*512 + h*256}", needs=[f"o{k}"])
    for k in range(NB):
        d = E + 8*k
        p(f"buffer_store_dwordx4 v[{d}:{d+3}], v3, s[8:11], s{WD+k} offen {sf}\ns_add_u32 s{WD+k}, s{WD+k}, {36*1024}\nbuffer_store_dwordx4 v[{d+4}:{d+7}], v3, s[8:11], s{WD+k} offen {sf}")
    p(nst('p_ld'))
    p("s_branch L_a0")
    if 'nost' in XX: p.ins = [i for i in p.ins if not i.op.startswith('buffer_store')]
    out += p.finish()
    p = Prog()
    p("L_plx:")
    if tl:
        L = ["s_cmp_lt_u32 s2, 248", "s_cbranch_scc1 L_tl_e", "s_and_b32 s58, s2, 7"]
        vd = iter(range(200, 232))
        def run(srdr, base, sh, n):
            R = []
            for k in range(0, n, 64):
                R += [f"v_add_u32 v30, {k}, v2", f"v_min_u32 v30, {n - 1}, v30", f"v_lshlrev_b32 v30, {sh}, v30", f"buffer_load_dword v{next(vd)}, v30, s[{srdr}:{srdr+3}], {base} offen"]
            return R
        if 'w2' in tl:
            L += ["s_mov_b32 s88, s56", "s_mov_b32 s89, s57", f"s_mov_b32 s90, {576*4608*2}", "s_mov_b32 s91, 0x20000", f"s_mul_i32 s68, s58, {576*1152}"] + run(88, 's68', 12, 162)
        if 'out' in tl:
            L += ["s_mov_b32 s92, s42", "s_mov_b32 s93, s43", f"s_mov_b32 s94, {ACT}", "s_mov_b32 s95, 0x20000"] + run(92, '0', 12, 576)
        if 'out64' in tl:
            L += ["s_mov_b32 s92, s42", "s_mov_b32 s93, s43", f"s_mov_b32 s94, {ACT}", "s_mov_b32 s95, 0x20000"] + run(92, '0', 16, 36)
        if 'ws2m' in tl: L += run(8, '0', 21, 78)
        if 'ws64' in tl: L += run(8, '0', 16, 464) + [f"s_mov_b32 s68, {LS}"] + run(8, 's68', 16, 464)
        p(off("\n".join(L + ["L_tl_e:"])))
    p(f"""s_cmp_lt_u32 s2, {NO + 8}
s_cbranch_scc0 L_a0
s_mov_b32 s64, s56
s_mov_b32 s65, s57
s_and_b32 s58, s2, 7
s_mul_i32 s68, s58, {36*16*1152}
s_add_u32 s68, s68, {32*16*1152 + 8*128}
v_mul_u32_u24 v{VS}, 1152, v{T+1}
v_add_u32 v{VS}, v{VS}, v{T+2}""")
    for i in range(8):
        if i % 4 == 0: p(f"s_mov_b32 m0, {(S80 if A2[0] else STG) + (i//4)*4096}")
        p(f"buffer_load_dwordx4 v{VS}, s[64:67], s68 offen offset:{(i%4)*1024} {slf} lds")
        if i < 7: p(f"s_add_u32 s68, s68, {8*1152 - 1024 if i % 4 < 3 else 8*1152 + 3072}")
    return out + p.finish()

LVS, LVB, LAG, LF, LD = 248, 251, 249, 252, 152
LATE_KA = "s_load_dwordx4 s[96:99], s[0:1], 32\ns_load_dwordx2 s[86:87], s[0:1], 48"
def late_setup(T=112):
    return f"""s_mov_b32 s55, 0
s_cmp_eq_u32 s63, 0
s_cbranch_scc0 L_ld_e
s_and_b32 s58, s2, 7
s_lshr_b32 s60, s2, 3
s_lshr_b32 s59, s60, 2
s_and_b32 s100, s60, 3
s_lshl_b32 s61, s16, 5
s_sub_u32 s61, s61, 32
s_cmp_eq_u32 s16, 3
s_cselect_b32 s55, 16, 32
s_cmp_lt_u32 s60, s55
s_cselect_b32 s55, 2, 1
s_cselect_b32 s61, s61, 0
s_add_u32 s60, s60, s61
s_sub_u32 s61, s2, {NO}
s_cmp_lt_u32 s61, 8
s_cselect_b32 s61, 0, 1
s_add_u32 s61, s61, 80
s_cmp_eq_u32 s16, 0
s_cselect_b32 s60, s61, s60
s_mul_i32 s61, s60, 7282
s_lshr_b32 s61, s61, 16
s_mul_i32 s62, s61, 9
s_sub_u32 s62, s60, s62
s_cmp_lt_u32 s60, 81
s_cselect_b32 s55, s55, 0
s_cmp_eq_u32 s55, 1
s_cselect_b32 s59, s59, s62
s_cselect_b32 s100, s100, s61
s_cselect_b32 s69, 8, 1
s_cselect_b32 s60, 72, 4
s_cselect_b32 s61, 0, 36
s_cselect_b32 s62, 9, 0
s_cselect_b32 s64, {4 if PX else 0}, 0
s_cselect_b32 s65, 0, {4 if PX else 0}
s_cmp_eq_u32 s100, 8
s_cselect_b32 s65, 0, s65
s_cmp_{PX or 'lt'}_u32 s58, 4
s_cselect_b32 s64, s64, 0
s_cselect_b32 s65, s65, 0
s_xor_b32 s64, s64, s59
s_xor_b32 s65, s65, s100
s_mul_i32 s68, s65, s60
s_mul_i32 s61, s61, s58
s_add_u32 s68, s68, s61
s_mul_i32 s68, s68, {16*1152}
s_mul_i32 s61, s62, s58
s_add_u32 s61, s61, s64
s_lshl_b32 s61, s61, 7
s_add_u32 s68, s68, s61
s_mul_i32 s69, s69, 1152
{lane_off(T)}
v_mul_u32_u24 v{LVS}, s69, v{T+1}
v_add_u32 v{LVS}, v{LVS}, v{T+2}
v_lshlrev_b32 v{LVB}, 1, v2
s_lshl_b32 s69, s69, 3
s_sub_u32 s69, s69, 1024
s_mul_i32 s62, s16, 18432
s_add_u32 s62, s62, {55296 if A2[0] else STG}
{f"s_cmp_eq_u32 s16, 0{chr(10)}s_cselect_b32 s62, {S80}, s62" if A2[0] else ""}
s_mov_b32 s90, {576*4608*2}
s_mov_b32 s91, 0x20000
s_cmp_eq_u32 s55, 1
s_waitcnt lgkmcnt(0)
s_cselect_b32 s88, s96, s86
s_cselect_b32 s89, s97, s87
s_mov_b32 s44, s98
s_mov_b32 s45, s99
s_mov_b32 s46, {4608*2}
s_mov_b32 s47, 0x20000"""

def late_dmas(slf="nt", XX=()):
    L = ["s_cmp_eq_u32 s55, 0", "s_cbranch_scc1 L_ld_e", "s_cmp_eq_u32 s16, 0", "s_cbranch_scc1 L_ld_e"]
    for i in range(18):
        if i == 8: L += ["s_cmp_eq_u32 s55, 1", "s_cbranch_scc0 L_ld_e", f"buffer_load_ushort v{LVB}, v{LVB}, s[44:47], s61 offen"]
        if i % 4 == 0: L += [f"s_add_u32 m0, s62, {(i//4)*4096}", "s_nop 0"]
        if 'nold' not in XX: L.append(f"buffer_load_dwordx4 v{LVS}, s[88:91], s68 offen offset:{(i%4)*1024} {slf} lds")
        if i < 17: L.append("s_add_u32 s68, s68, s69")
        if i % 4 == 3: L.append("s_addk_i32 s68, 4096")
    return off("\n".join(L + ["L_ld_e:"]))

def late_dmas_uni(slf="nt", va=239, vd=247):
    def seq(n, lab):
        L = []
        for i in range(n):
            if i == 8: L.append(f"buffer_load_ushort v{LVB}, v{LVB}, s[44:47], s61 offen")
            if i % 4 == 0: L += [f"s_add_u32 m0, s62, {(i//4)*4096}", "s_nop 0"]
            L.append(f"buffer_load_dwordx4 v{LVS}, s[88:91], s68 offen offset:{(i%4)*1024} {slf} lds")
            if i < 17: L.append("s_add_u32 s68, s68, s69")
            if i % 4 == 3: L.append("s_addk_i32 s68, 4096")
        return L
    dm = lambda n: [f"v_mov_b32 v{va}, 0x40000000", "s_mov_b64 exec, 1"] + [f"buffer_load_dword v{vd}, v{va}, s[8:11], 0 offen"]*n + ["s_mov_b64 exec, -1", "s_branch L_lu_e"]
    main = ["s_cmp_eq_u32 s55, 1", "s_cbranch_scc0 L_lu_o"] + seq(18, 0) + ["L_lu_e:"]
    ool = ["L_lu_o:", "s_cmp_eq_u32 s55, 0", "s_cbranch_scc1 L_lu_0", "s_cmp_eq_u32 s16, 0", "s_cbranch_scc1 L_lu_0"] + seq(8, 0) + dm(11) + ["L_lu_0:"] + dm(19)
    return main, "".join(("" if l.endswith(':') else "  ") + l + "\n" for l in ool)

LD2, F4O = 184, 0x6000
def late_pre(T=112, run=True, split=False):
    L2 = LD2 if split else LD
    out = "  s_mov_b32 s38, s55\n  s_cmp_eq_u32 s55, 0\n  s_cbranch_scc1 L_lp_e\n  s_cmp_eq_u32 s55, 1\n  s_cbranch_scc0 L_lp_2\n"
    vt, c0, c1, one = T + 4, T + 5, T + 6, T + 7
    p = Prog()
    p(tr_addr(T, vt, 's62', 10))
    p(f"v_mov_b32 v{c0}, 0\nv_mov_b32 v{c1}, 0\nv_mov_b32 v{one}, 0x3f803f80")
    rd = [[f"ds_read_b64_tr_b16 v[{LD+4*u+2*h}:{LD+4*u+2*h+1}], v{vt} offset:{(u//2)*2048 + (u%2)*512 + h*256}" for h in range(2)] for u in range(18)]
    for x in rd[:7]: p.ext(x)
    p(dest_w1(T, LAG))
    for u in range(18):
        p.ext([f"v_dot2c_f32_bf16 v{(c0, c1)[u%2]}, v{one}, v{LD+4*u+q}" for q in range(4)])
        if u + 7 < 18: p.ext(rd[u + 7])
    p(fin_val(c0, c1, LF, LVB))
    p("s_branch L_lp_e")
    out += p.finish()
    p = Prog()
    p("L_lp_2:")
    p(tr_addr(T, vt, 's62', 8))
    for u in range(8):
        for h in range(2): p(f"ds_read_b64_tr_b16 v[{L2+4*u+2*h}:{L2+4*u+2*h+1}], v{vt} offset:{(u//2)*2048 + (u%2)*512 + h*1024}")
    p(f"""s_and_b32 s62, s59, 1
s_lshl_b32 s62, s62, 1
s_lshl_b32 s60, s58, 2
s_add_u32 s62, s62, s60
s_mul_i32 s62, s62, {WB}
s_add_u32 s62, s62, {WSTR}
s_lshr_b32 s68, s59, 1
s_add_u32 s61, s68, 1
s_and_b32 s61, s61, 3
s_lshl_b32 s61, s61, 4
s_add_u32 s61, s61, 265
s_cmp_eq_u32 s59, 8
s_cselect_b32 s69, 2, 1
s_cselect_b32 s61, 257, s61
s_cselect_b32 s101, 0, 1
s_mul_i32 s69, s69, {WB}
s_lshl_b32 s100, s100, 1""")
    W2D = [(86, 87, 88, 89), (90, 91, 96, 97)]
    for a0, a1, b0, b1 in W2D:
        p(f"""s_sub_u32 s60, s100, 8
s_cmp_lt_u32 s100, 8
s_cselect_b32 s{a0}, s100, s60
s_mul_i32 s{a0}, s{a0}, 9
s_add_u32 s{a0}, s{a0}, 167
s_add_u32 s{a0}, s{a0}, s68
s_lshl_b32 s99, s60, s101
s_add_u32 s99, s99, s61
s_cmp_lt_u32 s60, 8
s_cselect_b32 s{a0}, s99, s{a0}
s_cselect_b32 s99, 1, 5
s_lshl_b32 s99, s99, 10
s_cmp_eq_u32 s101, 0
s_cselect_b32 s99, {WB}, s99
s_cselect_b32 s98, 0, s99
s_lshl_b32 s{a0}, s{a0}, 10
s_add_u32 s{a0}, s{a0}, s62
s_add_u32 s{b0}, s{a0}, s99
s_add_u32 s{a1}, s{a0}, s69
s_add_u32 s{b1}, s{a1}, s99
s_sub_u32 s{b1}, s{b1}, s98
s_add_u32 s{a1}, s{a1}, s98
s_add_u32 s100, s100, 1""")
    if run:
        p("""s_sub_u32 s60, s88, s86
s_sub_u32 s61, s90, s88
s_sub_u32 s62, s89, s87
s_sub_u32 s91, s91, s89
s_mov_b32 s88, s60
s_mov_b32 s89, s61
s_mov_b32 s90, s62
s_mov_b32 s60, s86
s_mov_b32 s86, s87
s_mov_b32 s87, s60""")
    p("s_waitcnt lgkmcnt(0)")
    q = Prog()
    if run: q(f"""s_cmp_eq_u32 s55, 0
s_cselect_b32 s60, 0x40000000, 0
v_or_b32 v{LSA}, s60, v3
s_cmp_eq_u32 s55, 1
s_cselect_b32 s60, 0, 0x40000000
v_or_b32 v{LSB}, s60, v3
v_or_b32 v{LAG}, s60, v{LAG}""")
    return out + p.finish() + "L_lp_e:\n" + q.finish()

LSA, LSB = 254, 255
def late_stu(sf="sc1", n=1, XX=()):
    L = []
    for u in range(18):
        sr = (87, 86)[u % 2]
        g = [f"s_mov_b64 exec, s[{34 if u < 8 else 36}:{35 if u < 8 else 37}]"] if (u % n == 0 or u == 8) else []
        g.append(I(f"buffer_store_dwordx4 v[{LD+4*u}:{LD+4*u+3}], v{LSA if u < 8 else LSB}, s[8:11], s{sr} offen {sf}", tag='xl'))
        if u % n == n - 1 or u == 17: g.append("s_mov_b64 exec, -1")
        if u < 16: g.append(f"s_add_u32 s{sr}, s{sr}, s{88 + 2*(u%2) + (u//2) % 2}")
        if u % n == 0: L.append(g)
        else: L[-1] += g
    L.append(["s_mov_b64 exec, s[36:37]"] + [I(f"buffer_store_dwordx2 v[{LF}:{LF+1}], v{LAG}, s[8:11], s{sr} offen {sf}", tag='xl') for sr in (96, 97)] + ["s_mov_b64 exec, -1"])
    if 'nost' in XX: L = [[x for x in g if not isinstance(x, I)] for g in L]
    if 'noex' in XX: L = [[x for x in g if isinstance(x, I) or 'exec' not in x] for g in L]
    return L

def late_w2(sf="sc1"):
    return off("\n".join(["s_cmp_eq_u32 s38, 2", "s_cbranch_scc0 L_lw2_e"] + [f"buffer_store_dwordx4 v[{LD2+4*u}:{LD2+4*u+3}], v3, s[8:11], s{sr} offen {sf}" for u, sr in enumerate((86, 87, 88, 89, 90, 91, 96, 97))] + ["L_lw2_e:"])).split("\n")

def late_st(tag, sf="sc1", XX=(), uni=True, vd=254, vo=255, split=False):
    st = lambda u, sr: f"buffer_store_dwordx4 v[{LD+4*u}:{LD+4*u+3}], v3, s[8:11], s{sr} offen {sf}"
    L1 = []
    for u in range(18):
        sr = (87, 86)[u % 2]
        L1 += [st(u, sr)] + ([f"s_add_u32 s{sr}, s{sr}, s{88 + 2*(u%2) + (u//2) % 2}"] if u < 16 else [])
    L2 = [st(u, sr) for u, sr in enumerate((86, 87, 88, 89, 90, 91, 96, 97))]
    if uni:
        L1 += [f"buffer_store_dwordx2 v[{LF}:{LF+1}], v{LAG}, s[8:11], s{sr} offen {sf}" for sr in (96, 97)]
        dm = lambda n: [f"v_mov_b32 v{vo}, 0x40000000", "s_mov_b64 exec, 1"] + [f"buffer_load_dword v{vd}, v{vo}, s[8:11], 0 offen"]*n + ["s_mov_b64 exec, -1", f"s_branch L_{tag}_e"]
        main = "\n".join(["s_cmp_eq_u32 s55, 1", f"s_cbranch_scc0 L_{tag}_o"] + L1 + [f"L_{tag}_e:"])
        ool = [f"L_{tag}_o:", "s_cmp_eq_u32 s55, 0", f"s_cbranch_scc1 L_{tag}_0"] + L2 + dm(12) + [f"L_{tag}_0:"] + dm(20)
        return main, "".join(("" if l.endswith(':') else "  ") + l + "\n" for l in ool)
    L1 += [f"buffer_store_dwordx2 v[{LF}:{LF+1}], v{LAG}, s[8:11], s96 offen {sf}", "s_cmp_eq_u32 s96, s97", f"s_cbranch_scc1 L_{tag}_e",
           f"buffer_store_dwordx2 v[{LF}:{LF+1}], v{LAG}, s[8:11], s97 offen {sf}", f"s_branch L_{tag}_e"]
    if 'nost' in XX: L1 = [x for x in L1 if not x.startswith('buffer')]; L2 = []
    if split: L2 = []
    return off("\n".join(["s_cmp_eq_u32 s55, 0", f"s_cbranch_scc1 L_{tag}_e", "s_cmp_eq_u32 s55, 1", f"s_cbranch_scc0 L_{tag}_2"] + L1 + [f"L_{tag}_2:"] + L2 + [f"L_{tag}_e:"])), ""

HEAD = f"""  v_lshlrev_b32 v20, 2, v2
  v_mov_b32 v21, -1
  v_mov_b32 v22, 0
  v_add_u32 v20, {LX}, v20
  ds_write_b32 v20, v21
  ds_write_b32 v20, v22 offset:256
  v_mov_b32 v7, 0
  v_mov_b32 v13, 0
  v_mov_b32 v{LAG}, 0
  s_mov_b32 s3, 0
  s_cmp_eq_u32 s16, 3
  s_cbranch_scc1 L_pl
"""

def a0_go(two=False):
    return f"""s_lshl_b32 s56, s19, {8 if two else 9}
s_lshl_b32 s57, s20, {8 if two else 7}
s_sub_u32 s57, s57, {256 if two else 512}
v_mov_b32 v161, s56
v_mov_b32 v162, s57
v_cmp_lt_u32 vcc, {15 if two else 31}, v2
v_cndmask_b32 v161, v161, v162, vcc
v_add_u32 v161, v161, v3
s_mov_b32 s56, {FL1}
v_mov_b32 v162, {TAGL if two else LC + 16}
s_and_b32 s57, s2, 7
s_lshl_b32 s57, s57, 10
s_add_u32 s57, s57, {PFL}
s_lshl_b32 s58, s2, 2
s_add_u32 s58, s58, {PFL}
s_mov_b32 s49, 0x40000
s_cmp_eq_u32 s16, 0
s_cbranch_scc0 L_a0p_go
ds_write_b32 v162, v{VN} ; @
s_mov_b32 exec_hi, {0 if two else 0xff}
L_a0p_poll:
buffer_load_dword v250, v161, s[8:11], s56 offen sc1 ; @
s_waitcnt vmcnt(0) lgkmcnt(0) ; @
v_cmp_ne_u32 vcc, v250, v{VN}
s_nop 4
s_cbranch_vccz L_a0p_ok
s_sub_u32 s49, s49, 1
s_cmp_eq_u32 s49, 0
s_cbranch_scc0 L_a0p_poll
L_a0p_ok:
s_mov_b64 exec, -1
L_a0p_go:
s_barrier"""

def fchk(n, v, sa, tag):
    CHK = [f"v_xor_b32 v{v+i}, {tag}, v{v+i}" for i in range(4)] + [f"v_or3_b32 v{v}, v{v}, v{v+1}, v{v+2}", f"v_or_b32 v{v}, v{v}, v{v+3}", f"v_cmp_ne_u32 vcc, 0, v{v}"]
    LD = f"buffer_load_dwordx4 v[{v}:{v+3}], v3, s[8:11], s{sa} offen sc1"
    LOOP = f"L_{n}_w:\n  s_mov_b32 s49, 0x40000\nL_{n}_l:\n" + "".join("  " + l + "\n" for l in ["s_nop 15"]*8 + [LD, "s_waitcnt vmcnt(0)"] + CHK + ["s_sub_u32 s49, s49, 1", "s_cmp_eq_u32 s49, 0", f"s_cbranch_scc1 L_{n}_k", "s_nop 2", f"s_cbranch_vccnz L_{n}_l", f"s_branch L_{n}_k"])
    return LD, CHK, [f"s_cbranch_vccnz L_{n}_w", f"L_{n}_k:"], LOOP
def fsig(n, vd, va, sa):
    return ["s_cmp_eq_u32 s16, 0", f"s_cbranch_scc0 L_{n}_ns", f"v_mov_b32 v{vd}, s3", f"v_lshlrev_b32 v{va}, 10, v2", "s_mov_b64 exec, 0xff", f"buffer_store_dword v{vd}, v{va}, s[8:11], s{sa} offen sc1 ; @", "s_mov_b64 exec, -1", f"L_{n}_ns:"]
F3O = 0x2000
```

```python
from asmlib import *
from layout import *
from k0 import srd
from ka import phi, QB
import kc, kp, kq
HF = ['']

CCD, CDA, CAB = 16384, 32768, 49152
REP = dict(bc=(0, 1), cd=(16384, 1))
aWOr = lambda ks, t: 64 + 4*((8 - ks)*5 + t)

BK = [0]
def spin(tag, sreg, va, vd, lanes, target, depth=1):
    ld = lambda k: f"buffer_load_dword v{vd+k}, v{va}, s[8:11], s{sreg} offen sc1 ; @"
    L = ([f"s_mov_b64 exec, {(1 << lanes) - 1}"] if lanes < 32 else ["s_mov_b32 exec_hi, 0"]) + [ld(k) for k in range(depth - 1)] + [f"L_{tag}_poll:"]
    for k in range(depth):
        L += [ld((k + depth - 1) % depth), f"s_waitcnt vmcnt({depth - 1}) ; @", f"v_cmp_gt_u32 vcc, {target}, v{vd+k}",
              "s_nop 4", f"s_cbranch_vccz L_{tag}_ok"]
    L += ["s_nop 15"] * BK[0]
    L += ["s_sub_u32 s49, s49, 1", "s_cmp_eq_u32 s49, 0", f"s_cbranch_scc0 L_{tag}_poll", f"L_{tag}_ok:", "s_mov_b64 exec, -1"]
    L.append(f"L_{tag}_go:")
    return "\n".join(L)

A_MAP = """s_and_b32 s17, s2, 7
s_lshr_b32 s18, s2, 3
s_lshr_b32 s19, s17, 2
s_lshl_b32 s19, s19, 2
s_and_b32 s20, s18, 3
s_add_u32 s19, s19, s20
s_and_b32 s20, s17, 3
s_lshl_b32 s20, s20, 3
s_lshr_b32 s21, s18, 2
s_add_u32 s20, s20, s21"""
AM1 = [0]
def a_map1():
    if AM1[0] == 0: return A_MAP
    if AM1[0] == 1: return "s_bfe_u32 s19, s2, 0x20001\ns_lshl_b32 s19, s19, 1\ns_bfe_u32 s20, s2, 0x10003\ns_add_u32 s19, s19, s20\ns_and_b32 s20, s2, 1\ns_lshl_b32 s20, s20, 4\ns_lshr_b32 s21, s2, 4\ns_add_u32 s20, s20, s21"
    return "s_and_b32 s19, s2, 7\ns_lshr_b32 s20, s2, 3"
def a_head1():
    if AM1[0] == 0: return "s_and_b32 s52, s2, 3\ns_lshl_b32 s52, s52, 3\ns_lshr_b32 s53, s2, 5\ns_add_u32 s52, s52, s53"
    if AM1[0] == 1: return "s_and_b32 s52, s2, 1\ns_lshl_b32 s52, s52, 4\ns_lshr_b32 s53, s2, 4\ns_add_u32 s52, s52, s53"
    return "s_lshr_b32 s52, s2, 3"
A_WS = f"""s_mul_i32 s24, s20, 73728
s_add_u32 s24, s24, {WQF}
s_lshl_b32 s25, s16, 11
s_add_u32 s24, s24, s25"""
def a_wchunk(c):
    L = [f"s_add_u32 m0, s25, {c*8192}" if c else "s_mov_b32 m0, s25"]
    for i in range(2): L.append(I(f"buffer_load_dwordx4 v3, s[8:11], s24 offen offset:{i*1024} {HF[0]} lds", tag=f"w{c}"))
    if c < 8: L.append("s_addk_i32 s24, 8192")
    return L

def wo_loads(ts, sreg=50):
    G = []
    for t in ts:
        for ks in range(9):
            pre = []
            if ks in (4, 8): pre = [f"s_addk_i32 s{sreg}, 4096"]
            if ks == 0 and t != ts[0]: pre = [f"s_add_u32 s{sreg}, s{sreg}, {36864 - 8192}"]
            r = aWOr(ks, t)
            G.append(pre + [f"buffer_load_dwordx4 a[{r}:{r+3}], v3, s[8:11], s{sreg} offen offset:{(ks%4)*1024} {HF[0]}"])
    return G

def side_parts(ssf="sc1", lf="nt"):
    WB = WSN*1024
    SB = 98304
    V = 160
    v3_, v5_, vs_, t1, t2, ts1, ts2, c0, c1, vb, vcs, vag, T = V, V+1, V+2, V+3, V+4, V+5, V+6, V+7, V+8, V+9, V+10, V+11, V+12
    D = V + 16
    ka = "s_load_dwordx4 s[56:59], s[0:1], 32\ns_load_dwordx2 s[60:61], s[0:1], 48"
    setup = f"""s_mov_b32 s12, s56
s_mov_b32 s13, s57
s_mov_b32 s14, {576*4608*2}
s_mov_b32 s15, 0x20000
s_mov_b32 s44, s60
s_mov_b32 s45, s61
s_mov_b32 s46, {576*4608*2}
s_mov_b32 s47, 0x20000
s_mov_b32 s64, s58
s_mov_b32 s65, s59
s_mov_b32 s66, {4608*2}
s_mov_b32 s67, 0x20000
s_cmp_lt_u32 s16, 2
s_cselect_b32 s96, s56, s60
s_cselect_b32 s97, s57, s61
s_mov_b32 s98, {576*4608*2}
s_mov_b32 s99, 0x20000
s_and_b32 s56, s2, 7
s_bfe_u32 s57, s2, 0x20003
s_lshr_b32 s58, s2, 5
s_mul_i32 s59, s57, 9
s_add_u32 s60, s59, s16
s_mul_i32 s62, s60, {16*9216}
s_mul_i32 s68, s56, 1152
s_lshl_b32 s69, s58, 7
s_add_u32 s68, s68, s69
s_add_u32 s62, s62, s68
s_mul_i32 s87, s56, 36
s_add_u32 s87, s87, s60
s_mul_i32 s87, s87, {16*1152}
s_add_u32 s87, s87, s69
s_add_u32 s60, s59, 8
s_mul_i32 s88, s60, {16*9216}
s_add_u32 s88, s88, s68
s_mul_i32 s68, s56, 36
s_add_u32 s68, s68, s60
s_mul_i32 s68, s68, {16*1152}
s_add_u32 s68, s68, s69
s_cmp_lt_u32 s16, 2
s_cselect_b32 s88, s88, s68
s_cselect_b32 s68, 8, 1
s_mul_i32 s68, s68, 1152
s_and_b32 s69, s16, 1
s_lshl_b32 s69, s69, 6
s_add_u32 s88, s88, s69
s_mul_i32 s55, s16, 9216
s_add_u32 s55, s55, {SB}
v_bfe_u32 v{T}, v2, 2, 3
v_and_b32 v{T+1}, 3, v2
v_lshrrev_b32 v{T+2}, 5, v2
v_lshlrev_b32 v{T+3}, 6, v{T+2}
v_lshl_add_u32 v{T+3}, v{T+1}, 4, v{T+3}
v_mul_u32_u24 v{v3_}, 9216, v{T}
v_add_u32 v{v3_}, v{v3_}, v{T+3}
v_mul_u32_u24 v{v5_}, 1152, v{T}
v_add_u32 v{v5_}, v{v5_}, v{T+3}
v_lshrrev_b32 v{T}, 2, v2
v_mul_u32_u24 v{vs_}, s68, v{T}
v_lshl_add_u32 v{vs_}, v{T+1}, 4, v{vs_}""".split("\n")
    dma = []
    for b in range(2):
        for mi, (vo, sr, srd_, rs) in enumerate(((v3_, 62, 12, 9216), (v5_, 87, 44, 1152))):
            for u in range(2):
                L = [f"s_add_u32 m0, s55, {(2*b + mi)*2048 + u*1024}", I(f"buffer_load_dwordx4 v{vo}, s[{srd_}:{srd_+3}], s{sr} offen {lf} lds", tag=f"sd{b}{mi}")]
                if not (b == 1 and u == 1): L.append(f"s_add_u32 s{sr}, s{sr}, {(8 if u == 0 else 56)*rs}")
                dma.append(L)
    dma.append([f"s_add_u32 m0, s55, 8192", I(f"buffer_load_dwordx4 v{vs_}, s[96:99], s88 offen {lf} lds", tag="sds")])
    setup2 = f"""s_mul_i32 s68, s56, 18
s_lshl_b32 s69, s58, 1
s_add_u32 s68, s68, s69
s_lshl_b32 s68, s68, 6
v_lshlrev_b32 v{vb}, 1, v2
buffer_load_ushort v{vb}, v{vb}, s[64:67], s68 offen
v_and_b32 v{T+1}, 3, v2
v_lshrrev_b32 v{T+2}, 5, v2
v_lshlrev_b32 v{T}, 3, v{T+1}
v_bfe_u32 v{T+3}, v2, 2, 2
v_lshl_add_u32 v{T}, v{T+3}, 6, v{T}
v_bfe_u32 v{T+3}, v2, 4, 1
v_lshl_add_u32 v{T}, v{T+3}, 5, v{T}
v_add_u32 v{T}, s55, v{T}
v_lshl_add_u32 v{t1}, v{T+2}, 10, v{T}
v_lshl_add_u32 v{t2}, v{T+2}, 8, v{T}
s_cmp_lt_u32 s16, 2
s_cselect_b32 s68, 2, 1
s_cselect_b32 s69, 1, 2
s_lshl_b32 s68, s68, 8
s_lshl_b32 s69, s69, 8
v_mul_u32_u24 v{ts1}, s68, v{T+2}
v_add_u32 v{ts1}, v{ts1}, v{T}
v_add_u32 v{ts2}, s69, v{ts1}
v_mov_b32 v{c0}, 0
v_mov_b32 v{c1}, 0
s_lshl_b32 s89, s56, 2
s_and_b32 s68, s58, 1
s_lshl_b32 s68, s68, 1
s_add_u32 s89, s89, s68
s_mul_i32 s89, s89, {WB}
s_add_u32 s89, s89, {WSTR}
s_lshr_b32 s90, s58, 1
s_add_u32 s68, s90, 91
s_add_u32 s69, s90, 90
s_add_u32 s61, s90, 163
s_cmp_lt_u32 s58, 4
s_cselect_b32 s91, 5, 4
s_cselect_b32 s93, s90, s68
s_cselect_b32 s61, s69, s61
s_cselect_b32 s100, 3, 2
s_lshl_b32 s100, s100, 10
s_add_u32 s101, s90, 1
s_and_b32 s101, s101, 3
s_lshl_b32 s101, s101, 4
s_add_u32 s101, s101, 265
s_lshl_b32 s61, s61, 10
s_add_u32 s61, s61, s89
s_lshr_b32 s68, s57, 1
s_lshl_b32 s68, s68, 9
s_add_u32 s61, s61, s68
s_and_b32 s68, s57, 1
s_lshl_b32 s68, s68, 3
s_add_u32 s61, s61, s68
s_cmp_lt_u32 s57, 2
s_cselect_b32 s57, 0xffff, 0
v_lshlrev_b32 v{vcs}, 2, v0
v_add_u32 v{vcs}, {SB + 36864}, v{vcs}
v_and_b32 v{vag}, 31, v2
v_lshlrev_b32 v{vag}, 4, v{vag}
v_mul_u32_u24 v{T}, {WB}, v{T+2}
v_add_u32 v{vag}, v{vag}, v{T}""".split("\n")
    def dest(m):
        L = ["s_lshr_b32 s56, s60, 1", "s_and_b32 s58, s60, 1"]
        if m == 0:
            L += ["s_mul_i32 s68, s56, s91", "s_add_u32 s68, s68, s93", "s_mov_b32 s69, s100"]
        else:
            L += """s_sub_u32 s88, s56, 8
s_cmp_lt_u32 s56, 8
s_cselect_b32 s68, s56, s88
s_mul_i32 s68, s68, 9
s_add_u32 s68, s68, 167
s_add_u32 s68, s68, s90
s_lshl_b32 s69, s88, 1
s_add_u32 s69, s69, s101
s_cmp_lt_u32 s88, 8
s_cselect_b32 s68, s69, s68
s_cselect_b32 s69, 1, 5
s_lshl_b32 s69, s69, 10""".split("\n")
        L += f"""s_lshl_b32 s68, s68, 10
s_add_u32 s68, s68, s89
s_mul_i32 s58, s58, s69
s_add_u32 s62, s68, s58
s_add_u32 s68, s68, s69
s_sub_u32 s68, s68, s58
s_add_u32 s87, s68, {WB}""".split("\n")
        return L
    work = []
    for b in range(2):
        for mi in range(2):
            d = D + 8*((2*b + mi) % 4)
            base = (2*b + mi)*2048
            ra, o2 = ((t1, 256), (t2, 1024))[mi]
            for tt in range(2):
                work.append(I(f"ds_read_b64_tr_b16 v[{d+4*tt}:{d+4*tt+1}], v{ra} offset:{base + tt*512}", needs=[f"sd{b}{mi}"]))
                work.append(f"ds_read_b64_tr_b16 v[{d+4*tt+2}:{d+4*tt+3}], v{ra} offset:{base + tt*512 + o2}")
            if mi == 0: work.append(f"s_add_u32 s60, s59, s16" if b == 0 else "s_add_u32 s60, s60, 4")
            work += dest(mi)
            for tt in range(2):
                work.append(f"buffer_store_dwordx4 v[{d+4*tt}:{d+4*tt+3}], v3, s[8:11], s{(62, 87)[tt]} offen {ssf}")
                if mi == 0: work += [f"v_dot2c_f32_bf16 v{(c0, c1)[tt]}, v8, v{d+4*tt+q}" for q in range(4)]
    d = D + 32
    work += [I(f"ds_read_b64_tr_b16 v[{d}:{d+1}], v{ts1} offset:8192", needs=["sds"]), f"ds_read_b64_tr_b16 v[{d+2}:{d+3}], v{ts2} offset:8192", "s_add_u32 s60, s59, 8"]
    work += dest(0) + ["s_bitcmp1_b32 s16, 0", "s_cselect_b32 s55, s87, s62"] + dest(1)
    work += ["s_bitcmp1_b32 s16, 0", "s_cselect_b32 s62, s87, s62", "s_cmp_lt_u32 s16, 2", "s_cselect_b32 s62, s55, s62",
             f"buffer_store_dwordx4 v[{d}:{d+3}], v3, s[8:11], s62 offen {ssf}",
             "s_cmp_eq_u32 s16, 0", "s_cselect_b32 s68, 0x3f803f80, 0", "s_cmp_eq_u32 s16, 1", "s_cselect_b32 s69, 0x3f803f80, 0"]
    for q in range(4): work += [f"v_dot2c_f32_bf16 v{c0}, s68, v{d+q}", f"v_dot2c_f32_bf16 v{c1}, s69, v{d+q}"]
    work += [f"v_permlane32_swap_b32 v{c0}, v{c1}", f"v_add_f32 v{c0}, v{c0}, v{c1}", I(f"ds_write_b32 v{vcs}, v{c0}", tag='scs')]
    fin = [f"v_lshlrev_b32 v{vcs}, 2, v2", f"v_add_u32 v{vcs}, {SB + 36864}, v{vcs}"]
    fin += [f"ds_read_b32 v{D+w}, v{vcs} offset:{w*256}" for w in range(4)]
    fin += f"""v_add_f32 v{D}, v{D}, v{D+1}
v_add_f32 v{D+2}, v{D+2}, v{D+3}
v_add_f32 v{D}, v{D}, v{D+2}
v_cvt_pk_bf16_f32 v{D+4}, v{D}, v{D}
v_and_b32 v{D+1}, 0xffff0000, v{D+4}
v_sub_f32 v{D+1}, v{D}, v{D+1}
v_cvt_pk_bf16_f32 v{D+5}, v{D+1}, 0
v_and_b32 v{vb}, s57, v{vb}
v_lshl_or_b32 v{D+5}, v{vb}, 16, v{D+5}
buffer_store_dwordx2 v[{D+4}:{D+5}], v{vag}, s[8:11], s61 offen {ssf}""".split("\n")
    return ka, atomize(setup), dma, atomize(setup2), atomize(work), fin

def touch(w1=True, wo=True):
    L = []
    if w1: L.append(f"""s_and_b32 s64, s2, 3
s_lshl_b32 s64, s64, 1
s_bfe_u32 s65, s2, 0x10003
s_add_u32 s64, s64, s65
s_lshl_b32 s64, s64, 2
s_add_u32 s64, s64, s16
s_mul_i32 s64, s64, {WSN*1024}
s_lshr_b32 s65, s2, 4
s_mul_i32 s65, s65, 3072
s_add_u32 s64, s64, s65
s_add_u32 s64, s64, {WSTR}
v_min_u32 v240, 23, v2
v_lshlrev_b32 v240, 7, v240
buffer_load_dword v241, v240, s[8:11], s64 offen {HF[0]}""".split("\n")[:(None if w1 == 1 else -3)] + ([] if w1 == 1 else [f"buffer_load_dwordx4 v[{168+4*i}:{171+4*i}], v3, s[8:11], s64 offen offset:{i*1024} {HF[0]}" for i in range(3)]))
    if wo: L.append(f"""s_lshr_b32 s65, s2, 3
s_lshl_b32 s65, s65, 2
s_add_u32 s65, s65, s16
s_mul_i32 s65, s65, 41
v_min_u32 v242, 40, v2
v_add_u32 v242, s65, v242
v_min_u32 v242, 5183, v242
v_lshlrev_b32 v242, 7, v242
s_mov_b32 s66, {WOF}
buffer_load_dword v243, v242, s[8:11], s66 offen {HF[0]}""".split("\n"))
    return L
WOP = f"""s_lshr_b32 s51, s2, 6
s_mul_i32 s52, s51, 5
s_lshl_b32 s53, s51, 2
s_add_u32 s53, s53, 2
s_cmp_lt_u32 s51, 2
s_cselect_b32 s52, s52, s53
s_mul_i32 s50, s52, 36864
s_mul_i32 s53, s16, 9216
s_add_u32 s50, s50, s53
s_add_u32 s50, s50, {WOF}"""
def a_part(first, m16=False, E0=(148, 248), ld=None, hw=None, hwf='', tw=None, NP0=0, NPa1=None, w0p=0, wl=False, skipy=(), D1=None, R1=1, pfy=0, pfa=0, p2=None, FP=(0, 0, 84, 118), LW=(62, 74, 113, 124), p0=None, SD=(10, 75), dw=False, YR=16, D0=12, RAMP=1, NW=8, qsf="sc1", NP1=36, NPa=16, PD=1, yf='sc1', side=None, SW=(2, 12, 12, 34, 60, 112)):
    n = "a0" if first else "a1"
    p = Prog()
    p(A_MAP if first else a_map1())
    p(f"""s_lshl_b32 s21, s19, 3
s_lshl_b32 s22, s16, 1
s_add_u32 s21, s21, s22
s_mul_i32 s22, s21, 36864
s_add_u32 s22, s22, {YF if first else YF + LS}""")
    if first: p(A_WS)
    if first and dw:
        p(f'''s_load_dwordx2 s[56:57], s[0:1], 8
v_lshrrev_b32 v200, 3, v2
v_mul_u32_u24 v200, 3456, v200
v_and_b32 v201, 3, v2
v_bfe_u32 v202, v2, 2, 1
v_lshlrev_b32 v203, 4, v201
v_mul_u32_u24 v204, 1152, v202
v_add_u32 v203, v203, v204
v_add_u32 v203, 1152, v203
v_lshlrev_b32 v204, 4, v202
v_cmp_eq_u32 vcc, 3, v201
v_cndmask_b32 v203, v203, v204, vcc
v_add_u32 v200, v200, v203
v_add_u32 v201, {8*3456 - 1024}, v200
s_mul_i32 s24, s20, 36
s_mul_i32 s58, s16, {16*3456}
s_add_u32 s24, s24, s58
s_waitcnt lgkmcnt(0)
s_mov_b32 s12, s56
s_mov_b32 s13, s57
s_mov_b32 s14, {576*1728*2}
s_mov_b32 s15, 0x20000''')
    ACC, WR, P0, V1, TMP, KVA, QO = 16, 80, 112, 120, 128, 136, 152
    items = []
    for g in range(72):
        if first and g < 36 and g % 4 == 0:
            wc = a_wchunk(g // 4)
            if dw:
                c = g // 4
                wc = [wc[0]] + [I(f"buffer_load_dwordx4 v{200+i}, s[12:15], s24 offen offset:{i*1024} lds", tag=f"w{c}") for i in range(2)] + ([f"s_add_u32 s24, s24, {64*3456}"] if c < 8 else [])
            items.append((g, wc))
        s = 4*(g % YR)
        pre = ["s_addk_i32 s22, 4096"] if (g % 4 == 0 and g) else []
        if m16: items.append((g, pre + [f"buffer_load_dwordx4 a[{s}:{s+3}], v164, s[8:11], s22 offen offset:{(g%4)//2*2048 + (g%2)*256} {yf}"])); continue
        items.append((g, pre + ([] if g in skipy else [f"buffer_load_dwordx4 a[{s}:{s+3}], v3, s[8:11], s22 offen offset:{(g%4)*1024} {'' if first and not p0 and p2 is None else yf}"])))
    ip = 0
    def issue_upto(gmax):
        nonlocal ip
        L = []
        while ip < len(items) and items[ip][0] <= gmax:
            L += items[ip][1]; ip += 1
        return L
    def ypf(skip):
        if not pfy: return []
        n = 72 - skip
        return [f"s_mov_b32 exec_hi, {hex((1 << (n - 32)) - 1)}", f"buffer_load_dword v254, v255, s[8:11], s23 offen {yf}", "s_mov_b64 exec, -1"]
    SK = D0 if first else YR
    if pfy: p(f"s_lshr_b32 s23, s2, 5\ns_mul_i32 s23, s23, {(72 - SK)*128}\ns_add_u32 s23, s23, s22\ns_add_u32 s23, s23, {SK*1024}\nv_lshlrev_b32 v255, 7, v2")
    setup = f"""v_lshlrev_b32 v13, 2, v0
v_add_u32 v4, 65536, v3
s_mul_i32 s28, s16, 1280
s_add_u32 s28, s28, {QB - 20*64}
v_and_b32 v5, 31, v2
v_lshlrev_b32 v5, 6, v5
v_lshrrev_b32 v9, 5, v2
v_lshl_add_u32 v5, v9, 5, v5
v_add_u32 v5, s28, v5
v_bfe_u32 v6, v2, 2, 2
v_lshl_add_u32 v6, v9, 2, v6
v_lshlrev_b32 v6, 6, v6
v_and_b32 v7, 1, v2
v_lshl_add_u32 v6, v7, 5, v6
v_bfe_u32 v7, v2, 4, 1
v_lshl_add_u32 v6, v7, 4, v6
v_bfe_u32 v7, v2, 1, 1
v_lshl_add_u32 v6, v7, 3, v6
s_add_u32 s28, s28, {20*64}
v_add_u32 v6, s28, v6
v_lshlrev_b32 v7, 2, v2
s_mul_i32 s28, s16, 2560
v_add_u32 v15, s28, v3
v_lshlrev_b32 v14, 3, v2
v_add_u32 v14, s28, v14
v_and_b32 v8, 27, v2
v_cmp_eq_u32 s[30:31], 18, v8
v_mov_b32 v8, 0x3f803f80
s_mov_b32 s32, 0xfff00000
s_mov_b32 s33, 0xfff00000
s_lshl_b32 s26, s21, 5
s_add_u32 s26, s26, s20
s_lshl_b32 s27, s26, 8
s_lshl_b32 s26, s26, 10
s_add_u32 s26, s26, {PQ16 + (0 if first else LS)}
s_add_u32 s27, s27, {PQ4 + (0 if first else LS)}"""
    if m16: setup += f"""
v_and_b32 v5, 15, v2
v_lshrrev_b32 v9, 4, v2
v_lshlrev_b32 v164, 4, v5
v_lshl_add_u32 v164, v9, 9, v164
v_add_u32 v15, s28, v164
v_and_b32 v9, 1, v9
v_lshlrev_b32 v14, 3, v5
v_lshl_add_u32 v14, v9, 8, v14
v_add_u32 v14, s28, v14
v_lshlrev_b32 v5, 6, v5
v_lshl_add_u32 v5, v9, 5, v5
v_lshrrev_b32 v9, 5, v2
v_lshl_add_u32 v5, v9, 3, v5
s_mul_i32 s28, s16, 1280
s_add_u32 s28, s28, {QB - 4*64}
v_add_u32 v5, s28, v5
v_lshl_add_u32 v165, v9, 10, v164
v_add_u32 v166, 65536, v165
v_and_b32 v9, 11, v2
v_cmp_eq_u32 s[30:31], 2, v9"""
    if first and p2 is not None:
        if hw or ld: p(kq.LATE_KA)
        p(setup)
        if ld: p('s_waitcnt lgkmcnt(0)')
        hn = 3 if hw and hw[0] == 'pre' else 4
        if hw: p(f'''s_and_b32 s60, s2, 7
s_lshr_b32 s61, s2, 3
s_max_u32 s59, s16, {4 - hn}
s_sub_u32 s59, s59, {4 - hn}
s_mul_i32 s62, s61, {hn}
s_add_u32 s62, s62, s59
s_mul_i32 s62, s62, {324//hn}
v_add_u32 v236, s62, v2
v_min_u32 v237, {324//hn - 65}, v2
v_add_u32 v237, s62, v237
v_lshlrev_b32 v236, 6, v236
v_lshlrev_b32 v237, 6, v237
v_add_u32 v237, 4096, v237
s_mul_i32 s100, s60, {576*1152}
s_mul_i32 s62, s59, {144//hn}
v_min_u32 v238, {144//hn - 1}, v2
v_add_u32 v238, s62, v238
v_lshrrev_b32 v239, 3, v238
v_and_b32 v238, 7, v238
v_mul_u32_u24 v239, 9216, v239
v_lshl_add_u32 v238, v238, 6, v239
s_lshl_b32 s59, s16, 1
s_add_u32 s59, s59, s61
s_and_b32 s59, s59, 7
s_mul_i32 s101, s61, {18*9216}
s_mul_i32 s60, s60, {9*128}
s_add_u32 s101, s101, s60
s_add_u32 s101, s101, 512
s_waitcnt lgkmcnt(0)
s_mov_b32 s88, s96
s_mov_b32 s89, s97
s_mov_b32 s90, {576*4608*2}
s_mov_b32 s91, 0x20000
s_mov_b32 s92, s86
s_mov_b32 s93, s87
s_mov_b32 s94, {576*4608*2}
s_mov_b32 s95, 0x20000''')
        HWL = (f"buffer_load_dword v244, v238, s[88:91], s101 offen {hwf}", f"buffer_load_dword v245, v236, s[92:95], s100 offen {hwf}", f"buffer_load_dword v246, v237, s[92:95], s100 offen {hwf}")
        if hn == 3: p(kq.off("\n".join(["s_cmp_eq_u32 s16, 0", "s_cbranch_scc1 L_hw_e"] + list(HWL[hw[1]:hw[2]]) + ["L_hw_e:"])))
        p(kq.a0_go())
        p(nst('a_go'))
        if pfa: p.ext(issue_upto(pfa - 1)); p.ext(ypf(SK)); p.ext(issue_upto(D0 - 1))
        else: p.ext(issue_upto(D0 - 1)); p.ext(ypf(SK))
        p("ds_read_b32 v161, v162\nv_readfirstlane_b32 s3, v161")
    elif first and p0:
        n = "a0" + p0[0]
        p(setup)
        p(f"""s_and_b32 s56, s2, 7
s_lshl_b32 s56, s56, 10
s_add_u32 s56, s56, {kp.PFL}
s_mov_b32 s49, 0x40000
s_cmp_eq_u32 s16, 0
s_cbranch_scc0 L_{n}p_go""")
        p(kp.poll(n + "p", 56, 250) + f"L_{n}p_go:\ns_barrier")
        p(nst('a_go'))
        p.ext(issue_upto(D0 - 1))
    elif first:
        p.ext(issue_upto(D0 - 1))
        p(setup)
    else:
        p(setup)
        if NP0: p(WOP)
        if tw and tw[1] == 'pre': wo0_t = [y for x in touch(tw[2], tw[4]) for y in x]
        else: wo0_t = []
        wo0 = wo0_t + [y for x in wo_loads(range(4))[:NP0] for y in x]
        NV = len([x for x in wo0 if x.startswith('buffer')])
        p(f"""s_lshl_b32 s28, s19, 2
s_bfe_u32 s29, s2, {('0x20005', '0x20000')[RAB[1]]}
s_add_u32 s28, s28, s29
s_lshl_b32 s28, s28, 9
s_add_u32 s28, s28, {CNT + LS + CDA}
v_lshlrev_b32 v10, 7, v2
s_mov_b32 s49, 0x40000
s_waitcnt vmcnt(0)
s_cmp_eq_u32 s16, 0
s_cbranch_scc{1 if wl or NP0 else 0} L_da_{'w0' if wl or NP0 else 'go'}""")
        if NP0 and not wl: p(kq.off("\n".join(wo0 + ["s_branch L_da_go", "L_da_w0:"] + ([] if w0p else wo0))))
        if wl:
            L = f"""s_sub_u32 s29, s16, 1
s_mul_i32 s56, s29, 24576
s_mul_i32 s57, s20, 73728
s_add_u32 s57, s57, s56
s_add_u32 s57, s57, {WQF}""".split("\n")
            for k in range(6):
                L += [f"s_add_u32 m0, s56, {k*4096}", "s_nop 0"] + [f"buffer_load_dwordx4 v3, s[8:11], s57 offen offset:{i*1024} {HF[0]} lds" for i in range(4)] + (["s_addk_i32 s57, 4096"] if k < 5 else [])
            p(kq.off("\n".join(L + wo0 + [f"s_waitcnt vmcnt({NV})", "s_branch L_da_go", "L_da_w0:"] + ([] if w0p else wo0))))
        sp = spin("da", 28, 10, 250, 4, 8, PD)
        if w0p: sp = sp.replace("L_da_go:", kq.off("\n".join(wo0)) + "\nL_da_go:")
        p(sp)
        p("s_barrier")
        p(nst('a_go'))
        if pfa: p.ext(issue_upto(pfa - 1)); p.ext(ypf(SK)); p.ext(issue_upto(YR - 1))
        else: p.ext(issue_upto((D1 or YR) - 1)); p.ext(ypf(SK))
    def wrd(f):
        g = f % 72
        s = WR + 4*(f % NW)
        L = []
        if first and f < 72 and f % 8 == 0: L.append(I("s_barrier", needs=[f"w{f//8}"]))
        if m16:
            o = (g//4)*4096 + (g%4)//2*1024 + (g%2)*256
            L.append(f"ds_read_b128 v[{s}:{s+3}], v{165 + o//65536} offset:{o % 65536}")
            return L
        L.append(f"ds_read_b128 v[{s}:{s+3}], v3 offset:{g*1024}" if g < 64 else f"ds_read_b128 v[{s}:{s+3}], v4 offset:{(g-64)*1024}")
        return L
    for f in range(NW - 1): p.ext(wrd(f))
    p(nst('a_first'))
    G = []
    for ds in range(36 if m16 else 0):
        for c in range(4):
            f = 4*ds + c; w = WR + 4*(f % NW)
            for rh in range(2):
                y = 4*((2*ds + rh) % YR); acc = ACC + 32*(ds // 18) + 8*c + 4*rh
                grp = [f"v_mfma_f32_16x16x32_bf16 v[{acc}:{acc+3}], a[{y}:{y+3}], v[{w}:{w+3}], " + ("0" if ds % 18 == 0 else f"v[{acc}:{acc+3}]")]
                if rh == 1 and f + NW - 1 < 144: grp += wrd(f + NW - 1)
                if rh == 0 and c in (0, 2):
                    g = 2*ds - 2 + c//2
                    depth = min(YR, D0 + 2 + max(g, 0)*RAMP) if first else YR
                    grp += issue_upto(g + depth)
                G.append(grp)
    for g in range(0 if m16 else 72):
        y = 4*(g % YR)
        for t in range(2):
            f = 2*g + t
            w = WR + 4*(f % NW)
            acc = ACC + 32*(g // 36) + 16*t
            c = "0" if g % 36 == 0 else f"v[{acc}:{acc+15}]"
            grp = [f"v_mfma_f32_32x32x16_bf16 v[{acc}:{acc+15}], a[{y}:{y+3}], v[{w}:{w+3}], {c}"]
            if f + NW - 1 < 144: grp += wrd(f + NW - 1)
            if t == 1:
                depth = min(YR, D0 + 1 + g*RAMP) if first else (min(YR, int(D1 + 1 + g*R1)) if D1 else YR)
                grp += issue_upto(g + depth)
            G.append(grp)
    assert ip == len(items)
    def epi1(rt):
        T0 = ACC + 32*rt; T1 = T0 + 16
        L = []
        for i in range(8): L.append(f"v_cvt_pk_bf16_f32 v{V1+i}, v{T1+2*i}, v{T1+2*i+1}")
        for i in range(8): L.append(f"v_cndmask_b32 v{V1+i}, v{V1+i}, v8, s[30:31]")
        ph = phi(list(range(T0, T0 + 16)), TMP)
        pk = [f"v_cvt_pk_bf16_f32 v{P0+i}, v{T0+2*i}, v{T0+2*i+1}" for i in range(8)]
        mm = [f"v_mfma_f32_32x32x16_bf16 v[{KVA}:{KVA+15}], v[{P0+4*q}:{P0+4*q+3}], v[{V1+4*q}:{V1+4*q+3}], " + ("0" if (rt == 0 and q == 0) else f"v[{KVA}:{KVA+15}]") for q in range(2)]
        if m16:
            L = L[:8] + L[12:]
            mm = [f"v_mfma_f32_16x16x32_bf16 v[{KVA+8*mt+4*nt}:{KVA+8*mt+4*nt+3}], v[{P0+4*mt}:{P0+4*mt+3}], v[{V1+4*nt}:{V1+4*nt+3}], " + ("0" if rt == 0 else f"v[{KVA+8*mt+4*nt}:{KVA+8*mt+4*nt+3}]") for mt in range(2) for nt in range(2)]
            L = ph[:32] + pk[:4] + L + mm[:2] + ph[32:] + pk[4:] + mm[2:]
            L.append(["s_mov_b32 exec_lo, 0xff00ff00", "s_mov_b32 exec_hi, 0xff00ff00", f"ds_write2_b64 v5, v[{V1+4}:{V1+5}], v[{V1+6}:{V1+7}] offset0:64 offset1:66",
                      "s_mov_b32 exec_lo, 0xfff0fff0", "s_mov_b32 exec_hi, 0xfff0fff0", f"ds_write2_b64 v5, v[{P0+4}:{P0+5}], v[{P0+6}:{P0+7}] offset1:2", "s_mov_b64 exec, -1"])
            L += [f"ds_read_b64_tr_b16 v[{QO}:{QO+1}], v6", f"ds_read_b64_tr_b16 v[{QO+2}:{QO+3}], v6 offset:768", f"ds_read_b64_tr_b16 v[{QO+4}:{QO+5}], v6 offset:512"]
            return L
        L = ph[:32] + pk[:4] + L + [mm[0]] + ph[32:] + pk[4:] + [mm[1]]
        L.append(["s_mov_b64 exec, s[32:33]",
                  f"ds_write_b128 v5, v[{V1}:{V1+3}] offset:512", f"ds_write_b128 v5, v[{V1+4}:{V1+7}] offset:528",
                  f"ds_write_b128 v5, v[{P0}:{P0+3}]", f"ds_write_b128 v5, v[{P0+4}:{P0+7}] offset:16",
                  "s_mov_b64 exec, -1"])
        L += [f"ds_read_b64_tr_b16 v[{QO}:{QO+1}], v6", f"ds_read_b64_tr_b16 v[{QO+2}:{QO+3}], v6 offset:768", f"ds_read_b64_tr_b16 v[{QO+4}:{QO+5}], v6 offset:512"]
        return L
    def epi2(rt):
        u = TMP + 4
        L = [f"v_lshlrev_b32 v{u}, 16, v{QO+2}", f"v_and_b32 v{u+1}, 0xffff0000, v{QO+2}", f"v_lshlrev_b32 v{u+2}, 16, v{QO+3}", f"v_and_b32 v{u+3}, 0xffff0000, v{QO+3}"]
        L += phi([u, u+1, u+2, u+3], TMP)
        L += [f"v_cvt_pk_bf16_f32 v{QO+2}, v{u}, v{u+1}", f"v_cvt_pk_bf16_f32 v{QO+3}, v{u+2}, v{u+3}"]
        return L
    def qst(rt):
        L = ["s_add_u32 s26, s26, 32768", "s_add_u32 s27, s27, 8192"] if rt else []
        return L + [f"buffer_store_dwordx4 v[{QO}:{QO+3}], v3, s[8:11], s26 offen {qsf}", f"buffer_store_dword v{QO+4}, v7, s[8:11], s27 offen {qsf}"]
    late = f"""v_bfe_u32 v10, v0, 2, 5
v_lshrrev_b32 v12, 1, v0
v_cmp_gt_u32 s[34:35], 19, v10
v_cmp_eq_u32 s[36:37], 22, v10
s_or_b64 s[34:35], s[34:35], s[36:37]
v_cmp_gt_u32 s[38:39], 19, v12
v_cmp_eq_u32 s[36:37], 22, v12
s_or_b64 s[38:39], s[38:39], s[36:37]
s_mul_i32 s28, s20, 2560
s_add_u32 s28, s28, {KV + (0 if first else LS)}
{WOP if first or not NP0 else 's_nop 0'}
s_lshl_b32 s54, s20, 7
s_add_u32 s54, s54, {CNT + CAB + (0 if first else LS)}
v_lshlrev_b32 v10, 12, v2
v_mov_b32 v11, 1""".split("\n")
    wo = wo_loads(range(4))[(0 if first else NP0):NP1]
    if not first and NPa1 is not None: NPa = NPa1
    K = 2 if m16 else 1
    if side and first:
        _, su, dma, su2, work, fin = side
        G[116] = G[116] + [I("s_barrier", needs=['scs'])]
        def put(L, a, b):
            for k, x in enumerate(L): G[a + k*(b - a)//len(L)] += x if isinstance(x, list) else [x]
        put(su, SW[0], SW[1]); put(dma, SW[2], SW[3]); put(su2, SW[3], SW[4]); put(work, SW[4], SW[5]); put(fin, 117, 130)
    elif first and p2 is not None:
        if m16: FP = (2*FP[0], 0, 2*FP[2], 2*FP[3])
        G[116*K] = G[116*K] + ["s_barrier"]
        f2 = kq.fchk('f2', 232, 57, 's3')
        G[FP[0]] = G[FP[0]] + kq.fsig('f2', 161, 162, 58)
        G[FP[2]] = G[FP[2]] + [f2[0]]
        for k, x in enumerate(f2[1]): G[FP[3] - 4 + k//2] = G[FP[3] - 4 + k//2] + [x]
        G[FP[3] + 1] = G[FP[3] + 1] + f2[2]
        G = [[y for x in g for y in (x if isinstance(x, list) else [x])] for g in G]
    elif first and p0:
        lf = SW[1] > 112
        G[116] = G[116] + [I("s_barrier", needs=[] if lf else ['scs'])]
        for L, a, b in ((p0[3], SD[0], SD[1]), (p0[1], SW[0], SW[1]), ([] if lf else p0[2], 117, 130)):
            for k, x in enumerate(L): G[a + k*(b - a)//len(L)] += x if isinstance(x, list) else [x]
    else: G[116*K] = G[116*K] + ["s_barrier"]
    if first and hw and hw[0] == 'st':
        for k in range(8): G[hw[1] + k*hw[2]] = G[hw[1] + k*hw[2]] + kq.off("\n".join([f"s_cmp_eq_u32 s59, {k}", f"s_cbranch_scc0 L_hw{k}"] + list(HWL) + [f"L_hw{k}:"])).split("\n")
    elif first and hw and hw[0] != 'pre':
        for k, x in zip(hw, HWL): G[k] = G[k] + [x]
    if first and ld:
        if ld[1] == 0: G[ld[0]] = G[ld[0]] + kq.late_dmas().split("\n")
        else:
            m, ool = kq.late_dmas_uni()
            G[ld[0]] = G[ld[0]] + m; f2 = f2[:3] + (f2[3] + ool,)
    tg = tw and tw[0 if first else 1]
    if isinstance(tg, int):
        for k, x in enumerate(touch(tw[2], tw[3 if first else 4])[::-1]): G[tg + k] = G[tg + k] + x
    for k in range(1, 144*K):
        if nst(f'a_g{k}'): G[k] = [nst(f'a_g{k}')] + G[k]
    if not m16: E0 = (74, 124)
    for grp in G[:20*K]: p.ext(grp)
    p.ext(interleave(G[20*K:60*K], atomize(late)))
    if first and ld:
        su = [l for l in kq.late_setup(236).split("\n")[3:] if l.strip() and not l.startswith('s_waitcnt')]
        p.ext(interleave(G[60*K:E0[0]], atomize(su)))
    else:
        for grp in G[60*K:E0[0]]: p.ext(grp)
    p.ext(interleave(G[E0[0]:E0[1]], epi1(0) + epi2(0) + qst(0)))
    p.ext(interleave(G[E0[1]:], wo[:NPa]))
    p(nst('a_epi'))
    e1 = epi1(1)
    rest = wo[NPa:]
    k1 = len(rest) * 2 // 3
    p.ext(interleave([x if isinstance(x, list) else [x] for x in e1], rest[:k1]))
    if m16: p(f"ds_write_b128 v15, v[{KVA}:{KVA+3}]\nds_write_b128 v15, v[{KVA+4}:{KVA+7}] offset:256\ns_mov_b32 exec_hi, 0\nds_write_b64 v14, v[{KVA+8}:{KVA+9}] offset:2048\nds_write_b64 v14, v[{KVA+12}:{KVA+13}] offset:2176\ns_mov_b64 exec, -1")
    else: p(f"ds_write_b128 v15, v[{KVA}:{KVA+3}]\nds_write_b128 v15, v[{KVA+4}:{KVA+7}] offset:1024\nds_write_b64 v14, v[{KVA+8}:{KVA+9}] offset:2048")
    for x in rest[k1:]: p.ext(x)
    p("s_waitcnt lgkmcnt(0)")
    p("s_barrier")
    for it in range(3):
        for w in range(4): p(f"ds_read_b32 v{16 + 4*it + w}, v13 offset:{w*2560 + it*1024}")
    p.ext(epi2(1))
    if first and p0 and SW[1] > 112: p.ext(p0[2])
    for it in range(3):
        b = 16 + 4*it
        p(f"v_add_f32 v{b}, v{b}, v{b+1}\nv_add_f32 v{b+2}, v{b+2}, v{b+3}\nv_add_f32 v{b}, v{b}, v{b+2}")
    p(f"""s_mov_b64 exec, s[34:35]
buffer_atomic_add_f32 v16, v13, s[8:11], s28 offen
buffer_atomic_add_f32 v20, v13, s[8:11], s28 offen offset:1024
s_mov_b64 exec, -1""")
    p.ext(qst(1))
    p(f"""s_cmp_eq_u32 s16, 0
s_cbranch_scc0 L_{n}_end
s_mov_b64 exec, s[38:39]
buffer_atomic_add_f32 v24, v13, s[8:11], s28 offen offset:2048
s_mov_b64 exec, -1
L_{n}_end:""")
    for k, i in enumerate(p.ins):
        if i.kind == 'vm' and i.w and i.w[0][0] == 'a' and 's50' in i.r:
            assert not any(j.kind == 'mfma' and set(j.r) & set(i.w) for j in p.ins[k:]), i.text
    p(nst('a_st'))
    if first: p("s_branch L_ab")
    return p.finish() + (f2[3] if first and p2 is not None else "")

A2 = [False]
RAB = [0, 0]
QB2, TAGL, LXD, S80 = 147456, 152576, 152832, 153600
A_MAP2 = """s_and_b32 s17, s2, 7
s_lshr_b32 s18, s2, 3
s_lshr_b32 s19, s17, 2
s_lshl_b32 s19, s19, 3
s_and_b32 s20, s18, 7
s_add_u32 s19, s19, s20
s_and_b32 s20, s17, 3
s_lshl_b32 s20, s20, 2
s_lshr_b32 s21, s18, 3
s_add_u32 s20, s20, s21
s_lshl_b32 s17, s20, 1
s_and_b32 s18, s19, 1
s_add_u32 s17, s17, s18
s_xor_b32 s18, s17, 1"""

def a_map2(m):
    if m == 0: return A_MAP2
    nb = 3 - m
    return f"""s_bfe_u32 s19, s2, {hex(((1 + m) << 16) | (2 - m))}
s_lshl_b32 s19, s19, {nb}
s_bfe_u32 s20, s2, {hex((nb << 16) | 3)}
s_add_u32 s19, s19, s20
""" + (f"s_and_b32 s20, s2, 1\ns_lshl_b32 s20, s20, 3\ns_lshr_b32 s21, s2, 5\ns_add_u32 s20, s20, s21\n" if m == 1 else "s_lshr_b32 s20, s2, 4\n") + """s_lshl_b32 s17, s20, 1
s_and_b32 s18, s19, 1
s_add_u32 s17, s17, s18
s_xor_b32 s18, s17, 1"""
def a2_part(first, p2=None, K1=12, D0=10, RT=1.25, D1=8, R1=1.0, NW=8, qsf="sc1", NP1=36, PD=1, yf='sc1', FP=(0, 0, 100, 132),
            BAR=None, E0=2, E1=None, W1=(50, 94), NPa=8, LT=(20, 44), rr=0, SG=3, LEAD=8, c32=False, **kw):
    n = "a0" if first else "a1"
    L_ = 0 if first else LS
    p = Prog()
    p(A_MAP2 if first else a_map2(AM1[0]))
    p(f"""s_lshl_b32 s21, s19, 2
s_add_u32 s21, s21, s16
s_mul_i32 s22, s21, 36864
s_add_u32 s22, s22, {YF + L_}""")
    if first: p(f"""s_lshl_b32 s25, s16, 11
s_mul_i32 s24, s17, 73728
s_mul_i32 s23, s18, 73728
s_add_u32 s60, s25, {WQF}
s_add_u32 s24, s24, s60
s_add_u32 s23, s23, s60""")
    ACC, WR, P0, V1, TMP, KVA, QO, VB2 = 16, 80, 112, 120, 128, 136, 152, 158
    KVO = (0, 11264)
    yreg = lambda kk: ('a', 4*kk) if kk < 16 else ('v', 164 + 4*(kk - 16))
    units = [(kk, h) for kk in range(K1) for h in range(2)] + [(kk, 0) for kk in range(K1, 36)] + [(kk, 1) for kk in range(K1, 36)]
    uof = {u: i for i, u in enumerate(units)}
    C1 = K1 // 4
    if BAR is None:
        BAR = [[(0, c), (1, c)] for c in range(C1)] + [[(0, c), (0, c + 1)] if c < 8 else [(0, c)] for c in range(C1, 9, 2)] + [[(1, c) for c in range(c0, min(9, c0 + SG))] for c0 in range(C1, 9, SG)]
    assert sorted(x for g in BAR for x in g) == [(h, c) for h in range(2) for c in range(9)]
    bar_at = {}
    items = []
    for g in BAR:
        u0 = min(uof[(4*c, h)] for h, c in g)
        bar_at[2*u0] = [f"w{h}{c}" for h, c in g]
        if first:
            for h, c in g:
                sr = (24, 23)[h]
                L = [f"s_add_u32 m0, s25, {h*73728 + c*8192}" if (h or c) else "s_mov_b32 m0, s25"]
                a = I(f"buffer_load_dwordx4 v3, s[8:11], s{sr} offen {HF[0]} lds", tag=f"w{h}{c}")
                b = I(f"buffer_load_dwordx4 v3, s[8:11], s{sr} offen offset:1024 {HF[0]} lds", tag=f"w{h}{c}")
                items.append((u0 - 4, 2, L + [a, b] + ([f"s_addk_i32 s{sr}, 8192"] if c < 8 else [])))
    for kk in range(36):
        R, r = yreg(kk)
        pre = ["s_addk_i32 s22, 4096"] if (kk % 4 == 0 and kk) else []
        items.append((uof[(kk, 0)], 1, pre + [f"buffer_load_dwordx4 {R}[{r}:{r+3}], v3, s[8:11], s22 offen offset:{(kk%4)*1024} {yf}"]))
    items.sort(key=lambda x: x[0])
    st = dict(ip=0, n=0)
    def issue(nmax, u=-99):
        L = []
        while st['ip'] < len(items) and (st['n'] < nmax or items[st['ip']][0] <= u + LEAD):
            L += items[st['ip']][2]; st['n'] += items[st['ip']][1]; st['ip'] += 1
        return L
    setup = f"""v_lshlrev_b32 v13, 2, v0
v_add_u32 v4, 65536, v3
v_add_u32 v{VB2}, 131072, v3
s_mul_i32 s28, s16, 1280
s_add_u32 s28, s28, {QB2 - 20*64}
v_and_b32 v5, 31, v2
v_lshlrev_b32 v5, 6, v5
v_lshrrev_b32 v9, 5, v2
v_lshl_add_u32 v5, v9, 5, v5
v_add_u32 v5, s28, v5
v_bfe_u32 v6, v2, 2, 2
v_lshl_add_u32 v6, v9, 2, v6
v_lshlrev_b32 v6, 6, v6
v_and_b32 v7, 1, v2
v_lshl_add_u32 v6, v7, 5, v6
v_bfe_u32 v7, v2, 4, 1
v_lshl_add_u32 v6, v7, 4, v6
v_bfe_u32 v7, v2, 1, 1
v_lshl_add_u32 v6, v7, 3, v6
s_add_u32 s28, s28, {20*64}
v_add_u32 v6, s28, v6
v_lshlrev_b32 v7, 2, v2
s_mul_i32 s28, s16, 2560
v_add_u32 v15, s28, v3
v_lshlrev_b32 v14, 3, v2
v_add_u32 v14, s28, v14
v_and_b32 v8, 27, v2
v_cmp_eq_u32 s[30:31], 18, v8
v_mov_b32 v8, 0x3f803f80
s_mov_b32 s32, 0xfff00000
s_mov_b32 s33, 0xfff00000
s_lshl_b32 s26, s21, 5
s_add_u32 s26, s26, s17
s_lshl_b32 s27, s26, 8
s_lshl_b32 s26, s26, 10
s_add_u32 s26, s26, {PQ16 + L_}
s_add_u32 s27, s27, {PQ4 + L_}"""
    p(setup)
    if first:
        p(kq.a0_go(True))
        p(nst('a_go'))
        p.ext(issue(D0))
        p("ds_read_b32 v161, v162\nv_readfirstlane_b32 s3, v161")
    else:
        p(f"""s_lshl_b32 s28, s19, 2
{"s_and_b32 s29, s2, 3" if rr == 0 else "s_lshr_b32 s29, s2, 6"}
s_add_u32 s28, s28, s29
s_lshl_b32 s28, s28, 8
s_add_u32 s28, s28, {CNT + LS + CDA}
v_lshlrev_b32 v10, 7, v2
s_mov_b32 s49, 0x40000
s_waitcnt vmcnt(0)
s_cmp_eq_u32 s16, 0
s_cbranch_scc1 L_da_w0""")
        L = f"""s_sub_u32 s29, s16, 1
s_lshl_b32 s56, s29, 13
s_add_u32 s56, s56, {2048*(36 - K1)}
s_mul_i32 s57, s17, 73728
s_add_u32 s57, s57, s56
s_add_u32 s57, s57, {WQF}""".split("\n")
        assert K1 == 12
        for k in range(2):
            L += [f"s_add_u32 m0, s56, {k*4096}", "s_nop 0"] + [f"buffer_load_dwordx4 v3, s[8:11], s57 offen offset:{i*1024} {HF[0]} lds" for i in range(4)] + (["s_addk_i32 s57, 4096"] if k == 0 else [])
        L += f"""s_lshl_b32 s56, s29, 14
s_add_u32 s56, s56, {2048*K1}
s_mul_i32 s57, s18, 73728
s_add_u32 s57, s57, s56
s_add_u32 s57, s57, {WQF}""".split("\n")
        for k in range(4):
            L += [f"s_add_u32 m0, s56, {73728 + k*4096}", "s_nop 0"] + [f"buffer_load_dwordx4 v3, s[8:11], s57 offen offset:{i*1024} {HF[0]} lds" for i in range(4)] + (["s_addk_i32 s57, 4096"] if k < 3 else [])
        p(kq.off("\n".join(L + ["s_branch L_da_go", "L_da_w0:"])))
        p(spin("da", 28, 10, 250, 2, 8, PD))
        p("s_barrier")
        p(nst('a_go'))
        p.ext(issue(D1))
    def wrd(f):
        kk, h = units[f // 2]; t = f % 2
        s = WR + 4*(f % NW)
        L = []
        if first and f in bar_at: L.append(I("s_barrier", needs=bar_at[f]))
        a = h*73728 + kk*2048 + t*1024
        L.append(f"ds_read_b128 v[{s}:{s+3}], v{(3, 4, VB2)[a >> 16]} offset:{a & 65535}")
        return L
    for f in range(NW - 1): p.ext(wrd(f))
    p(nst('a_first'))
    G = []
    for u, (kk, h) in enumerate(units):
        R, y = yreg(kk)
        for t in range(2):
            f = 2*u + t
            w = WR + 4*(f % NW)
            acc = ACC + 32*h + 16*t
            c = "0" if kk == 0 else f"v[{acc}:{acc+15}]"
            grp = [f"v_mfma_f32_32x32x16_bf16 v[{acc}:{acc+15}], {R}[{y}:{y+3}], v[{w}:{w+3}], {c}"]
            if f + NW - 1 < 144: grp += wrd(f + NW - 1)
            if t == 1: grp += issue((D0 + (u + 1)*RT) if first else (D1 + (u + 1)*R1), u)
            G.append(grp)
    assert st['ip'] == len(items)
    def epi1(h):
        T0 = ACC + 32*h; T1 = T0 + 16
        L = []
        for i in range(8): L.append(f"v_cvt_pk_bf16_f32 v{V1+i}, v{T1+2*i}, v{T1+2*i+1}")
        for i in range(8): L.append(f"v_cndmask_b32 v{V1+i}, v{V1+i}, v8, s[30:31]")
        ph = phi(list(range(T0, T0 + 16)), TMP)
        pk = [f"v_cvt_pk_bf16_f32 v{P0+i}, v{T0+2*i}, v{T0+2*i+1}" for i in range(8)]
        mm = [f"v_mfma_f32_32x32x16_bf16 v[{KVA}:{KVA+15}], v[{P0+4*q}:{P0+4*q+3}], v[{V1+4*q}:{V1+4*q+3}], " + ("0" if q == 0 else f"v[{KVA}:{KVA+15}]") for q in range(2)]
        L = ph[:32] + pk[:4] + L + [mm[0]] + ph[32:] + pk[4:] + [mm[1]]
        L.append(["s_mov_b64 exec, s[32:33]",
                  f"ds_write_b128 v5, v[{V1}:{V1+3}] offset:512", f"ds_write_b128 v5, v[{V1+4}:{V1+7}] offset:528",
                  f"ds_write_b128 v5, v[{P0}:{P0+3}]", f"ds_write_b128 v5, v[{P0+4}:{P0+7}] offset:16",
                  "s_mov_b64 exec, -1"])
        L += [f"ds_read_b64_tr_b16 v[{QO}:{QO+1}], v6", f"ds_read_b64_tr_b16 v[{QO+2}:{QO+3}], v6 offset:768", f"ds_read_b64_tr_b16 v[{QO+4}:{QO+5}], v6 offset:512"]
        return L
    def epi2():
        u = TMP + 4
        L = [f"v_lshlrev_b32 v{u}, 16, v{QO+2}", f"v_and_b32 v{u+1}, 0xffff0000, v{QO+2}", f"v_lshlrev_b32 v{u+2}, 16, v{QO+3}", f"v_and_b32 v{u+3}, 0xffff0000, v{QO+3}"]
        L += phi([u, u+1, u+2, u+3], TMP)
        L += [f"v_cvt_pk_bf16_f32 v{QO+2}, v{u}, v{u+1}", f"v_cvt_pk_bf16_f32 v{QO+3}, v{u+2}, v{u+3}"]
        return L
    def qst(h):
        L = ["s_xor_b32 s26, s26, 1024", "s_xor_b32 s27, s27, 256"] if h else []
        return L + [f"buffer_store_dwordx4 v[{QO}:{QO+3}], v3, s[8:11], s26 offen {qsf}", f"buffer_store_dword v{QO+4}, v7, s[8:11], s27 offen {qsf}"]
    kvw = lambda h: [I(f"ds_write_b128 v15, v[{KVA}:{KVA+3}] offset:{KVO[h]}", tag=f'kv{h}'), I(f"ds_write_b128 v15, v[{KVA+4}:{KVA+7}] offset:{KVO[h] + 1024}", tag=f'kv{h}'),
                     I(f"ds_write_b64 v14, v[{KVA+8}:{KVA+9}] offset:{KVO[h] + 2048}", tag=f'kv{h}')]
    RB = (16, 32)
    kvr = lambda h: [f"ds_read_b32 v{RB[h] + 4*it + w}, v13 offset:{KVO[h] + w*2560 + it*1024}" for it in range(3) for w in range(4)]
    def kva(h):
        L = []
        for it in range(3):
            b = RB[h] + 4*it
            L += [f"v_add_f32 v{b}, v{b}, v{b+1}", f"v_add_f32 v{b+2}, v{b+2}, v{b+3}", f"v_add_f32 v{b}, v{b}, v{b+2}"]
        return L
    def kat(h):
        b = RB[h]; sk = 28 + h
        return [["s_mov_b64 exec, s[34:35]", f"buffer_atomic_add_f32 v{b}, v13, s[8:11], s{sk} offen", f"buffer_atomic_add_f32 v{b+4}, v13, s[8:11], s{sk} offen offset:1024", "s_mov_b64 exec, -1"]], \
               [["s_cmp_eq_u32 s16, 0", f"s_cbranch_scc0 L_{n}_k{h}", "s_mov_b64 exec, s[38:39]", f"buffer_atomic_add_f32 v{b+8}, v13, s[8:11], s{sk} offen offset:2048 ; @", "s_mov_b64 exec, -1", f"L_{n}_k{h}:"]]
    late = f"""v_bfe_u32 v10, v0, 2, 5
v_lshrrev_b32 v12, 1, v0
v_cmp_gt_u32 s[34:35], 19, v10
v_cmp_eq_u32 s[36:37], 22, v10
s_or_b64 s[34:35], s[34:35], s[36:37]
v_cmp_gt_u32 s[38:39], 19, v12
v_cmp_eq_u32 s[36:37], 22, v12
s_or_b64 s[38:39], s[38:39], s[36:37]
s_mul_i32 s28, s17, 2560
s_add_u32 s28, s28, {KV + L_}
s_mul_i32 s29, s18, 2560
s_add_u32 s29, s29, {KV + L_}
s_lshr_b32 s51, s2, 6
s_mul_i32 s52, s51, 5
s_lshl_b32 s53, s51, 2
s_add_u32 s53, s53, 2
s_cmp_lt_u32 s51, 2
s_cselect_b32 s52, s52, s53
s_mul_i32 s50, s52, 36864
s_mul_i32 s53, s16, 9216
s_add_u32 s50, s50, s53
s_add_u32 s50, s50, {WOF}
s_lshl_b32 s54, s{17 if c32 else 20}, 7
s_add_u32 s54, s54, {CNT + CAB + L_}
v_lshlrev_b32 v10, 12, v2
v_mov_b32 v11, 1""".split("\n")
    wo = wo_loads(range(4))[:NP1]
    def put(L, a, b):
        for k, x in enumerate(L): G[a + k*(b - a)//len(L)] += x if isinstance(x, list) else [x]
    P3 = 2*(36 + K1)
    if first:
        f2 = kq.fchk('f2', 244, 57, 's3')
        G[FP[0]] = G[FP[0]] + kq.fsig('f2', 161, 162, 58)
        G[FP[2]] = G[FP[2]] + [f2[0]]
        for k, x in enumerate(f2[1]): G[FP[3] - 4 + k//2] = G[FP[3] - 4 + k//2] + [x]
        G[FP[3] + 1] = G[FP[3] + 1] + f2[2]
        put(wo[:NPa], FP[3] + 2, 144); rest = wo[NPa:]
    else:
        G[48] = G[48] + ["s_barrier"]
        assert 2*uof[(24, 0)] - NW >= 48
        put(wo, W1[0], W1[1]); rest = []
    G = [[y for x in g for y in (x if isinstance(x, list) else [x])] for g in G]
    for k in range(1, 144):
        if nst(f'a_g{k}'): G[k] = [nst(f'a_g{k}')] + G[k]
    k0, k1 = kat(0)
    fill = epi1(0) + kvw(0) + epi2() + qst(0) + [I("s_barrier", needs=['kv0'])] + kvr(0) + kva(0) + k0 + k1
    a = P3 + E0; b = E1 or 144
    for grp in G[:LT[0]]: p.ext(grp)
    p.ext(interleave(G[LT[0]:LT[1]], atomize(late)))
    for grp in G[LT[1]:a]: p.ext(grp)
    p.ext(interleave(G[a:b], fill))
    for grp in G[b:]: p.ext(grp)
    p(nst('a_epi'))
    e1 = epi1(1)
    kx = len(rest) * 2 // 3
    p.ext(interleave([x if isinstance(x, list) else [x] for x in e1], rest[:kx]))
    p.ext(kvw(1))
    for x in rest[kx:]: p.ext(x)
    p("s_waitcnt lgkmcnt(0)")
    p("s_barrier")
    p.ext(kvr(1)); p.ext(epi2()); p.ext(kva(1))
    k0, k1 = kat(1)
    p.ext(k0[0]); p.ext(qst(1)); p.ext(k1[0])
    for k, i in enumerate(p.ins):
        if i.op == 's_barrier':
            for t in i.needs: assert all(kk < k for kk, j in enumerate(p.ins) if j.tag == t), t
    p(nst('a_st'))
    if first: p("s_branch L_ab")
    return p.finish() + (f2[3] if first else "")

def w_mid2():
    L = f"""s_cmp_eq_u32 s63, 0
s_cbranch_scc0 L_wm_skip
s_and_b32 s52, s2, {(3, 1, 0)[AM1[0]]}
s_lshl_b32 s52, s52, {3 + AM1[0]}
s_lshr_b32 s53, s2, {6 - AM1[0]}
s_lshl_b32 s53, s53, 1
s_add_u32 s52, s52, s53
s_bfe_u32 s53, s2, 0x10003
s_add_u32 s52, s52, s53
s_xor_b32 s37, s52, 1
s_mul_i32 s52, s52, 73728
s_mul_i32 s37, s37, 73728
s_mul_i32 s53, s16, 12288
s_add_u32 s52, s52, s53
s_add_u32 s52, s52, {WQF}
s_mov_b32 m0, s53""".split("\n")
    for k in range(3):
        if k: L += [f"s_add_u32 m0, s53, {k*4096}", "s_addk_i32 s52, 4096"]
        L += ["s_nop 0"] + [f"buffer_load_dwordx4 v3, s[8:11], s52 offen offset:{i*1024} {HF[0]} lds" for i in range(4)]
    L += ["s_lshr_b32 s53, s53, 1", "s_add_u32 s37, s37, s53", f"s_add_u32 s37, s37, {WQF}"]
    for k in range(2):
        L += [f"s_add_u32 m0, s53, {73728 + k*4096}"] + (["s_addk_i32 s37, 4096"] if k else [])
        L += ["s_nop 0"] + [f"buffer_load_dwordx4 v3, s[8:11], s37 offen offset:{i*1024} {HF[0]} lds" for i in range(4 if k == 0 else 2)]
    return L

OOL = []
def ab_link(NP1=36, lp=None, NPw=0, ina=False, inb=False):
    p = Prog()
    if ina: lp = None; p("s_cmp_eq_u32 s63, 0\ns_cselect_b32 s55, s55, 0")
    if lp is not None: p(kq.LATE_KA)
    p(f"""s_and_b32 s17, s2, 7
s_lshl_b32 s17, s17, 3
s_bfe_u32 s19, s2, 0x30003
s_add_u32 s17, s17, s19
s_mov_b32 s18, s52
{chr(10).join(y for x in wo_loads(range(4))[NP1:NP1 + NPw] for y in x)}
s_waitcnt vmcnt({NPw})
s_barrier
s_cmp_eq_u32 s16, 0
s_cbranch_scc0 L_ab_ns
s_mov_b64 exec, {0xff if RAB[0] == 1 else 0xffff}
buffer_atomic_add v11, v10, s[8:11], s54 offen
s_mov_b64 exec, -1
L_ab_ns:""")
    p(nst('a_sig'))
    for x in wo_loads(range(4))[NP1 + NPw:]: p.ext(x)
    if lp is not None: p(kq.late_setup()); p('L_ld_e:' if inb else kq.late_dmas(**lp))
    return p.finish() + "  s_cmp_lt_u32 s51, 2\n  s_cbranch_scc0 L_b4\n"

def b_part(NT, cz, xsf="sc1", PFD=3, PD=1, lf='sc1', allp=False, pbar=False, x4=False, dx=False, sb=None, PFN=5, PFR=(99, 0), BL0=8, BLX=None, ldb=None):
    p = Prog()
    KVR, NUM, TL, ACC, XR = 16, 112, 144, 152, 232
    aPQ = 0
    if NT == 5:
        for x in wo_loads(range(3, 5))[9:]: p.ext(x)
    p(f"""s_lshl_b32 s19, s16, 3
s_mul_i32 s20, s19, 2560
s_add_u32 s20, s20, {KV}{lay('s20')}
s_lshl_b32 s21, s17, 5
s_add_u32 s21, s21, s19
s_lshl_b32 s22, s21, 8
s_lshl_b32 s21, s21, 10
s_add_u32 s21, s21, {PQ16}{lay('s21')}
s_add_u32 s22, s22, {PQ4}{lay('s22')}
v_lshlrev_b32 v4, 3, v2
v_lshlrev_b32 v5, 2, v2
v_and_b32 v6, 24, v2
v_cmp_eq_u32 vcc, 24, v6
v_mov_b32 v6, 0x40000000
v_cndmask_b32 v12, v3, v6, vcc
v_cndmask_b32 v4, v4, v6, vcc
v_add_u32 v6, 4096, v3
s_mul_i32 s25, s17, 36864
s_lshl_b32 s26, s18, 11
s_add_u32 s25, s25, s26
s_lshl_b32 s26, s16, 9
s_add_u32 s25, s25, s26{lay('s25')}
s_add_u32 s26, s25, {XF}
s_add_u32 s27, s25, {X1F}
v_and_b32 v8, 31, v2
v_lshlrev_b32 v8, 4, v8
v_lshrrev_b32 v9, 5, v2
v_lshl_add_u32 v8, v9, 3, v8
v_add_u32 v9, 4096, v8
v_add_u32 v10, 8192, v8""")
    if x4:
        p("""v_and_b32 v246, 31, v2
v_lshrrev_b32 v247, 5, v2
v_lshlrev_b32 v8, 4, v246
v_lshl_add_u32 v8, v247, 11, v8
v_add_u32 v9, 4096, v8""")
        if dx:
            p(f"""s_mul_i32 s31, s17, 36864
s_lshl_b32 s32, s18, 6
s_add_u32 s31, s31, s32
s_lshl_b32 s32, s16, 4
s_add_u32 s31, s31, s32
s_cmp_eq_u32 s63, 0
s_cselect_b32 s26, s31, s26
s_cselect_b32 s31, 1152, 16
s_cselect_b32 s32, 64, 2048
v_mul_u32_u24 v246, s31, v246
v_mul_u32_u24 v13, s32, v247
v_lshl_add_u32 v247, v247, 3, v246
v_add_u32 v246, v246, v13
s_lshl_b32 s32, s32, 1
s_add_u32 s31, s26, s32
s_add_u32 s32, s31, s32""")
    for h in range(8): p(f"v_accvgpr_write_b32 a{aPQ+6*h+5}, 0")
    for g in range(1, 4):
        p(f"""s_add_u32 s28, s16, {g}
s_and_b32 s28, s28, 3
s_mul_i32 s28, s28, {3*NT*1024}
s_add_u32 s28, s28, {(g-1)*NT*1024}
v_add_u32 v{242+g}, s28, v3""")
    p(f"s_mul_i32 s28, s16, {3*NT*1024}\nv_add_u32 v14, s28, v3")
    p(f"s_lshl_b32 s28, s17, 8\ns_add_u32 s28, s28, {ST}{lay('s28')}")
    p.ext(cz[1])
    p(f"s_lshr_b32 s67, s17, 1\ns_lshl_b32 s67, s67, 2\ns_add_u32 s67, s67, s16\ns_lshl_b32 s67, s67, 7\ns_add_u32 s67, s67, {CNT + REP['bc'][0]}{lay('s67')}")
    pf = list(cz[3])
    if not allp and not pbar:
        for x in pf[:3]: p.ext(x)
    p(f"""s_lshl_b32 s29, s16, 10
s_bfe_u32 s30, s2, {('0x40003', '0x30000', '0x40000')[RAB[0]]}
s_lshl_b32 s30, s30, 12
s_add_u32 s29, s29, s30
s_add_u32 s29, s29, {CNT + CAB}{lay('s29')}
v_lshlrev_b32 v7, 7, v2
s_mov_b32 s49, 0x40000""")
    if allp:
        p(f"s_waitcnt vmcnt(0)\ns_cmp_eq_u32 s16, 0\ns_cbranch_scc0 L_ab{NT}_go")
        p(spin(f"ab{NT}", 29, 7, 250, 32, 8, PD)); p("s_barrier")
    elif sb is not None:
        p(f"s_cmp_eq_u32 s16, 0\ns_cbranch_scc0 L_ab{NT}_go")
        p(spin(f"ab{NT}", 29, 7, 250, 16, 16, PD) if A2[0] == 1 else spin(f"ab{NT}", 29, 7, 250, 32, 8, PD)); p("s_barrier")
    else: p(spin(f"ab{NT}", 29, 7, 250, 8, 8, PD))
    if sb is None: p.ins.append(I("s_nop 0", tag='__clr'))
    p(nst('b_go'))
    def hld(h):
        k = KVR + 12*h; q = aPQ + 6*h
        L = f"""buffer_load_dwordx4 v[{k}:{k+3}], v12, s[8:11], s20 offen {lf}
buffer_load_dwordx4 v[{k+4}:{k+7}], v12, s[8:11], s20 offen offset:1024 {lf}
buffer_load_dwordx2 v[{k+8}:{k+9}], v4, s[8:11], s20 offen offset:2048 {lf}
buffer_load_dwordx4 a[{q}:{q+3}], v{(3,6)[h//4]}, s[8:11], s21 offen offset:{(h%4)*1024} {lf}
buffer_load_dword a{q+4}, v5, s[8:11], s22 offen offset:{h*256} {lf}""".split("\n")
        L = [[x] for x in L]
        if h < 7: L[2].append("s_addk_i32 s20, 2560")
        return L
    xld = []
    if x4:
        for u in range(2): xld.append([f"buffer_load_dwordx4 v[{XR+4*u}:{XR+4*u+3}], " + (f"v246, s[12:15], s{(26, 31)[u]}" if dx else f"v{8+u}, s[8:11], s26") + f" offen {lf}"])
        if NT == 5: xld.append([f"buffer_load_dwordx2 v[{XR+8}:{XR+9}], " + ("v247, s[12:15], s32" if dx else "v10, s[8:11], s26") + f" offen {lf}"])
    else:
        for t in range(NT): xld.append([f"buffer_load_dwordx2 v[{XR+2*t}:{XR+2*t+1}], v{8 + t//2}, s[8:11], s26 offen offset:{(t%2)*2048} {lf}"])
    for h in range(BL0):
        for x in hld(h): p.ext(x)
    if BLX is None: BLX = 8 - BL0
    if BL0 == 8:
        for x in xld: p.ext(x)
    def prep(h):
        k = KVR + 12*h; q = aPQ + 6*h; n = NUM + 16*(h % 2)
        L = [f"v_cvt_pk_bf16_f32 v{k+i}, v{k+2*i}, v{k+2*i+1}" for i in range(5)]
        L.append(f"v_mov_b32 v{k+5}, 0")
        L.append(f"v_mfma_f32_32x32x16_bf16 v[{n}:{n+15}], v[{k}:{k+3}], a[{q}:{q+3}], 0")
        L.append(f"v_mfma_f32_32x32x8_bf16 v[{n}:{n+15}], v[{k+4}:{k+5}], a[{q+4}:{q+5}], v[{n}:{n+15}]")
        return L
    def post(h):
        n = NUM + 16*(h % 2); o = KVR + 12*h + 8
        L = [f"v_add_f32 v11, 0x358637bd, v{n+10}", "v_rcp_f32 v11, v11"]
        for i in range(10): L.append(f"v_mul_f32 v{n+i}, v{n+i}, v11")
        for i in range(4): L.append(f"v_cvt_pk_bf16_f32 v{o+i}, v{n+2*i}, v{n+2*i+1}")
        L.append(f"v_cvt_pk_bf16_f32 v{TL + h//2 + 4*(h%2)}, v{n+8}, v{n+9}")
        return L
    def gemm(ks):
        o = KVR + 12*ks + 8 if ks < 8 else TL
        G = []
        for t in range(NT):
            r = aWOr(ks, t); a = ACC + 16*t
            c = "0" if ks == 0 else f"v[{a}:{a+15}]"
            G.append([f"v_mfma_f32_32x32x16_bf16 v[{a}:{a+15}], a[{r}:{r+3}], v[{o}:{o+3}], {c}"])
        return G
    flat = lambda L: [y for x in L for y in (x if isinstance(x, list) else [x])]
    for st in range(11):
        ks = st - PFD
        nl = pf[3 + PFN*ks: 3 + PFN*(ks + 1)] if ks >= 0 else []
        if BL0 < 8: nl = (hld(st + BL0) if st + BL0 < 8 else []) + (xld if st == BLX else []) + nl
        if (allp or pbar) and ks == -1: nl = pf[:3]
        if pbar and ks == -1: p('s_barrier')
        p(nst(f'b_s{st}'))
        if st == ldb:
            m_, ool_ = kq.late_dmas_uni(va=250, vd=253)
            p.ext([x.replace('L_lu', f'L_lu{NT}') for x in m_]); OOL.append(ool_.replace('L_lu', f'L_lu{NT}'))
        if st < 8: p.ext(prep(st))
        fill = post(st - 1) if 0 <= st - 1 < 8 else []
        if st == 9: fill = [f"v_permlane32_swap_b32 v{TL+i}, v{TL+4+i}" for i in range(4)]
        if nl:
            m = []; step = max(1, len(fill) // len(nl)) if fill else 1; fi = 0
            for x in nl:
                m.append(x); m += fill[fi:fi+step]; fi += step
            fill = m + fill[fi:]
        if st >= 2: p.ext(interleave(gemm(st - 2), fill))
        else: p.ext(flat(fill))
    rest = pf[3 + PFN*(10 - PFD + 1):]
    r0, r1, r2 = rest[:PFR[0]], rest[PFR[0]:PFR[0] + PFR[1]], rest[PFR[0] + PFR[1]:]
    p(nst('b_gemm'))
    p.ext(interleave([[f"ds_write_b128 v{242+g}, v[{ACC + 16*t + 4*g}:{ACC + 16*t + 4*g + 3}] offset:{t*1024}"] for t in range(NT) for g in range(1, 4)], r0))
    p("s_waitcnt lgkmcnt(0)")
    p(nst('b_w'))
    p("s_barrier")
    p(nst('b_bar'))
    RD = KVR
    for t in range(NT):
        for g in range(3):
            r = RD + 12*t + 4*g
            p(f"ds_read_b128 v[{r}:{r+3}], v14 offset:{(g*NT + t)*1024}")
    for x in r1: p.ext(x)
    p("v_mov_b32 v15, 0\nv_mov_b32 v11, 0")
    swp = lambda u: f"v_permlane32_swap_b32 v{XR+4*u}, v{XR+4*u+2}\nv_permlane32_swap_b32 v{XR+4*u+1}, v{XR+4*u+3}"
    if x4:
        for u in range(2): p(swp(u))
    for t in range(NT):
        a = ACC + 16*t; x = XR + 2*t; u = a + 4
        p(f"v_lshlrev_b32 v{u}, 16, v{x}\nv_and_b32 v{u+1}, 0xffff0000, v{x}\nv_lshlrev_b32 v{u+2}, 16, v{x+1}\nv_and_b32 v{u+3}, 0xffff0000, v{x+1}")
        for i in range(4): p(f"v_add_f32 v{a+i}, v{a+i}, v{u+i}")
    for t in range(NT):
        a = ACC + 16*t; r = RD + 12*t; x = XR + 2*t
        for i in range(4): p(f"v_add_f32 v{a+i}, v{a+i}, v{r+i}")
        for i in range(4): p(f"v_add_f32 v{r+4+i}, v{r+4+i}, v{r+8+i}")
        for i in range(4): p(f"v_add_f32 v{a+i}, v{a+i}, v{r+4+i}")
        p(f"v_cvt_pk_bf16_f32 v{x}, v{a}, v{a+1}\nv_cvt_pk_bf16_f32 v{x+1}, v{a+2}, v{a+3}")
        if not x4 or t == 4: p(f"buffer_store_dwordx2 v[{x}:{x+1}], v{8 + t//2}, s[8:11], s27 offen offset:{(t%2)*2048} {xsf}")
        elif t % 2: p(swp(t//2)); p(f"buffer_store_dwordx4 v[{x-2}:{x+1}], v{8 + t//2}, s[8:11], s27 offen {xsf}")
    p(nst('b_x1'))
    for t in range(NT):
        a = ACC + 16*t; x = XR + 2*t; u = a + 4
        p(f"v_lshlrev_b32 v{u}, 16, v{x}\nv_and_b32 v{u+1}, 0xffff0000, v{x}\nv_lshlrev_b32 v{u+2}, 16, v{x+1}\nv_and_b32 v{u+3}, 0xffff0000, v{x+1}")
        for i in range(4): p(f"v_add_f32 v15, v15, v{u+i}\nv_fmac_f32 v11, v{u+i}, v{u+i}")
    p(f"""v_permlane32_swap_b32 v15, v11
v_add_f32 v15, v15, v11
buffer_atomic_add_f32 v15, v5, s[8:11], s28 offen
v_lshlrev_b32 v4, 14, v2
v_mov_b32 v6, 1
{nst('b_st')}
s_waitcnt vmcnt(0)
s_mov_b64 exec, {(1 << REP['bc'][1]) - 1}
buffer_atomic_add v6, v4, s[8:11], s67 offen
s_mov_b64 exec, -1""")
    p(nst('b_sig'))
    for x in r2: p.ext(x)
    if NT == 5: p("s_branch L_bc_c")
    return p.finish(), ''

def w_mid():
    L = f"""s_cmp_eq_u32 s63, 0
s_cbranch_scc0 L_wm_skip
{a_head1()}
s_mul_i32 s52, s52, 73728
s_add_u32 s52, s52, {WQF}
s_mul_i32 s53, s16, 18432
s_add_u32 s52, s52, s53
s_mov_b32 m0, s53""".split("\n")
    for k in range(5):
        if k: L += [f"s_add_u32 m0, s53, {k*4096}", "s_addk_i32 s52, 4096"]
        L += ["s_nop 0"] + [f"buffer_load_dwordx4 v3, s[8:11], s52 offen offset:{i*1024} {HF[0]} lds" for i in range(4 if k < 4 else 2)]
    return L

def w_early():
    L = f"""s_cmp_eq_u32 s63, 0
s_cbranch_scc0 L_we_skip
s_and_b32 s52, s2, 3
s_lshl_b32 s52, s52, 3
s_lshr_b32 s53, s2, 5
s_add_u32 s52, s52, s53
s_mul_i32 s52, s52, 73728
s_add_u32 s52, s52, {WQF}
s_sub_u32 s53, s16, 1
s_mul_i32 s53, s53, 24576
s_add_u32 s52, s52, s53
s_mov_b32 m0, s53""".split("\n")
    for k in range(6):
        if k: L += [f"s_add_u32 m0, s53, {k*4096}", "s_addk_i32 s52, 4096"]
        L += ["s_nop 0"] + [f"buffer_load_dwordx4 v3, s[8:11], s52 offen offset:{i*1024} lds ; @" for i in range(4)]
    return L + ["L_we_skip:", "s_branch L_cd_go"]

def d_part(sf="sc1", lf="sc1", PD=1, we=True, p0=False, dx=False, wk=False, two=None, peek=False, pre=False, late=False, own=False, xl=False, three=None, xlate=False, osf=None, tcl='sc1'):
    p = Prog()
    PL, XL, BL, X, U = 32, 112, 124, 136, 160
    LX = LXD if A2[0] else 131072
    p(f"""s_lshr_b32 s20, s17, 2
s_lshl_b32 s21, s18, 1
s_add_u32 s20, s20, s21
s_and_b32 s21, s17, 3
s_mul_i32 s22, s20, 36864
s_lshl_b32 s23, s21, 7
s_add_u32 s22, s22, s23
s_add_u32 s22, s22, s63
s_lshl_b32 s24, s20, 8
s_lshl_b32 s25, s21, 5
s_add_u32 s24, s24, s25
s_add_u32 s24, s24, {ST}
s_add_u32 s24, s24, s63
s_lshl_b32 s25, s20, 5
s_lshl_b32 s26, s21, 3
s_add_u32 s25, s25, s26
s_mul_i32 s25, s25, 1152
s_lshl_b32 s26, s18, 9
s_add_u32 s26, s26, {CNT + REP['cd'][0]}
s_add_u32 s26, s26, s63
s_lshl_b32 s36, s16, 7
s_add_u32 s36, s36, s26
s_and_b32 s27, s2, {REP['cd'][1] - 1}
s_lshl_b32 s27, s27, 14
s_add_u32 s26, s26, s27
v_and_b32 v4, 7, v0
v_lshrrev_b32 v5, 3, v0
v_lshlrev_b32 v6, 9, v5
v_lshl_add_u32 v6, v4, 4, v6
v_add_u32 v7, {8192 if two else 16384}, v6
v_lshrrev_b32 v8, 2, v5
v_lshlrev_b32 v8, 9, v8
v_lshl_add_u32 v8, v4, 4, v8
v_and_b32 v9, 3, v5
v_lshl_add_u32 v8, v9, 2, v8
v_add_u32 v8, 32768, v8
v_lshlrev_b32 v9, 4, v5
v_lshlrev_b32 v10, 2, v5
v_lshlrev_b32 v11, 2, v4
s_add_u32 s27, s22, {X1F}""")
    B0, O1 = (18, 256) if two else (9, 512)
    md = two[2] if two else None
    B1 = 9
    if md:
        B1, O1 = 18, 128
        p(f"""s_cmp_eq_u32 s16, 0
s_cselect_b32 s37, 2, 3
s_cmp_eq_u32 s16, 2
s_cselect_b32 s37, -2, s37
s_lshl_b32 s37, s37, 7
v_add_u32 v18, s37, v9
s_lshl_b32 s37, s37, 5
v_add_u32 v6, s37, v6
v_add_u32 v7, 4096, v6""")
    elif two:
        p(f"""s_lshr_b32 s37, s16, 1
s_lshl_b32 s37, s37, 9
v_add_u32 v18, s37, v9
s_lshl_b32 s37, s37, 5
v_add_u32 v6, s37, v6""")
    if two:
        p(f"""s_lshl_b32 s37, s18, 9
s_add_u32 s37, s37, {CNT + two[0]}
s_add_u32 s37, s37, s63""")
        if two[1] > 1: p(f"s_and_b32 s49, s2, {two[1] - 1}\ns_lshl_b32 s49, s49, 14\ns_add_u32 s37, s37, s49")
    srd(p, 12, 40, 1152)
    p(f"""buffer_load_dword v24, v11, s[8:11], s24 offen sc1
buffer_load_dword v25, v11, s[8:11], s24 offen offset:128 sc1""")
    if not xl: p(f"""buffer_load_dwordx4 v[{XL}:{XL+3}], v6, s[8:11], s27 offen sc1
buffer_load_dwordx4 v[{XL+4}:{XL+7}], v7, s[8:11], s27 offen sc1
buffer_load_dword v{XL+8}, v8, s[8:11], s27 offen sc1""")
    p(f"""buffer_load_dwordx4 v[{BL}:{BL+3}], v{B0}, s[12:15], 0 offen
buffer_load_dwordx4 v[{BL+4}:{BL+7}], v{B1}, s[12:15], 0 offen offset:{O1}
buffer_load_dword v{BL+8}, v10, s[12:15], 0 offen offset:1024
v_lshlrev_b32 v12, 14, v2
v_mov_b32 v13, 1
s_mov_b32 s49, 0x40000""")
    ldr = lambda r: [f"buffer_load_dwordx4 v[{PL+32*r+4*j}:{PL+32*r+4*j+3}], v{6+r}, s[8:11], s{28+j} offen {lf}" if r < 2 else f"buffer_load_dword v{PL+64+j}, v8, s[8:11], s{28+j} offen {lf}" for j in range(1 if own else 0, 8)]
    NA = 14 if own else 16
    def ptrs():
        for j in range(8):
            if not own: p(f"s_add_u32 s{28+j}, s22, {PART + j*ACT}")
            elif j: p(f"s_add_u32 s{28+j}, s17, {j}\ns_and_b32 s{28+j}, s{28+j}, 7\ns_mul_i32 s{28+j}, s{28+j}, {ACT}\ns_add_u32 s{28+j}, s{28+j}, s28")
            else: p(f"s_add_u32 s28, s22, {PART}\ns_lshr_b32 s29, s17, 2\ns_mul_i32 s29, s29, 36864\ns_add_u32 s29, s29, s23\ns_add_u32 s29, s29, 73728\nv_add_u32 v20, s29, v6\nv_add_u32 v21, s29, v7\nv_add_u32 v28, s29, v8")
    OWN = [f"ds_read_b128 v[{PL}:{PL+3}], v20", f"ds_read_b32 v{PL+64}, v28", f"ds_read_b128 v[{PL+32}:{PL+35}], v21"] if own else []
    LDS_ = ldr(0) + ldr(2) + ldr(1) if two and not md else ldr(0) + ldr(1) + ldr(2)
    SIG = f"""s_mov_b64 exec, {(1 << REP['cd'][1]) - 1}
buffer_atomic_add v13, v12, s[8:11], s36 offen
s_mov_b64 exec, -1
v_lshlrev_b32 v12, 7, v2"""
    if own: assert two and late and not md and not peek
    if peek or late: ptrs()
    if xl:
        assert own and pre
        p(f"v_subrev_u32 v29, 73728, v20\nv_subrev_u32 v30, 73728, v21\nv_subrev_u32 v31, 73728, v28\nds_read_b128 v[{XL}:{XL+3}], v29\nds_read_b128 v[{XL+4}:{XL+7}], v30\nds_read_b32 v{XL+8}, v31")
    if own: p("s_waitcnt lgkmcnt(0)")
    if peek:
        p(kq.off("\n".join(["s_waitcnt vmcnt(12)", "s_mov_b64 exec, 15", "v_cmp_gt_u32 vcc, 8, v23", "s_mov_b64 exec, -1", "s_nop 3", "s_cbranch_vccnz L_ca_slow"] + LDS_[:16] +
                           ["s_waitcnt vmcnt(24)", SIG, "s_barrier", "s_branch L_ca_m", "L_ca_slow:"])))
        p("s_waitcnt vmcnt(8)\n" + SIG)
        p("s_cmp_eq_u32 s16, 0\ns_cbranch_scc0 L_ca_go")
        sp = spin("ca", 37, 12, 250, 4, 8, PD).split("\n")
        p("\n".join(sp[:-1]))
        p(kq.off("\n".join(LDS_[:16] + ["s_barrier", "s_branch L_ca_m"])))
        p(sp[-1])
        p("s_barrier")
        p.ext(LDS_[:16])
        p("L_ca_m:")
    elif three:
        p(f"s_add_u32 s39, s37, {three[0] - two[0]}\nv_lshlrev_b32 v22, 7, v2\ns_mov_b64 exec, 15\nbuffer_load_dword v23, v22, s[8:11], s39 offen sc1\ns_mov_b64 exec, -1\ns_waitcnt vmcnt(%d)\n" % (6 if xl else 9) + SIG)
    elif pre:
        p("v_lshlrev_b32 v22, 7, v2\ns_mov_b64 exec, 15\nbuffer_load_dword v23, v22, s[8:11], s37 offen sc1\ns_mov_b64 exec, -1\ns_waitcnt vmcnt(%d)\n" % (6 if xl else 9) + SIG)
    else: p("s_waitcnt vmcnt(8)\n" + SIG)
    p(nst('d_sig'))
    if p0 and tcl == 'mid':
        srd(p, 88, 6, 256)
        p('''s_xor_b32 s60, s16, 1
s_or_b32 s60, s60, s2
s_cmp_eq_u32 s60, 0
s_cbranch_scc0 L_d_nt
v_mov_b32 v251, 0
s_mov_b64 exec, 1
buffer_store_dword v251, v251, s[88:91], 0 offen sc1 ; @
s_mov_b64 exec, -1
L_d_nt:''')
    nd = [4, 4, 1]
    def precomp():
        p(f"""v_mul_f32 v24, 0x3ae38e39, v24
v_mul_f32 v25, 0x3ae38e39, v25
v_fma_f32 v25, -v24, v24, v25
v_max_f32 v25, 0, v25
v_mov_b32 v26, 0x3f800054
v_mov_b32 v27, 0x2edbe6ff
v_fma_f32 v25, v25, v26, v27
v_rsq_f32 v25, v25
v_mov_b32 v14, 0x3f80
v_mov_b32 v15, 0x3f800000
v_mul_u32_u24 v16, 1152, v4
v_add_u32 v17, v16, v10
v_add_u32 v19, v16, v{B1}
v_add_u32 v18, v16, v{B0}""")
        for r in range(3):
            for i in range(nd[r]):
                x = XL + 4*r + i; b = BL + 4*r + i; u = U + 8*r + 2*i
                p(f"v_lshlrev_b32 v{u}, 16, v{x}\nv_and_b32 v{u+1}, 0xffff0000, v{x}\nv_lshlrev_b32 v{x}, 16, v{b}\nv_and_b32 v{b}, 0xffff0000, v{b}")
                p(f"v_add_f32 v{u}, v{u}, v{x}\nv_add_f32 v{u+1}, v{u+1}, v{b}")
    if not late: precomp()
    if not peek and not late:
        for j in range(8): p(f"s_add_u32 s{28+j}, s22, {PART + j*ACT}")
    if we == 1:
        p("s_cmp_eq_u32 s16, 0\ns_cbranch_scc1 L_cd_w0")
        p.ext(w_early()); p("L_cd_w0:")
    elif wk: p("s_cmp_eq_u32 s16, 0\ns_cbranch_scc1 L_cd_w0\n" + walk('wd', 1, 3) + "\ns_branch L_cd_go\nL_cd_w0:")
    elif not two or peek: p("s_cmp_eq_u32 s16, 0\ns_cbranch_scc0 L_cd_go")
    if md == 'own':
        p("s_cmp_lt_u32 s16, 2\ns_cselect_b32 s26, s26, s37")
        p(spin("cd", 26, 12, 250, 4, 8, PD))
        p(nst('d_go'))
        p.ext(LDS_)
    elif md == 'bar':
        p("s_cmp_eq_u32 s16, 0\ns_cbranch_scc0 L_ca_go")
        p(spin("ca", 37, 12, 250, 4, 8, PD))
        p("s_barrier")
        p(nst('d_ga'))
        p("s_cmp_lt_u32 s16, 2\ns_cbranch_scc1 L_cd_w0")
        p(kq.off("\n".join(LDS_ + ["s_barrier", "s_branch L_cd_ld"])))
        p("L_cd_w0:\ns_cmp_eq_u32 s16, 0\ns_cbranch_scc0 L_cd_go")
        p(spin("cd", 26, 12, 250, 4, 8, PD))
        p("s_barrier")
        p(nst('d_go'))
        p.ext(LDS_)
        p("L_cd_ld:")
    elif three:
        n7 = NA // 2
        LDS_ = ldr(2) + ldr(0) + ldr(1)
        p("s_cmp_eq_u32 s16, 0\ns_cbranch_scc0 L_c1_go")
        p(kq.off("s_waitcnt vmcnt(1)\ns_mov_b64 exec, 15\nv_cmp_gt_u32 vcc, 8, v23\ns_nop 4\ns_cbranch_vccz L_c1_ok"))
        p(spin("c1", 39, 12, 250, 4, 8, PD))
        p("s_barrier")
        p(nst('d_g1'))
        p("s_cmp_lt_u32 s16, 2\ns_cbranch_scc1 L_c1_lo")
        p(kq.off("\n".join(ldr(0) + ldr(2) + ["s_barrier", "s_branch L_cd_w0", "L_c1_lo:"])))
        p.ext(LDS_[:n7])
        p("s_cmp_eq_u32 s16, 0\ns_cbranch_scc0 L_ca_go")
        p(spin("ca", 37, 12, 250, 4, 8, PD))
        p("s_barrier")
        p(nst('d_ga'))
        p.ext(LDS_[n7:NA])
        p("L_cd_w0:"); p.ext(OWN); precomp(); p("s_waitcnt lgkmcnt(0)" if own else ""); p("s_cmp_eq_u32 s16, 0\ns_cbranch_scc0 L_cd_go")
    elif two and not peek:
        p("s_cmp_eq_u32 s16, 0\ns_cbranch_scc0 L_ca_go")
        if pre: p(kq.off("s_waitcnt vmcnt(1)\ns_mov_b64 exec, 15\nv_cmp_gt_u32 vcc, 8, v23\ns_nop 4\ns_cbranch_vccz L_ca_ok"))
        sp = spin("ca", 37, 12, 250, 4, 8, PD).split("\n")
        p("\n".join(sp[:-1]))
        p(kq.off("\n".join(LDS_[:NA] + ["s_barrier", "s_branch L_cd_w0"])))
        p(sp[-1])
        p("s_barrier")
        p(nst('d_ga'))
        p.ext(LDS_[:NA])
        if late:
            p("L_cd_w0:"); p.ext(OWN); precomp(); p("s_waitcnt lgkmcnt(0)" if own else ""); p("s_cmp_eq_u32 s16, 0\ns_cbranch_scc0 L_cd_go")
        else: p("s_branch L_cd_go\nL_cd_w0:")
    if not md:
        p(spin("cd", 26, 12, 250, 4, 8, PD))
        p("s_barrier")
        p(nst('d_go'))
        p.ext(LDS_[NA:] if two else LDS_)
    def sums(p):
        for r in ((0, 2, 1) if two and not md else range(3)):
            src = lambda j, i: PL + 32*r + 4*j + i if r < 2 else PL + 64 + j
            for i in range(nd[r]): p(f"v_lshlrev_b32 v{X+8*r+2*i}, 16, v{src(0, i)}\nv_and_b32 v{X+8*r+2*i+1}, 0xffff0000, v{src(0, i)}")
            for j in range(1, 8):
                for i in range(nd[r]): p(f"v_dot2c_f32_bf16 v{X+8*r+2*i}, v{src(j, i)}, v14\nv_dot2c_f32_bf16 v{X+8*r+2*i+1}, v{src(j, i)}, v15")
            for i in range(2*nd[r]): p(f"v_fma_f32 v{X+8*r+i}, v{X+8*r+i}, v25, v{U+8*r+i}")
            for i in range(nd[r]): p(f"v_cvt_pk_bf16_f32 v{PL+32*r+i}, v{X+8*r+2*i}, v{X+8*r+2*i+1}")
    if we == 2:
        p.ext(w_mid2() if A2[0] else w_mid())
        n0 = len(p.ins); sums(p)
        p("s_branch L_cd_mid\nL_wm_skip:")
        q = Prog()
        q.ext(LDS_)
        sums(q); q.resolve_waits()
        for i in q.ins[len(LDS_):]: i.text += " ; @"
        p.ins += q.ins[len(LDS_):]
    else: sums(p)
    O = [PL, PL + 32, PL + 64]
    p(nst('d_use'))
    if we != 2: p("s_cmp_eq_u32 s63, 0\ns_cbranch_scc1 L_cd_mid")
    srd(p, 12, 42, ACT)
    p(f"""buffer_store_dwordx4 v[{O[0]}:{O[0]+3}], v18, s[12:15], s25 offen {sf if osf is None else osf}
buffer_store_dwordx4 v[{O[1]}:{O[1]+3}], v19, s[12:15], s25 offen offset:{O1} {sf if osf is None else osf}
buffer_store_dword v{O[2]}, v17, s[12:15], s25 offen offset:1024 {sf if osf is None else osf}""")
    if p0 and tcl != 'mid':
        srd(p, 36, 6, 256)
        p(f'''s_or_b32 s60, s2, s16
s_cmp_eq_u32 s60, 0
s_cbranch_scc0 L_d_nt
v_mov_b32 v20, 0
s_mov_b64 exec, 1
buffer_store_dword v20, v20, s[36:39], 0 offen {tcl} ; @
s_mov_b64 exec, -1
L_d_nt:''')
    if SC.sel: p("s_waitcnt vmcnt(0) ; @"); p(nst('d_end')); nst_dump(p, 'd2')
    p("s_endpgm\nL_cd_mid:")
    p(f"""s_add_u32 s27, s22, {XF + LS}
s_add_u32 s28, s22, {YF + LS}""")
    XST = f"""buffer_store_dwordx4 v[{O[0]}:{O[0]+3}], v6, s[8:11], s27 offen {sf}
buffer_store_dwordx4 v[{O[1]}:{O[1]+3}], v7, s[8:11], s27 offen {sf}
buffer_store_dword v{O[2]}, v8, s[8:11], s27 offen {sf}"""
    if not xlate: p(XST)
    XS = []
    for r in range(3):
        for i in range(nd[r]):
            p(f"v_lshlrev_b32 v{X+8*r+2*i}, 16, v{O[r]+i}\nv_and_b32 v{X+8*r+2*i+1}, 0xffff0000, v{O[r]+i}")
            XS += [X+8*r+2*i, X+8*r+2*i+1]
    p(f"v_add_f32 v24, v{XS[0]}, v{XS[1]}\nv_add_f32 v26, v{XS[2]}, v{XS[3]}\nv_mul_f32 v25, v{XS[0]}, v{XS[0]}\nv_mul_f32 v27, v{XS[1]}, v{XS[1]}")
    for k, x in enumerate(XS[4:]): p(f"v_add_f32 v{24 + 2*(k%2)}, v{24 + 2*(k%2)}, v{x}")
    for k, x in enumerate(XS[2:]): p(f"v_fmac_f32 v{25 + 2*(k%2)}, v{x}, v{x}")
    p(f"""v_add_f32 v24, v24, v26
v_add_f32 v25, v25, v27
v_permlane32_swap_b32 v24, v25
v_add_f32 v24, v24, v25
v_mov_b32 v25, v24
v_permlane16_swap_b32 v24, v25
v_add_f32 v24, v24, v25
v_add_f32 v24, v24, v24 row_ror:8
v_bfe_u32 v27, v0, 5, 1
v_lshl_add_u32 v27, v4, 1, v27
v_lshlrev_b32 v27, 4, v27
s_lshl_b32 s29, s16, 2
s_add_u32 s29, s29, {LX}
v_add_u32 v27, s29, v27
v_and_b32 v28, 24, v0
v_cmp_eq_u32 vcc, 0, v28
s_and_saveexec_b64 s[30:31], vcc
ds_write_b32 v27, v24
s_mov_b64 exec, -1
v_lshlrev_b32 v27, 5, v4
v_add_u32 v27, {LX}, v27
s_lshr_b32 s29, s18, {1 if A2[0] else 2}
s_lshl_b32 s29, s29, {3 if A2[0] else 4}
s_and_b32 s36, s18, {1 if A2[0] else 3}
s_add_u32 s29, s29, s36
s_lshl_b32 s29, s29, 7
s_add_u32 s29, s29, {CNT + LS + CDA}""")
    if not we: p(A_MAP); p(A_WS)
    p(f"""s_waitcnt lgkmcnt(0)
s_barrier
ds_read_b128 v[20:23], v27
ds_read_b128 v[28:31], v27 offset:16
v_add_f32 v20, v20, v21
v_add_f32 v22, v22, v23
v_add_f32 v28, v28, v29
v_add_f32 v30, v30, v31
v_add_f32 v20, v20, v22
v_add_f32 v28, v28, v30
v_mul_f32 v20, 0x3ae38e39, v20
v_mul_f32 v28, 0x3ae38e39, v28
v_fma_f32 v28, -v20, v20, v28
v_max_f32 v28, 0, v28
v_add_f32 v28, 0x3727c5ac, v28
v_rsq_f32 v28, v28""")
    for x in XS: p(f"v_sub_f32 v{x}, v{x}, v20")
    for x in XS: p(f"v_mul_f32 v{x}, v{x}, v28")
    for k in range(9): p(f"v_cvt_pk_bf16_f32 v{U+k}, v{XS[2*k]}, v{XS[2*k+1]}")
    p(f"""buffer_store_dwordx4 v[{U}:{U+3}], v6, s[8:11], s28 offen {sf}
buffer_store_dwordx4 v[{U+4}:{U+7}], v7, s[8:11], s28 offen {sf}
buffer_store_dword v{U+8}, v8, s[8:11], s28 offen {sf}""")
    if not we:
        for c in range(9): p.ext(a_wchunk(c))
    if xlate == 1: p(XST)
    p(f"""v_lshlrev_b32 v12, {8 if A2[0] else 9}, v2
s_waitcnt vmcnt({(3 if xlate == 1 else 0) if we else 18})
s_barrier
s_cmp_eq_u32 s16, 0
s_cbranch_scc0 L_da_ns
s_mov_b64 exec, 15
buffer_atomic_add v13, v12, s[8:11], s29 offen
s_mov_b64 exec, -1
L_da_ns:""")
    if xlate == 2: p(XST)
    p(nst('d_end')); nst_dump(p, 'd1')
    if dx: srd(p, 12, 4, WSSZ)
    p(f"s_mov_b32 s63, {LS}\ns_branch L_a1")
    return p.finish()

def late_out(**kw):
    q = Prog(); q(kq.late_st('lo', uni=False, **kw)[0])
    return kq.late_pre(run=False, split=kw.get('split', False)) + q.finish()

def main_kernel(a={}, b={}, c={}, d={}, bk=0, side=None, p0=None, hf='sc1', sfl={}, a0={}, p2=None):
    assert NEW
    BK[0] = bk
    A2[0] = kq.A2[0] = (2 if a.get('c32') else 1) if a.get('v2') else 0
    ap = a2_part if A2[0] else a_part
    b = dict(b); REP.update(b.pop('rep', {})); c = dict(c, bcrep=REP['bc'])
    a = dict(a); AM1[0] = a.pop('am1', 0); RAB[:] = a.pop('rab', (0, 0))
    HF[0] = hf if p0 is not None else ''
    if p0 is not None: b = dict(b, pbar=True); d = dict(d, p0=True); c = dict(c, wfl=hf)
    if p2 is not None: HF[0] = hf; b = dict(b, x4=True, dx=True, sb=p2.get('s', {})); d = dict(d, p0=True, dx=True); c = dict(c, wfl=hf, f3=p2.get('f', {}))
    if d.get('two'): c = dict(c, sigA=d['two'][:3]); d = dict(d, two=d['two'][:2] + (d['two'][3] if len(d['two']) > 3 else None,))
    if d.get('we') == 3: a = dict(a, wl=True)
    if c.get('pkA') is not None: d = dict(d, peek=True)
    if d.get('own'): c = dict(c, own=True)
    if d.get('three'): c = dict(c, sigA1=d['three'])
    WK = p2.get('wk', {}) if p2 is not None else {}
    if 'wd' in WK: d = dict(d, wk=True)
    import kc16
    cz = (kc16.c16 if c.pop('m16', 0) else kc.c_kernel)(fused=True, dz=True, rev=True, poll=lambda PD: spin('bc', 65, 4, 250, 4, 8, PD), **c)
    p = Prog()
    p("""s_cmp_lt_u32 s2, 256
s_cbranch_scc1 L_m_go
s_endpgm
L_m_go:
s_load_dwordx2 s[4:5], s[0:1], 80
s_load_dwordx4 s[40:43], s[0:1], 56""")
    if side is not None:
        sp = side_parts(**side); p(sp[0]); a = dict(a, side=sp); b = dict(b, allp=True)
    if p0 is not None or p2 is not None: p(kp.KARGS)
    if SC.sel: p(f"s_memrealtime s[{SC.m['t']}:{SC.m['t']+1}]")
    p(f"""v_lshrrev_b32 v1, 6, v0
v_and_b32 v2, 63, v0
v_readfirstlane_b32 s16, v1
v_lshlrev_b32 v3, 4, v2
s_mov_b32 s63, 0
s_mov_b32 s10, {WSSZ}
s_mov_b32 s11, 0x20000""")
    cp = p2.get('cp', 0) if p2 is not None else 0
    if cp:
        p(f"""s_cmp_eq_u32 s16, {p2.get('cpw', 3)}
s_cbranch_scc0 L_cp_e
s_getpc_b64 s[86:87]
L_cp0:
s_lshr_b32 s60, s2, 3
v_min_u32 v26, {cp - 1}, v2
v_lshlrev_b32 v26, 5, v26
v_add_u32 v26, s60, v26
v_lshlrev_b32 v26, 7, v26
s_mov_b32 s60, L_kend-L_cp0-4
v_min_u32 v26, s60, v26
global_load_dword v25, v26, s[86:87] ; @
L_cp_e:""")
    if p0 is None and p2 is None: p("s_waitcnt lgkmcnt(0)\ns_mov_b32 s8, s4\ns_mov_b32 s9, s5")
    NP1 = a.get('NP1', 36); NPw = a.pop('NPw', 0)
    if p2 is not None:
        a0 = kq.HEAD + kq.crit(**p2.get('c', {})) + kq.loader(**p2.get('l', {})) + "L_a0:\n" + ap(True, p2=p2.get('t', {}), **dict(a, **a0))
    else:
        a0 = a_part(True, **a) if p0 is None else (kp.HEAD + kp.variant('q', **p0) + kp.variant('o', **p0) + "L_a0w1:\n" + a_part(True, p0=('w1',) + kp.side_fill(False, **sfl) + (kp.side_dmas(False) if p0.get('late', 0) < 0 else [],), **dict(dict(SW=(6, 110)), **a, **a0))
        + kp.variant('w2', **p0) + a_part(True, p0=('w2',) + kp.side_fill(True, **sfl) + (kp.side_dmas(True) if p0.get('late', 0) < 0 else [],), **dict(dict(SW=(6, 110)), **a, **a0)))
    body = p.finish() + a0 + "L_a1:\n" + ap(False, **a) + "L_ab:\n" + ab_link(NP1, p2.get('s', {}) if p2 is not None else None, NPw, bool(a.get('ld')), b.get('ldb') is not None)
    b5 = b_part(5, cz, **b); b4 = b_part(4, cz, **b)
    body += b5[0] + b5[1] + b4[1] + "L_b4:\n" + b4[0] + "L_bc_c:\n" + (late_out(**dict(p2.get('o', {}), split='W2' in p2.get('f', {}))) if p2 is not None else '') + cz[0] + d_part(**d) + (cz[4] + "  s_endpgm\n" + "".join(OOL) + ("  s_endpgm\n" if OOL else "") + "L_kend:\n" if p2 is not None else '')
    if WK:
        R = dict(wd=dict(regions=[('L_cd_go', 'L_wm_skip'), ('L_cd_mid', 'L_da_ns'), ('L_a1', 'L_da_poll')], waves=3))
        body = add_pads(body, {n: dict(R[n], step=st) for n, st in WK.items()})
    if p0 is not None or p2 is not None:
        return kernel("interleave_layers__linear_attn_block__mixer_channel_mlp__prompt_kernel", body, vgpr=256, agpr=256), "; @launch grid=(256,1,1) block=(256,1,1) lds=163840\n"
    return kernel("main_kernel", body, vgpr=256, agpr=256), "; @launch kernel=main_kernel grid=(256,1,1) block=(256,1,1) lds=163840\n"
```

```python
from asmlib import *
from layout import *
from k0 import srd

PFL = 0x9800000
FL1 = PFL + 0x4000
LX  = 81920
LC  = LX + 256
CSL = LX + 512
STG = 90112
WB  = WSN*1024
VN  = 160
A2  = [False]
import os
PX  = os.environ.get('PX', '')
TAGL, S80 = 152576, 153600
VS, VT, VO, VOT, VB, C0, C1, VAG, VCS, VONE = range(170, 180)
E   = 184

KARGS = """s_load_dwordx8 s[44:51], s[0:1], 0
s_load_dwordx4 s[52:55], s[0:1], 32
s_load_dwordx2 s[56:57], s[0:1], 48
s_load_dwordx2 s[6:7], s[0:1], 72"""

def off(L):
    return "\n".join(l + " ; @" if l.strip() and not l.strip().endswith(':') else l for l in L.split("\n"))

def wo_idx(i):
    return f"""s_mul_i32 s60, s{i}, 1821
s_lshr_b32 s60, s60, 16
s_mul_i32 s61, s60, 36
s_sub_u32 s61, s{i}, s61
s_mul_i32 s64, s61, 7282
s_lshr_b32 s64, s64, 16
s_mul_i32 s65, s64, 9
s_sub_u32 s65, s61, s65"""

def dest_w1(T, vag):
    return f"""s_mul_i32 s101, s100, 9
s_lshr_b32 s62, s59, 1
s_and_b32 s87, s59, 1
s_lshl_b32 s87, s87, 1
s_lshl_b32 s88, s58, 2
s_add_u32 s87, s87, s88
s_mul_i32 s87, s87, {WB}
s_add_u32 s87, s87, {WSTR}
s_add_u32 s88, s62, 91
s_add_u32 s89, s62, 90
s_add_u32 s96, s62, 163
s_cmp_lt_u32 s59, 4
s_cselect_b32 s60, 5, 4
s_cselect_b32 s61, 3, 2
s_cselect_b32 s62, s62, s88
s_cselect_b32 s96, s89, s96
s_lshl_b32 s61, s61, 10
s_sub_u32 s99, 0, s61
s_cmp_eq_u32 s59, 8
s_cselect_b32 s60, 5, s60
s_cselect_b32 s86, 0, s61
s_cselect_b32 s61, {WB}, s61
s_cselect_b32 s99, s61, s99
s_cselect_b32 s62, 2, s62
s_cselect_b32 s96, 92, s96
s_cselect_b32 s97, {WB}, 0
s_add_u32 s98, s97, {WB}
v_lshrrev_b32 v{T}, 5, v2
v_mul_u32_u24 v{T}, s98, v{T}
v_and_b32 v{vag}, 31, v2
v_lshl_add_u32 v{vag}, v{vag}, 4, v{T}
s_add_u32 s86, s86, s98
s_lshl_b32 s60, s60, 10
s_lshl_b32 s96, s96, 10
s_add_u32 s96, s96, s87
s_lshr_b32 s88, s100, 1
s_lshl_b32 s88, s88, 9
s_add_u32 s96, s96, s88
s_and_b32 s88, s100, 1
s_lshl_b32 s88, s88, 3
s_add_u32 s96, s96, s88
s_add_u32 s97, s97, s96
s_lshl_b32 s62, s62, 10
s_add_u32 s87, s87, s62
s_lshr_b32 s62, s101, 1
s_mul_i32 s62, s62, s60
s_add_u32 s87, s87, s62
s_add_u32 s86, s86, s87
s_and_b32 s101, s101, 1
s_mul_i32 s62, s101, s61
s_add_u32 s87, s87, s62
s_mul_i32 s62, s101, s99
s_add_u32 s86, s86, s62
s_sub_u32 s62, s60, s61
s_sub_u32 s60, s60, s99
s_cmp_eq_u32 s101, 0
s_cselect_b32 s88, s61, s62
s_cselect_b32 s89, s62, s61
s_cselect_b32 s90, s99, s60
s_cselect_b32 s91, s60, s99
s_cmp_lt_u32 s100, 2
s_cselect_b32 s93, 0xffff, 0"""

def tr_addr(T, vt, base, sh):
    return f"""v_and_b32 v{T}, 3, v2
v_bfe_u32 v{T+1}, v2, 4, 1
v_lshl_add_u32 v{T+1}, v{T+1}, 2, v{T}
v_bfe_u32 v{T+2}, v2, 2, 2
v_lshlrev_b32 v{T+2}, 6, v{T+2}
v_lshrrev_b32 v{T}, 5, v2
v_lshl_add_u32 v{T+2}, v{T}, {sh}, v{T+2}
v_lshl_add_u32 v{vt}, v{T+1}, 3, v{T+2}
v_add_u32 v{vt}, {base}, v{vt}"""

def fin_val(c0, c1, f, vb):
    return f"""v_permlane32_swap_b32 v{c0}, v{c1}
v_add_f32 v{c0}, v{c0}, v{c1}
v_cvt_pk_bf16_f32 v{f}, v{c0}, v{c0}
v_and_b32 v{c1}, 0xffff0000, v{f}
v_sub_f32 v{c1}, v{c0}, v{c1}
v_cvt_pk_bf16_f32 v{f+1}, v{c1}, 0
v_and_b32 v{vb}, s93, v{vb}
v_lshl_or_b32 v{f+1}, v{vb}, 16, v{f+1}"""

SRDS = lambda w: f"""s_mov_b32 s44, s54
s_mov_b32 s45, s55
s_mov_b32 s46, {4608*2}
s_mov_b32 s47, 0x20000
s_mov_b32 s64, s{w}
s_mov_b32 s65, s{w+1}
s_mov_b32 s66, {576*4608*2}
s_mov_b32 s67, 0x20000"""

def w2_idx(w):
    return f"""s_lshr_b32 s60, s2, 3
s_sub_u32 s60, s60, 18
s_lshl_b32 s60, s60, 2
s_add_u32 s60, s60, {w}
s_min_u32 s60, s60, 53
s_mul_i32 s88, s60, 7282
s_lshr_b32 s88, s88, 16
s_mul_i32 s61, s88, 9
s_sub_u32 s86, s60, s61"""

def lspin(tag, va, cmp, val, out, vd=20, o=0):
    return "s_mov_b32 s49, 0x400000\n" + off(f"""L_{tag}:
ds_read_b32 v{vd}, v{va} offset:{o}
s_waitcnt lgkmcnt(0)
v_readfirstlane_b32 s60, v{vd}
s_sub_u32 s49, s49, 1
s_cmp_eq_u32 s49, 0
s_cbranch_scc1 {out}
s_cmp_{cmp}_u32 s60, {val}
s_cbranch_scc1 L_{tag}""")

def crit(sf="sc1", lf="", cf="", wql=False, XX=(), tgf="sc1", t3=False, w0=0):
    p = Prog()
    O, X, U, D, T = 32, 44, 68, 80, 20
    vx, vy, vq, vq2, va, vb, vw, vf = 4, 5, 6, 7, 8, 9, 10, 11
    p(f"""L_pc:
v_and_b32 v12, 7, v2
v_lshrrev_b32 v13, 3, v2
v_mul_u32_u24 v{vx}, 1152, v12
v_lshl_add_u32 v{vx}, v13, 4, v{vx}
s_mul_i32 s59, s2, 9216
s_mul_i32 s60, s16, 384
s_add_u32 s59, s59, s60
s_lshr_b32 s17, s2, 3
s_and_b32 s18, s2, 7
s_mul_i32 s33, s18, 3
s_add_u32 s33, s33, s16
s_mul_i32 s18, s33, 3
s_mul_i32 s33, s33, {24*3456}
s_mul_i32 s60, s17, 36
s_add_u32 s33, s33, s60
s_mul_i32 s19, s16, 5120
v_and_b32 v{T}, 3, v2
v_lshrrev_b32 v{T+1}, 2, v2
v_lshrrev_b32 v{T+2}, 5, v2
v_mul_u32_u24 v{vq}, 3456, v{T+1}
v_lshl_add_u32 v{vq}, v{T}, 4, v{vq}
v_mul_u32_u24 v{vq2}, {8*3456 - 1152}, v{T+2}
v_sub_u32 v{vq2}, v{vq}, v{vq2}
v_mov_b32 v{T+3}, 0x40000000
v_cmp_eq_u32 vcc, 3, v{T}
v_cndmask_b32 v{vq}, v{vq}, v{T+3}, vcc
v_cndmask_b32 v{vq2}, v{vq2}, v{T+3}, vcc""")
    p(nst('p_0'))
    p("s_waitcnt lgkmcnt(0)\ns_mov_b32 s8, s4\ns_mov_b32 s9, s5")
    p(nst('p_ka'))
    srd(p, 12, 44, ACT); srd(p, 20, 46, 576*1728*2)
    def xl():
        for i in range(3): p(f"buffer_load_dwordx4 v[{O+4*i}:{O+4*i+3}], v{vx}, s[12:15], s59 offen offset:{i*128} {lf}")
    if 'al' in XX: p("s_and_b32 s33, s33, -16")
    if 'al128' in XX: p("s_and_b32 s33, s33, -128")
    if 'xco' in XX: p(f"v_mul_u32_u24 v{vx}, 1152, v13\nv_lshl_add_u32 v{vx}, v12, 4, v{vx}")
    if 'wqf' not in XX: xl()
    p("s_mov_b32 m0, s19")
    for u in range(3):
        p(f"buffer_load_dwordx4 v{vq}, s[20:23], s33 offen offset:{u*1024} {cf} lds", tag='q0')
        p(f"s_add_u32 s33, s33, {128 if u < 2 else 16*3456 - 256 - 3072}")
    p(f"buffer_load_dwordx4 v{vq2}, s[20:23], s33 offen offset:3072 {cf} lds", tag='q1')
    p(f"s_add_u32 m0, s19, 4096\ns_add_u32 s33, s33, {2304 + 3072}\ns_mov_b32 exec_hi, 0")
    p(f"buffer_load_dwordx4 v{vq2}, s[20:23], s33 offen {cf} lds", tag='q1')
    if 'wqf' in XX: p("s_mov_b64 exec, -1"); xl()
    p("s_mov_b64 exec, -1\ns_barrier")
    if not t3: srd(p, 36, 6, 256)
    if not t3: p(f"""s_or_b32 s60, s2, s16
s_cmp_eq_u32 s60, 0
s_cbranch_scc0 L_pc_nt
s_memrealtime s[60:61]
v_lshlrev_b32 v{T+3}, 7, v2
s_waitcnt lgkmcnt(0)
s_or_b32 s60, s60, 1
v_mov_b32 v{T+4}, s60
s_mov_b64 exec, {3 if w0 & 2 else 1}
buffer_store_dword v{T+4}, v{T+3}, s[36:39], 0 offen sc1 ; @
s_mov_b64 exec, -1
L_pc_nt:""")
    p(nst('p_q'))
    p(f"""v_lshlrev_b32 v{vy}, 9, v13
v_lshl_add_u32 v{vy}, v12, 4, v{vy}
s_lshr_b32 s58, s2, 2
s_mul_i32 s58, s58, 36864
s_and_b32 s59, s2, 3
s_lshl_b32 s59, s59, 7
s_add_u32 s58, s58, s59
s_mul_i32 s59, s16, 12288
s_add_u32 s24, s58, s59
s_add_u32 s24, s24, {YF}
s_add_u32 s25, s24, 4096
s_add_u32 s26, s24, 8192
s_mul_i32 s27, s17, 73728
s_add_u32 s27, s27, {WQF}""")
    for k in range(3):
        p(f"""s_add_u32 s60, s18, {k}
s_lshr_b32 s61, s60, 1
s_lshl_b32 s61, s61, 11
s_and_b32 s60, s60, 1
s_lshl_b32 s60, s60, 9
s_add_u32 s61, s61, s60
s_add_u32 s{28+k}, s27, s61""")
    p(f"""s_lshl_b32 s32, s2, 4
s_add_u32 s32, s32, {FL1}
v_and_b32 v{vw}, 31, v2
v_lshlrev_b32 v{vw}, 4, v{vw}
v_lshl_add_u32 v{vw}, v{T+2}, 10, v{vw}
v_bfe_u32 v{T+3}, v2, 4, 1
v_lshl_add_u32 v{T+3}, v{T+3}, 2, v{T}
v_lshlrev_b32 v{T+4}, 3, v{T+3}
v_add_u32 v{va}, 1024, v{T+4}
v_subrev_u32 v{T+5}, 40, v{T+4}
v_cmp_gt_u32 vcc, 5, v{T+3}
v_cndmask_b32 v{va}, v{T+5}, v{va}, vcc
v_mov_b32 v{T+5}, 32
v_cmp_eq_u32 vcc, 7, v{T+3}
v_cndmask_b32 v{va}, v{va}, v{T+5}, vcc
v_add_u32 v{vb}, 2048, v{T+4}
v_subrev_u32 v{T+5}, 32, v{T+4}
v_cmp_gt_u32 vcc, 6, v{T+3}
v_cndmask_b32 v{vb}, v{T+5}, v{vb}, vcc
v_cmp_lt_u32 vcc, 31, v2
v_cndmask_b32 v{va}, v{va}, v{vb}, vcc
v_lshrrev_b32 v{vb}, 10, v{va}
v_lshlrev_b32 v{vb}, 9, v{vb}
v_sub_u32 v{vb}, v{va}, v{vb}
v_and_b32 v{T+1}, 3, v{T+1}
v_lshlrev_b32 v{T+1}, 6, v{T+1}
v_add_u32 v{T+1}, s19, v{T+1}
v_add_u32 v{va}, v{va}, v{T+1}
v_add_u32 v{vb}, v{vb}, v{T+1}
v_bfe_u32 v14, v2, 5, 1
v_lshl_add_u32 v14, v12, 1, v14
v_lshlrev_b32 v14, 4, v14
s_lshl_b32 s60, s16, 2
s_add_u32 s60, s60, {LX}
v_add_u32 v14, s60, v14
v_lshlrev_b32 v15, 5, v12
v_add_u32 v15, {LX}, v15
v_and_b32 v16, 24, v2
v_cmp_eq_u32 s[34:35], 0, v16
v_mov_b32 v17, 0
v_mov_b32 v18, {LC}
v_mov_b32 v19, 1
s_mov_b32 s49, 0x40000""")
    p(nst('p_iss'))
    XS = list(range(X, X + 24))
    for i in range(12): p(f"v_lshlrev_b32 v{X+2*i}, 16, v{O+i}\nv_and_b32 v{X+2*i+1}, 0xffff0000, v{O+i}")
    p(nst('p_x'))
    ARR = ["s_mov_b64 exec, 1", "ds_add_u32 v18, v19 offset:20", "s_mov_b64 exec, -1"]
    p.ext(ARR)
    p(f"v_add_f32 v24, v{XS[0]}, v{XS[1]}\nv_add_f32 v26, v{XS[2]}, v{XS[3]}\nv_mul_f32 v25, v{XS[0]}, v{XS[0]}\nv_mul_f32 v27, v{XS[1]}, v{XS[1]}")
    for k, x in enumerate(XS[4:]): p(f"v_add_f32 v{24 + 2*(k%2)}, v{24 + 2*(k%2)}, v{x}")
    for k, x in enumerate(XS[2:]): p(f"v_fmac_f32 v{25 + 2*(k%2)}, v{x}, v{x}")
    p(f"""v_add_f32 v24, v24, v26
v_add_f32 v25, v25, v27
v_permlane32_swap_b32 v24, v25
v_add_f32 v24, v24, v25
v_mov_b32 v25, v24
v_permlane16_swap_b32 v24, v25
v_add_f32 v24, v24, v25
v_add_f32 v24, v24, v24 row_ror:8
s_mov_b64 exec, s[34:35]
ds_write_b32 v14, v24
s_mov_b64 exec, -1""")
    p(nst('p_s1'))
    def wq():
        for k in range(3):
            for h in range(2):
                p(f"ds_read_b64_tr_b16 v[{D+4*k+2*h}:{D+4*k+2*h+1}], v{va if k < 2 else vb} offset:{(k*512 if k < 2 else 3072) + h*256}", needs=['q0' if k < 2 else 'q1'])
        p.ext(ARR)
        for k in range(3): p(f"buffer_store_dwordx4 v[{D+4*k}:{D+4*k+3}], v{vw}, s[8:11], s{28+k} offen {sf}")
    if not wql: wq()
    p(nst('p_wq'))
    p(off(f"""L_pc_sw:
ds_read_b128 v[20:23], v15
ds_read_b128 v[28:31], v15 offset:16
s_waitcnt lgkmcnt(0)
v_max3_u32 v24, v20, v21, v22
v_max3_u32 v25, v28, v29, v30
v_max_u32 v24, v24, v25
v_cmp_eq_u32 vcc, -1, v24
s_sub_u32 s49, s49, 1
s_cmp_eq_u32 s49, 0
s_cbranch_scc1 L_pc_sk
s_nop 2
s_cbranch_vccnz L_pc_sw
L_pc_sk:"""))
    p(nst('p_s2'))
    p("""v_add_f32 v20, v20, v21
v_add_f32 v28, v28, v29
v_add_f32 v20, v20, v22
v_add_f32 v28, v28, v30
v_mul_f32 v20, 0x3ae38e39, v20
v_mul_f32 v28, 0x3ae38e39, v28
v_fma_f32 v28, -v20, v20, v28
v_max_f32 v28, 0, v28
v_add_f32 v28, 0x3727c5ac, v28
v_rsq_f32 v28, v28""")
    for i in range(3):
        xs = XS[8*i:8*i+8]
        for x in xs: p(f"v_sub_f32 v{x}, v{x}, v20")
        for x in xs: p(f"v_mul_f32 v{x}, v{x}, v28")
        for k in range(4): p(f"v_cvt_pk_bf16_f32 v{U+4*i+k}, v{xs[2*k]}, v{xs[2*k+1]}")
        p(f"buffer_store_dwordx4 v[{U+4*i}:{U+4*i+3}], v{vy}, s[8:11], s{24+i} offen {sf}")
    if wql: wq()
    if w0:
        p(f"s_bfe_u32 s58, s2, 0x10003\ns_lshl_b32 s58, s58, 7" if w0 & 2 else "s_mov_b32 s58, 0")
        LDT = f"buffer_load_dword v{VN}, v17, s[36:39], s58 offen sc1"
        p(nst('p_st'))
        p(off(f"""s_mov_b32 s49, 0x40000
{"s_cmp_eq_u32 s16, 0" if w0 & 1 else "s_cmp_eq_u32 s16, s16"}
s_cbranch_scc0 L_pc_tk
L_pc_tg:
{LDT}
s_waitcnt vmcnt(0)
v_readfirstlane_b32 s61, v{VN}
s_sub_u32 s49, s49, 1
s_cmp_eq_u32 s49, 0
s_cbranch_scc1 L_pc_tw
s_cmp_eq_u32 s61, 0
s_cbranch_scc1 L_pc_tg
L_pc_tw:
ds_write_b32 v18, v{VN} offset:16
L_pc_tk:"""))
        p(f"""s_waitcnt vmcnt(0)
s_mov_b64 exec, 1
ds_add_rtn_u32 v20, v18, v19
ds_read_b32 v21, v18 offset:16
s_waitcnt lgkmcnt(0)
v_readfirstlane_b32 s60, v20
s_cmp_eq_u32 s60, 2
s_cbranch_scc0 L_pc_ns
buffer_store_dword v21, v17, s[8:11], s32 offen sc1 ; @
L_pc_ns:
s_mov_b64 exec, -1""")
        p(nst('p_sig'))
        p("s_branch L_a0")
        return p.finish()
    if not t3: p(f"buffer_load_dword v{VN}, v17, s[36:39], 0 offen {tgf}")
    p(nst('p_st'))
    if t3: p(off(f"""s_mov_b32 s49, 0x1000000
L_pc_tg:
ds_read_b32 v{VN}, v18 offset:16
s_waitcnt lgkmcnt(0)
v_readfirstlane_b32 s61, v{VN}
s_sub_u32 s49, s49, 1
s_cmp_eq_u32 s49, 0
s_cbranch_scc1 L_pc_tk
s_cmp_eq_u32 s61, 0
s_cbranch_scc1 L_pc_tg
L_pc_tk:"""))
    p("s_mov_b32 s49, 0x40000\ns_waitcnt vmcnt(0)")
    if not t3: p(off(f"""L_pc_tg:
v_readfirstlane_b32 s61, v{VN}
s_sub_u32 s49, s49, 1
s_cmp_eq_u32 s49, 0
s_cbranch_scc1 L_pc_tk
s_cmp_eq_u32 s61, 0
s_cbranch_scc0 L_pc_tk
buffer_load_dword v{VN}, v17, s[36:39], 0 offen sc1
s_waitcnt vmcnt(0)
s_branch L_pc_tg
L_pc_tk:"""))
    p(f"""s_mov_b64 exec, 1
ds_add_rtn_u32 v20, v18, v19
s_waitcnt lgkmcnt(0)
v_readfirstlane_b32 s60, v20
s_cmp_eq_u32 s60, 2
s_cbranch_scc0 L_pc_ns
buffer_store_dword v{VN}, v17, s[8:11], s32 offen sc1 ; @
L_pc_ns:
s_mov_b64 exec, -1""")
    p(nst('p_sig'))
    p("s_branch L_a0")
    return p.finish()

NE, NO, NB = 160, 241, 4
def lane_off(T):
    return f"""v_and_b32 v{T}, 3, v2
v_bfe_u32 v{T+1}, v2, 2, 3
v_lshrrev_b32 v{T+2}, 5, v2
v_lshlrev_b32 v{T+2}, 6, v{T+2}
v_lshl_add_u32 v{T+2}, v{T}, 4, v{T+2}"""

def loader(sf="sc1", slf="nt", cf="", G1=0, G3=0, LA=6, XX=(), cp=0, tl=(), t3=0):
    T = 20
    p = Prog()
    p(f"""L_pl:
s_lshl_b32 s58, s2, 10
s_add_u32 s58, s58, {ZR}
s_add_u32 s59, s58, {LS}
v_mov_b32 v28, 0
v_mov_b32 v29, 0
v_mov_b32 v30, 0
v_mov_b32 v31, 0
{lane_off(T)}
v_mov_b32 v18, {LC}
s_waitcnt lgkmcnt(0)
s_mov_b32 s8, s4
s_mov_b32 s9, s5""")
    if t3:
        srd(p, 36, 6, 256)
        p(f"""s_cmp_eq_u32 s2, 0
s_cbranch_scc0 L_pl_nt
s_memrealtime s[60:61]
s_waitcnt lgkmcnt(0)
s_or_b32 s60, s60, 1
v_mov_b32 v27, s60
s_mov_b64 exec, 1
buffer_store_dword v27, v28, s[36:39], 0 offen sc1 ; @
s_mov_b64 exec, -1
L_pl_nt:""")
    srd(p, 12, 44, ACT); srd(p, 24, 48, 576*576*2)
    p(SRDS(52))
    p(f"""buffer_store_dwordx4 v[28:31], v3, s[8:11], s58 offen {sf}
buffer_store_dwordx4 v[28:31], v3, s[8:11], s59 offen {sf}
s_barrier""")
    if cp:
        p(f"""s_getpc_b64 s[86:87]
L_cp:
s_lshr_b32 s60, s2, 3
s_mul_i32 s60, s60, {cp}
v_min_u32 v26, {cp - 1}, v2
v_add_u32 v26, s60, v26
v_lshlrev_b32 v26, 7, v26
s_mov_b32 s60, L_kend-L_cp-4
v_min_u32 v26, s60, v26
global_load_dword v25, v26, s[86:87]""")
    if t3 == 2: p(lspin('pl_g0', 18, 'lt', 1, 'L_pl_g0e', vd=27, o=20) + "\nL_pl_g0e:")
    if t3: p(off(f"""s_mov_b32 s49, 0x40000
L_pl_tg:
buffer_load_dword v{VN}, v28, s[36:39], 0 offen sc1
s_waitcnt vmcnt(0)
v_readfirstlane_b32 s61, v{VN}
s_sub_u32 s49, s49, 1
s_cmp_eq_u32 s49, 0
s_cbranch_scc1 L_pl_tk
s_cmp_eq_u32 s61, 0
s_cbranch_scc1 L_pl_tg
L_pl_tk:
ds_write_b32 v18, v{VN} offset:16"""))
    p(f"""s_cmp_lt_u32 s2, {NO}
s_cbranch_scc0 L_plx""")
    if G1: p(lspin('pl_g1', 18, 'lt', G1, 'L_pl_g1e', vd=27, o=20) + "\nL_pl_g1e:")
    p(f"s_cmp_lt_u32 s2, {NE}\ns_cbranch_scc0 L_plo")
    out = p.finish()
    p = Prog()
    p(f"""s_and_b32 s58, s2, 7
s_lshr_b32 s59, s2, 5
s_bfe_u32 s100, s2, 0x20003
s_cmp_lt_u32 s59, 4
s_cselect_b32 s59, s59, 8
s_cselect_b32 s62, {4 if PX else 0}, 0
s_cmp_{PX or 'lt'}_u32 s58, 4
s_cselect_b32 s62, s62, 0
s_xor_b32 s62, s62, s59
s_mul_i32 s61, s58, 9
s_add_u32 s61, s61, s62
s_lshl_b32 s61, s61, 7
s_mul_i32 s68, s100, {9*16*9216}
s_add_u32 s68, s68, s61
v_mul_u32_u24 v{VS}, 9216, v{T+1}
v_add_u32 v{VS}, v{VS}, v{T+2}
v_lshlrev_b32 v{VB}, 1, v2""")
    for i in range(18):
        if i % 4 == 0: p(f"s_mov_b32 m0, {STG + (i//4)*4096}")
        p(f"buffer_load_dwordx4 v{VS}, s[64:67], s68 offen offset:{(i%4)*1024} {slf} lds", tag=f"e{i//2}")
        if i < 17: p(f"s_add_u32 s68, s68, {8*9216 - 1024 if i % 4 < 3 else 8*9216 + 3072}")
    p(f"buffer_load_ushort v{VB}, v{VB}, s[44:47], s61 offen")
    if 'nold' in XX: p.ins = [i for i in p.ins if not i.isdma]
    p(nst('p_sd'))
    p(dest_w1(T, VAG)); p(tr_addr(T, VT, STG, 10))
    p(f"v_mov_b32 v{C0}, 0\nv_mov_b32 v{C1}, 0\nv_mov_b32 v{VONE}, 0x3f803f80")
    if G3: p(lspin('pl_g3', 18, 'lt', 3, 'L_pl_g3e', vd=27) + "\nL_pl_g3e:")
    rd, st = [], []
    for b in range(9):
        for t in range(2):
            d = E + 4*((2*b + t) % 12)
            rd.append([I(f"ds_read_b64_tr_b16 v[{d+2*h}:{d+2*h+1}], v{VT} offset:{b*2048 + t*512 + h*256}", needs=[f"e{b}"]) for h in range(2)])
            sr = (87, 86)[t]
            st.append([f"buffer_store_dwordx4 v[{d}:{d+3}], v3, s[8:11], s{sr} offen {sf}"] + ([f"s_add_u32 s{sr}, s{sr}, s{88 + 2*t + b % 2}"] if b < 8 else []) +
                      [f"v_dot2c_f32_bf16 v{(C0, C1)[t]}, v{VONE}, v{d+q}" for q in range(4)])
    for x in rd[:LA]: p.ext(x)
    for i, x in enumerate(st):
        p.ext(x)
        if i + LA < len(rd): p.ext(rd[i + LA])
    p(fin_val(C0, C1, T, VB))
    p(f"""buffer_store_dwordx2 v[{T}:{T+1}], v{VAG}, s[8:11], s96 offen {sf}""")
    p(nst('p_ld'))
    p(f"""s_cmp_eq_u32 s96, s97
s_cbranch_scc1 L_a0
buffer_store_dwordx2 v[{T}:{T+1}], v{VAG}, s[8:11], s97 offen {sf}
s_branch L_a0""")
    if 'nost' in XX: p.ins = [i for i in p.ins if not i.op.startswith('buffer_store')]
    out += p.finish()
    p = Prog()
    p("L_plo:")
    WBK, WD = 28, 32
    for k in range(NB):
        p(f"""s_mul_i32 s62, s2, {NB}
s_sub_u32 s62, s62, {NB*NE - k}
{wo_idx(62)}
s_mul_i32 s68, s{WBK+k}, 144
s_mul_i32 s89, s69, 18
s_cmp_lt_u32 s69, 8
s_cselect_b32 s89, s89, 16
s_cselect_b32 s90, 4, 18
s_cselect_b32 s91, 2, 1
s_cselect_b32 s93, 8, 36
s_cselect_b32 s96, 3, 1
s_mul_i32 s90, s90, 1152
s_sub_u32 s90, s90, 1024
s_mul_i32 s93, s93, 1152
s_add_u32 s68, s68, s89
s_mul_i32 s68, s68, 1152
s_lshl_b32 s62, s60, 7
s_add_u32 s68, s68, s62
v_lshrrev_b32 v{T+4}, s91, v{T+1}
v_mul_u32_u24 v{VO}, s93, v{T+4}
v_and_b32 v{T+3}, s96, v{T+1}
v_mul_u32_u24 v{T+3}, 1152, v{T+3}
v_add3_u32 v{VO}, v{VO}, v{T+3}, v{T+2}
s_mov_b32 m0, {STG + k*2048}""".replace("s64", f"s{WBK+k}").replace("s65", "s69"))
        p(f"buffer_load_dwordx4 v{VO}, s[24:27], s68 offen {cf} lds", tag=f"o{k}")
        p("s_add_u32 s68, s68, s90")
        p(f"buffer_load_dwordx4 v{VO}, s[24:27], s68 offen offset:1024 {cf} lds", tag=f"o{k}")
        p(f"""s_mul_i32 s{WD+k}, s60, 72
s_add_u32 s{WD+k}, s{WD+k}, s61
s_lshl_b32 s{WD+k}, s{WD+k}, 10
s_add_u32 s{WD+k}, s{WD+k}, {WOF}""")
    if 'nold' in XX: p.ins = [i for i in p.ins if not i.isdma]
    p(nst('p_sd'))
    p(tr_addr(T, VT, STG, 10))
    p(f"v_and_b32 v{T+3}, 1, v{T+1}\nv_lshl_add_u32 v{T+2}, v{T+3}, 3, v{T+2}\nv_lshrrev_b32 v{T+1}, 1, v{T+1}\nv_add_u32 v{T+2}, {STG}, v{T+2}")
    for k in range(NB): p(f"v_add_u32 v{T+12+k}, s{WBK+k}, v{T+1}\nv_and_b32 v{T+12+k}, 3, v{T+12+k}\nv_lshl_add_u32 v{T+12+k}, v{T+12+k}, 4, v{T+2}")
    if G3: p(lspin('pl_g4', 18, 'lt', 3, 'L_pl_g4e', vd=27) + "\nL_pl_g4e:")
    for k in range(NB):
        for t in range(2):
            d = E + 8*k + 4*t
            for h in range(2): p(f"ds_read_b64_tr_b16 v[{d+2*h}:{d+2*h+1}], v{T+12+k} offset:{k*2048 + t*512 + h*256}", needs=[f"o{k}"])
    for k in range(NB):
        d = E + 8*k
        p(f"buffer_store_dwordx4 v[{d}:{d+3}], v3, s[8:11], s{WD+k} offen {sf}\ns_add_u32 s{WD+k}, s{WD+k}, {36*1024}\nbuffer_store_dwordx4 v[{d+4}:{d+7}], v3, s[8:11], s{WD+k} offen {sf}")
    p(nst('p_ld'))
    p("s_branch L_a0")
    if 'nost' in XX: p.ins = [i for i in p.ins if not i.op.startswith('buffer_store')]
    out += p.finish()
    p = Prog()
    p("L_plx:")
    if tl:
        L = ["s_cmp_lt_u32 s2, 248", "s_cbranch_scc1 L_tl_e", "s_and_b32 s58, s2, 7"]
        vd = iter(range(200, 232))
        def run(srdr, base, sh, n):
            R = []
            for k in range(0, n, 64):
                R += [f"v_add_u32 v30, {k}, v2", f"v_min_u32 v30, {n - 1}, v30", f"v_lshlrev_b32 v30, {sh}, v30", f"buffer_load_dword v{next(vd)}, v30, s[{srdr}:{srdr+3}], {base} offen"]
            return R
        if 'w2' in tl:
            L += ["s_mov_b32 s88, s56", "s_mov_b32 s89, s57", f"s_mov_b32 s90, {576*4608*2}", "s_mov_b32 s91, 0x20000", f"s_mul_i32 s68, s58, {576*1152}"] + run(88, 's68', 12, 162)
        if 'out' in tl:
            L += ["s_mov_b32 s92, s42", "s_mov_b32 s93, s43", f"s_mov_b32 s94, {ACT}", "s_mov_b32 s95, 0x20000"] + run(92, '0', 12, 576)
        if 'out64' in tl:
            L += ["s_mov_b32 s92, s42", "s_mov_b32 s93, s43", f"s_mov_b32 s94, {ACT}", "s_mov_b32 s95, 0x20000"] + run(92, '0', 16, 36)
        if 'ws2m' in tl: L += run(8, '0', 21, 78)
        if 'ws64' in tl: L += run(8, '0', 16, 464) + [f"s_mov_b32 s68, {LS}"] + run(8, 's68', 16, 464)
        p(off("\n".join(L + ["L_tl_e:"])))
    p(f"""s_cmp_lt_u32 s2, {NO + 8}
s_cbranch_scc0 L_a0
s_mov_b32 s64, s56
s_mov_b32 s65, s57
s_and_b32 s58, s2, 7
s_mul_i32 s68, s58, {36*16*1152}
s_add_u32 s68, s68, {32*16*1152 + 8*128}
v_mul_u32_u24 v{VS}, 1152, v{T+1}
v_add_u32 v{VS}, v{VS}, v{T+2}""")
    for i in range(8):
        if i % 4 == 0: p(f"s_mov_b32 m0, {(S80 if A2[0] else STG) + (i//4)*4096}")
        p(f"buffer_load_dwordx4 v{VS}, s[64:67], s68 offen offset:{(i%4)*1024} {slf} lds")
        if i < 7: p(f"s_add_u32 s68, s68, {8*1152 - 1024 if i % 4 < 3 else 8*1152 + 3072}")
    return out + p.finish()

LVS, LVB, LAG, LF, LD = 248, 251, 249, 252, 152
LATE_KA = "s_load_dwordx4 s[96:99], s[0:1], 32\ns_load_dwordx2 s[86:87], s[0:1], 48"
def late_setup(T=112):
    return f"""s_mov_b32 s55, 0
s_cmp_eq_u32 s63, 0
s_cbranch_scc0 L_ld_e
s_and_b32 s58, s2, 7
s_lshr_b32 s60, s2, 3
s_lshr_b32 s59, s60, 2
s_and_b32 s100, s60, 3
s_lshl_b32 s61, s16, 5
s_sub_u32 s61, s61, 32
s_cmp_eq_u32 s16, 3
s_cselect_b32 s55, 16, 32
s_cmp_lt_u32 s60, s55
s_cselect_b32 s55, 2, 1
s_cselect_b32 s61, s61, 0
s_add_u32 s60, s60, s61
s_sub_u32 s61, s2, {NO}
s_cmp_lt_u32 s61, 8
s_cselect_b32 s61, 0, 1
s_add_u32 s61, s61, 80
s_cmp_eq_u32 s16, 0
s_cselect_b32 s60, s61, s60
s_mul_i32 s61, s60, 7282
s_lshr_b32 s61, s61, 16
s_mul_i32 s62, s61, 9
s_sub_u32 s62, s60, s62
s_cmp_lt_u32 s60, 81
s_cselect_b32 s55, s55, 0
s_cmp_eq_u32 s55, 1
s_cselect_b32 s59, s59, s62
s_cselect_b32 s100, s100, s61
s_cselect_b32 s69, 8, 1
s_cselect_b32 s60, 72, 4
s_cselect_b32 s61, 0, 36
s_cselect_b32 s62, 9, 0
s_cselect_b32 s64, {4 if PX else 0}, 0
s_cselect_b32 s65, 0, {4 if PX else 0}
s_cmp_eq_u32 s100, 8
s_cselect_b32 s65, 0, s65
s_cmp_{PX or 'lt'}_u32 s58, 4
s_cselect_b32 s64, s64, 0
s_cselect_b32 s65, s65, 0
s_xor_b32 s64, s64, s59
s_xor_b32 s65, s65, s100
s_mul_i32 s68, s65, s60
s_mul_i32 s61, s61, s58
s_add_u32 s68, s68, s61
s_mul_i32 s68, s68, {16*1152}
s_mul_i32 s61, s62, s58
s_add_u32 s61, s61, s64
s_lshl_b32 s61, s61, 7
s_add_u32 s68, s68, s61
s_mul_i32 s69, s69, 1152
{lane_off(T)}
v_mul_u32_u24 v{LVS}, s69, v{T+1}
v_add_u32 v{LVS}, v{LVS}, v{T+2}
v_lshlrev_b32 v{LVB}, 1, v2
s_lshl_b32 s69, s69, 3
s_sub_u32 s69, s69, 1024
s_mul_i32 s62, s16, 18432
s_add_u32 s62, s62, {55296 if A2[0] else STG}
{f"s_cmp_eq_u32 s16, 0{chr(10)}s_cselect_b32 s62, {S80}, s62" if A2[0] else ""}
s_mov_b32 s90, {576*4608*2}
s_mov_b32 s91, 0x20000
s_cmp_eq_u32 s55, 1
s_waitcnt lgkmcnt(0)
s_cselect_b32 s88, s96, s86
s_cselect_b32 s89, s97, s87
s_mov_b32 s44, s98
s_mov_b32 s45, s99
s_mov_b32 s46, {4608*2}
s_mov_b32 s47, 0x20000"""

def late_dmas(slf="nt", XX=()):
    L = ["s_cmp_eq_u32 s55, 0", "s_cbranch_scc1 L_ld_e", "s_cmp_eq_u32 s16, 0", "s_cbranch_scc1 L_ld_e"]
    for i in range(18):
        if i == 8: L += ["s_cmp_eq_u32 s55, 1", "s_cbranch_scc0 L_ld_e", f"buffer_load_ushort v{LVB}, v{LVB}, s[44:47], s61 offen"]
        if i % 4 == 0: L += [f"s_add_u32 m0, s62, {(i//4)*4096}", "s_nop 0"]
        if 'nold' not in XX: L.append(f"buffer_load_dwordx4 v{LVS}, s[88:91], s68 offen offset:{(i%4)*1024} {slf} lds")
        if i < 17: L.append("s_add_u32 s68, s68, s69")
        if i % 4 == 3: L.append("s_addk_i32 s68, 4096")
    return off("\n".join(L + ["L_ld_e:"]))

def late_dmas_uni(slf="nt", va=239, vd=247):
    def seq(n, lab):
        L = []
        for i in range(n):
            if i == 8: L.append(f"buffer_load_ushort v{LVB}, v{LVB}, s[44:47], s61 offen")
            if i % 4 == 0: L += [f"s_add_u32 m0, s62, {(i//4)*4096}", "s_nop 0"]
            L.append(f"buffer_load_dwordx4 v{LVS}, s[88:91], s68 offen offset:{(i%4)*1024} {slf} lds")
            if i < 17: L.append("s_add_u32 s68, s68, s69")
            if i % 4 == 3: L.append("s_addk_i32 s68, 4096")
        return L
    dm = lambda n: [f"v_mov_b32 v{va}, 0x40000000", "s_mov_b64 exec, 1"] + [f"buffer_load_dword v{vd}, v{va}, s[8:11], 0 offen"]*n + ["s_mov_b64 exec, -1", "s_branch L_lu_e"]
    main = ["s_cmp_eq_u32 s55, 1", "s_cbranch_scc0 L_lu_o"] + seq(18, 0) + ["L_lu_e:"]
    ool = ["L_lu_o:", "s_cmp_eq_u32 s55, 0", "s_cbranch_scc1 L_lu_0", "s_cmp_eq_u32 s16, 0", "s_cbranch_scc1 L_lu_0"] + seq(8, 0) + dm(11) + ["L_lu_0:"] + dm(19)
    return main, "".join(("" if l.endswith(':') else "  ") + l + "\n" for l in ool)

LD2, F4O = 184, 0x6000
def late_pre(T=112, run=True, split=False):
    L2 = LD2 if split else LD
    out = "  s_mov_b32 s38, s55\n  s_cmp_eq_u32 s55, 0\n  s_cbranch_scc1 L_lp_e\n  s_cmp_eq_u32 s55, 1\n  s_cbranch_scc0 L_lp_2\n"
    vt, c0, c1, one = T + 4, T + 5, T + 6, T + 7
    p = Prog()
    p(tr_addr(T, vt, 's62', 10))
    p(f"v_mov_b32 v{c0}, 0\nv_mov_b32 v{c1}, 0\nv_mov_b32 v{one}, 0x3f803f80")
    rd = [[f"ds_read_b64_tr_b16 v[{LD+4*u+2*h}:{LD+4*u+2*h+1}], v{vt} offset:{(u//2)*2048 + (u%2)*512 + h*256}" for h in range(2)] for u in range(18)]
    for x in rd[:7]: p.ext(x)
    p(dest_w1(T, LAG))
    for u in range(18):
        p.ext([f"v_dot2c_f32_bf16 v{(c0, c1)[u%2]}, v{one}, v{LD+4*u+q}" for q in range(4)])
        if u + 7 < 18: p.ext(rd[u + 7])
    p(fin_val(c0, c1, LF, LVB))
    p("s_branch L_lp_e")
    out += p.finish()
    p = Prog()
    p("L_lp_2:")
    p(tr_addr(T, vt, 's62', 8))
    for u in range(8):
        for h in range(2): p(f"ds_read_b64_tr_b16 v[{L2+4*u+2*h}:{L2+4*u+2*h+1}], v{vt} offset:{(u//2)*2048 + (u%2)*512 + h*1024}")
    p(f"""s_and_b32 s62, s59, 1
s_lshl_b32 s62, s62, 1
s_lshl_b32 s60, s58, 2
s_add_u32 s62, s62, s60
s_mul_i32 s62, s62, {WB}
s_add_u32 s62, s62, {WSTR}
s_lshr_b32 s68, s59, 1
s_add_u32 s61, s68, 1
s_and_b32 s61, s61, 3
s_lshl_b32 s61, s61, 4
s_add_u32 s61, s61, 265
s_cmp_eq_u32 s59, 8
s_cselect_b32 s69, 2, 1
s_cselect_b32 s61, 257, s61
s_cselect_b32 s101, 0, 1
s_mul_i32 s69, s69, {WB}
s_lshl_b32 s100, s100, 1""")
    W2D = [(86, 87, 88, 89), (90, 91, 96, 97)]
    for a0, a1, b0, b1 in W2D:
        p(f"""s_sub_u32 s60, s100, 8
s_cmp_lt_u32 s100, 8
s_cselect_b32 s{a0}, s100, s60
s_mul_i32 s{a0}, s{a0}, 9
s_add_u32 s{a0}, s{a0}, 167
s_add_u32 s{a0}, s{a0}, s68
s_lshl_b32 s99, s60, s101
s_add_u32 s99, s99, s61
s_cmp_lt_u32 s60, 8
s_cselect_b32 s{a0}, s99, s{a0}
s_cselect_b32 s99, 1, 5
s_lshl_b32 s99, s99, 10
s_cmp_eq_u32 s101, 0
s_cselect_b32 s99, {WB}, s99
s_cselect_b32 s98, 0, s99
s_lshl_b32 s{a0}, s{a0}, 10
s_add_u32 s{a0}, s{a0}, s62
s_add_u32 s{b0}, s{a0}, s99
s_add_u32 s{a1}, s{a0}, s69
s_add_u32 s{b1}, s{a1}, s99
s_sub_u32 s{b1}, s{b1}, s98
s_add_u32 s{a1}, s{a1}, s98
s_add_u32 s100, s100, 1""")
    if run:
        p("""s_sub_u32 s60, s88, s86
s_sub_u32 s61, s90, s88
s_sub_u32 s62, s89, s87
s_sub_u32 s91, s91, s89
s_mov_b32 s88, s60
s_mov_b32 s89, s61
s_mov_b32 s90, s62
s_mov_b32 s60, s86
s_mov_b32 s86, s87
s_mov_b32 s87, s60""")
    p("s_waitcnt lgkmcnt(0)")
    q = Prog()
    if run: q(f"""s_cmp_eq_u32 s55, 0
s_cselect_b32 s60, 0x40000000, 0
v_or_b32 v{LSA}, s60, v3
s_cmp_eq_u32 s55, 1
s_cselect_b32 s60, 0, 0x40000000
v_or_b32 v{LSB}, s60, v3
v_or_b32 v{LAG}, s60, v{LAG}""")
    return out + p.finish() + "L_lp_e:\n" + q.finish()

LSA, LSB = 254, 255
def late_stu(sf="sc1", n=1, XX=()):
    L = []
    for u in range(18):
        sr = (87, 86)[u % 2]
        g = [f"s_mov_b64 exec, s[{34 if u < 8 else 36}:{35 if u < 8 else 37}]"] if (u % n == 0 or u == 8) else []
        g.append(I(f"buffer_store_dwordx4 v[{LD+4*u}:{LD+4*u+3}], v{LSA if u < 8 else LSB}, s[8:11], s{sr} offen {sf}", tag='xl'))
        if u % n == n - 1 or u == 17: g.append("s_mov_b64 exec, -1")
        if u < 16: g.append(f"s_add_u32 s{sr}, s{sr}, s{88 + 2*(u%2) + (u//2) % 2}")
        if u % n == 0: L.append(g)
        else: L[-1] += g
    L.append(["s_mov_b64 exec, s[36:37]"] + [I(f"buffer_store_dwordx2 v[{LF}:{LF+1}], v{LAG}, s[8:11], s{sr} offen {sf}", tag='xl') for sr in (96, 97)] + ["s_mov_b64 exec, -1"])
    if 'nost' in XX: L = [[x for x in g if not isinstance(x, I)] for g in L]
    if 'noex' in XX: L = [[x for x in g if isinstance(x, I) or 'exec' not in x] for g in L]
    return L

def late_w2(sf="sc1"):
    return off("\n".join(["s_cmp_eq_u32 s38, 2", "s_cbranch_scc0 L_lw2_e"] + [f"buffer_store_dwordx4 v[{LD2+4*u}:{LD2+4*u+3}], v3, s[8:11], s{sr} offen {sf}" for u, sr in enumerate((86, 87, 88, 89, 90, 91, 96, 97))] + ["L_lw2_e:"])).split("\n")

def late_st(tag, sf="sc1", XX=(), uni=True, vd=254, vo=255, split=False):
    st = lambda u, sr: f"buffer_store_dwordx4 v[{LD+4*u}:{LD+4*u+3}], v3, s[8:11], s{sr} offen {sf}"
    L1 = []
    for u in range(18):
        sr = (87, 86)[u % 2]
        L1 += [st(u, sr)] + ([f"s_add_u32 s{sr}, s{sr}, s{88 + 2*(u%2) + (u//2) % 2}"] if u < 16 else [])
    L2 = [st(u, sr) for u, sr in enumerate((86, 87, 88, 89, 90, 91, 96, 97))]
    if uni:
        L1 += [f"buffer_store_dwordx2 v[{LF}:{LF+1}], v{LAG}, s[8:11], s{sr} offen {sf}" for sr in (96, 97)]
        dm = lambda n: [f"v_mov_b32 v{vo}, 0x40000000", "s_mov_b64 exec, 1"] + [f"buffer_load_dword v{vd}, v{vo}, s[8:11], 0 offen"]*n + ["s_mov_b64 exec, -1", f"s_branch L_{tag}_e"]
        main = "\n".join(["s_cmp_eq_u32 s55, 1", f"s_cbranch_scc0 L_{tag}_o"] + L1 + [f"L_{tag}_e:"])
        ool = [f"L_{tag}_o:", "s_cmp_eq_u32 s55, 0", f"s_cbranch_scc1 L_{tag}_0"] + L2 + dm(12) + [f"L_{tag}_0:"] + dm(20)
        return main, "".join(("" if l.endswith(':') else "  ") + l + "\n" for l in ool)
    L1 += [f"buffer_store_dwordx2 v[{LF}:{LF+1}], v{LAG}, s[8:11], s96 offen {sf}", "s_cmp_eq_u32 s96, s97", f"s_cbranch_scc1 L_{tag}_e",
           f"buffer_store_dwordx2 v[{LF}:{LF+1}], v{LAG}, s[8:11], s97 offen {sf}", f"s_branch L_{tag}_e"]
    if 'nost' in XX: L1 = [x for x in L1 if not x.startswith('buffer')]; L2 = []
    if split: L2 = []
    return off("\n".join(["s_cmp_eq_u32 s55, 0", f"s_cbranch_scc1 L_{tag}_e", "s_cmp_eq_u32 s55, 1", f"s_cbranch_scc0 L_{tag}_2"] + L1 + [f"L_{tag}_2:"] + L2 + [f"L_{tag}_e:"])), ""

HEAD = f"""  v_lshlrev_b32 v20, 2, v2
  v_mov_b32 v21, -1
  v_mov_b32 v22, 0
  v_add_u32 v20, {LX}, v20
  ds_write_b32 v20, v21
  ds_write_b32 v20, v22 offset:256
  v_mov_b32 v7, 0
  v_mov_b32 v13, 0
  v_mov_b32 v{LAG}, 0
  s_mov_b32 s3, 0
  s_cmp_eq_u32 s16, 3
  s_cbranch_scc1 L_pl
"""

def a0_go(two=False):
    return f"""s_lshl_b32 s56, s19, {8 if two else 9}
s_lshl_b32 s57, s20, {8 if two else 7}
s_sub_u32 s57, s57, {256 if two else 512}
v_mov_b32 v161, s56
v_mov_b32 v162, s57
v_cmp_lt_u32 vcc, {15 if two else 31}, v2
v_cndmask_b32 v161, v161, v162, vcc
v_add_u32 v161, v161, v3
s_mov_b32 s56, {FL1}
v_mov_b32 v162, {TAGL if two else LC + 16}
s_and_b32 s57, s2, 7
s_lshl_b32 s57, s57, 10
s_add_u32 s57, s57, {PFL}
s_lshl_b32 s58, s2, 2
s_add_u32 s58, s58, {PFL}
s_mov_b32 s49, 0x40000
s_cmp_eq_u32 s16, 0
s_cbranch_scc0 L_a0p_go
ds_write_b32 v162, v{VN} ; @
s_mov_b32 exec_hi, {0 if two else 0xff}
L_a0p_poll:
buffer_load_dword v250, v161, s[8:11], s56 offen sc1 ; @
s_waitcnt vmcnt(0) lgkmcnt(0) ; @
v_cmp_ne_u32 vcc, v250, v{VN}
s_nop 4
s_cbranch_vccz L_a0p_ok
s_sub_u32 s49, s49, 1
s_cmp_eq_u32 s49, 0
s_cbranch_scc0 L_a0p_poll
L_a0p_ok:
s_mov_b64 exec, -1
L_a0p_go:
s_barrier"""

def fchk(n, v, sa, tag):
    CHK = [f"v_xor_b32 v{v+i}, {tag}, v{v+i}" for i in range(4)] + [f"v_or3_b32 v{v}, v{v}, v{v+1}, v{v+2}", f"v_or_b32 v{v}, v{v}, v{v+3}", f"v_cmp_ne_u32 vcc, 0, v{v}"]
    LD = f"buffer_load_dwordx4 v[{v}:{v+3}], v3, s[8:11], s{sa} offen sc1"
    LOOP = f"L_{n}_w:\n  s_mov_b32 s49, 0x40000\nL_{n}_l:\n" + "".join("  " + l + "\n" for l in ["s_nop 15"]*8 + [LD, "s_waitcnt vmcnt(0)"] + CHK + ["s_sub_u32 s49, s49, 1", "s_cmp_eq_u32 s49, 0", f"s_cbranch_scc1 L_{n}_k", "s_nop 2", f"s_cbranch_vccnz L_{n}_l", f"s_branch L_{n}_k"])
    return LD, CHK, [f"s_cbranch_vccnz L_{n}_w", f"L_{n}_k:"], LOOP
def fsig(n, vd, va, sa):
    return ["s_cmp_eq_u32 s16, 0", f"s_cbranch_scc0 L_{n}_ns", f"v_mov_b32 v{vd}, s3", f"v_lshlrev_b32 v{va}, 10, v2", "s_mov_b64 exec, 0xff", f"buffer_store_dword v{vd}, v{va}, s[8:11], s{sa} offen sc1 ; @", "s_mov_b64 exec, -1", f"L_{n}_ns:"]
F3O = 0x2000
```

```python
from asmlib import *
from asmlib import _ab
from layout import *
import kq

def gelu(x, n, k1, k3, tmp, out, grp=4):
    L = []
    for b in range(0, n, grp):
        idx = range(b, b + grp)
        T = lambda i: tmp + i
        for i in idx: L.append(f"v_mul_f32 v{T(i)}, v{x+i}, v{x+i}")
        for i in idx: L.append(f"v_fma_f32 v{T(i)}, v{T(i)}, v{k3}, v{k1}")
        for i in idx: L.append(f"v_mul_f32 v{T(i)}, v{T(i)}, v{x+i}")
        for i in idx: L.append(f"v_exp_f32 v{T(i)}, v{T(i)}")
        for i in idx: L.append(f"v_add_f32 v{T(i)}, 1.0, v{T(i)}")
        for i in idx: L.append(f"v_rcp_f32 v{T(i)}, v{T(i)}")
        for i in idx: L.append(f"v_mul_f32 v{T(i)}, v{T(i)}, v{x+i}")
        for i in list(idx)[::2]: L.append(f"v_cvt_pk_bf16_f32 v{out+i//2}, v{T(i)}, v{T(i+1)}")
    return L

LPX = []
def c16(DW=32, YCH=4, stfl="sc1", YLA=30, NPRE=31, yfl='', wfl='', poll=None, PD=1, f3=None, bcrep=(0, 1), sigA=None, OW1=28, LP=True, LPE=0, dl=(-16, 4, 24, 1),
        own=True, ST0=(120, 240), SU=(8, 80), MG=5, LRS=2, TR=(4, 6), S0=(4, 0), S1=(0, 0), grp=4, OP=1, NTL=8, HLD=None, **_):
    p = Prog()
    WB = WSN*1024
    YB, HB = 0, 73728
    vL, vWo, vW, vPA = 3, 1, 13, 15
    vRD, vHW, vHO = 6, 10, (12, 14)
    vST = (4, 5, 8, 9)
    vK1, vK3 = 16, 20
    TMP, PK = 24, 32
    vLP, vLPo = PK + 7, PK + 6
    A_, B_, C_, D_, OS, N2, N3 = 40, 72, 104, 136, 168, 184, 216
    aODD, aAUG, aLR, aT, aW = 0, 16, 24, 64, 128
    wslot = lambda g: aW + 4*(DW - 1 - g % DW)
    AM = "s_and_b32 s17, s2, 3\ns_lshl_b32 s17, s17, 1\ns_bfe_u32 s18, s2, 0x10003\ns_add_u32 s17, s17, s18\ns_bfe_u32 s18, s2, 0x10002\ns_lshl_b32 s18, s18, 4\ns_lshr_b32 s19, s2, 4\ns_add_u32 s18, s18, s19"
    p(f"""{AM}
s_and_b32 s19, s16, 1
s_lshr_b32 s20, s16, 1
s_mul_i32 s25, s18, 73728
s_lshl_b32 s26, s16, 10
s_add_u32 s27, s25, s26
s_add_u32 s27, s27, {X1F}{lay('s27')}
s_add_u32 s28, s27, 36864
s_add_u32 s31, s26, 36864
s_lshl_b32 s21, s18, 1
s_xor_b32 s29, s19, 1
s_add_u32 s45, s21, s19
s_add_u32 s46, s21, s29
s_lshl_b32 s47, s45, 8
s_lshl_b32 s48, s46, 8
s_add_u32 s47, s47, {ST}{lay('s47')}
s_add_u32 s48, s48, {ST}{lay('s48')}
v_lshlrev_b32 v15, 2, v2""")
    pre_setup = AM.replace("s17", "s64").replace("s18", "s65").replace("s19", "s66").split("\n") + f"""s_lshl_b32 s64, s64, 2
s_add_u32 s64, s64, s16
s_mul_i32 s64, s64, {WB}
s_add_u32 s64, s64, {WSTR - WB}
s_lshl_b32 s65, s65, 9
s_add_u32 s65, s65, {CNT + bcrep[0]}{lay('s65')}""".split("\n") + ([f"s_and_b32 s66, s2, {bcrep[1] - 1}", "s_lshl_b32 s66, s66, 14", "s_add_u32 s65, s65, s66"] if bcrep[1] > 1 else [])
    pre_setup += f"""v_bfe_u32 v11, v2, 4, 1
v_lshlrev_b32 v{vW}, 9, v11
v_bfe_u32 v11, v2, 3, 1
v_lshl_add_u32 v{vW}, v11, 8, v{vW}
v_and_b32 v11, 7, v2
v_lshl_add_u32 v{vW}, v11, 4, v{vW}
v_add_u32 v{vW}, {WB}, v{vW}
s_and_b32 s66, s16, 1
s_lshl_b32 s67, s66, 7
v_add_u32 v{vWo}, s67, v{vW}
s_mul_i32 s66, s66, {(-2*WB) & 0xffffffff}
s_add_u32 s66, s66, {WB}
v_lshrrev_b32 v11, 5, v2
v_mul_lo_u32 v15, v11, s66
v_add_u32 v{vWo}, v{vWo}, v15
v_mul_u32_u24 v11, 3072, v11
v_add_u32 v{vW}, v{vW}, v11""".split("\n")
    f3 = dict(f3); F3S = f3.pop('S', 1); F3L = f3.pop('L', 168); F3P = f3.pop('P', 228); F4 = f3.pop('W2')
    p(f"s_and_b32 s60, s2, 7\ns_lshl_b32 s60, s60, 10\ns_add_u32 s60, s60, {kq.PFL + kq.F3O}\ns_lshl_b32 s61, s2, 2\ns_add_u32 s61, s61, {kq.PFL + kq.F3O}")
    slots = []
    steps = []
    def sl(idx, acc, t, R='v', first=False, odd=False, aug=False, kk=None):
        return dict(idx=idx, acc=acc, t=t, R=R, first=first, odd=odd, aug=aug, kk=kk)
    od = lambda i: [sl(5*i + 2, OS, 0, first=i == 0, odd=True)]
    oda = [sl(92, OS, 0, aug=True, odd=True)]
    for i in range(18):
        b = 5*i; f = i == 0
        steps.append(dict(l=('Y', i), ph='p1', D=3072, f=[sl(b, A_, 0, first=f), sl(b, A_, 1, first=f), sl(b + 1, B_, 0, first=f), sl(b + 1, B_, 1, first=f)] + (od(i) if OP == 1 else [])))
    steps.append(dict(l=None, ph='p1', f=[sl(90, A_, 0, aug=True), sl(91, B_, 0, aug=True)] + (oda if OP == 1 else [])))
    for i in range(18):
        b = 93 + 4*i; f = i == 0
        steps.append(dict(l=('Y', i), ph='p2', D=2048, f=[sl(b, C_, 0, first=f), sl(b, C_, 1, first=f), sl(b + 1, D_, 0, first=f), sl(b + 1, D_, 1, first=f)] + (od(i) if OP == 2 else [])))
    steps.append(dict(l=None, ph='p2', f=(oda if OP == 2 else []) + [sl(165, C_, 0, aug=True), sl(166, D_, 0, aug=True)]))
    NACC = [A_, B_, N2, N3]
    TX = {3: 0, 0: 1, 1: 2, 2: 3}
    for i, ds in enumerate(list(range(8)) + [16, 17]):
        b = 167 + 9*i; f = i == 0
        steps.append(dict(l=('H', ds), ph='q', D=5120, f=[sl(b + n, NACC[n], t, first=f) for n in range(4) for t in range(2)] + [sl(b + 4, aODD, 0, R='a', first=f, odd=True)]))
    for i in range(8 - NTL):
        steps.append(dict(l=('H', 8 + i), ph='q', D=1024, f=[sl(265 + 16*TX[n] + 2*i, NACC[n], t) for n in (3, 0, 1, 2) for t in range(2)] + [sl(257 + i, aODD, 0, R='a', odd=True)]))
    n_p1, n_p2, n_t = 19, 38, len(steps)
    T0 = 8 - NTL
    tstart = {}
    tstart[4] = len(steps)
    for b in range(0, NTL, 4): steps.append(dict(l=None, ph='t', D=1024, f=[sl(257 + T0 + i, aODD, 0, R='a', odd=True, kk=i) for i in range(b, min(b + 4, NTL))]))
    for n in (3, 0, 1, 2):
        tstart[n] = len(steps)
        for b in range(0, NTL, 2): steps.append(dict(l=None, ph='t', D=1024, f=[sl(265 + 16*TX[n] + 2*(T0 + i), NACC[n], t, kk=i) for i in range(b, min(b + 2, NTL)) for t in range(2)]))
    frags = [(si, fi) for si, st in enumerate(steps) for fi in range(len(st['f']))]
    assert len(frags) == WSN
    def treg(i, o):
        return ('a', aT + 16*(i//2) + 4*o) if i % 2 == 0 else ('v', C_ + 16*(i//2) + 4*o)
    LP0 = 30; LPN = 15
    inlp = (lambda g: NPRE <= g < 45) if OP == 1 else (lambda g: 32 <= g < 48)
    issue = []; ych_at = {}
    for c in range(36 // YCH):
        gi = next(g for g, (si, fi) in enumerate(frags) if si == c*YCH//2)
        ych_at.setdefault(max(0, gi - YLA), []).append(c)
    cur = [0, 0]; dcur = 3072
    for g, (si, fi) in enumerate(frags):
        for c in ych_at.get(g, []):
            L = []
            for kk0 in range(c*YCH, (c+1)*YCH, 4):
                for rt in range(2):
                    L.append(f"s_add_u32 m0, s{(26, 31)[rt]}, {YB + kk0*1024}" if kk0 else f"s_mov_b32 m0, s{(26, 31)[rt]}")
                    L.append(I(f"buffer_load_dwordx4 v{vL}, s[8:11], s{27+rt} offen {yfl} lds", tag=f"y{c}"))
                    L.append(f"s_addk_i32 s{27+rt}, 4096")
            issue.append(('y', L, g))
        x = steps[si]['f'][fi]; d = wslot(g); idx = x['idx']; L = []
        if g == NPRE: cur[1] = cur[0]
        if LP and inlp(g):
            lo = (idx - LP0)*1024 if OP == 1 else (si - 8)*4096 + (idx % 5)*1024
            L.append(I(f"ds_read_b128 a[{d}:{d+3}], v{vLPo if x['odd'] else vLP} offset:{lo + x['t']*128}", tag=f"w{g}"))
            issue.append(('w', L, g)); continue
        k = 1 if x['odd'] and g >= NPRE else 0; sp = (30, 64)[k]
        if idx // 4 != cur[k]:
            dd = (idx//4 - cur[k])*4096
            L.append(f"s_addk_i32 s{sp}, {dd}" if abs(dd) < 32768 else f"s_add_u32 s{sp}, s{sp}, {dd & 0xffffffff}"); cur[k] = idx // 4
        o = (idx % 4)*1024
        if x['aug']:
            if x['odd']: L += ["s_lshl_b32 s50, s19, 7", f"s_add_u32 s50, s50, s{sp}", I(f"buffer_load_dwordx2 a[{d}:{d+1}], v{vPA}, s[8:11], s50 offen offset:{o} {wfl}", tag=f"w{g}")]
            else: L += [I(f"buffer_load_dwordx2 a[{d+2*t}:{d+2*t+1}], v{vPA}, s[8:11], s30 offen offset:{o + 128*t} {wfl}", tag=f"w{g}") for t in range(2)]
        else:
            if not x['odd'] and steps[si]['D'] != dcur:
                dn = steps[si]['D']
                L += ["s_mov_b32 exec_lo, 0", f"v_add_u32 v{vW}, {(dn - dcur) & 0xffffffff}, v{vW}", "s_mov_b32 exec_lo, -1"]; dcur = dn
            L.append(I(f"buffer_load_dwordx4 a[{d}:{d+3}], v{vWo if x['odd'] else vW}, s[8:11], s{sp} offen offset:{o + 128*x['t']} {wfl}", tag=f"w{g}"))
        issue.append(('w', L, g))
    pre_grp = [[(y.text if isinstance(y, I) else y).replace("s30", "s64") for y in x[1]] for x in issue if x[0] == 'w' and x[2] < NPRE]
    padv = sum(int(y.split(',')[1]) for x in pre_grp for y in x if y.startswith('s_addk'))
    issue = [x for x in issue if not (x[0] == 'w' and x[2] < NPRE)]
    if LP:
        ld = lambda sr, o: f"buffer_load_dwordx4 v{vL}, s[8:11], s{sr} offen offset:{o} {wfl} lds"
        own_ = []; z = []
        if OP == 1:
            L = ["s_cmp_eq_u32 s16, 0", "s_cbranch_scc1 L_lp_skip", f"s_add_u32 s50, s64, {WB + LP0*1024 - padv}", "s_mul_i32 s51, s16, 18432", f"s_add_u32 s51, s51, {kq.STG}",
                 f"s_mul_i32 s52, s16, {WB - 5120}", "s_sub_u32 s52, s50, s52", "s_sub_u32 s52, s52, 5120", "s_mul_i32 s53, s16, 5120", f"s_add_u32 s53, s53, {HB - 5120}"]
            for i in range(LPN):
                if i % 4 == 0: own_.append([f"s_add_u32 m0, s51, {i*1024}"] + (["s_addk_i32 s50, 4096"] if i else ["s_nop 0"]))
                own_[-1].append(ld(50, (i%4)*1024))
            for i in range(5):
                if i % 4 == 0: z.append([f"s_add_u32 m0, s53, {i*1024}"] + (["s_addk_i32 s52, 4096"] if i else ["s_nop 0"]))
                z[-1].append(ld(52, (i%4)*1024))
            for x in own_[:1] + z[:1] + own_[1:2] + z[1:] + own_[2:]: L += x
        else:
            L = ["s_cmp_eq_u32 s16, 0", "s_cbranch_scc1 L_lp_skip", f"s_add_u32 s50, s64, {WB + 40*1024 - padv}", "s_mul_i32 s51, s16, 18432", f"s_add_u32 s51, s51, {kq.STG}",
                 f"s_mul_i32 s52, s16, {WB}", "s_sub_u32 s52, s50, s52", "s_cmp_eq_u32 s16, 2", "s_cselect_b32 s53, 3, 5", "s_cselect_b32 s54, 8, 13", "s_cmp_eq_u32 s16, 1",
                 "s_cselect_b32 s53, 0, s53", "s_cselect_b32 s54, 0, s54", "s_cselect_b32 s55, 3, 2", "s_lshl_b32 s54, s54, 10", "s_add_u32 s52, s52, s54", "s_lshl_b32 s53, s53, 11",
                 f"s_add_u32 s53, s53, {HB}", "s_lshl_b32 s55, s55, 10", "s_sub_u32 s56, 5120, s55"]
            for k in range(8): own_.append([f"s_add_u32 m0, s51, {k*2048}"] + ([f"s_addk_i32 s50, {(2048, 3072)[k % 2]}"] if k else ["s_nop 0"]) + [ld(50, 0), ld(50, 1024)])
            for k in range(3): z.append([f"s_add_u32 m0, s53, {k*2048}"] + ([f"s_add_u32 s52, s52, s{54 + k}"] if k else ["s_nop 0"]) + [ld(52, 0), ld(52, 1024)])
            for x in own_[:2] + z[:1] + own_[2:4] + z[1:2] + own_[4:6] + z[2:] + own_[6:]: L += x
        if LPE:
            LPX[:] = ["s_cmp_eq_u32 s63, 0", "s_cbranch_scc1 L_lp_skip"] + L + ["L_lp_skip:"]
            L = ["s_cmp_eq_u32 s63, 0", "s_cbranch_scc0 L_lp_skip"] + L
        p(kq.off("\n".join(L + ["L_lp_skip:"])))
        p(f"""s_mul_i32 s51, s16, 18432
s_add_u32 s51, s51, {kq.STG}
s_cmp_eq_u32 s16, 0
s_cselect_b32 s51, {HB}, s51
s_xor_b32 s52, s16, 1
s_mul_i32 s53, s52, 18432
s_add_u32 s53, s53, {kq.STG}
s_cmp_eq_u32 s52, 0
s_cselect_b32 s53, {HB}, s53
s_sub_u32 s52, s51, {WB}
v_add_u32 v{vLP}, s52, v{vW}
v_and_b32 v{vLPo}, 0x3ff, v{vW}
s_lshl_b32 s52, s19, 7
v_add_u32 v{vLPo}, s52, v{vLPo}
v_mov_b32 v{PK}, s51
v_mov_b32 v{PK+1}, s53
v_cmp_gt_u32 vcc, 32, v2
v_cndmask_b32 v{PK}, v{PK+1}, v{PK}, vcc
v_add_u32 v{vLPo}, v{vLPo}, v{PK}""")
        if OP == 2: p(f"v_lshrrev_b32 v{PK}, 5, v2\nv_lshlrev_b32 v{PK}, 10, v{PK}\nv_sub_u32 v{vLP}, v{vLP}, v{PK}")
        assert WB % 1024 == 0
    p(f"s_mov_b32 s30, s64\nv_lshlrev_b32 v4, 7, v2\ns_mov_b32 s49, 0x40000\ns_cmp_eq_u32 s16, 0\ns_cbranch_scc0 L_bc_go\n" + poll(PD) + "\ns_barrier")
    p(nst('c_go'))
    f3c = kq.fchk('f3', 248, 60, 's3')
    ip = 0
    def issue_upto(gmax):
        nonlocal ip
        L = []
        while ip < len(issue) and issue[ip][2] <= gmax:
            L += issue[ip][1]; ip += 1
        return L
    p.ext(issue_upto(NPRE - 1))
    p("buffer_load_dword v22, v15, s[8:11], s47 offen sc1\nbuffer_load_dword v23, v15, s[8:11], s48 offen sc1")
    U = PK + 2
    p(f"""v_lshrrev_b32 v{PK+3}, 4, v2
v_and_b32 v{U}, 15, v2
v_lshlrev_b32 v{U}, 4, v{U}
v_lshl_add_u32 v{U}, v{PK+3}, 9, v{U}
s_lshl_b32 s50, s19, 10
v_xor_b32 v{PK+3}, s50, v{U}
s_mul_i32 s50, s19, 36864
s_mul_i32 s51, s29, 36864
v_add_u32 v{vRD}, s50, v{PK+3}
v_add_u32 v{vRD+1}, s51, v{PK+3}""")
    setup = f"""s_mul_i32 s50, s19, 36864
s_mul_i32 s51, s29, 36864
s_lshl_b32 s52, s16, 11
s_add_u32 s53, s50, s52
s_add_u32 s53, s53, {HB}
v_add_u32 v{vHW}, s53, v{U}
s_add_u32 s53, s51, s52
s_add_u32 s53, s53, {HB}
v_add_u32 v{vHW+1}, s53, v{U}
s_lshl_b32 s52, s20, 11
s_lshl_b32 s53, s19, 3
s_add_u32 s52, s52, s53
s_add_u32 s52, s52, {HB + 32*1024}
s_add_u32 s53, s50, s52
v_add_u32 v{vHO[0]}, s53, v{U}
s_add_u32 s53, s51, s52
v_add_u32 v{vHO[1]}, s53, v{U}
s_mul_i32 s54, s17, {ACT}
s_add_u32 s54, s54, {PART}{lay('s54')}
s_mul_i32 s55, s45, 36864
s_mul_i32 s56, s46, 36864
s_add_u32 s55, s55, s54
s_add_u32 s56, s56, s54
s_lshl_b32 s57, s20, 11
s_add_u32 s57, s57, {16*2048}
s_add_u32 s54, s57, s56
s_add_u32 s57, s57, s55
s_lshl_b32 s58, s16, 11
s_add_u32 s55, s55, s58
s_add_u32 s56, s56, s58
v_lshrrev_b32 v{PK+3}, 5, v2
v_lshlrev_b32 v{vPA}, 9, v{PK+3}
v_bfe_u32 v{PK+3}, v2, 4, 1
v_lshl_add_u32 v{vPA}, v{PK+3}, 3, v{vPA}
v_and_b32 v{PK+3}, 0x1ff, v{vW}
v_add_u32 v{vPA}, v{vPA}, v{PK+3}
v_add_u32 v{vPA}, {WB}, v{vPA}""".split("\n")
    setup += [["v_bfe_u32 v4, v2, 3, 1", "s_and_b32 s50, s17, 1", "v_cmp_eq_u32 vcc, s50, v4", f"v_mov_b32 v{PK+3}, 0x40000000", f"v_cndmask_b32 v{PK+3}, v{U}, v{PK+3}, vcc",
               "s_lshr_b32 s44, s17, 1", "s_lshl_b32 s50, s19, 1", "s_xor_b32 s44, s44, s50"]]
    for o in range(4): setup += [[f"s_cmp_eq_u32 s44, {o}", "s_cselect_b64 vcc, -1, 0", f"v_cndmask_b32 v{vST[o]}, v{U}, v{PK+3}, vcc"]]
    setup += ["s_lshl_b32 s66, s18, 2", "s_add_u32 s66, s66, s16", "s_lshl_b32 s66, s66, 7", f"s_add_u32 s66, s66, {CNT + sigA[0]}", "s_add_u32 s66, s66, s63"]
    statf = []
    for rt in range(2):
        s = 22 + rt; t = TMP; k1 = vK1 + 2*rt; k3 = vK3 + 2*rt; e = PK
        statf += f"""v_mov_b32 v{t}, v{s}
v_mov_b32 v{e}, v{s}
v_permlane32_swap_b32 v{e}, v{t}
v_mul_f32 v{e}, 0x3ae38e39, v{e}
v_mul_f32 v{t}, 0x3ae38e39, v{t}
v_fma_f32 v{t}, -v{e}, v{e}, v{t}
v_max_f32 v{t}, 0, v{t}
v_mov_b32 v{t+1}, 0x3f800054
v_mov_b32 v{t+2}, 0x2edbe6ff
v_fma_f32 v{t}, v{t}, v{t+1}, v{t+2}
v_rsq_f32 v{t+1}, v{t}
v_mul_f32 v{t}, v{t}, v{t+1}
v_mul_f32 v{k1}, 0xc0135761, v{t+1}
v_mul_f32 v{k1+1}, 0xc0135761, v{t+1}
v_mul_f32 v{t+2}, v{t+1}, v{t+1}
v_mul_f32 v{t+2}, v{t+2}, v{t+1}
v_mul_f32 v{e+1}, 0xbdd2d3e8, v{t+2}
v_mul_f32 v{e+4}, 0xbdd2d3e8, v{t+2}
v_permlane16_swap_b32 v{k1}, v{k1+1}
v_sub_f32 v{e}, 0, v{e}
v_permlane16_swap_b32 v{e+1}, v{e+4}
v_cvt_pk_bf16_f32 v{t+3}, v{e}, v{t}
v_lshlrev_b32 v{t+4}, 16, v{t+3}
v_and_b32 v{t+5}, 0xffff0000, v{t+3}
v_sub_f32 v{t+4}, v{e}, v{t+4}
v_sub_f32 v{t+5}, v{t}, v{t+5}
v_cvt_pk_bf16_f32 v{t+6}, v{e}, v{t+4}
v_cvt_pk_bf16_f32 v{t+2}, v{e}, v{t+4}
v_cvt_pk_bf16_f32 v{t+7}, v{e}, v{t+5}
v_permlane16_swap_b32 v{t+6}, v{t+2}
v_permlane16_swap_b32 v{t+3}, v{t+7}
v_accvgpr_write_b32 a{aAUG+4*rt}, v{t+6}
v_accvgpr_write_b32 a{aAUG+4*rt+1}, v{t+3}
v_accvgpr_write_b32 a{aAUG+4*rt+2}, v{t+2}
v_accvgpr_write_b32 a{aAUG+4*rt+3}, v{t+7}""".split("\n")
        statf += ([f"v_mov_b32 v{k3}, v{e+1}", f"v_mov_b32 v{k3+1}, v{e+4}"])
        if rt == 0: statf += []
    pkc = [0]
    def gl(acc, rt, woff, tag):
        L = []
        for rh in range(2):
            o = PK + 4*(pkc[0] % 2); pkc[0] += 1
            L += gelu(acc + 16*rt + 8*rh, 8, vK1 + 2*rt + rh, vK3 + 2*rt + rh, TMP, o, grp)
            L.append(I(f"ds_write_b128 v{vHW + rt}, v[{o}:{o+3}] offset:{woff + rh*256}", tag=tag))
        return L
    def gtile(role, acc, tag): return gl(acc, 0, role*8192, tag) + gl(acc, 1, role*8192, tag)
    def godd():
        L = []
        for o in range(4):
            q = PK + 4*(pkc[0] % 2); pkc[0] += 1
            L += gelu(OS + 4*o, 4, vK1 + o, vK3 + o, TMP + 4*(o % 2), q)
            L.append(I(f"ds_write_b64 v{vHO[o//2]}, v[{q}:{q+1}] offset:{(o % 2)*256}", tag='ho'))
        return L
    seg = [gtile(0, A_, 'hab') + gtile(1, B_, 'hab'), godd() + gtile(2, C_, 'hc') + gtile(3, D_, 'hd')]
    hbar = {n_p2: 'hab', n_p2 + 8: 'ho', n_t: 'hd'}
    if NTL < 8: hbar[n_p2 + 10] = 'hc'
    assert NTL >= 4
    def lread(si):
        st = steps[si]; B = []; L = []
        if si in hbar:
            B.append(I("s_barrier", needs=[hbar[si]]))
            if si == n_p2:
                for i in range(2): B.append(f"v_add_u32 v{vRD+i}, {HB}, v{vRD+i}")
        if st['l'] is None: return B, L
        kind, ds = st['l']
        if kind == 'Y' and st['ph'] == 'p1' and (2*ds) % YCH == 0:
            c = 2*ds // YCH
            B.append(I("s_barrier", needs=[f"y{c}"]))
            if c == F3S: B += kq.fsig('f3', PK + 4, PK + 5, 61)
        for o in range(4):
            d = aLR + 16*(lcnt[si] % 2) + 4*o
            L.append(I(f"ds_read_b128 a[{d}:{d+3}], v{vRD + o//2} offset:{ds*2048 + (o % 2)*256}", tag=f"l{si}"))
        return B, L
    GL1 = next(g for g, (si, fi) in enumerate(frags) if si == n_p1); GL2 = next(g for g, (si, fi) in enumerate(frags) if si == n_p2)
    lcnt = {}; k = 0
    for si, st in enumerate(steps):
        if st['l'] is not None: lcnt[si] = k; k += 1
    nxt = lambda si: next((s for s in range(si + 1, len(steps)) if steps[s]['l'] is not None or s in hbar), None)
    b0, r0 = lread(0); p.ext(b0); p.ext(r0)
    p(nst('c_first'))
    G = []; stepstart = {}; g = 0; done = {0}
    tail = [f"ds_read_b128 {treg(i, o)[0]}[{treg(i, o)[1]}:{treg(i, o)[1]+3}], v{vRD + o//2} offset:{(8 + T0 + i)*2048 + (o % 2)*256}" for i in range(NTL) for o in range(4)]
    for si, st in enumerate(steps):
        stepstart[si] = len(G)
        nx = nxt(si)
        pend = []
        if nx is not None and nx not in done and (nx == si + 1 or st['l'] is None or steps[si + 1]['l'] is None):
            if not (st['l'] is not None and nx != si + 1):
                B, L = lread(nx); pend = [B + L[:1]] + [[x] for x in L[1:]]; done.add(nx)
        for fi, x in enumerate(st['f']):
            w = wslot(g)
            tl = (0, 1) if x['aug'] and not x['odd'] else (x['t'],)
            ms = [(t, o) for t in tl for o in range(4)]
            for mi, (t, o) in enumerate(ms):
                R = x['R']
                acc = x['acc'] + (4*o if x['odd'] else 8*o + 4*t)
                c = "0" if x['first'] else f"{R}[{acc}:{acc+3}]"
                if x['aug']: op = f"v_mfma_f32_16x16x16_bf16 {R}[{acc}:{acc+3}], a[{w+2*t}:{w+2*t+1}], a[{aAUG+2*o}:{aAUG+2*o+1}], {c}"
                else:
                    Rb, bb = treg(x['kk'], o) if st['ph'] == 't' else ('a', aLR + 16*(lcnt[si] % 2) + 4*o)
                    op = f"v_mfma_f32_16x16x32_bf16 {R}[{acc}:{acc+3}], a[{w}:{w+3}], {Rb}[{bb}:{bb+3}], {c}"
                needs = []
                if mi == 0 and fi % MG == 0 and si > 0: needs = [f"w{g + min(MG, len(st['f']) - fi) - 1}"] + ([f"l{si}"] if fi == 0 else [])
                grp_ = [I(op, needs=needs)]
                kq_ = len(G) - stepstart[si]
                if pend and kq_ % LRS == 0: grp_ += pend.pop(0)
                if mi == len(ms) - 1:
                    gm = g + DW - 1
                    if HLD: gm = min(gm, GL1 - 1 + max(0, 2*(g - HLD + 1)))
                    grp_ += issue_upto(gm)
                G.append(grp_)
            g += 1
        assert not pend
    assert ip == len(issue)
    stepstart[len(steps)] = len(G)
    k0 = stepstart[n_t - 1] + 1
    for k, x in enumerate(tail): G[k0 + k*TR[1]//TR[0]] = G[k0 + k*TR[1]//TR[0]] + [x]
    def outp(acc, rt, sreg, tag, lo):
        L = []
        for rh in range(2):
            o = PK + 4*(pkc[0] % 2); pkc[0] += 1
            src = acc + 16*rt + 8*rh
            for i in range(4): L.append(f"v_cvt_pk_bf16_f32 v{o+i}, v{src+2*i}, v{src+2*i+1}")
            L += [f"v_permlane16_swap_b32 v{o}, v{o+2}", f"v_permlane16_swap_b32 v{o+1}, v{o+3}"]
            L.append(I(f"buffer_store_dwordx4 v[{o}:{o+3}], v{vST[2*rt + rh]}, s[8:11], s{sreg} offen offset:{rh*256} {stfl}", tag=tag))
            L.append(f"ds_write_b128 v{vHW + rt}, v[{o}:{o+3}] offset:{lo + rh*256}")
        return L
    def otile(n):
        return [f"s_add_u32 s58, s55, {n*8192}", f"s_add_u32 s59, s56, {n*8192}"] + outp(NACC[n], 0, 58, f"o{n}", n*8192) + outp(NACC[n], 1, 59, f"o{n}", n*8192)
    def oodd():
        T = TMP
        A = [f"v_lshrrev_b32 v{T}, 5, v2", f"v_and_b32 v{T+1}, 31, v2", f"v_lshlrev_b32 v{T+1}, 4, v{T+1}", f"v_lshl_add_u32 v{T}, v{T}, 10, v{T+1}", "s_lshl_b32 s50, s19, 9", f"v_add_u32 v{T}, s50, v{T}",
             [f"v_bfe_u32 v{T+1}, v2, 3, 2", "s_and_b32 s50, s17, 3", f"v_cmp_eq_u32 vcc, s50, v{T+1}", f"v_mov_b32 v{T+1}, 0x40000000", f"v_cndmask_b32 v{T+1}, v{T}, v{T+1}, vcc",
              "s_cmp_lt_u32 s44, 2", "s_cselect_b64 vcc, -1, 0", f"v_cndmask_b32 v{T+2}, v{T}, v{T+1}, vcc", f"v_cndmask_b32 v{T+3}, v{T+1}, v{T}, vcc"],
             "s_lshl_b32 s50, s20, 11", f"s_add_u32 s50, s50, {HB + 32768}", "s_mul_i32 s51, s19, 36864", "s_add_u32 s51, s51, s50", f"v_add_u32 v{T+4}, s51, v{T}",
             "s_mul_i32 s51, s29, 36864", "s_add_u32 s51, s51, s50", f"v_add_u32 v{T+5}, s51, v{T}"]
        A += [f"v_accvgpr_read_b32 v{OS+i}, a{aODD+i}" for i in range(16)]
        L = []
        for rt in range(2):
            o = PK + 4*(pkc[0] % 2); pkc[0] += 1
            for i in range(4): L.append(f"v_cvt_pk_bf16_f32 v{o+i}, v{OS+8*rt+2*i}, v{OS+8*rt+2*i+1}")
            L += [f"v_permlane16_swap_b32 v{o}, v{o+2}", f"v_permlane16_swap_b32 v{o+1}, v{o+3}"]
            L.append(I(f"buffer_store_dwordx4 v[{o}:{o+3}], v{T+2+rt}, s[8:11], s{(57, 54)[rt]} offen {stfl}", tag='o4'))
            L.append(f"ds_write_b128 v{T+4+rt}, v[{o}:{o+3}]")
        return A, L
    ts = {n: stepstart[tstart[n]] for n in tstart}
    oa, os_ = oodd(); o3 = otile(3); o0 = otile(0); o1 = otile(1)
    plan = [(setup, SU[0], SU[1]), (statf, ST0[0], ST0[1]),
            (seg[0], stepstart[n_p1] + S0[0], stepstart[n_p2 - 1] - (8 if OP == 1 else 0) - S0[1]),
            (seg[1], stepstart[n_p2 - 1] + (-8 if OP == 1 else 8) + S1[0], stepstart[n_t - 1] - S1[1]),
            (oa + (os_ if dl[3] else []), ts[3] + 4, ts[0]), (([] if dl[3] else os_) + o3, ts[1] + dl[0], ts[1] + dl[1]),
            (o0, ts[1] + max(4, dl[1]), ts[1] + dl[2]), (o1, ts[2] + 4, ts[2] + 4 + OW1)]
    sgA = ["v_lshlrev_b32 v20, 14, v2", "v_mov_b32 v21, 1", f"s_mov_b64 exec, {(1 << sigA[1]) - 1}", I("buffer_atomic_add v21, v20, s[8:11], s66 offen", needs=['o0']), "s_mov_b64 exec, -1"]
    G[ts[2] + sigA[2]] = G[ts[2] + sigA[2]] + sgA
    for nm, k in (('c_p1', stepstart[n_p1]), ('c_p2', stepstart[n_p2]), ('c_t', stepstart[n_t])):
        if nst(nm): G[k] = [nst(nm)] + G[k]
    for k in range(1, len(G)):
        if nst(f'c_g{k}'): G[k] = [nst(f'c_g{k}')] + G[k]
    gpos = {}
    for k, grp_ in enumerate(G):
        for x in grp_:
            if isinstance(x, I) and x.tag and x.tag[0] == 'w' and x.tag[1:].isdigit(): gpos.setdefault(int(x.tag[1:]), k)
    kb = F3P
    assert kb + 5 < gpos[GL1], gpos[GL1]
    G[F3L] = G[F3L] + [f3c[0]]
    for k, x in enumerate(f3c[1]): G[kb + k//2] = G[kb + k//2] + [x]
    G[kb + 5] = G[kb + 5] + f3c[2]
    f4c = kq.fchk('f4', 248, 60, 's3')
    G[kb + 6] = G[kb + 6] + [f"s_add_u32 s60, s60, {kq.F4O - kq.F3O}", f"s_add_u32 s61, s61, {kq.F4O - kq.F3O}"]
    W = F4.get('W', 192); kb = F4.get('P', 528)
    G[W] = G[W] + kq.late_w2()
    nx = 'w%d' % min(g for g, k in gpos.items() if k > W)
    sg = kq.fsig('f4', PK + 4, PK + 5, 61)
    if isinstance(F4['S'], int):
        sg = kq.fsig('f4', 252, 253, 61)
        G[F4['S']] = G[F4['S']] + [I("s_barrier", needs=[nx])] + sg
    else:
        hit = 0
        for grp_ in G:
            for i, x in enumerate(grp_):
                if isinstance(x, I) and x.op == 's_barrier' and F4['S'] in x.needs: x.needs.append(nx); grp_[i+1:i+1] = sg; hit += 1; break
        assert hit == 1
    assert kb + 5 < gpos[GL2], gpos[GL2]
    G[F4.get('L', 460)] = G[F4.get('L', 460)] + [f4c[0]]
    for k, x in enumerate(f4c[1]): G[kb + k//2] = G[kb + k//2] + [x]
    G[kb + 5] = G[kb + 5] + f4c[2]
    pos = 0
    for fill, a, b in plan:
        assert a >= pos and b >= a, (a, b, pos)
        for grp_ in G[pos:a]: p.ext(grp_)
        p.ext(interleave(G[a:b], fill))
        pos = b
    for grp_ in G[pos:]: p.ext(grp_)
    p(nst('c_end'))
    p.ext(otile(2))
    for k, i in enumerate(p.ins):
        if i.op == 's_barrier':
            for t in i.needs:
                assert all(kk < k for kk, j in enumerate(p.ins) if j.tag == t), t
    nxw = {}
    for i in reversed(p.ins):
        if i.kind == 'mfma':
            for r in i.w: nxw[r] = 'first' if not i.srcC else 'acc'
        elif i.isvalu():
            for r in i.r: assert nxw.get(r) != 'acc', i.text
            for r in i.w: nxw.pop(r, None)
        elif i.kind == 'dsr':
            for r in i.w: nxw.pop(r, None)
    seen = set()
    tset = set(tail)
    for i in p.ins:
        if i.text in tset: seen |= set(i.w)
        if i.kind == 'mfma' and seen:
            b = _ab(i)[4:]
            tr = {x for t in tail for x in I(t).w}
            if set(b) <= tr: assert set(b) <= seen, i.text
    c16.info = dict(n=len(G), ss={k: stepstart[k] for k in (n_p1, n_p2 - 1, n_p2, n_t - 1, n_t)}, ts=ts, g1=gpos[GL1], g2=gpos[GL2])
    import os
    if os.environ.get('INFO'): print(c16.info)
    return p.finish(), pre_setup, None, pre_grp, f3c[3] + f4c[3]
```

```python
from asmlib import *
from layout import *
from k0 import srd
from ka import phi, QB
import kc, kp, kq
HF = ['']

CCD, CDA, CAB = 16384, 32768, 49152
REP = dict(bc=(0, 1), cd=(16384, 1))
aWOr = lambda ks, t: 64 + 4*((8 - ks)*5 + t)

BK = [0]
def spin(tag, sreg, va, vd, lanes, target, depth=1):
    ld = lambda k: f"buffer_load_dword v{vd+k}, v{va}, s[8:11], s{sreg} offen sc1 ; @"
    L = ([f"s_mov_b64 exec, {(1 << lanes) - 1}"] if lanes < 32 else ["s_mov_b32 exec_hi, 0"]) + [ld(k) for k in range(depth - 1)] + [f"L_{tag}_poll:"]
    for k in range(depth):
        L += [ld((k + depth - 1) % depth), f"s_waitcnt vmcnt({depth - 1}) ; @", f"v_cmp_gt_u32 vcc, {target}, v{vd+k}",
              "s_nop 4", f"s_cbranch_vccz L_{tag}_ok"]
    L += ["s_nop 15"] * BK[0]
    L += ["s_sub_u32 s49, s49, 1", "s_cmp_eq_u32 s49, 0", f"s_cbranch_scc0 L_{tag}_poll", f"L_{tag}_ok:", "s_mov_b64 exec, -1"]
    L.append(f"L_{tag}_go:")
    return "\n".join(L)

A_MAP = """s_and_b32 s17, s2, 7
s_lshr_b32 s18, s2, 3
s_lshr_b32 s19, s17, 2
s_lshl_b32 s19, s19, 2
s_and_b32 s20, s18, 3
s_add_u32 s19, s19, s20
s_and_b32 s20, s17, 3
s_lshl_b32 s20, s20, 3
s_lshr_b32 s21, s18, 2
s_add_u32 s20, s20, s21"""
AM1 = [0]
def a_map1():
    if AM1[0] == 0: return A_MAP
    if AM1[0] == 1: return "s_bfe_u32 s19, s2, 0x20001\ns_lshl_b32 s19, s19, 1\ns_bfe_u32 s20, s2, 0x10003\ns_add_u32 s19, s19, s20\ns_and_b32 s20, s2, 1\ns_lshl_b32 s20, s20, 4\ns_lshr_b32 s21, s2, 4\ns_add_u32 s20, s20, s21"
    return "s_and_b32 s19, s2, 7\ns_lshr_b32 s20, s2, 3"
def a_head1():
    if AM1[0] == 0: return "s_and_b32 s52, s2, 3\ns_lshl_b32 s52, s52, 3\ns_lshr_b32 s53, s2, 5\ns_add_u32 s52, s52, s53"
    if AM1[0] == 1: return "s_and_b32 s52, s2, 1\ns_lshl_b32 s52, s52, 4\ns_lshr_b32 s53, s2, 4\ns_add_u32 s52, s52, s53"
    return "s_lshr_b32 s52, s2, 3"
A_WS = f"""s_mul_i32 s24, s20, 73728
s_add_u32 s24, s24, {WQF}
s_lshl_b32 s25, s16, 11
s_add_u32 s24, s24, s25"""
def a_wchunk(c):
    L = [f"s_add_u32 m0, s25, {c*8192}" if c else "s_mov_b32 m0, s25"]
    for i in range(2): L.append(I(f"buffer_load_dwordx4 v3, s[8:11], s24 offen offset:{i*1024} {HF[0]} lds", tag=f"w{c}"))
    if c < 8: L.append("s_addk_i32 s24, 8192")
    return L

def wo_loads(ts, sreg=50):
    G = []
    for t in ts:
        for ks in range(9):
            pre = []
            if ks in (4, 8): pre = [f"s_addk_i32 s{sreg}, 4096"]
            if ks == 0 and t != ts[0]: pre = [f"s_add_u32 s{sreg}, s{sreg}, {36864 - 8192}"]
            r = aWOr(ks, t)
            G.append(pre + [f"buffer_load_dwordx4 a[{r}:{r+3}], v3, s[8:11], s{sreg} offen offset:{(ks%4)*1024} {HF[0]}"])
    return G

def side_parts(ssf="sc1", lf="nt"):
    WB = WSN*1024
    SB = 98304
    V = 160
    v3_, v5_, vs_, t1, t2, ts1, ts2, c0, c1, vb, vcs, vag, T = V, V+1, V+2, V+3, V+4, V+5, V+6, V+7, V+8, V+9, V+10, V+11, V+12
    D = V + 16
    ka = "s_load_dwordx4 s[56:59], s[0:1], 32\ns_load_dwordx2 s[60:61], s[0:1], 48"
    setup = f"""s_mov_b32 s12, s56
s_mov_b32 s13, s57
s_mov_b32 s14, {576*4608*2}
s_mov_b32 s15, 0x20000
s_mov_b32 s44, s60
s_mov_b32 s45, s61
s_mov_b32 s46, {576*4608*2}
s_mov_b32 s47, 0x20000
s_mov_b32 s64, s58
s_mov_b32 s65, s59
s_mov_b32 s66, {4608*2}
s_mov_b32 s67, 0x20000
s_cmp_lt_u32 s16, 2
s_cselect_b32 s96, s56, s60
s_cselect_b32 s97, s57, s61
s_mov_b32 s98, {576*4608*2}
s_mov_b32 s99, 0x20000
s_and_b32 s56, s2, 7
s_bfe_u32 s57, s2, 0x20003
s_lshr_b32 s58, s2, 5
s_mul_i32 s59, s57, 9
s_add_u32 s60, s59, s16
s_mul_i32 s62, s60, {16*9216}
s_mul_i32 s68, s56, 1152
s_lshl_b32 s69, s58, 7
s_add_u32 s68, s68, s69
s_add_u32 s62, s62, s68
s_mul_i32 s87, s56, 36
s_add_u32 s87, s87, s60
s_mul_i32 s87, s87, {16*1152}
s_add_u32 s87, s87, s69
s_add_u32 s60, s59, 8
s_mul_i32 s88, s60, {16*9216}
s_add_u32 s88, s88, s68
s_mul_i32 s68, s56, 36
s_add_u32 s68, s68, s60
s_mul_i32 s68, s68, {16*1152}
s_add_u32 s68, s68, s69
s_cmp_lt_u32 s16, 2
s_cselect_b32 s88, s88, s68
s_cselect_b32 s68, 8, 1
s_mul_i32 s68, s68, 1152
s_and_b32 s69, s16, 1
s_lshl_b32 s69, s69, 6
s_add_u32 s88, s88, s69
s_mul_i32 s55, s16, 9216
s_add_u32 s55, s55, {SB}
v_bfe_u32 v{T}, v2, 2, 3
v_and_b32 v{T+1}, 3, v2
v_lshrrev_b32 v{T+2}, 5, v2
v_lshlrev_b32 v{T+3}, 6, v{T+2}
v_lshl_add_u32 v{T+3}, v{T+1}, 4, v{T+3}
v_mul_u32_u24 v{v3_}, 9216, v{T}
v_add_u32 v{v3_}, v{v3_}, v{T+3}
v_mul_u32_u24 v{v5_}, 1152, v{T}
v_add_u32 v{v5_}, v{v5_}, v{T+3}
v_lshrrev_b32 v{T}, 2, v2
v_mul_u32_u24 v{vs_}, s68, v{T}
v_lshl_add_u32 v{vs_}, v{T+1}, 4, v{vs_}""".split("\n")
    dma = []
    for b in range(2):
        for mi, (vo, sr, srd_, rs) in enumerate(((v3_, 62, 12, 9216), (v5_, 87, 44, 1152))):
            for u in range(2):
                L = [f"s_add_u32 m0, s55, {(2*b + mi)*2048 + u*1024}", I(f"buffer_load_dwordx4 v{vo}, s[{srd_}:{srd_+3}], s{sr} offen {lf} lds", tag=f"sd{b}{mi}")]
                if not (b == 1 and u == 1): L.append(f"s_add_u32 s{sr}, s{sr}, {(8 if u == 0 else 56)*rs}")
                dma.append(L)
    dma.append([f"s_add_u32 m0, s55, 8192", I(f"buffer_load_dwordx4 v{vs_}, s[96:99], s88 offen {lf} lds", tag="sds")])
    setup2 = f"""s_mul_i32 s68, s56, 18
s_lshl_b32 s69, s58, 1
s_add_u32 s68, s68, s69
s_lshl_b32 s68, s68, 6
v_lshlrev_b32 v{vb}, 1, v2
buffer_load_ushort v{vb}, v{vb}, s[64:67], s68 offen
v_and_b32 v{T+1}, 3, v2
v_lshrrev_b32 v{T+2}, 5, v2
v_lshlrev_b32 v{T}, 3, v{T+1}
v_bfe_u32 v{T+3}, v2, 2, 2
v_lshl_add_u32 v{T}, v{T+3}, 6, v{T}
v_bfe_u32 v{T+3}, v2, 4, 1
v_lshl_add_u32 v{T}, v{T+3}, 5, v{T}
v_add_u32 v{T}, s55, v{T}
v_lshl_add_u32 v{t1}, v{T+2}, 10, v{T}
v_lshl_add_u32 v{t2}, v{T+2}, 8, v{T}
s_cmp_lt_u32 s16, 2
s_cselect_b32 s68, 2, 1
s_cselect_b32 s69, 1, 2
s_lshl_b32 s68, s68, 8
s_lshl_b32 s69, s69, 8
v_mul_u32_u24 v{ts1}, s68, v{T+2}
v_add_u32 v{ts1}, v{ts1}, v{T}
v_add_u32 v{ts2}, s69, v{ts1}
v_mov_b32 v{c0}, 0
v_mov_b32 v{c1}, 0
s_lshl_b32 s89, s56, 2
s_and_b32 s68, s58, 1
s_lshl_b32 s68, s68, 1
s_add_u32 s89, s89, s68
s_mul_i32 s89, s89, {WB}
s_add_u32 s89, s89, {WSTR}
s_lshr_b32 s90, s58, 1
s_add_u32 s68, s90, 91
s_add_u32 s69, s90, 90
s_add_u32 s61, s90, 163
s_cmp_lt_u32 s58, 4
s_cselect_b32 s91, 5, 4
s_cselect_b32 s93, s90, s68
s_cselect_b32 s61, s69, s61
s_cselect_b32 s100, 3, 2
s_lshl_b32 s100, s100, 10
s_add_u32 s101, s90, 1
s_and_b32 s101, s101, 3
s_lshl_b32 s101, s101, 4
s_add_u32 s101, s101, 265
s_lshl_b32 s61, s61, 10
s_add_u32 s61, s61, s89
s_lshr_b32 s68, s57, 1
s_lshl_b32 s68, s68, 9
s_add_u32 s61, s61, s68
s_and_b32 s68, s57, 1
s_lshl_b32 s68, s68, 3
s_add_u32 s61, s61, s68
s_cmp_lt_u32 s57, 2
s_cselect_b32 s57, 0xffff, 0
v_lshlrev_b32 v{vcs}, 2, v0
v_add_u32 v{vcs}, {SB + 36864}, v{vcs}
v_and_b32 v{vag}, 31, v2
v_lshlrev_b32 v{vag}, 4, v{vag}
v_mul_u32_u24 v{T}, {WB}, v{T+2}
v_add_u32 v{vag}, v{vag}, v{T}""".split("\n")
    def dest(m):
        L = ["s_lshr_b32 s56, s60, 1", "s_and_b32 s58, s60, 1"]
        if m == 0:
            L += ["s_mul_i32 s68, s56, s91", "s_add_u32 s68, s68, s93", "s_mov_b32 s69, s100"]
        else:
            L += """s_sub_u32 s88, s56, 8
s_cmp_lt_u32 s56, 8
s_cselect_b32 s68, s56, s88
s_mul_i32 s68, s68, 9
s_add_u32 s68, s68, 167
s_add_u32 s68, s68, s90
s_lshl_b32 s69, s88, 1
s_add_u32 s69, s69, s101
s_cmp_lt_u32 s88, 8
s_cselect_b32 s68, s69, s68
s_cselect_b32 s69, 1, 5
s_lshl_b32 s69, s69, 10""".split("\n")
        L += f"""s_lshl_b32 s68, s68, 10
s_add_u32 s68, s68, s89
s_mul_i32 s58, s58, s69
s_add_u32 s62, s68, s58
s_add_u32 s68, s68, s69
s_sub_u32 s68, s68, s58
s_add_u32 s87, s68, {WB}""".split("\n")
        return L
    work = []
    for b in range(2):
        for mi in range(2):
            d = D + 8*((2*b + mi) % 4)
            base = (2*b + mi)*2048
            ra, o2 = ((t1, 256), (t2, 1024))[mi]
            for tt in range(2):
                work.append(I(f"ds_read_b64_tr_b16 v[{d+4*tt}:{d+4*tt+1}], v{ra} offset:{base + tt*512}", needs=[f"sd{b}{mi}"]))
                work.append(f"ds_read_b64_tr_b16 v[{d+4*tt+2}:{d+4*tt+3}], v{ra} offset:{base + tt*512 + o2}")
            if mi == 0: work.append(f"s_add_u32 s60, s59, s16" if b == 0 else "s_add_u32 s60, s60, 4")
            work += dest(mi)
            for tt in range(2):
                work.append(f"buffer_store_dwordx4 v[{d+4*tt}:{d+4*tt+3}], v3, s[8:11], s{(62, 87)[tt]} offen {ssf}")
                if mi == 0: work += [f"v_dot2c_f32_bf16 v{(c0, c1)[tt]}, v8, v{d+4*tt+q}" for q in range(4)]
    d = D + 32
    work += [I(f"ds_read_b64_tr_b16 v[{d}:{d+1}], v{ts1} offset:8192", needs=["sds"]), f"ds_read_b64_tr_b16 v[{d+2}:{d+3}], v{ts2} offset:8192", "s_add_u32 s60, s59, 8"]
    work += dest(0) + ["s_bitcmp1_b32 s16, 0", "s_cselect_b32 s55, s87, s62"] + dest(1)
    work += ["s_bitcmp1_b32 s16, 0", "s_cselect_b32 s62, s87, s62", "s_cmp_lt_u32 s16, 2", "s_cselect_b32 s62, s55, s62",
             f"buffer_store_dwordx4 v[{d}:{d+3}], v3, s[8:11], s62 offen {ssf}",
             "s_cmp_eq_u32 s16, 0", "s_cselect_b32 s68, 0x3f803f80, 0", "s_cmp_eq_u32 s16, 1", "s_cselect_b32 s69, 0x3f803f80, 0"]
    for q in range(4): work += [f"v_dot2c_f32_bf16 v{c0}, s68, v{d+q}", f"v_dot2c_f32_bf16 v{c1}, s69, v{d+q}"]
    work += [f"v_permlane32_swap_b32 v{c0}, v{c1}", f"v_add_f32 v{c0}, v{c0}, v{c1}", I(f"ds_write_b32 v{vcs}, v{c0}", tag='scs')]
    fin = [f"v_lshlrev_b32 v{vcs}, 2, v2", f"v_add_u32 v{vcs}, {SB + 36864}, v{vcs}"]
    fin += [f"ds_read_b32 v{D+w}, v{vcs} offset:{w*256}" for w in range(4)]
    fin += f"""v_add_f32 v{D}, v{D}, v{D+1}
v_add_f32 v{D+2}, v{D+2}, v{D+3}
v_add_f32 v{D}, v{D}, v{D+2}
v_cvt_pk_bf16_f32 v{D+4}, v{D}, v{D}
v_and_b32 v{D+1}, 0xffff0000, v{D+4}
v_sub_f32 v{D+1}, v{D}, v{D+1}
v_cvt_pk_bf16_f32 v{D+5}, v{D+1}, 0
v_and_b32 v{vb}, s57, v{vb}
v_lshl_or_b32 v{D+5}, v{vb}, 16, v{D+5}
buffer_store_dwordx2 v[{D+4}:{D+5}], v{vag}, s[8:11], s61 offen {ssf}""".split("\n")
    return ka, atomize(setup), dma, atomize(setup2), atomize(work), fin

def touch(w1=True, wo=True):
    L = []
    if w1: L.append(f"""s_and_b32 s64, s2, 3
s_lshl_b32 s64, s64, 1
s_bfe_u32 s65, s2, 0x10003
s_add_u32 s64, s64, s65
s_lshl_b32 s64, s64, 2
s_add_u32 s64, s64, s16
s_mul_i32 s64, s64, {WSN*1024}
s_lshr_b32 s65, s2, 4
s_mul_i32 s65, s65, 3072
s_add_u32 s64, s64, s65
s_add_u32 s64, s64, {WSTR}
v_min_u32 v240, 23, v2
v_lshlrev_b32 v240, 7, v240
buffer_load_dword v241, v240, s[8:11], s64 offen {HF[0]}""".split("\n")[:(None if w1 == 1 else -3)] + ([] if w1 == 1 else [f"buffer_load_dwordx4 v[{168+4*i}:{171+4*i}], v3, s[8:11], s64 offen offset:{i*1024} {HF[0]}" for i in range(3)]))
    if wo: L.append(f"""s_lshr_b32 s65, s2, 3
s_lshl_b32 s65, s65, 2
s_add_u32 s65, s65, s16
s_mul_i32 s65, s65, 41
v_min_u32 v242, 40, v2
v_add_u32 v242, s65, v242
v_min_u32 v242, 5183, v242
v_lshlrev_b32 v242, 7, v242
s_mov_b32 s66, {WOF}
buffer_load_dword v243, v242, s[8:11], s66 offen {HF[0]}""".split("\n"))
    return L
WOP = f"""s_lshr_b32 s51, s2, 6
s_mul_i32 s52, s51, 5
s_lshl_b32 s53, s51, 2
s_add_u32 s53, s53, 2
s_cmp_lt_u32 s51, 2
s_cselect_b32 s52, s52, s53
s_mul_i32 s50, s52, 36864
s_mul_i32 s53, s16, 9216
s_add_u32 s50, s50, s53
s_add_u32 s50, s50, {WOF}"""
def a_part(first, m16=False, E0=(148, 248), EP=0, EPo=1, ld=None, hw=None, hwf='', tw=None, NP0=0, NPa1=None, w0p=0, wl=False, skipy=(), D1=None, R1=1, pfy=0, pfa=0, p2=None, FP=(0, 0, 84, 118), LW=(62, 74, 113, 124), p0=None, SD=(10, 75), dw=False, YR=16, D0=12, RAMP=1, NW=8, qsf="sc1", NP1=36, NPa=16, PD=1, yf='sc1', side=None, SW=(2, 12, 12, 34, 60, 112)):
    n = "a0" if first else "a1"
    p = Prog()
    p(A_MAP if first else a_map1())
    p(f"""s_lshl_b32 s21, s19, 3
s_lshl_b32 s22, s16, 1
s_add_u32 s21, s21, s22
s_mul_i32 s22, s21, 36864
s_add_u32 s22, s22, {YF if first else YF + LS}""")
    if first: p(A_WS)
    if first and dw:
        p(f'''s_load_dwordx2 s[56:57], s[0:1], 8
v_lshrrev_b32 v200, 3, v2
v_mul_u32_u24 v200, 3456, v200
v_and_b32 v201, 3, v2
v_bfe_u32 v202, v2, 2, 1
v_lshlrev_b32 v203, 4, v201
v_mul_u32_u24 v204, 1152, v202
v_add_u32 v203, v203, v204
v_add_u32 v203, 1152, v203
v_lshlrev_b32 v204, 4, v202
v_cmp_eq_u32 vcc, 3, v201
v_cndmask_b32 v203, v203, v204, vcc
v_add_u32 v200, v200, v203
v_add_u32 v201, {8*3456 - 1024}, v200
s_mul_i32 s24, s20, 36
s_mul_i32 s58, s16, {16*3456}
s_add_u32 s24, s24, s58
s_waitcnt lgkmcnt(0)
s_mov_b32 s12, s56
s_mov_b32 s13, s57
s_mov_b32 s14, {576*1728*2}
s_mov_b32 s15, 0x20000''')
    ACC, WR, P0, V1, TMP, KVA, QO = 16, 80, 112, 120, 128, 136, 152
    items = []
    for g in range(72):
        if first and g < 36 and g % 4 == 0:
            wc = a_wchunk(g // 4)
            if dw:
                c = g // 4
                wc = [wc[0]] + [I(f"buffer_load_dwordx4 v{200+i}, s[12:15], s24 offen offset:{i*1024} lds", tag=f"w{c}") for i in range(2)] + ([f"s_add_u32 s24, s24, {64*3456}"] if c < 8 else [])
            items.append((g, wc))
        s = 4*(g % YR)
        pre = ["s_addk_i32 s22, 4096"] if (g % 4 == 0 and g) else []
        if m16: items.append((g, pre + [f"buffer_load_dwordx4 a[{s}:{s+3}], v164, s[8:11], s22 offen offset:{(g%4)//2*2048 + (g%2)*256} {yf}"])); continue
        items.append((g, pre + ([] if g in skipy else [f"buffer_load_dwordx4 a[{s}:{s+3}], v3, s[8:11], s22 offen offset:{(g%4)*1024} {'' if first and not p0 and p2 is None else yf}"])))
    ip = 0
    def issue_upto(gmax):
        nonlocal ip
        L = []
        while ip < len(items) and items[ip][0] <= gmax:
            L += items[ip][1]; ip += 1
        return L
    def ypf(skip):
        if not pfy: return []
        n = 72 - skip
        return [f"s_mov_b32 exec_hi, {hex((1 << (n - 32)) - 1)}", f"buffer_load_dword v254, v255, s[8:11], s23 offen {yf}", "s_mov_b64 exec, -1"]
    SK = D0 if first else YR
    if pfy: p(f"s_lshr_b32 s23, s2, 5\ns_mul_i32 s23, s23, {(72 - SK)*128}\ns_add_u32 s23, s23, s22\ns_add_u32 s23, s23, {SK*1024}\nv_lshlrev_b32 v255, 7, v2")
    setup = f"""v_lshlrev_b32 v13, 2, v0
v_add_u32 v4, 65536, v3
s_mul_i32 s28, s16, 1280
s_add_u32 s28, s28, {QB - 20*64}
v_and_b32 v5, 31, v2
v_lshlrev_b32 v5, 6, v5
v_lshrrev_b32 v9, 5, v2
v_lshl_add_u32 v5, v9, 5, v5
v_add_u32 v5, s28, v5
v_bfe_u32 v6, v2, 2, 2
v_lshl_add_u32 v6, v9, 2, v6
v_lshlrev_b32 v6, 6, v6
v_and_b32 v7, 1, v2
v_lshl_add_u32 v6, v7, 5, v6
v_bfe_u32 v7, v2, 4, 1
v_lshl_add_u32 v6, v7, 4, v6
v_bfe_u32 v7, v2, 1, 1
v_lshl_add_u32 v6, v7, 3, v6
s_add_u32 s28, s28, {20*64}
v_add_u32 v6, s28, v6
v_lshlrev_b32 v7, 2, v2
s_mul_i32 s28, s16, 2560
v_add_u32 v15, s28, v3
v_lshlrev_b32 v14, 3, v2
v_add_u32 v14, s28, v14
v_and_b32 v8, 27, v2
v_cmp_eq_u32 s[30:31], 18, v8
v_mov_b32 v8, 0x3f803f80
s_mov_b32 s32, 0xfff00000
s_mov_b32 s33, 0xfff00000
s_lshl_b32 s26, s21, 5
s_add_u32 s26, s26, s20
s_lshl_b32 s27, s26, 8
s_lshl_b32 s26, s26, 10
s_add_u32 s26, s26, {PQ16 + (0 if first else LS)}
s_add_u32 s27, s27, {PQ4 + (0 if first else LS)}"""
    if m16: setup += f"""
v_and_b32 v5, 15, v2
v_lshrrev_b32 v9, 4, v2
v_lshlrev_b32 v164, 4, v5
v_lshl_add_u32 v164, v9, 9, v164
v_add_u32 v15, s28, v164
v_and_b32 v9, 1, v9
v_lshlrev_b32 v14, 3, v5
v_lshl_add_u32 v14, v9, 8, v14
v_add_u32 v14, s28, v14
v_lshlrev_b32 v5, 6, v5
v_lshl_add_u32 v5, v9, 5, v5
v_lshrrev_b32 v9, 5, v2
v_lshl_add_u32 v5, v9, 3, v5
s_mul_i32 s28, s16, 1280
s_add_u32 s28, s28, {QB - 4*64}
v_add_u32 v5, s28, v5
v_lshl_add_u32 v165, v9, 10, v164
v_add_u32 v166, 65536, v165
v_and_b32 v9, 11, v2
v_cmp_eq_u32 s[30:31], 2, v9"""
    if first and p2 is not None:
        if hw or ld: p(kq.LATE_KA)
        p(setup)
        if ld: p('s_waitcnt lgkmcnt(0)')
        hn = 3 if hw and hw[0] == 'pre' else 4
        if hw: p(f'''s_and_b32 s60, s2, 7
s_lshr_b32 s61, s2, 3
s_max_u32 s59, s16, {4 - hn}
s_sub_u32 s59, s59, {4 - hn}
s_mul_i32 s62, s61, {hn}
s_add_u32 s62, s62, s59
s_mul_i32 s62, s62, {324//hn}
v_add_u32 v236, s62, v2
v_min_u32 v237, {324//hn - 65}, v2
v_add_u32 v237, s62, v237
v_lshlrev_b32 v236, 6, v236
v_lshlrev_b32 v237, 6, v237
v_add_u32 v237, 4096, v237
s_mul_i32 s100, s60, {576*1152}
s_mul_i32 s62, s59, {144//hn}
v_min_u32 v238, {144//hn - 1}, v2
v_add_u32 v238, s62, v238
v_lshrrev_b32 v239, 3, v238
v_and_b32 v238, 7, v238
v_mul_u32_u24 v239, 9216, v239
v_lshl_add_u32 v238, v238, 6, v239
s_lshl_b32 s59, s16, 1
s_add_u32 s59, s59, s61
s_and_b32 s59, s59, 7
s_mul_i32 s101, s61, {18*9216}
s_mul_i32 s60, s60, {9*128}
s_add_u32 s101, s101, s60
s_add_u32 s101, s101, 512
s_waitcnt lgkmcnt(0)
s_mov_b32 s88, s96
s_mov_b32 s89, s97
s_mov_b32 s90, {576*4608*2}
s_mov_b32 s91, 0x20000
s_mov_b32 s92, s86
s_mov_b32 s93, s87
s_mov_b32 s94, {576*4608*2}
s_mov_b32 s95, 0x20000''')
        HWL = (f"buffer_load_dword v244, v238, s[88:91], s101 offen {hwf}", f"buffer_load_dword v245, v236, s[92:95], s100 offen {hwf}", f"buffer_load_dword v246, v237, s[92:95], s100 offen {hwf}")
        if hn == 3: p(kq.off("\n".join(["s_cmp_eq_u32 s16, 0", "s_cbranch_scc1 L_hw_e"] + list(HWL[hw[1]:hw[2]]) + ["L_hw_e:"])))
        p(kq.a0_go())
        p(nst('a_go'))
        if pfa: p.ext(issue_upto(pfa - 1)); p.ext(ypf(SK)); p.ext(issue_upto(D0 - 1))
        else: p.ext(issue_upto(D0 - 1)); p.ext(ypf(SK))
        p("ds_read_b32 v161, v162\nv_readfirstlane_b32 s3, v161")
    elif first and p0:
        n = "a0" + p0[0]
        p(setup)
        p(f"""s_and_b32 s56, s2, 7
s_lshl_b32 s56, s56, 10
s_add_u32 s56, s56, {kp.PFL}
s_mov_b32 s49, 0x40000
s_cmp_eq_u32 s16, 0
s_cbranch_scc0 L_{n}p_go""")
        p(kp.poll(n + "p", 56, 250) + f"L_{n}p_go:\ns_barrier")
        p(nst('a_go'))
        p.ext(issue_upto(D0 - 1))
    elif first:
        p.ext(issue_upto(D0 - 1))
        p(setup)
    else:
        p(setup)
        if NP0: p(WOP)
        if tw and tw[1] == 'pre': wo0_t = [y for x in touch(tw[2], tw[4]) for y in x]
        else: wo0_t = []
        wo0 = wo0_t + [y for x in wo_loads(range(4))[:NP0] for y in x]
        NV = len([x for x in wo0 if x.startswith('buffer')])
        p(f"""s_lshl_b32 s28, s19, 2
s_bfe_u32 s29, s2, {('0x20005', '0x20000')[RAB[1]]}
s_add_u32 s28, s28, s29
s_lshl_b32 s28, s28, 9
s_add_u32 s28, s28, {CNT + LS + CDA}
v_lshlrev_b32 v10, 7, v2
s_mov_b32 s49, 0x40000
s_waitcnt vmcnt(0)
s_cmp_eq_u32 s16, 0
s_cbranch_scc{1 if wl or NP0 else 0} L_da_{'w0' if wl or NP0 else 'go'}""")
        if NP0 and not wl: p(kq.off("\n".join(wo0 + ["s_branch L_da_go", "L_da_w0:"] + ([] if w0p else wo0))))
        if wl:
            L = f"""s_sub_u32 s29, s16, 1
s_mul_i32 s56, s29, 24576
s_mul_i32 s57, s20, 73728
s_add_u32 s57, s57, s56
s_add_u32 s57, s57, {WQF}""".split("\n")
            for k in range(6):
                L += [f"s_add_u32 m0, s56, {k*4096}", "s_nop 0"] + [f"buffer_load_dwordx4 v3, s[8:11], s57 offen offset:{i*1024} {HF[0]} lds" for i in range(4)] + (["s_addk_i32 s57, 4096"] if k < 5 else [])
            p(kq.off("\n".join(L + wo0 + [f"s_waitcnt vmcnt({NV})", "s_branch L_da_go", "L_da_w0:"] + ([] if w0p else wo0))))
        sp = spin("da", 28, 10, 250, 4, 8, PD)
        if w0p: sp = sp.replace("L_da_go:", kq.off("\n".join(wo0)) + "\nL_da_go:")
        p(sp)
        p("s_barrier")
        p(nst('a_go'))
        if pfa: p.ext(issue_upto(pfa - 1)); p.ext(ypf(SK)); p.ext(issue_upto(YR - 1))
        else: p.ext(issue_upto((D1 or YR) - 1)); p.ext(ypf(SK))
    SEQ = list(range(4*(36 - EP))) + [4*ds + c for h in range(2) for ds in range(36 - EP, 36) for c in (2*h, 2*h + 1)]
    def wrd(f):
        g = SEQ[f] % 72
        s = WR + 4*(f % NW)
        L = []
        if first and f < 72 and f % 8 == 0: L.append(I("s_barrier", needs=[f"w{f//8}"]))
        if m16:
            o = (g//4)*4096 + (g%4)//2*1024 + (g%2)*256
            L.append(f"ds_read_b128 v[{s}:{s+3}], v{165 + o//65536} offset:{o % 65536}")
            return L
        L.append(f"ds_read_b128 v[{s}:{s+3}], v3 offset:{g*1024}" if g < 64 else f"ds_read_b128 v[{s}:{s+3}], v4 offset:{(g-64)*1024}")
        return L
    for f in range(NW - 1): p.ext(wrd(f))
    p(nst('a_first'))
    G = []
    for f in range(144 if m16 else 0):
        for ds, c in [divmod(SEQ[f], 4)]:
            w = WR + 4*(f % NW)
            for rh in range(2):
                y = 4*((2*ds + rh) % YR); acc = ACC + 32*(ds // 18) + 8*c + 4*rh
                grp = [f"v_mfma_f32_16x16x32_bf16 v[{acc}:{acc+3}], a[{y}:{y+3}], v[{w}:{w+3}], " + ("0" if ds % 18 == 0 else f"v[{acc}:{acc+3}]")]
                if rh == 1 and f + NW - 1 < 144: grp += wrd(f + NW - 1)
                if rh == 0 and c in (0, 2):
                    g = 2*ds - 2 + c//2
                    depth = min(YR, D0 + 2 + max(g, 0)*RAMP) if first else YR
                    grp += issue_upto(g + depth)
                G.append(grp)
    for g in range(0 if m16 else 72):
        y = 4*(g % YR)
        for t in range(2):
            f = 2*g + t
            w = WR + 4*(f % NW)
            acc = ACC + 32*(g // 36) + 16*t
            c = "0" if g % 36 == 0 else f"v[{acc}:{acc+15}]"
            grp = [f"v_mfma_f32_32x32x16_bf16 v[{acc}:{acc+15}], a[{y}:{y+3}], v[{w}:{w+3}], {c}"]
            if f + NW - 1 < 144: grp += wrd(f + NW - 1)
            if t == 1:
                depth = min(YR, D0 + 1 + g*RAMP) if first else (min(YR, int(D1 + 1 + g*R1)) if D1 else YR)
                grp += issue_upto(g + depth)
            G.append(grp)
    assert ip == len(items)
    def epi1(rt):
        T0 = ACC + 32*rt; T1 = T0 + 16
        L = []
        for i in range(8): L.append(f"v_cvt_pk_bf16_f32 v{V1+i}, v{T1+2*i}, v{T1+2*i+1}")
        for i in range(8): L.append(f"v_cndmask_b32 v{V1+i}, v{V1+i}, v8, s[30:31]")
        ph = phi(list(range(T0, T0 + 16)), TMP)
        pk = [f"v_cvt_pk_bf16_f32 v{P0+i}, v{T0+2*i}, v{T0+2*i+1}" for i in range(8)]
        mm = [f"v_mfma_f32_32x32x16_bf16 v[{KVA}:{KVA+15}], v[{P0+4*q}:{P0+4*q+3}], v[{V1+4*q}:{V1+4*q+3}], " + ("0" if (rt == 0 and q == 0) else f"v[{KVA}:{KVA+15}]") for q in range(2)]
        if m16:
            L = L[:8] + L[12:]
            mm = [f"v_mfma_f32_16x16x32_bf16 v[{KVA+8*mt+4*nt}:{KVA+8*mt+4*nt+3}], v[{P0+4*mt}:{P0+4*mt+3}], v[{V1+4*nt}:{V1+4*nt+3}], " + ("0" if rt == 0 else f"v[{KVA+8*mt+4*nt}:{KVA+8*mt+4*nt+3}]") for mt in range(2) for nt in range(2)]
            L = ph[:32] + pk[:4] + L + mm[:2] + ph[32:] + pk[4:] + mm[2:]
            L.append(["s_mov_b32 exec_lo, 0xff00ff00", "s_mov_b32 exec_hi, 0xff00ff00", f"ds_write2_b64 v5, v[{V1+4}:{V1+5}], v[{V1+6}:{V1+7}] offset0:64 offset1:66",
                      "s_mov_b32 exec_lo, 0xfff0fff0", "s_mov_b32 exec_hi, 0xfff0fff0", f"ds_write2_b64 v5, v[{P0+4}:{P0+5}], v[{P0+6}:{P0+7}] offset1:2", "s_mov_b64 exec, -1"])
            L += [f"ds_read_b64_tr_b16 v[{QO}:{QO+1}], v6", f"ds_read_b64_tr_b16 v[{QO+2}:{QO+3}], v6 offset:768", f"ds_read_b64_tr_b16 v[{QO+4}:{QO+5}], v6 offset:512"]
            return L
        L = ph[:32] + pk[:4] + L + [mm[0]] + ph[32:] + pk[4:] + [mm[1]]
        L.append(["s_mov_b64 exec, s[32:33]",
                  f"ds_write_b128 v5, v[{V1}:{V1+3}] offset:512", f"ds_write_b128 v5, v[{V1+4}:{V1+7}] offset:528",
                  f"ds_write_b128 v5, v[{P0}:{P0+3}]", f"ds_write_b128 v5, v[{P0+4}:{P0+7}] offset:16",
                  "s_mov_b64 exec, -1"])
        L += [f"ds_read_b64_tr_b16 v[{QO}:{QO+1}], v6", f"ds_read_b64_tr_b16 v[{QO+2}:{QO+3}], v6 offset:768", f"ds_read_b64_tr_b16 v[{QO+4}:{QO+5}], v6 offset:512"]
        return L
    def epi2(rt):
        u = TMP + 4
        L = [f"v_lshlrev_b32 v{u}, 16, v{QO+2}", f"v_and_b32 v{u+1}, 0xffff0000, v{QO+2}", f"v_lshlrev_b32 v{u+2}, 16, v{QO+3}", f"v_and_b32 v{u+3}, 0xffff0000, v{QO+3}"]
        L += phi([u, u+1, u+2, u+3], TMP)
        L += [f"v_cvt_pk_bf16_f32 v{QO+2}, v{u}, v{u+1}", f"v_cvt_pk_bf16_f32 v{QO+3}, v{u+2}, v{u+3}"]
        return L
    def qst(rt):
        L = ["s_add_u32 s26, s26, 32768", "s_add_u32 s27, s27, 8192"] if rt else []
        return L + [f"buffer_store_dwordx4 v[{QO}:{QO+3}], v3, s[8:11], s26 offen {qsf}", f"buffer_store_dword v{QO+4}, v7, s[8:11], s27 offen {qsf}"]
    late = f"""v_bfe_u32 v10, v0, 2, 5
v_lshrrev_b32 v12, 1, v0
v_cmp_gt_u32 s[34:35], 19, v10
v_cmp_eq_u32 s[36:37], 22, v10
s_or_b64 s[34:35], s[34:35], s[36:37]
v_cmp_gt_u32 s[38:39], 19, v12
v_cmp_eq_u32 s[36:37], 22, v12
s_or_b64 s[38:39], s[38:39], s[36:37]
s_mul_i32 s28, s20, 2560
s_add_u32 s28, s28, {KV + (0 if first else LS)}
{WOP if first or not NP0 else 's_nop 0'}
s_lshl_b32 s54, s20, 7
s_add_u32 s54, s54, {CNT + CAB + (0 if first else LS)}
v_lshlrev_b32 v10, 12, v2
v_mov_b32 v11, 1""".split("\n")
    wo = wo_loads(range(4))[(0 if first else NP0):NP1]
    if not first and NPa1 is not None: NPa = NPa1
    K = 2 if m16 else 1
    if side and first:
        _, su, dma, su2, work, fin = side
        G[116] = G[116] + [I("s_barrier", needs=['scs'])]
        def put(L, a, b):
            for k, x in enumerate(L): G[a + k*(b - a)//len(L)] += x if isinstance(x, list) else [x]
        put(su, SW[0], SW[1]); put(dma, SW[2], SW[3]); put(su2, SW[3], SW[4]); put(work, SW[4], SW[5]); put(fin, 117, 130)
    elif first and p2 is not None:
        if m16: FP = (2*FP[0], 0, 2*FP[2], 2*FP[3])
        G[116*K] = G[116*K] + ["s_barrier"]
        f2 = kq.fchk('f2', 232, 57, 's3')
        G[FP[0]] = G[FP[0]] + kq.fsig('f2', 161, 162, 58)
        G[FP[2]] = G[FP[2]] + [f2[0]]
        for k, x in enumerate(f2[1]): G[FP[3] - 4 + k//2] = G[FP[3] - 4 + k//2] + [x]
        G[FP[3] + 1] = G[FP[3] + 1] + f2[2]
        G = [[y for x in g for y in (x if isinstance(x, list) else [x])] for g in G]
    elif first and p0:
        lf = SW[1] > 112
        G[116] = G[116] + [I("s_barrier", needs=[] if lf else ['scs'])]
        for L, a, b in ((p0[3], SD[0], SD[1]), (p0[1], SW[0], SW[1]), ([] if lf else p0[2], 117, 130)):
            for k, x in enumerate(L): G[a + k*(b - a)//len(L)] += x if isinstance(x, list) else [x]
    else: G[116*K] = G[116*K] + ["s_barrier"]
    if first and hw and hw[0] == 'st':
        for k in range(8): G[hw[1] + k*hw[2]] = G[hw[1] + k*hw[2]] + kq.off("\n".join([f"s_cmp_eq_u32 s59, {k}", f"s_cbranch_scc0 L_hw{k}"] + list(HWL) + [f"L_hw{k}:"])).split("\n")
    elif first and hw and hw[0] != 'pre':
        for k, x in zip(hw, HWL): G[k] = G[k] + [x]
    if first and ld:
        if ld[1] == 0: G[ld[0]] = G[ld[0]] + kq.late_dmas().split("\n")
        else:
            m, ool = kq.late_dmas_uni()
            G[ld[0]] = G[ld[0]] + m; f2 = f2[:3] + (f2[3] + ool,)
    tg = tw and tw[0 if first else 1]
    if isinstance(tg, int):
        for k, x in enumerate(touch(tw[2], tw[3 if first else 4])[::-1]): G[tg + k] = G[tg + k] + x
    for k in range(1, 144*K):
        if nst(f'a_g{k}'): G[k] = [nst(f'a_g{k}')] + G[k]
    if not m16: E0 = (74, 124)
    for grp in G[:20*K]: p.ext(grp)
    p.ext(interleave(G[20*K:60*K], atomize(late)))
    if first and ld:
        su = [l for l in kq.late_setup(236).split("\n")[3:] if l.strip() and not l.startswith('s_waitcnt')]
        p.ext(interleave(G[60*K:E0[0]], atomize(su)))
    else:
        for grp in G[60*K:E0[0]]: p.ext(grp)
    p.ext(interleave(G[E0[0]:E0[1]], epi1(0) + epi2(0) + qst(0)))
    e1 = epi1(1)
    if EP:
        T0 = ACC + 32; ea = phi(list(range(T0, T0 + 16)), TMP) + [f"v_cvt_pk_bf16_f32 v{P0+i}, v{T0+2*i}, v{T0+2*i+1}" for i in range(8)]
        e1 = [x for x in e1 if x not in ea]
        p.ext(interleave(G[E0[1]:288 - 4*EP + EPo], wo[:NPa]))
        p.ext(interleave(G[288 - 4*EP + EPo:], ea))
    else: p.ext(interleave(G[E0[1]:], wo[:NPa]))
    p(nst('a_epi'))
    rest = wo[NPa:]
    k1 = len(rest) * 2 // 3
    p.ext(interleave([x if isinstance(x, list) else [x] for x in e1], rest[:k1]))
    if m16: p(f"ds_write_b128 v15, v[{KVA}:{KVA+3}]\nds_write_b128 v15, v[{KVA+4}:{KVA+7}] offset:256\ns_mov_b32 exec_hi, 0\nds_write_b64 v14, v[{KVA+8}:{KVA+9}] offset:2048\nds_write_b64 v14, v[{KVA+12}:{KVA+13}] offset:2176\ns_mov_b64 exec, -1")
    else: p(f"ds_write_b128 v15, v[{KVA}:{KVA+3}]\nds_write_b128 v15, v[{KVA+4}:{KVA+7}] offset:1024\nds_write_b64 v14, v[{KVA+8}:{KVA+9}] offset:2048")
    for x in rest[k1:]: p.ext(x)
    p("s_waitcnt lgkmcnt(0)")
    p("s_barrier")
    for it in range(3):
        for w in range(4): p(f"ds_read_b32 v{16 + 4*it + w}, v13 offset:{w*2560 + it*1024}")
    p.ext(epi2(1))
    if first and p0 and SW[1] > 112: p.ext(p0[2])
    for it in range(3):
        b = 16 + 4*it
        p(f"v_add_f32 v{b}, v{b}, v{b+1}\nv_add_f32 v{b+2}, v{b+2}, v{b+3}\nv_add_f32 v{b}, v{b}, v{b+2}")
    p(f"""s_mov_b64 exec, s[34:35]
buffer_atomic_add_f32 v16, v13, s[8:11], s28 offen
buffer_atomic_add_f32 v20, v13, s[8:11], s28 offen offset:1024
s_mov_b64 exec, -1""")
    p.ext(qst(1))
    p(f"""s_cmp_eq_u32 s16, 0
s_cbranch_scc0 L_{n}_end
s_mov_b64 exec, s[38:39]
buffer_atomic_add_f32 v24, v13, s[8:11], s28 offen offset:2048
s_mov_b64 exec, -1
L_{n}_end:""")
    for k, i in enumerate(p.ins):
        if i.kind == 'vm' and i.w and i.w[0][0] == 'a' and 's50' in i.r:
            assert not any(j.kind == 'mfma' and set(j.r) & set(i.w) for j in p.ins[k:]), i.text
    p(nst('a_st'))
    if first: p("s_branch L_ab")
    return p.finish() + (f2[3] if first and p2 is not None else "")

A2 = [False]
RAB = [0, 0]
QB2, TAGL, LXD, S80 = 147456, 152576, 152832, 153600
A_MAP2 = """s_and_b32 s17, s2, 7
s_lshr_b32 s18, s2, 3
s_lshr_b32 s19, s17, 2
s_lshl_b32 s19, s19, 3
s_and_b32 s20, s18, 7
s_add_u32 s19, s19, s20
s_and_b32 s20, s17, 3
s_lshl_b32 s20, s20, 2
s_lshr_b32 s21, s18, 3
s_add_u32 s20, s20, s21
s_lshl_b32 s17, s20, 1
s_and_b32 s18, s19, 1
s_add_u32 s17, s17, s18
s_xor_b32 s18, s17, 1"""

def a_map2(m):
    if m == 0: return A_MAP2
    nb = 3 - m
    return f"""s_bfe_u32 s19, s2, {hex(((1 + m) << 16) | (2 - m))}
s_lshl_b32 s19, s19, {nb}
s_bfe_u32 s20, s2, {hex((nb << 16) | 3)}
s_add_u32 s19, s19, s20
""" + (f"s_and_b32 s20, s2, 1\ns_lshl_b32 s20, s20, 3\ns_lshr_b32 s21, s2, 5\ns_add_u32 s20, s20, s21\n" if m == 1 else "s_lshr_b32 s20, s2, 4\n") + """s_lshl_b32 s17, s20, 1
s_and_b32 s18, s19, 1
s_add_u32 s17, s17, s18
s_xor_b32 s18, s17, 1"""
def a2_part(first, p2=None, K1=12, D0=10, RT=1.25, D1=8, R1=1.0, NW=8, qsf="sc1", NP1=36, PD=1, yf='sc1', FP=(0, 0, 100, 132),
            BAR=None, E0=2, E1=None, W1=(50, 94), NPa=8, LT=(20, 44), rr=0, SG=3, LEAD=8, c32=False, **kw):
    n = "a0" if first else "a1"
    L_ = 0 if first else LS
    p = Prog()
    p(A_MAP2 if first else a_map2(AM1[0]))
    p(f"""s_lshl_b32 s21, s19, 2
s_add_u32 s21, s21, s16
s_mul_i32 s22, s21, 36864
s_add_u32 s22, s22, {YF + L_}""")
    if first: p(f"""s_lshl_b32 s25, s16, 11
s_mul_i32 s24, s17, 73728
s_mul_i32 s23, s18, 73728
s_add_u32 s60, s25, {WQF}
s_add_u32 s24, s24, s60
s_add_u32 s23, s23, s60""")
    ACC, WR, P0, V1, TMP, KVA, QO, VB2 = 16, 80, 112, 120, 128, 136, 152, 158
    KVO = (0, 11264)
    yreg = lambda kk: ('a', 4*kk) if kk < 16 else ('v', 164 + 4*(kk - 16))
    units = [(kk, h) for kk in range(K1) for h in range(2)] + [(kk, 0) for kk in range(K1, 36)] + [(kk, 1) for kk in range(K1, 36)]
    uof = {u: i for i, u in enumerate(units)}
    C1 = K1 // 4
    if BAR is None:
        BAR = [[(0, c), (1, c)] for c in range(C1)] + [[(0, c), (0, c + 1)] if c < 8 else [(0, c)] for c in range(C1, 9, 2)] + [[(1, c) for c in range(c0, min(9, c0 + SG))] for c0 in range(C1, 9, SG)]
    assert sorted(x for g in BAR for x in g) == [(h, c) for h in range(2) for c in range(9)]
    bar_at = {}
    items = []
    for g in BAR:
        u0 = min(uof[(4*c, h)] for h, c in g)
        bar_at[2*u0] = [f"w{h}{c}" for h, c in g]
        if first:
            for h, c in g:
                sr = (24, 23)[h]
                L = [f"s_add_u32 m0, s25, {h*73728 + c*8192}" if (h or c) else "s_mov_b32 m0, s25"]
                a = I(f"buffer_load_dwordx4 v3, s[8:11], s{sr} offen {HF[0]} lds", tag=f"w{h}{c}")
                b = I(f"buffer_load_dwordx4 v3, s[8:11], s{sr} offen offset:1024 {HF[0]} lds", tag=f"w{h}{c}")
                items.append((u0 - 4, 2, L + [a, b] + ([f"s_addk_i32 s{sr}, 8192"] if c < 8 else [])))
    for kk in range(36):
        R, r = yreg(kk)
        pre = ["s_addk_i32 s22, 4096"] if (kk % 4 == 0 and kk) else []
        items.append((uof[(kk, 0)], 1, pre + [f"buffer_load_dwordx4 {R}[{r}:{r+3}], v3, s[8:11], s22 offen offset:{(kk%4)*1024} {yf}"]))
    items.sort(key=lambda x: x[0])
    st = dict(ip=0, n=0)
    def issue(nmax, u=-99):
        L = []
        while st['ip'] < len(items) and (st['n'] < nmax or items[st['ip']][0] <= u + LEAD):
            L += items[st['ip']][2]; st['n'] += items[st['ip']][1]; st['ip'] += 1
        return L
    setup = f"""v_lshlrev_b32 v13, 2, v0
v_add_u32 v4, 65536, v3
v_add_u32 v{VB2}, 131072, v3
s_mul_i32 s28, s16, 1280
s_add_u32 s28, s28, {QB2 - 20*64}
v_and_b32 v5, 31, v2
v_lshlrev_b32 v5, 6, v5
v_lshrrev_b32 v9, 5, v2
v_lshl_add_u32 v5, v9, 5, v5
v_add_u32 v5, s28, v5
v_bfe_u32 v6, v2, 2, 2
v_lshl_add_u32 v6, v9, 2, v6
v_lshlrev_b32 v6, 6, v6
v_and_b32 v7, 1, v2
v_lshl_add_u32 v6, v7, 5, v6
v_bfe_u32 v7, v2, 4, 1
v_lshl_add_u32 v6, v7, 4, v6
v_bfe_u32 v7, v2, 1, 1
v_lshl_add_u32 v6, v7, 3, v6
s_add_u32 s28, s28, {20*64}
v_add_u32 v6, s28, v6
v_lshlrev_b32 v7, 2, v2
s_mul_i32 s28, s16, 2560
v_add_u32 v15, s28, v3
v_lshlrev_b32 v14, 3, v2
v_add_u32 v14, s28, v14
v_and_b32 v8, 27, v2
v_cmp_eq_u32 s[30:31], 18, v8
v_mov_b32 v8, 0x3f803f80
s_mov_b32 s32, 0xfff00000
s_mov_b32 s33, 0xfff00000
s_lshl_b32 s26, s21, 5
s_add_u32 s26, s26, s17
s_lshl_b32 s27, s26, 8
s_lshl_b32 s26, s26, 10
s_add_u32 s26, s26, {PQ16 + L_}
s_add_u32 s27, s27, {PQ4 + L_}"""
    p(setup)
    if first:
        p(kq.a0_go(True))
        p(nst('a_go'))
        p.ext(issue(D0))
        p("ds_read_b32 v161, v162\nv_readfirstlane_b32 s3, v161")
    else:
        p(f"""s_lshl_b32 s28, s19, 2
{"s_and_b32 s29, s2, 3" if rr == 0 else "s_lshr_b32 s29, s2, 6"}
s_add_u32 s28, s28, s29
s_lshl_b32 s28, s28, 8
s_add_u32 s28, s28, {CNT + LS + CDA}
v_lshlrev_b32 v10, 7, v2
s_mov_b32 s49, 0x40000
s_waitcnt vmcnt(0)
s_cmp_eq_u32 s16, 0
s_cbranch_scc1 L_da_w0""")
        L = f"""s_sub_u32 s29, s16, 1
s_lshl_b32 s56, s29, 13
s_add_u32 s56, s56, {2048*(36 - K1)}
s_mul_i32 s57, s17, 73728
s_add_u32 s57, s57, s56
s_add_u32 s57, s57, {WQF}""".split("\n")
        assert K1 == 12
        for k in range(2):
            L += [f"s_add_u32 m0, s56, {k*4096}", "s_nop 0"] + [f"buffer_load_dwordx4 v3, s[8:11], s57 offen offset:{i*1024} {HF[0]} lds" for i in range(4)] + (["s_addk_i32 s57, 4096"] if k == 0 else [])
        L += f"""s_lshl_b32 s56, s29, 14
s_add_u32 s56, s56, {2048*K1}
s_mul_i32 s57, s18, 73728
s_add_u32 s57, s57, s56
s_add_u32 s57, s57, {WQF}""".split("\n")
        for k in range(4):
            L += [f"s_add_u32 m0, s56, {73728 + k*4096}", "s_nop 0"] + [f"buffer_load_dwordx4 v3, s[8:11], s57 offen offset:{i*1024} {HF[0]} lds" for i in range(4)] + (["s_addk_i32 s57, 4096"] if k < 3 else [])
        p(kq.off("\n".join(L + ["s_branch L_da_go", "L_da_w0:"])))
        p(spin("da", 28, 10, 250, 2, 8, PD))
        p("s_barrier")
        p(nst('a_go'))
        p.ext(issue(D1))
    def wrd(f):
        kk, h = units[f // 2]; t = f % 2
        s = WR + 4*(f % NW)
        L = []
        if first and f in bar_at: L.append(I("s_barrier", needs=bar_at[f]))
        a = h*73728 + kk*2048 + t*1024
        L.append(f"ds_read_b128 v[{s}:{s+3}], v{(3, 4, VB2)[a >> 16]} offset:{a & 65535}")
        return L
    for f in range(NW - 1): p.ext(wrd(f))
    p(nst('a_first'))
    G = []
    for u, (kk, h) in enumerate(units):
        R, y = yreg(kk)
        for t in range(2):
            f = 2*u + t
            w = WR + 4*(f % NW)
            acc = ACC + 32*h + 16*t
            c = "0" if kk == 0 else f"v[{acc}:{acc+15}]"
            grp = [f"v_mfma_f32_32x32x16_bf16 v[{acc}:{acc+15}], {R}[{y}:{y+3}], v[{w}:{w+3}], {c}"]
            if f + NW - 1 < 144: grp += wrd(f + NW - 1)
            if t == 1: grp += issue((D0 + (u + 1)*RT) if first else (D1 + (u + 1)*R1), u)
            G.append(grp)
    assert st['ip'] == len(items)
    def epi1(h):
        T0 = ACC + 32*h; T1 = T0 + 16
        L = []
        for i in range(8): L.append(f"v_cvt_pk_bf16_f32 v{V1+i}, v{T1+2*i}, v{T1+2*i+1}")
        for i in range(8): L.append(f"v_cndmask_b32 v{V1+i}, v{V1+i}, v8, s[30:31]")
        ph = phi(list(range(T0, T0 + 16)), TMP)
        pk = [f"v_cvt_pk_bf16_f32 v{P0+i}, v{T0+2*i}, v{T0+2*i+1}" for i in range(8)]
        mm = [f"v_mfma_f32_32x32x16_bf16 v[{KVA}:{KVA+15}], v[{P0+4*q}:{P0+4*q+3}], v[{V1+4*q}:{V1+4*q+3}], " + ("0" if q == 0 else f"v[{KVA}:{KVA+15}]") for q in range(2)]
        L = ph[:32] + pk[:4] + L + [mm[0]] + ph[32:] + pk[4:] + [mm[1]]
        L.append(["s_mov_b64 exec, s[32:33]",
                  f"ds_write_b128 v5, v[{V1}:{V1+3}] offset:512", f"ds_write_b128 v5, v[{V1+4}:{V1+7}] offset:528",
                  f"ds_write_b128 v5, v[{P0}:{P0+3}]", f"ds_write_b128 v5, v[{P0+4}:{P0+7}] offset:16",
                  "s_mov_b64 exec, -1"])
        L += [f"ds_read_b64_tr_b16 v[{QO}:{QO+1}], v6", f"ds_read_b64_tr_b16 v[{QO+2}:{QO+3}], v6 offset:768", f"ds_read_b64_tr_b16 v[{QO+4}:{QO+5}], v6 offset:512"]
        return L
    def epi2():
        u = TMP + 4
        L = [f"v_lshlrev_b32 v{u}, 16, v{QO+2}", f"v_and_b32 v{u+1}, 0xffff0000, v{QO+2}", f"v_lshlrev_b32 v{u+2}, 16, v{QO+3}", f"v_and_b32 v{u+3}, 0xffff0000, v{QO+3}"]
        L += phi([u, u+1, u+2, u+3], TMP)
        L += [f"v_cvt_pk_bf16_f32 v{QO+2}, v{u}, v{u+1}", f"v_cvt_pk_bf16_f32 v{QO+3}, v{u+2}, v{u+3}"]
        return L
    def qst(h):
        L = ["s_xor_b32 s26, s26, 1024", "s_xor_b32 s27, s27, 256"] if h else []
        return L + [f"buffer_store_dwordx4 v[{QO}:{QO+3}], v3, s[8:11], s26 offen {qsf}", f"buffer_store_dword v{QO+4}, v7, s[8:11], s27 offen {qsf}"]
    kvw = lambda h: [I(f"ds_write_b128 v15, v[{KVA}:{KVA+3}] offset:{KVO[h]}", tag=f'kv{h}'), I(f"ds_write_b128 v15, v[{KVA+4}:{KVA+7}] offset:{KVO[h] + 1024}", tag=f'kv{h}'),
                     I(f"ds_write_b64 v14, v[{KVA+8}:{KVA+9}] offset:{KVO[h] + 2048}", tag=f'kv{h}')]
    RB = (16, 32)
    kvr = lambda h: [f"ds_read_b32 v{RB[h] + 4*it + w}, v13 offset:{KVO[h] + w*2560 + it*1024}" for it in range(3) for w in range(4)]
    def kva(h):
        L = []
        for it in range(3):
            b = RB[h] + 4*it
            L += [f"v_add_f32 v{b}, v{b}, v{b+1}", f"v_add_f32 v{b+2}, v{b+2}, v{b+3}", f"v_add_f32 v{b}, v{b}, v{b+2}"]
        return L
    def kat(h):
        b = RB[h]; sk = 28 + h
        return [["s_mov_b64 exec, s[34:35]", f"buffer_atomic_add_f32 v{b}, v13, s[8:11], s{sk} offen", f"buffer_atomic_add_f32 v{b+4}, v13, s[8:11], s{sk} offen offset:1024", "s_mov_b64 exec, -1"]], \
               [["s_cmp_eq_u32 s16, 0", f"s_cbranch_scc0 L_{n}_k{h}", "s_mov_b64 exec, s[38:39]", f"buffer_atomic_add_f32 v{b+8}, v13, s[8:11], s{sk} offen offset:2048 ; @", "s_mov_b64 exec, -1", f"L_{n}_k{h}:"]]
    late = f"""v_bfe_u32 v10, v0, 2, 5
v_lshrrev_b32 v12, 1, v0
v_cmp_gt_u32 s[34:35], 19, v10
v_cmp_eq_u32 s[36:37], 22, v10
s_or_b64 s[34:35], s[34:35], s[36:37]
v_cmp_gt_u32 s[38:39], 19, v12
v_cmp_eq_u32 s[36:37], 22, v12
s_or_b64 s[38:39], s[38:39], s[36:37]
s_mul_i32 s28, s17, 2560
s_add_u32 s28, s28, {KV + L_}
s_mul_i32 s29, s18, 2560
s_add_u32 s29, s29, {KV + L_}
s_lshr_b32 s51, s2, 6
s_mul_i32 s52, s51, 5
s_lshl_b32 s53, s51, 2
s_add_u32 s53, s53, 2
s_cmp_lt_u32 s51, 2
s_cselect_b32 s52, s52, s53
s_mul_i32 s50, s52, 36864
s_mul_i32 s53, s16, 9216
s_add_u32 s50, s50, s53
s_add_u32 s50, s50, {WOF}
s_lshl_b32 s54, s{17 if c32 else 20}, 7
s_add_u32 s54, s54, {CNT + CAB + L_}
v_lshlrev_b32 v10, 12, v2
v_mov_b32 v11, 1""".split("\n")
    wo = wo_loads(range(4))[:NP1]
    def put(L, a, b):
        for k, x in enumerate(L): G[a + k*(b - a)//len(L)] += x if isinstance(x, list) else [x]
    P3 = 2*(36 + K1)
    if first:
        f2 = kq.fchk('f2', 244, 57, 's3')
        G[FP[0]] = G[FP[0]] + kq.fsig('f2', 161, 162, 58)
        G[FP[2]] = G[FP[2]] + [f2[0]]
        for k, x in enumerate(f2[1]): G[FP[3] - 4 + k//2] = G[FP[3] - 4 + k//2] + [x]
        G[FP[3] + 1] = G[FP[3] + 1] + f2[2]
        put(wo[:NPa], FP[3] + 2, 144); rest = wo[NPa:]
    else:
        G[48] = G[48] + ["s_barrier"]
        assert 2*uof[(24, 0)] - NW >= 48
        put(wo, W1[0], W1[1]); rest = []
    G = [[y for x in g for y in (x if isinstance(x, list) else [x])] for g in G]
    for k in range(1, 144):
        if nst(f'a_g{k}'): G[k] = [nst(f'a_g{k}')] + G[k]
    k0, k1 = kat(0)
    fill = epi1(0) + kvw(0) + epi2() + qst(0) + [I("s_barrier", needs=['kv0'])] + kvr(0) + kva(0) + k0 + k1
    a = P3 + E0; b = E1 or 144
    for grp in G[:LT[0]]: p.ext(grp)
    p.ext(interleave(G[LT[0]:LT[1]], atomize(late)))
    for grp in G[LT[1]:a]: p.ext(grp)
    p.ext(interleave(G[a:b], fill))
    for grp in G[b:]: p.ext(grp)
    p(nst('a_epi'))
    e1 = epi1(1)
    kx = len(rest) * 2 // 3
    p.ext(interleave([x if isinstance(x, list) else [x] for x in e1], rest[:kx]))
    p.ext(kvw(1))
    for x in rest[kx:]: p.ext(x)
    p("s_waitcnt lgkmcnt(0)")
    p("s_barrier")
    p.ext(kvr(1)); p.ext(epi2()); p.ext(kva(1))
    k0, k1 = kat(1)
    p.ext(k0[0]); p.ext(qst(1)); p.ext(k1[0])
    for k, i in enumerate(p.ins):
        if i.op == 's_barrier':
            for t in i.needs: assert all(kk < k for kk, j in enumerate(p.ins) if j.tag == t), t
    p(nst('a_st'))
    if first: p("s_branch L_ab")
    return p.finish() + (f2[3] if first else "")

def w_mid2():
    L = f"""s_cmp_eq_u32 s63, 0
s_cbranch_scc0 L_wm_skip
s_and_b32 s52, s2, {(3, 1, 0)[AM1[0]]}
s_lshl_b32 s52, s52, {3 + AM1[0]}
s_lshr_b32 s53, s2, {6 - AM1[0]}
s_lshl_b32 s53, s53, 1
s_add_u32 s52, s52, s53
s_bfe_u32 s53, s2, 0x10003
s_add_u32 s52, s52, s53
s_xor_b32 s37, s52, 1
s_mul_i32 s52, s52, 73728
s_mul_i32 s37, s37, 73728
s_mul_i32 s53, s16, 12288
s_add_u32 s52, s52, s53
s_add_u32 s52, s52, {WQF}
s_mov_b32 m0, s53""".split("\n")
    for k in range(3):
        if k: L += [f"s_add_u32 m0, s53, {k*4096}", "s_addk_i32 s52, 4096"]
        L += ["s_nop 0"] + [f"buffer_load_dwordx4 v3, s[8:11], s52 offen offset:{i*1024} {HF[0]} lds" for i in range(4)]
    L += ["s_lshr_b32 s53, s53, 1", "s_add_u32 s37, s37, s53", f"s_add_u32 s37, s37, {WQF}"]
    for k in range(2):
        L += [f"s_add_u32 m0, s53, {73728 + k*4096}"] + (["s_addk_i32 s37, 4096"] if k else [])
        L += ["s_nop 0"] + [f"buffer_load_dwordx4 v3, s[8:11], s37 offen offset:{i*1024} {HF[0]} lds" for i in range(4 if k == 0 else 2)]
    return L

OOL = []
def ab_link(NP1=36, lp=None, NPw=0, ina=False, inb=False):
    p = Prog()
    if ina: lp = None; p("s_cmp_eq_u32 s63, 0\ns_cselect_b32 s55, s55, 0")
    if lp is not None: p(kq.LATE_KA)
    p(f"""s_and_b32 s17, s2, 7
s_lshl_b32 s17, s17, 3
s_bfe_u32 s19, s2, 0x30003
s_add_u32 s17, s17, s19
s_mov_b32 s18, s52
{chr(10).join(y for x in wo_loads(range(4))[NP1:NP1 + NPw] for y in x)}
s_waitcnt vmcnt({NPw})
s_barrier
s_cmp_eq_u32 s16, 0
s_cbranch_scc0 L_ab_ns
s_mov_b64 exec, {0xff if RAB[0] == 1 else 0xffff}
buffer_atomic_add v11, v10, s[8:11], s54 offen
s_mov_b64 exec, -1
L_ab_ns:""")
    p(nst('a_sig'))
    for x in wo_loads(range(4))[NP1 + NPw:]: p.ext(x)
    if lp is not None: p(kq.late_setup()); p('L_ld_e:' if inb else kq.late_dmas(**lp))
    return p.finish() + "  s_cmp_lt_u32 s51, 2\n  s_cbranch_scc0 L_b4\n"

def b_part(NT, cz, xsf="sc1", PFD=3, PD=1, lf='sc1', allp=False, pbar=False, x4=False, dx=False, sb=None, PFN=5, PFR=(99, 0), BL0=8, BLX=None, ldb=None, W5=None, pf3=0, LPP=0):
    p = Prog()
    KVR, NUM, TL, ACC, XR = 16, 112, 144, 152, 232
    aPQ = 0
    w5 = wo_loads(range(3, 5))[9:] if NT == 5 else []
    if W5 is not None: w5, w5l = w5[:W5[0]], w5[W5[0]:]
    for x in w5: p.ext(x)
    p(f"""s_lshl_b32 s19, s16, 3
s_mul_i32 s20, s19, 2560
s_add_u32 s20, s20, {KV}{lay('s20')}
s_lshl_b32 s21, s17, 5
s_add_u32 s21, s21, s19
s_lshl_b32 s22, s21, 8
s_lshl_b32 s21, s21, 10
s_add_u32 s21, s21, {PQ16}{lay('s21')}
s_add_u32 s22, s22, {PQ4}{lay('s22')}
v_lshlrev_b32 v4, 3, v2
v_lshlrev_b32 v5, 2, v2
v_and_b32 v6, 24, v2
v_cmp_eq_u32 vcc, 24, v6
v_mov_b32 v6, 0x40000000
v_cndmask_b32 v12, v3, v6, vcc
v_cndmask_b32 v4, v4, v6, vcc
v_add_u32 v6, 4096, v3
s_mul_i32 s25, s17, 36864
s_lshl_b32 s26, s18, 11
s_add_u32 s25, s25, s26
s_lshl_b32 s26, s16, 9
s_add_u32 s25, s25, s26{lay('s25')}
s_add_u32 s26, s25, {XF}
s_add_u32 s27, s25, {X1F}
v_and_b32 v8, 31, v2
v_lshlrev_b32 v8, 4, v8
v_lshrrev_b32 v9, 5, v2
v_lshl_add_u32 v8, v9, 3, v8
v_add_u32 v9, 4096, v8
v_add_u32 v10, 8192, v8""")
    if x4:
        p("""v_and_b32 v246, 31, v2
v_lshrrev_b32 v247, 5, v2
v_lshlrev_b32 v8, 4, v246
v_lshl_add_u32 v8, v247, 11, v8
v_add_u32 v9, 4096, v8""")
        if dx:
            p(f"""s_mul_i32 s31, s17, 36864
s_lshl_b32 s32, s18, 6
s_add_u32 s31, s31, s32
s_lshl_b32 s32, s16, 4
s_add_u32 s31, s31, s32
s_cmp_eq_u32 s63, 0
s_cselect_b32 s26, s31, s26
s_cselect_b32 s31, 1152, 16
s_cselect_b32 s32, 64, 2048
v_mul_u32_u24 v246, s31, v246
v_mul_u32_u24 v13, s32, v247
v_lshl_add_u32 v247, v247, 3, v246
v_add_u32 v246, v246, v13
s_lshl_b32 s32, s32, 1
s_add_u32 s31, s26, s32
s_add_u32 s32, s31, s32""")
    for h in range(8): p(f"v_accvgpr_write_b32 a{aPQ+6*h+5}, 0")
    for g in range(1, 4):
        p(f"""s_add_u32 s28, s16, {g}
s_and_b32 s28, s28, 3
s_mul_i32 s28, s28, {3*NT*1024}
s_add_u32 s28, s28, {(g-1)*NT*1024}
v_add_u32 v{242+g}, s28, v3""")
    p(f"s_mul_i32 s28, s16, {3*NT*1024}\nv_add_u32 v14, s28, v3")
    p(f"s_lshl_b32 s28, s17, 8\ns_add_u32 s28, s28, {ST}{lay('s28')}")
    p.ext(cz[1])
    p(f"s_lshr_b32 s67, s17, 1\ns_lshl_b32 s67, s67, 2\ns_add_u32 s67, s67, s16\ns_lshl_b32 s67, s67, 7\ns_add_u32 s67, s67, {CNT + REP['bc'][0]}{lay('s67')}")
    pf = list(cz[3])
    if not allp and not pbar and not pf3:
        for x in pf[:3]: p.ext(x)
    p(f"""s_lshl_b32 s29, s16, 10
s_bfe_u32 s30, s2, {('0x40003', '0x30000', '0x40000')[RAB[0]]}
s_lshl_b32 s30, s30, 12
s_add_u32 s29, s29, s30
s_add_u32 s29, s29, {CNT + CAB}{lay('s29')}
v_lshlrev_b32 v7, 7, v2
s_mov_b32 s49, 0x40000""")
    if allp:
        p(f"s_waitcnt vmcnt(0)\ns_cmp_eq_u32 s16, 0\ns_cbranch_scc0 L_ab{NT}_go")
        p(spin(f"ab{NT}", 29, 7, 250, 32, 8, PD)); p("s_barrier")
    elif sb is not None:
        p(f"s_cmp_eq_u32 s16, 0\ns_cbranch_scc0 L_ab{NT}_go")
        p(spin(f"ab{NT}", 29, 7, 250, 16, 16, PD) if A2[0] == 1 else spin(f"ab{NT}", 29, 7, 250, 32, 8, PD)); p("s_barrier")
    else: p(spin(f"ab{NT}", 29, 7, 250, 8, 8, PD))
    if sb is None: p.ins.append(I("s_nop 0", tag='__clr'))
    p(nst('b_go'))
    def hld(h):
        k = KVR + 12*h; q = aPQ + 6*h
        L = f"""buffer_load_dwordx4 v[{k}:{k+3}], v12, s[8:11], s20 offen {lf}
buffer_load_dwordx4 v[{k+4}:{k+7}], v12, s[8:11], s20 offen offset:1024 {lf}
buffer_load_dwordx2 v[{k+8}:{k+9}], v4, s[8:11], s20 offen offset:2048 {lf}
buffer_load_dwordx4 a[{q}:{q+3}], v{(3,6)[h//4]}, s[8:11], s21 offen offset:{(h%4)*1024} {lf}
buffer_load_dword a{q+4}, v5, s[8:11], s22 offen offset:{h*256} {lf}""".split("\n")
        L = [[x] for x in L]
        if h < 7: L[2].append("s_addk_i32 s20, 2560")
        return L
    xld = []
    if x4:
        for u in range(2): xld.append([f"buffer_load_dwordx4 v[{XR+4*u}:{XR+4*u+3}], " + (f"v246, s[12:15], s{(26, 31)[u]}" if dx else f"v{8+u}, s[8:11], s26") + f" offen {lf}"])
        if NT == 5: xld.append([f"buffer_load_dwordx2 v[{XR+8}:{XR+9}], " + ("v247, s[12:15], s32" if dx else "v10, s[8:11], s26") + f" offen {lf}"])
    else:
        for t in range(NT): xld.append([f"buffer_load_dwordx2 v[{XR+2*t}:{XR+2*t+1}], v{8 + t//2}, s[8:11], s26 offen offset:{(t%2)*2048} {lf}"])
    for h in range(BL0):
        for x in hld(h): p.ext(x)
    if BLX is None: BLX = 8 - BL0
    if BL0 == 8:
        for x in xld: p.ext(x)
    def prep(h):
        k = KVR + 12*h; q = aPQ + 6*h; n = NUM + 16*(h % 2)
        L = [f"v_cvt_pk_bf16_f32 v{k+i}, v{k+2*i}, v{k+2*i+1}" for i in range(5)]
        L.append(f"v_mov_b32 v{k+5}, 0")
        L.append(f"v_mfma_f32_32x32x16_bf16 v[{n}:{n+15}], v[{k}:{k+3}], a[{q}:{q+3}], 0")
        L.append(f"v_mfma_f32_32x32x8_bf16 v[{n}:{n+15}], v[{k+4}:{k+5}], a[{q+4}:{q+5}], v[{n}:{n+15}]")
        return L
    def post(h):
        n = NUM + 16*(h % 2); o = KVR + 12*h + 8
        L = [f"v_add_f32 v11, 0x358637bd, v{n+10}", "v_rcp_f32 v11, v11"]
        for i in range(10): L.append(f"v_mul_f32 v{n+i}, v{n+i}, v11")
        for i in range(4): L.append(f"v_cvt_pk_bf16_f32 v{o+i}, v{n+2*i}, v{n+2*i+1}")
        L.append(f"v_cvt_pk_bf16_f32 v{TL + h//2 + 4*(h%2)}, v{n+8}, v{n+9}")
        return L
    def gemm(ks):
        o = KVR + 12*ks + 8 if ks < 8 else TL
        G = []
        for t in range(NT):
            r = aWOr(ks, t); a = ACC + 16*t
            c = "0" if ks == 0 else f"v[{a}:{a+15}]"
            G.append([f"v_mfma_f32_32x32x16_bf16 v[{a}:{a+15}], a[{r}:{r+3}], v[{o}:{o+3}], {c}"])
        return G
    flat = lambda L: [y for x in L for y in (x if isinstance(x, list) else [x])]
    for st in range(11):
        ks = st - PFD
        nl = pf[3 + PFN*ks: 3 + PFN*(ks + 1)] if ks >= 0 else []
        if BL0 < 8: nl = (hld(st + BL0) if st + BL0 < 8 else []) + (xld if st == BLX else []) + nl
        if W5 is not None and st >= W5[1]: nl = nl + w5l[(st - W5[1])*W5[2]:(st - W5[1] + 1)*W5[2]]
        if pf3 and st == pf3: nl = nl + pf[:3]
        if (allp or pbar) and ks == -1: nl = pf[:3]
        if pbar and ks == -1: p('s_barrier')
        p(nst(f'b_s{st}'))
        if st == ldb:
            m_, ool_ = kq.late_dmas_uni(va=250, vd=253)
            p.ext([x.replace('L_lu', f'L_lu{NT}') for x in m_]); OOL.append(ool_.replace('L_lu', f'L_lu{NT}'))
        if st < 8: p.ext(prep(st))
        fill = post(st - 1) if 0 <= st - 1 < 8 else []
        if st == 9: fill = [f"v_permlane32_swap_b32 v{TL+i}, v{TL+4+i}" for i in range(4)]
        if nl:
            m = []; step = max(1, len(fill) // len(nl)) if fill else 1; fi = 0
            for x in nl:
                m.append(x); m += fill[fi:fi+step]; fi += step
            fill = m + fill[fi:]
        if st >= 2: p.ext(interleave(gemm(st - 2), fill))
        else: p.ext(flat(fill))
    rest = pf[3 + PFN*(10 - PFD + 1):]
    r0, r1, r2 = rest[:PFR[0]], rest[PFR[0]:PFR[0] + PFR[1]], rest[PFR[0] + PFR[1]:]
    p(nst('b_gemm'))
    p.ext(interleave([[f"ds_write_b128 v{242+g}, v[{ACC + 16*t + 4*g}:{ACC + 16*t + 4*g + 3}] offset:{t*1024}"] for t in range(NT) for g in range(1, 4)], r0))
    p("s_waitcnt lgkmcnt(0)")
    p(nst('b_w'))
    p("s_barrier")
    p(nst('b_bar'))
    RD = KVR
    for t in range(NT):
        for g in range(3):
            r = RD + 12*t + 4*g
            p(f"ds_read_b128 v[{r}:{r+3}], v14 offset:{(g*NT + t)*1024}")
    for x in r1: p.ext(x)
    p("v_mov_b32 v15, 0\nv_mov_b32 v11, 0")
    swp = lambda u: f"v_permlane32_swap_b32 v{XR+4*u}, v{XR+4*u+2}\nv_permlane32_swap_b32 v{XR+4*u+1}, v{XR+4*u+3}"
    if x4:
        for u in range(2): p(swp(u))
    for t in range(NT):
        a = ACC + 16*t; x = XR + 2*t; u = a + 4
        p(f"v_lshlrev_b32 v{u}, 16, v{x}\nv_and_b32 v{u+1}, 0xffff0000, v{x}\nv_lshlrev_b32 v{u+2}, 16, v{x+1}\nv_and_b32 v{u+3}, 0xffff0000, v{x+1}")
        for i in range(4): p(f"v_add_f32 v{a+i}, v{a+i}, v{u+i}")
    import kc16
    lpx = kq.off("\n".join(kc16.LPX).replace("L_lp_skip", f"L_lpx{NT}")) if kc16.LPX else None
    if lpx: assert not r2
    if lpx and LPP == 0: p(lpx)
    for t in range(NT):
        a = ACC + 16*t; r = RD + 12*t; x = XR + 2*t
        for i in range(4): p(f"v_add_f32 v{a+i}, v{a+i}, v{r+i}")
        for i in range(4): p(f"v_add_f32 v{r+4+i}, v{r+4+i}, v{r+8+i}")
        for i in range(4): p(f"v_add_f32 v{a+i}, v{a+i}, v{r+4+i}")
        p(f"v_cvt_pk_bf16_f32 v{x}, v{a}, v{a+1}\nv_cvt_pk_bf16_f32 v{x+1}, v{a+2}, v{a+3}")
        if not x4 or t == 4: p(f"buffer_store_dwordx2 v[{x}:{x+1}], v{8 + t//2}, s[8:11], s27 offen offset:{(t%2)*2048} {xsf}")
        elif t % 2: p(swp(t//2)); p(f"buffer_store_dwordx4 v[{x-2}:{x+1}], v{8 + t//2}, s[8:11], s27 offen {xsf}")
    p(nst('b_x1'))
    if lpx and LPP == 1: p(lpx)
    for t in range(NT):
        a = ACC + 16*t; x = XR + 2*t; u = a + 4
        p(f"v_lshlrev_b32 v{u}, 16, v{x}\nv_and_b32 v{u+1}, 0xffff0000, v{x}\nv_lshlrev_b32 v{u+2}, 16, v{x+1}\nv_and_b32 v{u+3}, 0xffff0000, v{x+1}")
        for i in range(4): p(f"v_add_f32 v15, v15, v{u+i}\nv_fmac_f32 v11, v{u+i}, v{u+i}")
    p(f"""v_permlane32_swap_b32 v15, v11
v_add_f32 v15, v15, v11
buffer_atomic_add_f32 v15, v5, s[8:11], s28 offen
v_lshlrev_b32 v4, 14, v2
v_mov_b32 v6, 1
{nst('b_st')}
s_waitcnt vmcnt(0)
s_mov_b64 exec, {(1 << REP['bc'][1]) - 1}
buffer_atomic_add v6, v4, s[8:11], s67 offen
s_mov_b64 exec, -1""")
    p(nst('b_sig'))
    for x in r2: p.ext(x)
    if NT == 5: p("s_branch L_bc_c")
    return p.finish(), ''

def w_mid():
    L = f"""s_cmp_eq_u32 s63, 0
s_cbranch_scc0 L_wm_skip
{a_head1()}
s_mul_i32 s52, s52, 73728
s_add_u32 s52, s52, {WQF}
s_mul_i32 s53, s16, 18432
s_add_u32 s52, s52, s53
s_mov_b32 m0, s53""".split("\n")
    for k in range(5):
        if k: L += [f"s_add_u32 m0, s53, {k*4096}", "s_addk_i32 s52, 4096"]
        L += ["s_nop 0"] + [f"buffer_load_dwordx4 v3, s[8:11], s52 offen offset:{i*1024} {HF[0]} lds" for i in range(4 if k < 4 else 2)]
    return L

def w_early():
    L = f"""s_cmp_eq_u32 s63, 0
s_cbranch_scc0 L_we_skip
s_and_b32 s52, s2, 3
s_lshl_b32 s52, s52, 3
s_lshr_b32 s53, s2, 5
s_add_u32 s52, s52, s53
s_mul_i32 s52, s52, 73728
s_add_u32 s52, s52, {WQF}
s_sub_u32 s53, s16, 1
s_mul_i32 s53, s53, 24576
s_add_u32 s52, s52, s53
s_mov_b32 m0, s53""".split("\n")
    for k in range(6):
        if k: L += [f"s_add_u32 m0, s53, {k*4096}", "s_addk_i32 s52, 4096"]
        L += ["s_nop 0"] + [f"buffer_load_dwordx4 v3, s[8:11], s52 offen offset:{i*1024} lds ; @" for i in range(4)]
    return L + ["L_we_skip:", "s_branch L_cd_go"]

def d_part(sf="sc1", lf="sc1", PD=1, we=True, p0=False, dx=False, wk=False, two=None, peek=False, pre=False, late=False, own=False, xl=False, three=None, xlate=False, osf=None, tcl='sc1'):
    p = Prog()
    PL, XL, BL, X, U = 32, 112, 124, 136, 160
    LX = LXD if A2[0] else 131072
    p(f"""s_lshr_b32 s20, s17, 2
s_lshl_b32 s21, s18, 1
s_add_u32 s20, s20, s21
s_and_b32 s21, s17, 3
s_mul_i32 s22, s20, 36864
s_lshl_b32 s23, s21, 7
s_add_u32 s22, s22, s23
s_add_u32 s22, s22, s63
s_lshl_b32 s24, s20, 8
s_lshl_b32 s25, s21, 5
s_add_u32 s24, s24, s25
s_add_u32 s24, s24, {ST}
s_add_u32 s24, s24, s63
s_lshl_b32 s25, s20, 5
s_lshl_b32 s26, s21, 3
s_add_u32 s25, s25, s26
s_mul_i32 s25, s25, 1152
s_lshl_b32 s26, s18, 9
s_add_u32 s26, s26, {CNT + REP['cd'][0]}
s_add_u32 s26, s26, s63
s_lshl_b32 s36, s16, 7
s_add_u32 s36, s36, s26
s_and_b32 s27, s2, {REP['cd'][1] - 1}
s_lshl_b32 s27, s27, 14
s_add_u32 s26, s26, s27
v_and_b32 v4, 7, v0
v_lshrrev_b32 v5, 3, v0
v_lshlrev_b32 v6, 9, v5
v_lshl_add_u32 v6, v4, 4, v6
v_add_u32 v7, {8192 if two else 16384}, v6
v_lshrrev_b32 v8, 2, v5
v_lshlrev_b32 v8, 9, v8
v_lshl_add_u32 v8, v4, 4, v8
v_and_b32 v9, 3, v5
v_lshl_add_u32 v8, v9, 2, v8
v_add_u32 v8, 32768, v8
v_lshlrev_b32 v9, 4, v5
v_lshlrev_b32 v10, 2, v5
v_lshlrev_b32 v11, 2, v4
s_add_u32 s27, s22, {X1F}""")
    B0, O1 = (18, 256) if two else (9, 512)
    md = two[2] if two else None
    B1 = 9
    if md:
        B1, O1 = 18, 128
        p(f"""s_cmp_eq_u32 s16, 0
s_cselect_b32 s37, 2, 3
s_cmp_eq_u32 s16, 2
s_cselect_b32 s37, -2, s37
s_lshl_b32 s37, s37, 7
v_add_u32 v18, s37, v9
s_lshl_b32 s37, s37, 5
v_add_u32 v6, s37, v6
v_add_u32 v7, 4096, v6""")
    elif two:
        p(f"""s_lshr_b32 s37, s16, 1
s_lshl_b32 s37, s37, 9
v_add_u32 v18, s37, v9
s_lshl_b32 s37, s37, 5
v_add_u32 v6, s37, v6""")
    if two:
        p(f"""s_lshl_b32 s37, s18, 9
s_add_u32 s37, s37, {CNT + two[0]}
s_add_u32 s37, s37, s63""")
        if two[1] > 1: p(f"s_and_b32 s49, s2, {two[1] - 1}\ns_lshl_b32 s49, s49, 14\ns_add_u32 s37, s37, s49")
    srd(p, 12, 40, 1152)
    p(f"""buffer_load_dword v24, v11, s[8:11], s24 offen sc1
buffer_load_dword v25, v11, s[8:11], s24 offen offset:128 sc1""")
    if not xl: p(f"""buffer_load_dwordx4 v[{XL}:{XL+3}], v6, s[8:11], s27 offen sc1
buffer_load_dwordx4 v[{XL+4}:{XL+7}], v7, s[8:11], s27 offen sc1
buffer_load_dword v{XL+8}, v8, s[8:11], s27 offen sc1""")
    p(f"""buffer_load_dwordx4 v[{BL}:{BL+3}], v{B0}, s[12:15], 0 offen
buffer_load_dwordx4 v[{BL+4}:{BL+7}], v{B1}, s[12:15], 0 offen offset:{O1}
buffer_load_dword v{BL+8}, v10, s[12:15], 0 offen offset:1024
v_lshlrev_b32 v12, 14, v2
v_mov_b32 v13, 1
s_mov_b32 s49, 0x40000""")
    ldr = lambda r: [f"buffer_load_dwordx4 v[{PL+32*r+4*j}:{PL+32*r+4*j+3}], v{6+r}, s[8:11], s{28+j} offen {lf}" if r < 2 else f"buffer_load_dword v{PL+64+j}, v8, s[8:11], s{28+j} offen {lf}" for j in range(1 if own else 0, 8)]
    NA = 14 if own else 16
    def ptrs():
        for j in range(8):
            if not own: p(f"s_add_u32 s{28+j}, s22, {PART + j*ACT}")
            elif j: p(f"s_add_u32 s{28+j}, s17, {j}\ns_and_b32 s{28+j}, s{28+j}, 7\ns_mul_i32 s{28+j}, s{28+j}, {ACT}\ns_add_u32 s{28+j}, s{28+j}, s28")
            else: p(f"s_add_u32 s28, s22, {PART}\ns_lshr_b32 s29, s17, 2\ns_mul_i32 s29, s29, 36864\ns_add_u32 s29, s29, s23\ns_add_u32 s29, s29, 73728\nv_add_u32 v20, s29, v6\nv_add_u32 v21, s29, v7\nv_add_u32 v28, s29, v8")
    OWN = [f"ds_read_b128 v[{PL}:{PL+3}], v20", f"ds_read_b32 v{PL+64}, v28", f"ds_read_b128 v[{PL+32}:{PL+35}], v21"] if own else []
    LDS_ = ldr(0) + ldr(2) + ldr(1) if two and not md else ldr(0) + ldr(1) + ldr(2)
    SIG = f"""s_mov_b64 exec, {(1 << REP['cd'][1]) - 1}
buffer_atomic_add v13, v12, s[8:11], s36 offen
s_mov_b64 exec, -1
v_lshlrev_b32 v12, 7, v2"""
    if own: assert two and late and not md and not peek
    if peek or late: ptrs()
    if xl:
        assert own and pre
        p(f"v_subrev_u32 v29, 73728, v20\nv_subrev_u32 v30, 73728, v21\nv_subrev_u32 v31, 73728, v28\nds_read_b128 v[{XL}:{XL+3}], v29\nds_read_b128 v[{XL+4}:{XL+7}], v30\nds_read_b32 v{XL+8}, v31")
    if own: p("s_waitcnt lgkmcnt(0)")
    if peek:
        p(kq.off("\n".join(["s_waitcnt vmcnt(12)", "s_mov_b64 exec, 15", "v_cmp_gt_u32 vcc, 8, v23", "s_mov_b64 exec, -1", "s_nop 3", "s_cbranch_vccnz L_ca_slow"] + LDS_[:16] +
                           ["s_waitcnt vmcnt(24)", SIG, "s_barrier", "s_branch L_ca_m", "L_ca_slow:"])))
        p("s_waitcnt vmcnt(8)\n" + SIG)
        p("s_cmp_eq_u32 s16, 0\ns_cbranch_scc0 L_ca_go")
        sp = spin("ca", 37, 12, 250, 4, 8, PD).split("\n")
        p("\n".join(sp[:-1]))
        p(kq.off("\n".join(LDS_[:16] + ["s_barrier", "s_branch L_ca_m"])))
        p(sp[-1])
        p("s_barrier")
        p.ext(LDS_[:16])
        p("L_ca_m:")
    elif three:
        p(f"s_add_u32 s39, s37, {three[0] - two[0]}\nv_lshlrev_b32 v22, 7, v2\ns_mov_b64 exec, 15\nbuffer_load_dword v23, v22, s[8:11], s39 offen sc1\ns_mov_b64 exec, -1\ns_waitcnt vmcnt(%d)\n" % (6 if xl else 9) + SIG)
    elif pre:
        p("v_lshlrev_b32 v22, 7, v2\ns_mov_b64 exec, 15\nbuffer_load_dword v23, v22, s[8:11], s37 offen sc1\ns_mov_b64 exec, -1\ns_waitcnt vmcnt(%d)\n" % (6 if xl else 9) + SIG)
    else: p("s_waitcnt vmcnt(8)\n" + SIG)
    p(nst('d_sig'))
    if p0 and tcl == 'mid':
        srd(p, 88, 6, 256)
        p('''s_xor_b32 s60, s16, 1
s_or_b32 s60, s60, s2
s_cmp_eq_u32 s60, 0
s_cbranch_scc0 L_d_nt
v_mov_b32 v251, 0
s_mov_b64 exec, 1
buffer_store_dword v251, v251, s[88:91], 0 offen sc1 ; @
s_mov_b64 exec, -1
L_d_nt:''')
    nd = [4, 4, 1]
    def precomp():
        p(f"""v_mul_f32 v24, 0x3ae38e39, v24
v_mul_f32 v25, 0x3ae38e39, v25
v_fma_f32 v25, -v24, v24, v25
v_max_f32 v25, 0, v25
v_mov_b32 v26, 0x3f800054
v_mov_b32 v27, 0x2edbe6ff
v_fma_f32 v25, v25, v26, v27
v_rsq_f32 v25, v25
v_mov_b32 v14, 0x3f80
v_mov_b32 v15, 0x3f800000
v_mul_u32_u24 v16, 1152, v4
v_add_u32 v17, v16, v10
v_add_u32 v19, v16, v{B1}
v_add_u32 v18, v16, v{B0}""")
        for r in range(3):
            for i in range(nd[r]):
                x = XL + 4*r + i; b = BL + 4*r + i; u = U + 8*r + 2*i
                p(f"v_lshlrev_b32 v{u}, 16, v{x}\nv_and_b32 v{u+1}, 0xffff0000, v{x}\nv_lshlrev_b32 v{x}, 16, v{b}\nv_and_b32 v{b}, 0xffff0000, v{b}")
                p(f"v_add_f32 v{u}, v{u}, v{x}\nv_add_f32 v{u+1}, v{u+1}, v{b}")
    if not late: precomp()
    if not peek and not late:
        for j in range(8): p(f"s_add_u32 s{28+j}, s22, {PART + j*ACT}")
    if we == 1:
        p("s_cmp_eq_u32 s16, 0\ns_cbranch_scc1 L_cd_w0")
        p.ext(w_early()); p("L_cd_w0:")
    elif wk: p("s_cmp_eq_u32 s16, 0\ns_cbranch_scc1 L_cd_w0\n" + walk('wd', 1, 3) + "\ns_branch L_cd_go\nL_cd_w0:")
    elif not two or peek: p("s_cmp_eq_u32 s16, 0\ns_cbranch_scc0 L_cd_go")
    if md == 'own':
        p("s_cmp_lt_u32 s16, 2\ns_cselect_b32 s26, s26, s37")
        p(spin("cd", 26, 12, 250, 4, 8, PD))
        p(nst('d_go'))
        p.ext(LDS_)
    elif md == 'bar':
        p("s_cmp_eq_u32 s16, 0\ns_cbranch_scc0 L_ca_go")
        p(spin("ca", 37, 12, 250, 4, 8, PD))
        p("s_barrier")
        p(nst('d_ga'))
        p("s_cmp_lt_u32 s16, 2\ns_cbranch_scc1 L_cd_w0")
        p(kq.off("\n".join(LDS_ + ["s_barrier", "s_branch L_cd_ld"])))
        p("L_cd_w0:\ns_cmp_eq_u32 s16, 0\ns_cbranch_scc0 L_cd_go")
        p(spin("cd", 26, 12, 250, 4, 8, PD))
        p("s_barrier")
        p(nst('d_go'))
        p.ext(LDS_)
        p("L_cd_ld:")
    elif three:
        n7 = NA // 2
        LDS_ = ldr(2) + ldr(0) + ldr(1)
        p("s_cmp_eq_u32 s16, 0\ns_cbranch_scc0 L_c1_go")
        p(kq.off("s_waitcnt vmcnt(1)\ns_mov_b64 exec, 15\nv_cmp_gt_u32 vcc, 8, v23\ns_nop 4\ns_cbranch_vccz L_c1_ok"))
        p(spin("c1", 39, 12, 250, 4, 8, PD))
        p("s_barrier")
        p(nst('d_g1'))
        p("s_cmp_lt_u32 s16, 2\ns_cbranch_scc1 L_c1_lo")
        p(kq.off("\n".join(ldr(0) + ldr(2) + ["s_barrier", "s_branch L_cd_w0", "L_c1_lo:"])))
        p.ext(LDS_[:n7])
        p("s_cmp_eq_u32 s16, 0\ns_cbranch_scc0 L_ca_go")
        p(spin("ca", 37, 12, 250, 4, 8, PD))
        p("s_barrier")
        p(nst('d_ga'))
        p.ext(LDS_[n7:NA])
        p("L_cd_w0:"); p.ext(OWN); precomp(); p("s_waitcnt lgkmcnt(0)" if own else ""); p("s_cmp_eq_u32 s16, 0\ns_cbranch_scc0 L_cd_go")
    elif two and not peek:
        p("s_cmp_eq_u32 s16, 0\ns_cbranch_scc0 L_ca_go")
        if pre: p(kq.off("s_waitcnt vmcnt(1)\ns_mov_b64 exec, 15\nv_cmp_gt_u32 vcc, 8, v23\ns_nop 4\ns_cbranch_vccz L_ca_ok"))
        sp = spin("ca", 37, 12, 250, 4, 8, PD).split("\n")
        p("\n".join(sp[:-1]))
        p(kq.off("\n".join(LDS_[:NA] + ["s_barrier", "s_branch L_cd_w0"])))
        p(sp[-1])
        p("s_barrier")
        p(nst('d_ga'))
        p.ext(LDS_[:NA])
        if late:
            p("L_cd_w0:"); p.ext(OWN); precomp(); p("s_waitcnt lgkmcnt(0)" if own else ""); p("s_cmp_eq_u32 s16, 0\ns_cbranch_scc0 L_cd_go")
        else: p("s_branch L_cd_go\nL_cd_w0:")
    if not md:
        p(spin("cd", 26, 12, 250, 4, 8, PD))
        p("s_barrier")
        p(nst('d_go'))
        p.ext(LDS_[NA:] if two else LDS_)
    def sums(p):
        for r in ((0, 2, 1) if two and not md else range(3)):
            src = lambda j, i: PL + 32*r + 4*j + i if r < 2 else PL + 64 + j
            for i in range(nd[r]): p(f"v_lshlrev_b32 v{X+8*r+2*i}, 16, v{src(0, i)}\nv_and_b32 v{X+8*r+2*i+1}, 0xffff0000, v{src(0, i)}")
            for j in range(1, 8):
                for i in range(nd[r]): p(f"v_dot2c_f32_bf16 v{X+8*r+2*i}, v{src(j, i)}, v14\nv_dot2c_f32_bf16 v{X+8*r+2*i+1}, v{src(j, i)}, v15")
            for i in range(2*nd[r]): p(f"v_fma_f32 v{X+8*r+i}, v{X+8*r+i}, v25, v{U+8*r+i}")
            for i in range(nd[r]): p(f"v_cvt_pk_bf16_f32 v{PL+32*r+i}, v{X+8*r+2*i}, v{X+8*r+2*i+1}")
    if we == 2:
        p.ext(w_mid2() if A2[0] else w_mid())
        n0 = len(p.ins); sums(p)
        p("s_branch L_cd_mid\nL_wm_skip:")
        q = Prog()
        q.ext(LDS_)
        sums(q); q.resolve_waits()
        for i in q.ins[len(LDS_):]: i.text += " ; @"
        p.ins += q.ins[len(LDS_):]
    else: sums(p)
    O = [PL, PL + 32, PL + 64]
    p(nst('d_use'))
    if we != 2: p("s_cmp_eq_u32 s63, 0\ns_cbranch_scc1 L_cd_mid")
    srd(p, 12, 42, ACT)
    p(f"""buffer_store_dwordx4 v[{O[0]}:{O[0]+3}], v18, s[12:15], s25 offen {sf if osf is None else osf}
buffer_store_dwordx4 v[{O[1]}:{O[1]+3}], v19, s[12:15], s25 offen offset:{O1} {sf if osf is None else osf}
buffer_store_dword v{O[2]}, v17, s[12:15], s25 offen offset:1024 {sf if osf is None else osf}""")
    if p0 and tcl != 'mid':
        srd(p, 36, 6, 256)
        p(f'''s_or_b32 s60, s2, s16
s_cmp_eq_u32 s60, 0
s_cbranch_scc0 L_d_nt
v_mov_b32 v20, 0
s_mov_b64 exec, 1
buffer_store_dword v20, v20, s[36:39], 0 offen {tcl} ; @
s_mov_b64 exec, -1
L_d_nt:''')
    if SC.sel: p("s_waitcnt vmcnt(0) ; @"); p(nst('d_end')); nst_dump(p, 'd2')
    p("s_endpgm\nL_cd_mid:")
    p(f"""s_add_u32 s27, s22, {XF + LS}
s_add_u32 s28, s22, {YF + LS}""")
    XST = f"""buffer_store_dwordx4 v[{O[0]}:{O[0]+3}], v6, s[8:11], s27 offen {sf}
buffer_store_dwordx4 v[{O[1]}:{O[1]+3}], v7, s[8:11], s27 offen {sf}
buffer_store_dword v{O[2]}, v8, s[8:11], s27 offen {sf}"""
    if not xlate: p(XST)
    XS = []
    for r in range(3):
        for i in range(nd[r]):
            p(f"v_lshlrev_b32 v{X+8*r+2*i}, 16, v{O[r]+i}\nv_and_b32 v{X+8*r+2*i+1}, 0xffff0000, v{O[r]+i}")
            XS += [X+8*r+2*i, X+8*r+2*i+1]
    p(f"v_add_f32 v24, v{XS[0]}, v{XS[1]}\nv_add_f32 v26, v{XS[2]}, v{XS[3]}\nv_mul_f32 v25, v{XS[0]}, v{XS[0]}\nv_mul_f32 v27, v{XS[1]}, v{XS[1]}")
    for k, x in enumerate(XS[4:]): p(f"v_add_f32 v{24 + 2*(k%2)}, v{24 + 2*(k%2)}, v{x}")
    for k, x in enumerate(XS[2:]): p(f"v_fmac_f32 v{25 + 2*(k%2)}, v{x}, v{x}")
    p(f"""v_add_f32 v24, v24, v26
v_add_f32 v25, v25, v27
v_permlane32_swap_b32 v24, v25
v_add_f32 v24, v24, v25
v_mov_b32 v25, v24
v_permlane16_swap_b32 v24, v25
v_add_f32 v24, v24, v25
v_add_f32 v24, v24, v24 row_ror:8
v_bfe_u32 v27, v0, 5, 1
v_lshl_add_u32 v27, v4, 1, v27
v_lshlrev_b32 v27, 4, v27
s_lshl_b32 s29, s16, 2
s_add_u32 s29, s29, {LX}
v_add_u32 v27, s29, v27
v_and_b32 v28, 24, v0
v_cmp_eq_u32 vcc, 0, v28
s_and_saveexec_b64 s[30:31], vcc
ds_write_b32 v27, v24
s_mov_b64 exec, -1
v_lshlrev_b32 v27, 5, v4
v_add_u32 v27, {LX}, v27
s_lshr_b32 s29, s18, {1 if A2[0] else 2}
s_lshl_b32 s29, s29, {3 if A2[0] else 4}
s_and_b32 s36, s18, {1 if A2[0] else 3}
s_add_u32 s29, s29, s36
s_lshl_b32 s29, s29, 7
s_add_u32 s29, s29, {CNT + LS + CDA}""")
    if not we: p(A_MAP); p(A_WS)
    p(f"""s_waitcnt lgkmcnt(0)
s_barrier
ds_read_b128 v[20:23], v27
ds_read_b128 v[28:31], v27 offset:16
v_add_f32 v20, v20, v21
v_add_f32 v22, v22, v23
v_add_f32 v28, v28, v29
v_add_f32 v30, v30, v31
v_add_f32 v20, v20, v22
v_add_f32 v28, v28, v30
v_mul_f32 v20, 0x3ae38e39, v20
v_mul_f32 v28, 0x3ae38e39, v28
v_fma_f32 v28, -v20, v20, v28
v_max_f32 v28, 0, v28
v_add_f32 v28, 0x3727c5ac, v28
v_rsq_f32 v28, v28""")
    for x in XS: p(f"v_sub_f32 v{x}, v{x}, v20")
    for x in XS: p(f"v_mul_f32 v{x}, v{x}, v28")
    for k in range(9): p(f"v_cvt_pk_bf16_f32 v{U+k}, v{XS[2*k]}, v{XS[2*k+1]}")
    p(f"""buffer_store_dwordx4 v[{U}:{U+3}], v6, s[8:11], s28 offen {sf}
buffer_store_dwordx4 v[{U+4}:{U+7}], v7, s[8:11], s28 offen {sf}
buffer_store_dword v{U+8}, v8, s[8:11], s28 offen {sf}""")
    if not we:
        for c in range(9): p.ext(a_wchunk(c))
    if xlate == 1: p(XST)
    p(f"""v_lshlrev_b32 v12, {8 if A2[0] else 9}, v2
s_waitcnt vmcnt({(3 if xlate == 1 else 0) if we else 18})
s_barrier
s_cmp_eq_u32 s16, 0
s_cbranch_scc0 L_da_ns
s_mov_b64 exec, 15
buffer_atomic_add v13, v12, s[8:11], s29 offen
s_mov_b64 exec, -1
L_da_ns:""")
    if xlate == 2: p(XST)
    p(nst('d_end')); nst_dump(p, 'd1')
    if dx: srd(p, 12, 4, WSSZ)
    p(f"s_mov_b32 s63, {LS}\ns_branch L_a1")
    return p.finish()

def late_out(**kw):
    q = Prog(); q(kq.late_st('lo', uni=False, **kw)[0])
    return kq.late_pre(run=False, split=kw.get('split', False)) + q.finish()

def main_kernel(a={}, b={}, c={}, d={}, bk=0, side=None, p0=None, hf='sc1', sfl={}, a0={}, p2=None):
    assert NEW
    BK[0] = bk
    A2[0] = kq.A2[0] = (2 if a.get('c32') else 1) if a.get('v2') else 0
    ap = a2_part if A2[0] else a_part
    b = dict(b); REP.update(b.pop('rep', {})); c = dict(c, bcrep=REP['bc'])
    a = dict(a); AM1[0] = a.pop('am1', 0); RAB[:] = a.pop('rab', (0, 0))
    HF[0] = hf if p0 is not None else ''
    if p0 is not None: b = dict(b, pbar=True); d = dict(d, p0=True); c = dict(c, wfl=hf)
    if p2 is not None: HF[0] = hf; b = dict(b, x4=True, dx=True, sb=p2.get('s', {})); d = dict(d, p0=True, dx=True); c = dict(c, wfl=hf, f3=p2.get('f', {}))
    if d.get('two'): c = dict(c, sigA=d['two'][:3]); d = dict(d, two=d['two'][:2] + (d['two'][3] if len(d['two']) > 3 else None,))
    if d.get('we') == 3: a = dict(a, wl=True)
    if c.get('pkA') is not None: d = dict(d, peek=True)
    if d.get('own'): c = dict(c, own=True)
    if d.get('three'): c = dict(c, sigA1=d['three'])
    WK = p2.get('wk', {}) if p2 is not None else {}
    if 'wd' in WK: d = dict(d, wk=True)
    import kc16
    cz = (kc16.c16 if c.pop('m16', 0) else kc.c_kernel)(fused=True, dz=True, rev=True, poll=lambda PD: spin('bc', 65, 4, 250, 4, 8, PD), **c)
    p = Prog()
    p("""s_cmp_lt_u32 s2, 256
s_cbranch_scc1 L_m_go
s_endpgm
L_m_go:
s_load_dwordx2 s[4:5], s[0:1], 80
s_load_dwordx4 s[40:43], s[0:1], 56""")
    if side is not None:
        sp = side_parts(**side); p(sp[0]); a = dict(a, side=sp); b = dict(b, allp=True)
    if p0 is not None or p2 is not None: p(kp.KARGS)
    if SC.sel: p(f"s_memrealtime s[{SC.m['t']}:{SC.m['t']+1}]")
    p(f"""v_lshrrev_b32 v1, 6, v0
v_and_b32 v2, 63, v0
v_readfirstlane_b32 s16, v1
v_lshlrev_b32 v3, 4, v2
s_mov_b32 s63, 0
s_mov_b32 s10, {WSSZ}
s_mov_b32 s11, 0x20000""")
    cp = p2.get('cp', 0) if p2 is not None else 0
    if cp:
        p(f"""s_cmp_eq_u32 s16, {p2.get('cpw', 3)}
s_cbranch_scc0 L_cp_e
s_getpc_b64 s[86:87]
L_cp0:
s_lshr_b32 s60, s2, 3
v_min_u32 v26, {cp - 1}, v2
v_lshlrev_b32 v26, 5, v26
v_add_u32 v26, s60, v26
v_lshlrev_b32 v26, 7, v26
s_mov_b32 s60, L_kend-L_cp0-4
v_min_u32 v26, s60, v26
global_load_dword v25, v26, s[86:87] ; @
L_cp_e:""")
    if p0 is None and p2 is None: p("s_waitcnt lgkmcnt(0)\ns_mov_b32 s8, s4\ns_mov_b32 s9, s5")
    NP1 = a.get('NP1', 36); NPw = a.pop('NPw', 0)
    if p2 is not None:
        a0 = kq.HEAD + kq.crit(**p2.get('c', {})) + kq.loader(**p2.get('l', {})) + "L_a0:\n" + ap(True, p2=p2.get('t', {}), **dict(a, **a0))
    else:
        a0 = a_part(True, **a) if p0 is None else (kp.HEAD + kp.variant('q', **p0) + kp.variant('o', **p0) + "L_a0w1:\n" + a_part(True, p0=('w1',) + kp.side_fill(False, **sfl) + (kp.side_dmas(False) if p0.get('late', 0) < 0 else [],), **dict(dict(SW=(6, 110)), **a, **a0))
        + kp.variant('w2', **p0) + a_part(True, p0=('w2',) + kp.side_fill(True, **sfl) + (kp.side_dmas(True) if p0.get('late', 0) < 0 else [],), **dict(dict(SW=(6, 110)), **a, **a0)))
    body = p.finish() + a0 + "L_a1:\n" + ap(False, **a) + "L_ab:\n" + ab_link(NP1, p2.get('s', {}) if p2 is not None else None, NPw, bool(a.get('ld')), b.get('ldb') is not None)
    b5 = b_part(5, cz, **b); b4 = b_part(4, cz, **b)
    body += b5[0] + b5[1] + b4[1] + "L_b4:\n" + b4[0] + "L_bc_c:\n" + (late_out(**dict(p2.get('o', {}), split='W2' in p2.get('f', {}))) if p2 is not None else '') + cz[0] + d_part(**d) + (cz[4] + "  s_endpgm\n" + "".join(OOL) + ("  s_endpgm\n" if OOL else "") + "L_kend:\n" if p2 is not None else '')
    if WK:
        R = dict(wd=dict(regions=[('L_cd_go', 'L_wm_skip'), ('L_cd_mid', 'L_da_ns'), ('L_a1', 'L_da_poll')], waves=3))
        body = add_pads(body, {n: dict(R[n], step=st) for n, st in WK.items()})
    if p0 is not None or p2 is not None:
        return kernel("interleave_layers__linear_attn_block__mixer_channel_mlp__prompt_kernel", body, vgpr=256, agpr=256), "; @launch grid=(256,1,1) block=(256,1,1) lds=163840\n"
    return kernel("main_kernel", body, vgpr=256, agpr=256), "; @launch kernel=main_kernel grid=(256,1,1) block=(256,1,1) lds=163840\n"
```

```python
from asmlib import *
from layout import *
from k0 import srd

PFL = 0x9800000
FL1 = PFL + 0x4000
LX  = 81920
LC  = LX + 256
CSL = LX + 512
STG = 90112
WB  = WSN*1024
VN  = 160
A2  = [False]
import os
PX  = os.environ.get('PX', '')
TAGL, S80 = 152576, 153600
VS, VT, VO, VOT, VB, C0, C1, VAG, VCS, VONE = range(170, 180)
E   = 184

KARGS = """s_load_dwordx8 s[44:51], s[0:1], 0
s_load_dwordx4 s[52:55], s[0:1], 32
s_load_dwordx2 s[56:57], s[0:1], 48
s_load_dwordx2 s[6:7], s[0:1], 72"""

def off(L):
    return "\n".join(l + " ; @" if l.strip() and not l.strip().endswith(':') else l for l in L.split("\n"))

def wo_idx(i):
    return f"""s_mul_i32 s60, s{i}, 1821
s_lshr_b32 s60, s60, 16
s_mul_i32 s61, s60, 36
s_sub_u32 s61, s{i}, s61
s_mul_i32 s64, s61, 7282
s_lshr_b32 s64, s64, 16
s_mul_i32 s65, s64, 9
s_sub_u32 s65, s61, s65"""

def dest_w1(T, vag):
    return f"""s_mul_i32 s101, s100, 9
s_lshr_b32 s62, s59, 1
s_and_b32 s87, s59, 1
s_lshl_b32 s87, s87, 1
s_lshl_b32 s88, s58, 2
s_add_u32 s87, s87, s88
s_mul_i32 s87, s87, {WB}
s_add_u32 s87, s87, {WSTR}
s_add_u32 s88, s62, 91
s_add_u32 s89, s62, 90
s_add_u32 s96, s62, 163
s_cmp_lt_u32 s59, 4
s_cselect_b32 s60, 5, 4
s_cselect_b32 s61, 3, 2
s_cselect_b32 s62, s62, s88
s_cselect_b32 s96, s89, s96
s_lshl_b32 s61, s61, 10
s_sub_u32 s99, 0, s61
s_cmp_eq_u32 s59, 8
s_cselect_b32 s60, 5, s60
s_cselect_b32 s86, 0, s61
s_cselect_b32 s61, {WB}, s61
s_cselect_b32 s99, s61, s99
s_cselect_b32 s62, 2, s62
s_cselect_b32 s96, 92, s96
s_cselect_b32 s97, {WB}, 0
s_add_u32 s98, s97, {WB}
v_lshrrev_b32 v{T}, 5, v2
v_mul_u32_u24 v{T}, s98, v{T}
v_and_b32 v{vag}, 31, v2
v_lshl_add_u32 v{vag}, v{vag}, 4, v{T}
s_add_u32 s86, s86, s98
s_lshl_b32 s60, s60, 10
s_lshl_b32 s96, s96, 10
s_add_u32 s96, s96, s87
s_lshr_b32 s88, s100, 1
s_lshl_b32 s88, s88, 9
s_add_u32 s96, s96, s88
s_and_b32 s88, s100, 1
s_lshl_b32 s88, s88, 3
s_add_u32 s96, s96, s88
s_add_u32 s97, s97, s96
s_lshl_b32 s62, s62, 10
s_add_u32 s87, s87, s62
s_lshr_b32 s62, s101, 1
s_mul_i32 s62, s62, s60
s_add_u32 s87, s87, s62
s_add_u32 s86, s86, s87
s_and_b32 s101, s101, 1
s_mul_i32 s62, s101, s61
s_add_u32 s87, s87, s62
s_mul_i32 s62, s101, s99
s_add_u32 s86, s86, s62
s_sub_u32 s62, s60, s61
s_sub_u32 s60, s60, s99
s_cmp_eq_u32 s101, 0
s_cselect_b32 s88, s61, s62
s_cselect_b32 s89, s62, s61
s_cselect_b32 s90, s99, s60
s_cselect_b32 s91, s60, s99
s_cmp_lt_u32 s100, 2
s_cselect_b32 s93, 0xffff, 0"""

def tr_addr(T, vt, base, sh):
    return f"""v_and_b32 v{T}, 3, v2
v_bfe_u32 v{T+1}, v2, 4, 1
v_lshl_add_u32 v{T+1}, v{T+1}, 2, v{T}
v_bfe_u32 v{T+2}, v2, 2, 2
v_lshlrev_b32 v{T+2}, 6, v{T+2}
v_lshrrev_b32 v{T}, 5, v2
v_lshl_add_u32 v{T+2}, v{T}, {sh}, v{T+2}
v_lshl_add_u32 v{vt}, v{T+1}, 3, v{T+2}
v_add_u32 v{vt}, {base}, v{vt}"""

def fin_val(c0, c1, f, vb):
    return f"""v_permlane32_swap_b32 v{c0}, v{c1}
v_add_f32 v{c0}, v{c0}, v{c1}
v_cvt_pk_bf16_f32 v{f}, v{c0}, v{c0}
v_and_b32 v{c1}, 0xffff0000, v{f}
v_sub_f32 v{c1}, v{c0}, v{c1}
v_cvt_pk_bf16_f32 v{f+1}, v{c1}, 0
v_and_b32 v{vb}, s93, v{vb}
v_lshl_or_b32 v{f+1}, v{vb}, 16, v{f+1}"""

SRDS = lambda w: f"""s_mov_b32 s44, s54
s_mov_b32 s45, s55
s_mov_b32 s46, {4608*2}
s_mov_b32 s47, 0x20000
s_mov_b32 s64, s{w}
s_mov_b32 s65, s{w+1}
s_mov_b32 s66, {576*4608*2}
s_mov_b32 s67, 0x20000"""

def w2_idx(w):
    return f"""s_lshr_b32 s60, s2, 3
s_sub_u32 s60, s60, 18
s_lshl_b32 s60, s60, 2
s_add_u32 s60, s60, {w}
s_min_u32 s60, s60, 53
s_mul_i32 s88, s60, 7282
s_lshr_b32 s88, s88, 16
s_mul_i32 s61, s88, 9
s_sub_u32 s86, s60, s61"""

def lspin(tag, va, cmp, val, out, vd=20, o=0):
    return "s_mov_b32 s49, 0x400000\n" + off(f"""L_{tag}:
ds_read_b32 v{vd}, v{va} offset:{o}
s_waitcnt lgkmcnt(0)
v_readfirstlane_b32 s60, v{vd}
s_sub_u32 s49, s49, 1
s_cmp_eq_u32 s49, 0
s_cbranch_scc1 {out}
s_cmp_{cmp}_u32 s60, {val}
s_cbranch_scc1 L_{tag}""")

def crit(sf="sc1", lf="", cf="", wql=False, XX=(), tgf="sc1", t3=False, w0=0):
    p = Prog()
    O, X, U, D, T = 32, 44, 68, 80, 20
    vx, vy, vq, vq2, va, vb, vw, vf = 4, 5, 6, 7, 8, 9, 10, 11
    p(f"""L_pc:
v_and_b32 v12, 7, v2
v_lshrrev_b32 v13, 3, v2
v_mul_u32_u24 v{vx}, 1152, v12
v_lshl_add_u32 v{vx}, v13, 4, v{vx}
s_mul_i32 s59, s2, 9216
s_mul_i32 s60, s16, 384
s_add_u32 s59, s59, s60
s_lshr_b32 s17, s2, 3
s_and_b32 s18, s2, 7
s_mul_i32 s33, s18, 3
s_add_u32 s33, s33, s16
s_mul_i32 s18, s33, 3
s_mul_i32 s33, s33, {24*3456}
s_mul_i32 s60, s17, 36
s_add_u32 s33, s33, s60
s_mul_i32 s19, s16, 5120
v_and_b32 v{T}, 3, v2
v_lshrrev_b32 v{T+1}, 2, v2
v_lshrrev_b32 v{T+2}, 5, v2
v_mul_u32_u24 v{vq}, 3456, v{T+1}
v_lshl_add_u32 v{vq}, v{T}, 4, v{vq}
v_mul_u32_u24 v{vq2}, {8*3456 - 1152}, v{T+2}
v_sub_u32 v{vq2}, v{vq}, v{vq2}
v_mov_b32 v{T+3}, 0x40000000
v_cmp_eq_u32 vcc, 3, v{T}
v_cndmask_b32 v{vq}, v{vq}, v{T+3}, vcc
v_cndmask_b32 v{vq2}, v{vq2}, v{T+3}, vcc""")
    p(nst('p_0'))
    p("s_waitcnt lgkmcnt(0)\ns_mov_b32 s8, s4\ns_mov_b32 s9, s5")
    p(nst('p_ka'))
    srd(p, 12, 44, ACT); srd(p, 20, 46, 576*1728*2)
    def xl():
        for i in range(3): p(f"buffer_load_dwordx4 v[{O+4*i}:{O+4*i+3}], v{vx}, s[12:15], s59 offen offset:{i*128} {lf}")
    if 'al' in XX: p("s_and_b32 s33, s33, -16")
    if 'al128' in XX: p("s_and_b32 s33, s33, -128")
    if 'xco' in XX: p(f"v_mul_u32_u24 v{vx}, 1152, v13\nv_lshl_add_u32 v{vx}, v12, 4, v{vx}")
    if 'wqf' not in XX: xl()
    p("s_mov_b32 m0, s19")
    for u in range(3):
        p(f"buffer_load_dwordx4 v{vq}, s[20:23], s33 offen offset:{u*1024} {cf} lds", tag='q0')
        p(f"s_add_u32 s33, s33, {128 if u < 2 else 16*3456 - 256 - 3072}")
    p(f"buffer_load_dwordx4 v{vq2}, s[20:23], s33 offen offset:3072 {cf} lds", tag='q1')
    p(f"s_add_u32 m0, s19, 4096\ns_add_u32 s33, s33, {2304 + 3072}\ns_mov_b32 exec_hi, 0")
    p(f"buffer_load_dwordx4 v{vq2}, s[20:23], s33 offen {cf} lds", tag='q1')
    if 'wqf' in XX: p("s_mov_b64 exec, -1"); xl()
    p("s_mov_b64 exec, -1\ns_barrier")
    if not t3: srd(p, 36, 6, 256)
    if not t3 and not w0 & 4: p(f"""s_or_b32 s60, s2, s16
s_cmp_eq_u32 s60, 0
s_cbranch_scc0 L_pc_nt
s_memrealtime s[60:61]
v_lshlrev_b32 v{T+3}, 7, v2
s_waitcnt lgkmcnt(0)
s_or_b32 s60, s60, 1
v_mov_b32 v{T+4}, s60
s_mov_b64 exec, {3 if w0 & 2 else 1}
buffer_store_dword v{T+4}, v{T+3}, s[36:39], 0 offen sc1 ; @
s_mov_b64 exec, -1
L_pc_nt:""")
    p(nst('p_q'))
    p(f"""v_lshlrev_b32 v{vy}, 9, v13
v_lshl_add_u32 v{vy}, v12, 4, v{vy}
s_lshr_b32 s58, s2, 2
s_mul_i32 s58, s58, 36864
s_and_b32 s59, s2, 3
s_lshl_b32 s59, s59, 7
s_add_u32 s58, s58, s59
s_mul_i32 s59, s16, 12288
s_add_u32 s24, s58, s59
s_add_u32 s24, s24, {YF}
s_add_u32 s25, s24, 4096
s_add_u32 s26, s24, 8192
s_mul_i32 s27, s17, 73728
s_add_u32 s27, s27, {WQF}""")
    for k in range(3):
        p(f"""s_add_u32 s60, s18, {k}
s_lshr_b32 s61, s60, 1
s_lshl_b32 s61, s61, 11
s_and_b32 s60, s60, 1
s_lshl_b32 s60, s60, 9
s_add_u32 s61, s61, s60
s_add_u32 s{28+k}, s27, s61""")
    p(f"""s_lshl_b32 s32, s2, 4
s_add_u32 s32, s32, {FL1}
v_and_b32 v{vw}, 31, v2
v_lshlrev_b32 v{vw}, 4, v{vw}
v_lshl_add_u32 v{vw}, v{T+2}, 10, v{vw}
v_bfe_u32 v{T+3}, v2, 4, 1
v_lshl_add_u32 v{T+3}, v{T+3}, 2, v{T}
v_lshlrev_b32 v{T+4}, 3, v{T+3}
v_add_u32 v{va}, 1024, v{T+4}
v_subrev_u32 v{T+5}, 40, v{T+4}
v_cmp_gt_u32 vcc, 5, v{T+3}
v_cndmask_b32 v{va}, v{T+5}, v{va}, vcc
v_mov_b32 v{T+5}, 32
v_cmp_eq_u32 vcc, 7, v{T+3}
v_cndmask_b32 v{va}, v{va}, v{T+5}, vcc
v_add_u32 v{vb}, 2048, v{T+4}
v_subrev_u32 v{T+5}, 32, v{T+4}
v_cmp_gt_u32 vcc, 6, v{T+3}
v_cndmask_b32 v{vb}, v{T+5}, v{vb}, vcc
v_cmp_lt_u32 vcc, 31, v2
v_cndmask_b32 v{va}, v{va}, v{vb}, vcc
v_lshrrev_b32 v{vb}, 10, v{va}
v_lshlrev_b32 v{vb}, 9, v{vb}
v_sub_u32 v{vb}, v{va}, v{vb}
v_and_b32 v{T+1}, 3, v{T+1}
v_lshlrev_b32 v{T+1}, 6, v{T+1}
v_add_u32 v{T+1}, s19, v{T+1}
v_add_u32 v{va}, v{va}, v{T+1}
v_add_u32 v{vb}, v{vb}, v{T+1}
v_bfe_u32 v14, v2, 5, 1
v_lshl_add_u32 v14, v12, 1, v14
v_lshlrev_b32 v14, 4, v14
s_lshl_b32 s60, s16, 2
s_add_u32 s60, s60, {LX}
v_add_u32 v14, s60, v14
v_lshlrev_b32 v15, 5, v12
v_add_u32 v15, {LX}, v15
v_and_b32 v16, 24, v2
v_cmp_eq_u32 s[34:35], 0, v16
v_mov_b32 v17, 0
v_mov_b32 v18, {LC}
v_mov_b32 v19, 1
s_mov_b32 s49, 0x40000""")
    p(nst('p_iss'))
    XS = list(range(X, X + 24))
    for i in range(12): p(f"v_lshlrev_b32 v{X+2*i}, 16, v{O+i}\nv_and_b32 v{X+2*i+1}, 0xffff0000, v{O+i}")
    p(nst('p_x'))
    ARR = ["s_mov_b64 exec, 1", "ds_add_u32 v18, v19 offset:20", "s_mov_b64 exec, -1"]
    p.ext(ARR)
    p(f"v_add_f32 v24, v{XS[0]}, v{XS[1]}\nv_add_f32 v26, v{XS[2]}, v{XS[3]}\nv_mul_f32 v25, v{XS[0]}, v{XS[0]}\nv_mul_f32 v27, v{XS[1]}, v{XS[1]}")
    for k, x in enumerate(XS[4:]): p(f"v_add_f32 v{24 + 2*(k%2)}, v{24 + 2*(k%2)}, v{x}")
    for k, x in enumerate(XS[2:]): p(f"v_fmac_f32 v{25 + 2*(k%2)}, v{x}, v{x}")
    p(f"""v_add_f32 v24, v24, v26
v_add_f32 v25, v25, v27
v_permlane32_swap_b32 v24, v25
v_add_f32 v24, v24, v25
v_mov_b32 v25, v24
v_permlane16_swap_b32 v24, v25
v_add_f32 v24, v24, v25
v_add_f32 v24, v24, v24 row_ror:8
s_mov_b64 exec, s[34:35]
ds_write_b32 v14, v24
s_mov_b64 exec, -1""")
    p(nst('p_s1'))
    def wq():
        for k in range(3):
            for h in range(2):
                p(f"ds_read_b64_tr_b16 v[{D+4*k+2*h}:{D+4*k+2*h+1}], v{va if k < 2 else vb} offset:{(k*512 if k < 2 else 3072) + h*256}", needs=['q0' if k < 2 else 'q1'])
        if w0 & 4:
            p(off(f"s_cmp_eq_u32 s16, 0\ns_cselect_b32 s60, 17, 1\nv_mov_b32 v16, s60\ns_cbranch_scc0 L_pc_e1\nbuffer_load_dword v{VN}, v17, s[36:39], 0 offen sc1\nL_pc_e1:"))
            p.ext([x.replace('v19', 'v16') for x in ARR])
        else: p.ext(ARR)
        for k in range(3): p(f"buffer_store_dwordx4 v[{D+4*k}:{D+4*k+3}], v{vw}, s[8:11], s{28+k} offen {sf}")
    if not wql: wq()
    p(nst('p_wq'))
    p(off(f"""L_pc_sw:
ds_read_b128 v[20:23], v15
ds_read_b128 v[28:31], v15 offset:16
s_waitcnt lgkmcnt(0)
v_max3_u32 v24, v20, v21, v22
v_max3_u32 v25, v28, v29, v30
v_max_u32 v24, v24, v25
v_cmp_eq_u32 vcc, -1, v24
s_sub_u32 s49, s49, 1
s_cmp_eq_u32 s49, 0
s_cbranch_scc1 L_pc_sk
s_nop 2
s_cbranch_vccnz L_pc_sw
L_pc_sk:"""))
    p(nst('p_s2'))
    p("""v_add_f32 v20, v20, v21
v_add_f32 v28, v28, v29
v_add_f32 v20, v20, v22
v_add_f32 v28, v28, v30
v_mul_f32 v20, 0x3ae38e39, v20
v_mul_f32 v28, 0x3ae38e39, v28
v_fma_f32 v28, -v20, v20, v28
v_max_f32 v28, 0, v28
v_add_f32 v28, 0x3727c5ac, v28
v_rsq_f32 v28, v28""")
    for i in range(3):
        xs = XS[8*i:8*i+8]
        for x in xs: p(f"v_sub_f32 v{x}, v{x}, v20")
        for x in xs: p(f"v_mul_f32 v{x}, v{x}, v28")
        for k in range(4): p(f"v_cvt_pk_bf16_f32 v{U+4*i+k}, v{xs[2*k]}, v{xs[2*k+1]}")
        p(f"buffer_store_dwordx4 v[{U+4*i}:{U+4*i+3}], v{vy}, s[8:11], s{24+i} offen {sf}")
    if wql: wq()
    if w0:
        p(f"s_bfe_u32 s58, s2, 0x10003\ns_lshl_b32 s58, s58, 7" if w0 & 2 else "s_mov_b32 s58, 0")
        LDT = f"buffer_load_dword v{VN}, v17, s[36:39], s58 offen sc1"
        p(nst('p_st'))
        p(off(f"""s_mov_b32 s49, 0x40000
{"s_cmp_eq_u32 s16, 0" if w0 & 1 else "s_cmp_eq_u32 s16, s16"}
s_cbranch_scc0 L_pc_tk
{"s_branch L_pc_t1" if w0 & 4 else ""}
L_pc_tg:
{LDT}
L_pc_t1:
s_waitcnt vmcnt(0)
v_readfirstlane_b32 s61, v{VN}
s_sub_u32 s49, s49, 1
s_cmp_eq_u32 s49, 0
s_cbranch_scc1 L_pc_tw
s_cmp_eq_u32 s61, 0
s_cbranch_scc1 L_pc_tg
L_pc_tw:
ds_write_b32 v18, v{VN} offset:16
L_pc_tk:"""))
        p(f"""s_waitcnt vmcnt(0)
s_mov_b64 exec, 1
ds_add_rtn_u32 v20, v18, v19
ds_read_b32 v21, v18 offset:16
s_waitcnt lgkmcnt(0)
v_readfirstlane_b32 s60, v20
s_cmp_eq_u32 s60, 2
s_cbranch_scc0 L_pc_ns
buffer_store_dword v21, v17, s[8:11], s32 offen sc1 ; @
L_pc_ns:
s_mov_b64 exec, -1""")
        p(nst('p_sig'))
        p("s_branch L_a0")
        return p.finish()
    if not t3: p(f"buffer_load_dword v{VN}, v17, s[36:39], 0 offen {tgf}")
    p(nst('p_st'))
    if t3: p(off(f"""s_mov_b32 s49, 0x1000000
L_pc_tg:
ds_read_b32 v{VN}, v18 offset:16
s_waitcnt lgkmcnt(0)
v_readfirstlane_b32 s61, v{VN}
s_sub_u32 s49, s49, 1
s_cmp_eq_u32 s49, 0
s_cbranch_scc1 L_pc_tk
s_cmp_eq_u32 s61, 0
s_cbranch_scc1 L_pc_tg
L_pc_tk:"""))
    p("s_mov_b32 s49, 0x40000\ns_waitcnt vmcnt(0)")
    if not t3: p(off(f"""L_pc_tg:
v_readfirstlane_b32 s61, v{VN}
s_sub_u32 s49, s49, 1
s_cmp_eq_u32 s49, 0
s_cbranch_scc1 L_pc_tk
s_cmp_eq_u32 s61, 0
s_cbranch_scc0 L_pc_tk
buffer_load_dword v{VN}, v17, s[36:39], 0 offen sc1
s_waitcnt vmcnt(0)
s_branch L_pc_tg
L_pc_tk:"""))
    p(f"""s_mov_b64 exec, 1
ds_add_rtn_u32 v20, v18, v19
s_waitcnt lgkmcnt(0)
v_readfirstlane_b32 s60, v20
s_cmp_eq_u32 s60, 2
s_cbranch_scc0 L_pc_ns
buffer_store_dword v{VN}, v17, s[8:11], s32 offen sc1 ; @
L_pc_ns:
s_mov_b64 exec, -1""")
    p(nst('p_sig'))
    p("s_branch L_a0")
    return p.finish()

NE, NO, NB = 160, 241, 4
def lane_off(T):
    return f"""v_and_b32 v{T}, 3, v2
v_bfe_u32 v{T+1}, v2, 2, 3
v_lshrrev_b32 v{T+2}, 5, v2
v_lshlrev_b32 v{T+2}, 6, v{T+2}
v_lshl_add_u32 v{T+2}, v{T}, 4, v{T+2}"""

def loader(sf="sc1", slf="nt", cf="", G1=0, G3=0, LA=6, XX=(), cp=0, tl=(), t3=0, tw=None):
    T = 20
    p = Prog()
    p(f"""L_pl:
s_lshl_b32 s58, s2, 10
s_add_u32 s58, s58, {ZR}
s_add_u32 s59, s58, {LS}
v_mov_b32 v28, 0
v_mov_b32 v29, 0
v_mov_b32 v30, 0
v_mov_b32 v31, 0
{lane_off(T)}
v_mov_b32 v18, {LC}
s_waitcnt lgkmcnt(0)
s_mov_b32 s8, s4
s_mov_b32 s9, s5""")
    if t3 or tw is not None:
        srd(p, 36, 6, 256)
        p(f"""s_cmp_eq_u32 s2, {tw or 0}
s_cbranch_scc0 L_pl_nt
s_memrealtime s[60:61]
s_waitcnt lgkmcnt(0)
s_or_b32 s60, s60, 1
v_mov_b32 v27, s60
s_mov_b64 exec, 1
buffer_store_dword v27, v28, s[36:39], 0 offen sc1 ; @
s_mov_b64 exec, -1
L_pl_nt:""")
    srd(p, 12, 44, ACT); srd(p, 24, 48, 576*576*2)
    p(SRDS(52))
    p(f"""buffer_store_dwordx4 v[28:31], v3, s[8:11], s58 offen {sf}
buffer_store_dwordx4 v[28:31], v3, s[8:11], s59 offen {sf}
s_barrier""")
    if cp:
        p(f"""s_getpc_b64 s[86:87]
L_cp:
s_lshr_b32 s60, s2, 3
s_mul_i32 s60, s60, {cp}
v_min_u32 v26, {cp - 1}, v2
v_add_u32 v26, s60, v26
v_lshlrev_b32 v26, 7, v26
s_mov_b32 s60, L_kend-L_cp-4
v_min_u32 v26, s60, v26
global_load_dword v25, v26, s[86:87]""")
    if t3 == 2: p(lspin('pl_g0', 18, 'lt', 1, 'L_pl_g0e', vd=27, o=20) + "\nL_pl_g0e:")
    if t3: p(off(f"""s_mov_b32 s49, 0x40000
L_pl_tg:
buffer_load_dword v{VN}, v28, s[36:39], 0 offen sc1
s_waitcnt vmcnt(0)
v_readfirstlane_b32 s61, v{VN}
s_sub_u32 s49, s49, 1
s_cmp_eq_u32 s49, 0
s_cbranch_scc1 L_pl_tk
s_cmp_eq_u32 s61, 0
s_cbranch_scc1 L_pl_tg
L_pl_tk:
ds_write_b32 v18, v{VN} offset:16"""))
    p(f"""s_cmp_lt_u32 s2, {NO}
s_cbranch_scc0 L_plx""")
    if G1: p(lspin('pl_g1', 18, 'lt', G1, 'L_pl_g1e', vd=27, o=20) + "\nL_pl_g1e:")
    p(f"s_cmp_lt_u32 s2, {NE}\ns_cbranch_scc0 L_plo")
    out = p.finish()
    p = Prog()
    p(f"""s_and_b32 s58, s2, 7
s_lshr_b32 s59, s2, 5
s_bfe_u32 s100, s2, 0x20003
s_cmp_lt_u32 s59, 4
s_cselect_b32 s59, s59, 8
s_cselect_b32 s62, {4 if PX else 0}, 0
s_cmp_{PX or 'lt'}_u32 s58, 4
s_cselect_b32 s62, s62, 0
s_xor_b32 s62, s62, s59
s_mul_i32 s61, s58, 9
s_add_u32 s61, s61, s62
s_lshl_b32 s61, s61, 7
s_mul_i32 s68, s100, {9*16*9216}
s_add_u32 s68, s68, s61
v_mul_u32_u24 v{VS}, 9216, v{T+1}
v_add_u32 v{VS}, v{VS}, v{T+2}
v_lshlrev_b32 v{VB}, 1, v2""")
    for i in range(18):
        if i % 4 == 0: p(f"s_mov_b32 m0, {STG + (i//4)*4096}")
        p(f"buffer_load_dwordx4 v{VS}, s[64:67], s68 offen offset:{(i%4)*1024} {slf} lds", tag=f"e{i//2}")
        if i < 17: p(f"s_add_u32 s68, s68, {8*9216 - 1024 if i % 4 < 3 else 8*9216 + 3072}")
    p(f"buffer_load_ushort v{VB}, v{VB}, s[44:47], s61 offen")
    if 'nold' in XX: p.ins = [i for i in p.ins if not i.isdma]
    p(nst('p_sd'))
    p(dest_w1(T, VAG)); p(tr_addr(T, VT, STG, 10))
    p(f"v_mov_b32 v{C0}, 0\nv_mov_b32 v{C1}, 0\nv_mov_b32 v{VONE}, 0x3f803f80")
    if G3: p(lspin('pl_g3', 18, 'lt', 3, 'L_pl_g3e', vd=27) + "\nL_pl_g3e:")
    rd, st = [], []
    for b in range(9):
        for t in range(2):
            d = E + 4*((2*b + t) % 12)
            rd.append([I(f"ds_read_b64_tr_b16 v[{d+2*h}:{d+2*h+1}], v{VT} offset:{b*2048 + t*512 + h*256}", needs=[f"e{b}"]) for h in range(2)])
            sr = (87, 86)[t]
            st.append([f"buffer_store_dwordx4 v[{d}:{d+3}], v3, s[8:11], s{sr} offen {sf}"] + ([f"s_add_u32 s{sr}, s{sr}, s{88 + 2*t + b % 2}"] if b < 8 else []) +
                      [f"v_dot2c_f32_bf16 v{(C0, C1)[t]}, v{VONE}, v{d+q}" for q in range(4)])
    for x in rd[:LA]: p.ext(x)
    for i, x in enumerate(st):
        p.ext(x)
        if i + LA < len(rd): p.ext(rd[i + LA])
    p(fin_val(C0, C1, T, VB))
    p(f"""buffer_store_dwordx2 v[{T}:{T+1}], v{VAG}, s[8:11], s96 offen {sf}""")
    p(nst('p_ld'))
    p(f"""s_cmp_eq_u32 s96, s97
s_cbranch_scc1 L_a0
buffer_store_dwordx2 v[{T}:{T+1}], v{VAG}, s[8:11], s97 offen {sf}
s_branch L_a0""")
    if 'nost' in XX: p.ins = [i for i in p.ins if not i.op.startswith('buffer_store')]
    out += p.finish()
    p = Prog()
    p("L_plo:")
    WBK, WD = 28, 32
    for k in range(NB):
        p(f"""s_mul_i32 s62, s2, {NB}
s_sub_u32 s62, s62, {NB*NE - k}
{wo_idx(62)}
s_mul_i32 s68, s{WBK+k}, 144
s_mul_i32 s89, s69, 18
s_cmp_lt_u32 s69, 8
s_cselect_b32 s89, s89, 16
s_cselect_b32 s90, 4, 18
s_cselect_b32 s91, 2, 1
s_cselect_b32 s93, 8, 36
s_cselect_b32 s96, 3, 1
s_mul_i32 s90, s90, 1152
s_sub_u32 s90, s90, 1024
s_mul_i32 s93, s93, 1152
s_add_u32 s68, s68, s89
s_mul_i32 s68, s68, 1152
s_lshl_b32 s62, s60, 7
s_add_u32 s68, s68, s62
v_lshrrev_b32 v{T+4}, s91, v{T+1}
v_mul_u32_u24 v{VO}, s93, v{T+4}
v_and_b32 v{T+3}, s96, v{T+1}
v_mul_u32_u24 v{T+3}, 1152, v{T+3}
v_add3_u32 v{VO}, v{VO}, v{T+3}, v{T+2}
s_mov_b32 m0, {STG + k*2048}""".replace("s64", f"s{WBK+k}").replace("s65", "s69"))
        p(f"buffer_load_dwordx4 v{VO}, s[24:27], s68 offen {cf} lds", tag=f"o{k}")
        p("s_add_u32 s68, s68, s90")
        p(f"buffer_load_dwordx4 v{VO}, s[24:27], s68 offen offset:1024 {cf} lds", tag=f"o{k}")
        p(f"""s_mul_i32 s{WD+k}, s60, 72
s_add_u32 s{WD+k}, s{WD+k}, s61
s_lshl_b32 s{WD+k}, s{WD+k}, 10
s_add_u32 s{WD+k}, s{WD+k}, {WOF}""")
    if 'nold' in XX: p.ins = [i for i in p.ins if not i.isdma]
    p(nst('p_sd'))
    p(tr_addr(T, VT, STG, 10))
    p(f"v_and_b32 v{T+3}, 1, v{T+1}\nv_lshl_add_u32 v{T+2}, v{T+3}, 3, v{T+2}\nv_lshrrev_b32 v{T+1}, 1, v{T+1}\nv_add_u32 v{T+2}, {STG}, v{T+2}")
    for k in range(NB): p(f"v_add_u32 v{T+12+k}, s{WBK+k}, v{T+1}\nv_and_b32 v{T+12+k}, 3, v{T+12+k}\nv_lshl_add_u32 v{T+12+k}, v{T+12+k}, 4, v{T+2}")
    if G3: p(lspin('pl_g4', 18, 'lt', 3, 'L_pl_g4e', vd=27) + "\nL_pl_g4e:")
    for k in range(NB):
        for t in range(2):
            d = E + 8*k + 4*t
            for h in range(2): p(f"ds_read_b64_tr_b16 v[{d+2*h}:{d+2*h+1}], v{T+12+k} offset:{k*2048 + t*512 + h*256}", needs=[f"o{k}"])
    for k in range(NB):
        d = E + 8*k
        p(f"buffer_store_dwordx4 v[{d}:{d+3}], v3, s[8:11], s{WD+k} offen {sf}\ns_add_u32 s{WD+k}, s{WD+k}, {36*1024}\nbuffer_store_dwordx4 v[{d+4}:{d+7}], v3, s[8:11], s{WD+k} offen {sf}")
    p(nst('p_ld'))
    p("s_branch L_a0")
    if 'nost' in XX: p.ins = [i for i in p.ins if not i.op.startswith('buffer_store')]
    out += p.finish()
    p = Prog()
    p("L_plx:")
    if tl:
        L = ["s_cmp_lt_u32 s2, 248", "s_cbranch_scc1 L_tl_e", "s_and_b32 s58, s2, 7"]
        vd = iter(range(200, 232))
        def run(srdr, base, sh, n):
            R = []
            for k in range(0, n, 64):
                R += [f"v_add_u32 v30, {k}, v2", f"v_min_u32 v30, {n - 1}, v30", f"v_lshlrev_b32 v30, {sh}, v30", f"buffer_load_dword v{next(vd)}, v30, s[{srdr}:{srdr+3}], {base} offen"]
            return R
        if 'w2' in tl:
            L += ["s_mov_b32 s88, s56", "s_mov_b32 s89, s57", f"s_mov_b32 s90, {576*4608*2}", "s_mov_b32 s91, 0x20000", f"s_mul_i32 s68, s58, {576*1152}"] + run(88, 's68', 12, 162)
        if 'out' in tl:
            L += ["s_mov_b32 s92, s42", "s_mov_b32 s93, s43", f"s_mov_b32 s94, {ACT}", "s_mov_b32 s95, 0x20000"] + run(92, '0', 12, 576)
        if 'out64' in tl:
            L += ["s_mov_b32 s92, s42", "s_mov_b32 s93, s43", f"s_mov_b32 s94, {ACT}", "s_mov_b32 s95, 0x20000"] + run(92, '0', 16, 36)
        if 'ws2m' in tl: L += run(8, '0', 21, 78)
        if 'ws64' in tl: L += run(8, '0', 16, 464) + [f"s_mov_b32 s68, {LS}"] + run(8, 's68', 16, 464)
        p(off("\n".join(L + ["L_tl_e:"])))
    p(f"""s_cmp_lt_u32 s2, {NO + 8}
s_cbranch_scc0 L_a0
s_mov_b32 s64, s56
s_mov_b32 s65, s57
s_and_b32 s58, s2, 7
s_mul_i32 s68, s58, {36*16*1152}
s_add_u32 s68, s68, {32*16*1152 + 8*128}
v_mul_u32_u24 v{VS}, 1152, v{T+1}
v_add_u32 v{VS}, v{VS}, v{T+2}""")
    for i in range(8):
        if i % 4 == 0: p(f"s_mov_b32 m0, {(S80 if A2[0] else STG) + (i//4)*4096}")
        p(f"buffer_load_dwordx4 v{VS}, s[64:67], s68 offen offset:{(i%4)*1024} {slf} lds")
        if i < 7: p(f"s_add_u32 s68, s68, {8*1152 - 1024 if i % 4 < 3 else 8*1152 + 3072}")
    return out + p.finish()

LVS, LVB, LAG, LF, LD = 248, 251, 249, 252, 152
LATE_KA = "s_load_dwordx4 s[96:99], s[0:1], 32\ns_load_dwordx2 s[86:87], s[0:1], 48"
def late_setup(T=112):
    return f"""s_mov_b32 s55, 0
s_cmp_eq_u32 s63, 0
s_cbranch_scc0 L_ld_e
s_and_b32 s58, s2, 7
s_lshr_b32 s60, s2, 3
s_lshr_b32 s59, s60, 2
s_and_b32 s100, s60, 3
s_lshl_b32 s61, s16, 5
s_sub_u32 s61, s61, 32
s_cmp_eq_u32 s16, 3
s_cselect_b32 s55, 16, 32
s_cmp_lt_u32 s60, s55
s_cselect_b32 s55, 2, 1
s_cselect_b32 s61, s61, 0
s_add_u32 s60, s60, s61
s_sub_u32 s61, s2, {NO}
s_cmp_lt_u32 s61, 8
s_cselect_b32 s61, 0, 1
s_add_u32 s61, s61, 80
s_cmp_eq_u32 s16, 0
s_cselect_b32 s60, s61, s60
s_mul_i32 s61, s60, 7282
s_lshr_b32 s61, s61, 16
s_mul_i32 s62, s61, 9
s_sub_u32 s62, s60, s62
s_cmp_lt_u32 s60, 81
s_cselect_b32 s55, s55, 0
s_cmp_eq_u32 s55, 1
s_cselect_b32 s59, s59, s62
s_cselect_b32 s100, s100, s61
s_cselect_b32 s69, 8, 1
s_cselect_b32 s60, 72, 4
s_cselect_b32 s61, 0, 36
s_cselect_b32 s62, 9, 0
s_cselect_b32 s64, {4 if PX else 0}, 0
s_cselect_b32 s65, 0, {4 if PX else 0}
s_cmp_eq_u32 s100, 8
s_cselect_b32 s65, 0, s65
s_cmp_{PX or 'lt'}_u32 s58, 4
s_cselect_b32 s64, s64, 0
s_cselect_b32 s65, s65, 0
s_xor_b32 s64, s64, s59
s_xor_b32 s65, s65, s100
s_mul_i32 s68, s65, s60
s_mul_i32 s61, s61, s58
s_add_u32 s68, s68, s61
s_mul_i32 s68, s68, {16*1152}
s_mul_i32 s61, s62, s58
s_add_u32 s61, s61, s64
s_lshl_b32 s61, s61, 7
s_add_u32 s68, s68, s61
s_mul_i32 s69, s69, 1152
{lane_off(T)}
v_mul_u32_u24 v{LVS}, s69, v{T+1}
v_add_u32 v{LVS}, v{LVS}, v{T+2}
v_lshlrev_b32 v{LVB}, 1, v2
s_lshl_b32 s69, s69, 3
s_sub_u32 s69, s69, 1024
s_mul_i32 s62, s16, 18432
s_add_u32 s62, s62, {55296 if A2[0] else STG}
{f"s_cmp_eq_u32 s16, 0{chr(10)}s_cselect_b32 s62, {S80}, s62" if A2[0] else ""}
s_mov_b32 s90, {576*4608*2}
s_mov_b32 s91, 0x20000
s_cmp_eq_u32 s55, 1
s_waitcnt lgkmcnt(0)
s_cselect_b32 s88, s96, s86
s_cselect_b32 s89, s97, s87
s_mov_b32 s44, s98
s_mov_b32 s45, s99
s_mov_b32 s46, {4608*2}
s_mov_b32 s47, 0x20000"""

def late_dmas(slf="nt", XX=()):
    L = ["s_cmp_eq_u32 s55, 0", "s_cbranch_scc1 L_ld_e", "s_cmp_eq_u32 s16, 0", "s_cbranch_scc1 L_ld_e"]
    for i in range(18):
        if i == 8: L += ["s_cmp_eq_u32 s55, 1", "s_cbranch_scc0 L_ld_e", f"buffer_load_ushort v{LVB}, v{LVB}, s[44:47], s61 offen"]
        if i % 4 == 0: L += [f"s_add_u32 m0, s62, {(i//4)*4096}", "s_nop 0"]
        if 'nold' not in XX: L.append(f"buffer_load_dwordx4 v{LVS}, s[88:91], s68 offen offset:{(i%4)*1024} {slf} lds")
        if i < 17: L.append("s_add_u32 s68, s68, s69")
        if i % 4 == 3: L.append("s_addk_i32 s68, 4096")
    return off("\n".join(L + ["L_ld_e:"]))

def late_dmas_uni(slf="nt", va=239, vd=247):
    def seq(n, lab):
        L = []
        for i in range(n):
            if i == 8: L.append(f"buffer_load_ushort v{LVB}, v{LVB}, s[44:47], s61 offen")
            if i % 4 == 0: L += [f"s_add_u32 m0, s62, {(i//4)*4096}", "s_nop 0"]
            L.append(f"buffer_load_dwordx4 v{LVS}, s[88:91], s68 offen offset:{(i%4)*1024} {slf} lds")
            if i < 17: L.append("s_add_u32 s68, s68, s69")
            if i % 4 == 3: L.append("s_addk_i32 s68, 4096")
        return L
    dm = lambda n: [f"v_mov_b32 v{va}, 0x40000000", "s_mov_b64 exec, 1"] + [f"buffer_load_dword v{vd}, v{va}, s[8:11], 0 offen"]*n + ["s_mov_b64 exec, -1", "s_branch L_lu_e"]
    main = ["s_cmp_eq_u32 s55, 1", "s_cbranch_scc0 L_lu_o"] + seq(18, 0) + ["L_lu_e:"]
    ool = ["L_lu_o:", "s_cmp_eq_u32 s55, 0", "s_cbranch_scc1 L_lu_0", "s_cmp_eq_u32 s16, 0", "s_cbranch_scc1 L_lu_0"] + seq(8, 0) + dm(11) + ["L_lu_0:"] + dm(19)
    return main, "".join(("" if l.endswith(':') else "  ") + l + "\n" for l in ool)

LD2, F4O = 184, 0x6000
def late_pre(T=112, run=True, split=False):
    L2 = LD2 if split else LD
    out = "  s_mov_b32 s38, s55\n  s_cmp_eq_u32 s55, 0\n  s_cbranch_scc1 L_lp_e\n  s_cmp_eq_u32 s55, 1\n  s_cbranch_scc0 L_lp_2\n"
    vt, c0, c1, one = T + 4, T + 5, T + 6, T + 7
    p = Prog()
    p(tr_addr(T, vt, 's62', 10))
    p(f"v_mov_b32 v{c0}, 0\nv_mov_b32 v{c1}, 0\nv_mov_b32 v{one}, 0x3f803f80")
    rd = [[f"ds_read_b64_tr_b16 v[{LD+4*u+2*h}:{LD+4*u+2*h+1}], v{vt} offset:{(u//2)*2048 + (u%2)*512 + h*256}" for h in range(2)] for u in range(18)]
    for x in rd[:7]: p.ext(x)
    p(dest_w1(T, LAG))
    for u in range(18):
        p.ext([f"v_dot2c_f32_bf16 v{(c0, c1)[u%2]}, v{one}, v{LD+4*u+q}" for q in range(4)])
        if u + 7 < 18: p.ext(rd[u + 7])
    p(fin_val(c0, c1, LF, LVB))
    p("s_branch L_lp_e")
    out += p.finish()
    p = Prog()
    p("L_lp_2:")
    p(tr_addr(T, vt, 's62', 8))
    for u in range(8):
        for h in range(2): p(f"ds_read_b64_tr_b16 v[{L2+4*u+2*h}:{L2+4*u+2*h+1}], v{vt} offset:{(u//2)*2048 + (u%2)*512 + h*1024}")
    p(f"""s_and_b32 s62, s59, 1
s_lshl_b32 s62, s62, 1
s_lshl_b32 s60, s58, 2
s_add_u32 s62, s62, s60
s_mul_i32 s62, s62, {WB}
s_add_u32 s62, s62, {WSTR}
s_lshr_b32 s68, s59, 1
s_add_u32 s61, s68, 1
s_and_b32 s61, s61, 3
s_lshl_b32 s61, s61, 4
s_add_u32 s61, s61, 265
s_cmp_eq_u32 s59, 8
s_cselect_b32 s69, 2, 1
s_cselect_b32 s61, 257, s61
s_cselect_b32 s101, 0, 1
s_mul_i32 s69, s69, {WB}
s_lshl_b32 s100, s100, 1""")
    W2D = [(86, 87, 88, 89), (90, 91, 96, 97)]
    for a0, a1, b0, b1 in W2D:
        p(f"""s_sub_u32 s60, s100, 8
s_cmp_lt_u32 s100, 8
s_cselect_b32 s{a0}, s100, s60
s_mul_i32 s{a0}, s{a0}, 9
s_add_u32 s{a0}, s{a0}, 167
s_add_u32 s{a0}, s{a0}, s68
s_lshl_b32 s99, s60, s101
s_add_u32 s99, s99, s61
s_cmp_lt_u32 s60, 8
s_cselect_b32 s{a0}, s99, s{a0}
s_cselect_b32 s99, 1, 5
s_lshl_b32 s99, s99, 10
s_cmp_eq_u32 s101, 0
s_cselect_b32 s99, {WB}, s99
s_cselect_b32 s98, 0, s99
s_lshl_b32 s{a0}, s{a0}, 10
s_add_u32 s{a0}, s{a0}, s62
s_add_u32 s{b0}, s{a0}, s99
s_add_u32 s{a1}, s{a0}, s69
s_add_u32 s{b1}, s{a1}, s99
s_sub_u32 s{b1}, s{b1}, s98
s_add_u32 s{a1}, s{a1}, s98
s_add_u32 s100, s100, 1""")
    if run:
        p("""s_sub_u32 s60, s88, s86
s_sub_u32 s61, s90, s88
s_sub_u32 s62, s89, s87
s_sub_u32 s91, s91, s89
s_mov_b32 s88, s60
s_mov_b32 s89, s61
s_mov_b32 s90, s62
s_mov_b32 s60, s86
s_mov_b32 s86, s87
s_mov_b32 s87, s60""")
    p("s_waitcnt lgkmcnt(0)")
    q = Prog()
    if run: q(f"""s_cmp_eq_u32 s55, 0
s_cselect_b32 s60, 0x40000000, 0
v_or_b32 v{LSA}, s60, v3
s_cmp_eq_u32 s55, 1
s_cselect_b32 s60, 0, 0x40000000
v_or_b32 v{LSB}, s60, v3
v_or_b32 v{LAG}, s60, v{LAG}""")
    return out + p.finish() + "L_lp_e:\n" + q.finish()

LSA, LSB = 254, 255
def late_stu(sf="sc1", n=1, XX=()):
    L = []
    for u in range(18):
        sr = (87, 86)[u % 2]
        g = [f"s_mov_b64 exec, s[{34 if u < 8 else 36}:{35 if u < 8 else 37}]"] if (u % n == 0 or u == 8) else []
        g.append(I(f"buffer_store_dwordx4 v[{LD+4*u}:{LD+4*u+3}], v{LSA if u < 8 else LSB}, s[8:11], s{sr} offen {sf}", tag='xl'))
        if u % n == n - 1 or u == 17: g.append("s_mov_b64 exec, -1")
        if u < 16: g.append(f"s_add_u32 s{sr}, s{sr}, s{88 + 2*(u%2) + (u//2) % 2}")
        if u % n == 0: L.append(g)
        else: L[-1] += g
    L.append(["s_mov_b64 exec, s[36:37]"] + [I(f"buffer_store_dwordx2 v[{LF}:{LF+1}], v{LAG}, s[8:11], s{sr} offen {sf}", tag='xl') for sr in (96, 97)] + ["s_mov_b64 exec, -1"])
    if 'nost' in XX: L = [[x for x in g if not isinstance(x, I)] for g in L]
    if 'noex' in XX: L = [[x for x in g if isinstance(x, I) or 'exec' not in x] for g in L]
    return L

def late_w2(sf="sc1"):
    return off("\n".join(["s_cmp_eq_u32 s38, 2", "s_cbranch_scc0 L_lw2_e"] + [f"buffer_store_dwordx4 v[{LD2+4*u}:{LD2+4*u+3}], v3, s[8:11], s{sr} offen {sf}" for u, sr in enumerate((86, 87, 88, 89, 90, 91, 96, 97))] + ["L_lw2_e:"])).split("\n")

def late_st(tag, sf="sc1", XX=(), uni=True, vd=254, vo=255, split=False):
    st = lambda u, sr: f"buffer_store_dwordx4 v[{LD+4*u}:{LD+4*u+3}], v3, s[8:11], s{sr} offen {sf}"
    L1 = []
    for u in range(18):
        sr = (87, 86)[u % 2]
        L1 += [st(u, sr)] + ([f"s_add_u32 s{sr}, s{sr}, s{88 + 2*(u%2) + (u//2) % 2}"] if u < 16 else [])
    L2 = [st(u, sr) for u, sr in enumerate((86, 87, 88, 89, 90, 91, 96, 97))]
    if uni:
        L1 += [f"buffer_store_dwordx2 v[{LF}:{LF+1}], v{LAG}, s[8:11], s{sr} offen {sf}" for sr in (96, 97)]
        dm = lambda n: [f"v_mov_b32 v{vo}, 0x40000000", "s_mov_b64 exec, 1"] + [f"buffer_load_dword v{vd}, v{vo}, s[8:11], 0 offen"]*n + ["s_mov_b64 exec, -1", f"s_branch L_{tag}_e"]
        main = "\n".join(["s_cmp_eq_u32 s55, 1", f"s_cbranch_scc0 L_{tag}_o"] + L1 + [f"L_{tag}_e:"])
        ool = [f"L_{tag}_o:", "s_cmp_eq_u32 s55, 0", f"s_cbranch_scc1 L_{tag}_0"] + L2 + dm(12) + [f"L_{tag}_0:"] + dm(20)
        return main, "".join(("" if l.endswith(':') else "  ") + l + "\n" for l in ool)
    L1 += [f"buffer_store_dwordx2 v[{LF}:{LF+1}], v{LAG}, s[8:11], s96 offen {sf}", "s_cmp_eq_u32 s96, s97", f"s_cbranch_scc1 L_{tag}_e",
           f"buffer_store_dwordx2 v[{LF}:{LF+1}], v{LAG}, s[8:11], s97 offen {sf}", f"s_branch L_{tag}_e"]
    if 'nost' in XX: L1 = [x for x in L1 if not x.startswith('buffer')]; L2 = []
    if split: L2 = []
    return off("\n".join(["s_cmp_eq_u32 s55, 0", f"s_cbranch_scc1 L_{tag}_e", "s_cmp_eq_u32 s55, 1", f"s_cbranch_scc0 L_{tag}_2"] + L1 + [f"L_{tag}_2:"] + L2 + [f"L_{tag}_e:"])), ""

HEAD = f"""  v_lshlrev_b32 v20, 2, v2
  v_mov_b32 v21, -1
  v_mov_b32 v22, 0
  v_add_u32 v20, {LX}, v20
  ds_write_b32 v20, v21
  ds_write_b32 v20, v22 offset:256
  v_mov_b32 v7, 0
  v_mov_b32 v13, 0
  v_mov_b32 v{LAG}, 0
  s_mov_b32 s3, 0
  s_cmp_eq_u32 s16, 3
  s_cbranch_scc1 L_pl
"""

def a0_go(two=False):
    return f"""s_lshl_b32 s56, s19, {8 if two else 9}
s_lshl_b32 s57, s20, {8 if two else 7}
s_sub_u32 s57, s57, {256 if two else 512}
v_mov_b32 v161, s56
v_mov_b32 v162, s57
v_cmp_lt_u32 vcc, {15 if two else 31}, v2
v_cndmask_b32 v161, v161, v162, vcc
v_add_u32 v161, v161, v3
s_mov_b32 s56, {FL1}
v_mov_b32 v162, {TAGL if two else LC + 16}
s_and_b32 s57, s2, 7
s_lshl_b32 s57, s57, 10
s_add_u32 s57, s57, {PFL}
s_lshl_b32 s58, s2, 2
s_add_u32 s58, s58, {PFL}
s_mov_b32 s49, 0x40000
s_cmp_eq_u32 s16, 0
s_cbranch_scc0 L_a0p_go
ds_write_b32 v162, v{VN} ; @
s_mov_b32 exec_hi, {0 if two else 0xff}
L_a0p_poll:
buffer_load_dword v250, v161, s[8:11], s56 offen sc1 ; @
s_waitcnt vmcnt(0) lgkmcnt(0) ; @
v_cmp_ne_u32 vcc, v250, v{VN}
s_nop 4
s_cbranch_vccz L_a0p_ok
s_sub_u32 s49, s49, 1
s_cmp_eq_u32 s49, 0
s_cbranch_scc0 L_a0p_poll
L_a0p_ok:
s_mov_b64 exec, -1
L_a0p_go:
s_barrier"""

def fchk(n, v, sa, tag):
    CHK = [f"v_xor_b32 v{v+i}, {tag}, v{v+i}" for i in range(4)] + [f"v_or3_b32 v{v}, v{v}, v{v+1}, v{v+2}", f"v_or_b32 v{v}, v{v}, v{v+3}", f"v_cmp_ne_u32 vcc, 0, v{v}"]
    LD = f"buffer_load_dwordx4 v[{v}:{v+3}], v3, s[8:11], s{sa} offen sc1"
    LOOP = f"L_{n}_w:\n  s_mov_b32 s49, 0x40000\nL_{n}_l:\n" + "".join("  " + l + "\n" for l in ["s_nop 15"]*8 + [LD, "s_waitcnt vmcnt(0)"] + CHK + ["s_sub_u32 s49, s49, 1", "s_cmp_eq_u32 s49, 0", f"s_cbranch_scc1 L_{n}_k", "s_nop 2", f"s_cbranch_vccnz L_{n}_l", f"s_branch L_{n}_k"])
    return LD, CHK, [f"s_cbranch_vccnz L_{n}_w", f"L_{n}_k:"], LOOP
def fsig(n, vd, va, sa):
    return ["s_cmp_eq_u32 s16, 0", f"s_cbranch_scc0 L_{n}_ns", f"v_mov_b32 v{vd}, s3", f"v_lshlrev_b32 v{va}, 10, v2", "s_mov_b64 exec, 0xff", f"buffer_store_dword v{vd}, v{va}, s[8:11], s{sa} offen sc1 ; @", "s_mov_b64 exec, -1", f"L_{n}_ns:"]
F3O = 0x2000
```

```python
from asmlib import *
from layout import *
from k0 import srd

PFL = 0x9800000
FL1 = PFL + 0x4000
LX  = 81920
LC  = LX + 256
CSL = LX + 512
STG = 90112
WB  = WSN*1024
VN  = 160
A2  = [False]
import os
P3  = os.environ.get('P3', '')
PX  = os.environ.get('PX', '')
TAGL, S80 = 152576, 153600
VS, VT, VO, VOT, VB, C0, C1, VAG, VCS, VONE = range(170, 180)
E   = 184

KARGS = """s_load_dwordx8 s[44:51], s[0:1], 0
s_load_dwordx4 s[52:55], s[0:1], 32
s_load_dwordx2 s[56:57], s[0:1], 48
s_load_dwordx2 s[6:7], s[0:1], 72"""

def off(L):
    return "\n".join(l + " ; @" if l.strip() and not l.strip().endswith(':') else l for l in L.split("\n"))

def wo_idx(i):
    return f"""s_mul_i32 s60, s{i}, 1821
s_lshr_b32 s60, s60, 16
s_mul_i32 s61, s60, 36
s_sub_u32 s61, s{i}, s61
s_mul_i32 s64, s61, 7282
s_lshr_b32 s64, s64, 16
s_mul_i32 s65, s64, 9
s_sub_u32 s65, s61, s65"""

def dest_w1(T, vag):
    return f"""s_mul_i32 s101, s100, 9
s_lshr_b32 s62, s59, 1
s_and_b32 s87, s59, 1
s_lshl_b32 s87, s87, 1
s_lshl_b32 s88, s58, 2
s_add_u32 s87, s87, s88
s_mul_i32 s87, s87, {WB}
s_add_u32 s87, s87, {WSTR}
s_add_u32 s88, s62, 91
s_add_u32 s89, s62, 90
s_add_u32 s96, s62, 163
s_cmp_lt_u32 s59, 4
s_cselect_b32 s60, 5, 4
s_cselect_b32 s61, 3, 2
s_cselect_b32 s62, s62, s88
s_cselect_b32 s96, s89, s96
s_lshl_b32 s61, s61, 10
s_sub_u32 s99, 0, s61
s_cmp_eq_u32 s59, 8
s_cselect_b32 s60, 5, s60
s_cselect_b32 s86, 0, s61
s_cselect_b32 s61, {WB}, s61
s_cselect_b32 s99, s61, s99
s_cselect_b32 s62, 2, s62
s_cselect_b32 s96, 92, s96
s_cselect_b32 s97, {WB}, 0
s_add_u32 s98, s97, {WB}
v_lshrrev_b32 v{T}, 5, v2
v_mul_u32_u24 v{T}, s98, v{T}
v_and_b32 v{vag}, 31, v2
v_lshl_add_u32 v{vag}, v{vag}, 4, v{T}
s_add_u32 s86, s86, s98
s_lshl_b32 s60, s60, 10
s_lshl_b32 s96, s96, 10
s_add_u32 s96, s96, s87
s_lshr_b32 s88, s100, 1
s_lshl_b32 s88, s88, 9
s_add_u32 s96, s96, s88
s_and_b32 s88, s100, 1
s_lshl_b32 s88, s88, 3
s_add_u32 s96, s96, s88
s_add_u32 s97, s97, s96
s_lshl_b32 s62, s62, 10
s_add_u32 s87, s87, s62
s_lshr_b32 s62, s101, 1
s_mul_i32 s62, s62, s60
s_add_u32 s87, s87, s62
s_add_u32 s86, s86, s87
s_and_b32 s101, s101, 1
s_mul_i32 s62, s101, s61
s_add_u32 s87, s87, s62
s_mul_i32 s62, s101, s99
s_add_u32 s86, s86, s62
s_sub_u32 s62, s60, s61
s_sub_u32 s60, s60, s99
s_cmp_eq_u32 s101, 0
s_cselect_b32 s88, s61, s62
s_cselect_b32 s89, s62, s61
s_cselect_b32 s90, s99, s60
s_cselect_b32 s91, s60, s99
s_cmp_lt_u32 s100, 2
s_cselect_b32 s93, 0xffff, 0"""

def tr_addr(T, vt, base, sh):
    return f"""v_and_b32 v{T}, 3, v2
v_bfe_u32 v{T+1}, v2, 4, 1
v_lshl_add_u32 v{T+1}, v{T+1}, 2, v{T}
v_bfe_u32 v{T+2}, v2, 2, 2
v_lshlrev_b32 v{T+2}, 6, v{T+2}
v_lshrrev_b32 v{T}, 5, v2
v_lshl_add_u32 v{T+2}, v{T}, {sh}, v{T+2}
v_lshl_add_u32 v{vt}, v{T+1}, 3, v{T+2}
v_add_u32 v{vt}, {base}, v{vt}"""

def fin_val(c0, c1, f, vb):
    return f"""v_permlane32_swap_b32 v{c0}, v{c1}
v_add_f32 v{c0}, v{c0}, v{c1}
v_cvt_pk_bf16_f32 v{f}, v{c0}, v{c0}
v_and_b32 v{c1}, 0xffff0000, v{f}
v_sub_f32 v{c1}, v{c0}, v{c1}
v_cvt_pk_bf16_f32 v{f+1}, v{c1}, 0
v_and_b32 v{vb}, s93, v{vb}
v_lshl_or_b32 v{f+1}, v{vb}, 16, v{f+1}"""

SRDS = lambda w: f"""s_mov_b32 s44, s54
s_mov_b32 s45, s55
s_mov_b32 s46, {4608*2}
s_mov_b32 s47, 0x20000
s_mov_b32 s64, s{w}
s_mov_b32 s65, s{w+1}
s_mov_b32 s66, {576*4608*2}
s_mov_b32 s67, 0x20000"""

def w2_idx(w):
    return f"""s_lshr_b32 s60, s2, 3
s_sub_u32 s60, s60, 18
s_lshl_b32 s60, s60, 2
s_add_u32 s60, s60, {w}
s_min_u32 s60, s60, 53
s_mul_i32 s88, s60, 7282
s_lshr_b32 s88, s88, 16
s_mul_i32 s61, s88, 9
s_sub_u32 s86, s60, s61"""

def lspin(tag, va, cmp, val, out, vd=20, o=0):
    return "s_mov_b32 s49, 0x400000\n" + off(f"""L_{tag}:
ds_read_b32 v{vd}, v{va} offset:{o}
s_waitcnt lgkmcnt(0)
v_readfirstlane_b32 s60, v{vd}
s_sub_u32 s49, s49, 1
s_cmp_eq_u32 s49, 0
s_cbranch_scc1 {out}
s_cmp_{cmp}_u32 s60, {val}
s_cbranch_scc1 L_{tag}""")

def crit(sf="sc1", lf="", cf="", wql=False, XX=(), tgf="sc1", t3=False, w0=0):
    p = Prog()
    O, X, U, D, T = 32, 44, 68, 80, 20
    vx, vy, vq, vq2, va, vb, vw, vf = 4, 5, 6, 7, 8, 9, 10, 11
    p(f"""L_pc:
v_and_b32 v12, 7, v2
v_lshrrev_b32 v13, 3, v2
v_mul_u32_u24 v{vx}, 1152, v12
v_lshl_add_u32 v{vx}, v13, 4, v{vx}
s_mul_i32 s59, s2, 9216
s_mul_i32 s60, s16, 384
s_add_u32 s59, s59, s60
s_lshr_b32 s17, s2, 3
s_and_b32 s18, s2, 7
s_mul_i32 s33, s18, 3
s_add_u32 s33, s33, s16
s_mul_i32 s18, s33, 3
s_mul_i32 s33, s33, {24*3456}
s_mul_i32 s60, s17, 36
s_add_u32 s33, s33, s60
s_mul_i32 s19, s16, 5120
v_and_b32 v{T}, 3, v2
v_lshrrev_b32 v{T+1}, 2, v2
v_lshrrev_b32 v{T+2}, 5, v2
v_mul_u32_u24 v{vq}, 3456, v{T+1}
v_lshl_add_u32 v{vq}, v{T}, 4, v{vq}
v_mul_u32_u24 v{vq2}, {8*3456 - 1152}, v{T+2}
v_sub_u32 v{vq2}, v{vq}, v{vq2}
v_mov_b32 v{T+3}, 0x40000000
v_cmp_eq_u32 vcc, 3, v{T}
v_cndmask_b32 v{vq}, v{vq}, v{T+3}, vcc
v_cndmask_b32 v{vq2}, v{vq2}, v{T+3}, vcc""")
    p(nst('p_0'))
    p("s_waitcnt lgkmcnt(0)\ns_mov_b32 s8, s4\ns_mov_b32 s9, s5")
    p(nst('p_ka'))
    srd(p, 12, 44, ACT); srd(p, 20, 46, 576*1728*2)
    def xl():
        for i in range(3): p(f"buffer_load_dwordx4 v[{O+4*i}:{O+4*i+3}], v{vx}, s[12:15], s59 offen offset:{i*128} {lf}")
    if 'al' in XX: p("s_and_b32 s33, s33, -16")
    if 'al128' in XX: p("s_and_b32 s33, s33, -128")
    if 'xco' in XX: p(f"v_mul_u32_u24 v{vx}, 1152, v13\nv_lshl_add_u32 v{vx}, v12, 4, v{vx}")
    if 'wqf' not in XX: xl()
    p("s_mov_b32 m0, s19")
    for u in range(3):
        p(f"buffer_load_dwordx4 v{vq}, s[20:23], s33 offen offset:{u*1024} {cf} lds", tag='q0')
        p(f"s_add_u32 s33, s33, {128 if u < 2 else 16*3456 - 256 - 3072}")
    p(f"buffer_load_dwordx4 v{vq2}, s[20:23], s33 offen offset:3072 {cf} lds", tag='q1')
    p(f"s_add_u32 m0, s19, 4096\ns_add_u32 s33, s33, {2304 + 3072}\ns_mov_b32 exec_hi, 0")
    p(f"buffer_load_dwordx4 v{vq2}, s[20:23], s33 offen {cf} lds", tag='q1')
    if 'wqf' in XX: p("s_mov_b64 exec, -1"); xl()
    p("s_mov_b64 exec, -1\ns_barrier")
    if not t3: srd(p, 36, 6, 256)
    if not t3 and not w0 & 4: p(f"""s_or_b32 s60, s2, s16
s_cmp_eq_u32 s60, 0
s_cbranch_scc0 L_pc_nt
s_memrealtime s[60:61]
v_lshlrev_b32 v{T+3}, 7, v2
s_waitcnt lgkmcnt(0)
s_or_b32 s60, s60, 1
v_mov_b32 v{T+4}, s60
s_mov_b64 exec, {3 if w0 & 2 else 1}
buffer_store_dword v{T+4}, v{T+3}, s[36:39], 0 offen sc1 ; @
s_mov_b64 exec, -1
L_pc_nt:""")
    p(nst('p_q'))
    p(f"""v_lshlrev_b32 v{vy}, 9, v13
v_lshl_add_u32 v{vy}, v12, 4, v{vy}
s_lshr_b32 s58, s2, 2
s_mul_i32 s58, s58, 36864
s_and_b32 s59, s2, 3
s_lshl_b32 s59, s59, 7
s_add_u32 s58, s58, s59
s_mul_i32 s59, s16, 12288
s_add_u32 s24, s58, s59
s_add_u32 s24, s24, {YF}
s_add_u32 s25, s24, 4096
s_add_u32 s26, s24, 8192
s_mul_i32 s27, s17, 73728
s_add_u32 s27, s27, {WQF}""")
    for k in range(3):
        p(f"""s_add_u32 s60, s18, {k}
s_lshr_b32 s61, s60, 1
s_lshl_b32 s61, s61, 11
s_and_b32 s60, s60, 1
s_lshl_b32 s60, s60, 9
s_add_u32 s61, s61, s60
s_add_u32 s{28+k}, s27, s61""")
    p(f"""s_lshl_b32 s32, s2, 4
s_add_u32 s32, s32, {FL1}
v_and_b32 v{vw}, 31, v2
v_lshlrev_b32 v{vw}, 4, v{vw}
v_lshl_add_u32 v{vw}, v{T+2}, 10, v{vw}
v_bfe_u32 v{T+3}, v2, 4, 1
v_lshl_add_u32 v{T+3}, v{T+3}, 2, v{T}
v_lshlrev_b32 v{T+4}, 3, v{T+3}
v_add_u32 v{va}, 1024, v{T+4}
v_subrev_u32 v{T+5}, 40, v{T+4}
v_cmp_gt_u32 vcc, 5, v{T+3}
v_cndmask_b32 v{va}, v{T+5}, v{va}, vcc
v_mov_b32 v{T+5}, 32
v_cmp_eq_u32 vcc, 7, v{T+3}
v_cndmask_b32 v{va}, v{va}, v{T+5}, vcc
v_add_u32 v{vb}, 2048, v{T+4}
v_subrev_u32 v{T+5}, 32, v{T+4}
v_cmp_gt_u32 vcc, 6, v{T+3}
v_cndmask_b32 v{vb}, v{T+5}, v{vb}, vcc
v_cmp_lt_u32 vcc, 31, v2
v_cndmask_b32 v{va}, v{va}, v{vb}, vcc
v_lshrrev_b32 v{vb}, 10, v{va}
v_lshlrev_b32 v{vb}, 9, v{vb}
v_sub_u32 v{vb}, v{va}, v{vb}
v_and_b32 v{T+1}, 3, v{T+1}
v_lshlrev_b32 v{T+1}, 6, v{T+1}
v_add_u32 v{T+1}, s19, v{T+1}
v_add_u32 v{va}, v{va}, v{T+1}
v_add_u32 v{vb}, v{vb}, v{T+1}
v_bfe_u32 v14, v2, 5, 1
v_lshl_add_u32 v14, v12, 1, v14
v_lshlrev_b32 v14, 4, v14
s_lshl_b32 s60, s16, 2
s_add_u32 s60, s60, {LX}
v_add_u32 v14, s60, v14
v_lshlrev_b32 v15, 5, v12
v_add_u32 v15, {LX}, v15
v_and_b32 v16, 24, v2
v_cmp_eq_u32 s[34:35], 0, v16
v_mov_b32 v17, 0
v_mov_b32 v18, {LC}
v_mov_b32 v19, 1
s_mov_b32 s49, 0x40000""")
    p(nst('p_iss'))
    XS = list(range(X, X + 24))
    for i in range(12): p(f"v_lshlrev_b32 v{X+2*i}, 16, v{O+i}\nv_and_b32 v{X+2*i+1}, 0xffff0000, v{O+i}")
    p(nst('p_x'))
    ARR = ["s_mov_b64 exec, 1", "ds_add_u32 v18, v19 offset:20", "s_mov_b64 exec, -1"]
    p.ext(ARR)
    p(f"v_add_f32 v24, v{XS[0]}, v{XS[1]}\nv_add_f32 v26, v{XS[2]}, v{XS[3]}\nv_mul_f32 v25, v{XS[0]}, v{XS[0]}\nv_mul_f32 v27, v{XS[1]}, v{XS[1]}")
    for k, x in enumerate(XS[4:]): p(f"v_add_f32 v{24 + 2*(k%2)}, v{24 + 2*(k%2)}, v{x}")
    for k, x in enumerate(XS[2:]): p(f"v_fmac_f32 v{25 + 2*(k%2)}, v{x}, v{x}")
    p(f"""v_add_f32 v24, v24, v26
v_add_f32 v25, v25, v27
v_permlane32_swap_b32 v24, v25
v_add_f32 v24, v24, v25
v_mov_b32 v25, v24
v_permlane16_swap_b32 v24, v25
v_add_f32 v24, v24, v25
v_add_f32 v24, v24, v24 row_ror:8
s_mov_b64 exec, s[34:35]
ds_write_b32 v14, v24
s_mov_b64 exec, -1""")
    p(nst('p_s1'))
    def wq():
        for k in range(3):
            for h in range(2):
                p(f"ds_read_b64_tr_b16 v[{D+4*k+2*h}:{D+4*k+2*h+1}], v{va if k < 2 else vb} offset:{(k*512 if k < 2 else 3072) + h*256}", needs=['q0' if k < 2 else 'q1'])
        if w0 & 4:
            p(off(f"s_cmp_eq_u32 s16, 0\ns_cselect_b32 s60, 17, 1\nv_mov_b32 v16, s60\ns_cbranch_scc0 L_pc_e1\nbuffer_load_dword v{VN}, v17, s[36:39], 0 offen sc1\nL_pc_e1:"))
            p.ext([x.replace('v19', 'v16') for x in ARR])
        else: p.ext(ARR)
        for k in range(3): p(f"buffer_store_dwordx4 v[{D+4*k}:{D+4*k+3}], v{vw}, s[8:11], s{28+k} offen {sf}")
    if not wql: wq()
    p(nst('p_wq'))
    p(off(f"""L_pc_sw:
ds_read_b128 v[20:23], v15
ds_read_b128 v[28:31], v15 offset:16
s_waitcnt lgkmcnt(0)
v_max3_u32 v24, v20, v21, v22
v_max3_u32 v25, v28, v29, v30
v_max_u32 v24, v24, v25
v_cmp_eq_u32 vcc, -1, v24
s_sub_u32 s49, s49, 1
s_cmp_eq_u32 s49, 0
s_cbranch_scc1 L_pc_sk
s_nop 2
s_cbranch_vccnz L_pc_sw
L_pc_sk:"""))
    p(nst('p_s2'))
    p("""v_add_f32 v20, v20, v21
v_add_f32 v28, v28, v29
v_add_f32 v20, v20, v22
v_add_f32 v28, v28, v30
v_mul_f32 v20, 0x3ae38e39, v20
v_mul_f32 v28, 0x3ae38e39, v28
v_fma_f32 v28, -v20, v20, v28
v_max_f32 v28, 0, v28
v_add_f32 v28, 0x3727c5ac, v28
v_rsq_f32 v28, v28""")
    for i in range(3):
        xs = XS[8*i:8*i+8]
        for x in xs: p(f"v_sub_f32 v{x}, v{x}, v20")
        for x in xs: p(f"v_mul_f32 v{x}, v{x}, v28")
        for k in range(4): p(f"v_cvt_pk_bf16_f32 v{U+4*i+k}, v{xs[2*k]}, v{xs[2*k+1]}")
        p(f"buffer_store_dwordx4 v[{U+4*i}:{U+4*i+3}], v{vy}, s[8:11], s{24+i} offen {sf}")
    if wql: wq()
    if w0:
        p(f"s_bfe_u32 s58, s2, 0x10003\ns_lshl_b32 s58, s58, 7" if w0 & 2 else "s_mov_b32 s58, 0")
        LDT = f"buffer_load_dword v{VN}, v17, s[36:39], s58 offen sc1"
        p(nst('p_st'))
        p(off(f"""s_mov_b32 s49, 0x40000
{"s_cmp_eq_u32 s16, 0" if w0 & 1 else "s_cmp_eq_u32 s16, s16"}
s_cbranch_scc0 L_pc_tk
{"s_branch L_pc_t1" if w0 & 4 else ""}
L_pc_tg:
{LDT}
L_pc_t1:
s_waitcnt vmcnt(0)
v_readfirstlane_b32 s61, v{VN}
s_sub_u32 s49, s49, 1
s_cmp_eq_u32 s49, 0
s_cbranch_scc1 L_pc_tw
s_cmp_eq_u32 s61, 0
s_cbranch_scc1 L_pc_tg
L_pc_tw:
ds_write_b32 v18, v{VN} offset:16
L_pc_tk:"""))
        p(f"""s_waitcnt vmcnt(0)
s_mov_b64 exec, 1
ds_add_rtn_u32 v20, v18, v19
ds_read_b32 v21, v18 offset:16
s_waitcnt lgkmcnt(0)
v_readfirstlane_b32 s60, v20
s_cmp_eq_u32 s60, 2
s_cbranch_scc0 L_pc_ns
buffer_store_dword v21, v17, s[8:11], s32 offen sc1 ; @
L_pc_ns:
s_mov_b64 exec, -1""")
        p(nst('p_sig'))
        p("s_branch L_a0")
        return p.finish()
    if not t3: p(f"buffer_load_dword v{VN}, v17, s[36:39], 0 offen {tgf}")
    p(nst('p_st'))
    if t3: p(off(f"""s_mov_b32 s49, 0x1000000
L_pc_tg:
ds_read_b32 v{VN}, v18 offset:16
s_waitcnt lgkmcnt(0)
v_readfirstlane_b32 s61, v{VN}
s_sub_u32 s49, s49, 1
s_cmp_eq_u32 s49, 0
s_cbranch_scc1 L_pc_tk
s_cmp_eq_u32 s61, 0
s_cbranch_scc1 L_pc_tg
L_pc_tk:"""))
    p("s_mov_b32 s49, 0x40000\ns_waitcnt vmcnt(0)")
    if not t3: p(off(f"""L_pc_tg:
v_readfirstlane_b32 s61, v{VN}
s_sub_u32 s49, s49, 1
s_cmp_eq_u32 s49, 0
s_cbranch_scc1 L_pc_tk
s_cmp_eq_u32 s61, 0
s_cbranch_scc0 L_pc_tk
buffer_load_dword v{VN}, v17, s[36:39], 0 offen sc1
s_waitcnt vmcnt(0)
s_branch L_pc_tg
L_pc_tk:"""))
    p(f"""s_mov_b64 exec, 1
ds_add_rtn_u32 v20, v18, v19
s_waitcnt lgkmcnt(0)
v_readfirstlane_b32 s60, v20
s_cmp_eq_u32 s60, 2
s_cbranch_scc0 L_pc_ns
buffer_store_dword v{VN}, v17, s[8:11], s32 offen sc1 ; @
L_pc_ns:
s_mov_b64 exec, -1""")
    p(nst('p_sig'))
    p("s_branch L_a0")
    return p.finish()

NE, NO, NB = 160, 241, 4
def lane_off(T):
    return f"""v_and_b32 v{T}, 3, v2
v_bfe_u32 v{T+1}, v2, 2, 3
v_lshrrev_b32 v{T+2}, 5, v2
v_lshlrev_b32 v{T+2}, 6, v{T+2}
v_lshl_add_u32 v{T+2}, v{T}, 4, v{T+2}"""

def loader(sf="sc1", slf="nt", cf="", G1=0, G3=0, LA=6, XX=(), cp=0, tl=(), t3=0, tw=None):
    T = 20
    p = Prog()
    p(f"""L_pl:
s_lshl_b32 s58, s2, 10
s_add_u32 s58, s58, {ZR}
s_add_u32 s59, s58, {LS}
v_mov_b32 v28, 0
v_mov_b32 v29, 0
v_mov_b32 v30, 0
v_mov_b32 v31, 0
{lane_off(T)}
v_mov_b32 v18, {LC}
s_waitcnt lgkmcnt(0)
s_mov_b32 s8, s4
s_mov_b32 s9, s5""")
    if t3 or tw is not None:
        srd(p, 36, 6, 256)
        p(f"""s_cmp_eq_u32 s2, {tw or 0}
s_cbranch_scc0 L_pl_nt
s_memrealtime s[60:61]
s_waitcnt lgkmcnt(0)
s_or_b32 s60, s60, 1
v_mov_b32 v27, s60
s_mov_b64 exec, 1
buffer_store_dword v27, v28, s[36:39], 0 offen sc1 ; @
s_mov_b64 exec, -1
L_pl_nt:""")
    srd(p, 12, 44, ACT); srd(p, 24, 48, 576*576*2)
    p(SRDS(52))
    p(f"""buffer_store_dwordx4 v[28:31], v3, s[8:11], s58 offen {sf}
buffer_store_dwordx4 v[28:31], v3, s[8:11], s59 offen {sf}
s_barrier""")
    if cp:
        p(f"""s_getpc_b64 s[86:87]
L_cp:
s_lshr_b32 s60, s2, 3
s_mul_i32 s60, s60, {cp}
v_min_u32 v26, {cp - 1}, v2
v_add_u32 v26, s60, v26
v_lshlrev_b32 v26, 7, v26
s_mov_b32 s60, L_kend-L_cp-4
v_min_u32 v26, s60, v26
global_load_dword v25, v26, s[86:87]""")
    if t3 == 2: p(lspin('pl_g0', 18, 'lt', 1, 'L_pl_g0e', vd=27, o=20) + "\nL_pl_g0e:")
    if t3: p(off(f"""s_mov_b32 s49, 0x40000
L_pl_tg:
buffer_load_dword v{VN}, v28, s[36:39], 0 offen sc1
s_waitcnt vmcnt(0)
v_readfirstlane_b32 s61, v{VN}
s_sub_u32 s49, s49, 1
s_cmp_eq_u32 s49, 0
s_cbranch_scc1 L_pl_tk
s_cmp_eq_u32 s61, 0
s_cbranch_scc1 L_pl_tg
L_pl_tk:
ds_write_b32 v18, v{VN} offset:16"""))
    p(f"""s_cmp_lt_u32 s2, {NO}
s_cbranch_scc0 L_plx""")
    if G1: p(lspin('pl_g1', 18, 'lt', G1, 'L_pl_g1e', vd=27, o=20) + "\nL_pl_g1e:")
    p(f"s_cmp_lt_u32 s2, {NE}\ns_cbranch_scc0 L_plo")
    out = p.finish()
    p = Prog()
    p(f"""s_and_b32 s58, s2, 7
s_lshr_b32 s59, s2, 5
s_bfe_u32 s100, s2, 0x20003
s_cmp_lt_u32 s59, 4
s_cselect_b32 s59, s59, 8
s_cselect_b32 s62, {4 if PX else 0}, 0
s_cmp_{PX or 'lt'}_u32 s58, 4
s_cselect_b32 s62, s62, 0
s_xor_b32 s62, s62, s59
s_cmp_eq_u32 s62, 8
s_cselect_b32 s60, {9 if P3 else 0}, 0
s_cmp_eq_u32 s58, 3
s_cselect_b32 s60, s60, 0
s_xor_b32 s62, s62, s60
s_mul_i32 s61, s58, 9
s_add_u32 s61, s61, s62
s_lshl_b32 s61, s61, 7
s_mul_i32 s68, s100, {9*16*9216}
s_add_u32 s68, s68, s61
v_mul_u32_u24 v{VS}, 9216, v{T+1}
v_add_u32 v{VS}, v{VS}, v{T+2}
v_lshlrev_b32 v{VB}, 1, v2""")
    for i in range(18):
        if i % 4 == 0: p(f"s_mov_b32 m0, {STG + (i//4)*4096}")
        p(f"buffer_load_dwordx4 v{VS}, s[64:67], s68 offen offset:{(i%4)*1024} {slf} lds", tag=f"e{i//2}")
        if i < 17: p(f"s_add_u32 s68, s68, {8*9216 - 1024 if i % 4 < 3 else 8*9216 + 3072}")
    p(f"buffer_load_ushort v{VB}, v{VB}, s[44:47], s61 offen")
    if 'nold' in XX: p.ins = [i for i in p.ins if not i.isdma]
    p(nst('p_sd'))
    p(dest_w1(T, VAG)); p(tr_addr(T, VT, STG, 10))
    p(f"v_mov_b32 v{C0}, 0\nv_mov_b32 v{C1}, 0\nv_mov_b32 v{VONE}, 0x3f803f80")
    if G3: p(lspin('pl_g3', 18, 'lt', 3, 'L_pl_g3e', vd=27) + "\nL_pl_g3e:")
    rd, st = [], []
    for b in range(9):
        for t in range(2):
            d = E + 4*((2*b + t) % 12)
            rd.append([I(f"ds_read_b64_tr_b16 v[{d+2*h}:{d+2*h+1}], v{VT} offset:{b*2048 + t*512 + h*256}", needs=[f"e{b}"]) for h in range(2)])
            sr = (87, 86)[t]
            st.append([f"buffer_store_dwordx4 v[{d}:{d+3}], v3, s[8:11], s{sr} offen {sf}"] + ([f"s_add_u32 s{sr}, s{sr}, s{88 + 2*t + b % 2}"] if b < 8 else []) +
                      [f"v_dot2c_f32_bf16 v{(C0, C1)[t]}, v{VONE}, v{d+q}" for q in range(4)])
    for x in rd[:LA]: p.ext(x)
    for i, x in enumerate(st):
        p.ext(x)
        if i + LA < len(rd): p.ext(rd[i + LA])
    p(fin_val(C0, C1, T, VB))
    p(f"""buffer_store_dwordx2 v[{T}:{T+1}], v{VAG}, s[8:11], s96 offen {sf}""")
    p(nst('p_ld'))
    p(f"""s_cmp_eq_u32 s96, s97
s_cbranch_scc1 L_a0
buffer_store_dwordx2 v[{T}:{T+1}], v{VAG}, s[8:11], s97 offen {sf}
s_branch L_a0""")
    if 'nost' in XX: p.ins = [i for i in p.ins if not i.op.startswith('buffer_store')]
    out += p.finish()
    p = Prog()
    p("L_plo:")
    WBK, WD = 28, 32
    for k in range(NB):
        p(f"""s_mul_i32 s62, s2, {NB}
s_sub_u32 s62, s62, {NB*NE - k}
{wo_idx(62)}
s_mul_i32 s68, s{WBK+k}, 144
s_mul_i32 s89, s69, 18
s_cmp_lt_u32 s69, 8
s_cselect_b32 s89, s89, 16
s_cselect_b32 s90, 4, 18
s_cselect_b32 s91, 2, 1
s_cselect_b32 s93, 8, 36
s_cselect_b32 s96, 3, 1
s_mul_i32 s90, s90, 1152
s_sub_u32 s90, s90, 1024
s_mul_i32 s93, s93, 1152
s_add_u32 s68, s68, s89
s_mul_i32 s68, s68, 1152
s_lshl_b32 s62, s60, 7
s_add_u32 s68, s68, s62
v_lshrrev_b32 v{T+4}, s91, v{T+1}
v_mul_u32_u24 v{VO}, s93, v{T+4}
v_and_b32 v{T+3}, s96, v{T+1}
v_mul_u32_u24 v{T+3}, 1152, v{T+3}
v_add3_u32 v{VO}, v{VO}, v{T+3}, v{T+2}
s_mov_b32 m0, {STG + k*2048}""".replace("s64", f"s{WBK+k}").replace("s65", "s69"))
        p(f"buffer_load_dwordx4 v{VO}, s[24:27], s68 offen {cf} lds", tag=f"o{k}")
        p("s_add_u32 s68, s68, s90")
        p(f"buffer_load_dwordx4 v{VO}, s[24:27], s68 offen offset:1024 {cf} lds", tag=f"o{k}")
        p(f"""s_mul_i32 s{WD+k}, s60, 72
s_add_u32 s{WD+k}, s{WD+k}, s61
s_lshl_b32 s{WD+k}, s{WD+k}, 10
s_add_u32 s{WD+k}, s{WD+k}, {WOF}""")
    if 'nold' in XX: p.ins = [i for i in p.ins if not i.isdma]
    p(nst('p_sd'))
    p(tr_addr(T, VT, STG, 10))
    p(f"v_and_b32 v{T+3}, 1, v{T+1}\nv_lshl_add_u32 v{T+2}, v{T+3}, 3, v{T+2}\nv_lshrrev_b32 v{T+1}, 1, v{T+1}\nv_add_u32 v{T+2}, {STG}, v{T+2}")
    for k in range(NB): p(f"v_add_u32 v{T+12+k}, s{WBK+k}, v{T+1}\nv_and_b32 v{T+12+k}, 3, v{T+12+k}\nv_lshl_add_u32 v{T+12+k}, v{T+12+k}, 4, v{T+2}")
    if G3: p(lspin('pl_g4', 18, 'lt', 3, 'L_pl_g4e', vd=27) + "\nL_pl_g4e:")
    for k in range(NB):
        for t in range(2):
            d = E + 8*k + 4*t
            for h in range(2): p(f"ds_read_b64_tr_b16 v[{d+2*h}:{d+2*h+1}], v{T+12+k} offset:{k*2048 + t*512 + h*256}", needs=[f"o{k}"])
    for k in range(NB):
        d = E + 8*k
        p(f"buffer_store_dwordx4 v[{d}:{d+3}], v3, s[8:11], s{WD+k} offen {sf}\ns_add_u32 s{WD+k}, s{WD+k}, {36*1024}\nbuffer_store_dwordx4 v[{d+4}:{d+7}], v3, s[8:11], s{WD+k} offen {sf}")
    p(nst('p_ld'))
    p("s_branch L_a0")
    if 'nost' in XX: p.ins = [i for i in p.ins if not i.op.startswith('buffer_store')]
    out += p.finish()
    p = Prog()
    p("L_plx:")
    if tl:
        L = ["s_cmp_lt_u32 s2, 248", "s_cbranch_scc1 L_tl_e", "s_and_b32 s58, s2, 7"]
        vd = iter(range(200, 232))
        def run(srdr, base, sh, n):
            R = []
            for k in range(0, n, 64):
                R += [f"v_add_u32 v30, {k}, v2", f"v_min_u32 v30, {n - 1}, v30", f"v_lshlrev_b32 v30, {sh}, v30", f"buffer_load_dword v{next(vd)}, v30, s[{srdr}:{srdr+3}], {base} offen"]
            return R
        if 'w2' in tl:
            L += ["s_mov_b32 s88, s56", "s_mov_b32 s89, s57", f"s_mov_b32 s90, {576*4608*2}", "s_mov_b32 s91, 0x20000", f"s_mul_i32 s68, s58, {576*1152}"] + run(88, 's68', 12, 162)
        if 'out' in tl:
            L += ["s_mov_b32 s92, s42", "s_mov_b32 s93, s43", f"s_mov_b32 s94, {ACT}", "s_mov_b32 s95, 0x20000"] + run(92, '0', 12, 576)
        if 'out64' in tl:
            L += ["s_mov_b32 s92, s42", "s_mov_b32 s93, s43", f"s_mov_b32 s94, {ACT}", "s_mov_b32 s95, 0x20000"] + run(92, '0', 16, 36)
        if 'ws2m' in tl: L += run(8, '0', 21, 78)
        if 'ws64' in tl: L += run(8, '0', 16, 464) + [f"s_mov_b32 s68, {LS}"] + run(8, 's68', 16, 464)
        p(off("\n".join(L + ["L_tl_e:"])))
    p(f"""s_cmp_lt_u32 s2, {NO + 8}
s_cbranch_scc0 L_a0
s_mov_b32 s64, s56
s_mov_b32 s65, s57
s_and_b32 s58, s2, 7
s_mul_i32 s68, s58, {36*16*1152}
s_cmp_eq_u32 s58, 3
s_cselect_b32 s60, {4 if P3 else 32}, 32
s_mul_i32 s60, s60, {16*1152}
s_add_u32 s68, s68, s60
s_add_u32 s68, s68, {8*128}
v_mul_u32_u24 v{VS}, 1152, v{T+1}
v_add_u32 v{VS}, v{VS}, v{T+2}""")
    for i in range(8):
        if i % 4 == 0: p(f"s_mov_b32 m0, {(S80 if A2[0] else STG) + (i//4)*4096}")
        p(f"buffer_load_dwordx4 v{VS}, s[64:67], s68 offen offset:{(i%4)*1024} {slf} lds")
        if i < 7: p(f"s_add_u32 s68, s68, {8*1152 - 1024 if i % 4 < 3 else 8*1152 + 3072}")
    return out + p.finish()

LVS, LVB, LAG, LF, LD = 248, 251, 249, 252, 152
LATE_KA = "s_load_dwordx4 s[96:99], s[0:1], 32\ns_load_dwordx2 s[86:87], s[0:1], 48"
def late_setup(T=112):
    return f"""s_mov_b32 s55, 0
s_cmp_eq_u32 s63, 0
s_cbranch_scc0 L_ld_e
s_and_b32 s58, s2, 7
s_lshr_b32 s60, s2, 3
s_lshr_b32 s59, s60, 2
s_and_b32 s100, s60, 3
s_lshl_b32 s61, s16, 5
s_sub_u32 s61, s61, 32
s_cmp_eq_u32 s16, 3
s_cselect_b32 s55, 16, 32
s_cmp_lt_u32 s60, s55
s_cselect_b32 s55, 2, 1
s_cselect_b32 s61, s61, 0
s_add_u32 s60, s60, s61
s_sub_u32 s61, s2, {NO}
s_cmp_lt_u32 s61, 8
s_cselect_b32 s61, 0, 1
s_add_u32 s61, s61, 80
s_cmp_eq_u32 s16, 0
s_cselect_b32 s60, s61, s60
s_mul_i32 s61, s60, 7282
s_lshr_b32 s61, s61, 16
s_mul_i32 s62, s61, 9
s_sub_u32 s62, s60, s62
s_cmp_lt_u32 s60, 81
s_cselect_b32 s55, s55, 0
s_cmp_eq_u32 s55, 1
s_cselect_b32 s59, s59, s62
s_cselect_b32 s100, s100, s61
s_cselect_b32 s69, 8, 1
s_cselect_b32 s60, 72, 4
s_cselect_b32 s61, 0, 36
s_cselect_b32 s62, 9, 0
s_cselect_b32 s64, {4 if PX else 0}, 0
s_cselect_b32 s65, 0, {4 if PX else 0}
s_cmp_eq_u32 s100, 8
s_cselect_b32 s65, 0, s65
s_cmp_{PX or 'lt'}_u32 s58, 4
s_cselect_b32 s64, s64, 0
s_cselect_b32 s65, s65, 0
s_xor_b32 s64, s64, s59
s_xor_b32 s65, s65, s100
s_cmp_eq_u32 s55, 1
s_cselect_b32 s66, s64, s65
s_cmp_eq_u32 s66, 1
s_cselect_b32 s67, {9 if P3 else 0}, 0
s_cmp_eq_u32 s66, 8
s_cselect_b32 s67, {9 if P3 else 0}, s67
s_cmp_eq_u32 s58, 3
s_cselect_b32 s67, s67, 0
s_xor_b32 s66, s66, s67
s_cmp_eq_u32 s55, 1
s_cselect_b32 s64, s66, s64
s_cselect_b32 s65, s65, s66
s_mul_i32 s68, s65, s60
s_mul_i32 s61, s61, s58
s_add_u32 s68, s68, s61
s_mul_i32 s68, s68, {16*1152}
s_mul_i32 s61, s62, s58
s_add_u32 s61, s61, s64
s_lshl_b32 s61, s61, 7
s_add_u32 s68, s68, s61
s_mul_i32 s69, s69, 1152
{lane_off(T)}
v_mul_u32_u24 v{LVS}, s69, v{T+1}
v_add_u32 v{LVS}, v{LVS}, v{T+2}
v_lshlrev_b32 v{LVB}, 1, v2
s_lshl_b32 s69, s69, 3
s_sub_u32 s69, s69, 1024
s_mul_i32 s62, s16, 18432
s_add_u32 s62, s62, {55296 if A2[0] else STG}
{f"s_cmp_eq_u32 s16, 0{chr(10)}s_cselect_b32 s62, {S80}, s62" if A2[0] else ""}
s_mov_b32 s90, {576*4608*2}
s_mov_b32 s91, 0x20000
s_cmp_eq_u32 s55, 1
s_waitcnt lgkmcnt(0)
s_cselect_b32 s88, s96, s86
s_cselect_b32 s89, s97, s87
s_mov_b32 s44, s98
s_mov_b32 s45, s99
s_mov_b32 s46, {4608*2}
s_mov_b32 s47, 0x20000"""

def late_dmas(slf="nt", XX=()):
    L = ["s_cmp_eq_u32 s55, 0", "s_cbranch_scc1 L_ld_e", "s_cmp_eq_u32 s16, 0", "s_cbranch_scc1 L_ld_e"]
    for i in range(18):
        if i == 8: L += ["s_cmp_eq_u32 s55, 1", "s_cbranch_scc0 L_ld_e", f"buffer_load_ushort v{LVB}, v{LVB}, s[44:47], s61 offen"]
        if i % 4 == 0: L += [f"s_add_u32 m0, s62, {(i//4)*4096}", "s_nop 0"]
        if 'nold' not in XX: L.append(f"buffer_load_dwordx4 v{LVS}, s[88:91], s68 offen offset:{(i%4)*1024} {slf} lds")
        if i < 17: L.append("s_add_u32 s68, s68, s69")
        if i % 4 == 3: L.append("s_addk_i32 s68, 4096")
    return off("\n".join(L + ["L_ld_e:"]))

def late_dmas_uni(slf="nt", va=239, vd=247):
    def seq(n, lab):
        L = []
        for i in range(n):
            if i == 8: L.append(f"buffer_load_ushort v{LVB}, v{LVB}, s[44:47], s61 offen")
            if i % 4 == 0: L += [f"s_add_u32 m0, s62, {(i//4)*4096}", "s_nop 0"]
            L.append(f"buffer_load_dwordx4 v{LVS}, s[88:91], s68 offen offset:{(i%4)*1024} {slf} lds")
            if i < 17: L.append("s_add_u32 s68, s68, s69")
            if i % 4 == 3: L.append("s_addk_i32 s68, 4096")
        return L
    dm = lambda n: [f"v_mov_b32 v{va}, 0x40000000", "s_mov_b64 exec, 1"] + [f"buffer_load_dword v{vd}, v{va}, s[8:11], 0 offen"]*n + ["s_mov_b64 exec, -1", "s_branch L_lu_e"]
    main = ["s_cmp_eq_u32 s55, 1", "s_cbranch_scc0 L_lu_o"] + seq(18, 0) + ["L_lu_e:"]
    ool = ["L_lu_o:", "s_cmp_eq_u32 s55, 0", "s_cbranch_scc1 L_lu_0", "s_cmp_eq_u32 s16, 0", "s_cbranch_scc1 L_lu_0"] + seq(8, 0) + dm(11) + ["L_lu_0:"] + dm(19)
    return main, "".join(("" if l.endswith(':') else "  ") + l + "\n" for l in ool)

LD2, F4O = 184, 0x6000
def late_pre(T=112, run=True, split=False):
    L2 = LD2 if split else LD
    out = "  s_mov_b32 s38, s55\n  s_cmp_eq_u32 s55, 0\n  s_cbranch_scc1 L_lp_e\n  s_cmp_eq_u32 s55, 1\n  s_cbranch_scc0 L_lp_2\n"
    vt, c0, c1, one = T + 4, T + 5, T + 6, T + 7
    p = Prog()
    p(tr_addr(T, vt, 's62', 10))
    p(f"v_mov_b32 v{c0}, 0\nv_mov_b32 v{c1}, 0\nv_mov_b32 v{one}, 0x3f803f80")
    rd = [[f"ds_read_b64_tr_b16 v[{LD+4*u+2*h}:{LD+4*u+2*h+1}], v{vt} offset:{(u//2)*2048 + (u%2)*512 + h*256}" for h in range(2)] for u in range(18)]
    for x in rd[:7]: p.ext(x)
    p(dest_w1(T, LAG))
    for u in range(18):
        p.ext([f"v_dot2c_f32_bf16 v{(c0, c1)[u%2]}, v{one}, v{LD+4*u+q}" for q in range(4)])
        if u + 7 < 18: p.ext(rd[u + 7])
    p(fin_val(c0, c1, LF, LVB))
    p("s_branch L_lp_e")
    out += p.finish()
    p = Prog()
    p("L_lp_2:")
    p(tr_addr(T, vt, 's62', 8))
    for u in range(8):
        for h in range(2): p(f"ds_read_b64_tr_b16 v[{L2+4*u+2*h}:{L2+4*u+2*h+1}], v{vt} offset:{(u//2)*2048 + (u%2)*512 + h*1024}")
    p(f"""s_and_b32 s62, s59, 1
s_lshl_b32 s62, s62, 1
s_lshl_b32 s60, s58, 2
s_add_u32 s62, s62, s60
s_mul_i32 s62, s62, {WB}
s_add_u32 s62, s62, {WSTR}
s_lshr_b32 s68, s59, 1
s_add_u32 s61, s68, 1
s_and_b32 s61, s61, 3
s_lshl_b32 s61, s61, 4
s_add_u32 s61, s61, 265
s_cmp_eq_u32 s59, 8
s_cselect_b32 s69, 2, 1
s_cselect_b32 s61, 257, s61
s_cselect_b32 s101, 0, 1
s_mul_i32 s69, s69, {WB}
s_lshl_b32 s100, s100, 1""")
    W2D = [(86, 87, 88, 89), (90, 91, 96, 97)]
    for a0, a1, b0, b1 in W2D:
        p(f"""s_sub_u32 s60, s100, 8
s_cmp_lt_u32 s100, 8
s_cselect_b32 s{a0}, s100, s60
s_mul_i32 s{a0}, s{a0}, 9
s_add_u32 s{a0}, s{a0}, 167
s_add_u32 s{a0}, s{a0}, s68
s_lshl_b32 s99, s60, s101
s_add_u32 s99, s99, s61
s_cmp_lt_u32 s60, 8
s_cselect_b32 s{a0}, s99, s{a0}
s_cselect_b32 s99, 1, 5
s_lshl_b32 s99, s99, 10
s_cmp_eq_u32 s101, 0
s_cselect_b32 s99, {WB}, s99
s_cselect_b32 s98, 0, s99
s_lshl_b32 s{a0}, s{a0}, 10
s_add_u32 s{a0}, s{a0}, s62
s_add_u32 s{b0}, s{a0}, s99
s_add_u32 s{a1}, s{a0}, s69
s_add_u32 s{b1}, s{a1}, s99
s_sub_u32 s{b1}, s{b1}, s98
s_add_u32 s{a1}, s{a1}, s98
s_add_u32 s100, s100, 1""")
    if run:
        p("""s_sub_u32 s60, s88, s86
s_sub_u32 s61, s90, s88
s_sub_u32 s62, s89, s87
s_sub_u32 s91, s91, s89
s_mov_b32 s88, s60
s_mov_b32 s89, s61
s_mov_b32 s90, s62
s_mov_b32 s60, s86
s_mov_b32 s86, s87
s_mov_b32 s87, s60""")
    p("s_waitcnt lgkmcnt(0)")
    q = Prog()
    if run: q(f"""s_cmp_eq_u32 s55, 0
s_cselect_b32 s60, 0x40000000, 0
v_or_b32 v{LSA}, s60, v3
s_cmp_eq_u32 s55, 1
s_cselect_b32 s60, 0, 0x40000000
v_or_b32 v{LSB}, s60, v3
v_or_b32 v{LAG}, s60, v{LAG}""")
    return out + p.finish() + "L_lp_e:\n" + q.finish()

LSA, LSB = 254, 255
def late_stu(sf="sc1", n=1, XX=()):
    L = []
    for u in range(18):
        sr = (87, 86)[u % 2]
        g = [f"s_mov_b64 exec, s[{34 if u < 8 else 36}:{35 if u < 8 else 37}]"] if (u % n == 0 or u == 8) else []
        g.append(I(f"buffer_store_dwordx4 v[{LD+4*u}:{LD+4*u+3}], v{LSA if u < 8 else LSB}, s[8:11], s{sr} offen {sf}", tag='xl'))
        if u % n == n - 1 or u == 17: g.append("s_mov_b64 exec, -1")
        if u < 16: g.append(f"s_add_u32 s{sr}, s{sr}, s{88 + 2*(u%2) + (u//2) % 2}")
        if u % n == 0: L.append(g)
        else: L[-1] += g
    L.append(["s_mov_b64 exec, s[36:37]"] + [I(f"buffer_store_dwordx2 v[{LF}:{LF+1}], v{LAG}, s[8:11], s{sr} offen {sf}", tag='xl') for sr in (96, 97)] + ["s_mov_b64 exec, -1"])
    if 'nost' in XX: L = [[x for x in g if not isinstance(x, I)] for g in L]
    if 'noex' in XX: L = [[x for x in g if isinstance(x, I) or 'exec' not in x] for g in L]
    return L

def late_w2(sf="sc1"):
    return off("\n".join(["s_cmp_eq_u32 s38, 2", "s_cbranch_scc0 L_lw2_e"] + [f"buffer_store_dwordx4 v[{LD2+4*u}:{LD2+4*u+3}], v3, s[8:11], s{sr} offen {sf}" for u, sr in enumerate((86, 87, 88, 89, 90, 91, 96, 97))] + ["L_lw2_e:"])).split("\n")

def late_st(tag, sf="sc1", XX=(), uni=True, vd=254, vo=255, split=False):
    st = lambda u, sr: f"buffer_store_dwordx4 v[{LD+4*u}:{LD+4*u+3}], v3, s[8:11], s{sr} offen {sf}"
    L1 = []
    for u in range(18):
        sr = (87, 86)[u % 2]
        L1 += [st(u, sr)] + ([f"s_add_u32 s{sr}, s{sr}, s{88 + 2*(u%2) + (u//2) % 2}"] if u < 16 else [])
    L2 = [st(u, sr) for u, sr in enumerate((86, 87, 88, 89, 90, 91, 96, 97))]
    if uni:
        L1 += [f"buffer_store_dwordx2 v[{LF}:{LF+1}], v{LAG}, s[8:11], s{sr} offen {sf}" for sr in (96, 97)]
        dm = lambda n: [f"v_mov_b32 v{vo}, 0x40000000", "s_mov_b64 exec, 1"] + [f"buffer_load_dword v{vd}, v{vo}, s[8:11], 0 offen"]*n + ["s_mov_b64 exec, -1", f"s_branch L_{tag}_e"]
        main = "\n".join(["s_cmp_eq_u32 s55, 1", f"s_cbranch_scc0 L_{tag}_o"] + L1 + [f"L_{tag}_e:"])
        ool = [f"L_{tag}_o:", "s_cmp_eq_u32 s55, 0", f"s_cbranch_scc1 L_{tag}_0"] + L2 + dm(12) + [f"L_{tag}_0:"] + dm(20)
        return main, "".join(("" if l.endswith(':') else "  ") + l + "\n" for l in ool)
    L1 += [f"buffer_store_dwordx2 v[{LF}:{LF+1}], v{LAG}, s[8:11], s96 offen {sf}", "s_cmp_eq_u32 s96, s97", f"s_cbranch_scc1 L_{tag}_e",
           f"buffer_store_dwordx2 v[{LF}:{LF+1}], v{LAG}, s[8:11], s97 offen {sf}", f"s_branch L_{tag}_e"]
    if 'nost' in XX: L1 = [x for x in L1 if not x.startswith('buffer')]; L2 = []
    if split: L2 = []
    return off("\n".join(["s_cmp_eq_u32 s55, 0", f"s_cbranch_scc1 L_{tag}_e", "s_cmp_eq_u32 s55, 1", f"s_cbranch_scc0 L_{tag}_2"] + L1 + [f"L_{tag}_2:"] + L2 + [f"L_{tag}_e:"])), ""

HEAD = f"""  v_lshlrev_b32 v20, 2, v2
  v_mov_b32 v21, -1
  v_mov_b32 v22, 0
  v_add_u32 v20, {LX}, v20
  ds_write_b32 v20, v21
  ds_write_b32 v20, v22 offset:256
  v_mov_b32 v7, 0
  v_mov_b32 v13, 0
  v_mov_b32 v{LAG}, 0
  s_mov_b32 s3, 0
  s_cmp_eq_u32 s16, 3
  s_cbranch_scc1 L_pl
"""

def a0_go(two=False):
    return f"""s_lshl_b32 s56, s19, {8 if two else 9}
s_lshl_b32 s57, s20, {8 if two else 7}
s_sub_u32 s57, s57, {256 if two else 512}
v_mov_b32 v161, s56
v_mov_b32 v162, s57
v_cmp_lt_u32 vcc, {15 if two else 31}, v2
v_cndmask_b32 v161, v161, v162, vcc
v_add_u32 v161, v161, v3
s_mov_b32 s56, {FL1}
v_mov_b32 v162, {TAGL if two else LC + 16}
s_and_b32 s57, s2, 7
s_lshl_b32 s57, s57, 10
s_add_u32 s57, s57, {PFL}
s_lshl_b32 s58, s2, 2
s_add_u32 s58, s58, {PFL}
s_mov_b32 s49, 0x40000
s_cmp_eq_u32 s16, 0
s_cbranch_scc0 L_a0p_go
ds_write_b32 v162, v{VN} ; @
s_mov_b32 exec_hi, {0 if two else 0xff}
L_a0p_poll:
buffer_load_dword v250, v161, s[8:11], s56 offen sc1 ; @
s_waitcnt vmcnt(0) lgkmcnt(0) ; @
v_cmp_ne_u32 vcc, v250, v{VN}
s_nop 4
s_cbranch_vccz L_a0p_ok
s_sub_u32 s49, s49, 1
s_cmp_eq_u32 s49, 0
s_cbranch_scc0 L_a0p_poll
L_a0p_ok:
s_mov_b64 exec, -1
L_a0p_go:
s_barrier"""

def fchk(n, v, sa, tag):
    CHK = [f"v_xor_b32 v{v+i}, {tag}, v{v+i}" for i in range(4)] + [f"v_or3_b32 v{v}, v{v}, v{v+1}, v{v+2}", f"v_or_b32 v{v}, v{v}, v{v+3}", f"v_cmp_ne_u32 vcc, 0, v{v}"]
    LD = f"buffer_load_dwordx4 v[{v}:{v+3}], v3, s[8:11], s{sa} offen sc1"
    LOOP = f"L_{n}_w:\n  s_mov_b32 s49, 0x40000\nL_{n}_l:\n" + "".join("  " + l + "\n" for l in ["s_nop 15"]*8 + [LD, "s_waitcnt vmcnt(0)"] + CHK + ["s_sub_u32 s49, s49, 1", "s_cmp_eq_u32 s49, 0", f"s_cbranch_scc1 L_{n}_k", "s_nop 2", f"s_cbranch_vccnz L_{n}_l", f"s_branch L_{n}_k"])
    return LD, CHK, [f"s_cbranch_vccnz L_{n}_w", f"L_{n}_k:"], LOOP
def fsig(n, vd, va, sa):
    return ["s_cmp_eq_u32 s16, 0", f"s_cbranch_scc0 L_{n}_ns", f"v_mov_b32 v{vd}, s3", f"v_lshlrev_b32 v{va}, 10, v2", "s_mov_b64 exec, 0xff", f"buffer_store_dword v{vd}, v{va}, s[8:11], s{sa} offen sc1 ; @", "s_mov_b64 exec, -1", f"L_{n}_ns:"]
F3O = 0x2000
```
